```python
import torch

def _softmax(x, axis=-1):
    return torch.softmax(x, dim=axis)
def _gelu(x):
    return torch.nn.functional.gelu(x, approximate="tanh")
def _silu(x):
    return torch.nn.functional.silu(x)
def _sigmoid(x):
    return torch.sigmoid(x)
def _layernorm(x, axis=-1, eps=1e-5):
    m = x.mean(dim=axis, keepdim=True)
    v = x.var(dim=axis, keepdim=True, unbiased=False)
    return (x - m) / torch.sqrt(v + eps)
def _scatter_add(tgt, idx, src, axis=0):
    return tgt.clone().index_add_(axis, idx, src)
def _segment_sum(src, seg, n):
    out = torch.zeros((n,) + src.shape[1:], dtype=src.dtype)
    return out.index_add_(0, seg, src)
def _pad(x, pw):
    flat = tuple(v for pair in reversed(pw) for v in pair)
    return torch.nn.functional.pad(x, flat)

kernel_name = 'gated_mix__gqa_block_cached__geglu_ffn__decode'

def setup_inputs():

    _w = (lambda a: (lambda t: t.to(torch.bfloat16) if t.is_floating_point() else t)(torch.as_tensor(a)))
    def _A_setup():
        B, Sq, D = 8, 1, 512
        Hq, Hkv, Sk, Dh = 32, 8, 8192, 128
        assert Hq % Hkv == 0, (Hq, Hkv)
        return {
            "x": _w((lambda *s: torch.randn(*s, dtype=torch.bfloat16) * 0.05)(B, Sq, D)),
            "k_cache": _w((lambda *s: torch.randn(*s, dtype=torch.bfloat16) * 6.4)(B, Hkv, Sk, Dh)),
            "v_cache": _w((lambda *s: torch.randn(*s, dtype=torch.bfloat16) * 0.2)(B, Hkv, Sk, Dh)),
            "wq": _w((lambda *s: torch.randn(*s, dtype=torch.bfloat16) * 6.4)(D, Hq * Dh) * (D ** -0.5)),
            "wo": _w((lambda *s: torch.randn(*s, dtype=torch.bfloat16) * 0.2)(Hq * Dh, D) * ((Hq * Dh) ** -0.5)),
        }
    _A_in = _A_setup()

    def _B_setup():
        B, S, D, F = 8, 1, 512, 1792
        return {
            "x": _w((lambda *s: torch.randn(*s, dtype=torch.bfloat16) * 0.05)(B, S, D)),
            "w_gate": _w((lambda *s: torch.randn(*s, dtype=torch.bfloat16) * 0.05)(D, F)),
            "w_up": _w((lambda *s: torch.randn(*s, dtype=torch.bfloat16) * 0.05)(D, F)),
            "w_down": _w((lambda *s: torch.randn(*s, dtype=torch.bfloat16) * 0.05)(F, D)),
        }
    _B_in = _B_setup()

    return {
        "A_x": _A_in["x"],
        "A_k_cache": _A_in["k_cache"],
        "A_v_cache": _A_in["v_cache"],
        "A_wq": _A_in["wq"],
        "A_wo": _A_in["wo"],
        "B_x": _B_in["x"],
        "B_w_gate": _B_in["w_gate"],
        "B_w_up": _B_in["w_up"],
        "B_w_down": _B_in["w_down"],
        "gate_w": _w((lambda *s: torch.randn(*s, dtype=torch.bfloat16) * 0.05)(512) * 16.0),
    }

def reference(A_x, A_k_cache, A_v_cache, A_wq, A_wo, B_x, B_w_gate, B_w_up, B_w_down, gate_w):
    def _A_ref(x, k_cache, v_cache, wq, wo):
        B, Sq, D = x.shape
        Hq, Dh = 32, 128
        Hkv = k_cache.shape[1]
        rep = Hq // Hkv
        q = (lambda x, *d: x.permute(*d))((x @ wq).reshape(B, Sq, Hq, Dh), 0, 2, 1, 3)
        k = (lambda x, n, axis: torch.repeat_interleave(x, n, dim=axis))(k_cache, rep, axis=1)
        v = (lambda x, n, axis: torch.repeat_interleave(x, n, dim=axis))(v_cache, rep, axis=1)
        scores = torch.einsum("bhqd,bhkd->bhqk", q, k) * (Dh ** -0.5)
        p = _softmax(scores, axis=-1)
        o = torch.einsum("bhqk,bhkd->bhqd", p, v)
        return (lambda x, *d: x.permute(*d))(o, 0, 2, 1, 3).reshape(B, Sq, Hq * Dh) @ wo

    def _B_ref(x, w_gate, w_up, w_down):
        return (_gelu(x @ w_gate) * (x @ w_up)) @ w_down

    x = A_x
    g = _sigmoid((x * gate_w).sum(-1, keepdims=True))
    a = _A_ref(x, A_k_cache, A_v_cache, A_wq, A_wo)
    b = _B_ref(x, B_w_gate, B_w_up, B_w_down)
    return g * a + (1 - g) * b
```

```python
import re

TRANS = ("v_exp_f32", "v_log_f32", "v_rcp_f32", "v_rsq_f32", "v_sqrt_f32", "v_sin_f32", "v_cos_f32")

def parse_regs(tok):
    tok = tok.strip()
    tok = re.sub(r"^-", "", tok)
    m = re.match(r"^abs\((.*)\)$", tok)
    if m: tok = m.group(1)
    m = re.match(r"^\|(.*)\|$", tok)
    if m: tok = m.group(1)
    m = re.match(r"^([vsa])(\d+)$", tok)
    if m: return {(m.group(1), int(m.group(2)))}
    m = re.match(r"^([vsa])\[(\d+):(\d+)\]$", tok)
    if m: return {(m.group(1), i) for i in range(int(m.group(2)), int(m.group(3)) + 1)}
    if tok in ("vcc", "vcc_lo", "vcc_hi"): return {("vcc", 0)}
    if tok in ("exec", "exec_lo", "exec_hi"): return {("exec", 0)}
    if tok == "m0": return {("m0", 0)}
    return set()

class Ins:
    def __init__(self, text):
        self.text = text
        t = text.split(";")[0].strip()
        self.is_label = t.endswith(":")
        self.is_dir = t.startswith(".") or t == ""
        self.op = ""
        self.dst = set(); self.src = set()
        self.kind = "other"
        self.srcC = set(); self.srcAB = set()
        self.states = 1
        if self.is_label or self.is_dir:
            self.states = 0
            return
        parts = t.split(None, 1)
        self.op = op = parts[0]
        ops = []
        if len(parts) > 1:
            ops = [o.strip() for o in re.split(r",(?![^\[]*\])", parts[1])]
            last = ops[-1].split()
            if last:
                ops[-1] = last[0]
                self.mods = last[1:]
            else:
                self.mods = []
        else:
            self.mods = []
        R = [parse_regs(o) for o in ops]
        if op == "s_nop":
            self.states = int(ops[0], 0) + 1
            self.kind = "nop"
        elif op.startswith("v_mfma"):
            self.kind = "mfma"
            self.dst = R[0]; self.srcAB = R[1] | R[2]; self.srcC = R[3]
            self.src = self.srcAB | self.srcC
            self.passes = 4 if "16x16x32" in op else 8
        elif op.startswith("v_cmp"):
            self.kind = "valu"
            self.dst = R[0]; self.src = set().union(*R[1:])
        elif op in ("v_readfirstlane_b32", "v_readlane_b32"):
            self.kind = "valu"; self.dst = R[0]; self.src = set().union(*R[1:])
        elif op.startswith("v_permlane") and "swap" in op:
            self.kind = "valu"; self.dst = R[0] | R[1]; self.src = R[0] | R[1]
        elif op.startswith("v_"):
            self.kind = "valu"
            self.dst = R[0]; self.src = set().union(*R[1:]) if len(R) > 1 else set()
            if op.startswith("v_fmac") or op.startswith("v_dot2c") or op.startswith("v_pk_fmac"):
                self.src |= R[0]
            if op.startswith("v_add_co") or op.startswith("v_addc_co") or op.startswith("v_sub_co"):
                self.dst = R[0] | R[1]; self.src = set().union(*R[2:])
            if op.startswith("v_cndmask") and len(R) == 3:
                self.src |= {("vcc", 0)}
        elif op.startswith("ds_read") or op.startswith("ds_bpermute") or op.startswith("ds_swizzle"):
            self.kind = "ds"; self.dst = R[0]; self.src = set().union(*R[1:])
        elif op.startswith("ds_"):
            self.kind = "ds"; self.src = set().union(*R)
        elif op.startswith("buffer_load") or op.startswith("global_load"):
            self.kind = "vmem"
            if "lds" in self.mods or "_lds_" in op:
                self.src = set().union(*R) | {("m0", 0)}
                self.ldsdma = True
            else:
                self.dst = R[0]; self.src = set().union(*R[1:])
        elif op.startswith("buffer_store") or op.startswith("global_store"):
            self.kind = "vmem"; self.src = set().union(*R)
            self.store_data = R[0] if op.startswith("buffer") else R[1]
            self.wide = op.endswith("x4") or op.endswith("x3")
        elif op.startswith("buffer_atomic") or op.startswith("global_atomic"):
            self.kind = "vmem"; self.src = set().union(*R)
            if "sc0" in self.mods: self.dst = R[0]
        elif op.startswith("s_"):
            self.kind = "salu"
            if op.startswith("s_cmp") or op.startswith("s_cbranch") or op in ("s_branch", "s_barrier", "s_waitcnt", "s_endpgm", "s_sleep", "s_setprio"):
                self.src = set().union(*R) if R else set()
            else:
                self.dst = R[0] if R else set(); self.src = set().union(*R[1:]) if len(R) > 1 else set()
                if "saveexec" in op: self.dst |= {("exec", 0)}

def need(prod, cons):
    n = 0
    pv = {r for r in prod.dst if r[0] in "va"}
    ps = {r for r in prod.dst if r[0] in ("s", "vcc")}
    if prod.kind == "valu":
        if cons.kind == "mfma" and pv & cons.src: n = max(n, 2)
        if prod.op.replace("_e32", "").replace("_e64", "") in TRANS and cons.kind in ("valu", "mfma") and pv & cons.src: n = max(n, 1)
        if prod.op.replace("_e32", "").replace("_e64", "") in TRANS and cons.kind in ("vmem", "ds") and pv & cons.src: n = max(n, 1)
        if cons.kind == "valu" and ps & cons.src:
            n = max(n, 4 if cons.op in ("v_readlane_b32", "v_writelane_b32") else 2)
        if cons.kind == "vmem" and ps & cons.src: n = max(n, 5)
        if cons.op in ("v_readfirstlane_b32", "v_readlane_b32") and pv & cons.src: n = max(n, 1)
        if cons.op.startswith("v_permlane") and pv & cons.src: n = max(n, 2)
        if cons.kind == "valu" and any(m.startswith(("row_", "quad_perm", "wave_", "row_bcast")) for m in cons.mods) and pv & cons.src: n = max(n, 2)
    if prod.kind == "mfma":
        P = prod.passes
        big = {4: 8, 8: 12}[P]
        if cons.kind == "mfma":
            if prod.dst & cons.srcAB: n = max(n, big)
            if prod.dst & cons.srcC:
                if not (prod.dst == cons.srcC and cons.passes == P): n = max(n, {4: 6, 8: 10}[P])
            if prod.dst & cons.dst and not (prod.dst == cons.srcC): n = max(n, big)
        elif cons.kind in ("valu", "vmem", "ds"):
            if prod.dst & (cons.src | cons.dst): n = max(n, big)
            if cons.kind == "valu" and prod.srcC & cons.dst: n = max(n, {4: 3, 8: 7}[P])
    if prod.kind == "salu" and ("m0", 0) in prod.dst and getattr(cons, "ldsdma", False): n = max(n, 1)
    if prod.kind == "vmem" and getattr(prod, "wide", False):
        if prod.store_data & cons.dst: n = max(n, 2 if cons.kind in ("valu", "mfma") else 1)
    return n

def pad_hazards(lines, window=24):
    out = []
    nins = 0
    for t in lines:
        c = Ins(t)
        if not (c.is_label or c.is_dir):
            dist = 0; req = 0
            for p in reversed(out[-window*2:]):
                if p.is_label or p.is_dir: continue
                r = need(p, c)
                if r > dist: req = max(req, r - dist)
                dist += p.states
                if dist >= 20: break
            while req > 0:
                k = min(req, 16)
                out.append(Ins(f"  s_nop {k-1}"))
                nins += 1
                req -= k
        out.append(c)
    return [i.text for i in out], nins

class Asm:
    def __init__(self):
        self.L = []
    def __call__(self, s):
        for line in s.split("\n"):
            line = line.rstrip()
            if line.strip() == "": continue
            self.L.append(line if (line.strip().endswith(":") or line.startswith(("  ", ".", ";"))) else "  " + line)
    def label(self, name): self.L.append(name + ":")
    def flush(self, n=9):
        self.L.append(f"  s_nop {n-1}")
    def text(self):
        lines, n = pad_hazards(self.L)
        return "\n".join(lines) + "\n", n
```

```python
import sys, struct
from asmlib import Asm
out = sys.argv[1]
OPT = dict(stamps=0, Wp=8, npre=0, hdr=1, stag=12, hslp=32, qslp=8, D=2, bpre=1, npr=5, lead=3, dslp=4, nocomp=0)
for a_ in sys.argv[2:]:
    k, v = a_.split("="); OPT[k] = int(v)
Wp = OPT["Wp"]; NPRE = OPT["npre"]; D = OPT["D"]
NAME = "gated_mix__gqa_block_cached__geglu_ffn__decode"
def f32(x): return "0x%08x" % struct.unpack("<I", struct.pack("<f", x))[0]
LOG2E = 1.4426950408889634
SCALE = 128 ** -0.5
QG, HG, ML, BP, PART, AP, STAMP, CNT = 0x0, 0x20000, 0x40000, 0x80000, 0x100000, 0x200000, 0x400000, 0x480000
CSTR = 4096 + 256
WS_BYTES = 0x500000
R1 = 0x20000
Q_LDS = R1
MISC = R1 + 0x800
O_LDS = R1 + 0x1000
WD_LDS = R1 + 0x2000
R2 = 0x24000
WO_LDS = R2
LDS_BYTES = 0x28000
NU = 1024
NPR = OPT["npr"]; LEAD = OPT["lead"]
TK = MISC + 128; CH = MISC + 256
CB = 32 + 8*NPR
SPIN = 1 << 16
a = Asm()
hdr = open("cdna_kernels/%s.s.ref" % NAME).read().split("; Override launch")[0] if OPT["hdr"] else ""
a.L += [l for l in hdr.rstrip().split("\n")] if hdr else []
a.L.append(f"; @launch grid=(256,1,1) block=(576,1,1) lds={LDS_BYTES}")
a.L += ['.amdgcn_target "amdgcn-amd-amdhsa--gfx950"', ".text", f".globl {NAME}_kernel", ".p2align 8",
        f".type {NAME}_kernel,@function", f"{NAME}_kernel:"]

def srd(d, ptr, nbytes):
    a(f"s_mov_b32 s{d}, s{ptr}\ns_mov_b32 s{d+1}, s{ptr+1}\ns_mov_b32 s{d+2}, {hex(nbytes)}\ns_mov_b32 s{d+3}, 0x00020000")
P_X, P_K, P_V, P_WQ, P_WO, P_BX, P_WG, P_WU, P_WD, P_GW, P_OUT, P_DBG, P_WS = [32 + 2*i for i in range(13)]
def stamp(idx):
    if OPT["stamps"]:
        a(f"s_memrealtime s[{80+2*idx}:{81+2*idx}]")
def any_eq(regs, val, neg=False):
    op = "v_cmp_ne_u32" if neg else "v_cmp_eq_u32"
    a(f"{op} vcc, {val}, v{regs[0]}")
    for r in regs[1:]:
        a(f"{op} s[78:79], {val}, v{r}\ns_or_b64 vcc, vcc, s[78:79]")
def spin_tail(loop, done, sleep=0):
    a(f"""
s_sub_u32 s76, s76, 1
s_cmp_eq_u32 s76, 0
s_cbranch_scc1 {done}
""")
    if sleep:
        a(f"s_cmp_eq_u64 vcc, 0\ns_cbranch_scc1 {done}\ns_sleep {sleep}\ns_branch {loop}")
    else:
        a(f"s_cmp_lg_u64 vcc, 0\ns_cbranch_scc1 {loop}")
    a.label(done)
def xsum(regs, tmps, ror, op="v_add_f32", swaps=("v_permlane16_swap_b32", "v_permlane32_swap_b32")):
    for k in ror:
        for r in regs: a(f"{op}_dpp v{r}, v{r}, v{r} row_ror:{k} row_mask:0xf bank_mask:0xf")
    for sw in swaps:
        for r, t in zip(regs, tmps): a(f"v_mov_b32 v{t}, v{r}")
        for r, t in zip(regs, tmps): a(f"{sw} v{r}, v{t}")
        for r, t in zip(regs, tmps): a(f"{op} v{r}, v{r}, v{t}")
SEL = 42
def tag_consts(base):
    for j in range(4): a(f"s_mov_b32 s{base+j}, {hex(0x07060500 | j)}")
    a(f"s_mov_b32 s{base+4}, 0x0c0c0400\ns_mov_b32 s{base+5}, 0x04000c0c")
def tag_ins(r, vn, base):
    for j in range(4): a(f"v_perm_b32 v{r+j}, v{r+j}, v{vn}, s{base+j}")
def tag_bad(grans, vn, base, acc, t0, t1):
    for n_, r in enumerate(grans):
        a(f"v_perm_b32 v{t0}, v{r+1}, v{r}, s{base+4}\nv_perm_b32 v{t1}, v{r+3}, v{r+2}, s{base+5}")
        if n_ == 0:
            a(f"v_or_b32 v{acc}, v{t0}, v{t1}\nv_xor_b32 v{acc}, v{acc}, v{vn}")
        else:
            a(f"v_or_b32 v{t0}, v{t0}, v{t1}\nv_xor_b32 v{t0}, v{t0}, v{vn}\nv_or_b32 v{acc}, v{acc}, v{t0}")

a("""
s_cmp_ge_u32 s2, 256
s_cbranch_scc1 L_end
s_load_dwordx16 s[32:47], s[0:1], 0
s_load_dwordx8 s[48:55], s[0:1], 64
s_load_dwordx2 s[56:57], s[0:1], 96
""")
stamp(0)
a("""
v_lshrrev_b32 v1, 6, v0
v_and_b32 v0, 63, v0
s_mov_b32 s16, s2
v_readfirstlane_b32 s3, v1
s_and_b32 s17, s16, 7
s_lshr_b32 s18, s16, 3
s_and_b32 s19, s18, 7
s_lshr_b32 s20, s18, 3
s_cmp_lt_u32 s3, 8
s_cbranch_scc1 L_stream
""")
AFR = 16; D0 = 48; D1 = 52; WDV = 64; GX = 92; GW = 96; XF = 100; GG = 164; VN = 166
a("s_setprio 3")
a(f"""
s_memrealtime s[74:75]
s_lshl_b32 s21, s17, 5
s_add_u32 s21, s21, s18
v_lshrrev_b32 v3, 1, v0
v_and_b32 v4, 1, v0
v_lshlrev_b32 v4, 4, v4
v_lshl_add_u32 v1, v3, 13, v4
s_lshl_b32 s25, s21, 5
v_add_u32 v1, s25, v1
v_and_b32 v10, 15, v0
v_lshrrev_b32 v11, 4, v0
v_lshlrev_b32 v2, 4, v11
v_lshl_add_u32 v2, v10, 10, v2
s_mov_b64 s[72:73], 1
v_mov_b32 v15, 252
v_mov_b32 v13, 0
s_min_u32 s22, s18, 27
s_lshr_b32 s22, s22, 1
s_mul_i32 s25, s17, 14
s_add_u32 s22, s22, s25
s_and_b32 s23, s18, 1
s_movk_i32 s25, 3584
v_mul_lo_u32 v5, v3, s25
v_add_u32 v5, v5, v4
s_lshl_b32 s25, s22, 5
v_add_u32 v5, s25, v5
v_lshrrev_b32 v6, 3, v0
v_and_b32 v7, 7, v0
v_lshlrev_b32 v7, 4, v7
v_lshl_add_u32 v6, v6, 10, v7
v_lshlrev_b32 v3, 4, v0
s_waitcnt lgkmcnt(0)
""")
stamp(8)
srd(68, P_DBG, 256)
a(f"""
s_cmp_ge_u32 s16, 8
s_cbranch_scc1 L_nononce
s_or_b32 s74, s74, 1
v_mov_b32 v12, s74
s_mov_b64 exec, s[72:73]
buffer_atomic_cmpswap v[12:13], v15, s[68:71], 0 offen sc1
s_mov_b64 exec, -1
""")
a.label("L_nononce")
srd(60, P_WQ, 512*4096*2); srd(64, P_X, 8192)
a("s_mov_b32 s25, 0")
for t in range(16):
    a(f"s_mov_b32 m0, {R1 + 1024*t}")
    if t: a(f"s_mov_b32 s25, {t*32*8192}")
    a(f"buffer_load_dwordx4 v1, s[60:63], s25 offen lds")
for s_ in range(16):
    a(f"buffer_load_dwordx4 v[{XF+4*s_}:{XF+4*s_+3}], v2, s[64:67], 0 offen offset:{64*s_}")
srd(12, P_WS, WS_BYTES)
a(f"""
s_cmp_lg_u32 s17, 0
s_cbranch_scc1 L_nocnt
s_mul_i32 s25, s18, {CSTR}
s_add_u32 s25, s25, {CNT}
s_mov_b64 exec, s[72:73]
buffer_store_dword v13, v13, s[12:15], s25 offen sc1
s_mov_b64 exec, -1
""")
a.label("L_nocnt")
a("buffer_load_dword v12, v15, s[68:71], 0 offen sc1")
def bpre():
    stamp(9)
    a("s_barrier")
    stamp(1)
if OPT["bpre"] == 0: bpre()
a(f"""
s_cmp_eq_u32 s23, 0
s_cselect_b32 s4, s{P_WG}, s{P_WU}
s_cselect_b32 s5, s{P_WG+1}, s{P_WU+1}
s_mov_b32 s6, {512*1792*2}
s_mov_b32 s7, 0x00020000
s_mov_b32 s25, 0
""")
for t in range(16):
    a(f"s_mov_b32 m0, {R2 + 1024*t}")
    if t: a(f"s_mov_b32 s25, {t*32*3584}")
    a(f"buffer_load_dwordx4 v5, s[4:7], s25 offen lds")
srd(4, P_WD, 1792*512*2); srd(8, P_GW, 1024)
a(f"""
s_lshl_b32 s27, s17, 7
s_mul_i32 s26, s18, {56*1024}
s_add_u32 s26, s26, s27
""")
for t in range(7):
    a(f"buffer_load_dwordx4 v[{WDV+4*t}:{WDV+4*t+3}], v6, s[4:7], s26 offen nt")
    if t < 6: a("s_add_u32 s26, s26, 8192")
a(f"""
s_lshr_b32 s25, s16, 5
s_lshl_b32 s25, s25, 10
buffer_load_dwordx4 v[{GX}:{GX+3}], v3, s[64:67], s25 offen
buffer_load_dwordx4 v[{GW}:{GW+3}], v3, s[8:11], 0 offen
""")
if OPT["bpre"] == 1: bpre()
a(f"""
v_lshrrev_b32 v8, 2, v10
v_lshl_add_u32 v8, v11, 3, v8
v_lshlrev_b32 v9, 5, v8
v_and_b32 v8, 3, v0
v_lshl_add_u32 v9, v8, 3, v9
v_add_u32 v8, {R2}, v9
v_add_u32 v9, {R1}, v9
v_cmp_gt_u32 s[58:59], 8, v10
s_mov_b32 s76, {SPIN}
s_waitcnt vmcnt(25)
""")
a.label("L_np")
a(f"""
v_readfirstlane_b32 s74, v12
s_sub_u32 s76, s76, 1
s_cmp_eq_u32 s76, 0
s_cbranch_scc1 L_np_done
s_cmp_lg_u32 s74, 0
s_cbranch_scc1 L_np_done
buffer_load_dword v12, v15, s[68:71], 0 offen sc1
s_waitcnt vmcnt(0)
s_branch L_np
""")
a.label("L_np_done")
stamp(2)
def gemv(va, Dr):
    def rd(bt):
        base = AFR + 16*(bt & 1)
        for k in range(4):
            t = 4*bt + k
            a(f"ds_read_b64_tr_b16 v[{base+4*k}:{base+4*k+1}], v{va} offset:{1024*t}")
            a(f"ds_read_b64_tr_b16 v[{base+4*k+2}:{base+4*k+3}], v{va} offset:{1024*t+128}")
    rd(0)
    for bt in range(4):
        if bt < 3:
            rd(bt+1); a("s_waitcnt lgkmcnt(8)")
        else:
            a("s_waitcnt lgkmcnt(0)")
        base = AFR + 16*(bt & 1)
        for k in range(4):
            t = 4*bt + k
            c = "0" if t == 0 else f"v[{Dr}:{Dr+3}]"
            a(f"v_mfma_f32_16x16x32_bf16 v[{Dr}:{Dr+3}], v[{base+4*k}:{base+4*k+3}], v[{XF+4*t}:{XF+4*t+3}], {c}")
gemv(9, D0)
a(f"""
v_mov_b32 v{VN}, s74
v_mov_b32 v5, s74
v_mov_b32 v7, s74
v_lshlrev_b32 v13, 4, v11
v_lshl_add_u32 v13, v10, 14, v13
s_lshl_b32 s25, s21, 6
s_add_u32 s25, s25, {QG}
v_cvt_pk_bf16_f32 v4, v{D0}, v{D0+1}
v_cvt_pk_bf16_f32 v6, v{D0+2}, v{D0+3}
s_mov_b64 exec, s[58:59]
buffer_store_dwordx4 v[4:7], v13, s[12:15], s25 offen sc1
s_mov_b64 exec, -1
""")
stamp(3)
a(f"""
s_lshl_b32 s25, s22, 2
v_add_u32 v13, s25, v11
s_movk_i32 s25, 4682
v_mul_u32_u24 v14, s25, v13
v_lshrrev_b32 v14, 16, v14
v_mul_u32_u24 v1, 14, v14
v_sub_u32 v13, v13, v1
v_lshlrev_b32 v13, 4, v13
v_lshl_add_u32 v13, v14, 12, v13
v_lshl_add_u32 v13, v10, 8, v13
s_lshl_b32 s25, s23, 11
s_add_u32 s25, s25, {HG}
v_mov_b32 v57, s74
v_mov_b32 v59, s74
v_add_u32 v1, {WD_LDS}, v3
s_waitcnt vmcnt(1)
""")
for t in range(7): a(f"ds_write_b128 v1, v[{WDV+4*t}:{WDV+4*t+3}] offset:{1024*t}")
gemv(8, D1)
a(f"""
v_cvt_pk_bf16_f32 v56, v{D1}, v{D1+1}
v_cvt_pk_bf16_f32 v58, v{D1+2}, v{D1+3}
s_cmp_ge_u32 s18, 28
s_cbranch_scc1 L_nohpub
s_mov_b64 exec, s[58:59]
buffer_store_dwordx4 v[56:59], v13, s[12:15], s25 offen sc1
s_mov_b64 exec, -1
""")
a.label("L_nohpub")
stamp(10)
a(f"""
v_mov_b32 v13, 0
v_mov_b32 v4, 0
v_mov_b32 v5, 0
v_mov_b32 v6, 0
v_mov_b32 v7, 0
v_mov_b32 v1, {MISC}
ds_write_b32 v1, v4 offset:128
ds_write_b32 v1, v{VN} offset:96
v_lshlrev_b32 v4, 3, v0
s_add_u32 s25, s17, 32
v_add_u32 v4, s25, v4
v_mov_b32 v5, -1
v_cmp_gt_u32 vcc, {NPR}, v0
v_cndmask_b32 v4, v5, v4, vcc
v_lshlrev_b32 v1, 2, v0
v_add_u32 v1, {CH}, v1
ds_write_b32 v1, v4
ds_write_b32 v1, v5 offset:256
ds_write_b32 v1, v5 offset:512
s_lshl_b32 s25, s20, 15
s_lshl_b32 s26, s19, 11
s_add_u32 s25, s25, s26
s_add_u32 s25, s25, {QG}
s_add_u32 s26, s25, 16384
s_lshl_b32 s27, s18, 6
s_add_u32 s27, s27, {QG}
s_mov_b32 s76, {SPIN}
""")
a.label("L_qpoll")
a(f"""
buffer_load_dwordx4 v[16:19], v3, s[12:15], s25 offen sc1
buffer_load_dwordx4 v[20:23], v3, s[12:15], s25 offen offset:1024 sc1
buffer_load_dwordx4 v[24:27], v3, s[12:15], s26 offen sc1
buffer_load_dwordx4 v[28:31], v3, s[12:15], s26 offen offset:1024 sc1
buffer_load_dwordx4 v[32:35], v13, s[12:15], s27 offen sc1
s_waitcnt vmcnt(0)
""")
any_eq(list(range(17, 36, 2)), "s74", neg=True)
spin_tail("L_qpoll", "L_qdone", sleep=OPT["qslp"])
stamp(4)
a(f"""
v_mov_b32 v17, v18
v_mov_b32 v21, v22
v_mov_b32 v25, v26
v_mov_b32 v29, v30
v_lshlrev_b32 v1, 3, v0
v_add_u32 v1, {Q_LDS}, v1
ds_write_b64 v1, v[16:17]
ds_write_b64 v1, v[20:21] offset:512
ds_write_b64 v1, v[24:25] offset:1024
ds_write_b64 v1, v[28:29] offset:1536
v_and_b32 v1, 7, v0
v_lshlrev_b32 v1, 14, v1
v_mov_b32 v2, 2
s_waitcnt lgkmcnt(0)
ds_write_b32 v1, v2 offset:12288
""")
stamp(5)
srd(60, P_WO, 4096*512*2)
a(f"""
v_lshrrev_b32 v2, 5, v0
v_and_b32 v4, 31, v0
v_lshlrev_b32 v4, 4, v4
v_lshl_add_u32 v2, v2, 10, v4
s_lshr_b32 s26, s16, 1
s_lshl_b32 s26, s26, 15
s_and_b32 s27, s16, 1
s_lshl_b32 s27, s27, 9
s_add_u32 s26, s26, s27
""")
for t in range(16):
    a(f"s_mov_b32 m0, {WO_LDS + 1024*t}\ns_nop 0\nbuffer_load_dwordx4 v2, s[60:63], s26 offen nt lds")
    if t < 15: a("s_add_u32 s26, s26, 2048")
for k in range(4):
    a(f"""
v_lshlrev_b32 v{24+2*k}, 16, v{GX+k}
v_and_b32 v{25+2*k}, 0xffff0000, v{GX+k}
v_lshlrev_b32 v{32+2*k}, 16, v{GW+k}
v_and_b32 v{33+2*k}, 0xffff0000, v{GW+k}
v_mul_f32 v{24+2*k}, v{24+2*k}, v{32+2*k}
v_mul_f32 v{25+2*k}, v{25+2*k}, v{33+2*k}
v_cvt_pk_bf16_f32 v{16+k}, v{24+2*k}, v{25+2*k}
v_lshlrev_b32 v{24+2*k}, 16, v{16+k}
v_and_b32 v{25+2*k}, 0xffff0000, v{16+k}
""")
a(f"""
v_add_f32 v24, v24, v25
v_add_f32 v26, v26, v27
v_add_f32 v28, v28, v29
v_add_f32 v30, v30, v31
v_add_f32 v24, v24, v26
v_add_f32 v28, v28, v30
v_add_f32 v24, v24, v28
""")
xsum([24], [25], (8, 4, 2, 1))
a(f"""
v_cvt_pk_bf16_f32 v24, v24, v24
v_lshlrev_b32 v24, 16, v24
v_mul_f32 v24, {f32(-LOG2E)}, v24
v_exp_f32 v24, v24
v_add_f32 v24, 1.0, v24
v_rcp_f32 v24, v24
v_cvt_pk_bf16_f32 v24, v24, v24
v_lshlrev_b32 v{GG}, 16, v24
v_sub_f32 v25, 1.0, v{GG}
v_cvt_pk_bf16_f32 v25, v25, v25
v_lshlrev_b32 v{GG+1}, 16, v25
""")
HB = 16; UB = 32
tag_consts(SEL)
a(f"""
s_lshl_b32 s30, s18, 12
s_add_u32 s30, s30, {HG}
v_lshlrev_b32 v1, 5, v11
v_lshl_add_u32 v1, v10, 8, v1
v_mov_b32 v4, 0x7ff00000
v_cmp_gt_u32 vcc, 3, v11
s_and_b64 s[66:67], s[58:59], vcc
v_cndmask_b32 v2, v4, v1, s[66:67]
v_cndmask_b32 v1, v4, v1, s[58:59]
v_lshlrev_b32 v14, 4, v11
v_lshl_add_u32 v14, v10, 16, v14
s_lshl_b32 s29, s17, 13
s_lshl_b32 s25, s18, 6
s_add_u32 s29, s29, s25
s_add_u32 s29, s29, {BP}
s_add_u32 s28, s29, 4096
s_mov_b32 s76, {SPIN}
""")
a.label("L_hpoll")
for B_, o_ in ((HB, 0), (UB, 2048)):
    a(f"""
buffer_load_dwordx4 v[{B_}:{B_+3}], v1, s[12:15], s30 offen offset:{o_} sc1
buffer_load_dwordx4 v[{B_+4}:{B_+7}], v1, s[12:15], s30 offen offset:{o_+16} sc1
buffer_load_dwordx4 v[{B_+8}:{B_+11}], v2, s[12:15], s30 offen offset:{o_+128} sc1
buffer_load_dwordx4 v[{B_+12}:{B_+15}], v2, s[12:15], s30 offen offset:{o_+144} sc1
""")
a("s_waitcnt vmcnt(0)")
any_eq([HB+1, HB+3, HB+5, HB+7, UB+1, UB+3, UB+5, UB+7], "s74", neg=True)
a("s_and_b64 s[64:65], vcc, s[58:59]")
any_eq([HB+9, HB+11, HB+13, HB+15, UB+9, UB+11, UB+13, UB+15], "s74", neg=True)
a("s_and_b64 vcc, vcc, s[66:67]\ns_or_b64 vcc, vcc, s[64:65]")
spin_tail("L_hpoll", "L_hdone", sleep=OPT["hslp"])
stamp(7)
a(f"""
s_mov_b32 s25, {f32(0.044715)}
s_mov_b32 s26, {f32(-2.0*0.7978845608028654*LOG2E)}
v_lshrrev_b32 v1, 2, v10
v_lshl_add_u32 v1, v11, 3, v1
v_lshlrev_b32 v1, 7, v1
v_and_b32 v2, 3, v0
v_lshl_add_u32 v1, v2, 3, v1
v_add_u32 v1, {WD_LDS}, v1
""")
AF = 80
for ct in range(4):
    for s_ in range(2):
        r = AF + 8*ct + 4*s_
        a(f"ds_read_b64_tr_b16 v[{r}:{r+1}], v1 offset:{s_*4096+ct*32}")
        a(f"ds_read_b64_tr_b16 v[{r+2}:{r+3}], v1 offset:{s_*4096+ct*32+512}")
HF = 48
for e in range(8):
    g_, u_ = HB + 2*e, UB + 2*e
    t = 56
    a(f"""
v_lshlrev_b32 v{t}, 16, v{g_}
v_and_b32 v{t+1}, 0xffff0000, v{g_}
v_lshlrev_b32 v{t+2}, 16, v{u_}
v_and_b32 v{t+3}, 0xffff0000, v{u_}
v_mul_f32 v{t+4}, v{t}, v{t}
v_mul_f32 v{t+5}, v{t+1}, v{t+1}
v_mul_f32 v{t+4}, v{t+4}, v{t}
v_mul_f32 v{t+5}, v{t+5}, v{t+1}
v_fma_f32 v{t+4}, v{t+4}, s25, v{t}
v_fma_f32 v{t+5}, v{t+5}, s25, v{t+1}
v_mul_f32 v{t+4}, s26, v{t+4}
v_mul_f32 v{t+5}, s26, v{t+5}
v_exp_f32 v{t+4}, v{t+4}
v_exp_f32 v{t+5}, v{t+5}
v_add_f32 v{t+4}, 1.0, v{t+4}
v_add_f32 v{t+5}, 1.0, v{t+5}
v_rcp_f32 v{t+4}, v{t+4}
v_rcp_f32 v{t+5}, v{t+5}
v_mul_f32 v{t+4}, v{t+4}, v{t}
v_mul_f32 v{t+5}, v{t+5}, v{t+1}
v_cvt_pk_bf16_f32 v{t+4}, v{t+4}, v{t+5}
v_and_b32 v{t+5}, 0xffff0000, v{t+4}
v_lshlrev_b32 v{t+4}, 16, v{t+4}
v_mul_f32 v{t+4}, v{t+4}, v{t+2}
v_mul_f32 v{t+5}, v{t+5}, v{t+3}
v_cvt_pk_bf16_f32 v{HF+e}, v{t+4}, v{t+5}
""")
a("s_waitcnt lgkmcnt(0)")
for ct in range(4):
    r = AF + 8*ct; d = 112 + 4*ct
    a(f"v_mfma_f32_16x16x32_bf16 v[{d}:{d+3}], v[{r}:{r+3}], v[{HF}:{HF+3}], 0")
    a(f"v_mfma_f32_16x16x32_bf16 v[{d}:{d+3}], v[{r+4}:{r+7}], v[{HF+4}:{HF+7}], v[{d}:{d+3}]")
for ct in range(4): tag_ins(112 + 4*ct, VN, SEL)
a("s_mov_b64 exec, s[58:59]")
for ct in range(4):
    d = 112 + 4*ct
    a(f"buffer_store_dwordx4 v[{d}:{d+3}], v14, s[12:15], s{29 if ct < 2 else 28} offen offset:{2048*(ct&1)} sc1")
a(f"""
s_mov_b64 exec, -1
s_lshl_b32 s25, s16, 11
s_add_u32 s25, s25, {BP}
s_mov_b32 s76, {SPIN}
s_sleep {OPT['hslp']}
""")
a.label("L_bpoll")
a(f"""
buffer_load_dwordx4 v[16:19], v3, s[12:15], s25 offen sc1
buffer_load_dwordx4 v[20:23], v3, s[12:15], s25 offen offset:1024 sc1
s_waitcnt vmcnt(0)
""")
tag_bad([16, 20], VN, SEL, 24, 25, 26)
a("v_cmp_ne_u32 vcc, 0, v24")
spin_tail("L_bpoll", "L_bdone", sleep=OPT["hslp"])
for k in range(4): a(f"v_add_f32 v{16+k}, v{16+k}, v{20+k}")
xsum([16, 17, 18, 19], [20, 21, 22, 23], (8, 4))
a(f"""
v_cvt_pk_bf16_f32 v20, v16, v17
v_cvt_pk_bf16_f32 v21, v18, v19
v_lshlrev_b32 v16, 16, v20
v_and_b32 v17, 0xffff0000, v20
v_lshlrev_b32 v18, 16, v21
v_and_b32 v19, 0xffff0000, v21
v_mul_f32 v16, v{GG+1}, v16
v_mul_f32 v17, v{GG+1}, v17
v_mul_f32 v18, v{GG+1}, v18
v_mul_f32 v19, v{GG+1}, v19
v_cvt_pk_bf16_f32 v20, v16, v17
v_cvt_pk_bf16_f32 v21, v18, v19
v_lshlrev_b32 v16, 16, v20
v_and_b32 v17, 0xffff0000, v20
v_lshlrev_b32 v18, 16, v21
v_and_b32 v19, 0xffff0000, v21
v_add_u32 v1, {MISC}, v3
v_mov_b32 v2, {MISC}
s_mov_b64 exec, 15
ds_write_b128 v1, v[16:19]
ds_write_b32 v2, v{GG} offset:64
s_mov_b64 exec, -1
""")
stamp(6)
a(f"""
s_mov_b32 s21, {NPR}
s_mul_i32 s77, s18, {CSTR}
s_add_u32 s77, s77, {CNT}
s_mov_b32 s76, {SPIN*64}
s_mov_b64 exec, 1
""")
a.label("L_disp")
a(f"""
ds_read_b32 v4, v2 offset:128
s_sub_u32 s76, s76, 1
s_cmp_eq_u32 s76, 0
s_cbranch_scc1 L_dexh
s_waitcnt lgkmcnt(0)
v_readfirstlane_b32 s25, v4
s_lshr_b32 s25, s25, 3
s_add_u32 s25, s25, {LEAD}
s_cmp_ge_u32 s25, s21
s_cbranch_scc1 L_dgo
s_sleep {OPT['dslp']}
s_branch L_disp
""")
a.label("L_dgo")
a(f"""
v_mov_b32 v4, 1
buffer_atomic_add v4, v13, s[12:15], s77 offen sc0 sc1
s_lshl_b32 s25, s21, 2
s_add_u32 s25, s25, {CH}
v_mov_b32 v1, s25
s_add_u32 s21, s21, 1
s_waitcnt vmcnt(0)
v_add_u32 v4, {CB}, v4
ds_write_b32 v1, v4
v_readfirstlane_b32 s25, v4
s_cmp_lt_u32 s25, 128
s_cbranch_scc1 L_disp
""")
a.label("L_dexh")
a(f"""
s_lshl_b32 s25, s21, 2
s_add_u32 s25, s25, {CH}
v_mov_b32 v1, s25
v_mov_b32 v4, 128
ds_write_b32 v1, v4
ds_write_b32 v1, v4 offset:4
ds_write_b32 v1, v4 offset:8
s_mov_b64 exec, -1
""")
if OPT["stamps"]:
    a(f"s_lshl_b32 s29, s16, 7\ns_add_u32 s29, s29, {STAMP+0x8000}\ns_waitcnt lgkmcnt(0)\nv_mov_b32 v3, 0")
    for k in range(11):
        a(f"v_mov_b32 v4, s{80+2*k}\nv_mov_b32 v5, s{81+2*k}\nbuffer_store_dwordx2 v[4:5], v3, s[12:15], s29 offen offset:{8*k}\ns_nop 1")
a("s_waitcnt vmcnt(0) lgkmcnt(0)\ns_endpgm")

a.label("L_stream")
KA, VA, KR, VR = 1, 5, 7, 11
M_, L_ = 20, 21
T0, T1, T2 = 22, 23, 19
Q = 24; KF = 40; S = 56; T = 60; PF = 66; BIAS = 68; CG = 69; CL = 70; ZR = 71; O = 72; STG = 104; NINF = 65; FL = 64
TE = T + 2; ONE = T + 3; TA = CL
X0 = KF
a(f"""
v_and_b32 v{T0}, 15, v0
v_lshrrev_b32 v{T1}, 4, v0
s_lshl_b32 s24, s3, 14
v_mov_b32 v{ZR}, 0
v_mov_b32 v{FL}, s24
ds_write_b32 v{FL}, v{ZR} offset:12288
""")
for i in range(4):
    a(f"""
v_add_u32 v{T2}, {4*i}, v{T1}
v_xor_b32 v{T2}, v{T2}, v{T0}
v_lshlrev_b32 v{T2}, 4, v{T2}
v_lshl_add_u32 v{KA+i}, v{T1}, 8, v{T2}
v_lshl_add_u32 v{KR+i}, v{T0}, 8, v{T2}
v_add_u32 v{KR+i}, s24, v{KR+i}
""")
for e in range(2):
    a(f"""
v_lshrrev_b32 v{T2}, 1, v{T0}
v_add_u32 v{X0}, {4*e}, v{T1}
v_xor_b32 v{T2}, v{T2}, v{X0}
v_lshlrev_b32 v{T2}, 5, v{T2}
v_and_b32 v{X0}, 1, v{T0}
v_lshl_add_u32 v{T2}, v{X0}, 4, v{T2}
v_lshl_add_u32 v{VA+e}, v{T1}, 8, v{T2}
""")
a(f"""
s_lshl_b32 s30, s20, 4
s_add_u32 s30, s30, s19
s_lshl_b32 s21, s30, 21
s_lshl_b32 s22, s17, 3
s_add_u32 s22, s22, s3
s_lshl_b32 s27, s22, 12
s_add_u32 s27, s27, s21
s_add_u32 s26, s27, {64*4096}
s_add_u32 s67, s27, {128*4096}
s_add_u32 s29, s27, {192*4096}
s_waitcnt lgkmcnt(0)
""")
srd(4, P_K, 128 << 20); srd(8, P_V, 128 << 20)
nload = [0]
def pre_load(isV, dst, so):
    srdn = "s[8:11]" if isV else "s[4:7]"
    if dst[0] == "lds": a(dst[1])
    for i in range(4):
        if nload[0] == NPRE:
            setup_rest()
            a("s_barrier")
        va = VA + (i & 1) if isV else KA + i
        if nload[0] >= Wp: a(f"s_waitcnt vmcnt({Wp-1})")
        if dst[0] == "lds":
            a(f"buffer_load_dwordx4 v{va}, {srdn}, {so} offen offset:{i*1024} nt lds")
        else:
            r = dst[1] + 4*i
            a(f"buffer_load_dwordx4 v[{r}:{r+3}], v{va}, {srdn}, {so} offen offset:{i*1024} nt")
        nload[0] += 1
def setup_rest():
    srd(12, P_WS, WS_BYTES)
    a(f"""
v_lshrrev_b32 v{X0}, 2, v0
v_and_b32 v{X0+1}, 7, v{X0}
v_and_b32 v{X0+2}, 3, v0
v_lshlrev_b32 v{X0+2}, 3, v{X0+2}
v_lshl_add_u32 v{X0+2}, v{X0}, 8, v{X0+2}
s_add_u32 s25, s24, 8192
v_add_u32 v{X0+2}, s25, v{X0+2}
""")
    for dt in range(8):
        a(f"v_xor_b32 v{T2}, {dt}, v{X0+1}\nv_lshl_add_u32 v{VR+dt}, v{T2}, 5, v{X0+2}")
    a(f"""
v_cmp_gt_u32 s[70:71], 8, v{T0}
v_mov_b32 v{M_}, {f32(-1e30)}
v_mov_b32 v{L_}, 0
v_lshrrev_b32 v{CG}, 2, v{T0}
v_mov_b32 v{NINF}, 0xff800000
s_mov_b32 s58, {f32(SCALE)}
s_mov_b32 s59, {f32(LOG2E)}
s_mov_b32 s31, {f32(-LOG2E)}
v_cmp_eq_u32 vcc, 0, v{CG}
v_cndmask_b32 v{BIAS}, v{NINF}, v{ZR}, vcc
s_mov_b32 s28, 0
s_mov_b64 s[72:73], 1
v_mov_b32 v{ONE}, 1
s_mov_b32 s96, 3
""")
    if D == 3:
        a(f"""
s_mov_b32 s60, s24
s_add_u32 s61, s24, 12288
""")
    else:
        a(f"""
s_add_u32 s60, s24, 4096
s_add_u32 s61, s24, 12288
""")
    tag_consts(SEL)
    for r in range(32): a(f"v_mov_b32 v{O+r}, 0")
    for r in range(16): a(f"v_mov_b32 v{Q+r}, 0")
pre_load(False, ("lds", "s_mov_b32 m0, s24"), "s27")
pre_load(True, ("lds", "s_add_u32 m0, s24, 8192"), "s27")
pre_load(False, ("lds", "s_add_u32 m0, s24, 4096"), "s26")
pre_load(False, ("v", STG), "s67")
pre_load(True, ("v", STG+16), "s67")
pre_load(False, ("v", STG+32), "s29")
pre_load(True, ("v", STG+48), "s29")
a(f"""
v_lshlrev_b32 v{T2}, 4, v{T1}
v_lshl_add_u32 v{T2}, v{T0}, 8, v{T2}
v_add_u32 v{T2}, {Q_LDS}, v{T2}
s_mov_b32 s76, {SPIN*16}
""")
a.label("L_qw")
a(f"""
ds_read_b32 v{T}, v{FL} offset:12288
s_waitcnt lgkmcnt(0)
v_cmp_ne_u32 vcc, 2, v{T}
""")
spin_tail("L_qw", "L_qwdone", sleep=1)
stamp(1)
a("s_mov_b64 exec, s[70:71]")
for j in range(4): a(f"ds_read_b128 v[{Q+4*j}:{Q+4*j+3}], v{T2} offset:{j*64}")
a(f"""
s_mov_b64 exec, -1
v_mov_b32 v{FL}, {TK}
""")

def rnd4():
    for k in range(2): a(f"v_cvt_pk_bf16_f32 v{T+k}, v{S+2*k}, v{S+2*k+1}")
    for k in range(2):
        a(f"v_lshlrev_b32 v{S+2*k}, 16, v{T+k}\nv_and_b32 v{S+2*k+1}, 0xffff0000, v{T+k}")
nlab = [0]
def ticket_rd():
    a(f"s_mov_b64 exec, 1\nds_add_rtn_u32 v{TE}, v{FL}, v{ONE}\ns_mov_b64 exec, -1")
def ticket_use():
    a(f"""
v_readfirstlane_b32 s25, v{TE}
s_and_b32 s75, s25, 7
s_lshr_b32 s25, s25, 3
s_lshl_b32 s25, s25, 2
s_add_u32 s25, s25, {CH}
v_mov_b32 v{TA}, s25
""")
def entry_rd():
    a(f"ds_read_b32 v{TE}, v{TA}")
def entry_use():
    a(f"""
L_eretry:
v_readfirstlane_b32 s23, v{TE}
s_cmp_eq_u32 s23, -1
s_cbranch_scc1 L_espin
s_lshl_b32 s23, s23, 3
s_add_u32 s23, s23, s75
s_cmp_ge_u32 s23, {NU}
s_cbranch_scc1 L_final
""")
def kstep(pre=None, mid=None):
    nlab[0] += 1
    lbl = f"L_nr{nlab[0]}"
    if pre: pre()
    if OPT["nocomp"] != 1:
        for j in range(4): a(f"ds_read_b128 v[{KF+4*j}:{KF+4*j+3}], v{KR+j}")
    a("s_waitcnt lgkmcnt(0)")
    if mid: mid()
    if OPT["nocomp"]: return
    for j in range(4):
        c = "0" if j == 0 else f"v[{S}:{S+3}]"
        a(f"v_mfma_f32_16x16x32_bf16 v[{S}:{S+3}], v[{KF+4*j}:{KF+4*j+3}], v[{Q+4*j}:{Q+4*j+3}], {c}")
    rnd4()
    for k in range(4): a(f"v_fma_f32 v{S+k}, v{S+k}, s58, v{BIAS}")
    rnd4()
    a(f"""
v_max3_f32 v{T}, v{S}, v{S+1}, v{S+2}
v_max3_f32 v{T}, v{T}, v{S+3}, v{M_}
v_mov_b32 v{T+1}, v{T}
v_permlane16_swap_b32 v{T}, v{T+1}
v_max_f32 v{T}, v{T}, v{T+1}
v_mov_b32 v{T+1}, v{T}
v_permlane32_swap_b32 v{T}, v{T+1}
v_max_f32 v{T}, v{T}, v{T+1}
v_cmp_gt_f32 vcc, v{T}, v{M_}
s_cbranch_vccz {lbl}
v_sub_f32 v{T+1}, v{M_}, v{T}
v_mul_f32 v{T+1}, s59, v{T+1}
v_exp_f32 v{T+1}, v{T+1}
v_mov_b32 v{M_}, v{T}
v_mul_f32 v{L_}, v{L_}, v{T+1}
""")
    for r in range(32): a(f"v_mul_f32 v{O+r}, v{O+r}, v{T+1}")
    a.label(lbl)
    a(f"v_mul_f32 v{T+1}, s31, v{M_}")
    for k in range(4): a(f"v_fma_f32 v{S+k}, v{S+k}, s59, v{T+1}")
    for k in range(4): a(f"v_exp_f32 v{S+k}, v{S+k}")
    for k in range(2): a(f"v_cvt_pk_bf16_f32 v{PF+k}, v{S+2*k}, v{S+2*k+1}")
    a(f"""
v_add_f32 v{T}, v{S}, v{S+1}
v_add_f32 v{T+1}, v{S+2}, v{S+3}
v_add_f32 v{T}, v{T}, v{T+1}
v_add_f32 v{L_}, v{L_}, v{T}
""")
def vstep(pre=None, mid=None):
    if pre: pre()
    if OPT["nocomp"] != 1:
        for dt in range(8): a(f"ds_read_b64_tr_b16 v[{KF+2*dt}:{KF+2*dt+1}], v{VR+dt}")
    a("s_waitcnt lgkmcnt(0)")
    if mid: mid()
    if OPT["nocomp"]: return
    for dt in range(8):
        a(f"v_mfma_f32_16x16x16_bf16 v[{O+4*dt}:{O+4*dt+3}], v[{KF+2*dt}:{KF+2*dt+1}], v[{PF}:{PF+1}], v[{O+4*dt}:{O+4*dt+3}]")
def toggle():
    for r in list(range(KR, KR+4)) + list(range(VR, VR+8)): a(f"v_xor_b32 v{r}, 0x1000, v{r}")
def set_bias(sreg):
    a(f"v_cmp_eq_u32 vcc, {sreg}, v{CG}\nv_cndmask_b32 v{BIAS}, v{NINF}, v{ZR}, vcc")
def next_off():
    a(f"""
s_lshr_b32 s28, s23, 9
s_and_b32 s26, s23, 511
s_lshl_b32 s26, s26, 12
s_lshl_b32 s25, s28, 24
s_add_u32 s26, s26, s25
s_add_u32 s26, s26, s21
""")
def dmaK():
    a("s_mov_b32 m0, s60")
    for i in range(4): a(f"buffer_load_dwordx4 v{KA+i}, s[4:7], s26 offen offset:{i*1024} nt lds")
def dmaV():
    a("s_mov_b32 m0, s61")
    for i in range(4): a(f"buffer_load_dwordx4 v{VA+(i&1)}, s[8:11], s26 offen offset:{i*1024} nt lds")
def flush_staged(base_sreg):
    a(f"v_lshlrev_b32 v{T2}, 4, v0\nv_add_u32 v{T2}, {base_sreg}, v{T2}\ns_mov_b64 s[72:73], 1")
    for u in range(2):
        for i in range(4):
            r = STG + 32*u + 4*i
            a(f"ds_write_b128 v{T2}, v[{r}:{r+3}] offset:{i*1024}")
        for i in range(4):
            r = STG + 32*u + 16 + 4*i
            a(f"ds_write_b128 v{T2}, v[{r}:{r+3}] offset:{8192+i*1024}")
        a("s_waitcnt lgkmcnt(0)")
        kstep(); vstep()
loop_tail = f"""
s_xor_b32 s60, s60, 0x1000
s_xor_b32 s61, s61, 0x1000
s_add_u32 s96, s96, 1
s_branch L_loop
L_espin:
s_sub_u32 s76, s76, 1
s_cmp_eq_u32 s76, 0
s_cbranch_scc1 L_final
s_sleep 1
ds_read_b32 v{TE}, v{TA}
s_waitcnt lgkmcnt(0)
s_branch L_eretry
"""
a(f"s_mov_b32 s76, {SPIN*64}")
if D == 3:
    a.label("L_loop")
    a("s_waitcnt vmcnt(8)")
    dmaV()
    kstep(pre=ticket_rd, mid=ticket_use)
    a("s_waitcnt vmcnt(8)")
    def mid3():
        entry_use()
        set_bias("s28")
        next_off()
        dmaK()
    vstep(pre=entry_rd, mid=mid3)
    toggle()
    a(loop_tail)
    a.label("L_final")
    vstep()
    set_bias("0")
    flush_staged("s60")
    toggle()
    set_bias("s28")
    a("s_waitcnt vmcnt(4)")
    kstep()
    a("s_waitcnt vmcnt(0)")
    vstep()
else:
    a("s_waitcnt vmcnt(24)\ns_mov_b32 s27, 0")
    kstep()
    a("s_branch L_vstep")
    a.label("L_loop")
    a("s_waitcnt vmcnt(4)")
    def mid2():
        entry_use()
        next_off()
        dmaK()
    kstep(pre=entry_rd, mid=mid2)
    a.label("L_vstep")
    a("s_waitcnt vmcnt(4)")
    dmaV()
    vstep(pre=ticket_rd, mid=ticket_use)
    set_bias("s28")
    toggle()
    a("s_mov_b32 s27, s28")
    a(loop_tail)
    a.label("L_final")
    toggle()
    set_bias("0")
    flush_staged("s60")
    toggle()
    set_bias("s27")
    kstep()
    a("s_waitcnt vmcnt(0)")
    vstep()
stamp(2)
if OPT["stamps"]:
    a(f"""
s_lshl_b32 s29, s16, 3
s_add_u32 s29, s29, s3
s_lshl_b32 s29, s29, 4
s_add_u32 s29, s29, {STAMP+0x10000}
s_waitcnt lgkmcnt(0)
v_mov_b32 v{T}, s84
v_mov_b32 v{T+1}, s85
v_mov_b32 v{T+2}, s82
v_mov_b32 v{T+3}, s96
s_mov_b64 exec, s[72:73]
buffer_store_dwordx4 v[{T}:{T+3}], v{ZR}, s[12:15], s29 offen
s_mov_b64 exec, -1
s_nop 4
""")
X = STG
VNS = X + 22
a(f"""
v_mov_b32 v{T+1}, v{L_}
v_permlane16_swap_b32 v{L_}, v{T+1}
v_lshlrev_b32 v{X}, 4, v{T1}
v_add_f32 v{L_}, v{L_}, v{T+1}
v_lshl_add_u32 v{X}, v{T0}, 9, v{X}
v_mov_b32 v{T+1}, v{L_}
v_add_u32 v{X}, s24, v{X}
v_permlane32_swap_b32 v{L_}, v{T+1}
v_lshlrev_b32 v{X+1}, 3, v0
v_add_f32 v{L_}, v{L_}, v{T+1}
v_add_u32 v{X+2}, s24, v{X+1}
v_mov_b32 v{X+3}, {MISC}
s_setprio 0
s_mov_b64 exec, s[70:71]
""")
for dt in range(8): a(f"ds_write_b128 v{X}, v[{O+4*dt}:{O+4*dt+3}] offset:{dt*64}")
a(f"""
s_mov_b64 exec, 0xff
ds_write_b64 v{X+2}, v[{M_}:{L_}] offset:4096
s_mov_b64 exec, -1
ds_read_b32 v{VNS}, v{X+3} offset:96
s_lshr_b32 s29, s3, 2
s_lshl_b32 s29, s29, 3
s_add_u32 s29, s29, s30
s_lshl_b32 s29, s29, 2
s_and_b32 s25, s3, 3
s_add_u32 s29, s29, s25
s_lshl_b32 s62, s29, 12
s_lshl_b32 s25, s17, 7
s_add_u32 s62, s62, s25
s_add_u32 s62, s62, {PART}
s_lshl_b32 s63, s29, 7
s_lshl_b32 s25, s17, 4
s_add_u32 s63, s63, s25
s_add_u32 s63, s63, {ML}
s_and_b32 s65, s16, 1
s_lshl_b32 s65, s65, 3
s_add_u32 s65, s65, s3
s_lshl_b32 s65, s65, 14
s_lshr_b32 s25, s16, 1
s_lshl_b32 s25, s25, 7
s_add_u32 s65, s65, s25
s_add_u32 s65, s65, {AP}
v_and_b32 v{X+3}, 31, v0
v_lshrrev_b32 v{X+4}, 5, v0
v_lshlrev_b32 v{X+2}, 4, v{X+3}
v_lshl_add_u32 v{X+2}, v{X+4}, 16, v{X+2}
s_lshl_b32 s27, s3, 9
v_add_u32 v{X+2}, s27, v{X+2}
v_lshrrev_b32 v{X+6}, 3, v{X+3}
v_lshlrev_b32 v{X+6}, 10, v{X+6}
v_and_b32 v{X+3}, 7, v0
v_lshl_add_u32 v{X+6}, v{X+3}, 4, v{X+6}
s_lshl_b32 s26, s3, 3
v_mov_b32 v{X+4}, s26
v_add_u32 v{X+5}, 0x10000, v{X+4}
s_lshl_b32 s29, s3, 5
s_add_u32 s29, s29, s18
s_lshl_b32 s26, s29, 7
s_add_u32 s26, s26, {ML}
s_lshl_b32 s27, s29, 12
s_bfe_u32 s25, s16, 0x20001
s_lshl_b32 s25, s25, 10
s_add_u32 s27, s27, s25
s_add_u32 s27, s27, {PART}
v_lshlrev_b32 v{X+7}, 4, v0
v_lshrrev_b32 v{X+8}, 3, v0
v_lshlrev_b32 v{X+8}, 4, v{X+8}
v_lshrrev_b32 v{X+9}, 2, v{T0}
v_lshl_add_u32 v{X+9}, v{T1}, 3, v{X+9}
v_lshlrev_b32 v{X+9}, 9, v{X+9}
v_and_b32 v{X+13}, 3, v0
v_lshl_add_u32 v{X+9}, v{X+13}, 3, v{X+9}
s_lshl_b32 s25, s3, 6
s_add_u32 s29, s25, {WO_LDS}
v_add_u32 v{X+9}, s29, v{X+9}
s_add_u32 s25, s25, {O_LDS}
v_add_u32 v{X+10}, s25, v{X+1}
v_lshlrev_b32 v{X+11}, 4, v{T1}
v_lshl_add_u32 v{X+12}, v{T0}, 6, v{X+11}
v_add_u32 v{X+12}, {O_LDS}, v{X+12}
v_lshrrev_b32 v{X+14}, 3, v{T0}
v_lshl_add_u32 v{X+11}, v{X+14}, 6, v{X+11}
v_and_b32 v{X+14}, 7, v{T0}
v_lshl_add_u32 v{X+11}, v{X+14}, 18, v{X+11}
v_lshrrev_b32 v{X+14}, 2, v0
v_lshlrev_b32 v{X+14}, 7, v{X+14}
v_lshl_add_u32 v{X+13}, v{X+13}, 4, v{X+14}
v_cmp_lt_u32 s[68:69], 31, v0
s_mov_b32 s76, {SPIN}
s_waitcnt lgkmcnt(0)
s_barrier
""")
C = O
for k in range(8):
    a(f"ds_read_b64 v[{C+2*k}:{C+2*k+1}], v{X+4+(k>>2)} offset:{(k&3)*16384+4096}")
for k in range(4):
    a(f"ds_read_b128 v[{C+16+4*k}:{C+16+4*k+3}], v{X+2} offset:{k*16384}")
R = KF + 8
a(f"""
s_waitcnt lgkmcnt(4)
v_max3_f32 v{R+4}, v{C}, v{C+2}, v{C+4}
v_max3_f32 v{T+1}, v{C+6}, v{C+8}, v{C+10}
v_max3_f32 v{R+4}, v{R+4}, v{C+12}, v{C+14}
v_max_f32 v{R+4}, v{R+4}, v{T+1}
""")
for k in range(8): a(f"v_sub_f32 v{C+2*k}, v{C+2*k}, v{R+4}")
for k in range(8): a(f"v_mul_f32 v{C+2*k}, s59, v{C+2*k}")
for k in range(8): a(f"v_exp_f32 v{C+2*k}, v{C+2*k}")
a(f"v_mul_f32 v{R+5}, v{C}, v{C+1}")
for k in range(1, 8): a(f"v_fmac_f32 v{R+5}, v{C+2*k}, v{C+2*k+1}")
for k in range(4): a(f"v_cndmask_b32 v{C+2*k}, v{C+2*k}, v{C+2*k+8}, s[68:69]")
a(f"v_mov_b32 v{R+6}, v{VNS}\nv_mov_b32 v{R+7}, v{VNS}\ns_waitcnt lgkmcnt(0)")
for j in range(4): a(f"v_mul_f32 v{R+j}, v{C}, v{C+16+j}")
for k in range(1, 4):
    for j in range(4): a(f"v_fmac_f32 v{R+j}, v{C+2*k}, v{C+16+4*k+j}")
xsum([R, R+1, R+2, R+3], [T, T+1, T+2, T+3], (), swaps=("v_permlane32_swap_b32",))
tag_ins(R, VNS, SEL)
a(f"""
s_mov_b32 exec_hi, 0
buffer_store_dwordx4 v[{R}:{R+3}], v{X+6}, s[12:15], s62 offen sc1
s_mov_b64 exec, 1
buffer_store_dwordx4 v[{R+4}:{R+7}], v{ZR}, s[12:15], s63 offen sc1
s_mov_b64 exec, -1
""")
stamp(3)
AW = KF
PA, PB, P = Q, Q + 8, C
def ppoll(R_):
    a(f"""
buffer_load_dwordx4 v[{R_}:{R_+3}], v{X+7}, s[12:15], s27 offen sc1
buffer_load_dwordx4 v[{R_+4}:{R_+7}], v{X+8}, s[12:15], s26 offen sc1
""")
def pchk(R_):
    tag_bad([R_], VNS, SEL, T, T+1, T+2)
    a(f"""
v_xor_b32 v{T+1}, v{R_+6}, v{VNS}
v_xor_b32 v{T+2}, v{R_+7}, v{VNS}
v_or3_b32 v{T}, v{T}, v{T+1}, v{T+2}
v_cmp_ne_u32 vcc, 0, v{T}
""")
ppoll(PA)
for tt in range(2):
    a(f"ds_read_b64_tr_b16 v[{AW+4*tt}:{AW+4*tt+1}], v{X+9} offset:{tt*32}")
    a(f"ds_read_b64_tr_b16 v[{AW+4*tt+2}:{AW+4*tt+3}], v{X+9} offset:{tt*32+2048}")
if OPT["stag"]: a(f"s_sleep {OPT['stag']}")
a.label("L_ppoll")
ppoll(PB)
a("s_waitcnt vmcnt(2)")
pchk(PA)
a(f"""
s_cbranch_vccz L_pdoneA
s_sub_u32 s76, s76, 1
s_cmp_eq_u32 s76, 0
s_cbranch_scc1 L_pdoneA
""")
ppoll(PA)
a("s_waitcnt vmcnt(2)")
pchk(PB)
a("s_cbranch_vccnz L_ppoll")
for k in range(6): a(f"v_mov_b32 v{P+k}, v{PB+k}")
a("s_branch L_pdone")
a.label("L_pdoneA")
for k in range(6): a(f"v_mov_b32 v{P+k}, v{PA+k}")
a.label("L_pdone")
stamp(4)
a(f"v_mov_b32 v{P+6}, v{P+4}")
xsum([P+6], [P+7], (8,), op="v_max_f32")
a(f"""
v_sub_f32 v{P+4}, v{P+4}, v{P+6}
v_mul_f32 v{P+4}, s59, v{P+4}
v_exp_f32 v{P+4}, v{P+4}
v_mul_f32 v{P+5}, v{P+5}, v{P+4}
v_mul_f32 v{P}, v{P}, v{P+4}
v_mul_f32 v{P+1}, v{P+1}, v{P+4}
v_mul_f32 v{P+2}, v{P+2}, v{P+4}
v_mul_f32 v{P+3}, v{P+3}, v{P+4}
""")
xsum([P+5, P, P+1, P+2, P+3], [P+8, P+9, P+10, P+11, P+12], (8,))
a(f"""
v_rcp_f32 v{P+5}, v{P+5}
v_mul_f32 v{P}, v{P}, v{P+5}
v_mul_f32 v{P+1}, v{P+1}, v{P+5}
v_mul_f32 v{P+2}, v{P+2}, v{P+5}
v_mul_f32 v{P+3}, v{P+3}, v{P+5}
v_cvt_pk_bf16_f32 v{P}, v{P}, v{P+1}
v_cvt_pk_bf16_f32 v{P+1}, v{P+2}, v{P+3}
s_mov_b64 exec, 0xff
ds_write_b64 v{X+10}, v[{P}:{P+1}]
s_mov_b64 exec, -1
s_waitcnt lgkmcnt(0)
s_barrier
ds_read_b128 v[{P}:{P+3}], v{X+12}
s_waitcnt lgkmcnt(0)
v_mfma_f32_16x16x32_bf16 v[{P+4}:{P+7}], v[{AW}:{AW+3}], v[{P}:{P+3}], 0
v_mfma_f32_16x16x32_bf16 v[{P+8}:{P+11}], v[{AW+4}:{AW+7}], v[{P}:{P+3}], 0
""")
for k in range(4): a(f"v_mov_b32_dpp v{P+4+k}, v{P+8+k} row_shr:8 row_mask:0xf bank_mask:0xc")
tag_ins(P+4, VNS, SEL)
a(f"buffer_store_dwordx4 v[{P+4}:{P+7}], v{X+11}, s[12:15], s65 offen sc1")
stamp(5)
a(f"""
s_cmp_lg_u32 s3, 0
s_cbranch_scc1 L_end
s_lshr_b32 s26, s16, 1
s_lshl_b32 s26, s26, 14
s_and_b32 s25, s16, 1
s_lshl_b32 s25, s25, 6
s_add_u32 s26, s26, s25
s_add_u32 s26, s26, {AP}
s_add_u32 s27, s26, 4096
s_add_u32 s28, s26, 8192
s_add_u32 s29, s26, 12288
s_mov_b32 s76, {SPIN}
v_add_u32 v{X+9}, {MISC}, v{X+7}
v_mov_b32 v{X+10}, {MISC}
ds_read_b128 v[{X+16}:{X+19}], v{X+9}
ds_read_b32 v{X+20}, v{X+10} offset:64
""")
AA, AB, AC = O, STG + 32, KF
def apoll(R_):
    for k in range(8):
        a(f"buffer_load_dwordx4 v[{R_+4*k}:{R_+4*k+3}], v{X+13}, s[12:15], s{26 + (k>>1)} offen offset:{2048*(k&1)} sc1")
def achk(R_):
    tag_bad([R_+4*k for k in range(8)], VNS, SEL, T, T+1, T+2)
    a(f"v_cmp_ne_u32 vcc, 0, v{T}")
a("s_nop 1")
apoll(AA)
srd(60, P_OUT, 8192)
if OPT["stag"]: a(f"s_sleep {OPT['stag']}")
a.label("L_apoll")
apoll(AB)
a("s_waitcnt vmcnt(8)")
achk(AA)
a(f"""
s_cbranch_vccz L_adoneA
s_sub_u32 s76, s76, 1
s_cmp_eq_u32 s76, 0
s_cbranch_scc1 L_adoneA
""")
apoll(AA)
a("s_waitcnt vmcnt(8)")
achk(AB)
a("s_cbranch_vccnz L_apoll")
for r in range(16): a(f"v_add_f32 v{AC+r}, v{AB+r}, v{AB+r+16}")
a("s_branch L_adone")
a.label("L_adoneA")
for r in range(16): a(f"v_add_f32 v{AC+r}, v{AA+r}, v{AA+r+16}")
a.label("L_adone")
A3 = AC; FB = X + 16
for st in (8, 4):
    for r in range(st): a(f"v_add_f32 v{A3+r}, v{A3+r}, v{A3+r+st}")
xsum([A3, A3+1, A3+2, A3+3], [A3+4, A3+5, A3+6, A3+7], (8, 4))
a(f"""
s_lshl_b32 s29, s16, 5
v_cvt_pk_bf16_f32 v{A3+4}, v{A3}, v{A3+1}
v_cvt_pk_bf16_f32 v{A3+5}, v{A3+2}, v{A3+3}
v_lshlrev_b32 v{A3}, 16, v{A3+4}
v_and_b32 v{A3+1}, 0xffff0000, v{A3+4}
v_lshlrev_b32 v{A3+2}, 16, v{A3+5}
v_and_b32 v{A3+3}, 0xffff0000, v{A3+5}
s_waitcnt lgkmcnt(0)
v_mul_f32 v{A3}, v{FB+4}, v{A3}
v_mul_f32 v{A3+1}, v{FB+4}, v{A3+1}
v_mul_f32 v{A3+2}, v{FB+4}, v{A3+2}
v_mul_f32 v{A3+3}, v{FB+4}, v{A3+3}
v_cvt_pk_bf16_f32 v{A3+4}, v{A3}, v{A3+1}
v_cvt_pk_bf16_f32 v{A3+5}, v{A3+2}, v{A3+3}
v_lshlrev_b32 v{A3}, 16, v{A3+4}
v_and_b32 v{A3+1}, 0xffff0000, v{A3+4}
v_lshlrev_b32 v{A3+2}, 16, v{A3+5}
v_and_b32 v{A3+3}, 0xffff0000, v{A3+5}
v_add_f32 v{A3}, v{A3}, v{FB}
v_add_f32 v{A3+1}, v{A3+1}, v{FB+1}
v_add_f32 v{A3+2}, v{A3+2}, v{FB+2}
v_add_f32 v{A3+3}, v{A3+3}, v{FB+3}
v_cvt_pk_bf16_f32 v{A3+4}, v{A3}, v{A3+1}
v_cvt_pk_bf16_f32 v{A3+5}, v{A3+2}, v{A3+3}
s_mov_b64 exec, 15
buffer_store_dwordx2 v[{A3+4}:{A3+5}], v{X+1}, s[60:63], s29 offen
s_mov_b64 exec, -1
""")
if OPT["stamps"]:
    stamp(6)
    a(f"s_lshl_b32 s29, s16, 6\ns_add_u32 s29, s29, {STAMP}\ns_waitcnt lgkmcnt(0)")
    for k in range(7):
        a(f"v_mov_b32 v{T}, s{80+2*k}\nv_mov_b32 v{T+1}, s{81+2*k}\nbuffer_store_dwordx2 v[{T}:{T+1}], v{ZR}, s[12:15], s29 offen offset:{8*k}\ns_nop 1")
a.label("L_end")
a("s_endpgm")
a.L += ['.section .rodata,"a"', ".p2align 6", f".amdhsa_kernel {NAME}_kernel",
        "  .amdhsa_next_free_vgpr 168", "  .amdhsa_next_free_sgpr 102", "  .amdhsa_accum_offset 168",
        "  .amdhsa_group_segment_fixed_size 0", "  .amdhsa_kernarg_size 104", "  .amdhsa_user_sgpr_count 2",
        "  .amdhsa_user_sgpr_kernarg_segment_ptr 1", "  .amdhsa_system_sgpr_workgroup_id_x 1", ".end_amdhsa_kernel"]
txt, n = a.text()
open(out, "w").write(txt)
print(f"wrote {out}: {len(txt.splitlines())} lines, {n} nops inserted", file=sys.stderr)
```

```python
import sys, struct
from asmlib import Asm
out = sys.argv[1]
OPT = dict(stamps=0, Wp=8, npre=4, hdr=1, stag=10, hslp=32, qslp=8, nse=12, lead=8, t1=448, t2=384, dslp=2,
           np2=1, np3=2, flit=3, slowp=8, bprio=3, maxf=4, tcha=0, tchb=0, asl=36, tpol=1, wqnt=1, ffnt=1, hd=200, qd=64, prew=0, coal=1, pgate=0, bpat=2, slowth=16, fastp=0, bsl=10, adel=96, perm=0, gx=0, noff=252, sperm=4)
for a_ in sys.argv[2:]:
    k, v = a_.split("="); assert k in OPT, k; OPT[k] = int(v)
Wp = OPT["Wp"]; NPRE = OPT["npre"]
NAME = "gated_mix__gqa_block_cached__geglu_ffn__decode"
def f32(x): return "0x%08x" % struct.unpack("<I", struct.pack("<f", x))[0]
LOG2E = 1.4426950408889634
SCALE = 128 ** -0.5
QG, HG, ML, BP, PART, AP, STAMP, CNT = 0x0, 0x20000, 0x40000, 0x80000, 0x100000, 0x200000, 0x400000, 0x480000
CSTR = 4096 + 256
WS_BYTES = 0x500000
R1 = 0x20000
WO_LDS = R1
R2 = 0x24000
Q_LDS = R2
MISC = R2 + 0x800
O_LDS = R2 + 0x1000
CH = R2 + 0x1400
WD_LDS = R2 + 0x2000
LDS_BYTES = 0x28000
NU = 1024
NSE = OPT["nse"]; LEAD = OPT["lead"]
TK = MISC + 128
CBASE = 8
DYN0 = 128 + 8*NSE
SPIN = 1 << 16
a = Asm()
hdr = open("cdna_kernels/%s.s.ref" % NAME).read().split("; Override launch")[0] if OPT["hdr"] else ""
a.L += [l for l in hdr.rstrip().split("\n")] if hdr else []
a.L.append(f"; @launch grid=(256,1,1) block=(640,1,1) lds={LDS_BYTES}")
a.L += ['.amdgcn_target "amdgcn-amd-amdhsa--gfx950"', ".text", f".globl {NAME}_kernel", ".p2align 8",
        f".type {NAME}_kernel,@function", f"{NAME}_kernel:"]

def srd(d, ptr, nbytes):
    a(f"s_mov_b32 s{d}, s{ptr}\ns_mov_b32 s{d+1}, s{ptr+1}\ns_mov_b32 s{d+2}, {hex(nbytes)}\ns_mov_b32 s{d+3}, 0x00020000")
P_X, P_K, P_V, P_WQ, P_WO, P_BX, P_WG, P_WU, P_WD, P_GW, P_OUT, P_DBG, P_WS = [32 + 2*i for i in range(13)]
def stamp(idx):
    if OPT["stamps"]:
        a(f"s_memrealtime s[{80+2*idx}:{81+2*idx}]")
def any_eq(regs, val, neg=False):
    op = "v_cmp_ne_u32" if neg else "v_cmp_eq_u32"
    a(f"{op} vcc, {val}, v{regs[0]}")
    for r in regs[1:]:
        a(f"{op} s[78:79], {val}, v{r}\ns_or_b64 vcc, vcc, s[78:79]")
def spin_tail(loop, done, sleep=0):
    a(f"""
s_sub_u32 s76, s76, 1
s_cmp_eq_u32 s76, 0
s_cbranch_scc1 {done}
""")
    if sleep:
        a(f"s_cmp_eq_u64 vcc, 0\ns_cbranch_scc1 {done}\ns_sleep {sleep}\ns_branch {loop}")
    else:
        a(f"s_cmp_lg_u64 vcc, 0\ns_cbranch_scc1 {loop}")
    a.label(done)
def xsum(regs, tmps, ror, op="v_add_f32", swaps=("v_permlane16_swap_b32", "v_permlane32_swap_b32")):
    for k in ror:
        for r in regs: a(f"{op}_dpp v{r}, v{r}, v{r} row_ror:{k} row_mask:0xf bank_mask:0xf")
    for sw in swaps:
        for r, t in zip(regs, tmps): a(f"v_mov_b32 v{t}, v{r}")
        for r, t in zip(regs, tmps): a(f"{sw} v{r}, v{t}")
        for r, t in zip(regs, tmps): a(f"{op} v{r}, v{r}, v{t}")
SEL = 42
def tag_consts(base):
    for j in range(4): a(f"s_mov_b32 s{base+j}, {hex(0x07060500 | j)}")
    a(f"s_mov_b32 s{base+4}, 0x0c0c0400\ns_mov_b32 s{base+5}, 0x04000c0c")
def tag_ins(r, vn, base):
    for j in range(4): a(f"v_perm_b32 v{r+j}, v{r+j}, v{vn}, s{base+j}")
def tag_bad(grans, vn, base, acc, t0, t1):
    for n_, r in enumerate(grans):
        a(f"v_perm_b32 v{t0}, v{r+1}, v{r}, s{base+4}\nv_perm_b32 v{t1}, v{r+3}, v{r+2}, s{base+5}")
        if n_ == 0:
            a(f"v_or_b32 v{acc}, v{t0}, v{t1}\nv_xor_b32 v{acc}, v{acc}, v{vn}")
        else:
            a(f"v_or_b32 v{t0}, v{t0}, v{t1}\nv_xor_b32 v{t0}, v{t0}, v{vn}\nv_or_b32 v{acc}, v{acc}, v{t0}")
def hstamps(first, n):
    if OPT["stamps"]:
        a(f"s_mov_b64 exec, -1\ns_lshl_b32 s29, s16, 7\ns_add_u32 s29, s29, {STAMP+0x8000+8*first}\ns_waitcnt lgkmcnt(0)\nv_mov_b32 v3, 0")
        for k in range(n):
            a(f"v_mov_b32 v4, s{80+2*k}\nv_mov_b32 v5, s{81+2*k}\nbuffer_store_dwordx2 v[4:5], v3, s[12:15], s29 offen offset:{8*k}\ns_nop 1")

def backoff(n):
    while n > 0:
        a(f"s_sleep {min(n, 127)}"); n -= 127
def touch():
    a(f"""
s_mov_b64 exec, -1
v_lshrrev_b32 v9, 2, v0
v_and_b32 v10, 3, v0
v_lshlrev_b32 v10, 4, v10
v_lshl_add_u32 v9, v9, 7, v10
s_lshr_b32 s25, s16, 1
s_lshl_b32 s25, s25, 14
s_and_b32 s26, s16, 1
s_lshl_b32 s26, s26, 6
s_add_u32 s25, s25, s26
s_add_u32 s25, s25, {AP}
""")
    for k in range(8):
        a(f"buffer_load_dwordx4 v[{16+4*k}:{19+4*k}], v9, s[12:15], s25 offen offset:{2048*(k&1)} {['', 'sc1', 'nt'][OPT['tpol']]}")
        if k & 1: a("s_add_u32 s25, s25, 4096")

a("""
s_cmp_ge_u32 s2, 256
s_cbranch_scc1 L_end
s_load_dwordx16 s[32:47], s[0:1], 0
s_load_dwordx8 s[48:55], s[0:1], 64
s_load_dwordx2 s[56:57], s[0:1], 96
""")
stamp(0)
a(f"""
v_lshrrev_b32 v1, 6, v0
v_and_b32 v0, 63, v0
s_and_b32 s17, s2, 7
v_readfirstlane_b32 s3, v1
s_mul_i32 s18, s17, {8*OPT['perm']}
s_add_u32 s16, s2, s18
s_and_b32 s16, s16, 255
s_lshr_b32 s18, s16, 3
s_and_b32 s19, s18, 7
s_lshr_b32 s20, s18, 3
s_xor_b32 s20, s20, {OPT['gx']}
s_cmp_lt_u32 s3, 8
s_cbranch_scc1 L_stream
v_and_b32 v10, 15, v0
v_lshrrev_b32 v11, 4, v0
v_lshlrev_b32 v2, 4, v11
v_lshl_add_u32 v2, v10, 10, v2
v_lshrrev_b32 v3, 1, v0
v_and_b32 v4, 1, v0
v_lshlrev_b32 v4, 4, v4
v_mov_b32 v13, 0
s_cmp_eq_u32 s3, 9
s_cbranch_scc1 L_hb
""")
AFR = 16; D0 = 48; WDV = 64; GX = 16; GW = 32; XF = 100; GG = 164; VN = 166; CP = 60
def frag_addr():
    a(f"""
v_lshrrev_b32 v8, 2, v10
v_lshl_add_u32 v8, v11, 3, v8
v_lshlrev_b32 v9, 5, v8
v_and_b32 v8, 3, v0
v_lshl_add_u32 v9, v8, 3, v9
v_add_u32 v9, {R1}, v9
v_cmp_gt_u32 s[58:59], 8, v10
v_bfe_u32 v{CP+1}, v0, 2, 3
v_and_b32 v{CP+2}, 3, v0
v_lshl_add_u32 v{CP}, v{CP+2}, 4, v{CP+1}
v_lshlrev_b32 v{CP}, 2, v{CP}
""")
def gemv(va, Dr):
    def rd(bt):
        base = AFR + 16*(bt & 1)
        for k in range(4):
            t = 4*bt + k
            a(f"ds_read_b64_tr_b16 v[{base+4*k}:{base+4*k+1}], v{va} offset:{1024*t}")
            a(f"ds_read_b64_tr_b16 v[{base+4*k+2}:{base+4*k+3}], v{va} offset:{1024*t+128}")
    rd(0)
    for bt in range(4):
        if bt < 3:
            rd(bt+1); a("s_waitcnt lgkmcnt(8)")
        else:
            a("s_waitcnt lgkmcnt(0)")
        base = AFR + 16*(bt & 1)
        for k in range(4):
            t = 4*bt + k
            c = "0" if t == 0 else f"v[{Dr}:{Dr+3}]"
            a(f"v_mfma_f32_16x16x32_bf16 v[{Dr}:{Dr+3}], v[{base+4*k}:{base+4*k+3}], v[{XF+4*t}:{XF+4*t+3}], {c}")
a(f"""
s_setprio 3
s_memrealtime s[74:75]
s_mul_i32 s21, s17, {OPT['sperm']}
s_add_u32 s21, s21, s18
s_and_b32 s21, s21, 31
s_lshl_b32 s25, s17, 5
s_add_u32 s21, s21, s25
v_lshl_add_u32 v1, v3, 13, v4
s_lshl_b32 s25, s21, 5
v_add_u32 v1, s25, v1
s_mov_b64 s[72:73], 1
v_mov_b32 v15, {OPT['noff']}
v_lshlrev_b32 v3, 4, v0
s_waitcnt lgkmcnt(0)
""")
stamp(8)
srd(68, P_DBG, 256)
a(f"""
s_cmp_ge_u32 s16, 8
s_cbranch_scc1 L_nononce
s_or_b32 s74, s74, 1
v_mov_b32 v12, s74
s_mov_b64 exec, s[72:73]
buffer_atomic_cmpswap v[12:13], v15, s[68:71], 0 offen sc1
s_mov_b64 exec, -1
""")
a.label("L_nononce")
srd(60, P_WQ, 512*4096*2); srd(64, P_X, 8192)
a("s_mov_b32 s25, 0")
for t in range(16):
    a(f"s_mov_b32 m0, {R1 + 1024*t}")
    if t: a(f"s_mov_b32 s25, {t*32*8192}")
    a(f"buffer_load_dwordx4 v1, s[60:63], s25 offen {'nt ' if OPT['wqnt'] else ''}lds")
for s_ in range(16):
    a(f"buffer_load_dwordx4 v[{XF+4*s_}:{XF+4*s_+3}], v2, s[64:67], 0 offen offset:{64*s_}")
srd(12, P_WS, WS_BYTES)
a(f"""
s_mul_i32 s77, s18, {CSTR}
s_add_u32 s77, s77, {CNT}
s_cmp_lg_u32 s17, 0
s_cbranch_scc1 L_nocnt
v_mov_b32 v14, {CBASE}
s_mov_b64 exec, s[72:73]
buffer_store_dword v14, v13, s[12:15], s77 offen sc1
s_mov_b64 exec, -1
""")
a.label("L_nocnt")
a(f"""
buffer_load_dword v12, v15, s[68:71], 0 offen sc1
v_mov_b32 v4, -1
v_mov_b32 v5, -1
v_mov_b32 v6, -1
v_mov_b32 v7, -1
v_add_u32 v1, {CH}, v3
ds_write_b128 v1, v[4:7]
ds_write_b128 v1, v[4:7] offset:1024
ds_write_b128 v1, v[4:7] offset:2048
v_mov_b32 v2, {MISC}
v_mov_b32 v4, 0
v_mov_b32 v5, 0
v_mov_b32 v6, 0
v_mov_b32 v7, 0
ds_write_b128 v2, v[4:7] offset:128
s_mul_i32 s25, s17, {NSE}
s_add_u32 s25, s25, 128
v_add_u32 v4, s25, v0
v_lshlrev_b32 v1, 2, v0
v_add_u32 v1, {CH}, v1
v_cmp_gt_u32 vcc, {NSE}, v0
s_mov_b64 exec, vcc
ds_write_b32 v1, v4
s_mov_b64 exec, -1
""")
frag_addr()
a(f"s_mov_b32 s76, {SPIN}\ns_waitcnt lgkmcnt(0)")
stamp(7)
a("s_barrier")
stamp(1)
a("s_waitcnt vmcnt(0)")
a.label("L_np")
a(f"""
v_readfirstlane_b32 s74, v12
s_sub_u32 s76, s76, 1
s_cmp_eq_u32 s76, 0
s_cbranch_scc1 L_np_done
s_cmp_lg_u32 s74, 0
s_cbranch_scc1 L_np_done
buffer_load_dword v12, v15, s[68:71], 0 offen sc1
s_waitcnt vmcnt(0)
s_branch L_np
""")
a.label("L_np_done")
stamp(2)
gemv(9, D0)
a(f"""
v_mov_b32 v5, s74
v_mov_b32 v7, s74
v_mov_b32 v8, 1
ds_write_b32 v2, v5 offset:96
ds_write_b32 v2, v8 offset:136
s_lshl_b32 s25, s21, 6
s_add_u32 s25, s25, {QG}
v_cvt_pk_bf16_f32 v4, v{D0}, v{D0+1}
v_cvt_pk_bf16_f32 v6, v{D0+2}, v{D0+3}
""")
if OPT["coal"]:
    a(f"""
ds_bpermute_b32 v4, v{CP}, v4
ds_bpermute_b32 v6, v{CP}, v6
v_lshlrev_b32 v14, 4, v{CP+2}
v_lshl_add_u32 v14, v{CP+1}, 14, v14
s_mov_b32 exec_hi, 0
s_waitcnt lgkmcnt(0)
""")
else:
    a(f"""
v_lshlrev_b32 v14, 4, v11
v_lshl_add_u32 v14, v10, 14, v14
s_mov_b64 exec, s[58:59]
""")
a(f"""
buffer_store_dwordx4 v[4:7], v14, s[12:15], s25 offen sc1
s_mov_b64 exec, -1
""")
stamp(3)
a(f"""
s_lshl_b32 s25, s20, 15
s_lshl_b32 s26, s19, 11
s_add_u32 s25, s25, s26
s_add_u32 s25, s25, {QG}
s_add_u32 s26, s25, 16384
s_lshl_b32 s27, s18, 6
s_add_u32 s27, s27, {QG}
s_mov_b32 s76, {SPIN}
""")
backoff(OPT["qd"])
a.label("L_qpoll")
a(f"""
buffer_load_dwordx4 v[16:19], v3, s[12:15], s25 offen sc1
buffer_load_dwordx4 v[20:23], v3, s[12:15], s25 offen offset:1024 sc1
buffer_load_dwordx4 v[24:27], v3, s[12:15], s26 offen sc1
buffer_load_dwordx4 v[28:31], v3, s[12:15], s26 offen offset:1024 sc1
buffer_load_dwordx4 v[32:35], v13, s[12:15], s27 offen sc1
s_waitcnt vmcnt(0)
""")
any_eq(list(range(17, 36, 2)), "s74", neg=True)
spin_tail("L_qpoll", "L_qdone", sleep=OPT["qslp"])
stamp(4)
a(f"""
v_mov_b32 v17, v18
v_mov_b32 v21, v22
v_mov_b32 v25, v26
v_mov_b32 v29, v30
v_lshlrev_b32 v1, 3, v0
v_add_u32 v1, {Q_LDS}, v1
ds_write_b64 v1, v[16:17]
ds_write_b64 v1, v[20:21] offset:512
ds_write_b64 v1, v[24:25] offset:1024
ds_write_b64 v1, v[28:29] offset:1536
s_waitcnt lgkmcnt(0)
ds_write_b32 v2, v8 offset:132
""")
stamp(5)
a(f"""
s_mov_b32 s21, {NSE}
s_mov_b32 s22, {NSE}
s_mov_b32 s23, 0
s_mov_b32 s24, 0
s_mov_b32 s26, 0
s_mov_b32 s27, 0
s_mov_b32 s28, 0
s_mov_b32 s29, 0
v_mov_b32 v4, 0
s_mov_b32 s76, {SPIN*64}
""")
a.label("L_disp")
a(f"""
s_mov_b64 exec, 1
ds_read_b32 v6, v2 offset:128
s_sub_u32 s76, s76, 1
s_cmp_eq_u32 s76, 0
s_cbranch_scc1 L_dexh
s_cmp_eq_u32 s24, 0
s_cbranch_scc1 L_noc
v_readlane_b32 s25, v4, s27
s_cmp_lt_u32 s25, {CBASE}
s_cbranch_scc1 L_noc
s_and_b32 s30, s23, 15
s_lshr_b32 s23, s23, 4
s_sub_u32 s24, s24, 1
s_add_u32 s27, s27, 1
s_and_b32 s27, s27, 7
s_add_u32 s25, s25, {DYN0 - CBASE}
s_add_u32 s28, s25, s30
s_sub_i32 s31, 512, s25
s_max_i32 s31, s31, 0
s_min_i32 s31, s31, s30
s_cmp_ge_u32 s28, 512
s_cselect_b32 s29, 1, s29
s_cmp_eq_u32 s31, 0
s_cbranch_scc1 L_noc
s_bfm_b64 exec, s31, 0
v_add_u32 v7, s25, v0
s_lshl_b32 s25, s22, 2
s_add_u32 s25, s25, {CH}
v_lshl_add_u32 v8, v0, 2, s25
ds_write_b32 v8, v7
s_add_u32 s22, s22, s31
""")
a.label("L_noc")
a(f"""
s_cmp_lg_u32 s29, 0
s_cbranch_scc1 L_exh
s_cmp_ge_u32 s24, {OPT['maxf']}
s_cbranch_scc1 L_dslp
s_waitcnt lgkmcnt(0)
v_readfirstlane_b32 s25, v6
s_lshl_b32 s30, s21, 1
s_add_u32 s25, s25, {LEAD}
s_cmp_ge_u32 s30, s25
s_cbranch_scc1 L_dslp
s_mov_b32 s30, 4
s_cmp_ge_u32 s28, {OPT['t2']}
s_cselect_b32 s30, 2, s30
s_cmp_ge_u32 s28, {OPT['t1']}
s_cselect_b32 s30, 1, s30
s_lshl_b64 exec, 1, s26
v_mov_b32 v4, s30
buffer_atomic_add v4, v13, s[12:15], s77 offen sc0 sc1
s_lshl_b32 s25, s24, 2
s_lshl_b32 s25, s30, s25
s_or_b32 s23, s23, s25
s_add_u32 s24, s24, 1
s_add_u32 s21, s21, s30
s_add_u32 s26, s26, 1
s_and_b32 s26, s26, 7
s_branch L_disp
""")
a.label("L_exh")
a("s_cmp_eq_u32 s24, 0\ns_cbranch_scc1 L_dexh")
a.label("L_dslp")
a(f"s_sleep {OPT['dslp']}\ns_branch L_disp")
a.label("L_dexh")
a(f"""
s_mov_b64 exec, 0xff
s_lshl_b32 s25, s22, 2
s_add_u32 s25, s25, {CH}
v_lshl_add_u32 v8, v0, 2, s25
v_mov_b32 v7, 512
ds_write_b32 v8, v7
""")
stamp(6)
if OPT["tcha"]: touch()
hstamps(0, 9)
a("s_waitcnt lgkmcnt(0)\ns_endpgm")

a.label("L_hb")
if OPT["bprio"]: a(f"s_setprio {OPT['bprio']}")
a(f"""
s_min_u32 s22, s18, 27
s_lshr_b32 s22, s22, 1
s_mul_i32 s25, s17, 14
s_add_u32 s22, s22, s25
s_and_b32 s23, s18, 1
s_movk_i32 s25, 3584
v_mul_lo_u32 v5, v3, s25
v_add_u32 v5, v5, v4
s_lshl_b32 s25, s22, 5
v_add_u32 v5, s25, v5
v_lshrrev_b32 v6, 3, v0
v_and_b32 v7, 7, v0
v_lshlrev_b32 v7, 4, v7
v_lshl_add_u32 v6, v6, 10, v7
v_lshlrev_b32 v3, 4, v0
""")
frag_addr()
a(f"""
v_mov_b32 v16, 0
v_mov_b32 v17, 0
v_mov_b32 v18, 0
v_mov_b32 v19, 0
v_add_u32 v1, {WD_LDS}, v3
ds_write_b128 v1, v[16:19] offset:7168
v_mov_b32 v15, {MISC}
s_waitcnt lgkmcnt(0)
""")
srd(64, P_X, 8192); srd(12, P_WS, WS_BYTES); srd(4, P_WD, 1792*512*2); srd(8, P_GW, 1024); srd(60, P_WO, 4096*512*2)
a(f"""
s_cmp_eq_u32 s23, 0
s_cselect_b32 s68, s{P_WG}, s{P_WU}
s_cselect_b32 s69, s{P_WG+1}, s{P_WU+1}
s_mov_b32 s70, {512*1792*2}
s_mov_b32 s71, 0x00020000
s_lshl_b32 s27, s17, 7
s_mul_i32 s26, s18, {56*1024}
s_add_u32 s26, s26, s27
s_and_b32 s25, s16, 1
s_lshl_b32 s25, s25, 12
v_lshrrev_b32 v12, 2, v0
v_lshlrev_b32 v12, 6, v12
v_and_b32 v7, 3, v0
v_lshl_add_u32 v7, v7, 10, v12
s_barrier
""")
for s_ in range(16):
    a(f"buffer_load_dwordx4 v[{XF+4*s_}:{XF+4*s_+3}], v2, s[64:67], 0 offen offset:{64*s_}")
for t in range(7):
    a(f"buffer_load_dwordx4 v[{WDV+4*t}:{WDV+4*t+3}], v6, s[4:7], s26 offen nt")
    if t < 6: a("s_add_u32 s26, s26, 8192")
a(f"""
s_mov_b32 s76, {SPIN*16}
""")
for k in range(4):
    a(f"buffer_load_dwordx4 v[{GX+4*k}:{GX+4*k+3}], v7, s[64:67], s25 offen offset:{16*k}")
    a(f"buffer_load_dwordx4 v[{GW+4*k}:{GW+4*k+3}], v12, s[8:11], 0 offen offset:{16*k}")
a.label("L_r1w")
a(f"""
ds_read_b32 v8, v15 offset:136
s_waitcnt lgkmcnt(0)
v_cmp_ne_u32 vcc, 1, v8
""")
spin_tail("L_r1w", "L_r1done", sleep=2)
stamp(1)
a(f"""
ds_read_b32 v{VN}, v15 offset:96
s_mov_b32 s25, 0
""")
for t in range(16):
    a(f"s_mov_b32 m0, {R1 + 1024*t}")
    if t: a(f"s_mov_b32 s25, {t*32*3584}")
    a(f"buffer_load_dwordx4 v5, s[68:71], s25 offen {'nt ' if OPT['ffnt'] else ''}lds")
a(f"""
s_lshl_b32 s25, s22, 2
v_add_u32 v13, s25, v{CP+2 if OPT["coal"] else 11}
s_movk_i32 s25, 4682
v_mul_u32_u24 v14, s25, v13
v_lshrrev_b32 v14, 16, v14
v_mul_u32_u24 v12, 14, v14
v_sub_u32 v13, v13, v12
v_lshlrev_b32 v13, 4, v13
v_lshl_add_u32 v13, v14, 12, v13
v_lshl_add_u32 v13, v{CP+1 if OPT["coal"] else 10}, 8, v13
s_lshl_b32 s25, s23, 11
s_add_u32 s25, s25, {HG}
s_waitcnt vmcnt(16) lgkmcnt(0)
v_readfirstlane_b32 s74, v{VN}
v_mov_b32 v57, v{VN}
v_mov_b32 v59, v{VN}
""")
for t in range(7): a(f"ds_write_b128 v1, v[{WDV+4*t}:{WDV+4*t+3}] offset:{1024*t}")
for k in range(16):
    a(f"""
v_lshlrev_b32 v48, 16, v{GX+k}
v_and_b32 v49, 0xffff0000, v{GX+k}
v_lshlrev_b32 v50, 16, v{GW+k}
v_and_b32 v51, 0xffff0000, v{GW+k}
v_mul_f32 v48, v48, v50
v_mul_f32 v49, v49, v51
v_cvt_pk_bf16_f32 v48, v48, v49
v_and_b32 v49, 0xffff0000, v48
v_lshlrev_b32 v48, 16, v48
""")
    if k == 0: a("v_add_f32 v52, v48, v49")
    else: a("v_add_f32 v48, v48, v49\nv_add_f32 v52, v52, v48")
a("v_mov_b32 v24, v52")
xsum([24], [25], (8, 4))
a(f"""
v_cvt_pk_bf16_f32 v24, v24, v24
v_lshlrev_b32 v24, 16, v24
v_mul_f32 v24, {f32(-LOG2E)}, v24
v_exp_f32 v24, v24
v_add_f32 v24, 1.0, v24
v_rcp_f32 v24, v24
v_cvt_pk_bf16_f32 v24, v24, v24
v_lshlrev_b32 v{GG}, 16, v24
v_sub_f32 v25, 1.0, v{GG}
v_cvt_pk_bf16_f32 v25, v25, v25
v_lshlrev_b32 v{GG+1}, 16, v25
v_lshrrev_b32 v2, 5, v0
v_and_b32 v4, 31, v0
v_lshlrev_b32 v4, 4, v4
v_lshl_add_u32 v2, v2, 10, v4
s_lshr_b32 s26, s16, 1
s_lshl_b32 s26, s26, 15
s_and_b32 s27, s16, 1
s_lshl_b32 s27, s27, 9
s_add_u32 s26, s26, s27
s_waitcnt vmcnt(0)
""")
D1 = 52
gemv(9, D1)
a(f"""
v_cvt_pk_bf16_f32 v56, v{D1}, v{D1+1}
v_cvt_pk_bf16_f32 v58, v{D1+2}, v{D1+3}
s_cmp_ge_u32 s18, 28
s_cbranch_scc1 L_nohpub
""")
if OPT["coal"]:
    a(f"""
ds_bpermute_b32 v56, v{CP}, v56
ds_bpermute_b32 v58, v{CP}, v58
s_mov_b32 exec_hi, 0
s_waitcnt lgkmcnt(0)
""")
else:
    a("s_mov_b64 exec, s[58:59]")
a(f"""
buffer_store_dwordx4 v[56:59], v13, s[12:15], s25 offen sc1
s_mov_b64 exec, -1
""")
a.label("L_nohpub")
stamp(2)
for t in range(16):
    a(f"s_mov_b32 m0, {WO_LDS + 1024*t}\ns_nop 0\nbuffer_load_dwordx4 v2, s[60:63], s26 offen nt lds")
    if t < 15: a("s_add_u32 s26, s26, 2048")
HB = 16; UB = 32
tag_consts(SEL)
a(f"""
s_lshl_b32 s30, s18, 12
s_add_u32 s30, s30, {HG}
v_lshlrev_b32 v1, 5, v11
v_lshl_add_u32 v1, v10, 8, v1
v_mov_b32 v4, 0x7ff00000
v_cmp_gt_u32 vcc, 3, v11
s_and_b64 s[66:67], s[58:59], vcc
v_cndmask_b32 v2, v4, v1, s[66:67]
v_cndmask_b32 v1, v4, v1, s[58:59]
v_lshlrev_b32 v14, 4, v10
v_lshl_add_u32 v14, v11, 7, v14
v_add_u32 v14, {WD_LDS}, v14
s_mov_b32 s76, {SPIN}
""")
backoff(OPT["hd"])
a.label("L_hpoll")
for B_, o_ in ((HB, 0), (UB, 2048)):
    a(f"""
buffer_load_dwordx4 v[{B_}:{B_+3}], v1, s[12:15], s30 offen offset:{o_} sc1
buffer_load_dwordx4 v[{B_+4}:{B_+7}], v1, s[12:15], s30 offen offset:{o_+16} sc1
buffer_load_dwordx4 v[{B_+8}:{B_+11}], v2, s[12:15], s30 offen offset:{o_+128} sc1
buffer_load_dwordx4 v[{B_+12}:{B_+15}], v2, s[12:15], s30 offen offset:{o_+144} sc1
""")
a("s_waitcnt vmcnt(0)")
any_eq([HB+1, HB+3, HB+5, HB+7, UB+1, UB+3, UB+5, UB+7], "s74", neg=True)
a("s_and_b64 s[64:65], vcc, s[58:59]")
any_eq([HB+9, HB+11, HB+13, HB+15, UB+9, UB+11, UB+13, UB+15], "s74", neg=True)
a("s_and_b64 vcc, vcc, s[66:67]\ns_or_b64 vcc, vcc, s[64:65]")
spin_tail("L_hpoll", "L_hdone", sleep=OPT["hslp"])
stamp(3)
a(f"""
s_mov_b32 s25, {f32(0.044715)}
s_mov_b32 s26, {f32(-2.0*0.7978845608028654*LOG2E)}
v_lshrrev_b32 v1, 2, v10
v_lshl_add_u32 v1, v11, 3, v1
v_lshlrev_b32 v1, 7, v1
v_and_b32 v2, 3, v0
v_lshl_add_u32 v1, v2, 3, v1
v_add_u32 v1, {WD_LDS}, v1
""")
AF = 80
for ct in range(4):
    for s_ in range(2):
        r = AF + 8*ct + 4*s_
        a(f"ds_read_b64_tr_b16 v[{r}:{r+1}], v1 offset:{s_*4096+ct*32}")
        a(f"ds_read_b64_tr_b16 v[{r+2}:{r+3}], v1 offset:{s_*4096+ct*32+512}")
HF = 48
for e in range(8):
    g_, u_ = HB + 2*e, UB + 2*e
    t = 56
    a(f"""
v_lshlrev_b32 v{t}, 16, v{g_}
v_and_b32 v{t+1}, 0xffff0000, v{g_}
v_lshlrev_b32 v{t+2}, 16, v{u_}
v_and_b32 v{t+3}, 0xffff0000, v{u_}
v_mul_f32 v{t+4}, v{t}, v{t}
v_mul_f32 v{t+5}, v{t+1}, v{t+1}
v_mul_f32 v{t+4}, v{t+4}, v{t}
v_mul_f32 v{t+5}, v{t+5}, v{t+1}
v_fma_f32 v{t+4}, v{t+4}, s25, v{t}
v_fma_f32 v{t+5}, v{t+5}, s25, v{t+1}
v_mul_f32 v{t+4}, s26, v{t+4}
v_mul_f32 v{t+5}, s26, v{t+5}
v_exp_f32 v{t+4}, v{t+4}
v_exp_f32 v{t+5}, v{t+5}
v_add_f32 v{t+4}, 1.0, v{t+4}
v_add_f32 v{t+5}, 1.0, v{t+5}
v_rcp_f32 v{t+4}, v{t+4}
v_rcp_f32 v{t+5}, v{t+5}
v_mul_f32 v{t+4}, v{t+4}, v{t}
v_mul_f32 v{t+5}, v{t+5}, v{t+1}
v_cvt_pk_bf16_f32 v{t+4}, v{t+4}, v{t+5}
v_and_b32 v{t+5}, 0xffff0000, v{t+4}
v_lshlrev_b32 v{t+4}, 16, v{t+4}
v_mul_f32 v{t+4}, v{t+4}, v{t+2}
v_mul_f32 v{t+5}, v{t+5}, v{t+3}
v_cvt_pk_bf16_f32 v{HF+e}, v{t+4}, v{t+5}
""")
a("s_waitcnt lgkmcnt(0)")
for ct in range(4):
    r = AF + 8*ct; d = 112 + 4*ct
    a(f"v_mfma_f32_16x16x32_bf16 v[{d}:{d+3}], v[{r}:{r+3}], v[{HF}:{HF+3}], 0")
    a(f"v_mfma_f32_16x16x32_bf16 v[{d}:{d+3}], v[{r+4}:{r+7}], v[{HF+4}:{HF+7}], v[{d}:{d+3}]")
for ct in range(4): tag_ins(112 + 4*ct, VN, SEL)
a("s_mov_b64 exec, s[58:59]")
for ct in range(4):
    d = 112 + 4*ct
    a(f"ds_write_b128 v14, v[{d}:{d+3}] offset:{512*ct}")
a(f"""
v_lshl_add_u32 v2, v{CP+2}, 3, v15
s_mov_b64 exec, 15
ds_write_b64 v2, v[{GG}:{GG+1}] offset:64
""")
stamp(4)
if OPT["tchb"]: touch()
hstamps(9, 5)
a("s_waitcnt vmcnt(0) lgkmcnt(0)\ns_endpgm")

a.label("L_stream")
KA, VA, KR, VR = 1, 5, 7, 11
M_, L_ = 20, 21
T0, T1, T2 = 22, 23, 19
Q = 24; KF = 40; S = 56; T = 60; PF = 66; BIAS = 68; CG = 69; CL = 70; ZR = 71; O = 72; STG = 104; NINF = 65; FL = 64
TE = T + 2; ONE = T + 3; TA = CL
X0 = KF
a(f"""
v_and_b32 v{T0}, 15, v0
v_lshrrev_b32 v{T1}, 4, v0
s_lshl_b32 s24, s3, 14
""")
for i in range(4):
    a(f"""
v_add_u32 v{T2}, {4*i}, v{T1}
v_xor_b32 v{T2}, v{T2}, v{T0}
v_lshlrev_b32 v{T2}, 4, v{T2}
v_lshl_add_u32 v{KA+i}, v{T1}, 8, v{T2}
v_lshl_add_u32 v{KR+i}, v{T0}, 8, v{T2}
v_add_u32 v{KR+i}, s24, v{KR+i}
""")
for e in range(2):
    a(f"""
v_lshrrev_b32 v{T2}, 1, v{T0}
v_add_u32 v{X0}, {4*e}, v{T1}
v_xor_b32 v{T2}, v{T2}, v{X0}
v_lshlrev_b32 v{T2}, 5, v{T2}
v_and_b32 v{X0}, 1, v{T0}
v_lshl_add_u32 v{T2}, v{X0}, 4, v{T2}
v_lshl_add_u32 v{VA+e}, v{T1}, 8, v{T2}
""")
a(f"""
s_lshl_b32 s30, s20, 4
s_add_u32 s30, s30, s19
s_lshl_b32 s21, s30, 21
s_lshl_b32 s22, s17, 3
s_add_u32 s22, s22, s3
s_lshl_b32 s27, s22, 12
s_add_u32 s27, s27, s21
s_add_u32 s26, s27, {64*4096}
s_add_u32 s67, s27, {128*4096}
s_add_u32 s29, s27, {192*4096}
s_waitcnt lgkmcnt(0)
""")
srd(4, P_K, 128 << 20); srd(8, P_V, 128 << 20)
nload = [0]
def pre_load(isV, dst, so):
    srdn = "s[8:11]" if isV else "s[4:7]"
    if dst[0] == "lds": a(dst[1])
    for i in range(4):
        if nload[0] == NPRE:
            setup_rest()
            a("s_barrier")
        va = VA + (i & 1) if isV else KA + i
        if nload[0] >= Wp: a(f"s_waitcnt vmcnt({Wp-1})")
        if dst[0] == "lds":
            a(f"buffer_load_dwordx4 v{va}, {srdn}, {so} offen offset:{i*1024} nt lds")
        else:
            r = dst[1] + 4*i
            a(f"buffer_load_dwordx4 v[{r}:{r+3}], v{va}, {srdn}, {so} offen offset:{i*1024} nt")
        nload[0] += 1
def setup_rest():
    srd(12, P_WS, WS_BYTES)
    a(f"""
v_lshrrev_b32 v{X0}, 2, v0
v_and_b32 v{X0+1}, 7, v{X0}
v_and_b32 v{X0+2}, 3, v0
v_lshlrev_b32 v{X0+2}, 3, v{X0+2}
v_lshl_add_u32 v{X0+2}, v{X0}, 8, v{X0+2}
s_add_u32 s25, s24, 8192
v_add_u32 v{X0+2}, s25, v{X0+2}
""")
    for dt in range(8):
        a(f"v_xor_b32 v{T2}, {dt}, v{X0+1}\nv_lshl_add_u32 v{VR+dt}, v{T2}, 5, v{X0+2}")
    a(f"""
v_cmp_gt_u32 s[70:71], 8, v{T0}
v_mov_b32 v{M_}, {f32(-1e30)}
v_mov_b32 v{L_}, 0
v_lshrrev_b32 v{CG}, 2, v{T0}
v_mov_b32 v{NINF}, 0xff800000
v_mov_b32 v{ZR}, 0
s_mov_b32 s58, {f32(SCALE)}
s_mov_b32 s59, {f32(LOG2E)}
s_mov_b32 s31, {f32(-LOG2E)}
v_cmp_eq_u32 vcc, 0, v{CG}
v_cndmask_b32 v{BIAS}, v{NINF}, v{ZR}, vcc
s_mov_b32 s28, 0
s_mov_b64 s[72:73], 1
v_mov_b32 v{ONE}, 1
v_mov_b32 v{FL}, {TK}
s_mov_b32 s96, 1
s_mov_b32 s60, s24
s_add_u32 s61, s24, 8192
""")
    tag_consts(SEL)
    for r in range(32): a(f"v_mov_b32 v{O+r}, 0")
    for r in range(16): a(f"v_mov_b32 v{Q+r}, 0")
pre_load(False, ("lds", "s_mov_b32 m0, s24"), "s27")
pre_load(True, ("lds", "s_add_u32 m0, s24, 8192"), "s27")
pre_load(False, ("lds", "s_add_u32 m0, s24, 4096"), "s26")
pre_load(True, ("lds", "s_add_u32 m0, s24, 12288"), "s26")
pre_load(False, ("v", STG), "s67")
pre_load(True, ("v", STG+16), "s67")
pre_load(False, ("v", STG+32), "s29")
pre_load(True, ("v", STG+48), "s29")
if NPRE >= 32:
    setup_rest(); a("s_barrier")
a(f"""
v_lshlrev_b32 v{T2}, 4, v{T1}
v_lshl_add_u32 v{T2}, v{T0}, 8, v{T2}
v_add_u32 v{T2}, {Q_LDS}, v{T2}
s_mov_b32 s76, {SPIN*16}
""")
a.label("L_qw")
a(f"""
ds_read_b32 v{T}, v{FL} offset:4
s_waitcnt lgkmcnt(0)
v_cmp_ne_u32 vcc, 1, v{T}
""")
spin_tail("L_qw", "L_qwdone", sleep=1)
stamp(1)
a("s_mov_b64 exec, s[70:71]")
for j in range(4): a(f"ds_read_b128 v[{Q+4*j}:{Q+4*j+3}], v{T2} offset:{j*64}")
a("s_mov_b64 exec, -1")

def rnd4():
    for k in range(2): a(f"v_cvt_pk_bf16_f32 v{T+k}, v{S+2*k}, v{S+2*k+1}")
    for k in range(2):
        a(f"v_lshlrev_b32 v{S+2*k}, 16, v{T+k}\nv_and_b32 v{S+2*k+1}, 0xffff0000, v{T+k}")
nlab = [0]
def ticket_rd():
    a(f"s_mov_b64 exec, 1\nds_add_rtn_u32 v{TE}, v{FL}, v{ONE}\ns_mov_b64 exec, -1")
def ticket_use():
    a(f"""
v_readfirstlane_b32 s25, v{TE}
s_and_b32 s75, s25, 1
s_lshr_b32 s25, s25, 1
s_lshl_b32 s25, s25, 2
s_add_u32 s25, s25, {CH}
v_mov_b32 v{TA}, s25
""")
def entry_rd():
    a(f"ds_read_b32 v{TE}, v{TA}")
def entry_use():
    a(f"""
L_eretry:
v_readfirstlane_b32 s23, v{TE}
s_cmp_eq_u32 s23, -1
s_cbranch_scc1 L_espin
s_lshl_b32 s23, s23, 1
s_add_u32 s23, s23, s75
s_cmp_ge_u32 s23, {NU}
s_cbranch_scc1 L_final
""")
def kstep(pre=None, mid=None, rd=True):
    nlab[0] += 1
    lbl = f"L_nr{nlab[0]}"
    if pre: pre()
    if rd:
        for j in range(4): a(f"ds_read_b128 v[{KF+4*j}:{KF+4*j+3}], v{KR+j}")
        a("s_waitcnt lgkmcnt(0)")
    if mid: mid()
    for j in range(4):
        c = "0" if j == 0 else f"v[{S}:{S+3}]"
        a(f"v_mfma_f32_16x16x32_bf16 v[{S}:{S+3}], v[{KF+4*j}:{KF+4*j+3}], v[{Q+4*j}:{Q+4*j+3}], {c}")
    rnd4()
    for k in range(4): a(f"v_fma_f32 v{S+k}, v{S+k}, s58, v{BIAS}")
    rnd4()
    a(f"""
v_max3_f32 v{T}, v{S}, v{S+1}, v{S+2}
v_max3_f32 v{T}, v{T}, v{S+3}, v{M_}
v_mov_b32 v{T+1}, v{T}
v_permlane16_swap_b32 v{T}, v{T+1}
v_max_f32 v{T}, v{T}, v{T+1}
v_mov_b32 v{T+1}, v{T}
v_permlane32_swap_b32 v{T}, v{T+1}
v_max_f32 v{T}, v{T}, v{T+1}
v_cmp_gt_f32 vcc, v{T}, v{M_}
s_cbranch_vccz {lbl}
v_sub_f32 v{T+1}, v{M_}, v{T}
v_mul_f32 v{T+1}, s59, v{T+1}
v_exp_f32 v{T+1}, v{T+1}
v_mov_b32 v{M_}, v{T}
v_mul_f32 v{L_}, v{L_}, v{T+1}
""")
    for r in range(32): a(f"v_mul_f32 v{O+r}, v{O+r}, v{T+1}")
    a.label(lbl)
    a(f"v_mul_f32 v{T+1}, s31, v{M_}")
    for k in range(4): a(f"v_fma_f32 v{S+k}, v{S+k}, s59, v{T+1}")
    for k in range(4): a(f"v_exp_f32 v{S+k}, v{S+k}")
    for k in range(2): a(f"v_cvt_pk_bf16_f32 v{PF+k}, v{S+2*k}, v{S+2*k+1}")
    a(f"""
v_add_f32 v{T}, v{S}, v{S+1}
v_add_f32 v{T+1}, v{S+2}, v{S+3}
v_add_f32 v{T}, v{T}, v{T+1}
v_add_f32 v{L_}, v{L_}, v{T}
""")
def vstep(pre=None, mid=None):
    if pre: pre()
    for dt in range(8): a(f"ds_read_b64_tr_b16 v[{KF+2*dt}:{KF+2*dt+1}], v{VR+dt}")
    a("s_waitcnt lgkmcnt(0)")
    if mid: mid()
    for dt in range(8):
        a(f"v_mfma_f32_16x16x16_bf16 v[{O+4*dt}:{O+4*dt+3}], v[{KF+2*dt}:{KF+2*dt+1}], v[{PF}:{PF+1}], v[{O+4*dt}:{O+4*dt+3}]")
def toggle():
    for r in list(range(KR, KR+4)) + list(range(VR, VR+8)): a(f"v_xor_b32 v{r}, 0x1000, v{r}")
def set_bias(sreg):
    a(f"v_cmp_eq_u32 vcc, {sreg}, v{CG}\nv_cndmask_b32 v{BIAS}, v{NINF}, v{ZR}, vcc")
def next_off():
    a(f"""
s_lshr_b32 s28, s23, 9
s_and_b32 s26, s23, 511
s_lshl_b32 s26, s26, 12
s_lshl_b32 s25, s28, 24
s_add_u32 s26, s26, s25
s_add_u32 s26, s26, s21
""")
def dmaK():
    a("s_mov_b32 m0, s60")
    for i in range(4): a(f"buffer_load_dwordx4 v{KA+i}, s[4:7], s26 offen offset:{i*1024} nt lds")
def dmaV():
    a("s_mov_b32 m0, s61")
    for i in range(4): a(f"buffer_load_dwordx4 v{VA+(i&1)}, s[8:11], s26 offen offset:{i*1024} nt lds")
X = STG
VNS = X + 22
def tail_addr():
    a(f"""
v_lshlrev_b32 v{X}, 4, v{T1}
v_lshl_add_u32 v{X}, v{T0}, 9, v{X}
v_add_u32 v{X}, s24, v{X}
v_lshlrev_b32 v{X+1}, 3, v0
v_add_u32 v{X+15}, s24, v{X+1}
ds_read_b32 v{VNS}, v{FL} offset:{(96-128) & 0xffff}
""" if False else f"""
v_lshlrev_b32 v{X}, 4, v{T1}
v_lshl_add_u32 v{X}, v{T0}, 9, v{X}
v_add_u32 v{X}, s24, v{X}
v_lshlrev_b32 v{X+1}, 3, v0
v_add_u32 v{X+15}, s24, v{X+1}
v_mov_b32 v{X+21}, {MISC}
ds_read_b32 v{VNS}, v{X+21} offset:96
s_lshr_b32 s29, s3, 2
s_lshl_b32 s29, s29, 3
s_add_u32 s29, s29, s30
s_lshl_b32 s29, s29, 2
s_and_b32 s25, s3, 3
s_add_u32 s29, s29, s25
s_lshl_b32 s62, s29, 12
s_lshl_b32 s25, s17, 7
s_add_u32 s62, s62, s25
s_add_u32 s62, s62, {PART}
s_lshl_b32 s63, s29, 7
s_lshl_b32 s25, s17, 4
s_add_u32 s63, s63, s25
s_add_u32 s63, s63, {ML}
s_and_b32 s65, s16, 1
s_lshl_b32 s65, s65, 3
s_add_u32 s65, s65, s3
s_lshl_b32 s65, s65, 17
s_lshr_b32 s25, s16, 1
s_lshl_b32 s25, s25, 7
s_add_u32 s65, s65, s25
s_add_u32 s65, s65, {AP}
v_and_b32 v{X+3}, 31, v0
v_lshrrev_b32 v{X+4}, 5, v0
v_lshlrev_b32 v{X+2}, 4, v{X+3}
v_lshl_add_u32 v{X+2}, v{X+4}, 16, v{X+2}
s_lshl_b32 s25, s3, 9
v_add_u32 v{X+2}, s25, v{X+2}
v_lshrrev_b32 v{X+6}, 3, v{X+3}
v_lshlrev_b32 v{X+6}, 10, v{X+6}
v_and_b32 v{X+3}, 7, v0
v_lshl_add_u32 v{X+6}, v{X+3}, 4, v{X+6}
s_lshl_b32 s25, s3, 3
v_mov_b32 v{X+4}, s25
v_add_u32 v{X+5}, 0x10000, v{X+4}
s_lshl_b32 s29, s3, 5
s_add_u32 s29, s29, s18
s_lshl_b32 s64, s29, 7
s_add_u32 s64, s64, {ML}
s_lshl_b32 s74, s29, 12
s_bfe_u32 s25, s16, 0x20001
s_lshl_b32 s25, s25, 10
s_add_u32 s74, s74, s25
s_add_u32 s74, s74, {PART}
v_lshlrev_b32 v{X+7}, 4, v0
v_lshrrev_b32 v{X+8}, 3, v0
v_lshlrev_b32 v{X+8}, 4, v{X+8}
v_lshrrev_b32 v{X+9}, 2, v{T0}
v_lshl_add_u32 v{X+9}, v{T1}, 3, v{X+9}
v_lshlrev_b32 v{X+9}, 9, v{X+9}
v_and_b32 v{X+13}, 3, v0
v_lshl_add_u32 v{X+9}, v{X+13}, 3, v{X+9}
s_lshl_b32 s25, s3, 6
s_add_u32 s29, s25, {WO_LDS}
v_add_u32 v{X+9}, s29, v{X+9}
s_add_u32 s25, s25, {O_LDS}
v_add_u32 v{X+10}, s25, v{X+1}
v_lshlrev_b32 v{X+11}, 4, v{T1}
v_lshl_add_u32 v{X+12}, v{T0}, 6, v{X+11}
v_add_u32 v{X+12}, {O_LDS}, v{X+12}
v_lshrrev_b32 v{X+14}, 3, v{T0}
v_lshl_add_u32 v{X+14}, v{X+14}, 2, v{T1}
v_and_b32 v{X+11}, 7, v{T0}
v_lshlrev_b32 v{X+11}, 4, v{X+11}
v_lshl_add_u32 v{X+11}, v{X+14}, 14, v{X+11}
v_lshl_add_u32 v{X+21}, v{X+13}, 3, v{X+21}
s_lshl_b32 s25, s3, 8
s_add_u32 s25, s25, {WD_LDS}
v_lshl_add_u32 v{X+24}, v{T0}, 4, s25
v_lshrrev_b32 v{X+25}, 3, v{T0}
v_lshlrev_b32 v{X+25}, 12, v{X+25}
v_lshl_add_u32 v{X+25}, v{X+3}, 4, v{X+25}
s_lshl_b32 s67, s17, 16
s_lshl_b32 s25, s3, 13
s_add_u32 s67, s67, s25
s_lshl_b32 s25, s18, 7
s_add_u32 s67, s67, s25
s_add_u32 s67, s67, {BP}
v_mov_b32 v{X+26}, 0x7ff00000
v_mov_b32 v{X+27}, 0x7ff00000
v_lshlrev_b32 v{X+23}, 10, v0
v_lshrrev_b32 v{X+14}, 2, v0
v_lshlrev_b32 v{X+14}, 7, v{X+14}
v_lshl_add_u32 v{X+13}, v{X+13}, 4, v{X+14}
v_cmp_lt_u32 s[68:69], 31, v0
s_lshr_b32 s66, s16, 1
s_lshl_b32 s66, s66, 14
s_and_b32 s25, s16, 1
s_lshl_b32 s25, s25, 6
s_lshr_b32 s98, s66, 2
s_add_u32 s98, s98, s25
s_add_u32 s98, s98, {BP}
s_add_u32 s66, s66, s25
s_add_u32 s66, s66, {AP}
s_waitcnt lgkmcnt(0)
""")
a(f"s_mov_b32 s76, {SPIN*64}\ns_waitcnt vmcnt(28)\ns_mov_b32 s27, 0\ns_mov_b32 s97, 0")
kstep()
a("s_waitcnt vmcnt(24)")
vstep(pre=ticket_rd, mid=ticket_use)
toggle()
a.label("L_loop")
a(f"s_cmp_eq_u32 s96, {OPT['flit']}\ns_cbranch_scc1 L_flush")
a.label("L_loop2")
a("s_waitcnt vmcnt(4)")
def mid2():
    entry_use()
    next_off()
    dmaK()
kstep(pre=entry_rd, mid=mid2)
a("s_waitcnt vmcnt(4)")
dmaV()
vstep(pre=ticket_rd, mid=ticket_use)
set_bias("s28")
toggle()
a(f"""
s_mov_b32 s27, s28
s_xor_b32 s60, s60, 0x1000
s_xor_b32 s61, s61, 0x1000
s_add_u32 s96, s96, 1
s_branch L_loop
L_espin:
s_sub_u32 s76, s76, 1
s_cmp_eq_u32 s76, 0
s_cbranch_scc1 L_final
s_sleep 1
ds_read_b32 v{TE}, v{TA}
s_waitcnt lgkmcnt(0)
s_branch L_eretry
L_final0:
s_mov_b32 s97, 2
s_waitcnt vmcnt(0)
L_flush:
s_waitcnt vmcnt(8)
""")
toggle()
set_bias("0")
a(f"v_lshlrev_b32 v{T2}, 4, v0\nv_add_u32 v{T2}, s60, v{T2}")
for u in range(2):
    for i in range(4):
        r = STG + 32*u + 4*i
        a(f"ds_write_b128 v{T2}, v[{r}:{r+3}] offset:{i*1024}")
    for i in range(4):
        r = STG + 32*u + 16 + 4*i
        a(f"ds_write_b128 v{T2}, v[{r}:{r+3}] offset:{8192+i*1024}")
    a("s_waitcnt lgkmcnt(0)")
    if u == 1:
        tail_addr()
        if OPT["prew"]:
            a(f"""
v_not_b32 v{X+16}, v{VNS}
v_not_b32 v{X+17}, v{VNS}
v_not_b32 v{X+18}, v{VNS}
v_not_b32 v{X+19}, v{VNS}
s_mov_b32 exec_hi, 0
buffer_store_dwordx4 v[{X+16}:{X+19}], v{X+6}, s[12:15], s62 offen sc1
s_mov_b64 exec, 1
buffer_store_dwordx4 v[{X+16}:{X+19}], v{ZR}, s[12:15], s63 offen sc1
s_mov_b64 exec, -1
""")
            if OPT["prew"] > 1:
                a(f"buffer_store_dwordx4 v[{X+16}:{X+19}], v{X+11}, s[12:15], s65 offen sc1")
    kstep(); vstep()
toggle()
set_bias("s27")
a(f"""
s_add_u32 s97, s97, 1
s_cmp_eq_u32 s97, 1
s_cbranch_scc1 L_loop2
""")
for j in range(4): a(f"ds_read_b128 v[{KF+4*j}:{KF+4*j+3}], v{KR+j}")
a(f"""
s_waitcnt lgkmcnt(0)
L_final:
s_cmp_eq_u32 s97, 0
s_cbranch_scc1 L_final0
""")
kstep(rd=False)
a(f"""
v_mov_b32 v{T+1}, v{L_}
v_permlane16_swap_b32 v{L_}, v{T+1}
v_add_f32 v{L_}, v{L_}, v{T+1}
v_mov_b32 v{T+1}, v{L_}
v_permlane32_swap_b32 v{L_}, v{T+1}
v_add_f32 v{L_}, v{L_}, v{T+1}
s_mov_b32 s76, {SPIN}
s_mov_b64 exec, 0xff
ds_write_b64 v{X+15}, v[{M_}:{L_}] offset:4096
s_mov_b64 exec, -1
s_waitcnt vmcnt(0)
""" if False else f"""
v_mov_b32 v{T+1}, v{L_}
v_permlane16_swap_b32 v{L_}, v{T+1}
v_add_f32 v{L_}, v{L_}, v{T+1}
v_mov_b32 v{T+1}, v{L_}
v_permlane32_swap_b32 v{L_}, v{T+1}
v_add_f32 v{L_}, v{L_}, v{T+1}
s_mov_b32 s76, {SPIN}
s_mov_b64 exec, 0xff
ds_write_b64 v{X+15}, v[{M_}:{L_}] offset:4096
s_mov_b64 exec, -1
s_waitcnt vmcnt(0)
""")
vstep()
stamp(2)
if OPT["stamps"]:
    a(f"""
s_lshl_b32 s29, s16, 3
s_add_u32 s29, s29, s3
s_lshl_b32 s29, s29, 4
s_add_u32 s29, s29, {STAMP+0x10000}
s_add_u32 s96, s96, 3
s_waitcnt lgkmcnt(0)
v_mov_b32 v{T}, s84
v_mov_b32 v{T+1}, s85
v_mov_b32 v{T+2}, s82
v_mov_b32 v{T+3}, s96
s_mov_b64 exec, s[72:73]
buffer_store_dwordx4 v[{T}:{T+3}], v{ZR}, s[12:15], s29 offen
s_mov_b64 exec, -1
s_nop 4
""")
a("s_mov_b64 exec, s[70:71]")
for dt in range(8): a(f"ds_write_b128 v{X}, v[{O+4*dt}:{O+4*dt+3}] offset:{dt*64}")
a(f"""
s_mov_b64 exec, -1
s_waitcnt lgkmcnt(0)
s_barrier
""")
C = O
for k in range(8):
    a(f"ds_read_b64 v[{C+2*k}:{C+2*k+1}], v{X+4+(k>>2)} offset:{(k&3)*16384+4096}")
for k in range(4):
    a(f"ds_read_b128 v[{C+16+4*k}:{C+16+4*k+3}], v{X+2} offset:{k*16384}")
R = KF + 8
a(f"""
s_waitcnt lgkmcnt(4)
v_max3_f32 v{R+4}, v{C}, v{C+2}, v{C+4}
v_max3_f32 v{T+1}, v{C+6}, v{C+8}, v{C+10}
v_max3_f32 v{R+4}, v{R+4}, v{C+12}, v{C+14}
v_max_f32 v{R+4}, v{R+4}, v{T+1}
""")
for k in range(8): a(f"v_sub_f32 v{C+2*k}, v{C+2*k}, v{R+4}")
for k in range(8): a(f"v_mul_f32 v{C+2*k}, s59, v{C+2*k}")
for k in range(8): a(f"v_exp_f32 v{C+2*k}, v{C+2*k}")
a(f"v_mul_f32 v{R+5}, v{C}, v{C+1}")
for k in range(1, 8): a(f"v_fmac_f32 v{R+5}, v{C+2*k}, v{C+2*k+1}")
for k in range(4): a(f"v_cndmask_b32 v{C+2*k}, v{C+2*k}, v{C+2*k+8}, s[68:69]")
tag_ins(R+4, VNS, SEL)
a(f"""
s_mov_b64 exec, 1
buffer_store_dwordx4 v[{R+4}:{R+7}], v{ZR}, s[12:15], s63 offen sc1
s_mov_b64 exec, -1
s_waitcnt lgkmcnt(0)
""")
for j in range(4): a(f"v_mul_f32 v{R+j}, v{C}, v{C+16+j}")
for k in range(1, 4):
    for j in range(4): a(f"v_fmac_f32 v{R+j}, v{C+2*k}, v{C+16+4*k+j}")
xsum([R, R+1, R+2, R+3], [T, T+1, T+2, T+3], (), swaps=("v_permlane32_swap_b32",))
tag_ins(R, VNS, SEL)
a(f"""
s_mov_b32 exec_hi, 0
buffer_store_dwordx4 v[{R}:{R+3}], v{X+6}, s[12:15], s62 offen sc1
s_mov_b64 exec, -1
""")
stamp(3)
AW = KF
PA, P = Q, C
NP2 = OPT["np2"]; NP3 = OPT["np3"]
PADR = X + 26 if OPT["pgate"] else X + 7
def ppoll():
    a(f"""
buffer_load_dwordx4 v[{PA+4}:{PA+7}], v{X+8}, s[12:15], s64 offen sc1
buffer_load_dwordx4 v[{PA}:{PA+3}], v{PADR}, s[12:15], s74 offen sc1
""")
def bpstore():
    a(f"""
s_mov_b64 exec, 0xffff
buffer_store_dwordx4 v[{X+16}:{X+19}], v{X+25}, s[12:15], s67 offen sc1
s_mov_b64 exec, -1
""")
if NP2 > 1: ppoll()
for tt in range(2):
    a(f"ds_read_b64_tr_b16 v[{AW+4*tt}:{AW+4*tt+1}], v{X+9} offset:{tt*32}")
    a(f"ds_read_b64_tr_b16 v[{AW+4*tt+2}:{AW+4*tt+3}], v{X+9} offset:{tt*32+2048}")
a(f"ds_read_b128 v[{X+16}:{X+19}], v{X+24}")
for k in range(NP2 - 2):
    a(f"s_sleep {OPT['stag']}"); ppoll()
if OPT["bpat"] == 2:
    a("s_waitcnt lgkmcnt(0)"); bpstore()
if NP2 > 1: a(f"s_sleep {OPT['stag']}")
a.label("L_ppoll")
ppoll()
a(f"s_mov_b64 exec, -1\ns_waitcnt vmcnt({2*(NP2-1)})")
if OPT["pgate"]:
    tag_bad([PA+4], VNS, SEL, T+3, T+1, T+2)
    a(f"v_cmp_ne_u32 s[78:79], 0, v{T+3}")
    tag_bad([PA], VNS, SEL, T, T+1, T+2)
    a(f"v_or_b32 v{T}, v{T}, v{T+3}\nv_cndmask_b32 v{PADR}, v{X+7}, v{X+27}, s[78:79]")
else:
    tag_bad([PA, PA+4], VNS, SEL, T, T+1, T+2)
a(f"""
v_cmp_ne_u32 vcc, 0, v{T}
s_sub_u32 s76, s76, 1
s_cbranch_vccz L_pdone
s_cmp_eq_u32 s76, 0
s_cbranch_scc1 L_pdone
s_mov_b64 exec, vcc
s_bcnt1_i32_b64 s25, {"s[78:79]" if OPT["pgate"] else "vcc"}
{"s_sleep %d" % OPT["fastp"] if OPT["fastp"] else ""}
s_cmp_le_u32 s25, {OPT['slowth']}
s_cbranch_scc1 L_ppoll
s_sleep {OPT['slowp']}
s_branch L_ppoll
""")
a.label("L_pdone")
stamp(4)
a(f"v_and_b32 v{P+4}, 0xffff0000, v{PA+4}\nv_and_b32 v{P+6}, 0xffff0000, v{PA+4}")
xsum([P+6], [P+7], (8,), op="v_max_f32")
a(f"""
v_sub_f32 v{P+4}, v{P+4}, v{P+6}
v_mul_f32 v{P+4}, s59, v{P+4}
v_exp_f32 v{P+4}, v{P+4}
v_mul_f32 v{P+5}, v{PA+5}, v{P+4}
v_mul_f32 v{P}, v{PA}, v{P+4}
v_mul_f32 v{P+1}, v{PA+1}, v{P+4}
v_mul_f32 v{P+2}, v{PA+2}, v{P+4}
v_mul_f32 v{P+3}, v{PA+3}, v{P+4}
""")
xsum([P+5, P, P+1, P+2, P+3], [P+8, P+9, P+10, P+11, P+12], (8,))
a(f"""
v_rcp_f32 v{P+5}, v{P+5}
v_mul_f32 v{P}, v{P}, v{P+5}
v_mul_f32 v{P+1}, v{P+1}, v{P+5}
v_mul_f32 v{P+2}, v{P+2}, v{P+5}
v_mul_f32 v{P+3}, v{P+3}, v{P+5}
v_cvt_pk_bf16_f32 v{P}, v{P}, v{P+1}
v_cvt_pk_bf16_f32 v{P+1}, v{P+2}, v{P+3}
s_mov_b64 exec, 0xff
ds_write_b64 v{X+10}, v[{P}:{P+1}]
s_mov_b64 exec, -1
s_waitcnt lgkmcnt(0)
""")
if OPT["bpat"] == 0: bpstore()
a(f"""
s_barrier
ds_read_b128 v[{P}:{P+3}], v{X+12}
s_waitcnt lgkmcnt(0)
v_mfma_f32_16x16x32_bf16 v[{P+4}:{P+7}], v[{AW}:{AW+3}], v[{P}:{P+3}], 0
v_mfma_f32_16x16x32_bf16 v[{P+8}:{P+11}], v[{AW+4}:{AW+7}], v[{P}:{P+3}], 0
""")
for k in range(4): a(f"v_mov_b32_dpp v{P+4+k}, v{P+8+k} row_shr:8 row_mask:0xf bank_mask:0xc")
tag_ins(P+4, VNS, SEL)
a(f"buffer_store_dwordx4 v[{P+4}:{P+7}], v{X+11}, s[12:15], s65 offen sc1")
stamp(5)
if OPT["bpat"] == 1: bpstore()
a(f"""
s_cmp_lg_u32 s3, 0
s_cbranch_scc1 L_end
s_add_u32 s27, s66, 4096
s_add_u32 s28, s66, 8192
s_add_u32 s29, s66, 12288
s_mov_b32 s76, {SPIN}
""")
AA, AC, BB = STG + 32, KF, O + 16
A3 = AC; FB = O; GV = X + 28
def apoll():
    for k in range(8):
        a(f"buffer_load_dwordx4 v[{AA+4*k}:{AA+4*k+3}], v{X+13}, s[12:15], s{66 if k < 2 else 26 + (k>>1)} offen offset:{2048*(k&1)} sc1")
def rnd(r, t):
    a(f"""
v_cvt_pk_bf16_f32 v{t}, v{r}, v{r+1}
v_cvt_pk_bf16_f32 v{t+1}, v{r+2}, v{r+3}
v_lshlrev_b32 v{r}, 16, v{t}
v_and_b32 v{r+1}, 0xffff0000, v{t}
v_lshlrev_b32 v{r+2}, 16, v{t+1}
v_and_b32 v{r+3}, 0xffff0000, v{t+1}
""")
a(f"""
s_memrealtime s[100:101]
ds_read_b64 v[{GV}:{GV+1}], v{X+21} offset:64
""")
srd(60, P_OUT, 8192)
a.label("L_bpoll")
a(f"s_sleep {OPT['bsl']}")
for k in range(2):
    a(f"buffer_load_dwordx4 v[{BB+4*k}:{BB+4*k+3}], v{X+13}, s[12:15], s98 offen offset:{2048*k} sc1")
a("s_waitcnt vmcnt(0)")
tag_bad([BB, BB+4], VNS, SEL, T, T+1, T+2)
a(f"v_cmp_ne_u32 vcc, 0, v{T}")
spin_tail("L_bpoll", "L_bdone")
for r in range(4): a(f"v_add_f32 v{FB+r}, v{BB+r}, v{BB+r+4}")
xsum([FB, FB+1, FB+2, FB+3], [A3+4+k for k in range(4)], (8, 4))
a("s_waitcnt lgkmcnt(0)")
rnd(FB, A3+6)
for k in range(4): a(f"v_mul_f32 v{FB+k}, v{GV+1}, v{FB+k}")
rnd(FB, A3+6)
a(f"""
s_lshr_b32 s99, s16, 1
s_lshl_b32 s99, s99, 3
s_and_b32 s25, s16, 1
s_lshl_b32 s25, s25, 12
s_add_u32 s99, s99, s25
s_add_u32 s100, s100, {OPT['adel']}
s_mov_b32 s76, {SPIN}
L_await:
s_memrealtime s[78:79]
s_waitcnt lgkmcnt(0)
s_sub_u32 s25, s78, s100
s_cmp_lt_i32 s25, 0
s_cbranch_scc1 L_await
""")
if NP3 > 1: apoll()
for k in range(NP3 - 2):
    a(f"s_sleep {OPT['stag']}"); apoll()
if NP3 > 1: a(f"s_sleep {OPT['stag']}")
a.label("L_apoll")
apoll()
a(f"s_mov_b64 exec, -1\ns_waitcnt vmcnt({8*(NP3-1)})")
tag_bad([AA+4*k for k in range(8)], VNS, SEL, T, T+1, T+2)
a(f"""
v_cmp_ne_u32 vcc, 0, v{T}
s_sub_u32 s76, s76, 1
s_cbranch_vccz L_adone
s_mov_b64 exec, vcc
s_cmp_lg_u32 s76, 0
s_cbranch_scc1 L_apoll
s_mov_b64 exec, -1
""")
a.label("L_adone")
for r in range(16): a(f"v_add_f32 v{AC+r}, v{AA+r}, v{AA+r+16}")
for st in (8, 4):
    for r in range(st): a(f"v_add_f32 v{A3+r}, v{A3+r}, v{A3+r+st}")
xsum([A3, A3+1, A3+2, A3+3], [A3+4+k for k in range(4)], (8, 4))
rnd(A3, A3+4)
for k in range(4): a(f"v_mul_f32 v{A3+k}, v{GV}, v{A3+k}")
rnd(A3, A3+4)
a(f"""
v_add_f32 v{A3}, v{A3}, v{FB}
v_add_f32 v{A3+1}, v{A3+1}, v{FB+1}
v_add_f32 v{A3+2}, v{A3+2}, v{FB+2}
v_add_f32 v{A3+3}, v{A3+3}, v{FB+3}
v_cvt_pk_bf16_f32 v{A3+4}, v{A3}, v{A3+1}
v_cvt_pk_bf16_f32 v{A3+5}, v{A3+2}, v{A3+3}
s_mov_b64 exec, 15
buffer_store_dwordx2 v[{A3+4}:{A3+5}], v{X+23}, s[60:63], s99 offen
s_mov_b64 exec, -1
""")
if OPT["stamps"]:
    stamp(6)
    a(f"s_lshl_b32 s29, s16, 6\ns_add_u32 s29, s29, {STAMP}\ns_waitcnt lgkmcnt(0)")
    for k in range(7):
        a(f"v_mov_b32 v{T}, s{80+2*k}\nv_mov_b32 v{T+1}, s{81+2*k}\nbuffer_store_dwordx2 v[{T}:{T+1}], v{ZR}, s[12:15], s29 offen offset:{8*k}\ns_nop 1")
a.label("L_end")
a("s_endpgm")
a.L += ['.section .rodata,"a"', ".p2align 6", f".amdhsa_kernel {NAME}_kernel",
        "  .amdhsa_next_free_vgpr 168", "  .amdhsa_next_free_sgpr 102", "  .amdhsa_accum_offset 168",
        "  .amdhsa_group_segment_fixed_size 0", "  .amdhsa_kernarg_size 104", "  .amdhsa_user_sgpr_count 2",
        "  .amdhsa_user_sgpr_kernarg_segment_ptr 1", "  .amdhsa_system_sgpr_workgroup_id_x 1", ".end_amdhsa_kernel"]
txt, n = a.text()
open(out, "w").write(txt)
print(f"wrote {out}: {len(txt.splitlines())} lines, {n} nops inserted", file=sys.stderr)
```

```python
import sys, struct
from asmlib import Asm
out = sys.argv[1]
OPT = dict(stamps=0, Wp=8, npre=4, hdr=1, stag=10, hslp=32, qslp=8, nse=12, lead=8, t1=448, t2=384, dslp=2,
           np2=1, np3=2, flit=3, slowp=8, bprio=3, maxf=4, tcha=0, tchb=0, asl=36, tpol=1, wqnt=1, ffnt=1, hd=200, qd=64, prew=0, coal=1, pgate=0, bpat=2, slowth=16, fastp=0, bsl=10, adel=90, perm=0, gx=0, noff=252, sperm=4, eager=1024, f1=0, f2=0, f1slp=2, f2slp=1, f2del=0, fmax=4096, f3=0, rsh=2, fdel=170, f3slp=4, lead2=8, t3=420, fw=1, aat=0, aslp=0, apol=1, na=160, xrot=0, asl0=4, bpa=1, fin=4, nob=0, tb=1, prw=1, fine=0, inc=1, f1th=0, f1sl2=16, hbn=0, fo=0, fst=64, fpol=0, fone=0, nopart=0, noa=0, bdel=0, fful=0, mlate=1, fgo=0, px4=1, xm=1, xforce=0, bpe=0, tcw=0, tc0=0, lay=0, tcd=0, col=1)
for a_ in sys.argv[2:]:
    k, v = a_.split("="); assert k in OPT, k; OPT[k] = int(v)
Wp = OPT["Wp"]; NPRE = OPT["npre"]
NAME = "gated_mix__gqa_block_cached__geglu_ffn__decode"
def f32(x): return "0x%08x" % struct.unpack("<I", struct.pack("<f", x))[0]
LOG2E = 1.4426950408889634
SCALE = 128 ** -0.5
QG, HG, ML, BP, PART, AP, STAMP, CNT = 0x0, 0x20000, 0x40000, 0x80000, 0x100000, 0x200000, 0x400000, 0x480000
F1, F2 = 0x60000, 0x70000
FG, CPA, CPB = 0x40000, 0x200000, 0x300000
if OPT['lay']:
    CNT, CPA, PART = 0x80000, 0x100000, 0x200000
OST = 272
XID = 0x60000
CST = 528
CSTR = 4096 + 256
WS_BYTES = 0x500000
FST = OPT['fst']
if OPT['fful']:
    FG = 0x500000; WS_BYTES = FG + 2048*OPT['fful']
elif FST > 64:
    FG = 0x500000; WS_BYTES = FG + 2048*FST
R1 = 0x20000
WO_LDS = R1
R2 = 0x24000
Q_LDS = R2
MISC = R2 + 0x800
MLT = MISC + 0x100
O_LDS = R2 + 0x1000
CH = R2 + 0x1400
WD_LDS = R2 + 0x2000
LDS_BYTES = 0x28000
NU = 1024
NSE = OPT["nse"]; LEAD = OPT["lead"]
TK = MISC + 128
CBASE = 8
DYN0 = 128 + 8*NSE
SPIN = 1 << 16
a = Asm()
hdr = open("cdna_kernels/%s.s.ref" % NAME).read().split("; Override launch")[0] if OPT["hdr"] else ""
a.L += [l for l in hdr.rstrip().split("\n")] if hdr else []
a.L.append(f"; @launch grid=(256,1,1) block=(640,1,1) lds={LDS_BYTES}")
a.L += ['.amdgcn_target "amdgcn-amd-amdhsa--gfx950"', ".text", f".globl {NAME}_kernel", ".p2align 8",
        f".type {NAME}_kernel,@function", f"{NAME}_kernel:"]

def srd(d, ptr, nbytes):
    a(f"s_mov_b32 s{d}, s{ptr}\ns_mov_b32 s{d+1}, s{ptr+1}\ns_mov_b32 s{d+2}, {hex(nbytes)}\ns_mov_b32 s{d+3}, 0x00020000")
P_X, P_K, P_V, P_WQ, P_WO, P_BX, P_WG, P_WU, P_WD, P_GW, P_OUT, P_DBG, P_WS = [32 + 2*i for i in range(13)]
def stamp(idx):
    if OPT["stamps"]:
        a(f"s_memrealtime s[{80+2*idx}:{81+2*idx}]")
def any_eq(regs, val, neg=False):
    op = "v_cmp_ne_u32" if neg else "v_cmp_eq_u32"
    a(f"{op} vcc, {val}, v{regs[0]}")
    for r in regs[1:]:
        a(f"{op} s[78:79], {val}, v{r}\ns_or_b64 vcc, vcc, s[78:79]")
def spin_tail(loop, done, sleep=0):
    a(f"""
s_sub_u32 s76, s76, 1
s_cmp_eq_u32 s76, 0
s_cbranch_scc1 {done}
""")
    if sleep:
        a(f"s_cmp_eq_u64 vcc, 0\ns_cbranch_scc1 {done}\ns_sleep {sleep}\ns_branch {loop}")
    else:
        a(f"s_cmp_lg_u64 vcc, 0\ns_cbranch_scc1 {loop}")
    a.label(done)
def xsum(regs, tmps, ror, op="v_add_f32", swaps=("v_permlane16_swap_b32", "v_permlane32_swap_b32")):
    for k in ror:
        for r in regs: a(f"{op}_dpp v{r}, v{r}, v{r} row_ror:{k} row_mask:0xf bank_mask:0xf")
    for sw in swaps:
        for r, t in zip(regs, tmps): a(f"v_mov_b32 v{t}, v{r}")
        for r, t in zip(regs, tmps): a(f"{sw} v{r}, v{t}")
        for r, t in zip(regs, tmps): a(f"{op} v{r}, v{r}, v{t}")
SEL = 42
def tag_consts(base):
    for j in range(4): a(f"s_mov_b32 s{base+j}, {hex(0x07060500 | j)}")
    a(f"s_mov_b32 s{base+4}, 0x0c0c0400\ns_mov_b32 s{base+5}, 0x04000c0c")
def tag_ins(r, vn, base):
    for j in range(4): a(f"v_perm_b32 v{r+j}, v{r+j}, v{vn}, s{base+j}")
def tag_bad(grans, vn, base, acc, t0, t1):
    for n_, r in enumerate(grans):
        a(f"v_perm_b32 v{t0}, v{r+1}, v{r}, s{base+4}\nv_perm_b32 v{t1}, v{r+3}, v{r+2}, s{base+5}")
        if n_ == 0:
            a(f"v_or_b32 v{acc}, v{t0}, v{t1}\nv_xor_b32 v{acc}, v{acc}, v{vn}")
        else:
            a(f"v_or_b32 v{t0}, v{t0}, v{t1}\nv_xor_b32 v{t0}, v{t0}, v{vn}\nv_or_b32 v{acc}, v{acc}, v{t0}")
def hstamps(first, n):
    if OPT["stamps"]:
        a(f"s_mov_b64 exec, -1\ns_lshl_b32 s29, s16, 7\ns_add_u32 s29, s29, {STAMP+0x8000+8*first}\ns_waitcnt lgkmcnt(0)\nv_mov_b32 v3, 0")
        for k in range(n):
            a(f"v_mov_b32 v4, s{80+2*k}\nv_mov_b32 v5, s{81+2*k}\nbuffer_store_dwordx2 v[4:5], v3, s[12:15], s29 offen offset:{8*k}\ns_nop 1")

def backoff(n):
    while n > 0:
        a(f"s_sleep {min(n, 127)}"); n -= 127
def touch():
    a(f"""
s_mov_b64 exec, 0xffff
v_lshlrev_b32 v9, 7, v0
s_lshl_b32 s25, s17, 17
s_lshr_b32 s26, s18, 1
s_lshl_b32 s26, s26, 13
s_add_u32 s25, s25, s26
s_and_b32 s26, s18, 1
s_lshl_b32 s26, s26, 11
s_add_u32 s25, s25, s26
s_add_u32 s25, s25, {CPA}
buffer_load_dword v16, v9, s[12:15], s25 offen {['', 'sc1', 'nt'][OPT['tpol']]}
""")

XROT = "s_mov_b32 s16, s2" if not OPT["xrot"] else f"""
s_lshr_b32 s18, s2, 3
s_mul_i32 s17, s18, {OPT['xrot']}
s_add_u32 s17, s17, s2
s_and_b32 s17, s17, 7
s_andn2_b32 s16, s2, 7
s_or_b32 s16, s16, s17
"""
a("""
s_cmp_ge_u32 s2, 256
s_cbranch_scc1 L_end
s_load_dwordx16 s[32:47], s[0:1], 0
s_load_dwordx8 s[48:55], s[0:1], 64
s_load_dwordx2 s[56:57], s[0:1], 96
""")
stamp(0)
a(f"""
v_lshrrev_b32 v1, 6, v0
v_and_b32 v0, 63, v0
s_and_b32 s17, s2, 7
v_readfirstlane_b32 s3, v1
{XROT}
s_lshr_b32 s18, s16, 3
s_and_b32 s19, s18, 7
s_lshr_b32 s20, s18, 3
s_xor_b32 s20, s20, {OPT['gx']}
s_cmp_lt_u32 s3, 8
s_cbranch_scc1 L_stream
v_and_b32 v10, 15, v0
v_lshrrev_b32 v11, 4, v0
v_lshlrev_b32 v2, 4, v11
v_lshl_add_u32 v2, v10, 10, v2
v_lshrrev_b32 v3, 1, v0
v_and_b32 v4, 1, v0
v_lshlrev_b32 v4, 4, v4
v_mov_b32 v13, 0
s_cmp_eq_u32 s3, 9
s_cbranch_scc1 L_hb
""")
AFR = 16; D0 = 48; WDV = 64; GX = 16; GW = 32; XF = 100; GG = 164; VN = 166; CP = 60
def frag_addr():
    a(f"""
v_lshrrev_b32 v8, 2, v10
v_lshl_add_u32 v8, v11, 3, v8
v_lshlrev_b32 v9, 5, v8
v_and_b32 v8, 3, v0
v_lshl_add_u32 v9, v8, 3, v9
v_add_u32 v9, {R1}, v9
v_cmp_gt_u32 s[58:59], 8, v10
v_bfe_u32 v{CP+1}, v0, 2, 3
v_and_b32 v{CP+2}, 3, v0
v_lshl_add_u32 v{CP}, v{CP+2}, 4, v{CP+1}
v_lshlrev_b32 v{CP}, 2, v{CP}
""")
def gemv(va, Dr):
    def rd(bt):
        base = AFR + 16*(bt & 1)
        for k in range(4):
            t = 4*bt + k
            a(f"ds_read_b64_tr_b16 v[{base+4*k}:{base+4*k+1}], v{va} offset:{1024*t}")
            a(f"ds_read_b64_tr_b16 v[{base+4*k+2}:{base+4*k+3}], v{va} offset:{1024*t+128}")
    rd(0)
    for bt in range(4):
        if bt < 3:
            rd(bt+1); a("s_waitcnt lgkmcnt(8)")
        else:
            a("s_waitcnt lgkmcnt(0)")
        base = AFR + 16*(bt & 1)
        for k in range(4):
            t = 4*bt + k
            c = "0" if t == 0 else f"v[{Dr}:{Dr+3}]"
            a(f"v_mfma_f32_16x16x32_bf16 v[{Dr}:{Dr+3}], v[{base+4*k}:{base+4*k+3}], v[{XF+4*t}:{XF+4*t+3}], {c}")
a(f"""
s_setprio 3
s_memrealtime s[74:75]
s_mul_i32 s21, s17, {OPT['sperm']}
s_add_u32 s21, s21, s18
s_and_b32 s21, s21, 31
s_lshl_b32 s25, s17, 5
s_add_u32 s21, s21, s25
v_lshl_add_u32 v1, v3, 13, v4
s_lshl_b32 s25, s21, 5
v_add_u32 v1, s25, v1
s_mov_b64 s[72:73], 1
v_mov_b32 v15, {OPT['noff']}
v_lshlrev_b32 v3, 4, v0
s_waitcnt lgkmcnt(0)
""")
stamp(8)
srd(68, P_DBG, 256)
a(f"""
s_cmp_ge_u32 s16, 8
s_cbranch_scc1 L_nononce
s_or_b32 s74, s74, 1
v_mov_b32 v12, s74
s_mov_b64 exec, s[72:73]
buffer_atomic_cmpswap v[12:13], v15, s[68:71], 0 offen sc1
s_mov_b64 exec, -1
""")
a.label("L_nononce")
srd(60, P_WQ, 512*4096*2); srd(64, P_X, 8192)
a("s_mov_b32 s25, 0")
for t in range(16):
    a(f"s_mov_b32 m0, {R1 + 1024*t}")
    if t: a(f"s_mov_b32 s25, {t*32*8192}")
    a(f"buffer_load_dwordx4 v1, s[60:63], s25 offen {'nt ' if OPT['wqnt'] else ''}lds")
for s_ in range(16):
    a(f"buffer_load_dwordx4 v[{XF+4*s_}:{XF+4*s_+3}], v2, s[64:67], 0 offen offset:{64*s_}")
srd(12, P_WS, WS_BYTES)
a(f"""
s_mul_i32 s77, s18, {CSTR}
s_add_u32 s77, s77, {CNT}
s_cmp_lg_u32 s17, 0
s_cbranch_scc1 L_nocnt
v_mov_b32 v14, {CBASE}
s_mov_b64 exec, s[72:73]
buffer_store_dword v14, v13, s[12:15], s77 offen sc1
s_mov_b64 exec, -1
""")
a.label("L_nocnt")
a(f"""
buffer_load_dword v12, v15, s[68:71], 0 offen sc1
v_mov_b32 v4, -1
v_mov_b32 v5, -1
v_mov_b32 v6, -1
v_mov_b32 v7, -1
v_add_u32 v1, {CH}, v3
ds_write_b128 v1, v[4:7]
ds_write_b128 v1, v[4:7] offset:1024
ds_write_b128 v1, v[4:7] offset:2048
v_mov_b32 v2, {MISC}
v_mov_b32 v4, 0
v_mov_b32 v5, 0
v_mov_b32 v6, 0
v_mov_b32 v7, 0
ds_write_b128 v2, v[4:7] offset:128
s_mul_i32 s25, s17, {NSE}
s_add_u32 s25, s25, 128
v_add_u32 v4, s25, v0
v_lshlrev_b32 v1, 2, v0
v_add_u32 v1, {CH}, v1
v_cmp_gt_u32 vcc, {NSE}, v0
s_mov_b64 exec, vcc
ds_write_b32 v1, v4
s_mov_b64 exec, -1
""")
frag_addr()
a(f"s_mov_b32 s76, {SPIN}\ns_waitcnt lgkmcnt(0)")
stamp(7)
a("s_barrier")
stamp(1)
a("s_waitcnt vmcnt(0)")
a.label("L_np")
a(f"""
v_readfirstlane_b32 s74, v12
s_sub_u32 s76, s76, 1
s_cmp_eq_u32 s76, 0
s_cbranch_scc1 L_np_done
s_cmp_lg_u32 s74, 0
s_cbranch_scc1 L_np_done
buffer_load_dword v12, v15, s[68:71], 0 offen sc1
s_waitcnt vmcnt(0)
s_branch L_np
""")
a.label("L_np_done")
stamp(2)
gemv(9, D0)
a(f"""
v_mov_b32 v5, s74
v_mov_b32 v7, s74
v_mov_b32 v8, 1
ds_write_b32 v2, v5 offset:96
ds_write_b32 v2, v8 offset:136
s_lshl_b32 s25, s21, 6
s_add_u32 s25, s25, {QG}
v_cvt_pk_bf16_f32 v4, v{D0}, v{D0+1}
v_cvt_pk_bf16_f32 v6, v{D0+2}, v{D0+3}
""")
if OPT["coal"]:
    a(f"""
ds_bpermute_b32 v4, v{CP}, v4
ds_bpermute_b32 v6, v{CP}, v6
v_lshlrev_b32 v14, 4, v{CP+2}
v_lshl_add_u32 v14, v{CP+1}, 14, v14
s_mov_b32 exec_hi, 0
s_waitcnt lgkmcnt(0)
""")
else:
    a(f"""
v_lshlrev_b32 v14, 4, v11
v_lshl_add_u32 v14, v10, 14, v14
s_mov_b64 exec, s[58:59]
""")
a(f"""
buffer_store_dwordx4 v[4:7], v14, s[12:15], s25 offen sc1
s_mov_b64 exec, -1
""")
stamp(3)
a(f"""
s_lshl_b32 s25, s20, 15
s_lshl_b32 s26, s19, 11
s_add_u32 s25, s25, s26
s_add_u32 s25, s25, {QG}
s_add_u32 s26, s25, 16384
s_lshl_b32 s27, s18, 6
s_add_u32 s27, s27, {QG}
s_mov_b32 s76, {SPIN}
""")
backoff(OPT["qd"])
a.label("L_qpoll")
a(f"""
buffer_load_dwordx4 v[16:19], v3, s[12:15], s25 offen sc1
buffer_load_dwordx4 v[20:23], v3, s[12:15], s25 offen offset:1024 sc1
buffer_load_dwordx4 v[24:27], v3, s[12:15], s26 offen sc1
buffer_load_dwordx4 v[28:31], v3, s[12:15], s26 offen offset:1024 sc1
buffer_load_dwordx4 v[32:35], v13, s[12:15], s27 offen sc1
s_waitcnt vmcnt(0)
""")
any_eq(list(range(17, 36, 2)), "s74", neg=True)
spin_tail("L_qpoll", "L_qdone", sleep=OPT["qslp"])
stamp(4)
a(f"""
v_mov_b32 v17, v18
v_mov_b32 v21, v22
v_mov_b32 v25, v26
v_mov_b32 v29, v30
v_lshlrev_b32 v1, 3, v0
v_add_u32 v1, {Q_LDS}, v1
ds_write_b64 v1, v[16:17]
ds_write_b64 v1, v[20:21] offset:512
ds_write_b64 v1, v[24:25] offset:1024
ds_write_b64 v1, v[28:29] offset:1536
s_waitcnt lgkmcnt(0)
ds_write_b32 v2, v8 offset:132
""")
stamp(5)
a(f"""
s_mov_b32 s21, {NSE}
s_mov_b32 s22, {NSE}
s_mov_b32 s23, 0
s_mov_b32 s24, 0
s_mov_b32 s26, 0
s_mov_b32 s27, 0
s_mov_b32 s28, 0
s_mov_b32 s29, 0
v_mov_b32 v4, 0
s_mov_b32 s76, {SPIN*64}
""")
a.label("L_disp")
a(f"""
s_mov_b64 exec, 1
ds_read_b32 v6, v2 offset:128
s_sub_u32 s76, s76, 1
s_cmp_eq_u32 s76, 0
s_cbranch_scc1 L_dexh
s_cmp_eq_u32 s24, 0
s_cbranch_scc1 L_noc
v_readlane_b32 s25, v4, s27
s_cmp_lt_u32 s25, {CBASE}
s_cbranch_scc1 L_noc
s_and_b32 s30, s23, 15
s_lshr_b32 s23, s23, 4
s_sub_u32 s24, s24, 1
s_add_u32 s27, s27, 1
s_and_b32 s27, s27, 7
s_add_u32 s25, s25, {DYN0 - CBASE}
s_add_u32 s28, s25, s30
s_sub_i32 s31, 512, s25
s_max_i32 s31, s31, 0
s_min_i32 s31, s31, s30
s_cmp_ge_u32 s28, 512
s_cselect_b32 s29, 1, s29
s_cmp_eq_u32 s31, 0
s_cbranch_scc1 L_noc
s_bfm_b64 exec, s31, 0
v_add_u32 v7, s25, v0
s_lshl_b32 s25, s22, 2
s_add_u32 s25, s25, {CH}
v_lshl_add_u32 v8, v0, 2, s25
ds_write_b32 v8, v7
s_add_u32 s22, s22, s31
""")
a.label("L_noc")
a(f"""
s_cmp_lg_u32 s29, 0
s_cbranch_scc1 L_exh
s_cmp_ge_u32 s24, {OPT['maxf']}
s_cbranch_scc1 L_dslp
s_waitcnt lgkmcnt(0)
v_readfirstlane_b32 s25, v6
s_lshl_b32 s30, s21, 1
s_cmp_ge_u32 s28, {OPT['t3']}
s_cselect_b32 s31, {OPT['lead2']}, {LEAD}
s_add_u32 s25, s25, s31
s_cmp_ge_u32 s30, s25
s_cbranch_scc1 L_dslp
s_mov_b32 s30, 4
s_cmp_ge_u32 s28, {OPT['t2']}
s_cselect_b32 s30, 2, s30
s_cmp_ge_u32 s28, {OPT['t1']}
s_cselect_b32 s30, 1, s30
s_lshl_b64 exec, 1, s26
v_mov_b32 v4, s30
buffer_atomic_add v4, v13, s[12:15], s77 offen sc0 sc1
s_lshl_b32 s25, s24, 2
s_lshl_b32 s25, s30, s25
s_or_b32 s23, s23, s25
s_add_u32 s24, s24, 1
s_add_u32 s21, s21, s30
s_add_u32 s26, s26, 1
s_and_b32 s26, s26, 7
s_branch L_disp
""")
a.label("L_exh")
a("s_cmp_eq_u32 s24, 0\ns_cbranch_scc1 L_dexh")
a.label("L_dslp")
a(f"s_sleep {OPT['dslp']}\ns_branch L_disp")
a.label("L_dexh")
a(f"""
s_mov_b64 exec, 0xff
s_lshl_b32 s25, s22, 2
s_add_u32 s25, s25, {CH}
v_lshl_add_u32 v8, v0, 2, s25
v_mov_b32 v7, 512
ds_write_b32 v8, v7
""")
stamp(6)
if OPT["tcha"]: touch()
hstamps(0, 9)
a("s_waitcnt lgkmcnt(0)\ns_endpgm")

a.label("L_hb")
if OPT["bprio"]: a(f"s_setprio {OPT['bprio']}")
a(f"""
s_min_u32 s22, s18, 27
s_lshr_b32 s22, s22, 1
s_mul_i32 s25, s17, 14
s_add_u32 s22, s22, s25
s_and_b32 s23, s18, 1
s_movk_i32 s25, 3584
v_mul_lo_u32 v5, v3, s25
v_add_u32 v5, v5, v4
s_lshl_b32 s25, s22, 5
v_add_u32 v5, s25, v5
v_lshrrev_b32 v6, 3, v0
v_and_b32 v7, 7, v0
v_lshlrev_b32 v7, 4, v7
v_lshl_add_u32 v6, v6, 10, v7
v_lshlrev_b32 v3, 4, v0
""")
frag_addr()
a(f"""
v_mov_b32 v16, 0
v_mov_b32 v17, 0
v_mov_b32 v18, 0
v_mov_b32 v19, 0
v_add_u32 v1, {WD_LDS}, v3
ds_write_b128 v1, v[16:19] offset:7168
v_mov_b32 v15, {MISC}
s_waitcnt lgkmcnt(0)
""")
srd(64, P_X, 8192); srd(12, P_WS, WS_BYTES); srd(4, P_WD, 1792*512*2); srd(8, P_GW, 1024); srd(60, P_WO, 4096*512*2)
a(f"""
s_cmp_eq_u32 s23, 0
s_cselect_b32 s68, s{P_WG}, s{P_WU}
s_cselect_b32 s69, s{P_WG+1}, s{P_WU+1}
s_mov_b32 s70, {512*1792*2}
s_mov_b32 s71, 0x00020000
s_lshl_b32 s27, s17, 7
s_mul_i32 s26, s18, {56*1024}
s_add_u32 s26, s26, s27
s_and_b32 s25, s18, 1
s_lshl_b32 s25, s25, 12
v_lshrrev_b32 v12, 2, v0
v_lshlrev_b32 v12, 6, v12
v_and_b32 v7, 3, v0
v_lshl_add_u32 v7, v7, 10, v12
""")
def touch0():
    a(f"""
v_lshlrev_b32 v92, 7, v0
s_lshl_b32 s28, s17, 17
s_lshr_b32 s29, s18, 1
s_lshl_b32 s29, s29, 13
s_add_u32 s28, s28, s29
s_and_b32 s29, s18, 1
s_lshl_b32 s29, s29, {11 if OPT["tc0"] == 1 else 12}
s_add_u32 s28, s28, s29
s_add_u32 s28, s28, {CPA}
s_mov_b64 exec, {"0xffff" if OPT["tc0"] == 1 else "0xffffffff"}
buffer_load_dword v93, v92, s[12:15], s28 offen {['', 'sc1', 'nt'][OPT['tpol']]}
s_mov_b64 exec, -1
""")
if OPT["tc0"] and not OPT["tcd"]: touch0()
a("s_barrier")
for s_ in range(16):
    a(f"buffer_load_dwordx4 v[{XF+4*s_}:{XF+4*s_+3}], v2, s[64:67], 0 offen offset:{64*s_}")
for t in range(7):
    a(f"buffer_load_dwordx4 v[{WDV+4*t}:{WDV+4*t+3}], v6, s[4:7], s26 offen nt")
    if t < 6: a("s_add_u32 s26, s26, 8192")
a(f"""
s_mov_b32 s76, {SPIN*16}
""")
for k in range(4):
    a(f"buffer_load_dwordx4 v[{GX+4*k}:{GX+4*k+3}], v7, s[64:67], s25 offen offset:{16*k}")
    a(f"buffer_load_dwordx4 v[{GW+4*k}:{GW+4*k+3}], v12, s[8:11], 0 offen offset:{16*k}")
a.label("L_r1w")
a(f"""
ds_read_b32 v8, v15 offset:136
s_waitcnt lgkmcnt(0)
v_cmp_ne_u32 vcc, 1, v8
""")
spin_tail("L_r1w", "L_r1done", sleep=2)
stamp(1)
a(f"""
ds_read_b32 v{VN}, v15 offset:96
s_mov_b32 s25, 0
""")
for t in range(16):
    a(f"s_mov_b32 m0, {R1 + 1024*t}")
    if t: a(f"s_mov_b32 s25, {t*32*3584}")
    a(f"buffer_load_dwordx4 v5, s[68:71], s25 offen {'nt ' if OPT['ffnt'] else ''}lds")
a(f"""
s_lshl_b32 s25, s22, 2
v_add_u32 v13, s25, v{CP+2 if OPT["coal"] else 11}
s_movk_i32 s25, 4682
v_mul_u32_u24 v14, s25, v13
v_lshrrev_b32 v14, 16, v14
v_mul_u32_u24 v12, 14, v14
v_sub_u32 v13, v13, v12
v_lshlrev_b32 v13, 4, v13
v_lshl_add_u32 v13, v14, 12, v13
v_lshl_add_u32 v13, v{CP+1 if OPT["coal"] else 10}, 8, v13
s_lshl_b32 s25, s23, 11
s_add_u32 s25, s25, {HG}
s_waitcnt vmcnt(16) lgkmcnt(0)
v_readfirstlane_b32 s74, v{VN}
v_mov_b32 v57, v{VN}
v_mov_b32 v59, v{VN}
""")
for t in range(7): a(f"ds_write_b128 v1, v[{WDV+4*t}:{WDV+4*t+3}] offset:{1024*t}")
for k in range(16):
    a(f"""
v_lshlrev_b32 v48, 16, v{GX+k}
v_and_b32 v49, 0xffff0000, v{GX+k}
v_lshlrev_b32 v50, 16, v{GW+k}
v_and_b32 v51, 0xffff0000, v{GW+k}
v_mul_f32 v48, v48, v50
v_mul_f32 v49, v49, v51
v_cvt_pk_bf16_f32 v48, v48, v49
v_and_b32 v49, 0xffff0000, v48
v_lshlrev_b32 v48, 16, v48
""")
    if k == 0: a("v_add_f32 v52, v48, v49")
    else: a("v_add_f32 v48, v48, v49\nv_add_f32 v52, v52, v48")
a("v_mov_b32 v24, v52")
xsum([24], [25], (8, 4))
a(f"""
v_cvt_pk_bf16_f32 v24, v24, v24
v_lshlrev_b32 v24, 16, v24
v_mul_f32 v24, {f32(-LOG2E)}, v24
v_exp_f32 v24, v24
v_add_f32 v24, 1.0, v24
v_rcp_f32 v24, v24
v_cvt_pk_bf16_f32 v24, v24, v24
v_lshlrev_b32 v{GG}, 16, v24
v_sub_f32 v25, 1.0, v{GG}
v_cvt_pk_bf16_f32 v25, v25, v25
v_lshlrev_b32 v{GG+1}, 16, v25
s_lshl_b32 s26, s18, 17
s_lshl_b32 s27, s17, 7
s_add_u32 s26, s26, s27
s_waitcnt vmcnt(0)
""")
D1 = 52
gemv(9, D1)
a(f"""
v_cvt_pk_bf16_f32 v56, v{D1}, v{D1+1}
v_cvt_pk_bf16_f32 v58, v{D1+2}, v{D1+3}
s_cmp_ge_u32 s18, 28
s_cbranch_scc1 L_nohpub
""")
if OPT["coal"]:
    a(f"""
ds_bpermute_b32 v56, v{CP}, v56
ds_bpermute_b32 v58, v{CP}, v58
s_mov_b32 exec_hi, 0
s_waitcnt lgkmcnt(0)
""")
else:
    a("s_mov_b64 exec, s[58:59]")
a(f"""
buffer_store_dwordx4 v[56:59], v13, s[12:15], s25 offen sc1
s_mov_b64 exec, -1
""")
a.label("L_nohpub")
if OPT["xm"]:
    a(f"""
s_getreg_b32 s31, hwreg(HW_REG_XCC_ID, 0, 4)
s_xor_b32 s31, s31, s74
s_lshl_b32 s29, s17, 8
s_add_u32 s29, s29, {XID}
s_lshl_b32 s27, s18, 3
s_add_u32 s27, s27, s29
v_mov_b32 v{VN+1}, s31
v_lshlrev_b32 v66, 3, v0
v_and_b32 v66, 0xff, v66
s_mov_b64 exec, 1
buffer_store_dwordx2 v[{VN}:{VN+1}], v66, s[12:15], s27 offen sc1
s_mov_b64 exec, -1
""")
stamp(2)
if OPT["tc0"] and OPT["tcd"] == 1:
    a("s_mov_b32 s30, s29"); touch0(); a("s_mov_b32 s29, s30")
for t in range(16):
    a(f"s_mov_b32 m0, {WO_LDS + 1024*t}\ns_nop 0\nbuffer_load_dwordx4 v6, s[60:63], s26 offen nt lds")
    if t < 15: a("s_add_u32 s26, s26, 8192")
HB = 16; UB = 32
tag_consts(SEL)
a(f"""
s_lshl_b32 s30, s18, 12
s_add_u32 s30, s30, {HG}
v_lshlrev_b32 v1, 5, v11
v_lshl_add_u32 v1, v10, 8, v1
v_mov_b32 v4, 0x7ff00000
v_cmp_gt_u32 vcc, 3, v11
s_and_b64 s[66:67], s[58:59], vcc
v_cndmask_b32 v2, v4, v1, s[66:67]
v_cndmask_b32 v1, v4, v1, s[58:59]
v_lshlrev_b32 v14, 4, v10
v_lshl_add_u32 v14, v11, 7, v14
v_add_u32 v14, {WD_LDS}, v14
s_mov_b32 s76, {SPIN}
""")
backoff(OPT["hd"])
a.label("L_hpoll")
for B_, o_ in ((HB, 0), (UB, 2048)):
    a(f"""
buffer_load_dwordx4 v[{B_}:{B_+3}], v1, s[12:15], s30 offen offset:{o_} sc1
buffer_load_dwordx4 v[{B_+4}:{B_+7}], v1, s[12:15], s30 offen offset:{o_+16} sc1
buffer_load_dwordx4 v[{B_+8}:{B_+11}], v2, s[12:15], s30 offen offset:{o_+128} sc1
buffer_load_dwordx4 v[{B_+12}:{B_+15}], v2, s[12:15], s30 offen offset:{o_+144} sc1
""")
if OPT["xm"]: a("buffer_load_dwordx2 v[64:65], v66, s[12:15], s29 offen sc1")
a("s_waitcnt vmcnt(0)")
any_eq([HB+1, HB+3, HB+5, HB+7, UB+1, UB+3, UB+5, UB+7], "s74", neg=True)
a("s_and_b64 s[64:65], vcc, s[58:59]")
if OPT["xm"]: a("v_cmp_ne_u32 vcc, s74, v64\ns_or_b64 s[64:65], s[64:65], vcc\nv_xor_b32 v67, s74, v65\nv_cmp_lt_u32 vcc, 15, v67\ns_or_b64 s[64:65], s[64:65], vcc")
any_eq([HB+9, HB+11, HB+13, HB+15, UB+9, UB+11, UB+13, UB+15], "s74", neg=True)
a("s_and_b64 vcc, vcc, s[66:67]\ns_or_b64 vcc, vcc, s[64:65]")
spin_tail("L_hpoll", "L_hdone", sleep=OPT["hslp"])
if OPT["xm"]:
    a(f"""
v_cmp_ne_u32 vcc, s31, v65
s_cmp_eq_u64 vcc, 0
s_cselect_b32 s28, {0 if OPT["xforce"] else 1}, 0
""")
stamp(3)
a(f"""
s_mov_b32 s25, {f32(0.044715)}
s_mov_b32 s26, {f32(-2.0*0.7978845608028654*LOG2E)}
v_lshrrev_b32 v1, 2, v10
v_lshl_add_u32 v1, v11, 3, v1
v_lshlrev_b32 v1, 7, v1
v_and_b32 v2, 3, v0
v_lshl_add_u32 v1, v2, 3, v1
v_add_u32 v1, {WD_LDS}, v1
""")
AF = 80
for ct in range(4):
    for s_ in range(2):
        r = AF + 8*ct + 4*s_
        a(f"ds_read_b64_tr_b16 v[{r}:{r+1}], v1 offset:{s_*4096+ct*32}")
        a(f"ds_read_b64_tr_b16 v[{r+2}:{r+3}], v1 offset:{s_*4096+ct*32+512}")
HF = 48
for e in range(8):
    g_, u_ = HB + 2*e, UB + 2*e
    t = 56
    a(f"""
v_lshlrev_b32 v{t}, 16, v{g_}
v_and_b32 v{t+1}, 0xffff0000, v{g_}
v_lshlrev_b32 v{t+2}, 16, v{u_}
v_and_b32 v{t+3}, 0xffff0000, v{u_}
v_mul_f32 v{t+4}, v{t}, v{t}
v_mul_f32 v{t+5}, v{t+1}, v{t+1}
v_mul_f32 v{t+4}, v{t+4}, v{t}
v_mul_f32 v{t+5}, v{t+5}, v{t+1}
v_fma_f32 v{t+4}, v{t+4}, s25, v{t}
v_fma_f32 v{t+5}, v{t+5}, s25, v{t+1}
v_mul_f32 v{t+4}, s26, v{t+4}
v_mul_f32 v{t+5}, s26, v{t+5}
v_exp_f32 v{t+4}, v{t+4}
v_exp_f32 v{t+5}, v{t+5}
v_add_f32 v{t+4}, 1.0, v{t+4}
v_add_f32 v{t+5}, 1.0, v{t+5}
v_rcp_f32 v{t+4}, v{t+4}
v_rcp_f32 v{t+5}, v{t+5}
v_mul_f32 v{t+4}, v{t+4}, v{t}
v_mul_f32 v{t+5}, v{t+5}, v{t+1}
v_cvt_pk_bf16_f32 v{t+4}, v{t+4}, v{t+5}
v_and_b32 v{t+5}, 0xffff0000, v{t+4}
v_lshlrev_b32 v{t+4}, 16, v{t+4}
v_mul_f32 v{t+4}, v{t+4}, v{t+2}
v_mul_f32 v{t+5}, v{t+5}, v{t+3}
v_cvt_pk_bf16_f32 v{HF+e}, v{t+4}, v{t+5}
""")
a("s_waitcnt lgkmcnt(0)")
for ct in range(4):
    r = AF + 8*ct; d = 112 + 4*ct
    a(f"v_mfma_f32_16x16x32_bf16 v[{d}:{d+3}], v[{r}:{r+3}], v[{HF}:{HF+3}], 0")
    a(f"v_mfma_f32_16x16x32_bf16 v[{d}:{d+3}], v[{r+4}:{r+7}], v[{HF+4}:{HF+7}], v[{d}:{d+3}]")
for ct in range(4): tag_ins(112 + 4*ct, VN, SEL)
a("s_mov_b64 exec, s[58:59]")
for ct in range(4):
    d = 112 + 4*ct
    a(f"ds_write_b128 v14, v[{d}:{d+3}] offset:{512*ct}")
if OPT["hbn"] == 1:
    a(f"""
v_lshlrev_b32 v1, 4, v10
v_lshl_add_u32 v1, v11, 13, v1
s_lshl_b32 s25, s17, 17
s_lshl_b32 s26, s18, 7
s_add_u32 s25, s25, s26
s_add_u32 s25, s25, {CPA}
v_not_b32 v16, v{VN}
v_not_b32 v17, v{VN}
v_not_b32 v18, v{VN}
v_not_b32 v19, v{VN}
""")
    for ct in range(4):
        d = 112 + 4*ct
        a(f"s_add_u32 s26, s25, 4096\nbuffer_store_dwordx4 v[{d}:{d+3}], v1, s[12:15], s26 offen")
        if OPT["prw"]: a(f"buffer_store_dwordx4 v[16:19], v1, s[12:15], s25 offen")
        if ct < 3: a("s_add_u32 s25, s25, 32768")
a(f"""
v_lshl_add_u32 v2, v{CP+2}, 3, v15
s_mov_b64 exec, 15
ds_write_b64 v2, v[{GG}:{GG+1}] offset:64
""")
stamp(4)
if OPT["tchb"]: touch()
if OPT["xm"]:
    a(f"v_mov_b32 v8, s28\nds_write_b32 v15, v8 offset:140")
else:
    a("v_mov_b32 v8, 1\ns_waitcnt vmcnt(0) lgkmcnt(0)\nds_write_b32 v15, v8 offset:140")
hstamps(9, 5)
a("s_waitcnt vmcnt(0) lgkmcnt(0)\ns_endpgm")

a.label("L_stream")
KA, VA, KR, VR = 1, 5, 7, 11
M_, L_ = 20, 21
T0, T1, T2 = 22, 23, 19
Q = 24; KF = 40; S = 56; T = 60; PF = 66; BIAS = 68; CG = 69; CL = 70; ZR = 71; O = 72; STG = 104; NINF = 65; FL = 64
TE = T + 2; ONE = T + 3; TA = CL
X0 = KF
a(f"""
v_and_b32 v{T0}, 15, v0
v_lshrrev_b32 v{T1}, 4, v0
s_lshl_b32 s24, s3, 14
""")
for i in range(4):
    a(f"""
v_add_u32 v{T2}, {4*i}, v{T1}
v_xor_b32 v{T2}, v{T2}, v{T0}
v_lshlrev_b32 v{T2}, 4, v{T2}
v_lshl_add_u32 v{KA+i}, v{T1}, 8, v{T2}
v_lshl_add_u32 v{KR+i}, v{T0}, 8, v{T2}
v_add_u32 v{KR+i}, s24, v{KR+i}
""")
for e in range(2):
    a(f"""
v_lshrrev_b32 v{T2}, 1, v{T0}
v_add_u32 v{X0}, {4*e}, v{T1}
v_xor_b32 v{T2}, v{T2}, v{X0}
v_lshlrev_b32 v{T2}, 5, v{T2}
v_and_b32 v{X0}, 1, v{T0}
v_lshl_add_u32 v{T2}, v{X0}, 4, v{T2}
v_lshl_add_u32 v{VA+e}, v{T1}, 8, v{T2}
""")
a(f"""
s_lshl_b32 s30, s20, 4
s_add_u32 s30, s30, s19
s_lshl_b32 s21, s30, 21
s_lshl_b32 s22, s17, 3
s_add_u32 s22, s22, s3
s_lshl_b32 s27, s22, 12
s_add_u32 s27, s27, s21
s_add_u32 s26, s27, {64*4096}
s_add_u32 s67, s27, {128*4096}
s_add_u32 s29, s27, {192*4096}
s_waitcnt lgkmcnt(0)
""")
srd(4, P_K, 128 << 20); srd(8, P_V, 128 << 20)
nload = [0]
def pre_load(isV, dst, so):
    srdn = "s[8:11]" if isV else "s[4:7]"
    if dst[0] == "lds": a(dst[1])
    for i in range(4):
        if nload[0] == NPRE:
            setup_rest()
            a("s_barrier")
        va = VA + (i & 1) if isV else KA + i
        if nload[0] >= Wp: a(f"s_waitcnt vmcnt({Wp-1})")
        if dst[0] == "lds":
            a(f"buffer_load_dwordx4 v{va}, {srdn}, {so} offen offset:{i*1024} nt lds")
        else:
            r = dst[1] + 4*i
            a(f"buffer_load_dwordx4 v[{r}:{r+3}], v{va}, {srdn}, {so} offen offset:{i*1024} nt")
        nload[0] += 1
def setup_rest():
    srd(12, P_WS, WS_BYTES)
    a(f"""
v_lshrrev_b32 v{X0}, 2, v0
v_and_b32 v{X0+1}, 7, v{X0}
v_and_b32 v{X0+2}, 3, v0
v_lshlrev_b32 v{X0+2}, 3, v{X0+2}
v_lshl_add_u32 v{X0+2}, v{X0}, 8, v{X0+2}
s_add_u32 s25, s24, 8192
v_add_u32 v{X0+2}, s25, v{X0+2}
""")
    for dt in range(8):
        a(f"v_xor_b32 v{T2}, {dt}, v{X0+1}\nv_lshl_add_u32 v{VR+dt}, v{T2}, 5, v{X0+2}")
    a(f"""
v_cmp_gt_u32 s[70:71], 8, v{T0}
v_mov_b32 v{M_}, {f32(-1e30)}
v_mov_b32 v{L_}, 0
v_lshrrev_b32 v{CG}, 2, v{T0}
v_mov_b32 v{NINF}, 0xff800000
v_mov_b32 v{ZR}, 0
s_mov_b32 s58, {f32(SCALE)}
s_mov_b32 s59, {f32(LOG2E)}
s_mov_b32 s31, {f32(-LOG2E)}
v_cmp_eq_u32 vcc, 0, v{CG}
v_cndmask_b32 v{BIAS}, v{NINF}, v{ZR}, vcc
s_mov_b32 s28, 0
s_mov_b64 s[72:73], 1
v_mov_b32 v{ONE}, 1
v_mov_b32 v{FL}, {TK}
s_mov_b32 s96, 1
s_mov_b32 s60, s24
s_add_u32 s61, s24, 8192
""")
    tag_consts(SEL)
    for r in range(32): a(f"v_mov_b32 v{O+r}, 0")
    for r in range(16): a(f"v_mov_b32 v{Q+r}, 0")
pre_load(False, ("lds", "s_mov_b32 m0, s24"), "s27")
pre_load(True, ("lds", "s_add_u32 m0, s24, 8192"), "s27")
pre_load(False, ("lds", "s_add_u32 m0, s24, 4096"), "s26")
pre_load(True, ("lds", "s_add_u32 m0, s24, 12288"), "s26")
pre_load(False, ("v", STG), "s67")
pre_load(True, ("v", STG+16), "s67")
pre_load(False, ("v", STG+32), "s29")
pre_load(True, ("v", STG+48), "s29")
if NPRE >= 32:
    setup_rest(); a("s_barrier")
a(f"""
v_lshlrev_b32 v{T2}, 4, v{T1}
v_lshl_add_u32 v{T2}, v{T0}, 8, v{T2}
v_add_u32 v{T2}, {Q_LDS}, v{T2}
s_mov_b32 s76, {SPIN*16}
""")
a.label("L_qw")
a(f"""
ds_read_b32 v{T}, v{FL} offset:4
s_waitcnt lgkmcnt(0)
v_cmp_ne_u32 vcc, 1, v{T}
""")
spin_tail("L_qw", "L_qwdone", sleep=1)
stamp(1)
a("s_mov_b64 exec, s[70:71]")
for j in range(4): a(f"ds_read_b128 v[{Q+4*j}:{Q+4*j+3}], v{T2} offset:{j*64}")
a("s_mov_b64 exec, -1")

def rnd4():
    for k in range(2): a(f"v_cvt_pk_bf16_f32 v{T+k}, v{S+2*k}, v{S+2*k+1}")
    for k in range(2):
        a(f"v_lshlrev_b32 v{S+2*k}, 16, v{T+k}\nv_and_b32 v{S+2*k+1}, 0xffff0000, v{T+k}")
nlab = [0]
def ticket_rd():
    a(f"s_mov_b64 exec, 1\nds_add_rtn_u32 v{TE}, v{FL}, v{ONE}\ns_mov_b64 exec, -1")
def ticket_use():
    a(f"""
v_readfirstlane_b32 s25, v{TE}
s_and_b32 s75, s25, 1
s_lshr_b32 s25, s25, 1
s_lshl_b32 s25, s25, 2
s_add_u32 s25, s25, {CH}
v_mov_b32 v{TA}, s25
""")
def entry_rd():
    a(f"ds_read_b32 v{TE}, v{TA}")
def entry_use():
    a(f"""
L_eretry:
v_readfirstlane_b32 s23, v{TE}
s_cmp_eq_u32 s23, -1
s_cbranch_scc1 L_espin
s_lshl_b32 s23, s23, 1
s_add_u32 s23, s23, s75
s_cmp_ge_u32 s23, {NU}
s_cbranch_scc1 L_final
""")
def kstep(pre=None, mid=None, rd=True):
    nlab[0] += 1
    lbl = f"L_nr{nlab[0]}"
    if pre: pre()
    if rd:
        for j in range(4): a(f"ds_read_b128 v[{KF+4*j}:{KF+4*j+3}], v{KR+j}")
        a("s_waitcnt lgkmcnt(0)")
    if mid: mid()
    for j in range(4):
        c = "0" if j == 0 else f"v[{S}:{S+3}]"
        a(f"v_mfma_f32_16x16x32_bf16 v[{S}:{S+3}], v[{KF+4*j}:{KF+4*j+3}], v[{Q+4*j}:{Q+4*j+3}], {c}")
    rnd4()
    for k in range(4): a(f"v_fma_f32 v{S+k}, v{S+k}, s58, v{BIAS}")
    rnd4()
    a(f"""
v_max3_f32 v{T}, v{S}, v{S+1}, v{S+2}
v_max3_f32 v{T}, v{T}, v{S+3}, v{M_}
v_mov_b32 v{T+1}, v{T}
v_permlane16_swap_b32 v{T}, v{T+1}
v_max_f32 v{T}, v{T}, v{T+1}
v_mov_b32 v{T+1}, v{T}
v_permlane32_swap_b32 v{T}, v{T+1}
v_max_f32 v{T}, v{T}, v{T+1}
v_cmp_gt_f32 vcc, v{T}, v{M_}
s_cbranch_vccz {lbl}
v_sub_f32 v{T+1}, v{M_}, v{T}
v_mul_f32 v{T+1}, s59, v{T+1}
v_exp_f32 v{T+1}, v{T+1}
v_mov_b32 v{M_}, v{T}
v_mul_f32 v{L_}, v{L_}, v{T+1}
""")
    for r in range(32): a(f"v_mul_f32 v{O+r}, v{O+r}, v{T+1}")
    a.label(lbl)
    a(f"v_mul_f32 v{T+1}, s31, v{M_}")
    for k in range(4): a(f"v_fma_f32 v{S+k}, v{S+k}, s59, v{T+1}")
    for k in range(4): a(f"v_exp_f32 v{S+k}, v{S+k}")
    for k in range(2): a(f"v_cvt_pk_bf16_f32 v{PF+k}, v{S+2*k}, v{S+2*k+1}")
    a(f"""
v_add_f32 v{T}, v{S}, v{S+1}
v_add_f32 v{T+1}, v{S+2}, v{S+3}
v_add_f32 v{T}, v{T}, v{T+1}
v_add_f32 v{L_}, v{L_}, v{T}
""")
def vstep(pre=None, mid=None):
    if pre: pre()
    for dt in range(8): a(f"ds_read_b64_tr_b16 v[{KF+2*dt}:{KF+2*dt+1}], v{VR+dt}")
    a("s_waitcnt lgkmcnt(0)")
    if mid: mid()
    for dt in range(8):
        a(f"v_mfma_f32_16x16x16_bf16 v[{O+4*dt}:{O+4*dt+3}], v[{KF+2*dt}:{KF+2*dt+1}], v[{PF}:{PF+1}], v[{O+4*dt}:{O+4*dt+3}]")
def toggle():
    for r in list(range(KR, KR+4)) + list(range(VR, VR+8)): a(f"v_xor_b32 v{r}, 0x1000, v{r}")
def set_bias(sreg):
    a(f"v_cmp_eq_u32 vcc, {sreg}, v{CG}\nv_cndmask_b32 v{BIAS}, v{NINF}, v{ZR}, vcc")
def next_off():
    a(f"""
s_lshr_b32 s28, s23, 9
s_and_b32 s26, s23, 511
s_lshl_b32 s26, s26, 12
s_lshl_b32 s25, s28, 24
s_add_u32 s26, s26, s25
s_add_u32 s26, s26, s21
""")
def dmaK():
    a("s_mov_b32 m0, s60")
    for i in range(4): a(f"buffer_load_dwordx4 v{KA+i}, s[4:7], s26 offen offset:{i*1024} nt lds")
def dmaV():
    a("s_mov_b32 m0, s61")
    for i in range(4): a(f"buffer_load_dwordx4 v{VA+(i&1)}, s[8:11], s26 offen offset:{i*1024} nt lds")
X = STG
VNS = X + 27; FLG = X + 26
F3ADDR = f"""
s_lshl_b32 s77, s16, 2
s_add_u32 s77, s77, {F1}
s_lshr_b32 s22, s16, {OPT['rsh']}
s_lshl_b32 s22, s22, 10
s_add_u32 s22, s22, {F1}
s_lshr_b32 s95, s3, 1
s_lshl_b32 s95, s95, 3
s_lshr_b32 s25, s16, 5
s_add_u32 s95, s95, s25
s_lshl_b32 s95, s95, 5
s_add_u32 s95, s95, s22
""" if OPT["f3"] else ""
FLIM = 1 << 20
COL = OPT["col"]
COL1 = f"""
v_lshrrev_b32 v{X+11}, 2, v{T0}
v_lshlrev_b32 v{X+11}, 12, v{X+11}
v_lshl_add_u32 v{X+25}, v{X+13}, 4, v{X+11}
v_lshl_add_u32 v{X+11}, v{T1}, 13, v{X+25}
""" if COL else f"""v_lshlrev_b32 v{X+11}, 4, v{T0}
v_lshl_add_u32 v{X+11}, v{T1}, 13, v{X+11}
"""
COL2 = "" if COL else f"""v_lshrrev_b32 v{X+25}, 3, v{T0}
v_lshlrev_b32 v{X+25}, 13, v{X+25}
v_lshl_add_u32 v{X+25}, v{X+3}, 4, v{X+25}
"""
FU = OPT["fful"]
FADDR = f"""
s_and_b32 s94, s29, 31
s_lshl_b32 s94, s94, 6
s_lshr_b32 s25, s29, 5
s_add_u32 s94, s94, s25
s_mul_i32 s94, s94, {FST}
s_lshl_b32 s25, s17, 3
s_add_u32 s94, s94, s25
s_add_u32 s94, s94, {FG}
s_andn2_b32 s95, s16, {[0, 7, 3, 1, 0][OPT['fone']]}
s_lshl_b32 s95, s95, 3
s_add_u32 s95, s95, s3
s_mul_i32 s95, s95, {FST}
s_add_u32 s95, s95, {FG}
v_mul_u32_u24 v{X+30}, {8*FST}, v0
""" if not FU else f"""
s_lshl_b32 s94, s29, 3
s_add_u32 s94, s94, s17
s_mul_i32 s94, s94, {FU}
s_add_u32 s94, s94, {FG}
s_lshl_b32 s95, s3, 5
s_add_u32 s95, s95, s18
s_mul_i32 s95, s95, {8*FU}
s_lshl_b32 s25, s17, 3
s_add_u32 s95, s95, s25
s_add_u32 s95, s95, {FG}
v_mul_u32_u24 v{X+30}, {FU}, v0
"""
FSA, FPA = (X+1, X+30) if FU else (X+30, X+1)
if OPT["fone"] == 4:
    FADDR = f"""
s_mul_i32 s94, s29, {FST}
s_lshl_b32 s25, s17, 3
s_add_u32 s94, s94, s25
s_add_u32 s94, s94, {FG + OPT['fgo']}
s_lshl_b32 s95, s3, 5
s_add_u32 s95, s95, s18
s_mul_i32 s95, s95, {FST}
s_add_u32 s95, s95, {FG + OPT['fgo']}
v_mov_b32 v{X+30}, 0
"""
def tail_addr():
    a(f"""
v_mul_u32_u24 v{X}, {CST}, v{T0}
v_lshl_add_u32 v{X}, v{T1}, 4, v{X}
v_add_u32 v{X}, s24, v{X}
v_lshlrev_b32 v{X+1}, 3, v0
s_lshl_b32 s25, s3, 3
s_add_u32 s25, s25, {MLT}
v_lshl_add_u32 v{X+15}, v0, 6, s25
v_mov_b32 v{X+21}, {MISC}
ds_read_b32 v{VNS}, v{X+21} offset:96
s_lshr_b32 s29, s3, 2
s_lshl_b32 s29, s29, 3
s_add_u32 s29, s29, s30
s_lshl_b32 s29, s29, 2
s_and_b32 s25, s3, 3
s_add_u32 s29, s29, s25
s_lshl_b32 s62, s29, 12
s_lshl_b32 s25, s17, 9
s_add_u32 s62, s62, s25
s_add_u32 s62, s62, {PART}
{FADDR}
v_and_b32 v{X+3}, 31, v0
v_lshrrev_b32 v{X+4}, 5, v0
v_lshlrev_b32 v{X+2}, 4, v{X+3}
v_bfe_u32 v{X+10}, v0, 4, 1
v_lshlrev_b32 v{X+10}, 2, v{X+10}
v_lshl_add_u32 v{X+10}, v{T0}, 4, v{X+10}
v_lshl_add_u32 v{X+10}, v{X+4}, 3, v{X+10}
v_and_b32 v{X+31}, 1, v0
v_lshlrev_b32 v{X+31}, 4, v{X+31}
v_lshl_add_u32 v{X+2}, v{X+4}, 16, v{X+2}
s_mul_i32 s25, s3, {CST}
v_add_u32 v{X+2}, s25, v{X+2}
v_and_b32 v{X+3}, 7, v0
v_lshlrev_b32 v{X+4}, 2, v{X+4}
v_xor_b32 v{X+4}, v{X+4}, v{X+3}
s_lshl_b32 s25, s3, 6
s_add_u32 s25, s25, {MLT}
v_lshl_add_u32 v{X+4}, v{X+4}, 3, s25
s_lshl_b32 s74, s3, 5
s_add_u32 s74, s74, s18
s_lshl_b32 s74, s74, 12
s_add_u32 s74, s74, {PART}
v_lshlrev_b32 v{X+7}, 4, v0
v_lshrrev_b32 v{X+9}, 2, v{T0}
v_lshl_add_u32 v{X+9}, v{T1}, 3, v{X+9}
v_lshlrev_b32 v{X+9}, 7, v{X+9}
v_and_b32 v{X+13}, 3, v0
v_lshl_add_u32 v{X+9}, v{X+13}, 3, v{X+9}
s_and_b32 s25, s3, 3
s_lshl_b32 s25, s25, 5
s_add_u32 s25, s25, {WO_LDS}
v_add_u32 v{X+9}, s25, v{X+9}
s_mul_i32 s25, s3, {OST}
s_add_u32 s25, s25, {O_LDS}
v_add_u32 v{X+10}, s25, v{X+10}
v_mul_u32_u24 v{X+12}, {OST}, v{T0}
v_lshl_add_u32 v{X+12}, v{T1}, 4, v{X+12}
v_add_u32 v{X+12}, {O_LDS}, v{X+12}
{COL1}
v_lshl_add_u32 v{X+21}, v{X+13}, 3, v{X+21}
s_lshl_b32 s25, s3, 8
s_add_u32 s25, s25, {WD_LDS}
v_lshl_add_u32 v{X+24}, v{T0}, 4, s25
{COL2}
s_lshl_b32 s29, s17, 17
s_add_u32 s29, s29, {CPA}
s_lshl_b32 s25, s18, 7
s_add_u32 s65, s29, s25
s_lshl_b32 s25, s3, 14
s_add_u32 s67, s65, s25
s_add_u32 s67, s67, {64 if COL else 4096}
s_add_u32 s63, s67, {CPB-CPA}
s_lshl_b32 s25, s3, 15
s_add_u32 s65, s65, s25
s_add_u32 s64, s65, {CPB-CPA}
v_lshlrev_b32 v{X+23}, 10, v{X+13}
v_lshl_add_u32 v{X+23}, v{T1}, 1, v{X+23}
v_lshrrev_b32 v{X+14}, 2, v0
v_lshlrev_b32 v{X+14}, 7, v{X+14}
v_lshl_add_u32 v{X+13}, v{X+13}, 4, v{X+14}
v_cmp_lt_u32 s[68:69], 31, v0
s_lshr_b32 s66, s18, 1
s_lshl_b32 s99, s66, 3
s_lshl_b32 s66, s66, 13
s_add_u32 s66, s66, s29
s_and_b32 s25, s18, 1
s_lshl_b32 s29, s25, {12 if COL else 6}
s_add_u32 s66, s66, s29
s_add_u32 s98, s66, {64 if COL else 4096 if OPT["bpa"] else 4096 + CPB - CPA}
s_lshl_b32 s25, s25, 12
s_add_u32 s99, s99, s25
s_lshl_b32 s25, s17, 7
s_add_u32 s99, s99, s25
s_waitcnt lgkmcnt(0)
v_lshrrev_b32 v{X+31}, v{X+31}, v{VNS}
""")
a(f"s_mov_b32 s76, {SPIN*64}\ns_waitcnt vmcnt(28)\ns_mov_b32 s27, 0\ns_mov_b32 s97, 0")
kstep()
a("s_waitcnt vmcnt(24)")
vstep(pre=ticket_rd, mid=ticket_use)
toggle()
a.label("L_loop")
a(f"s_cmp_eq_u32 s96, {OPT['flit']}\ns_cbranch_scc1 L_flush")
a.label("L_loop2")
if OPT["fine"] == 3: a("s_mov_b32 s54, s48\ns_mov_b32 s56, s50\ns_memrealtime s[48:49]")
a("s_waitcnt vmcnt(4)")
if OPT["fine"] == 3: a("s_memrealtime s[50:51]\ns_waitcnt lgkmcnt(0)")
def mid2():
    entry_use()
    next_off()
    dmaK()
    if EAG == 0:
        dmaV()
    elif EAG < 1024:
        a(f"s_cmp_lt_u32 s23, {EAG}\ns_cbranch_scc1 L_ne1")
        dmaV()
        a.label("L_ne1")
EAG = OPT["eager"]
kstep(pre=entry_rd, mid=mid2)
if EAG == 0:
    a("s_waitcnt vmcnt(8)")
elif EAG < 1024:
    a(f"s_waitcnt vmcnt(8)\ns_cmp_ge_u32 s23, {EAG}\ns_cbranch_scc1 L_ne2\ns_waitcnt vmcnt(4)")
    dmaV()
    a.label("L_ne2")
else:
    a("s_waitcnt vmcnt(4)")
    dmaV()
vstep(pre=ticket_rd, mid=ticket_use)
set_bias("s28")
toggle()
a(f"""
s_mov_b32 s27, s28
s_xor_b32 s60, s60, 0x1000
s_xor_b32 s61, s61, 0x1000
s_add_u32 s96, s96, 1
s_branch L_loop
L_espin:
s_sub_u32 s76, s76, 1
s_cmp_eq_u32 s76, 0
s_cbranch_scc1 L_final
s_sleep 1
ds_read_b32 v{TE}, v{TA}
s_waitcnt lgkmcnt(0)
s_branch L_eretry
L_final0:
s_mov_b32 s97, 2
s_waitcnt vmcnt(0)
L_flush:
s_waitcnt vmcnt(8)
""")
toggle()
set_bias("0")
a(f"v_lshlrev_b32 v{T2}, 4, v0\nv_add_u32 v{T2}, s60, v{T2}")
for u in range(2):
    for i in range(4):
        r = STG + 32*u + 4*i
        a(f"ds_write_b128 v{T2}, v[{r}:{r+3}] offset:{i*1024}")
    for i in range(4):
        r = STG + 32*u + 16 + 4*i
        a(f"ds_write_b128 v{T2}, v[{r}:{r+3}] offset:{8192+i*1024}")
    a("s_waitcnt lgkmcnt(0)")
    if u == 1:
        tail_addr()
        if OPT["prew"]:
            a(f"""
v_not_b32 v{X+16}, v{VNS}
v_not_b32 v{X+17}, v{VNS}
v_not_b32 v{X+18}, v{VNS}
v_not_b32 v{X+19}, v{VNS}
s_mov_b32 exec_hi, 0
buffer_store_dwordx4 v[{X+16}:{X+19}], v{X+6}, s[12:15], s62 offen sc1
s_mov_b64 exec, 1
buffer_store_dwordx4 v[{X+16}:{X+19}], v{ZR}, s[12:15], s63 offen sc1
s_mov_b64 exec, -1
""")
            if OPT["prew"] > 1:
                a(f"buffer_store_dwordx4 v[{X+16}:{X+19}], v{X+11}, s[12:15], s65 offen sc1")
    kstep(); vstep()
toggle()
set_bias("s27")
a(f"""
s_add_u32 s97, s97, 1
s_cmp_eq_u32 s97, 1
s_cbranch_scc1 L_loop2
""")
for j in range(4): a(f"ds_read_b128 v[{KF+4*j}:{KF+4*j+3}], v{KR+j}")
a(f"""
s_waitcnt lgkmcnt(0)
L_final:
s_cmp_eq_u32 s97, 0
s_cbranch_scc1 L_final0
""")
def fine3(k):
    if OPT["fine"] == 3: a(f"s_memrealtime s[{[4,6,8,10,48,50,54,56][k]}:{[4,6,8,10,48,50,54,56][k]+1}]\ns_waitcnt lgkmcnt(0)")
fine3(0)
kstep(rd=False)
fine3(1)
AA = STG + 32
CM = AA; AW = AA + 16
R = S; GV = X + 28
a(f"""
v_mov_b32 v{T+1}, v{L_}
v_permlane16_swap_b32 v{L_}, v{T+1}
v_add_f32 v{L_}, v{L_}, v{T+1}
v_mov_b32 v{T+1}, v{L_}
v_permlane32_swap_b32 v{L_}, v{T+1}
v_add_f32 v{L_}, v{L_}, v{T+1}
s_mov_b32 s76, {SPIN*16}
s_mov_b64 exec, 0xff
ds_write_b64 v{X+15}, v[{M_}:{L_}]
s_mov_b64 exec, -1
""")
def misc_rd():
    if OPT["xm"]: a(f"ds_read_b32 v{T}, v{FL} offset:12")
    a(f"ds_read_b128 v[{X+16}:{X+19}], v{X+24}")
    for s_ in range(4):
        a(f"ds_read_b64_tr_b16 v[{AW+4*s_}:{AW+4*s_+1}], v{X+9} offset:{s_*4096}")
        a(f"ds_read_b64_tr_b16 v[{AW+4*s_+2}:{AW+4*s_+3}], v{X+9} offset:{s_*4096+512}")
    a(f"ds_read_b64 v[{GV}:{GV+1}], v{X+21} offset:64")
if not OPT["mlate"]:
    a(f"L_bw:\nds_read_b32 v{T}, v{FL} offset:12")
    misc_rd()
    a(f"s_waitcnt lgkmcnt(0)\nv_cmp_ne_u32 vcc, 1, v{T}")
    spin_tail("L_bw", "L_bwdone", sleep=2)
C = O + 16
def fine2(k):
    if OPT["fine"] == 2: a(f"s_waitcnt vmcnt(0)\ns_memtime s[{[4,6,8,10,48,50,54,56][k]}:{[4,6,8,10,48,50,54,56][k]+1}]\ns_waitcnt lgkmcnt(0)")
def fine(k):
    if OPT["fine"] == 1: a(f"s_memtime s[{[4,6,8,10,48,50,54,56][k]}:{[4,6,8,10,48,50,54,56][k]+1}]" + ("\ns_waitcnt lgkmcnt(0)" if k in (0, 3,) else ""))
fine3(2)
a(f"s_mov_b32 s76, {SPIN}\ns_waitcnt vmcnt(0)")
fine3(3)
fine(0)
for dt in range(8): a(f"ds_read_b64_tr_b16 v[{KF+2*dt}:{KF+2*dt+1}], v{VR+dt}")
for dt in range(8):
    a(f"s_waitcnt lgkmcnt({7-dt})")
    a(f"v_mfma_f32_16x16x16_bf16 v[{O+4*dt}:{O+4*dt+3}], v[{KF+2*dt}:{KF+2*dt+1}], v[{PF}:{PF+1}], v[{O+4*dt}:{O+4*dt+3}]")
stamp(2)
fine(1)
a("s_mov_b64 exec, s[70:71]")
for dt in range(8): a(f"ds_write_b128 v{X}, v[{O+4*dt}:{O+4*dt+3}] offset:{dt*64}")
a("s_mov_b64 exec, -1")
if OPT["tcw"]:
    a(f"""
s_cmp_lg_u32 s3, {OPT['fin']}
s_cbranch_scc1 L_ntc
v_lshlrev_b32 v{T}, 7, v0
{"s_mov_b32 exec_hi, 0" if OPT["tcw"] == 1 else ""}
buffer_load_dword v{AA+4}, v{T}, s[12:15], s66 offen {['', 'sc1', 'nt'][OPT['tpol']]}
s_mov_b64 exec, -1
L_ntc:
""")
a("s_waitcnt lgkmcnt(0)")
fine(2)
a("s_barrier")
fine(3)
a(f"ds_read_b64 v[{CM}:{CM+1}], v{X+4}")
for k in range(4):
    a(f"ds_read_b128 v[{C+4*k}:{C+4*k+3}], v{X+2} offset:{k*16384}")
def red8(r, op, src=None):
    for m in ("quad_perm:[1,0,3,2]", "quad_perm:[2,3,0,1]", "row_half_mirror"):
        q = r if src is None else src
        a(f"{op}_dpp v{r}, v{q}, v{q} {m} row_mask:0xf bank_mask:0xf")
        src = None
a("s_waitcnt lgkmcnt(4)")
red8(T, "v_max_f32", CM)
a(f"""
v_sub_f32 v{CM}, v{CM}, v{T}
v_mul_f32 v{CM}, s59, v{CM}
v_exp_f32 v{CM}, v{CM}
v_mul_f32 v{T+1}, v{CM}, v{CM+1}
""")
def ofma(k):
    a(f"s_waitcnt lgkmcnt({3-k})")
    for j in range(4): a(f"v_{'mul' if k == 0 else 'fmac'}_f32_dpp v{R+j}, v{CM}, v{C+4*k+j} row_newbcast:{k} row_mask:0xf bank_mask:0xf")
red8(T+1, "v_add_f32")
a(f"""
v_max_f32 v{T+1}, {f32(1e-30)}, v{T+1}
v_log_f32 v{T+2}, v{T+1}
v_rcp_f32 v{T+3}, v{T+1}
""")
ofma(0)
a(f"""
v_fma_f32 v{FLG}, v{T}, s59, v{T+2}
v_perm_b32 v{FLG}, v{FLG}, v{VNS}, s{SEL}
""")
fine2(0)
def flag_st():
    a(f"""
s_mov_b64 exec, {hex((1 << (FU//8)) - 1) if FU else [0xff, 1, 0x11, 0x55, 1][OPT['fone']]}
buffer_store_dwordx2 v[{FLG}:{FLG+1}], v{FSA}, s[12:15], s94 offen sc1
s_mov_b64 exec, -1
""")
if not OPT["fo"]: flag_st()
fine2(1)
for k in range(1, 4): ofma(k)
fine(4)
a(f"""
v_permlane32_swap_b32 v{R}, v{R+2}
v_permlane32_swap_b32 v{R+1}, v{R+3}
v_add_f32 v{R}, v{R}, v{R+2}
v_add_f32 v{R+1}, v{R+1}, v{R+3}
v_mul_f32 v{R}, v{R}, v{T+3}
v_mul_f32 v{R+1}, v{R+1}, v{T+3}
v_perm_b32 v{R}, v{R}, v{X+31}, s{SEL}
v_perm_b32 v{R+1}, v{R+1}, v{X+31}, s{SEL+1}
""")
if OPT["px4"]:
    a(f"""
v_mov_b32_dpp v{R+2}, v{R} quad_perm:[1,1,3,3] row_mask:0xf bank_mask:0xf
v_mov_b32_dpp v{R+3}, v{R+1} quad_perm:[1,1,3,3] row_mask:0xf bank_mask:0xf
s_mov_b32 exec_lo, 0x55555555
s_mov_b32 exec_hi, 0x55555555
buffer_store_dwordx4 v[{R}:{R+3}], v{X+1}, s[12:15], s62 offen sc1
s_mov_b64 exec, -1
""")
else:
    a(f"buffer_store_dwordx2 v[{R}:{R+1}], v{X+1}, s[12:15], s62 offen sc1")
if OPT["fo"]: flag_st()
if OPT["mlate"]:
    if OPT["stamps"]: stamp(3); a("s_waitcnt lgkmcnt(0)")
    misc_rd()
    a("s_waitcnt lgkmcnt(9)")
if OPT["hbn"] != 1: a("s_mov_b64 exec, 0xffff")
if not OPT["mlate"]: stamp(3)
fine(5)
fine2(2)
def st2(lbl, ins, extra=""):
    a(f"""
s_cmp_eq_u32 s63, 1
s_cbranch_scc1 {lbl}n
{ins} sc1
s_branch {lbl}d
{lbl}n:
{ins}
{extra}
{lbl}d:
""")
if OPT["xm"]:
    a(f"v_readfirstlane_b32 s63, v{T}")
    st2("L_bs", f"buffer_store_dwordx4 v[{X+16}:{X+19}], v{X+25}, s[12:15], s67 offen", f"""
v_not_b32 v{T}, v{VNS}
v_not_b32 v{T+1}, v{VNS}
v_not_b32 v{T+2}, v{VNS}
v_not_b32 v{T+3}, v{VNS}
s_sub_u32 s25, s67, 4096
buffer_store_dwordx4 v[{T}:{T+3}], v{X+25}, s[12:15], s25 offen
""" if OPT["prw"] else "")
elif OPT["hbn"] != 1:
    if OPT["bpa"]: a(f"buffer_store_dwordx4 v[{X+16}:{X+19}], v{X+25}, s[12:15], s67 offen")
    if not OPT["hbn"]: a(f"buffer_store_dwordx4 v[{X+16}:{X+19}], v{X+25}, s[12:15], s63 offen sc1")
    fine2(3)
    if OPT["prw"]:
        a(f"""
v_not_b32 v{T}, v{VNS}
v_not_b32 v{T+1}, v{VNS}
v_not_b32 v{T+2}, v{VNS}
v_not_b32 v{T+3}, v{VNS}
s_sub_u32 s25, s67, 4096
buffer_store_dwordx4 v[{T}:{T+3}], v{X+25}, s[12:15], s25 offen
""")
fine2(4)
BB = AA + 8
def bpoll():
    for k in range(2):
        a(f"buffer_load_dwordx4 v[{BB+4*k}:{BB+4*k+3}], v{X+13}, s[12:15], s98 offen offset:{2048*k} sc1")
def bp_early():
    a(f"s_cmp_lg_u32 s3, {OPT['fin']}\ns_cbranch_scc1 L_nobp0\ns_mov_b64 exec, -1")
    bpoll()
    a.label("L_nobp0")
if OPT["bpe"] >= 2: bp_early()
PA = O
WT = Q; FS = Q + 4; P = Q + 8; TT = KF
FPOLL = {0: f"""
v_mov_b32 v{FS}, 0
v_mov_b32 v{FS+1}, 0
buffer_atomic_or_x2 v[{FS}:{FS+1}], v{FPA}, s[12:15], s95 offen sc0 sc1
""", 1: f"buffer_load_dwordx2 v[{FS}:{FS+1}], v{FPA}, s[12:15], s95 offen sc1",
2: f"""
v_mov_b32 v{FS}, v{VNS}
v_mov_b32 v{FS+1}, 0
v_mov_b32 v{FS+2}, v{VNS}
v_mov_b32 v{FS+3}, 0
buffer_atomic_cmpswap_x2 v[{FS}:{FS+3}], v{FPA}, s[12:15], s95 offen sc0 sc1
""", 3: f"buffer_load_dwordx2 v[{FS}:{FS+1}], v{FPA}, s[12:15], s95 offen sc0 sc1 nt",
4: f"""
v_mov_b32 v{FS}, 0
v_mov_b32 v{FS+1}, 0
buffer_atomic_umax_x2 v[{FS}:{FS+1}], v{FPA}, s[12:15], s95 offen sc0 sc1
""", 5: f"""
v_mov_b32 v{FS}, 0
v_mov_b32 v{FS+1}, 0
buffer_atomic_or_x2 v[{FS}:{FS+1}], v{FPA}, s[12:15], s95 offen sc0 sc1 nt
"""}[OPT["fpol"]]
a(f"""
s_movk_i32 s22, 0xff
s_mov_b32 s23, 0
L_f1:
s_mov_b64 exec, s[22:23]
{FPOLL}
s_sub_u32 s76, s76, 1
s_waitcnt vmcnt(0)
v_xor_b32 v{T}, v{FS}, v{VNS}
v_and_b32 v{T}, 0xff, v{T}
v_xor_b32 v{T+1}, v{FS+1}, v{VNS}
v_or_b32 v{T}, v{T}, v{T+1}
v_cmp_eq_u32 vcc, 0, v{T}
s_cbranch_vccz L_f1n
s_mov_b32 s25, vcc_lo
""")
def pload(k):
    if not OPT["nopart"]: a(f"buffer_load_dwordx4 v[{PA+4*k}:{PA+4*k+3}], v{X+7}, s[12:15], s74 offen offset:{1024*k} sc1")
if OPT["inc"]:
    for k in range(4):
        a(f"""
s_bfe_i32 exec_lo, s25, {hex(0x10000 + 2*k)}
s_bfe_i32 exec_hi, s25, {hex(0x10000 + 2*k + 1)}
""")
        pload(k)
a(f"""
s_andn2_b32 s22, s22, s25
s_cbranch_scc0 L_f1done
L_f1n:
s_cmp_eq_u32 s76, 0
s_cbranch_scc1 L_f1done
{"s_sleep %d" % OPT['f1slp'] if OPT['f1slp'] else ""}
""")
if OPT["f1th"]:
    a(f"""
s_bcnt1_i32_b32 s25, s22
s_cmp_le_u32 s25, {OPT['f1th']}
s_cbranch_scc1 L_f1
s_sleep {OPT['f1sl2']}
""")
a(f"""
s_branch L_f1
L_f1done:
s_mov_b64 exec, -1
""")
if not OPT["inc"]:
    for k in range(4): pload(k)
if OPT["bpe"] == 1: bp_early()
if OPT["stamps"]: a("s_memrealtime s[100:101]")
red8(T, "v_max_f32", FS)
a(f"""
v_sub_f32 v{FS}, v{FS}, v{T}
v_exp_f32 v{FS}, v{FS}
""")
red8(T, "v_add_f32", FS)
a(f"""
v_rcp_f32 v{T}, v{T}
v_mul_f32 v{FS}, v{FS}, v{T}
""")
for x in range(8): a(f"v_readlane_b32 s{32+x}, v{FS}, {x}")
for k in range(4): a(f"v_mov_b32 v{WT+k}, s{32+2*k+1}")
a("s_mov_b32 exec_hi, 0")
for k in range(4): a(f"v_mov_b32 v{WT+k}, s{32+2*k}")
def tag_chk(grans, t):
    for n_, r in enumerate(grans):
        a(f"v_perm_b32 v{t+2*n_}, v{r+1}, v{r}, s{SEL+4}\nv_perm_b32 v{t+2*n_+1}, v{r+3}, v{r+2}, s{SEL+5}")
    for n_, r in enumerate(grans):
        a(f"v_xor_b32 v{t+2*n_}, v{t+2*n_}, v{VNS}")
    for n_, r in enumerate(grans):
        a(f"v_xor_b32 v{t+2*n_}, v{t+2*n_}, v{t+2*n_+1}")
    if len(grans) == 4:
        a(f"v_or3_b32 v{t}, v{t}, v{t+2}, v{t+4}\nv_or_b32 v{t}, v{t}, v{t+6}")
    else:
        a(f"v_or_b32 v{t}, v{t}, v{t+2}")
    a(f"v_cmp_ne_u32 vcc, 0, v{t}")
a.label("L_pchk")
a("s_mov_b64 exec, -1\ns_waitcnt vmcnt(0)")
for k in range(4):
    for j in range(4): a(f"v_{'mul' if k == 0 else 'fmac'}_f32 v{P+j}, v{WT+k}, v{PA+4*k+j}")
a(f"""
v_permlane32_swap_b32 v{P}, v{P+2}
v_permlane32_swap_b32 v{P+1}, v{P+3}
v_add_f32 v{P}, v{P}, v{P+2}
v_add_f32 v{P+1}, v{P+1}, v{P+3}
v_cvt_pk_bf16_f32 v{P}, v{P}, v{P+1}
ds_write_b32 v{X+10}, v{P}
""")
tag_chk([PA+4*k for k in range(4)], TT)
if not OPT["nopart"]: a("s_cbranch_vccnz L_prep")
a.label("L_pdone")
stamp(4)
BB = AA + 8
def bpoll():
    for k in range(2):
        a(f"buffer_load_dwordx4 v[{BB+4*k}:{BB+4*k+3}], v{X+13}, s[12:15], s98 offen offset:{2048*k} sc1")
a(f"s_cmp_lg_u32 s3, {OPT['fin']}\ns_cbranch_scc1 L_nobp")
if not OPT["bdel"] and OPT["bpe"] in (0, 3): bpoll()
a(f"""
L_nobp:
s_cmp_gt_u32 s3, 3
s_waitcnt lgkmcnt(0)
s_barrier
s_cbranch_scc1 L_nomm
""")
for s_ in range(4): a(f"ds_read_b128 v[{PA+4*s_}:{PA+4*s_+3}], v{X+12} offset:{64*s_}")
D_ = PA + 16
for s_ in range(4):
    a(f"""
s_waitcnt lgkmcnt({3-s_})
v_mfma_f32_16x16x32_bf16 v[{D_}:{D_+3}], v[{AW+4*s_}:{AW+4*s_+3}], v[{PA+4*s_}:{PA+4*s_+3}], {"0" if s_ == 0 else f"v[{D_}:{D_+3}]"}
""")
a("s_mov_b64 exec, s[70:71]")
tag_ins(D_, VNS, SEL)
if OPT["xm"]:
    st2("L_as", f"buffer_store_dwordx4 v[{D_}:{D_+3}], v{X+11}, s[12:15], s65 offen")
    a("s_mov_b64 exec, -1")
else:
    a(f"""
{"" if OPT["noa"] else f"buffer_store_dwordx4 v[{D_}:{D_+3}], v{X+11}, s[12:15], s65 offen"}
{"" if OPT["nob"] else f"buffer_store_dwordx4 v[{D_}:{D_+3}], v{X+11}, s[12:15], s64 offen sc1"}
s_mov_b64 exec, -1
""")
a.label("L_nomm")
stamp(5)
if OPT["hbn"]:
    a(f"""
s_cmp_eq_u32 s3, {OPT['fin']}
s_cbranch_scc1 L_nofar
s_mov_b64 exec, 0xffff
buffer_store_dwordx4 v[{X+16}:{X+19}], v{X+25}, s[12:15], s63 offen sc1
s_cmp_lg_u32 s3, {OPT['fin']+1}
s_cbranch_scc1 L_nofar
ds_read_b128 v[{T}:{T+3}], v{X+24} offset:{(-256) & 0xffff}
""" if False else f"""
s_cmp_eq_u32 s3, {OPT['fin']}
s_cbranch_scc1 L_nofar
s_sleep 4
s_mov_b64 exec, 0xffff
buffer_store_dwordx4 v[{X+16}:{X+19}], v{X+25}, s[12:15], s63 offen sc1
s_cmp_lg_u32 s3, {OPT['fin']-1}
s_cbranch_scc1 L_nofar
ds_read_b128 v[{KF}:{KF+3}], v{X+24} offset:256
s_add_u32 s63, s63, 16384
s_waitcnt lgkmcnt(0)
buffer_store_dwordx4 v[{KF}:{KF+3}], v{X+25}, s[12:15], s63 offen sc1
L_nofar:
s_mov_b64 exec, -1
""")
def wstamps():
    a(f"""
s_lshl_b32 s29, s16, 3
s_add_u32 s29, s29, s3
s_lshl_b32 s29, s29, 4
s_add_u32 s29, s29, {STAMP+0x10000}
s_add_u32 s96, s96, 3
s_waitcnt lgkmcnt(0)
v_mov_b32 v{T}, s84
v_mov_b32 v{T+1}, s85
v_mov_b32 v{T+2}, s82
v_mov_b32 v{T+3}, s96
s_mov_b64 exec, 1
buffer_store_dwordx4 v[{T}:{T+3}], v{ZR}, s[12:15], s29 offen
s_add_u32 s29, s29, 0x8000
s_nop 4
v_mov_b32 v{T}, s86
v_mov_b32 v{T+1}, s88
v_mov_b32 v{T+2}, s90
v_mov_b32 v{T+3}, s77
buffer_store_dwordx4 v[{T}:{T+3}], v{ZR}, s[12:15], s29 offen
s_add_u32 s29, s29, 0x8000
s_nop 4
v_mov_b32 v{T}, s100
buffer_store_dword v{T}, v{ZR}, s[12:15], s29 offen
s_add_u32 s29, s29, 0x8000
s_nop 4
v_mov_b32 v{T}, s4
v_mov_b32 v{T+1}, s6
v_mov_b32 v{T+2}, s8
v_mov_b32 v{T+3}, s10
buffer_store_dwordx4 v[{T}:{T+3}], v{ZR}, s[12:15], s29 offen
s_add_u32 s29, s29, 0x8000
s_nop 4
v_mov_b32 v{T}, s48
v_mov_b32 v{T+1}, s50
v_mov_b32 v{T+2}, s54
v_mov_b32 v{T+3}, s56
buffer_store_dwordx4 v[{T}:{T+3}], v{ZR}, s[12:15], s29 offen
s_mov_b64 exec, -1
s_nop 4
""")
if OPT["stamps"]:
    a(f"s_mov_b32 s77, s76\ns_cmp_eq_u32 s3, {OPT['fin']}\ns_cbranch_scc1 L_fin")
    wstamps()
    a("s_endpgm\nL_fin:")
else:
    a(f"s_cmp_lg_u32 s3, {OPT['fin']}\ns_cbranch_scc1 L_end")
a(f"""
s_mov_b32 s76, {SPIN}
s_movk_i32 s23, {OPT['na']}
""")
srd(60, P_OUT, 8192)
A3 = KF + 8; FB = KF + 12
def red(d, s0):
    for r in range(4): a(f"v_add_f32 v{d+r}, v{s0+r}, v{s0+4+r}")
    a(f"""
v_permlane32_swap_b32 v{d}, v{d+2}
v_permlane32_swap_b32 v{d+1}, v{d+3}
v_add_f32 v{d}, v{d}, v{d+2}
v_add_f32 v{d+1}, v{d+1}, v{d+3}
v_permlane16_swap_b32 v{d}, v{d+1}
v_add_f32 v{d}, v{d}, v{d+1}
v_add_f32_dpp v{d}, v{d}, v{d} row_ror:8 row_mask:0xf bank_mask:0xf
v_add_f32_dpp v{d}, v{d}, v{d} row_ror:4 row_mask:0xf bank_mask:0xf
""")
def gate(d, g):
    a(f"""
v_cvt_pk_bf16_f32 v{d}, v{d}, v{d}
v_lshlrev_b32 v{d}, 16, v{d}
v_mul_f32 v{d}, v{g}, v{d}
v_cvt_pk_bf16_f32 v{d}, v{d}, v{d}
v_lshlrev_b32 v{d}, 16, v{d}
""")
def far(regs):
    if OPT["xm"]:
        a("s_sub_u32 s76, s76, 1"); return
    a(f"s_sub_u32 s23, s23, 1\ns_cselect_b32 s25, {CPB-CPA}, 0")
    for r in regs: a(f"s_add_u32 s{r}, s{r}, s25")
    a("s_sub_u32 s76, s76, 1")
if OPT["bdel"]:
    backoff(OPT["bdel"]); bpoll()
a.label("L_bchk")
a("s_mov_b64 exec, -1")
far([66, 98] if OPT["bpa"] else [66])
a("s_waitcnt vmcnt(0)")
tag_chk([BB, BB+4], TT)
a(f"""
s_cbranch_vccz L_bdone
s_cmp_eq_u32 s76, 0
s_cbranch_scc1 L_bdone
s_mov_b64 exec, vcc
s_sleep {OPT['bsl']}
""")
bpoll()
a("s_branch L_bchk")
a.label("L_bdone")
def fine4(k):
    if OPT["fine"] == 4: a(f"s_memrealtime s[{[4,6,8,10,48,50,54,56][k]}:{[4,6,8,10,48,50,54,56][k]+1}]")
fine4(0)
red(FB, BB); gate(FB, GV+1)
fine4(1)
if OPT["fine"] == 4: a("s_mov_b32 s8, 0")
if OPT["asl0"]: a(f"s_sleep {OPT['asl0']}")
a.label("L_apoll")
for k in range(2):
    a(f"buffer_load_dwordx4 v[{AA+4*k}:{AA+4*k+3}], v{X+13}, s[12:15], s66 offen offset:{2048*k} sc1")
a("s_mov_b64 exec, -1")
far([66])
a("s_waitcnt vmcnt(0)")
if OPT["fine"] == 4: a("s_cmp_lg_u32 s8, 0\ns_cbranch_scc1 L_fx\ns_memrealtime s[8:9]\ns_waitcnt lgkmcnt(0)\nL_fx:")
tag_chk([AA, AA+4], TT)
a(f"""
s_cbranch_vccz L_adone
s_mov_b64 exec, vcc
{"s_sleep %d" % OPT["aslp"] if OPT["aslp"] else ""}
s_cmp_lg_u32 s76, 0
s_cbranch_scc1 L_apoll
s_mov_b64 exec, -1
""")
a.label("L_adone")
fine4(3)
red(A3, AA); gate(A3, GV)
a(f"""
v_add_f32 v{A3}, v{A3}, v{FB}
v_cvt_pk_bf16_f32 v{A3}, v{A3}, v{A3}
""")
a(f"""
s_mov_b32 exec_lo, 0x000f000f
s_mov_b32 exec_hi, 0x000f000f
buffer_store_short v{A3}, v{X+23}, s[60:63], s99 offen
s_mov_b64 exec, -1
""")
if OPT["stamps"]:
    stamp(6)
    wstamps()
    a(f"s_lshl_b32 s29, s16, 6\ns_add_u32 s29, s29, {STAMP}\ns_waitcnt lgkmcnt(0)")
    for k in range(7):
        a(f"v_mov_b32 v{T}, s{80+2*k}\nv_mov_b32 v{T+1}, s{81+2*k}\nbuffer_store_dwordx2 v[{T}:{T+1}], v{ZR}, s[12:15], s29 offen offset:{8*k}\ns_nop 1")
    a(f"v_mov_b32 v{T}, s76\nbuffer_store_dword v{T}, v{ZR}, s[12:15], s29 offen offset:56")
a("s_endpgm")
a.label("L_prep")
a(f"""
s_sub_u32 s76, s76, {256 if OPT["stamps"] else 1}
s_cmp_le_i32 s76, 0
s_cbranch_scc1 L_pdone
s_mov_b64 exec, vcc
""")
for k in range(4):
    a(f"buffer_load_dwordx4 v[{PA+4*k}:{PA+4*k+3}], v{X+7}, s[12:15], s74 offen offset:{1024*k} sc1")
a("s_branch L_pchk")
a.label("L_end")
a("s_endpgm")
a.L += ['.section .rodata,"a"', ".p2align 6", f".amdhsa_kernel {NAME}_kernel",
        "  .amdhsa_next_free_vgpr 168", "  .amdhsa_next_free_sgpr 102", "  .amdhsa_accum_offset 168",
        "  .amdhsa_group_segment_fixed_size 0", "  .amdhsa_kernarg_size 104", "  .amdhsa_user_sgpr_count 2",
        "  .amdhsa_user_sgpr_kernarg_segment_ptr 1", "  .amdhsa_system_sgpr_workgroup_id_x 1", ".end_amdhsa_kernel"]
txt, n = a.text()
open(out, "w").write(txt)
print(f"wrote {out}: {len(txt.splitlines())} lines, {n} nops inserted", file=sys.stderr)
```

```python
import sys, struct
from asmlib import Asm
out = sys.argv[1]
OPT = dict(stamps=0, Wp=8, npre=4, hdr=1, stag=10, hslp=32, qslp=8, nse=12, lead=8, t1=448, t2=384, dslp=2,
           np2=1, np3=2, flit=3, slowp=8, bprio=3, maxf=4, tcha=0, tchb=0, asl=36, tpol=1, wqnt=1, ffnt=1, hd=200, qd=64, prew=0, coal=1, pgate=0, bpat=2, slowth=16, fastp=0, bsl=1, adel=90, perm=0, gx=0, noff=252, sperm=4, eager=1024, f1=0, f2=0, f1slp=2, f2slp=1, f2del=0, fmax=4096, f3=0, rsh=2, fdel=170, f3slp=4, lead2=8, t3=420, fw=1, aat=0, aslp=0, apol=1, na=160, xrot=0, asl0=0, bpa=1, fin=4, nob=0, tb=1, prw=0, fine=0, inc=1, f1th=0, f1sl2=16, hbn=0, fo=0, fst=64, fpol=2, fone=4, nopart=0, noa=0, bdel=0, fful=0, mlate=1, fgo=0, px4=1, xm=1, xforce=0, bpe=3, tcw=0, tc0=0, lay=0, tcd=0, col=1, kill=0, t4=400, kill2=0, t5=460, lead3=8, kill0=0, k0at=0, rot=0, r1=0, r2=0, swm=0)
for a_ in sys.argv[2:]:
    k, v = a_.split("="); assert k in OPT, k; OPT[k] = int(v)
if OPT["r1"] or OPT["r2"]: OPT["rot"] = -1
Wp = OPT["Wp"]; NPRE = OPT["npre"]
NAME = "gated_mix__gqa_block_cached__geglu_ffn__decode"
def f32(x): return "0x%08x" % struct.unpack("<I", struct.pack("<f", x))[0]
LOG2E = 1.4426950408889634
SCALE = 128 ** -0.5
QG, HG, ML, BP, PART, AP, STAMP, CNT = 0x0, 0x20000, 0x40000, 0x80000, 0x100000, 0x200000, 0x400000, 0x480000
F1, F2 = 0x60000, 0x70000
FG, CPA, CPB = 0x40000, 0x200000, 0x300000
if OPT['lay']:
    CNT, CPA, PART = 0x80000, 0x100000, 0x200000
OST = 272
XID = 0x60000
CST = 528
CSTR = 4096 + 256
WS_BYTES = 0x500000
FST = OPT['fst']
if OPT['fful']:
    FG = 0x500000; WS_BYTES = FG + 2048*OPT['fful']
elif FST > 64:
    FG = 0x500000; WS_BYTES = FG + 2048*FST
R1 = 0x20000
WO_LDS = R1
R2 = 0x24000
Q_LDS = R2
MISC = R2 + 0x800
MLT = MISC + 0x100
O_LDS = R2 + 0x1000
CH = R2 + 0x1400
WD_LDS = R2 + 0x2000
LDS_BYTES = 0x28000
NU = 1024
NSE = OPT["nse"]; LEAD = OPT["lead"]
TK = MISC + 128
K0 = OPT["kill0"]
K0TXT = f"""
v_subrev_u32 v5, {K0}, v4
v_cmp_le_u32 vcc, {OPT['k0at']}, v0
v_mov_b32 v6, 512
v_cndmask_b32 v4, v4, v6, vcc
v_cmp_le_u32 vcc, {OPT['k0at'] + K0}, v0
v_cndmask_b32 v4, v4, v5, vcc
""" if K0 else ""
CBASE = 8
DYN0 = 128 + 8*NSE
SPIN = 1 << 16
a = Asm()
hdr = open("cdna_kernels/%s.s.ref" % NAME).read().split("; Override launch")[0] if OPT["hdr"] else ""
a.L += [l for l in hdr.rstrip().split("\n")] if hdr else []
a.L.append(f"; @launch grid=(256,1,1) block=(640,1,1) lds={LDS_BYTES}")
a.L += ['.amdgcn_target "amdgcn-amd-amdhsa--gfx950"', ".text", f".globl {NAME}_kernel", ".p2align 8",
        f".type {NAME}_kernel,@function", f"{NAME}_kernel:"]

def srd(d, ptr, nbytes):
    a(f"s_mov_b32 s{d}, s{ptr}\ns_mov_b32 s{d+1}, s{ptr+1}\ns_mov_b32 s{d+2}, {hex(nbytes)}\ns_mov_b32 s{d+3}, 0x00020000")
P_X, P_K, P_V, P_WQ, P_WO, P_BX, P_WG, P_WU, P_WD, P_GW, P_OUT, P_DBG, P_WS = [32 + 2*i for i in range(13)]
def stamp(idx):
    if OPT["stamps"]:
        a(f"s_memrealtime s[{80+2*idx}:{81+2*idx}]")
def any_eq(regs, val, neg=False):
    op = "v_cmp_ne_u32" if neg else "v_cmp_eq_u32"
    a(f"{op} vcc, {val}, v{regs[0]}")
    for r in regs[1:]:
        a(f"{op} s[78:79], {val}, v{r}\ns_or_b64 vcc, vcc, s[78:79]")
def spin_tail(loop, done, sleep=0):
    a(f"""
s_sub_u32 s76, s76, 1
s_cmp_eq_u32 s76, 0
s_cbranch_scc1 {done}
""")
    if sleep:
        a(f"s_cmp_eq_u64 vcc, 0\ns_cbranch_scc1 {done}\ns_sleep {sleep}\ns_branch {loop}")
    else:
        a(f"s_cmp_lg_u64 vcc, 0\ns_cbranch_scc1 {loop}")
    a.label(done)
def xsum(regs, tmps, ror, op="v_add_f32", swaps=("v_permlane16_swap_b32", "v_permlane32_swap_b32")):
    for k in ror:
        for r in regs: a(f"{op}_dpp v{r}, v{r}, v{r} row_ror:{k} row_mask:0xf bank_mask:0xf")
    for sw in swaps:
        for r, t in zip(regs, tmps): a(f"v_mov_b32 v{t}, v{r}")
        for r, t in zip(regs, tmps): a(f"{sw} v{r}, v{t}")
        for r, t in zip(regs, tmps): a(f"{op} v{r}, v{r}, v{t}")
SEL = 42
def tag_consts(base):
    for j in range(4): a(f"s_mov_b32 s{base+j}, {hex(0x07060500 | j)}")
    a(f"s_mov_b32 s{base+4}, 0x0c0c0400\ns_mov_b32 s{base+5}, 0x04000c0c")
def tag_ins(r, vn, base):
    for j in range(4): a(f"v_perm_b32 v{r+j}, v{r+j}, v{vn}, s{base+j}")
def tag_bad(grans, vn, base, acc, t0, t1):
    for n_, r in enumerate(grans):
        a(f"v_perm_b32 v{t0}, v{r+1}, v{r}, s{base+4}\nv_perm_b32 v{t1}, v{r+3}, v{r+2}, s{base+5}")
        if n_ == 0:
            a(f"v_or_b32 v{acc}, v{t0}, v{t1}\nv_xor_b32 v{acc}, v{acc}, v{vn}")
        else:
            a(f"v_or_b32 v{t0}, v{t0}, v{t1}\nv_xor_b32 v{t0}, v{t0}, v{vn}\nv_or_b32 v{acc}, v{acc}, v{t0}")
def hstamps(first, n):
    if OPT["stamps"]:
        a(f"s_mov_b64 exec, -1\ns_lshl_b32 s29, s16, 7\ns_add_u32 s29, s29, {STAMP+0x8000+8*first}\ns_waitcnt lgkmcnt(0)\nv_mov_b32 v3, 0")
        for k in range(n):
            a(f"v_mov_b32 v4, s{80+2*k}\nv_mov_b32 v5, s{81+2*k}\nbuffer_store_dwordx2 v[4:5], v3, s[12:15], s29 offen offset:{8*k}\ns_nop 1")

def backoff(n):
    while n > 0:
        a(f"s_sleep {min(n, 127)}"); n -= 127
def touch():
    a(f"""
s_mov_b64 exec, 0xffff
v_lshlrev_b32 v9, 7, v0
s_lshl_b32 s25, s17, 17
s_lshr_b32 s26, s18, 1
s_lshl_b32 s26, s26, 13
s_add_u32 s25, s25, s26
s_and_b32 s26, s18, 1
s_lshl_b32 s26, s26, 11
s_add_u32 s25, s25, s26
s_add_u32 s25, s25, {CPA}
buffer_load_dword v16, v9, s[12:15], s25 offen {['', 'sc1', 'nt'][OPT['tpol']]}
""")

XROT = "s_mov_b32 s16, s2" if not OPT["xrot"] else f"""
s_lshr_b32 s18, s2, 3
s_mul_i32 s17, s18, {OPT['xrot']}
s_add_u32 s17, s17, s2
s_and_b32 s17, s17, 7
s_andn2_b32 s16, s2, 7
s_or_b32 s16, s16, s17
"""
a("""
s_cmp_ge_u32 s2, 256
s_cbranch_scc1 L_end
s_load_dwordx16 s[32:47], s[0:1], 0
s_load_dwordx8 s[48:55], s[0:1], 64
s_load_dwordx2 s[56:57], s[0:1], 96
""")
stamp(0)
a(f"""
v_lshrrev_b32 v1, 6, v0
v_and_b32 v0, 63, v0
s_and_b32 s17, s2, 7
v_readfirstlane_b32 s3, v1
{XROT}
s_lshr_b32 s18, s16, 3
s_and_b32 s19, s18, 7
s_lshr_b32 s20, s18, 3
s_xor_b32 s20, s20, {OPT['gx']}
s_cmp_lt_u32 s3, 8
s_cbranch_scc1 L_stream
v_and_b32 v10, 15, v0
v_lshrrev_b32 v11, 4, v0
v_lshlrev_b32 v2, 4, v11
v_lshl_add_u32 v2, v10, 10, v2
v_lshrrev_b32 v3, 1, v0
v_and_b32 v4, 1, v0
v_lshlrev_b32 v4, 4, v4
v_mov_b32 v13, 0
s_cmp_eq_u32 s3, 9
s_cbranch_scc1 L_hb
""")
AFR = 16; D0 = 48; WDV = 64; GX = 16; GW = 32; XF = 100; GG = 164; VN = 166; CP = 60
def frag_addr():
    a(f"""
v_lshrrev_b32 v8, 2, v10
v_lshl_add_u32 v8, v11, 3, v8
v_lshlrev_b32 v9, 5, v8
v_and_b32 v8, 3, v0
v_lshl_add_u32 v9, v8, 3, v9
v_add_u32 v9, {R1}, v9
v_cmp_gt_u32 s[58:59], 8, v10
v_bfe_u32 v{CP+1}, v0, 2, 3
v_and_b32 v{CP+2}, 3, v0
v_lshl_add_u32 v{CP}, v{CP+2}, 4, v{CP+1}
v_lshlrev_b32 v{CP}, 2, v{CP}
""")
def gemv(va, Dr):
    def rd(bt):
        base = AFR + 16*(bt & 1)
        for k in range(4):
            t = 4*bt + k
            a(f"ds_read_b64_tr_b16 v[{base+4*k}:{base+4*k+1}], v{va} offset:{1024*t}")
            a(f"ds_read_b64_tr_b16 v[{base+4*k+2}:{base+4*k+3}], v{va} offset:{1024*t+128}")
    rd(0)
    for bt in range(4):
        if bt < 3:
            rd(bt+1); a("s_waitcnt lgkmcnt(8)")
        else:
            a("s_waitcnt lgkmcnt(0)")
        base = AFR + 16*(bt & 1)
        for k in range(4):
            t = 4*bt + k
            c = "0" if t == 0 else f"v[{Dr}:{Dr+3}]"
            a(f"v_mfma_f32_16x16x32_bf16 v[{Dr}:{Dr+3}], v[{base+4*k}:{base+4*k+3}], v[{XF+4*t}:{XF+4*t+3}], {c}")
a(f"""
s_setprio 3
s_memrealtime s[74:75]
s_mul_i32 s21, s17, {OPT['sperm']}
s_add_u32 s21, s21, s18
s_and_b32 s21, s21, 31
s_lshl_b32 s25, s17, 5
s_add_u32 s21, s21, s25
v_lshl_add_u32 v1, v3, 13, v4
s_lshl_b32 s25, s21, 5
v_add_u32 v1, s25, v1
s_mov_b64 s[72:73], 1
v_mov_b32 v15, {OPT['noff']}
v_lshlrev_b32 v3, 4, v0
s_waitcnt lgkmcnt(0)
""")
stamp(8)
srd(68, P_DBG, 256)
a(f"""
s_cmp_ge_u32 s16, 8
s_cbranch_scc1 L_nononce
s_or_b32 s74, s74, 1
v_mov_b32 v12, s74
s_mov_b64 exec, s[72:73]
buffer_atomic_cmpswap v[12:13], v15, s[68:71], 0 offen sc1
s_mov_b64 exec, -1
""")
a.label("L_nononce")
srd(60, P_WQ, 512*4096*2); srd(64, P_X, 8192)
a("s_mov_b32 s25, 0")
for t in range(16):
    a(f"s_mov_b32 m0, {R1 + 1024*t}")
    if t: a(f"s_mov_b32 s25, {t*32*8192}")
    a(f"buffer_load_dwordx4 v1, s[60:63], s25 offen {'nt ' if OPT['wqnt'] else ''}lds")
for s_ in range(16):
    a(f"buffer_load_dwordx4 v[{XF+4*s_}:{XF+4*s_+3}], v2, s[64:67], 0 offen offset:{64*s_}")
srd(12, P_WS, WS_BYTES)
a(f"""
s_mul_i32 s77, s18, {CSTR}
s_add_u32 s77, s77, {CNT}
s_cmp_lg_u32 s17, 0
s_cbranch_scc1 L_nocnt
v_mov_b32 v14, {CBASE}
s_mov_b64 exec, s[72:73]
buffer_store_dword v14, v13, s[12:15], s77 offen sc1
s_mov_b64 exec, -1
""")
a.label("L_nocnt")
a(f"""
buffer_load_dword v12, v15, s[68:71], 0 offen sc1
v_mov_b32 v4, -1
v_mov_b32 v5, -1
v_mov_b32 v6, -1
v_mov_b32 v7, -1
v_add_u32 v1, {CH}, v3
ds_write_b128 v1, v[4:7]
ds_write_b128 v1, v[4:7] offset:1024
ds_write_b128 v1, v[4:7] offset:2048
v_mov_b32 v2, {MISC}
v_mov_b32 v4, 0
v_mov_b32 v5, 0
v_mov_b32 v6, 0
v_mov_b32 v7, 0
ds_write_b128 v2, v[4:7] offset:128
s_mul_i32 s25, s17, {NSE}
s_add_u32 s25, s25, 128
v_add_u32 v4, s25, v0
v_lshlrev_b32 v1, 2, v0
v_add_u32 v1, {CH}, v1
{K0TXT}
v_cmp_gt_u32 vcc, {NSE + K0}, v0
s_mov_b64 exec, vcc
ds_write_b32 v1, v4
s_mov_b64 exec, -1
""")
frag_addr()
a(f"s_mov_b32 s76, {SPIN}\ns_waitcnt lgkmcnt(0)")
stamp(7)
a("s_barrier")
stamp(1)
a("s_waitcnt vmcnt(0)")
a.label("L_np")
a(f"""
v_readfirstlane_b32 s74, v12
s_sub_u32 s76, s76, 1
s_cmp_eq_u32 s76, 0
s_cbranch_scc1 L_np_done
s_cmp_lg_u32 s74, 0
s_cbranch_scc1 L_np_done
buffer_load_dword v12, v15, s[68:71], 0 offen sc1
s_waitcnt vmcnt(0)
s_branch L_np
""")
a.label("L_np_done")
stamp(2)
gemv(9, D0)
a(f"""
v_mov_b32 v5, s74
v_mov_b32 v7, s74
v_mov_b32 v8, 1
ds_write_b32 v2, v5 offset:96
ds_write_b32 v2, v8 offset:136
s_lshl_b32 s25, s21, 6
s_add_u32 s25, s25, {QG}
v_cvt_pk_bf16_f32 v4, v{D0}, v{D0+1}
v_cvt_pk_bf16_f32 v6, v{D0+2}, v{D0+3}
""")
if OPT["coal"]:
    a(f"""
ds_bpermute_b32 v4, v{CP}, v4
ds_bpermute_b32 v6, v{CP}, v6
v_lshlrev_b32 v14, 4, v{CP+2}
v_lshl_add_u32 v14, v{CP+1}, 14, v14
s_mov_b32 exec_hi, 0
s_waitcnt lgkmcnt(0)
""")
else:
    a(f"""
v_lshlrev_b32 v14, 4, v11
v_lshl_add_u32 v14, v10, 14, v14
s_mov_b64 exec, s[58:59]
""")
a(f"""
buffer_store_dwordx4 v[4:7], v14, s[12:15], s25 offen sc1
s_mov_b64 exec, -1
""")
stamp(3)
a(f"""
s_lshl_b32 s25, s20, 15
s_lshl_b32 s26, s19, 11
s_add_u32 s25, s25, s26
s_add_u32 s25, s25, {QG}
s_add_u32 s26, s25, 16384
s_lshl_b32 s27, s18, 6
s_add_u32 s27, s27, {QG}
s_mov_b32 s76, {SPIN}
""")
backoff(OPT["qd"])
a.label("L_qpoll")
a(f"""
buffer_load_dwordx4 v[16:19], v3, s[12:15], s25 offen sc1
buffer_load_dwordx4 v[20:23], v3, s[12:15], s25 offen offset:1024 sc1
buffer_load_dwordx4 v[24:27], v3, s[12:15], s26 offen sc1
buffer_load_dwordx4 v[28:31], v3, s[12:15], s26 offen offset:1024 sc1
buffer_load_dwordx4 v[32:35], v13, s[12:15], s27 offen sc1
s_waitcnt vmcnt(0)
""")
any_eq(list(range(17, 36, 2)), "s74", neg=True)
spin_tail("L_qpoll", "L_qdone", sleep=OPT["qslp"])
stamp(4)
a(f"""
v_mov_b32 v17, v18
v_mov_b32 v21, v22
v_mov_b32 v25, v26
v_mov_b32 v29, v30
v_lshlrev_b32 v1, 3, v0
v_add_u32 v1, {Q_LDS}, v1
ds_write_b64 v1, v[16:17]
ds_write_b64 v1, v[20:21] offset:512
ds_write_b64 v1, v[24:25] offset:1024
ds_write_b64 v1, v[28:29] offset:1536
s_waitcnt lgkmcnt(0)
ds_write_b32 v2, v8 offset:132
""")
stamp(5)
a(f"""
s_mov_b32 s21, {NSE + K0}
s_mov_b32 s22, {NSE + K0}
s_mov_b32 s23, 0
s_mov_b32 s24, 0
s_mov_b32 s26, 0
s_mov_b32 s27, 0
s_mov_b32 s28, 0
s_mov_b32 s29, 0
v_mov_b32 v4, 0
s_mov_b32 s76, {SPIN*64}
s_movk_i32 s66, {OPT['t4']}
s_movk_i32 s67, {OPT['t5']}
""")
a.label("L_disp")
a(f"""
s_mov_b64 exec, 1
ds_read_b32 v6, v2 offset:128
s_sub_u32 s76, s76, 1
s_cmp_eq_u32 s76, 0
s_cbranch_scc1 L_dexh
s_cmp_eq_u32 s24, 0
s_cbranch_scc1 L_noc
v_readlane_b32 s25, v4, s27
s_cmp_lt_u32 s25, {CBASE}
s_cbranch_scc1 L_noc
s_and_b32 s30, s23, 15
s_lshr_b32 s23, s23, 4
s_sub_u32 s24, s24, 1
s_add_u32 s27, s27, 1
s_and_b32 s27, s27, 7
s_add_u32 s25, s25, {DYN0 - CBASE}
s_add_u32 s28, s25, s30
s_sub_i32 s31, 512, s25
s_max_i32 s31, s31, 0
s_min_i32 s31, s31, s30
s_cmp_ge_u32 s28, 512
s_cselect_b32 s29, 1, s29
s_cmp_eq_u32 s31, 0
s_cbranch_scc1 L_noc
s_bfm_b64 exec, s31, 0
v_add_u32 v7, s25, v0
s_lshl_b32 s25, s22, 2
s_add_u32 s25, s25, {CH}
v_lshl_add_u32 v8, v0, 2, s25
ds_write_b32 v8, v7
s_add_u32 s22, s22, s31
""")
a.label("L_noc")
for (kn, th, sr, lb) in ((OPT["kill"], OPT["t4"], 66, "L_nk1"), (OPT["kill2"], OPT["t5"], 67, "L_nk2")):
    if kn:
        a(f"""
s_cmp_lt_u32 s28, s{sr}
s_cbranch_scc1 {lb}
s_mov_b32 s{sr}, -1
s_mov_b64 exec, {(1 << kn) - 1}
s_lshl_b32 s25, s22, 2
s_add_u32 s25, s25, {CH}
v_lshl_add_u32 v8, v0, 2, s25
v_mov_b32 v7, 512
ds_write_b32 v8, v7
s_add_u32 s22, s22, {kn}
s_add_u32 s21, s21, {kn}
s_mov_b64 exec, 1
{lb}:
""")
a(f"""
s_cmp_lg_u32 s29, 0
s_cbranch_scc1 L_exh
s_cmp_ge_u32 s24, {OPT['maxf']}
s_cbranch_scc1 L_dslp
s_waitcnt lgkmcnt(0)
v_readfirstlane_b32 s25, v6
s_lshl_b32 s30, s21, 1
s_cmp_ge_u32 s28, {OPT['t3']}
s_cselect_b32 s31, {OPT['lead2']}, {LEAD}
s_cmp_ge_u32 s28, {OPT['t5']}
s_cselect_b32 s31, {min(OPT['lead3'], OPT['lead2'])}, s31
s_add_u32 s25, s25, s31
s_cmp_ge_u32 s30, s25
s_cbranch_scc1 L_dslp
s_mov_b32 s30, 4
s_cmp_ge_u32 s28, {OPT['t2']}
s_cselect_b32 s30, 2, s30
s_cmp_ge_u32 s28, {OPT['t1']}
s_cselect_b32 s30, 1, s30
s_lshl_b64 exec, 1, s26
v_mov_b32 v4, s30
buffer_atomic_add v4, v13, s[12:15], s77 offen sc0 sc1
s_lshl_b32 s25, s24, 2
s_lshl_b32 s25, s30, s25
s_or_b32 s23, s23, s25
s_add_u32 s24, s24, 1
s_add_u32 s21, s21, s30
s_add_u32 s26, s26, 1
s_and_b32 s26, s26, 7
s_branch L_disp
""")
a.label("L_exh")
a("s_cmp_eq_u32 s24, 0\ns_cbranch_scc1 L_dexh")
a.label("L_dslp")
a(f"s_sleep {OPT['dslp']}\ns_branch L_disp")
a.label("L_dexh")
a(f"""
s_mov_b64 exec, 0xff
s_lshl_b32 s25, s22, 2
s_add_u32 s25, s25, {CH}
v_lshl_add_u32 v8, v0, 2, s25
v_mov_b32 v7, 512
ds_write_b32 v8, v7
""")
stamp(6)
if OPT["tcha"]: touch()
hstamps(0, 9)
a("s_waitcnt lgkmcnt(0)\ns_endpgm")

a.label("L_hb")
if OPT["bprio"]: a(f"s_setprio {OPT['bprio']}")
a(f"""
s_min_u32 s22, s18, 27
s_lshr_b32 s22, s22, 1
s_mul_i32 s25, s17, 14
s_add_u32 s22, s22, s25
s_and_b32 s23, s18, 1
s_movk_i32 s25, 3584
v_mul_lo_u32 v5, v3, s25
v_add_u32 v5, v5, v4
s_lshl_b32 s25, s22, 5
v_add_u32 v5, s25, v5
v_lshrrev_b32 v6, 3, v0
v_and_b32 v7, 7, v0
v_lshlrev_b32 v7, 4, v7
v_lshl_add_u32 v6, v6, 10, v7
v_lshlrev_b32 v3, 4, v0
""")
frag_addr()
a(f"""
v_mov_b32 v16, 0
v_mov_b32 v17, 0
v_mov_b32 v18, 0
v_mov_b32 v19, 0
v_add_u32 v1, {WD_LDS}, v3
ds_write_b128 v1, v[16:19] offset:7168
v_mov_b32 v15, {MISC}
s_waitcnt lgkmcnt(0)
""")
srd(64, P_X, 8192); srd(12, P_WS, WS_BYTES); srd(4, P_WD, 1792*512*2); srd(8, P_GW, 1024); srd(60, P_WO, 4096*512*2)
a(f"""
s_cmp_eq_u32 s23, 0
s_cselect_b32 s68, s{P_WG}, s{P_WU}
s_cselect_b32 s69, s{P_WG+1}, s{P_WU+1}
s_mov_b32 s70, {512*1792*2}
s_mov_b32 s71, 0x00020000
s_lshl_b32 s27, s17, 7
s_mul_i32 s26, s18, {56*1024}
s_add_u32 s26, s26, s27
s_and_b32 s25, s18, 1
s_lshl_b32 s25, s25, 12
v_lshrrev_b32 v12, 2, v0
v_lshlrev_b32 v12, 6, v12
v_and_b32 v7, 3, v0
v_lshl_add_u32 v7, v7, 10, v12
""")
def touch0():
    a(f"""
v_lshlrev_b32 v92, 7, v0
s_lshl_b32 s28, s17, 17
s_lshr_b32 s29, s18, 1
s_lshl_b32 s29, s29, 13
s_add_u32 s28, s28, s29
s_and_b32 s29, s18, 1
s_lshl_b32 s29, s29, {11 if OPT["tc0"] == 1 else 12}
s_add_u32 s28, s28, s29
s_add_u32 s28, s28, {CPA}
s_mov_b64 exec, {"0xffff" if OPT["tc0"] == 1 else "0xffffffff"}
buffer_load_dword v93, v92, s[12:15], s28 offen {['', 'sc1', 'nt'][OPT['tpol']]}
s_mov_b64 exec, -1
""")
if OPT["tc0"] and not OPT["tcd"]: touch0()
a("s_barrier")
for s_ in range(16):
    a(f"buffer_load_dwordx4 v[{XF+4*s_}:{XF+4*s_+3}], v2, s[64:67], 0 offen offset:{64*s_}")
for t in range(7):
    a(f"buffer_load_dwordx4 v[{WDV+4*t}:{WDV+4*t+3}], v6, s[4:7], s26 offen nt")
    if t < 6: a("s_add_u32 s26, s26, 8192")
a(f"""
s_mov_b32 s76, {SPIN*16}
""")
for k in range(4):
    a(f"buffer_load_dwordx4 v[{GX+4*k}:{GX+4*k+3}], v7, s[64:67], s25 offen offset:{16*k}")
    a(f"buffer_load_dwordx4 v[{GW+4*k}:{GW+4*k+3}], v12, s[8:11], 0 offen offset:{16*k}")
a.label("L_r1w")
a(f"""
ds_read_b32 v8, v15 offset:136
s_waitcnt lgkmcnt(0)
v_cmp_ne_u32 vcc, 1, v8
""")
spin_tail("L_r1w", "L_r1done", sleep=2)
stamp(1)
a(f"""
ds_read_b32 v{VN}, v15 offset:96
s_mov_b32 s25, 0
""")
for t in range(16):
    a(f"s_mov_b32 m0, {R1 + 1024*t}")
    if t: a(f"s_mov_b32 s25, {t*32*3584}")
    a(f"buffer_load_dwordx4 v5, s[68:71], s25 offen {'nt ' if OPT['ffnt'] else ''}lds")
a(f"""
s_lshl_b32 s25, s22, 2
v_add_u32 v13, s25, v{CP+2 if OPT["coal"] else 11}
s_movk_i32 s25, 4682
v_mul_u32_u24 v14, s25, v13
v_lshrrev_b32 v14, 16, v14
v_mul_u32_u24 v12, 14, v14
v_sub_u32 v13, v13, v12
v_lshlrev_b32 v13, 4, v13
v_lshl_add_u32 v13, v14, 12, v13
v_lshl_add_u32 v13, v{CP+1 if OPT["coal"] else 10}, 8, v13
s_lshl_b32 s25, s23, 11
s_add_u32 s25, s25, {HG}
s_waitcnt vmcnt(16) lgkmcnt(0)
v_readfirstlane_b32 s74, v{VN}
v_mov_b32 v57, v{VN}
v_mov_b32 v59, v{VN}
""")
for t in range(7): a(f"ds_write_b128 v1, v[{WDV+4*t}:{WDV+4*t+3}] offset:{1024*t}")
for k in range(16):
    a(f"""
v_lshlrev_b32 v48, 16, v{GX+k}
v_and_b32 v49, 0xffff0000, v{GX+k}
v_lshlrev_b32 v50, 16, v{GW+k}
v_and_b32 v51, 0xffff0000, v{GW+k}
v_mul_f32 v48, v48, v50
v_mul_f32 v49, v49, v51
v_cvt_pk_bf16_f32 v48, v48, v49
v_and_b32 v49, 0xffff0000, v48
v_lshlrev_b32 v48, 16, v48
""")
    if k == 0: a("v_add_f32 v52, v48, v49")
    else: a("v_add_f32 v48, v48, v49\nv_add_f32 v52, v52, v48")
a("v_mov_b32 v24, v52")
xsum([24], [25], (8, 4))
a(f"""
v_cvt_pk_bf16_f32 v24, v24, v24
v_lshlrev_b32 v24, 16, v24
v_mul_f32 v24, {f32(-LOG2E)}, v24
v_exp_f32 v24, v24
v_add_f32 v24, 1.0, v24
v_rcp_f32 v24, v24
v_cvt_pk_bf16_f32 v24, v24, v24
v_lshlrev_b32 v{GG}, 16, v24
v_sub_f32 v25, 1.0, v{GG}
v_cvt_pk_bf16_f32 v25, v25, v25
v_lshlrev_b32 v{GG+1}, 16, v25
s_lshl_b32 s26, s18, 17
s_lshl_b32 s27, s17, 7
s_add_u32 s26, s26, s27
s_waitcnt vmcnt(0)
""")
D1 = 52
gemv(9, D1)
a(f"""
v_cvt_pk_bf16_f32 v56, v{D1}, v{D1+1}
v_cvt_pk_bf16_f32 v58, v{D1+2}, v{D1+3}
s_cmp_ge_u32 s18, 28
s_cbranch_scc1 L_nohpub
""")
if OPT["coal"]:
    a(f"""
ds_bpermute_b32 v56, v{CP}, v56
ds_bpermute_b32 v58, v{CP}, v58
s_mov_b32 exec_hi, 0
s_waitcnt lgkmcnt(0)
""")
else:
    a("s_mov_b64 exec, s[58:59]")
a(f"""
buffer_store_dwordx4 v[56:59], v13, s[12:15], s25 offen sc1
s_mov_b64 exec, -1
""")
a.label("L_nohpub")
if OPT["xm"]:
    a(f"""
s_getreg_b32 s31, hwreg(HW_REG_XCC_ID, 0, 4)
s_xor_b32 s31, s31, s74
s_lshl_b32 s29, s17, 8
s_add_u32 s29, s29, {XID}
s_lshl_b32 s27, s18, 3
s_add_u32 s27, s27, s29
v_mov_b32 v{VN+1}, s31
v_lshlrev_b32 v66, 3, v0
v_and_b32 v66, 0xff, v66
s_mov_b64 exec, 1
buffer_store_dwordx2 v[{VN}:{VN+1}], v66, s[12:15], s27 offen sc1
s_mov_b64 exec, -1
""")
stamp(2)
if OPT["tc0"] and OPT["tcd"] == 1:
    a("s_mov_b32 s30, s29"); touch0(); a("s_mov_b32 s29, s30")
for t in range(16):
    a(f"s_mov_b32 m0, {WO_LDS + 1024*t}\ns_nop 0\nbuffer_load_dwordx4 v6, s[60:63], s26 offen nt lds")
    if t < 15: a("s_add_u32 s26, s26, 8192")
HB = 16; UB = 32
tag_consts(SEL)
a(f"""
s_lshl_b32 s30, s18, 12
s_add_u32 s30, s30, {HG}
v_lshlrev_b32 v1, 5, v11
v_lshl_add_u32 v1, v10, 8, v1
v_mov_b32 v4, 0x7ff00000
v_cmp_gt_u32 vcc, 3, v11
s_and_b64 s[66:67], s[58:59], vcc
v_cndmask_b32 v2, v4, v1, s[66:67]
v_cndmask_b32 v1, v4, v1, s[58:59]
v_lshlrev_b32 v14, 4, v10
v_lshl_add_u32 v14, v11, 7, v14
v_add_u32 v14, {WD_LDS}, v14
s_mov_b32 s76, {SPIN}
""")
backoff(OPT["hd"])
a.label("L_hpoll")
for B_, o_ in ((HB, 0), (UB, 2048)):
    a(f"""
buffer_load_dwordx4 v[{B_}:{B_+3}], v1, s[12:15], s30 offen offset:{o_} sc1
buffer_load_dwordx4 v[{B_+4}:{B_+7}], v1, s[12:15], s30 offen offset:{o_+16} sc1
buffer_load_dwordx4 v[{B_+8}:{B_+11}], v2, s[12:15], s30 offen offset:{o_+128} sc1
buffer_load_dwordx4 v[{B_+12}:{B_+15}], v2, s[12:15], s30 offen offset:{o_+144} sc1
""")
if OPT["xm"]: a("buffer_load_dwordx2 v[64:65], v66, s[12:15], s29 offen sc1")
a("s_waitcnt vmcnt(0)")
any_eq([HB+1, HB+3, HB+5, HB+7, UB+1, UB+3, UB+5, UB+7], "s74", neg=True)
a("s_and_b64 s[64:65], vcc, s[58:59]")
if OPT["xm"]: a("v_cmp_ne_u32 vcc, s74, v64\ns_or_b64 s[64:65], s[64:65], vcc\nv_xor_b32 v67, s74, v65\nv_cmp_lt_u32 vcc, 15, v67\ns_or_b64 s[64:65], s[64:65], vcc")
any_eq([HB+9, HB+11, HB+13, HB+15, UB+9, UB+11, UB+13, UB+15], "s74", neg=True)
a("s_and_b64 vcc, vcc, s[66:67]\ns_or_b64 vcc, vcc, s[64:65]")
spin_tail("L_hpoll", "L_hdone", sleep=OPT["hslp"])
if OPT["xm"]:
    a(f"""
v_cmp_ne_u32 vcc, s31, v65
s_cmp_eq_u64 vcc, 0
s_cselect_b32 s28, {0 if OPT["xforce"] else 1}, 0
""")
stamp(3)
a(f"""
s_mov_b32 s25, {f32(0.044715)}
s_mov_b32 s26, {f32(-2.0*0.7978845608028654*LOG2E)}
v_lshrrev_b32 v1, 2, v10
v_lshl_add_u32 v1, v11, 3, v1
v_lshlrev_b32 v1, 7, v1
v_and_b32 v2, 3, v0
v_lshl_add_u32 v1, v2, 3, v1
v_add_u32 v1, {WD_LDS}, v1
""")
AF = 80
for ct in range(4):
    for s_ in range(2):
        r = AF + 8*ct + 4*s_
        a(f"ds_read_b64_tr_b16 v[{r}:{r+1}], v1 offset:{s_*4096+ct*32}")
        a(f"ds_read_b64_tr_b16 v[{r+2}:{r+3}], v1 offset:{s_*4096+ct*32+512}")
HF = 48
for e in range(8):
    g_, u_ = HB + 2*e, UB + 2*e
    t = 56
    a(f"""
v_lshlrev_b32 v{t}, 16, v{g_}
v_and_b32 v{t+1}, 0xffff0000, v{g_}
v_lshlrev_b32 v{t+2}, 16, v{u_}
v_and_b32 v{t+3}, 0xffff0000, v{u_}
v_mul_f32 v{t+4}, v{t}, v{t}
v_mul_f32 v{t+5}, v{t+1}, v{t+1}
v_mul_f32 v{t+4}, v{t+4}, v{t}
v_mul_f32 v{t+5}, v{t+5}, v{t+1}
v_fma_f32 v{t+4}, v{t+4}, s25, v{t}
v_fma_f32 v{t+5}, v{t+5}, s25, v{t+1}
v_mul_f32 v{t+4}, s26, v{t+4}
v_mul_f32 v{t+5}, s26, v{t+5}
v_exp_f32 v{t+4}, v{t+4}
v_exp_f32 v{t+5}, v{t+5}
v_add_f32 v{t+4}, 1.0, v{t+4}
v_add_f32 v{t+5}, 1.0, v{t+5}
v_rcp_f32 v{t+4}, v{t+4}
v_rcp_f32 v{t+5}, v{t+5}
v_mul_f32 v{t+4}, v{t+4}, v{t}
v_mul_f32 v{t+5}, v{t+5}, v{t+1}
v_cvt_pk_bf16_f32 v{t+4}, v{t+4}, v{t+5}
v_and_b32 v{t+5}, 0xffff0000, v{t+4}
v_lshlrev_b32 v{t+4}, 16, v{t+4}
v_mul_f32 v{t+4}, v{t+4}, v{t+2}
v_mul_f32 v{t+5}, v{t+5}, v{t+3}
v_cvt_pk_bf16_f32 v{HF+e}, v{t+4}, v{t+5}
""")
a("s_waitcnt lgkmcnt(0)")
for ct in range(4):
    r = AF + 8*ct; d = 112 + 4*ct
    a(f"v_mfma_f32_16x16x32_bf16 v[{d}:{d+3}], v[{r}:{r+3}], v[{HF}:{HF+3}], 0")
    a(f"v_mfma_f32_16x16x32_bf16 v[{d}:{d+3}], v[{r+4}:{r+7}], v[{HF+4}:{HF+7}], v[{d}:{d+3}]")
for ct in range(4): tag_ins(112 + 4*ct, VN, SEL)
a("s_mov_b64 exec, s[58:59]")
for ct in range(4):
    d = 112 + 4*ct
    a(f"ds_write_b128 v14, v[{d}:{d+3}] offset:{512*ct}")
if OPT["hbn"] == 1:
    a(f"""
v_lshlrev_b32 v1, 4, v10
v_lshl_add_u32 v1, v11, 13, v1
s_lshl_b32 s25, s17, 17
s_lshl_b32 s26, s18, 7
s_add_u32 s25, s25, s26
s_add_u32 s25, s25, {CPA}
v_not_b32 v16, v{VN}
v_not_b32 v17, v{VN}
v_not_b32 v18, v{VN}
v_not_b32 v19, v{VN}
""")
    for ct in range(4):
        d = 112 + 4*ct
        a(f"s_add_u32 s26, s25, 4096\nbuffer_store_dwordx4 v[{d}:{d+3}], v1, s[12:15], s26 offen")
        if OPT["prw"]: a(f"buffer_store_dwordx4 v[16:19], v1, s[12:15], s25 offen")
        if ct < 3: a("s_add_u32 s25, s25, 32768")
a(f"""
v_lshl_add_u32 v2, v{CP+2}, 3, v15
s_mov_b64 exec, 15
ds_write_b64 v2, v[{GG}:{GG+1}] offset:64
""")
stamp(4)
if OPT["tchb"]: touch()
if OPT["xm"]:
    a(f"v_mov_b32 v8, s28\nds_write_b32 v15, v8 offset:140")
else:
    a("v_mov_b32 v8, 1\ns_waitcnt vmcnt(0) lgkmcnt(0)\nds_write_b32 v15, v8 offset:140")
hstamps(9, 5)
a("s_waitcnt vmcnt(0) lgkmcnt(0)\ns_endpgm")

a.label("L_stream")
KA, VA, KR, VR = 1, 5, 7, 11
M_, L_ = 20, 21
T0, T1, T2 = 22, 23, 19
Q = 24; KF = 40; S = 56; T = 60; PF = 66; BIAS = 68; CG = 69; CL = 70; ZR = 71; O = 72; STG = 104; NINF = 65; FL = 64
TE = T + 2; ONE = T + 3; TA = CL
X0 = KF
a(f"""
v_and_b32 v{T0}, 15, v0
v_lshrrev_b32 v{T1}, 4, v0
s_lshl_b32 s24, s3, 14
""")
for i in range(4):
    a(f"""
v_add_u32 v{T2}, {4*i}, v{T1}
v_xor_b32 v{T2}, v{T2}, v{T0}
v_lshlrev_b32 v{T2}, 4, v{T2}
v_lshl_add_u32 v{KA+i}, v{T1}, 8, v{T2}
v_lshl_add_u32 v{KR+i}, v{T0}, 8, v{T2}
v_add_u32 v{KR+i}, s24, v{KR+i}
""")
for e in range(2):
    a(f"""
v_lshrrev_b32 v{T2}, 1, v{T0}
v_add_u32 v{X0}, {4*e}, v{T1}
v_xor_b32 v{T2}, v{T2}, v{X0}
v_lshlrev_b32 v{T2}, 5, v{T2}
v_and_b32 v{X0}, 1, v{T0}
v_lshl_add_u32 v{T2}, v{X0}, 4, v{T2}
v_lshl_add_u32 v{VA+e}, v{T1}, 8, v{T2}
""")
ROT0 = f"""s_lshl_b32 s27, s22, 12
s_add_u32 s27, s27, s21
s_add_u32 s26, s27, {64*4096}
s_add_u32 s67, s27, {128*4096}
s_add_u32 s29, s27, {192*4096}
""" if not OPT["rot"] else f"""
s_mul_i32 s77, s18, {max(OPT['rot'], 0)}
s_mul_i32 s25, s19, {OPT['r1']}
s_add_u32 s77, s77, s25
s_mul_i32 s25, s20, {OPT['r2']}
s_add_u32 s77, s77, s25
s_add_u32 s22, s22, s77
""" + "".join(f"""
s_add_u32 {r}, s22, {64*k}
s_and_b32 {r}, {r}, 511
s_lshl_b32 {r}, {r}, 12
s_add_u32 {r}, {r}, s21
""" for k, r in enumerate(("s27", "s26", "s67", "s29")))
SW0 = f"""
s_and_b32 s75, s18, {OPT['swm']}
s_bcnt1_i32_b32 s75, s75
s_and_b32 s75, s75, 1
s_lshl_b32 s25, s75, 24
s_add_u32 s21, s21, s25
""" if OPT["swm"] else ""
a(f"""
s_lshl_b32 s30, s20, 4
s_add_u32 s30, s30, s19
s_lshl_b32 s21, s30, 21
{SW0}
s_lshl_b32 s22, s17, 3
s_add_u32 s22, s22, s3
{ROT0}
s_waitcnt lgkmcnt(0)
""")
srd(4, P_K, 128 << 20); srd(8, P_V, 128 << 20)
if OPT["fine"] == 6: a("s_memrealtime s[48:49]")
nload = [0]
def pre_load(isV, dst, so):
    srdn = "s[8:11]" if isV else "s[4:7]"
    if dst[0] == "lds": a(dst[1])
    for i in range(4):
        if nload[0] == NPRE:
            if OPT["fine"] == 6: a("s_memrealtime s[50:51]")
            setup_rest()
            if OPT["fine"] == 6: a("s_waitcnt vmcnt(0)\ns_memrealtime s[54:55]")
            a("s_barrier")
            if OPT["fine"] == 6: a("s_memrealtime s[56:57]")
        va = VA + (i & 1) if isV else KA + i
        if nload[0] >= Wp: a(f"s_waitcnt vmcnt({Wp-1})")
        if dst[0] == "lds":
            a(f"buffer_load_dwordx4 v{va}, {srdn}, {so} offen offset:{i*1024} nt lds")
        else:
            r = dst[1] + 4*i
            a(f"buffer_load_dwordx4 v[{r}:{r+3}], v{va}, {srdn}, {so} offen offset:{i*1024} nt")
        nload[0] += 1
def setup_rest():
    srd(12, P_WS, WS_BYTES)
    a(f"""
v_lshrrev_b32 v{X0}, 2, v0
v_and_b32 v{X0+1}, 7, v{X0}
v_and_b32 v{X0+2}, 3, v0
v_lshlrev_b32 v{X0+2}, 3, v{X0+2}
v_lshl_add_u32 v{X0+2}, v{X0}, 8, v{X0+2}
s_add_u32 s25, s24, 8192
v_add_u32 v{X0+2}, s25, v{X0+2}
""")
    for dt in range(8):
        a(f"v_xor_b32 v{T2}, {dt}, v{X0+1}\nv_lshl_add_u32 v{VR+dt}, v{T2}, 5, v{X0+2}")
    a(f"""
v_cmp_gt_u32 s[70:71], 8, v{T0}
v_mov_b32 v{M_}, {f32(-1e30)}
v_mov_b32 v{L_}, 0
v_lshrrev_b32 v{CG}, 2, v{T0}
{f"v_xor_b32 v{CG}, s75, v{CG}" if OPT["swm"] else ""}
v_mov_b32 v{NINF}, 0xff800000
v_mov_b32 v{ZR}, 0
s_mov_b32 s58, {f32(SCALE)}
s_mov_b32 s59, {f32(LOG2E)}
s_mov_b32 s31, {f32(-LOG2E)}
v_cmp_eq_u32 vcc, 0, v{CG}
v_cndmask_b32 v{BIAS}, v{NINF}, v{ZR}, vcc
s_mov_b32 s28, 0
s_mov_b64 s[72:73], 1
v_mov_b32 v{ONE}, 1
v_mov_b32 v{FL}, {TK}
s_mov_b32 s96, 1
s_mov_b32 s60, s24
s_add_u32 s61, s24, 8192
""")
    tag_consts(SEL)
    for r in range(32): a(f"v_mov_b32 v{O+r}, 0")
    for r in range(16): a(f"v_mov_b32 v{Q+r}, 0")
pre_load(False, ("lds", "s_mov_b32 m0, s24"), "s27")
pre_load(True, ("lds", "s_add_u32 m0, s24, 8192"), "s27")
pre_load(False, ("lds", "s_add_u32 m0, s24, 4096"), "s26")
pre_load(True, ("lds", "s_add_u32 m0, s24, 12288"), "s26")
pre_load(False, ("v", STG), "s67")
pre_load(True, ("v", STG+16), "s67")
pre_load(False, ("v", STG+32), "s29")
pre_load(True, ("v", STG+48), "s29")
if NPRE >= 32:
    setup_rest(); a("s_barrier")
a(f"""
v_lshlrev_b32 v{T2}, 4, v{T1}
v_lshl_add_u32 v{T2}, v{T0}, 8, v{T2}
v_add_u32 v{T2}, {Q_LDS}, v{T2}
s_mov_b32 s76, {SPIN*16}
""")
a.label("L_qw")
a(f"""
ds_read_b32 v{T}, v{FL} offset:4
s_waitcnt lgkmcnt(0)
v_cmp_ne_u32 vcc, 1, v{T}
""")
spin_tail("L_qw", "L_qwdone", sleep=1)
stamp(1)
a("s_mov_b64 exec, s[70:71]")
for j in range(4): a(f"ds_read_b128 v[{Q+4*j}:{Q+4*j+3}], v{T2} offset:{j*64}")
a("s_mov_b64 exec, -1")

def rnd4():
    for k in range(2): a(f"v_cvt_pk_bf16_f32 v{T+k}, v{S+2*k}, v{S+2*k+1}")
    for k in range(2):
        a(f"v_lshlrev_b32 v{S+2*k}, 16, v{T+k}\nv_and_b32 v{S+2*k+1}, 0xffff0000, v{T+k}")
nlab = [0]
def ticket_rd():
    a(f"s_mov_b64 exec, 1\nds_add_rtn_u32 v{TE}, v{FL}, v{ONE}\ns_mov_b64 exec, -1")
def ticket_use():
    a(f"""
v_readfirstlane_b32 s25, v{TE}
s_and_b32 s75, s25, 1
s_lshr_b32 s25, s25, 1
s_lshl_b32 s25, s25, 2
s_add_u32 s25, s25, {CH}
v_mov_b32 v{TA}, s25
""")
def entry_rd():
    a(f"ds_read_b32 v{TE}, v{TA}")
def entry_use():
    a(f"""
L_eretry:
v_readfirstlane_b32 s23, v{TE}
s_cmp_eq_u32 s23, -1
s_cbranch_scc1 L_espin
s_lshl_b32 s23, s23, 1
s_add_u32 s23, s23, s75
s_cmp_ge_u32 s23, {NU}
s_cbranch_scc1 L_final
""")
def kstep(pre=None, mid=None, rd=True):
    nlab[0] += 1
    lbl = f"L_nr{nlab[0]}"
    if pre: pre()
    if rd:
        for j in range(4): a(f"ds_read_b128 v[{KF+4*j}:{KF+4*j+3}], v{KR+j}")
        a("s_waitcnt lgkmcnt(0)")
    if mid: mid()
    for j in range(4):
        c = "0" if j == 0 else f"v[{S}:{S+3}]"
        a(f"v_mfma_f32_16x16x32_bf16 v[{S}:{S+3}], v[{KF+4*j}:{KF+4*j+3}], v[{Q+4*j}:{Q+4*j+3}], {c}")
    rnd4()
    for k in range(4): a(f"v_fma_f32 v{S+k}, v{S+k}, s58, v{BIAS}")
    rnd4()
    a(f"""
v_max3_f32 v{T}, v{S}, v{S+1}, v{S+2}
v_max3_f32 v{T}, v{T}, v{S+3}, v{M_}
v_mov_b32 v{T+1}, v{T}
v_permlane16_swap_b32 v{T}, v{T+1}
v_max_f32 v{T}, v{T}, v{T+1}
v_mov_b32 v{T+1}, v{T}
v_permlane32_swap_b32 v{T}, v{T+1}
v_max_f32 v{T}, v{T}, v{T+1}
v_cmp_gt_f32 vcc, v{T}, v{M_}
s_cbranch_vccz {lbl}
v_sub_f32 v{T+1}, v{M_}, v{T}
v_mul_f32 v{T+1}, s59, v{T+1}
v_exp_f32 v{T+1}, v{T+1}
v_mov_b32 v{M_}, v{T}
v_mul_f32 v{L_}, v{L_}, v{T+1}
""")
    for r in range(32): a(f"v_mul_f32 v{O+r}, v{O+r}, v{T+1}")
    a.label(lbl)
    a(f"v_mul_f32 v{T+1}, s31, v{M_}")
    for k in range(4): a(f"v_fma_f32 v{S+k}, v{S+k}, s59, v{T+1}")
    for k in range(4): a(f"v_exp_f32 v{S+k}, v{S+k}")
    for k in range(2): a(f"v_cvt_pk_bf16_f32 v{PF+k}, v{S+2*k}, v{S+2*k+1}")
    a(f"""
v_add_f32 v{T}, v{S}, v{S+1}
v_add_f32 v{T+1}, v{S+2}, v{S+3}
v_add_f32 v{T}, v{T}, v{T+1}
v_add_f32 v{L_}, v{L_}, v{T}
""")
def vstep(pre=None, mid=None):
    if pre: pre()
    for dt in range(8): a(f"ds_read_b64_tr_b16 v[{KF+2*dt}:{KF+2*dt+1}], v{VR+dt}")
    a("s_waitcnt lgkmcnt(0)")
    if mid: mid()
    for dt in range(8):
        a(f"v_mfma_f32_16x16x16_bf16 v[{O+4*dt}:{O+4*dt+3}], v[{KF+2*dt}:{KF+2*dt+1}], v[{PF}:{PF+1}], v[{O+4*dt}:{O+4*dt+3}]")
def toggle():
    for r in list(range(KR, KR+4)) + list(range(VR, VR+8)): a(f"v_xor_b32 v{r}, 0x1000, v{r}")
def set_bias(sreg):
    a(f"v_cmp_eq_u32 vcc, {sreg}, v{CG}\nv_cndmask_b32 v{BIAS}, v{NINF}, v{ZR}, vcc")
def next_off():
    a(f"""
s_lshr_b32 s28, s23, 9
{"s_add_u32 s26, s23, s77" + chr(10) + "s_and_b32 s26, s26, 511" if OPT["rot"] else "s_and_b32 s26, s23, 511"}
s_lshl_b32 s26, s26, 12
s_lshl_b32 s25, s28, 24
s_add_u32 s26, s26, s21
s_xor_b32 s26, s26, s25
""")
def dmaK():
    a("s_mov_b32 m0, s60")
    for i in range(4): a(f"buffer_load_dwordx4 v{KA+i}, s[4:7], s26 offen offset:{i*1024} nt lds")
def dmaV():
    a("s_mov_b32 m0, s61")
    for i in range(4): a(f"buffer_load_dwordx4 v{VA+(i&1)}, s[8:11], s26 offen offset:{i*1024} nt lds")
X = STG
VNS = X + 27; FLG = X + 26
F3ADDR = f"""
s_lshl_b32 s77, s16, 2
s_add_u32 s77, s77, {F1}
s_lshr_b32 s22, s16, {OPT['rsh']}
s_lshl_b32 s22, s22, 10
s_add_u32 s22, s22, {F1}
s_lshr_b32 s95, s3, 1
s_lshl_b32 s95, s95, 3
s_lshr_b32 s25, s16, 5
s_add_u32 s95, s95, s25
s_lshl_b32 s95, s95, 5
s_add_u32 s95, s95, s22
""" if OPT["f3"] else ""
FLIM = 1 << 20
COL = OPT["col"]
COL1 = f"""
v_lshrrev_b32 v{X+11}, 2, v{T0}
v_lshlrev_b32 v{X+11}, 12, v{X+11}
v_lshl_add_u32 v{X+25}, v{X+13}, 4, v{X+11}
v_lshl_add_u32 v{X+11}, v{T1}, 13, v{X+25}
""" if COL else f"""v_lshlrev_b32 v{X+11}, 4, v{T0}
v_lshl_add_u32 v{X+11}, v{T1}, 13, v{X+11}
"""
COL2 = "" if COL else f"""v_lshrrev_b32 v{X+25}, 3, v{T0}
v_lshlrev_b32 v{X+25}, 13, v{X+25}
v_lshl_add_u32 v{X+25}, v{X+3}, 4, v{X+25}
"""
FU = OPT["fful"]
FADDR = f"""
s_and_b32 s94, s29, 31
s_lshl_b32 s94, s94, 6
s_lshr_b32 s25, s29, 5
s_add_u32 s94, s94, s25
s_mul_i32 s94, s94, {FST}
s_lshl_b32 s25, s17, 3
s_add_u32 s94, s94, s25
s_add_u32 s94, s94, {FG}
s_andn2_b32 s95, s16, {[0, 7, 3, 1, 0][OPT['fone']]}
s_lshl_b32 s95, s95, 3
s_add_u32 s95, s95, s3
s_mul_i32 s95, s95, {FST}
s_add_u32 s95, s95, {FG}
v_mul_u32_u24 v{X+30}, {8*FST}, v0
""" if not FU else f"""
s_lshl_b32 s94, s29, 3
s_add_u32 s94, s94, s17
s_mul_i32 s94, s94, {FU}
s_add_u32 s94, s94, {FG}
s_lshl_b32 s95, s3, 5
s_add_u32 s95, s95, s18
s_mul_i32 s95, s95, {8*FU}
s_lshl_b32 s25, s17, 3
s_add_u32 s95, s95, s25
s_add_u32 s95, s95, {FG}
v_mul_u32_u24 v{X+30}, {FU}, v0
"""
FSA, FPA = (X+1, X+30) if FU else (X+30, X+1)
if OPT["fone"] == 4:
    FADDR = f"""
s_mul_i32 s94, s29, {FST}
s_lshl_b32 s25, s17, 3
s_add_u32 s94, s94, s25
s_add_u32 s94, s94, {FG + OPT['fgo']}
s_lshl_b32 s95, s3, 5
s_add_u32 s95, s95, s18
s_mul_i32 s95, s95, {FST}
s_add_u32 s95, s95, {FG + OPT['fgo']}
v_mov_b32 v{X+30}, 0
"""
def tail_addr():
    a(f"""
v_mul_u32_u24 v{X}, {CST}, v{T0}
v_lshl_add_u32 v{X}, v{T1}, 4, v{X}
v_add_u32 v{X}, s24, v{X}
v_lshlrev_b32 v{X+1}, 3, v0
s_lshl_b32 s25, s3, 3
s_add_u32 s25, s25, {MLT}
v_lshl_add_u32 v{X+15}, v0, 6, s25
v_mov_b32 v{X+21}, {MISC}
ds_read_b32 v{VNS}, v{X+21} offset:96
s_lshr_b32 s29, s3, 2
s_lshl_b32 s29, s29, 3
s_add_u32 s29, s29, s30
s_lshl_b32 s29, s29, 2
s_and_b32 s25, s3, 3
s_add_u32 s29, s29, s25
s_lshl_b32 s62, s29, 12
s_lshl_b32 s25, s17, 9
s_add_u32 s62, s62, s25
s_add_u32 s62, s62, {PART}
{FADDR}
v_and_b32 v{X+3}, 31, v0
v_lshrrev_b32 v{X+4}, 5, v0
v_lshlrev_b32 v{X+2}, 4, v{X+3}
v_bfe_u32 v{X+10}, v0, 4, 1
v_lshlrev_b32 v{X+10}, 2, v{X+10}
v_lshl_add_u32 v{X+10}, v{T0}, 4, v{X+10}
v_lshl_add_u32 v{X+10}, v{X+4}, 3, v{X+10}
v_and_b32 v{X+31}, 1, v0
v_lshlrev_b32 v{X+31}, 4, v{X+31}
v_lshl_add_u32 v{X+2}, v{X+4}, 16, v{X+2}
s_mul_i32 s25, s3, {CST}
v_add_u32 v{X+2}, s25, v{X+2}
v_and_b32 v{X+3}, 7, v0
v_lshlrev_b32 v{X+4}, 2, v{X+4}
v_xor_b32 v{X+4}, v{X+4}, v{X+3}
s_lshl_b32 s25, s3, 6
s_add_u32 s25, s25, {MLT}
v_lshl_add_u32 v{X+4}, v{X+4}, 3, s25
s_lshl_b32 s74, s3, 5
s_add_u32 s74, s74, s18
s_lshl_b32 s74, s74, 12
s_add_u32 s74, s74, {PART}
v_lshlrev_b32 v{X+7}, 4, v0
v_lshrrev_b32 v{X+9}, 2, v{T0}
v_lshl_add_u32 v{X+9}, v{T1}, 3, v{X+9}
v_lshlrev_b32 v{X+9}, 7, v{X+9}
v_and_b32 v{X+13}, 3, v0
v_lshl_add_u32 v{X+9}, v{X+13}, 3, v{X+9}
s_and_b32 s25, s3, 3
s_lshl_b32 s25, s25, 5
s_add_u32 s25, s25, {WO_LDS}
v_add_u32 v{X+9}, s25, v{X+9}
s_mul_i32 s25, s3, {OST}
s_add_u32 s25, s25, {O_LDS}
v_add_u32 v{X+10}, s25, v{X+10}
v_mul_u32_u24 v{X+12}, {OST}, v{T0}
v_lshl_add_u32 v{X+12}, v{T1}, 4, v{X+12}
v_add_u32 v{X+12}, {O_LDS}, v{X+12}
{COL1}
v_lshl_add_u32 v{X+21}, v{X+13}, 3, v{X+21}
s_lshl_b32 s25, s3, 8
s_add_u32 s25, s25, {WD_LDS}
v_lshl_add_u32 v{X+24}, v{T0}, 4, s25
{COL2}
s_lshl_b32 s29, s17, 17
s_add_u32 s29, s29, {CPA}
s_lshl_b32 s25, s18, 7
s_add_u32 s65, s29, s25
s_lshl_b32 s25, s3, 14
s_add_u32 s67, s65, s25
s_add_u32 s67, s67, {64 if COL else 4096}
s_add_u32 s63, s67, {CPB-CPA}
s_lshl_b32 s25, s3, 15
s_add_u32 s65, s65, s25
s_add_u32 s64, s65, {CPB-CPA}
v_lshlrev_b32 v{X+23}, 10, v{X+13}
v_lshl_add_u32 v{X+23}, v{T1}, 1, v{X+23}
v_lshrrev_b32 v{X+14}, 2, v0
v_lshlrev_b32 v{X+14}, 7, v{X+14}
v_lshl_add_u32 v{X+13}, v{X+13}, 4, v{X+14}
v_cmp_lt_u32 s[68:69], 31, v0
s_lshr_b32 s66, s18, 1
s_lshl_b32 s99, s66, 3
s_lshl_b32 s66, s66, 13
s_add_u32 s66, s66, s29
s_and_b32 s25, s18, 1
s_lshl_b32 s29, s25, {12 if COL else 6}
s_add_u32 s66, s66, s29
s_add_u32 s98, s66, {64 if COL else 4096 if OPT["bpa"] else 4096 + CPB - CPA}
s_lshl_b32 s25, s25, 12
s_add_u32 s99, s99, s25
s_lshl_b32 s25, s17, 7
s_add_u32 s99, s99, s25
s_waitcnt lgkmcnt(0)
v_lshrrev_b32 v{X+31}, v{X+31}, v{VNS}
""")
a(f"s_mov_b32 s76, {SPIN*64}\ns_waitcnt vmcnt(28)\ns_mov_b32 s27, 0\ns_mov_b32 s97, 0")
kstep()
a("s_waitcnt vmcnt(24)")
vstep(pre=ticket_rd, mid=ticket_use)
toggle()
a.label("L_loop")
a(f"s_cmp_eq_u32 s96, {OPT['flit']}\ns_cbranch_scc1 L_flush")
a.label("L_loop2")
if OPT["fine"] == 3: a("s_mov_b32 s54, s48\ns_mov_b32 s56, s50\ns_memrealtime s[48:49]")
a("s_waitcnt vmcnt(4)")
if OPT["fine"] == 3: a("s_memrealtime s[50:51]\ns_waitcnt lgkmcnt(0)")
if OPT["fine"] == 5: a("s_memrealtime s[56:57]\ns_waitcnt lgkmcnt(0)\ns_mov_b32 s50, s56")
def mid2():
    entry_use()
    next_off()
    dmaK()
    if OPT["fine"] == 5: a("s_mov_b32 s54, s23\ns_mov_b32 s51, s50\ns_memrealtime s[48:49]\ns_waitcnt lgkmcnt(0)")
    if EAG == 0:
        dmaV()
    elif EAG < 1024:
        a(f"s_cmp_lt_u32 s23, {EAG}\ns_cbranch_scc1 L_ne1")
        dmaV()
        a.label("L_ne1")
EAG = OPT["eager"]
kstep(pre=entry_rd, mid=mid2)
if EAG == 0:
    a("s_waitcnt vmcnt(8)")
elif EAG < 1024:
    a(f"s_waitcnt vmcnt(8)\ns_cmp_ge_u32 s23, {EAG}\ns_cbranch_scc1 L_ne2\ns_waitcnt vmcnt(4)")
    dmaV()
    a.label("L_ne2")
else:
    a("s_waitcnt vmcnt(4)")
    dmaV()
vstep(pre=ticket_rd, mid=ticket_use)
set_bias("s28")
toggle()
a(f"""
s_mov_b32 s27, s28
s_xor_b32 s60, s60, 0x1000
s_xor_b32 s61, s61, 0x1000
s_add_u32 s96, s96, 1
s_branch L_loop
L_espin:
s_sub_u32 s76, s76, 1
s_cmp_eq_u32 s76, 0
s_cbranch_scc1 L_final
s_sleep 1
ds_read_b32 v{TE}, v{TA}
s_waitcnt lgkmcnt(0)
s_branch L_eretry
L_final0:
s_mov_b32 s97, 2
s_waitcnt vmcnt(0)
L_flush:
s_waitcnt vmcnt(8)
""")
toggle()
set_bias("0")
a(f"v_lshlrev_b32 v{T2}, 4, v0\nv_add_u32 v{T2}, s60, v{T2}")
for u in range(2):
    for i in range(4):
        r = STG + 32*u + 4*i
        a(f"ds_write_b128 v{T2}, v[{r}:{r+3}] offset:{i*1024}")
    for i in range(4):
        r = STG + 32*u + 16 + 4*i
        a(f"ds_write_b128 v{T2}, v[{r}:{r+3}] offset:{8192+i*1024}")
    a("s_waitcnt lgkmcnt(0)")
    if u == 1:
        tail_addr()
        if OPT["prew"]:
            a(f"""
v_not_b32 v{X+16}, v{VNS}
v_not_b32 v{X+17}, v{VNS}
v_not_b32 v{X+18}, v{VNS}
v_not_b32 v{X+19}, v{VNS}
s_mov_b32 exec_hi, 0
buffer_store_dwordx4 v[{X+16}:{X+19}], v{X+6}, s[12:15], s62 offen sc1
s_mov_b64 exec, 1
buffer_store_dwordx4 v[{X+16}:{X+19}], v{ZR}, s[12:15], s63 offen sc1
s_mov_b64 exec, -1
""")
            if OPT["prew"] > 1:
                a(f"buffer_store_dwordx4 v[{X+16}:{X+19}], v{X+11}, s[12:15], s65 offen sc1")
    kstep(); vstep()
toggle()
set_bias("s27")
a(f"""
s_add_u32 s97, s97, 1
s_cmp_eq_u32 s97, 1
s_cbranch_scc1 L_loop2
""")
for j in range(4): a(f"ds_read_b128 v[{KF+4*j}:{KF+4*j+3}], v{KR+j}")
a(f"""
s_waitcnt lgkmcnt(0)
L_final:
s_cmp_eq_u32 s97, 0
s_cbranch_scc1 L_final0
""")
def fine3(k):
    if OPT["fine"] == 3: a(f"s_memrealtime s[{[4,6,8,10,48,50,54,56][k]}:{[4,6,8,10,48,50,54,56][k]+1}]\ns_waitcnt lgkmcnt(0)")
fine3(0)
if OPT["fine"] == 6: a("s_mov_b32 s4, s80")
if OPT["fine"] == 5: a("s_mov_b32 s4, s76\ns_mov_b32 s6, s51\ns_memrealtime s[8:9]\ns_waitcnt lgkmcnt(0)")
kstep(rd=False)
fine3(1)
AA = STG + 32
CM = AA; AW = AA + 16
R = S; GV = X + 28
a(f"""
v_mov_b32 v{T+1}, v{L_}
v_permlane16_swap_b32 v{L_}, v{T+1}
v_add_f32 v{L_}, v{L_}, v{T+1}
v_mov_b32 v{T+1}, v{L_}
v_permlane32_swap_b32 v{L_}, v{T+1}
v_add_f32 v{L_}, v{L_}, v{T+1}
s_mov_b32 s76, {SPIN*16}
s_mov_b64 exec, 0xff
ds_write_b64 v{X+15}, v[{M_}:{L_}]
s_mov_b64 exec, -1
""")
def misc_rd():
    if OPT["xm"]: a(f"ds_read_b32 v{T}, v{FL} offset:12")
    a(f"ds_read_b128 v[{X+16}:{X+19}], v{X+24}")
    for s_ in range(4):
        a(f"ds_read_b64_tr_b16 v[{AW+4*s_}:{AW+4*s_+1}], v{X+9} offset:{s_*4096}")
        a(f"ds_read_b64_tr_b16 v[{AW+4*s_+2}:{AW+4*s_+3}], v{X+9} offset:{s_*4096+512}")
    a(f"ds_read_b64 v[{GV}:{GV+1}], v{X+21} offset:64")
if not OPT["mlate"]:
    a(f"L_bw:\nds_read_b32 v{T}, v{FL} offset:12")
    misc_rd()
    a(f"s_waitcnt lgkmcnt(0)\nv_cmp_ne_u32 vcc, 1, v{T}")
    spin_tail("L_bw", "L_bwdone", sleep=2)
C = O + 16
def fine2(k):
    if OPT["fine"] == 2: a(f"s_waitcnt vmcnt(0)\ns_memtime s[{[4,6,8,10,48,50,54,56][k]}:{[4,6,8,10,48,50,54,56][k]+1}]\ns_waitcnt lgkmcnt(0)")
def fine(k):
    if OPT["fine"] == 1: a(f"s_memtime s[{[4,6,8,10,48,50,54,56][k]}:{[4,6,8,10,48,50,54,56][k]+1}]" + ("\ns_waitcnt lgkmcnt(0)" if k in (0, 3,) else ""))
fine3(2)
a(f"s_mov_b32 s76, {SPIN}\ns_waitcnt vmcnt(0)")
fine3(3)
fine(0)
for dt in range(8): a(f"ds_read_b64_tr_b16 v[{KF+2*dt}:{KF+2*dt+1}], v{VR+dt}")
for dt in range(8):
    a(f"s_waitcnt lgkmcnt({7-dt})")
    a(f"v_mfma_f32_16x16x16_bf16 v[{O+4*dt}:{O+4*dt+3}], v[{KF+2*dt}:{KF+2*dt+1}], v[{PF}:{PF+1}], v[{O+4*dt}:{O+4*dt+3}]")
stamp(2)
fine(1)
a("s_mov_b64 exec, s[70:71]")
for dt in range(8): a(f"ds_write_b128 v{X}, v[{O+4*dt}:{O+4*dt+3}] offset:{dt*64}")
a("s_mov_b64 exec, -1")
if OPT["tcw"]:
    a(f"""
s_cmp_lg_u32 s3, {OPT['fin']}
s_cbranch_scc1 L_ntc
v_lshlrev_b32 v{T}, 7, v0
{"s_mov_b32 exec_hi, 0" if OPT["tcw"] == 1 else ""}
buffer_load_dword v{AA+4}, v{T}, s[12:15], s66 offen {['', 'sc1', 'nt'][OPT['tpol']]}
s_mov_b64 exec, -1
L_ntc:
""")
a("s_waitcnt lgkmcnt(0)")
fine(2)
a("s_barrier")
fine(3)
a(f"ds_read_b64 v[{CM}:{CM+1}], v{X+4}")
for k in range(4):
    a(f"ds_read_b128 v[{C+4*k}:{C+4*k+3}], v{X+2} offset:{k*16384}")
def red8(r, op, src=None):
    for m in ("quad_perm:[1,0,3,2]", "quad_perm:[2,3,0,1]", "row_half_mirror"):
        q = r if src is None else src
        a(f"{op}_dpp v{r}, v{q}, v{q} {m} row_mask:0xf bank_mask:0xf")
        src = None
a("s_waitcnt lgkmcnt(4)")
red8(T, "v_max_f32", CM)
a(f"""
v_sub_f32 v{CM}, v{CM}, v{T}
v_mul_f32 v{CM}, s59, v{CM}
v_exp_f32 v{CM}, v{CM}
v_mul_f32 v{T+1}, v{CM}, v{CM+1}
""")
def ofma(k):
    a(f"s_waitcnt lgkmcnt({3-k})")
    for j in range(4): a(f"v_{'mul' if k == 0 else 'fmac'}_f32_dpp v{R+j}, v{CM}, v{C+4*k+j} row_newbcast:{k} row_mask:0xf bank_mask:0xf")
red8(T+1, "v_add_f32")
a(f"""
v_max_f32 v{T+1}, {f32(1e-30)}, v{T+1}
v_log_f32 v{T+2}, v{T+1}
v_rcp_f32 v{T+3}, v{T+1}
""")
ofma(0)
a(f"""
v_fma_f32 v{FLG}, v{T}, s59, v{T+2}
v_perm_b32 v{FLG}, v{FLG}, v{VNS}, s{SEL}
""")
fine2(0)
def flag_st():
    a(f"""
s_mov_b64 exec, {hex((1 << (FU//8)) - 1) if FU else [0xff, 1, 0x11, 0x55, 1][OPT['fone']]}
buffer_store_dwordx2 v[{FLG}:{FLG+1}], v{FSA}, s[12:15], s94 offen sc1
s_mov_b64 exec, -1
""")
if not OPT["fo"]: flag_st()
fine2(1)
for k in range(1, 4): ofma(k)
fine(4)
a(f"""
v_permlane32_swap_b32 v{R}, v{R+2}
v_permlane32_swap_b32 v{R+1}, v{R+3}
v_add_f32 v{R}, v{R}, v{R+2}
v_add_f32 v{R+1}, v{R+1}, v{R+3}
v_mul_f32 v{R}, v{R}, v{T+3}
v_mul_f32 v{R+1}, v{R+1}, v{T+3}
v_perm_b32 v{R}, v{R}, v{X+31}, s{SEL}
v_perm_b32 v{R+1}, v{R+1}, v{X+31}, s{SEL+1}
""")
if OPT["px4"]:
    a(f"""
v_mov_b32_dpp v{R+2}, v{R} quad_perm:[1,1,3,3] row_mask:0xf bank_mask:0xf
v_mov_b32_dpp v{R+3}, v{R+1} quad_perm:[1,1,3,3] row_mask:0xf bank_mask:0xf
s_mov_b32 exec_lo, 0x55555555
s_mov_b32 exec_hi, 0x55555555
buffer_store_dwordx4 v[{R}:{R+3}], v{X+1}, s[12:15], s62 offen sc1
s_mov_b64 exec, -1
""")
else:
    a(f"buffer_store_dwordx2 v[{R}:{R+1}], v{X+1}, s[12:15], s62 offen sc1")
if OPT["fo"]: flag_st()
if OPT["mlate"]:
    if OPT["stamps"]: stamp(3); a("s_waitcnt lgkmcnt(0)")
    misc_rd()
    a("s_waitcnt lgkmcnt(9)")
if OPT["hbn"] != 1: a("s_mov_b64 exec, 0xffff")
if not OPT["mlate"]: stamp(3)
fine(5)
fine2(2)
def st2(lbl, ins, extra=""):
    a(f"""
s_cmp_eq_u32 s63, 1
s_cbranch_scc1 {lbl}n
{ins} sc1
s_branch {lbl}d
{lbl}n:
{ins}
{extra}
{lbl}d:
""")
if OPT["xm"]:
    a(f"v_readfirstlane_b32 s63, v{T}")
    st2("L_bs", f"buffer_store_dwordx4 v[{X+16}:{X+19}], v{X+25}, s[12:15], s67 offen", f"""
v_not_b32 v{T}, v{VNS}
v_not_b32 v{T+1}, v{VNS}
v_not_b32 v{T+2}, v{VNS}
v_not_b32 v{T+3}, v{VNS}
s_sub_u32 s25, s67, 4096
buffer_store_dwordx4 v[{T}:{T+3}], v{X+25}, s[12:15], s25 offen
""" if OPT["prw"] else "")
elif OPT["hbn"] != 1:
    if OPT["bpa"]: a(f"buffer_store_dwordx4 v[{X+16}:{X+19}], v{X+25}, s[12:15], s67 offen")
    if not OPT["hbn"]: a(f"buffer_store_dwordx4 v[{X+16}:{X+19}], v{X+25}, s[12:15], s63 offen sc1")
    fine2(3)
    if OPT["prw"]:
        a(f"""
v_not_b32 v{T}, v{VNS}
v_not_b32 v{T+1}, v{VNS}
v_not_b32 v{T+2}, v{VNS}
v_not_b32 v{T+3}, v{VNS}
s_sub_u32 s25, s67, 4096
buffer_store_dwordx4 v[{T}:{T+3}], v{X+25}, s[12:15], s25 offen
""")
fine2(4)
BB = AA + 8
def bpoll():
    for k in range(2):
        a(f"buffer_load_dwordx4 v[{BB+4*k}:{BB+4*k+3}], v{X+13}, s[12:15], s98 offen offset:{2048*k} sc1")
def bp_early():
    a(f"s_cmp_lg_u32 s3, {OPT['fin']}\ns_cbranch_scc1 L_nobp0\ns_mov_b64 exec, -1")
    bpoll()
    a.label("L_nobp0")
if OPT["bpe"] >= 2: bp_early()
PA = O
WT = Q; FS = Q + 4; P = Q + 8; TT = KF
FPOLL = {0: f"""
v_mov_b32 v{FS}, 0
v_mov_b32 v{FS+1}, 0
buffer_atomic_or_x2 v[{FS}:{FS+1}], v{FPA}, s[12:15], s95 offen sc0 sc1
""", 1: f"buffer_load_dwordx2 v[{FS}:{FS+1}], v{FPA}, s[12:15], s95 offen sc1",
2: f"""
v_mov_b32 v{FS}, v{VNS}
v_mov_b32 v{FS+1}, 0
v_mov_b32 v{FS+2}, v{VNS}
v_mov_b32 v{FS+3}, 0
buffer_atomic_cmpswap_x2 v[{FS}:{FS+3}], v{FPA}, s[12:15], s95 offen sc0 sc1
""", 3: f"buffer_load_dwordx2 v[{FS}:{FS+1}], v{FPA}, s[12:15], s95 offen sc0 sc1 nt",
4: f"""
v_mov_b32 v{FS}, 0
v_mov_b32 v{FS+1}, 0
buffer_atomic_umax_x2 v[{FS}:{FS+1}], v{FPA}, s[12:15], s95 offen sc0 sc1
""", 5: f"""
v_mov_b32 v{FS}, 0
v_mov_b32 v{FS+1}, 0
buffer_atomic_or_x2 v[{FS}:{FS+1}], v{FPA}, s[12:15], s95 offen sc0 sc1 nt
"""}[OPT["fpol"]]
a(f"""
s_movk_i32 s22, 0xff
s_mov_b32 s23, 0
L_f1:
s_mov_b64 exec, s[22:23]
{FPOLL}
s_sub_u32 s76, s76, 1
s_waitcnt vmcnt(0)
v_xor_b32 v{T}, v{FS}, v{VNS}
v_and_b32 v{T}, 0xff, v{T}
v_xor_b32 v{T+1}, v{FS+1}, v{VNS}
v_or_b32 v{T}, v{T}, v{T+1}
v_cmp_eq_u32 vcc, 0, v{T}
s_cbranch_vccz L_f1n
s_mov_b32 s25, vcc_lo
""")
def pload(k):
    if not OPT["nopart"]: a(f"buffer_load_dwordx4 v[{PA+4*k}:{PA+4*k+3}], v{X+7}, s[12:15], s74 offen offset:{1024*k} sc1")
if OPT["inc"]:
    for k in range(4):
        a(f"""
s_bfe_i32 exec_lo, s25, {hex(0x10000 + 2*k)}
s_bfe_i32 exec_hi, s25, {hex(0x10000 + 2*k + 1)}
""")
        pload(k)
a(f"""
s_andn2_b32 s22, s22, s25
s_cbranch_scc0 L_f1done
L_f1n:
s_cmp_eq_u32 s76, 0
s_cbranch_scc1 L_f1done
{"s_sleep %d" % OPT['f1slp'] if OPT['f1slp'] else ""}
""")
if OPT["f1th"]:
    a(f"""
s_bcnt1_i32_b32 s25, s22
s_cmp_le_u32 s25, {OPT['f1th']}
s_cbranch_scc1 L_f1
s_sleep {OPT['f1sl2']}
""")
a(f"""
s_branch L_f1
L_f1done:
s_mov_b64 exec, -1
""")
if not OPT["inc"]:
    for k in range(4): pload(k)
if OPT["bpe"] == 1: bp_early()
if OPT["stamps"]: a("s_memrealtime s[100:101]")
red8(T, "v_max_f32", FS)
a(f"""
v_sub_f32 v{FS}, v{FS}, v{T}
v_exp_f32 v{FS}, v{FS}
""")
red8(T, "v_add_f32", FS)
a(f"""
v_rcp_f32 v{T}, v{T}
v_mul_f32 v{FS}, v{FS}, v{T}
""")
for x in range(8): a(f"v_readlane_b32 s{32+x}, v{FS}, {x}")
for k in range(4): a(f"v_mov_b32 v{WT+k}, s{32+2*k+1}")
a("s_mov_b32 exec_hi, 0")
for k in range(4): a(f"v_mov_b32 v{WT+k}, s{32+2*k}")
def tag_chk(grans, t):
    for n_, r in enumerate(grans):
        a(f"v_perm_b32 v{t+2*n_}, v{r+1}, v{r}, s{SEL+4}\nv_perm_b32 v{t+2*n_+1}, v{r+3}, v{r+2}, s{SEL+5}")
    for n_, r in enumerate(grans):
        a(f"v_xor_b32 v{t+2*n_}, v{t+2*n_}, v{VNS}")
    for n_, r in enumerate(grans):
        a(f"v_xor_b32 v{t+2*n_}, v{t+2*n_}, v{t+2*n_+1}")
    if len(grans) == 4:
        a(f"v_or3_b32 v{t}, v{t}, v{t+2}, v{t+4}\nv_or_b32 v{t}, v{t}, v{t+6}")
    else:
        a(f"v_or_b32 v{t}, v{t}, v{t+2}")
    a(f"v_cmp_ne_u32 vcc, 0, v{t}")
a.label("L_pchk")
a("s_mov_b64 exec, -1\ns_waitcnt vmcnt(0)")
for k in range(4):
    for j in range(4): a(f"v_{'mul' if k == 0 else 'fmac'}_f32 v{P+j}, v{WT+k}, v{PA+4*k+j}")
a(f"""
v_permlane32_swap_b32 v{P}, v{P+2}
v_permlane32_swap_b32 v{P+1}, v{P+3}
v_add_f32 v{P}, v{P}, v{P+2}
v_add_f32 v{P+1}, v{P+1}, v{P+3}
v_cvt_pk_bf16_f32 v{P}, v{P}, v{P+1}
ds_write_b32 v{X+10}, v{P}
""")
tag_chk([PA+4*k for k in range(4)], TT)
if not OPT["nopart"]: a("s_cbranch_vccnz L_prep")
a.label("L_pdone")
stamp(4)
BB = AA + 8
def bpoll():
    for k in range(2):
        a(f"buffer_load_dwordx4 v[{BB+4*k}:{BB+4*k+3}], v{X+13}, s[12:15], s98 offen offset:{2048*k} sc1")
a(f"s_cmp_lg_u32 s3, {OPT['fin']}\ns_cbranch_scc1 L_nobp")
if not OPT["bdel"] and OPT["bpe"] in (0, 3): bpoll()
a(f"""
L_nobp:
s_cmp_gt_u32 s3, 3
s_waitcnt lgkmcnt(0)
s_barrier
s_cbranch_scc1 L_nomm
""")
for s_ in range(4): a(f"ds_read_b128 v[{PA+4*s_}:{PA+4*s_+3}], v{X+12} offset:{64*s_}")
D_ = PA + 16
for s_ in range(4):
    a(f"""
s_waitcnt lgkmcnt({3-s_})
v_mfma_f32_16x16x32_bf16 v[{D_}:{D_+3}], v[{AW+4*s_}:{AW+4*s_+3}], v[{PA+4*s_}:{PA+4*s_+3}], {"0" if s_ == 0 else f"v[{D_}:{D_+3}]"}
""")
a("s_mov_b64 exec, s[70:71]")
tag_ins(D_, VNS, SEL)
if OPT["xm"]:
    st2("L_as", f"buffer_store_dwordx4 v[{D_}:{D_+3}], v{X+11}, s[12:15], s65 offen")
    a("s_mov_b64 exec, -1")
else:
    a(f"""
{"" if OPT["noa"] else f"buffer_store_dwordx4 v[{D_}:{D_+3}], v{X+11}, s[12:15], s65 offen"}
{"" if OPT["nob"] else f"buffer_store_dwordx4 v[{D_}:{D_+3}], v{X+11}, s[12:15], s64 offen sc1"}
s_mov_b64 exec, -1
""")
a.label("L_nomm")
stamp(5)
if OPT["hbn"]:
    a(f"""
s_cmp_eq_u32 s3, {OPT['fin']}
s_cbranch_scc1 L_nofar
s_mov_b64 exec, 0xffff
buffer_store_dwordx4 v[{X+16}:{X+19}], v{X+25}, s[12:15], s63 offen sc1
s_cmp_lg_u32 s3, {OPT['fin']+1}
s_cbranch_scc1 L_nofar
ds_read_b128 v[{T}:{T+3}], v{X+24} offset:{(-256) & 0xffff}
""" if False else f"""
s_cmp_eq_u32 s3, {OPT['fin']}
s_cbranch_scc1 L_nofar
s_sleep 4
s_mov_b64 exec, 0xffff
buffer_store_dwordx4 v[{X+16}:{X+19}], v{X+25}, s[12:15], s63 offen sc1
s_cmp_lg_u32 s3, {OPT['fin']-1}
s_cbranch_scc1 L_nofar
ds_read_b128 v[{KF}:{KF+3}], v{X+24} offset:256
s_add_u32 s63, s63, 16384
s_waitcnt lgkmcnt(0)
buffer_store_dwordx4 v[{KF}:{KF+3}], v{X+25}, s[12:15], s63 offen sc1
L_nofar:
s_mov_b64 exec, -1
""")
def wstamps():
    a(f"""
s_lshl_b32 s29, s16, 3
s_add_u32 s29, s29, s3
s_lshl_b32 s29, s29, 4
s_add_u32 s29, s29, {STAMP+0x10000}
s_add_u32 s96, s96, 3
s_waitcnt lgkmcnt(0)
v_mov_b32 v{T}, s84
v_mov_b32 v{T+1}, s85
v_mov_b32 v{T+2}, s82
v_mov_b32 v{T+3}, s96
s_mov_b64 exec, 1
buffer_store_dwordx4 v[{T}:{T+3}], v{ZR}, s[12:15], s29 offen
s_add_u32 s29, s29, 0x8000
s_nop 4
v_mov_b32 v{T}, s86
v_mov_b32 v{T+1}, s88
v_mov_b32 v{T+2}, s90
v_mov_b32 v{T+3}, s77
buffer_store_dwordx4 v[{T}:{T+3}], v{ZR}, s[12:15], s29 offen
s_add_u32 s29, s29, 0x8000
s_nop 4
v_mov_b32 v{T}, s100
buffer_store_dword v{T}, v{ZR}, s[12:15], s29 offen
s_add_u32 s29, s29, 0x8000
s_nop 4
v_mov_b32 v{T}, s4
v_mov_b32 v{T+1}, s6
v_mov_b32 v{T+2}, s8
v_mov_b32 v{T+3}, s10
buffer_store_dwordx4 v[{T}:{T+3}], v{ZR}, s[12:15], s29 offen
s_add_u32 s29, s29, 0x8000
s_nop 4
v_mov_b32 v{T}, s48
v_mov_b32 v{T+1}, s50
v_mov_b32 v{T+2}, s54
v_mov_b32 v{T+3}, s56
buffer_store_dwordx4 v[{T}:{T+3}], v{ZR}, s[12:15], s29 offen
s_mov_b64 exec, -1
s_nop 4
""")
if OPT["stamps"]:
    a(f"s_mov_b32 s77, s76\ns_cmp_eq_u32 s3, {OPT['fin']}\ns_cbranch_scc1 L_fin")
    wstamps()
    a("s_endpgm\nL_fin:")
else:
    a(f"s_cmp_lg_u32 s3, {OPT['fin']}\ns_cbranch_scc1 L_end")
a(f"""
s_mov_b32 s76, {SPIN}
s_movk_i32 s23, {OPT['na']}
""")
srd(60, P_OUT, 8192)
A3 = KF + 8; FB = KF + 12
def red(d, s0):
    for r in range(4): a(f"v_add_f32 v{d+r}, v{s0+r}, v{s0+4+r}")
    a(f"""
v_permlane32_swap_b32 v{d}, v{d+2}
v_permlane32_swap_b32 v{d+1}, v{d+3}
v_add_f32 v{d}, v{d}, v{d+2}
v_add_f32 v{d+1}, v{d+1}, v{d+3}
v_permlane16_swap_b32 v{d}, v{d+1}
v_add_f32 v{d}, v{d}, v{d+1}
v_add_f32_dpp v{d}, v{d}, v{d} row_ror:8 row_mask:0xf bank_mask:0xf
v_add_f32_dpp v{d}, v{d}, v{d} row_ror:4 row_mask:0xf bank_mask:0xf
""")
def gate(d, g):
    a(f"""
v_cvt_pk_bf16_f32 v{d}, v{d}, v{d}
v_lshlrev_b32 v{d}, 16, v{d}
v_mul_f32 v{d}, v{g}, v{d}
v_cvt_pk_bf16_f32 v{d}, v{d}, v{d}
v_lshlrev_b32 v{d}, 16, v{d}
""")
def far(regs):
    if OPT["xm"]:
        a("s_sub_u32 s76, s76, 1"); return
    a(f"s_sub_u32 s23, s23, 1\ns_cselect_b32 s25, {CPB-CPA}, 0")
    for r in regs: a(f"s_add_u32 s{r}, s{r}, s25")
    a("s_sub_u32 s76, s76, 1")
if OPT["bdel"]:
    backoff(OPT["bdel"]); bpoll()
a.label("L_bchk")
a("s_mov_b64 exec, -1")
far([66, 98] if OPT["bpa"] else [66])
a("s_waitcnt vmcnt(0)")
tag_chk([BB, BB+4], TT)
a(f"""
s_cbranch_vccz L_bdone
s_cmp_eq_u32 s76, 0
s_cbranch_scc1 L_bdone
s_mov_b64 exec, vcc
s_sleep {OPT['bsl']}
""")
bpoll()
a("s_branch L_bchk")
a.label("L_bdone")
def fine4(k):
    if OPT["fine"] == 4: a(f"s_memrealtime s[{[4,6,8,10,48,50,54,56][k]}:{[4,6,8,10,48,50,54,56][k]+1}]")
fine4(0)
red(FB, BB); gate(FB, GV+1)
fine4(1)
if OPT["fine"] == 4: a("s_mov_b32 s8, 0")
if OPT["asl0"]: a(f"s_sleep {OPT['asl0']}")
a.label("L_apoll")
for k in range(2):
    a(f"buffer_load_dwordx4 v[{AA+4*k}:{AA+4*k+3}], v{X+13}, s[12:15], s66 offen offset:{2048*k} sc1")
a("s_mov_b64 exec, -1")
far([66])
a("s_waitcnt vmcnt(0)")
if OPT["fine"] == 4: a("s_cmp_lg_u32 s8, 0\ns_cbranch_scc1 L_fx\ns_memrealtime s[8:9]\ns_waitcnt lgkmcnt(0)\nL_fx:")
tag_chk([AA, AA+4], TT)
a(f"""
s_cbranch_vccz L_adone
s_mov_b64 exec, vcc
{"s_sleep %d" % OPT["aslp"] if OPT["aslp"] else ""}
s_cmp_lg_u32 s76, 0
s_cbranch_scc1 L_apoll
s_mov_b64 exec, -1
""")
a.label("L_adone")
fine4(3)
red(A3, AA); gate(A3, GV)
a(f"""
v_add_f32 v{A3}, v{A3}, v{FB}
v_cvt_pk_bf16_f32 v{A3}, v{A3}, v{A3}
""")
a(f"""
s_mov_b32 exec_lo, 0x000f000f
s_mov_b32 exec_hi, 0x000f000f
buffer_store_short v{A3}, v{X+23}, s[60:63], s99 offen
s_mov_b64 exec, -1
""")
if OPT["stamps"]:
    stamp(6)
    wstamps()
    a(f"s_lshl_b32 s29, s16, 6\ns_add_u32 s29, s29, {STAMP}\ns_waitcnt lgkmcnt(0)")
    for k in range(7):
        a(f"v_mov_b32 v{T}, s{80+2*k}\nv_mov_b32 v{T+1}, s{81+2*k}\nbuffer_store_dwordx2 v[{T}:{T+1}], v{ZR}, s[12:15], s29 offen offset:{8*k}\ns_nop 1")
    a(f"v_mov_b32 v{T}, s76\nbuffer_store_dword v{T}, v{ZR}, s[12:15], s29 offen offset:56")
a("s_endpgm")
a.label("L_prep")
a(f"""
s_sub_u32 s76, s76, {256 if OPT["stamps"] else 1}
s_cmp_le_i32 s76, 0
s_cbranch_scc1 L_pdone
s_mov_b64 exec, vcc
""")
for k in range(4):
    a(f"buffer_load_dwordx4 v[{PA+4*k}:{PA+4*k+3}], v{X+7}, s[12:15], s74 offen offset:{1024*k} sc1")
a("s_branch L_pchk")
a.label("L_end")
a("s_endpgm")
a.L += ['.section .rodata,"a"', ".p2align 6", f".amdhsa_kernel {NAME}_kernel",
        "  .amdhsa_next_free_vgpr 168", "  .amdhsa_next_free_sgpr 102", "  .amdhsa_accum_offset 168",
        "  .amdhsa_group_segment_fixed_size 0", "  .amdhsa_kernarg_size 104", "  .amdhsa_user_sgpr_count 2",
        "  .amdhsa_user_sgpr_kernarg_segment_ptr 1", "  .amdhsa_system_sgpr_workgroup_id_x 1", ".end_amdhsa_kernel"]
txt, n = a.text()
open(out, "w").write(txt)
print(f"wrote {out}: {len(txt.splitlines())} lines, {n} nops inserted", file=sys.stderr)
```

```python
import sys, struct
from asmlib import Asm
out = sys.argv[1]
OPT = dict(stamps=0, Wp=8, npre=4, hdr=1, stag=10, hslp=32, qslp=8, nse=20, lead=8, t1=448, t2=384, dslp=2,
           np2=1, np3=2, flit=3, slowp=8, bprio=3, maxf=4, tcha=0, tchb=0, asl=36, tpol=1, wqnt=1, ffnt=1, hd=200, qd=64, prew=0, coal=1, pgate=0, bpat=2, slowth=16, fastp=0, bsl=1, adel=90, perm=0, gx=0, noff=252, sperm=4, eager=1024, f1=0, f2=0, f1slp=2, f2slp=1, f2del=0, fmax=4096, f3=0, rsh=2, fdel=170, f3slp=4, lead2=8, t3=420, fw=1, aat=0, aslp=0, apol=1, na=160, xrot=0, asl0=0, bpa=1, fin=4, nob=0, tb=1, prw=0, fine=0, inc=1, f1th=0, f1sl2=16, hbn=0, fo=0, fst=64, fpol=2, fone=4, nopart=0, noa=0, bdel=0, fful=0, mlate=1, fgo=0, px4=1, xm=1, xforce=0, bpe=3, tcw=0, tc0=0, lay=0, tcd=0, col=1, kill=1, t4=400, kill2=0, t5=460, lead3=8, kill0=1, k0at=0, rot=0, r1=0, r2=256, swm=0, ms=-1, mc=0, mr=0, vo=0, numa=0, late=1, tb1=440, tslp=4, lb=2, skip=0, tp=0, tk=0, leadk=12, leadf=6, tf=448, kv=10, cap1=84, nst=5, jit=0, tk2=400, tr=0, tsh=0, il=0, wdel=0)
for a_ in sys.argv[2:]:
    k, v = a_.split("="); assert k in OPT, k; OPT[k] = int(v)
if OPT["r1"] or OPT["r2"]: OPT["rot"] = -1
Wp = OPT["Wp"]; NPRE = OPT["npre"]
NAME = "gated_mix__gqa_block_cached__geglu_ffn__decode"
def f32(x): return "0x%08x" % struct.unpack("<I", struct.pack("<f", x))[0]
LOG2E = 1.4426950408889634
SCALE = 128 ** -0.5
QG, HG, ML, BP, PART, AP, STAMP, CNT = 0x0, 0x20000, 0x40000, 0x80000, 0x100000, 0x200000, 0x400000, 0x480000
F1, F2 = 0x60000, 0x70000
FG, CPA, CPB = 0x40000, 0x200000, 0x300000
if OPT['lay']:
    CNT, CPA, PART = 0x80000, 0x100000, 0x200000
OST = 272
XID = 0x60000
CST = 528
CSTR = 4096 + 256
WS_BYTES = 0x500000
FST = OPT['fst']
if OPT['fful']:
    FG = 0x500000; WS_BYTES = FG + 2048*OPT['fful']
elif FST > 64:
    FG = 0x500000; WS_BYTES = FG + 2048*FST
R1 = 0x20000
WO_LDS = R1
R2 = 0x24000
Q_LDS = R2
MISC = R2 + 0x800
MLT = MISC + 0x100
O_LDS = R2 + 0x1000
CH = R2 + 0x1400
WD_LDS = R2 + 0x2000
LDS_BYTES = 0x28000
NU = 1024
NSE = OPT["nse"]; LEAD = OPT["lead"]
TK = MISC + 128
K0 = OPT["kill0"]
NUMA = 0
RING = 12288
SB = 8*RING
NSLOT = 192
SENT = 0x7F817F81
T1B = CH; T2B = CH + 1024
VB = 0x8000
KN = OPT["kill"]; KV = OPT["kv"]
NST = OPT["nst"]; NSU = 3 + NST
SE = 4*NSU
assert KV <= SE + NSE and SE + NSE <= 63
K0TXT = f"""
v_subrev_u32 v5, {K0*0x10001}, v4
v_cmp_le_u32 vcc, {OPT['k0at']}, v0
v_mov_b32 v6, 512
v_cndmask_b32 v4, v4, v6, vcc
v_cmp_le_u32 vcc, {OPT['k0at'] + K0}, v0
v_cndmask_b32 v4, v4, v5, vcc
""" if K0 else ""
CBASE = 8
DYN0 = 8*SE + 8*NSE
SPIN = 1 << 16
a = Asm()
hdr = open("cdna_kernels/%s.s.ref" % NAME).read().split("; Override launch")[0] if OPT["hdr"] else ""
a.L += [l for l in hdr.rstrip().split("\n")] if hdr else []
a.L.append(f"; @launch grid=(256,1,1) block=(640,1,1) lds={LDS_BYTES}")
a.L += ['.amdgcn_target "amdgcn-amd-amdhsa--gfx950"', ".text", f".globl {NAME}_kernel", ".p2align 8",
        f".type {NAME}_kernel,@function", f"{NAME}_kernel:"]

def srd(d, ptr, nbytes):
    a(f"s_mov_b32 s{d}, s{ptr}\ns_mov_b32 s{d+1}, s{ptr+1}\ns_mov_b32 s{d+2}, {hex(nbytes)}\ns_mov_b32 s{d+3}, 0x00020000")
P_X, P_K, P_V, P_WQ, P_WO, P_BX, P_WG, P_WU, P_WD, P_GW, P_OUT, P_DBG, P_WS = [32 + 2*i for i in range(13)]
def stamp(idx):
    if OPT["stamps"]:
        a(f"s_memrealtime s[{80+2*idx}:{81+2*idx}]")
def any_eq(regs, val, neg=False):
    op = "v_cmp_ne_u32" if neg else "v_cmp_eq_u32"
    a(f"{op} vcc, {val}, v{regs[0]}")
    for r in regs[1:]:
        a(f"{op} s[78:79], {val}, v{r}\ns_or_b64 vcc, vcc, s[78:79]")
def spin_tail(loop, done, sleep=0):
    a(f"""
s_sub_u32 s76, s76, 1
s_cmp_eq_u32 s76, 0
s_cbranch_scc1 {done}
""")
    if sleep:
        a(f"s_cmp_eq_u64 vcc, 0\ns_cbranch_scc1 {done}\ns_sleep {sleep}\ns_branch {loop}")
    else:
        a(f"s_cmp_lg_u64 vcc, 0\ns_cbranch_scc1 {loop}")
    a.label(done)
def xsum(regs, tmps, ror, op="v_add_f32", swaps=("v_permlane16_swap_b32", "v_permlane32_swap_b32")):
    for k in ror:
        for r in regs: a(f"{op}_dpp v{r}, v{r}, v{r} row_ror:{k} row_mask:0xf bank_mask:0xf")
    for sw in swaps:
        for r, t in zip(regs, tmps): a(f"v_mov_b32 v{t}, v{r}")
        for r, t in zip(regs, tmps): a(f"{sw} v{r}, v{t}")
        for r, t in zip(regs, tmps): a(f"{op} v{r}, v{r}, v{t}")
SEL = 42
def tag_consts(base):
    for j in range(4): a(f"s_mov_b32 s{base+j}, {hex(0x07060500 | j)}")
    a(f"s_mov_b32 s{base+4}, 0x0c0c0400\ns_mov_b32 s{base+5}, 0x04000c0c")
def tag_ins(r, vn, base):
    for j in range(4): a(f"v_perm_b32 v{r+j}, v{r+j}, v{vn}, s{base+j}")
def tag_bad(grans, vn, base, acc, t0, t1):
    for n_, r in enumerate(grans):
        a(f"v_perm_b32 v{t0}, v{r+1}, v{r}, s{base+4}\nv_perm_b32 v{t1}, v{r+3}, v{r+2}, s{base+5}")
        if n_ == 0:
            a(f"v_or_b32 v{acc}, v{t0}, v{t1}\nv_xor_b32 v{acc}, v{acc}, v{vn}")
        else:
            a(f"v_or_b32 v{t0}, v{t0}, v{t1}\nv_xor_b32 v{t0}, v{t0}, v{vn}\nv_or_b32 v{acc}, v{acc}, v{t0}")
def hstamps(first, n):
    if OPT["stamps"]:
        a(f"s_mov_b64 exec, -1\ns_lshl_b32 s29, s16, 7\ns_add_u32 s29, s29, {STAMP+0x8000+8*first}\ns_waitcnt lgkmcnt(0)\nv_mov_b32 v3, 0")
        for k in range(n):
            a(f"v_mov_b32 v4, s{80+2*k}\nv_mov_b32 v5, s{81+2*k}\nbuffer_store_dwordx2 v[4:5], v3, s[12:15], s29 offen offset:{8*k}\ns_nop 1")

def trn(d):
    tr = OPT["tr"]; ts = 3 + OPT["tsh"]
    if not tr: return ""
    return f"""
s_and_b32 s100, {d}, {(1 << tr) - 1}
s_lshl_b32 s100, s100, {ts}
s_bfe_u32 s101, {d}, {hex((ts << 16) | tr)}
s_andn2_b32 {d}, {d}, {(1 << (tr+ts)) - 1}
s_or_b32 {d}, {d}, s100
s_or_b32 {d}, {d}, s101
"""
def backoff(n):
    while n > 0:
        a(f"s_sleep {min(n, 127)}"); n -= 127
def touch():
    a(f"""
s_mov_b64 exec, 0xffff
v_lshlrev_b32 v9, 7, v0
s_lshl_b32 s25, s17, 17
s_lshr_b32 s26, s18, 1
s_lshl_b32 s26, s26, 13
s_add_u32 s25, s25, s26
s_and_b32 s26, s18, 1
s_lshl_b32 s26, s26, 11
s_add_u32 s25, s25, s26
s_add_u32 s25, s25, {CPA}
buffer_load_dword v16, v9, s[12:15], s25 offen {['', 'sc1', 'nt'][OPT['tpol']]}
""")

XROT = "s_mov_b32 s16, s2" if not OPT["xrot"] else f"""
s_lshr_b32 s18, s2, 3
s_mul_i32 s17, s18, {OPT['xrot']}
s_add_u32 s17, s17, s2
s_and_b32 s17, s17, 7
s_andn2_b32 s16, s2, 7
s_or_b32 s16, s16, s17
"""
a("""
s_cmp_ge_u32 s2, 256
s_cbranch_scc1 L_end
s_load_dwordx16 s[32:47], s[0:1], 0
s_load_dwordx8 s[48:55], s[0:1], 64
s_load_dwordx2 s[56:57], s[0:1], 96
""")
stamp(0)
a(f"""
v_lshrrev_b32 v1, 6, v0
v_and_b32 v0, 63, v0
s_and_b32 s17, s2, 7
v_readfirstlane_b32 s3, v1
{XROT}
s_lshr_b32 s18, s16, 3
s_and_b32 s19, s18, 7
s_lshr_b32 s20, s18, 3
s_xor_b32 s20, s20, {OPT['gx']}
s_cmp_lt_u32 s3, 8
s_cbranch_scc1 L_stream
v_and_b32 v10, 15, v0
v_lshrrev_b32 v11, 4, v0
v_lshlrev_b32 v2, 4, v11
v_lshl_add_u32 v2, v10, 10, v2
v_lshrrev_b32 v3, 1, v0
v_and_b32 v4, 1, v0
v_lshlrev_b32 v4, 4, v4
v_mov_b32 v13, 0
s_cmp_eq_u32 s3, 9
s_cbranch_scc1 L_hb
""")
AFR = 16; D0 = 48; WDV = 64; GX = 16; GW = 32; XF = 100; GG = 164; VN = 166; CP = 60
def frag_addr():
    a(f"""
v_lshrrev_b32 v8, 2, v10
v_lshl_add_u32 v8, v11, 3, v8
v_lshlrev_b32 v9, 5, v8
v_and_b32 v8, 3, v0
v_lshl_add_u32 v9, v8, 3, v9
v_add_u32 v9, {R1}, v9
v_cmp_gt_u32 s[58:59], 8, v10
v_bfe_u32 v{CP+1}, v0, 2, 3
v_and_b32 v{CP+2}, 3, v0
v_lshl_add_u32 v{CP}, v{CP+2}, 4, v{CP+1}
v_lshlrev_b32 v{CP}, 2, v{CP}
""")
def gemv(va, Dr):
    def rd(bt):
        base = AFR + 16*(bt & 1)
        for k in range(4):
            t = 4*bt + k
            a(f"ds_read_b64_tr_b16 v[{base+4*k}:{base+4*k+1}], v{va} offset:{1024*t}")
            a(f"ds_read_b64_tr_b16 v[{base+4*k+2}:{base+4*k+3}], v{va} offset:{1024*t+128}")
    rd(0)
    for bt in range(4):
        if bt < 3:
            rd(bt+1); a("s_waitcnt lgkmcnt(8)")
        else:
            a("s_waitcnt lgkmcnt(0)")
        base = AFR + 16*(bt & 1)
        for k in range(4):
            t = 4*bt + k
            c = "0" if t == 0 else f"v[{Dr}:{Dr+3}]"
            a(f"v_mfma_f32_16x16x32_bf16 v[{Dr}:{Dr+3}], v[{base+4*k}:{base+4*k+3}], v[{XF+4*t}:{XF+4*t+3}], {c}")
a(f"""
s_setprio 3
s_memrealtime s[74:75]
s_mul_i32 s21, s17, {OPT['sperm']}
s_add_u32 s21, s21, s18
s_and_b32 s21, s21, 31
s_lshl_b32 s25, s17, 5
s_add_u32 s21, s21, s25
v_lshl_add_u32 v1, v3, 13, v4
s_lshl_b32 s25, s21, 5
v_add_u32 v1, s25, v1
s_mov_b64 s[72:73], 1
v_mov_b32 v15, {OPT['noff']}
v_lshlrev_b32 v3, 4, v0
s_waitcnt lgkmcnt(0)
""")
stamp(8)
srd(68, P_DBG, 256)
a(f"""
s_cmp_ge_u32 s16, 8
s_cbranch_scc1 L_nononce
s_or_b32 s74, s74, 1
v_mov_b32 v12, s74
s_mov_b64 exec, s[72:73]
buffer_atomic_cmpswap v[12:13], v15, s[68:71], 0 offen sc1
s_mov_b64 exec, -1
""")
a.label("L_nononce")
srd(60, P_WQ, 512*4096*2); srd(64, P_X, 8192)
a("s_mov_b32 s25, 0")
for t in range(16):
    a(f"s_mov_b32 m0, {R1 + 1024*t}")
    if t and not OPT["skip"] & 8: a(f"s_mov_b32 s25, {t*32*8192}")
    a(f"buffer_load_dwordx4 v1, s[60:63], s25 offen {'nt ' if OPT['wqnt'] else ''}lds")
for s_ in range(16):
    a(f"buffer_load_dwordx4 v[{XF+4*s_}:{XF+4*s_+3}], v2, s[64:67], 0 offen offset:{64*s_}")
srd(12, P_WS, WS_BYTES)
CNTA = f"""s_mul_i32 s77, s18, {CSTR}
s_add_u32 s77, s77, {CNT}
s_cmp_lg_u32 s17, 0""" if not NUMA else f"""s_lshr_b32 s75, s17, 2
s_lshl_b32 s77, s18, 1
s_add_u32 s77, s77, s75
s_mul_i32 s77, s77, {CSTR}
s_add_u32 s77, s77, {CNT}
s_xor_b32 s75, s75, s19
s_xor_b32 s75, s75, {NUMA-1}
s_and_b32 s75, s75, 1
s_and_b32 s25, s17, 3"""
STAT = f"""
ds_write_b64 v2, v[4:5] offset:144
v_lshl_add_u32 v35, v0, 16, v0
s_mul_i32 s25, s17, {NSE}
s_add_u32 s26, s25, {8*SE - SE + VB}
v_add_u32 v4, s26, v35
v_lshrrev_b32 v5, 2, v0
v_mul_u32_u24 v5, 28, v5
s_lshl_b32 s26, s17, 2
s_add_u32 s26, s26, {VB}
v_add3_u32 v5, v5, s26, v35
v_cmp_gt_u32 vcc, {64 if OPT["il"] else SE}, v0
v_cndmask_b32 v4, v4, v5, vcc
v_lshlrev_b32 v1, 2, v0
v_add_u32 v5, {4*KN}, v1
v_cmp_gt_u32 vcc, {KV}, v0
v_cndmask_b32 v5, v5, v1, vcc
v_add_u32 v5, {T2B}, v5
s_bfm_b64 exec, {SE + NSE}, 0
ds_write_b32 v5, v4
""" + (f"""
v_mov_b32 v4, 512
v_add_u32 v5, {T2B + 4*KV}, v1
s_mov_b64 exec, {(1 << KN) - 1}
ds_write_b32 v5, v4
""" if KN else "") + f"""
s_mov_b64 exec, -1
s_add_u32 s25, s25, {8*SE + (SE << 16)}
v_add_u32 v4, s25, v35
""" + (f"""
v_subrev_u32 v6, {K0}, v0
v_cmp_gt_u32 vcc, {OPT['k0at'] + K0}, v0
v_cndmask_b32 v6, v6, v0, vcc
v_lshrrev_b32 v6, 2, v6
v_mul_u32_u24 v6, 28, v6
s_add_u32 s26, s26, {8*SE + (SE << 16) - VB}
v_add3_u32 v4, v6, s26, v35
""" if OPT["il"] else "")
QCH = f"""s_lshl_b32 s27, s18, 6""" if not NUMA else f"""s_and_b32 s27, s17, 4
s_mul_i32 s28, s27, {OPT['sperm']}
s_add_u32 s28, s28, s18
s_and_b32 s28, s28, 31
s_lshl_b32 s27, s27, 5
s_add_u32 s27, s27, s28
s_lshl_b32 s27, s27, 6"""
a(f"""
{CNTA}
s_cbranch_scc1 L_nocnt
v_mov_b32 v14, {CBASE}
s_mov_b64 exec, s[72:73]
buffer_store_dword v14, v13, s[12:15], s77 offen sc1
s_mov_b64 exec, -1
""")
a.label("L_nocnt")
a(f"""
buffer_load_dword v12, v15, s[68:71], 0 offen sc1
v_mov_b32 v4, -1
v_mov_b32 v5, -1
v_mov_b32 v6, -1
v_mov_b32 v7, -1
v_add_u32 v1, {CH}, v3
ds_write_b128 v1, v[4:7]
ds_write_b128 v1, v[4:7] offset:1024
ds_write_b128 v1, v[4:7] offset:2048
v_mov_b32 v2, {MISC}
v_mov_b32 v4, 0
v_mov_b32 v5, 0
v_mov_b32 v6, 0
v_mov_b32 v7, 0
ds_write_b128 v2, v[4:7] offset:128
{STAT}
v_lshlrev_b32 v1, 2, v0
v_add_u32 v1, {CH}, v1
{K0TXT}
v_cmp_gt_u32 vcc, {NSE + K0}, v0
s_mov_b64 exec, vcc
ds_write_b32 v1, v4
s_mov_b64 exec, -1
""")
frag_addr()
a(f"s_mov_b32 s76, {SPIN}\ns_waitcnt lgkmcnt(0)")
stamp(7)
a("s_barrier")
stamp(1)
a("s_waitcnt vmcnt(0)")
a.label("L_np")
a(f"""
v_readfirstlane_b32 s74, v12
s_sub_u32 s76, s76, 1
s_cmp_eq_u32 s76, 0
s_cbranch_scc1 L_np_done
s_cmp_lg_u32 s74, 0
s_cbranch_scc1 L_np_done
buffer_load_dword v12, v15, s[68:71], 0 offen sc1
s_waitcnt vmcnt(0)
s_branch L_np
""")
a.label("L_np_done")
stamp(2)
gemv(9, D0)
a(f"""
v_mov_b32 v5, s74
v_mov_b32 v7, s74
v_mov_b32 v8, 1
ds_write_b32 v2, v5 offset:96
ds_write_b32 v2, v8 offset:136
s_lshl_b32 s25, s21, 6
s_add_u32 s25, s25, {QG}
v_cvt_pk_bf16_f32 v4, v{D0}, v{D0+1}
v_cvt_pk_bf16_f32 v6, v{D0+2}, v{D0+3}
""")
if OPT["coal"]:
    a(f"""
ds_bpermute_b32 v4, v{CP}, v4
ds_bpermute_b32 v6, v{CP}, v6
v_lshlrev_b32 v14, 4, v{CP+2}
v_lshl_add_u32 v14, v{CP+1}, 14, v14
s_mov_b32 exec_hi, 0
s_waitcnt lgkmcnt(0)
""")
else:
    a(f"""
v_lshlrev_b32 v14, 4, v11
v_lshl_add_u32 v14, v10, 14, v14
s_mov_b64 exec, s[58:59]
""")
a(f"""
buffer_store_dwordx4 v[4:7], v14, s[12:15], s25 offen sc1
s_mov_b64 exec, -1
""")
stamp(3)
a(f"""
s_lshl_b32 s25, s20, 15
s_lshl_b32 s26, s19, 11
s_add_u32 s25, s25, s26
s_add_u32 s25, s25, {QG}
s_add_u32 s26, s25, 16384
{QCH}
s_add_u32 s27, s27, {QG}
s_mov_b32 s76, {SPIN}
""")
backoff(OPT["qd"])
a.label("L_qpoll")
a(f"""
buffer_load_dwordx4 v[16:19], v3, s[12:15], s25 offen sc1
buffer_load_dwordx4 v[20:23], v3, s[12:15], s25 offen offset:1024 sc1
buffer_load_dwordx4 v[24:27], v3, s[12:15], s26 offen sc1
buffer_load_dwordx4 v[28:31], v3, s[12:15], s26 offen offset:1024 sc1
buffer_load_dwordx4 v[32:35], v13, s[12:15], s27 offen sc1
s_waitcnt vmcnt(0)
""")
any_eq(list(range(17, 36, 2)), "s74", neg=True)
spin_tail("L_qpoll", "L_qdone", sleep=OPT["qslp"])
stamp(4)
a(f"""
v_mov_b32 v17, v18
v_mov_b32 v21, v22
v_mov_b32 v25, v26
v_mov_b32 v29, v30
v_lshlrev_b32 v1, 3, v0
v_add_u32 v1, {Q_LDS}, v1
ds_write_b64 v1, v[16:17]
ds_write_b64 v1, v[20:21] offset:512
ds_write_b64 v1, v[24:25] offset:1024
ds_write_b64 v1, v[28:29] offset:1536
s_waitcnt lgkmcnt(0)
ds_write_b32 v2, v8 offset:132
""")
stamp(5)
a(f"""
s_mov_b32 s21, {NSE + K0}
s_mov_b32 s22, {NSE + K0}
s_mov_b32 s20, {SE + NSE}
s_mov_b32 s19, {SE + NSE}
s_mov_b32 s23, 0
s_mov_b32 s24, 0
s_mov_b32 s26, 0
s_mov_b32 s27, 0
s_mov_b32 s28, 0
s_mov_b32 s29, {0 if OPT['tk'] else 1}
v_mov_b32 v4, 0
v_lshl_add_u32 v5, v0, 16, v0
s_mov_b32 s76, {SPIN*64}
""")
FST1 = """s_cmp_lg_u32 s60, 0
s_cbranch_scc1 L_fs1
s_mov_b32 s60, 1
s_memrealtime s[82:83]
L_fs1:"""
def disp(p):
    tb = (T1B, T2B)[p]
    a(f"""
L_disp{p}:
s_mov_b64 exec, 1
ds_read_b32 v6, v2 offset:{(128, 144)[p]}
s_sub_u32 s76, s76, 1
s_cmp_le_i32 s76, 0
s_cbranch_scc1 L_dexh{p}
s_cmp_eq_u32 s24, 0
s_cbranch_scc1 L_noc{p}
v_readlane_b32 s25, v4, s27
s_cmp_lt_u32 s25, {CBASE}
s_cbranch_scc1 L_noc{p}
s_and_b32 s30, s23, 15
s_lshr_b32 s23, s23, 4
s_sub_u32 s24, s24, 1
s_add_u32 s27, s27, 1
s_and_b32 s27, s27, 7
s_add_u32 s25, s25, {DYN0 - CBASE}
s_add_u32 s28, s25, s30
s_sub_i32 s31, 512, s25
s_max_i32 s31, s31, 0
s_min_i32 s31, s31, s30
s_cmp_ge_u32 s28, {(OPT['tk'], 512)[p]}
s_cselect_b32 s29, 1, s29
s_cmp_eq_u32 s31, 0
s_cbranch_scc1 L_noc{p}
s_bfm_b64 exec, s31, 0
s_lshl_b32 s30, s20, 16
s_add_u32 s25, s25, s30
v_add_u32 v7, s25, v5
s_lshl_b32 s25, s22, 2
s_add_u32 s25, s25, {tb}
v_lshl_add_u32 v8, v0, 2, s25
ds_write_b32 v8, v7
s_add_u32 s22, s22, s31
s_lshl_b32 s25, {('s20', 's22')[p]}, 2
s_add_u32 s25, s25, {(T2B + 4*KN, T2B)[p]}
v_or_b32 v9, {VB}, v7
v_lshl_add_u32 v14, v0, 2, s25
ds_write_b32 v14, v9
s_add_u32 s20, s20, s31
{('', 's_add_u32 s22, s22, s31')[p]}
L_noc{p}:
s_cmp_lg_u32 s29, 0
s_cbranch_scc1 L_exh{p}
s_cmp_ge_u32 s24, {OPT['maxf']}
s_cbranch_scc1 L_dslp{p}
s_waitcnt lgkmcnt(0)
v_readfirstlane_b32 s25, v6
s_lshl_b32 s30, s21, 1
s_add_u32 s25, s25, {(OPT['leadk'], OPT['leadf'])[p]}
s_cmp_ge_u32 s30, s25
s_cbranch_scc1 L_dslp{p}
s_cmp_ge_u32 s28, {(OPT['tk2'], OPT['tf'])[p]}
s_cselect_b32 s30, {(2, 1)[p]}, {(4, 2)[p]}
s_add_u32 s25, s19, s30
s_cmp_gt_u32 s25, {(OPT['cap1'], NSLOT//2)[p]}
s_cselect_b32 s29, 1, 0
s_cbranch_scc1 L_exh{p}
s_mov_b32 s19, s25
{FST1 if p and OPT["stamps"] else ""}
s_lshl_b64 exec, 1, s26
v_mov_b32 v4, s30
buffer_atomic_add v4, v13, s[12:15], s77 offen sc0 sc1
s_lshl_b32 s25, s24, 2
s_lshl_b32 s25, s30, s25
s_or_b32 s23, s23, s25
s_add_u32 s24, s24, 1
s_add_u32 s21, s21, s30
{('', 's_add_u32 s21, s21, s30')[p]}
s_add_u32 s26, s26, 1
s_and_b32 s26, s26, 7
s_branch L_disp{p}
L_exh{p}:
s_cmp_eq_u32 s24, 0
s_cbranch_scc1 L_dexh{p}
L_dslp{p}:
s_sleep {OPT['dslp']}
s_branch L_disp{p}
L_dexh{p}:
s_mov_b64 exec, 0xff
s_lshl_b32 s25, s22, 2
s_add_u32 s25, s25, {tb}
v_lshl_add_u32 v8, v0, 2, s25
v_mov_b32 v7, {(513, 512)[p]}
ds_write_b32 v8, v7
""")
disp(0)
if OPT["stamps"]: stamp(7); a("s_mov_b32 s96, s20\ns_mov_b32 s60, 0")
a(f"""
s_add_u32 s21, s20, {KN}
s_mov_b32 s22, s21
s_cmp_ge_u32 s28, 512
s_cselect_b32 s29, 1, 0
""")
disp(1)
if OPT["stamps"]: a("s_mov_b32 s97, s20")
stamp(6)
if OPT["tcha"]: touch()
hstamps(0, 9)
a("s_waitcnt lgkmcnt(0)\ns_endpgm")

a.label("L_hb")
if OPT["bprio"]: a(f"s_setprio {OPT['bprio']}")
a(f"""
s_min_u32 s22, s18, 27
s_lshr_b32 s22, s22, 1
s_mul_i32 s25, s17, 14
s_add_u32 s22, s22, s25
s_and_b32 s23, s18, 1
s_movk_i32 s25, 3584
v_mul_lo_u32 v5, v3, s25
v_add_u32 v5, v5, v4
s_lshl_b32 s25, s22, 5
v_add_u32 v5, s25, v5
v_lshrrev_b32 v6, 3, v0
v_and_b32 v7, 7, v0
v_lshlrev_b32 v7, 4, v7
v_lshl_add_u32 v6, v6, 10, v7
v_lshlrev_b32 v3, 4, v0
""")
frag_addr()
a(f"""
v_mov_b32 v16, 0
v_mov_b32 v17, 0
v_mov_b32 v18, 0
v_mov_b32 v19, 0
v_add_u32 v1, {WD_LDS}, v3
ds_write_b128 v1, v[16:19] offset:7168
v_mov_b32 v15, {MISC}
s_waitcnt lgkmcnt(0)
""")
srd(64, P_X, 8192); srd(12, P_WS, WS_BYTES); srd(4, P_WD, 1792*512*2); srd(8, P_GW, 1024); srd(60, P_WO, 4096*512*2)
a(f"""
s_cmp_eq_u32 s23, 0
s_cselect_b32 s68, s{P_WG}, s{P_WU}
s_cselect_b32 s69, s{P_WG+1}, s{P_WU+1}
s_mov_b32 s70, {512*1792*2}
s_mov_b32 s71, 0x00020000
s_lshl_b32 s27, s17, 7
s_mul_i32 s26, s18, {56*1024}
s_add_u32 s26, s26, s27
s_and_b32 s25, s18, 1
s_lshl_b32 s25, s25, 12
v_lshrrev_b32 v12, 2, v0
v_lshlrev_b32 v12, 6, v12
v_and_b32 v7, 3, v0
v_lshl_add_u32 v7, v7, 10, v12
""")
def touch0():
    a(f"""
v_lshlrev_b32 v92, 7, v0
s_lshl_b32 s28, s17, 17
s_lshr_b32 s29, s18, 1
s_lshl_b32 s29, s29, 13
s_add_u32 s28, s28, s29
s_and_b32 s29, s18, 1
s_lshl_b32 s29, s29, {11 if OPT["tc0"] == 1 else 12}
s_add_u32 s28, s28, s29
s_add_u32 s28, s28, {CPA}
s_mov_b64 exec, {"0xffff" if OPT["tc0"] == 1 else "0xffffffff"}
buffer_load_dword v93, v92, s[12:15], s28 offen {['', 'sc1', 'nt'][OPT['tpol']]}
s_mov_b64 exec, -1
""")
if OPT["tc0"] and not OPT["tcd"]: touch0()
a("s_barrier")
for s_ in range(16):
    a(f"buffer_load_dwordx4 v[{XF+4*s_}:{XF+4*s_+3}], v2, s[64:67], 0 offen offset:{64*s_}")
LATE = OPT["late"]
if LATE & 2: a("s_mov_b32 s72, s26")
for t in range(0 if LATE & 2 or OPT["skip"] & 2 else 7):
    a(f"buffer_load_dwordx4 v[{WDV+4*t}:{WDV+4*t+3}], v6, s[4:7], s26 offen nt")
    if t < 6: a("s_add_u32 s26, s26, 8192")
a(f"""
s_mov_b32 s76, {SPIN*16}
""")
for k in range(4):
    a(f"buffer_load_dwordx4 v[{GX+4*k}:{GX+4*k+3}], v7, s[64:67], s25 offen offset:{16*k}")
    a(f"buffer_load_dwordx4 v[{GW+4*k}:{GW+4*k+3}], v12, s[8:11], 0 offen offset:{16*k}")
a.label("L_r1w")
a(f"""
ds_read_b32 v8, v15 offset:136
s_waitcnt lgkmcnt(0)
v_cmp_eq_u32 vcc, 0, v8
""")
spin_tail("L_r1w", "L_r1done", sleep=2)
stamp(1)
a(f"""
ds_read_b32 v{VN}, v15 offset:96
s_mov_b32 s25, 0
""")
for t in range(16):
    a(f"s_mov_b32 m0, {R1 + 1024*t}")
    if t and not OPT["skip"] & 4: a(f"s_mov_b32 s25, {t*32*3584}")
    a(f"buffer_load_dwordx4 v5, s[68:71], s25 offen {'nt ' if OPT['ffnt'] else ''}lds")
a(f"""
s_lshl_b32 s25, s22, 2
v_add_u32 v13, s25, v{CP+2 if OPT["coal"] else 11}
s_movk_i32 s25, 4682
v_mul_u32_u24 v14, s25, v13
v_lshrrev_b32 v14, 16, v14
v_mul_u32_u24 v12, 14, v14
v_sub_u32 v13, v13, v12
v_lshlrev_b32 v13, 4, v13
v_lshl_add_u32 v13, v14, 12, v13
v_lshl_add_u32 v13, v{CP+1 if OPT["coal"] else 10}, 8, v13
s_lshl_b32 s25, s23, 11
s_add_u32 s25, s25, {HG}
s_waitcnt vmcnt(16) lgkmcnt(0)
v_readfirstlane_b32 s74, v{VN}
v_mov_b32 v57, v{VN}
v_mov_b32 v59, v{VN}
""")
for t in range(0 if LATE & 2 else 7): a(f"ds_write_b128 v1, v[{WDV+4*t}:{WDV+4*t+3}] offset:{1024*t}")
for k in range(16):
    a(f"""
v_lshlrev_b32 v48, 16, v{GX+k}
v_and_b32 v49, 0xffff0000, v{GX+k}
v_lshlrev_b32 v50, 16, v{GW+k}
v_and_b32 v51, 0xffff0000, v{GW+k}
v_mul_f32 v48, v48, v50
v_mul_f32 v49, v49, v51
v_cvt_pk_bf16_f32 v48, v48, v49
v_and_b32 v49, 0xffff0000, v48
v_lshlrev_b32 v48, 16, v48
""")
    if k == 0: a("v_add_f32 v52, v48, v49")
    else: a("v_add_f32 v48, v48, v49\nv_add_f32 v52, v52, v48")
a("v_mov_b32 v24, v52")
xsum([24], [25], (8, 4))
a(f"""
v_cvt_pk_bf16_f32 v24, v24, v24
v_lshlrev_b32 v24, 16, v24
v_mul_f32 v24, {f32(-LOG2E)}, v24
v_exp_f32 v24, v24
v_add_f32 v24, 1.0, v24
v_rcp_f32 v24, v24
v_cvt_pk_bf16_f32 v24, v24, v24
v_lshlrev_b32 v{GG}, 16, v24
v_sub_f32 v25, 1.0, v{GG}
v_cvt_pk_bf16_f32 v25, v25, v25
v_lshlrev_b32 v{GG+1}, 16, v25
s_lshl_b32 s26, s18, 17
s_lshl_b32 s27, s17, 7
s_add_u32 s26, s26, s27
s_waitcnt vmcnt(0)
""")
D1 = 52
gemv(9, D1)
a(f"""
v_cvt_pk_bf16_f32 v56, v{D1}, v{D1+1}
v_cvt_pk_bf16_f32 v58, v{D1+2}, v{D1+3}
s_cmp_ge_u32 s18, 28
s_cbranch_scc1 L_nohpub
""")
if OPT["coal"]:
    a(f"""
ds_bpermute_b32 v56, v{CP}, v56
ds_bpermute_b32 v58, v{CP}, v58
s_mov_b32 exec_hi, 0
s_waitcnt lgkmcnt(0)
""")
else:
    a("s_mov_b64 exec, s[58:59]")
a(f"""
buffer_store_dwordx4 v[56:59], v13, s[12:15], s25 offen sc1
s_mov_b64 exec, -1
""")
a.label("L_nohpub")
if OPT["xm"]:
    a(f"""
s_getreg_b32 s31, hwreg(HW_REG_XCC_ID, 0, 4)
s_xor_b32 s31, s31, s74
s_lshl_b32 s29, s17, 8
s_add_u32 s29, s29, {XID}
s_lshl_b32 s27, s18, 3
s_add_u32 s27, s27, s29
v_mov_b32 v{VN+1}, s31
v_lshlrev_b32 v66, 3, v0
v_and_b32 v66, 0xff, v66
s_mov_b64 exec, 1
buffer_store_dwordx2 v[{VN}:{VN+1}], v66, s[12:15], s27 offen sc1
s_mov_b64 exec, -1
""")
stamp(2)
if OPT["tc0"] and OPT["tcd"] == 1:
    a("s_mov_b32 s30, s29"); touch0(); a("s_mov_b32 s29, s30")
def wo_dma(sr):
    for t in range(0 if OPT["skip"] & 1 else 16):
        a(f"s_mov_b32 m0, {WO_LDS + 1024*t}\ns_nop 0\nbuffer_load_dwordx4 v6, s[60:63], {sr} offen nt lds")
        if t < 15: a(f"s_add_u32 {sr}, {sr}, 8192")
if LATE & 1: a("s_mov_b32 s73, s26")
else: wo_dma("s26")
HB = 16; UB = 32
tag_consts(SEL)
a(f"""
s_lshl_b32 s30, s18, 12
s_add_u32 s30, s30, {HG}
v_lshlrev_b32 v1, 5, v11
v_lshl_add_u32 v1, v10, 8, v1
v_mov_b32 v4, 0x7ff00000
v_cmp_gt_u32 vcc, 3, v11
s_and_b64 s[66:67], s[58:59], vcc
v_cndmask_b32 v2, v4, v1, s[66:67]
v_cndmask_b32 v1, v4, v1, s[58:59]
v_lshlrev_b32 v14, 4, v10
v_lshl_add_u32 v14, v11, 7, v14
v_add_u32 v14, {WD_LDS}, v14
s_mov_b32 s76, {SPIN}
""")
backoff(OPT["hd"])
a.label("L_hpoll")
for B_, o_ in ((HB, 0), (UB, 2048)):
    a(f"""
buffer_load_dwordx4 v[{B_}:{B_+3}], v1, s[12:15], s30 offen offset:{o_} sc1
buffer_load_dwordx4 v[{B_+4}:{B_+7}], v1, s[12:15], s30 offen offset:{o_+16} sc1
buffer_load_dwordx4 v[{B_+8}:{B_+11}], v2, s[12:15], s30 offen offset:{o_+128} sc1
buffer_load_dwordx4 v[{B_+12}:{B_+15}], v2, s[12:15], s30 offen offset:{o_+144} sc1
""")
if OPT["xm"]: a("buffer_load_dwordx2 v[64:65], v66, s[12:15], s29 offen sc1")
a("s_waitcnt vmcnt(0)")
any_eq([HB+1, HB+3, HB+5, HB+7, UB+1, UB+3, UB+5, UB+7], "s74", neg=True)
a("s_and_b64 s[64:65], vcc, s[58:59]")
if OPT["xm"]: a("v_cmp_ne_u32 vcc, s74, v64\ns_or_b64 s[64:65], s[64:65], vcc\nv_xor_b32 v67, s74, v65\nv_cmp_lt_u32 vcc, 15, v67\ns_or_b64 s[64:65], s[64:65], vcc")
any_eq([HB+9, HB+11, HB+13, HB+15, UB+9, UB+11, UB+13, UB+15], "s74", neg=True)
a("s_and_b64 vcc, vcc, s[66:67]\ns_or_b64 vcc, vcc, s[64:65]")
spin_tail("L_hpoll", "L_hdone", sleep=OPT["hslp"])
if OPT["xm"]:
    a(f"""
v_cmp_ne_u32 vcc, s31, v65
s_cmp_eq_u64 vcc, 0
s_cselect_b32 s28, {0 if OPT["xforce"] else 1}, 0
""")
stamp(3)
a(f"""
s_mov_b32 s25, {f32(0.044715)}
s_mov_b32 s26, {f32(-2.0*0.7978845608028654*LOG2E)}
v_lshrrev_b32 v1, 2, v10
v_lshl_add_u32 v1, v11, 3, v1
v_lshlrev_b32 v1, 7, v1
v_and_b32 v2, 3, v0
v_lshl_add_u32 v1, v2, 3, v1
v_add_u32 v1, {WD_LDS}, v1
""")
AF = 80
def af_rd():
    for ct in range(4):
        for s_ in range(2):
            r = AF + 8*ct + 4*s_
            a(f"ds_read_b64_tr_b16 v[{r}:{r+1}], v1 offset:{s_*4096+ct*32}")
            a(f"ds_read_b64_tr_b16 v[{r+2}:{r+3}], v1 offset:{s_*4096+ct*32+512}")
def trig_wait():
    a(f"s_mov_b32 s76, {SPIN*16}")
    a.label("L_tw")
    a(f"""
ds_read_b32 v8, v15 offset:136
s_waitcnt lgkmcnt(0)
v_cmp_ne_u32 vcc, 2, v8
""")
    spin_tail("L_tw", "L_twdone", sleep=OPT["tslp"])
    stamp(0)
if not LATE & 2: af_rd()
HF = 48
for e in range(8):
    g_, u_ = HB + 2*e, UB + 2*e
    t = 56
    a(f"""
v_lshlrev_b32 v{t}, 16, v{g_}
v_and_b32 v{t+1}, 0xffff0000, v{g_}
v_lshlrev_b32 v{t+2}, 16, v{u_}
v_and_b32 v{t+3}, 0xffff0000, v{u_}
v_mul_f32 v{t+4}, v{t}, v{t}
v_mul_f32 v{t+5}, v{t+1}, v{t+1}
v_mul_f32 v{t+4}, v{t+4}, v{t}
v_mul_f32 v{t+5}, v{t+5}, v{t+1}
v_fma_f32 v{t+4}, v{t+4}, s25, v{t}
v_fma_f32 v{t+5}, v{t+5}, s25, v{t+1}
v_mul_f32 v{t+4}, s26, v{t+4}
v_mul_f32 v{t+5}, s26, v{t+5}
v_exp_f32 v{t+4}, v{t+4}
v_exp_f32 v{t+5}, v{t+5}
v_add_f32 v{t+4}, 1.0, v{t+4}
v_add_f32 v{t+5}, 1.0, v{t+5}
v_rcp_f32 v{t+4}, v{t+4}
v_rcp_f32 v{t+5}, v{t+5}
v_mul_f32 v{t+4}, v{t+4}, v{t}
v_mul_f32 v{t+5}, v{t+5}, v{t+1}
v_cvt_pk_bf16_f32 v{t+4}, v{t+4}, v{t+5}
v_and_b32 v{t+5}, 0xffff0000, v{t+4}
v_lshlrev_b32 v{t+4}, 16, v{t+4}
v_mul_f32 v{t+4}, v{t+4}, v{t+2}
v_mul_f32 v{t+5}, v{t+5}, v{t+3}
v_cvt_pk_bf16_f32 v{HF+e}, v{t+4}, v{t+5}
""")
if LATE & 2:
    trig_wait()
    for t in range(7):
        a(f"s_mov_b32 m0, {WD_LDS + 1024*t}\ns_nop 0\nbuffer_load_dwordx4 v6, s[4:7], s72 offen nt lds")
        if t < 6: a("s_add_u32 s72, s72, 8192")
    if LATE & 1: wo_dma("s73")
    a(f"s_waitcnt vmcnt({16 if LATE & 1 else 0})")
    af_rd()
a("s_waitcnt lgkmcnt(0)")
for ct in range(4):
    r = AF + 8*ct; d = 112 + 4*ct
    a(f"v_mfma_f32_16x16x32_bf16 v[{d}:{d+3}], v[{r}:{r+3}], v[{HF}:{HF+3}], 0")
    a(f"v_mfma_f32_16x16x32_bf16 v[{d}:{d+3}], v[{r+4}:{r+7}], v[{HF+4}:{HF+7}], v[{d}:{d+3}]")
for ct in range(4): tag_ins(112 + 4*ct, VN, SEL)
a("s_mov_b64 exec, s[58:59]")
for ct in range(4):
    d = 112 + 4*ct
    a(f"ds_write_b128 v14, v[{d}:{d+3}] offset:{512*ct}")
if OPT["hbn"] == 1:
    a(f"""
v_lshlrev_b32 v1, 4, v10
v_lshl_add_u32 v1, v11, 13, v1
s_lshl_b32 s25, s17, 17
s_lshl_b32 s26, s18, 7
s_add_u32 s25, s25, s26
s_add_u32 s25, s25, {CPA}
v_not_b32 v16, v{VN}
v_not_b32 v17, v{VN}
v_not_b32 v18, v{VN}
v_not_b32 v19, v{VN}
""")
    for ct in range(4):
        d = 112 + 4*ct
        a(f"s_add_u32 s26, s25, 4096\nbuffer_store_dwordx4 v[{d}:{d+3}], v1, s[12:15], s26 offen")
        if OPT["prw"]: a(f"buffer_store_dwordx4 v[16:19], v1, s[12:15], s25 offen")
        if ct < 3: a("s_add_u32 s25, s25, 32768")
a(f"""
v_lshl_add_u32 v2, v{CP+2}, 3, v15
s_mov_b64 exec, 15
ds_write_b64 v2, v[{GG}:{GG+1}] offset:64
""")
stamp(4)
if OPT["tchb"]: touch()
if OPT["xm"]:
    a(f"v_mov_b32 v8, s28\nds_write_b32 v15, v8 offset:140")
else:
    a("v_mov_b32 v8, 1\ns_waitcnt vmcnt(0) lgkmcnt(0)\nds_write_b32 v15, v8 offset:140")
if LATE == 1:
    a("s_mov_b64 exec, -1")
    if OPT["lb"] == 2: a("s_waitcnt lgkmcnt(0)\ns_barrier"); stamp(0); backoff(OPT["wdel"])
    else: trig_wait()
    wo_dma("s73")
    if OPT["lb"] == 1: a("s_barrier")
if LATE and OPT["stamps"]: a("s_waitcnt vmcnt(0)"); stamp(4)
hstamps(9, 5)
a("s_waitcnt vmcnt(0) lgkmcnt(0)\ns_endpgm")

a.label("L_stream")
KA, VA, KR, VR = 1, 5, 7, 11
M_, L_ = 20, 21
T0, T1, T2 = 22, 23, 19
Q = 24; KF = 40; S = 56; T = 60; PF = 66; SA = 68; TKA = 69; CL = 70; ZR = 71; O = 72; STG = 104; NINF = 65; FL = 64
TE = T + 2; ONE = T + 3; TA = CL
ST0 = 168 - 16*NST
X0 = KF
a(f"""
v_and_b32 v{T0}, 15, v0
v_lshrrev_b32 v{T1}, 4, v0
s_mul_i32 s24, s3, {RING}
""")
for i in range(4):
    a(f"""
v_add_u32 v{T2}, {4*i}, v{T1}
v_xor_b32 v{T2}, v{T2}, v{T0}
v_lshlrev_b32 v{T2}, 4, v{T2}
v_lshl_add_u32 v{KA+i}, v{T1}, 8, v{T2}
v_lshl_add_u32 v{KR+i}, v{T0}, 8, v{T2}
""")
a(f"""
s_lshl_b32 s30, s20, 4
s_add_u32 s30, s30, s19
s_lshl_b32 s21, s30, 21
s_lshl_b32 s22, s17, 3
s_add_u32 s22, s22, s3
s_mul_i32 s77, s20, {OPT['r2']}
{f"s_mul_i32 s25, s19, {OPT['r1']}" + chr(10) + "s_add_u32 s77, s77, s25" if OPT['r1'] else ""}
s_add_u32 s22, s22, s77
s_and_b32 s26, s22, 511
{trn("s26")}
s_lshl_b32 s26, s26, 12
s_add_u32 s26, s26, s21
s_add_u32 m0, s24, 8192
s_waitcnt lgkmcnt(0)
""")
srd(4, P_K, 128 << 20)
if OPT["fine"] == 6: a("s_memrealtime s[48:49]")
nload = [0]
def pre_load(k):
    if k:
        a(f"""
s_add_u32 s26, s22, {64*k}
s_and_b32 s26, s26, 511
{trn("s26")}
s_lshl_b32 s26, s26, 12
s_add_u32 s26, s26, s21
""")
        if k >= 8: a(f"s_add_u32 s26, s26, {1 << 24}")
    if k == 1: a("s_mov_b32 m0, s24")
    if k == 2: a("s_add_u32 m0, s24, 4096")
    for i in range(4):
        if nload[0] == NPRE:
            if OPT["fine"] == 6: a("s_memrealtime s[50:51]")
            setup_rest()
            if OPT["fine"] == 6: a("s_waitcnt vmcnt(0)\ns_memrealtime s[54:55]")
            a("s_waitcnt lgkmcnt(0)\ns_barrier")
            if OPT["fine"] == 6: a("s_memrealtime s[56:57]")
        if nload[0] >= Wp: a(f"s_waitcnt vmcnt({Wp-1})")
        if k < 3:
            a(f"buffer_load_dwordx4 v{KA+i}, s[4:7], s26 offen offset:{i*1024} nt lds")
        else:
            r = ST0 + 16*(k-3) + 4*i
            a(f"buffer_load_dwordx4 v[{r}:{r+3}], v{KA+i}, s[4:7], s26 offen offset:{i*1024} nt")
        nload[0] += 1
def setup_rest():
    srd(8, P_V, 128 << 20)
    srd(12, P_WS, WS_BYTES)
    for e in range(2):
        a(f"""
v_lshrrev_b32 v{T2}, 1, v{T0}
v_add_u32 v{X0}, {4*e}, v{T1}
v_xor_b32 v{T2}, v{T2}, v{X0}
v_lshlrev_b32 v{T2}, 5, v{T2}
v_and_b32 v{X0}, 1, v{T0}
v_lshl_add_u32 v{T2}, v{X0}, 4, v{T2}
v_lshl_add_u32 v{VA+e}, v{T1}, 8, v{T2}
""")
    a(f"""
s_mov_b32 s79, {hex(SENT)}
v_mov_b32 v{S}, s79
v_mov_b32 v{S+1}, s79
v_mov_b32 v{S+2}, s79
v_mov_b32 v{S+3}, s79
s_mul_i32 s25, s3, {NSLOT*16}
s_add_u32 s25, s25, {SB}
v_lshl_add_u32 v{T2}, v0, 4, s25
""")
    for k in range(NSLOT//64): a(f"ds_write_b128 v{T2}, v[{S}:{S+3}] offset:{1024*k}")
    a(f"""
v_lshrrev_b32 v{X0}, 2, v0
v_and_b32 v{X0+1}, 7, v{X0}
v_and_b32 v{X0+2}, 3, v0
v_lshlrev_b32 v{X0+2}, 3, v{X0+2}
v_lshl_add_u32 v{SA}, v{T1}, 5, v{X0+2}
v_add_u32 v{SA}, {SB}, v{SA}
v_lshl_add_u32 v{X0+2}, v{X0}, 8, v{X0+2}
""")
    for dt in range(8):
        a(f"v_xor_b32 v{X0+3}, {dt}, v{X0+1}\nv_lshl_add_u32 v{VR+dt}, v{X0+3}, 5, v{X0+2}")
    a(f"""
v_cmp_gt_u32 s[70:71], 8, v{T0}
v_mov_b32 v{M_}, {f32(-1e30)}
v_mov_b32 v{L_}, 0
v_mov_b32 v{NINF}, 0xff80ff80
v_mov_b32 v{ZR}, 0
s_mov_b32 s58, {f32(SCALE)}
s_mov_b32 s59, {f32(LOG2E)}
s_mov_b32 s31, {f32(-LOG2E)}
v_mov_b32 v{ONE}, 1
v_mov_b32 v{FL}, {TK}
v_mov_b32 v{TKA}, {TK}
s_mov_b32 s78, {T1B}
s_mov_b32 s96, 0
s_mov_b32 s60, s24
s_add_u32 s61, s24, 4096
s_add_u32 s72, s24, 8192
s_lshl_b32 s73, s3, 7
s_add_u32 s27, s73, 1024
s_add_u32 s28, s73, 2048
""")
    tag_consts(SEL)
    for r in range(O, min(O+32, ST0)): a(f"v_mov_b32 v{r}, 0")
    for r in range(16): a(f"v_mov_b32 v{Q+r}, 0")
for k in range(NSU): pre_load(k)
a(f"""
v_lshlrev_b32 v{T2}, 4, v{T1}
v_lshl_add_u32 v{T2}, v{T0}, 8, v{T2}
v_add_u32 v{T2}, {Q_LDS}, v{T2}
s_mov_b32 s76, {SPIN*16}
""")
a.label("L_qw")
a(f"""
ds_read_b32 v{T}, v{FL} offset:4
s_waitcnt lgkmcnt(0)
v_cmp_ne_u32 vcc, 1, v{T}
""")
spin_tail("L_qw", "L_qwdone", sleep=1)
stamp(1)
a("s_mov_b64 exec, s[70:71]")
for j in range(4): a(f"ds_read_b128 v[{Q+4*j}:{Q+4*j+3}], v{T2} offset:{j*64}")
a("s_mov_b64 exec, -1")

nlab = [0]
def ticket_rd():
    a(f"s_mov_b64 exec, 1\nds_add_rtn_u32 v{TE}, v{TKA}, v{ONE}\ns_mov_b64 exec, -1")
def ticket_use():
    a(f"""
v_readfirstlane_b32 s25, v{TE}
s_and_b32 s75, s25, 1
s_lshr_b32 s25, s25, 1
s_lshl_b32 s25, s25, 2
s_add_u32 s25, s25, s78
v_mov_b32 v{TA}, s25
""")
def entry_rd():
    a(f"ds_read_b32 v{TE}, v{TA}")
def dmask(d):
    a(f"""
s_andn2_b32 s25, {d}, 127
v_add_u32 v{T2}, s25, v{SA}
s_and_b32 s25, {d}, 4
s_lshl_b32 s68, 0x000f000f, s25
s_mov_b32 s69, s68
""")
def kstep(sb, d, mid=None):
    for j in range(4): a(f"v_add_u32 v{KF+4*j}, {sb}, v{KR+j}\nds_read_b128 v[{KF+4*j}:{KF+4*j+3}], v{KF+4*j}")
    dmask(d)
    if mid:
        a("s_waitcnt lgkmcnt(4)"); mid()
    for j in range(4):
        c = "0" if j == 0 else f"v[{S}:{S+3}]"
        a(f"s_waitcnt lgkmcnt({3-j})")
        a(f"v_mfma_f32_16x16x32_bf16 v[{S}:{S+3}], v[{KF+4*j}:{KF+4*j+3}], v[{Q+4*j}:{Q+4*j+3}], {c}")
    for k in range(2): a(f"v_cvt_pk_bf16_f32 v{T+k}, v{S+2*k}, v{S+2*k+1}")
    for k in range(2):
        a(f"v_lshlrev_b32 v{S+2*k}, 16, v{T+k}\nv_and_b32 v{S+2*k+1}, 0xffff0000, v{T+k}")
    for k in range(4): a(f"v_mul_f32 v{S+k}, s58, v{S+k}")
    for k in range(2): a(f"v_cvt_pk_bf16_f32 v{PF+k}, v{S+2*k}, v{S+2*k+1}")
    a(f"s_mov_b64 exec, s[68:69]\nds_write_b64 v{T2}, v[{PF}:{PF+1}]\ns_mov_b64 exec, -1")
ool = []
def soft():
    nlab[0] += 1
    n = nlab[0]
    a(f"""
L_sr{n}:
v_cmp_eq_u32 vcc, s79, v{PF}
v_cmp_eq_u32 s[74:75], s79, v{PF+1}
""" if False else f"""
L_sr{n}:
v_cmp_eq_u32 vcc, s79, v{PF}
s_cbranch_vccnz L_ss{n}
v_cmp_eq_u32 vcc, s79, v{PF+1}
s_cbranch_vccnz L_ss{n}
L_sg{n}:
v_cndmask_b32 v{T}, v{NINF}, v{PF}, s[68:69]
v_cndmask_b32 v{T+1}, v{NINF}, v{PF+1}, s[68:69]
""")
    ool.append(f"""
L_ss{n}:
s_sub_u32 s76, s76, 1
s_cmp_le_i32 s76, 0
s_cbranch_scc1 L_sg{n}
ds_read_b64 v[{PF}:{PF+1}], v{T2}
s_waitcnt lgkmcnt(0)
s_branch L_sr{n}
""")
    for k in range(2):
        a(f"v_lshlrev_b32 v{S+2*k}, 16, v{T+k}\nv_and_b32 v{S+2*k+1}, 0xffff0000, v{T+k}")
    a(f"""
v_max3_f32 v{T}, v{S}, v{S+1}, v{S+2}
v_max3_f32 v{T}, v{T}, v{S+3}, v{M_}
v_mov_b32 v{T+1}, v{T}
v_permlane16_swap_b32 v{T}, v{T+1}
v_max_f32 v{T}, v{T}, v{T+1}
v_mov_b32 v{T+1}, v{T}
v_permlane32_swap_b32 v{T}, v{T+1}
v_max_f32 v{T}, v{T}, v{T+1}
v_cmp_gt_f32 vcc, v{T}, v{M_}
s_cbranch_vccz L_nr{n}
v_sub_f32 v{T+1}, v{M_}, v{T}
v_mul_f32 v{T+1}, s59, v{T+1}
v_exp_f32 v{T+1}, v{T+1}
v_mov_b32 v{M_}, v{T}
v_mul_f32 v{L_}, v{L_}, v{T+1}
""")
    for r in range(32): a(f"v_mul_f32 v{O+r}, v{O+r}, v{T+1}")
    a.label(f"L_nr{n}")
    a(f"v_mul_f32 v{T+1}, s31, v{M_}")
    for k in range(4): a(f"v_fma_f32 v{S+k}, v{S+k}, s59, v{T+1}")
    for k in range(4): a(f"v_exp_f32 v{S+k}, v{S+k}")
    for k in range(2): a(f"v_cvt_pk_bf16_f32 v{PF+k}, v{S+2*k}, v{S+2*k+1}")
    a(f"""
v_add_f32 v{T}, v{S}, v{S+1}
v_add_f32 v{T+1}, v{S+2}, v{S+3}
v_add_f32 v{T}, v{T}, v{T+1}
v_add_f32 v{L_}, v{L_}, v{T}
""")
def v_rd(sb):
    for dt in range(8): a(f"v_add_u32 v{KF+2*dt}, {sb}, v{VR+dt}\nds_read_b64_tr_b16 v[{KF+2*dt}:{KF+2*dt+1}], v{KF+2*dt}")
def pv(dt):
    a(f"v_mfma_f32_16x16x16_bf16 v[{O+4*dt}:{O+4*dt+3}], v[{KF+2*dt}:{KF+2*dt+1}], v[{PF}:{PF+1}], v[{O+4*dt}:{O+4*dt+3}]")
def vstep(sb, d, mid=None):
    dmask(d)
    a(f"ds_read_b64 v[{PF}:{PF+1}], v{T2}")
    v_rd(sb)
    a("s_waitcnt lgkmcnt(8)")
    if mid: mid()
    soft()
    a("s_waitcnt lgkmcnt(0)")
    for dt in range(8): pv(dt)
X = STG
VNS = X + 27; FLG = X + 26
F3ADDR = f"""
s_lshl_b32 s77, s16, 2
s_add_u32 s77, s77, {F1}
s_lshr_b32 s22, s16, {OPT['rsh']}
s_lshl_b32 s22, s22, 10
s_add_u32 s22, s22, {F1}
s_lshr_b32 s95, s3, 1
s_lshl_b32 s95, s95, 3
s_lshr_b32 s25, s16, 5
s_add_u32 s95, s95, s25
s_lshl_b32 s95, s95, 5
s_add_u32 s95, s95, s22
""" if OPT["f3"] else ""
FLIM = 1 << 20
COL = OPT["col"]
COL1 = f"""
v_lshrrev_b32 v{X+11}, 2, v{T0}
v_lshlrev_b32 v{X+11}, 12, v{X+11}
v_lshl_add_u32 v{X+25}, v{X+13}, 4, v{X+11}
v_lshl_add_u32 v{X+11}, v{T1}, 13, v{X+25}
""" if COL else f"""v_lshlrev_b32 v{X+11}, 4, v{T0}
v_lshl_add_u32 v{X+11}, v{T1}, 13, v{X+11}
"""
COL2 = "" if COL else f"""v_lshrrev_b32 v{X+25}, 3, v{T0}
v_lshlrev_b32 v{X+25}, 13, v{X+25}
v_lshl_add_u32 v{X+25}, v{X+3}, 4, v{X+25}
"""
FU = OPT["fful"]
FADDR = f"""
s_and_b32 s94, s29, 31
s_lshl_b32 s94, s94, 6
s_lshr_b32 s25, s29, 5
s_add_u32 s94, s94, s25
s_mul_i32 s94, s94, {FST}
s_lshl_b32 s25, s17, 3
s_add_u32 s94, s94, s25
s_add_u32 s94, s94, {FG}
s_andn2_b32 s95, s16, {[0, 7, 3, 1, 0][OPT['fone']]}
s_lshl_b32 s95, s95, 3
s_add_u32 s95, s95, s3
s_mul_i32 s95, s95, {FST}
s_add_u32 s95, s95, {FG}
v_mul_u32_u24 v{X+30}, {8*FST}, v0
""" if not FU else f"""
s_lshl_b32 s94, s29, 3
s_add_u32 s94, s94, s17
s_mul_i32 s94, s94, {FU}
s_add_u32 s94, s94, {FG}
s_lshl_b32 s95, s3, 5
s_add_u32 s95, s95, s18
s_mul_i32 s95, s95, {8*FU}
s_lshl_b32 s25, s17, 3
s_add_u32 s95, s95, s25
s_add_u32 s95, s95, {FG}
v_mul_u32_u24 v{X+30}, {FU}, v0
"""
FSA, FPA = (X+1, X+30) if FU else (X+30, X+1)
if OPT["fone"] == 4:
    FADDR = f"""
s_mul_i32 s94, s29, {FST}
s_lshl_b32 s25, s17, 3
s_add_u32 s94, s94, s25
s_add_u32 s94, s94, {FG + OPT['fgo']}
s_lshl_b32 s95, s3, 5
s_add_u32 s95, s95, s18
s_mul_i32 s95, s95, {FST}
s_add_u32 s95, s95, {FG + OPT['fgo']}
v_mov_b32 v{X+30}, 0
"""
def tail_addr():
    a(f"""
v_mul_u32_u24 v{X}, {CST}, v{T0}
v_lshl_add_u32 v{X}, v{T1}, 4, v{X}
v_add_u32 v{X}, s24, v{X}
v_lshlrev_b32 v{X+1}, 3, v0
s_lshl_b32 s25, s3, 3
s_add_u32 s25, s25, {MLT}
v_lshl_add_u32 v{X+15}, v0, 6, s25
v_mov_b32 v{X+21}, {MISC}
ds_read_b32 v{VNS}, v{X+21} offset:96
s_lshr_b32 s29, s3, 2
s_lshl_b32 s29, s29, 3
s_add_u32 s29, s29, s30
s_lshl_b32 s29, s29, 2
s_and_b32 s25, s3, 3
s_add_u32 s29, s29, s25
s_lshl_b32 s62, s29, 12
s_lshl_b32 s25, s17, 9
s_add_u32 s62, s62, s25
s_add_u32 s62, s62, {PART}
{FADDR}
v_and_b32 v{X+3}, 31, v0
v_lshrrev_b32 v{X+4}, 5, v0
v_lshlrev_b32 v{X+2}, 4, v{X+3}
v_bfe_u32 v{X+10}, v0, 4, 1
v_lshlrev_b32 v{X+10}, 2, v{X+10}
v_lshl_add_u32 v{X+10}, v{T0}, 4, v{X+10}
v_lshl_add_u32 v{X+10}, v{X+4}, 3, v{X+10}
v_and_b32 v{X+31}, 1, v0
v_lshlrev_b32 v{X+31}, 4, v{X+31}
v_mul_u32_u24 v{X+14}, {4*RING}, v{X+4}
v_add_u32 v{X+2}, v{X+14}, v{X+2}
s_mul_i32 s25, s3, {CST}
v_add_u32 v{X+2}, s25, v{X+2}
v_and_b32 v{X+3}, 7, v0
v_lshlrev_b32 v{X+4}, 2, v{X+4}
v_xor_b32 v{X+4}, v{X+4}, v{X+3}
s_lshl_b32 s25, s3, 6
s_add_u32 s25, s25, {MLT}
v_lshl_add_u32 v{X+4}, v{X+4}, 3, s25
s_lshl_b32 s74, s3, 5
s_add_u32 s74, s74, s18
s_lshl_b32 s74, s74, 12
s_add_u32 s74, s74, {PART}
v_lshlrev_b32 v{X+7}, 4, v0
v_lshrrev_b32 v{X+9}, 2, v{T0}
v_lshl_add_u32 v{X+9}, v{T1}, 3, v{X+9}
v_lshlrev_b32 v{X+9}, 7, v{X+9}
v_and_b32 v{X+13}, 3, v0
v_lshl_add_u32 v{X+9}, v{X+13}, 3, v{X+9}
s_and_b32 s25, s3, 3
s_lshl_b32 s25, s25, 5
s_add_u32 s25, s25, {WO_LDS}
v_add_u32 v{X+9}, s25, v{X+9}
s_mul_i32 s25, s3, {OST}
s_add_u32 s25, s25, {O_LDS}
v_add_u32 v{X+10}, s25, v{X+10}
v_mul_u32_u24 v{X+12}, {OST}, v{T0}
v_lshl_add_u32 v{X+12}, v{T1}, 4, v{X+12}
v_add_u32 v{X+12}, {O_LDS}, v{X+12}
{COL1}
v_lshl_add_u32 v{X+21}, v{X+13}, 3, v{X+21}
s_lshl_b32 s25, s3, 8
s_add_u32 s25, s25, {WD_LDS}
v_lshl_add_u32 v{X+24}, v{T0}, 4, s25
{COL2}
s_lshl_b32 s29, s17, 17
s_add_u32 s29, s29, {CPA}
s_lshl_b32 s25, s18, 7
s_add_u32 s65, s29, s25
s_lshl_b32 s25, s3, 14
s_add_u32 s67, s65, s25
s_add_u32 s67, s67, {64 if COL else 4096}
s_add_u32 s63, s67, {CPB-CPA}
s_lshl_b32 s25, s3, 15
s_add_u32 s65, s65, s25
s_add_u32 s64, s65, {CPB-CPA}
v_lshlrev_b32 v{X+23}, 10, v{X+13}
v_lshl_add_u32 v{X+23}, v{T1}, 1, v{X+23}
v_lshrrev_b32 v{X+14}, 2, v0
v_lshlrev_b32 v{X+14}, 7, v{X+14}
v_lshl_add_u32 v{X+13}, v{X+13}, 4, v{X+14}
s_lshr_b32 s66, s18, 1
s_lshl_b32 s99, s66, 3
s_lshl_b32 s66, s66, 13
s_add_u32 s66, s66, s29
s_and_b32 s25, s18, 1
s_lshl_b32 s29, s25, {12 if COL else 6}
s_add_u32 s66, s66, s29
s_add_u32 s98, s66, {64 if COL else 4096 if OPT["bpa"] else 4096 + CPB - CPA}
s_lshl_b32 s25, s25, 12
s_add_u32 s99, s99, s25
s_lshl_b32 s25, s17, 7
s_add_u32 s99, s99, s25
s_waitcnt lgkmcnt(0)
v_lshrrev_b32 v{X+31}, v{X+31}, v{VNS}
""")
a(f"s_mov_b32 s76, {SPIN*64}\ns_waitcnt vmcnt({4*NSU-4})\ns_mov_b32 s97, 0")
ticket_rd()
kstep("s72", "s73", mid=ticket_use)
entry_rd()
a(f"""
L_loop:
s_cmp_eq_u32 s96, 2
s_cbranch_scc1 L_flush
L_loop2:
s_waitcnt vmcnt(4) lgkmcnt(0)
L_eretry:
v_readfirstlane_b32 s23, v{TE}
s_mov_b32 m0, s72
s_cmp_eq_u32 s23, -1
s_cbranch_scc1 L_espin
s_bitcmp1_b32 s23, 9
s_cbranch_scc1 L_special
s_lshl_b32 s26, s23, 1
s_add_u32 s26, s26, s75
s_add_u32 s26, s26, s77
s_and_b32 s26, s26, 511
{trn("s26")}
s_lshl_b32 s26, s26, 12
s_add_u32 s26, s26, s21
s_and_b32 s25, s23, 256
s_lshl_b32 s29, s25, 16
s_add_u32 s26, s26, s29
s_bitcmp1_b32 s23, 15
s_cbranch_scc1 L_isv
""")
for i in range(4): a(f"buffer_load_dwordx4 v{KA+i}, s[4:7], s26 offen offset:{i*1024} nt lds")
a("s_branch L_isd\nL_isv:")
for i in range(4): a(f"buffer_load_dwordx4 v{VA+(i&1)}, s[8:11], s26 offen offset:{i*1024} nt lds")
a(f"""
L_isd:
s_lshr_b32 s25, s25, 6
s_bfe_u32 s73, s23, 0x1000f
s_or_b32 s73, s73, s25
s_lshr_b32 s23, s23, 16
s_lshl_b32 s23, s23, 1
s_add_u32 s23, s23, s75
s_lshl_b32 s23, s23, 7
s_or_b32 s73, s73, s23
L_proc:
""")
ticket_rd()
a("s_bitcmp1_b32 s27, 0\ns_cbranch_scc1 L_pv")
kstep("s60", "s27", mid=ticket_use)
a("s_branch L_pd\nL_pv:")
vstep("s60", "s27", mid=ticket_use)
a.label("L_pd")
entry_rd()
a(f"""
s_mov_b32 s25, s60
s_mov_b32 s60, s61
s_mov_b32 s61, s72
s_mov_b32 s72, s25
s_mov_b32 s27, s28
s_mov_b32 s28, s73
s_add_u32 s96, s96, 1
s_cmp_lt_u32 s97, 2
s_cbranch_scc1 L_loop
s_cmp_eq_u32 s97, 3
s_cbranch_scc1 L_final
s_waitcnt vmcnt(0)
L_flush:
s_waitcnt vmcnt(8)
v_lshlrev_b32 v{PF}, 4, v0
v_add_u32 v{TA+1}, s72, v{PF}
s_lshl_b32 s73, s3, 7
""")
for u in range(NST):
    for i in range(4):
        r = ST0 + 16*u + 4*i
        a(f"ds_write_b128 v{TA+1}, v[{r}:{r+3}] offset:{i*1024}")
    a(f"s_add_u32 s23, s73, {1024*(3+u) + (4 if 3+u >= 8 else 0)}")
    kstep("s72", "s23")
a(f"v_mov_b32 v{ZR}, 0")
for r in range(ST0, O+32): a(f"v_mov_b32 v{r}, 0")
tail_addr()
a(f"""
s_add_u32 s97, s97, 1
s_cmp_eq_u32 s97, 1
s_cbranch_scc1 L_loop2
L_final:
s_bitcmp1_b32 s27, 0
s_cbranch_scc1 L_finv
s_waitcnt vmcnt(0)
""")
kstep("s60", "s27")
a(f"""
s_branch L_fin2
L_espin:
s_sub_u32 s76, s76, 1
s_cmp_le_i32 s76, 0
s_cbranch_scc1 L_term
ds_read_b32 v{TE}, v{TA}
s_waitcnt lgkmcnt(0)
s_branch L_eretry
L_special:
s_bitcmp1_b32 s23, 0
s_cbranch_scc0 L_term
v_mov_b32 v{TKA}, {TK+16}
s_mov_b32 s78, {T2B}
""")
ticket_rd()
a("s_waitcnt lgkmcnt(0)")
ticket_use()
a(f"""
s_branch L_espin
L_term:
s_or_b32 s97, s97, 2
v_mov_b32 v{TKA}, {TK+20}
s_branch L_proc
""")
OOL_AT = len(a.L)
a.label("L_finv")
def fine3(k): pass
if OPT["fine"] == 6: a("s_mov_b32 s4, s80")
dmask("s27")
a(f"ds_read_b64 v[{PF}:{PF+1}], v{T2}\ns_waitcnt lgkmcnt(0)")
soft()
a.label("L_fin2")
AA = STG + 32
CM = AA; AW = AA + 16
R = S; GV = X + 28
a(f"""
v_mov_b32 v{T+1}, v{L_}
v_permlane16_swap_b32 v{L_}, v{T+1}
v_add_f32 v{L_}, v{L_}, v{T+1}
v_mov_b32 v{T+1}, v{L_}
v_permlane32_swap_b32 v{L_}, v{T+1}
v_add_f32 v{L_}, v{L_}, v{T+1}
s_mov_b32 s76, {SPIN*16}
s_mov_b64 exec, 0xff
ds_write_b64 v{X+15}, v[{M_}:{L_}]
s_mov_b64 exec, -1
""")
def aw_rd(s_):
    a(f"ds_read_b64_tr_b16 v[{AW+4*s_}:{AW+4*s_+1}], v{X+9} offset:{s_*4096}")
    a(f"ds_read_b64_tr_b16 v[{AW+4*s_+2}:{AW+4*s_+3}], v{X+9} offset:{s_*4096+512}")
def misc_rd():
    if OPT["xm"]: a(f"ds_read_b32 v{T}, v{FL} offset:12")
    a(f"ds_read_b128 v[{X+16}:{X+19}], v{X+24}")
    if not OPT["lb"]:
        for s_ in range(4): aw_rd(s_)
    a(f"ds_read_b64 v[{GV}:{GV+1}], v{X+21} offset:64")
if not OPT["mlate"]:
    a(f"L_bw:\nds_read_b32 v{T}, v{FL} offset:12")
    misc_rd()
    a(f"s_waitcnt lgkmcnt(0)\nv_cmp_ne_u32 vcc, 1, v{T}")
    spin_tail("L_bw", "L_bwdone", sleep=2)
C = O + 16
def fine2(k):
    if OPT["fine"] == 2: a(f"s_waitcnt vmcnt(0)\ns_memtime s[{[4,6,8,10,48,50,54,56][k]}:{[4,6,8,10,48,50,54,56][k]+1}]\ns_waitcnt lgkmcnt(0)")
def fine(k):
    if OPT["fine"] == 1: a(f"s_memtime s[{[4,6,8,10,48,50,54,56][k]}:{[4,6,8,10,48,50,54,56][k]+1}]" + ("\ns_waitcnt lgkmcnt(0)" if k in (0, 3,) else ""))
for dt in range(8): a(f"v_add_u32 v{KF+2*dt}, s60, v{VR+dt}")
a(f"s_mov_b32 s76, {SPIN}\ns_waitcnt vmcnt(0)")
fine3(3)
fine(0)
a("s_bitcmp1_b32 s27, 0\ns_cbranch_scc0 L_fin3")
for dt in range(8): a(f"ds_read_b64_tr_b16 v[{KF+2*dt}:{KF+2*dt+1}], v{KF+2*dt}")
for dt in range(8):
    a(f"s_waitcnt lgkmcnt({7-dt})")
    pv(dt)
a.label("L_fin3")
stamp(2)
fine(1)
a("s_mov_b64 exec, s[70:71]")
for dt in range(8): a(f"ds_write_b128 v{X}, v[{O+4*dt}:{O+4*dt+3}] offset:{dt*64}")
a("s_mov_b64 exec, -1")
if OPT["tcw"]:
    a(f"""
s_cmp_lg_u32 s3, {OPT['fin']}
s_cbranch_scc1 L_ntc
v_lshlrev_b32 v{T}, 7, v0
{"s_mov_b32 exec_hi, 0" if OPT["tcw"] == 1 else ""}
buffer_load_dword v{AA+4}, v{T}, s[12:15], s66 offen {['', 'sc1', 'nt'][OPT['tpol']]}
s_mov_b64 exec, -1
L_ntc:
""")
a("s_waitcnt lgkmcnt(0)")
fine(2)
a("s_barrier")
fine(3)
a(f"ds_read_b64 v[{CM}:{CM+1}], v{X+4}")
for k in range(4):
    a(f"ds_read_b128 v[{C+4*k}:{C+4*k+3}], v{X+2} offset:{k*RING}")
def red8(r, op, src=None):
    for m in ("quad_perm:[1,0,3,2]", "quad_perm:[2,3,0,1]", "row_half_mirror"):
        q = r if src is None else src
        a(f"{op}_dpp v{r}, v{q}, v{q} {m} row_mask:0xf bank_mask:0xf")
        src = None
a("s_waitcnt lgkmcnt(4)")
red8(T, "v_max_f32", CM)
a(f"""
v_sub_f32 v{CM}, v{CM}, v{T}
v_mul_f32 v{CM}, s59, v{CM}
v_exp_f32 v{CM}, v{CM}
v_mul_f32 v{T+1}, v{CM}, v{CM+1}
""")
def ofma(k):
    a(f"s_waitcnt lgkmcnt({3-k})")
    for j in range(4): a(f"v_{'mul' if k == 0 else 'fmac'}_f32_dpp v{R+j}, v{CM}, v{C+4*k+j} row_newbcast:{k} row_mask:0xf bank_mask:0xf")
red8(T+1, "v_add_f32")
a(f"""
v_max_f32 v{T+1}, {f32(1e-30)}, v{T+1}
v_log_f32 v{T+2}, v{T+1}
v_rcp_f32 v{T+3}, v{T+1}
""")
ofma(0)
a(f"""
v_fma_f32 v{FLG}, v{T}, s59, v{T+2}
v_perm_b32 v{FLG}, v{FLG}, v{VNS}, s{SEL}
""")
fine2(0)
def flag_st():
    a(f"""
s_mov_b64 exec, {hex((1 << (FU//8)) - 1) if FU else [0xff, 1, 0x11, 0x55, 1][OPT['fone']]}
buffer_store_dwordx2 v[{FLG}:{FLG+1}], v{FSA}, s[12:15], s94 offen sc1
s_mov_b64 exec, -1
""")
if not OPT["fo"]: flag_st()
fine2(1)
for k in range(1, 4): ofma(k)
fine(4)
a(f"""
v_permlane32_swap_b32 v{R}, v{R+2}
v_permlane32_swap_b32 v{R+1}, v{R+3}
v_add_f32 v{R}, v{R}, v{R+2}
v_add_f32 v{R+1}, v{R+1}, v{R+3}
v_mul_f32 v{R}, v{R}, v{T+3}
v_mul_f32 v{R+1}, v{R+1}, v{T+3}
v_perm_b32 v{R}, v{R}, v{X+31}, s{SEL}
v_perm_b32 v{R+1}, v{R+1}, v{X+31}, s{SEL+1}
""")
if OPT["px4"]:
    a(f"""
v_mov_b32_dpp v{R+2}, v{R} quad_perm:[1,1,3,3] row_mask:0xf bank_mask:0xf
v_mov_b32_dpp v{R+3}, v{R+1} quad_perm:[1,1,3,3] row_mask:0xf bank_mask:0xf
s_mov_b32 exec_lo, 0x55555555
s_mov_b32 exec_hi, 0x55555555
buffer_store_dwordx4 v[{R}:{R+3}], v{X+1}, s[12:15], s62 offen sc1
s_mov_b64 exec, -1
""")
else:
    a(f"buffer_store_dwordx2 v[{R}:{R+1}], v{X+1}, s[12:15], s62 offen sc1")
if OPT["fo"]: flag_st()
if OPT["mlate"]:
    if OPT["stamps"]: stamp(3); a("s_waitcnt lgkmcnt(0)")
    misc_rd()
    a(f"s_waitcnt lgkmcnt({1 if OPT['lb'] else 9})")
if OPT["hbn"] != 1: a("s_mov_b64 exec, 0xffff")
if not OPT["mlate"]: stamp(3)
fine(5)
fine2(2)
def st2(lbl, ins, extra=""):
    a(f"""
s_cmp_eq_u32 s63, 1
s_cbranch_scc1 {lbl}n
{ins} sc1
s_branch {lbl}d
{lbl}n:
{ins}
{extra}
{lbl}d:
""")
if OPT["xm"]:
    a(f"v_readfirstlane_b32 s63, v{T}")
    st2("L_bs", f"buffer_store_dwordx4 v[{X+16}:{X+19}], v{X+25}, s[12:15], s67 offen", f"""
v_not_b32 v{T}, v{VNS}
v_not_b32 v{T+1}, v{VNS}
v_not_b32 v{T+2}, v{VNS}
v_not_b32 v{T+3}, v{VNS}
s_sub_u32 s25, s67, 4096
buffer_store_dwordx4 v[{T}:{T+3}], v{X+25}, s[12:15], s25 offen
""" if OPT["prw"] else "")
elif OPT["hbn"] != 1:
    if OPT["bpa"]: a(f"buffer_store_dwordx4 v[{X+16}:{X+19}], v{X+25}, s[12:15], s67 offen")
    if not OPT["hbn"]: a(f"buffer_store_dwordx4 v[{X+16}:{X+19}], v{X+25}, s[12:15], s63 offen sc1")
    fine2(3)
    if OPT["prw"]:
        a(f"""
v_not_b32 v{T}, v{VNS}
v_not_b32 v{T+1}, v{VNS}
v_not_b32 v{T+2}, v{VNS}
v_not_b32 v{T+3}, v{VNS}
s_sub_u32 s25, s67, 4096
buffer_store_dwordx4 v[{T}:{T+3}], v{X+25}, s[12:15], s25 offen
""")
fine2(4)
BB = AA + 8
def bpoll():
    for k in range(2):
        a(f"buffer_load_dwordx4 v[{BB+4*k}:{BB+4*k+3}], v{X+13}, s[12:15], s98 offen offset:{2048*k} sc1")
def bp_early():
    a(f"s_cmp_lg_u32 s3, {OPT['fin']}\ns_cbranch_scc1 L_nobp0\ns_mov_b64 exec, -1")
    bpoll()
    a.label("L_nobp0")
if OPT["bpe"] >= 2: bp_early()
PA = O
WT = Q; FS = Q + 4; P = Q + 8; TT = KF
FPOLL = {0: f"""
v_mov_b32 v{FS}, 0
v_mov_b32 v{FS+1}, 0
buffer_atomic_or_x2 v[{FS}:{FS+1}], v{FPA}, s[12:15], s95 offen sc0 sc1
""", 1: f"buffer_load_dwordx2 v[{FS}:{FS+1}], v{FPA}, s[12:15], s95 offen sc1",
2: f"""
v_mov_b32 v{FS}, v{VNS}
v_mov_b32 v{FS+1}, 0
v_mov_b32 v{FS+2}, v{VNS}
v_mov_b32 v{FS+3}, 0
buffer_atomic_cmpswap_x2 v[{FS}:{FS+3}], v{FPA}, s[12:15], s95 offen sc0 sc1
""", 3: f"buffer_load_dwordx2 v[{FS}:{FS+1}], v{FPA}, s[12:15], s95 offen sc0 sc1 nt",
4: f"""
v_mov_b32 v{FS}, 0
v_mov_b32 v{FS+1}, 0
buffer_atomic_umax_x2 v[{FS}:{FS+1}], v{FPA}, s[12:15], s95 offen sc0 sc1
""", 5: f"""
v_mov_b32 v{FS}, 0
v_mov_b32 v{FS+1}, 0
buffer_atomic_or_x2 v[{FS}:{FS+1}], v{FPA}, s[12:15], s95 offen sc0 sc1 nt
"""}[OPT["fpol"]]
a(f"""
s_movk_i32 s22, 0xff
s_mov_b32 s23, 0
L_f1:
s_mov_b64 exec, s[22:23]
{FPOLL}
s_sub_u32 s76, s76, 1
s_waitcnt vmcnt(0)
v_xor_b32 v{T}, v{FS}, v{VNS}
v_and_b32 v{T}, 0xff, v{T}
v_xor_b32 v{T+1}, v{FS+1}, v{VNS}
v_or_b32 v{T}, v{T}, v{T+1}
v_cmp_eq_u32 vcc, 0, v{T}
s_cbranch_vccz L_f1n
s_mov_b32 s25, vcc_lo
""")
def pload(k):
    if not OPT["nopart"]: a(f"buffer_load_dwordx4 v[{PA+4*k}:{PA+4*k+3}], v{X+7}, s[12:15], s74 offen offset:{1024*k} sc1")
if OPT["inc"]:
    for k in range(4):
        a(f"""
s_bfe_i32 exec_lo, s25, {hex(0x10000 + 2*k)}
s_bfe_i32 exec_hi, s25, {hex(0x10000 + 2*k + 1)}
""")
        pload(k)
a(f"""
s_andn2_b32 s22, s22, s25
s_cbranch_scc0 L_f1done
L_f1n:
s_cmp_eq_u32 s76, 0
s_cbranch_scc1 L_f1done
{"s_sleep %d" % OPT['f1slp'] if OPT['f1slp'] else ""}
""")
if OPT["f1th"]:
    a(f"""
s_bcnt1_i32_b32 s25, s22
s_cmp_le_u32 s25, {OPT['f1th']}
s_cbranch_scc1 L_f1
s_sleep {OPT['f1sl2']}
""")
a(f"""
s_branch L_f1
L_f1done:
s_mov_b64 exec, -1
""")
if not OPT["inc"]:
    for k in range(4): pload(k)
if OPT["bpe"] == 1: bp_early()
if OPT["stamps"]: a("s_memrealtime s[100:101]")
red8(T, "v_max_f32", FS)
a(f"""
v_sub_f32 v{FS}, v{FS}, v{T}
v_exp_f32 v{FS}, v{FS}
""")
red8(T, "v_add_f32", FS)
a(f"""
v_rcp_f32 v{T}, v{T}
v_mul_f32 v{FS}, v{FS}, v{T}
""")
for x in range(8): a(f"v_readlane_b32 s{32+x}, v{FS}, {x}")
for k in range(4): a(f"v_mov_b32 v{WT+k}, s{32+2*k+1}")
a("s_mov_b32 exec_hi, 0")
for k in range(4): a(f"v_mov_b32 v{WT+k}, s{32+2*k}")
def tag_chk(grans, t):
    for n_, r in enumerate(grans):
        a(f"v_perm_b32 v{t+2*n_}, v{r+1}, v{r}, s{SEL+4}\nv_perm_b32 v{t+2*n_+1}, v{r+3}, v{r+2}, s{SEL+5}")
    for n_, r in enumerate(grans):
        a(f"v_xor_b32 v{t+2*n_}, v{t+2*n_}, v{VNS}")
    for n_, r in enumerate(grans):
        a(f"v_xor_b32 v{t+2*n_}, v{t+2*n_}, v{t+2*n_+1}")
    if len(grans) == 4:
        a(f"v_or3_b32 v{t}, v{t}, v{t+2}, v{t+4}\nv_or_b32 v{t}, v{t}, v{t+6}")
    else:
        a(f"v_or_b32 v{t}, v{t}, v{t+2}")
    a(f"v_cmp_ne_u32 vcc, 0, v{t}")
a.label("L_pchk")
a("s_mov_b64 exec, -1\ns_waitcnt vmcnt(0)")
for k in range(4):
    for j in range(4): a(f"v_{'mul' if k == 0 else 'fmac'}_f32 v{P+j}, v{WT+k}, v{PA+4*k+j}")
a(f"""
v_permlane32_swap_b32 v{P}, v{P+2}
v_permlane32_swap_b32 v{P+1}, v{P+3}
v_add_f32 v{P}, v{P}, v{P+2}
v_add_f32 v{P+1}, v{P+1}, v{P+3}
v_cvt_pk_bf16_f32 v{P}, v{P}, v{P+1}
ds_write_b32 v{X+10}, v{P}
""")
tag_chk([PA+4*k for k in range(4)], TT)
if not OPT["nopart"]: a("s_cbranch_vccnz L_prep")
a.label("L_pdone")
stamp(4)
BB = AA + 8
def bpoll():
    for k in range(2):
        a(f"buffer_load_dwordx4 v[{BB+4*k}:{BB+4*k+3}], v{X+13}, s[12:15], s98 offen offset:{2048*k} sc1")
a(f"s_cmp_lg_u32 s3, {OPT['fin']}\ns_cbranch_scc1 L_nobp")
if not OPT["bdel"] and OPT["bpe"] in (0, 3): bpoll()
a(f"""
L_nobp:
s_cmp_gt_u32 s3, 3
s_waitcnt lgkmcnt(0)
s_barrier
s_cbranch_scc1 L_nomm
""")
for s_ in range(4):
    a(f"ds_read_b128 v[{PA+4*s_}:{PA+4*s_+3}], v{X+12} offset:{64*s_}")
    if OPT["lb"]: aw_rd(s_)
D_ = PA + 16
for s_ in range(4):
    a(f"""
s_waitcnt lgkmcnt({(3-s_)*(3 if OPT["lb"] else 1)})
v_mfma_f32_16x16x32_bf16 v[{D_}:{D_+3}], v[{AW+4*s_}:{AW+4*s_+3}], v[{PA+4*s_}:{PA+4*s_+3}], {"0" if s_ == 0 else f"v[{D_}:{D_+3}]"}
""")
a("s_mov_b64 exec, s[70:71]")
tag_ins(D_, VNS, SEL)
if OPT["xm"]:
    st2("L_as", f"buffer_store_dwordx4 v[{D_}:{D_+3}], v{X+11}, s[12:15], s65 offen")
    a("s_mov_b64 exec, -1")
else:
    a(f"""
{"" if OPT["noa"] else f"buffer_store_dwordx4 v[{D_}:{D_+3}], v{X+11}, s[12:15], s65 offen"}
{"" if OPT["nob"] else f"buffer_store_dwordx4 v[{D_}:{D_+3}], v{X+11}, s[12:15], s64 offen sc1"}
s_mov_b64 exec, -1
""")
a.label("L_nomm")
stamp(5)
if OPT["hbn"]:
    a(f"""
s_cmp_eq_u32 s3, {OPT['fin']}
s_cbranch_scc1 L_nofar
s_mov_b64 exec, 0xffff
buffer_store_dwordx4 v[{X+16}:{X+19}], v{X+25}, s[12:15], s63 offen sc1
s_cmp_lg_u32 s3, {OPT['fin']+1}
s_cbranch_scc1 L_nofar
ds_read_b128 v[{T}:{T+3}], v{X+24} offset:{(-256) & 0xffff}
""" if False else f"""
s_cmp_eq_u32 s3, {OPT['fin']}
s_cbranch_scc1 L_nofar
s_sleep 4
s_mov_b64 exec, 0xffff
buffer_store_dwordx4 v[{X+16}:{X+19}], v{X+25}, s[12:15], s63 offen sc1
s_cmp_lg_u32 s3, {OPT['fin']-1}
s_cbranch_scc1 L_nofar
ds_read_b128 v[{KF}:{KF+3}], v{X+24} offset:256
s_add_u32 s63, s63, 16384
s_waitcnt lgkmcnt(0)
buffer_store_dwordx4 v[{KF}:{KF+3}], v{X+25}, s[12:15], s63 offen sc1
L_nofar:
s_mov_b64 exec, -1
""")
def wstamps():
    a(f"""
s_lshl_b32 s29, s16, 3
s_add_u32 s29, s29, s3
s_lshl_b32 s29, s29, 4
s_add_u32 s29, s29, {STAMP+0x10000}
s_add_u32 s96, s96, {2+NST}
s_waitcnt lgkmcnt(0)
v_mov_b32 v{T}, s84
v_mov_b32 v{T+1}, s85
v_mov_b32 v{T+2}, s82
v_mov_b32 v{T+3}, s96
s_mov_b64 exec, 1
buffer_store_dwordx4 v[{T}:{T+3}], v{ZR}, s[12:15], s29 offen
s_add_u32 s29, s29, 0x8000
s_nop 4
v_mov_b32 v{T}, s86
v_mov_b32 v{T+1}, s88
v_mov_b32 v{T+2}, s90
v_mov_b32 v{T+3}, s77
buffer_store_dwordx4 v[{T}:{T+3}], v{ZR}, s[12:15], s29 offen
s_add_u32 s29, s29, 0x8000
s_nop 4
v_mov_b32 v{T}, s100
buffer_store_dword v{T}, v{ZR}, s[12:15], s29 offen
s_add_u32 s29, s29, 0x8000
s_nop 4
v_mov_b32 v{T}, s4
v_mov_b32 v{T+1}, s6
v_mov_b32 v{T+2}, s8
v_mov_b32 v{T+3}, s10
buffer_store_dwordx4 v[{T}:{T+3}], v{ZR}, s[12:15], s29 offen
s_add_u32 s29, s29, 0x8000
s_nop 4
v_mov_b32 v{T}, s48
v_mov_b32 v{T+1}, s50
v_mov_b32 v{T+2}, s54
v_mov_b32 v{T+3}, s56
buffer_store_dwordx4 v[{T}:{T+3}], v{ZR}, s[12:15], s29 offen
s_mov_b64 exec, -1
s_nop 4
""")
if OPT["stamps"]:
    a(f"s_mov_b32 s77, s76\ns_cmp_eq_u32 s3, {OPT['fin']}\ns_cbranch_scc1 L_fin")
    wstamps()
    a("s_endpgm\nL_fin:")
else:
    a(f"s_cmp_lg_u32 s3, {OPT['fin']}\ns_cbranch_scc1 L_end")
a(f"""
s_mov_b32 s76, {SPIN}
s_movk_i32 s23, {OPT['na']}
""")
srd(60, P_OUT, 8192)
A3 = KF + 8; FB = KF + 12
def red(d, s0):
    for r in range(4): a(f"v_add_f32 v{d+r}, v{s0+r}, v{s0+4+r}")
    a(f"""
v_permlane32_swap_b32 v{d}, v{d+2}
v_permlane32_swap_b32 v{d+1}, v{d+3}
v_add_f32 v{d}, v{d}, v{d+2}
v_add_f32 v{d+1}, v{d+1}, v{d+3}
v_permlane16_swap_b32 v{d}, v{d+1}
v_add_f32 v{d}, v{d}, v{d+1}
v_add_f32_dpp v{d}, v{d}, v{d} row_ror:8 row_mask:0xf bank_mask:0xf
v_add_f32_dpp v{d}, v{d}, v{d} row_ror:4 row_mask:0xf bank_mask:0xf
""")
def gate(d, g):
    a(f"""
v_cvt_pk_bf16_f32 v{d}, v{d}, v{d}
v_lshlrev_b32 v{d}, 16, v{d}
v_mul_f32 v{d}, v{g}, v{d}
v_cvt_pk_bf16_f32 v{d}, v{d}, v{d}
v_lshlrev_b32 v{d}, 16, v{d}
""")
def far(regs):
    if OPT["xm"]:
        a("s_sub_u32 s76, s76, 1"); return
    a(f"s_sub_u32 s23, s23, 1\ns_cselect_b32 s25, {CPB-CPA}, 0")
    for r in regs: a(f"s_add_u32 s{r}, s{r}, s25")
    a("s_sub_u32 s76, s76, 1")
if OPT["bdel"]:
    backoff(OPT["bdel"]); bpoll()
a.label("L_bchk")
a("s_mov_b64 exec, -1")
far([66, 98] if OPT["bpa"] else [66])
a("s_waitcnt vmcnt(0)")
tag_chk([BB, BB+4], TT)
a(f"""
s_cbranch_vccz L_bdone
s_cmp_eq_u32 s76, 0
s_cbranch_scc1 L_bdone
s_mov_b64 exec, vcc
s_sleep {OPT['bsl']}
""")
bpoll()
a("s_branch L_bchk")
a.label("L_bdone")
def fine4(k):
    if OPT["fine"] == 4: a(f"s_memrealtime s[{[4,6,8,10,48,50,54,56][k]}:{[4,6,8,10,48,50,54,56][k]+1}]")
fine4(0)
red(FB, BB); gate(FB, GV+1)
fine4(1)
if OPT["fine"] == 4: a("s_mov_b32 s8, 0")
if OPT["asl0"]: a(f"s_sleep {OPT['asl0']}")
a.label("L_apoll")
for k in range(2):
    a(f"buffer_load_dwordx4 v[{AA+4*k}:{AA+4*k+3}], v{X+13}, s[12:15], s66 offen offset:{2048*k} sc1")
a("s_mov_b64 exec, -1")
far([66])
a("s_waitcnt vmcnt(0)")
if OPT["fine"] == 4: a("s_cmp_lg_u32 s8, 0\ns_cbranch_scc1 L_fx\ns_memrealtime s[8:9]\ns_waitcnt lgkmcnt(0)\nL_fx:")
tag_chk([AA, AA+4], TT)
a(f"""
s_cbranch_vccz L_adone
s_mov_b64 exec, vcc
{"s_sleep %d" % OPT["aslp"] if OPT["aslp"] else ""}
s_cmp_lg_u32 s76, 0
s_cbranch_scc1 L_apoll
s_mov_b64 exec, -1
""")
a.label("L_adone")
fine4(3)
red(A3, AA); gate(A3, GV)
a(f"""
v_add_f32 v{A3}, v{A3}, v{FB}
v_cvt_pk_bf16_f32 v{A3}, v{A3}, v{A3}
""")
a(f"""
s_mov_b32 exec_lo, 0x000f000f
s_mov_b32 exec_hi, 0x000f000f
buffer_store_short v{A3}, v{X+23}, s[60:63], s99 offen
s_mov_b64 exec, -1
""")
if OPT["stamps"]:
    stamp(6)
    wstamps()
    a(f"s_lshl_b32 s29, s16, 6\ns_add_u32 s29, s29, {STAMP}\ns_waitcnt lgkmcnt(0)")
    for k in range(7):
        a(f"v_mov_b32 v{T}, s{80+2*k}\nv_mov_b32 v{T+1}, s{81+2*k}\nbuffer_store_dwordx2 v[{T}:{T+1}], v{ZR}, s[12:15], s29 offen offset:{8*k}\ns_nop 1")
    a(f"v_mov_b32 v{T}, s76\nbuffer_store_dword v{T}, v{ZR}, s[12:15], s29 offen offset:56")
a("s_endpgm")
for t_ in ool: a(t_)
a.label("L_prep")
a(f"""
s_sub_u32 s76, s76, {256 if OPT["stamps"] else 1}
s_cmp_le_i32 s76, 0
s_cbranch_scc1 L_pdone
s_mov_b64 exec, vcc
""")
for k in range(4):
    a(f"buffer_load_dwordx4 v[{PA+4*k}:{PA+4*k+3}], v{X+7}, s[12:15], s74 offen offset:{1024*k} sc1")
a("s_branch L_pchk")
a.label("L_end")
a("s_endpgm")
a.L += ['.section .rodata,"a"', ".p2align 6", f".amdhsa_kernel {NAME}_kernel",
        "  .amdhsa_next_free_vgpr 168", "  .amdhsa_next_free_sgpr 102", "  .amdhsa_accum_offset 168",
        "  .amdhsa_group_segment_fixed_size 0", "  .amdhsa_kernarg_size 104", "  .amdhsa_user_sgpr_count 2",
        "  .amdhsa_user_sgpr_kernarg_segment_ptr 1", "  .amdhsa_system_sgpr_workgroup_id_x 1", ".end_amdhsa_kernel"]
txt, n = a.text()
open(out, "w").write(txt)
print(f"wrote {out}: {len(txt.splitlines())} lines, {n} nops inserted", file=sys.stderr)
```

```python
import sys, struct
from asmlib import Asm
out = sys.argv[1]
OPT = dict(stamps=0, Wp=8, npre=4, hdr=1, stag=10, hslp=32, qslp=8, nse=20, lead=8, t1=448, t2=384, dslp=2,
           np2=1, np3=2, flit=3, slowp=8, bprio=3, maxf=4, tcha=0, tchb=0, asl=36, tpol=1, wqnt=1, ffnt=1, hd=200, qd=64, prew=0, coal=1, pgate=0, bpat=2, slowth=16, fastp=0, bsl=1, adel=90, perm=0, gx=0, noff=252, sperm=4, eager=1024, f1=0, f2=0, f1slp=2, f2slp=1, f2del=0, fmax=4096, f3=0, rsh=2, fdel=170, f3slp=4, lead2=8, t3=420, fw=1, aat=0, aslp=0, apol=1, na=160, xrot=0, asl0=0, bpa=1, fin=4, nob=0, tb=1, prw=0, fine=0, inc=1, f1th=0, f1sl2=16, hbn=0, fo=0, fst=64, fpol=2, fone=4, nopart=0, noa=0, bdel=0, fful=0, mlate=1, fgo=0, px4=1, xm=1, xforce=0, bpe=3, tcw=0, tc0=0, lay=0, tcd=0, col=1, kill=1, t4=400, kill2=0, t5=460, lead3=8, kill0=1, k0at=0, rot=0, r1=0, r2=256, swm=0, ms=-1, mc=0, mr=0, vo=0, numa=0, late=1, tb1=440, tslp=4, lb=2, skip=0, tp=0, tk=0, leadk=12, leadf=10, tf=480, kv=10, cap1=84, nst=5, jit=0, tk2=400, tr=0, tsh=0, il=0, wdel=12, spec=0, snt=0, opol=0, one=1, pd=0, pc=0, pe=5, pslp=2, pw=0, pws=0)
for a_ in sys.argv[2:]:
    k, v = a_.split("="); assert k in OPT, k; OPT[k] = int(v)
if OPT["r1"] or OPT["r2"]: OPT["rot"] = -1
Wp = OPT["Wp"]; NPRE = OPT["npre"]
NAME = "gated_mix__gqa_block_cached__geglu_ffn__decode"
def f32(x): return "0x%08x" % struct.unpack("<I", struct.pack("<f", x))[0]
LOG2E = 1.4426950408889634
SCALE = 128 ** -0.5
QG, HG, ML, BP, PART, AP, STAMP, CNT = 0x0, 0x20000, 0x40000, 0x80000, 0x100000, 0x200000, 0x400000, 0x480000
F1, F2 = 0x60000, 0x70000
FG, CPA, CPB = 0x40000, 0x200000, 0x300000
if OPT['lay']:
    CNT, CPA, PART = 0x80000, 0x100000, 0x200000
OST = 272
XID = 0x60000
CST = 528
CSTR = 4096 + 256
WS_BYTES = 0x500000
FST = OPT['fst']
if OPT['fful']:
    FG = 0x500000; WS_BYTES = FG + 2048*OPT['fful']
elif FST > 64:
    FG = 0x500000; WS_BYTES = FG + 2048*FST
R1 = 0x20000
WO_LDS = R1
R2 = 0x24000
Q_LDS = R2
MISC = R2 + 0x800
MLT = MISC + 0x100
O_LDS = R2 + 0x1000
CH = R2 + 0x1400
WD_LDS = R2 + 0x2000
LDS_BYTES = 0x28000
NU = 1024
NSE = OPT["nse"]; LEAD = OPT["lead"]
TK = MISC + 128
K0 = OPT["kill0"]
NUMA = 0
RING = 12288
SB = 8*RING
NSLOT = 192
SENT = 0x7F817F81
ONET = OPT['one'] and not OPT['tk']
PW = OPT['pw']
PD = OPT['pd'] or PW
T1B = CH; T2B = CH + (4*(NSE + K0) if ONET else 1024)
VB = 0x8000
KN = OPT["kill"]; KV = OPT["kv"]
NST = OPT["nst"]; NSU = 3 + NST
SE = 4*NSU
assert KV <= SE + NSE and SE + NSE <= 63
K0TXT = f"""
v_subrev_u32 v5, {K0*0x10001}, v4
v_cmp_le_u32 vcc, {OPT['k0at']}, v0
v_mov_b32 v6, 512
v_cndmask_b32 v4, v4, v6, vcc
v_cmp_le_u32 vcc, {OPT['k0at'] + K0}, v0
v_cndmask_b32 v4, v4, v5, vcc
""" if K0 else ""
CBASE = 8
DYN0 = 8*SE + 8*NSE
SPIN = 1 << 16
a = Asm()
hdr = open("cdna_kernels/%s.s.ref" % NAME).read().split("; Override launch")[0] if OPT["hdr"] else ""
a.L += [l for l in hdr.rstrip().split("\n")] if hdr else []
a.L.append(f"; @launch grid=(256,1,1) block=(640,1,1) lds={LDS_BYTES}")
a.L += ['.amdgcn_target "amdgcn-amd-amdhsa--gfx950"', ".text", f".globl {NAME}_kernel", ".p2align 8",
        f".type {NAME}_kernel,@function", f"{NAME}_kernel:"]

def srd(d, ptr, nbytes):
    a(f"s_mov_b32 s{d}, s{ptr}\ns_mov_b32 s{d+1}, s{ptr+1}\ns_mov_b32 s{d+2}, {hex(nbytes)}\ns_mov_b32 s{d+3}, 0x00020000")
P_X, P_K, P_V, P_WQ, P_WO, P_BX, P_WG, P_WU, P_WD, P_GW, P_OUT, P_DBG, P_WS = [32 + 2*i for i in range(13)]
def stamp(idx):
    if OPT["stamps"]:
        a(f"s_memrealtime s[{80+2*idx}:{81+2*idx}]")
def any_eq(regs, val, neg=False):
    op = "v_cmp_ne_u32" if neg else "v_cmp_eq_u32"
    a(f"{op} vcc, {val}, v{regs[0]}")
    for r in regs[1:]:
        a(f"{op} s[78:79], {val}, v{r}\ns_or_b64 vcc, vcc, s[78:79]")
def spin_tail(loop, done, sleep=0):
    a(f"""
s_sub_u32 s76, s76, 1
s_cmp_eq_u32 s76, 0
s_cbranch_scc1 {done}
""")
    if sleep:
        a(f"s_cmp_eq_u64 vcc, 0\ns_cbranch_scc1 {done}\ns_sleep {sleep}\ns_branch {loop}")
    else:
        a(f"s_cmp_lg_u64 vcc, 0\ns_cbranch_scc1 {loop}")
    a.label(done)
def xsum(regs, tmps, ror, op="v_add_f32", swaps=("v_permlane16_swap_b32", "v_permlane32_swap_b32")):
    for k in ror:
        for r in regs: a(f"{op}_dpp v{r}, v{r}, v{r} row_ror:{k} row_mask:0xf bank_mask:0xf")
    for sw in swaps:
        for r, t in zip(regs, tmps): a(f"v_mov_b32 v{t}, v{r}")
        for r, t in zip(regs, tmps): a(f"{sw} v{r}, v{t}")
        for r, t in zip(regs, tmps): a(f"{op} v{r}, v{r}, v{t}")
SEL = 42
def tag_consts(base):
    for j in range(4): a(f"s_mov_b32 s{base+j}, {hex(0x07060500 | j)}")
    a(f"s_mov_b32 s{base+4}, 0x0c0c0400\ns_mov_b32 s{base+5}, 0x04000c0c")
def tag_ins(r, vn, base):
    for j in range(4): a(f"v_perm_b32 v{r+j}, v{r+j}, v{vn}, s{base+j}")
def tag_bad(grans, vn, base, acc, t0, t1):
    for n_, r in enumerate(grans):
        a(f"v_perm_b32 v{t0}, v{r+1}, v{r}, s{base+4}\nv_perm_b32 v{t1}, v{r+3}, v{r+2}, s{base+5}")
        if n_ == 0:
            a(f"v_or_b32 v{acc}, v{t0}, v{t1}\nv_xor_b32 v{acc}, v{acc}, v{vn}")
        else:
            a(f"v_or_b32 v{t0}, v{t0}, v{t1}\nv_xor_b32 v{t0}, v{t0}, v{vn}\nv_or_b32 v{acc}, v{acc}, v{t0}")
def hstamps(first, n):
    if OPT["stamps"]:
        a(f"s_mov_b64 exec, -1\ns_lshl_b32 s29, s16, 7\ns_add_u32 s29, s29, {STAMP+0x8000+8*first}\ns_waitcnt lgkmcnt(0)\nv_mov_b32 v3, 0")
        for k in range(n):
            a(f"v_mov_b32 v4, s{80+2*k}\nv_mov_b32 v5, s{81+2*k}\nbuffer_store_dwordx2 v[4:5], v3, s[12:15], s29 offen offset:{8*k}\ns_nop 1")

def trn(d):
    tr = OPT["tr"]; ts = 3 + OPT["tsh"]
    if not tr: return ""
    return f"""
s_and_b32 s100, {d}, {(1 << tr) - 1}
s_lshl_b32 s100, s100, {ts}
s_bfe_u32 s101, {d}, {hex((ts << 16) | tr)}
s_andn2_b32 {d}, {d}, {(1 << (tr+ts)) - 1}
s_or_b32 {d}, {d}, s100
s_or_b32 {d}, {d}, s101
"""
def backoff(n):
    while n > 0:
        a(f"s_sleep {min(n, 127)}"); n -= 127
def touch():
    a(f"""
s_mov_b64 exec, 0xffff
v_lshlrev_b32 v9, 7, v0
s_lshl_b32 s25, s17, 17
s_lshr_b32 s26, s18, 1
s_lshl_b32 s26, s26, 13
s_add_u32 s25, s25, s26
s_and_b32 s26, s18, 1
s_lshl_b32 s26, s26, 11
s_add_u32 s25, s25, s26
s_add_u32 s25, s25, {CPA}
buffer_load_dword v16, v9, s[12:15], s25 offen {['', 'sc1', 'nt'][OPT['tpol']]}
""")

XROT = "s_mov_b32 s16, s2" if not OPT["xrot"] else f"""
s_lshr_b32 s18, s2, 3
s_mul_i32 s17, s18, {OPT['xrot']}
s_add_u32 s17, s17, s2
s_and_b32 s17, s17, 7
s_andn2_b32 s16, s2, 7
s_or_b32 s16, s16, s17
"""
a("""
s_cmp_ge_u32 s2, 256
s_cbranch_scc1 L_end
s_load_dwordx16 s[32:47], s[0:1], 0
s_load_dwordx8 s[48:55], s[0:1], 64
s_load_dwordx2 s[56:57], s[0:1], 96
""")
stamp(0)
a(f"""
v_lshrrev_b32 v1, 6, v0
v_and_b32 v0, 63, v0
s_and_b32 s17, s2, 7
v_readfirstlane_b32 s3, v1
{XROT}
s_lshr_b32 s18, s16, 3
s_and_b32 s19, s18, 7
s_lshr_b32 s20, s18, 3
s_xor_b32 s20, s20, {OPT['gx']}
s_cmp_lt_u32 s3, 8
s_cbranch_scc1 L_stream
v_and_b32 v10, 15, v0
v_lshrrev_b32 v11, 4, v0
v_lshlrev_b32 v2, 4, v11
v_lshl_add_u32 v2, v10, 10, v2
v_lshrrev_b32 v3, 1, v0
v_and_b32 v4, 1, v0
v_lshlrev_b32 v4, 4, v4
v_mov_b32 v13, 0
s_cmp_eq_u32 s3, 9
s_cbranch_scc1 L_hb
""")
AFR = 16; D0 = 48; WDV = 64; GX = 16; GW = 32; XF = 100; GG = 164; VN = 166; CP = 60
def frag_addr():
    a(f"""
v_lshrrev_b32 v8, 2, v10
v_lshl_add_u32 v8, v11, 3, v8
v_lshlrev_b32 v9, 5, v8
v_and_b32 v8, 3, v0
v_lshl_add_u32 v9, v8, 3, v9
v_add_u32 v9, {R1}, v9
v_cmp_gt_u32 s[58:59], 8, v10
v_bfe_u32 v{CP+1}, v0, 2, 3
v_and_b32 v{CP+2}, 3, v0
v_lshl_add_u32 v{CP}, v{CP+2}, 4, v{CP+1}
v_lshlrev_b32 v{CP}, 2, v{CP}
""")
def gemv(va, Dr):
    def rd(bt):
        base = AFR + 16*(bt & 1)
        for k in range(4):
            t = 4*bt + k
            a(f"ds_read_b64_tr_b16 v[{base+4*k}:{base+4*k+1}], v{va} offset:{1024*t}")
            a(f"ds_read_b64_tr_b16 v[{base+4*k+2}:{base+4*k+3}], v{va} offset:{1024*t+128}")
    rd(0)
    for bt in range(4):
        if bt < 3:
            rd(bt+1); a("s_waitcnt lgkmcnt(8)")
        else:
            a("s_waitcnt lgkmcnt(0)")
        base = AFR + 16*(bt & 1)
        for k in range(4):
            t = 4*bt + k
            c = "0" if t == 0 else f"v[{Dr}:{Dr+3}]"
            a(f"v_mfma_f32_16x16x32_bf16 v[{Dr}:{Dr+3}], v[{base+4*k}:{base+4*k+3}], v[{XF+4*t}:{XF+4*t+3}], {c}")
a(f"""
s_setprio 3
s_memrealtime s[74:75]
s_mul_i32 s21, s17, {OPT['sperm']}
s_add_u32 s21, s21, s18
s_and_b32 s21, s21, 31
s_lshl_b32 s25, s17, 5
s_add_u32 s21, s21, s25
v_lshl_add_u32 v1, v3, 13, v4
s_lshl_b32 s25, s21, 5
v_add_u32 v1, s25, v1
s_mov_b64 s[72:73], 1
v_mov_b32 v15, {OPT['noff']}
v_lshlrev_b32 v3, 4, v0
s_waitcnt lgkmcnt(0)
""")
stamp(8)
srd(68, P_DBG, 256)
a(f"""
s_cmp_ge_u32 s16, 8
s_cbranch_scc1 L_nononce
s_or_b32 s74, s74, 1
v_mov_b32 v12, s74
s_mov_b64 exec, s[72:73]
buffer_atomic_cmpswap v[12:13], v15, s[68:71], 0 offen sc1
s_mov_b64 exec, -1
""")
a.label("L_nononce")
srd(60, P_WQ, 512*4096*2); srd(64, P_X, 8192)
a("s_mov_b32 s25, 0")
for t in range(16):
    a(f"s_mov_b32 m0, {R1 + 1024*t}")
    if t and not OPT["skip"] & 8: a(f"s_mov_b32 s25, {t*32*8192}")
    a(f"buffer_load_dwordx4 v1, s[60:63], s25 offen {'nt ' if OPT['wqnt'] else ''}lds")
for s_ in range(16):
    a(f"buffer_load_dwordx4 v[{XF+4*s_}:{XF+4*s_+3}], v2, s[64:67], 0 offen offset:{64*s_}")
srd(12, P_WS, WS_BYTES)
CNTA = f"""s_mul_i32 s77, s18, {CSTR}
s_add_u32 s77, s77, {CNT}
s_cmp_lg_u32 s17, 0""" if not NUMA else f"""s_lshr_b32 s75, s17, 2
s_lshl_b32 s77, s18, 1
s_add_u32 s77, s77, s75
s_mul_i32 s77, s77, {CSTR}
s_add_u32 s77, s77, {CNT}
s_xor_b32 s75, s75, s19
s_xor_b32 s75, s75, {NUMA-1}
s_and_b32 s75, s75, 1
s_and_b32 s25, s17, 3"""
STAT = f"""
ds_write_b64 v2, v[4:5] offset:144
v_lshl_add_u32 v35, v0, 16, v0
s_mul_i32 s25, s17, {NSE}
s_add_u32 s26, s25, {8*SE - SE + VB}
v_add_u32 v4, s26, v35
v_lshrrev_b32 v5, 2, v0
v_mul_u32_u24 v5, 28, v5
s_lshl_b32 s26, s17, 2
s_add_u32 s26, s26, {VB}
v_add3_u32 v5, v5, s26, v35
v_cmp_gt_u32 vcc, {64 if OPT["il"] else SE}, v0
v_cndmask_b32 v4, v4, v5, vcc
v_lshlrev_b32 v1, 2, v0
v_add_u32 v5, {4*KN}, v1
v_cmp_gt_u32 vcc, {KV}, v0
v_cndmask_b32 v5, v5, v1, vcc
v_add_u32 v5, {T2B}, v5
""" + (f"""
v_mov_b32 v66, v5
v_mov_b32 v67, v4
""" if PD else f"""
s_bfm_b64 exec, {SE + NSE}, 0
ds_write_b32 v5, v4
""") + (f"""
v_mov_b32 v4, 512
v_add_u32 v5, {T2B + 4*KV}, v1
s_mov_b64 exec, {(1 << KN) - 1}
ds_write_b32 v5, v4
""" if KN else "") + f"""
s_mov_b64 exec, -1
s_add_u32 s25, s25, {8*SE + (SE << 16)}
v_add_u32 v4, s25, v35
""" + (f"""
v_subrev_u32 v6, {K0}, v0
v_cmp_gt_u32 vcc, {OPT['k0at'] + K0}, v0
v_cndmask_b32 v6, v6, v0, vcc
v_lshrrev_b32 v6, 2, v6
v_mul_u32_u24 v6, 28, v6
s_add_u32 s26, s26, {8*SE + (SE << 16) - VB}
v_add3_u32 v4, v6, s26, v35
""" if OPT["il"] else "")
QCH = f"""s_lshl_b32 s27, s18, 6""" if not NUMA else f"""s_and_b32 s27, s17, 4
s_mul_i32 s28, s27, {OPT['sperm']}
s_add_u32 s28, s28, s18
s_and_b32 s28, s28, 31
s_lshl_b32 s27, s27, 5
s_add_u32 s27, s27, s28
s_lshl_b32 s27, s27, 6"""
a(f"""
{CNTA}
s_cbranch_scc1 L_nocnt
v_mov_b32 v14, {CBASE}
s_mov_b64 exec, s[72:73]
buffer_store_dword v14, v13, s[12:15], s77 offen sc1
""" + ("""
v_mov_b32 v4, 0
v_mov_b32 v5, 0
v_mov_b32 v6, 0
v_mov_b32 v7, 0
buffer_store_dwordx4 v[4:7], v13, s[12:15], s77 offen offset:128 sc1
buffer_store_dwordx4 v[4:7], v13, s[12:15], s77 offen offset:144 sc1
""" if PW else "") + """
s_mov_b64 exec, -1
""")
a.label("L_nocnt")
a(f"""
buffer_load_dword v12, v15, s[68:71], 0 offen sc1
v_mov_b32 v4, -1
v_mov_b32 v5, -1
v_mov_b32 v6, -1
v_mov_b32 v7, -1
v_add_u32 v1, {CH}, v3
ds_write_b128 v1, v[4:7]
ds_write_b128 v1, v[4:7] offset:1024
ds_write_b128 v1, v[4:7] offset:2048
v_mov_b32 v2, {MISC}
v_mov_b32 v4, 0
v_mov_b32 v5, 0
v_mov_b32 v6, 0
v_mov_b32 v7, 0
ds_write_b128 v2, v[4:7] offset:128
{STAT}
v_lshlrev_b32 v1, 2, v0
v_add_u32 v1, {CH}, v1
{K0TXT}
v_cmp_gt_u32 vcc, {min(PW, NSE + K0) if PW else K0 if PD else NSE + K0}, v0
v_mov_b32 v64, v1
v_mov_b32 v65, v4
s_mov_b64 exec, vcc
ds_write_b32 v1, v4
s_mov_b64 exec, -1
""")
frag_addr()
a(f"s_mov_b32 s76, {SPIN}\ns_waitcnt lgkmcnt(0)")
stamp(7)
a("s_barrier")
stamp(1)
a("s_waitcnt vmcnt(0)")
a.label("L_np")
a(f"""
v_readfirstlane_b32 s74, v12
s_sub_u32 s76, s76, 1
s_cmp_eq_u32 s76, 0
s_cbranch_scc1 L_np_done
s_cmp_lg_u32 s74, 0
s_cbranch_scc1 L_np_done
buffer_load_dword v12, v15, s[68:71], 0 offen sc1
s_waitcnt vmcnt(0)
s_branch L_np
""")
a.label("L_np_done")
stamp(2)
gemv(9, D0)
a(f"""
v_mov_b32 v5, s74
v_mov_b32 v7, s74
v_mov_b32 v8, 1
ds_write_b32 v2, v5 offset:96
ds_write_b32 v2, v8 offset:136
s_lshl_b32 s25, s21, 6
s_add_u32 s25, s25, {QG}
v_cvt_pk_bf16_f32 v4, v{D0}, v{D0+1}
v_cvt_pk_bf16_f32 v6, v{D0+2}, v{D0+3}
""")
if OPT["coal"]:
    a(f"""
ds_bpermute_b32 v4, v{CP}, v4
ds_bpermute_b32 v6, v{CP}, v6
v_lshlrev_b32 v14, 4, v{CP+2}
v_lshl_add_u32 v14, v{CP+1}, 14, v14
s_mov_b32 exec_hi, 0
s_waitcnt lgkmcnt(0)
""")
else:
    a(f"""
v_lshlrev_b32 v14, 4, v11
v_lshl_add_u32 v14, v10, 14, v14
s_mov_b64 exec, s[58:59]
""")
a(f"""
buffer_store_dwordx4 v[4:7], v14, s[12:15], s25 offen sc1
s_mov_b64 exec, -1
""")
stamp(3)
a(f"""
s_lshl_b32 s25, s20, 15
s_lshl_b32 s26, s19, 11
s_add_u32 s25, s25, s26
s_add_u32 s25, s25, {QG}
s_add_u32 s26, s25, 16384
{QCH}
s_add_u32 s27, s27, {QG}
s_mov_b32 s76, {SPIN}
""")
backoff(OPT["qd"])
a.label("L_qpoll")
a(f"""
buffer_load_dwordx4 v[16:19], v3, s[12:15], s25 offen sc1
buffer_load_dwordx4 v[20:23], v3, s[12:15], s25 offen offset:1024 sc1
buffer_load_dwordx4 v[24:27], v3, s[12:15], s26 offen sc1
buffer_load_dwordx4 v[28:31], v3, s[12:15], s26 offen offset:1024 sc1
buffer_load_dwordx4 v[32:35], v13, s[12:15], s27 offen sc1
s_waitcnt vmcnt(0)
""")
any_eq(list(range(17, 36, 2)), "s74", neg=True)
spin_tail("L_qpoll", "L_qdone", sleep=OPT["qslp"])
stamp(4)
a(f"""
v_mov_b32 v17, v18
v_mov_b32 v21, v22
v_mov_b32 v25, v26
v_mov_b32 v29, v30
v_lshlrev_b32 v1, 3, v0
v_add_u32 v1, {Q_LDS}, v1
ds_write_b64 v1, v[16:17]
ds_write_b64 v1, v[20:21] offset:512
ds_write_b64 v1, v[24:25] offset:1024
ds_write_b64 v1, v[28:29] offset:1536
s_waitcnt lgkmcnt(0)
ds_write_b32 v2, v8 offset:132
""")
stamp(5)
a(f"""
s_mov_b32 s21, {NSE + K0}
s_mov_b32 s22, {NSE + K0}
s_mov_b32 s20, {SE + NSE}
s_mov_b32 s19, {SE + NSE}
s_mov_b32 s23, 0
s_mov_b32 s24, 0
s_mov_b32 s26, 0
s_mov_b32 s27, 0
s_mov_b32 s28, 0
s_mov_b32 s29, {0 if OPT['tk'] else 1}
v_mov_b32 v4, 0
v_lshl_add_u32 v5, v0, 16, v0
s_mov_b32 s76, {SPIN*64}
""")
FST1 = """s_cmp_lg_u32 s60, 0
s_cbranch_scc1 L_fs1
s_mov_b32 s60, 1
s_memrealtime s[82:83]
L_fs1:"""
def disp(p):
    tb = T1B if ONET else (T1B, T2B)[p]
    a(f"""
L_disp{p}:
s_mov_b64 exec, 1
ds_read_b32 v6, v2 offset:{128 if ONET else (128, 144)[p]}
s_sub_u32 s76, s76, 1
s_cmp_le_i32 s76, 0
s_cbranch_scc1 L_dexh{p}
s_cmp_eq_u32 s24, 0
s_cbranch_scc1 L_noc{p}
v_readlane_b32 s25, v4, s27
s_cmp_lt_u32 s25, {CBASE}
s_cbranch_scc1 L_noc{p}
s_and_b32 s30, s23, 15
s_lshr_b32 s23, s23, 4
s_sub_u32 s24, s24, 1
s_add_u32 s27, s27, 1
s_and_b32 s27, s27, 7
s_add_u32 s25, s25, {DYN0 - CBASE}
s_add_u32 s28, s25, s30
s_sub_i32 s31, 512, s25
s_max_i32 s31, s31, 0
s_min_i32 s31, s31, s30
s_cmp_ge_u32 s28, {(OPT['tk'], 512)[p]}
s_cselect_b32 s29, 1, s29
s_cmp_eq_u32 s31, 0
s_cbranch_scc1 L_noc{p}
s_bfm_b64 exec, s31, 0
s_lshl_b32 s30, s20, 16
s_add_u32 s25, s25, s30
v_add_u32 v7, s25, v5
s_lshl_b32 s25, s22, 2
s_add_u32 s25, s25, {tb}
v_lshl_add_u32 v8, v0, 2, s25
ds_write_b32 v8, v7
s_add_u32 s22, s22, s31
s_lshl_b32 s25, {('s20', 's22')[p]}, 2
s_add_u32 s25, s25, {(T2B + 4*KN, tb)[p]}
v_or_b32 v9, {VB}, v7
v_lshl_add_u32 v14, v0, 2, s25
ds_write_b32 v14, v9
s_add_u32 s20, s20, s31
{('', 's_add_u32 s22, s22, s31')[p]}
L_noc{p}:
s_cmp_lg_u32 s29, 0
s_cbranch_scc1 L_exh{p}
s_cmp_ge_u32 s24, {OPT['maxf']}
s_cbranch_scc1 L_dslp{p}
s_waitcnt lgkmcnt(0)
v_readfirstlane_b32 s25, v6
s_lshl_b32 s30, s21, 1
s_add_u32 s25, s25, {(OPT['leadk'], OPT['leadf'])[p]}
s_cmp_ge_u32 s30, s25
s_cbranch_scc1 L_dslp{p}
s_cmp_ge_u32 s28, {(OPT['tk2'], OPT['tf'])[p]}
s_cselect_b32 s30, {(2, 1)[p]}, {(4, 2)[p]}
s_add_u32 s25, s19, s30
s_cmp_gt_u32 s25, {(OPT['cap1'], NSLOT//2)[p]}
s_cselect_b32 s29, 1, 0
s_cbranch_scc1 L_exh{p}
s_mov_b32 s19, s25
{FST1 if p and OPT["stamps"] else ""}
s_lshl_b64 exec, 1, s26
v_mov_b32 v4, s30
buffer_atomic_add v4, v13, s[12:15], s77 offen sc0 sc1
s_lshl_b32 s25, s24, 2
s_lshl_b32 s25, s30, s25
s_or_b32 s23, s23, s25
s_add_u32 s24, s24, 1
s_add_u32 s21, s21, s30
{('', 's_add_u32 s21, s21, s30')[p]}
s_add_u32 s26, s26, 1
s_and_b32 s26, s26, 7
s_branch L_disp{p}
L_exh{p}:
s_cmp_eq_u32 s24, 0
s_cbranch_scc1 L_dexh{p}
L_dslp{p}:
s_sleep {OPT['dslp']}
s_branch L_disp{p}
L_dexh{p}:
s_mov_b64 exec, 0xff
s_lshl_b32 s25, s22, 2
s_add_u32 s25, s25, {tb}
v_lshl_add_u32 v8, v0, 2, s25
v_mov_b32 v7, {(513, 512)[p]}
ds_write_b32 v8, v7
""")
if not ONET: disp(0)
TOT = NSE + K0 + SE + NSE
if PW:
    a(f"""
s_movk_i32 s30, 300
v_lshlrev_b32 v9, 2, v0
v_cmp_eq_u32 s[60:61], s17, v0
v_mov_b32 v14, 0x7fff
L_rel:
s_mov_b64 exec, 0xff
ds_read_b32 v6, v2 offset:128
s_sub_u32 s30, s30, 1
s_waitcnt lgkmcnt(0)
v_lshrrev_b32 v6, 1, v6
v_cndmask_b32 v8, 0, v6, s[60:61]
buffer_atomic_umax v8, v9, s[12:15], s77 offen offset:128 sc0 sc1
v_readfirstlane_b32 s62, v6
s_waitcnt vmcnt(0)
v_cndmask_b32 v8, v8, v14, s[60:61]
v_min_u32_dpp v8, v8, v8 quad_perm:[1,0,3,2] row_mask:0xf bank_mask:0xf
v_min_u32_dpp v8, v8, v8 quad_perm:[2,3,0,1] row_mask:0xf bank_mask:0xf
v_min_u32_dpp v8, v8, v8 row_half_mirror row_mask:0xf bank_mask:0xf
v_readfirstlane_b32 s25, v8
s_add_u32 s25, s25, {PW}
s_cmp_ge_u32 s25, {TOT - OPT['pe']}
s_cselect_b32 s25, 255, s25
s_cmp_eq_u32 s30, 0
s_cselect_b32 s25, 255, s25
s_cselect_b32 s62, 255, s62
s_min_i32 s31, s25, {NSE + K0}
s_bfm_b64 exec, s31, 0
ds_write_b32 v64, v65
s_sub_i32 s31, s25, {NSE + K0}
s_cmp_le_i32 s31, 0
s_cbranch_scc1 L_rel2
s_min_i32 s31, s31, {SE + NSE}
s_bfm_b64 exec, s31, 0
ds_write_b32 v66, v67
s_cmp_lg_u32 s25, 255
s_cbranch_scc1 L_rel2
s_cmp_ge_u32 s62, {TOT - OPT['pe'] - PW}
s_cbranch_scc1 L_reld
L_rel2:
{f"s_sleep {OPT['pws']}" if OPT['pws'] else ""}
s_branch L_rel
L_reld:
""")
elif PD:
    a(f"""
s_movk_i32 s30, 1000
L_rel:
s_memrealtime s[60:61]
s_sub_u32 s30, s30, 1
s_waitcnt lgkmcnt(0)
s_sub_u32 s25, s60, s74
s_sub_i32 s25, s25, {OPT['pc']}
s_max_i32 s25, s25, 0
s_min_i32 s25, s25, 0x8000
s_mul_i32 s25, s25, {int(655360/PD)}
s_lshr_b32 s25, s25, 16
s_cmp_eq_u32 s30, 0
s_cselect_b32 s25, 255, s25
s_cmp_ge_u32 s25, {2*(SE+NSE) - OPT['pe']}
s_cselect_b32 s25, 255, s25
s_sub_i32 s31, s25, {SE - K0}
s_min_i32 s31, s31, {NSE + K0}
s_max_i32 s31, s31, 1
s_bfm_b64 exec, s31, 0
ds_write_b32 v64, v65
s_sub_i32 s31, s25, {SE + NSE}
s_cmp_le_i32 s31, 0
s_cbranch_scc1 L_rel2
s_min_i32 s31, s31, {SE + NSE}
s_bfm_b64 exec, s31, 0
ds_write_b32 v66, v67
s_cmp_eq_u32 s25, 255
s_cbranch_scc1 L_reld
L_rel2:
s_sleep {OPT['pslp']}
s_branch L_rel
L_reld:
""")
if OPT["stamps"]: stamp(7); a("s_mov_b32 s96, s20\ns_mov_b32 s60, 0")
a(f"""
s_add_u32 s21, s20, {KN + (NSE + K0 if ONET else 0)}
s_mov_b32 s22, s21
s_cmp_ge_u32 s28, 512
s_cselect_b32 s29, 1, 0
""")
disp(1)
if OPT["stamps"]: a("s_mov_b32 s97, s20")
stamp(6)
if OPT["tcha"]: touch()
hstamps(0, 9)
a("s_waitcnt lgkmcnt(0)\ns_endpgm")

a.label("L_hb")
if OPT["bprio"]: a(f"s_setprio {OPT['bprio']}")
a(f"""
s_min_u32 s22, s18, 27
s_lshr_b32 s22, s22, 1
s_mul_i32 s25, s17, 14
s_add_u32 s22, s22, s25
s_and_b32 s23, s18, 1
s_movk_i32 s25, 3584
v_mul_lo_u32 v5, v3, s25
v_add_u32 v5, v5, v4
s_lshl_b32 s25, s22, 5
v_add_u32 v5, s25, v5
v_lshrrev_b32 v6, 3, v0
v_and_b32 v7, 7, v0
v_lshlrev_b32 v7, 4, v7
v_lshl_add_u32 v6, v6, 10, v7
v_lshlrev_b32 v3, 4, v0
""")
frag_addr()
a(f"""
v_mov_b32 v16, 0
v_mov_b32 v17, 0
v_mov_b32 v18, 0
v_mov_b32 v19, 0
v_add_u32 v1, {WD_LDS}, v3
ds_write_b128 v1, v[16:19] offset:7168
v_mov_b32 v15, {MISC}
s_waitcnt lgkmcnt(0)
""")
srd(64, P_X, 8192); srd(12, P_WS, WS_BYTES); srd(4, P_WD, 1792*512*2); srd(8, P_GW, 1024); srd(60, P_WO, 4096*512*2)
a(f"""
s_cmp_eq_u32 s23, 0
s_cselect_b32 s68, s{P_WG}, s{P_WU}
s_cselect_b32 s69, s{P_WG+1}, s{P_WU+1}
s_mov_b32 s70, {512*1792*2}
s_mov_b32 s71, 0x00020000
s_lshl_b32 s27, s17, 7
s_mul_i32 s26, s18, {56*1024}
s_add_u32 s26, s26, s27
s_and_b32 s25, s18, 1
s_lshl_b32 s25, s25, 12
v_lshrrev_b32 v12, 2, v0
v_lshlrev_b32 v12, 6, v12
v_and_b32 v7, 3, v0
v_lshl_add_u32 v7, v7, 10, v12
""")
def touch0():
    a(f"""
v_lshlrev_b32 v92, 7, v0
s_lshl_b32 s28, s17, 17
s_lshr_b32 s29, s18, 1
s_lshl_b32 s29, s29, 13
s_add_u32 s28, s28, s29
s_and_b32 s29, s18, 1
s_lshl_b32 s29, s29, {11 if OPT["tc0"] == 1 else 12}
s_add_u32 s28, s28, s29
s_add_u32 s28, s28, {CPA}
s_mov_b64 exec, {"0xffff" if OPT["tc0"] == 1 else "0xffffffff"}
buffer_load_dword v93, v92, s[12:15], s28 offen {['', 'sc1', 'nt'][OPT['tpol']]}
s_mov_b64 exec, -1
""")
if OPT["tc0"] and not OPT["tcd"]: touch0()
a("s_barrier")
for s_ in range(16):
    a(f"buffer_load_dwordx4 v[{XF+4*s_}:{XF+4*s_+3}], v2, s[64:67], 0 offen offset:{64*s_}")
LATE = OPT["late"]
if LATE & 2: a("s_mov_b32 s72, s26")
for t in range(0 if LATE & 2 or OPT["skip"] & 2 else 7):
    a(f"buffer_load_dwordx4 v[{WDV+4*t}:{WDV+4*t+3}], v6, s[4:7], s26 offen nt")
    if t < 6: a("s_add_u32 s26, s26, 8192")
a(f"""
s_mov_b32 s76, {SPIN*16}
""")
for k in range(4):
    a(f"buffer_load_dwordx4 v[{GX+4*k}:{GX+4*k+3}], v7, s[64:67], s25 offen offset:{16*k}")
    a(f"buffer_load_dwordx4 v[{GW+4*k}:{GW+4*k+3}], v12, s[8:11], 0 offen offset:{16*k}")
a.label("L_r1w")
a(f"""
ds_read_b32 v8, v15 offset:136
s_waitcnt lgkmcnt(0)
v_cmp_eq_u32 vcc, 0, v8
""")
spin_tail("L_r1w", "L_r1done", sleep=2)
stamp(1)
a(f"""
ds_read_b32 v{VN}, v15 offset:96
s_mov_b32 s25, 0
""")
for t in range(16):
    a(f"s_mov_b32 m0, {R1 + 1024*t}")
    if t and not OPT["skip"] & 4: a(f"s_mov_b32 s25, {t*32*3584}")
    a(f"buffer_load_dwordx4 v5, s[68:71], s25 offen {'nt ' if OPT['ffnt'] else ''}lds")
a(f"""
s_lshl_b32 s25, s22, 2
v_add_u32 v13, s25, v{CP+2 if OPT["coal"] else 11}
s_movk_i32 s25, 4682
v_mul_u32_u24 v14, s25, v13
v_lshrrev_b32 v14, 16, v14
v_mul_u32_u24 v12, 14, v14
v_sub_u32 v13, v13, v12
v_lshlrev_b32 v13, 4, v13
v_lshl_add_u32 v13, v14, 12, v13
v_lshl_add_u32 v13, v{CP+1 if OPT["coal"] else 10}, 8, v13
s_lshl_b32 s25, s23, 11
s_add_u32 s25, s25, {HG}
s_waitcnt vmcnt(16) lgkmcnt(0)
v_readfirstlane_b32 s74, v{VN}
v_mov_b32 v57, v{VN}
v_mov_b32 v59, v{VN}
""")
for t in range(0 if LATE & 2 else 7): a(f"ds_write_b128 v1, v[{WDV+4*t}:{WDV+4*t+3}] offset:{1024*t}")
for k in range(16):
    a(f"""
v_lshlrev_b32 v48, 16, v{GX+k}
v_and_b32 v49, 0xffff0000, v{GX+k}
v_lshlrev_b32 v50, 16, v{GW+k}
v_and_b32 v51, 0xffff0000, v{GW+k}
v_mul_f32 v48, v48, v50
v_mul_f32 v49, v49, v51
v_cvt_pk_bf16_f32 v48, v48, v49
v_and_b32 v49, 0xffff0000, v48
v_lshlrev_b32 v48, 16, v48
""")
    if k == 0: a("v_add_f32 v52, v48, v49")
    else: a("v_add_f32 v48, v48, v49\nv_add_f32 v52, v52, v48")
a("v_mov_b32 v24, v52")
xsum([24], [25], (8, 4))
a(f"""
v_cvt_pk_bf16_f32 v24, v24, v24
v_lshlrev_b32 v24, 16, v24
v_mul_f32 v24, {f32(-LOG2E)}, v24
v_exp_f32 v24, v24
v_add_f32 v24, 1.0, v24
v_rcp_f32 v24, v24
v_cvt_pk_bf16_f32 v24, v24, v24
v_lshlrev_b32 v{GG}, 16, v24
v_sub_f32 v25, 1.0, v{GG}
v_cvt_pk_bf16_f32 v25, v25, v25
v_lshlrev_b32 v{GG+1}, 16, v25
s_lshl_b32 s26, s18, 17
s_lshl_b32 s27, s17, 7
s_add_u32 s26, s26, s27
s_waitcnt vmcnt(0)
""")
D1 = 52
gemv(9, D1)
a(f"""
v_cvt_pk_bf16_f32 v56, v{D1}, v{D1+1}
v_cvt_pk_bf16_f32 v58, v{D1+2}, v{D1+3}
s_cmp_ge_u32 s18, 28
s_cbranch_scc1 L_nohpub
""")
if OPT["coal"]:
    a(f"""
ds_bpermute_b32 v56, v{CP}, v56
ds_bpermute_b32 v58, v{CP}, v58
s_mov_b32 exec_hi, 0
s_waitcnt lgkmcnt(0)
""")
else:
    a("s_mov_b64 exec, s[58:59]")
a(f"""
buffer_store_dwordx4 v[56:59], v13, s[12:15], s25 offen sc1
s_mov_b64 exec, -1
""")
a.label("L_nohpub")
if OPT["xm"]:
    a(f"""
s_getreg_b32 s31, hwreg(HW_REG_XCC_ID, 0, 4)
s_xor_b32 s31, s31, s74
s_lshl_b32 s29, s17, 8
s_add_u32 s29, s29, {XID}
s_lshl_b32 s27, s18, 3
s_add_u32 s27, s27, s29
v_mov_b32 v{VN+1}, s31
v_lshlrev_b32 v66, 3, v0
v_and_b32 v66, 0xff, v66
s_mov_b64 exec, 1
buffer_store_dwordx2 v[{VN}:{VN+1}], v66, s[12:15], s27 offen sc1
s_mov_b64 exec, -1
""")
stamp(2)
if OPT["tc0"] and OPT["tcd"] == 1:
    a("s_mov_b32 s30, s29"); touch0(); a("s_mov_b32 s29, s30")
def wo_dma(sr):
    for t in range(0 if OPT["skip"] & 1 else 16):
        a(f"s_mov_b32 m0, {WO_LDS + 1024*t}\ns_nop 0\nbuffer_load_dwordx4 v6, s[60:63], {sr} offen nt lds")
        if t < 15: a(f"s_add_u32 {sr}, {sr}, 8192")
if LATE & 1: a("s_mov_b32 s73, s26")
else: wo_dma("s26")
HB = 16; UB = 32
tag_consts(SEL)
a(f"""
s_lshl_b32 s30, s18, 12
s_add_u32 s30, s30, {HG}
v_lshlrev_b32 v1, 5, v11
v_lshl_add_u32 v1, v10, 8, v1
v_mov_b32 v4, 0x7ff00000
v_cmp_gt_u32 vcc, 3, v11
s_and_b64 s[66:67], s[58:59], vcc
v_cndmask_b32 v2, v4, v1, s[66:67]
v_cndmask_b32 v1, v4, v1, s[58:59]
v_lshlrev_b32 v14, 4, v10
v_lshl_add_u32 v14, v11, 7, v14
v_add_u32 v14, {WD_LDS}, v14
s_mov_b32 s76, {SPIN}
""")
backoff(OPT["hd"])
a.label("L_hpoll")
for B_, o_ in ((HB, 0), (UB, 2048)):
    a(f"""
buffer_load_dwordx4 v[{B_}:{B_+3}], v1, s[12:15], s30 offen offset:{o_} sc1
buffer_load_dwordx4 v[{B_+4}:{B_+7}], v1, s[12:15], s30 offen offset:{o_+16} sc1
buffer_load_dwordx4 v[{B_+8}:{B_+11}], v2, s[12:15], s30 offen offset:{o_+128} sc1
buffer_load_dwordx4 v[{B_+12}:{B_+15}], v2, s[12:15], s30 offen offset:{o_+144} sc1
""")
if OPT["xm"]: a("buffer_load_dwordx2 v[64:65], v66, s[12:15], s29 offen sc1")
a("s_waitcnt vmcnt(0)")
any_eq([HB+1, HB+3, HB+5, HB+7, UB+1, UB+3, UB+5, UB+7], "s74", neg=True)
a("s_and_b64 s[64:65], vcc, s[58:59]")
if OPT["xm"]: a("v_cmp_ne_u32 vcc, s74, v64\ns_or_b64 s[64:65], s[64:65], vcc\nv_xor_b32 v67, s74, v65\nv_cmp_lt_u32 vcc, 15, v67\ns_or_b64 s[64:65], s[64:65], vcc")
any_eq([HB+9, HB+11, HB+13, HB+15, UB+9, UB+11, UB+13, UB+15], "s74", neg=True)
a("s_and_b64 vcc, vcc, s[66:67]\ns_or_b64 vcc, vcc, s[64:65]")
spin_tail("L_hpoll", "L_hdone", sleep=OPT["hslp"])
if OPT["xm"]:
    a(f"""
v_cmp_ne_u32 vcc, s31, v65
s_cmp_eq_u64 vcc, 0
s_cselect_b32 s28, {0 if OPT["xforce"] else 1}, 0
""")
stamp(3)
a(f"""
s_mov_b32 s25, {f32(0.044715)}
s_mov_b32 s26, {f32(-2.0*0.7978845608028654*LOG2E)}
v_lshrrev_b32 v1, 2, v10
v_lshl_add_u32 v1, v11, 3, v1
v_lshlrev_b32 v1, 7, v1
v_and_b32 v2, 3, v0
v_lshl_add_u32 v1, v2, 3, v1
v_add_u32 v1, {WD_LDS}, v1
""")
AF = 80
def af_rd():
    for ct in range(4):
        for s_ in range(2):
            r = AF + 8*ct + 4*s_
            a(f"ds_read_b64_tr_b16 v[{r}:{r+1}], v1 offset:{s_*4096+ct*32}")
            a(f"ds_read_b64_tr_b16 v[{r+2}:{r+3}], v1 offset:{s_*4096+ct*32+512}")
def trig_wait():
    a(f"s_mov_b32 s76, {SPIN*16}")
    a.label("L_tw")
    a(f"""
ds_read_b32 v8, v15 offset:136
s_waitcnt lgkmcnt(0)
v_cmp_ne_u32 vcc, 2, v8
""")
    spin_tail("L_tw", "L_twdone", sleep=OPT["tslp"])
    stamp(0)
if not LATE & 2: af_rd()
HF = 48
for e in range(8):
    g_, u_ = HB + 2*e, UB + 2*e
    t = 56
    a(f"""
v_lshlrev_b32 v{t}, 16, v{g_}
v_and_b32 v{t+1}, 0xffff0000, v{g_}
v_lshlrev_b32 v{t+2}, 16, v{u_}
v_and_b32 v{t+3}, 0xffff0000, v{u_}
v_mul_f32 v{t+4}, v{t}, v{t}
v_mul_f32 v{t+5}, v{t+1}, v{t+1}
v_mul_f32 v{t+4}, v{t+4}, v{t}
v_mul_f32 v{t+5}, v{t+5}, v{t+1}
v_fma_f32 v{t+4}, v{t+4}, s25, v{t}
v_fma_f32 v{t+5}, v{t+5}, s25, v{t+1}
v_mul_f32 v{t+4}, s26, v{t+4}
v_mul_f32 v{t+5}, s26, v{t+5}
v_exp_f32 v{t+4}, v{t+4}
v_exp_f32 v{t+5}, v{t+5}
v_add_f32 v{t+4}, 1.0, v{t+4}
v_add_f32 v{t+5}, 1.0, v{t+5}
v_rcp_f32 v{t+4}, v{t+4}
v_rcp_f32 v{t+5}, v{t+5}
v_mul_f32 v{t+4}, v{t+4}, v{t}
v_mul_f32 v{t+5}, v{t+5}, v{t+1}
v_cvt_pk_bf16_f32 v{t+4}, v{t+4}, v{t+5}
v_and_b32 v{t+5}, 0xffff0000, v{t+4}
v_lshlrev_b32 v{t+4}, 16, v{t+4}
v_mul_f32 v{t+4}, v{t+4}, v{t+2}
v_mul_f32 v{t+5}, v{t+5}, v{t+3}
v_cvt_pk_bf16_f32 v{HF+e}, v{t+4}, v{t+5}
""")
if LATE & 2:
    trig_wait()
    for t in range(7):
        a(f"s_mov_b32 m0, {WD_LDS + 1024*t}\ns_nop 0\nbuffer_load_dwordx4 v6, s[4:7], s72 offen nt lds")
        if t < 6: a("s_add_u32 s72, s72, 8192")
    if LATE & 1: wo_dma("s73")
    a(f"s_waitcnt vmcnt({16 if LATE & 1 else 0})")
    af_rd()
a("s_waitcnt lgkmcnt(0)")
for ct in range(4):
    r = AF + 8*ct; d = 112 + 4*ct
    a(f"v_mfma_f32_16x16x32_bf16 v[{d}:{d+3}], v[{r}:{r+3}], v[{HF}:{HF+3}], 0")
    a(f"v_mfma_f32_16x16x32_bf16 v[{d}:{d+3}], v[{r+4}:{r+7}], v[{HF+4}:{HF+7}], v[{d}:{d+3}]")
for ct in range(4): tag_ins(112 + 4*ct, VN, SEL)
a("s_mov_b64 exec, s[58:59]")
for ct in range(4):
    d = 112 + 4*ct
    a(f"ds_write_b128 v14, v[{d}:{d+3}] offset:{512*ct}")
if OPT["hbn"] == 1:
    a(f"""
v_lshlrev_b32 v1, 4, v10
v_lshl_add_u32 v1, v11, 13, v1
s_lshl_b32 s25, s17, 17
s_lshl_b32 s26, s18, 7
s_add_u32 s25, s25, s26
s_add_u32 s25, s25, {CPA}
v_not_b32 v16, v{VN}
v_not_b32 v17, v{VN}
v_not_b32 v18, v{VN}
v_not_b32 v19, v{VN}
""")
    for ct in range(4):
        d = 112 + 4*ct
        a(f"s_add_u32 s26, s25, 4096\nbuffer_store_dwordx4 v[{d}:{d+3}], v1, s[12:15], s26 offen")
        if OPT["prw"]: a(f"buffer_store_dwordx4 v[16:19], v1, s[12:15], s25 offen")
        if ct < 3: a("s_add_u32 s25, s25, 32768")
a(f"""
v_lshl_add_u32 v2, v{CP+2}, 3, v15
s_mov_b64 exec, 15
ds_write_b64 v2, v[{GG}:{GG+1}] offset:64
""")
stamp(4)
if OPT["tchb"]: touch()
if OPT["xm"]:
    a(f"v_mov_b32 v8, s28\nds_write_b32 v15, v8 offset:140")
else:
    a("v_mov_b32 v8, 1\ns_waitcnt vmcnt(0) lgkmcnt(0)\nds_write_b32 v15, v8 offset:140")
if LATE == 1:
    a("s_mov_b64 exec, -1")
    if OPT["lb"] == 2: a("s_waitcnt lgkmcnt(0)\ns_barrier"); stamp(0); backoff(OPT["wdel"])
    else: trig_wait()
    wo_dma("s73")
    if OPT["lb"] == 1: a("s_barrier")
if LATE and OPT["stamps"]: a("s_waitcnt vmcnt(0)"); stamp(4)
hstamps(9, 5)
a("s_waitcnt vmcnt(0) lgkmcnt(0)\ns_endpgm")

a.label("L_stream")
KA, VA, KR, VR = 1, 5, 7, 11
M_, L_ = 20, 21
T0, T1, T2 = 22, 23, 19
Q = 24; KF = 40; S = 56; T = 60; PF = 66; SA = 68; TKA = 69; CL = 70; ZR = 71; O = 72; STG = 104; NINF = 65; FL = 64
TE = T + 2; ONE = T + 3; TA = CL
ST0 = 168 - 16*NST
X0 = KF
a(f"""
v_and_b32 v{T0}, 15, v0
v_lshrrev_b32 v{T1}, 4, v0
s_mul_i32 s24, s3, {RING}
""")
for i in range(4):
    a(f"""
v_add_u32 v{T2}, {4*i}, v{T1}
v_xor_b32 v{T2}, v{T2}, v{T0}
v_lshlrev_b32 v{T2}, 4, v{T2}
v_lshl_add_u32 v{KA+i}, v{T1}, 8, v{T2}
v_lshl_add_u32 v{KR+i}, v{T0}, 8, v{T2}
""")
a(f"""
s_lshl_b32 s30, s20, 4
s_add_u32 s30, s30, s19
s_lshl_b32 s21, s30, 21
s_lshl_b32 s22, s17, 3
s_add_u32 s22, s22, s3
s_mul_i32 s77, s20, {OPT['r2']}
{f"s_mul_i32 s25, s19, {OPT['r1']}" + chr(10) + "s_add_u32 s77, s77, s25" if OPT['r1'] else ""}
s_add_u32 s22, s22, s77
s_and_b32 s26, s22, 511
{trn("s26")}
s_lshl_b32 s26, s26, 12
s_add_u32 s26, s26, s21
s_add_u32 m0, s24, 8192
s_waitcnt lgkmcnt(0)
""")
srd(4, P_K, 128 << 20)
if OPT["fine"] == 6: a("s_memrealtime s[48:49]")
nload = [0]
def pre_load(k):
    if k:
        a(f"""
s_add_u32 s26, s22, {64*k}
s_and_b32 s26, s26, 511
{trn("s26")}
s_lshl_b32 s26, s26, 12
s_add_u32 s26, s26, s21
""")
        if k >= 8: a(f"s_add_u32 s26, s26, {1 << 24}")
    if k == 1: a("s_mov_b32 m0, s24")
    if k == 2: a("s_add_u32 m0, s24, 4096")
    for i in range(4):
        if nload[0] == NPRE:
            if OPT["fine"] == 6: a("s_memrealtime s[50:51]")
            setup_rest()
            if OPT["fine"] == 6: a("s_waitcnt vmcnt(0)\ns_memrealtime s[54:55]")
            a("s_waitcnt lgkmcnt(0)\ns_barrier")
            if OPT["fine"] == 6: a("s_memrealtime s[56:57]")
        if nload[0] >= Wp: a(f"s_waitcnt vmcnt({Wp-1})")
        if k < 3:
            a(f"buffer_load_dwordx4 v{KA+i}, s[4:7], s26 offen offset:{i*1024} nt lds")
        else:
            r = ST0 + 16*(k-3) + 4*i
            a(f"buffer_load_dwordx4 v[{r}:{r+3}], v{KA+i}, s[4:7], s26 offen offset:{i*1024} nt")
        nload[0] += 1
def setup_rest():
    srd(8, P_V, 128 << 20)
    srd(12, P_WS, WS_BYTES)
    for e in range(2):
        a(f"""
v_lshrrev_b32 v{T2}, 1, v{T0}
v_add_u32 v{X0}, {4*e}, v{T1}
v_xor_b32 v{T2}, v{T2}, v{X0}
v_lshlrev_b32 v{T2}, 5, v{T2}
v_and_b32 v{X0}, 1, v{T0}
v_lshl_add_u32 v{T2}, v{X0}, 4, v{T2}
v_lshl_add_u32 v{VA+e}, v{T1}, 8, v{T2}
""")
    a(f"""
s_mov_b32 s79, {hex(SENT)}
v_mov_b32 v{S}, s79
v_mov_b32 v{S+1}, s79
v_mov_b32 v{S+2}, s79
v_mov_b32 v{S+3}, s79
s_mul_i32 s25, s3, {NSLOT*16}
s_add_u32 s25, s25, {SB}
v_lshl_add_u32 v{T2}, v0, 4, s25
""")
    for k in range(NSLOT//64): a(f"ds_write_b128 v{T2}, v[{S}:{S+3}] offset:{1024*k}")
    a(f"""
v_lshrrev_b32 v{X0}, 2, v0
v_and_b32 v{X0+1}, 7, v{X0}
v_and_b32 v{X0+2}, 3, v0
v_lshlrev_b32 v{X0+2}, 3, v{X0+2}
v_lshl_add_u32 v{SA}, v{T1}, 5, v{X0+2}
v_add_u32 v{SA}, {SB}, v{SA}
v_lshl_add_u32 v{X0+2}, v{X0}, 8, v{X0+2}
""")
    for dt in range(8):
        a(f"v_xor_b32 v{X0+3}, {dt}, v{X0+1}\nv_lshl_add_u32 v{VR+dt}, v{X0+3}, 5, v{X0+2}")
    a(f"""
v_cmp_gt_u32 s[70:71], 8, v{T0}
v_mov_b32 v{M_}, {f32(-1e30)}
v_mov_b32 v{L_}, 0
v_mov_b32 v{NINF}, 0xff80ff80
v_mov_b32 v{ZR}, 0
s_mov_b32 s58, {f32(SCALE)}
s_mov_b32 s59, {f32(LOG2E)}
s_mov_b32 s31, {f32(-LOG2E)}
v_mov_b32 v{ONE}, 1
v_mov_b32 v{FL}, {TK}
v_mov_b32 v{TKA}, {TK}
s_mov_b32 s78, {T1B}
s_mov_b32 s96, 0
s_mov_b32 s60, s24
s_add_u32 s61, s24, 4096
s_add_u32 s72, s24, 8192
s_lshl_b32 s73, s3, 7
s_add_u32 s27, s73, 1024
s_add_u32 s28, s73, 2048
""")
    tag_consts(SEL)
    for r in range(O, min(O+32, ST0)): a(f"v_mov_b32 v{r}, 0")
    for r in range(16): a(f"v_mov_b32 v{Q+r}, 0")
for k in range(NSU): pre_load(k)
a(f"""
v_lshlrev_b32 v{T2}, 4, v{T1}
v_lshl_add_u32 v{T2}, v{T0}, 8, v{T2}
v_add_u32 v{T2}, {Q_LDS}, v{T2}
s_mov_b32 s76, {SPIN*16}
""")
a.label("L_qw")
a(f"""
ds_read_b32 v{T}, v{FL} offset:4
s_waitcnt lgkmcnt(0)
v_cmp_ne_u32 vcc, 1, v{T}
""")
spin_tail("L_qw", "L_qwdone", sleep=1)
stamp(1)
a("s_mov_b64 exec, s[70:71]")
for j in range(4): a(f"ds_read_b128 v[{Q+4*j}:{Q+4*j+3}], v{T2} offset:{j*64}")
a("s_mov_b64 exec, -1")

nlab = [0]
def ticket_rd():
    a(f"s_mov_b64 exec, 1\nds_add_rtn_u32 v{TE}, v{TKA}, v{ONE}\ns_mov_b64 exec, -1")
def ticket_use():
    a(f"""
v_readfirstlane_b32 s25, v{TE}
s_and_b32 s75, s25, 1
s_lshr_b32 s25, s25, 1
s_lshl_b32 s25, s25, 2
s_add_u32 s25, s25, s78
v_mov_b32 v{TA}, s25
""")
def entry_rd():
    a(f"ds_read_b32 v{TE}, v{TA}")
def dmask(d):
    a(f"""
s_andn2_b32 s25, {d}, 127
v_add_u32 v{T2}, s25, v{SA}
s_and_b32 s25, {d}, 4
s_lshl_b32 s68, 0x000f000f, s25
s_mov_b32 s69, s68
""")
def kstep(sb, d, mid=None):
    for j in range(4): a(f"v_add_u32 v{KF+4*j}, {sb}, v{KR+j}\nds_read_b128 v[{KF+4*j}:{KF+4*j+3}], v{KF+4*j}")
    dmask(d)
    if mid:
        a("s_waitcnt lgkmcnt(4)"); mid()
    for j in range(4):
        c = "0" if j == 0 else f"v[{S}:{S+3}]"
        a(f"s_waitcnt lgkmcnt({3-j})")
        a(f"v_mfma_f32_16x16x32_bf16 v[{S}:{S+3}], v[{KF+4*j}:{KF+4*j+3}], v[{Q+4*j}:{Q+4*j+3}], {c}")
    for k in range(2): a(f"v_cvt_pk_bf16_f32 v{T+k}, v{S+2*k}, v{S+2*k+1}")
    for k in range(2):
        a(f"v_lshlrev_b32 v{S+2*k}, 16, v{T+k}\nv_and_b32 v{S+2*k+1}, 0xffff0000, v{T+k}")
    for k in range(4): a(f"v_mul_f32 v{S+k}, s58, v{S+k}")
    for k in range(2): a(f"v_cvt_pk_bf16_f32 v{PF+k}, v{S+2*k}, v{S+2*k+1}")
    a(f"s_mov_b64 exec, s[68:69]\nds_write_b64 v{T2}, v[{PF}:{PF+1}]\ns_mov_b64 exec, -1")
ool = []
def soft():
    nlab[0] += 1
    n = nlab[0]
    a(f"""
L_sr{n}:
v_cmp_eq_u32 vcc, s79, v{PF}
v_cmp_eq_u32 s[74:75], s79, v{PF+1}
""" if False else f"""
L_sr{n}:
v_cmp_eq_u32 vcc, s79, v{PF}
s_cbranch_vccnz L_ss{n}
v_cmp_eq_u32 vcc, s79, v{PF+1}
s_cbranch_vccnz L_ss{n}
L_sg{n}:
v_cndmask_b32 v{T}, v{NINF}, v{PF}, s[68:69]
v_cndmask_b32 v{T+1}, v{NINF}, v{PF+1}, s[68:69]
""")
    ool.append(f"""
L_ss{n}:
s_sub_u32 s76, s76, 1
s_cmp_le_i32 s76, 0
s_cbranch_scc1 L_sg{n}
ds_read_b64 v[{PF}:{PF+1}], v{T2}
s_waitcnt lgkmcnt(0)
s_branch L_sr{n}
""")
    for k in range(2):
        a(f"v_lshlrev_b32 v{S+2*k}, 16, v{T+k}\nv_and_b32 v{S+2*k+1}, 0xffff0000, v{T+k}")
    a(f"""
v_max3_f32 v{T}, v{S}, v{S+1}, v{S+2}
v_max3_f32 v{T}, v{T}, v{S+3}, v{M_}
v_mov_b32 v{T+1}, v{T}
v_permlane16_swap_b32 v{T}, v{T+1}
v_max_f32 v{T}, v{T}, v{T+1}
v_mov_b32 v{T+1}, v{T}
v_permlane32_swap_b32 v{T}, v{T+1}
v_max_f32 v{T}, v{T}, v{T+1}
v_cmp_gt_f32 vcc, v{T}, v{M_}
s_cbranch_vccz L_nr{n}
v_sub_f32 v{T+1}, v{M_}, v{T}
v_mul_f32 v{T+1}, s59, v{T+1}
v_exp_f32 v{T+1}, v{T+1}
v_mov_b32 v{M_}, v{T}
v_mul_f32 v{L_}, v{L_}, v{T+1}
""")
    for r in range(32): a(f"v_mul_f32 v{O+r}, v{O+r}, v{T+1}")
    a.label(f"L_nr{n}")
    a(f"v_mul_f32 v{T+1}, s31, v{M_}")
    for k in range(4): a(f"v_fma_f32 v{S+k}, v{S+k}, s59, v{T+1}")
    for k in range(4): a(f"v_exp_f32 v{S+k}, v{S+k}")
    for k in range(2): a(f"v_cvt_pk_bf16_f32 v{PF+k}, v{S+2*k}, v{S+2*k+1}")
    a(f"""
v_add_f32 v{T}, v{S}, v{S+1}
v_add_f32 v{T+1}, v{S+2}, v{S+3}
v_add_f32 v{T}, v{T}, v{T+1}
v_add_f32 v{L_}, v{L_}, v{T}
""")
def v_rd(sb):
    for dt in range(8): a(f"v_add_u32 v{KF+2*dt}, {sb}, v{VR+dt}\nds_read_b64_tr_b16 v[{KF+2*dt}:{KF+2*dt+1}], v{KF+2*dt}")
def pv(dt):
    a(f"v_mfma_f32_16x16x16_bf16 v[{O+4*dt}:{O+4*dt+3}], v[{KF+2*dt}:{KF+2*dt+1}], v[{PF}:{PF+1}], v[{O+4*dt}:{O+4*dt+3}]")
def vstep(sb, d, mid=None):
    dmask(d)
    a(f"ds_read_b64 v[{PF}:{PF+1}], v{T2}")
    v_rd(sb)
    a("s_waitcnt lgkmcnt(8)")
    if mid: mid()
    soft()
    a("s_waitcnt lgkmcnt(0)")
    for dt in range(8): pv(dt)
X = STG
VNS = X + 27; FLG = X + 26
F3ADDR = f"""
s_lshl_b32 s77, s16, 2
s_add_u32 s77, s77, {F1}
s_lshr_b32 s22, s16, {OPT['rsh']}
s_lshl_b32 s22, s22, 10
s_add_u32 s22, s22, {F1}
s_lshr_b32 s95, s3, 1
s_lshl_b32 s95, s95, 3
s_lshr_b32 s25, s16, 5
s_add_u32 s95, s95, s25
s_lshl_b32 s95, s95, 5
s_add_u32 s95, s95, s22
""" if OPT["f3"] else ""
FLIM = 1 << 20
COL = OPT["col"]
COL1 = f"""
v_lshrrev_b32 v{X+11}, 2, v{T0}
v_lshlrev_b32 v{X+11}, 12, v{X+11}
v_lshl_add_u32 v{X+25}, v{X+13}, 4, v{X+11}
v_lshl_add_u32 v{X+11}, v{T1}, 13, v{X+25}
""" if COL else f"""v_lshlrev_b32 v{X+11}, 4, v{T0}
v_lshl_add_u32 v{X+11}, v{T1}, 13, v{X+11}
"""
COL2 = "" if COL else f"""v_lshrrev_b32 v{X+25}, 3, v{T0}
v_lshlrev_b32 v{X+25}, 13, v{X+25}
v_lshl_add_u32 v{X+25}, v{X+3}, 4, v{X+25}
"""
FU = OPT["fful"]
FADDR = f"""
s_and_b32 s94, s29, 31
s_lshl_b32 s94, s94, 6
s_lshr_b32 s25, s29, 5
s_add_u32 s94, s94, s25
s_mul_i32 s94, s94, {FST}
s_lshl_b32 s25, s17, 3
s_add_u32 s94, s94, s25
s_add_u32 s94, s94, {FG}
s_andn2_b32 s95, s16, {[0, 7, 3, 1, 0][OPT['fone']]}
s_lshl_b32 s95, s95, 3
s_add_u32 s95, s95, s3
s_mul_i32 s95, s95, {FST}
s_add_u32 s95, s95, {FG}
v_mul_u32_u24 v{X+30}, {8*FST}, v0
""" if not FU else f"""
s_lshl_b32 s94, s29, 3
s_add_u32 s94, s94, s17
s_mul_i32 s94, s94, {FU}
s_add_u32 s94, s94, {FG}
s_lshl_b32 s95, s3, 5
s_add_u32 s95, s95, s18
s_mul_i32 s95, s95, {8*FU}
s_lshl_b32 s25, s17, 3
s_add_u32 s95, s95, s25
s_add_u32 s95, s95, {FG}
v_mul_u32_u24 v{X+30}, {FU}, v0
"""
FSA, FPA = (X+1, X+30) if FU else (X+30, X+1)
if OPT["fone"] == 4:
    FADDR = f"""
s_mul_i32 s94, s29, {FST}
s_lshl_b32 s25, s17, 3
s_add_u32 s94, s94, s25
s_add_u32 s94, s94, {FG + OPT['fgo']}
s_lshl_b32 s95, s3, 5
s_add_u32 s95, s95, s18
s_mul_i32 s95, s95, {FST}
s_add_u32 s95, s95, {FG + OPT['fgo']}
v_mov_b32 v{X+30}, 0
"""
def tail_addr():
    a(f"""
v_mul_u32_u24 v{X}, {CST}, v{T0}
v_lshl_add_u32 v{X}, v{T1}, 4, v{X}
v_add_u32 v{X}, s24, v{X}
v_lshlrev_b32 v{X+1}, 3, v0
s_lshl_b32 s25, s3, 3
s_add_u32 s25, s25, {MLT}
v_lshl_add_u32 v{X+15}, v0, 6, s25
v_mov_b32 v{X+21}, {MISC}
ds_read_b32 v{VNS}, v{X+21} offset:96
s_lshr_b32 s29, s3, 2
s_lshl_b32 s29, s29, 3
s_add_u32 s29, s29, s30
s_lshl_b32 s29, s29, 2
s_and_b32 s25, s3, 3
s_add_u32 s29, s29, s25
s_lshl_b32 s62, s29, 12
s_lshl_b32 s25, s17, 9
s_add_u32 s62, s62, s25
s_add_u32 s62, s62, {PART}
{FADDR}
v_and_b32 v{X+3}, 31, v0
v_lshrrev_b32 v{X+4}, 5, v0
v_lshlrev_b32 v{X+2}, 4, v{X+3}
v_bfe_u32 v{X+10}, v0, 4, 1
v_lshlrev_b32 v{X+10}, 2, v{X+10}
v_lshl_add_u32 v{X+10}, v{T0}, 4, v{X+10}
v_lshl_add_u32 v{X+10}, v{X+4}, 3, v{X+10}
v_and_b32 v{X+31}, 1, v0
v_lshlrev_b32 v{X+31}, 4, v{X+31}
v_mul_u32_u24 v{X+14}, {4*RING}, v{X+4}
v_add_u32 v{X+2}, v{X+14}, v{X+2}
s_mul_i32 s25, s3, {CST}
v_add_u32 v{X+2}, s25, v{X+2}
v_and_b32 v{X+3}, 7, v0
v_lshlrev_b32 v{X+4}, 2, v{X+4}
v_xor_b32 v{X+4}, v{X+4}, v{X+3}
s_lshl_b32 s25, s3, 6
s_add_u32 s25, s25, {MLT}
v_lshl_add_u32 v{X+4}, v{X+4}, 3, s25
s_lshl_b32 s74, s3, 5
s_add_u32 s74, s74, s18
s_lshl_b32 s74, s74, 12
s_add_u32 s74, s74, {PART}
v_lshlrev_b32 v{X+7}, 4, v0
v_lshrrev_b32 v{X+9}, 2, v{T0}
v_lshl_add_u32 v{X+9}, v{T1}, 3, v{X+9}
v_lshlrev_b32 v{X+9}, 7, v{X+9}
v_and_b32 v{X+13}, 3, v0
v_lshl_add_u32 v{X+9}, v{X+13}, 3, v{X+9}
s_and_b32 s25, s3, 3
s_lshl_b32 s25, s25, 5
s_add_u32 s25, s25, {WO_LDS}
v_add_u32 v{X+9}, s25, v{X+9}
s_mul_i32 s25, s3, {OST}
s_add_u32 s25, s25, {O_LDS}
v_add_u32 v{X+10}, s25, v{X+10}
v_mul_u32_u24 v{X+12}, {OST}, v{T0}
v_lshl_add_u32 v{X+12}, v{T1}, 4, v{X+12}
v_add_u32 v{X+12}, {O_LDS}, v{X+12}
{COL1}
v_lshl_add_u32 v{X+21}, v{X+13}, 3, v{X+21}
s_lshl_b32 s25, s3, 8
s_add_u32 s25, s25, {WD_LDS}
v_lshl_add_u32 v{X+24}, v{T0}, 4, s25
{COL2}
s_lshl_b32 s29, s17, 17
s_add_u32 s29, s29, {CPA}
s_lshl_b32 s25, s18, 7
s_add_u32 s65, s29, s25
s_lshl_b32 s25, s3, 14
s_add_u32 s67, s65, s25
s_add_u32 s67, s67, {64 if COL else 4096}
s_add_u32 s63, s67, {CPB-CPA}
s_lshl_b32 s25, s3, 15
s_add_u32 s65, s65, s25
s_add_u32 s64, s65, {CPB-CPA}
v_lshlrev_b32 v{X+23}, 10, v{X+13}
v_lshl_add_u32 v{X+23}, v{T1}, 1, v{X+23}
v_lshrrev_b32 v{X+14}, 2, v0
v_lshlrev_b32 v{X+14}, 7, v{X+14}
v_lshl_add_u32 v{X+13}, v{X+13}, 4, v{X+14}
s_lshr_b32 s66, s18, 1
s_lshl_b32 s99, s66, 3
s_lshl_b32 s66, s66, 13
s_add_u32 s66, s66, s29
s_and_b32 s25, s18, 1
s_lshl_b32 s29, s25, {12 if COL else 6}
s_add_u32 s66, s66, s29
s_add_u32 s98, s66, {64 if COL else 4096 if OPT["bpa"] else 4096 + CPB - CPA}
s_lshl_b32 s25, s25, 12
s_add_u32 s99, s99, s25
s_lshl_b32 s25, s17, 7
s_add_u32 s99, s99, s25
s_waitcnt lgkmcnt(0)
v_lshrrev_b32 v{X+31}, v{X+31}, v{VNS}
""")
a(f"s_mov_b32 s76, {SPIN*64}\ns_waitcnt vmcnt({4*NSU-4})\ns_mov_b32 s97, 0")
ticket_rd()
kstep("s72", "s73", mid=ticket_use)
entry_rd()
a(f"""
L_loop:
s_cmp_eq_u32 s96, 2
s_cbranch_scc1 L_flush
L_loop2:
s_waitcnt vmcnt(4) lgkmcnt(0)
L_eretry:
v_readfirstlane_b32 s23, v{TE}
s_mov_b32 m0, s72
s_cmp_eq_u32 s23, -1
s_cbranch_scc1 L_espin
s_bitcmp1_b32 s23, 9
s_cbranch_scc1 L_special
s_lshl_b32 s26, s23, 1
s_add_u32 s26, s26, s75
s_add_u32 s26, s26, s77
s_and_b32 s26, s26, 511
{trn("s26")}
s_lshl_b32 s26, s26, 12
s_add_u32 s26, s26, s21
s_and_b32 s25, s23, 256
s_lshl_b32 s29, s25, 16
s_add_u32 s26, s26, s29
s_bitcmp1_b32 s23, 15
s_cbranch_scc1 L_isv
""")
for i in range(4): a(f"buffer_load_dwordx4 v{KA+i}, s[4:7], s26 offen offset:{i*1024} nt lds")
a("s_branch L_isd\nL_isv:")
for i in range(4): a(f"buffer_load_dwordx4 v{VA+(i&1)}, s[8:11], s26 offen offset:{i*1024} nt lds")
a(f"""
L_isd:
s_lshr_b32 s25, s25, 6
s_bfe_u32 s73, s23, 0x1000f
s_or_b32 s73, s73, s25
s_lshr_b32 s23, s23, 16
s_lshl_b32 s23, s23, 1
s_add_u32 s23, s23, s75
s_lshl_b32 s23, s23, 7
s_or_b32 s73, s73, s23
L_proc:
""")
ticket_rd()
a("s_bitcmp1_b32 s27, 0\ns_cbranch_scc1 L_pv")
kstep("s60", "s27", mid=ticket_use)
a("s_branch L_pd\nL_pv:")
vstep("s60", "s27", mid=ticket_use)
a.label("L_pd")
entry_rd()
a(f"""
s_mov_b32 s25, s60
s_mov_b32 s60, s61
s_mov_b32 s61, s72
s_mov_b32 s72, s25
s_mov_b32 s27, s28
s_mov_b32 s28, s73
s_add_u32 s96, s96, 1
s_cmp_lt_u32 s97, 2
s_cbranch_scc1 L_loop
s_cmp_eq_u32 s97, 3
s_cbranch_scc1 L_final
s_waitcnt vmcnt(0)
L_flush:
s_waitcnt vmcnt(8)
v_lshlrev_b32 v{PF}, 4, v0
v_add_u32 v{TA+1}, s72, v{PF}
s_lshl_b32 s73, s3, 7
""")
for u in range(NST):
    for i in range(4):
        r = ST0 + 16*u + 4*i
        a(f"ds_write_b128 v{TA+1}, v[{r}:{r+3}] offset:{i*1024}")
    a(f"s_add_u32 s23, s73, {1024*(3+u) + (4 if 3+u >= 8 else 0)}")
    kstep("s72", "s23")
a(f"v_mov_b32 v{ZR}, 0")
for r in range(ST0, O+32): a(f"v_mov_b32 v{r}, 0")
tail_addr()
a(f"""
s_add_u32 s97, s97, 1
s_cmp_eq_u32 s97, 1
s_cbranch_scc1 L_loop2
L_final:
s_bitcmp1_b32 s27, 0
s_cbranch_scc1 L_finv
s_waitcnt vmcnt(0)
""")
kstep("s60", "s27")
a(f"""
s_branch L_fin2
L_espin:
s_sub_u32 s76, s76, 1
s_cmp_le_i32 s76, 0
s_cbranch_scc1 L_term
ds_read_b32 v{TE}, v{TA}
s_waitcnt lgkmcnt(0)
s_branch L_eretry
L_special:
s_bitcmp1_b32 s23, 0
s_cbranch_scc0 L_term
v_mov_b32 v{TKA}, {TK+16}
s_mov_b32 s78, {T2B}
""")
ticket_rd()
a("s_waitcnt lgkmcnt(0)")
ticket_use()
a(f"""
s_branch L_espin
L_term:
s_or_b32 s97, s97, 2
v_mov_b32 v{TKA}, {TK+20}
s_branch L_proc
""")
OOL_AT = len(a.L)
a.label("L_finv")
def fine3(k): pass
if OPT["fine"] == 6: a("s_mov_b32 s4, s80")
dmask("s27")
a(f"ds_read_b64 v[{PF}:{PF+1}], v{T2}\ns_waitcnt lgkmcnt(0)")
soft()
a.label("L_fin2")
AA = STG + 32
CM = AA; AW = AA + 16
R = S; GV = X + 28
a(f"""
v_mov_b32 v{T+1}, v{L_}
v_permlane16_swap_b32 v{L_}, v{T+1}
v_add_f32 v{L_}, v{L_}, v{T+1}
v_mov_b32 v{T+1}, v{L_}
v_permlane32_swap_b32 v{L_}, v{T+1}
v_add_f32 v{L_}, v{L_}, v{T+1}
s_mov_b32 s76, {SPIN*16}
s_mov_b64 exec, 0xff
ds_write_b64 v{X+15}, v[{M_}:{L_}]
s_mov_b64 exec, -1
""")
def aw_rd(s_):
    a(f"ds_read_b64_tr_b16 v[{AW+4*s_}:{AW+4*s_+1}], v{X+9} offset:{s_*4096}")
    a(f"ds_read_b64_tr_b16 v[{AW+4*s_+2}:{AW+4*s_+3}], v{X+9} offset:{s_*4096+512}")
def misc_rd():
    if OPT["xm"]: a(f"ds_read_b32 v{T}, v{FL} offset:12")
    a(f"ds_read_b128 v[{X+16}:{X+19}], v{X+24}")
    if not OPT["lb"]:
        for s_ in range(4): aw_rd(s_)
    a(f"ds_read_b64 v[{GV}:{GV+1}], v{X+21} offset:64")
if not OPT["mlate"]:
    a(f"L_bw:\nds_read_b32 v{T}, v{FL} offset:12")
    misc_rd()
    a(f"s_waitcnt lgkmcnt(0)\nv_cmp_ne_u32 vcc, 1, v{T}")
    spin_tail("L_bw", "L_bwdone", sleep=2)
C = O + 16
def fine2(k):
    if OPT["fine"] == 2: a(f"s_waitcnt vmcnt(0)\ns_memtime s[{[4,6,8,10,48,50,54,56][k]}:{[4,6,8,10,48,50,54,56][k]+1}]\ns_waitcnt lgkmcnt(0)")
def fine(k):
    if OPT["fine"] == 1: a(f"s_memtime s[{[4,6,8,10,48,50,54,56][k]}:{[4,6,8,10,48,50,54,56][k]+1}]" + ("\ns_waitcnt lgkmcnt(0)" if k in (0, 3,) else ""))
for dt in range(8): a(f"v_add_u32 v{KF+2*dt}, s60, v{VR+dt}")
a(f"s_mov_b32 s76, {SPIN}\ns_waitcnt vmcnt(0)")
fine3(3)
fine(0)
a("s_bitcmp1_b32 s27, 0\ns_cbranch_scc0 L_fin3")
for dt in range(8): a(f"ds_read_b64_tr_b16 v[{KF+2*dt}:{KF+2*dt+1}], v{KF+2*dt}")
for dt in range(8):
    a(f"s_waitcnt lgkmcnt({7-dt})")
    pv(dt)
a.label("L_fin3")
stamp(2)
fine(1)
a("s_mov_b64 exec, s[70:71]")
for dt in range(8): a(f"ds_write_b128 v{X}, v[{O+4*dt}:{O+4*dt+3}] offset:{dt*64}")
a("s_mov_b64 exec, -1")
if OPT["tcw"]:
    a(f"""
s_cmp_lg_u32 s3, {OPT['fin']}
s_cbranch_scc1 L_ntc
v_lshlrev_b32 v{T}, 7, v0
{"s_mov_b32 exec_hi, 0" if OPT["tcw"] == 1 else ""}
buffer_load_dword v{AA+4}, v{T}, s[12:15], s66 offen {['', 'sc1', 'nt'][OPT['tpol']]}
s_mov_b64 exec, -1
L_ntc:
""")
a("s_waitcnt lgkmcnt(0)")
fine(2)
a("s_barrier")
fine(3)
a(f"ds_read_b64 v[{CM}:{CM+1}], v{X+4}")
for k in range(4):
    a(f"ds_read_b128 v[{C+4*k}:{C+4*k+3}], v{X+2} offset:{k*RING}")
def red8(r, op, src=None):
    for m in ("quad_perm:[1,0,3,2]", "quad_perm:[2,3,0,1]", "row_half_mirror"):
        q = r if src is None else src
        a(f"{op}_dpp v{r}, v{q}, v{q} {m} row_mask:0xf bank_mask:0xf")
        src = None
a("s_waitcnt lgkmcnt(4)")
red8(T, "v_max_f32", CM)
a(f"""
v_sub_f32 v{CM}, v{CM}, v{T}
v_mul_f32 v{CM}, s59, v{CM}
v_exp_f32 v{CM}, v{CM}
v_mul_f32 v{T+1}, v{CM}, v{CM+1}
""")
def ofma(k):
    a(f"s_waitcnt lgkmcnt({3-k})")
    for j in range(4): a(f"v_{'mul' if k == 0 else 'fmac'}_f32_dpp v{R+j}, v{CM}, v{C+4*k+j} row_newbcast:{k} row_mask:0xf bank_mask:0xf")
red8(T+1, "v_add_f32")
a(f"""
v_max_f32 v{T+1}, {f32(1e-30)}, v{T+1}
v_log_f32 v{T+2}, v{T+1}
v_rcp_f32 v{T+3}, v{T+1}
""")
ofma(0)
a(f"""
v_fma_f32 v{FLG}, v{T}, s59, v{T+2}
v_perm_b32 v{FLG}, v{FLG}, v{VNS}, s{SEL}
""")
fine2(0)
def flag_st():
    a(f"""
s_mov_b64 exec, {hex((1 << (FU//8)) - 1) if FU else [0xff, 1, 0x11, 0x55, 1][OPT['fone']]}
buffer_store_dwordx2 v[{FLG}:{FLG+1}], v{FSA}, s[12:15], s94 offen sc1
s_mov_b64 exec, -1
""")
if not OPT["fo"]: flag_st()
fine2(1)
for k in range(1, 4): ofma(k)
fine(4)
a(f"""
v_permlane32_swap_b32 v{R}, v{R+2}
v_permlane32_swap_b32 v{R+1}, v{R+3}
v_add_f32 v{R}, v{R}, v{R+2}
v_add_f32 v{R+1}, v{R+1}, v{R+3}
v_mul_f32 v{R}, v{R}, v{T+3}
v_mul_f32 v{R+1}, v{R+1}, v{T+3}
v_perm_b32 v{R}, v{R}, v{X+31}, s{SEL}
v_perm_b32 v{R+1}, v{R+1}, v{X+31}, s{SEL+1}
""")
if OPT["px4"]:
    a(f"""
v_mov_b32_dpp v{R+2}, v{R} quad_perm:[1,1,3,3] row_mask:0xf bank_mask:0xf
v_mov_b32_dpp v{R+3}, v{R+1} quad_perm:[1,1,3,3] row_mask:0xf bank_mask:0xf
s_mov_b32 exec_lo, 0x55555555
s_mov_b32 exec_hi, 0x55555555
buffer_store_dwordx4 v[{R}:{R+3}], v{X+1}, s[12:15], s62 offen sc1
s_mov_b64 exec, -1
""")
else:
    a(f"buffer_store_dwordx2 v[{R}:{R+1}], v{X+1}, s[12:15], s62 offen sc1")
if OPT["fo"]: flag_st()
if OPT["mlate"]:
    if OPT["stamps"]: stamp(3); a("s_waitcnt lgkmcnt(0)")
    misc_rd()
    a(f"s_waitcnt lgkmcnt({1 if OPT['lb'] else 9})")
if OPT["hbn"] != 1: a("s_mov_b64 exec, 0xffff")
if not OPT["mlate"]: stamp(3)
fine(5)
fine2(2)
def st2(lbl, ins, extra=""):
    a(f"""
s_cmp_eq_u32 s63, 1
s_cbranch_scc1 {lbl}n
{ins} sc1
s_branch {lbl}d
{lbl}n:
{ins}{" nt" if OPT["snt"] & (1 if lbl == "L_bs" else 2) else ""}
{extra}
{lbl}d:
""")
if OPT["xm"]:
    a(f"v_readfirstlane_b32 s63, v{T}")
    st2("L_bs", f"buffer_store_dwordx4 v[{X+16}:{X+19}], v{X+25}, s[12:15], s67 offen", f"""
v_not_b32 v{T}, v{VNS}
v_not_b32 v{T+1}, v{VNS}
v_not_b32 v{T+2}, v{VNS}
v_not_b32 v{T+3}, v{VNS}
s_sub_u32 s25, s67, 4096
buffer_store_dwordx4 v[{T}:{T+3}], v{X+25}, s[12:15], s25 offen
""" if OPT["prw"] else "")
elif OPT["hbn"] != 1:
    if OPT["bpa"]: a(f"buffer_store_dwordx4 v[{X+16}:{X+19}], v{X+25}, s[12:15], s67 offen")
    if not OPT["hbn"]: a(f"buffer_store_dwordx4 v[{X+16}:{X+19}], v{X+25}, s[12:15], s63 offen sc1")
    fine2(3)
    if OPT["prw"]:
        a(f"""
v_not_b32 v{T}, v{VNS}
v_not_b32 v{T+1}, v{VNS}
v_not_b32 v{T+2}, v{VNS}
v_not_b32 v{T+3}, v{VNS}
s_sub_u32 s25, s67, 4096
buffer_store_dwordx4 v[{T}:{T+3}], v{X+25}, s[12:15], s25 offen
""")
fine2(4)
BB = AA + 8
def bpoll():
    for k in range(2):
        a(f"buffer_load_dwordx4 v[{BB+4*k}:{BB+4*k+3}], v{X+13}, s[12:15], s98 offen offset:{2048*k} sc1")
def bp_early():
    a(f"s_cmp_lg_u32 s3, {OPT['fin']}\ns_cbranch_scc1 L_nobp0\ns_mov_b64 exec, -1")
    bpoll()
    a.label("L_nobp0")
if OPT["bpe"] >= 2: bp_early()
PA = O
WT = Q; FS = Q + 4; P = Q + 8; TT = KF
FPOLL = {0: f"""
v_mov_b32 v{FS}, 0
v_mov_b32 v{FS+1}, 0
buffer_atomic_or_x2 v[{FS}:{FS+1}], v{FPA}, s[12:15], s95 offen sc0 sc1
""", 1: f"buffer_load_dwordx2 v[{FS}:{FS+1}], v{FPA}, s[12:15], s95 offen sc1",
2: f"""
v_mov_b32 v{FS}, v{VNS}
v_mov_b32 v{FS+1}, 0
v_mov_b32 v{FS+2}, v{VNS}
v_mov_b32 v{FS+3}, 0
buffer_atomic_cmpswap_x2 v[{FS}:{FS+3}], v{FPA}, s[12:15], s95 offen sc0 sc1
""", 3: f"buffer_load_dwordx2 v[{FS}:{FS+1}], v{FPA}, s[12:15], s95 offen sc0 sc1 nt",
4: f"""
v_mov_b32 v{FS}, 0
v_mov_b32 v{FS+1}, 0
buffer_atomic_umax_x2 v[{FS}:{FS+1}], v{FPA}, s[12:15], s95 offen sc0 sc1
""", 5: f"""
v_mov_b32 v{FS}, 0
v_mov_b32 v{FS+1}, 0
buffer_atomic_or_x2 v[{FS}:{FS+1}], v{FPA}, s[12:15], s95 offen sc0 sc1 nt
"""}[OPT["fpol"]]
def pload(k):
    if not OPT["nopart"]: a(f"buffer_load_dwordx4 v[{PA+4*k}:{PA+4*k+3}], v{X+7}, s[12:15], s74 offen offset:{1024*k} sc1")
def ploads(m):
    for k in range(4):
        a(f"""
s_bfe_i32 exec_lo, {m}, {hex(0x10000 + 2*k)}
s_bfe_i32 exec_hi, {m}, {hex(0x10000 + 2*k + 1)}
""")
        pload(k)
FCHK = f"""
v_xor_b32 v{T}, v{FS}, v{VNS}
v_and_b32 v{T}, 0xff, v{T}
v_xor_b32 v{T+1}, v{FS+1}, v{VNS}
v_or_b32 v{T}, v{T}, v{T+1}
v_cmp_eq_u32 vcc, 0, v{T}
"""
a(f"""
s_movk_i32 s22, 0xff
s_mov_b32 s23, 0
L_f1:
s_mov_b64 exec, s[22:23]
{FPOLL}
s_sub_u32 s76, s76, 1
s_waitcnt vmcnt(0)
{FCHK}
s_cbranch_vccz L_f1n
s_mov_b32 s25, vcc_lo
""")
if OPT["inc"]: ploads("s25")
a(f"""
s_andn2_b32 s22, s22, s25
s_cbranch_scc0 L_f1done
L_f1n:
s_cmp_eq_u32 s76, 0
s_cbranch_scc1 L_f1done
{"s_sleep %d" % OPT['f1slp'] if OPT['f1slp'] else ""}
""")
if OPT["spec"]:
    a(f"""
s_bcnt1_i32_b32 s25, s22
s_cmp_gt_u32 s25, {OPT['spec']}
s_cbranch_scc1 L_f1
L_f2:
s_mov_b64 exec, s[22:23]
{FPOLL}
""")
    ploads("s22")
    a(f"""
s_mov_b64 exec, s[22:23]
s_sub_u32 s76, s76, 1
s_waitcnt vmcnt(0)
{FCHK}
s_andn2_b32 s22, s22, vcc_lo
s_cbranch_scc0 L_f1done
s_cmp_eq_u32 s76, 0
s_cbranch_scc1 L_f1done
{"s_sleep %d" % OPT['f2slp'] if OPT['f2slp'] else ""}
s_branch L_f2
""")
if OPT["f1th"]:
    a(f"""
s_bcnt1_i32_b32 s25, s22
s_cmp_le_u32 s25, {OPT['f1th']}
s_cbranch_scc1 L_f1
s_sleep {OPT['f1sl2']}
""")
a(f"""
s_branch L_f1
L_f1done:
s_mov_b64 exec, -1
""")
if not OPT["inc"]:
    for k in range(4): pload(k)
if OPT["bpe"] == 1: bp_early()
if OPT["stamps"]: a("s_memrealtime s[100:101]")
red8(T, "v_max_f32", FS)
a(f"""
v_sub_f32 v{FS}, v{FS}, v{T}
v_exp_f32 v{FS}, v{FS}
""")
red8(T, "v_add_f32", FS)
a(f"""
v_rcp_f32 v{T}, v{T}
v_mul_f32 v{FS}, v{FS}, v{T}
""")
for x in range(8): a(f"v_readlane_b32 s{32+x}, v{FS}, {x}")
for k in range(4): a(f"v_mov_b32 v{WT+k}, s{32+2*k+1}")
a("s_mov_b32 exec_hi, 0")
for k in range(4): a(f"v_mov_b32 v{WT+k}, s{32+2*k}")
def tag_chk(grans, t):
    for n_, r in enumerate(grans):
        a(f"v_perm_b32 v{t+2*n_}, v{r+1}, v{r}, s{SEL+4}\nv_perm_b32 v{t+2*n_+1}, v{r+3}, v{r+2}, s{SEL+5}")
    for n_, r in enumerate(grans):
        a(f"v_xor_b32 v{t+2*n_}, v{t+2*n_}, v{VNS}")
    for n_, r in enumerate(grans):
        a(f"v_xor_b32 v{t+2*n_}, v{t+2*n_}, v{t+2*n_+1}")
    if len(grans) == 4:
        a(f"v_or3_b32 v{t}, v{t}, v{t+2}, v{t+4}\nv_or_b32 v{t}, v{t}, v{t+6}")
    else:
        a(f"v_or_b32 v{t}, v{t}, v{t+2}")
    a(f"v_cmp_ne_u32 vcc, 0, v{t}")
a.label("L_pchk")
a("s_mov_b64 exec, -1\ns_waitcnt vmcnt(0)")
for k in range(4):
    for j in range(4): a(f"v_{'mul' if k == 0 else 'fmac'}_f32 v{P+j}, v{WT+k}, v{PA+4*k+j}")
a(f"""
v_permlane32_swap_b32 v{P}, v{P+2}
v_permlane32_swap_b32 v{P+1}, v{P+3}
v_add_f32 v{P}, v{P}, v{P+2}
v_add_f32 v{P+1}, v{P+1}, v{P+3}
v_cvt_pk_bf16_f32 v{P}, v{P}, v{P+1}
ds_write_b32 v{X+10}, v{P}
""")
tag_chk([PA+4*k for k in range(4)], TT)
if not OPT["nopart"]: a("s_cbranch_vccnz L_prep")
a.label("L_pdone")
stamp(4)
BB = AA + 8
def bpoll():
    for k in range(2):
        a(f"buffer_load_dwordx4 v[{BB+4*k}:{BB+4*k+3}], v{X+13}, s[12:15], s98 offen offset:{2048*k} sc1")
a(f"s_cmp_lg_u32 s3, {OPT['fin']}\ns_cbranch_scc1 L_nobp")
if not OPT["bdel"] and OPT["bpe"] in (0, 3): bpoll()
a(f"""
L_nobp:
s_cmp_gt_u32 s3, 3
s_waitcnt lgkmcnt(0)
s_barrier
s_cbranch_scc1 L_nomm
""")
for s_ in range(4):
    a(f"ds_read_b128 v[{PA+4*s_}:{PA+4*s_+3}], v{X+12} offset:{64*s_}")
    if OPT["lb"]: aw_rd(s_)
D_ = PA + 16
for s_ in range(4):
    a(f"""
s_waitcnt lgkmcnt({(3-s_)*(3 if OPT["lb"] else 1)})
v_mfma_f32_16x16x32_bf16 v[{D_}:{D_+3}], v[{AW+4*s_}:{AW+4*s_+3}], v[{PA+4*s_}:{PA+4*s_+3}], {"0" if s_ == 0 else f"v[{D_}:{D_+3}]"}
""")
a("s_mov_b64 exec, s[70:71]")
tag_ins(D_, VNS, SEL)
if OPT["xm"]:
    st2("L_as", f"buffer_store_dwordx4 v[{D_}:{D_+3}], v{X+11}, s[12:15], s65 offen")
    a("s_mov_b64 exec, -1")
else:
    a(f"""
{"" if OPT["noa"] else f"buffer_store_dwordx4 v[{D_}:{D_+3}], v{X+11}, s[12:15], s65 offen"}
{"" if OPT["nob"] else f"buffer_store_dwordx4 v[{D_}:{D_+3}], v{X+11}, s[12:15], s64 offen sc1"}
s_mov_b64 exec, -1
""")
a.label("L_nomm")
stamp(5)
if OPT["hbn"]:
    a(f"""
s_cmp_eq_u32 s3, {OPT['fin']}
s_cbranch_scc1 L_nofar
s_mov_b64 exec, 0xffff
buffer_store_dwordx4 v[{X+16}:{X+19}], v{X+25}, s[12:15], s63 offen sc1
s_cmp_lg_u32 s3, {OPT['fin']+1}
s_cbranch_scc1 L_nofar
ds_read_b128 v[{T}:{T+3}], v{X+24} offset:{(-256) & 0xffff}
""" if False else f"""
s_cmp_eq_u32 s3, {OPT['fin']}
s_cbranch_scc1 L_nofar
s_sleep 4
s_mov_b64 exec, 0xffff
buffer_store_dwordx4 v[{X+16}:{X+19}], v{X+25}, s[12:15], s63 offen sc1
s_cmp_lg_u32 s3, {OPT['fin']-1}
s_cbranch_scc1 L_nofar
ds_read_b128 v[{KF}:{KF+3}], v{X+24} offset:256
s_add_u32 s63, s63, 16384
s_waitcnt lgkmcnt(0)
buffer_store_dwordx4 v[{KF}:{KF+3}], v{X+25}, s[12:15], s63 offen sc1
L_nofar:
s_mov_b64 exec, -1
""")
def wstamps():
    a(f"""
s_lshl_b32 s29, s16, 3
s_add_u32 s29, s29, s3
s_lshl_b32 s29, s29, 4
s_add_u32 s29, s29, {STAMP+0x10000}
s_add_u32 s96, s96, {2+NST}
s_waitcnt lgkmcnt(0)
v_mov_b32 v{T}, s84
v_mov_b32 v{T+1}, s85
v_mov_b32 v{T+2}, s82
v_mov_b32 v{T+3}, s96
s_mov_b64 exec, 1
buffer_store_dwordx4 v[{T}:{T+3}], v{ZR}, s[12:15], s29 offen
s_add_u32 s29, s29, 0x8000
s_nop 4
v_mov_b32 v{T}, s86
v_mov_b32 v{T+1}, s88
v_mov_b32 v{T+2}, s90
v_mov_b32 v{T+3}, s77
buffer_store_dwordx4 v[{T}:{T+3}], v{ZR}, s[12:15], s29 offen
s_add_u32 s29, s29, 0x8000
s_nop 4
v_mov_b32 v{T}, s100
buffer_store_dword v{T}, v{ZR}, s[12:15], s29 offen
s_add_u32 s29, s29, 0x8000
s_nop 4
v_mov_b32 v{T}, s4
v_mov_b32 v{T+1}, s6
v_mov_b32 v{T+2}, s8
v_mov_b32 v{T+3}, s10
buffer_store_dwordx4 v[{T}:{T+3}], v{ZR}, s[12:15], s29 offen
s_add_u32 s29, s29, 0x8000
s_nop 4
v_mov_b32 v{T}, s48
v_mov_b32 v{T+1}, s50
v_mov_b32 v{T+2}, s54
v_mov_b32 v{T+3}, s56
buffer_store_dwordx4 v[{T}:{T+3}], v{ZR}, s[12:15], s29 offen
s_mov_b64 exec, -1
s_nop 4
""")
if OPT["stamps"]:
    a(f"s_mov_b32 s77, s76\ns_cmp_eq_u32 s3, {OPT['fin']}\ns_cbranch_scc1 L_fin")
    wstamps()
    a("s_endpgm\nL_fin:")
else:
    a(f"s_cmp_lg_u32 s3, {OPT['fin']}\ns_cbranch_scc1 L_end")
a(f"""
s_mov_b32 s76, {SPIN}
s_movk_i32 s23, {OPT['na']}
""")
srd(60, P_OUT, 8192)
A3 = KF + 8; FB = KF + 12
def red(d, s0):
    for r in range(4): a(f"v_add_f32 v{d+r}, v{s0+r}, v{s0+4+r}")
    a(f"""
v_permlane32_swap_b32 v{d}, v{d+2}
v_permlane32_swap_b32 v{d+1}, v{d+3}
v_add_f32 v{d}, v{d}, v{d+2}
v_add_f32 v{d+1}, v{d+1}, v{d+3}
v_permlane16_swap_b32 v{d}, v{d+1}
v_add_f32 v{d}, v{d}, v{d+1}
v_add_f32_dpp v{d}, v{d}, v{d} row_ror:8 row_mask:0xf bank_mask:0xf
v_add_f32_dpp v{d}, v{d}, v{d} row_ror:4 row_mask:0xf bank_mask:0xf
""")
def gate(d, g):
    a(f"""
v_cvt_pk_bf16_f32 v{d}, v{d}, v{d}
v_lshlrev_b32 v{d}, 16, v{d}
v_mul_f32 v{d}, v{g}, v{d}
v_cvt_pk_bf16_f32 v{d}, v{d}, v{d}
v_lshlrev_b32 v{d}, 16, v{d}
""")
def far(regs):
    if OPT["xm"]:
        a("s_sub_u32 s76, s76, 1"); return
    a(f"s_sub_u32 s23, s23, 1\ns_cselect_b32 s25, {CPB-CPA}, 0")
    for r in regs: a(f"s_add_u32 s{r}, s{r}, s25")
    a("s_sub_u32 s76, s76, 1")
if OPT["bdel"]:
    backoff(OPT["bdel"]); bpoll()
a.label("L_bchk")
a("s_mov_b64 exec, -1")
far([66, 98] if OPT["bpa"] else [66])
a("s_waitcnt vmcnt(0)")
tag_chk([BB, BB+4], TT)
a(f"""
s_cbranch_vccz L_bdone
s_cmp_eq_u32 s76, 0
s_cbranch_scc1 L_bdone
s_mov_b64 exec, vcc
s_sleep {OPT['bsl']}
""")
bpoll()
a("s_branch L_bchk")
a.label("L_bdone")
def fine4(k):
    if OPT["fine"] == 4: a(f"s_memrealtime s[{[4,6,8,10,48,50,54,56][k]}:{[4,6,8,10,48,50,54,56][k]+1}]")
fine4(0)
red(FB, BB); gate(FB, GV+1)
fine4(1)
if OPT["fine"] == 4: a("s_mov_b32 s8, 0")
if OPT["asl0"]: a(f"s_sleep {OPT['asl0']}")
a.label("L_apoll")
for k in range(2):
    a(f"buffer_load_dwordx4 v[{AA+4*k}:{AA+4*k+3}], v{X+13}, s[12:15], s66 offen offset:{2048*k} sc1")
a("s_mov_b64 exec, -1")
far([66])
a("s_waitcnt vmcnt(0)")
if OPT["fine"] == 4: a("s_cmp_lg_u32 s8, 0\ns_cbranch_scc1 L_fx\ns_memrealtime s[8:9]\ns_waitcnt lgkmcnt(0)\nL_fx:")
tag_chk([AA, AA+4], TT)
a(f"""
s_cbranch_vccz L_adone
s_mov_b64 exec, vcc
{"s_sleep %d" % OPT["aslp"] if OPT["aslp"] else ""}
s_cmp_lg_u32 s76, 0
s_cbranch_scc1 L_apoll
s_mov_b64 exec, -1
""")
a.label("L_adone")
fine4(3)
red(A3, AA); gate(A3, GV)
a(f"""
v_add_f32 v{A3}, v{A3}, v{FB}
v_cvt_pk_bf16_f32 v{A3}, v{A3}, v{A3}
""")
a(f"""
s_mov_b32 exec_lo, 0x000f000f
s_mov_b32 exec_hi, 0x000f000f
buffer_store_short v{A3}, v{X+23}, s[60:63], s99 offen {['', 'sc1', 'nt', 'sc0 sc1'][OPT['opol']]}
s_mov_b64 exec, -1
""")
if OPT["stamps"]:
    stamp(6)
    wstamps()
    a(f"s_lshl_b32 s29, s16, 6\ns_add_u32 s29, s29, {STAMP}\ns_waitcnt lgkmcnt(0)")
    for k in range(7):
        a(f"v_mov_b32 v{T}, s{80+2*k}\nv_mov_b32 v{T+1}, s{81+2*k}\nbuffer_store_dwordx2 v[{T}:{T+1}], v{ZR}, s[12:15], s29 offen offset:{8*k}\ns_nop 1")
    a(f"v_mov_b32 v{T}, s76\nbuffer_store_dword v{T}, v{ZR}, s[12:15], s29 offen offset:56")
a("s_endpgm")
for t_ in ool: a(t_)
a.label("L_prep")
a(f"""
s_sub_u32 s76, s76, {256 if OPT["stamps"] else 1}
s_cmp_le_i32 s76, 0
s_cbranch_scc1 L_pdone
s_mov_b64 exec, vcc
""")
for k in range(4):
    a(f"buffer_load_dwordx4 v[{PA+4*k}:{PA+4*k+3}], v{X+7}, s[12:15], s74 offen offset:{1024*k} sc1")
a("s_branch L_pchk")
a.label("L_end")
a("s_endpgm")
a.L += ['.section .rodata,"a"', ".p2align 6", f".amdhsa_kernel {NAME}_kernel",
        "  .amdhsa_next_free_vgpr 168", "  .amdhsa_next_free_sgpr 102", "  .amdhsa_accum_offset 168",
        "  .amdhsa_group_segment_fixed_size 0", "  .amdhsa_kernarg_size 104", "  .amdhsa_user_sgpr_count 2",
        "  .amdhsa_user_sgpr_kernarg_segment_ptr 1", "  .amdhsa_system_sgpr_workgroup_id_x 1", ".end_amdhsa_kernel"]
txt, n = a.text()
open(out, "w").write(txt)
print(f"wrote {out}: {len(txt.splitlines())} lines, {n} nops inserted", file=sys.stderr)
```

```python
import sys, struct
from asmlib import Asm
out = sys.argv[1]
OPT = dict(stamps=0, Wp=8, npre=4, hdr=1, stag=10, hslp=32, qslp=8, nse=29, lead=8, t1=448, t2=384, dslp=2,
           np2=1, np3=2, flit=3, slowp=8, bprio=3, maxf=4, tcha=0, tchb=0, asl=36, tpol=1, wqnt=1, ffnt=1, hd=200, qd=64, prew=0, coal=1, pgate=0, bpat=2, slowth=16, fastp=0, bsl=1, adel=90, perm=0, gx=0, noff=252, sperm=4, eager=1024, f1=0, f2=0, f1slp=2, f2slp=1, f2del=0, fmax=4096, f3=0, rsh=2, fdel=170, f3slp=4, lead2=8, t3=420, fw=1, aat=0, aslp=0, apol=1, na=160, xrot=0, asl0=0, bpa=1, fin=4, nob=0, tb=1, prw=0, fine=0, inc=1, f1th=0, f1sl2=16, hbn=0, fo=0, fst=64, fpol=2, fone=4, nopart=0, noa=0, bdel=0, fful=0, mlate=1, fgo=0, px4=1, xm=1, xforce=0, bpe=3, tcw=0, tc0=0, lay=0, tcd=0, col=1, kill=1, t4=400, kill2=0, t5=460, lead3=8, kill0=1, k0at=0, rot=0, r1=0, r2=256, swm=0, ms=-1, mc=0, mr=0, vo=0, numa=0, late=1, tb1=440, tslp=4, lb=2, skip=0, tp=0, tk=0, leadk=12, leadf=14, tf=480, kv=10, cap1=84, nst=5, jit=0, tk2=400, tr=0, tsh=0, il=0, wdel=12, spec=0, snt=0, opol=0, one=1, pd=290, pc=40, pe=5, pslp=2, pw=0, pws=0, fb=1, fbl=84, fbs=3, fbc=40, fb0=12, fbp=8, fbg=4, fbm=40, pp=0, pp0=2, pps=16, ppo=0, nm=0)
for a_ in sys.argv[2:]:
    k, v = a_.split("="); assert k in OPT, k; OPT[k] = int(v)
if OPT["r1"] or OPT["r2"]: OPT["rot"] = -1
Wp = OPT["Wp"]; NPRE = OPT["npre"]
NAME = "gated_mix__gqa_block_cached__geglu_ffn__decode"
def f32(x): return "0x%08x" % struct.unpack("<I", struct.pack("<f", x))[0]
LOG2E = 1.4426950408889634
SCALE = 128 ** -0.5
QG, HG, ML, BP, PART, AP, STAMP, CNT = 0x0, 0x20000, 0x40000, 0x80000, 0x100000, 0x200000, 0x400000, 0x480000
F1, F2 = 0x60000, 0x70000
FG, CPA, CPB = 0x40000, 0x200000, 0x300000
if OPT['lay']:
    CNT, CPA, PART = 0x80000, 0x100000, 0x200000
OST = 272
XID = 0x60000
CST = 528
CSTR = 4096 + 256
WS_BYTES = 0x500000
FST = OPT['fst']
if OPT['fful']:
    FG = 0x500000; WS_BYTES = FG + 2048*OPT['fful']
elif FST > 64:
    FG = 0x500000; WS_BYTES = FG + 2048*FST
R1 = 0x20000
WO_LDS = R1
R2 = 0x24000
Q_LDS = R2
MISC = R2 + 0x800
MLT = MISC + 0x100
O_LDS = R2 + 0x1000
CH = R2 + 0x1400
WD_LDS = R2 + 0x2000
LDS_BYTES = 0x28000
NU = 1024
NSE = OPT["nse"]; LEAD = OPT["lead"]
TK = MISC + 128
K0 = OPT["kill0"]
NUMA = 0
RING = 12288
SB = 8*RING
NSLOT = 192
SENT = 0x7F817F81
ONET = OPT['one'] and not OPT['tk']
PW = OPT['pw']
PD = OPT['pd'] or PW
T1B = CH; T2B = CH + (4*(NSE + K0) if ONET else 1024)
VB = 0x8000
KN = OPT["kill"]; KV = OPT["kv"]
NST = OPT["nst"]; NSU = 3 + NST
SE = 4*NSU
assert KV <= SE + NSE and SE + NSE <= 63
K0TXT = f"""
v_subrev_u32 v5, {K0*0x10001}, v4
v_cmp_le_u32 vcc, {OPT['k0at']}, v0
v_mov_b32 v6, 512
v_cndmask_b32 v4, v4, v6, vcc
v_cmp_le_u32 vcc, {OPT['k0at'] + K0}, v0
v_cndmask_b32 v4, v4, v5, vcc
""" if K0 else ""
CBASE = 8
DYN0 = 8*SE + 8*NSE
SPIN = 1 << 16
a = Asm()
hdr = open("cdna_kernels/%s.s.ref" % NAME).read().split("; Override launch")[0] if OPT["hdr"] else ""
a.L += [l for l in hdr.rstrip().split("\n")] if hdr else []
a.L.append(f"; @launch grid=(256,1,1) block=(640,1,1) lds={LDS_BYTES}")
a.L += ['.amdgcn_target "amdgcn-amd-amdhsa--gfx950"', ".text", f".globl {NAME}_kernel", ".p2align 8",
        f".type {NAME}_kernel,@function", f"{NAME}_kernel:"]

def srd(d, ptr, nbytes):
    a(f"s_mov_b32 s{d}, s{ptr}\ns_mov_b32 s{d+1}, s{ptr+1}\ns_mov_b32 s{d+2}, {hex(nbytes)}\ns_mov_b32 s{d+3}, 0x00020000")
P_X, P_K, P_V, P_WQ, P_WO, P_BX, P_WG, P_WU, P_WD, P_GW, P_OUT, P_DBG, P_WS = [32 + 2*i for i in range(13)]
def stamp(idx):
    if OPT["stamps"]:
        a(f"s_memrealtime s[{80+2*idx}:{81+2*idx}]")
def any_eq(regs, val, neg=False):
    op = "v_cmp_ne_u32" if neg else "v_cmp_eq_u32"
    a(f"{op} vcc, {val}, v{regs[0]}")
    for r in regs[1:]:
        a(f"{op} s[78:79], {val}, v{r}\ns_or_b64 vcc, vcc, s[78:79]")
def spin_tail(loop, done, sleep=0):
    a(f"""
s_sub_u32 s76, s76, 1
s_cmp_eq_u32 s76, 0
s_cbranch_scc1 {done}
""")
    if sleep:
        a(f"s_cmp_eq_u64 vcc, 0\ns_cbranch_scc1 {done}\ns_sleep {sleep}\ns_branch {loop}")
    else:
        a(f"s_cmp_lg_u64 vcc, 0\ns_cbranch_scc1 {loop}")
    a.label(done)
def xsum(regs, tmps, ror, op="v_add_f32", swaps=("v_permlane16_swap_b32", "v_permlane32_swap_b32")):
    for k in ror:
        for r in regs: a(f"{op}_dpp v{r}, v{r}, v{r} row_ror:{k} row_mask:0xf bank_mask:0xf")
    for sw in swaps:
        for r, t in zip(regs, tmps): a(f"v_mov_b32 v{t}, v{r}")
        for r, t in zip(regs, tmps): a(f"{sw} v{r}, v{t}")
        for r, t in zip(regs, tmps): a(f"{op} v{r}, v{r}, v{t}")
SEL = 42
def tag_consts(base):
    for j in range(4): a(f"s_mov_b32 s{base+j}, {hex(0x07060500 | j)}")
    a(f"s_mov_b32 s{base+4}, 0x0c0c0400\ns_mov_b32 s{base+5}, 0x04000c0c")
def tag_ins(r, vn, base):
    for j in range(4): a(f"v_perm_b32 v{r+j}, v{r+j}, v{vn}, s{base+j}")
def tag_bad(grans, vn, base, acc, t0, t1):
    for n_, r in enumerate(grans):
        a(f"v_perm_b32 v{t0}, v{r+1}, v{r}, s{base+4}\nv_perm_b32 v{t1}, v{r+3}, v{r+2}, s{base+5}")
        if n_ == 0:
            a(f"v_or_b32 v{acc}, v{t0}, v{t1}\nv_xor_b32 v{acc}, v{acc}, v{vn}")
        else:
            a(f"v_or_b32 v{t0}, v{t0}, v{t1}\nv_xor_b32 v{t0}, v{t0}, v{vn}\nv_or_b32 v{acc}, v{acc}, v{t0}")
def hstamps(first, n):
    if OPT["stamps"]:
        a(f"s_mov_b64 exec, -1\ns_lshl_b32 s29, s16, 7\ns_add_u32 s29, s29, {STAMP+0x8000+8*first}\ns_waitcnt lgkmcnt(0)\nv_mov_b32 v3, 0")
        for k in range(n):
            a(f"v_mov_b32 v4, s{80+2*k}\nv_mov_b32 v5, s{81+2*k}\nbuffer_store_dwordx2 v[4:5], v3, s[12:15], s29 offen offset:{8*k}\ns_nop 1")

def trn(d):
    tr = OPT["tr"]; ts = 3 + OPT["tsh"]
    if OPT["nm"]: return f"""
s_lshr_b32 s100, {d}, 4
s_xor_b32 s100, s100, {d}
s_and_b32 s100, s100, 2
s_mul_i32 s100, s100, 17
s_xor_b32 {d}, {d}, s100
s_lshl_b32 s100, s19, 1
s_xor_b32 s100, s100, {2*(OPT["nm"]-1)}
s_and_b32 s100, s100, 2
s_xor_b32 {d}, {d}, s100
"""
    if not tr: return ""
    return f"""
s_and_b32 s100, {d}, {(1 << tr) - 1}
s_lshl_b32 s100, s100, {ts}
s_bfe_u32 s101, {d}, {hex((ts << 16) | tr)}
s_andn2_b32 {d}, {d}, {(1 << (tr+ts)) - 1}
s_or_b32 {d}, {d}, s100
s_or_b32 {d}, {d}, s101
"""
def backoff(n):
    while n > 0:
        a(f"s_sleep {min(n, 127)}"); n -= 127
def touch():
    a(f"""
s_mov_b64 exec, 0xffff
v_lshlrev_b32 v9, 7, v0
s_lshl_b32 s25, s17, 17
s_lshr_b32 s26, s18, 1
s_lshl_b32 s26, s26, 13
s_add_u32 s25, s25, s26
s_and_b32 s26, s18, 1
s_lshl_b32 s26, s26, 11
s_add_u32 s25, s25, s26
s_add_u32 s25, s25, {CPA}
buffer_load_dword v16, v9, s[12:15], s25 offen {['', 'sc1', 'nt'][OPT['tpol']]}
""")

XROT = "s_mov_b32 s16, s2" if not OPT["xrot"] else f"""
s_lshr_b32 s18, s2, 3
s_mul_i32 s17, s18, {OPT['xrot']}
s_add_u32 s17, s17, s2
s_and_b32 s17, s17, 7
s_andn2_b32 s16, s2, 7
s_or_b32 s16, s16, s17
"""
a("""
s_cmp_ge_u32 s2, 256
s_cbranch_scc1 L_end
s_load_dwordx16 s[32:47], s[0:1], 0
s_load_dwordx8 s[48:55], s[0:1], 64
s_load_dwordx2 s[56:57], s[0:1], 96
""")
stamp(0)
a(f"""
v_lshrrev_b32 v1, 6, v0
v_and_b32 v0, 63, v0
s_and_b32 s17, s2, 7
v_readfirstlane_b32 s3, v1
{XROT}
s_lshr_b32 s18, s16, 3
s_and_b32 s19, s18, 7
s_lshr_b32 s20, s18, 3
s_xor_b32 s20, s20, {OPT['gx']}
s_cmp_lt_u32 s3, 8
s_cbranch_scc1 L_stream
v_and_b32 v10, 15, v0
v_lshrrev_b32 v11, 4, v0
v_lshlrev_b32 v2, 4, v11
v_lshl_add_u32 v2, v10, 10, v2
v_lshrrev_b32 v3, 1, v0
v_and_b32 v4, 1, v0
v_lshlrev_b32 v4, 4, v4
v_mov_b32 v13, 0
s_cmp_eq_u32 s3, 9
s_cbranch_scc1 L_hb
""")
AFR = 16; D0 = 48; WDV = 64; GX = 16; GW = 32; XF = 100; GG = 164; VN = 166; CP = 60
def frag_addr():
    a(f"""
v_lshrrev_b32 v8, 2, v10
v_lshl_add_u32 v8, v11, 3, v8
v_lshlrev_b32 v9, 5, v8
v_and_b32 v8, 3, v0
v_lshl_add_u32 v9, v8, 3, v9
v_add_u32 v9, {R1}, v9
v_cmp_gt_u32 s[58:59], 8, v10
v_bfe_u32 v{CP+1}, v0, 2, 3
v_and_b32 v{CP+2}, 3, v0
v_lshl_add_u32 v{CP}, v{CP+2}, 4, v{CP+1}
v_lshlrev_b32 v{CP}, 2, v{CP}
""")
def gemv(va, Dr):
    def rd(bt):
        base = AFR + 16*(bt & 1)
        for k in range(4):
            t = 4*bt + k
            a(f"ds_read_b64_tr_b16 v[{base+4*k}:{base+4*k+1}], v{va} offset:{1024*t}")
            a(f"ds_read_b64_tr_b16 v[{base+4*k+2}:{base+4*k+3}], v{va} offset:{1024*t+128}")
    rd(0)
    for bt in range(4):
        if bt < 3:
            rd(bt+1); a("s_waitcnt lgkmcnt(8)")
        else:
            a("s_waitcnt lgkmcnt(0)")
        base = AFR + 16*(bt & 1)
        for k in range(4):
            t = 4*bt + k
            c = "0" if t == 0 else f"v[{Dr}:{Dr+3}]"
            a(f"v_mfma_f32_16x16x32_bf16 v[{Dr}:{Dr+3}], v[{base+4*k}:{base+4*k+3}], v[{XF+4*t}:{XF+4*t+3}], {c}")
a(f"""
s_setprio 3
s_memrealtime s[74:75]
s_mul_i32 s21, s17, {OPT['sperm']}
s_add_u32 s21, s21, s18
s_and_b32 s21, s21, 31
s_lshl_b32 s25, s17, 5
s_add_u32 s21, s21, s25
v_lshl_add_u32 v1, v3, 13, v4
s_lshl_b32 s25, s21, 5
v_add_u32 v1, s25, v1
s_mov_b64 s[72:73], 1
v_mov_b32 v15, {OPT['noff']}
v_lshlrev_b32 v3, 4, v0
s_waitcnt lgkmcnt(0)
""")
stamp(8)
srd(68, P_DBG, 256)
a(f"""
s_cmp_ge_u32 s16, 8
s_cbranch_scc1 L_nononce
s_or_b32 s74, s74, 1
v_mov_b32 v12, s74
s_mov_b64 exec, s[72:73]
buffer_atomic_cmpswap v[12:13], v15, s[68:71], 0 offen sc1
s_mov_b64 exec, -1
""")
a.label("L_nononce")
srd(60, P_WQ, 512*4096*2); srd(64, P_X, 8192)
a("s_mov_b32 s25, 0")
for t in range(16):
    a(f"s_mov_b32 m0, {R1 + 1024*t}")
    if t and not OPT["skip"] & 8: a(f"s_mov_b32 s25, {t*32*8192}")
    a(f"buffer_load_dwordx4 v1, s[60:63], s25 offen {'nt ' if OPT['wqnt'] else ''}lds")
for s_ in range(16):
    a(f"buffer_load_dwordx4 v[{XF+4*s_}:{XF+4*s_+3}], v2, s[64:67], 0 offen offset:{64*s_}")
srd(12, P_WS, WS_BYTES)
CNTA = f"""s_mul_i32 s77, s18, {CSTR}
s_add_u32 s77, s77, {CNT}
s_cmp_lg_u32 s17, 0""" if not NUMA else f"""s_lshr_b32 s75, s17, 2
s_lshl_b32 s77, s18, 1
s_add_u32 s77, s77, s75
s_mul_i32 s77, s77, {CSTR}
s_add_u32 s77, s77, {CNT}
s_xor_b32 s75, s75, s19
s_xor_b32 s75, s75, {NUMA-1}
s_and_b32 s75, s75, 1
s_and_b32 s25, s17, 3"""
STAT = f"""
ds_write_b64 v2, v[4:5] offset:144
v_lshl_add_u32 v35, v0, 16, v0
s_mul_i32 s25, s17, {NSE}
s_add_u32 s26, s25, {8*SE - SE + VB}
v_add_u32 v4, s26, v35
v_lshrrev_b32 v5, 2, v0
v_mul_u32_u24 v5, 28, v5
s_lshl_b32 s26, s17, 2
s_add_u32 s26, s26, {VB}
v_add3_u32 v5, v5, s26, v35
v_cmp_gt_u32 vcc, {64 if OPT["il"] else SE}, v0
v_cndmask_b32 v4, v4, v5, vcc
v_lshlrev_b32 v1, 2, v0
v_add_u32 v5, {4*KN}, v1
v_cmp_gt_u32 vcc, {KV}, v0
v_cndmask_b32 v5, v5, v1, vcc
v_add_u32 v5, {T2B}, v5
""" + (f"""
v_mov_b32 v66, v5
v_mov_b32 v67, v4
""" if PD else f"""
s_bfm_b64 exec, {SE + NSE}, 0
ds_write_b32 v5, v4
""") + (f"""
v_mov_b32 v4, 512
v_add_u32 v5, {T2B + 4*KV}, v1
s_mov_b64 exec, {(1 << KN) - 1}
ds_write_b32 v5, v4
""" if KN else "") + f"""
s_mov_b64 exec, -1
s_add_u32 s25, s25, {8*SE + (SE << 16)}
v_add_u32 v4, s25, v35
""" + (f"""
v_subrev_u32 v6, {K0}, v0
v_cmp_gt_u32 vcc, {OPT['k0at'] + K0}, v0
v_cndmask_b32 v6, v6, v0, vcc
v_lshrrev_b32 v6, 2, v6
v_mul_u32_u24 v6, 28, v6
s_add_u32 s26, s26, {8*SE + (SE << 16) - VB}
v_add3_u32 v4, v6, s26, v35
""" if OPT["il"] else "")
QCH = f"""s_lshl_b32 s27, s18, 6""" if not NUMA else f"""s_and_b32 s27, s17, 4
s_mul_i32 s28, s27, {OPT['sperm']}
s_add_u32 s28, s28, s18
s_and_b32 s28, s28, 31
s_lshl_b32 s27, s27, 5
s_add_u32 s27, s27, s28
s_lshl_b32 s27, s27, 6"""
a(f"""
{CNTA}
s_cbranch_scc1 L_nocnt
v_mov_b32 v14, {CBASE}
s_mov_b64 exec, s[72:73]
buffer_store_dword v14, v13, s[12:15], s77 offen sc1
""" + ("""
v_mov_b32 v4, 0
v_mov_b32 v5, 0
v_mov_b32 v6, 0
v_mov_b32 v7, 0
buffer_store_dwordx4 v[4:7], v13, s[12:15], s77 offen offset:128 sc1
buffer_store_dwordx4 v[4:7], v13, s[12:15], s77 offen offset:144 sc1
""" if PW else "") + """
s_mov_b64 exec, -1
""")
a.label("L_nocnt")
a(f"""
buffer_load_dword v12, v15, s[68:71], 0 offen sc1
v_mov_b32 v4, -1
v_mov_b32 v5, -1
v_mov_b32 v6, -1
v_mov_b32 v7, -1
v_add_u32 v1, {CH}, v3
ds_write_b128 v1, v[4:7]
ds_write_b128 v1, v[4:7] offset:1024
ds_write_b128 v1, v[4:7] offset:2048
v_mov_b32 v2, {MISC}
v_mov_b32 v4, 0
v_mov_b32 v5, 0
v_mov_b32 v6, 0
v_mov_b32 v7, 0
ds_write_b128 v2, v[4:7] offset:128
{STAT}
v_lshlrev_b32 v1, 2, v0
v_add_u32 v1, {CH}, v1
{K0TXT}
v_cmp_gt_u32 vcc, {min(PW, NSE + K0) if PW else K0 if PD else NSE + K0}, v0
v_mov_b32 v64, v1
v_mov_b32 v65, v4
s_mov_b64 exec, vcc
ds_write_b32 v1, v4
s_mov_b64 exec, -1
""")
frag_addr()
a(f"s_mov_b32 s76, {SPIN}\ns_waitcnt lgkmcnt(0)")
stamp(7)
a("s_barrier")
stamp(1)
a("s_waitcnt vmcnt(0)")
a.label("L_np")
a(f"""
v_readfirstlane_b32 s74, v12
s_sub_u32 s76, s76, 1
s_cmp_eq_u32 s76, 0
s_cbranch_scc1 L_np_done
s_cmp_lg_u32 s74, 0
s_cbranch_scc1 L_np_done
buffer_load_dword v12, v15, s[68:71], 0 offen sc1
s_waitcnt vmcnt(0)
s_branch L_np
""")
a.label("L_np_done")
PAC = 0x4D0000; PST = 4352
if OPT["fb"]:
    a(f"""
s_cmp_lg_u32 s16, 0
s_cbranch_scc1 L_nfi
v_mov_b32 v5, s74
v_mul_u32_u24 v7, {PST}, v0
s_mov_b32 s25, {PAC}
s_mov_b64 exec, 0xffff
buffer_store_dword v5, v7, s[12:15], s25 offen sc1
s_mov_b64 exec, -1
L_nfi:
""")
stamp(2)
gemv(9, D0)
a(f"""
v_mov_b32 v5, s74
v_mov_b32 v7, s74
v_mov_b32 v8, 1
ds_write_b32 v2, v5 offset:96
ds_write_b32 v2, v8 offset:136
s_lshl_b32 s25, s21, 6
s_add_u32 s25, s25, {QG}
v_cvt_pk_bf16_f32 v4, v{D0}, v{D0+1}
v_cvt_pk_bf16_f32 v6, v{D0+2}, v{D0+3}
""")
if OPT["coal"]:
    a(f"""
ds_bpermute_b32 v4, v{CP}, v4
ds_bpermute_b32 v6, v{CP}, v6
v_lshlrev_b32 v14, 4, v{CP+2}
v_lshl_add_u32 v14, v{CP+1}, 14, v14
s_mov_b32 exec_hi, 0
s_waitcnt lgkmcnt(0)
""")
else:
    a(f"""
v_lshlrev_b32 v14, 4, v11
v_lshl_add_u32 v14, v10, 14, v14
s_mov_b64 exec, s[58:59]
""")
a(f"""
buffer_store_dwordx4 v[4:7], v14, s[12:15], s25 offen sc1
s_mov_b64 exec, -1
""")
stamp(3)
a(f"""
s_lshl_b32 s25, s20, 15
s_lshl_b32 s26, s19, 11
s_add_u32 s25, s25, s26
s_add_u32 s25, s25, {QG}
s_add_u32 s26, s25, 16384
{QCH}
s_add_u32 s27, s27, {QG}
s_mov_b32 s76, {SPIN}
""")
backoff(OPT["qd"])
a.label("L_qpoll")
a(f"""
buffer_load_dwordx4 v[16:19], v3, s[12:15], s25 offen sc1
buffer_load_dwordx4 v[20:23], v3, s[12:15], s25 offen offset:1024 sc1
buffer_load_dwordx4 v[24:27], v3, s[12:15], s26 offen sc1
buffer_load_dwordx4 v[28:31], v3, s[12:15], s26 offen offset:1024 sc1
buffer_load_dwordx4 v[32:35], v13, s[12:15], s27 offen sc1
s_waitcnt vmcnt(0)
""")
any_eq(list(range(17, 36, 2)), "s74", neg=True)
spin_tail("L_qpoll", "L_qdone", sleep=OPT["qslp"])
stamp(4)
a(f"""
v_mov_b32 v17, v18
v_mov_b32 v21, v22
v_mov_b32 v25, v26
v_mov_b32 v29, v30
v_lshlrev_b32 v1, 3, v0
v_add_u32 v1, {Q_LDS}, v1
ds_write_b64 v1, v[16:17]
ds_write_b64 v1, v[20:21] offset:512
ds_write_b64 v1, v[24:25] offset:1024
ds_write_b64 v1, v[28:29] offset:1536
s_waitcnt lgkmcnt(0)
ds_write_b32 v2, v8 offset:132
""")
stamp(5)
a(f"""
s_mov_b32 s21, {NSE + K0}
s_mov_b32 s22, {NSE + K0}
s_mov_b32 s20, {SE + NSE}
s_mov_b32 s19, {SE + NSE}
s_mov_b32 s23, 0
s_mov_b32 s24, 0
s_mov_b32 s26, 0
s_mov_b32 s27, 0
s_mov_b32 s28, 0
s_mov_b32 s29, {0 if OPT['tk'] else 1}
v_mov_b32 v4, 0
v_lshl_add_u32 v5, v0, 16, v0
s_mov_b32 s76, {SPIN*64}
""")
FST1 = """s_cmp_lg_u32 s60, 0
s_cbranch_scc1 L_fs1
s_mov_b32 s60, 1
s_memrealtime s[82:83]
L_fs1:"""
def disp(p):
    tb = T1B if ONET else (T1B, T2B)[p]
    a(f"""
L_disp{p}:
s_mov_b64 exec, 1
ds_read_b32 v6, v2 offset:{128 if ONET else (128, 144)[p]}
s_sub_u32 s76, s76, 1
s_cmp_le_i32 s76, 0
s_cbranch_scc1 L_dexh{p}
s_cmp_eq_u32 s24, 0
s_cbranch_scc1 L_noc{p}
v_readlane_b32 s25, v4, s27
s_cmp_lt_u32 s25, {CBASE}
s_cbranch_scc1 L_noc{p}
s_and_b32 s30, s23, 15
s_lshr_b32 s23, s23, 4
s_sub_u32 s24, s24, 1
s_add_u32 s27, s27, 1
s_and_b32 s27, s27, 7
s_add_u32 s25, s25, {DYN0 - CBASE}
s_add_u32 s28, s25, s30
s_sub_i32 s31, 512, s25
s_max_i32 s31, s31, 0
s_min_i32 s31, s31, s30
s_cmp_ge_u32 s28, {(OPT['tk'], 512)[p]}
s_cselect_b32 s29, 1, s29
s_cmp_eq_u32 s31, 0
s_cbranch_scc1 L_noc{p}
s_bfm_b64 exec, s31, 0
s_lshl_b32 s30, s20, 16
s_add_u32 s25, s25, s30
v_add_u32 v7, s25, v5
s_lshl_b32 s25, s22, 2
s_add_u32 s25, s25, {tb}
v_lshl_add_u32 v8, v0, 2, s25
ds_write_b32 v8, v7
s_add_u32 s22, s22, s31
s_lshl_b32 s25, {('s20', 's22')[p]}, 2
s_add_u32 s25, s25, {(T2B + 4*KN, tb)[p]}
v_or_b32 v9, {VB}, v7
v_lshl_add_u32 v14, v0, 2, s25
ds_write_b32 v14, v9
s_add_u32 s20, s20, s31
{('', 's_add_u32 s22, s22, s31')[p]}
L_noc{p}:
s_cmp_lg_u32 s29, 0
s_cbranch_scc1 L_exh{p}
s_cmp_ge_u32 s24, {OPT['maxf']}
s_cbranch_scc1 L_dslp{p}
s_waitcnt lgkmcnt(0)
v_readfirstlane_b32 s25, v6
s_lshl_b32 s30, s21, 1
s_add_u32 s25, s25, {(OPT['leadk'], OPT['leadf'])[p]}
s_cmp_ge_u32 s30, s25
s_cbranch_scc1 L_dslp{p}
s_cmp_ge_u32 s28, {(OPT['tk2'], OPT['tf'])[p]}
s_cselect_b32 s30, {(2, 1)[p]}, {(4, 2)[p]}
s_add_u32 s25, s19, s30
s_cmp_gt_u32 s25, {(OPT['cap1'], NSLOT//2)[p]}
s_cselect_b32 s29, 1, 0
s_cbranch_scc1 L_exh{p}
s_mov_b32 s19, s25
{FST1 if p and OPT["stamps"] else ""}
s_lshl_b64 exec, 1, s26
v_mov_b32 v4, s30
buffer_atomic_add v4, v13, s[12:15], s77 offen sc0 sc1
s_lshl_b32 s25, s24, 2
s_lshl_b32 s25, s30, s25
s_or_b32 s23, s23, s25
s_add_u32 s24, s24, 1
s_add_u32 s21, s21, s30
{('', 's_add_u32 s21, s21, s30')[p]}
s_add_u32 s26, s26, 1
s_and_b32 s26, s26, 7
s_branch L_disp{p}
L_exh{p}:
s_cmp_eq_u32 s24, 0
s_cbranch_scc1 L_dexh{p}
L_dslp{p}:
s_sleep {OPT['dslp']}
s_branch L_disp{p}
L_dexh{p}:
s_mov_b64 exec, 0xff
s_lshl_b32 s25, s22, 2
s_add_u32 s25, s25, {tb}
v_lshl_add_u32 v8, v0, 2, s25
v_mov_b32 v7, {(513, 512)[p]}
ds_write_b32 v8, v7
""")
if not ONET: disp(0)
TOT = NSE + K0 + SE + NSE
if PW:
    a(f"""
s_movk_i32 s30, 300
v_lshlrev_b32 v9, 2, v0
v_cmp_eq_u32 s[60:61], s17, v0
v_mov_b32 v14, 0x7fff
L_rel:
s_mov_b64 exec, 0xff
ds_read_b32 v6, v2 offset:128
s_sub_u32 s30, s30, 1
s_waitcnt lgkmcnt(0)
v_lshrrev_b32 v6, 1, v6
v_cndmask_b32 v8, 0, v6, s[60:61]
buffer_atomic_umax v8, v9, s[12:15], s77 offen offset:128 sc0 sc1
v_readfirstlane_b32 s62, v6
s_waitcnt vmcnt(0)
v_cndmask_b32 v8, v8, v14, s[60:61]
v_min_u32_dpp v8, v8, v8 quad_perm:[1,0,3,2] row_mask:0xf bank_mask:0xf
v_min_u32_dpp v8, v8, v8 quad_perm:[2,3,0,1] row_mask:0xf bank_mask:0xf
v_min_u32_dpp v8, v8, v8 row_half_mirror row_mask:0xf bank_mask:0xf
v_readfirstlane_b32 s25, v8
s_add_u32 s25, s25, {PW}
s_cmp_ge_u32 s25, {TOT - OPT['pe']}
s_cselect_b32 s25, 255, s25
s_cmp_eq_u32 s30, 0
s_cselect_b32 s25, 255, s25
s_cselect_b32 s62, 255, s62
s_min_i32 s31, s25, {NSE + K0}
s_bfm_b64 exec, s31, 0
ds_write_b32 v64, v65
s_sub_i32 s31, s25, {NSE + K0}
s_cmp_le_i32 s31, 0
s_cbranch_scc1 L_rel2
s_min_i32 s31, s31, {SE + NSE}
s_bfm_b64 exec, s31, 0
ds_write_b32 v66, v67
s_cmp_lg_u32 s25, 255
s_cbranch_scc1 L_rel2
s_cmp_ge_u32 s62, {TOT - OPT['pe'] - PW}
s_cbranch_scc1 L_reld
L_rel2:
{f"s_sleep {OPT['pws']}" if OPT['pws'] else ""}
s_branch L_rel
L_reld:
""")
elif PD:
    FB = f"""
s_cmp_eq_u32 s65, 0
s_cbranch_scc1 L_fb1
v_readfirstlane_b32 s31, v10
s_sub_u32 s31, s31, s74
s_cmp_eq_u32 s31, -1
s_cbranch_scc1 L_fb1
s_mov_b32 s65, 0
s_cmp_gt_u32 s31, 0xfff
s_cbranch_scc1 L_fb1
s_sub_i32 s31, s31, {OPT['fbl']}
s_ashr_i32 s31, s31, {OPT['fbs']}
s_min_i32 s31, s31, {OPT['fbc']}
s_add_i32 s62, s62, s31
L_fb1:
s_cmp_lt_u32 s25, s63
s_cbranch_scc1 L_fb2
s_add_u32 s63, s63, {OPT['fbp']}
v_readfirstlane_b32 s31, v6
s_lshl_b32 s66, s25, 1
s_sub_i32 s31, s66, s31
s_sub_i32 s31, s31, {2*(SE - K0)}
s_max_i32 s31, s31, 0
s_min_i32 s31, s31, {OPT['fbm']}
s_sub_u32 s66, s74, 1
v_mov_b32 v10, s66
v_mov_b32 v8, s31
buffer_load_dword v10, v13, s[12:15], s64 offen {['', '', 'sc1'][OPT['fb']]}
s_cmp_lg_u32 s64, {PAC}
s_cselect_b32 s65, 1, 0
s_add_u32 s64, s64, {PST}
s_cmp_ge_u32 s18, {OPT['fbg']}
s_cbranch_scc1 L_fb2
buffer_atomic_add v8, v13, s[12:15], s64 offen sc1
L_fb2:
""" if OPT["fb"] else ""
    a(f"""
s_movk_i32 s30, 1000
s_movk_i32 s62, {OPT['pc']}
s_movk_i32 s63, {SE + OPT['fb0']}
s_mov_b32 s64, {PAC}
s_mov_b32 s65, 0
L_rel:
s_mov_b64 exec, 1
ds_read_b32 v6, v2 offset:128
s_memrealtime s[60:61]
s_sub_u32 s30, s30, 1
s_waitcnt lgkmcnt(0)
s_sub_u32 s25, s60, s74
s_sub_i32 s25, s25, s62
s_max_i32 s25, s25, 0
s_min_i32 s25, s25, 0x8000
s_mul_i32 s25, s25, {int(655360/PD)}
s_lshr_b32 s25, s25, 16
{FB}
s_cmp_eq_u32 s30, 0
s_cselect_b32 s25, 255, s25
s_cmp_ge_u32 s25, {2*(SE+NSE) - OPT['pe']}
s_cselect_b32 s25, 255, s25
s_sub_i32 s31, s25, {SE - K0}
s_min_i32 s31, s31, {NSE + K0}
s_max_i32 s31, s31, 1
s_bfm_b64 exec, s31, 0
ds_write_b32 v64, v65
s_sub_i32 s31, s25, {SE + NSE}
s_cmp_le_i32 s31, 0
s_cbranch_scc1 L_rel2
s_min_i32 s31, s31, {SE + NSE}
s_bfm_b64 exec, s31, 0
ds_write_b32 v66, v67
s_cmp_eq_u32 s25, 255
s_cbranch_scc1 L_reld
L_rel2:
s_sleep {OPT['pslp']}
s_branch L_rel
L_reld:
""")
if OPT["stamps"]: stamp(7); a(f"s_mov_b32 s96, {'s62' if PD else 's20'}\ns_mov_b32 s60, 0")
a(f"""
s_add_u32 s21, s20, {KN + (NSE + K0 if ONET else 0)}
s_mov_b32 s22, s21
s_cmp_ge_u32 s28, 512
s_cselect_b32 s29, 1, 0
""")
disp(1)
if OPT["stamps"]: a("s_mov_b32 s97, s20")
stamp(6)
if OPT["tcha"]: touch()
hstamps(0, 9)
a("s_waitcnt lgkmcnt(0)\ns_endpgm")

a.label("L_hb")
if OPT["bprio"]: a(f"s_setprio {OPT['bprio']}")
a(f"""
s_min_u32 s22, s18, 27
s_lshr_b32 s22, s22, 1
s_mul_i32 s25, s17, 14
s_add_u32 s22, s22, s25
s_and_b32 s23, s18, 1
s_movk_i32 s25, 3584
v_mul_lo_u32 v5, v3, s25
v_add_u32 v5, v5, v4
s_lshl_b32 s25, s22, 5
v_add_u32 v5, s25, v5
v_lshrrev_b32 v6, 3, v0
v_and_b32 v7, 7, v0
v_lshlrev_b32 v7, 4, v7
v_lshl_add_u32 v6, v6, 10, v7
v_lshlrev_b32 v3, 4, v0
""")
frag_addr()
a(f"""
v_mov_b32 v16, 0
v_mov_b32 v17, 0
v_mov_b32 v18, 0
v_mov_b32 v19, 0
v_add_u32 v1, {WD_LDS}, v3
ds_write_b128 v1, v[16:19] offset:7168
v_mov_b32 v15, {MISC}
s_waitcnt lgkmcnt(0)
""")
srd(64, P_X, 8192); srd(12, P_WS, WS_BYTES); srd(4, P_WD, 1792*512*2); srd(8, P_GW, 1024); srd(60, P_WO, 4096*512*2)
a(f"""
s_cmp_eq_u32 s23, 0
s_cselect_b32 s68, s{P_WG}, s{P_WU}
s_cselect_b32 s69, s{P_WG+1}, s{P_WU+1}
s_mov_b32 s70, {512*1792*2}
s_mov_b32 s71, 0x00020000
s_lshl_b32 s27, s17, 7
s_mul_i32 s26, s18, {56*1024}
s_add_u32 s26, s26, s27
s_and_b32 s25, s18, 1
s_lshl_b32 s25, s25, 12
v_lshrrev_b32 v12, 2, v0
v_lshlrev_b32 v12, 6, v12
v_and_b32 v7, 3, v0
v_lshl_add_u32 v7, v7, 10, v12
""")
def touch0():
    a(f"""
v_lshlrev_b32 v92, 7, v0
s_lshl_b32 s28, s17, 17
s_lshr_b32 s29, s18, 1
s_lshl_b32 s29, s29, 13
s_add_u32 s28, s28, s29
s_and_b32 s29, s18, 1
s_lshl_b32 s29, s29, {11 if OPT["tc0"] == 1 else 12}
s_add_u32 s28, s28, s29
s_add_u32 s28, s28, {CPA}
s_mov_b64 exec, {"0xffff" if OPT["tc0"] == 1 else "0xffffffff"}
buffer_load_dword v93, v92, s[12:15], s28 offen {['', 'sc1', 'nt'][OPT['tpol']]}
s_mov_b64 exec, -1
""")
if OPT["tc0"] and not OPT["tcd"]: touch0()
a("s_barrier")
for s_ in range(16):
    a(f"buffer_load_dwordx4 v[{XF+4*s_}:{XF+4*s_+3}], v2, s[64:67], 0 offen offset:{64*s_}")
LATE = OPT["late"]
if LATE & 2: a("s_mov_b32 s72, s26")
for t in range(0 if LATE & 2 or OPT["skip"] & 2 else 7):
    a(f"buffer_load_dwordx4 v[{WDV+4*t}:{WDV+4*t+3}], v6, s[4:7], s26 offen nt")
    if t < 6: a("s_add_u32 s26, s26, 8192")
a(f"""
s_mov_b32 s76, {SPIN*16}
""")
for k in range(4):
    a(f"buffer_load_dwordx4 v[{GX+4*k}:{GX+4*k+3}], v7, s[64:67], s25 offen offset:{16*k}")
    a(f"buffer_load_dwordx4 v[{GW+4*k}:{GW+4*k+3}], v12, s[8:11], 0 offen offset:{16*k}")
a.label("L_r1w")
a(f"""
ds_read_b32 v8, v15 offset:136
s_waitcnt lgkmcnt(0)
v_cmp_eq_u32 vcc, 0, v8
""")
spin_tail("L_r1w", "L_r1done", sleep=2)
stamp(1)
a(f"""
ds_read_b32 v{VN}, v15 offset:96
s_mov_b32 s25, 0
""")
for t in range(16):
    a(f"s_mov_b32 m0, {R1 + 1024*t}")
    if t and not OPT["skip"] & 4: a(f"s_mov_b32 s25, {t*32*3584}")
    a(f"buffer_load_dwordx4 v5, s[68:71], s25 offen {'nt ' if OPT['ffnt'] else ''}lds")
a(f"""
s_lshl_b32 s25, s22, 2
v_add_u32 v13, s25, v{CP+2 if OPT["coal"] else 11}
s_movk_i32 s25, 4682
v_mul_u32_u24 v14, s25, v13
v_lshrrev_b32 v14, 16, v14
v_mul_u32_u24 v12, 14, v14
v_sub_u32 v13, v13, v12
v_lshlrev_b32 v13, 4, v13
v_lshl_add_u32 v13, v14, 12, v13
v_lshl_add_u32 v13, v{CP+1 if OPT["coal"] else 10}, 8, v13
s_lshl_b32 s25, s23, 11
s_add_u32 s25, s25, {HG}
s_waitcnt vmcnt(16) lgkmcnt(0)
v_readfirstlane_b32 s74, v{VN}
v_mov_b32 v57, v{VN}
v_mov_b32 v59, v{VN}
""")
for t in range(0 if LATE & 2 else 7): a(f"ds_write_b128 v1, v[{WDV+4*t}:{WDV+4*t+3}] offset:{1024*t}")
for k in range(16):
    a(f"""
v_lshlrev_b32 v48, 16, v{GX+k}
v_and_b32 v49, 0xffff0000, v{GX+k}
v_lshlrev_b32 v50, 16, v{GW+k}
v_and_b32 v51, 0xffff0000, v{GW+k}
v_mul_f32 v48, v48, v50
v_mul_f32 v49, v49, v51
v_cvt_pk_bf16_f32 v48, v48, v49
v_and_b32 v49, 0xffff0000, v48
v_lshlrev_b32 v48, 16, v48
""")
    if k == 0: a("v_add_f32 v52, v48, v49")
    else: a("v_add_f32 v48, v48, v49\nv_add_f32 v52, v52, v48")
a("v_mov_b32 v24, v52")
xsum([24], [25], (8, 4))
a(f"""
v_cvt_pk_bf16_f32 v24, v24, v24
v_lshlrev_b32 v24, 16, v24
v_mul_f32 v24, {f32(-LOG2E)}, v24
v_exp_f32 v24, v24
v_add_f32 v24, 1.0, v24
v_rcp_f32 v24, v24
v_cvt_pk_bf16_f32 v24, v24, v24
v_lshlrev_b32 v{GG}, 16, v24
v_sub_f32 v25, 1.0, v{GG}
v_cvt_pk_bf16_f32 v25, v25, v25
v_lshlrev_b32 v{GG+1}, 16, v25
s_lshl_b32 s26, s18, 17
s_lshl_b32 s27, s17, 7
s_add_u32 s26, s26, s27
s_waitcnt vmcnt(0)
""")
D1 = 52
gemv(9, D1)
a(f"""
v_cvt_pk_bf16_f32 v56, v{D1}, v{D1+1}
v_cvt_pk_bf16_f32 v58, v{D1+2}, v{D1+3}
s_cmp_ge_u32 s18, 28
s_cbranch_scc1 L_nohpub
""")
if OPT["coal"]:
    a(f"""
ds_bpermute_b32 v56, v{CP}, v56
ds_bpermute_b32 v58, v{CP}, v58
s_mov_b32 exec_hi, 0
s_waitcnt lgkmcnt(0)
""")
else:
    a("s_mov_b64 exec, s[58:59]")
a(f"""
buffer_store_dwordx4 v[56:59], v13, s[12:15], s25 offen sc1
s_mov_b64 exec, -1
""")
a.label("L_nohpub")
if OPT["xm"]:
    a(f"""
s_getreg_b32 s31, hwreg(HW_REG_XCC_ID, 0, 4)
s_xor_b32 s31, s31, s74
s_lshl_b32 s29, s17, 8
s_add_u32 s29, s29, {XID}
s_lshl_b32 s27, s18, 3
s_add_u32 s27, s27, s29
v_mov_b32 v{VN+1}, s31
v_lshlrev_b32 v66, 3, v0
v_and_b32 v66, 0xff, v66
s_mov_b64 exec, 1
buffer_store_dwordx2 v[{VN}:{VN+1}], v66, s[12:15], s27 offen sc1
s_mov_b64 exec, -1
""")
stamp(2)
if OPT["tc0"] and OPT["tcd"] == 1:
    a("s_mov_b32 s30, s29"); touch0(); a("s_mov_b32 s29, s30")
def wo_dma(sr):
    for t in range(0 if OPT["skip"] & 1 else 16):
        a(f"s_mov_b32 m0, {WO_LDS + 1024*t}\ns_nop 0\nbuffer_load_dwordx4 v6, s[60:63], {sr} offen nt lds")
        if t < 15: a(f"s_add_u32 {sr}, {sr}, 8192")
if LATE & 1: a("s_mov_b32 s73, s26")
else: wo_dma("s26")
HB = 16; UB = 32
tag_consts(SEL)
a(f"""
s_lshl_b32 s30, s18, 12
s_add_u32 s30, s30, {HG}
v_lshlrev_b32 v1, 5, v11
v_lshl_add_u32 v1, v10, 8, v1
v_mov_b32 v4, 0x7ff00000
v_cmp_gt_u32 vcc, 3, v11
s_and_b64 s[66:67], s[58:59], vcc
v_cndmask_b32 v2, v4, v1, s[66:67]
v_cndmask_b32 v1, v4, v1, s[58:59]
v_lshlrev_b32 v14, 4, v10
v_lshl_add_u32 v14, v11, 7, v14
v_add_u32 v14, {WD_LDS}, v14
s_mov_b32 s76, {SPIN}
""")
backoff(OPT["hd"])
a.label("L_hpoll")
for B_, o_ in ((HB, 0), (UB, 2048)):
    a(f"""
buffer_load_dwordx4 v[{B_}:{B_+3}], v1, s[12:15], s30 offen offset:{o_} sc1
buffer_load_dwordx4 v[{B_+4}:{B_+7}], v1, s[12:15], s30 offen offset:{o_+16} sc1
buffer_load_dwordx4 v[{B_+8}:{B_+11}], v2, s[12:15], s30 offen offset:{o_+128} sc1
buffer_load_dwordx4 v[{B_+12}:{B_+15}], v2, s[12:15], s30 offen offset:{o_+144} sc1
""")
if OPT["xm"]: a("buffer_load_dwordx2 v[64:65], v66, s[12:15], s29 offen sc1")
a("s_waitcnt vmcnt(0)")
any_eq([HB+1, HB+3, HB+5, HB+7, UB+1, UB+3, UB+5, UB+7], "s74", neg=True)
a("s_and_b64 s[64:65], vcc, s[58:59]")
if OPT["xm"]: a("v_cmp_ne_u32 vcc, s74, v64\ns_or_b64 s[64:65], s[64:65], vcc\nv_xor_b32 v67, s74, v65\nv_cmp_lt_u32 vcc, 15, v67\ns_or_b64 s[64:65], s[64:65], vcc")
any_eq([HB+9, HB+11, HB+13, HB+15, UB+9, UB+11, UB+13, UB+15], "s74", neg=True)
a("s_and_b64 vcc, vcc, s[66:67]\ns_or_b64 vcc, vcc, s[64:65]")
spin_tail("L_hpoll", "L_hdone", sleep=OPT["hslp"])
if OPT["xm"]:
    a(f"""
v_cmp_ne_u32 vcc, s31, v65
s_cmp_eq_u64 vcc, 0
s_cselect_b32 s28, {0 if OPT["xforce"] else 1}, 0
""")
stamp(3)
a(f"""
s_mov_b32 s25, {f32(0.044715)}
s_mov_b32 s26, {f32(-2.0*0.7978845608028654*LOG2E)}
v_lshrrev_b32 v1, 2, v10
v_lshl_add_u32 v1, v11, 3, v1
v_lshlrev_b32 v1, 7, v1
v_and_b32 v2, 3, v0
v_lshl_add_u32 v1, v2, 3, v1
v_add_u32 v1, {WD_LDS}, v1
""")
AF = 80
def af_rd():
    for ct in range(4):
        for s_ in range(2):
            r = AF + 8*ct + 4*s_
            a(f"ds_read_b64_tr_b16 v[{r}:{r+1}], v1 offset:{s_*4096+ct*32}")
            a(f"ds_read_b64_tr_b16 v[{r+2}:{r+3}], v1 offset:{s_*4096+ct*32+512}")
def trig_wait():
    a(f"s_mov_b32 s76, {SPIN*16}")
    a.label("L_tw")
    a(f"""
ds_read_b32 v8, v15 offset:136
s_waitcnt lgkmcnt(0)
v_cmp_ne_u32 vcc, 2, v8
""")
    spin_tail("L_tw", "L_twdone", sleep=OPT["tslp"])
    stamp(0)
if not LATE & 2: af_rd()
HF = 48
for e in range(8):
    g_, u_ = HB + 2*e, UB + 2*e
    t = 56
    a(f"""
v_lshlrev_b32 v{t}, 16, v{g_}
v_and_b32 v{t+1}, 0xffff0000, v{g_}
v_lshlrev_b32 v{t+2}, 16, v{u_}
v_and_b32 v{t+3}, 0xffff0000, v{u_}
v_mul_f32 v{t+4}, v{t}, v{t}
v_mul_f32 v{t+5}, v{t+1}, v{t+1}
v_mul_f32 v{t+4}, v{t+4}, v{t}
v_mul_f32 v{t+5}, v{t+5}, v{t+1}
v_fma_f32 v{t+4}, v{t+4}, s25, v{t}
v_fma_f32 v{t+5}, v{t+5}, s25, v{t+1}
v_mul_f32 v{t+4}, s26, v{t+4}
v_mul_f32 v{t+5}, s26, v{t+5}
v_exp_f32 v{t+4}, v{t+4}
v_exp_f32 v{t+5}, v{t+5}
v_add_f32 v{t+4}, 1.0, v{t+4}
v_add_f32 v{t+5}, 1.0, v{t+5}
v_rcp_f32 v{t+4}, v{t+4}
v_rcp_f32 v{t+5}, v{t+5}
v_mul_f32 v{t+4}, v{t+4}, v{t}
v_mul_f32 v{t+5}, v{t+5}, v{t+1}
v_cvt_pk_bf16_f32 v{t+4}, v{t+4}, v{t+5}
v_and_b32 v{t+5}, 0xffff0000, v{t+4}
v_lshlrev_b32 v{t+4}, 16, v{t+4}
v_mul_f32 v{t+4}, v{t+4}, v{t+2}
v_mul_f32 v{t+5}, v{t+5}, v{t+3}
v_cvt_pk_bf16_f32 v{HF+e}, v{t+4}, v{t+5}
""")
if LATE & 2:
    trig_wait()
    for t in range(7):
        a(f"s_mov_b32 m0, {WD_LDS + 1024*t}\ns_nop 0\nbuffer_load_dwordx4 v6, s[4:7], s72 offen nt lds")
        if t < 6: a("s_add_u32 s72, s72, 8192")
    if LATE & 1: wo_dma("s73")
    a(f"s_waitcnt vmcnt({16 if LATE & 1 else 0})")
    af_rd()
a("s_waitcnt lgkmcnt(0)")
for ct in range(4):
    r = AF + 8*ct; d = 112 + 4*ct
    a(f"v_mfma_f32_16x16x32_bf16 v[{d}:{d+3}], v[{r}:{r+3}], v[{HF}:{HF+3}], 0")
    a(f"v_mfma_f32_16x16x32_bf16 v[{d}:{d+3}], v[{r+4}:{r+7}], v[{HF+4}:{HF+7}], v[{d}:{d+3}]")
for ct in range(4): tag_ins(112 + 4*ct, VN, SEL)
a("s_mov_b64 exec, s[58:59]")
for ct in range(4):
    d = 112 + 4*ct
    a(f"ds_write_b128 v14, v[{d}:{d+3}] offset:{512*ct}")
if OPT["hbn"] == 1:
    a(f"""
v_lshlrev_b32 v1, 4, v10
v_lshl_add_u32 v1, v11, 13, v1
s_lshl_b32 s25, s17, 17
s_lshl_b32 s26, s18, 7
s_add_u32 s25, s25, s26
s_add_u32 s25, s25, {CPA}
v_not_b32 v16, v{VN}
v_not_b32 v17, v{VN}
v_not_b32 v18, v{VN}
v_not_b32 v19, v{VN}
""")
    for ct in range(4):
        d = 112 + 4*ct
        a(f"s_add_u32 s26, s25, 4096\nbuffer_store_dwordx4 v[{d}:{d+3}], v1, s[12:15], s26 offen")
        if OPT["prw"]: a(f"buffer_store_dwordx4 v[16:19], v1, s[12:15], s25 offen")
        if ct < 3: a("s_add_u32 s25, s25, 32768")
a(f"""
v_lshl_add_u32 v2, v{CP+2}, 3, v15
s_mov_b64 exec, 15
ds_write_b64 v2, v[{GG}:{GG+1}] offset:64
""")
stamp(4)
if OPT["tchb"]: touch()
if OPT["xm"]:
    a(f"v_mov_b32 v8, s28\nds_write_b32 v15, v8 offset:140")
else:
    a("v_mov_b32 v8, 1\ns_waitcnt vmcnt(0) lgkmcnt(0)\nds_write_b32 v15, v8 offset:140")
if LATE == 1:
    a("s_mov_b64 exec, -1")
    if OPT["lb"] == 2: a("s_waitcnt lgkmcnt(0)\ns_barrier"); stamp(0); backoff(OPT["wdel"])
    else: trig_wait()
    wo_dma("s73")
    if OPT["lb"] == 1: a("s_barrier")
if LATE and OPT["stamps"]: a("s_waitcnt vmcnt(0)"); stamp(4)
hstamps(9, 5)
a("s_waitcnt vmcnt(0) lgkmcnt(0)\ns_endpgm")

a.label("L_stream")
KA, VA, KR, VR = 1, 5, 7, 11
M_, L_ = 20, 21
T0, T1, T2 = 22, 23, 19
Q = 24; KF = 40; S = 56; T = 60; PF = 66; SA = 68; TKA = 69; CL = 70; ZR = 71; O = 72; STG = 104; NINF = 65; FL = 64
TE = T + 2; ONE = T + 3; TA = CL
ST0 = 168 - 16*NST
X0 = KF
a(f"""
v_and_b32 v{T0}, 15, v0
v_lshrrev_b32 v{T1}, 4, v0
s_mul_i32 s24, s3, {RING}
{"s_memrealtime s[98:99]" if OPT["pp"] else ""}
""")
for i in range(4):
    a(f"""
v_add_u32 v{T2}, {4*i}, v{T1}
v_xor_b32 v{T2}, v{T2}, v{T0}
v_lshlrev_b32 v{T2}, 4, v{T2}
v_lshl_add_u32 v{KA+i}, v{T1}, 8, v{T2}
v_lshl_add_u32 v{KR+i}, v{T0}, 8, v{T2}
""")
a(f"""
s_lshl_b32 s30, s20, 4
s_add_u32 s30, s30, s19
s_lshl_b32 s21, s30, 21
s_lshl_b32 s22, s17, 3
s_add_u32 s22, s22, s3
s_mul_i32 s77, s20, {OPT['r2']}
{f"s_mul_i32 s25, s19, {OPT['r1']}" + chr(10) + "s_add_u32 s77, s77, s25" if OPT['r1'] else ""}
s_add_u32 s22, s22, s77
s_and_b32 s26, s22, 511
{trn("s26")}
s_lshl_b32 s26, s26, 12
s_add_u32 s26, s26, s21
s_add_u32 m0, s24, 8192
s_waitcnt lgkmcnt(0)
""")
srd(4, P_K, 128 << 20)
if OPT["fine"] == 6: a("s_memrealtime s[48:49]")
nload = [0]
def pre_load(k):
    if k:
        a(f"""
s_add_u32 s26, s22, {64*k}
s_and_b32 s26, s26, 511
{trn("s26")}
s_lshl_b32 s26, s26, 12
s_add_u32 s26, s26, s21
""")
        if k >= 8: a(f"s_add_u32 s26, s26, {1 << 24}")
    if OPT["pp"] and k >= OPT["pp0"]:
        if k == OPT["pp0"]: a(f"s_mul_i32 s99, s3, {OPT['pps']}\ns_add_u32 s98, s98, s99\ns_movk_i32 s99, 2000")
        a(f"""
L_pp{k}:
s_memrealtime s[100:101]
s_sub_u32 s99, s99, 1
s_cbranch_scc1 L_ppd{k}
s_waitcnt lgkmcnt(0)
s_sub_u32 s100, s100, s98
s_cmp_ge_i32 s100, {OPT['ppo'] + (k - OPT['pp0'] + 1)*OPT['pp']}
s_cbranch_scc1 L_ppd{k}
s_sleep 2
s_branch L_pp{k}
L_ppd{k}:
""")
    if k == 1: a("s_mov_b32 m0, s24")
    if k == 2: a("s_add_u32 m0, s24, 4096")
    for i in range(4):
        if nload[0] == NPRE:
            if OPT["fine"] == 6: a("s_memrealtime s[50:51]")
            setup_rest()
            if OPT["fine"] == 6: a("s_waitcnt vmcnt(0)\ns_memrealtime s[54:55]")
            a("s_waitcnt lgkmcnt(0)\ns_barrier")
            if OPT["fine"] == 6: a("s_memrealtime s[56:57]")
        if nload[0] >= Wp: a(f"s_waitcnt vmcnt({Wp-1})")
        if k < 3:
            a(f"buffer_load_dwordx4 v{KA+i}, s[4:7], s26 offen offset:{i*1024} nt lds")
        else:
            r = ST0 + 16*(k-3) + 4*i
            a(f"buffer_load_dwordx4 v[{r}:{r+3}], v{KA+i}, s[4:7], s26 offen offset:{i*1024} nt")
        nload[0] += 1
def setup_rest():
    srd(8, P_V, 128 << 20)
    srd(12, P_WS, WS_BYTES)
    for e in range(2):
        a(f"""
v_lshrrev_b32 v{T2}, 1, v{T0}
v_add_u32 v{X0}, {4*e}, v{T1}
v_xor_b32 v{T2}, v{T2}, v{X0}
v_lshlrev_b32 v{T2}, 5, v{T2}
v_and_b32 v{X0}, 1, v{T0}
v_lshl_add_u32 v{T2}, v{X0}, 4, v{T2}
v_lshl_add_u32 v{VA+e}, v{T1}, 8, v{T2}
""")
    a(f"""
s_mov_b32 s79, {hex(SENT)}
v_mov_b32 v{S}, s79
v_mov_b32 v{S+1}, s79
v_mov_b32 v{S+2}, s79
v_mov_b32 v{S+3}, s79
s_mul_i32 s25, s3, {NSLOT*16}
s_add_u32 s25, s25, {SB}
v_lshl_add_u32 v{T2}, v0, 4, s25
""")
    for k in range(NSLOT//64): a(f"ds_write_b128 v{T2}, v[{S}:{S+3}] offset:{1024*k}")
    a(f"""
v_lshrrev_b32 v{X0}, 2, v0
v_and_b32 v{X0+1}, 7, v{X0}
v_and_b32 v{X0+2}, 3, v0
v_lshlrev_b32 v{X0+2}, 3, v{X0+2}
v_lshl_add_u32 v{SA}, v{T1}, 5, v{X0+2}
v_add_u32 v{SA}, {SB}, v{SA}
v_lshl_add_u32 v{X0+2}, v{X0}, 8, v{X0+2}
""")
    for dt in range(8):
        a(f"v_xor_b32 v{X0+3}, {dt}, v{X0+1}\nv_lshl_add_u32 v{VR+dt}, v{X0+3}, 5, v{X0+2}")
    a(f"""
v_cmp_gt_u32 s[70:71], 8, v{T0}
v_mov_b32 v{M_}, {f32(-1e30)}
v_mov_b32 v{L_}, 0
v_mov_b32 v{NINF}, 0xff80ff80
v_mov_b32 v{ZR}, 0
s_mov_b32 s58, {f32(SCALE)}
s_mov_b32 s59, {f32(LOG2E)}
s_mov_b32 s31, {f32(-LOG2E)}
v_mov_b32 v{ONE}, 1
v_mov_b32 v{FL}, {TK}
v_mov_b32 v{TKA}, {TK}
s_mov_b32 s78, {T1B}
s_mov_b32 s96, 0
s_mov_b32 s60, s24
s_add_u32 s61, s24, 4096
s_add_u32 s72, s24, 8192
s_lshl_b32 s73, s3, 7
s_add_u32 s27, s73, 1024
s_add_u32 s28, s73, 2048
""")
    tag_consts(SEL)
    for r in range(O, min(O+32, ST0)): a(f"v_mov_b32 v{r}, 0")
    for r in range(16): a(f"v_mov_b32 v{Q+r}, 0")
for k in range(NSU): pre_load(k)
a(f"""
v_lshlrev_b32 v{T2}, 4, v{T1}
v_lshl_add_u32 v{T2}, v{T0}, 8, v{T2}
v_add_u32 v{T2}, {Q_LDS}, v{T2}
s_mov_b32 s76, {SPIN*16}
""")
a.label("L_qw")
a(f"""
ds_read_b32 v{T}, v{FL} offset:4
s_waitcnt lgkmcnt(0)
v_cmp_ne_u32 vcc, 1, v{T}
""")
spin_tail("L_qw", "L_qwdone", sleep=1)
stamp(1)
a("s_mov_b64 exec, s[70:71]")
for j in range(4): a(f"ds_read_b128 v[{Q+4*j}:{Q+4*j+3}], v{T2} offset:{j*64}")
a("s_mov_b64 exec, -1")

nlab = [0]
def ticket_rd():
    a(f"s_mov_b64 exec, 1\nds_add_rtn_u32 v{TE}, v{TKA}, v{ONE}\ns_mov_b64 exec, -1")
def ticket_use():
    a(f"""
v_readfirstlane_b32 s25, v{TE}
s_and_b32 s75, s25, 1
s_lshr_b32 s25, s25, 1
s_lshl_b32 s25, s25, 2
s_add_u32 s25, s25, s78
v_mov_b32 v{TA}, s25
""")
def entry_rd():
    a(f"ds_read_b32 v{TE}, v{TA}")
def dmask(d):
    a(f"""
s_andn2_b32 s25, {d}, 127
v_add_u32 v{T2}, s25, v{SA}
s_and_b32 s25, {d}, 4
s_lshl_b32 s68, 0x000f000f, s25
s_mov_b32 s69, s68
""")
def kstep(sb, d, mid=None):
    for j in range(4): a(f"v_add_u32 v{KF+4*j}, {sb}, v{KR+j}\nds_read_b128 v[{KF+4*j}:{KF+4*j+3}], v{KF+4*j}")
    dmask(d)
    if mid:
        a("s_waitcnt lgkmcnt(4)"); mid()
    for j in range(4):
        c = "0" if j == 0 else f"v[{S}:{S+3}]"
        a(f"s_waitcnt lgkmcnt({3-j})")
        a(f"v_mfma_f32_16x16x32_bf16 v[{S}:{S+3}], v[{KF+4*j}:{KF+4*j+3}], v[{Q+4*j}:{Q+4*j+3}], {c}")
    for k in range(2): a(f"v_cvt_pk_bf16_f32 v{T+k}, v{S+2*k}, v{S+2*k+1}")
    for k in range(2):
        a(f"v_lshlrev_b32 v{S+2*k}, 16, v{T+k}\nv_and_b32 v{S+2*k+1}, 0xffff0000, v{T+k}")
    for k in range(4): a(f"v_mul_f32 v{S+k}, s58, v{S+k}")
    for k in range(2): a(f"v_cvt_pk_bf16_f32 v{PF+k}, v{S+2*k}, v{S+2*k+1}")
    a(f"s_mov_b64 exec, s[68:69]\nds_write_b64 v{T2}, v[{PF}:{PF+1}]\ns_mov_b64 exec, -1")
ool = []
def soft():
    nlab[0] += 1
    n = nlab[0]
    a(f"""
L_sr{n}:
v_cmp_eq_u32 vcc, s79, v{PF}
v_cmp_eq_u32 s[74:75], s79, v{PF+1}
""" if False else f"""
L_sr{n}:
v_cmp_eq_u32 vcc, s79, v{PF}
s_cbranch_vccnz L_ss{n}
v_cmp_eq_u32 vcc, s79, v{PF+1}
s_cbranch_vccnz L_ss{n}
L_sg{n}:
v_cndmask_b32 v{T}, v{NINF}, v{PF}, s[68:69]
v_cndmask_b32 v{T+1}, v{NINF}, v{PF+1}, s[68:69]
""")
    ool.append(f"""
L_ss{n}:
s_sub_u32 s76, s76, 1
s_cmp_le_i32 s76, 0
s_cbranch_scc1 L_sg{n}
ds_read_b64 v[{PF}:{PF+1}], v{T2}
s_waitcnt lgkmcnt(0)
s_branch L_sr{n}
""")
    for k in range(2):
        a(f"v_lshlrev_b32 v{S+2*k}, 16, v{T+k}\nv_and_b32 v{S+2*k+1}, 0xffff0000, v{T+k}")
    a(f"""
v_max3_f32 v{T}, v{S}, v{S+1}, v{S+2}
v_max3_f32 v{T}, v{T}, v{S+3}, v{M_}
v_mov_b32 v{T+1}, v{T}
v_permlane16_swap_b32 v{T}, v{T+1}
v_max_f32 v{T}, v{T}, v{T+1}
v_mov_b32 v{T+1}, v{T}
v_permlane32_swap_b32 v{T}, v{T+1}
v_max_f32 v{T}, v{T}, v{T+1}
v_cmp_gt_f32 vcc, v{T}, v{M_}
s_cbranch_vccz L_nr{n}
v_sub_f32 v{T+1}, v{M_}, v{T}
v_mul_f32 v{T+1}, s59, v{T+1}
v_exp_f32 v{T+1}, v{T+1}
v_mov_b32 v{M_}, v{T}
v_mul_f32 v{L_}, v{L_}, v{T+1}
""")
    for r in range(32): a(f"v_mul_f32 v{O+r}, v{O+r}, v{T+1}")
    a.label(f"L_nr{n}")
    a(f"v_mul_f32 v{T+1}, s31, v{M_}")
    for k in range(4): a(f"v_fma_f32 v{S+k}, v{S+k}, s59, v{T+1}")
    for k in range(4): a(f"v_exp_f32 v{S+k}, v{S+k}")
    for k in range(2): a(f"v_cvt_pk_bf16_f32 v{PF+k}, v{S+2*k}, v{S+2*k+1}")
    a(f"""
v_add_f32 v{T}, v{S}, v{S+1}
v_add_f32 v{T+1}, v{S+2}, v{S+3}
v_add_f32 v{T}, v{T}, v{T+1}
v_add_f32 v{L_}, v{L_}, v{T}
""")
def v_rd(sb):
    for dt in range(8): a(f"v_add_u32 v{KF+2*dt}, {sb}, v{VR+dt}\nds_read_b64_tr_b16 v[{KF+2*dt}:{KF+2*dt+1}], v{KF+2*dt}")
def pv(dt):
    a(f"v_mfma_f32_16x16x16_bf16 v[{O+4*dt}:{O+4*dt+3}], v[{KF+2*dt}:{KF+2*dt+1}], v[{PF}:{PF+1}], v[{O+4*dt}:{O+4*dt+3}]")
def vstep(sb, d, mid=None):
    dmask(d)
    a(f"ds_read_b64 v[{PF}:{PF+1}], v{T2}")
    v_rd(sb)
    a("s_waitcnt lgkmcnt(8)")
    if mid: mid()
    soft()
    a("s_waitcnt lgkmcnt(0)")
    for dt in range(8): pv(dt)
X = STG
VNS = X + 27; FLG = X + 26
F3ADDR = f"""
s_lshl_b32 s77, s16, 2
s_add_u32 s77, s77, {F1}
s_lshr_b32 s22, s16, {OPT['rsh']}
s_lshl_b32 s22, s22, 10
s_add_u32 s22, s22, {F1}
s_lshr_b32 s95, s3, 1
s_lshl_b32 s95, s95, 3
s_lshr_b32 s25, s16, 5
s_add_u32 s95, s95, s25
s_lshl_b32 s95, s95, 5
s_add_u32 s95, s95, s22
""" if OPT["f3"] else ""
FLIM = 1 << 20
COL = OPT["col"]
COL1 = f"""
v_lshrrev_b32 v{X+11}, 2, v{T0}
v_lshlrev_b32 v{X+11}, 12, v{X+11}
v_lshl_add_u32 v{X+25}, v{X+13}, 4, v{X+11}
v_lshl_add_u32 v{X+11}, v{T1}, 13, v{X+25}
""" if COL else f"""v_lshlrev_b32 v{X+11}, 4, v{T0}
v_lshl_add_u32 v{X+11}, v{T1}, 13, v{X+11}
"""
COL2 = "" if COL else f"""v_lshrrev_b32 v{X+25}, 3, v{T0}
v_lshlrev_b32 v{X+25}, 13, v{X+25}
v_lshl_add_u32 v{X+25}, v{X+3}, 4, v{X+25}
"""
FU = OPT["fful"]
FADDR = f"""
s_and_b32 s94, s29, 31
s_lshl_b32 s94, s94, 6
s_lshr_b32 s25, s29, 5
s_add_u32 s94, s94, s25
s_mul_i32 s94, s94, {FST}
s_lshl_b32 s25, s17, 3
s_add_u32 s94, s94, s25
s_add_u32 s94, s94, {FG}
s_andn2_b32 s95, s16, {[0, 7, 3, 1, 0][OPT['fone']]}
s_lshl_b32 s95, s95, 3
s_add_u32 s95, s95, s3
s_mul_i32 s95, s95, {FST}
s_add_u32 s95, s95, {FG}
v_mul_u32_u24 v{X+30}, {8*FST}, v0
""" if not FU else f"""
s_lshl_b32 s94, s29, 3
s_add_u32 s94, s94, s17
s_mul_i32 s94, s94, {FU}
s_add_u32 s94, s94, {FG}
s_lshl_b32 s95, s3, 5
s_add_u32 s95, s95, s18
s_mul_i32 s95, s95, {8*FU}
s_lshl_b32 s25, s17, 3
s_add_u32 s95, s95, s25
s_add_u32 s95, s95, {FG}
v_mul_u32_u24 v{X+30}, {FU}, v0
"""
FSA, FPA = (X+1, X+30) if FU else (X+30, X+1)
if OPT["fone"] == 4:
    FADDR = f"""
s_mul_i32 s94, s29, {FST}
s_lshl_b32 s25, s17, 3
s_add_u32 s94, s94, s25
s_add_u32 s94, s94, {FG + OPT['fgo']}
s_lshl_b32 s95, s3, 5
s_add_u32 s95, s95, s18
s_mul_i32 s95, s95, {FST}
s_add_u32 s95, s95, {FG + OPT['fgo']}
v_mov_b32 v{X+30}, 0
"""
def tail_addr():
    a(f"""
v_mul_u32_u24 v{X}, {CST}, v{T0}
v_lshl_add_u32 v{X}, v{T1}, 4, v{X}
v_add_u32 v{X}, s24, v{X}
v_lshlrev_b32 v{X+1}, 3, v0
s_lshl_b32 s25, s3, 3
s_add_u32 s25, s25, {MLT}
v_lshl_add_u32 v{X+15}, v0, 6, s25
v_mov_b32 v{X+21}, {MISC}
ds_read_b32 v{VNS}, v{X+21} offset:96
s_lshr_b32 s29, s3, 2
s_lshl_b32 s29, s29, 3
s_add_u32 s29, s29, s30
s_lshl_b32 s29, s29, 2
s_and_b32 s25, s3, 3
s_add_u32 s29, s29, s25
s_lshl_b32 s62, s29, 12
s_lshl_b32 s25, s17, 9
s_add_u32 s62, s62, s25
s_add_u32 s62, s62, {PART}
{FADDR}
v_and_b32 v{X+3}, 31, v0
v_lshrrev_b32 v{X+4}, 5, v0
v_lshlrev_b32 v{X+2}, 4, v{X+3}
v_bfe_u32 v{X+10}, v0, 4, 1
v_lshlrev_b32 v{X+10}, 2, v{X+10}
v_lshl_add_u32 v{X+10}, v{T0}, 4, v{X+10}
v_lshl_add_u32 v{X+10}, v{X+4}, 3, v{X+10}
v_and_b32 v{X+31}, 1, v0
v_lshlrev_b32 v{X+31}, 4, v{X+31}
v_mul_u32_u24 v{X+14}, {4*RING}, v{X+4}
v_add_u32 v{X+2}, v{X+14}, v{X+2}
s_mul_i32 s25, s3, {CST}
v_add_u32 v{X+2}, s25, v{X+2}
v_and_b32 v{X+3}, 7, v0
v_lshlrev_b32 v{X+4}, 2, v{X+4}
v_xor_b32 v{X+4}, v{X+4}, v{X+3}
s_lshl_b32 s25, s3, 6
s_add_u32 s25, s25, {MLT}
v_lshl_add_u32 v{X+4}, v{X+4}, 3, s25
s_lshl_b32 s74, s3, 5
s_add_u32 s74, s74, s18
s_lshl_b32 s74, s74, 12
s_add_u32 s74, s74, {PART}
v_lshlrev_b32 v{X+7}, 4, v0
v_lshrrev_b32 v{X+9}, 2, v{T0}
v_lshl_add_u32 v{X+9}, v{T1}, 3, v{X+9}
v_lshlrev_b32 v{X+9}, 7, v{X+9}
v_and_b32 v{X+13}, 3, v0
v_lshl_add_u32 v{X+9}, v{X+13}, 3, v{X+9}
s_and_b32 s25, s3, 3
s_lshl_b32 s25, s25, 5
s_add_u32 s25, s25, {WO_LDS}
v_add_u32 v{X+9}, s25, v{X+9}
s_mul_i32 s25, s3, {OST}
s_add_u32 s25, s25, {O_LDS}
v_add_u32 v{X+10}, s25, v{X+10}
v_mul_u32_u24 v{X+12}, {OST}, v{T0}
v_lshl_add_u32 v{X+12}, v{T1}, 4, v{X+12}
v_add_u32 v{X+12}, {O_LDS}, v{X+12}
{COL1}
v_lshl_add_u32 v{X+21}, v{X+13}, 3, v{X+21}
s_lshl_b32 s25, s3, 8
s_add_u32 s25, s25, {WD_LDS}
v_lshl_add_u32 v{X+24}, v{T0}, 4, s25
{COL2}
s_lshl_b32 s29, s17, 17
s_add_u32 s29, s29, {CPA}
s_lshl_b32 s25, s18, 7
s_add_u32 s65, s29, s25
s_lshl_b32 s25, s3, 14
s_add_u32 s67, s65, s25
s_add_u32 s67, s67, {64 if COL else 4096}
s_add_u32 s63, s67, {CPB-CPA}
s_lshl_b32 s25, s3, 15
s_add_u32 s65, s65, s25
s_add_u32 s64, s65, {CPB-CPA}
v_lshlrev_b32 v{X+23}, 10, v{X+13}
v_lshl_add_u32 v{X+23}, v{T1}, 1, v{X+23}
v_lshrrev_b32 v{X+14}, 2, v0
v_lshlrev_b32 v{X+14}, 7, v{X+14}
v_lshl_add_u32 v{X+13}, v{X+13}, 4, v{X+14}
s_lshr_b32 s66, s18, 1
s_lshl_b32 s99, s66, 3
s_lshl_b32 s66, s66, 13
s_add_u32 s66, s66, s29
s_and_b32 s25, s18, 1
s_lshl_b32 s29, s25, {12 if COL else 6}
s_add_u32 s66, s66, s29
s_add_u32 s98, s66, {64 if COL else 4096 if OPT["bpa"] else 4096 + CPB - CPA}
s_lshl_b32 s25, s25, 12
s_add_u32 s99, s99, s25
s_lshl_b32 s25, s17, 7
s_add_u32 s99, s99, s25
s_waitcnt lgkmcnt(0)
v_lshrrev_b32 v{X+31}, v{X+31}, v{VNS}
""")
a(f"s_mov_b32 s76, {SPIN*64}\ns_waitcnt vmcnt({4*NSU-4})\ns_mov_b32 s97, 0")
ticket_rd()
kstep("s72", "s73", mid=ticket_use)
entry_rd()
a(f"""
L_loop:
s_cmp_eq_u32 s96, 2
s_cbranch_scc1 L_flush
L_loop2:
s_waitcnt vmcnt(4) lgkmcnt(0)
L_eretry:
v_readfirstlane_b32 s23, v{TE}
s_mov_b32 m0, s72
s_cmp_eq_u32 s23, -1
s_cbranch_scc1 L_espin
s_bitcmp1_b32 s23, 9
s_cbranch_scc1 L_special
s_lshl_b32 s26, s23, 1
s_add_u32 s26, s26, s75
s_add_u32 s26, s26, s77
s_and_b32 s26, s26, 511
{trn("s26")}
s_lshl_b32 s26, s26, 12
s_add_u32 s26, s26, s21
s_and_b32 s25, s23, 256
s_lshl_b32 s29, s25, 16
s_add_u32 s26, s26, s29
s_bitcmp1_b32 s23, 15
s_cbranch_scc1 L_isv
""")
for i in range(4): a(f"buffer_load_dwordx4 v{KA+i}, s[4:7], s26 offen offset:{i*1024} nt lds")
a("s_branch L_isd\nL_isv:")
for i in range(4): a(f"buffer_load_dwordx4 v{VA+(i&1)}, s[8:11], s26 offen offset:{i*1024} nt lds")
a(f"""
L_isd:
s_lshr_b32 s25, s25, 6
s_bfe_u32 s73, s23, 0x1000f
s_or_b32 s73, s73, s25
s_lshr_b32 s23, s23, 16
s_lshl_b32 s23, s23, 1
s_add_u32 s23, s23, s75
s_lshl_b32 s23, s23, 7
s_or_b32 s73, s73, s23
L_proc:
""")
ticket_rd()
a("s_bitcmp1_b32 s27, 0\ns_cbranch_scc1 L_pv")
kstep("s60", "s27", mid=ticket_use)
a("s_branch L_pd\nL_pv:")
vstep("s60", "s27", mid=ticket_use)
a.label("L_pd")
entry_rd()
a(f"""
s_mov_b32 s25, s60
s_mov_b32 s60, s61
s_mov_b32 s61, s72
s_mov_b32 s72, s25
s_mov_b32 s27, s28
s_mov_b32 s28, s73
s_add_u32 s96, s96, 1
s_cmp_lt_u32 s97, 2
s_cbranch_scc1 L_loop
s_cmp_eq_u32 s97, 3
s_cbranch_scc1 L_final
s_waitcnt vmcnt(0)
L_flush:
s_waitcnt vmcnt(8)
v_lshlrev_b32 v{PF}, 4, v0
v_add_u32 v{TA+1}, s72, v{PF}
s_lshl_b32 s73, s3, 7
""")
for u in range(NST):
    for i in range(4):
        r = ST0 + 16*u + 4*i
        a(f"ds_write_b128 v{TA+1}, v[{r}:{r+3}] offset:{i*1024}")
    a(f"s_add_u32 s23, s73, {1024*(3+u) + (4 if 3+u >= 8 else 0)}")
    kstep("s72", "s23")
a(f"v_mov_b32 v{ZR}, 0")
for r in range(ST0, O+32): a(f"v_mov_b32 v{r}, 0")
tail_addr()
a(f"""
s_add_u32 s97, s97, 1
s_cmp_eq_u32 s97, 1
s_cbranch_scc1 L_loop2
L_final:
s_bitcmp1_b32 s27, 0
s_cbranch_scc1 L_finv
s_waitcnt vmcnt(0)
""")
kstep("s60", "s27")
a(f"""
s_branch L_fin2
L_espin:
s_sub_u32 s76, s76, 1
s_cmp_le_i32 s76, 0
s_cbranch_scc1 L_term
ds_read_b32 v{TE}, v{TA}
s_waitcnt lgkmcnt(0)
s_branch L_eretry
L_special:
s_bitcmp1_b32 s23, 0
s_cbranch_scc0 L_term
v_mov_b32 v{TKA}, {TK+16}
s_mov_b32 s78, {T2B}
""")
ticket_rd()
a("s_waitcnt lgkmcnt(0)")
ticket_use()
a(f"""
s_branch L_espin
L_term:
s_or_b32 s97, s97, 2
v_mov_b32 v{TKA}, {TK+20}
s_branch L_proc
""")
OOL_AT = len(a.L)
a.label("L_finv")
def fine3(k): pass
if OPT["fine"] == 6: a("s_mov_b32 s4, s80")
dmask("s27")
a(f"ds_read_b64 v[{PF}:{PF+1}], v{T2}\ns_waitcnt lgkmcnt(0)")
soft()
a.label("L_fin2")
AA = STG + 32
CM = AA; AW = AA + 16
R = S; GV = X + 28
a(f"""
v_mov_b32 v{T+1}, v{L_}
v_permlane16_swap_b32 v{L_}, v{T+1}
v_add_f32 v{L_}, v{L_}, v{T+1}
v_mov_b32 v{T+1}, v{L_}
v_permlane32_swap_b32 v{L_}, v{T+1}
v_add_f32 v{L_}, v{L_}, v{T+1}
s_mov_b32 s76, {SPIN*16}
s_mov_b64 exec, 0xff
ds_write_b64 v{X+15}, v[{M_}:{L_}]
s_mov_b64 exec, -1
""")
def aw_rd(s_):
    a(f"ds_read_b64_tr_b16 v[{AW+4*s_}:{AW+4*s_+1}], v{X+9} offset:{s_*4096}")
    a(f"ds_read_b64_tr_b16 v[{AW+4*s_+2}:{AW+4*s_+3}], v{X+9} offset:{s_*4096+512}")
def misc_rd():
    if OPT["xm"]: a(f"ds_read_b32 v{T}, v{FL} offset:12")
    a(f"ds_read_b128 v[{X+16}:{X+19}], v{X+24}")
    if not OPT["lb"]:
        for s_ in range(4): aw_rd(s_)
    a(f"ds_read_b64 v[{GV}:{GV+1}], v{X+21} offset:64")
if not OPT["mlate"]:
    a(f"L_bw:\nds_read_b32 v{T}, v{FL} offset:12")
    misc_rd()
    a(f"s_waitcnt lgkmcnt(0)\nv_cmp_ne_u32 vcc, 1, v{T}")
    spin_tail("L_bw", "L_bwdone", sleep=2)
C = O + 16
def fine2(k):
    if OPT["fine"] == 2: a(f"s_waitcnt vmcnt(0)\ns_memtime s[{[4,6,8,10,48,50,54,56][k]}:{[4,6,8,10,48,50,54,56][k]+1}]\ns_waitcnt lgkmcnt(0)")
def fine(k):
    if OPT["fine"] == 1: a(f"s_memtime s[{[4,6,8,10,48,50,54,56][k]}:{[4,6,8,10,48,50,54,56][k]+1}]" + ("\ns_waitcnt lgkmcnt(0)" if k in (0, 3,) else ""))
for dt in range(8): a(f"v_add_u32 v{KF+2*dt}, s60, v{VR+dt}")
a(f"s_mov_b32 s76, {SPIN}\ns_waitcnt vmcnt(0)")
fine3(3)
fine(0)
a("s_bitcmp1_b32 s27, 0\ns_cbranch_scc0 L_fin3")
for dt in range(8): a(f"ds_read_b64_tr_b16 v[{KF+2*dt}:{KF+2*dt+1}], v{KF+2*dt}")
for dt in range(8):
    a(f"s_waitcnt lgkmcnt({7-dt})")
    pv(dt)
a.label("L_fin3")
stamp(2)
fine(1)
a("s_mov_b64 exec, s[70:71]")
for dt in range(8): a(f"ds_write_b128 v{X}, v[{O+4*dt}:{O+4*dt+3}] offset:{dt*64}")
a("s_mov_b64 exec, -1")
if OPT["tcw"]:
    a(f"""
s_cmp_lg_u32 s3, {OPT['fin']}
s_cbranch_scc1 L_ntc
v_lshlrev_b32 v{T}, 7, v0
{"s_mov_b32 exec_hi, 0" if OPT["tcw"] == 1 else ""}
buffer_load_dword v{AA+4}, v{T}, s[12:15], s66 offen {['', 'sc1', 'nt'][OPT['tpol']]}
s_mov_b64 exec, -1
L_ntc:
""")
a("s_waitcnt lgkmcnt(0)")
fine(2)
a("s_barrier")
fine(3)
a(f"ds_read_b64 v[{CM}:{CM+1}], v{X+4}")
for k in range(4):
    a(f"ds_read_b128 v[{C+4*k}:{C+4*k+3}], v{X+2} offset:{k*RING}")
def red8(r, op, src=None):
    for m in ("quad_perm:[1,0,3,2]", "quad_perm:[2,3,0,1]", "row_half_mirror"):
        q = r if src is None else src
        a(f"{op}_dpp v{r}, v{q}, v{q} {m} row_mask:0xf bank_mask:0xf")
        src = None
a("s_waitcnt lgkmcnt(4)")
red8(T, "v_max_f32", CM)
a(f"""
v_sub_f32 v{CM}, v{CM}, v{T}
v_mul_f32 v{CM}, s59, v{CM}
v_exp_f32 v{CM}, v{CM}
v_mul_f32 v{T+1}, v{CM}, v{CM+1}
""")
def ofma(k):
    a(f"s_waitcnt lgkmcnt({3-k})")
    for j in range(4): a(f"v_{'mul' if k == 0 else 'fmac'}_f32_dpp v{R+j}, v{CM}, v{C+4*k+j} row_newbcast:{k} row_mask:0xf bank_mask:0xf")
red8(T+1, "v_add_f32")
a(f"""
v_max_f32 v{T+1}, {f32(1e-30)}, v{T+1}
v_log_f32 v{T+2}, v{T+1}
v_rcp_f32 v{T+3}, v{T+1}
""")
ofma(0)
a(f"""
v_fma_f32 v{FLG}, v{T}, s59, v{T+2}
v_perm_b32 v{FLG}, v{FLG}, v{VNS}, s{SEL}
""")
fine2(0)
def flag_st():
    a(f"""
s_mov_b64 exec, {hex((1 << (FU//8)) - 1) if FU else [0xff, 1, 0x11, 0x55, 1][OPT['fone']]}
buffer_store_dwordx2 v[{FLG}:{FLG+1}], v{FSA}, s[12:15], s94 offen sc1
s_mov_b64 exec, -1
""")
if not OPT["fo"]: flag_st()
fine2(1)
for k in range(1, 4): ofma(k)
fine(4)
a(f"""
v_permlane32_swap_b32 v{R}, v{R+2}
v_permlane32_swap_b32 v{R+1}, v{R+3}
v_add_f32 v{R}, v{R}, v{R+2}
v_add_f32 v{R+1}, v{R+1}, v{R+3}
v_mul_f32 v{R}, v{R}, v{T+3}
v_mul_f32 v{R+1}, v{R+1}, v{T+3}
v_perm_b32 v{R}, v{R}, v{X+31}, s{SEL}
v_perm_b32 v{R+1}, v{R+1}, v{X+31}, s{SEL+1}
""")
if OPT["px4"]:
    a(f"""
v_mov_b32_dpp v{R+2}, v{R} quad_perm:[1,1,3,3] row_mask:0xf bank_mask:0xf
v_mov_b32_dpp v{R+3}, v{R+1} quad_perm:[1,1,3,3] row_mask:0xf bank_mask:0xf
s_mov_b32 exec_lo, 0x55555555
s_mov_b32 exec_hi, 0x55555555
buffer_store_dwordx4 v[{R}:{R+3}], v{X+1}, s[12:15], s62 offen sc1
s_mov_b64 exec, -1
""")
else:
    a(f"buffer_store_dwordx2 v[{R}:{R+1}], v{X+1}, s[12:15], s62 offen sc1")
if OPT["fo"]: flag_st()
if OPT["mlate"]:
    if OPT["stamps"]: stamp(3); a("s_waitcnt lgkmcnt(0)")
    misc_rd()
    a(f"s_waitcnt lgkmcnt({1 if OPT['lb'] else 9})")
if OPT["hbn"] != 1: a("s_mov_b64 exec, 0xffff")
if not OPT["mlate"]: stamp(3)
fine(5)
fine2(2)
def st2(lbl, ins, extra=""):
    a(f"""
s_cmp_eq_u32 s63, 1
s_cbranch_scc1 {lbl}n
{ins} sc1
s_branch {lbl}d
{lbl}n:
{ins}{" nt" if OPT["snt"] & (1 if lbl == "L_bs" else 2) else ""}
{extra}
{lbl}d:
""")
if OPT["xm"]:
    a(f"v_readfirstlane_b32 s63, v{T}")
    st2("L_bs", f"buffer_store_dwordx4 v[{X+16}:{X+19}], v{X+25}, s[12:15], s67 offen", f"""
v_not_b32 v{T}, v{VNS}
v_not_b32 v{T+1}, v{VNS}
v_not_b32 v{T+2}, v{VNS}
v_not_b32 v{T+3}, v{VNS}
s_sub_u32 s25, s67, 4096
buffer_store_dwordx4 v[{T}:{T+3}], v{X+25}, s[12:15], s25 offen
""" if OPT["prw"] else "")
elif OPT["hbn"] != 1:
    if OPT["bpa"]: a(f"buffer_store_dwordx4 v[{X+16}:{X+19}], v{X+25}, s[12:15], s67 offen")
    if not OPT["hbn"]: a(f"buffer_store_dwordx4 v[{X+16}:{X+19}], v{X+25}, s[12:15], s63 offen sc1")
    fine2(3)
    if OPT["prw"]:
        a(f"""
v_not_b32 v{T}, v{VNS}
v_not_b32 v{T+1}, v{VNS}
v_not_b32 v{T+2}, v{VNS}
v_not_b32 v{T+3}, v{VNS}
s_sub_u32 s25, s67, 4096
buffer_store_dwordx4 v[{T}:{T+3}], v{X+25}, s[12:15], s25 offen
""")
fine2(4)
BB = AA + 8
def bpoll():
    for k in range(2):
        a(f"buffer_load_dwordx4 v[{BB+4*k}:{BB+4*k+3}], v{X+13}, s[12:15], s98 offen offset:{2048*k} sc1")
def bp_early():
    a(f"s_cmp_lg_u32 s3, {OPT['fin']}\ns_cbranch_scc1 L_nobp0\ns_mov_b64 exec, -1")
    bpoll()
    a.label("L_nobp0")
if OPT["bpe"] >= 2: bp_early()
PA = O
WT = Q; FS = Q + 4; P = Q + 8; TT = KF
FPOLL = {0: f"""
v_mov_b32 v{FS}, 0
v_mov_b32 v{FS+1}, 0
buffer_atomic_or_x2 v[{FS}:{FS+1}], v{FPA}, s[12:15], s95 offen sc0 sc1
""", 1: f"buffer_load_dwordx2 v[{FS}:{FS+1}], v{FPA}, s[12:15], s95 offen sc1",
2: f"""
v_mov_b32 v{FS}, v{VNS}
v_mov_b32 v{FS+1}, 0
v_mov_b32 v{FS+2}, v{VNS}
v_mov_b32 v{FS+3}, 0
buffer_atomic_cmpswap_x2 v[{FS}:{FS+3}], v{FPA}, s[12:15], s95 offen sc0 sc1
""", 3: f"buffer_load_dwordx2 v[{FS}:{FS+1}], v{FPA}, s[12:15], s95 offen sc0 sc1 nt",
4: f"""
v_mov_b32 v{FS}, 0
v_mov_b32 v{FS+1}, 0
buffer_atomic_umax_x2 v[{FS}:{FS+1}], v{FPA}, s[12:15], s95 offen sc0 sc1
""", 5: f"""
v_mov_b32 v{FS}, 0
v_mov_b32 v{FS+1}, 0
buffer_atomic_or_x2 v[{FS}:{FS+1}], v{FPA}, s[12:15], s95 offen sc0 sc1 nt
"""}[OPT["fpol"]]
def pload(k):
    if not OPT["nopart"]: a(f"buffer_load_dwordx4 v[{PA+4*k}:{PA+4*k+3}], v{X+7}, s[12:15], s74 offen offset:{1024*k} sc1")
def ploads(m):
    for k in range(4):
        a(f"""
s_bfe_i32 exec_lo, {m}, {hex(0x10000 + 2*k)}
s_bfe_i32 exec_hi, {m}, {hex(0x10000 + 2*k + 1)}
""")
        pload(k)
FCHK = f"""
v_xor_b32 v{T}, v{FS}, v{VNS}
v_and_b32 v{T}, 0xff, v{T}
v_xor_b32 v{T+1}, v{FS+1}, v{VNS}
v_or_b32 v{T}, v{T}, v{T+1}
v_cmp_eq_u32 vcc, 0, v{T}
"""
a(f"""
s_movk_i32 s22, 0xff
s_mov_b32 s23, 0
L_f1:
s_mov_b64 exec, s[22:23]
{FPOLL}
s_sub_u32 s76, s76, 1
s_waitcnt vmcnt(0)
{FCHK}
s_cbranch_vccz L_f1n
s_mov_b32 s25, vcc_lo
""")
if OPT["inc"]: ploads("s25")
a(f"""
s_andn2_b32 s22, s22, s25
s_cbranch_scc0 L_f1done
L_f1n:
s_cmp_eq_u32 s76, 0
s_cbranch_scc1 L_f1done
{"s_sleep %d" % OPT['f1slp'] if OPT['f1slp'] else ""}
""")
if OPT["spec"]:
    a(f"""
s_bcnt1_i32_b32 s25, s22
s_cmp_gt_u32 s25, {OPT['spec']}
s_cbranch_scc1 L_f1
L_f2:
s_mov_b64 exec, s[22:23]
{FPOLL}
""")
    ploads("s22")
    a(f"""
s_mov_b64 exec, s[22:23]
s_sub_u32 s76, s76, 1
s_waitcnt vmcnt(0)
{FCHK}
s_andn2_b32 s22, s22, vcc_lo
s_cbranch_scc0 L_f1done
s_cmp_eq_u32 s76, 0
s_cbranch_scc1 L_f1done
{"s_sleep %d" % OPT['f2slp'] if OPT['f2slp'] else ""}
s_branch L_f2
""")
if OPT["f1th"]:
    a(f"""
s_bcnt1_i32_b32 s25, s22
s_cmp_le_u32 s25, {OPT['f1th']}
s_cbranch_scc1 L_f1
s_sleep {OPT['f1sl2']}
""")
a(f"""
s_branch L_f1
L_f1done:
s_mov_b64 exec, -1
""")
if not OPT["inc"]:
    for k in range(4): pload(k)
if OPT["bpe"] == 1: bp_early()
if OPT["stamps"]: a("s_memrealtime s[100:101]")
red8(T, "v_max_f32", FS)
a(f"""
v_sub_f32 v{FS}, v{FS}, v{T}
v_exp_f32 v{FS}, v{FS}
""")
red8(T, "v_add_f32", FS)
a(f"""
v_rcp_f32 v{T}, v{T}
v_mul_f32 v{FS}, v{FS}, v{T}
""")
for x in range(8): a(f"v_readlane_b32 s{32+x}, v{FS}, {x}")
for k in range(4): a(f"v_mov_b32 v{WT+k}, s{32+2*k+1}")
a("s_mov_b32 exec_hi, 0")
for k in range(4): a(f"v_mov_b32 v{WT+k}, s{32+2*k}")
def tag_chk(grans, t):
    for n_, r in enumerate(grans):
        a(f"v_perm_b32 v{t+2*n_}, v{r+1}, v{r}, s{SEL+4}\nv_perm_b32 v{t+2*n_+1}, v{r+3}, v{r+2}, s{SEL+5}")
    for n_, r in enumerate(grans):
        a(f"v_xor_b32 v{t+2*n_}, v{t+2*n_}, v{VNS}")
    for n_, r in enumerate(grans):
        a(f"v_xor_b32 v{t+2*n_}, v{t+2*n_}, v{t+2*n_+1}")
    if len(grans) == 4:
        a(f"v_or3_b32 v{t}, v{t}, v{t+2}, v{t+4}\nv_or_b32 v{t}, v{t}, v{t+6}")
    else:
        a(f"v_or_b32 v{t}, v{t}, v{t+2}")
    a(f"v_cmp_ne_u32 vcc, 0, v{t}")
a.label("L_pchk")
a("s_mov_b64 exec, -1\ns_waitcnt vmcnt(0)")
for k in range(4):
    for j in range(4): a(f"v_{'mul' if k == 0 else 'fmac'}_f32 v{P+j}, v{WT+k}, v{PA+4*k+j}")
a(f"""
v_permlane32_swap_b32 v{P}, v{P+2}
v_permlane32_swap_b32 v{P+1}, v{P+3}
v_add_f32 v{P}, v{P}, v{P+2}
v_add_f32 v{P+1}, v{P+1}, v{P+3}
v_cvt_pk_bf16_f32 v{P}, v{P}, v{P+1}
ds_write_b32 v{X+10}, v{P}
""")
tag_chk([PA+4*k for k in range(4)], TT)
if not OPT["nopart"]: a("s_cbranch_vccnz L_prep")
a.label("L_pdone")
stamp(4)
BB = AA + 8
def bpoll():
    for k in range(2):
        a(f"buffer_load_dwordx4 v[{BB+4*k}:{BB+4*k+3}], v{X+13}, s[12:15], s98 offen offset:{2048*k} sc1")
a(f"s_cmp_lg_u32 s3, {OPT['fin']}\ns_cbranch_scc1 L_nobp")
if not OPT["bdel"] and OPT["bpe"] in (0, 3): bpoll()
a(f"""
L_nobp:
s_cmp_gt_u32 s3, 3
s_waitcnt lgkmcnt(0)
s_barrier
s_cbranch_scc1 L_nomm
""")
for s_ in range(4):
    a(f"ds_read_b128 v[{PA+4*s_}:{PA+4*s_+3}], v{X+12} offset:{64*s_}")
    if OPT["lb"]: aw_rd(s_)
D_ = PA + 16
for s_ in range(4):
    a(f"""
s_waitcnt lgkmcnt({(3-s_)*(3 if OPT["lb"] else 1)})
v_mfma_f32_16x16x32_bf16 v[{D_}:{D_+3}], v[{AW+4*s_}:{AW+4*s_+3}], v[{PA+4*s_}:{PA+4*s_+3}], {"0" if s_ == 0 else f"v[{D_}:{D_+3}]"}
""")
a("s_mov_b64 exec, s[70:71]")
tag_ins(D_, VNS, SEL)
if OPT["xm"]:
    st2("L_as", f"buffer_store_dwordx4 v[{D_}:{D_+3}], v{X+11}, s[12:15], s65 offen")
    a("s_mov_b64 exec, -1")
else:
    a(f"""
{"" if OPT["noa"] else f"buffer_store_dwordx4 v[{D_}:{D_+3}], v{X+11}, s[12:15], s65 offen"}
{"" if OPT["nob"] else f"buffer_store_dwordx4 v[{D_}:{D_+3}], v{X+11}, s[12:15], s64 offen sc1"}
s_mov_b64 exec, -1
""")
a.label("L_nomm")
stamp(5)
if OPT["hbn"]:
    a(f"""
s_cmp_eq_u32 s3, {OPT['fin']}
s_cbranch_scc1 L_nofar
s_mov_b64 exec, 0xffff
buffer_store_dwordx4 v[{X+16}:{X+19}], v{X+25}, s[12:15], s63 offen sc1
s_cmp_lg_u32 s3, {OPT['fin']+1}
s_cbranch_scc1 L_nofar
ds_read_b128 v[{T}:{T+3}], v{X+24} offset:{(-256) & 0xffff}
""" if False else f"""
s_cmp_eq_u32 s3, {OPT['fin']}
s_cbranch_scc1 L_nofar
s_sleep 4
s_mov_b64 exec, 0xffff
buffer_store_dwordx4 v[{X+16}:{X+19}], v{X+25}, s[12:15], s63 offen sc1
s_cmp_lg_u32 s3, {OPT['fin']-1}
s_cbranch_scc1 L_nofar
ds_read_b128 v[{KF}:{KF+3}], v{X+24} offset:256
s_add_u32 s63, s63, 16384
s_waitcnt lgkmcnt(0)
buffer_store_dwordx4 v[{KF}:{KF+3}], v{X+25}, s[12:15], s63 offen sc1
L_nofar:
s_mov_b64 exec, -1
""")
def wstamps():
    a(f"""
s_lshl_b32 s29, s16, 3
s_add_u32 s29, s29, s3
s_lshl_b32 s29, s29, 4
s_add_u32 s29, s29, {STAMP+0x10000}
s_add_u32 s96, s96, {2+NST}
s_waitcnt lgkmcnt(0)
v_mov_b32 v{T}, s84
v_mov_b32 v{T+1}, s85
v_mov_b32 v{T+2}, s82
v_mov_b32 v{T+3}, s96
s_mov_b64 exec, 1
buffer_store_dwordx4 v[{T}:{T+3}], v{ZR}, s[12:15], s29 offen
s_add_u32 s29, s29, 0x8000
s_nop 4
v_mov_b32 v{T}, s86
v_mov_b32 v{T+1}, s88
v_mov_b32 v{T+2}, s90
v_mov_b32 v{T+3}, s77
buffer_store_dwordx4 v[{T}:{T+3}], v{ZR}, s[12:15], s29 offen
s_add_u32 s29, s29, 0x8000
s_nop 4
v_mov_b32 v{T}, s100
buffer_store_dword v{T}, v{ZR}, s[12:15], s29 offen
s_add_u32 s29, s29, 0x8000
s_nop 4
v_mov_b32 v{T}, s4
v_mov_b32 v{T+1}, s6
v_mov_b32 v{T+2}, s8
v_mov_b32 v{T+3}, s10
buffer_store_dwordx4 v[{T}:{T+3}], v{ZR}, s[12:15], s29 offen
s_add_u32 s29, s29, 0x8000
s_nop 4
v_mov_b32 v{T}, s48
v_mov_b32 v{T+1}, s50
v_mov_b32 v{T+2}, s54
v_mov_b32 v{T+3}, s56
buffer_store_dwordx4 v[{T}:{T+3}], v{ZR}, s[12:15], s29 offen
s_mov_b64 exec, -1
s_nop 4
""")
if OPT["stamps"]:
    a(f"s_mov_b32 s77, s76\ns_cmp_eq_u32 s3, {OPT['fin']}\ns_cbranch_scc1 L_fin")
    wstamps()
    a("s_endpgm\nL_fin:")
else:
    a(f"s_cmp_lg_u32 s3, {OPT['fin']}\ns_cbranch_scc1 L_end")
a(f"""
s_mov_b32 s76, {SPIN}
s_movk_i32 s23, {OPT['na']}
""")
srd(60, P_OUT, 8192)
A3 = KF + 8; FB = KF + 12
def red(d, s0):
    for r in range(4): a(f"v_add_f32 v{d+r}, v{s0+r}, v{s0+4+r}")
    a(f"""
v_permlane32_swap_b32 v{d}, v{d+2}
v_permlane32_swap_b32 v{d+1}, v{d+3}
v_add_f32 v{d}, v{d}, v{d+2}
v_add_f32 v{d+1}, v{d+1}, v{d+3}
v_permlane16_swap_b32 v{d}, v{d+1}
v_add_f32 v{d}, v{d}, v{d+1}
v_add_f32_dpp v{d}, v{d}, v{d} row_ror:8 row_mask:0xf bank_mask:0xf
v_add_f32_dpp v{d}, v{d}, v{d} row_ror:4 row_mask:0xf bank_mask:0xf
""")
def gate(d, g):
    a(f"""
v_cvt_pk_bf16_f32 v{d}, v{d}, v{d}
v_lshlrev_b32 v{d}, 16, v{d}
v_mul_f32 v{d}, v{g}, v{d}
v_cvt_pk_bf16_f32 v{d}, v{d}, v{d}
v_lshlrev_b32 v{d}, 16, v{d}
""")
def far(regs):
    if OPT["xm"]:
        a("s_sub_u32 s76, s76, 1"); return
    a(f"s_sub_u32 s23, s23, 1\ns_cselect_b32 s25, {CPB-CPA}, 0")
    for r in regs: a(f"s_add_u32 s{r}, s{r}, s25")
    a("s_sub_u32 s76, s76, 1")
if OPT["bdel"]:
    backoff(OPT["bdel"]); bpoll()
a.label("L_bchk")
a("s_mov_b64 exec, -1")
far([66, 98] if OPT["bpa"] else [66])
a("s_waitcnt vmcnt(0)")
tag_chk([BB, BB+4], TT)
a(f"""
s_cbranch_vccz L_bdone
s_cmp_eq_u32 s76, 0
s_cbranch_scc1 L_bdone
s_mov_b64 exec, vcc
s_sleep {OPT['bsl']}
""")
bpoll()
a("s_branch L_bchk")
a.label("L_bdone")
def fine4(k):
    if OPT["fine"] == 4: a(f"s_memrealtime s[{[4,6,8,10,48,50,54,56][k]}:{[4,6,8,10,48,50,54,56][k]+1}]")
fine4(0)
red(FB, BB); gate(FB, GV+1)
fine4(1)
if OPT["fine"] == 4: a("s_mov_b32 s8, 0")
if OPT["asl0"]: a(f"s_sleep {OPT['asl0']}")
a.label("L_apoll")
for k in range(2):
    a(f"buffer_load_dwordx4 v[{AA+4*k}:{AA+4*k+3}], v{X+13}, s[12:15], s66 offen offset:{2048*k} sc1")
a("s_mov_b64 exec, -1")
far([66])
a("s_waitcnt vmcnt(0)")
if OPT["fine"] == 4: a("s_cmp_lg_u32 s8, 0\ns_cbranch_scc1 L_fx\ns_memrealtime s[8:9]\ns_waitcnt lgkmcnt(0)\nL_fx:")
tag_chk([AA, AA+4], TT)
a(f"""
s_cbranch_vccz L_adone
s_mov_b64 exec, vcc
{"s_sleep %d" % OPT["aslp"] if OPT["aslp"] else ""}
s_cmp_lg_u32 s76, 0
s_cbranch_scc1 L_apoll
s_mov_b64 exec, -1
""")
a.label("L_adone")
fine4(3)
red(A3, AA); gate(A3, GV)
a(f"""
v_add_f32 v{A3}, v{A3}, v{FB}
v_cvt_pk_bf16_f32 v{A3}, v{A3}, v{A3}
""")
a(f"""
s_mov_b32 exec_lo, 0x000f000f
s_mov_b32 exec_hi, 0x000f000f
buffer_store_short v{A3}, v{X+23}, s[60:63], s99 offen {['', 'sc1', 'nt', 'sc0 sc1'][OPT['opol']]}
s_mov_b64 exec, -1
""")
if OPT["stamps"]:
    stamp(6)
    wstamps()
    a(f"s_lshl_b32 s29, s16, 6\ns_add_u32 s29, s29, {STAMP}\ns_waitcnt lgkmcnt(0)")
    for k in range(7):
        a(f"v_mov_b32 v{T}, s{80+2*k}\nv_mov_b32 v{T+1}, s{81+2*k}\nbuffer_store_dwordx2 v[{T}:{T+1}], v{ZR}, s[12:15], s29 offen offset:{8*k}\ns_nop 1")
    a(f"v_mov_b32 v{T}, s76\nbuffer_store_dword v{T}, v{ZR}, s[12:15], s29 offen offset:56")
a("s_endpgm")
for t_ in ool: a(t_)
a.label("L_prep")
a(f"""
s_sub_u32 s76, s76, {256 if OPT["stamps"] else 1}
s_cmp_le_i32 s76, 0
s_cbranch_scc1 L_pdone
s_mov_b64 exec, vcc
""")
for k in range(4):
    a(f"buffer_load_dwordx4 v[{PA+4*k}:{PA+4*k+3}], v{X+7}, s[12:15], s74 offen offset:{1024*k} sc1")
a("s_branch L_pchk")
a.label("L_end")
a("s_endpgm")
a.L += ['.section .rodata,"a"', ".p2align 6", f".amdhsa_kernel {NAME}_kernel",
        "  .amdhsa_next_free_vgpr 168", "  .amdhsa_next_free_sgpr 102", "  .amdhsa_accum_offset 168",
        "  .amdhsa_group_segment_fixed_size 0", "  .amdhsa_kernarg_size 104", "  .amdhsa_user_sgpr_count 2",
        "  .amdhsa_user_sgpr_kernarg_segment_ptr 1", "  .amdhsa_system_sgpr_workgroup_id_x 1", ".end_amdhsa_kernel"]
txt, n = a.text()
open(out, "w").write(txt)
print(f"wrote {out}: {len(txt.splitlines())} lines, {n} nops inserted", file=sys.stderr)
```

```python
import sys, struct
from asmlib import Asm
out = sys.argv[1]
OPT = dict(stamps=0, Wp=8, npre=4, hdr=1, stag=10, hslp=32, qslp=8, nse=29, lead=8, t1=448, t2=384, dslp=2,
           np2=1, np3=2, flit=3, slowp=8, bprio=3, maxf=4, tcha=0, tchb=0, asl=36, tpol=1, wqnt=1, ffnt=1, hd=200, qd=64, prew=0, coal=1, pgate=0, bpat=2, slowth=16, fastp=0, bsl=1, adel=90, perm=0, gx=0, noff=252, sperm=4, eager=1024, f1=0, f2=0, f1slp=2, f2slp=1, f2del=0, fmax=4096, f3=0, rsh=2, fdel=170, f3slp=4, lead2=8, t3=420, fw=1, aat=0, aslp=0, apol=1, na=160, xrot=0, asl0=0, bpa=1, fin=4, nob=0, tb=1, prw=0, fine=0, inc=1, f1th=0, f1sl2=16, hbn=0, fo=0, fst=64, fpol=2, fone=4, nopart=0, noa=0, bdel=0, fful=0, mlate=1, fgo=0, px4=1, xm=1, xforce=0, bpe=3, tcw=0, tc0=0, lay=0, tcd=0, col=1, kill=1, t4=400, kill2=0, t5=460, lead3=8, kill0=1, k0at=0, rot=0, r1=104, r2=256, swm=0, ms=-1, mc=0, mr=0, vo=0, numa=0, late=1, tb1=440, tslp=4, lb=2, skip=0, tp=0, tk=0, leadk=12, leadf=14, tf=480, kv=10, cap1=84, nst=5, jit=0, tk2=400, tr=0, tsh=0, il=0, wdel=12, spec=0, snt=0, opol=0, one=1, pd=290, pc=40, pe=5, pslp=2, pw=0, pws=0, fb=1, fbl=84, fbs=3, fbc=40, fb0=12, fbp=8, fbg=4, fbm=40, pp=0, pp0=2, pps=16, ppo=0, nm=0, wx=0, t2m=0, xb=0, w8=0, w8p=1, w8s=0, w8d=0, w8n=8, dl=0, dlb=0, dlw=1, ad=0, pt=0, st=0, pdv=0, pdw=61, fbn=0, bd0=0, bs0=0, bs1=0, ef=0, kl=0, rm=0, gu=0, xl=0, gsl=0, gd=0, gr=0, xf=1, gt=0, gp=150, fk=0, fq=0, ks=0, q1d=16, q1s=4, f1d=64, f1s=16, bt=0, kl2=0, fm=0, dw=0, dwp=1, dr=0, hp=0, l2p=0, tsec=2, tw=0, tx4=0, tnt=0, fz=0, ql=0, hl=0, kpl=0, fh=0, hr=0)
for a_ in sys.argv[2:]:
    k, v = a_.split("="); assert k in OPT, k; OPT[k] = int(v)
if OPT["r1"] or OPT["r2"]: OPT["rot"] = -1
Wp = OPT["Wp"]; NPRE = OPT["npre"]
HR = OPT["hr"]
if HR: OPT["xl"] = 1; OPT["xf"] = 1; OPT["ql"] = 1; OPT["hl"] = 1; OPT["l2p"] = 0
TB = 0x1C000
KQ = OPT["ks"] & 1; KF_ = OPT["ks"] & 2
QP, FP = 0x80000, 0x300000
GU = OPT["gu"]; XL = OPT["xl"]
XB = OPT["xb"]; MEM = "s19" if XB else "s17"
NAME = "gated_mix__gqa_block_cached__geglu_ffn__decode"
def f32(x): return "0x%08x" % struct.unpack("<I", struct.pack("<f", x))[0]
LOG2E = 1.4426950408889634
SCALE = 128 ** -0.5
QG, HG, ML, BP, PART, AP, STAMP, CNT = 0x0, 0x20000, 0x40000, 0x80000, 0x100000, 0x200000, 0x400000, 0x480000
F1, F2 = 0x60000, 0x70000
FG, CPA, CPB = 0x40000, 0x200000, 0x300000
if OPT['lay']:
    CNT, CPA, PART = 0x80000, 0x100000, 0x200000
OST = 272
XID = 0x60000
CST = 528
CSTR = 4096 + 256
WS_BYTES = 0x500000
FST = OPT['fst']
LOG = OPT['fine'] == 8
if LOG: WS_BYTES = 0x600000
if OPT['fful']:
    FG = 0x500000; WS_BYTES = FG + 2048*OPT['fful']
elif FST > 64:
    FG = 0x500000; WS_BYTES = FG + 2048*FST
R1 = 0x20000
WO_LDS = R1
R2 = 0x24000
Q_LDS = R2
MISC = R2 + 0x800
MLT = MISC + 0x100
O_LDS = R2 + 0x1000
CH = R2 + 0x1400
WD_LDS = R2 + 0x2000
LDS_BYTES = 0x28000
NU = 1024
NSE = OPT["nse"]; LEAD = OPT["lead"]
TK = MISC + 128
K0 = OPT["kill0"]
NUMA = 0
RING = 12288
SB = 8*RING
NSLOT = 192
SENT = 0x7F817F81
ONET = OPT['one'] and not OPT['tk']
PW = OPT['pw']
PD = OPT['pd'] or PW
T1B = CH; T2B = CH + (4*(NSE + K0) if ONET else 1024)
VB = 0x8000
KN = OPT["kill"]; KV = OPT["kv"]
NST = OPT["nst"]; NSU = 3 + NST
SE = 4*NSU
assert KV <= SE + NSE and SE + NSE <= 63
K0TXT = f"""
v_subrev_u32 v5, {K0*0x10001}, v4
v_cmp_le_u32 vcc, {OPT['k0at']}, v0
v_mov_b32 v6, 512
v_cndmask_b32 v4, v4, v6, vcc
v_cmp_le_u32 vcc, {OPT['k0at'] + K0}, v0
v_cndmask_b32 v4, v4, v5, vcc
""" if K0 else ""
CBASE = 8
DYN0 = 8*SE + 8*NSE
SPIN = 1 << 16
a = Asm()
hdr = open("cdna_kernels/%s.s.ref" % NAME).read().split("; Override launch")[0] if OPT["hdr"] else ""
a.L += [l for l in hdr.rstrip().split("\n")] if hdr else []
a.L.append(f"; @launch grid=(256,1,1) block=(640,1,1) lds={LDS_BYTES}")
a.L += ['.amdgcn_target "amdgcn-amd-amdhsa--gfx950"', ".text", f".globl {NAME}_kernel", ".p2align 8",
        f".type {NAME}_kernel,@function", f"{NAME}_kernel:"]

def srd(d, ptr, nbytes):
    a(f"s_mov_b32 s{d}, s{ptr}\ns_mov_b32 s{d+1}, s{ptr+1}\ns_mov_b32 s{d+2}, {hex(nbytes)}\ns_mov_b32 s{d+3}, 0x00020000")
P_X, P_K, P_V, P_WQ, P_WO, P_BX, P_WG, P_WU, P_WD, P_GW, P_OUT, P_DBG, P_WS = [32 + 2*i for i in range(13)]
def stamp(idx):
    if OPT["stamps"]:
        a(f"s_memrealtime s[{80+2*idx}:{81+2*idx}]")
def any_eq(regs, val, neg=False):
    op = "v_cmp_ne_u32" if neg else "v_cmp_eq_u32"
    a(f"{op} vcc, {val}, v{regs[0]}")
    for r in regs[1:]:
        a(f"{op} s[78:79], {val}, v{r}\ns_or_b64 vcc, vcc, s[78:79]")
def spin_tail(loop, done, sleep=0):
    a(f"""
s_sub_u32 s76, s76, 1
s_cmp_eq_u32 s76, 0
s_cbranch_scc1 {done}
""")
    if sleep:
        a(f"s_cmp_eq_u64 vcc, 0\ns_cbranch_scc1 {done}\ns_sleep {sleep}\ns_branch {loop}")
    else:
        a(f"s_cmp_lg_u64 vcc, 0\ns_cbranch_scc1 {loop}")
    a.label(done)
def xsum(regs, tmps, ror, op="v_add_f32", swaps=("v_permlane16_swap_b32", "v_permlane32_swap_b32")):
    for k in ror:
        for r in regs: a(f"{op}_dpp v{r}, v{r}, v{r} row_ror:{k} row_mask:0xf bank_mask:0xf")
    for sw in swaps:
        for r, t in zip(regs, tmps): a(f"v_mov_b32 v{t}, v{r}")
        for r, t in zip(regs, tmps): a(f"{sw} v{r}, v{t}")
        for r, t in zip(regs, tmps): a(f"{op} v{r}, v{r}, v{t}")
SEL = 42
def tag_consts(base):
    for j in range(4): a(f"s_mov_b32 s{base+j}, {hex(0x07060500 | j)}")
    a(f"s_mov_b32 s{base+4}, 0x0c0c0400\ns_mov_b32 s{base+5}, 0x04000c0c")
def tag_ins(r, vn, base):
    for j in range(4): a(f"v_perm_b32 v{r+j}, v{r+j}, v{vn}, s{base+j}")
def tag_bad(grans, vn, base, acc, t0, t1):
    for n_, r in enumerate(grans):
        a(f"v_perm_b32 v{t0}, v{r+1}, v{r}, s{base+4}\nv_perm_b32 v{t1}, v{r+3}, v{r+2}, s{base+5}")
        if n_ == 0:
            a(f"v_or_b32 v{acc}, v{t0}, v{t1}\nv_xor_b32 v{acc}, v{acc}, v{vn}")
        else:
            a(f"v_or_b32 v{t0}, v{t0}, v{t1}\nv_xor_b32 v{t0}, v{t0}, v{vn}\nv_or_b32 v{acc}, v{acc}, v{t0}")
def hstamps(first, n):
    if OPT["stamps"]:
        a(f"s_mov_b64 exec, -1\ns_lshl_b32 s29, s16, 7\ns_add_u32 s29, s29, {STAMP+0x8000+8*first}\ns_waitcnt lgkmcnt(0)\nv_mov_b32 v3, 0")
        for k in range(n):
            a(f"v_mov_b32 v4, s{80+2*k}\nv_mov_b32 v5, s{81+2*k}\nbuffer_store_dwordx2 v[4:5], v3, s[12:15], s29 offen offset:{8*k}\ns_nop 1")

def trn(d):
    tr = OPT["tr"]; ts = 3 + OPT["tsh"]
    if OPT["t2m"]: return f"""
s_bfe_u32 s100, {d}, 0x20001
s_bfe_u32 s101, {d}, 0x30003
s_andn2_b32 {d}, {d}, 62
{"s_xor_b32 s101, s101, s100" if OPT["t2m"] >= 2 else ""}
s_lshl_b32 s100, s100, 4
s_lshl_b32 s101, s101, 1
s_or_b32 {d}, {d}, s100
s_or_b32 {d}, {d}, s101
"""
    if OPT["nm"]: return f"""
s_lshr_b32 s100, {d}, 4
s_xor_b32 s100, s100, {d}
s_and_b32 s100, s100, 2
s_mul_i32 s100, s100, 17
s_xor_b32 {d}, {d}, s100
s_lshl_b32 s100, s19, 1
s_xor_b32 s100, s100, {2*(OPT["nm"]-1)}
s_and_b32 s100, s100, 2
s_xor_b32 {d}, {d}, s100
"""
    if not tr: return ""
    return f"""
s_and_b32 s100, {d}, {(1 << tr) - 1}
s_lshl_b32 s100, s100, {ts}
s_bfe_u32 s101, {d}, {hex((ts << 16) | tr)}
s_andn2_b32 {d}, {d}, {(1 << (tr+ts)) - 1}
s_or_b32 {d}, {d}, s100
s_or_b32 {d}, {d}, s101
"""
def backoff(n):
    while n > 0:
        a(f"s_sleep {min(n, 127)}"); n -= 127
def touch():
    a(f"""
s_mov_b64 exec, 0xffff
v_lshlrev_b32 v9, 7, v0
s_lshl_b32 s25, s17, 17
s_lshr_b32 s26, s18, 1
s_lshl_b32 s26, s26, 13
s_add_u32 s25, s25, s26
s_and_b32 s26, s18, 1
s_lshl_b32 s26, s26, 11
s_add_u32 s25, s25, s26
s_add_u32 s25, s25, {CPA}
buffer_load_dword v16, v9, s[12:15], s25 offen {['', 'sc1', 'nt'][OPT['tpol']]}
""")

XROT = "s_mov_b32 s16, s2" if not OPT["xrot"] else f"""
s_lshr_b32 s18, s2, 3
s_mul_i32 s17, s18, {OPT['xrot']}
s_add_u32 s17, s17, s2
s_and_b32 s17, s17, 7
s_andn2_b32 s16, s2, 7
s_or_b32 s16, s16, s17
"""
a("""
s_cmp_ge_u32 s2, 256
s_cbranch_scc1 L_end
s_load_dwordx16 s[32:47], s[0:1], 0
s_load_dwordx8 s[48:55], s[0:1], 64
s_load_dwordx2 s[56:57], s[0:1], 96
""")
stamp(0)
a(f"""
v_lshrrev_b32 v1, 6, v0
v_and_b32 v0, 63, v0
s_and_b32 s17, s2, 7
v_readfirstlane_b32 s3, v1
{XROT}
s_lshr_b32 s18, s16, 3
s_and_b32 s19, s18, 7
s_lshr_b32 s20, s18, 3
s_xor_b32 s20, s20, {OPT['gx']}
s_cmp_lt_u32 s3, 8
s_cbranch_scc1 L_stream
v_and_b32 v10, 15, v0
v_lshrrev_b32 v11, 4, v0
v_lshlrev_b32 v2, 4, v11
v_lshl_add_u32 v2, v10, 10, v2
v_lshrrev_b32 v3, 1, v0
v_and_b32 v4, 1, v0
v_lshlrev_b32 v4, 4, v4
v_mov_b32 v13, 0
s_cmp_eq_u32 s3, 9
s_cbranch_scc1 L_hb
""")
AFR = 16; D0 = 48; WDV = 64; GX = 16; GW = 32; XF = 100; GG = 164; VN = 166; CP = 60
def frag_addr(sh=5):
    a(f"""
v_lshrrev_b32 v8, 2, v10
v_lshl_add_u32 v8, v11, 3, v8
v_lshlrev_b32 v9, {sh}, v8
v_and_b32 v8, 3, v0
v_lshl_add_u32 v9, v8, 3, v9
v_add_u32 v9, {R1}, v9
v_cmp_gt_u32 s[58:59], 8, v10
v_bfe_u32 v{CP+1}, v0, 2, 3
v_and_b32 v{CP+2}, 3, v0
v_lshl_add_u32 v{CP}, v{CP+2}, 4, v{CP+1}
v_lshlrev_b32 v{CP}, 2, v{CP}
""")
def gemv(va, Dr):
    def rd(bt):
        base = AFR + 16*(bt & 1)
        for k in range(4):
            t = 4*bt + k
            a(f"ds_read_b64_tr_b16 v[{base+4*k}:{base+4*k+1}], v{va} offset:{1024*t}")
            a(f"ds_read_b64_tr_b16 v[{base+4*k+2}:{base+4*k+3}], v{va} offset:{1024*t+128}")
    rd(0)
    for bt in range(4):
        if bt < 3:
            rd(bt+1); a("s_waitcnt lgkmcnt(8)")
        else:
            a("s_waitcnt lgkmcnt(0)")
        base = AFR + 16*(bt & 1)
        for k in range(4):
            t = 4*bt + k
            c = "0" if t == 0 else f"v[{Dr}:{Dr+3}]"
            a(f"v_mfma_f32_16x16x32_bf16 v[{Dr}:{Dr+3}], v[{base+4*k}:{base+4*k+3}], v[{XF+4*t}:{XF+4*t+3}], {c}")
def gemv128(va, DG, XB_):
    def rd(s_):
        for ct in range(4):
            q_ = AFR + 16*(s_ & 1) + 4*ct
            a(f"ds_read_b64_tr_b16 v[{q_}:{q_+1}], v{va} offset:{s_*4096+ct*32}\nds_read_b64_tr_b16 v[{q_+2}:{q_+3}], v{va} offset:{s_*4096+ct*32+512}")
    rd(0)
    for s_ in range(4):
        if s_ < 3:
            rd(s_+1); a("s_waitcnt lgkmcnt(8)")
        else:
            a("s_waitcnt lgkmcnt(0)")
        for ct in range(4):
            q_ = AFR + 16*(s_ & 1) + 4*ct; d = DG + 4*ct
            a(f"v_mfma_f32_16x16x32_bf16 v[{d}:{d+3}], v[{q_}:{q_+3}], v[{XB_+4*s_}:{XB_+4*s_+3}], {'0' if s_ == 0 else f'v[{d}:{d+3}]'}")
def pstore(DG, vn, va, so, pol):
    for h_ in range(2):
        d = DG + 8*h_
        for r in range(4): a(f"v_mov_b32_dpp v{d+r}, v{d+4+r} row_ror:8 row_mask:0xf bank_mask:0xc")
        tag_ins(d, vn, SEL)
        a(f"buffer_store_dwordx4 v[{d}:{d+3}], v{va}, s[12:15], {so} offen offset:{1024*h_} {pol}")
def ppoll(lbl, P, va, so, vn, t, delay, slp, so2=None, off2=1024):
    a(f"s_mov_b32 s76, {SPIN}")
    backoff(delay)
    a(f"""
{lbl}:
buffer_load_dwordx4 v[{P}:{P+3}], v{va}, s[12:15], {so} offen sc1
buffer_load_dwordx4 v[{P+4}:{P+7}], v{va}, s[12:15], {so2 or so} offen offset:{off2} sc1
s_waitcnt vmcnt(0)
""")
    tag_bad([P, P+4], vn, SEL, t, t+1, t+2)
    a(f"v_cmp_ne_u32 vcc, 0, v{t}")
    spin_tail(lbl, lbl + "d", sleep=slp)
    for r in range(8): a(f"v_and_b32 v{P+r}, 0xffffff00, v{P+r}")
a(f"""
s_setprio 3
s_memrealtime s[74:75]
""" + ("" if HR else f"""
s_mul_i32 s21, s17, {OPT['sperm']}
s_add_u32 s21, s21, s18
s_and_b32 s21, s21, 31
s_lshl_b32 s25, s17, 5
s_add_u32 s21, s21, s25
v_lshl_add_u32 v1, v3, 13, v4
s_lshl_b32 s25, s21, 5
v_add_u32 v1, s25, v1
""") + (f"""
v_lshrrev_b32 v1, 3, v0
v_and_b32 v5, 7, v0
v_lshlrev_b32 v5, 4, v5
v_lshl_add_u32 v1, v1, 13, v5
s_lshr_b32 s25, s21, 2
s_lshl_b32 s25, s25, 7
s_and_b32 s26, s21, 3
s_lshl_b32 s26, s26, 20
s_add_u32 s25, s25, s26
v_add_u32 v1, s25, v1
s_lshr_b32 s26, s26, 12
""" if OPT["fq"] or KQ else "") + f"""
s_mov_b64 s[72:73], 1
v_mov_b32 v15, {OPT['noff']}
v_lshlrev_b32 v3, 4, v0
s_waitcnt lgkmcnt(0)
""")
stamp(8)
srd(68, P_DBG, 256)
a(f"""
s_cmp_ge_u32 s16, 8
s_cbranch_scc1 L_nononce
s_or_b32 s74, s74, 1
v_mov_b32 v12, s74
s_mov_b64 exec, s[72:73]
buffer_atomic_cmpswap v[12:13], v15, s[68:71], 0 offen sc1
s_mov_b64 exec, -1
""")
a.label("L_nononce")
srd(60, P_WQ, 512*4096*2); srd(64, P_X, 8192)
backoff(OPT["ad"])
def x_dma():
    for b_ in range(8):
        a(f"v_xor_b32 v{16+b_}, {16*b_}, v3")
    for b_ in range(8):
        a(f"s_mov_b32 m0, {WD_LDS + 1024*b_}\ns_movk_i32 s25, {1024*b_}\nbuffer_load_dwordx4 v{16+b_}, s[64:67], s25 offen lds")
def x_frag(t0, t1):
    a(f"""
v_and_b32 v{t0}, 7, v10
v_xor_b32 v{t1}, v{t0}, v11
v_lshlrev_b32 v{t1}, 4, v{t1}
v_lshl_add_u32 v{t0}, v{t0}, 10, v{t1}
v_add_u32 v{t0}, {WD_LDS}, v{t0}
v_xor_b32 v{t1}, 64, v{t0}
""")
    for s_ in range(16):
        a(f"ds_read_b128 v[{XF+4*s_}:{XF+4*s_+3}], v{(t0, t1)[s_ & 1]} offset:{128*(s_ >> 1)}")
L2P = OPT["l2p"]
def touch_tile(va, sd, stride, dst):
    for h_ in range(2):
        a(f"s_mov_b32 s27, {64*h_*stride}")
        for sec in range(OPT["tsec"]):
            a(f"buffer_load_dword v{dst+2*h_+sec}, v{va}, s[{sd}:{sd+3}], s27 offen offset:{64*sec}{' nt' if OPT['tnt'] else ''}")
if L2P & 1:
    a(f"""
s_lshr_b32 s25, s21, 2
s_lshl_b32 s25, s25, 7
s_and_b32 s26, s21, 3
s_lshl_b32 s26, s26, 20
s_add_u32 s25, s25, s26
v_lshl_add_u32 v5, v0, 13, s25
""")
    touch_tile(5, 60, 8192, 56)
if XL and OPT["xf"]: x_dma()
def wq_dma():
    a("s_mov_b32 s25, 0")
    for t in range(16):
        a(f"s_mov_b32 m0, {R1 + 1024*t}")
        if t: a(f"s_mov_b32 s25, {t*32*8192}")
        a(f"buffer_load_dwordx4 v55, s[60:63], s25 offen {'nt ' if OPT['wqnt'] else ''}lds")
if L2P & 1: a("v_mov_b32 v55, v1")
a("s_mov_b32 s25, 0")
RM = OPT["rm"]
if OPT["fh"] or HR:
    a(f"""
s_mov_b32 s21, -1
s_lshr_b32 s27, s18, 1
v_lshrrev_b32 v40, 2, v0
v_and_b32 v41, 3, v0
v_lshlrev_b32 v41, 4, v41
s_bitcmp1_b32 s18, 0
s_cbranch_scc1 L_fhg
s_lshl_b32 s29, s17, 4
s_add_u32 s29, s29, s27
s_lshl_b32 s21, s29, 10
s_add_u32 s21, s21, {QG}
s_lshl_b32 s29, s29, 6
v_lshl_add_u32 v40, v40, 13, v41
s_mov_b32 s28, {16*8192}
s_branch L_fhl
L_fhg:
s_cmp_ge_u32 s27, 14
s_cbranch_scc1 L_fhd
s_and_b32 s29, s17, 3
s_mul_i32 s29, s29, 14
s_add_u32 s29, s29, s27
s_lshl_b32 s21, s29, 10
s_lshr_b32 s28, s17, 2
s_lshl_b32 s28, s28, 16
s_add_u32 s21, s21, s28
s_add_u32 s21, s21, {HG}
s_lshl_b32 s29, s29, 6
v_mul_u32_u24 v40, 3584, v40
v_add_u32 v40, v40, v41
s_mov_b32 s28, {16*3584}
s_cmp_lt_u32 s17, 4
s_cselect_b32 s60, s{P_WG}, s{P_WU}
s_cselect_b32 s61, s{P_WG+1}, s{P_WU+1}
s_mov_b32 s62, {512*1792*2}
L_fhl:
""")
    for t in range(32):
        a(f"s_mov_b32 m0, {TB + 1024*t if HR else R1 + 1024*(t & 15)}\n{'s_add_u32 s29, s29, s28' if t else 's_nop 0'}\nbuffer_load_dwordx4 v40, s[60:63], s29 offen nt lds")
    a.label("L_fhd")
for t in range(0 if RM & 1 or L2P & 1 or HR else 16):
    a(f"s_mov_b32 m0, {R1 + 1024*t}")
    if t and not OPT["skip"] & 8: a(f"s_mov_b32 s25, {t*(8 if OPT['fq'] or KQ else 32)*8192}")
    a(f"buffer_load_dwordx4 v1, s[60:63], s25 offen {'nt ' if OPT['wqnt'] else ''}lds")
if OPT["fine"] == 7: stamp(6)
if XL and not OPT["xf"]: x_dma()
for s_ in range(0 if RM & 2 or XL else 4 if KQ else 16):
    a(f"buffer_load_dwordx4 v[{XF+4*s_}:{XF+4*s_+3}], v2, s[64:67], {'s26' if KQ else 0} offen offset:{64*s_}")
srd(12, P_WS, WS_BYTES)
CNTA = f"""s_lshl_b32 s77, s17, 2
s_add_u32 s77, s77, s20
s_mul_i32 s77, s77, {CSTR}
s_add_u32 s77, s77, {CNT}
s_cmp_lg_u32 s19, 0""" if XB else f"""s_mul_i32 s77, s18, {CSTR}
s_add_u32 s77, s77, {CNT}
s_cmp_lg_u32 s17, 0""" if not NUMA else f"""s_lshr_b32 s75, s17, 2
s_lshl_b32 s77, s18, 1
s_add_u32 s77, s77, s75
s_mul_i32 s77, s77, {CSTR}
s_add_u32 s77, s77, {CNT}
s_xor_b32 s75, s75, s19
s_xor_b32 s75, s75, {NUMA-1}
s_and_b32 s75, s75, 1
s_and_b32 s25, s17, 3"""
STAT = f"""
ds_write_b64 v2, v[4:5] offset:144
v_lshl_add_u32 v35, v0, 16, v0
s_mul_i32 s25, {MEM}, {NSE}
s_add_u32 s26, s25, {8*SE - SE + VB}
v_add_u32 v4, s26, v35
v_lshrrev_b32 v5, 2, v0
v_mul_u32_u24 v5, 28, v5
s_lshl_b32 s26, {MEM}, 2
s_add_u32 s26, s26, {VB}
v_add3_u32 v5, v5, s26, v35
v_cmp_gt_u32 vcc, {64 if OPT["il"] else SE}, v0
v_cndmask_b32 v4, v4, v5, vcc
v_lshlrev_b32 v1, 2, v0
v_add_u32 v5, {4*KN}, v1
v_cmp_gt_u32 vcc, {KV}, v0
v_cndmask_b32 v5, v5, v1, vcc
v_add_u32 v5, {T2B}, v5
""" + (f"""
v_mov_b32 v66, v5
v_mov_b32 v67, v4
""" if PD else f"""
s_bfm_b64 exec, {SE + NSE}, 0
ds_write_b32 v5, v4
""") + (f"""
v_mov_b32 v4, 512
v_add_u32 v5, {T2B + 4*KV}, v1
s_mov_b64 exec, {(1 << KN) - 1}
ds_write_b32 v5, v4
""" if KN else "") + f"""
s_mov_b64 exec, -1
s_add_u32 s25, s25, {8*SE + (SE << 16)}
v_add_u32 v4, s25, v35
""" + (f"""
v_subrev_u32 v6, {K0}, v0
v_cmp_gt_u32 vcc, {OPT['k0at'] + K0}, v0
v_cndmask_b32 v6, v6, v0, vcc
v_lshrrev_b32 v6, 2, v6
v_mul_u32_u24 v6, 28, v6
s_add_u32 s26, s26, {8*SE + (SE << 16) - VB}
v_add3_u32 v4, v6, s26, v35
""" if OPT["il"] else "")
QCH = f"""s_mul_i32 s27, s17, {OPT['sperm']}
s_lshl_b32 s28, s20, 3
s_add_u32 s27, s27, s28
s_and_b32 s27, s27, 31
s_lshl_b32 s28, s17, 5
s_add_u32 s27, s27, s28
s_lshl_b32 s27, s27, 6""" if XB else f"""s_lshl_b32 s27, s18, 6""" if not NUMA else f"""s_and_b32 s27, s17, 4
s_mul_i32 s28, s27, {OPT['sperm']}
s_add_u32 s28, s28, s18
s_and_b32 s28, s28, 31
s_lshl_b32 s27, s27, 5
s_add_u32 s27, s27, s28
s_lshl_b32 s27, s27, 6"""
if HR:
    CNTA = f"""s_mul_i32 s77, s18, {CSTR}
s_add_u32 s77, s77, {CNT}
s_lshl_b32 s25, s18, 2
s_add_u32 s25, s25, s17
s_mul_i32 s25, s25, {CSTR}
s_add_u32 s25, s25, {CNT}
s_and_b32 s26, s18, 25"""
a(f"""
{CNTA}
s_cbranch_scc1 L_nocnt
v_mov_b32 v14, {CBASE}
s_mov_b64 exec, s[72:73]
buffer_store_dword v14, v13, s[12:15], {"s25" if HR else "s77"} offen sc1
""" + ("""
v_mov_b32 v4, 0
v_mov_b32 v5, 0
v_mov_b32 v6, 0
v_mov_b32 v7, 0
buffer_store_dwordx4 v[4:7], v13, s[12:15], s77 offen offset:128 sc1
buffer_store_dwordx4 v[4:7], v13, s[12:15], s77 offen offset:144 sc1
""" if PW else "") + """
s_mov_b64 exec, -1
""")
a.label("L_nocnt")
a(f"""
buffer_load_dword v12, v15, s[68:71], 0 offen sc1
v_mov_b32 v4, -1
v_mov_b32 v5, -1
v_mov_b32 v6, -1
v_mov_b32 v7, -1
v_add_u32 v1, {CH}, v3
ds_write_b128 v1, v[4:7]
ds_write_b128 v1, v[4:7] offset:1024
ds_write_b128 v1, v[4:7] offset:2048
v_mov_b32 v2, {MISC}
v_mov_b32 v4, 0
v_mov_b32 v5, 0
v_mov_b32 v6, 0
v_mov_b32 v7, 0
ds_write_b128 v2, v[4:7] offset:128
{STAT}
v_lshlrev_b32 v1, 2, v0
v_add_u32 v1, {CH}, v1
{K0TXT}
v_cmp_gt_u32 vcc, {min(PW, NSE + K0) if PW else K0 if PD else NSE + K0}, v0
v_mov_b32 v64, v1
v_mov_b32 v65, v4
s_mov_b64 exec, vcc
ds_write_b32 v1, v4
s_mov_b64 exec, -1
""")
if HR:
    a(f"""
v_lshrrev_b32 v8, 2, v10
v_lshl_add_u32 v8, v11, 3, v8
v_lshlrev_b32 v9, 6, v8
v_and_b32 v8, 3, v0
v_lshl_add_u32 v9, v8, 3, v9
v_add_u32 v9, {TB}, v9
v_lshrrev_b32 v{CP}, 3, v0
v_lshl_add_u32 v{CP}, v8, 4, v{CP}
v_and_b32 v8, 4, v0
v_lshl_add_u32 v{CP}, v8, 1, v{CP}
v_lshlrev_b32 v{CP}, 2, v{CP}
""")
else: frag_addr(7 if KQ else 5)
if KQ:
    tag_consts(SEL)
    a(f"""
v_and_b32 v52, 7, v10
v_lshl_add_u32 v52, v11, 3, v52
v_lshlrev_b32 v52, 4, v52
v_lshrrev_b32 v53, 3, v10
v_lshl_add_u32 v53, v53, 9, v52
s_andn2_b32 s28, s21, 3
s_lshl_b32 s28, s28, 11
s_and_b32 s29, s21, 3
s_lshl_b32 s29, s29, 9
s_add_u32 s28, s28, s29
s_add_u32 s28, s28, {QP}
s_lshl_b32 s29, s21, 11
s_add_u32 s29, s29, {QP}
""")
    if OPT["kpl"]:
        a(f"""
v_lshrrev_b32 v54, 3, v10
v_lshl_add_u32 v52, v54, 11, v52
s_add_u32 s30, s28, 4096
""")
a(f"s_mov_b32 s76, {SPIN}\ns_waitcnt lgkmcnt(0)")
stamp(7)
a("s_barrier")
stamp(1)
if L2P & 1:
    a(f"s_waitcnt vmcnt({9 if XL else 17})")
    backoff(OPT["tw"])
    wq_dma()
if HR:
    a("s_cmp_eq_u32 s21, -1\ns_cbranch_scc1 L_nogv\ns_waitcnt vmcnt(33)")
    x_frag(56, 57)
    def rd(bt):
        if bt % 2 == 0: a(f"s_waitcnt vmcnt({25 - 4*bt})")
        for k in range(2):
            for ct in range(2):
                q_ = AFR + 16*(bt & 1) + 8*k + 4*ct; o_ = (2*bt + k)*2048 + 32*ct
                a(f"ds_read_b64_tr_b16 v[{q_}:{q_+1}], v9 offset:{o_}\nds_read_b64_tr_b16 v[{q_+2}:{q_+3}], v9 offset:{o_+256}")
    rd(0)
    for bt in range(8):
        if bt < 7:
            rd(bt+1); a("s_waitcnt lgkmcnt(8)")
        else:
            a("s_waitcnt lgkmcnt(0)")
        for k in range(2):
            for ct in range(2):
                q_ = AFR + 16*(bt & 1) + 8*k + 4*ct; t = 2*bt + k; d = D0 + 4*ct
                a(f"v_mfma_f32_16x16x32_bf16 v[{d}:{d+3}], v[{q_}:{q_+3}], v[{XF+4*t}:{XF+4*t+3}], {'0' if t == 0 else f'v[{d}:{d+3}]'}")
    a(f"""
v_cvt_pk_bf16_f32 v4, v{D0}, v{D0+1}
v_cvt_pk_bf16_f32 v6, v{D0+2}, v{D0+3}
v_cvt_pk_bf16_f32 v56, v{D0+4}, v{D0+5}
v_cvt_pk_bf16_f32 v57, v{D0+6}, v{D0+7}
v_mov_b32_dpp v4, v56 row_ror:8 row_mask:0xf bank_mask:0xc
v_mov_b32_dpp v6, v57 row_ror:8 row_mask:0xf bank_mask:0xc
ds_bpermute_b32 v4, v{CP}, v4
ds_bpermute_b32 v6, v{CP}, v6
L_nogv:
""")
elif XL and OPT["xf"]:
    a("s_waitcnt vmcnt(17)"); x_frag(52, 53)
a("s_waitcnt vmcnt(0)")
if XL and not OPT["xf"]: x_frag(52, 53)
a.label("L_np")
a(f"""
v_readfirstlane_b32 s74, v12
s_sub_u32 s76, s76, 1
s_cmp_eq_u32 s76, 0
s_cbranch_scc1 L_np_done
s_cmp_lg_u32 s74, 0
s_cbranch_scc1 L_np_done
buffer_load_dword v12, v15, s[68:71], 0 offen sc1
s_waitcnt vmcnt(0)
s_branch L_np
""")
a.label("L_np_done")
PAC = 0x4D0000; PST = 4352
if OPT["fb"]:
    a(f"""
s_cmp_lg_u32 s16, 0
s_cbranch_scc1 L_nfi
v_mov_b32 v5, s74
v_mul_u32_u24 v7, {PST}, v0
s_mov_b32 s25, {PAC}
s_mov_b64 exec, 0xffff
buffer_store_dword v5, v7, s[12:15], s25 offen sc1
s_mov_b64 exec, -1
L_nfi:
""")
stamp(2)
if KQ: gemv128(9, 68, XF)
elif not HR: gemv(9, D0)
a(f"""
v_mov_b32 v5, s74
v_mov_b32 v7, s74
v_mov_b32 v8, 1
ds_write_b32 v2, v5 offset:96
ds_write_b32 v2, v8 offset:136
""")
if KQ and OPT["kpl"]:
    pstore(68, 5, 53, "s29", '' if OPT['kl2'] & 1 else 'sc1')
    ppoll("L_q1", 84, 52, "s28", 5, 54, OPT["q1d"], OPT["q1s"], "s30", 0)
    for r in range(4): a(f"v_add_f32 v{D0+r}, v{84+r}, v{88+r}")
    for r in range(4): a(f"v_add_f32_dpp v{D0+r}, v{D0+r}, v{D0+r} row_ror:8 row_mask:0xf bank_mask:0xf")
elif KQ:
    a("s_mov_b64 exec, s[58:59]")
    for ct in range(4):
        tag_ins(68 + 4*ct, 5, SEL)
        a(f"buffer_store_dwordx4 v[{68+4*ct}:{71+4*ct}], v52, s[12:15], s28 offen offset:{2048*(ct & 1)} {'' if OPT['kl2'] & 1 else 'sc1'}")
        if ct == 1: a("s_add_u32 s28, s28, 4096")
    a("s_mov_b64 exec, -1")
    ppoll("L_q1", 84, 53, "s29", 5, 54, OPT["q1d"], OPT["q1s"])
    for r in range(4): a(f"v_add_f32 v{D0+r}, v{84+r}, v{88+r}")
    for r in range(4): a(f"v_add_f32_dpp v{D0+r}, v{D0+r}, v{D0+r} row_ror:8 row_mask:0xf bank_mask:0xf")
QL = OPT["ql"]; HL = OPT["hl"]
def qpub_old():
    a(f"""
s_lshl_b32 s25, s21, {9 if QL else 6}
s_add_u32 s25, s25, {QG}
v_cvt_pk_bf16_f32 v4, v{D0}, v{D0+1}
v_cvt_pk_bf16_f32 v6, v{D0+2}, v{D0+3}
""")
    if OPT["coal"]:
        a(f"""
ds_bpermute_b32 v4, v{CP}, v4
ds_bpermute_b32 v6, v{CP}, v6
v_lshlrev_b32 v14, 4, v{CP+2}
v_lshl_add_u32 v14, v{CP+1}, {6 if QL else 14}, v14
s_mov_b32 exec_hi, 0
s_waitcnt lgkmcnt(0)
""")
    else:
        a(f"""
v_lshlrev_b32 v14, 4, v11
v_lshl_add_u32 v14, v10, 14, v14
s_mov_b64 exec, s[58:59]
""")
    a(f"""
buffer_store_dwordx4 v[4:7], v14, s[12:15], s25 offen sc1
s_mov_b64 exec, -1
""")
if HR:
    a(f"""
s_cmp_eq_u32 s21, -1
s_cbranch_scc1 L_nopub
s_waitcnt lgkmcnt(0)
buffer_store_dwordx4 v[4:7], v3, s[12:15], s21 offen sc1
L_nopub:
v_mov_b32 v16, {hex(SENT)}
v_mov_b32 v17, {hex(SENT)}
v_mov_b32 v18, {hex(SENT)}
v_mov_b32 v19, {hex(SENT)}
v_add_u32 v1, {TB}, v3
""")
    for k in range(8): a(f"ds_write_b128 v1, v[16:19] offset:{1024*k}")
else: qpub_old()
if OPT["dw"] or OPT["dr"]:
    a(f"s_lshl_b32 s28, s21, 12\ns_add_u32 s28, s28, {FP}")
    for k in range(OPT["dw"]):
        a(f"buffer_store_dwordx4 v[16:19], v3, s[12:15], s28 offen offset:{1024*k} {['', 'sc1', 'nt', 'sc0 sc1', 'sc1 nt'][OPT['dwp']]}")
    for k in range(OPT["dr"]):
        a(f"buffer_load_dwordx4 v[84:87], v3, s[12:15], s28 offen offset:{1024*k} sc1")
stamp(3)
a(f"""
{"s_lshl_b32 s25, s17, 14" if XB else "s_lshl_b32 s25, s20, 15"}
{"s_lshl_b32 s26, s20, 12" if XB else "s_lshl_b32 s26, s19, 11"}
s_add_u32 s25, s25, s26
s_add_u32 s25, s25, {QG}
s_add_u32 s26, s25, {2048 if XB else 16384}
{QCH}
""" + (f"""
s_lshl_b32 s25, s19, 14
s_lshl_b32 s26, s20, 8
s_add_u32 s25, s25, s26
s_add_u32 s25, s25, {QG}
s_add_u32 s26, s25, 4096
s_add_u32 s28, s25, 8192
s_add_u32 s29, s25, 12288
v_lshlrev_b32 v14, 4, v10
v_lshl_add_u32 v14, v11, 10, v14
v_and_b32 v1, 7, v0
v_lshl_add_u32 v1, v11, 3, v1
v_lshlrev_b32 v1, 3, v1
v_bfe_u32 v9, v0, 3, 1
v_lshl_add_u32 v1, v9, 10, v1
v_add_u32 v1, {Q_LDS}, v1
""" if HR else f"""
s_lshl_b32 s27, s27, 3
s_lshl_b32 s25, s19, 14
s_lshl_b32 s26, s20, 7
s_add_u32 s25, s25, s26
s_add_u32 s25, s25, {QG}
s_add_u32 s26, s25, 4096
s_add_u32 s28, s25, 8192
s_add_u32 s29, s25, 12288
v_lshrrev_b32 v1, 3, v0
v_and_b32 v14, 7, v0
v_lshlrev_b32 v14, 4, v14
v_lshl_add_u32 v14, v1, 9, v14
v_lshl_add_u32 v1, v1, 2, v{CP+2}
v_lshlrev_b32 v1, 3, v1
v_bfe_u32 v4, v0, 2, 1
v_lshl_add_u32 v1, v4, 10, v1
v_add_u32 v1, {Q_LDS}, v1
""" if QL else "") + f"""
s_add_u32 s27, s27, {QG}
s_mov_b32 s76, {SPIN}
""")
backoff(OPT["qd"] + (OPT["fq"] if OPT["fq"] > 1 else 0))
a.label("L_qpoll")
if QL: a(f"""
buffer_load_dwordx4 v[16:19], v14, s[12:15], s25 offen sc1
buffer_load_dwordx4 v[20:23], v14, s[12:15], s26 offen sc1
buffer_load_dwordx4 v[24:27], v14, s[12:15], s28 offen sc1
buffer_load_dwordx4 v[28:31], v14, s[12:15], s29 offen sc1
{"" if HR else "buffer_load_dwordx4 v[32:35], v13, s[12:15], s27 offen sc1"}
s_waitcnt vmcnt(0)
""")
else: a(f"""
buffer_load_dwordx4 v[16:19], v3, s[12:15], s25 offen sc1
buffer_load_dwordx4 v[20:23], v3, s[12:15], s25 offen offset:1024 sc1
{"" if OPT["hp"] & 1 else "buffer_load_dwordx4 v[24:27], v3, s[12:15], s26 offen sc1"}
{"" if OPT["hp"] & 1 else "buffer_load_dwordx4 v[28:31], v3, s[12:15], s26 offen offset:1024 sc1"}
buffer_load_dwordx4 v[32:35], v13, s[12:15], s27 offen sc1
s_waitcnt vmcnt(0)
""")
any_eq([17, 19, 21, 23, 33, 35] if OPT["hp"] & 1 else list(range(17, 32 if HR else 36, 2)), "s74", neg=True)
spin_tail("L_qpoll", "L_qdone", sleep=OPT["qslp"])
stamp(4)
a(f"""
v_mov_b32 v17, v18
v_mov_b32 v21, v22
v_mov_b32 v25, v26
v_mov_b32 v29, v30
{"" if QL else "v_lshlrev_b32 v1, 3, v0"}
{"" if QL else f"v_add_u32 v1, {Q_LDS}, v1"}
ds_write_b64 v1, v[16:17]
ds_write_b64 v1, v[20:21] offset:{256 if QL else 512}
ds_write_b64 v1, v[24:25] offset:{512 if QL else 1024}
ds_write_b64 v1, v[28:29] offset:{768 if QL else 1536}
s_waitcnt lgkmcnt(0)
ds_write_b32 v2, v8 offset:132
""")
stamp(5)
a(f"""
s_mov_b32 s21, {NSE + K0}
s_mov_b32 s22, {NSE + K0}
s_mov_b32 s20, {SE + NSE}
s_mov_b32 s19, {SE + NSE}
s_mov_b32 s23, 0
s_mov_b32 s24, 0
s_mov_b32 s26, 0
s_mov_b32 s27, 0
s_mov_b32 s28, 0
s_mov_b32 s29, {0 if OPT['tk'] else 1}
v_mov_b32 v4, 0
v_lshl_add_u32 v5, v0, 16, v0
s_mov_b32 s76, {SPIN*64}
""")
FST1 = """s_cmp_lg_u32 s60, 0
s_cbranch_scc1 L_fs1
s_mov_b32 s60, 1
s_memrealtime s[82:83]
L_fs1:"""
def disp(p):
    tb = T1B if ONET else (T1B, T2B)[p]
    a(f"""
L_disp{p}:
s_mov_b64 exec, 1
ds_read_b32 v6, v2 offset:{128 if ONET else (128, 144)[p]}
s_sub_u32 s76, s76, 1
s_cmp_le_i32 s76, 0
s_cbranch_scc1 L_dexh{p}
s_cmp_eq_u32 s24, 0
s_cbranch_scc1 L_noc{p}
v_readlane_b32 s25, v4, s27
s_cmp_lt_u32 s25, {CBASE}
s_cbranch_scc1 L_noc{p}
s_and_b32 s30, s23, 15
s_lshr_b32 s23, s23, 4
s_sub_u32 s24, s24, 1
s_add_u32 s27, s27, 1
s_and_b32 s27, s27, 7
s_add_u32 s25, s25, {DYN0 - CBASE}
s_add_u32 s28, s25, s30
s_sub_i32 s31, 512, s25
s_max_i32 s31, s31, 0
s_min_i32 s31, s31, s30
s_cmp_ge_u32 s28, {(OPT['tk'], 512)[p]}
s_cselect_b32 s29, 1, s29
s_cmp_eq_u32 s31, 0
s_cbranch_scc1 L_noc{p}
s_bfm_b64 exec, s31, 0
s_lshl_b32 s30, s20, 16
s_add_u32 s25, s25, s30
v_add_u32 v7, s25, v5
s_lshl_b32 s25, s22, 2
s_add_u32 s25, s25, {tb}
v_lshl_add_u32 v8, v0, 2, s25
ds_write_b32 v8, v7
s_add_u32 s22, s22, s31
s_lshl_b32 s25, {('s20', 's22')[p]}, 2
s_add_u32 s25, s25, {(T2B + 4*KN, tb)[p]}
v_or_b32 v9, {VB}, v7
v_lshl_add_u32 v14, v0, 2, s25
ds_write_b32 v14, v9
s_add_u32 s20, s20, s31
{('', 's_add_u32 s22, s22, s31')[p]}
L_noc{p}:
s_cmp_lg_u32 s29, 0
s_cbranch_scc1 L_exh{p}
s_cmp_ge_u32 s24, {OPT['maxf']}
s_cbranch_scc1 L_dslp{p}
s_waitcnt lgkmcnt(0)
v_readfirstlane_b32 s25, v6
s_lshl_b32 s30, s21, 1
s_add_u32 s25, s25, {(OPT['leadk'], OPT['leadf'])[p]}
s_cmp_ge_u32 s30, s25
s_cbranch_scc1 L_dslp{p}
s_cmp_ge_u32 s28, {(OPT['tk2'], OPT['tf'])[p]}
s_cselect_b32 s30, {(2, 1)[p]}, {(4, 2)[p]}
s_add_u32 s25, s19, s30
s_cmp_gt_u32 s25, {(OPT['cap1'], NSLOT//2)[p]}
s_cselect_b32 s29, 1, 0
s_cbranch_scc1 L_exh{p}
s_mov_b32 s19, s25
{FST1 if p and OPT["stamps"] and OPT["fine"] != 7 else ""}
s_lshl_b64 exec, 1, s26
v_mov_b32 v4, s30
buffer_atomic_add v4, v13, s[12:15], s77 offen sc0 sc1
s_lshl_b32 s25, s24, 2
s_lshl_b32 s25, s30, s25
s_or_b32 s23, s23, s25
s_add_u32 s24, s24, 1
s_add_u32 s21, s21, s30
{('', 's_add_u32 s21, s21, s30')[p]}
s_add_u32 s26, s26, 1
s_and_b32 s26, s26, 7
s_branch L_disp{p}
L_exh{p}:
s_cmp_eq_u32 s24, 0
s_cbranch_scc1 L_dexh{p}
L_dslp{p}:
s_sleep {OPT['dslp']}
s_branch L_disp{p}
L_dexh{p}:
s_mov_b64 exec, 0xff
s_lshl_b32 s25, s22, 2
s_add_u32 s25, s25, {tb}
v_lshl_add_u32 v8, v0, 2, s25
v_mov_b32 v7, {(513, 512)[p]}
ds_write_b32 v8, v7
""")
if not ONET: disp(0)
TOT = NSE + K0 + SE + NSE
if PW:
    a(f"""
s_movk_i32 s30, 300
v_lshlrev_b32 v9, 2, v0
v_cmp_eq_u32 s[60:61], s17, v0
v_mov_b32 v14, 0x7fff
L_rel:
s_mov_b64 exec, 0xff
ds_read_b32 v6, v2 offset:128
s_sub_u32 s30, s30, 1
s_waitcnt lgkmcnt(0)
v_lshrrev_b32 v6, 1, v6
v_cndmask_b32 v8, 0, v6, s[60:61]
buffer_atomic_umax v8, v9, s[12:15], s77 offen offset:128 sc0 sc1
v_readfirstlane_b32 s62, v6
s_waitcnt vmcnt(0)
v_cndmask_b32 v8, v8, v14, s[60:61]
v_min_u32_dpp v8, v8, v8 quad_perm:[1,0,3,2] row_mask:0xf bank_mask:0xf
v_min_u32_dpp v8, v8, v8 quad_perm:[2,3,0,1] row_mask:0xf bank_mask:0xf
v_min_u32_dpp v8, v8, v8 row_half_mirror row_mask:0xf bank_mask:0xf
v_readfirstlane_b32 s25, v8
s_add_u32 s25, s25, {PW}
s_cmp_ge_u32 s25, {TOT - OPT['pe']}
s_cselect_b32 s25, 255, s25
s_cmp_eq_u32 s30, 0
s_cselect_b32 s25, 255, s25
s_cselect_b32 s62, 255, s62
s_min_i32 s31, s25, {NSE + K0}
s_bfm_b64 exec, s31, 0
ds_write_b32 v64, v65
s_sub_i32 s31, s25, {NSE + K0}
s_cmp_le_i32 s31, 0
s_cbranch_scc1 L_rel2
s_min_i32 s31, s31, {SE + NSE}
s_bfm_b64 exec, s31, 0
ds_write_b32 v66, v67
s_cmp_lg_u32 s25, 255
s_cbranch_scc1 L_rel2
s_cmp_ge_u32 s62, {TOT - OPT['pe'] - PW}
s_cbranch_scc1 L_reld
L_rel2:
{f"s_sleep {OPT['pws']}" if OPT['pws'] else ""}
s_branch L_rel
L_reld:
""")
elif PD:
    FB = f"""
s_cmp_eq_u32 s65, 0
s_cbranch_scc1 L_fb1
v_readfirstlane_b32 s31, v10
s_sub_u32 s31, s31, s74
s_cmp_eq_u32 s31, -1
s_cbranch_scc1 L_fb1
s_mov_b32 s65, 0
s_cmp_gt_u32 s31, 0xfff
s_cbranch_scc1 L_fb1
s_sub_i32 s31, s31, {OPT['fbl']}
s_ashr_i32 s31, s31, {OPT['fbs']}
s_min_i32 s31, s31, {OPT['fbc']}
s_add_i32 s62, s62, s31
{"s_min_i32 s31, s31, 0" + chr(10) + f"s_mul_i32 s31, s31, {OPT['fbn']}" + chr(10) + "s_add_i32 s62, s62, s31" if OPT['fbn'] else ""}
L_fb1:
s_cmp_lt_u32 s25, s63
s_cbranch_scc1 L_fb2
s_add_u32 s63, s63, {OPT['fbp']}
v_readfirstlane_b32 s31, v6
s_lshl_b32 s66, s25, 1
s_sub_i32 s31, s66, s31
s_sub_i32 s31, s31, {2*(SE - K0)}
s_max_i32 s31, s31, 0
s_min_i32 s31, s31, {OPT['fbm']}
s_sub_u32 s66, s74, 1
v_mov_b32 v10, s66
v_mov_b32 v8, s31
buffer_load_dword v10, v13, s[12:15], s64 offen {['', '', 'sc1'][OPT['fb']]}
s_cmp_lg_u32 s64, {PAC}
s_cselect_b32 s65, 1, 0
s_add_u32 s64, s64, {PST}
s_cmp_ge_u32 s18, {OPT['fbg']}
s_cbranch_scc1 L_fb2
buffer_atomic_add v8, v13, s[12:15], s64 offen sc1
L_fb2:
""" if OPT["fb"] else ""
    a(f"""
s_movk_i32 s30, 1000
s_movk_i32 s62, {OPT['pc']}
s_movk_i32 s63, {SE + OPT['fb0']}
s_mov_b32 s64, {PAC}
s_mov_b32 s65, 0
L_rel:
s_mov_b64 exec, 1
ds_read_b32 v6, v2 offset:128
s_memrealtime s[60:61]
s_sub_u32 s30, s30, 1
s_waitcnt lgkmcnt(0)
s_sub_u32 s25, s60, s74
s_sub_i32 s25, s25, s62
s_max_i32 s25, s25, 0
s_min_i32 s25, s25, 0x8000
{f"s_mul_i32 s31, s25, {int(655360/OPT['pdv'])}" + chr(10) + f"s_sub_i32 s31, s31, {int(OPT['pdw']*65536*(PD/OPT['pdv'] - 1))}" if OPT['pdv'] else ""}
s_mul_i32 s25, s25, {int(655360/PD)}
{"s_max_i32 s25, s25, s31" if OPT['pdv'] else ""}
s_lshr_b32 s25, s25, 16
{FB}
s_cmp_eq_u32 s30, 0
s_cselect_b32 s25, 255, s25
s_cmp_ge_u32 s25, {2*(SE+NSE) - OPT['pe']}
s_cselect_b32 s25, 255, s25
s_sub_i32 s31, s25, {SE - K0}
s_min_i32 s31, s31, {NSE + K0}
s_max_i32 s31, s31, 1
s_bfm_b64 exec, s31, 0
ds_write_b32 v64, v65
s_sub_i32 s31, s25, {SE + NSE}
s_cmp_le_i32 s31, 0
s_cbranch_scc1 L_rel2
s_min_i32 s31, s31, {SE + NSE}
s_bfm_b64 exec, s31, 0
ds_write_b32 v66, v67
s_cmp_eq_u32 s25, 255
s_cbranch_scc1 L_reld
L_rel2:
s_sleep {OPT['pslp']}
s_branch L_rel
L_reld:
""")
if OPT["dl"]: a("s_mov_b32 s67, s60")
if OPT["stamps"] and OPT["fine"] != 7: stamp(7); a(f"s_mov_b32 s96, {'s62' if PD else 's20'}\ns_mov_b32 s60, 0")
a(f"""
s_add_u32 s21, s20, {KN + (NSE + K0 if ONET else 0)}
s_mov_b32 s22, s21
s_cmp_ge_u32 s28, 512
s_cselect_b32 s29, 1, 0
""")
disp(1)
if OPT["stamps"] and OPT["fine"] != 7: a("s_mov_b32 s97, s20"); stamp(6)
if OPT["tcha"]: touch()
if OPT["dl"]:
    a(f"""
s_mov_b64 exec, -1
s_min_u32 s22, s18, 27
s_lshr_b32 s22, s22, 1
s_mul_i32 s25, s17, 14
s_add_u32 s22, s22, s25
s_and_b32 s23, s18, 1
s_movk_i32 s25, 3584
v_lshrrev_b32 v3, 1, v0
v_and_b32 v4, 1, v0
v_lshlrev_b32 v4, 4, v4
v_mul_lo_u32 v5, v3, s25
v_add_u32 v5, v5, v4
s_lshl_b32 s25, s22, 5
v_add_u32 v5, s25, v5
v_lshrrev_b32 v6, 3, v0
v_and_b32 v7, 7, v0
v_lshlrev_b32 v7, 4, v7
v_lshl_add_u32 v6, v6, 10, v7
s_cmp_eq_u32 s23, 0
s_cselect_b32 s68, s{P_WG}, s{P_WU}
s_cselect_b32 s69, s{P_WG+1}, s{P_WU+1}
s_mov_b32 s70, {512*1792*2}
s_mov_b32 s71, 0x00020000
s_lshl_b32 s27, s17, 7
s_mul_i32 s26, s18, {56*1024}
s_add_u32 s26, s26, s27
s_movk_i32 s30, 2000
""")
    srd(4, P_WD, 1792*512*2)
    a(f"""
L_dl:
s_memrealtime s[60:61]
s_sub_u32 s30, s30, 1
s_cbranch_scc1 L_dld
s_waitcnt lgkmcnt(0)
s_sub_u32 s60, s60, s67
s_cmp_ge_i32 s60, {OPT['dl']}
s_cbranch_scc1 L_dld
s_sleep 2
s_branch L_dl
L_dld:
s_mov_b32 s25, 0
""")
    for t in range(16):
        a(f"s_mov_b32 m0, {R1 + 1024*t}")
        if t: a(f"s_mov_b32 s25, {t*32*3584}")
        a(f"buffer_load_dwordx4 v5, s[68:71], s25 offen nt lds")
    for t in range(7):
        a(f"buffer_load_dwordx4 v[{WDV+4*t}:{WDV+4*t+3}], v6, s[4:7], s26 offen nt")
        if t < 6: a("s_add_u32 s26, s26, 8192")
    a("s_waitcnt vmcnt(0)")
hstamps(0, 9)
a("s_waitcnt lgkmcnt(0)\ns_endpgm")

a.label("L_hb")
if OPT["bprio"]: a(f"s_setprio {OPT['bprio']}")
if OPT["st"]:
    a("s_waitcnt lgkmcnt(0)")
    tl = []
    if OPT["st"] & 1: tl += [(P_WQ, 0x200000), (P_X, 0), (P_DBG, 0), (P_WS, 0xf0000), (P_WS, 0x4f8000), (P_WQ, 0)]
    if OPT["st"] & 2: tl += [(P_WD, 0), (P_GW, 0), (P_WG, 0), (P_WU, 0)]
    if OPT["st"] & 4: tl += [(P_WO, 0), (P_WO, 0x200000), (P_OUT, 0), (P_WS, 0x3f0000)]
    for n_, (p_, o_) in enumerate(tl):
        if o_: a(f"s_mov_b32 s25, {hex(o_)}\ns_load_dword s{80+n_}, s[{p_}:{p_+1}], s25")
        else: a(f"s_load_dword s{80+n_}, s[{p_}:{p_+1}], 0")
if KF_:
    a(f"""
s_mul_i32 s21, s17, {32 if OPT["fm"] else 28}
s_add_u32 s21, s21, s18
s_lshr_b32 s22, s21, 3
s_and_b32 s23, s21, 1
s_bfe_u32 s24, s21, 0x20001
s_mul_i32 s25, s24, {128*3584}
s_lshl_b32 s27, s22, 7
s_add_u32 s25, s25, s27
v_lshrrev_b32 v6, 3, v0
v_and_b32 v7, 7, v0
v_lshlrev_b32 v7, 4, v7
v_mul_u32_u24 v5, 3584, v6
v_add3_u32 v5, v5, s25, v7
s_waitcnt lgkmcnt(0)
s_cmp_eq_u32 s23, 0
s_cselect_b32 s68, s{P_WG}, s{P_WU}
s_cselect_b32 s69, s{P_WG+1}, s{P_WU+1}
s_mov_b32 s70, {512*1792*2}
s_mov_b32 s71, 0x00020000
""")
    def tile_ld():
        a(f"s_cmp_ge_u32 {'s17, 7' if OPT['fm'] else 's18, 28'}\ns_cbranch_scc1 L_notile")
        for t in range(16):
            a(f"s_mov_b32 s27, {t*8*3584}\nbuffer_load_dwordx4 v[{XF+4*t}:{XF+4*t+3}], v5, s[68:71], s27 offen nt")
        a.label("L_notile")
    if OPT["bt"] == 0: tile_ld()
    a(f"""
v_lshl_add_u32 v6, v6, 10, v7
v_lshlrev_b32 v3, 4, v0
""")
elif HR:
    a(f"""
v_lshrrev_b32 v6, 3, v0
v_and_b32 v7, 7, v0
v_lshlrev_b32 v7, 4, v7
v_lshl_add_u32 v6, v6, 10, v7
v_lshlrev_b32 v3, 4, v0
""")
elif GU:
    a(f"""
s_sub_u32 s23, s17, s18
s_and_b32 s24, s23, 3
s_bfe_u32 s23, s23, 0x10002
s_cmp_ge_u32 s18, 28
s_cselect_b32 s24, 1, s24
s_lshl_b32 s22, s18, 2
v_lshrrev_b32 v6, 3, v0
v_and_b32 v7, 7, v0
v_lshlrev_b32 v7, 4, v7
v_mul_u32_u24 v5, 3584, v6
s_lshl_b32 s25, s18, 7
v_add3_u32 v5, v5, s25, v7
v_lshl_add_u32 v6, v6, 10, v7
v_lshlrev_b32 v3, 4, v0
""")
else:
    a(f"""
s_min_u32 s22, s18, 27
s_and_b32 s25, s17, 3
s_mul_i32 s25, s25, 28
s_add_u32 s22, s22, s25
s_lshr_b32 s23, s17, 2
""" if L2P & 6 else f"""
s_min_u32 s22, s18, 27
s_lshr_b32 s22, s22, 1
s_mul_i32 s25, s17, 14
s_add_u32 s22, s22, s25
s_and_b32 s23, s18, 1
""")
    if L2P & 2:
        a(f"""
s_lshr_b32 s25, s22, 2
s_lshl_b32 s25, s25, 7
s_and_b32 s26, s22, 3
s_mul_i32 s26, s26, {128*3584}
s_add_u32 s25, s25, s26
v_mul_u32_u24 v5, 3584, v0
v_add_u32 v5, s25, v5
s_waitcnt lgkmcnt(0)
s_cmp_eq_u32 s23, 0
s_cselect_b32 s68, s{P_WG}, s{P_WU}
s_cselect_b32 s69, s{P_WG+1}, s{P_WU+1}
s_mov_b32 s70, {512*1792*2}
s_mov_b32 s71, 0x00020000
s_cmp_ge_u32 s18, 28
s_cbranch_scc1 L_notouch
""")
        touch_tile(5, 68, 3584, 96)
        a.label("L_notouch")
    a(f"""
s_movk_i32 s25, 3584
v_mul_lo_u32 v5, v3, s25
v_add_u32 v5, v5, v4
s_lshl_b32 s25, s22, 5
v_add_u32 v5, s25, v5
v_lshrrev_b32 v6, 3, v0
v_and_b32 v7, 7, v0
v_lshlrev_b32 v7, 4, v7
v_lshl_add_u32 v6, v6, 10, v7
v_lshlrev_b32 v3, 4, v0
""")
if OPT["fk"]:
    a(f"""
s_lshr_b32 s23, s17, 2
s_and_b32 s25, s17, 3
s_mul_i32 s25, s25, {128*3584}
s_min_u32 s24, s18, 27
s_lshl_b32 s24, s24, 7
s_add_u32 s25, s25, s24
v_lshrrev_b32 v5, 3, v0
v_mul_u32_u24 v5, 3584, v5
v_add3_u32 v5, v5, s25, v7
""" if OPT["fk"] & 4 == 0 else f"""
s_and_b32 s23, s18, 1
s_bfe_u32 s25, s18, 0x20001
s_mul_i32 s25, s25, {128*3584}
s_lshr_b32 s24, s18, 3
s_lshl_b32 s27, s17, 2
s_add_u32 s24, s24, s27
s_min_u32 s24, s24, 27
s_lshl_b32 s24, s24, 7
s_add_u32 s25, s25, s24
v_lshrrev_b32 v5, 3, v0
v_mul_u32_u24 v5, 3584, v5
v_add3_u32 v5, v5, s25, v7
""")
frag_addr(7 if KF_ else 5)
a(f"""
v_mov_b32 v92, 0
v_mov_b32 v93, 0
v_mov_b32 v94, 0
v_mov_b32 v95, 0
v_add_u32 v1, {WD_LDS}, v3
{"" if XL else "ds_write_b128 v1, v[92:95] offset:7168"}
v_mov_b32 v15, {MISC}
s_waitcnt lgkmcnt(0)
""")
srd(64, P_X, 8192); srd(12, P_WS, WS_BYTES); srd(4, P_WD, 1792*512*2); srd(8, P_GW, 1024); srd(60, P_WO, 4096*512*2)
if not KF_ and not HR: a(f"""
s_cmp_eq_u32 s23, 0
s_cselect_b32 s68, s{P_WG}, s{P_WU}
s_cselect_b32 s69, s{P_WG+1}, s{P_WU+1}
s_mov_b32 s70, {512*1792*2}
s_mov_b32 s71, 0x00020000
""")
a(f"""
{"s_and_b32 s23, s18, 1" if OPT["fk"] else ""}
s_lshl_b32 s27, s17, 7
s_mul_i32 s26, s18, {56*1024}
s_add_u32 s26, s26, s27
s_and_b32 s25, s18, 1
s_lshl_b32 s25, s25, 12
v_lshrrev_b32 v12, 2, v0
v_lshlrev_b32 v12, 6, v12
v_and_b32 v7, 3, v0
v_lshl_add_u32 v7, v7, 10, v12
""")
def touch0():
    a(f"""
v_lshlrev_b32 v92, 7, v0
s_lshl_b32 s28, s17, 17
s_lshr_b32 s29, s18, 1
s_lshl_b32 s29, s29, 13
s_add_u32 s28, s28, s29
s_and_b32 s29, s18, 1
s_lshl_b32 s29, s29, {11 if OPT["tc0"] == 1 else 12}
s_add_u32 s28, s28, s29
s_add_u32 s28, s28, {CPA}
s_mov_b64 exec, {"0xffff" if OPT["tc0"] == 1 else "0xffffffff"}
buffer_load_dword v93, v92, s[12:15], s28 offen {['', 'sc1', 'nt'][OPT['tpol']]}
s_mov_b64 exec, -1
""")
if OPT["tc0"] and not OPT["tcd"]: touch0()
def fk_ld():
    for t in range(16):
        a(f"s_mov_b32 s24, {t*8*3584}\nbuffer_load_dwordx4 v[{XF+4*t}:{XF+4*t+3}], v5, s[68:71], s24 offen nt")
if OPT["fk"] & 3 == 2: fk_ld()
a("s_barrier")
backoff(OPT["bd0"])
if OPT["fk"] & 3 == 3: fk_ld()
XB2 = 64
if KF_:
    if OPT["bt"] == 1: tile_ld()
    a("s_lshl_b32 s27, s24, 8")
    for s_ in range(4):
        a(f"buffer_load_dwordx4 v[{XB2+4*s_}:{XB2+4*s_+3}], v2, s[64:67], s27 offen offset:{64*s_}")
if GU and not XL: a("s_cmp_lg_u32 s24, 0\ns_cbranch_scc1 L_nxb")
for s_ in range(0 if RM & 4 or XL or KF_ else 16):
    a(f"buffer_load_dwordx4 v[{XF+4*s_}:{XF+4*s_+3}], v2, s[64:67], 0 offen offset:{64*s_}")
    if s_ % 4 == 3: backoff(OPT["bs0"])
if GU and not XL: a.label("L_nxb")
LATE = OPT["late"]
if LATE & 2: a("s_mov_b32 s72, s26")
for t in range(0 if LATE & 2 or OPT["skip"] & 2 or RM & 8 else 7):
    if KF_: a(f"s_mov_b32 m0, {WD_LDS + 1024*t}\ns_nop 0\nbuffer_load_dwordx4 v6, s[4:7], s26 offen nt lds")
    else: a(f"buffer_load_dwordx4 v[{WDV+4*t}:{WDV+4*t+3}], v6, s[4:7], s26 offen nt")
    if t < 6: a("s_add_u32 s26, s26, 8192")
    if t % 4 == 3: backoff(OPT["bs0"])
a(f"""
s_mov_b32 s76, {SPIN*16}
""")
for k in range(0 if RM & 8 else 4):
    if not XL: a(f"buffer_load_dwordx4 v[{GX+4*k}:{GX+4*k+3}], v7, s[64:67], s25 offen offset:{16*k}")
    a(f"buffer_load_dwordx4 v[{GW+4*k}:{GW+4*k+3}], v12, s[8:11], 0 offen offset:{16*k}")
a.label("L_r1w")
a(f"""
ds_read_b32 v8, v15 offset:136
s_waitcnt lgkmcnt(0)
v_cmp_eq_u32 vcc, 0, v8
""")
spin_tail("L_r1w", "L_r1done", sleep=2)
stamp(1)
a(f"ds_read_b32 v{VN}, v15 offset:96")
if XL:
    a(f"""
v_add_u32 v7, s25, v7
v_lshrrev_b32 v8, 6, v7
v_and_b32 v8, 0x70, v8
v_xor_b32 v7, v7, v8
""")
    for k in range(4):
        a(f"v_xor_b32 v8, {16*k}, v7\nv_add_u32 v8, {WD_LDS}, v8\nds_read_b128 v[{GX+4*k}:{GX+4*k+3}], v8")
    if not HR: x_frag(52, 53)
def gwait(n, ticks):
    a(f"""
s_movk_i32 s31, 3000
L_gw{n}:
s_memrealtime s[78:79]
s_sub_u32 s31, s31, 1
s_cbranch_scc1 L_gwd{n}
s_waitcnt lgkmcnt(0)
s_sub_u32 s78, s78, s74
s_cmp_ge_i32 s78, {ticks}
s_cbranch_scc1 L_gwd{n}
s_sleep 1
s_branch L_gw{n}
L_gwd{n}:
""")
def gu_dma(r):
    if OPT["gt"]: gwait(r, OPT["gt"] + r*OPT["gp"])
    for t in range(16):
        a(f"s_mov_b32 m0, {R1 + 1024*t}\ns_mov_b32 s25, {(128*r + 8*t)*3584}\nbuffer_load_dwordx4 v5, s[68:71], s25 offen {'nt ' if OPT['ffnt'] else ''}lds")
        if t < 15: backoff(OPT["gsl"])
def hg_addr(d, ct):
    a(f"""
s_lshl_b32 s25, s22, 2
s_add_u32 s25, s25, {4*ct}
v_add_u32 v{d}, s25, v{CP+2 if OPT["coal"] else 11}
s_movk_i32 s25, 4682
v_mul_u32_u24 v14, s25, v{d}
v_lshrrev_b32 v14, 16, v14
v_mul_u32_u24 v12, 14, v14
v_sub_u32 v{d}, v{d}, v12
v_lshlrev_b32 v{d}, 4, v{d}
v_lshl_add_u32 v{d}, v14, 12, v{d}
v_lshl_add_u32 v{d}, v{CP+1 if OPT["coal"] else 10}, 8, v{d}
""")
if KF_:
    a(f"v_add_u32 v1, {R1}, v3\ns_waitcnt vmcnt(19)")
    for t in range(16): a(f"ds_write_b128 v1, v[{XF+4*t}:{XF+4*t+3}] offset:{1024*t}")
elif not GU and not HR:
    if OPT["gt"]:
        a(f"s_waitcnt lgkmcnt(0)\nv_readfirstlane_b32 s74, v{VN}")
        gwait(0, OPT["gt"])
    a("s_mov_b32 s25, 0")
    if L2P & 6: a("s_waitcnt vmcnt(0)\ns_cmp_ge_u32 s18, 28\ns_cbranch_scc1 L_nosl")
    for t in range(0 if RM & 16 else 16):
        a(f"s_mov_b32 m0, {R1 + 1024*t}")
        if OPT["fk"] & 2: continue
        if t and not OPT["skip"] & 4: a(f"s_mov_b32 s25, {t*(8 if OPT['fk'] else 32)*3584}")
        a(f"buffer_load_dwordx4 v5, s[68:71], s25 offen {'nt ' if OPT['ffnt'] else ''}lds")
        if t < 15: backoff(OPT["bs1"])
    if L2P & 6: a.label("L_nosl")
    if HL: a(f"s_lshl_b32 s25, s22, 9\nv_add_u32 v13, s25, v3")
    else: hg_addr(13, 0)
a(f"""
{"" if HR else f"s_lshl_b32 s25, s23, {16 if HL else 11}"}
{"" if HR else f"s_add_u32 s25, s25, {HG}"}
s_waitcnt vmcnt({0 if GU or KF_ or HR else 16}) lgkmcnt(0)
v_readfirstlane_b32 s74, v{VN}
v_mov_b32 v57, v{VN}
v_mov_b32 v59, v{VN}
""")
for t in range(0 if LATE & 2 or KF_ else 7): a(f"ds_write_b128 v1, v[{WDV+4*t}:{WDV+4*t+3}] offset:{1024*t}")
if XL: a("ds_write_b128 v1, v[92:95] offset:7168")
for k in range(16):
    a(f"""
v_lshlrev_b32 v48, 16, v{GX+k}
v_and_b32 v49, 0xffff0000, v{GX+k}
v_lshlrev_b32 v50, 16, v{GW+k}
v_and_b32 v51, 0xffff0000, v{GW+k}
v_mul_f32 v48, v48, v50
v_mul_f32 v49, v49, v51
v_cvt_pk_bf16_f32 v48, v48, v49
v_and_b32 v49, 0xffff0000, v48
v_lshlrev_b32 v48, 16, v48
""")
    if k == 0: a("v_add_f32 v52, v48, v49")
    else: a("v_add_f32 v48, v48, v49\nv_add_f32 v52, v52, v48")
a("v_mov_b32 v24, v52")
xsum([24], [25], (8, 4))
a(f"""
v_cvt_pk_bf16_f32 v24, v24, v24
v_lshlrev_b32 v24, 16, v24
v_mul_f32 v24, {f32(-LOG2E)}, v24
v_exp_f32 v24, v24
v_add_f32 v24, 1.0, v24
v_rcp_f32 v24, v24
v_cvt_pk_bf16_f32 v24, v24, v24
v_lshlrev_b32 v{GG}, 16, v24
v_sub_f32 v25, 1.0, v{GG}
v_cvt_pk_bf16_f32 v25, v25, v25
v_lshlrev_b32 v{GG+1}, 16, v25
s_lshl_b32 s26, s18, 17
s_lshl_b32 s27, s17, 7
s_add_u32 s26, s26, s27
s_waitcnt vmcnt(0)
""")
def geglu(g_, u_, d_, t):
    a(f"""
v_lshlrev_b32 v{t}, 16, v{g_}
v_and_b32 v{t+1}, 0xffff0000, v{g_}
v_lshlrev_b32 v{t+2}, 16, v{u_}
v_and_b32 v{t+3}, 0xffff0000, v{u_}
v_mul_f32 v{t+4}, v{t}, v{t}
v_mul_f32 v{t+5}, v{t+1}, v{t+1}
v_mul_f32 v{t+4}, v{t+4}, v{t}
v_mul_f32 v{t+5}, v{t+5}, v{t+1}
v_fma_f32 v{t+4}, v{t+4}, s25, v{t}
v_fma_f32 v{t+5}, v{t+5}, s25, v{t+1}
v_mul_f32 v{t+4}, s26, v{t+4}
v_mul_f32 v{t+5}, s26, v{t+5}
v_exp_f32 v{t+4}, v{t+4}
v_exp_f32 v{t+5}, v{t+5}
v_add_f32 v{t+4}, 1.0, v{t+4}
v_add_f32 v{t+5}, 1.0, v{t+5}
v_rcp_f32 v{t+4}, v{t+4}
v_rcp_f32 v{t+5}, v{t+5}
v_mul_f32 v{t+4}, v{t+4}, v{t}
v_mul_f32 v{t+5}, v{t+5}, v{t+1}
v_cvt_pk_bf16_f32 v{t+4}, v{t+4}, v{t+5}
v_and_b32 v{t+5}, 0xffff0000, v{t+4}
v_lshlrev_b32 v{t+4}, 16, v{t+4}
v_mul_f32 v{t+4}, v{t+4}, v{t+2}
v_mul_f32 v{t+5}, v{t+5}, v{t+3}
v_cvt_pk_bf16_f32 v{d_}, v{t+4}, v{t+5}
""")
D1 = 52
def hpub(D, va):
    a(f"""
v_cvt_pk_bf16_f32 v56, v{D}, v{D+1}
v_cvt_pk_bf16_f32 v58, v{D+2}, v{D+3}
""")
    if not GU: a("s_cmp_ge_u32 s18, 28\ns_cbranch_scc1 L_nohpub")
    if OPT["coal"]:
        a(f"""
ds_bpermute_b32 v56, v{CP}, v56
ds_bpermute_b32 v58, v{CP}, v58
s_mov_b32 exec_hi, 0
s_waitcnt lgkmcnt(0)
""")
    else:
        a("s_mov_b64 exec, s[58:59]")
    a(f"""
buffer_store_dwordx4 v[56:59], v{va}, s[12:15], s30 offen sc1
s_mov_b64 exec, -1
""")
a("s_mov_b32 s30, s25")
if KF_:
    DG = 80; PP = 16
    tag_consts(SEL)
    a(f"""
s_cmp_ge_u32 {'s17, 7' if OPT['fm'] else 's18, 28'}
s_cbranch_scc1 L_nohpub
""")
    gemv128(9, DG, XB2)
    a(f"""
v_and_b32 v12, 1, v11
v_lshl_add_u32 v12, v12, 3, v10
v_lshlrev_b32 v12, 4, v12
v_lshrrev_b32 v13, 1, v11
v_lshl_add_u32 v13, v13, 11, v12
s_lshl_b32 s28, s22, 14
s_lshl_b32 s29, s23, 10
s_add_u32 s28, s28, s29
s_lshl_b32 s29, s24, 8
s_add_u32 s28, s28, s29
s_add_u32 s28, s28, {FP}
s_lshl_b32 s29, s21, 11
s_add_u32 s29, s29, {FP}
""")
    if OPT["kpl"]:
        a(f"""
v_and_b32 v12, 7, v10
v_lshl_add_u32 v12, v11, 3, v12
v_lshlrev_b32 v12, 4, v12
v_lshrrev_b32 v13, 3, v10
v_lshl_add_u32 v13, v13, 9, v12
""")
        pstore(DG, VN, 13, "s29", '' if OPT['kl2'] & 2 else 'sc1')
        a(f"""
s_lshl_b32 s29, s22, 14
s_and_b32 s28, s21, 7
s_lshl_b32 s28, s28, 8
s_add_u32 s29, s29, s28
s_add_u32 s29, s29, {FP}
v_lshlrev_b32 v4, 4, v10
v_lshl_add_u32 v4, v11, 12, v4
""")
    else: a("s_mov_b64 exec, s[58:59]")
    for ct in range(0 if OPT["kpl"] else 4):
        tag_ins(DG + 4*ct, VN, SEL)
        a(f"buffer_store_dwordx4 v[{DG+4*ct}:{DG+4*ct+3}], v13, s[12:15], s28 offen {'' if OPT['kl2'] & 2 else 'sc1'}")
        if ct < 3: a("s_add_u32 s28, s28, 4096")
    a(f"""
s_mov_b64 exec, -1
s_mul_i32 s28, s21, 9363
s_lshr_b32 s28, s28, 16
s_mul_i32 s30, s28, 7
s_sub_u32 s30, s21, s30
s_lshl_b32 s30, s30, 5
s_lshl_b32 s28, s28, 12
s_add_u32 s30, s30, s28
s_add_u32 s30, s30, {HG}
v_and_b32 v12, 7, v0
v_bfe_u32 v13, v0, 3, 1
v_lshlrev_b32 v13, 4, v13
v_lshl_add_u32 v13, v12, 8, v13
{f"s_lshl_b32 s30, s21, 8" + chr(10) + f"s_add_u32 s30, s30, {HG}" + chr(10) + "v_mov_b32 v13, v3" if HL else ""}
s_mov_b32 s72, s26
s_mov_b32 s25, {f32(0.044715)}
s_mov_b32 s26, {f32(-2.0*0.7978845608028654*LOG2E)}
""")
    if OPT["kpl"]: ppoll("L_f1p", PP, 4, "s29", VN, 48, OPT["f1d"], OPT["f1s"], None, 2048)
    else: ppoll("L_f1p", PP, 3, "s29", VN, 48, OPT["f1d"], OPT["f1s"])
    xsum(list(range(PP, PP+8)), list(range(PP+8, PP+16)), ())
    for k in range(4): a(f"v_cvt_pk_bf16_f32 v{PP+8+k}, v{PP+2*k}, v{PP+2*k+1}")
    geglu(PP+8, PP+10, 56, 48)
    geglu(PP+9, PP+11, 58, 48)
    a(f"""
s_mov_b64 exec, 0xffff
buffer_store_dwordx4 v[56:59], v13, s[12:15], s30 offen sc1
s_mov_b64 exec, -1
s_mov_b32 s26, s72
""")
elif GU:
    DG = 64
    a(f"""
s_cmp_lg_u32 s24, 0
s_cbranch_scc1 L_nohpub
v_lshrrev_b32 v8, 2, v10
v_lshl_add_u32 v8, v11, 3, v8
v_lshlrev_b32 v9, 7, v8
v_and_b32 v8, 3, v0
v_lshl_add_u32 v9, v8, 3, v9
v_add_u32 v9, {R1}, v9
""")
    backoff(OPT["gd"])
    for r in range(4):
        gu_dma(r)
        if r == 0:
            for ct in range(4): hg_addr(80 + ct, ct)
        for s_ in range(4):
            a(f"s_waitcnt vmcnt({12 - 4*s_})")
            for ct in range(4):
                q_ = AFR + 16*(s_ & 1) + 4*ct
                a(f"ds_read_b64_tr_b16 v[{q_}:{q_+1}], v9 offset:{s_*4096+ct*32}\nds_read_b64_tr_b16 v[{q_+2}:{q_+3}], v9 offset:{s_*4096+ct*32+512}")
            for ct in range(4):
                q_ = AFR + 16*(s_ & 1) + 4*ct; t = 4*r + s_; d = DG + 4*ct
                a(f"s_waitcnt lgkmcnt({6 - 2*ct})\nv_mfma_f32_16x16x32_bf16 v[{d}:{d+3}], v[{q_}:{q_+3}], v[{XF+4*t}:{XF+4*t+3}], {'0' if t == 0 else f'v[{d}:{d+3}]'}")
        if r < 3: backoff(OPT["gr"])
    for ct in range(4):
        hpub(DG + 4*ct, 80 + ct)
        if ct < 3: a("s_nop 4")
elif not HR:
    gemv(9, D1)
    hpub(D1, 13)
a.label("L_nohpub")
if OPT["xm"]:
    a(f"""
s_getreg_b32 s31, hwreg(HW_REG_XCC_ID, 0, 4)
s_xor_b32 s31, s31, s74
s_lshl_b32 s29, s17, 8
s_add_u32 s29, s29, {XID}
s_lshl_b32 s27, s18, 3
s_add_u32 s27, s27, s29
v_mov_b32 v{VN+1}, s31
v_lshlrev_b32 v66, 3, v0
v_and_b32 v66, 0xff, v66
s_mov_b64 exec, 1
buffer_store_dwordx2 v[{VN}:{VN+1}], v66, s[12:15], s27 offen sc1
s_mov_b64 exec, -1
""")
stamp(2)
if OPT["tc0"] and OPT["tcd"] == 1:
    a("s_mov_b32 s30, s29"); touch0(); a("s_mov_b32 s29, s30")
def wo_dma(sr):
    for t in range(0 if OPT["skip"] & 1 else 16):
        a(f"s_mov_b32 m0, {WO_LDS + 1024*t}\ns_nop 0\nbuffer_load_dwordx4 v6, s[60:63], {sr} offen nt lds")
        if t < 15: a(f"s_add_u32 {sr}, {sr}, 8192")
if LATE & 1: a("s_mov_b32 s73, s26")
else: wo_dma("s26")
HB = 16; UB = 32
tag_consts(SEL)
a(f"""
""" + (f"""
s_mul_i32 s30, s18, 1792
s_add_u32 s30, s30, {HG}
v_lshlrev_b32 v1, 4, v10
v_lshl_add_u32 v1, v11, 8, v1
""" if HL and KF_ else f"""
s_mov_b32 s30, {HG}
s_mov_b32 s27, {HG + 65536}
s_mul_i32 s25, s18, 7
v_add_u32 v1, s25, v11
v_lshrrev_b32 v2, {2 if HR else 1}, v1
v_and_b32 v1, {3 if HR else 1}, v1
v_lshlrev_b32 v1, 5, v1
v_lshl_add_u32 v1, v2, {10 if HR else 9}, v1
v_lshl_add_u32 v1, v10, {7 if HR else 6}, v1
""" if HL else f"""
s_lshl_b32 s30, s18, 12
s_add_u32 s30, s30, {HG}
v_lshlrev_b32 v1, 5, v11
v_lshl_add_u32 v1, v10, 8, v1
""") + f"""
v_mov_b32 v4, 0x7ff00000
v_cmp_gt_u32 vcc, 3, v11
s_and_b64 s[66:67], s[58:59], vcc
v_cndmask_b32 v2, v4, v1, s[66:67]
v_cndmask_b32 v1, v4, v1, s[58:59]
v_lshlrev_b32 v14, 4, v10
v_lshl_add_u32 v14, v11, 7, v14
v_add_u32 v14, {WD_LDS}, v14
s_mov_b32 s76, {SPIN}
""")
backoff(OPT["hd"])
a.label("L_hpoll")
for B_, o_ in ((HB, 0),) if KF_ or OPT['hp'] & 2 else ((HB, 0), (UB, 2048)):
    if HL and KF_: a(f"""
buffer_load_dwordx4 v[{B_}:{B_+3}], v1, s[12:15], s30 offen sc1
buffer_load_dwordx4 v[{B_+4}:{B_+7}], v1, s[12:15], s30 offen offset:128 sc1
buffer_load_dwordx4 v[{B_+8}:{B_+11}], v2, s[12:15], s30 offen offset:1024 sc1
buffer_load_dwordx4 v[{B_+12}:{B_+15}], v2, s[12:15], s30 offen offset:1152 sc1
""")
    elif HL: a(f"""
buffer_load_dwordx4 v[{B_}:{B_+3}], v1, s[12:15], {'s27' if o_ else 's30'} offen sc1
buffer_load_dwordx4 v[{B_+4}:{B_+7}], v1, s[12:15], {'s27' if o_ else 's30'} offen offset:16 sc1
buffer_load_dwordx4 v[{B_+8}:{B_+11}], v2, s[12:15], {'s27' if o_ else 's30'} offen offset:1024 sc1
buffer_load_dwordx4 v[{B_+12}:{B_+15}], v2, s[12:15], {'s27' if o_ else 's30'} offen offset:1040 sc1
""")
    else: a(f"""
buffer_load_dwordx4 v[{B_}:{B_+3}], v1, s[12:15], s30 offen offset:{o_} sc1
buffer_load_dwordx4 v[{B_+4}:{B_+7}], v1, s[12:15], s30 offen offset:{o_+16} sc1
buffer_load_dwordx4 v[{B_+8}:{B_+11}], v2, s[12:15], s30 offen offset:{o_+128} sc1
buffer_load_dwordx4 v[{B_+12}:{B_+15}], v2, s[12:15], s30 offen offset:{o_+144} sc1
""")
if OPT["xm"]: a("buffer_load_dwordx2 v[64:65], v66, s[12:15], s29 offen sc1")
a("s_waitcnt vmcnt(0)")
any_eq([HB+1, HB+3, HB+5, HB+7] + ([] if KF_ or OPT['hp'] & 2 else [UB+1, UB+3, UB+5, UB+7]), "s74", neg=True)
a("s_and_b64 s[64:65], vcc, s[58:59]")
if OPT["xm"]: a("v_cmp_ne_u32 vcc, s74, v64\ns_or_b64 s[64:65], s[64:65], vcc\nv_xor_b32 v67, s74, v65\nv_cmp_lt_u32 vcc, 15, v67\ns_or_b64 s[64:65], s[64:65], vcc")
any_eq([HB+9, HB+11, HB+13, HB+15] + ([] if KF_ or OPT['hp'] & 2 else [UB+9, UB+11, UB+13, UB+15]), "s74", neg=True)
a("s_and_b64 vcc, vcc, s[66:67]\ns_or_b64 vcc, vcc, s[64:65]")
spin_tail("L_hpoll", "L_hdone", sleep=OPT["hslp"])
if OPT["xm"]:
    a(f"""
v_cmp_ne_u32 vcc, s31, v65
s_cmp_eq_u64 vcc, 0
s_cselect_b32 s28, {0 if OPT["xforce"] else 1}, 0
""")
stamp(3)
a(f"""
s_mov_b32 s25, {f32(0.044715)}
s_mov_b32 s26, {f32(-2.0*0.7978845608028654*LOG2E)}
v_lshrrev_b32 v1, 2, v10
v_lshl_add_u32 v1, v11, 3, v1
v_lshlrev_b32 v1, 7, v1
v_and_b32 v2, 3, v0
v_lshl_add_u32 v1, v2, 3, v1
v_add_u32 v1, {WD_LDS}, v1
""")
AF = 80
def af_rd():
    for ct in range(4):
        for s_ in range(2):
            r = AF + 8*ct + 4*s_
            a(f"ds_read_b64_tr_b16 v[{r}:{r+1}], v1 offset:{s_*4096+ct*32}")
            a(f"ds_read_b64_tr_b16 v[{r+2}:{r+3}], v1 offset:{s_*4096+ct*32+512}")
def trig_wait():
    a(f"s_mov_b32 s76, {SPIN*16}")
    a.label("L_tw")
    a(f"""
ds_read_b32 v8, v15 offset:136
s_waitcnt lgkmcnt(0)
v_cmp_ne_u32 vcc, 2, v8
""")
    spin_tail("L_tw", "L_twdone", sleep=OPT["tslp"])
    stamp(0)
if not LATE & 2: af_rd()
HF = 48
for e in range(8):
    if KF_: a(f"v_mov_b32 v{HF+e}, v{HB+2*e}")
    else: geglu(HB + 2*e, UB + 2*e, HF + e, 56)
if LATE & 2:
    trig_wait()
    for t in range(7):
        a(f"s_mov_b32 m0, {WD_LDS + 1024*t}\ns_nop 0\nbuffer_load_dwordx4 v6, s[4:7], s72 offen nt lds")
        if t < 6: a("s_add_u32 s72, s72, 8192")
    if LATE & 1: wo_dma("s73")
    a(f"s_waitcnt vmcnt({16 if LATE & 1 else 0})")
    af_rd()
a("s_waitcnt lgkmcnt(0)")
for ct in range(4):
    r = AF + 8*ct; d = 112 + 4*ct
    a(f"v_mfma_f32_16x16x32_bf16 v[{d}:{d+3}], v[{r}:{r+3}], v[{HF}:{HF+3}], 0")
    a(f"v_mfma_f32_16x16x32_bf16 v[{d}:{d+3}], v[{r+4}:{r+7}], v[{HF+4}:{HF+7}], v[{d}:{d+3}]")
for ct in range(4): tag_ins(112 + 4*ct, VN, SEL)
a("s_mov_b64 exec, s[58:59]")
for ct in range(4):
    d = 112 + 4*ct
    a(f"ds_write_b128 v14, v[{d}:{d+3}] offset:{512*ct}")
if OPT["hbn"] == 1:
    a(f"""
v_lshlrev_b32 v1, 4, v10
v_lshl_add_u32 v1, v11, 13, v1
s_lshl_b32 s25, s17, 17
s_lshl_b32 s26, s18, 7
s_add_u32 s25, s25, s26
s_add_u32 s25, s25, {CPA}
v_not_b32 v16, v{VN}
v_not_b32 v17, v{VN}
v_not_b32 v18, v{VN}
v_not_b32 v19, v{VN}
""")
    for ct in range(4):
        d = 112 + 4*ct
        a(f"s_add_u32 s26, s25, 4096\nbuffer_store_dwordx4 v[{d}:{d+3}], v1, s[12:15], s26 offen")
        if OPT["prw"]: a(f"buffer_store_dwordx4 v[16:19], v1, s[12:15], s25 offen")
        if ct < 3: a("s_add_u32 s25, s25, 32768")
a(f"""
v_lshl_add_u32 v2, v{CP+2}, 3, v15
s_mov_b64 exec, 15
ds_write_b64 v2, v[{GG}:{GG+1}] offset:64
""")
stamp(4)
if OPT["tchb"]: touch()
if OPT["xm"]:
    a(f"v_mov_b32 v8, s28\nds_write_b32 v15, v8 offset:140")
else:
    a("v_mov_b32 v8, 1\ns_waitcnt vmcnt(0) lgkmcnt(0)\nds_write_b32 v15, v8 offset:140")
if LATE == 1:
    if OPT["pt"]:
        srd(8, P_OUT, 8192)
        a(f"""
s_mov_b64 exec, 1
s_lshl_b32 s25, s17, 7
s_mov_b32 s26, 0x3f0000
v_mov_b32 v16, 0
""")
        if OPT["pt"] & 1: a("buffer_load_dword v17, v16, s[8:11], s25 offen")
        if OPT["pt"] & 2: a("buffer_load_dword v18, v16, s[12:15], s26 offen")
        if OPT["pt"] & 4: a("buffer_load_dword v19, v16, s[60:63], s73 offen nt")
    a("s_mov_b64 exec, -1")
    if OPT["dlb"]:
        a(f"""
s_lshl_b32 s27, s17, 7
s_mul_i32 s26, s18, {56*1024}
s_add_u32 s26, s26, s27
s_movk_i32 s30, 2000
L_dl:
s_memrealtime s[64:65]
s_sub_u32 s30, s30, 1
s_cbranch_scc1 L_dld
s_waitcnt lgkmcnt(0)
s_sub_u32 s64, s64, s74
s_cmp_ge_i32 s64, {OPT['dlb']}
s_cbranch_scc1 L_dld
s_sleep 4
s_branch L_dl
L_dld:
s_mov_b32 s25, 0
""")
        for t in range(16):
            a(f"s_mov_b32 m0, {R1 + 1024*t}")
            if t: a(f"s_mov_b32 s25, {t*32*3584}")
            a(f"buffer_load_dwordx4 v5, s[68:71], s25 offen nt lds")
        for t in range(7):
            a(f"buffer_load_dwordx4 v[{WDV+4*t}:{WDV+4*t+3}], v6, s[4:7], s26 offen nt")
            if t < 6: a("s_add_u32 s26, s26, 8192")
        if OPT["dlw"]: a("s_waitcnt vmcnt(0)")
    if OPT["w8"]:
        backoff(OPT["w8d"])
        a(f"""
s_lshl_b32 s25, s18, 17
s_movk_i32 s26, {OPT["w8"]}
L_w8:
""")
        for t in range(OPT["w8n"]):
            a(f"s_waitcnt vmcnt({OPT['w8n']-1})\nbuffer_load_dwordx4 v[{16+4*t}:{19+4*t}], v3, s[60:63], s25 offen {['', 'nt', 'sc1', 'sc0 sc1', 'sc1 nt'][OPT['w8p']]}\ns_add_u32 s25, s25, 1024")
            if OPT["w8s"]: a(f"s_sleep {OPT['w8s']}")
        a(f"""
s_sub_u32 s26, s26, {OPT['w8n']}
s_cmp_gt_i32 s26, 0
s_cbranch_scc1 L_w8
""")
    if OPT["lb"] == 2: a("s_waitcnt lgkmcnt(0)\ns_barrier"); stamp(0); backoff(OPT["wdel"])
    else: trig_wait()
    wo_dma("s73")
    if OPT["lb"] == 1: a("s_barrier")
if LATE and OPT["stamps"]: a("s_waitcnt vmcnt(0)"); stamp(4)
hstamps(9, 5)
a("s_waitcnt vmcnt(0) lgkmcnt(0)\ns_endpgm")

a.label("L_stream")
KA, VA, KR, VR = 1, 5, 7, 11
M_, L_ = 20, 21
T0, T1, T2 = 22, 23, 19
Q = 24; KF = 40; S = 56; T = 60; PF = 66; SA = 68; TKA = 69; CL = 70; ZR = 71; O = 72; STG = 104; NINF = 65; FL = 64
TE = T + 2; ONE = T + 3; TA = CL
ST0 = 168 - 16*NST
X0 = KF
a(f"""
v_and_b32 v{T0}, 15, v0
v_lshrrev_b32 v{T1}, 4, v0
s_mul_i32 s24, s3, {RING}
{"s_memrealtime s[98:99]" if OPT["pp"] else ""}
""")
for i in range(4):
    a(f"""
v_add_u32 v{T2}, {4*i}, v{T1}
v_xor_b32 v{T2}, v{T2}, v{T0}
v_lshlrev_b32 v{T2}, 4, v{T2}
v_lshl_add_u32 v{KA+i}, v{T1}, 8, v{T2}
v_lshl_add_u32 v{KR+i}, v{T0}, 8, v{T2}
""")
a(f"""
{"s_lshl_b32 s30, s17, 2" if XB else "s_lshl_b32 s30, s20, 4"}
s_add_u32 s30, s30, {"s20" if XB else "s19"}
{"s_lshl_b32 s30, s30, 1" if XB else ""}
s_lshl_b32 s21, s30, 21
s_lshl_b32 s22, {MEM}, 3
s_add_u32 s22, s22, s3
s_mul_i32 s77, s20, {OPT['r2']}
{f"s_mul_i32 s25, {'s17' if XB else 's19'}, {OPT['r1']}" + chr(10) + "s_add_u32 s77, s77, s25" if OPT['r1'] else ""}
s_add_u32 s22, s22, s77
s_and_b32 s26, s22, 511
{trn("s26")}
s_lshl_b32 s26, s26, 12
s_add_u32 s26, s26, s21
s_add_u32 m0, s24, 8192
s_waitcnt lgkmcnt(0)
""")
if OPT["fz"]:
    a(f"""
s_add_u32 s27, s18, s17
s_and_b32 s27, s27, 3
s_lshr_b32 s28, s18, 2
v_lshrrev_b32 v40, 3, v0
v_and_b32 v41, 7, v0
v_lshlrev_b32 v41, 4, v41
s_cmp_eq_u32 s27, 2
s_cbranch_scc1 L_fzg
s_cmp_lg_u32 s27, 0
s_cbranch_scc1 L_fzd
s_lshl_b32 s29, s17, 3
s_add_u32 s29, s29, s28
s_lshl_b32 s29, s29, 7
s_lshl_b32 s25, s3, 19
s_add_u32 s29, s29, s25
v_lshl_add_u32 v40, v40, 13, v41
s_mov_b32 s28, 65536
""")
    srd(8, P_WQ, 512*4096*2)
    a(f"""
s_branch L_fzl
L_fzg:
s_cmp_ge_u32 s28, 7
s_cbranch_scc1 L_fzd
s_and_b32 s29, s17, 3
s_mul_i32 s29, s29, 7
s_add_u32 s29, s29, s28
s_lshl_b32 s29, s29, 7
s_mul_i32 s25, s3, {64*3584}
s_add_u32 s29, s29, s25
v_mul_u32_u24 v40, 3584, v40
v_add_u32 v40, v40, v41
s_movk_i32 s28, {8*3584}
s_cmp_lt_u32 s17, 4
s_cselect_b32 s8, s{P_WG}, s{P_WU}
s_cselect_b32 s9, s{P_WG+1}, s{P_WU+1}
s_mov_b32 s10, {512*1792*2}
s_mov_b32 s11, 0x00020000
L_fzl:
""")
    for t in range(8):
        a(f"s_add_u32 m0, s24, {1024*t}\ns_nop 0\nbuffer_load_dwordx4 v40, s[8:11], s29 offen nt lds\ns_add_u32 s29, s29, s28")
    a(f"""
s_add_u32 m0, s24, 8192
L_fzd:
""")
srd(4, P_K, 128 << 20)
if OPT["fine"] in (6, 7): a("s_memrealtime s[48:49]")
nload = [0]
def wxk(k): return [0, k & 7, 2*(k & 1), (k*3) & 7, (k & 1)*2 + (k >> 1 & 1) + (k & 4)][OPT["wx"]]
def pre_load(k):
    if k:
        a(f"""
s_xor_b32 s26, s3, {wxk(k)}
s_sub_u32 s26, s26, s3
s_add_u32 s26, s26, s22
s_add_u32 s26, s26, {64*k}
""" if OPT["wx"] else f"s_add_u32 s26, s22, {64*k}")
        a(f"""
s_and_b32 s26, s26, 511
{trn("s26")}
s_lshl_b32 s26, s26, 12
s_add_u32 s26, s26, s21
""")
        if k >= 8: a(f"s_add_u32 s26, s26, {1 << 24}")
    if OPT["pp"] and k >= OPT["pp0"]:
        if k == OPT["pp0"]: a(f"s_mul_i32 s99, s3, {OPT['pps']}\ns_add_u32 s98, s98, s99\ns_movk_i32 s99, 2000")
        a(f"""
L_pp{k}:
s_memrealtime s[100:101]
s_sub_u32 s99, s99, 1
s_cbranch_scc1 L_ppd{k}
s_waitcnt lgkmcnt(0)
s_sub_u32 s100, s100, s98
s_cmp_ge_i32 s100, {OPT['ppo'] + (k - OPT['pp0'] + 1)*OPT['pp']}
s_cbranch_scc1 L_ppd{k}
s_sleep 2
s_branch L_pp{k}
L_ppd{k}:
""")
    if k == 1: a("s_mov_b32 m0, s24")
    if k == 2: a("s_add_u32 m0, s24, 4096")
    for i in range(4):
        if nload[0] == NPRE:
            if OPT["fine"] in (6, 7): a("s_memrealtime s[50:51]")
            setup_rest()
            if OPT["fine"] == 6: a("s_waitcnt vmcnt(0)\ns_memrealtime s[54:55]")
            a("s_waitcnt lgkmcnt(0)\ns_barrier")
            if OPT["fine"] == 6: a("s_memrealtime s[56:57]")
            if OPT["fine"] == 7: a("s_memrealtime s[54:55]")
        if OPT["fine"] == 7 and nload[0] == 16: a("s_memrealtime s[56:57]")
        if nload[0] >= Wp: a(f"s_waitcnt vmcnt({Wp-1})")
        if LOG and nload[0] >= Wp + 3 and (nload[0] - Wp) % 4 == 3:
            pl = [62, 64, 66, 94, 98, 100][(nload[0] - Wp)//4]
            a(f"s_memrealtime s[{pl}:{pl+1}]")
        if k < 3:
            a(f"buffer_load_dwordx4 v{KA+i}, s[4:7], s26 offen offset:{i*1024} nt lds")
        else:
            r = ST0 + 16*(k-3) + 4*i
            a(f"buffer_load_dwordx4 v[{r}:{r+3}], v{KA+i}, s[4:7], s26 offen offset:{i*1024} nt")
        nload[0] += 1
def setup_rest():
    srd(8, P_V, 128 << 20)
    srd(12, P_WS, WS_BYTES)
    for e in range(2):
        a(f"""
v_lshrrev_b32 v{T2}, 1, v{T0}
v_add_u32 v{X0}, {4*e}, v{T1}
v_xor_b32 v{T2}, v{T2}, v{X0}
v_lshlrev_b32 v{T2}, 5, v{T2}
v_and_b32 v{X0}, 1, v{T0}
v_lshl_add_u32 v{T2}, v{X0}, 4, v{T2}
v_lshl_add_u32 v{VA+e}, v{T1}, 8, v{T2}
""")
    a(f"""
s_mov_b32 s79, {hex(SENT)}
v_mov_b32 v{S}, s79
v_mov_b32 v{S+1}, s79
v_mov_b32 v{S+2}, s79
v_mov_b32 v{S+3}, s79
s_mul_i32 s25, s3, {2048 if HR else NSLOT*16}
s_add_u32 s25, s25, {SB}
v_lshl_add_u32 v{T2}, v0, 4, s25
""")
    for k in range(2 if HR else NSLOT//64): a(f"ds_write_b128 v{T2}, v[{S}:{S+3}] offset:{1024*k}")
    a(f"""
v_lshrrev_b32 v{X0}, 2, v0
v_and_b32 v{X0+1}, 7, v{X0}
v_and_b32 v{X0+2}, 3, v0
v_lshlrev_b32 v{X0+2}, 3, v{X0+2}
v_lshl_add_u32 v{SA}, v{T1}, 5, v{X0+2}
v_add_u32 v{SA}, {SB}, v{SA}
v_lshl_add_u32 v{X0+2}, v{X0}, 8, v{X0+2}
""")
    for dt in range(8):
        a(f"v_xor_b32 v{X0+3}, {dt}, v{X0+1}\nv_lshl_add_u32 v{VR+dt}, v{X0+3}, 5, v{X0+2}")
    a(f"""
v_cmp_gt_u32 s[70:71], 8, v{T0}
v_mov_b32 v{M_}, {f32(-1e30)}
v_mov_b32 v{L_}, 0
v_mov_b32 v{NINF}, 0xff80ff80
v_mov_b32 v{ZR}, 0
s_mov_b32 s58, {f32(SCALE)}
s_mov_b32 s59, {f32(LOG2E)}
s_mov_b32 s31, {f32(-LOG2E)}
v_mov_b32 v{ONE}, 1
v_mov_b32 v{FL}, {TK}
v_mov_b32 v{TKA}, {TK}
s_mov_b32 s78, {T1B}
s_mov_b32 s96, 0
s_mov_b32 s60, s24
s_add_u32 s61, s24, 4096
s_add_u32 s72, s24, 8192
s_lshl_b32 s73, s3, 7
s_xor_b32 s27, s73, {1024 + 128*wxk(1)}
s_xor_b32 s28, s73, {2048 + 128*wxk(2)}
""")
    tag_consts(SEL)
    for r in range(O, min(O+32, ST0)): a(f"v_mov_b32 v{r}, 0")
    for r in range(16): a(f"v_mov_b32 v{Q+r}, 0")
for k in range(NSU): pre_load(k)
a(f"""
v_lshlrev_b32 v{T2}, 4, v{T1}
v_lshl_add_u32 v{T2}, v{T0}, 8, v{T2}
v_add_u32 v{T2}, {Q_LDS}, v{T2}
s_mov_b32 s76, {SPIN*16}
""")
a.label("L_qw")
a(f"""
ds_read_b32 v{T}, v{FL} offset:4
s_waitcnt lgkmcnt(0)
v_cmp_ne_u32 vcc, 1, v{T}
""")
spin_tail("L_qw", "L_qwdone", sleep=1)
stamp(1)
a("s_mov_b64 exec, s[70:71]")
for j in range(4): a(f"ds_read_b128 v[{Q+4*j}:{Q+4*j+3}], v{T2} offset:{j*64}")
a("s_mov_b64 exec, -1")

nlab = [0]
def ticket_rd():
    a(f"s_mov_b64 exec, 1\nds_add_rtn_u32 v{TE}, v{TKA}, v{ONE}\ns_mov_b64 exec, -1")
def ticket_use():
    a(f"""
v_readfirstlane_b32 s25, v{TE}
s_and_b32 s75, s25, 1
s_lshr_b32 s25, s25, 1
s_lshl_b32 s25, s25, 2
s_add_u32 s25, s25, s78
v_mov_b32 v{TA}, s25
""")
def entry_rd():
    a(f"ds_read_b32 v{TE}, v{TA}")
def dmask(d):
    a(f"""
s_andn2_b32 s25, {d}, 127
v_add_u32 v{T2}, s25, v{SA}
s_and_b32 s25, {d}, 4
s_lshl_b32 s68, 0x000f000f, s25
s_mov_b32 s69, s68
""")
def kstep(sb, d, mid=None):
    for j in range(4): a(f"v_add_u32 v{KF+4*j}, {sb}, v{KR+j}\nds_read_b128 v[{KF+4*j}:{KF+4*j+3}], v{KF+4*j}")
    dmask(d)
    if mid:
        a("s_waitcnt lgkmcnt(4)"); mid()
    for j in range(4):
        c = "0" if j == 0 else f"v[{S}:{S+3}]"
        a(f"s_waitcnt lgkmcnt({3-j})")
        a(f"v_mfma_f32_16x16x32_bf16 v[{S}:{S+3}], v[{KF+4*j}:{KF+4*j+3}], v[{Q+4*j}:{Q+4*j+3}], {c}")
    for k in range(2): a(f"v_cvt_pk_bf16_f32 v{T+k}, v{S+2*k}, v{S+2*k+1}")
    for k in range(2):
        a(f"v_lshlrev_b32 v{S+2*k}, 16, v{T+k}\nv_and_b32 v{S+2*k+1}, 0xffff0000, v{T+k}")
    for k in range(4): a(f"v_mul_f32 v{S+k}, s58, v{S+k}")
    for k in range(2): a(f"v_cvt_pk_bf16_f32 v{PF+k}, v{S+2*k}, v{S+2*k+1}")
    a(f"s_mov_b64 exec, s[68:69]\nds_write_b64 v{T2}, v[{PF}:{PF+1}]\ns_mov_b64 exec, -1")
ool = []
def soft():
    nlab[0] += 1
    n = nlab[0]
    a(f"""
L_sr{n}:
v_cmp_eq_u32 vcc, s79, v{PF}
v_cmp_eq_u32 s[74:75], s79, v{PF+1}
""" if False else f"""
L_sr{n}:
v_cmp_eq_u32 vcc, s79, v{PF}
s_cbranch_vccnz L_ss{n}
v_cmp_eq_u32 vcc, s79, v{PF+1}
s_cbranch_vccnz L_ss{n}
L_sg{n}:
v_cndmask_b32 v{T}, v{NINF}, v{PF}, s[68:69]
v_cndmask_b32 v{T+1}, v{NINF}, v{PF+1}, s[68:69]
""")
    ool.append(f"""
L_ss{n}:
s_sub_u32 s76, s76, 1
s_cmp_le_i32 s76, 0
s_cbranch_scc1 L_sg{n}
ds_read_b64 v[{PF}:{PF+1}], v{T2}
s_waitcnt lgkmcnt(0)
s_branch L_sr{n}
""")
    for k in range(2):
        a(f"v_lshlrev_b32 v{S+2*k}, 16, v{T+k}\nv_and_b32 v{S+2*k+1}, 0xffff0000, v{T+k}")
    a(f"""
v_max3_f32 v{T}, v{S}, v{S+1}, v{S+2}
v_max3_f32 v{T}, v{T}, v{S+3}, v{M_}
v_mov_b32 v{T+1}, v{T}
v_permlane16_swap_b32 v{T}, v{T+1}
v_max_f32 v{T}, v{T}, v{T+1}
v_mov_b32 v{T+1}, v{T}
v_permlane32_swap_b32 v{T}, v{T+1}
v_max_f32 v{T}, v{T}, v{T+1}
v_cmp_gt_f32 vcc, v{T}, v{M_}
s_cbranch_vccz L_nr{n}
v_sub_f32 v{T+1}, v{M_}, v{T}
v_mul_f32 v{T+1}, s59, v{T+1}
v_exp_f32 v{T+1}, v{T+1}
v_mov_b32 v{M_}, v{T}
v_mul_f32 v{L_}, v{L_}, v{T+1}
""")
    for r in range(32): a(f"v_mul_f32 v{O+r}, v{O+r}, v{T+1}")
    a.label(f"L_nr{n}")
    a(f"v_mul_f32 v{T+1}, s31, v{M_}")
    for k in range(4): a(f"v_fma_f32 v{S+k}, v{S+k}, s59, v{T+1}")
    for k in range(4): a(f"v_exp_f32 v{S+k}, v{S+k}")
    for k in range(2): a(f"v_cvt_pk_bf16_f32 v{PF+k}, v{S+2*k}, v{S+2*k+1}")
    a(f"""
v_add_f32 v{T}, v{S}, v{S+1}
v_add_f32 v{T+1}, v{S+2}, v{S+3}
v_add_f32 v{T}, v{T}, v{T+1}
v_add_f32 v{L_}, v{L_}, v{T}
""")
def v_rd(sb):
    for dt in range(8): a(f"v_add_u32 v{KF+2*dt}, {sb}, v{VR+dt}\nds_read_b64_tr_b16 v[{KF+2*dt}:{KF+2*dt+1}], v{KF+2*dt}")
def pv(dt):
    a(f"v_mfma_f32_16x16x16_bf16 v[{O+4*dt}:{O+4*dt+3}], v[{KF+2*dt}:{KF+2*dt+1}], v[{PF}:{PF+1}], v[{O+4*dt}:{O+4*dt+3}]")
def vstep(sb, d, mid=None):
    dmask(d)
    a(f"ds_read_b64 v[{PF}:{PF+1}], v{T2}")
    v_rd(sb)
    a("s_waitcnt lgkmcnt(8)")
    if mid: mid()
    soft()
    a("s_waitcnt lgkmcnt(0)")
    for dt in range(8): pv(dt)
X = STG
VNS = X + 27; FLG = X + 26
F3ADDR = f"""
s_lshl_b32 s77, s16, 2
s_add_u32 s77, s77, {F1}
s_lshr_b32 s22, s16, {OPT['rsh']}
s_lshl_b32 s22, s22, 10
s_add_u32 s22, s22, {F1}
s_lshr_b32 s95, s3, 1
s_lshl_b32 s95, s95, 3
s_lshr_b32 s25, s16, 5
s_add_u32 s95, s95, s25
s_lshl_b32 s95, s95, 5
s_add_u32 s95, s95, s22
""" if OPT["f3"] else ""
FLIM = 1 << 20
COL = OPT["col"]
COL1 = f"""
v_lshrrev_b32 v{X+11}, 2, v{T0}
v_lshlrev_b32 v{X+11}, 12, v{X+11}
v_lshl_add_u32 v{X+25}, v{X+13}, 4, v{X+11}
v_lshl_add_u32 v{X+11}, v{T1}, 13, v{X+25}
""" if COL else f"""v_lshlrev_b32 v{X+11}, 4, v{T0}
v_lshl_add_u32 v{X+11}, v{T1}, 13, v{X+11}
"""
COL2 = "" if COL else f"""v_lshrrev_b32 v{X+25}, 3, v{T0}
v_lshlrev_b32 v{X+25}, 13, v{X+25}
v_lshl_add_u32 v{X+25}, v{X+3}, 4, v{X+25}
"""
FU = OPT["fful"]
FADDR = f"""
s_and_b32 s94, s29, 31
s_lshl_b32 s94, s94, 6
s_lshr_b32 s25, s29, 5
s_add_u32 s94, s94, s25
s_mul_i32 s94, s94, {FST}
s_lshl_b32 s25, s17, 3
s_add_u32 s94, s94, s25
s_add_u32 s94, s94, {FG}
s_andn2_b32 s95, s16, {[0, 7, 3, 1, 0][OPT['fone']]}
s_lshl_b32 s95, s95, 3
s_add_u32 s95, s95, s3
s_mul_i32 s95, s95, {FST}
s_add_u32 s95, s95, {FG}
v_mul_u32_u24 v{X+30}, {8*FST}, v0
""" if not FU else f"""
s_lshl_b32 s94, s29, 3
s_add_u32 s94, s94, s17
s_mul_i32 s94, s94, {FU}
s_add_u32 s94, s94, {FG}
s_lshl_b32 s95, s3, 5
s_add_u32 s95, s95, s18
s_mul_i32 s95, s95, {8*FU}
s_lshl_b32 s25, s17, 3
s_add_u32 s95, s95, s25
s_add_u32 s95, s95, {FG}
v_mul_u32_u24 v{X+30}, {FU}, v0
"""
FSA, FPA = (X+1, X+30) if FU else (X+30, X+1)
if OPT["fone"] == 4:
    FADDR = f"""
s_mul_i32 s94, s29, {FST}
s_lshl_b32 s25, {MEM}, 3
s_add_u32 s94, s94, s25
s_add_u32 s94, s94, {FG + OPT['fgo']}
s_lshl_b32 s95, s3, 5
s_add_u32 s95, s95, s18
s_mul_i32 s95, s95, {FST}
s_add_u32 s95, s95, {FG + OPT['fgo']}
v_mov_b32 v{X+30}, 0
"""
def tail_addr():
    a(f"""
v_mul_u32_u24 v{X}, {CST}, v{T0}
v_lshl_add_u32 v{X}, v{T1}, 4, v{X}
v_add_u32 v{X}, s24, v{X}
v_lshlrev_b32 v{X+1}, 3, v0
s_lshl_b32 s25, s3, 3
s_add_u32 s25, s25, {MLT}
v_lshl_add_u32 v{X+15}, v0, 6, s25
v_mov_b32 v{X+21}, {MISC}
ds_read_b32 v{VNS}, v{X+21} offset:96
s_lshr_b32 s29, s3, 2
{"" if XB else "s_lshl_b32 s29, s29, 3"}
s_add_u32 s29, s29, s30
s_lshl_b32 s29, s29, 2
s_and_b32 s25, s3, 3
s_add_u32 s29, s29, s25
s_lshl_b32 s62, s29, 12
s_lshl_b32 s25, {MEM}, 9
s_add_u32 s62, s62, s25
s_add_u32 s62, s62, {PART}
{FADDR}
v_and_b32 v{X+3}, 31, v0
v_lshrrev_b32 v{X+4}, 5, v0
v_lshlrev_b32 v{X+2}, 4, v{X+3}
v_bfe_u32 v{X+10}, v0, 4, 1
v_lshlrev_b32 v{X+10}, 2, v{X+10}
v_lshl_add_u32 v{X+10}, v{T0}, 4, v{X+10}
v_lshl_add_u32 v{X+10}, v{X+4}, 3, v{X+10}
v_and_b32 v{X+31}, 1, v0
v_lshlrev_b32 v{X+31}, 4, v{X+31}
v_mul_u32_u24 v{X+14}, {4*RING}, v{X+4}
v_add_u32 v{X+2}, v{X+14}, v{X+2}
s_mul_i32 s25, s3, {CST}
v_add_u32 v{X+2}, s25, v{X+2}
v_and_b32 v{X+3}, 7, v0
v_lshlrev_b32 v{X+4}, 2, v{X+4}
v_xor_b32 v{X+4}, v{X+4}, v{X+3}
s_lshl_b32 s25, s3, 6
s_add_u32 s25, s25, {MLT}
v_lshl_add_u32 v{X+4}, v{X+4}, 3, s25
s_lshl_b32 s74, s3, 5
s_add_u32 s74, s74, s18
s_lshl_b32 s74, s74, 12
s_add_u32 s74, s74, {PART}
v_lshlrev_b32 v{X+7}, 4, v0
v_lshrrev_b32 v{X+9}, 2, v{T0}
v_lshl_add_u32 v{X+9}, v{T1}, 3, v{X+9}
v_lshlrev_b32 v{X+9}, 7, v{X+9}
v_and_b32 v{X+13}, 3, v0
v_lshl_add_u32 v{X+9}, v{X+13}, 3, v{X+9}
s_and_b32 s25, s3, 3
s_lshl_b32 s25, s25, 5
s_add_u32 s25, s25, {WO_LDS}
v_add_u32 v{X+9}, s25, v{X+9}
s_mul_i32 s25, s3, {OST}
s_add_u32 s25, s25, {O_LDS}
v_add_u32 v{X+10}, s25, v{X+10}
v_mul_u32_u24 v{X+12}, {OST}, v{T0}
v_lshl_add_u32 v{X+12}, v{T1}, 4, v{X+12}
v_add_u32 v{X+12}, {O_LDS}, v{X+12}
{COL1}
v_lshl_add_u32 v{X+21}, v{X+13}, 3, v{X+21}
s_lshl_b32 s25, s3, 8
s_add_u32 s25, s25, {WD_LDS}
v_lshl_add_u32 v{X+24}, v{T0}, 4, s25
{COL2}
s_lshl_b32 s29, s17, 17
s_add_u32 s29, s29, {CPA}
s_lshl_b32 s25, s18, 7
s_add_u32 s65, s29, s25
s_lshl_b32 s25, s3, 14
s_add_u32 s67, s65, s25
s_add_u32 s67, s67, {64 if COL else 4096}
s_add_u32 s63, s67, {CPB-CPA}
s_lshl_b32 s25, s3, 15
s_add_u32 s65, s65, s25
s_add_u32 s64, s65, {CPB-CPA}
v_lshlrev_b32 v{X+23}, 10, v{X+13}
v_lshl_add_u32 v{X+23}, v{T1}, 1, v{X+23}
v_lshrrev_b32 v{X+14}, 2, v0
v_lshlrev_b32 v{X+14}, 7, v{X+14}
v_lshl_add_u32 v{X+13}, v{X+13}, 4, v{X+14}
s_lshr_b32 s66, s18, 1
s_lshl_b32 s99, s66, 3
s_lshl_b32 s66, s66, 13
s_add_u32 s66, s66, s29
s_and_b32 s25, s18, 1
s_lshl_b32 s29, s25, {12 if COL else 6}
s_add_u32 s66, s66, s29
s_add_u32 s98, s66, {64 if COL else 4096 if OPT["bpa"] else 4096 + CPB - CPA}
s_lshl_b32 s25, s25, 12
s_add_u32 s99, s99, s25
s_lshl_b32 s25, s17, 7
s_add_u32 s99, s99, s25
s_waitcnt lgkmcnt(0)
v_lshrrev_b32 v{X+31}, v{X+31}, v{VNS}
""")
EF = OPT["ef"]; KL = OPT["kl"]
if KL:
    a(f"""
s_mov_b64 exec, 1
ds_add_rtn_u32 v{TE}, v{FL}, v{ONE} offset:16
s_mov_b64 exec, -1
s_waitcnt lgkmcnt(0)
v_readfirstlane_b32 s23, v{TE}
s_cmp_ge_u32 s23, {8 - KL}
s_cselect_b32 s25, 20, 0
v_add_u32 v{TKA}, s25, v{FL}
""")
a(f"s_mov_b32 s76, {SPIN*64}\ns_waitcnt vmcnt({4*NSU-4})\ns_mov_b32 s97, 0")
if EF: a("s_mov_b32 s101, 2")
ticket_rd()
kstep("s72", "s73", mid=ticket_use)
entry_rd()
if KL:
    a(f"""
s_cmp_lt_u32 s23, {8 - KL}
s_cbranch_scc1 L_loop2
s_waitcnt lgkmcnt(0)
v_mov_b32 v{TE}, 512
""")
a(f"""
L_loop:
s_cmp_eq_u32 s96, {"s101" if EF else 2}
s_cbranch_scc1 L_flush
L_loop2:
s_waitcnt vmcnt(4) lgkmcnt(0)
{"s_memrealtime s[48:49]" if LOG else ""}
L_eretry:
v_readfirstlane_b32 s23, v{TE}
s_mov_b32 m0, s72
s_cmp_eq_u32 s23, -1
s_cbranch_scc1 L_espin
s_bitcmp1_b32 s23, 9
s_cbranch_scc1 L_special
s_lshl_b32 s26, s23, 1
s_add_u32 s26, s26, s75
s_add_u32 s26, s26, s77
s_and_b32 s26, s26, 511
{trn("s26")}
s_lshl_b32 s26, s26, 12
s_add_u32 s26, s26, s21
s_and_b32 s25, s23, 256
s_lshl_b32 s29, s25, {13 if XB else 16}
s_add_u32 s26, s26, s29
s_bitcmp1_b32 s23, 15
s_cbranch_scc1 L_isv
""")
for i in range(4): a(f"buffer_load_dwordx4 v{KA+i}, s[4:7], s26 offen offset:{i*1024} nt lds")
a("s_branch L_isd\nL_isv:")
for i in range(4): a(f"buffer_load_dwordx4 v{VA+(i&1)}, s[8:11], s26 offen offset:{i*1024} nt lds")
a(f"""
L_isd:
{"s_memrealtime s[50:51]" if LOG else ""}
s_lshr_b32 s25, s25, 6
s_bfe_u32 s73, s23, 0x1000f
s_or_b32 s73, s73, s25
s_lshr_b32 s23, s23, 16
s_lshl_b32 s23, s23, 1
s_add_u32 s23, s23, s75
s_lshl_b32 s23, s23, 7
s_or_b32 s73, s73, s23
L_proc:
""")
ticket_rd()
a("s_bitcmp1_b32 s27, 0\ns_cbranch_scc1 L_pv")
kstep("s60", "s27", mid=ticket_use)
a("s_branch L_pd\nL_pv:")
vstep("s60", "s27", mid=ticket_use)
a.label("L_pd")
if LOG:
    a(f"""
s_add_u32 s25, s96, 8
s_and_b32 s50, s50, 0xfffffffc
s_and_b32 s51, s73, 1
s_or_b32 s50, s50, s51
s_bitcmp0_b32 s97, 0
s_cbranch_scc1 L_lg1
s_lshl_b64 exec, 1, s25
v_mov_b32 v{T0}, s48
v_mov_b32 v{T1}, s50
s_mov_b64 exec, -1
s_branch L_lg2
L_lg1:
s_cmp_eq_u32 s96, 0
s_cselect_b32 s54, s48, s54
s_cselect_b32 s55, s50, s55
s_mov_b32 s56, s48
s_mov_b32 s57, s50
L_lg2:
""")
entry_rd()
a(f"""
s_mov_b32 s25, s60
s_mov_b32 s60, s61
s_mov_b32 s61, s72
s_mov_b32 s72, s25
s_mov_b32 s27, s28
s_mov_b32 s28, s73
s_add_u32 s96, s96, 1
s_cmp_lt_u32 s97, 2
s_cbranch_scc1 L_loop
s_cmp_eq_u32 s97, 3
s_cbranch_scc1 L_final
L_flush0:
s_waitcnt vmcnt(0)
L_flush:
s_waitcnt vmcnt(8)
{"s_mov_b32 s101, -1" if EF else ""}
v_lshlrev_b32 v{PF}, 4, v0
v_add_u32 v{TA+1}, s72, v{PF}
s_lshl_b32 s73, s3, 7
""")
for u in range(NST):
    for i in range(4):
        r = ST0 + 16*u + 4*i
        a(f"ds_write_b128 v{TA+1}, v[{r}:{r+3}] offset:{i*1024}")
    a(f"s_xor_b32 s23, s73, {1024*(3+u) + 128*wxk(3+u) + (4 if 3+u >= 8 else 0)}")
    kstep("s72", "s23")
a(f"v_mov_b32 v{ZR}, 0")
for r in range(ST0, O+32): a(f"v_mov_b32 v{r}, 0")
if LOG:
    for n_, pl in enumerate([62, 64, 66, 94, 98, 100]): a(f"v_writelane_b32 v{KF}, s{pl}, {n_}")
    a(f"v_writelane_b32 v{KF}, s80, 6\nv_writelane_b32 v{KF}, s82, 7\nv_writelane_b32 v{KF}, s54, 8\nv_writelane_b32 v{KF}, s56, 9")
    a(f"v_mov_b32 v{KF+1}, 0\nv_writelane_b32 v{KF+1}, s55, 8\nv_writelane_b32 v{KF+1}, s57, 9\nv_cmp_gt_u32 vcc, 10, v0\ns_nop 1\nv_cndmask_b32 v{KF}, 0, v{KF}, vcc")
tail_addr()
if LOG: a(f"v_mov_b32 v{T0}, v{KF}\nv_mov_b32 v{T1}, v{KF+1}")
a(f"""
s_add_u32 s97, s97, 1
s_cmp_eq_u32 s97, 1
s_cbranch_scc1 L_loop2
L_final:
s_bitcmp1_b32 s27, 0
s_cbranch_scc1 L_finv
s_waitcnt vmcnt(0)
""")
kstep("s60", "s27")
a(f"""
s_branch L_fin2
L_espin:
""" + ("""
s_cmp_lg_u32 s97, 0
s_cbranch_scc1 L_espin2
s_cmp_eq_u32 s96, 0
s_cbranch_scc1 L_flush0
s_branch L_flush
L_espin2:
""" if EF else "") + f"""
s_sub_u32 s76, s76, 1
s_cmp_le_i32 s76, 0
s_cbranch_scc1 L_term
ds_read_b32 v{TE}, v{TA}
s_waitcnt lgkmcnt(0)
s_branch L_eretry
L_special:
s_bitcmp1_b32 s23, 0
s_cbranch_scc0 L_term
v_mov_b32 v{TKA}, {TK+16}
s_mov_b32 s78, {T2B}
""")
ticket_rd()
a("s_waitcnt lgkmcnt(0)")
ticket_use()
a(f"""
s_branch L_espin
L_term:
s_or_b32 s97, s97, 2
v_mov_b32 v{TKA}, {TK+20}
s_branch L_proc
""")
OOL_AT = len(a.L)
a.label("L_finv")
def fine3(k): pass
dmask("s27")
a(f"ds_read_b64 v[{PF}:{PF+1}], v{T2}\ns_waitcnt lgkmcnt(0)")
soft()
a.label("L_fin2")
if OPT["fine"] in (6, 7): a("s_mov_b32 s4, s80")
AA = STG + 32
CM = AA; AW = AA + 16
R = S; GV = X + 28
a(f"""
v_mov_b32 v{T+1}, v{L_}
v_permlane16_swap_b32 v{L_}, v{T+1}
v_add_f32 v{L_}, v{L_}, v{T+1}
v_mov_b32 v{T+1}, v{L_}
v_permlane32_swap_b32 v{L_}, v{T+1}
v_add_f32 v{L_}, v{L_}, v{T+1}
s_mov_b32 s76, {SPIN*16}
s_mov_b64 exec, 0xff
ds_write_b64 v{X+15}, v[{M_}:{L_}]
s_mov_b64 exec, -1
""")
def aw_rd(s_):
    a(f"ds_read_b64_tr_b16 v[{AW+4*s_}:{AW+4*s_+1}], v{X+9} offset:{s_*4096}")
    a(f"ds_read_b64_tr_b16 v[{AW+4*s_+2}:{AW+4*s_+3}], v{X+9} offset:{s_*4096+512}")
def misc_rd():
    if OPT["xm"]: a(f"ds_read_b32 v{T}, v{FL} offset:12")
    a(f"ds_read_b128 v[{X+16}:{X+19}], v{X+24}")
    if not OPT["lb"]:
        for s_ in range(4): aw_rd(s_)
    a(f"ds_read_b64 v[{GV}:{GV+1}], v{X+21} offset:64")
if not OPT["mlate"]:
    a(f"L_bw:\nds_read_b32 v{T}, v{FL} offset:12")
    misc_rd()
    a(f"s_waitcnt lgkmcnt(0)\nv_cmp_ne_u32 vcc, 1, v{T}")
    spin_tail("L_bw", "L_bwdone", sleep=2)
C = O + 16
def fine2(k):
    if OPT["fine"] == 2: a(f"s_waitcnt vmcnt(0)\ns_memtime s[{[4,6,8,10,48,50,54,56][k]}:{[4,6,8,10,48,50,54,56][k]+1}]\ns_waitcnt lgkmcnt(0)")
def fine(k):
    if OPT["fine"] == 1: a(f"s_memtime s[{[4,6,8,10,48,50,54,56][k]}:{[4,6,8,10,48,50,54,56][k]+1}]" + ("\ns_waitcnt lgkmcnt(0)" if k in (0, 3,) else ""))
for dt in range(8): a(f"v_add_u32 v{KF+2*dt}, s60, v{VR+dt}")
a(f"s_mov_b32 s76, {SPIN}\ns_waitcnt vmcnt(0)")
fine3(3)
fine(0)
if LOG: a(f"s_memrealtime s[48:49]\ns_add_u32 s25, s96, 8\ns_waitcnt lgkmcnt(0)\ns_lshl_b64 exec, 1, s25\nv_mov_b32 v{T0}, s48\ns_mov_b64 exec, -1")
a("s_bitcmp1_b32 s27, 0\ns_cbranch_scc0 L_fin3")
for dt in range(8): a(f"ds_read_b64_tr_b16 v[{KF+2*dt}:{KF+2*dt+1}], v{KF+2*dt}")
for dt in range(8):
    a(f"s_waitcnt lgkmcnt({7-dt})")
    pv(dt)
a.label("L_fin3")
stamp(2)
fine(1)
a("s_mov_b64 exec, s[70:71]")
for dt in range(8): a(f"ds_write_b128 v{X}, v[{O+4*dt}:{O+4*dt+3}] offset:{dt*64}")
a("s_mov_b64 exec, -1")
if OPT["tcw"]:
    a(f"""
s_cmp_lg_u32 s3, {OPT['fin']}
s_cbranch_scc1 L_ntc
v_lshlrev_b32 v{T}, 7, v0
{"s_mov_b32 exec_hi, 0" if OPT["tcw"] == 1 else ""}
buffer_load_dword v{AA+4}, v{T}, s[12:15], s66 offen {['', 'sc1', 'nt'][OPT['tpol']]}
s_mov_b64 exec, -1
L_ntc:
""")
a("s_waitcnt lgkmcnt(0)")
fine(2)
a("s_barrier")
fine(3)
a(f"ds_read_b64 v[{CM}:{CM+1}], v{X+4}")
for k in range(4):
    a(f"ds_read_b128 v[{C+4*k}:{C+4*k+3}], v{X+2} offset:{k*RING}")
def red8(r, op, src=None):
    for m in ("quad_perm:[1,0,3,2]", "quad_perm:[2,3,0,1]", "row_half_mirror"):
        q = r if src is None else src
        a(f"{op}_dpp v{r}, v{q}, v{q} {m} row_mask:0xf bank_mask:0xf")
        src = None
a("s_waitcnt lgkmcnt(4)")
red8(T, "v_max_f32", CM)
a(f"""
v_sub_f32 v{CM}, v{CM}, v{T}
v_mul_f32 v{CM}, s59, v{CM}
v_exp_f32 v{CM}, v{CM}
v_mul_f32 v{T+1}, v{CM}, v{CM+1}
""")
def ofma(k):
    a(f"s_waitcnt lgkmcnt({3-k})")
    for j in range(4): a(f"v_{'mul' if k == 0 else 'fmac'}_f32_dpp v{R+j}, v{CM}, v{C+4*k+j} row_newbcast:{k} row_mask:0xf bank_mask:0xf")
red8(T+1, "v_add_f32")
a(f"""
v_max_f32 v{T+1}, {f32(1e-30)}, v{T+1}
v_log_f32 v{T+2}, v{T+1}
v_rcp_f32 v{T+3}, v{T+1}
""")
ofma(0)
a(f"""
v_fma_f32 v{FLG}, v{T}, s59, v{T+2}
v_perm_b32 v{FLG}, v{FLG}, v{VNS}, s{SEL}
""")
fine2(0)
def flag_st():
    a(f"""
s_mov_b64 exec, {hex((1 << (FU//8)) - 1) if FU else [0xff, 1, 0x11, 0x55, 1][OPT['fone']]}
buffer_store_dwordx2 v[{FLG}:{FLG+1}], v{FSA}, s[12:15], s94 offen sc1
s_mov_b64 exec, -1
""")
if not OPT["fo"]: flag_st()
fine2(1)
for k in range(1, 4): ofma(k)
fine(4)
a(f"""
v_permlane32_swap_b32 v{R}, v{R+2}
v_permlane32_swap_b32 v{R+1}, v{R+3}
v_add_f32 v{R}, v{R}, v{R+2}
v_add_f32 v{R+1}, v{R+1}, v{R+3}
v_mul_f32 v{R}, v{R}, v{T+3}
v_mul_f32 v{R+1}, v{R+1}, v{T+3}
v_perm_b32 v{R}, v{R}, v{X+31}, s{SEL}
v_perm_b32 v{R+1}, v{R+1}, v{X+31}, s{SEL+1}
""")
if OPT["px4"]:
    a(f"""
v_mov_b32_dpp v{R+2}, v{R} quad_perm:[1,1,3,3] row_mask:0xf bank_mask:0xf
v_mov_b32_dpp v{R+3}, v{R+1} quad_perm:[1,1,3,3] row_mask:0xf bank_mask:0xf
s_mov_b32 exec_lo, 0x55555555
s_mov_b32 exec_hi, 0x55555555
buffer_store_dwordx4 v[{R}:{R+3}], v{X+1}, s[12:15], s62 offen sc1
s_mov_b64 exec, -1
""")
else:
    a(f"buffer_store_dwordx2 v[{R}:{R+1}], v{X+1}, s[12:15], s62 offen sc1")
if OPT["fo"]: flag_st()
if OPT["mlate"]:
    if OPT["stamps"]: stamp(3); a("s_waitcnt lgkmcnt(0)")
    misc_rd()
    a(f"s_waitcnt lgkmcnt({1 if OPT['lb'] else 9})")
if OPT["hbn"] != 1: a("s_mov_b64 exec, 0xffff")
if not OPT["mlate"]: stamp(3)
fine(5)
fine2(2)
def st2(lbl, ins, extra=""):
    a(f"""
s_cmp_eq_u32 s63, 1
s_cbranch_scc1 {lbl}n
{ins} sc1
s_branch {lbl}d
{lbl}n:
{ins}{" nt" if OPT["snt"] & (1 if lbl == "L_bs" else 2) else ""}
{extra}
{lbl}d:
""")
if OPT["xm"]:
    a(f"v_readfirstlane_b32 s63, v{T}")
    st2("L_bs", f"buffer_store_dwordx4 v[{X+16}:{X+19}], v{X+25}, s[12:15], s67 offen", f"""
v_not_b32 v{T}, v{VNS}
v_not_b32 v{T+1}, v{VNS}
v_not_b32 v{T+2}, v{VNS}
v_not_b32 v{T+3}, v{VNS}
s_sub_u32 s25, s67, 4096
buffer_store_dwordx4 v[{T}:{T+3}], v{X+25}, s[12:15], s25 offen
""" if OPT["prw"] else "")
elif OPT["hbn"] != 1:
    if OPT["bpa"]: a(f"buffer_store_dwordx4 v[{X+16}:{X+19}], v{X+25}, s[12:15], s67 offen")
    if not OPT["hbn"]: a(f"buffer_store_dwordx4 v[{X+16}:{X+19}], v{X+25}, s[12:15], s63 offen sc1")
    fine2(3)
    if OPT["prw"]:
        a(f"""
v_not_b32 v{T}, v{VNS}
v_not_b32 v{T+1}, v{VNS}
v_not_b32 v{T+2}, v{VNS}
v_not_b32 v{T+3}, v{VNS}
s_sub_u32 s25, s67, 4096
buffer_store_dwordx4 v[{T}:{T+3}], v{X+25}, s[12:15], s25 offen
""")
fine2(4)
BB = AA + 8
def bpoll():
    for k in range(2):
        a(f"buffer_load_dwordx4 v[{BB+4*k}:{BB+4*k+3}], v{X+13}, s[12:15], s98 offen offset:{2048*k} sc1")
def bp_early():
    a(f"s_cmp_lg_u32 s3, {OPT['fin']}\ns_cbranch_scc1 L_nobp0\ns_mov_b64 exec, -1")
    bpoll()
    a.label("L_nobp0")
if OPT["bpe"] >= 2: bp_early()
PA = O
WT = Q; FS = Q + 4; P = Q + 8; TT = KF
FPOLL = {0: f"""
v_mov_b32 v{FS}, 0
v_mov_b32 v{FS+1}, 0
buffer_atomic_or_x2 v[{FS}:{FS+1}], v{FPA}, s[12:15], s95 offen sc0 sc1
""", 1: f"buffer_load_dwordx2 v[{FS}:{FS+1}], v{FPA}, s[12:15], s95 offen sc1",
2: f"""
v_mov_b32 v{FS}, v{VNS}
v_mov_b32 v{FS+1}, 0
v_mov_b32 v{FS+2}, v{VNS}
v_mov_b32 v{FS+3}, 0
buffer_atomic_cmpswap_x2 v[{FS}:{FS+3}], v{FPA}, s[12:15], s95 offen sc0 sc1
""", 3: f"buffer_load_dwordx2 v[{FS}:{FS+1}], v{FPA}, s[12:15], s95 offen sc0 sc1 nt",
4: f"""
v_mov_b32 v{FS}, 0
v_mov_b32 v{FS+1}, 0
buffer_atomic_umax_x2 v[{FS}:{FS+1}], v{FPA}, s[12:15], s95 offen sc0 sc1
""", 5: f"""
v_mov_b32 v{FS}, 0
v_mov_b32 v{FS+1}, 0
buffer_atomic_or_x2 v[{FS}:{FS+1}], v{FPA}, s[12:15], s95 offen sc0 sc1 nt
"""}[OPT["fpol"]]
def pload(k):
    if OPT["nopart"] == 2: a(f"s_and_b32 exec_lo, exec_lo, 0xffff\ns_and_b32 exec_hi, exec_hi, 0xffff")
    if OPT["nopart"] == 3: a(f"s_and_b32 exec_lo, exec_lo, 0xff\ns_and_b32 exec_hi, exec_hi, 0xff")
    if OPT["nopart"] != 1: a(f"buffer_load_dwordx4 v[{PA+4*k}:{PA+4*k+3}], v{X+7}, s[12:15], s74 offen offset:{1024*k} sc1")
def ploads(m):
    for k in range(4):
        a(f"""
s_bfe_i32 exec_lo, {m}, {hex(0x10000 + 2*k)}
s_bfe_i32 exec_hi, {m}, {hex(0x10000 + 2*k + 1)}
""")
        pload(k)
FCHK = f"""
v_xor_b32 v{T}, v{FS}, v{VNS}
v_and_b32 v{T}, 0xff, v{T}
v_xor_b32 v{T+1}, v{FS+1}, v{VNS}
v_or_b32 v{T}, v{T}, v{T+1}
v_cmp_eq_u32 vcc, 0, v{T}
"""
a(f"""
s_movk_i32 s22, 0xff
s_mov_b32 s23, 0
L_f1:
s_mov_b64 exec, s[22:23]
{FPOLL}
s_sub_u32 s76, s76, 1
s_waitcnt vmcnt(0)
{FCHK}
s_cbranch_vccz L_f1n
s_mov_b32 s25, vcc_lo
""")
if OPT["inc"]: ploads("s25")
a(f"""
s_andn2_b32 s22, s22, s25
s_cbranch_scc0 L_f1done
L_f1n:
s_cmp_eq_u32 s76, 0
s_cbranch_scc1 L_f1done
{"s_sleep %d" % OPT['f1slp'] if OPT['f1slp'] else ""}
""")
if OPT["spec"]:
    a(f"""
s_bcnt1_i32_b32 s25, s22
s_cmp_gt_u32 s25, {OPT['spec']}
s_cbranch_scc1 L_f1
L_f2:
s_mov_b64 exec, s[22:23]
{FPOLL}
""")
    ploads("s22")
    a(f"""
s_mov_b64 exec, s[22:23]
s_sub_u32 s76, s76, 1
s_waitcnt vmcnt(0)
{FCHK}
s_andn2_b32 s22, s22, vcc_lo
s_cbranch_scc0 L_f1done
s_cmp_eq_u32 s76, 0
s_cbranch_scc1 L_f1done
{"s_sleep %d" % OPT['f2slp'] if OPT['f2slp'] else ""}
s_branch L_f2
""")
if OPT["f1th"]:
    a(f"""
s_bcnt1_i32_b32 s25, s22
s_cmp_le_u32 s25, {OPT['f1th']}
s_cbranch_scc1 L_f1
s_sleep {OPT['f1sl2']}
""")
a(f"""
s_branch L_f1
L_f1done:
s_mov_b64 exec, -1
""")
if not OPT["inc"]:
    for k in range(4): pload(k)
if OPT["bpe"] == 1: bp_early()
if OPT["stamps"]: a("s_memrealtime s[100:101]")
red8(T, "v_max_f32", FS)
a(f"""
v_sub_f32 v{FS}, v{FS}, v{T}
v_exp_f32 v{FS}, v{FS}
""")
red8(T, "v_add_f32", FS)
a(f"""
v_rcp_f32 v{T}, v{T}
v_mul_f32 v{FS}, v{FS}, v{T}
""")
for x in range(8): a(f"v_readlane_b32 s{32+x}, v{FS}, {x}")
for k in range(4): a(f"v_mov_b32 v{WT+k}, s{32+2*k+1}")
a("s_mov_b32 exec_hi, 0")
for k in range(4): a(f"v_mov_b32 v{WT+k}, s{32+2*k}")
def tag_chk(grans, t):
    for n_, r in enumerate(grans):
        a(f"v_perm_b32 v{t+2*n_}, v{r+1}, v{r}, s{SEL+4}\nv_perm_b32 v{t+2*n_+1}, v{r+3}, v{r+2}, s{SEL+5}")
    for n_, r in enumerate(grans):
        a(f"v_xor_b32 v{t+2*n_}, v{t+2*n_}, v{VNS}")
    for n_, r in enumerate(grans):
        a(f"v_xor_b32 v{t+2*n_}, v{t+2*n_}, v{t+2*n_+1}")
    if len(grans) == 4:
        a(f"v_or3_b32 v{t}, v{t}, v{t+2}, v{t+4}\nv_or_b32 v{t}, v{t}, v{t+6}")
    else:
        a(f"v_or_b32 v{t}, v{t}, v{t+2}")
    a(f"v_cmp_ne_u32 vcc, 0, v{t}")
a.label("L_pchk")
a("s_mov_b64 exec, -1\ns_waitcnt vmcnt(0)")
for k in range(4):
    for j in range(4): a(f"v_{'mul' if k == 0 else 'fmac'}_f32 v{P+j}, v{WT+k}, v{PA+4*k+j}")
a(f"""
v_permlane32_swap_b32 v{P}, v{P+2}
v_permlane32_swap_b32 v{P+1}, v{P+3}
v_add_f32 v{P}, v{P}, v{P+2}
v_add_f32 v{P+1}, v{P+1}, v{P+3}
v_cvt_pk_bf16_f32 v{P}, v{P}, v{P+1}
ds_write_b32 v{X+10}, v{P}
""")
tag_chk([PA+4*k for k in range(4)], TT)
if not OPT["nopart"]: a("s_cbranch_vccnz L_prep")
a.label("L_pdone")
stamp(4)
BB = AA + 8
def bpoll():
    for k in range(2):
        a(f"buffer_load_dwordx4 v[{BB+4*k}:{BB+4*k+3}], v{X+13}, s[12:15], s98 offen offset:{2048*k} sc1")
a(f"s_cmp_lg_u32 s3, {OPT['fin']}\ns_cbranch_scc1 L_nobp")
if not OPT["bdel"] and OPT["bpe"] in (0, 3): bpoll()
a(f"""
L_nobp:
s_cmp_gt_u32 s3, 3
s_waitcnt lgkmcnt(0)
s_barrier
s_cbranch_scc1 L_nomm
""")
for s_ in range(4):
    a(f"ds_read_b128 v[{PA+4*s_}:{PA+4*s_+3}], v{X+12} offset:{64*s_}")
    if OPT["lb"]: aw_rd(s_)
D_ = PA + 16
for s_ in range(4):
    a(f"""
s_waitcnt lgkmcnt({(3-s_)*(3 if OPT["lb"] else 1)})
v_mfma_f32_16x16x32_bf16 v[{D_}:{D_+3}], v[{AW+4*s_}:{AW+4*s_+3}], v[{PA+4*s_}:{PA+4*s_+3}], {"0" if s_ == 0 else f"v[{D_}:{D_+3}]"}
""")
a("s_mov_b64 exec, s[70:71]")
tag_ins(D_, VNS, SEL)
if OPT["xm"]:
    st2("L_as", f"buffer_store_dwordx4 v[{D_}:{D_+3}], v{X+11}, s[12:15], s65 offen")
    a("s_mov_b64 exec, -1")
else:
    a(f"""
{"" if OPT["noa"] else f"buffer_store_dwordx4 v[{D_}:{D_+3}], v{X+11}, s[12:15], s65 offen"}
{"" if OPT["nob"] else f"buffer_store_dwordx4 v[{D_}:{D_+3}], v{X+11}, s[12:15], s64 offen sc1"}
s_mov_b64 exec, -1
""")
a.label("L_nomm")
stamp(5)
if OPT["hbn"]:
    a(f"""
s_cmp_eq_u32 s3, {OPT['fin']}
s_cbranch_scc1 L_nofar
s_mov_b64 exec, 0xffff
buffer_store_dwordx4 v[{X+16}:{X+19}], v{X+25}, s[12:15], s63 offen sc1
s_cmp_lg_u32 s3, {OPT['fin']+1}
s_cbranch_scc1 L_nofar
ds_read_b128 v[{T}:{T+3}], v{X+24} offset:{(-256) & 0xffff}
""" if False else f"""
s_cmp_eq_u32 s3, {OPT['fin']}
s_cbranch_scc1 L_nofar
s_sleep 4
s_mov_b64 exec, 0xffff
buffer_store_dwordx4 v[{X+16}:{X+19}], v{X+25}, s[12:15], s63 offen sc1
s_cmp_lg_u32 s3, {OPT['fin']-1}
s_cbranch_scc1 L_nofar
ds_read_b128 v[{KF}:{KF+3}], v{X+24} offset:256
s_add_u32 s63, s63, 16384
s_waitcnt lgkmcnt(0)
buffer_store_dwordx4 v[{KF}:{KF+3}], v{X+25}, s[12:15], s63 offen sc1
L_nofar:
s_mov_b64 exec, -1
""")
def wstamps():
    if LOG:
        a(f"""
s_lshl_b32 s29, s16, 3
s_add_u32 s29, s29, s3
s_lshl_b32 s29, s29, 9
s_add_u32 s29, s29, 0x500000
v_lshlrev_b32 v{T}, 2, v0
buffer_store_dword v{T0}, v{T}, s[12:15], s29 offen
buffer_store_dword v{T1}, v{T}, s[12:15], s29 offen offset:256
""")
    a(f"""
s_lshl_b32 s29, s16, 3
s_add_u32 s29, s29, s3
s_lshl_b32 s29, s29, 4
s_add_u32 s29, s29, {STAMP+0x10000}
s_add_u32 s96, s96, {2+NST}
s_waitcnt lgkmcnt(0)
v_mov_b32 v{T}, s84
v_mov_b32 v{T+1}, s85
v_mov_b32 v{T+2}, s82
v_mov_b32 v{T+3}, s96
s_mov_b64 exec, 1
buffer_store_dwordx4 v[{T}:{T+3}], v{ZR}, s[12:15], s29 offen
s_add_u32 s29, s29, 0x8000
s_nop 4
v_mov_b32 v{T}, s86
v_mov_b32 v{T+1}, s88
v_mov_b32 v{T+2}, s90
v_mov_b32 v{T+3}, s77
buffer_store_dwordx4 v[{T}:{T+3}], v{ZR}, s[12:15], s29 offen
s_add_u32 s29, s29, 0x8000
s_nop 4
v_mov_b32 v{T}, s100
buffer_store_dword v{T}, v{ZR}, s[12:15], s29 offen
s_add_u32 s29, s29, 0x8000
s_nop 4
v_mov_b32 v{T}, s4
v_mov_b32 v{T+1}, s6
v_mov_b32 v{T+2}, s8
v_mov_b32 v{T+3}, s10
buffer_store_dwordx4 v[{T}:{T+3}], v{ZR}, s[12:15], s29 offen
s_add_u32 s29, s29, 0x8000
s_nop 4
v_mov_b32 v{T}, s48
v_mov_b32 v{T+1}, s50
v_mov_b32 v{T+2}, s54
v_mov_b32 v{T+3}, s56
buffer_store_dwordx4 v[{T}:{T+3}], v{ZR}, s[12:15], s29 offen
s_mov_b64 exec, -1
s_nop 4
""")
if OPT["stamps"]:
    a(f"s_mov_b32 s77, s76\ns_cmp_eq_u32 s3, {OPT['fin']}\ns_cbranch_scc1 L_fin")
    wstamps()
    a("s_endpgm\nL_fin:")
else:
    a(f"s_cmp_lg_u32 s3, {OPT['fin']}\ns_cbranch_scc1 L_end")
a(f"""
s_mov_b32 s76, {SPIN}
s_movk_i32 s23, {OPT['na']}
""")
srd(60, P_OUT, 8192)
A3 = KF + 8; FB = KF + 12
def red(d, s0):
    for r in range(4): a(f"v_add_f32 v{d+r}, v{s0+r}, v{s0+4+r}")
    a(f"""
v_permlane32_swap_b32 v{d}, v{d+2}
v_permlane32_swap_b32 v{d+1}, v{d+3}
v_add_f32 v{d}, v{d}, v{d+2}
v_add_f32 v{d+1}, v{d+1}, v{d+3}
v_permlane16_swap_b32 v{d}, v{d+1}
v_add_f32 v{d}, v{d}, v{d+1}
v_add_f32_dpp v{d}, v{d}, v{d} row_ror:8 row_mask:0xf bank_mask:0xf
v_add_f32_dpp v{d}, v{d}, v{d} row_ror:4 row_mask:0xf bank_mask:0xf
""")
def gate(d, g):
    a(f"""
v_cvt_pk_bf16_f32 v{d}, v{d}, v{d}
v_lshlrev_b32 v{d}, 16, v{d}
v_mul_f32 v{d}, v{g}, v{d}
v_cvt_pk_bf16_f32 v{d}, v{d}, v{d}
v_lshlrev_b32 v{d}, 16, v{d}
""")
def far(regs):
    if OPT["xm"]:
        a("s_sub_u32 s76, s76, 1"); return
    a(f"s_sub_u32 s23, s23, 1\ns_cselect_b32 s25, {CPB-CPA}, 0")
    for r in regs: a(f"s_add_u32 s{r}, s{r}, s25")
    a("s_sub_u32 s76, s76, 1")
if OPT["bdel"]:
    backoff(OPT["bdel"]); bpoll()
a.label("L_bchk")
a("s_mov_b64 exec, -1")
far([66, 98] if OPT["bpa"] else [66])
a("s_waitcnt vmcnt(0)")
tag_chk([BB, BB+4], TT)
a(f"""
s_cbranch_vccz L_bdone
s_cmp_eq_u32 s76, 0
s_cbranch_scc1 L_bdone
s_mov_b64 exec, vcc
s_sleep {OPT['bsl']}
""")
bpoll()
a("s_branch L_bchk")
a.label("L_bdone")
def fine4(k):
    if OPT["fine"] == 4: a(f"s_memrealtime s[{[4,6,8,10,48,50,54,56][k]}:{[4,6,8,10,48,50,54,56][k]+1}]")
fine4(0)
red(FB, BB); gate(FB, GV+1)
fine4(1)
if OPT["fine"] == 4: a("s_mov_b32 s8, 0")
if OPT["asl0"]: a(f"s_sleep {OPT['asl0']}")
a.label("L_apoll")
for k in range(2):
    a(f"buffer_load_dwordx4 v[{AA+4*k}:{AA+4*k+3}], v{X+13}, s[12:15], s66 offen offset:{2048*k} sc1")
a("s_mov_b64 exec, -1")
far([66])
a("s_waitcnt vmcnt(0)")
if OPT["fine"] == 4: a("s_cmp_lg_u32 s8, 0\ns_cbranch_scc1 L_fx\ns_memrealtime s[8:9]\ns_waitcnt lgkmcnt(0)\nL_fx:")
tag_chk([AA, AA+4], TT)
a(f"""
s_cbranch_vccz L_adone
s_mov_b64 exec, vcc
{"s_sleep %d" % OPT["aslp"] if OPT["aslp"] else ""}
s_cmp_lg_u32 s76, 0
s_cbranch_scc1 L_apoll
s_mov_b64 exec, -1
""")
a.label("L_adone")
fine4(3)
red(A3, AA); gate(A3, GV)
a(f"""
v_add_f32 v{A3}, v{A3}, v{FB}
v_cvt_pk_bf16_f32 v{A3}, v{A3}, v{A3}
""")
a(f"""
s_mov_b32 exec_lo, 0x000f000f
s_mov_b32 exec_hi, 0x000f000f
buffer_store_short v{A3}, v{X+23}, s[60:63], s99 offen {['', 'sc1', 'nt', 'sc0 sc1'][OPT['opol']]}
s_mov_b64 exec, -1
""")
if OPT["stamps"]:
    stamp(6)
    wstamps()
    a(f"s_lshl_b32 s29, s16, 6\ns_add_u32 s29, s29, {STAMP}\ns_waitcnt lgkmcnt(0)")
    for k in range(7):
        a(f"v_mov_b32 v{T}, s{80+2*k}\nv_mov_b32 v{T+1}, s{81+2*k}\nbuffer_store_dwordx2 v[{T}:{T+1}], v{ZR}, s[12:15], s29 offen offset:{8*k}\ns_nop 1")
    a(f"v_mov_b32 v{T}, s76\nbuffer_store_dword v{T}, v{ZR}, s[12:15], s29 offen offset:56")
a("s_endpgm")
for t_ in ool: a(t_)
a.label("L_prep")
a(f"""
s_sub_u32 s76, s76, {256 if OPT["stamps"] else 1}
s_cmp_le_i32 s76, 0
s_cbranch_scc1 L_pdone
s_mov_b64 exec, vcc
""")
for k in range(4):
    a(f"buffer_load_dwordx4 v[{PA+4*k}:{PA+4*k+3}], v{X+7}, s[12:15], s74 offen offset:{1024*k} sc1")
a("s_branch L_pchk")
a.label("L_end")
a("s_endpgm")
a.L += ['.section .rodata,"a"', ".p2align 6", f".amdhsa_kernel {NAME}_kernel",
        "  .amdhsa_next_free_vgpr 168", "  .amdhsa_next_free_sgpr 102", "  .amdhsa_accum_offset 168",
        "  .amdhsa_group_segment_fixed_size 0", "  .amdhsa_kernarg_size 104", "  .amdhsa_user_sgpr_count 2",
        "  .amdhsa_user_sgpr_kernarg_segment_ptr 1", "  .amdhsa_system_sgpr_workgroup_id_x 1", ".end_amdhsa_kernel"]
txt, n = a.text()
open(out, "w").write(txt)
print(f"wrote {out}: {len(txt.splitlines())} lines, {n} nops inserted", file=sys.stderr)
```

```python
import sys, struct
from asmlib import Asm
out = sys.argv[1]
OPT = dict(stamps=0, Wp=8, npre=4, hdr=1, stag=10, hslp=32, qslp=8, nse=29, lead=8, t1=448, t2=384, dslp=2,
           np2=1, np3=2, flit=3, slowp=8, bprio=3, maxf=4, tcha=0, tchb=0, asl=36, tpol=1, wqnt=1, ffnt=1, hd=200, qd=64, prew=0, coal=1, pgate=0, bpat=2, slowth=16, fastp=0, bsl=1, adel=90, perm=0, gx=0, noff=252, sperm=4, eager=1024, f1=0, f2=0, f1slp=2, f2slp=1, f2del=0, fmax=4096, f3=0, rsh=2, fdel=170, f3slp=4, lead2=8, t3=420, fw=1, aat=0, aslp=0, apol=1, na=160, xrot=0, asl0=0, bpa=1, fin=4, nob=0, tb=1, prw=0, fine=0, inc=1, f1th=0, f1sl2=16, hbn=0, fo=0, fst=64, fpol=2, fone=4, nopart=0, noa=0, bdel=0, fful=0, mlate=1, fgo=0, px4=1, xm=1, xforce=0, bpe=3, tcw=0, tc0=0, lay=0, tcd=0, col=1, kill=1, t4=400, kill2=0, t5=460, lead3=8, kill0=1, k0at=0, rot=0, r1=104, r2=256, swm=0, ms=-1, mc=0, mr=0, vo=0, numa=0, late=1, tb1=440, tslp=4, lb=2, skip=0, tp=0, tk=0, leadk=12, leadf=14, tf=480, kv=10, cap1=84, nst=5, jit=0, tk2=400, tr=0, tsh=0, il=0, wdel=12, spec=0, snt=0, opol=0, one=1, pd=290, pc=40, pe=5, pslp=2, pw=0, pws=0, fb=1, fbl=84, fbs=3, fbc=40, fb0=12, fbp=8, fbg=4, fbm=40, pp=0, pp0=2, pps=16, ppo=0, nm=0, wx=0, t2m=0, xb=0, w8=0, w8p=1, w8s=0, w8d=0, w8n=8, dl=0, dlb=0, dlw=1, ad=0, pt=0, st=0, pdv=0, pdw=61, fbn=0, bd0=0, bs0=0, bs1=0, ef=0, kl=0, rm=0, gu=0, xl=0, gsl=0, gd=0, gr=0, xf=1, gt=0, gp=150, fk=0, fq=0, ks=0, q1d=16, q1s=4, f1d=64, f1s=16, bt=0, kl2=0, fm=0, dw=0, dwp=1, dr=0, hp=0, l2p=0, tsec=2, tw=0, tx4=0, tnt=0, fz=0, ql=0, hl=0, kpl=0, fh=0, hr=0, fp=0, fps=6, fp0=0, rv=0, rvt=0, rvs=4, sf=0, pbp=1, wl=0, eb=0, ebw=0, ebd=0, psm=0, ph=0, ply=0, spo=0, dup=0, dupl=0, ps=0, bw=0, bwd=0, bws=8, bwo=0, bwt=0, bwp=3, bwn=32)
for a_ in sys.argv[2:]:
    k, v = a_.split("="); assert k in OPT, k; OPT[k] = int(v)
if OPT["r1"] or OPT["r2"]: OPT["rot"] = -1
Wp = OPT["Wp"]; NPRE = OPT["npre"]
HR = OPT["hr"]
if HR: OPT["xl"] = 1; OPT["xf"] = 1; OPT["ql"] = 1; OPT["hl"] = 1; OPT["l2p"] = 0
TB = 0x1C000
KQ = OPT["ks"] & 1; KF_ = OPT["ks"] & 2
QP, FP = 0x80000, 0x300000
GU = OPT["gu"]; XL = OPT["xl"]
XB = OPT["xb"]; MEM = "s19" if XB else "s17"
NAME = "gated_mix__gqa_block_cached__geglu_ffn__decode"
def f32(x): return "0x%08x" % struct.unpack("<I", struct.pack("<f", x))[0]
LOG2E = 1.4426950408889634
SCALE = 128 ** -0.5
QG, HG, ML, BP, PART, AP, STAMP, CNT = 0x0, 0x20000, 0x40000, 0x80000, 0x100000, 0x200000, 0x400000, 0x480000
F1, F2 = 0x60000, 0x70000
FG, CPA, CPB = 0x40000, 0x200000, 0x300000
if OPT['lay']:
    CNT, CPA, PART = 0x80000, 0x100000, 0x200000
OST = 272
XID = 0x60000
CST = 528
CSTR = 4096 + 256
WS_BYTES = 0x500000
FST = OPT['fst']
LOG = OPT['fine'] == 8
LG9 = OPT['fine'] == 9
if LOG or LG9: WS_BYTES = 0x600000
if OPT['fful']:
    FG = 0x500000; WS_BYTES = FG + 2048*OPT['fful']
elif FST > 64:
    FG = 0x500000; WS_BYTES = FG + 2048*FST
R1 = 0x20000
WO_LDS = R1
R2 = 0x24000
Q_LDS = R2
MISC = R2 + 0x800
MLT = MISC + 0x100
WTL = MISC + 0x300
BW = OPT["bw"]
O_LDS = R2 + 0x1000
CH = R2 + 0x1400
WD_LDS = R2 + 0x2000
LDS_BYTES = 0x28000
NU = 1024
NSE = OPT["nse"]; LEAD = OPT["lead"]
TK = MISC + 128
K0 = OPT["kill0"]
NUMA = 0
RING = 12288
SB = 8*RING
NSLOT = 192
SENT = 0x7F817F81
ONET = OPT['one'] and not OPT['tk']
PW = OPT['pw']
PD = OPT['pd'] or PW
T1B = CH; T2B = CH + (4*(NSE + K0) if ONET else 1024)
VB = 0x8000
KN = OPT["kill"]; KV = OPT["kv"]
NST = OPT["nst"]; NSU = 3 + NST
SE = 4*NSU
assert KV <= SE + NSE and SE + NSE <= 63
K0TXT = f"""
v_subrev_u32 v5, {K0*0x10001}, v4
v_cmp_le_u32 vcc, {OPT['k0at']}, v0
v_mov_b32 v6, {514 if OPT['rv'] & 2 else 512}
v_cndmask_b32 v4, v4, v6, vcc
v_cmp_le_u32 vcc, {OPT['k0at'] + K0}, v0
v_cndmask_b32 v4, v4, v5, vcc
""" if K0 else ""
CBASE = 8
DYN0 = 8*SE + 8*NSE
SPIN = 1 << 16
a = Asm()
hdr = open("cdna_kernels/%s.s.ref" % NAME).read().split("; Override launch")[0] if OPT["hdr"] else ""
a.L += [l for l in hdr.rstrip().split("\n")] if hdr else []
a.L.append(f"; @launch grid=(256,1,1) block=(640,1,1) lds={LDS_BYTES}")
a.L += ['.amdgcn_target "amdgcn-amd-amdhsa--gfx950"', ".text", f".globl {NAME}_kernel", ".p2align 8",
        f".type {NAME}_kernel,@function", f"{NAME}_kernel:"]

def srd(d, ptr, nbytes):
    a(f"s_mov_b32 s{d}, s{ptr}\ns_mov_b32 s{d+1}, s{ptr+1}\ns_mov_b32 s{d+2}, {hex(nbytes)}\ns_mov_b32 s{d+3}, 0x00020000")
P_X, P_K, P_V, P_WQ, P_WO, P_BX, P_WG, P_WU, P_WD, P_GW, P_OUT, P_DBG, P_WS = [32 + 2*i for i in range(13)]
def stamp(idx):
    if OPT["stamps"]:
        a(f"s_memrealtime s[{80+2*idx}:{81+2*idx}]")
def any_eq(regs, val, neg=False):
    op = "v_cmp_ne_u32" if neg else "v_cmp_eq_u32"
    a(f"{op} vcc, {val}, v{regs[0]}")
    for r in regs[1:]:
        a(f"{op} s[78:79], {val}, v{r}\ns_or_b64 vcc, vcc, s[78:79]")
def spin_tail(loop, done, sleep=0):
    a(f"""
s_sub_u32 s76, s76, 1
s_cmp_eq_u32 s76, 0
s_cbranch_scc1 {done}
""")
    if sleep:
        a(f"s_cmp_eq_u64 vcc, 0\ns_cbranch_scc1 {done}\ns_sleep {sleep}\ns_branch {loop}")
    else:
        a(f"s_cmp_lg_u64 vcc, 0\ns_cbranch_scc1 {loop}")
    a.label(done)
def xsum(regs, tmps, ror, op="v_add_f32", swaps=("v_permlane16_swap_b32", "v_permlane32_swap_b32")):
    for k in ror:
        for r in regs: a(f"{op}_dpp v{r}, v{r}, v{r} row_ror:{k} row_mask:0xf bank_mask:0xf")
    for sw in swaps:
        for r, t in zip(regs, tmps): a(f"v_mov_b32 v{t}, v{r}")
        for r, t in zip(regs, tmps): a(f"{sw} v{r}, v{t}")
        for r, t in zip(regs, tmps): a(f"{op} v{r}, v{r}, v{t}")
SEL = 42
def tag_consts(base):
    for j in range(4): a(f"s_mov_b32 s{base+j}, {hex(0x07060500 | j)}")
    a(f"s_mov_b32 s{base+4}, 0x0c0c0400\ns_mov_b32 s{base+5}, 0x04000c0c")
def tag_ins(r, vn, base):
    for j in range(4): a(f"v_perm_b32 v{r+j}, v{r+j}, v{vn}, s{base+j}")
def tag_bad(grans, vn, base, acc, t0, t1):
    for n_, r in enumerate(grans):
        a(f"v_perm_b32 v{t0}, v{r+1}, v{r}, s{base+4}\nv_perm_b32 v{t1}, v{r+3}, v{r+2}, s{base+5}")
        if n_ == 0:
            a(f"v_or_b32 v{acc}, v{t0}, v{t1}\nv_xor_b32 v{acc}, v{acc}, v{vn}")
        else:
            a(f"v_or_b32 v{t0}, v{t0}, v{t1}\nv_xor_b32 v{t0}, v{t0}, v{vn}\nv_or_b32 v{acc}, v{acc}, v{t0}")
def hstamps(first, n):
    if OPT["stamps"]:
        a(f"s_mov_b64 exec, -1\ns_lshl_b32 s29, s16, 7\ns_add_u32 s29, s29, {STAMP+0x8000+8*first}\ns_waitcnt lgkmcnt(0)\nv_mov_b32 v3, 0")
        for k in range(n):
            a(f"v_mov_b32 v4, s{80+2*k}\nv_mov_b32 v5, s{81+2*k}\nbuffer_store_dwordx2 v[4:5], v3, s[12:15], s29 offen offset:{8*k}\ns_nop 1")

def trn(d):
    tr = OPT["tr"]; ts = 3 + OPT["tsh"]
    if OPT["t2m"]: return f"""
s_bfe_u32 s100, {d}, 0x20001
s_bfe_u32 s101, {d}, 0x30003
s_andn2_b32 {d}, {d}, 62
{"s_xor_b32 s101, s101, s100" if OPT["t2m"] >= 2 else ""}
s_lshl_b32 s100, s100, 4
s_lshl_b32 s101, s101, 1
s_or_b32 {d}, {d}, s100
s_or_b32 {d}, {d}, s101
"""
    if OPT["nm"]: return f"""
s_lshr_b32 s100, {d}, 4
s_xor_b32 s100, s100, {d}
s_and_b32 s100, s100, 2
s_mul_i32 s100, s100, 17
s_xor_b32 {d}, {d}, s100
s_lshl_b32 s100, s19, 1
s_xor_b32 s100, s100, {2*(OPT["nm"]-1)}
s_and_b32 s100, s100, 2
s_xor_b32 {d}, {d}, s100
"""
    if not tr: return ""
    return f"""
s_and_b32 s100, {d}, {(1 << tr) - 1}
s_lshl_b32 s100, s100, {ts}
s_bfe_u32 s101, {d}, {hex((ts << 16) | tr)}
s_andn2_b32 {d}, {d}, {(1 << (tr+ts)) - 1}
s_or_b32 {d}, {d}, s100
s_or_b32 {d}, {d}, s101
"""
def backoff(n):
    while n > 0:
        a(f"s_sleep {min(n, 127)}"); n -= 127
def touch():
    a(f"""
s_mov_b64 exec, 0xffff
v_lshlrev_b32 v9, 7, v0
s_lshl_b32 s25, s17, 17
s_lshr_b32 s26, s18, 1
s_lshl_b32 s26, s26, 13
s_add_u32 s25, s25, s26
s_and_b32 s26, s18, 1
s_lshl_b32 s26, s26, 11
s_add_u32 s25, s25, s26
s_add_u32 s25, s25, {CPA}
buffer_load_dword v16, v9, s[12:15], s25 offen {['', 'sc1', 'nt'][OPT['tpol']]}
""")

XROT = "s_mov_b32 s16, s2" if not OPT["xrot"] else f"""
s_lshr_b32 s18, s2, 3
s_mul_i32 s17, s18, {OPT['xrot']}
s_add_u32 s17, s17, s2
s_and_b32 s17, s17, 7
s_andn2_b32 s16, s2, 7
s_or_b32 s16, s16, s17
"""
a("""
s_cmp_ge_u32 s2, 256
s_cbranch_scc1 L_end
s_load_dwordx16 s[32:47], s[0:1], 0
s_load_dwordx8 s[48:55], s[0:1], 64
s_load_dwordx2 s[56:57], s[0:1], 96
""")
stamp(0)
a(f"""
v_lshrrev_b32 v1, 6, v0
v_and_b32 v0, 63, v0
s_and_b32 s17, s2, 7
v_readfirstlane_b32 s3, v1
{XROT}
s_lshr_b32 s18, s16, 3
s_and_b32 s19, s18, 7
s_lshr_b32 s20, s18, 3
s_xor_b32 s20, s20, {OPT['gx']}
s_cmp_lt_u32 s3, 8
s_cbranch_scc1 L_stream
v_and_b32 v10, 15, v0
v_lshrrev_b32 v11, 4, v0
v_lshlrev_b32 v2, 4, v11
v_lshl_add_u32 v2, v10, 10, v2
v_lshrrev_b32 v3, 1, v0
v_and_b32 v4, 1, v0
v_lshlrev_b32 v4, 4, v4
v_mov_b32 v13, 0
s_cmp_eq_u32 s3, 9
s_cbranch_scc1 L_hb
""")
AFR = 16; D0 = 48; WDV = 64; GX = 16; GW = 32; XF = 100; GG = 164; VN = 166; CP = 60
def frag_addr(sh=5):
    a(f"""
v_lshrrev_b32 v8, 2, v10
v_lshl_add_u32 v8, v11, 3, v8
v_lshlrev_b32 v9, {sh}, v8
v_and_b32 v8, 3, v0
v_lshl_add_u32 v9, v8, 3, v9
v_add_u32 v9, {R1}, v9
v_cmp_gt_u32 s[58:59], 8, v10
v_bfe_u32 v{CP+1}, v0, 2, 3
v_and_b32 v{CP+2}, 3, v0
v_lshl_add_u32 v{CP}, v{CP+2}, 4, v{CP+1}
v_lshlrev_b32 v{CP}, 2, v{CP}
""")
def gemv(va, Dr):
    def rd(bt):
        base = AFR + 16*(bt & 1)
        for k in range(4):
            t = 4*bt + k
            a(f"ds_read_b64_tr_b16 v[{base+4*k}:{base+4*k+1}], v{va} offset:{1024*t}")
            a(f"ds_read_b64_tr_b16 v[{base+4*k+2}:{base+4*k+3}], v{va} offset:{1024*t+128}")
    rd(0)
    for bt in range(4):
        if bt < 3:
            rd(bt+1); a("s_waitcnt lgkmcnt(8)")
        else:
            a("s_waitcnt lgkmcnt(0)")
        base = AFR + 16*(bt & 1)
        for k in range(4):
            t = 4*bt + k
            c = "0" if t == 0 else f"v[{Dr}:{Dr+3}]"
            a(f"v_mfma_f32_16x16x32_bf16 v[{Dr}:{Dr+3}], v[{base+4*k}:{base+4*k+3}], v[{XF+4*t}:{XF+4*t+3}], {c}")
def gemv128(va, DG, XB_):
    def rd(s_):
        for ct in range(4):
            q_ = AFR + 16*(s_ & 1) + 4*ct
            a(f"ds_read_b64_tr_b16 v[{q_}:{q_+1}], v{va} offset:{s_*4096+ct*32}\nds_read_b64_tr_b16 v[{q_+2}:{q_+3}], v{va} offset:{s_*4096+ct*32+512}")
    rd(0)
    for s_ in range(4):
        if s_ < 3:
            rd(s_+1); a("s_waitcnt lgkmcnt(8)")
        else:
            a("s_waitcnt lgkmcnt(0)")
        for ct in range(4):
            q_ = AFR + 16*(s_ & 1) + 4*ct; d = DG + 4*ct
            a(f"v_mfma_f32_16x16x32_bf16 v[{d}:{d+3}], v[{q_}:{q_+3}], v[{XB_+4*s_}:{XB_+4*s_+3}], {'0' if s_ == 0 else f'v[{d}:{d+3}]'}")
def pstore(DG, vn, va, so, pol):
    for h_ in range(2):
        d = DG + 8*h_
        for r in range(4): a(f"v_mov_b32_dpp v{d+r}, v{d+4+r} row_ror:8 row_mask:0xf bank_mask:0xc")
        tag_ins(d, vn, SEL)
        a(f"buffer_store_dwordx4 v[{d}:{d+3}], v{va}, s[12:15], {so} offen offset:{1024*h_} {pol}")
def ppoll(lbl, P, va, so, vn, t, delay, slp, so2=None, off2=1024):
    a(f"s_mov_b32 s76, {SPIN}")
    backoff(delay)
    a(f"""
{lbl}:
buffer_load_dwordx4 v[{P}:{P+3}], v{va}, s[12:15], {so} offen sc1
buffer_load_dwordx4 v[{P+4}:{P+7}], v{va}, s[12:15], {so2 or so} offen offset:{off2} sc1
s_waitcnt vmcnt(0)
""")
    tag_bad([P, P+4], vn, SEL, t, t+1, t+2)
    a(f"v_cmp_ne_u32 vcc, 0, v{t}")
    spin_tail(lbl, lbl + "d", sleep=slp)
    for r in range(8): a(f"v_and_b32 v{P+r}, 0xffffff00, v{P+r}")
a(f"""
s_setprio 3
s_memrealtime s[74:75]
""" + ("" if HR else f"""
s_mul_i32 s21, s17, {OPT['sperm']}
s_add_u32 s21, s21, s18
s_and_b32 s21, s21, 31
s_lshl_b32 s25, s17, 5
s_add_u32 s21, s21, s25
v_lshl_add_u32 v1, v3, 13, v4
s_lshl_b32 s25, s21, 5
v_add_u32 v1, s25, v1
""") + (f"""
v_lshrrev_b32 v1, 3, v0
v_and_b32 v5, 7, v0
v_lshlrev_b32 v5, 4, v5
v_lshl_add_u32 v1, v1, 13, v5
s_lshr_b32 s25, s21, 2
s_lshl_b32 s25, s25, 7
s_and_b32 s26, s21, 3
s_lshl_b32 s26, s26, 20
s_add_u32 s25, s25, s26
v_add_u32 v1, s25, v1
s_lshr_b32 s26, s26, 12
""" if OPT["fq"] or KQ else "") + f"""
s_mov_b64 s[72:73], 1
v_mov_b32 v15, {OPT['noff']}
v_lshlrev_b32 v3, 4, v0
s_waitcnt lgkmcnt(0)
""")
stamp(8)
srd(68, P_DBG, 256)
a(f"""
s_cmp_ge_u32 s16, 8
s_cbranch_scc1 L_nononce
s_or_b32 s74, s74, 1
v_mov_b32 v12, s74
s_mov_b64 exec, s[72:73]
buffer_atomic_cmpswap v[12:13], v15, s[68:71], 0 offen sc1
s_mov_b64 exec, -1
""")
a.label("L_nononce")
srd(60, P_WQ, 512*4096*2); srd(64, P_X, 8192)
backoff(OPT["ad"])
def x_dma():
    for b_ in range(8):
        a(f"v_xor_b32 v{16+b_}, {16*b_}, v3")
    for b_ in range(8):
        a(f"s_mov_b32 m0, {WD_LDS + 1024*b_}\ns_movk_i32 s25, {1024*b_}\nbuffer_load_dwordx4 v{16+b_}, s[64:67], s25 offen lds")
def x_frag(t0, t1):
    a(f"""
v_and_b32 v{t0}, 7, v10
v_xor_b32 v{t1}, v{t0}, v11
v_lshlrev_b32 v{t1}, 4, v{t1}
v_lshl_add_u32 v{t0}, v{t0}, 10, v{t1}
v_add_u32 v{t0}, {WD_LDS}, v{t0}
v_xor_b32 v{t1}, 64, v{t0}
""")
    for s_ in range(16):
        a(f"ds_read_b128 v[{XF+4*s_}:{XF+4*s_+3}], v{(t0, t1)[s_ & 1]} offset:{128*(s_ >> 1)}")
L2P = OPT["l2p"]
def touch_tile(va, sd, stride, dst):
    for h_ in range(2):
        a(f"s_mov_b32 s27, {64*h_*stride}")
        for sec in range(OPT["tsec"]):
            a(f"buffer_load_dword v{dst+2*h_+sec}, v{va}, s[{sd}:{sd+3}], s27 offen offset:{64*sec}{' nt' if OPT['tnt'] else ''}")
if L2P & 1:
    a(f"""
s_lshr_b32 s25, s21, 2
s_lshl_b32 s25, s25, 7
s_and_b32 s26, s21, 3
s_lshl_b32 s26, s26, 20
s_add_u32 s25, s25, s26
v_lshl_add_u32 v5, v0, 13, s25
""")
    touch_tile(5, 60, 8192, 56)
if XL and OPT["xf"] and not OPT["rm"] & 2: x_dma()
def wq_dma():
    a("s_mov_b32 s25, 0")
    for t in range(16):
        a(f"s_mov_b32 m0, {R1 + 1024*t}")
        if t: a(f"s_mov_b32 s25, {t*32*8192}")
        a(f"buffer_load_dwordx4 v55, s[60:63], s25 offen {'nt ' if OPT['wqnt'] else ''}lds")
if L2P & 1: a("v_mov_b32 v55, v1")
a("s_mov_b32 s25, 0")
RM = OPT["rm"]
if OPT["fh"] or HR:
    a(f"""
s_mov_b32 s21, -1
s_lshr_b32 s27, s18, 1
v_lshrrev_b32 v40, 2, v0
v_and_b32 v41, 3, v0
v_lshlrev_b32 v41, 4, v41
s_bitcmp1_b32 s18, 0
s_cbranch_scc1 L_fhg
s_lshl_b32 s29, s17, 4
s_add_u32 s29, s29, s27
s_lshl_b32 s21, s29, 10
s_add_u32 s21, s21, {QG}
s_lshl_b32 s29, s29, 6
v_lshl_add_u32 v40, v40, 13, v41
s_mov_b32 s28, {16*8192}
s_branch L_fhl
L_fhg:
s_cmp_ge_u32 s27, 14
s_cbranch_scc1 L_fhd
s_and_b32 s29, s17, 3
s_mul_i32 s29, s29, 14
s_add_u32 s29, s29, s27
s_lshl_b32 s21, s29, 10
s_lshr_b32 s28, s17, 2
s_lshl_b32 s28, s28, 16
s_add_u32 s21, s21, s28
s_add_u32 s21, s21, {HG}
s_lshl_b32 s29, s29, 6
v_mul_u32_u24 v40, 3584, v40
v_add_u32 v40, v40, v41
s_mov_b32 s28, {16*3584}
s_cmp_lt_u32 s17, 4
s_cselect_b32 s60, s{P_WG}, s{P_WU}
s_cselect_b32 s61, s{P_WG+1}, s{P_WU+1}
s_mov_b32 s62, {512*1792*2}
L_fhl:
""")
    for t in range(0 if RM & 1 else 32):
        a(f"s_mov_b32 m0, {TB + 1024*t if HR else R1 + 1024*(t & 15)}\n{'s_add_u32 s29, s29, s28' if t else 's_nop 0'}\nbuffer_load_dwordx4 v40, s[60:63], s29 offen nt lds")
    a.label("L_fhd")
for t in range(0 if RM & 1 or L2P & 1 or HR else 16):
    a(f"s_mov_b32 m0, {R1 + 1024*t}")
    if t and not OPT["skip"] & 8: a(f"s_mov_b32 s25, {t*(8 if OPT['fq'] or KQ else 32)*8192}")
    a(f"buffer_load_dwordx4 v1, s[60:63], s25 offen {'nt ' if OPT['wqnt'] else ''}lds")
if OPT["fine"] == 7: stamp(6)
if XL and not OPT["xf"]: x_dma()
for s_ in range(0 if RM & 2 or XL else 4 if KQ else 16):
    a(f"buffer_load_dwordx4 v[{XF+4*s_}:{XF+4*s_+3}], v2, s[64:67], {'s26' if KQ else 0} offen offset:{64*s_}")
srd(12, P_WS, WS_BYTES)
CNTA = f"""s_lshl_b32 s77, s17, 2
s_add_u32 s77, s77, s20
s_mul_i32 s77, s77, {CSTR}
s_add_u32 s77, s77, {CNT}
s_cmp_lg_u32 s19, 0""" if XB else f"""s_mul_i32 s77, s18, {CSTR}
s_add_u32 s77, s77, {CNT}
s_cmp_lg_u32 s17, 0""" if not NUMA else f"""s_lshr_b32 s75, s17, 2
s_lshl_b32 s77, s18, 1
s_add_u32 s77, s77, s75
s_mul_i32 s77, s77, {CSTR}
s_add_u32 s77, s77, {CNT}
s_xor_b32 s75, s75, s19
s_xor_b32 s75, s75, {NUMA-1}
s_and_b32 s75, s75, 1
s_and_b32 s25, s17, 3"""
STAT = f"""
ds_write_b64 v2, v[4:5] offset:144
v_lshl_add_u32 v35, v0, 16, v0
s_mul_i32 s25, {MEM}, {NSE}
s_add_u32 s26, s25, {8*SE - SE + VB}
v_add_u32 v4, s26, v35
v_lshrrev_b32 v5, 2, v0
v_mul_u32_u24 v5, 28, v5
s_lshl_b32 s26, {MEM}, 2
s_add_u32 s26, s26, {VB}
v_add3_u32 v5, v5, s26, v35
v_cmp_gt_u32 vcc, {64 if OPT["il"] else SE}, v0
v_cndmask_b32 v4, v4, v5, vcc
v_lshlrev_b32 v1, 2, v0
v_add_u32 v5, {4*KN}, v1
v_cmp_gt_u32 vcc, {KV}, v0
v_cndmask_b32 v5, v5, v1, vcc
v_add_u32 v5, {T2B}, v5
""" + (f"""
v_mov_b32 v66, v5
v_mov_b32 v67, v4
""" if PD else f"""
s_bfm_b64 exec, {SE + NSE}, 0
ds_write_b32 v5, v4
""") + (f"""
v_mov_b32 v4, {514 if OPT['rv'] & 1 else 512}
v_add_u32 v5, {T2B + 4*KV}, v1
s_mov_b64 exec, {(1 << KN) - 1}
ds_write_b32 v5, v4
""" if KN else "") + f"""
s_mov_b64 exec, -1
s_add_u32 s25, s25, {8*SE + (SE << 16)}
v_add_u32 v4, s25, v35
""" + (f"""
v_subrev_u32 v6, {K0}, v0
v_cmp_gt_u32 vcc, {OPT['k0at'] + K0}, v0
v_cndmask_b32 v6, v6, v0, vcc
v_lshrrev_b32 v6, 2, v6
v_mul_u32_u24 v6, 28, v6
s_add_u32 s26, s26, {8*SE + (SE << 16) - VB}
v_add3_u32 v4, v6, s26, v35
""" if OPT["il"] else "")
QCH = f"""s_mul_i32 s27, s17, {OPT['sperm']}
s_lshl_b32 s28, s20, 3
s_add_u32 s27, s27, s28
s_and_b32 s27, s27, 31
s_lshl_b32 s28, s17, 5
s_add_u32 s27, s27, s28
s_lshl_b32 s27, s27, 6""" if XB else f"""s_lshl_b32 s27, s18, 6""" if not NUMA else f"""s_and_b32 s27, s17, 4
s_mul_i32 s28, s27, {OPT['sperm']}
s_add_u32 s28, s28, s18
s_and_b32 s28, s28, 31
s_lshl_b32 s27, s27, 5
s_add_u32 s27, s27, s28
s_lshl_b32 s27, s27, 6"""
if HR:
    CNTA = f"""s_mul_i32 s77, s18, {CSTR}
s_add_u32 s77, s77, {CNT}
s_lshl_b32 s25, s18, 2
s_add_u32 s25, s25, s17
s_mul_i32 s25, s25, {CSTR}
s_add_u32 s25, s25, {CNT}
s_and_b32 s26, s18, 25"""
a(f"""
{CNTA}
s_cbranch_scc1 L_nocnt
v_mov_b32 v14, {CBASE}
s_mov_b64 exec, s[72:73]
buffer_store_dword v14, v13, s[12:15], {"s25" if HR else "s77"} offen sc1
""" + ("""
v_mov_b32 v4, 0
v_mov_b32 v5, 0
v_mov_b32 v6, 0
v_mov_b32 v7, 0
buffer_store_dwordx4 v[4:7], v13, s[12:15], s77 offen offset:128 sc1
buffer_store_dwordx4 v[4:7], v13, s[12:15], s77 offen offset:144 sc1
""" if PW else "") + """
s_mov_b64 exec, -1
""")
a.label("L_nocnt")
a(f"""
buffer_load_dword v12, v15, s[68:71], 0 offen sc1
v_mov_b32 v4, -1
v_mov_b32 v5, -1
v_mov_b32 v6, -1
v_mov_b32 v7, -1
v_add_u32 v1, {CH}, v3
ds_write_b128 v1, v[4:7]
ds_write_b128 v1, v[4:7] offset:1024
ds_write_b128 v1, v[4:7] offset:2048
v_mov_b32 v2, {MISC}
v_mov_b32 v4, 0
v_mov_b32 v5, 0
v_mov_b32 v6, 0
v_mov_b32 v7, 0
ds_write_b128 v2, v[4:7] offset:128
{STAT}
v_lshlrev_b32 v1, 2, v0
v_add_u32 v1, {CH}, v1
{K0TXT}
v_cmp_gt_u32 vcc, {min(PW, NSE + K0) if PW else K0 if PD else NSE + K0}, v0
v_mov_b32 v64, v1
v_mov_b32 v65, v4
s_mov_b64 exec, vcc
ds_write_b32 v1, v4
s_mov_b64 exec, -1
""")
if HR:
    a(f"""
v_lshrrev_b32 v8, 2, v10
v_lshl_add_u32 v8, v11, 3, v8
v_lshlrev_b32 v9, 6, v8
v_and_b32 v8, 3, v0
v_lshl_add_u32 v9, v8, 3, v9
v_add_u32 v9, {TB}, v9
v_lshrrev_b32 v{CP}, 3, v0
v_lshl_add_u32 v{CP}, v8, 4, v{CP}
v_and_b32 v8, 4, v0
v_lshl_add_u32 v{CP}, v8, 1, v{CP}
v_lshlrev_b32 v{CP}, 2, v{CP}
""")
else: frag_addr(7 if KQ else 5)
if KQ:
    tag_consts(SEL)
    a(f"""
v_and_b32 v52, 7, v10
v_lshl_add_u32 v52, v11, 3, v52
v_lshlrev_b32 v52, 4, v52
v_lshrrev_b32 v53, 3, v10
v_lshl_add_u32 v53, v53, 9, v52
s_andn2_b32 s28, s21, 3
s_lshl_b32 s28, s28, 11
s_and_b32 s29, s21, 3
s_lshl_b32 s29, s29, 9
s_add_u32 s28, s28, s29
s_add_u32 s28, s28, {QP}
s_lshl_b32 s29, s21, 11
s_add_u32 s29, s29, {QP}
""")
    if OPT["kpl"]:
        a(f"""
v_lshrrev_b32 v54, 3, v10
v_lshl_add_u32 v52, v54, 11, v52
s_add_u32 s30, s28, 4096
""")
a(f"s_mov_b32 s76, {SPIN}\ns_waitcnt lgkmcnt(0)")
stamp(7)
a("s_barrier")
stamp(1)
if L2P & 1:
    a(f"s_waitcnt vmcnt({9 if XL else 17})")
    backoff(OPT["tw"])
    wq_dma()
if HR:
    a("s_cmp_eq_u32 s21, -1\ns_cbranch_scc1 L_nogv\ns_waitcnt vmcnt(33)")
    x_frag(56, 57)
    def rd(bt):
        if bt % 2 == 0: a(f"s_waitcnt vmcnt({25 - 4*bt})")
        for k in range(2):
            for ct in range(2):
                q_ = AFR + 16*(bt & 1) + 8*k + 4*ct; o_ = (2*bt + k)*2048 + 32*ct
                a(f"ds_read_b64_tr_b16 v[{q_}:{q_+1}], v9 offset:{o_}\nds_read_b64_tr_b16 v[{q_+2}:{q_+3}], v9 offset:{o_+256}")
    rd(0)
    for bt in range(8):
        if bt < 7:
            rd(bt+1); a("s_waitcnt lgkmcnt(8)")
        else:
            a("s_waitcnt lgkmcnt(0)")
        for k in range(2):
            for ct in range(2):
                q_ = AFR + 16*(bt & 1) + 8*k + 4*ct; t = 2*bt + k; d = D0 + 4*ct
                a(f"v_mfma_f32_16x16x32_bf16 v[{d}:{d+3}], v[{q_}:{q_+3}], v[{XF+4*t}:{XF+4*t+3}], {'0' if t == 0 else f'v[{d}:{d+3}]'}")
    a(f"""
v_cvt_pk_bf16_f32 v4, v{D0}, v{D0+1}
v_cvt_pk_bf16_f32 v6, v{D0+2}, v{D0+3}
v_cvt_pk_bf16_f32 v56, v{D0+4}, v{D0+5}
v_cvt_pk_bf16_f32 v57, v{D0+6}, v{D0+7}
v_mov_b32_dpp v4, v56 row_ror:8 row_mask:0xf bank_mask:0xc
v_mov_b32_dpp v6, v57 row_ror:8 row_mask:0xf bank_mask:0xc
ds_bpermute_b32 v4, v{CP}, v4
ds_bpermute_b32 v6, v{CP}, v6
L_nogv:
""")
elif XL and OPT["xf"]:
    a("s_waitcnt vmcnt(17)"); x_frag(52, 53)
a("s_waitcnt vmcnt(0)")
if XL and not OPT["xf"]: x_frag(52, 53)
a.label("L_np")
a(f"""
v_readfirstlane_b32 s74, v12
s_sub_u32 s76, s76, 1
s_cmp_eq_u32 s76, 0
s_cbranch_scc1 L_np_done
s_cmp_lg_u32 s74, 0
s_cbranch_scc1 L_np_done
buffer_load_dword v12, v15, s[68:71], 0 offen sc1
s_waitcnt vmcnt(0)
s_branch L_np
""")
a.label("L_np_done")
PAC = 0x4D0000; PST = 4352
if OPT["fb"]:
    a(f"""
s_cmp_lg_u32 s16, 0
s_cbranch_scc1 L_nfi
v_mov_b32 v5, s74
v_mul_u32_u24 v7, {PST}, v0
s_mov_b32 s25, {PAC}
s_mov_b64 exec, 0xffff
buffer_store_dword v5, v7, s[12:15], s25 offen sc1
s_mov_b64 exec, -1
L_nfi:
""")
stamp(2)
if KQ: gemv128(9, 68, XF)
elif not HR: gemv(9, D0)
a(f"""
v_mov_b32 v5, s74
v_mov_b32 v7, s74
v_mov_b32 v8, 1
ds_write_b32 v2, v5 offset:96
ds_write_b32 v2, v8 offset:136
""")
if KQ and OPT["kpl"]:
    pstore(68, 5, 53, "s29", '' if OPT['kl2'] & 1 else 'sc1')
    ppoll("L_q1", 84, 52, "s28", 5, 54, OPT["q1d"], OPT["q1s"], "s30", 0)
    for r in range(4): a(f"v_add_f32 v{D0+r}, v{84+r}, v{88+r}")
    for r in range(4): a(f"v_add_f32_dpp v{D0+r}, v{D0+r}, v{D0+r} row_ror:8 row_mask:0xf bank_mask:0xf")
elif KQ:
    a("s_mov_b64 exec, s[58:59]")
    for ct in range(4):
        tag_ins(68 + 4*ct, 5, SEL)
        a(f"buffer_store_dwordx4 v[{68+4*ct}:{71+4*ct}], v52, s[12:15], s28 offen offset:{2048*(ct & 1)} {'' if OPT['kl2'] & 1 else 'sc1'}")
        if ct == 1: a("s_add_u32 s28, s28, 4096")
    a("s_mov_b64 exec, -1")
    ppoll("L_q1", 84, 53, "s29", 5, 54, OPT["q1d"], OPT["q1s"])
    for r in range(4): a(f"v_add_f32 v{D0+r}, v{84+r}, v{88+r}")
    for r in range(4): a(f"v_add_f32_dpp v{D0+r}, v{D0+r}, v{D0+r} row_ror:8 row_mask:0xf bank_mask:0xf")
QL = OPT["ql"]; HL = OPT["hl"]
def qpub_old():
    a(f"""
s_lshl_b32 s25, s21, {9 if QL else 6}
s_add_u32 s25, s25, {QG}
v_cvt_pk_bf16_f32 v4, v{D0}, v{D0+1}
v_cvt_pk_bf16_f32 v6, v{D0+2}, v{D0+3}
""")
    if OPT["coal"]:
        a(f"""
ds_bpermute_b32 v4, v{CP}, v4
ds_bpermute_b32 v6, v{CP}, v6
v_lshlrev_b32 v14, 4, v{CP+2}
v_lshl_add_u32 v14, v{CP+1}, {6 if QL else 14}, v14
s_mov_b32 exec_hi, 0
s_waitcnt lgkmcnt(0)
""")
    else:
        a(f"""
v_lshlrev_b32 v14, 4, v11
v_lshl_add_u32 v14, v10, 14, v14
s_mov_b64 exec, s[58:59]
""")
    a(f"""
buffer_store_dwordx4 v[4:7], v14, s[12:15], s25 offen sc1
s_mov_b64 exec, -1
""")
if HR:
    a(f"""
s_cmp_eq_u32 s21, -1
s_cbranch_scc1 L_nopub
s_waitcnt lgkmcnt(0)
{"" if RM & 128 else "buffer_store_dwordx4 v[4:7], v3, s[12:15], s21 offen " + ['', 'sc1', 'sc1 nt', 'sc0 sc1', 'sc0 sc1 nt'][OPT['pbp']]}
L_nopub:
v_mov_b32 v16, {hex(SENT)}
v_mov_b32 v17, {hex(SENT)}
v_mov_b32 v18, {hex(SENT)}
v_mov_b32 v19, {hex(SENT)}
v_add_u32 v1, {TB}, v3
""")
    for k in range(8): a(f"ds_write_b128 v1, v[16:19] offset:{1024*k}")
else: qpub_old()
if OPT["dw"] or OPT["dr"]:
    a(f"s_lshl_b32 s28, s21, 12\ns_add_u32 s28, s28, {FP}")
    for k in range(OPT["dw"]):
        a(f"buffer_store_dwordx4 v[16:19], v3, s[12:15], s28 offen offset:{1024*k} {['', 'sc1', 'nt', 'sc0 sc1', 'sc1 nt'][OPT['dwp']]}")
    for k in range(OPT["dr"]):
        a(f"buffer_load_dwordx4 v[84:87], v3, s[12:15], s28 offen offset:{1024*k} sc1")
stamp(3)
a(f"""
{"s_lshl_b32 s25, s17, 14" if XB else "s_lshl_b32 s25, s20, 15"}
{"s_lshl_b32 s26, s20, 12" if XB else "s_lshl_b32 s26, s19, 11"}
s_add_u32 s25, s25, s26
s_add_u32 s25, s25, {QG}
s_add_u32 s26, s25, {2048 if XB else 16384}
{QCH}
""" + (f"""
s_lshl_b32 s25, s19, 14
s_lshl_b32 s26, s20, 8
s_add_u32 s25, s25, s26
s_add_u32 s25, s25, {QG}
s_add_u32 s26, s25, 4096
s_add_u32 s28, s25, 8192
s_add_u32 s29, s25, 12288
v_lshlrev_b32 v14, 4, v10
v_lshl_add_u32 v14, v11, 10, v14
v_and_b32 v1, 7, v0
v_lshl_add_u32 v1, v11, 3, v1
v_lshlrev_b32 v1, 3, v1
v_bfe_u32 v9, v0, 3, 1
v_lshl_add_u32 v1, v9, 10, v1
v_add_u32 v1, {Q_LDS}, v1
""" if HR else f"""
s_lshl_b32 s27, s27, 3
s_lshl_b32 s25, s19, 14
s_lshl_b32 s26, s20, 7
s_add_u32 s25, s25, s26
s_add_u32 s25, s25, {QG}
s_add_u32 s26, s25, 4096
s_add_u32 s28, s25, 8192
s_add_u32 s29, s25, 12288
v_lshrrev_b32 v1, 3, v0
v_and_b32 v14, 7, v0
v_lshlrev_b32 v14, 4, v14
v_lshl_add_u32 v14, v1, 9, v14
v_lshl_add_u32 v1, v1, 2, v{CP+2}
v_lshlrev_b32 v1, 3, v1
v_bfe_u32 v4, v0, 2, 1
v_lshl_add_u32 v1, v4, 10, v1
v_add_u32 v1, {Q_LDS}, v1
""" if QL else "") + f"""
s_add_u32 s27, s27, {QG}
s_mov_b32 s76, {SPIN}
""")
backoff(OPT["qd"] + (OPT["fq"] if OPT["fq"] > 1 else 0))
a.label("L_qpoll")
if RM & 32: a("s_sleep 100\ns_branch L_qdone")
if QL: a(f"""
buffer_load_dwordx4 v[16:19], v14, s[12:15], s25 offen sc1
buffer_load_dwordx4 v[20:23], v14, s[12:15], s26 offen sc1
buffer_load_dwordx4 v[24:27], v14, s[12:15], s28 offen sc1
buffer_load_dwordx4 v[28:31], v14, s[12:15], s29 offen sc1
{"" if HR else "buffer_load_dwordx4 v[32:35], v13, s[12:15], s27 offen sc1"}
s_waitcnt vmcnt(0)
""")
else: a(f"""
buffer_load_dwordx4 v[16:19], v3, s[12:15], s25 offen sc1
buffer_load_dwordx4 v[20:23], v3, s[12:15], s25 offen offset:1024 sc1
{"" if OPT["hp"] & 1 else "buffer_load_dwordx4 v[24:27], v3, s[12:15], s26 offen sc1"}
{"" if OPT["hp"] & 1 else "buffer_load_dwordx4 v[28:31], v3, s[12:15], s26 offen offset:1024 sc1"}
buffer_load_dwordx4 v[32:35], v13, s[12:15], s27 offen sc1
s_waitcnt vmcnt(0)
""")
any_eq([17, 19, 21, 23, 33, 35] if OPT["hp"] & 1 else list(range(17, 32 if HR else 36, 2)), "s74", neg=True)
spin_tail("L_qpoll", "L_qdone", sleep=OPT["qslp"])
stamp(4)
a(f"""
v_mov_b32 v17, v18
v_mov_b32 v21, v22
v_mov_b32 v25, v26
v_mov_b32 v29, v30
{"" if QL else "v_lshlrev_b32 v1, 3, v0"}
{"" if QL else f"v_add_u32 v1, {Q_LDS}, v1"}
ds_write_b64 v1, v[16:17]
ds_write_b64 v1, v[20:21] offset:{256 if QL else 512}
ds_write_b64 v1, v[24:25] offset:{512 if QL else 1024}
ds_write_b64 v1, v[28:29] offset:{768 if QL else 1536}
s_waitcnt lgkmcnt(0)
ds_write_b32 v2, v8 offset:132
""")
stamp(5)
a(f"""
s_mov_b32 s21, {NSE + K0}
s_mov_b32 s22, {NSE + K0}
s_mov_b32 s20, {SE + NSE}
s_mov_b32 s19, {SE + NSE}
s_mov_b32 s23, 0
s_mov_b32 s24, 0
s_mov_b32 s26, 0
s_mov_b32 s27, 0
s_mov_b32 s28, 0
s_mov_b32 s29, {0 if OPT['tk'] else 1}
v_mov_b32 v4, 0
v_lshl_add_u32 v5, v0, 16, v0
s_mov_b32 s76, {SPIN*64}
""")
FST1 = """s_cmp_lg_u32 s60, 0
s_cbranch_scc1 L_fs1
s_mov_b32 s60, 1
s_memrealtime s[82:83]
L_fs1:"""
RV = OPT["rv"]
RVT = f"""s_cmp_lt_u32 s28, {OPT['rvt']}
s_cbranch_scc1 L_nrv
ds_write_b32 v2, v2 offset:144
L_nrv:""" if RV and OPT["rvt"] else ""
def disp(p):
    tb = T1B if ONET else (T1B, T2B)[p]
    a(f"""
L_disp{p}:
s_mov_b64 exec, 1
ds_read_b32 v6, v2 offset:{128 if ONET else (128, 144)[p]}
s_sub_u32 s76, s76, 1
s_cmp_le_i32 s76, 0
s_cbranch_scc1 L_dexh{p}
s_cmp_eq_u32 s24, 0
s_cbranch_scc1 L_noc{p}
v_readlane_b32 s25, v4, s27
s_cmp_lt_u32 s25, {CBASE}
s_cbranch_scc1 L_noc{p}
s_and_b32 s30, s23, 15
s_lshr_b32 s23, s23, 4
s_sub_u32 s24, s24, 1
s_add_u32 s27, s27, 1
s_and_b32 s27, s27, 7
s_add_u32 s25, s25, {DYN0 - CBASE}
s_add_u32 s28, s25, s30
{RVT if p else ""}
s_sub_i32 s31, 512, s25
s_max_i32 s31, s31, 0
s_min_i32 s31, s31, s30
s_cmp_ge_u32 s28, {(OPT['tk'], 512)[p]}
s_cselect_b32 s29, 1, s29
s_cmp_eq_u32 s31, 0
s_cbranch_scc1 L_noc{p}
s_bfm_b64 exec, s31, 0
s_lshl_b32 s30, s20, 16
s_add_u32 s25, s25, s30
v_add_u32 v7, s25, v5
s_lshl_b32 s25, s22, 2
s_add_u32 s25, s25, {tb}
v_lshl_add_u32 v8, v0, 2, s25
ds_write_b32 v8, v7
s_add_u32 s22, s22, s31
s_lshl_b32 s25, {('s20', 's22')[p]}, 2
s_add_u32 s25, s25, {(T2B + 4*KN, tb)[p]}
v_or_b32 v9, {VB}, v7
v_lshl_add_u32 v14, v0, 2, s25
ds_write_b32 v14, v9
s_add_u32 s20, s20, s31
{('', 's_add_u32 s22, s22, s31')[p]}
L_noc{p}:
s_cmp_lg_u32 s29, 0
s_cbranch_scc1 L_exh{p}
s_cmp_ge_u32 s24, {OPT['maxf']}
s_cbranch_scc1 L_dslp{p}
s_waitcnt lgkmcnt(0)
v_readfirstlane_b32 s25, v6
s_lshl_b32 s30, s21, 1
s_add_u32 s25, s25, {(OPT['leadk'], OPT['leadf'])[p]}
s_cmp_ge_u32 s30, s25
s_cbranch_scc1 L_dslp{p}
s_cmp_ge_u32 s28, {(OPT['tk2'], OPT['tf'])[p]}
s_cselect_b32 s30, {(2, 1)[p]}, {(4, 2)[p]}
s_add_u32 s25, s19, s30
s_cmp_gt_u32 s25, {(OPT['cap1'], NSLOT//2)[p]}
s_cselect_b32 s29, 1, 0
s_cbranch_scc1 L_exh{p}
s_mov_b32 s19, s25
{FST1 if p and OPT["stamps"] and OPT["fine"] != 7 else ""}
s_lshl_b64 exec, 1, s26
v_mov_b32 v4, s30
buffer_atomic_add v4, v13, s[12:15], s77 offen sc0 sc1
s_lshl_b32 s25, s24, 2
s_lshl_b32 s25, s30, s25
s_or_b32 s23, s23, s25
s_add_u32 s24, s24, 1
s_add_u32 s21, s21, s30
{('', 's_add_u32 s21, s21, s30')[p]}
s_add_u32 s26, s26, 1
s_and_b32 s26, s26, 7
s_branch L_disp{p}
L_exh{p}:
s_cmp_eq_u32 s24, 0
s_cbranch_scc1 L_dexh{p}
L_dslp{p}:
s_sleep {OPT['dslp']}
s_branch L_disp{p}
L_dexh{p}:
s_mov_b64 exec, 0xff
s_lshl_b32 s25, s22, 2
s_add_u32 s25, s25, {tb}
v_lshl_add_u32 v8, v0, 2, s25
v_mov_b32 v7, {(513, 512)[p]}
ds_write_b32 v8, v7
{"ds_write_b32 v2, v2 offset:144" if RV and p else ""}
""")
if not ONET: disp(0)
TOT = NSE + K0 + SE + NSE
if PW:
    a(f"""
s_movk_i32 s30, 300
v_lshlrev_b32 v9, 2, v0
v_cmp_eq_u32 s[60:61], s17, v0
v_mov_b32 v14, 0x7fff
L_rel:
s_mov_b64 exec, 0xff
ds_read_b32 v6, v2 offset:128
s_sub_u32 s30, s30, 1
s_waitcnt lgkmcnt(0)
v_lshrrev_b32 v6, 1, v6
v_cndmask_b32 v8, 0, v6, s[60:61]
buffer_atomic_umax v8, v9, s[12:15], s77 offen offset:128 sc0 sc1
v_readfirstlane_b32 s62, v6
s_waitcnt vmcnt(0)
v_cndmask_b32 v8, v8, v14, s[60:61]
v_min_u32_dpp v8, v8, v8 quad_perm:[1,0,3,2] row_mask:0xf bank_mask:0xf
v_min_u32_dpp v8, v8, v8 quad_perm:[2,3,0,1] row_mask:0xf bank_mask:0xf
v_min_u32_dpp v8, v8, v8 row_half_mirror row_mask:0xf bank_mask:0xf
v_readfirstlane_b32 s25, v8
s_add_u32 s25, s25, {PW}
s_cmp_ge_u32 s25, {TOT - OPT['pe']}
s_cselect_b32 s25, 255, s25
s_cmp_eq_u32 s30, 0
s_cselect_b32 s25, 255, s25
s_cselect_b32 s62, 255, s62
s_min_i32 s31, s25, {NSE + K0}
s_bfm_b64 exec, s31, 0
ds_write_b32 v64, v65
s_sub_i32 s31, s25, {NSE + K0}
s_cmp_le_i32 s31, 0
s_cbranch_scc1 L_rel2
s_min_i32 s31, s31, {SE + NSE}
s_bfm_b64 exec, s31, 0
ds_write_b32 v66, v67
s_cmp_lg_u32 s25, 255
s_cbranch_scc1 L_rel2
s_cmp_ge_u32 s62, {TOT - OPT['pe'] - PW}
s_cbranch_scc1 L_reld
L_rel2:
{f"s_sleep {OPT['pws']}" if OPT['pws'] else ""}
s_branch L_rel
L_reld:
""")
elif PD:
    FB = f"""
s_cmp_eq_u32 s65, 0
s_cbranch_scc1 L_fb1
v_readfirstlane_b32 s31, v10
s_sub_u32 s31, s31, s74
s_cmp_eq_u32 s31, -1
s_cbranch_scc1 L_fb1
s_mov_b32 s65, 0
s_cmp_gt_u32 s31, 0xfff
s_cbranch_scc1 L_fb1
s_sub_i32 s31, s31, {OPT['fbl']}
s_ashr_i32 s31, s31, {OPT['fbs']}
s_min_i32 s31, s31, {OPT['fbc']}
s_add_i32 s62, s62, s31
{"s_min_i32 s31, s31, 0" + chr(10) + f"s_mul_i32 s31, s31, {OPT['fbn']}" + chr(10) + "s_add_i32 s62, s62, s31" if OPT['fbn'] else ""}
L_fb1:
s_cmp_lt_u32 s25, s63
s_cbranch_scc1 L_fb2
s_add_u32 s63, s63, {OPT['fbp']}
v_readfirstlane_b32 s31, v6
s_lshl_b32 s66, s25, 1
s_sub_i32 s31, s66, s31
s_sub_i32 s31, s31, {2*(SE - K0)}
s_max_i32 s31, s31, 0
s_min_i32 s31, s31, {OPT['fbm']}
s_sub_u32 s66, s74, 1
v_mov_b32 v10, s66
v_mov_b32 v8, s31
buffer_load_dword v10, v13, s[12:15], s64 offen {['', '', 'sc1'][OPT['fb']]}
s_cmp_lg_u32 s64, {PAC}
s_cselect_b32 s65, 1, 0
s_add_u32 s64, s64, {PST}
s_cmp_ge_u32 s18, {OPT['fbg']}
s_cbranch_scc1 L_fb2
buffer_atomic_add v8, v13, s[12:15], s64 offen sc1
L_fb2:
""" if OPT["fb"] else ""
    a(f"""
s_movk_i32 s30, 1000
s_movk_i32 s62, {OPT['pc']}
s_movk_i32 s63, {SE + OPT['fb0']}
s_mov_b32 s64, {PAC}
s_mov_b32 s65, 0
L_rel:
s_mov_b64 exec, 1
ds_read_b32 v6, v2 offset:128
s_memrealtime s[60:61]
s_sub_u32 s30, s30, 1
s_waitcnt lgkmcnt(0)
s_sub_u32 s25, s60, s74
s_sub_i32 s25, s25, s62
s_max_i32 s25, s25, 0
s_min_i32 s25, s25, 0x8000
{f"s_mul_i32 s31, s25, {int(655360/OPT['pdv'])}" + chr(10) + f"s_sub_i32 s31, s31, {int(OPT['pdw']*65536*(PD/OPT['pdv'] - 1))}" if OPT['pdv'] else ""}
s_mul_i32 s25, s25, {int(655360/PD)}
{"s_max_i32 s25, s25, s31" if OPT['pdv'] else ""}
s_lshr_b32 s25, s25, 16
{FB}
s_cmp_eq_u32 s30, 0
s_cselect_b32 s25, 255, s25
s_cmp_ge_u32 s25, {2*(SE+NSE) - OPT['pe']}
s_cselect_b32 s25, 255, s25
s_sub_i32 s31, s25, {SE - K0}
s_min_i32 s31, s31, {NSE + K0}
s_max_i32 s31, s31, 1
s_bfm_b64 exec, s31, 0
ds_write_b32 v64, v65
s_sub_i32 s31, s25, {SE + NSE}
s_cmp_le_i32 s31, 0
s_cbranch_scc1 L_rel2
s_min_i32 s31, s31, {SE + NSE}
s_bfm_b64 exec, s31, 0
ds_write_b32 v66, v67
s_cmp_eq_u32 s25, 255
s_cbranch_scc1 L_reld
L_rel2:
s_sleep {OPT['pslp']}
s_branch L_rel
L_reld:
""")
if OPT["dl"]: a("s_mov_b32 s67, s60")
if OPT["stamps"] and OPT["fine"] != 7: stamp(7); a(f"s_mov_b32 s96, {'s62' if PD else 's20'}\ns_mov_b32 s60, 0")
a(f"""
s_add_u32 s21, s20, {KN + (NSE + K0 if ONET else 0)}
s_mov_b32 s22, s21
s_cmp_ge_u32 s28, 512
s_cselect_b32 s29, 1, 0
""")
disp(1)
if OPT["stamps"] and OPT["fine"] != 7: a("s_mov_b32 s97, s20"); stamp(6)
if OPT["tcha"]: touch()
if OPT["dl"]:
    a(f"""
s_mov_b64 exec, -1
s_min_u32 s22, s18, 27
s_lshr_b32 s22, s22, 1
s_mul_i32 s25, s17, 14
s_add_u32 s22, s22, s25
s_and_b32 s23, s18, 1
s_movk_i32 s25, 3584
v_lshrrev_b32 v3, 1, v0
v_and_b32 v4, 1, v0
v_lshlrev_b32 v4, 4, v4
v_mul_lo_u32 v5, v3, s25
v_add_u32 v5, v5, v4
s_lshl_b32 s25, s22, 5
v_add_u32 v5, s25, v5
v_lshrrev_b32 v6, 3, v0
v_and_b32 v7, 7, v0
v_lshlrev_b32 v7, 4, v7
v_lshl_add_u32 v6, v6, 10, v7
s_cmp_eq_u32 s23, 0
s_cselect_b32 s68, s{P_WG}, s{P_WU}
s_cselect_b32 s69, s{P_WG+1}, s{P_WU+1}
s_mov_b32 s70, {512*1792*2}
s_mov_b32 s71, 0x00020000
s_lshl_b32 s27, s17, 7
s_mul_i32 s26, s18, {56*1024}
s_add_u32 s26, s26, s27
s_movk_i32 s30, 2000
""")
    srd(4, P_WD, 1792*512*2)
    a(f"""
L_dl:
s_memrealtime s[60:61]
s_sub_u32 s30, s30, 1
s_cbranch_scc1 L_dld
s_waitcnt lgkmcnt(0)
s_sub_u32 s60, s60, s67
s_cmp_ge_i32 s60, {OPT['dl']}
s_cbranch_scc1 L_dld
s_sleep 2
s_branch L_dl
L_dld:
s_mov_b32 s25, 0
""")
    for t in range(16):
        a(f"s_mov_b32 m0, {R1 + 1024*t}")
        if t: a(f"s_mov_b32 s25, {t*32*3584}")
        a(f"buffer_load_dwordx4 v5, s[68:71], s25 offen nt lds")
    for t in range(7):
        a(f"buffer_load_dwordx4 v[{WDV+4*t}:{WDV+4*t+3}], v6, s[4:7], s26 offen nt")
        if t < 6: a("s_add_u32 s26, s26, 8192")
    a("s_waitcnt vmcnt(0)")
hstamps(0, 9)
a("s_waitcnt lgkmcnt(0)\ns_endpgm")

a.label("L_hb")
if OPT["bprio"]: a(f"s_setprio {OPT['bprio']}")
if OPT["st"]:
    a("s_waitcnt lgkmcnt(0)")
    tl = []
    if OPT["st"] & 1: tl += [(P_WQ, 0x200000), (P_X, 0), (P_DBG, 0), (P_WS, 0xf0000), (P_WS, 0x4f8000), (P_WQ, 0)]
    if OPT["st"] & 2: tl += [(P_WD, 0), (P_GW, 0), (P_WG, 0), (P_WU, 0)]
    if OPT["st"] & 4: tl += [(P_WO, 0), (P_WO, 0x200000), (P_OUT, 0), (P_WS, 0x3f0000)]
    for n_, (p_, o_) in enumerate(tl):
        if o_: a(f"s_mov_b32 s25, {hex(o_)}\ns_load_dword s{80+n_}, s[{p_}:{p_+1}], s25")
        else: a(f"s_load_dword s{80+n_}, s[{p_}:{p_+1}], 0")
if KF_:
    a(f"""
s_mul_i32 s21, s17, {32 if OPT["fm"] else 28}
s_add_u32 s21, s21, s18
s_lshr_b32 s22, s21, 3
s_and_b32 s23, s21, 1
s_bfe_u32 s24, s21, 0x20001
s_mul_i32 s25, s24, {128*3584}
s_lshl_b32 s27, s22, 7
s_add_u32 s25, s25, s27
v_lshrrev_b32 v6, 3, v0
v_and_b32 v7, 7, v0
v_lshlrev_b32 v7, 4, v7
v_mul_u32_u24 v5, 3584, v6
v_add3_u32 v5, v5, s25, v7
s_waitcnt lgkmcnt(0)
s_cmp_eq_u32 s23, 0
s_cselect_b32 s68, s{P_WG}, s{P_WU}
s_cselect_b32 s69, s{P_WG+1}, s{P_WU+1}
s_mov_b32 s70, {512*1792*2}
s_mov_b32 s71, 0x00020000
""")
    def tile_ld():
        a(f"s_cmp_ge_u32 {'s17, 7' if OPT['fm'] else 's18, 28'}\ns_cbranch_scc1 L_notile")
        for t in range(16):
            a(f"s_mov_b32 s27, {t*8*3584}\nbuffer_load_dwordx4 v[{XF+4*t}:{XF+4*t+3}], v5, s[68:71], s27 offen nt")
        a.label("L_notile")
    if OPT["bt"] == 0: tile_ld()
    a(f"""
v_lshl_add_u32 v6, v6, 10, v7
v_lshlrev_b32 v3, 4, v0
""")
elif HR:
    a(f"""
v_lshrrev_b32 v6, 3, v0
v_and_b32 v7, 7, v0
v_lshlrev_b32 v7, 4, v7
v_lshl_add_u32 v6, v6, 10, v7
v_lshlrev_b32 v3, 4, v0
""")
elif GU:
    a(f"""
s_sub_u32 s23, s17, s18
s_and_b32 s24, s23, 3
s_bfe_u32 s23, s23, 0x10002
s_cmp_ge_u32 s18, 28
s_cselect_b32 s24, 1, s24
s_lshl_b32 s22, s18, 2
v_lshrrev_b32 v6, 3, v0
v_and_b32 v7, 7, v0
v_lshlrev_b32 v7, 4, v7
v_mul_u32_u24 v5, 3584, v6
s_lshl_b32 s25, s18, 7
v_add3_u32 v5, v5, s25, v7
v_lshl_add_u32 v6, v6, 10, v7
v_lshlrev_b32 v3, 4, v0
""")
else:
    a(f"""
s_min_u32 s22, s18, 27
s_and_b32 s25, s17, 3
s_mul_i32 s25, s25, 28
s_add_u32 s22, s22, s25
s_lshr_b32 s23, s17, 2
""" if L2P & 6 else f"""
s_min_u32 s22, s18, 27
s_lshr_b32 s22, s22, 1
s_mul_i32 s25, s17, 14
s_add_u32 s22, s22, s25
s_and_b32 s23, s18, 1
""")
    if L2P & 2:
        a(f"""
s_lshr_b32 s25, s22, 2
s_lshl_b32 s25, s25, 7
s_and_b32 s26, s22, 3
s_mul_i32 s26, s26, {128*3584}
s_add_u32 s25, s25, s26
v_mul_u32_u24 v5, 3584, v0
v_add_u32 v5, s25, v5
s_waitcnt lgkmcnt(0)
s_cmp_eq_u32 s23, 0
s_cselect_b32 s68, s{P_WG}, s{P_WU}
s_cselect_b32 s69, s{P_WG+1}, s{P_WU+1}
s_mov_b32 s70, {512*1792*2}
s_mov_b32 s71, 0x00020000
s_cmp_ge_u32 s18, 28
s_cbranch_scc1 L_notouch
""")
        touch_tile(5, 68, 3584, 96)
        a.label("L_notouch")
    a(f"""
s_movk_i32 s25, 3584
v_mul_lo_u32 v5, v3, s25
v_add_u32 v5, v5, v4
s_lshl_b32 s25, s22, 5
v_add_u32 v5, s25, v5
v_lshrrev_b32 v6, 3, v0
v_and_b32 v7, 7, v0
v_lshlrev_b32 v7, 4, v7
v_lshl_add_u32 v6, v6, 10, v7
v_lshlrev_b32 v3, 4, v0
""")
if OPT["fk"]:
    a(f"""
s_lshr_b32 s23, s17, 2
s_and_b32 s25, s17, 3
s_mul_i32 s25, s25, {128*3584}
s_min_u32 s24, s18, 27
s_lshl_b32 s24, s24, 7
s_add_u32 s25, s25, s24
v_lshrrev_b32 v5, 3, v0
v_mul_u32_u24 v5, 3584, v5
v_add3_u32 v5, v5, s25, v7
""" if OPT["fk"] & 4 == 0 else f"""
s_and_b32 s23, s18, 1
s_bfe_u32 s25, s18, 0x20001
s_mul_i32 s25, s25, {128*3584}
s_lshr_b32 s24, s18, 3
s_lshl_b32 s27, s17, 2
s_add_u32 s24, s24, s27
s_min_u32 s24, s24, 27
s_lshl_b32 s24, s24, 7
s_add_u32 s25, s25, s24
v_lshrrev_b32 v5, 3, v0
v_mul_u32_u24 v5, 3584, v5
v_add3_u32 v5, v5, s25, v7
""")
frag_addr(7 if KF_ else 5)
a(f"""
v_mov_b32 v92, 0
v_mov_b32 v93, 0
v_mov_b32 v94, 0
v_mov_b32 v95, 0
v_add_u32 v1, {WD_LDS}, v3
{"" if XL else "ds_write_b128 v1, v[92:95] offset:7168"}
v_mov_b32 v15, {MISC}
""" + (f"""
v_mov_b32 v16, -1
v_mov_b32 v17, -1
v_lshlrev_b32 v18, 3, v0
ds_write_b64 v18, v[16:17] offset:{MLT & 0xffff}
""" if False else f"""
v_mov_b32 v16, -1
v_mov_b32 v17, -1
v_lshl_add_u32 v98, v0, 3, v15
ds_write_b64 v98, v[16:17] offset:{MLT - MISC}
""" if BW else "") + f"""
s_waitcnt lgkmcnt(0)
""")
srd(64, P_X, 8192); srd(12, P_WS, WS_BYTES); srd(4, P_WD, 1792*512*2); srd(8, P_GW, 1024); srd(60, P_WO, 4096*512*2)
if not KF_ and not HR: a(f"""
s_cmp_eq_u32 s23, 0
s_cselect_b32 s68, s{P_WG}, s{P_WU}
s_cselect_b32 s69, s{P_WG+1}, s{P_WU+1}
s_mov_b32 s70, {512*1792*2}
s_mov_b32 s71, 0x00020000
""")
a(f"""
{"s_and_b32 s23, s18, 1" if OPT["fk"] else ""}
s_lshl_b32 s27, s17, 7
s_mul_i32 s26, s18, {56*1024}
s_add_u32 s26, s26, s27
s_and_b32 s25, s18, 1
s_lshl_b32 s25, s25, 12
v_lshrrev_b32 v12, 2, v0
v_lshlrev_b32 v12, 6, v12
v_and_b32 v7, 3, v0
v_lshl_add_u32 v7, v7, 10, v12
""")
def touch0():
    a(f"""
v_lshlrev_b32 v92, 7, v0
s_lshl_b32 s28, s17, 17
s_lshr_b32 s29, s18, 1
s_lshl_b32 s29, s29, 13
s_add_u32 s28, s28, s29
s_and_b32 s29, s18, 1
s_lshl_b32 s29, s29, {11 if OPT["tc0"] == 1 else 12}
s_add_u32 s28, s28, s29
s_add_u32 s28, s28, {CPA}
s_mov_b64 exec, {"0xffff" if OPT["tc0"] == 1 else "0xffffffff"}
buffer_load_dword v93, v92, s[12:15], s28 offen {['', 'sc1', 'nt'][OPT['tpol']]}
s_mov_b64 exec, -1
""")
if OPT["tc0"] and not OPT["tcd"]: touch0()
def fk_ld():
    for t in range(16):
        a(f"s_mov_b32 s24, {t*8*3584}\nbuffer_load_dwordx4 v[{XF+4*t}:{XF+4*t+3}], v5, s[68:71], s24 offen nt")
if OPT["fk"] & 3 == 2: fk_ld()
a("s_barrier")
backoff(OPT["bd0"])
if OPT["fk"] & 3 == 3: fk_ld()
XB2 = 64
if KF_:
    if OPT["bt"] == 1: tile_ld()
    a("s_lshl_b32 s27, s24, 8")
    for s_ in range(4):
        a(f"buffer_load_dwordx4 v[{XB2+4*s_}:{XB2+4*s_+3}], v2, s[64:67], s27 offen offset:{64*s_}")
if GU and not XL: a("s_cmp_lg_u32 s24, 0\ns_cbranch_scc1 L_nxb")
for s_ in range(0 if RM & 4 or XL or KF_ else 16):
    a(f"buffer_load_dwordx4 v[{XF+4*s_}:{XF+4*s_+3}], v2, s[64:67], 0 offen offset:{64*s_}")
    if s_ % 4 == 3: backoff(OPT["bs0"])
if GU and not XL: a.label("L_nxb")
LATE = OPT["late"]
if LATE & 2: a("s_mov_b32 s72, s26")
for t in range(0 if LATE & 2 or OPT["skip"] & 2 or RM & 8 else 7):
    if KF_: a(f"s_mov_b32 m0, {WD_LDS + 1024*t}\ns_nop 0\nbuffer_load_dwordx4 v6, s[4:7], s26 offen nt lds")
    else: a(f"buffer_load_dwordx4 v[{WDV+4*t}:{WDV+4*t+3}], v6, s[4:7], s26 offen nt")
    if t < 6: a("s_add_u32 s26, s26, 8192")
    if t % 4 == 3: backoff(OPT["bs0"])
a(f"""
s_mov_b32 s76, {SPIN*16}
""")
for k in range(0 if RM & 8 else 4):
    if not XL: a(f"buffer_load_dwordx4 v[{GX+4*k}:{GX+4*k+3}], v7, s[64:67], s25 offen offset:{16*k}")
    a(f"buffer_load_dwordx4 v[{GW+4*k}:{GW+4*k+3}], v12, s[8:11], 0 offen offset:{16*k}")
a.label("L_r1w")
a(f"""
ds_read_b32 v8, v15 offset:136
s_waitcnt lgkmcnt(0)
v_cmp_eq_u32 vcc, 0, v8
""")
spin_tail("L_r1w", "L_r1done", sleep=2)
stamp(1)
a(f"ds_read_b32 v{VN}, v15 offset:96")
if XL:
    a(f"""
v_add_u32 v7, s25, v7
v_lshrrev_b32 v8, 6, v7
v_and_b32 v8, 0x70, v8
v_xor_b32 v7, v7, v8
""")
    for k in range(4):
        a(f"v_xor_b32 v8, {16*k}, v7\nv_add_u32 v8, {WD_LDS}, v8\nds_read_b128 v[{GX+4*k}:{GX+4*k+3}], v8")
    if not HR: x_frag(52, 53)
def gwait(n, ticks):
    a(f"""
s_movk_i32 s31, 3000
L_gw{n}:
s_memrealtime s[78:79]
s_sub_u32 s31, s31, 1
s_cbranch_scc1 L_gwd{n}
s_waitcnt lgkmcnt(0)
s_sub_u32 s78, s78, s74
s_cmp_ge_i32 s78, {ticks}
s_cbranch_scc1 L_gwd{n}
s_sleep 1
s_branch L_gw{n}
L_gwd{n}:
""")
def gu_dma(r):
    if OPT["gt"]: gwait(r, OPT["gt"] + r*OPT["gp"])
    for t in range(16):
        a(f"s_mov_b32 m0, {R1 + 1024*t}\ns_mov_b32 s25, {(128*r + 8*t)*3584}\nbuffer_load_dwordx4 v5, s[68:71], s25 offen {'nt ' if OPT['ffnt'] else ''}lds")
        if t < 15: backoff(OPT["gsl"])
def hg_addr(d, ct):
    a(f"""
s_lshl_b32 s25, s22, 2
s_add_u32 s25, s25, {4*ct}
v_add_u32 v{d}, s25, v{CP+2 if OPT["coal"] else 11}
s_movk_i32 s25, 4682
v_mul_u32_u24 v14, s25, v{d}
v_lshrrev_b32 v14, 16, v14
v_mul_u32_u24 v12, 14, v14
v_sub_u32 v{d}, v{d}, v12
v_lshlrev_b32 v{d}, 4, v{d}
v_lshl_add_u32 v{d}, v14, 12, v{d}
v_lshl_add_u32 v{d}, v{CP+1 if OPT["coal"] else 10}, 8, v{d}
""")
if KF_:
    a(f"v_add_u32 v1, {R1}, v3\ns_waitcnt vmcnt(19)")
    for t in range(16): a(f"ds_write_b128 v1, v[{XF+4*t}:{XF+4*t+3}] offset:{1024*t}")
elif not GU and not HR:
    if OPT["gt"]:
        a(f"s_waitcnt lgkmcnt(0)\nv_readfirstlane_b32 s74, v{VN}")
        gwait(0, OPT["gt"])
    a("s_mov_b32 s25, 0")
    if L2P & 6: a("s_waitcnt vmcnt(0)\ns_cmp_ge_u32 s18, 28\ns_cbranch_scc1 L_nosl")
    for t in range(0 if RM & 16 else 16):
        a(f"s_mov_b32 m0, {R1 + 1024*t}")
        if OPT["fk"] & 2: continue
        if t and not OPT["skip"] & 4: a(f"s_mov_b32 s25, {t*(8 if OPT['fk'] else 32)*3584}")
        a(f"buffer_load_dwordx4 v5, s[68:71], s25 offen {'nt ' if OPT['ffnt'] else ''}lds")
        if t < 15: backoff(OPT["bs1"])
    if L2P & 6: a.label("L_nosl")
    if HL: a(f"s_lshl_b32 s25, s22, 9\nv_add_u32 v13, s25, v3")
    else: hg_addr(13, 0)
a(f"""
{"" if HR else f"s_lshl_b32 s25, s23, {16 if HL else 11}"}
{"" if HR else f"s_add_u32 s25, s25, {HG}"}
s_waitcnt vmcnt({0 if GU or KF_ or HR else 16}) lgkmcnt(0)
v_readfirstlane_b32 s74, v{VN}
v_mov_b32 v57, v{VN}
v_mov_b32 v59, v{VN}
""")
for t in range(0 if LATE & 2 or KF_ else 7): a(f"ds_write_b128 v1, v[{WDV+4*t}:{WDV+4*t+3}] offset:{1024*t}")
if XL: a("ds_write_b128 v1, v[92:95] offset:7168")
for k in range(16):
    a(f"""
v_lshlrev_b32 v48, 16, v{GX+k}
v_and_b32 v49, 0xffff0000, v{GX+k}
v_lshlrev_b32 v50, 16, v{GW+k}
v_and_b32 v51, 0xffff0000, v{GW+k}
v_mul_f32 v48, v48, v50
v_mul_f32 v49, v49, v51
v_cvt_pk_bf16_f32 v48, v48, v49
v_and_b32 v49, 0xffff0000, v48
v_lshlrev_b32 v48, 16, v48
""")
    if k == 0: a("v_add_f32 v52, v48, v49")
    else: a("v_add_f32 v48, v48, v49\nv_add_f32 v52, v52, v48")
a("v_mov_b32 v24, v52")
xsum([24], [25], (8, 4))
a(f"""
v_cvt_pk_bf16_f32 v24, v24, v24
v_lshlrev_b32 v24, 16, v24
v_mul_f32 v24, {f32(-LOG2E)}, v24
v_exp_f32 v24, v24
v_add_f32 v24, 1.0, v24
v_rcp_f32 v24, v24
v_cvt_pk_bf16_f32 v24, v24, v24
v_lshlrev_b32 v{GG}, 16, v24
v_sub_f32 v25, 1.0, v{GG}
v_cvt_pk_bf16_f32 v25, v25, v25
v_lshlrev_b32 v{GG+1}, 16, v25
s_lshl_b32 s26, s18, 17
s_lshl_b32 s27, s17, 7
s_add_u32 s26, s26, s27
s_waitcnt vmcnt(0)
""")
def geglu(g_, u_, d_, t):
    a(f"""
v_lshlrev_b32 v{t}, 16, v{g_}
v_and_b32 v{t+1}, 0xffff0000, v{g_}
v_lshlrev_b32 v{t+2}, 16, v{u_}
v_and_b32 v{t+3}, 0xffff0000, v{u_}
v_mul_f32 v{t+4}, v{t}, v{t}
v_mul_f32 v{t+5}, v{t+1}, v{t+1}
v_mul_f32 v{t+4}, v{t+4}, v{t}
v_mul_f32 v{t+5}, v{t+5}, v{t+1}
v_fma_f32 v{t+4}, v{t+4}, s25, v{t}
v_fma_f32 v{t+5}, v{t+5}, s25, v{t+1}
v_mul_f32 v{t+4}, s26, v{t+4}
v_mul_f32 v{t+5}, s26, v{t+5}
v_exp_f32 v{t+4}, v{t+4}
v_exp_f32 v{t+5}, v{t+5}
v_add_f32 v{t+4}, 1.0, v{t+4}
v_add_f32 v{t+5}, 1.0, v{t+5}
v_rcp_f32 v{t+4}, v{t+4}
v_rcp_f32 v{t+5}, v{t+5}
v_mul_f32 v{t+4}, v{t+4}, v{t}
v_mul_f32 v{t+5}, v{t+5}, v{t+1}
v_cvt_pk_bf16_f32 v{t+4}, v{t+4}, v{t+5}
v_and_b32 v{t+5}, 0xffff0000, v{t+4}
v_lshlrev_b32 v{t+4}, 16, v{t+4}
v_mul_f32 v{t+4}, v{t+4}, v{t+2}
v_mul_f32 v{t+5}, v{t+5}, v{t+3}
v_cvt_pk_bf16_f32 v{d_}, v{t+4}, v{t+5}
""")
D1 = 52
def hpub(D, va):
    a(f"""
v_cvt_pk_bf16_f32 v56, v{D}, v{D+1}
v_cvt_pk_bf16_f32 v58, v{D+2}, v{D+3}
""")
    if not GU: a("s_cmp_ge_u32 s18, 28\ns_cbranch_scc1 L_nohpub")
    if OPT["coal"]:
        a(f"""
ds_bpermute_b32 v56, v{CP}, v56
ds_bpermute_b32 v58, v{CP}, v58
s_mov_b32 exec_hi, 0
s_waitcnt lgkmcnt(0)
""")
    else:
        a("s_mov_b64 exec, s[58:59]")
    a(f"""
buffer_store_dwordx4 v[56:59], v{va}, s[12:15], s30 offen sc1
s_mov_b64 exec, -1
""")
a("s_mov_b32 s30, s25")
if KF_:
    DG = 80; PP = 16
    tag_consts(SEL)
    a(f"""
s_cmp_ge_u32 {'s17, 7' if OPT['fm'] else 's18, 28'}
s_cbranch_scc1 L_nohpub
""")
    gemv128(9, DG, XB2)
    a(f"""
v_and_b32 v12, 1, v11
v_lshl_add_u32 v12, v12, 3, v10
v_lshlrev_b32 v12, 4, v12
v_lshrrev_b32 v13, 1, v11
v_lshl_add_u32 v13, v13, 11, v12
s_lshl_b32 s28, s22, 14
s_lshl_b32 s29, s23, 10
s_add_u32 s28, s28, s29
s_lshl_b32 s29, s24, 8
s_add_u32 s28, s28, s29
s_add_u32 s28, s28, {FP}
s_lshl_b32 s29, s21, 11
s_add_u32 s29, s29, {FP}
""")
    if OPT["kpl"]:
        a(f"""
v_and_b32 v12, 7, v10
v_lshl_add_u32 v12, v11, 3, v12
v_lshlrev_b32 v12, 4, v12
v_lshrrev_b32 v13, 3, v10
v_lshl_add_u32 v13, v13, 9, v12
""")
        pstore(DG, VN, 13, "s29", '' if OPT['kl2'] & 2 else 'sc1')
        a(f"""
s_lshl_b32 s29, s22, 14
s_and_b32 s28, s21, 7
s_lshl_b32 s28, s28, 8
s_add_u32 s29, s29, s28
s_add_u32 s29, s29, {FP}
v_lshlrev_b32 v4, 4, v10
v_lshl_add_u32 v4, v11, 12, v4
""")
    else: a("s_mov_b64 exec, s[58:59]")
    for ct in range(0 if OPT["kpl"] else 4):
        tag_ins(DG + 4*ct, VN, SEL)
        a(f"buffer_store_dwordx4 v[{DG+4*ct}:{DG+4*ct+3}], v13, s[12:15], s28 offen {'' if OPT['kl2'] & 2 else 'sc1'}")
        if ct < 3: a("s_add_u32 s28, s28, 4096")
    a(f"""
s_mov_b64 exec, -1
s_mul_i32 s28, s21, 9363
s_lshr_b32 s28, s28, 16
s_mul_i32 s30, s28, 7
s_sub_u32 s30, s21, s30
s_lshl_b32 s30, s30, 5
s_lshl_b32 s28, s28, 12
s_add_u32 s30, s30, s28
s_add_u32 s30, s30, {HG}
v_and_b32 v12, 7, v0
v_bfe_u32 v13, v0, 3, 1
v_lshlrev_b32 v13, 4, v13
v_lshl_add_u32 v13, v12, 8, v13
{f"s_lshl_b32 s30, s21, 8" + chr(10) + f"s_add_u32 s30, s30, {HG}" + chr(10) + "v_mov_b32 v13, v3" if HL else ""}
s_mov_b32 s72, s26
s_mov_b32 s25, {f32(0.044715)}
s_mov_b32 s26, {f32(-2.0*0.7978845608028654*LOG2E)}
""")
    if OPT["kpl"]: ppoll("L_f1p", PP, 4, "s29", VN, 48, OPT["f1d"], OPT["f1s"], None, 2048)
    else: ppoll("L_f1p", PP, 3, "s29", VN, 48, OPT["f1d"], OPT["f1s"])
    xsum(list(range(PP, PP+8)), list(range(PP+8, PP+16)), ())
    for k in range(4): a(f"v_cvt_pk_bf16_f32 v{PP+8+k}, v{PP+2*k}, v{PP+2*k+1}")
    geglu(PP+8, PP+10, 56, 48)
    geglu(PP+9, PP+11, 58, 48)
    a(f"""
s_mov_b64 exec, 0xffff
buffer_store_dwordx4 v[56:59], v13, s[12:15], s30 offen sc1
s_mov_b64 exec, -1
s_mov_b32 s26, s72
""")
elif GU:
    DG = 64
    a(f"""
s_cmp_lg_u32 s24, 0
s_cbranch_scc1 L_nohpub
v_lshrrev_b32 v8, 2, v10
v_lshl_add_u32 v8, v11, 3, v8
v_lshlrev_b32 v9, 7, v8
v_and_b32 v8, 3, v0
v_lshl_add_u32 v9, v8, 3, v9
v_add_u32 v9, {R1}, v9
""")
    backoff(OPT["gd"])
    for r in range(4):
        gu_dma(r)
        if r == 0:
            for ct in range(4): hg_addr(80 + ct, ct)
        for s_ in range(4):
            a(f"s_waitcnt vmcnt({12 - 4*s_})")
            for ct in range(4):
                q_ = AFR + 16*(s_ & 1) + 4*ct
                a(f"ds_read_b64_tr_b16 v[{q_}:{q_+1}], v9 offset:{s_*4096+ct*32}\nds_read_b64_tr_b16 v[{q_+2}:{q_+3}], v9 offset:{s_*4096+ct*32+512}")
            for ct in range(4):
                q_ = AFR + 16*(s_ & 1) + 4*ct; t = 4*r + s_; d = DG + 4*ct
                a(f"s_waitcnt lgkmcnt({6 - 2*ct})\nv_mfma_f32_16x16x32_bf16 v[{d}:{d+3}], v[{q_}:{q_+3}], v[{XF+4*t}:{XF+4*t+3}], {'0' if t == 0 else f'v[{d}:{d+3}]'}")
        if r < 3: backoff(OPT["gr"])
    for ct in range(4):
        hpub(DG + 4*ct, 80 + ct)
        if ct < 3: a("s_nop 4")
elif not HR:
    gemv(9, D1)
    hpub(D1, 13)
a.label("L_nohpub")
if OPT["xm"]:
    a(f"""
s_getreg_b32 s31, hwreg(HW_REG_XCC_ID, 0, 4)
s_xor_b32 s31, s31, s74
s_lshl_b32 s29, s17, 8
s_add_u32 s29, s29, {XID}
s_lshl_b32 s27, s18, 3
s_add_u32 s27, s27, s29
v_mov_b32 v{VN+1}, s31
v_lshlrev_b32 v66, 3, v0
v_and_b32 v66, 0xff, v66
s_mov_b64 exec, 1
{"" if RM & 256 else f"buffer_store_dwordx2 v[{VN}:{VN+1}], v66, s[12:15], s27 offen sc1"}
s_mov_b64 exec, -1
""")
stamp(2)
if OPT["tc0"] and OPT["tcd"] == 1:
    a("s_mov_b32 s30, s29"); touch0(); a("s_mov_b32 s29, s30")
def wo_dma(sr, t0=0, t1=16):
    for t in range(t0, 0 if OPT["skip"] & 1 else t1):
        a(f"s_mov_b32 m0, {WO_LDS + 1024*t}\ns_nop 0\nbuffer_load_dwordx4 v6, s[60:63], {sr} offen nt lds")
        if t < 15: a(f"s_add_u32 {sr}, {sr}, 8192")
if LATE & 1: a("s_mov_b32 s73, s26")
else: wo_dma("s26")
HB = 16; UB = 32
tag_consts(SEL)
a(f"""
""" + (f"""
s_mul_i32 s30, s18, 1792
s_add_u32 s30, s30, {HG}
v_lshlrev_b32 v1, 4, v10
v_lshl_add_u32 v1, v11, 8, v1
""" if HL and KF_ else f"""
s_mov_b32 s30, {HG}
s_mov_b32 s27, {HG + 65536}
s_mul_i32 s25, s18, 7
v_add_u32 v1, s25, v11
v_lshrrev_b32 v2, {2 if HR else 1}, v1
v_and_b32 v1, {3 if HR else 1}, v1
v_lshlrev_b32 v1, 5, v1
v_lshl_add_u32 v1, v2, {10 if HR else 9}, v1
v_lshl_add_u32 v1, v10, {7 if HR else 6}, v1
""" if HL else f"""
s_lshl_b32 s30, s18, 12
s_add_u32 s30, s30, {HG}
v_lshlrev_b32 v1, 5, v11
v_lshl_add_u32 v1, v10, 8, v1
""") + f"""
v_mov_b32 v4, 0x7ff00000
v_cmp_gt_u32 vcc, 3, v11
s_and_b64 s[66:67], s[58:59], vcc
v_cndmask_b32 v2, v4, v1, s[66:67]
v_cndmask_b32 v1, v4, v1, s[58:59]
v_lshlrev_b32 v14, 4, v10
v_lshl_add_u32 v14, v11, 7, v14
v_add_u32 v14, {WD_LDS}, v14
s_mov_b32 s76, {SPIN}
""")
backoff(OPT["hd"])
a.label("L_hpoll")
if RM & 64: a("s_mov_b32 s28, 1\ns_branch L_hdone2")
for B_, o_ in ((HB, 0),) if KF_ or OPT['hp'] & 2 else ((HB, 0), (UB, 2048)):
    if HL and KF_: a(f"""
buffer_load_dwordx4 v[{B_}:{B_+3}], v1, s[12:15], s30 offen sc1
buffer_load_dwordx4 v[{B_+4}:{B_+7}], v1, s[12:15], s30 offen offset:128 sc1
buffer_load_dwordx4 v[{B_+8}:{B_+11}], v2, s[12:15], s30 offen offset:1024 sc1
buffer_load_dwordx4 v[{B_+12}:{B_+15}], v2, s[12:15], s30 offen offset:1152 sc1
""")
    elif HL: a(f"""
buffer_load_dwordx4 v[{B_}:{B_+3}], v1, s[12:15], {'s27' if o_ else 's30'} offen sc1
buffer_load_dwordx4 v[{B_+4}:{B_+7}], v1, s[12:15], {'s27' if o_ else 's30'} offen offset:16 sc1
buffer_load_dwordx4 v[{B_+8}:{B_+11}], v2, s[12:15], {'s27' if o_ else 's30'} offen offset:1024 sc1
buffer_load_dwordx4 v[{B_+12}:{B_+15}], v2, s[12:15], {'s27' if o_ else 's30'} offen offset:1040 sc1
""")
    else: a(f"""
buffer_load_dwordx4 v[{B_}:{B_+3}], v1, s[12:15], s30 offen offset:{o_} sc1
buffer_load_dwordx4 v[{B_+4}:{B_+7}], v1, s[12:15], s30 offen offset:{o_+16} sc1
buffer_load_dwordx4 v[{B_+8}:{B_+11}], v2, s[12:15], s30 offen offset:{o_+128} sc1
buffer_load_dwordx4 v[{B_+12}:{B_+15}], v2, s[12:15], s30 offen offset:{o_+144} sc1
""")
if RM & 256: a("v_mov_b32 v64, s74\nv_mov_b32 v65, s31")
elif OPT["xm"]: a("buffer_load_dwordx2 v[64:65], v66, s[12:15], s29 offen sc1")
a("s_waitcnt vmcnt(0)")
any_eq([HB+1, HB+3, HB+5, HB+7] + ([] if KF_ or OPT['hp'] & 2 else [UB+1, UB+3, UB+5, UB+7]), "s74", neg=True)
a("s_and_b64 s[64:65], vcc, s[58:59]")
if OPT["xm"]: a("v_cmp_ne_u32 vcc, s74, v64\ns_or_b64 s[64:65], s[64:65], vcc\nv_xor_b32 v67, s74, v65\nv_cmp_lt_u32 vcc, 15, v67\ns_or_b64 s[64:65], s[64:65], vcc")
any_eq([HB+9, HB+11, HB+13, HB+15] + ([] if KF_ or OPT['hp'] & 2 else [UB+9, UB+11, UB+13, UB+15]), "s74", neg=True)
a("s_and_b64 vcc, vcc, s[66:67]\ns_or_b64 vcc, vcc, s[64:65]")
spin_tail("L_hpoll", "L_hdone", sleep=OPT["hslp"])
if OPT["xm"]:
    a(f"""
v_cmp_ne_u32 vcc, s31, v65
s_cmp_eq_u64 vcc, 0
s_cselect_b32 s28, {0 if OPT["xforce"] else 1}, 0
""")
if RM & 64: a.label("L_hdone2")
stamp(3)
a(f"""
s_mov_b32 s25, {f32(0.044715)}
s_mov_b32 s26, {f32(-2.0*0.7978845608028654*LOG2E)}
v_lshrrev_b32 v1, 2, v10
v_lshl_add_u32 v1, v11, 3, v1
v_lshlrev_b32 v1, 7, v1
v_and_b32 v2, 3, v0
v_lshl_add_u32 v1, v2, 3, v1
v_add_u32 v1, {WD_LDS}, v1
""")
AF = 80
def af_rd():
    for ct in range(4):
        for s_ in range(2):
            r = AF + 8*ct + 4*s_
            a(f"ds_read_b64_tr_b16 v[{r}:{r+1}], v1 offset:{s_*4096+ct*32}")
            a(f"ds_read_b64_tr_b16 v[{r+2}:{r+3}], v1 offset:{s_*4096+ct*32+512}")
def trig_wait():
    a(f"s_mov_b32 s76, {SPIN*16}")
    a.label("L_tw")
    a(f"""
ds_read_b32 v8, v15 offset:136
s_waitcnt lgkmcnt(0)
v_cmp_ne_u32 vcc, 2, v8
""")
    spin_tail("L_tw", "L_twdone", sleep=OPT["tslp"])
    stamp(0)
if not LATE & 2: af_rd()
HF = 48
for e in range(8):
    if KF_: a(f"v_mov_b32 v{HF+e}, v{HB+2*e}")
    else: geglu(HB + 2*e, UB + 2*e, HF + e, 56)
if LATE & 2:
    trig_wait()
    for t in range(7):
        a(f"s_mov_b32 m0, {WD_LDS + 1024*t}\ns_nop 0\nbuffer_load_dwordx4 v6, s[4:7], s72 offen nt lds")
        if t < 6: a("s_add_u32 s72, s72, 8192")
    if LATE & 1: wo_dma("s73")
    a(f"s_waitcnt vmcnt({16 if LATE & 1 else 0})")
    af_rd()
a("s_waitcnt lgkmcnt(0)")
for ct in range(4):
    r = AF + 8*ct; d = 112 + 4*ct
    a(f"v_mfma_f32_16x16x32_bf16 v[{d}:{d+3}], v[{r}:{r+3}], v[{HF}:{HF+3}], 0")
    a(f"v_mfma_f32_16x16x32_bf16 v[{d}:{d+3}], v[{r+4}:{r+7}], v[{HF+4}:{HF+7}], v[{d}:{d+3}]")
for ct in range(4): tag_ins(112 + 4*ct, VN, SEL)
a("s_mov_b64 exec, s[58:59]")
for ct in range(4):
    d = 112 + 4*ct
    a(f"ds_write_b128 v14, v[{d}:{d+3}] offset:{512*ct}")
if OPT["hbn"] == 1:
    a(f"""
v_lshlrev_b32 v1, 4, v10
v_lshl_add_u32 v1, v11, 13, v1
s_lshl_b32 s25, s17, 17
s_lshl_b32 s26, s18, 7
s_add_u32 s25, s25, s26
s_add_u32 s25, s25, {CPA}
v_not_b32 v16, v{VN}
v_not_b32 v17, v{VN}
v_not_b32 v18, v{VN}
v_not_b32 v19, v{VN}
""")
    for ct in range(4):
        d = 112 + 4*ct
        a(f"s_add_u32 s26, s25, 4096\nbuffer_store_dwordx4 v[{d}:{d+3}], v1, s[12:15], s26 offen")
        if OPT["prw"]: a(f"buffer_store_dwordx4 v[16:19], v1, s[12:15], s25 offen")
        if ct < 3: a("s_add_u32 s25, s25, 32768")
a(f"""
v_lshl_add_u32 v2, v{CP+2}, 3, v15
s_mov_b64 exec, 15
ds_write_b64 v2, v[{GG}:{GG+1}] offset:64
""")
stamp(4)
if OPT["tchb"]: touch()
if OPT["xm"]:
    a(f"v_mov_b32 v8, s28\nds_write_b32 v15, v8 offset:140")
else:
    a("v_mov_b32 v8, 1\ns_waitcnt vmcnt(0) lgkmcnt(0)\nds_write_b32 v15, v8 offset:140")
if LATE == 1:
    if OPT["pt"]:
        srd(8, P_OUT, 8192)
        a(f"""
s_mov_b64 exec, 1
s_lshl_b32 s25, s17, 7
s_mov_b32 s26, 0x3f0000
v_mov_b32 v16, 0
""")
        if OPT["pt"] & 1: a("buffer_load_dword v17, v16, s[8:11], s25 offen")
        if OPT["pt"] & 2: a("buffer_load_dword v18, v16, s[12:15], s26 offen")
        if OPT["pt"] & 4: a("buffer_load_dword v19, v16, s[60:63], s73 offen nt")
    a("s_mov_b64 exec, -1")
    if OPT["dlb"]:
        a(f"""
s_lshl_b32 s27, s17, 7
s_mul_i32 s26, s18, {56*1024}
s_add_u32 s26, s26, s27
s_movk_i32 s30, 2000
L_dl:
s_memrealtime s[64:65]
s_sub_u32 s30, s30, 1
s_cbranch_scc1 L_dld
s_waitcnt lgkmcnt(0)
s_sub_u32 s64, s64, s74
s_cmp_ge_i32 s64, {OPT['dlb']}
s_cbranch_scc1 L_dld
s_sleep 4
s_branch L_dl
L_dld:
s_mov_b32 s25, 0
""")
        for t in range(16):
            a(f"s_mov_b32 m0, {R1 + 1024*t}")
            if t: a(f"s_mov_b32 s25, {t*32*3584}")
            a(f"buffer_load_dwordx4 v5, s[68:71], s25 offen nt lds")
        for t in range(7):
            a(f"buffer_load_dwordx4 v[{WDV+4*t}:{WDV+4*t+3}], v6, s[4:7], s26 offen nt")
            if t < 6: a("s_add_u32 s26, s26, 8192")
        if OPT["dlw"]: a("s_waitcnt vmcnt(0)")
    if OPT["w8"]:
        backoff(OPT["w8d"])
        a(f"""
s_lshl_b32 s25, s18, 17
s_movk_i32 s26, {OPT["w8"]}
L_w8:
""")
        for t in range(OPT["w8n"]):
            a(f"s_waitcnt vmcnt({OPT['w8n']-1})\nbuffer_load_dwordx4 v[{16+4*t}:{19+4*t}], v3, s[60:63], s25 offen {['', 'nt', 'sc1', 'sc0 sc1', 'sc1 nt'][OPT['w8p']]}\ns_add_u32 s25, s25, 1024")
            if OPT["w8s"]: a(f"s_sleep {OPT['w8s']}")
        a(f"""
s_sub_u32 s26, s26, {OPT['w8n']}
s_cmp_gt_i32 s26, 0
s_cbranch_scc1 L_w8
""")
    if BW:
        def red8b(r, op, src=None):
            for m in ("quad_perm:[1,0,3,2]", "quad_perm:[2,3,0,1]", "row_half_mirror"):
                q = r if src is None else src
                a(f"{op}_dpp v{r}, v{q}, v{q} {m} row_mask:0xf bank_mask:0xf")
                src = None
        a(f"""
v_lshl_add_u32 v20, v0, 3, v15
v_lshl_add_u32 v21, v0, 2, v15
v_lshrrev_b32 v22, 5, v0
v_bfe_u32 v23, v0, 3, 2
v_lshl_add_u32 v22, v22, 5, v23
v_mul_u32_u24 v22, {FST}, v22
s_lshl_b32 s25, s20, 4
s_add_u32 s25, s25, s19
s_mul_i32 s25, s25, {4*FST}
s_lshl_b32 s26, s17, 3
s_add_u32 s25, s25, s26
s_add_u32 s25, s25, {FG + OPT['fgo']}
s_mov_b32 s26, {f32(LOG2E)}
v_mov_b32 v31, v{VN}
s_mov_b32 s76, {SPIN*64}
{f"s_setprio {OPT['bwp']}" if OPT['bwp'] != 3 else ""}
L_bw:
ds_read_b64 v[24:25], v20 offset:{MLT - MISC}
s_sub_u32 s76, s76, 1
s_cbranch_scc1 L_bwd
s_waitcnt lgkmcnt(0)
v_cmp_eq_u32 vcc, -1, v25
s_cbranch_vccz L_bwd
s_bcnt1_i32_b64 s27, vcc
{f"s_sleep {OPT['bwt']}" if OPT['bwt'] else ""}
s_cmp_lt_u32 s27, {OPT['bwn']}
s_cbranch_scc1 L_bw
s_sleep {OPT['bws']}
s_branch L_bw
L_bwd:
{"s_setprio 3" if OPT['bwp'] != 3 else ""}
s_waitcnt lgkmcnt(0)
""")
        red8b(26, "v_max_f32", 24)
        a(f"""
v_sub_f32 v24, v24, v26
v_mul_f32 v24, s26, v24
v_exp_f32 v24, v24
v_mul_f32 v27, v24, v25
""")
        red8b(27, "v_add_f32")
        a(f"""
v_max_f32 v27, {f32(1e-30)}, v27
v_rcp_f32 v29, v27
v_log_f32 v28, v27
v_mul_f32 v24, v24, v29
ds_write_b32 v21, v24 offset:{WTL - MISC}
v_fma_f32 v30, v26, s26, v28
v_perm_b32 v30, v30, v{VN}, s{SEL}
""")
        wo_dma("s73", 0, OPT["bwo"])
        a(f"""
s_mov_b32 exec_lo, 0x01010101
s_mov_b32 exec_hi, 0x01010101
s_waitcnt lgkmcnt(0)
s_barrier
{f"s_sleep {OPT['bwd']}" if OPT['bwd'] else ""}
buffer_store_dwordx2 v[30:31], v22, s[12:15], s25 offen sc1
s_mov_b64 exec, -1
""")
        stamp(0); backoff(OPT["wdel"] - OPT["bwd"])
    elif OPT["lb"] == 2:
        a("s_waitcnt lgkmcnt(0)\ns_barrier")
        if OPT["eb"] and not OPT["ebw"]: a("s_barrier")
        stamp(0); backoff(OPT["wdel"])
    else: trig_wait()
    def wd_late():
        a(f"""
s_lshl_b32 s27, s17, 7
s_mul_i32 s26, s18, {56*1024}
s_add_u32 s26, s26, s27
""")
        for t in range(7):
            a(f"s_mov_b32 m0, {0x1E000 + 1024*t}\ns_nop 0\nbuffer_load_dwordx4 v6, s[4:7], s26 offen nt lds")
            if t < 6: a("s_add_u32 s26, s26, 8192")
    if OPT["wl"] == 1: wd_late()
    wo_dma("s73", OPT["bwo"])
    if OPT["wl"] == 2: wd_late()
    if OPT["lb"] == 1 or OPT["eb"] and OPT["ebw"]: a("s_barrier")
if LATE and OPT["stamps"]: a("s_waitcnt vmcnt(0)"); stamp(4)
hstamps(9, 5)
a("s_waitcnt vmcnt(0) lgkmcnt(0)\ns_endpgm")

a.label("L_stream")
KA, VA, KR, VR = 1, 5, 7, 11
M_, L_ = 20, 21
T0, T1, T2 = 22, 23, 19
Q = 24; KF = 40; S = 56; T = 60; PF = 66; SA = 68; TKA = 69; CL = 70; ZR = 71; O = 72; STG = 104; NINF = 65; FL = 64
TE = T + 2; ONE = T + 3; TA = CL
ST0 = 168 - 16*NST
X0 = KF
a(f"""
v_and_b32 v{T0}, 15, v0
v_lshrrev_b32 v{T1}, 4, v0
s_mul_i32 s24, s3, {RING}
{"s_memrealtime s[98:99]" if OPT["pp"] else ""}
""")
for i in range(4):
    a(f"""
v_add_u32 v{T2}, {4*i}, v{T1}
v_xor_b32 v{T2}, v{T2}, v{T0}
v_lshlrev_b32 v{T2}, 4, v{T2}
v_lshl_add_u32 v{KA+i}, v{T1}, 8, v{T2}
v_lshl_add_u32 v{KR+i}, v{T0}, 8, v{T2}
""")
a(f"""
{"s_lshl_b32 s30, s17, 2" if XB else "s_lshl_b32 s30, s20, 4"}
s_add_u32 s30, s30, {"s20" if XB else "s19"}
{"s_lshl_b32 s30, s30, 1" if XB else ""}
s_lshl_b32 s21, s30, 21
s_lshl_b32 s22, {MEM}, 3
s_add_u32 s22, s22, s3
s_mul_i32 s77, s20, {OPT['r2']}
{f"s_mul_i32 s25, {'s17' if XB else 's19'}, {OPT['r1']}" + chr(10) + "s_add_u32 s77, s77, s25" if OPT['r1'] else ""}
s_add_u32 s22, s22, s77
s_and_b32 s26, s22, 511
{trn("s26")}
s_lshl_b32 s26, s26, 12
s_add_u32 s26, s26, s21
s_add_u32 m0, s24, 8192
s_waitcnt lgkmcnt(0)
""")
if OPT["fz"]:
    a(f"""
s_add_u32 s27, s18, s17
s_and_b32 s27, s27, 3
s_lshr_b32 s28, s18, 2
v_lshrrev_b32 v40, 3, v0
v_and_b32 v41, 7, v0
v_lshlrev_b32 v41, 4, v41
s_cmp_eq_u32 s27, 2
s_cbranch_scc1 L_fzg
s_cmp_lg_u32 s27, 0
s_cbranch_scc1 L_fzd
s_lshl_b32 s29, s17, 3
s_add_u32 s29, s29, s28
s_lshl_b32 s29, s29, 7
s_lshl_b32 s25, s3, 19
s_add_u32 s29, s29, s25
v_lshl_add_u32 v40, v40, 13, v41
s_mov_b32 s28, 65536
""")
    srd(8, P_WQ, 512*4096*2)
    a(f"""
s_branch L_fzl
L_fzg:
s_cmp_ge_u32 s28, 7
s_cbranch_scc1 L_fzd
s_and_b32 s29, s17, 3
s_mul_i32 s29, s29, 7
s_add_u32 s29, s29, s28
s_lshl_b32 s29, s29, 7
s_mul_i32 s25, s3, {64*3584}
s_add_u32 s29, s29, s25
v_mul_u32_u24 v40, 3584, v40
v_add_u32 v40, v40, v41
s_movk_i32 s28, {8*3584}
s_cmp_lt_u32 s17, 4
s_cselect_b32 s8, s{P_WG}, s{P_WU}
s_cselect_b32 s9, s{P_WG+1}, s{P_WU+1}
s_mov_b32 s10, {512*1792*2}
s_mov_b32 s11, 0x00020000
L_fzl:
""")
    for t in range(8):
        a(f"s_add_u32 m0, s24, {1024*t}\ns_nop 0\nbuffer_load_dwordx4 v40, s[8:11], s29 offen nt lds\ns_add_u32 s29, s29, s28")
    a(f"""
s_add_u32 m0, s24, 8192
L_fzd:
""")
srd(4, P_K, 128 << 20)
if OPT["fine"] in (6, 7): a("s_memrealtime s[48:49]")
nload = [0]
def wxk(k): return [0, k & 7, 2*(k & 1), (k*3) & 7, (k & 1)*2 + (k >> 1 & 1) + (k & 4)][OPT["wx"]]
def pre_load(k):
    if k:
        a(f"""
s_xor_b32 s26, s3, {wxk(k)}
s_sub_u32 s26, s26, s3
s_add_u32 s26, s26, s22
s_add_u32 s26, s26, {64*k}
""" if OPT["wx"] else f"s_add_u32 s26, s22, {64*k}")
        a(f"""
s_and_b32 s26, s26, 511
{trn("s26")}
s_lshl_b32 s26, s26, 12
s_add_u32 s26, s26, s21
""")
        if k >= 8: a(f"s_add_u32 s26, s26, {1 << 24}")
    if OPT["pp"] and k >= OPT["pp0"]:
        if k == OPT["pp0"]: a(f"s_mul_i32 s99, s3, {OPT['pps']}\ns_add_u32 s98, s98, s99\ns_movk_i32 s99, 2000")
        a(f"""
L_pp{k}:
s_memrealtime s[100:101]
s_sub_u32 s99, s99, 1
s_cbranch_scc1 L_ppd{k}
s_waitcnt lgkmcnt(0)
s_sub_u32 s100, s100, s98
s_cmp_ge_i32 s100, {OPT['ppo'] + (k - OPT['pp0'] + 1)*OPT['pp']}
s_cbranch_scc1 L_ppd{k}
s_sleep 2
s_branch L_pp{k}
L_ppd{k}:
""")
    if k == 1: a("s_mov_b32 m0, s24")
    if k == 2: a("s_add_u32 m0, s24, 4096")
    for i in range(4):
        if nload[0] == NPRE:
            if OPT["fine"] in (6, 7): a("s_memrealtime s[50:51]")
            setup_rest()
            if OPT["fine"] == 6: a("s_waitcnt vmcnt(0)\ns_memrealtime s[54:55]")
            a("s_waitcnt lgkmcnt(0)\ns_barrier")
            if OPT["fine"] == 6: a("s_memrealtime s[56:57]")
            if OPT["fine"] == 7: a("s_memrealtime s[54:55]")
        if OPT["fine"] == 7 and nload[0] == 16: a("s_memrealtime s[56:57]")
        if nload[0] >= Wp: a(f"s_waitcnt vmcnt({Wp-1})")
        if LOG and nload[0] >= Wp + 3 and (nload[0] - Wp) % 4 == 3:
            pl = [62, 64, 66, 94, 98, 100][(nload[0] - Wp)//4]
            a(f"s_memrealtime s[{pl}:{pl+1}]")
        if k < 3:
            a(f"buffer_load_dwordx4 v{KA+i}, s[4:7], s26 offen offset:{i*1024} nt lds")
        else:
            r = ST0 + 16*(k-3) + 4*i
            a(f"buffer_load_dwordx4 v[{r}:{r+3}], v{KA+i}, s[4:7], s26 offen offset:{i*1024} nt")
        nload[0] += 1
def setup_rest():
    srd(8, P_V, 128 << 20)
    srd(12, P_WS, WS_BYTES)
    for e in range(2):
        a(f"""
v_lshrrev_b32 v{T2}, 1, v{T0}
v_add_u32 v{X0}, {4*e}, v{T1}
v_xor_b32 v{T2}, v{T2}, v{X0}
v_lshlrev_b32 v{T2}, 5, v{T2}
v_and_b32 v{X0}, 1, v{T0}
v_lshl_add_u32 v{T2}, v{X0}, 4, v{T2}
v_lshl_add_u32 v{VA+e}, v{T1}, 8, v{T2}
""")
    a(f"""
s_mov_b32 s79, {hex(SENT)}
v_mov_b32 v{S}, s79
v_mov_b32 v{S+1}, s79
v_mov_b32 v{S+2}, s79
v_mov_b32 v{S+3}, s79
s_mul_i32 s25, s3, {2048 if HR else NSLOT*16}
s_add_u32 s25, s25, {SB}
v_lshl_add_u32 v{T2}, v0, 4, s25
""")
    for k in range(2 if HR else NSLOT//64): a(f"ds_write_b128 v{T2}, v[{S}:{S+3}] offset:{1024*k}")
    a(f"""
v_lshrrev_b32 v{X0}, 2, v0
v_and_b32 v{X0+1}, 7, v{X0}
v_and_b32 v{X0+2}, 3, v0
v_lshlrev_b32 v{X0+2}, 3, v{X0+2}
v_lshl_add_u32 v{SA}, v{T1}, 5, v{X0+2}
v_add_u32 v{SA}, {SB}, v{SA}
v_lshl_add_u32 v{X0+2}, v{X0}, 8, v{X0+2}
""")
    for dt in range(8):
        a(f"v_xor_b32 v{X0+3}, {dt}, v{X0+1}\nv_lshl_add_u32 v{VR+dt}, v{X0+3}, 5, v{X0+2}")
    a(f"""
v_cmp_gt_u32 s[70:71], 8, v{T0}
v_mov_b32 v{M_}, {f32(-1e30)}
v_mov_b32 v{L_}, 0
v_mov_b32 v{NINF}, 0xff80ff80
v_mov_b32 v{ZR}, 0
s_mov_b32 s58, {f32(SCALE)}
s_mov_b32 s59, {f32(LOG2E)}
s_mov_b32 s31, {f32(-LOG2E)}
v_mov_b32 v{ONE}, 1
v_mov_b32 v{FL}, {TK}
v_mov_b32 v{TKA}, {TK}
s_mov_b32 s78, {T1B}
s_mov_b32 s96, 0
s_mov_b32 s60, s24
s_add_u32 s61, s24, 4096
s_add_u32 s72, s24, 8192
s_lshl_b32 s73, s3, 7
s_xor_b32 s27, s73, {1024 + 128*wxk(1)}
s_xor_b32 s28, s73, {2048 + 128*wxk(2)}
""")
    tag_consts(SEL)
    for r in range(O, min(O+32, ST0)): a(f"v_mov_b32 v{r}, 0")
    for r in range(16): a(f"v_mov_b32 v{Q+r}, 0")
for k in range(NSU): pre_load(k)
a(f"""
v_lshlrev_b32 v{T2}, 4, v{T1}
v_lshl_add_u32 v{T2}, v{T0}, 8, v{T2}
v_add_u32 v{T2}, {Q_LDS}, v{T2}
s_mov_b32 s76, {SPIN*16}
""")
a.label("L_qw")
a(f"""
ds_read_b32 v{T}, v{FL} offset:4
s_waitcnt lgkmcnt(0)
v_cmp_ne_u32 vcc, 1, v{T}
""")
spin_tail("L_qw", "L_qwdone", sleep=1)
stamp(1)
a("s_mov_b64 exec, s[70:71]")
for j in range(4): a(f"ds_read_b128 v[{Q+4*j}:{Q+4*j+3}], v{T2} offset:{j*64}")
a("s_mov_b64 exec, -1")

nlab = [0]
def ticket_rd():
    a(f"s_mov_b64 exec, 1\nds_add_rtn_u32 v{TE}, v{TKA}, v{ONE}\ns_mov_b64 exec, -1")
def ticket_use():
    a(f"""
v_readfirstlane_b32 s25, v{TE}
s_and_b32 s75, s25, 1
s_lshr_b32 s25, s25, 1
s_lshl_b32 s25, s25, 2
s_add_u32 s25, s25, s78
v_mov_b32 v{TA}, s25
""")
def entry_rd():
    a(f"ds_read_b32 v{TE}, v{TA}")
def dmask(d):
    a(f"""
s_andn2_b32 s25, {d}, 127
v_add_u32 v{T2}, s25, v{SA}
s_and_b32 s25, {d}, 4
s_lshl_b32 s68, 0x000f000f, s25
s_mov_b32 s69, s68
""")
def kstep(sb, d, mid=None):
    for j in range(4): a(f"v_add_u32 v{KF+4*j}, {sb}, v{KR+j}\nds_read_b128 v[{KF+4*j}:{KF+4*j+3}], v{KF+4*j}")
    dmask(d)
    if mid:
        a("s_waitcnt lgkmcnt(4)"); mid()
    for j in range(4):
        c = "0" if j == 0 else f"v[{S}:{S+3}]"
        a(f"s_waitcnt lgkmcnt({3-j})")
        a(f"v_mfma_f32_16x16x32_bf16 v[{S}:{S+3}], v[{KF+4*j}:{KF+4*j+3}], v[{Q+4*j}:{Q+4*j+3}], {c}")
    for k in range(2): a(f"v_cvt_pk_bf16_f32 v{T+k}, v{S+2*k}, v{S+2*k+1}")
    for k in range(2):
        a(f"v_lshlrev_b32 v{S+2*k}, 16, v{T+k}\nv_and_b32 v{S+2*k+1}, 0xffff0000, v{T+k}")
    for k in range(4): a(f"v_mul_f32 v{S+k}, s58, v{S+k}")
    for k in range(2): a(f"v_cvt_pk_bf16_f32 v{PF+k}, v{S+2*k}, v{S+2*k+1}")
    a(f"s_mov_b64 exec, s[68:69]\nds_write_b64 v{T2}, v[{PF}:{PF+1}]\ns_mov_b64 exec, -1")
ool = []
def soft(skip=None):
    nlab[0] += 1
    n = nlab[0]
    a(f"""
L_sr{n}:
v_cmp_eq_u32 vcc, s79, v{PF}
v_cmp_eq_u32 s[74:75], s79, v{PF+1}
""" if False else f"""
L_sr{n}:
v_cmp_eq_u32 vcc, s79, v{PF}
s_cbranch_vccnz {skip or f"L_ss{n}"}
v_cmp_eq_u32 vcc, s79, v{PF+1}
s_cbranch_vccnz {skip or f"L_ss{n}"}
L_sg{n}:
v_cndmask_b32 v{T}, v{NINF}, v{PF}, s[68:69]
v_cndmask_b32 v{T+1}, v{NINF}, v{PF+1}, s[68:69]
""")
    if not skip: ool.append(f"""
L_ss{n}:
s_sub_u32 s76, s76, 1
s_cmp_le_i32 s76, 0
s_cbranch_scc1 L_sg{n}
ds_read_b64 v[{PF}:{PF+1}], v{T2}
s_waitcnt lgkmcnt(0)
s_branch L_sr{n}
""")
    for k in range(2):
        a(f"v_lshlrev_b32 v{S+2*k}, 16, v{T+k}\nv_and_b32 v{S+2*k+1}, 0xffff0000, v{T+k}")
    a(f"""
v_max3_f32 v{T}, v{S}, v{S+1}, v{S+2}
v_max3_f32 v{T}, v{T}, v{S+3}, v{M_}
v_mov_b32 v{T+1}, v{T}
v_permlane16_swap_b32 v{T}, v{T+1}
v_max_f32 v{T}, v{T}, v{T+1}
v_mov_b32 v{T+1}, v{T}
v_permlane32_swap_b32 v{T}, v{T+1}
v_max_f32 v{T}, v{T}, v{T+1}
v_cmp_gt_f32 vcc, v{T}, v{M_}
s_cbranch_vccz L_nr{n}
v_sub_f32 v{T+1}, v{M_}, v{T}
v_mul_f32 v{T+1}, s59, v{T+1}
v_exp_f32 v{T+1}, v{T+1}
v_mov_b32 v{M_}, v{T}
v_mul_f32 v{L_}, v{L_}, v{T+1}
""")
    for r in range(32): a(f"v_mul_f32 v{O+r}, v{O+r}, v{T+1}")
    a.label(f"L_nr{n}")
    a(f"v_mul_f32 v{T+1}, s31, v{M_}")
    for k in range(4): a(f"v_fma_f32 v{S+k}, v{S+k}, s59, v{T+1}")
    for k in range(4): a(f"v_exp_f32 v{S+k}, v{S+k}")
    for k in range(2): a(f"v_cvt_pk_bf16_f32 v{PF+k}, v{S+2*k}, v{S+2*k+1}")
    a(f"""
v_add_f32 v{T}, v{S}, v{S+1}
v_add_f32 v{T+1}, v{S+2}, v{S+3}
v_add_f32 v{T}, v{T}, v{T+1}
v_add_f32 v{L_}, v{L_}, v{T}
""")
def v_rd(sb):
    for dt in range(8): a(f"v_add_u32 v{KF+2*dt}, {sb}, v{VR+dt}\nds_read_b64_tr_b16 v[{KF+2*dt}:{KF+2*dt+1}], v{KF+2*dt}")
def pv(dt):
    a(f"v_mfma_f32_16x16x16_bf16 v[{O+4*dt}:{O+4*dt+3}], v[{KF+2*dt}:{KF+2*dt+1}], v[{PF}:{PF+1}], v[{O+4*dt}:{O+4*dt+3}]")
def vstep(sb, d, mid=None):
    dmask(d)
    a(f"ds_read_b64 v[{PF}:{PF+1}], v{T2}")
    v_rd(sb)
    a("s_waitcnt lgkmcnt(8)")
    if mid: mid()
    soft()
    a("s_waitcnt lgkmcnt(0)")
    for dt in range(8): pv(dt)
X = STG
VNS = X + 27; FLG = X + 26
F3ADDR = f"""
s_lshl_b32 s77, s16, 2
s_add_u32 s77, s77, {F1}
s_lshr_b32 s22, s16, {OPT['rsh']}
s_lshl_b32 s22, s22, 10
s_add_u32 s22, s22, {F1}
s_lshr_b32 s95, s3, 1
s_lshl_b32 s95, s95, 3
s_lshr_b32 s25, s16, 5
s_add_u32 s95, s95, s25
s_lshl_b32 s95, s95, 5
s_add_u32 s95, s95, s22
""" if OPT["f3"] else ""
FLIM = 1 << 20
COL = OPT["col"]
COL1 = f"""
v_lshrrev_b32 v{X+11}, 2, v{T0}
v_lshlrev_b32 v{X+11}, 12, v{X+11}
v_lshl_add_u32 v{X+25}, v{X+13}, 4, v{X+11}
v_lshl_add_u32 v{X+11}, v{T1}, 13, v{X+25}
""" if COL else f"""v_lshlrev_b32 v{X+11}, 4, v{T0}
v_lshl_add_u32 v{X+11}, v{T1}, 13, v{X+11}
"""
COL2 = "" if COL else f"""v_lshrrev_b32 v{X+25}, 3, v{T0}
v_lshlrev_b32 v{X+25}, 13, v{X+25}
v_lshl_add_u32 v{X+25}, v{X+3}, 4, v{X+25}
"""
FU = OPT["fful"]
FADDR = f"""
s_and_b32 s94, s29, 31
s_lshl_b32 s94, s94, 6
s_lshr_b32 s25, s29, 5
s_add_u32 s94, s94, s25
s_mul_i32 s94, s94, {FST}
s_lshl_b32 s25, s17, 3
s_add_u32 s94, s94, s25
s_add_u32 s94, s94, {FG}
s_andn2_b32 s95, s16, {[0, 7, 3, 1, 0][OPT['fone']]}
s_lshl_b32 s95, s95, 3
s_add_u32 s95, s95, s3
s_mul_i32 s95, s95, {FST}
s_add_u32 s95, s95, {FG}
v_mul_u32_u24 v{X+30}, {8*FST}, v0
""" if not FU else f"""
s_lshl_b32 s94, s29, 3
s_add_u32 s94, s94, s17
s_mul_i32 s94, s94, {FU}
s_add_u32 s94, s94, {FG}
s_lshl_b32 s95, s3, 5
s_add_u32 s95, s95, s18
s_mul_i32 s95, s95, {8*FU}
s_lshl_b32 s25, s17, 3
s_add_u32 s95, s95, s25
s_add_u32 s95, s95, {FG}
v_mul_u32_u24 v{X+30}, {FU}, v0
"""
FSA, FPA = (X+1, X+30) if FU else (X+30, X+1)
PH = OPT["ph"]
if PH: FPA = X + 6
PLY = OPT["ply"]
if OPT["fone"] == 4:
    FADDR = f"""
s_mul_i32 s94, s29, {FST}
s_lshl_b32 s25, {MEM}, 3
s_add_u32 s94, s94, s25
s_add_u32 s94, s94, {FG + OPT['fgo']}
s_lshl_b32 s95, s3, 5
s_add_u32 s95, s95, s18
s_mul_i32 s95, s95, {FST}
s_add_u32 s95, s95, {FG + OPT['fgo']}
v_mov_b32 v{X+30}, 0
"""
PHA = f"""v_and_b32 v{X+10}, 7, v0
v_lshl_add_u32 v{X+10}, v{X+10}, 2, v{T1}
v_lshrrev_b32 v{X+5}, 3, v{T0}
v_lshl_add_u32 v{X+10}, v{X+10}, 1, v{X+5}
v_lshlrev_b32 v{X+10}, 2, v{X+10}
v_lshlrev_b32 v{X+5}, 2, v0
v_and_b32 v{X+6}, 1, v0
v_lshl_add_u32 v{X+6}, v{X+6}, 2, v{T1}
v_lshlrev_b32 v{X+6}, 3, v{X+6}
v_and_b32 v{X+8}, 12, v{X+5}""" if PH else f"""v_bfe_u32 v{X+10}, v0, 4, 1
v_lshlrev_b32 v{X+10}, 2, v{X+10}
v_lshl_add_u32 v{X+10}, v{T0}, 4, v{X+10}
v_lshl_add_u32 v{X+10}, v{X+4}, 3, v{X+10}
v_and_b32 v{X+31}, 1, v0
v_lshlrev_b32 v{X+31}, 4, v{X+31}"""
PHB = f"""s_mov_b32 s25, 0x9e3779b1
v_mul_lo_u32 v{X+31}, v{VNS}, s25
v_lshrrev_b32 v{X+8}, v{X+8}, v{X+31}
v_lshrrev_b32 v{X+31}, v{T0}, v{X+31}""" if PH else f"v_lshrrev_b32 v{X+31}, v{X+31}, v{VNS}"
PLA = f"""s_lshr_b32 s74, s3, 1
s_lshl_b32 s74, s74, 3
s_lshr_b32 s25, s18, 2
s_add_u32 s74, s74, s25
s_lshl_b32 s74, s74, 6
s_and_b32 s25, s3, 1
s_lshl_b32 s25, s25, 2
s_add_u32 s74, s74, s25
s_and_b32 s25, s18, 3
s_add_u32 s74, s74, s25
s_lshl_b32 s74, s74, 8
s_add_u32 s74, s74, {PART}
s_add_u32 s33, s74, 8192
v_lshlrev_b32 v{X+7}, 4, v{T0}
v_lshl_add_u32 v{X+7}, v{T1}, 11, v{X+7}""" if PLY else f"""s_lshl_b32 s74, s3, 5
s_add_u32 s74, s74, s18
s_lshl_b32 s74, s74, {11 if PH else 12}
s_add_u32 s74, s74, {PART}
v_lshlrev_b32 v{X+7}, 4, v0"""
def tail_addr():
    a(f"""
v_mul_u32_u24 v{X}, {CST}, v{T0}
v_lshl_add_u32 v{X}, v{T1}, 4, v{X}
v_add_u32 v{X}, s24, v{X}
v_lshlrev_b32 v{X+1}, 3, v0
s_lshl_b32 s25, s3, 3
s_add_u32 s25, s25, {MLT}
v_lshl_add_u32 v{X+15}, v0, 6, s25
v_mov_b32 v{X+21}, {MISC}
ds_read_b32 v{VNS}, v{X+21} offset:96
s_lshr_b32 s29, s3, 2
{"" if XB else "s_lshl_b32 s29, s29, 3"}
s_add_u32 s29, s29, s30
s_lshl_b32 s29, s29, 2
s_and_b32 s25, s3, 3
s_add_u32 s29, s29, s25
s_lshl_b32 s62, {"s16" if PLY else "s29"}, {11 if PH else 12}
s_lshl_b32 s25, {"s3" if PLY else MEM}, {8 if PH else 9}
s_add_u32 s62, s62, s25
s_add_u32 s62, s62, {PART}
{FADDR}
v_and_b32 v{X+3}, 31, v0
v_lshrrev_b32 v{X+4}, 5, v0
v_lshlrev_b32 v{X+2}, 4, v{X+3}
{PHA}
v_mul_u32_u24 v{X+14}, {4*RING}, v{X+4}
v_add_u32 v{X+2}, v{X+14}, v{X+2}
s_mul_i32 s25, s3, {CST}
v_add_u32 v{X+2}, s25, v{X+2}
v_and_b32 v{X+3}, 7, v0
v_lshlrev_b32 v{X+4}, 2, v{X+4}
v_xor_b32 v{X+4}, v{X+4}, v{X+3}
s_lshl_b32 s25, s3, {5 if BW else 6}
s_add_u32 s25, s25, {WTL if BW else MLT}
v_lshl_add_u32 v{X+4}, v{X+4}, {2 if BW else 3}, s25
{PLA}
v_lshrrev_b32 v{X+9}, 2, v{T0}
v_lshl_add_u32 v{X+9}, v{T1}, 3, v{X+9}
v_lshlrev_b32 v{X+9}, 7, v{X+9}
v_and_b32 v{X+13}, 3, v0
v_lshl_add_u32 v{X+9}, v{X+13}, 3, v{X+9}
s_and_b32 s25, s3, 3
s_lshl_b32 s25, s25, 5
s_add_u32 s25, s25, {WO_LDS}
v_add_u32 v{X+9}, s25, v{X+9}
s_mul_i32 s25, s3, {OST}
s_add_u32 s25, s25, {O_LDS}
v_add_u32 v{X+10}, s25, v{X+10}
v_mul_u32_u24 v{X+12}, {OST}, v{T0}
v_lshl_add_u32 v{X+12}, v{T1}, 4, v{X+12}
v_add_u32 v{X+12}, {O_LDS}, v{X+12}
{COL1}
v_lshl_add_u32 v{X+21}, v{X+13}, 3, v{X+21}
s_lshl_b32 s25, s3, 8
s_add_u32 s25, s25, {WD_LDS}
v_lshl_add_u32 v{X+24}, v{T0}, 4, s25
{COL2}
s_lshl_b32 s29, s17, 17
s_add_u32 s29, s29, {CPA}
s_lshl_b32 s25, s18, 7
s_add_u32 s65, s29, s25
s_lshl_b32 s25, s3, 14
s_add_u32 s67, s65, s25
s_add_u32 s67, s67, {64 if COL else 4096}
s_add_u32 s63, s67, {CPB-CPA}
s_lshl_b32 s25, s3, 15
s_add_u32 s65, s65, s25
s_add_u32 s64, s65, {CPB-CPA}
v_lshlrev_b32 v{X+23}, 10, v{X+13}
v_lshl_add_u32 v{X+23}, v{T1}, 1, v{X+23}
v_lshrrev_b32 v{X+14}, 2, v0
v_lshlrev_b32 v{X+14}, 7, v{X+14}
v_lshl_add_u32 v{X+13}, v{X+13}, 4, v{X+14}
s_lshr_b32 s66, s18, 1
s_lshl_b32 s99, s66, 3
s_lshl_b32 s66, s66, 13
s_add_u32 s66, s66, s29
s_and_b32 s25, s18, 1
s_lshl_b32 s29, s25, {12 if COL else 6}
s_add_u32 s66, s66, s29
s_add_u32 s98, s66, {64 if COL else 4096 if OPT["bpa"] else 4096 + CPB - CPA}
s_lshl_b32 s25, s25, 12
s_add_u32 s99, s99, s25
s_lshl_b32 s25, s17, 7
s_add_u32 s99, s99, s25
s_waitcnt lgkmcnt(0)
{PHB}
""")
EF = OPT["ef"]; KL = OPT["kl"]
if KL:
    a(f"""
s_mov_b64 exec, 1
ds_add_rtn_u32 v{TE}, v{FL}, v{ONE} offset:16
s_mov_b64 exec, -1
s_waitcnt lgkmcnt(0)
v_readfirstlane_b32 s23, v{TE}
s_cmp_ge_u32 s23, {8 - KL}
s_cselect_b32 s25, 20, 0
v_add_u32 v{TKA}, s25, v{FL}
""")
a(f"s_mov_b32 s76, {SPIN*64}\ns_waitcnt vmcnt({4*NSU-4})\ns_mov_b32 s97, 0")
if EF: a("s_mov_b32 s101, 2")
ticket_rd()
kstep("s72", "s73", mid=ticket_use)
entry_rd()
if KL:
    a(f"""
s_cmp_lt_u32 s23, {8 - KL}
s_cbranch_scc1 L_loop2
s_waitcnt lgkmcnt(0)
v_mov_b32 v{TE}, 512
""")
PS = OPT["ps"]
if PS:
    a(f"""
L_loop:
s_cmp_eq_u32 s96, 2
s_cbranch_scc1 L_flush
s_branch L_loop2
L_pre:
s_bitcmp1_b32 s27, 0
s_cbranch_scc0 L_loop2
""")
    dmask("s27")
    a(f"ds_read_b64 v[{PF}:{PF+1}], v{T2}\ns_waitcnt lgkmcnt(0)")
    soft("L_loop2")
    a("s_or_b32 s27, s27, 2")
else: a(f"""
L_loop:
s_cmp_eq_u32 s96, {"s101" if EF else 2}
s_cbranch_scc1 L_flush
""")
a(f"""
L_loop2:
s_waitcnt vmcnt(4) lgkmcnt(0)
{"s_memrealtime s[48:49]" if LOG else ""}
L_eretry:
v_readfirstlane_b32 s23, v{TE}
s_mov_b32 m0, s72
s_cmp_eq_u32 s23, -1
s_cbranch_scc1 L_espin
s_bitcmp1_b32 s23, 9
s_cbranch_scc1 L_special
s_lshl_b32 s26, s23, 1
s_add_u32 s26, s26, s75
s_add_u32 s26, s26, s77
s_and_b32 s26, s26, 511
{trn("s26")}
s_lshl_b32 s26, s26, 12
s_add_u32 s26, s26, s21
s_and_b32 s25, s23, 256
s_lshl_b32 s29, s25, {13 if XB else 16}
s_add_u32 s26, s26, s29
s_bitcmp1_b32 s23, 15
s_cbranch_scc1 L_isv
""")
for i in range(4): a(f"buffer_load_dwordx4 v{KA+i}, s[4:7], s26 offen offset:{i*1024} nt lds")
a("s_branch L_isd\nL_isv:")
for i in range(4): a(f"buffer_load_dwordx4 v{VA+(i&1)}, s[8:11], s26 offen offset:{i*1024} nt lds")
a(f"""
L_isd:
{"s_memrealtime s[50:51]" if LOG else ""}
s_lshr_b32 s25, s25, 6
s_bfe_u32 s73, s23, 0x1000f
s_or_b32 s73, s73, s25
s_lshr_b32 s23, s23, 16
s_lshl_b32 s23, s23, 1
s_add_u32 s23, s23, s75
s_lshl_b32 s23, s23, 7
s_or_b32 s73, s73, s23
L_proc:
""")
ticket_rd()
a("s_bitcmp1_b32 s27, 0\ns_cbranch_scc1 L_pv")
if RV: a("s_bitcmp1_b32 s27, 1\ns_cbranch_scc1 L_null")
kstep("s60", "s27", mid=ticket_use)
a("s_branch L_pd\nL_pv:")
if PS:
    a("s_bitcmp1_b32 s27, 1\ns_cbranch_scc0 L_pv1")
    v_rd("s60")
    a("s_waitcnt lgkmcnt(8)")
    ticket_use()
    if PS == 2: entry_rd()
    for dt in range(8):
        a(f"s_waitcnt lgkmcnt({7-dt+(1 if PS == 2 else 0)})")
        pv(dt)
    if PS == 2: a("s_branch L_pd2")
    a_real = a; a = Asm()
    a.label("L_pv1")
    vstep("s60", "s27", mid=ticket_use)
    a("s_branch L_pd")
    ool.append("\n".join(a.L)); a = a_real
else: vstep("s60", "s27", mid=ticket_use)
a.label("L_pd")
if LOG:
    a(f"""
s_add_u32 s25, s96, 8
s_and_b32 s50, s50, 0xfffffffc
s_and_b32 s51, s73, 1
s_or_b32 s50, s50, s51
s_bitcmp0_b32 s97, 0
s_cbranch_scc1 L_lg1
s_lshl_b64 exec, 1, s25
v_mov_b32 v{T0}, s48
v_mov_b32 v{T1}, s50
s_mov_b64 exec, -1
s_branch L_lg2
L_lg1:
s_cmp_eq_u32 s96, 0
s_cselect_b32 s54, s48, s54
s_cselect_b32 s55, s50, s55
s_mov_b32 s56, s48
s_mov_b32 s57, s50
L_lg2:
""")
entry_rd()
if PS == 2: a.label("L_pd2")
a(f"""
s_mov_b32 s25, s60
s_mov_b32 s60, s61
s_mov_b32 s61, s72
s_mov_b32 s72, s25
s_mov_b32 s27, s28
s_mov_b32 s28, s73
s_add_u32 s96, s96, 1
{"s_cmp_eq_u32 s97, 1" + chr(10) + "s_cbranch_scc1 L_pre" if PS else ""}
s_cmp_lt_u32 s97, 2
s_cbranch_scc1 L_loop
{"s_bitcmp1_b32 s97, 0" if RV else "s_cmp_eq_u32 s97, 3"}
s_cbranch_scc1 L_final
L_flush0:
s_waitcnt vmcnt(0)
L_flush:
s_waitcnt vmcnt(8)
{"s_mov_b32 s101, -1" if EF else ""}
v_lshlrev_b32 v{PF}, 4, v0
v_add_u32 v{TA+1}, s72, v{PF}
s_lshl_b32 s73, s3, 7
""")
for u in range(NST):
    for i in range(4):
        r = ST0 + 16*u + 4*i
        a(f"ds_write_b128 v{TA+1}, v[{r}:{r+3}] offset:{i*1024}")
    a(f"s_xor_b32 s23, s73, {1024*(3+u) + 128*wxk(3+u) + (4 if 3+u >= 8 else 0)}")
    kstep("s72", "s23")
a(f"v_mov_b32 v{ZR}, 0")
for r in range(ST0, O+32): a(f"v_mov_b32 v{r}, 0")
if LOG:
    for n_, pl in enumerate([62, 64, 66, 94, 98, 100]): a(f"v_writelane_b32 v{KF}, s{pl}, {n_}")
    a(f"v_writelane_b32 v{KF}, s80, 6\nv_writelane_b32 v{KF}, s82, 7\nv_writelane_b32 v{KF}, s54, 8\nv_writelane_b32 v{KF}, s56, 9")
    a(f"v_mov_b32 v{KF+1}, 0\nv_writelane_b32 v{KF+1}, s55, 8\nv_writelane_b32 v{KF+1}, s57, 9\nv_cmp_gt_u32 vcc, 10, v0\ns_nop 1\nv_cndmask_b32 v{KF}, 0, v{KF}, vcc")
tail_addr()
if LOG: a(f"v_mov_b32 v{T0}, v{KF}\nv_mov_b32 v{T1}, v{KF+1}")
a(f"""
s_add_u32 s97, s97, 1
s_cmp_eq_u32 s97, 1
s_cbranch_scc1 L_loop2
L_final:
{"s_bitcmp1_b32 s97, 2" + chr(10) + "s_cbranch_scc1 L_pk2" if RV else ""}
s_bitcmp1_b32 s27, 0
s_cbranch_scc1 L_finv
{"s_bitcmp1_b32 s27, 1" + chr(10) + "s_cbranch_scc1 L_fin2" if RV else ""}
s_waitcnt vmcnt(0)
""")
kstep("s60", "s27")
a(f"""
s_branch L_fin2
L_espin:
""" + ("""
s_cmp_lg_u32 s97, 0
s_cbranch_scc1 L_espin2
s_cmp_eq_u32 s96, 0
s_cbranch_scc1 L_flush0
s_branch L_flush
L_espin2:
""" if EF else "") + f"""
s_sub_u32 s76, s76, 1
s_cmp_le_i32 s76, 0
s_cbranch_scc1 L_term
ds_read_b32 v{TE}, v{TA}
s_waitcnt lgkmcnt(0)
s_branch L_eretry
L_special:
{"s_bitcmp1_b32 s23, 1" + chr(10) + "s_cbranch_scc1 L_park" if RV else ""}
s_bitcmp1_b32 s23, 0
s_cbranch_scc0 L_term
v_mov_b32 v{TKA}, {TK+16}
s_mov_b32 s78, {T2B}
""")
ticket_rd()
a("s_waitcnt lgkmcnt(0)")
ticket_use()
a(f"""
s_branch L_espin
L_term:
s_or_b32 s97, s97, 2
v_mov_b32 v{TKA}, {TK+20}
s_branch L_proc
""")
if RV:
    a(f"""
L_park:
s_or_b32 s97, s97, 4
v_mov_b32 v{TKA}, {TK+20}
s_mov_b32 s73, 2
s_branch L_proc
L_pk2:
s_waitcnt vmcnt(0) lgkmcnt(0)
s_mov_b32 s73, 2
s_bitcmp0_b32 s27, 1
s_cbranch_scc1 L_proc
L_pk3:
ds_read_b32 v{TE}, v{FL} offset:16
s_sub_u32 s76, s76, 1
s_cmp_le_i32 s76, 0
s_cbranch_scc1 L_pk4
s_waitcnt lgkmcnt(0)
v_readfirstlane_b32 s25, v{TE}
s_cmp_lg_u32 s25, 0
s_cbranch_scc1 L_pk4
s_sleep {OPT['rvs']}
s_branch L_pk3
L_pk4:
s_mov_b32 s97, 1
v_mov_b32 v{TKA}, {TK}
s_waitcnt lgkmcnt(0)
s_branch L_proc
L_null:
s_waitcnt lgkmcnt(0)
""")
    ticket_use()
    a("s_branch L_pd")
OOL_AT = len(a.L)
a.label("L_finv")
def fine3(k): pass
dmask("s27")
a(f"ds_read_b64 v[{PF}:{PF+1}], v{T2}\ns_waitcnt lgkmcnt(0)")
soft()
a.label("L_fin2")
if OPT["fine"] in (6, 7): a("s_mov_b32 s4, s80")
AA = STG + 32
CM = AA; AW = AA + 16
R = S; GV = X + 28
a(f"""
v_mov_b32 v{T+1}, v{L_}
v_permlane16_swap_b32 v{L_}, v{T+1}
v_add_f32 v{L_}, v{L_}, v{T+1}
v_mov_b32 v{T+1}, v{L_}
v_permlane32_swap_b32 v{L_}, v{T+1}
v_add_f32 v{L_}, v{L_}, v{T+1}
s_mov_b32 s76, {SPIN*16}
s_mov_b64 exec, 0xff
ds_write_b64 v{X+15}, v[{M_}:{L_}]
s_mov_b64 exec, -1
""")
def aw_rd(s_):
    a(f"ds_read_b64_tr_b16 v[{AW+4*s_}:{AW+4*s_+1}], v{X+9} offset:{s_*4096}")
    a(f"ds_read_b64_tr_b16 v[{AW+4*s_+2}:{AW+4*s_+3}], v{X+9} offset:{s_*4096+512}")
def misc_rd():
    if OPT["xm"]: a(f"ds_read_b32 v{T}, v{FL} offset:12")
    a(f"ds_read_b128 v[{X+16}:{X+19}], v{X+24}")
    if not OPT["lb"]:
        for s_ in range(4): aw_rd(s_)
    a(f"ds_read_b64 v[{GV}:{GV+1}], v{X+21} offset:64")
if not OPT["mlate"]:
    a(f"L_bw:\nds_read_b32 v{T}, v{FL} offset:12")
    misc_rd()
    a(f"s_waitcnt lgkmcnt(0)\nv_cmp_ne_u32 vcc, 1, v{T}")
    spin_tail("L_bw", "L_bwdone", sleep=2)
C = O + 16
def fine2(k):
    if OPT["fine"] == 2: a(f"s_waitcnt vmcnt(0)\ns_memtime s[{[4,6,8,10,48,50,54,56][k]}:{[4,6,8,10,48,50,54,56][k]+1}]\ns_waitcnt lgkmcnt(0)")
def fine(k):
    if OPT["fine"] == 1: a(f"s_memtime s[{[4,6,8,10,48,50,54,56][k]}:{[4,6,8,10,48,50,54,56][k]+1}]" + ("\ns_waitcnt lgkmcnt(0)" if k in (0, 3,) else ""))
for dt in range(8): a(f"v_add_u32 v{KF+2*dt}, s60, v{VR+dt}")
if PH: a("s_mov_b32 s68, 0x00010001\ns_mov_b32 s69, 0x00010001")
EB = OPT["eb"]
def red8(r, op, src=None):
    for m in ("quad_perm:[1,0,3,2]", "quad_perm:[2,3,0,1]", "row_half_mirror"):
        q = r if src is None else src
        a(f"{op}_dpp v{r}, v{q}, v{q} {m} row_mask:0xf bank_mask:0xf")
        src = None
def flag_st():
    a(f"""
s_mov_b64 exec, {hex((1 << (FU//8)) - 1) if FU else [0xff, 1, 0x11, 0x55, 1][OPT['fone']]}
buffer_store_dwordx2 v[{FLG}:{FLG+1}], v{FSA}, s[12:15], s94 offen sc1
s_mov_b64 exec, -1
""")
def wts1():
    red8(T, "v_max_f32", CM)
    a(f"""
v_sub_f32 v{CM}, v{CM}, v{T}
v_mul_f32 v{CM}, s59, v{CM}
v_exp_f32 v{CM}, v{CM}
v_mul_f32 v{T+1}, v{CM}, v{CM+1}
""")
    red8(T+1, "v_add_f32")
    a(f"""
v_max_f32 v{T+1}, {f32(1e-30)}, v{T+1}
v_log_f32 v{T+2}, v{T+1}
v_rcp_f32 v{T+3}, v{T+1}
""")
def wts2():
    a(f"""
v_fma_f32 v{FLG}, v{T}, s59, v{T+2}
v_perm_b32 v{FLG}, v{FLG}, v{VNS}, s{SEL}
""")
if EB:
    a(f"s_waitcnt lgkmcnt(0)\ns_barrier\nds_read_b64 v[{CM}:{CM+1}], v{X+4}\ns_waitcnt lgkmcnt(0)")
    wts1(); wts2(); flag_st()
a(f"s_mov_b32 s76, {SPIN}\ns_waitcnt vmcnt({1 if EB else 0})")
fine3(3)
fine(0)
if LOG: a(f"s_memrealtime s[48:49]\ns_add_u32 s25, s96, 8\ns_waitcnt lgkmcnt(0)\ns_lshl_b64 exec, 1, s25\nv_mov_b32 v{T0}, s48\ns_mov_b64 exec, -1")
a("s_bitcmp1_b32 s27, 0\ns_cbranch_scc0 L_fin3")
for dt in range(8): a(f"ds_read_b64_tr_b16 v[{KF+2*dt}:{KF+2*dt+1}], v{KF+2*dt}")
for dt in range(8):
    a(f"s_waitcnt lgkmcnt({7-dt})")
    pv(dt)
a.label("L_fin3")
stamp(2)
fine(1)
a("s_mov_b64 exec, s[70:71]")
for dt in range(8): a(f"ds_write_b128 v{X}, v[{O+4*dt}:{O+4*dt+3}] offset:{dt*64}")
a("s_mov_b64 exec, -1")
if OPT["tcw"]:
    a(f"""
s_cmp_lg_u32 s3, {OPT['fin']}
s_cbranch_scc1 L_ntc
v_lshlrev_b32 v{T}, 7, v0
{"s_mov_b32 exec_hi, 0" if OPT["tcw"] == 1 else ""}
buffer_load_dword v{AA+4}, v{T}, s[12:15], s66 offen {['', 'sc1', 'nt'][OPT['tpol']]}
s_mov_b64 exec, -1
L_ntc:
""")
a("s_waitcnt lgkmcnt(0)")
fine(2)
a("s_barrier")
fine(3)
if BW: a(f"ds_read_b32 v{CM}, v{X+4}")
elif not EB: a(f"ds_read_b64 v[{CM}:{CM+1}], v{X+4}")
for k in range(4):
    a(f"ds_read_b128 v[{C+4*k}:{C+4*k+3}], v{X+2} offset:{k*RING}")
def fp_first():
    a(f"""
s_movk_i32 s22, 0xff
s_mov_b32 s23, 0
s_mov_b64 exec, 0xff
v_mov_b32 v{KF}, v{VNS}
v_mov_b32 v{KF+1}, 0
v_mov_b32 v{KF+2}, v{VNS}
v_mov_b32 v{KF+3}, 0
buffer_atomic_cmpswap_x2 v[{KF}:{KF+3}], v{FPA}, s[12:15], s95 offen sc0 sc1
s_mov_b64 exec, -1
""")
if OPT["fp0"] == 1: fp_first()
def ofma(k):
    a(f"s_waitcnt lgkmcnt({3-k})")
    for j in range(4): a(f"v_{'mul' if k == 0 else 'fmac'}_f32_dpp v{R+j}, v{CM}, v{C+4*k+j} row_newbcast:{k} row_mask:0xf bank_mask:0xf")
if not EB and not BW:
    a("s_waitcnt lgkmcnt(4)")
    wts1()
ofma(0)
if not EB and not BW: wts2()
fine2(0)
if not OPT["fo"] and not EB and not BW: flag_st()
fine2(1)
for k in range(1, 4): ofma(k)
fine(4)
a(f"""
v_permlane32_swap_b32 v{R}, v{R+2}
v_permlane32_swap_b32 v{R+1}, v{R+3}
v_add_f32 v{R}, v{R}, v{R+2}
v_add_f32 v{R+1}, v{R+1}, v{R+3}
{"" if BW else f"v_mul_f32 v{R}, v{R}, v{T+3}"}
{"" if BW else f"v_mul_f32 v{R+1}, v{R+1}, v{T+3}"}
""")
if not PH: a(f"""
v_perm_b32 v{R}, v{R}, v{X+31}, s{SEL}
v_perm_b32 v{R+1}, v{R+1}, v{X+31}, s{SEL+1}
""")
if PH:
    a(f"""
v_cvt_pk_f16_f32 v{R}, v{R}, v{R+1}
v_bfi_b32 v{R}, s68, v{X+31}, v{R}
""")
    if PH == 1: a(f"""
v_mov_b32_dpp v{R+1}, v{R} quad_perm:[1,1,1,1] row_mask:0xf bank_mask:0xf
v_mov_b32_dpp v{R+2}, v{R} quad_perm:[2,2,2,2] row_mask:0xf bank_mask:0xf
v_mov_b32_dpp v{R+3}, v{R} quad_perm:[3,3,3,3] row_mask:0xf bank_mask:0xf
s_mov_b32 exec_lo, 0x11111111
s_mov_b32 exec_hi, 0x11111111
buffer_store_dwordx4 v[{R}:{R+3}], v{X+5}, s[12:15], s62 offen sc1
s_mov_b64 exec, -1
""")
    else: a(f"buffer_store_dword v{R}, v{X+5}, s[12:15], s62 offen sc1")
elif OPT["px4"]:
    a(f"""
v_mov_b32_dpp v{R+2}, v{R} quad_perm:[1,1,3,3] row_mask:0xf bank_mask:0xf
v_mov_b32_dpp v{R+3}, v{R+1} quad_perm:[1,1,3,3] row_mask:0xf bank_mask:0xf
s_mov_b32 exec_lo, {[0x55555555, 0x55555555, 0x5555, 0][OPT['psm']]}
s_mov_b32 exec_hi, {[0x55555555, 0, 0, 0][OPT['psm']]}
buffer_store_dwordx4 v[{R}:{R+3}], v{X+1}, s[12:15], s62 offen sc1
s_mov_b64 exec, -1
""")
else:
    a(f"buffer_store_dwordx2 v[{R}:{R+1}], v{X+1}, s[12:15], s62 offen sc1")
if OPT["fo"]: flag_st()
if OPT["mlate"]:
    if OPT["stamps"]: stamp(3); a("s_waitcnt lgkmcnt(0)")
    misc_rd()
    a(f"s_waitcnt lgkmcnt({1 if OPT['lb'] else 9})")
if OPT["hbn"] != 1: a("s_mov_b64 exec, 0xffff")
if not OPT["mlate"]: stamp(3)
fine(5)
fine2(2)
def st2(lbl, ins, extra=""):
    a(f"""
s_cmp_eq_u32 s63, 1
s_cbranch_scc1 {lbl}n
{ins} sc1
s_branch {lbl}d
{lbl}n:
{ins}{" nt" if OPT["snt"] & (1 if lbl == "L_bs" else 2) else ""}
{extra}
{lbl}d:
""")
if OPT["xm"]:
    a(f"v_readfirstlane_b32 s63, v{T}")
    st2("L_bs", f"buffer_store_dwordx4 v[{X+16}:{X+19}], v{X+25}, s[12:15], s67 offen", f"""
v_not_b32 v{T}, v{VNS}
v_not_b32 v{T+1}, v{VNS}
v_not_b32 v{T+2}, v{VNS}
v_not_b32 v{T+3}, v{VNS}
s_sub_u32 s25, s67, 4096
buffer_store_dwordx4 v[{T}:{T+3}], v{X+25}, s[12:15], s25 offen
""" if OPT["prw"] else "")
elif OPT["hbn"] != 1:
    if OPT["bpa"]: a(f"buffer_store_dwordx4 v[{X+16}:{X+19}], v{X+25}, s[12:15], s67 offen")
    if not OPT["hbn"]: a(f"buffer_store_dwordx4 v[{X+16}:{X+19}], v{X+25}, s[12:15], s63 offen sc1")
    fine2(3)
    if OPT["prw"]:
        a(f"""
v_not_b32 v{T}, v{VNS}
v_not_b32 v{T+1}, v{VNS}
v_not_b32 v{T+2}, v{VNS}
v_not_b32 v{T+3}, v{VNS}
s_sub_u32 s25, s67, 4096
buffer_store_dwordx4 v[{T}:{T+3}], v{X+25}, s[12:15], s25 offen
""")
fine2(4)
BB = AA + 8
def bpoll():
    for k in range(2):
        a(f"buffer_load_dwordx4 v[{BB+4*k}:{BB+4*k+3}], v{X+13}, s[12:15], s98 offen offset:{2048*k} sc1")
def bp_early():
    a(f"s_cmp_lg_u32 s3, {OPT['fin']}\ns_cbranch_scc1 L_nobp0\ns_mov_b64 exec, -1")
    bpoll()
    a.label("L_nobp0")
if OPT["bpe"] >= 2: bp_early()
PA = O
WT = Q; FS = Q + 4; P = Q + 8; TT = KF
FPOLL = {0: f"""
v_mov_b32 v{FS}, 0
v_mov_b32 v{FS+1}, 0
buffer_atomic_or_x2 v[{FS}:{FS+1}], v{FPA}, s[12:15], s95 offen sc0 sc1
""", 1: f"buffer_load_dwordx2 v[{FS}:{FS+1}], v{FPA}, s[12:15], s95 offen sc1",
2: f"""
v_mov_b32 v{FS}, v{VNS}
v_mov_b32 v{FS+1}, 0
v_mov_b32 v{FS+2}, v{VNS}
v_mov_b32 v{FS+3}, 0
buffer_atomic_cmpswap_x2 v[{FS}:{FS+3}], v{FPA}, s[12:15], s95 offen sc0 sc1
""", 3: f"buffer_load_dwordx2 v[{FS}:{FS+1}], v{FPA}, s[12:15], s95 offen sc0 sc1 nt",
4: f"""
v_mov_b32 v{FS}, 0
v_mov_b32 v{FS+1}, 0
buffer_atomic_umax_x2 v[{FS}:{FS+1}], v{FPA}, s[12:15], s95 offen sc0 sc1
""", 5: f"""
v_mov_b32 v{FS}, 0
v_mov_b32 v{FS+1}, 0
buffer_atomic_or_x2 v[{FS}:{FS+1}], v{FPA}, s[12:15], s95 offen sc0 sc1 nt
"""}[OPT["fpol"]]
for j_ in range(OPT["dup"]):
    r_ = KF + 4*j_
    FPOLL += f"""
{f"s_mov_b64 exec, {OPT['dupl']}" if OPT['dupl'] else ""}
v_mov_b32 v{r_}, v{VNS}
v_mov_b32 v{r_+1}, 0
v_mov_b32 v{r_+2}, v{VNS}
v_mov_b32 v{r_+3}, 0
buffer_atomic_cmpswap_x2 v[{r_}:{r_+3}], v{X+1 if OPT['dupl'] else FPA}, s[12:15], s95 offen sc0 sc1
s_mov_b64 exec, s[22:23]
"""
def pload(k):
    if OPT["nopart"] == 2: a(f"s_and_b32 exec_lo, exec_lo, 0xffff\ns_and_b32 exec_hi, exec_hi, 0xffff")
    if OPT["nopart"] == 3: a(f"s_and_b32 exec_lo, exec_lo, 0xff\ns_and_b32 exec_hi, exec_hi, 0xff")
    if OPT["nopart"] != 1: a(f"buffer_load_dwordx4 v[{PA+4*k}:{PA+4*k+3}], v{X+7}, s[12:15], s74 offen offset:{1024*k} sc1")
def ploads(m):
    for k in range(4):
        a(f"""
s_bfe_i32 exec_lo, {m}, {hex(0x10000 + 2*k)}
s_bfe_i32 exec_hi, {m}, {hex(0x10000 + 2*k + 1)}
""")
        pload(k)
FCHK = f"""
v_xor_b32 v{T}, v{FS}, v{VNS}
v_and_b32 v{T}, 0xff, v{T}
v_xor_b32 v{T+1}, v{FS+1}, v{VNS}
v_or_b32 v{T}, v{T}, v{T+1}
v_cmp_eq_u32 vcc, 0, v{T}
"""
FP_ = OPT["fp"]
def fpoll(j):
    r = (PA + 16 if PH else KF) + 4*j
    a(f"""
s_mov_b64 exec, s[22:23]
v_mov_b32 v{r}, v{VNS}
v_mov_b32 v{r+1}, 0
v_mov_b32 v{r+2}, v{VNS}
v_mov_b32 v{r+3}, 0
buffer_atomic_cmpswap_x2 v[{r}:{r+3}], v{FPA}, s[12:15], s95 offen sc0 sc1
""")
def fstep(j, cnt):
    r = (PA + 16 if PH else KF) + 4*j
    a(f"""
s_waitcnt vmcnt({cnt})
v_xor_b32 v{T}, v{r}, v{VNS}
v_and_b32 v{T}, 0xff, v{T}
v_xor_b32 v{T+1}, v{r+1}, v{VNS}
v_or_b32 v{T}, v{T}, v{T+1}
v_cmp_eq_u32 vcc, 0, v{T}
v_cndmask_b32 v{FS}, v{FS}, v{r}, vcc
""")
    if PH: a(f"""
s_and_b64 s[26:27], vcc, s[68:69]
s_mul_i32 exec_lo, s26, 0xffff
s_mul_i32 exec_hi, s27, 0xffff
s_lshr_b64 s[26:27], vcc, 1
buffer_load_dwordx4 v[{PA}:{PA+3}], v{X+7}, s[12:15], s74 offen sc1
s_and_b64 s[26:27], s[26:27], s[68:69]
s_mul_i32 exec_lo, s26, 0xffff
s_mul_i32 exec_hi, s27, 0xffff
s_andn2_b64 s[22:23], s[22:23], vcc
buffer_load_dwordx4 v[{PA+4}:{PA+7}], v{X+7}, s[12:15], s74 offen offset:1024 sc1
s_cbranch_scc0 L_f1done
""")
    else:
        a("s_mov_b32 s25, vcc_lo")
        ploads("s25")
        a(f"""
s_andn2_b32 s22, s22, s25
s_cbranch_scc0 L_f1done
""")
    fpoll(j)
    a(f"s_sleep {OPT['fps']}")
if FP_:
    NS_ = 3 if PH else 5
    if not OPT["fp0"]: a("s_mov_b32 s22, 0x30003\ns_mov_b32 s23, s22" if PH else "s_movk_i32 s22, 0xff\ns_mov_b32 s23, 0")
    for j in range(1 if OPT["fp0"] else 0, FP_):
        fpoll(j)
        if j < FP_ - 1: a(f"s_sleep {OPT['fps']}")
    for j in range(FP_): fstep(j, (FP_ - 1 - j) + NS_*j + (3 if OPT["fp0"] and j == 0 else 0))
    a.label("L_f1")
    a("s_sub_u32 s76, s76, 1\ns_cbranch_scc1 L_f1done")
    for j in range(FP_): fstep(j, NS_*(FP_ - 1))
    a("s_branch L_f1\nL_f1done:\ns_mov_b64 exec, -1")
a_real = a
if FP_: a = Asm()
a(f"""
{"s_mov_b32 s22, 0x00030003" if PH else "s_movk_i32 s22, 0xff"}
s_mov_b32 s23, {"s22" if PH else 0}
{"s_mov_b32 s26, 0" if OPT["inc"] == 2 else ""}
{f"s_mov_b64 exec, -1" + chr(10) + f"v_mov_b32 v{T0}, 0" + chr(10) + f"v_mov_b32 v{T1}, 0" + chr(10) + "s_mov_b32 s30, 0" if LG9 else ""}
L_f1:
{"s_memrealtime s[50:51]" if LG9 else ""}
s_mov_b64 exec, s[22:23]
{FPOLL}
s_sub_u32 s76, s76, 1
s_waitcnt vmcnt(0)
{"s_memrealtime s[48:49]" + chr(10) + "s_waitcnt lgkmcnt(0)" + chr(10) + "s_lshl_b32 s50, s50, 8" + chr(10) + "s_bcnt1_i32_b64 s51, s[22:23]" + chr(10) + "s_or_b32 s50, s50, s51" + chr(10) + "s_mov_b32 m0, s30" + chr(10) + f"v_writelane_b32 v{T0}, s48, m0" + chr(10) + f"v_writelane_b32 v{T1}, s50, m0" + chr(10) + "s_add_u32 s30, s30, 1" + chr(10) + "s_and_b32 s30, s30, 63" if LG9 else ""}
{FCHK}
""")
if OPT["inc"] == 2:
    a(f"""
s_mov_b32 s25, s26
s_mov_b32 s26, vcc_lo
s_andn2_b32 s22, s22, s26
s_cselect_b32 s29, 0, s26
s_or_b32 s25, s25, s29
s_cbranch_scc0 L_f1n
""")
    if OPT["ebd"]: a(f"s_cmp_lg_u32 s22, 0\ns_cbranch_scc1 L_f1x\ns_sleep {OPT['ebd']}\nL_f1x:")
    ploads("s25")
    a("s_cmp_eq_u32 s22, 0\ns_cbranch_scc1 L_f1done")
elif PH:
    a(f"""
s_cbranch_vccz L_f1n
s_and_b64 s[26:27], vcc, s[68:69]
s_mul_i32 exec_lo, s26, 0xffff
s_mul_i32 exec_hi, s27, 0xffff
s_lshr_b64 s[26:27], vcc, 1
buffer_load_dwordx4 v[{PA}:{PA+3}], v{X+7}, s[12:15], s74 offen sc1
s_and_b64 s[26:27], s[26:27], s[68:69]
s_mul_i32 exec_lo, s26, 0xffff
s_mul_i32 exec_hi, s27, 0xffff
s_andn2_b64 s[22:23], s[22:23], vcc
buffer_load_dwordx4 v[{PA+4}:{PA+7}], v{X+7}, s[12:15], {"s33 offen" if PLY else "s74 offen offset:1024"} sc1
s_cbranch_scc0 L_f1done
""")
else:
    a("s_cbranch_vccz L_f1n\ns_mov_b32 s25, vcc_lo")
    if OPT["inc"]: ploads("s25")
    a("s_andn2_b32 s22, s22, s25\ns_cbranch_scc0 L_f1done")
a(f"""
L_f1n:
s_cmp_eq_u32 s76, 0
s_cbranch_scc1 L_f1done
{"s_sleep %d" % OPT['f1slp'] if OPT['f1slp'] else ""}
""")
def patom(k):
    for j in range(4): a(f"v_mov_b32 v{PA+4*k+j}, 0")
    for h in range(2): a(f"buffer_atomic_{['or', 'add', 'umax'][OPT['spo']]}_x2 v[{PA+4*k+2*h}:{PA+4*k+2*h+1}], v{X+7}, s[12:15], s74 offen offset:{1024*k+8*h} sc0 sc1")
if OPT["spec"] and PH:
    a(f"""
s_bcnt1_i32_b64 s25, s[22:23]
s_cmp_gt_u32 s25, {OPT['spec']}
s_cbranch_scc1 L_f1
L_f2:
s_mov_b64 exec, s[22:23]
{FPOLL}
s_and_b64 s[26:27], s[22:23], s[68:69]
s_mul_i32 exec_lo, s26, 0xffff
s_mul_i32 exec_hi, s27, 0xffff
s_cbranch_scc0 L_f2a
""")
    patom(0)
    a(f"""
L_f2a:
s_lshr_b64 s[26:27], s[22:23], 1
s_and_b64 s[26:27], s[26:27], s[68:69]
s_mul_i32 exec_lo, s26, 0xffff
s_mul_i32 exec_hi, s27, 0xffff
s_cbranch_scc0 L_f2b
""")
    patom(1)
    a(f"""
L_f2b:
s_mov_b64 exec, s[22:23]
s_sub_u32 s76, s76, 1
s_waitcnt vmcnt(0)
{FCHK}
s_andn2_b64 s[22:23], s[22:23], vcc
s_cbranch_scc0 L_f1done
s_cmp_eq_u32 s76, 0
s_cbranch_scc1 L_f1done
{"s_sleep %d" % OPT['f2slp'] if OPT['f2slp'] else ""}
s_branch L_f2
""")
elif OPT["spec"]:
    a(f"""
s_bcnt1_i32_b32 s25, s22
s_cmp_gt_u32 s25, {OPT['spec']}
s_cbranch_scc1 L_f1
L_f2:
s_mov_b64 exec, s[22:23]
{FPOLL}
""")
    ploads("s22")
    a(f"""
s_mov_b64 exec, s[22:23]
s_sub_u32 s76, s76, 1
s_waitcnt vmcnt(0)
{FCHK}
s_andn2_b32 s22, s22, vcc_lo
s_cbranch_scc0 L_f1done
s_cmp_eq_u32 s76, 0
s_cbranch_scc1 L_f1done
{"s_sleep %d" % OPT['f2slp'] if OPT['f2slp'] else ""}
s_branch L_f2
""")
if OPT["f1th"]:
    a(f"""
s_bcnt1_i32_b64 s25, s[22:23]
s_cmp_le_u32 s25, {OPT['f1th']}
s_cbranch_scc1 L_f1
s_sleep {OPT['f1sl2']}
""")
a(f"""
s_branch L_f1
L_f1done:
s_mov_b64 exec, -1
""")
a = a_real
if not OPT["inc"]:
    for k in range(4): pload(k)
if OPT["bpe"] == 1: bp_early()
if OPT["stamps"]: a("s_memrealtime s[100:101]")
def red8h(r, op, src):
    a(f"{op}_dpp v{r}, v{src}, v{src} quad_perm:[1,0,3,2] row_mask:0xf bank_mask:0xf")
    for sw in ("v_permlane16_swap_b32", "v_permlane32_swap_b32"):
        a(f"v_mov_b32 v{r+1}, v{r}\n{sw} v{r}, v{r+1}\n{op} v{r}, v{r}, v{r+1}")
(red8h if PH else red8)(T, "v_max_f32", FS)
a(f"""
v_sub_f32 v{FS}, v{FS}, v{T}
v_exp_f32 v{FS}, v{FS}
""")
(red8h if PH else red8)(T, "v_add_f32", FS)
a(f"""
v_rcp_f32 v{T}, v{T}
v_mul_f32 v{FS}, v{FS}, v{T}
""")
if PH:
    for d in range(1, 4): a(f"v_lshrrev_b32 v{TT+8+d}, {d}, v{X+8}")
    for k in range(2): a(f"v_mov_b32_dpp v{WT+k}, v{FS} row_newbcast:{k} row_mask:0xf bank_mask:0xf")
else:
    for x in range(8): a(f"v_readlane_b32 s{32+x}, v{FS}, {x}")
    for k in range(4): a(f"v_mov_b32 v{WT+k}, s{32+2*k+1}")
    a("s_mov_b32 exec_hi, 0")
    for k in range(4): a(f"v_mov_b32 v{WT+k}, s{32+2*k}")
def tag_chk(grans, t):
    for n_, r in enumerate(grans):
        a(f"v_perm_b32 v{t+2*n_}, v{r+1}, v{r}, s{SEL+4}\nv_perm_b32 v{t+2*n_+1}, v{r+3}, v{r+2}, s{SEL+5}")
    for n_, r in enumerate(grans):
        a(f"v_xor_b32 v{t+2*n_}, v{t+2*n_}, v{VNS}")
    for n_, r in enumerate(grans):
        a(f"v_xor_b32 v{t+2*n_}, v{t+2*n_}, v{t+2*n_+1}")
    if len(grans) == 4:
        a(f"v_or3_b32 v{t}, v{t}, v{t+2}, v{t+4}\nv_or_b32 v{t}, v{t}, v{t+6}")
    else:
        a(f"v_or_b32 v{t}, v{t}, v{t+2}")
    a(f"v_cmp_ne_u32 vcc, 0, v{t}")
a.label("L_pchk")
a("s_mov_b64 exec, -1\ns_waitcnt vmcnt(0)")
if PH:
    for k in range(2):
        for d in range(4):
            for h in range(2):
                a(f"v_fma_mix_f32 v{P+2*d+h}, v{WT+k}, v{PA+4*k+d}, {f'v{P+2*d+h}' if k else 0} op_sel:[0,{h},0] op_sel_hi:[0,1,0]")
    for j in range(4): a(f"v_permlane32_swap_b32 v{P+j}, v{P+4+j}")
    for j in range(4): a(f"v_add_f32 v{P+j}, v{P+j}, v{P+4+j}")
    a(f"""
v_permlane16_swap_b32 v{P}, v{P+2}
v_permlane16_swap_b32 v{P+1}, v{P+3}
v_add_f32 v{P}, v{P}, v{P+2}
v_add_f32 v{P+1}, v{P+1}, v{P+3}
v_cvt_pk_bf16_f32 v{P}, v{P}, v{P+1}
ds_write_b32 v{X+10}, v{P}
""")
    for j in range(8): a(f"v_xor_b32 v{TT+j}, v{PA+j}, v{TT+8+(j & 3) if j & 3 else X+8}")
    a(f"""
v_or3_b32 v{TT}, v{TT}, v{TT+1}, v{TT+2}
v_or3_b32 v{TT+3}, v{TT+3}, v{TT+4}, v{TT+5}
v_or3_b32 v{TT}, v{TT}, v{TT+6}, v{TT+7}
v_or_b32 v{TT}, v{TT}, v{TT+3}
v_and_b32 v{TT}, s68, v{TT}
v_cmp_ne_u32 vcc, 0, v{TT}
""")
else:
    for k in range(4):
        for j in range(4): a(f"v_{'mul' if k == 0 else 'fmac'}_f32 v{P+j}, v{WT+k}, v{PA+4*k+j}")
    a(f"""
v_permlane32_swap_b32 v{P}, v{P+2}
v_permlane32_swap_b32 v{P+1}, v{P+3}
v_add_f32 v{P}, v{P}, v{P+2}
v_add_f32 v{P+1}, v{P+1}, v{P+3}
v_cvt_pk_bf16_f32 v{P}, v{P}, v{P+1}
ds_write_b32 v{X+10}, v{P}
""")
    tag_chk([PA+4*k for k in range(4)], TT)
if not OPT["nopart"]: a("s_cbranch_vccnz L_prep")
a.label("L_pdone")
stamp(4)
BB = AA + 8
def bpoll():
    for k in range(2):
        a(f"buffer_load_dwordx4 v[{BB+4*k}:{BB+4*k+3}], v{X+13}, s[12:15], s98 offen offset:{2048*k} sc1")
a(f"s_cmp_lg_u32 s3, {OPT['fin']}\ns_cbranch_scc1 L_nobp")
if not OPT["bdel"] and OPT["bpe"] in (0, 3): bpoll()
a(f"""
L_nobp:
s_cmp_gt_u32 s3, 3
s_waitcnt lgkmcnt(0)
s_barrier
s_cbranch_scc1 L_nomm
""")
for s_ in range(4):
    a(f"ds_read_b128 v[{PA+4*s_}:{PA+4*s_+3}], v{X+12} offset:{64*s_}")
    if OPT["lb"]: aw_rd(s_)
D_ = PA + 16
for s_ in range(4):
    a(f"""
s_waitcnt lgkmcnt({(3-s_)*(3 if OPT["lb"] else 1)})
v_mfma_f32_16x16x32_bf16 v[{D_}:{D_+3}], v[{AW+4*s_}:{AW+4*s_+3}], v[{PA+4*s_}:{PA+4*s_+3}], {"0" if s_ == 0 else f"v[{D_}:{D_+3}]"}
""")
a("s_mov_b64 exec, s[70:71]")
tag_ins(D_, VNS, SEL)
if OPT["xm"]:
    st2("L_as", f"buffer_store_dwordx4 v[{D_}:{D_+3}], v{X+11}, s[12:15], s65 offen")
    a("s_mov_b64 exec, -1")
else:
    a(f"""
{"" if OPT["noa"] else f"buffer_store_dwordx4 v[{D_}:{D_+3}], v{X+11}, s[12:15], s65 offen"}
{"" if OPT["nob"] else f"buffer_store_dwordx4 v[{D_}:{D_+3}], v{X+11}, s[12:15], s64 offen sc1"}
s_mov_b64 exec, -1
""")
a.label("L_nomm")
stamp(5)
if OPT["hbn"]:
    a(f"""
s_cmp_eq_u32 s3, {OPT['fin']}
s_cbranch_scc1 L_nofar
s_mov_b64 exec, 0xffff
buffer_store_dwordx4 v[{X+16}:{X+19}], v{X+25}, s[12:15], s63 offen sc1
s_cmp_lg_u32 s3, {OPT['fin']+1}
s_cbranch_scc1 L_nofar
ds_read_b128 v[{T}:{T+3}], v{X+24} offset:{(-256) & 0xffff}
""" if False else f"""
s_cmp_eq_u32 s3, {OPT['fin']}
s_cbranch_scc1 L_nofar
s_sleep 4
s_mov_b64 exec, 0xffff
buffer_store_dwordx4 v[{X+16}:{X+19}], v{X+25}, s[12:15], s63 offen sc1
s_cmp_lg_u32 s3, {OPT['fin']-1}
s_cbranch_scc1 L_nofar
ds_read_b128 v[{KF}:{KF+3}], v{X+24} offset:256
s_add_u32 s63, s63, 16384
s_waitcnt lgkmcnt(0)
buffer_store_dwordx4 v[{KF}:{KF+3}], v{X+25}, s[12:15], s63 offen sc1
L_nofar:
s_mov_b64 exec, -1
""")
def wstamps():
    if LOG or LG9:
        a(f"""
s_lshl_b32 s29, s16, 3
s_add_u32 s29, s29, s3
s_lshl_b32 s29, s29, 9
s_add_u32 s29, s29, 0x500000
v_lshlrev_b32 v{T}, 2, v0
buffer_store_dword v{T0}, v{T}, s[12:15], s29 offen
buffer_store_dword v{T1}, v{T}, s[12:15], s29 offen offset:256
""")
    a(f"""
s_lshl_b32 s29, s16, 3
s_add_u32 s29, s29, s3
s_lshl_b32 s29, s29, 4
s_add_u32 s29, s29, {STAMP+0x10000}
s_add_u32 s96, s96, {2+NST}
s_waitcnt lgkmcnt(0)
v_mov_b32 v{T}, s84
v_mov_b32 v{T+1}, s85
v_mov_b32 v{T+2}, s82
v_mov_b32 v{T+3}, s96
s_mov_b64 exec, 1
buffer_store_dwordx4 v[{T}:{T+3}], v{ZR}, s[12:15], s29 offen
s_add_u32 s29, s29, 0x8000
s_nop 4
v_mov_b32 v{T}, s86
v_mov_b32 v{T+1}, s88
v_mov_b32 v{T+2}, s90
v_mov_b32 v{T+3}, s77
buffer_store_dwordx4 v[{T}:{T+3}], v{ZR}, s[12:15], s29 offen
s_add_u32 s29, s29, 0x8000
s_nop 4
v_mov_b32 v{T}, s100
buffer_store_dword v{T}, v{ZR}, s[12:15], s29 offen
s_add_u32 s29, s29, 0x8000
s_nop 4
v_mov_b32 v{T}, s4
v_mov_b32 v{T+1}, s6
v_mov_b32 v{T+2}, s8
v_mov_b32 v{T+3}, s10
buffer_store_dwordx4 v[{T}:{T+3}], v{ZR}, s[12:15], s29 offen
s_add_u32 s29, s29, 0x8000
s_nop 4
v_mov_b32 v{T}, s48
v_mov_b32 v{T+1}, s50
v_mov_b32 v{T+2}, s54
v_mov_b32 v{T+3}, s56
buffer_store_dwordx4 v[{T}:{T+3}], v{ZR}, s[12:15], s29 offen
s_mov_b64 exec, -1
s_nop 4
""")
if OPT["stamps"]:
    a(f"s_mov_b32 s77, s76\ns_cmp_eq_u32 s3, {OPT['fin']}\ns_cbranch_scc1 L_fin")
    wstamps()
    a("s_endpgm\nL_fin:")
else:
    a(f"s_cmp_lg_u32 s3, {OPT['fin']}\ns_cbranch_scc1 L_end")
a(f"""
s_mov_b32 s76, {SPIN}
s_movk_i32 s23, {OPT['na']}
""")
srd(60, P_OUT, 8192)
A3 = KF + 8; FB = KF + 12
def red(d, s0):
    for r in range(4): a(f"v_add_f32 v{d+r}, v{s0+r}, v{s0+4+r}")
    a(f"""
v_permlane32_swap_b32 v{d}, v{d+2}
v_permlane32_swap_b32 v{d+1}, v{d+3}
v_add_f32 v{d}, v{d}, v{d+2}
v_add_f32 v{d+1}, v{d+1}, v{d+3}
v_permlane16_swap_b32 v{d}, v{d+1}
v_add_f32 v{d}, v{d}, v{d+1}
v_add_f32_dpp v{d}, v{d}, v{d} row_ror:8 row_mask:0xf bank_mask:0xf
v_add_f32_dpp v{d}, v{d}, v{d} row_ror:4 row_mask:0xf bank_mask:0xf
""")
def gate(d, g):
    a(f"""
v_cvt_pk_bf16_f32 v{d}, v{d}, v{d}
v_lshlrev_b32 v{d}, 16, v{d}
v_mul_f32 v{d}, v{g}, v{d}
v_cvt_pk_bf16_f32 v{d}, v{d}, v{d}
v_lshlrev_b32 v{d}, 16, v{d}
""")
def far(regs):
    if OPT["xm"]:
        a("s_sub_u32 s76, s76, 1"); return
    a(f"s_sub_u32 s23, s23, 1\ns_cselect_b32 s25, {CPB-CPA}, 0")
    for r in regs: a(f"s_add_u32 s{r}, s{r}, s25")
    a("s_sub_u32 s76, s76, 1")
if OPT["bdel"]:
    backoff(OPT["bdel"]); bpoll()
a.label("L_bchk")
a("s_mov_b64 exec, -1")
far([66, 98] if OPT["bpa"] else [66])
a("s_waitcnt vmcnt(0)")
tag_chk([BB, BB+4], TT)
a(f"""
s_cbranch_vccz L_bdone
s_cmp_eq_u32 s76, 0
s_cbranch_scc1 L_bdone
s_mov_b64 exec, vcc
s_sleep {OPT['bsl']}
""")
bpoll()
a("s_branch L_bchk")
a.label("L_bdone")
def fine4(k):
    if OPT["fine"] == 4: a(f"s_memrealtime s[{[4,6,8,10,48,50,54,56][k]}:{[4,6,8,10,48,50,54,56][k]+1}]")
fine4(0)
red(FB, BB); gate(FB, GV+1)
fine4(1)
if OPT["fine"] == 4: a("s_mov_b32 s8, 0")
if OPT["asl0"]: a(f"s_sleep {OPT['asl0']}")
a.label("L_apoll")
for k in range(2):
    a(f"buffer_load_dwordx4 v[{AA+4*k}:{AA+4*k+3}], v{X+13}, s[12:15], s66 offen offset:{2048*k} sc1")
a("s_mov_b64 exec, -1")
far([66])
a("s_waitcnt vmcnt(0)")
if OPT["fine"] == 4: a("s_cmp_lg_u32 s8, 0\ns_cbranch_scc1 L_fx\ns_memrealtime s[8:9]\ns_waitcnt lgkmcnt(0)\nL_fx:")
tag_chk([AA, AA+4], TT)
a(f"""
s_cbranch_vccz L_adone
s_mov_b64 exec, vcc
{"s_sleep %d" % OPT["aslp"] if OPT["aslp"] else ""}
s_cmp_lg_u32 s76, 0
s_cbranch_scc1 L_apoll
s_mov_b64 exec, -1
""")
a.label("L_adone")
fine4(3)
red(A3, AA); gate(A3, GV)
a(f"""
v_add_f32 v{A3}, v{A3}, v{FB}
v_cvt_pk_bf16_f32 v{A3}, v{A3}, v{A3}
""")
a(f"""
s_mov_b32 exec_lo, 0x000f000f
s_mov_b32 exec_hi, 0x000f000f
buffer_store_short v{A3}, v{X+23}, s[60:63], s99 offen {['', 'sc1', 'nt', 'sc0 sc1'][OPT['opol']]}
s_mov_b64 exec, -1
""")
if OPT["stamps"]:
    stamp(6)
    wstamps()
    a(f"s_lshl_b32 s29, s16, 6\ns_add_u32 s29, s29, {STAMP}\ns_waitcnt lgkmcnt(0)")
    for k in range(7):
        a(f"v_mov_b32 v{T}, s{80+2*k}\nv_mov_b32 v{T+1}, s{81+2*k}\nbuffer_store_dwordx2 v[{T}:{T+1}], v{ZR}, s[12:15], s29 offen offset:{8*k}\ns_nop 1")
    a(f"v_mov_b32 v{T}, s76\nbuffer_store_dword v{T}, v{ZR}, s[12:15], s29 offen offset:56")
a("s_endpgm")
for t_ in ool: a(t_)
a.label("L_prep")
a(f"""
s_sub_u32 s76, s76, {256 if OPT["stamps"] else 1}
s_cmp_le_i32 s76, 0
s_cbranch_scc1 L_pdone
{"" if PH else "s_mov_b64 exec, vcc"}
""")
for k in range(2 if PH else 4):
    if PH and OPT["spec"]: patom(k)
    else: a(f"buffer_load_dwordx4 v[{PA+4*k}:{PA+4*k+3}], v{X+7}, s[12:15], {'s33 offen' if PLY and k else f's74 offen offset:{1024*k}'} sc1")
a("s_branch L_pchk")
a.label("L_end")
a("s_endpgm")
a.L += ['.section .rodata,"a"', ".p2align 6", f".amdhsa_kernel {NAME}_kernel",
        "  .amdhsa_next_free_vgpr 168", "  .amdhsa_next_free_sgpr 102", "  .amdhsa_accum_offset 168",
        "  .amdhsa_group_segment_fixed_size 0", "  .amdhsa_kernarg_size 104", "  .amdhsa_user_sgpr_count 2",
        "  .amdhsa_user_sgpr_kernarg_segment_ptr 1", "  .amdhsa_system_sgpr_workgroup_id_x 1", ".end_amdhsa_kernel"]
if OPT["sf"]:
    L = a.L
    i0 = L.index("L_stream:")
    i1 = i0; c_ = 0
    while c_ < min(NPRE, OPT["sf"]*4):
        i1 += 1
        if "buffer_load_dwordx4" in L[i1]: c_ += 1
    head = L[i0+1:i1+1]
    del L[i0+1:i1+1]
    j = L.index("  s_cbranch_scc1 L_stream")
    L[j:j+1] = ["  s_cbranch_scc0 L_help"] + head + ["  s_branch L_stream", "L_help:"]
txt, n = a.text()
open(out, "w").write(txt)
print(f"wrote {out}: {len(txt.splitlines())} lines, {n} nops inserted", file=sys.stderr)
```

```python
import sys, struct
from asmlib import Asm
out = sys.argv[1]
OPT = dict(stamps=0, Wp=8, npre=4, hdr=1, stag=10, hslp=32, qslp=8, nse=29, lead=8, t1=448, t2=384, dslp=2,
           np2=1, np3=2, flit=3, slowp=8, bprio=3, maxf=4, tcha=0, tchb=0, asl=36, tpol=1, wqnt=1, ffnt=1, hd=200, qd=64, prew=0, coal=1, pgate=0, bpat=2, slowth=16, fastp=0, bsl=1, adel=90, perm=0, gx=0, noff=252, sperm=4, eager=1024, f1=0, f2=0, f1slp=2, f2slp=1, f2del=0, fmax=4096, f3=0, rsh=2, fdel=170, f3slp=4, lead2=8, t3=420, fw=1, aat=0, aslp=0, apol=1, na=160, xrot=0, asl0=0, bpa=1, fin=4, nob=0, tb=1, prw=0, fine=0, inc=1, f1th=0, f1sl2=16, hbn=0, fo=0, fst=64, fpol=2, fone=4, nopart=0, noa=0, bdel=0, fful=0, mlate=1, fgo=0, px4=1, xm=1, xforce=0, bpe=3, tcw=0, tc0=0, lay=0, tcd=0, col=1, kill=1, t4=400, kill2=0, t5=460, lead3=8, kill0=1, k0at=0, rot=0, r1=104, r2=256, swm=0, ms=-1, mc=0, mr=0, vo=0, numa=0, late=1, tb1=440, tslp=4, lb=2, skip=0, tp=0, tk=0, leadk=12, leadf=14, tf=480, kv=10, cap1=84, nst=5, jit=0, tk2=400, tr=0, tsh=0, il=0, wdel=12, spec=0, snt=0, opol=0, one=1, pd=290, pc=40, pe=5, pslp=2, pw=0, pws=0, fb=1, fbl=84, fbs=3, fbc=40, fb0=12, fbp=8, fbg=4, fbm=40, pp=0, pp0=2, pps=16, ppo=0, nm=0, wx=0, t2m=0, xb=0, w8=0, w8p=1, w8s=0, w8d=0, w8n=8, dl=0, dlb=0, dlw=1, ad=0, pt=0, st=0, pdv=0, pdw=61, fbn=0, bd0=0, bs0=0, bs1=0, ef=0, kl=0, rm=0, gu=0, xl=0, gsl=0, gd=0, gr=0, xf=1, gt=0, gp=150, fk=0, fq=0, ks=0, q1d=16, q1s=4, f1d=64, f1s=16, bt=0, kl2=0, fm=0, dw=0, dwp=1, dr=0, hp=0, l2p=0, tsec=2, tw=0, tx4=0, tnt=0, fz=0, ql=0, hl=0, kpl=0, fh=0, hr=0, fp=0, fps=6, fp0=0, rv=0, rvt=0, rvs=4, sf=0, pbp=1, wl=0, eb=0, ebw=0, ebd=0, psm=0, ph=0, ply=0, spo=0, dup=0, dupl=0, ps=0, bw=0, bwd=0, bws=8, bwo=0, bwt=0, bwp=3, bwn=32, rvl=0, rv0=72, bp1=0, bpz=0, we=0, wed=0)
for a_ in sys.argv[2:]:
    k, v = a_.split("="); assert k in OPT, k; OPT[k] = int(v)
if OPT["r1"] or OPT["r2"]: OPT["rot"] = -1
Wp = OPT["Wp"]; NPRE = OPT["npre"]
HR = OPT["hr"]
if HR: OPT["xl"] = 1; OPT["xf"] = 1; OPT["ql"] = 1; OPT["hl"] = 1; OPT["l2p"] = 0
TB = 0x1C000
KQ = OPT["ks"] & 1; KF_ = OPT["ks"] & 2
QP, FP = 0x80000, 0x300000
GU = OPT["gu"]; XL = OPT["xl"]
XB = OPT["xb"]; MEM = "s19" if XB else "s17"
NAME = "gated_mix__gqa_block_cached__geglu_ffn__decode"
def f32(x): return "0x%08x" % struct.unpack("<I", struct.pack("<f", x))[0]
LOG2E = 1.4426950408889634
SCALE = 128 ** -0.5
QG, HG, ML, BP, PART, AP, STAMP, CNT = 0x0, 0x20000, 0x40000, 0x80000, 0x100000, 0x200000, 0x400000, 0x480000
F1, F2 = 0x60000, 0x70000
FG, CPA, CPB = 0x40000, 0x200000, 0x300000
if OPT['lay']:
    CNT, CPA, PART = 0x80000, 0x100000, 0x200000
OST = 272
XID = 0x60000
CST = 528
CSTR = 4096 + 256
WS_BYTES = 0x500000
FST = OPT['fst']
LOG = OPT['fine'] == 8
LG9 = OPT['fine'] == 9
if LOG or LG9: WS_BYTES = 0x600000
if OPT['fful']:
    FG = 0x500000; WS_BYTES = FG + 2048*OPT['fful']
elif FST > 64:
    FG = 0x500000; WS_BYTES = FG + 2048*FST
R1 = 0x20000
WO_LDS = R1
R2 = 0x24000
Q_LDS = R2
MISC = R2 + 0x800
MLT = MISC + 0x100
WTL = MISC + 0x300
BW = OPT["bw"]
BP1 = OPT["bp1"]; FTL = MISC + 0x400
O_LDS = R2 + 0x1000
CH = R2 + 0x1400
WD_LDS = R2 + 0x2000
LDS_BYTES = 0x28000
NU = 1024
NSE = OPT["nse"]; LEAD = OPT["lead"]
TK = MISC + 128
K0 = OPT["kill0"]
NUMA = 0
RING = 12288
SB = 8*RING
NSLOT = 192
SENT = 0x7F817F81
ONET = OPT['one'] and not OPT['tk']
PW = OPT['pw']
PD = OPT['pd'] or PW
T1B = CH; T2B = CH + (4*(NSE + K0) if ONET else 1024)
VB = 0x8000
KN = OPT["kill"]; KV = OPT["kv"]
NST = OPT["nst"]; NSU = 3 + NST
SE = 4*NSU
assert KV <= SE + NSE and SE + NSE <= 63
K0TXT = f"""
v_subrev_u32 v5, {K0*0x10001}, v4
v_cmp_le_u32 vcc, {OPT['k0at']}, v0
v_mov_b32 v6, {514 if OPT['rv'] & 2 else 512}
v_cndmask_b32 v4, v4, v6, vcc
v_cmp_le_u32 vcc, {OPT['k0at'] + K0}, v0
v_cndmask_b32 v4, v4, v5, vcc
""" if K0 else ""
CBASE = 8
DYN0 = 8*SE + 8*NSE
SPIN = 1 << 16
a = Asm()
hdr = open("cdna_kernels/%s.s.ref" % NAME).read().split("; Override launch")[0] if OPT["hdr"] else ""
a.L += [l for l in hdr.rstrip().split("\n")] if hdr else []
a.L.append(f"; @launch grid=(256,1,1) block=(640,1,1) lds={LDS_BYTES}")
a.L += ['.amdgcn_target "amdgcn-amd-amdhsa--gfx950"', ".text", f".globl {NAME}_kernel", ".p2align 8",
        f".type {NAME}_kernel,@function", f"{NAME}_kernel:"]

def srd(d, ptr, nbytes):
    a(f"s_mov_b32 s{d}, s{ptr}\ns_mov_b32 s{d+1}, s{ptr+1}\ns_mov_b32 s{d+2}, {hex(nbytes)}\ns_mov_b32 s{d+3}, 0x00020000")
P_X, P_K, P_V, P_WQ, P_WO, P_BX, P_WG, P_WU, P_WD, P_GW, P_OUT, P_DBG, P_WS = [32 + 2*i for i in range(13)]
def stamp(idx):
    if OPT["stamps"]:
        a(f"s_memrealtime s[{80+2*idx}:{81+2*idx}]")
def any_eq(regs, val, neg=False):
    op = "v_cmp_ne_u32" if neg else "v_cmp_eq_u32"
    a(f"{op} vcc, {val}, v{regs[0]}")
    for r in regs[1:]:
        a(f"{op} s[78:79], {val}, v{r}\ns_or_b64 vcc, vcc, s[78:79]")
def spin_tail(loop, done, sleep=0):
    a(f"""
s_sub_u32 s76, s76, 1
s_cmp_eq_u32 s76, 0
s_cbranch_scc1 {done}
""")
    if sleep:
        a(f"s_cmp_eq_u64 vcc, 0\ns_cbranch_scc1 {done}\ns_sleep {sleep}\ns_branch {loop}")
    else:
        a(f"s_cmp_lg_u64 vcc, 0\ns_cbranch_scc1 {loop}")
    a.label(done)
def xsum(regs, tmps, ror, op="v_add_f32", swaps=("v_permlane16_swap_b32", "v_permlane32_swap_b32")):
    for k in ror:
        for r in regs: a(f"{op}_dpp v{r}, v{r}, v{r} row_ror:{k} row_mask:0xf bank_mask:0xf")
    for sw in swaps:
        for r, t in zip(regs, tmps): a(f"v_mov_b32 v{t}, v{r}")
        for r, t in zip(regs, tmps): a(f"{sw} v{r}, v{t}")
        for r, t in zip(regs, tmps): a(f"{op} v{r}, v{r}, v{t}")
SEL = 42
def tag_consts(base):
    for j in range(4): a(f"s_mov_b32 s{base+j}, {hex(0x07060500 | j)}")
    a(f"s_mov_b32 s{base+4}, 0x0c0c0400\ns_mov_b32 s{base+5}, 0x04000c0c")
def tag_ins(r, vn, base):
    for j in range(4): a(f"v_perm_b32 v{r+j}, v{r+j}, v{vn}, s{base+j}")
def tag_bad(grans, vn, base, acc, t0, t1):
    for n_, r in enumerate(grans):
        a(f"v_perm_b32 v{t0}, v{r+1}, v{r}, s{base+4}\nv_perm_b32 v{t1}, v{r+3}, v{r+2}, s{base+5}")
        if n_ == 0:
            a(f"v_or_b32 v{acc}, v{t0}, v{t1}\nv_xor_b32 v{acc}, v{acc}, v{vn}")
        else:
            a(f"v_or_b32 v{t0}, v{t0}, v{t1}\nv_xor_b32 v{t0}, v{t0}, v{vn}\nv_or_b32 v{acc}, v{acc}, v{t0}")
def hstamps(first, n):
    if OPT["stamps"]:
        a(f"s_mov_b64 exec, -1\ns_lshl_b32 s29, s16, 7\ns_add_u32 s29, s29, {STAMP+0x8000+8*first}\ns_waitcnt lgkmcnt(0)\nv_mov_b32 v3, 0")
        for k in range(n):
            a(f"v_mov_b32 v4, s{80+2*k}\nv_mov_b32 v5, s{81+2*k}\nbuffer_store_dwordx2 v[4:5], v3, s[12:15], s29 offen offset:{8*k}\ns_nop 1")

def trn(d):
    tr = OPT["tr"]; ts = 3 + OPT["tsh"]
    if OPT["t2m"]: return f"""
s_bfe_u32 s100, {d}, 0x20001
s_bfe_u32 s101, {d}, 0x30003
s_andn2_b32 {d}, {d}, 62
{"s_xor_b32 s101, s101, s100" if OPT["t2m"] >= 2 else ""}
s_lshl_b32 s100, s100, 4
s_lshl_b32 s101, s101, 1
s_or_b32 {d}, {d}, s100
s_or_b32 {d}, {d}, s101
"""
    if OPT["nm"]: return f"""
s_lshr_b32 s100, {d}, 4
s_xor_b32 s100, s100, {d}
s_and_b32 s100, s100, 2
s_mul_i32 s100, s100, 17
s_xor_b32 {d}, {d}, s100
s_lshl_b32 s100, s19, 1
s_xor_b32 s100, s100, {2*(OPT["nm"]-1)}
s_and_b32 s100, s100, 2
s_xor_b32 {d}, {d}, s100
"""
    if not tr: return ""
    return f"""
s_and_b32 s100, {d}, {(1 << tr) - 1}
s_lshl_b32 s100, s100, {ts}
s_bfe_u32 s101, {d}, {hex((ts << 16) | tr)}
s_andn2_b32 {d}, {d}, {(1 << (tr+ts)) - 1}
s_or_b32 {d}, {d}, s100
s_or_b32 {d}, {d}, s101
"""
def backoff(n):
    while n > 0:
        a(f"s_sleep {min(n, 127)}"); n -= 127
def touch():
    a(f"""
s_mov_b64 exec, 0xffff
v_lshlrev_b32 v9, 7, v0
s_lshl_b32 s25, s17, 17
s_lshr_b32 s26, s18, 1
s_lshl_b32 s26, s26, 13
s_add_u32 s25, s25, s26
s_and_b32 s26, s18, 1
s_lshl_b32 s26, s26, 11
s_add_u32 s25, s25, s26
s_add_u32 s25, s25, {CPA}
buffer_load_dword v16, v9, s[12:15], s25 offen {['', 'sc1', 'nt'][OPT['tpol']]}
""")

XROT = "s_mov_b32 s16, s2" if not OPT["xrot"] else f"""
s_lshr_b32 s18, s2, 3
s_mul_i32 s17, s18, {OPT['xrot']}
s_add_u32 s17, s17, s2
s_and_b32 s17, s17, 7
s_andn2_b32 s16, s2, 7
s_or_b32 s16, s16, s17
"""
a("""
s_cmp_ge_u32 s2, 256
s_cbranch_scc1 L_end
s_load_dwordx16 s[32:47], s[0:1], 0
s_load_dwordx8 s[48:55], s[0:1], 64
s_load_dwordx2 s[56:57], s[0:1], 96
""")
stamp(0)
a(f"""
v_lshrrev_b32 v1, 6, v0
v_and_b32 v0, 63, v0
s_and_b32 s17, s2, 7
v_readfirstlane_b32 s3, v1
{XROT}
s_lshr_b32 s18, s16, 3
s_and_b32 s19, s18, 7
s_lshr_b32 s20, s18, 3
s_xor_b32 s20, s20, {OPT['gx']}
s_cmp_lt_u32 s3, 8
s_cbranch_scc1 L_stream
v_and_b32 v10, 15, v0
v_lshrrev_b32 v11, 4, v0
v_lshlrev_b32 v2, 4, v11
v_lshl_add_u32 v2, v10, 10, v2
v_lshrrev_b32 v3, 1, v0
v_and_b32 v4, 1, v0
v_lshlrev_b32 v4, 4, v4
v_mov_b32 v13, 0
s_cmp_eq_u32 s3, 9
s_cbranch_scc1 L_hb
""")
AFR = 16; D0 = 48; WDV = 64; GX = 16; GW = 32; XF = 100; GG = 164; VN = 166; CP = 60
def frag_addr(sh=5):
    a(f"""
v_lshrrev_b32 v8, 2, v10
v_lshl_add_u32 v8, v11, 3, v8
v_lshlrev_b32 v9, {sh}, v8
v_and_b32 v8, 3, v0
v_lshl_add_u32 v9, v8, 3, v9
v_add_u32 v9, {R1}, v9
v_cmp_gt_u32 s[58:59], 8, v10
v_bfe_u32 v{CP+1}, v0, 2, 3
v_and_b32 v{CP+2}, 3, v0
v_lshl_add_u32 v{CP}, v{CP+2}, 4, v{CP+1}
v_lshlrev_b32 v{CP}, 2, v{CP}
""")
def gemv(va, Dr):
    def rd(bt):
        base = AFR + 16*(bt & 1)
        for k in range(4):
            t = 4*bt + k
            a(f"ds_read_b64_tr_b16 v[{base+4*k}:{base+4*k+1}], v{va} offset:{1024*t}")
            a(f"ds_read_b64_tr_b16 v[{base+4*k+2}:{base+4*k+3}], v{va} offset:{1024*t+128}")
    rd(0)
    for bt in range(4):
        if bt < 3:
            rd(bt+1); a("s_waitcnt lgkmcnt(8)")
        else:
            a("s_waitcnt lgkmcnt(0)")
        base = AFR + 16*(bt & 1)
        for k in range(4):
            t = 4*bt + k
            c = "0" if t == 0 else f"v[{Dr}:{Dr+3}]"
            a(f"v_mfma_f32_16x16x32_bf16 v[{Dr}:{Dr+3}], v[{base+4*k}:{base+4*k+3}], v[{XF+4*t}:{XF+4*t+3}], {c}")
def gemv128(va, DG, XB_):
    def rd(s_):
        for ct in range(4):
            q_ = AFR + 16*(s_ & 1) + 4*ct
            a(f"ds_read_b64_tr_b16 v[{q_}:{q_+1}], v{va} offset:{s_*4096+ct*32}\nds_read_b64_tr_b16 v[{q_+2}:{q_+3}], v{va} offset:{s_*4096+ct*32+512}")
    rd(0)
    for s_ in range(4):
        if s_ < 3:
            rd(s_+1); a("s_waitcnt lgkmcnt(8)")
        else:
            a("s_waitcnt lgkmcnt(0)")
        for ct in range(4):
            q_ = AFR + 16*(s_ & 1) + 4*ct; d = DG + 4*ct
            a(f"v_mfma_f32_16x16x32_bf16 v[{d}:{d+3}], v[{q_}:{q_+3}], v[{XB_+4*s_}:{XB_+4*s_+3}], {'0' if s_ == 0 else f'v[{d}:{d+3}]'}")
def pstore(DG, vn, va, so, pol):
    for h_ in range(2):
        d = DG + 8*h_
        for r in range(4): a(f"v_mov_b32_dpp v{d+r}, v{d+4+r} row_ror:8 row_mask:0xf bank_mask:0xc")
        tag_ins(d, vn, SEL)
        a(f"buffer_store_dwordx4 v[{d}:{d+3}], v{va}, s[12:15], {so} offen offset:{1024*h_} {pol}")
def ppoll(lbl, P, va, so, vn, t, delay, slp, so2=None, off2=1024):
    a(f"s_mov_b32 s76, {SPIN}")
    backoff(delay)
    a(f"""
{lbl}:
buffer_load_dwordx4 v[{P}:{P+3}], v{va}, s[12:15], {so} offen sc1
buffer_load_dwordx4 v[{P+4}:{P+7}], v{va}, s[12:15], {so2 or so} offen offset:{off2} sc1
s_waitcnt vmcnt(0)
""")
    tag_bad([P, P+4], vn, SEL, t, t+1, t+2)
    a(f"v_cmp_ne_u32 vcc, 0, v{t}")
    spin_tail(lbl, lbl + "d", sleep=slp)
    for r in range(8): a(f"v_and_b32 v{P+r}, 0xffffff00, v{P+r}")
a(f"""
s_setprio 3
s_memrealtime s[74:75]
""" + ("" if HR else f"""
s_mul_i32 s21, s17, {OPT['sperm']}
s_add_u32 s21, s21, s18
s_and_b32 s21, s21, 31
s_lshl_b32 s25, s17, 5
s_add_u32 s21, s21, s25
v_lshl_add_u32 v1, v3, 13, v4
s_lshl_b32 s25, s21, 5
v_add_u32 v1, s25, v1
""") + (f"""
v_lshrrev_b32 v1, 3, v0
v_and_b32 v5, 7, v0
v_lshlrev_b32 v5, 4, v5
v_lshl_add_u32 v1, v1, 13, v5
s_lshr_b32 s25, s21, 2
s_lshl_b32 s25, s25, 7
s_and_b32 s26, s21, 3
s_lshl_b32 s26, s26, 20
s_add_u32 s25, s25, s26
v_add_u32 v1, s25, v1
s_lshr_b32 s26, s26, 12
""" if OPT["fq"] or KQ else "") + f"""
s_mov_b64 s[72:73], 1
v_mov_b32 v15, {OPT['noff']}
v_lshlrev_b32 v3, 4, v0
s_waitcnt lgkmcnt(0)
""")
stamp(8)
srd(68, P_DBG, 256)
a(f"""
s_cmp_ge_u32 s16, 8
s_cbranch_scc1 L_nononce
s_or_b32 s74, s74, 1
v_mov_b32 v12, s74
s_mov_b64 exec, s[72:73]
buffer_atomic_cmpswap v[12:13], v15, s[68:71], 0 offen sc1
s_mov_b64 exec, -1
""")
a.label("L_nononce")
srd(60, P_WQ, 512*4096*2); srd(64, P_X, 8192)
backoff(OPT["ad"])
def x_dma():
    for b_ in range(8):
        a(f"v_xor_b32 v{16+b_}, {16*b_}, v3")
    for b_ in range(8):
        a(f"s_mov_b32 m0, {WD_LDS + 1024*b_}\ns_movk_i32 s25, {1024*b_}\nbuffer_load_dwordx4 v{16+b_}, s[64:67], s25 offen lds")
def x_frag(t0, t1):
    a(f"""
v_and_b32 v{t0}, 7, v10
v_xor_b32 v{t1}, v{t0}, v11
v_lshlrev_b32 v{t1}, 4, v{t1}
v_lshl_add_u32 v{t0}, v{t0}, 10, v{t1}
v_add_u32 v{t0}, {WD_LDS}, v{t0}
v_xor_b32 v{t1}, 64, v{t0}
""")
    for s_ in range(16):
        a(f"ds_read_b128 v[{XF+4*s_}:{XF+4*s_+3}], v{(t0, t1)[s_ & 1]} offset:{128*(s_ >> 1)}")
L2P = OPT["l2p"]
def touch_tile(va, sd, stride, dst):
    for h_ in range(2):
        a(f"s_mov_b32 s27, {64*h_*stride}")
        for sec in range(OPT["tsec"]):
            a(f"buffer_load_dword v{dst+2*h_+sec}, v{va}, s[{sd}:{sd+3}], s27 offen offset:{64*sec}{' nt' if OPT['tnt'] else ''}")
if L2P & 1:
    a(f"""
s_lshr_b32 s25, s21, 2
s_lshl_b32 s25, s25, 7
s_and_b32 s26, s21, 3
s_lshl_b32 s26, s26, 20
s_add_u32 s25, s25, s26
v_lshl_add_u32 v5, v0, 13, s25
""")
    touch_tile(5, 60, 8192, 56)
if XL and OPT["xf"] and not OPT["rm"] & 2: x_dma()
def wq_dma():
    a("s_mov_b32 s25, 0")
    for t in range(16):
        a(f"s_mov_b32 m0, {R1 + 1024*t}")
        if t: a(f"s_mov_b32 s25, {t*32*8192}")
        a(f"buffer_load_dwordx4 v55, s[60:63], s25 offen {'nt ' if OPT['wqnt'] else ''}lds")
if L2P & 1: a("v_mov_b32 v55, v1")
a("s_mov_b32 s25, 0")
RM = OPT["rm"]
if OPT["fh"] or HR:
    a(f"""
s_mov_b32 s21, -1
s_lshr_b32 s27, s18, 1
v_lshrrev_b32 v40, 2, v0
v_and_b32 v41, 3, v0
v_lshlrev_b32 v41, 4, v41
s_bitcmp1_b32 s18, 0
s_cbranch_scc1 L_fhg
s_lshl_b32 s29, s17, 4
s_add_u32 s29, s29, s27
s_lshl_b32 s21, s29, 10
s_add_u32 s21, s21, {QG}
s_lshl_b32 s29, s29, 6
v_lshl_add_u32 v40, v40, 13, v41
s_mov_b32 s28, {16*8192}
s_branch L_fhl
L_fhg:
s_cmp_ge_u32 s27, 14
s_cbranch_scc1 L_fhd
s_and_b32 s29, s17, 3
s_mul_i32 s29, s29, 14
s_add_u32 s29, s29, s27
s_lshl_b32 s21, s29, 10
s_lshr_b32 s28, s17, 2
s_lshl_b32 s28, s28, 16
s_add_u32 s21, s21, s28
s_add_u32 s21, s21, {HG}
s_lshl_b32 s29, s29, 6
v_mul_u32_u24 v40, 3584, v40
v_add_u32 v40, v40, v41
s_mov_b32 s28, {16*3584}
s_cmp_lt_u32 s17, 4
s_cselect_b32 s60, s{P_WG}, s{P_WU}
s_cselect_b32 s61, s{P_WG+1}, s{P_WU+1}
s_mov_b32 s62, {512*1792*2}
L_fhl:
""")
    for t in range(0 if RM & 1 else 32):
        a(f"s_mov_b32 m0, {TB + 1024*t if HR else R1 + 1024*(t & 15)}\n{'s_add_u32 s29, s29, s28' if t else 's_nop 0'}\nbuffer_load_dwordx4 v40, s[60:63], s29 offen nt lds")
    a.label("L_fhd")
for t in range(0 if RM & 1 or L2P & 1 or HR else 16):
    a(f"s_mov_b32 m0, {R1 + 1024*t}")
    if t and not OPT["skip"] & 8: a(f"s_mov_b32 s25, {t*(8 if OPT['fq'] or KQ else 32)*8192}")
    a(f"buffer_load_dwordx4 v1, s[60:63], s25 offen {'nt ' if OPT['wqnt'] else ''}lds")
if OPT["fine"] == 7: stamp(6)
if XL and not OPT["xf"]: x_dma()
for s_ in range(0 if RM & 2 or XL else 4 if KQ else 16):
    a(f"buffer_load_dwordx4 v[{XF+4*s_}:{XF+4*s_+3}], v2, s[64:67], {'s26' if KQ else 0} offen offset:{64*s_}")
srd(12, P_WS, WS_BYTES)
CNTA = f"""s_lshl_b32 s77, s17, 2
s_add_u32 s77, s77, s20
s_mul_i32 s77, s77, {CSTR}
s_add_u32 s77, s77, {CNT}
s_cmp_lg_u32 s19, 0""" if XB else f"""s_mul_i32 s77, s18, {CSTR}
s_add_u32 s77, s77, {CNT}
s_cmp_lg_u32 s17, 0""" if not NUMA else f"""s_lshr_b32 s75, s17, 2
s_lshl_b32 s77, s18, 1
s_add_u32 s77, s77, s75
s_mul_i32 s77, s77, {CSTR}
s_add_u32 s77, s77, {CNT}
s_xor_b32 s75, s75, s19
s_xor_b32 s75, s75, {NUMA-1}
s_and_b32 s75, s75, 1
s_and_b32 s25, s17, 3"""
STAT = f"""
ds_write_b64 v2, v[4:5] offset:144
v_lshl_add_u32 v35, v0, 16, v0
s_mul_i32 s25, {MEM}, {NSE}
s_add_u32 s26, s25, {8*SE - SE + VB}
v_add_u32 v4, s26, v35
v_lshrrev_b32 v5, 2, v0
v_mul_u32_u24 v5, 28, v5
s_lshl_b32 s26, {MEM}, 2
s_add_u32 s26, s26, {VB}
v_add3_u32 v5, v5, s26, v35
v_cmp_gt_u32 vcc, {64 if OPT["il"] else SE}, v0
v_cndmask_b32 v4, v4, v5, vcc
v_lshlrev_b32 v1, 2, v0
v_add_u32 v5, {4*KN}, v1
v_cmp_gt_u32 vcc, {KV}, v0
v_cndmask_b32 v5, v5, v1, vcc
v_add_u32 v5, {T2B}, v5
""" + (f"""
v_mov_b32 v66, v5
v_mov_b32 v67, v4
""" if PD else f"""
s_bfm_b64 exec, {SE + NSE}, 0
ds_write_b32 v5, v4
""") + (f"""
v_mov_b32 v4, {514 if OPT['rv'] & 1 else 512}
v_add_u32 v5, {T2B + 4*KV}, v1
s_mov_b64 exec, {(1 << KN) - 1}
ds_write_b32 v5, v4
""" if KN else "") + f"""
s_mov_b64 exec, -1
s_add_u32 s25, s25, {8*SE + (SE << 16)}
v_add_u32 v4, s25, v35
""" + (f"""
v_subrev_u32 v6, {K0}, v0
v_cmp_gt_u32 vcc, {OPT['k0at'] + K0}, v0
v_cndmask_b32 v6, v6, v0, vcc
v_lshrrev_b32 v6, 2, v6
v_mul_u32_u24 v6, 28, v6
s_add_u32 s26, s26, {8*SE + (SE << 16) - VB}
v_add3_u32 v4, v6, s26, v35
""" if OPT["il"] else "")
QCH = f"""s_mul_i32 s27, s17, {OPT['sperm']}
s_lshl_b32 s28, s20, 3
s_add_u32 s27, s27, s28
s_and_b32 s27, s27, 31
s_lshl_b32 s28, s17, 5
s_add_u32 s27, s27, s28
s_lshl_b32 s27, s27, 6""" if XB else f"""s_lshl_b32 s27, s18, 6""" if not NUMA else f"""s_and_b32 s27, s17, 4
s_mul_i32 s28, s27, {OPT['sperm']}
s_add_u32 s28, s28, s18
s_and_b32 s28, s28, 31
s_lshl_b32 s27, s27, 5
s_add_u32 s27, s27, s28
s_lshl_b32 s27, s27, 6"""
if HR:
    CNTA = f"""s_mul_i32 s77, s18, {CSTR}
s_add_u32 s77, s77, {CNT}
s_lshl_b32 s25, s18, 2
s_add_u32 s25, s25, s17
s_mul_i32 s25, s25, {CSTR}
s_add_u32 s25, s25, {CNT}
s_and_b32 s26, s18, 25"""
a(f"""
{CNTA}
s_cbranch_scc1 L_nocnt
v_mov_b32 v14, {CBASE}
s_mov_b64 exec, s[72:73]
buffer_store_dword v14, v13, s[12:15], {"s25" if HR else "s77"} offen sc1
""" + ("""
v_mov_b32 v4, 0
v_mov_b32 v5, 0
v_mov_b32 v6, 0
v_mov_b32 v7, 0
buffer_store_dwordx4 v[4:7], v13, s[12:15], s77 offen offset:128 sc1
buffer_store_dwordx4 v[4:7], v13, s[12:15], s77 offen offset:144 sc1
""" if PW else "") + """
s_mov_b64 exec, -1
""")
a.label("L_nocnt")
a(f"""
buffer_load_dword v12, v15, s[68:71], 0 offen sc1
v_mov_b32 v4, -1
v_mov_b32 v5, -1
v_mov_b32 v6, -1
v_mov_b32 v7, -1
v_add_u32 v1, {CH}, v3
ds_write_b128 v1, v[4:7]
ds_write_b128 v1, v[4:7] offset:1024
ds_write_b128 v1, v[4:7] offset:2048
v_mov_b32 v2, {MISC}
v_mov_b32 v4, 0
v_mov_b32 v5, 0
v_mov_b32 v6, 0
v_mov_b32 v7, 0
ds_write_b128 v2, v[4:7] offset:128
{STAT}
v_lshlrev_b32 v1, 2, v0
v_add_u32 v1, {CH}, v1
{K0TXT}
v_cmp_gt_u32 vcc, {min(PW, NSE + K0) if PW else K0 if PD else NSE + K0}, v0
v_mov_b32 v64, v1
v_mov_b32 v65, v4
s_mov_b64 exec, vcc
ds_write_b32 v1, v4
s_mov_b64 exec, -1
""")
if HR:
    a(f"""
v_lshrrev_b32 v8, 2, v10
v_lshl_add_u32 v8, v11, 3, v8
v_lshlrev_b32 v9, 6, v8
v_and_b32 v8, 3, v0
v_lshl_add_u32 v9, v8, 3, v9
v_add_u32 v9, {TB}, v9
v_lshrrev_b32 v{CP}, 3, v0
v_lshl_add_u32 v{CP}, v8, 4, v{CP}
v_and_b32 v8, 4, v0
v_lshl_add_u32 v{CP}, v8, 1, v{CP}
v_lshlrev_b32 v{CP}, 2, v{CP}
""")
else: frag_addr(7 if KQ else 5)
if KQ:
    tag_consts(SEL)
    a(f"""
v_and_b32 v52, 7, v10
v_lshl_add_u32 v52, v11, 3, v52
v_lshlrev_b32 v52, 4, v52
v_lshrrev_b32 v53, 3, v10
v_lshl_add_u32 v53, v53, 9, v52
s_andn2_b32 s28, s21, 3
s_lshl_b32 s28, s28, 11
s_and_b32 s29, s21, 3
s_lshl_b32 s29, s29, 9
s_add_u32 s28, s28, s29
s_add_u32 s28, s28, {QP}
s_lshl_b32 s29, s21, 11
s_add_u32 s29, s29, {QP}
""")
    if OPT["kpl"]:
        a(f"""
v_lshrrev_b32 v54, 3, v10
v_lshl_add_u32 v52, v54, 11, v52
s_add_u32 s30, s28, 4096
""")
a(f"s_mov_b32 s76, {SPIN}\ns_waitcnt lgkmcnt(0)")
stamp(7)
a("s_barrier")
stamp(1)
if L2P & 1:
    a(f"s_waitcnt vmcnt({9 if XL else 17})")
    backoff(OPT["tw"])
    wq_dma()
if HR:
    a("s_cmp_eq_u32 s21, -1\ns_cbranch_scc1 L_nogv\ns_waitcnt vmcnt(33)")
    x_frag(56, 57)
    def rd(bt):
        if bt % 2 == 0: a(f"s_waitcnt vmcnt({25 - 4*bt})")
        for k in range(2):
            for ct in range(2):
                q_ = AFR + 16*(bt & 1) + 8*k + 4*ct; o_ = (2*bt + k)*2048 + 32*ct
                a(f"ds_read_b64_tr_b16 v[{q_}:{q_+1}], v9 offset:{o_}\nds_read_b64_tr_b16 v[{q_+2}:{q_+3}], v9 offset:{o_+256}")
    rd(0)
    for bt in range(8):
        if bt < 7:
            rd(bt+1); a("s_waitcnt lgkmcnt(8)")
        else:
            a("s_waitcnt lgkmcnt(0)")
        for k in range(2):
            for ct in range(2):
                q_ = AFR + 16*(bt & 1) + 8*k + 4*ct; t = 2*bt + k; d = D0 + 4*ct
                a(f"v_mfma_f32_16x16x32_bf16 v[{d}:{d+3}], v[{q_}:{q_+3}], v[{XF+4*t}:{XF+4*t+3}], {'0' if t == 0 else f'v[{d}:{d+3}]'}")
    a(f"""
v_cvt_pk_bf16_f32 v4, v{D0}, v{D0+1}
v_cvt_pk_bf16_f32 v6, v{D0+2}, v{D0+3}
v_cvt_pk_bf16_f32 v56, v{D0+4}, v{D0+5}
v_cvt_pk_bf16_f32 v57, v{D0+6}, v{D0+7}
v_mov_b32_dpp v4, v56 row_ror:8 row_mask:0xf bank_mask:0xc
v_mov_b32_dpp v6, v57 row_ror:8 row_mask:0xf bank_mask:0xc
ds_bpermute_b32 v4, v{CP}, v4
ds_bpermute_b32 v6, v{CP}, v6
L_nogv:
""")
elif XL and OPT["xf"]:
    a("s_waitcnt vmcnt(17)"); x_frag(52, 53)
a("s_waitcnt vmcnt(0)")
if XL and not OPT["xf"]: x_frag(52, 53)
a.label("L_np")
a(f"""
v_readfirstlane_b32 s74, v12
s_sub_u32 s76, s76, 1
s_cmp_eq_u32 s76, 0
s_cbranch_scc1 L_np_done
s_cmp_lg_u32 s74, 0
s_cbranch_scc1 L_np_done
buffer_load_dword v12, v15, s[68:71], 0 offen sc1
s_waitcnt vmcnt(0)
s_branch L_np
""")
a.label("L_np_done")
PAC = 0x4D0000; PST = 4352
if OPT["fb"]:
    a(f"""
s_cmp_lg_u32 s16, 0
s_cbranch_scc1 L_nfi
v_mov_b32 v5, s74
v_mul_u32_u24 v7, {PST}, v0
s_mov_b32 s25, {PAC}
s_mov_b64 exec, 0xffff
buffer_store_dword v5, v7, s[12:15], s25 offen sc1
s_mov_b64 exec, -1
L_nfi:
""")
stamp(2)
if KQ: gemv128(9, 68, XF)
elif not HR: gemv(9, D0)
a(f"""
v_mov_b32 v5, s74
v_mov_b32 v7, s74
v_mov_b32 v8, 1
ds_write_b32 v2, v5 offset:96
ds_write_b32 v2, v8 offset:136
""")
if KQ and OPT["kpl"]:
    pstore(68, 5, 53, "s29", '' if OPT['kl2'] & 1 else 'sc1')
    ppoll("L_q1", 84, 52, "s28", 5, 54, OPT["q1d"], OPT["q1s"], "s30", 0)
    for r in range(4): a(f"v_add_f32 v{D0+r}, v{84+r}, v{88+r}")
    for r in range(4): a(f"v_add_f32_dpp v{D0+r}, v{D0+r}, v{D0+r} row_ror:8 row_mask:0xf bank_mask:0xf")
elif KQ:
    a("s_mov_b64 exec, s[58:59]")
    for ct in range(4):
        tag_ins(68 + 4*ct, 5, SEL)
        a(f"buffer_store_dwordx4 v[{68+4*ct}:{71+4*ct}], v52, s[12:15], s28 offen offset:{2048*(ct & 1)} {'' if OPT['kl2'] & 1 else 'sc1'}")
        if ct == 1: a("s_add_u32 s28, s28, 4096")
    a("s_mov_b64 exec, -1")
    ppoll("L_q1", 84, 53, "s29", 5, 54, OPT["q1d"], OPT["q1s"])
    for r in range(4): a(f"v_add_f32 v{D0+r}, v{84+r}, v{88+r}")
    for r in range(4): a(f"v_add_f32_dpp v{D0+r}, v{D0+r}, v{D0+r} row_ror:8 row_mask:0xf bank_mask:0xf")
QL = OPT["ql"]; HL = OPT["hl"]
def qpub_old():
    a(f"""
s_lshl_b32 s25, s21, {9 if QL else 6}
s_add_u32 s25, s25, {QG}
v_cvt_pk_bf16_f32 v4, v{D0}, v{D0+1}
v_cvt_pk_bf16_f32 v6, v{D0+2}, v{D0+3}
""")
    if OPT["coal"]:
        a(f"""
ds_bpermute_b32 v4, v{CP}, v4
ds_bpermute_b32 v6, v{CP}, v6
v_lshlrev_b32 v14, 4, v{CP+2}
v_lshl_add_u32 v14, v{CP+1}, {6 if QL else 14}, v14
s_mov_b32 exec_hi, 0
s_waitcnt lgkmcnt(0)
""")
    else:
        a(f"""
v_lshlrev_b32 v14, 4, v11
v_lshl_add_u32 v14, v10, 14, v14
s_mov_b64 exec, s[58:59]
""")
    a(f"""
buffer_store_dwordx4 v[4:7], v14, s[12:15], s25 offen sc1
s_mov_b64 exec, -1
""")
if HR:
    a(f"""
s_cmp_eq_u32 s21, -1
s_cbranch_scc1 L_nopub
s_waitcnt lgkmcnt(0)
{"" if RM & 128 else "buffer_store_dwordx4 v[4:7], v3, s[12:15], s21 offen " + ['', 'sc1', 'sc1 nt', 'sc0 sc1', 'sc0 sc1 nt'][OPT['pbp']]}
L_nopub:
v_mov_b32 v16, {hex(SENT)}
v_mov_b32 v17, {hex(SENT)}
v_mov_b32 v18, {hex(SENT)}
v_mov_b32 v19, {hex(SENT)}
v_add_u32 v1, {TB}, v3
""")
    for k in range(8): a(f"ds_write_b128 v1, v[16:19] offset:{1024*k}")
else: qpub_old()
if OPT["dw"] or OPT["dr"]:
    a(f"s_lshl_b32 s28, s21, 12\ns_add_u32 s28, s28, {FP}")
    for k in range(OPT["dw"]):
        a(f"buffer_store_dwordx4 v[16:19], v3, s[12:15], s28 offen offset:{1024*k} {['', 'sc1', 'nt', 'sc0 sc1', 'sc1 nt'][OPT['dwp']]}")
    for k in range(OPT["dr"]):
        a(f"buffer_load_dwordx4 v[84:87], v3, s[12:15], s28 offen offset:{1024*k} sc1")
stamp(3)
a(f"""
{"s_lshl_b32 s25, s17, 14" if XB else "s_lshl_b32 s25, s20, 15"}
{"s_lshl_b32 s26, s20, 12" if XB else "s_lshl_b32 s26, s19, 11"}
s_add_u32 s25, s25, s26
s_add_u32 s25, s25, {QG}
s_add_u32 s26, s25, {2048 if XB else 16384}
{QCH}
""" + (f"""
s_lshl_b32 s25, s19, 14
s_lshl_b32 s26, s20, 8
s_add_u32 s25, s25, s26
s_add_u32 s25, s25, {QG}
s_add_u32 s26, s25, 4096
s_add_u32 s28, s25, 8192
s_add_u32 s29, s25, 12288
v_lshlrev_b32 v14, 4, v10
v_lshl_add_u32 v14, v11, 10, v14
v_and_b32 v1, 7, v0
v_lshl_add_u32 v1, v11, 3, v1
v_lshlrev_b32 v1, 3, v1
v_bfe_u32 v9, v0, 3, 1
v_lshl_add_u32 v1, v9, 10, v1
v_add_u32 v1, {Q_LDS}, v1
""" if HR else f"""
s_lshl_b32 s27, s27, 3
s_lshl_b32 s25, s19, 14
s_lshl_b32 s26, s20, 7
s_add_u32 s25, s25, s26
s_add_u32 s25, s25, {QG}
s_add_u32 s26, s25, 4096
s_add_u32 s28, s25, 8192
s_add_u32 s29, s25, 12288
v_lshrrev_b32 v1, 3, v0
v_and_b32 v14, 7, v0
v_lshlrev_b32 v14, 4, v14
v_lshl_add_u32 v14, v1, 9, v14
v_lshl_add_u32 v1, v1, 2, v{CP+2}
v_lshlrev_b32 v1, 3, v1
v_bfe_u32 v4, v0, 2, 1
v_lshl_add_u32 v1, v4, 10, v1
v_add_u32 v1, {Q_LDS}, v1
""" if QL else "") + f"""
s_add_u32 s27, s27, {QG}
s_mov_b32 s76, {SPIN}
""")
backoff(OPT["qd"] + (OPT["fq"] if OPT["fq"] > 1 else 0))
a.label("L_qpoll")
if RM & 32: a("s_sleep 100\ns_branch L_qdone")
if QL: a(f"""
buffer_load_dwordx4 v[16:19], v14, s[12:15], s25 offen sc1
buffer_load_dwordx4 v[20:23], v14, s[12:15], s26 offen sc1
buffer_load_dwordx4 v[24:27], v14, s[12:15], s28 offen sc1
buffer_load_dwordx4 v[28:31], v14, s[12:15], s29 offen sc1
{"" if HR else "buffer_load_dwordx4 v[32:35], v13, s[12:15], s27 offen sc1"}
s_waitcnt vmcnt(0)
""")
else: a(f"""
buffer_load_dwordx4 v[16:19], v3, s[12:15], s25 offen sc1
buffer_load_dwordx4 v[20:23], v3, s[12:15], s25 offen offset:1024 sc1
{"" if OPT["hp"] & 1 else "buffer_load_dwordx4 v[24:27], v3, s[12:15], s26 offen sc1"}
{"" if OPT["hp"] & 1 else "buffer_load_dwordx4 v[28:31], v3, s[12:15], s26 offen offset:1024 sc1"}
buffer_load_dwordx4 v[32:35], v13, s[12:15], s27 offen sc1
s_waitcnt vmcnt(0)
""")
any_eq([17, 19, 21, 23, 33, 35] if OPT["hp"] & 1 else list(range(17, 32 if HR else 36, 2)), "s74", neg=True)
spin_tail("L_qpoll", "L_qdone", sleep=OPT["qslp"])
stamp(4)
a(f"""
v_mov_b32 v17, v18
v_mov_b32 v21, v22
v_mov_b32 v25, v26
v_mov_b32 v29, v30
{"" if QL else "v_lshlrev_b32 v1, 3, v0"}
{"" if QL else f"v_add_u32 v1, {Q_LDS}, v1"}
ds_write_b64 v1, v[16:17]
ds_write_b64 v1, v[20:21] offset:{256 if QL else 512}
ds_write_b64 v1, v[24:25] offset:{512 if QL else 1024}
ds_write_b64 v1, v[28:29] offset:{768 if QL else 1536}
s_waitcnt lgkmcnt(0)
ds_write_b32 v2, v8 offset:132
""")
stamp(5)
a(f"""
s_mov_b32 s21, {NSE + K0}
s_mov_b32 s22, {NSE + K0}
s_mov_b32 s20, {SE + NSE}
s_mov_b32 s19, {SE + NSE}
s_mov_b32 s23, 0
s_mov_b32 s24, 0
s_mov_b32 s26, 0
s_mov_b32 s27, 0
s_mov_b32 s28, 0
s_mov_b32 s29, {0 if OPT['tk'] else 1}
v_mov_b32 v4, 0
v_lshl_add_u32 v5, v0, 16, v0
s_mov_b32 s76, {SPIN*64}
""")
FST1 = """s_cmp_lg_u32 s60, 0
s_cbranch_scc1 L_fs1
s_mov_b32 s60, 1
s_memrealtime s[82:83]
L_fs1:"""
RV = OPT["rv"]
RVT = f"""s_cmp_lt_u32 s28, {OPT['rvt']}
s_cbranch_scc1 L_nrv
ds_write_b32 v2, v2 offset:144
L_nrv:""" if RV and OPT["rvt"] else ""
def disp(p):
    tb = T1B if ONET else (T1B, T2B)[p]
    a(f"""
L_disp{p}:
s_mov_b64 exec, 1
ds_read_b32 v6, v2 offset:{128 if ONET else (128, 144)[p]}
s_sub_u32 s76, s76, 1
s_cmp_le_i32 s76, 0
s_cbranch_scc1 L_dexh{p}
s_cmp_eq_u32 s24, 0
s_cbranch_scc1 L_noc{p}
v_readlane_b32 s25, v4, s27
s_cmp_lt_u32 s25, {CBASE}
s_cbranch_scc1 L_noc{p}
s_and_b32 s30, s23, 15
s_lshr_b32 s23, s23, 4
s_sub_u32 s24, s24, 1
s_add_u32 s27, s27, 1
s_and_b32 s27, s27, 7
s_add_u32 s25, s25, {DYN0 - CBASE}
s_add_u32 s28, s25, s30
{RVT if p else ""}
s_sub_i32 s31, 512, s25
s_max_i32 s31, s31, 0
s_min_i32 s31, s31, s30
s_cmp_ge_u32 s28, {(OPT['tk'], 512)[p]}
s_cselect_b32 s29, 1, s29
s_cmp_eq_u32 s31, 0
s_cbranch_scc1 L_noc{p}
s_bfm_b64 exec, s31, 0
s_lshl_b32 s30, s20, 16
s_add_u32 s25, s25, s30
v_add_u32 v7, s25, v5
s_lshl_b32 s25, s22, 2
s_add_u32 s25, s25, {tb}
v_lshl_add_u32 v8, v0, 2, s25
ds_write_b32 v8, v7
s_add_u32 s22, s22, s31
s_lshl_b32 s25, {('s20', 's22')[p]}, 2
s_add_u32 s25, s25, {(T2B + 4*KN, tb)[p]}
v_or_b32 v9, {VB}, v7
v_lshl_add_u32 v14, v0, 2, s25
ds_write_b32 v14, v9
s_add_u32 s20, s20, s31
{('', 's_add_u32 s22, s22, s31')[p]}
L_noc{p}:
s_cmp_lg_u32 s29, 0
s_cbranch_scc1 L_exh{p}
s_cmp_ge_u32 s24, {OPT['maxf']}
s_cbranch_scc1 L_dslp{p}
s_waitcnt lgkmcnt(0)
v_readfirstlane_b32 s25, v6
s_lshl_b32 s30, s21, 1
s_add_u32 s25, s25, {(OPT['leadk'], OPT['leadf'])[p]}
s_cmp_ge_u32 s30, s25
s_cbranch_scc1 L_dslp{p}
s_cmp_ge_u32 s28, {(OPT['tk2'], OPT['tf'])[p]}
s_cselect_b32 s30, {(2, 1)[p]}, {(4, 2)[p]}
s_add_u32 s25, s19, s30
s_cmp_gt_u32 s25, {(OPT['cap1'], NSLOT//2)[p]}
s_cselect_b32 s29, 1, 0
s_cbranch_scc1 L_exh{p}
s_mov_b32 s19, s25
{FST1 if p and OPT["stamps"] and OPT["fine"] != 7 else ""}
s_lshl_b64 exec, 1, s26
v_mov_b32 v4, s30
buffer_atomic_add v4, v13, s[12:15], s77 offen sc0 sc1
s_lshl_b32 s25, s24, 2
s_lshl_b32 s25, s30, s25
s_or_b32 s23, s23, s25
s_add_u32 s24, s24, 1
s_add_u32 s21, s21, s30
{('', 's_add_u32 s21, s21, s30')[p]}
s_add_u32 s26, s26, 1
s_and_b32 s26, s26, 7
s_branch L_disp{p}
L_exh{p}:
s_cmp_eq_u32 s24, 0
s_cbranch_scc1 L_dexh{p}
L_dslp{p}:
s_sleep {OPT['dslp']}
s_branch L_disp{p}
L_dexh{p}:
s_mov_b64 exec, 0xff
s_lshl_b32 s25, s22, 2
s_add_u32 s25, s25, {tb}
v_lshl_add_u32 v8, v0, 2, s25
v_mov_b32 v7, {(513, 512)[p]}
ds_write_b32 v8, v7
{f"ds_write_b32 v2, v{7 if OPT['rvl'] else 2} offset:144" if (RV or OPT['we'] == 1) and p else ""}
""")
if not ONET: disp(0)
TOT = NSE + K0 + SE + NSE
if PW:
    a(f"""
s_movk_i32 s30, 300
v_lshlrev_b32 v9, 2, v0
v_cmp_eq_u32 s[60:61], s17, v0
v_mov_b32 v14, 0x7fff
L_rel:
s_mov_b64 exec, 0xff
ds_read_b32 v6, v2 offset:128
s_sub_u32 s30, s30, 1
s_waitcnt lgkmcnt(0)
v_lshrrev_b32 v6, 1, v6
v_cndmask_b32 v8, 0, v6, s[60:61]
buffer_atomic_umax v8, v9, s[12:15], s77 offen offset:128 sc0 sc1
v_readfirstlane_b32 s62, v6
s_waitcnt vmcnt(0)
v_cndmask_b32 v8, v8, v14, s[60:61]
v_min_u32_dpp v8, v8, v8 quad_perm:[1,0,3,2] row_mask:0xf bank_mask:0xf
v_min_u32_dpp v8, v8, v8 quad_perm:[2,3,0,1] row_mask:0xf bank_mask:0xf
v_min_u32_dpp v8, v8, v8 row_half_mirror row_mask:0xf bank_mask:0xf
v_readfirstlane_b32 s25, v8
s_add_u32 s25, s25, {PW}
s_cmp_ge_u32 s25, {TOT - OPT['pe']}
s_cselect_b32 s25, 255, s25
s_cmp_eq_u32 s30, 0
s_cselect_b32 s25, 255, s25
s_cselect_b32 s62, 255, s62
s_min_i32 s31, s25, {NSE + K0}
s_bfm_b64 exec, s31, 0
ds_write_b32 v64, v65
s_sub_i32 s31, s25, {NSE + K0}
s_cmp_le_i32 s31, 0
s_cbranch_scc1 L_rel2
s_min_i32 s31, s31, {SE + NSE}
s_bfm_b64 exec, s31, 0
ds_write_b32 v66, v67
s_cmp_lg_u32 s25, 255
s_cbranch_scc1 L_rel2
s_cmp_ge_u32 s62, {TOT - OPT['pe'] - PW}
s_cbranch_scc1 L_reld
L_rel2:
{f"s_sleep {OPT['pws']}" if OPT['pws'] else ""}
s_branch L_rel
L_reld:
""")
elif PD:
    RVL = f"""
s_cmp_lt_u32 s25, {OPT['rv0']}
s_cbranch_scc1 L_rv1
v_readfirstlane_b32 s31, v6
s_lshl_b32 s66, s25, 1
s_sub_i32 s31, s66, s31
s_cmp_lt_i32 s31, {2*(SE - K0 - KN) + OPT['rvl']}
s_cbranch_scc1 L_rv1
ds_write_b32 v2, v2 offset:144
L_rv1:
""" if OPT["rvl"] else ""
    FB = f"""
s_cmp_eq_u32 s65, 0
s_cbranch_scc1 L_fb1
v_readfirstlane_b32 s31, v10
s_sub_u32 s31, s31, s74
s_cmp_eq_u32 s31, -1
s_cbranch_scc1 L_fb1
s_mov_b32 s65, 0
s_cmp_gt_u32 s31, 0xfff
s_cbranch_scc1 L_fb1
s_sub_i32 s31, s31, {OPT['fbl']}
s_ashr_i32 s31, s31, {OPT['fbs']}
s_min_i32 s31, s31, {OPT['fbc']}
s_add_i32 s62, s62, s31
{"s_min_i32 s31, s31, 0" + chr(10) + f"s_mul_i32 s31, s31, {OPT['fbn']}" + chr(10) + "s_add_i32 s62, s62, s31" if OPT['fbn'] else ""}
L_fb1:
s_cmp_lt_u32 s25, s63
s_cbranch_scc1 L_fb2
s_add_u32 s63, s63, {OPT['fbp']}
v_readfirstlane_b32 s31, v6
s_lshl_b32 s66, s25, 1
s_sub_i32 s31, s66, s31
s_sub_i32 s31, s31, {2*(SE - K0)}
s_max_i32 s31, s31, 0
s_min_i32 s31, s31, {OPT['fbm']}
s_sub_u32 s66, s74, 1
v_mov_b32 v10, s66
v_mov_b32 v8, s31
buffer_load_dword v10, v13, s[12:15], s64 offen {['', '', 'sc1'][OPT['fb']]}
s_cmp_lg_u32 s64, {PAC}
s_cselect_b32 s65, 1, 0
s_add_u32 s64, s64, {PST}
s_cmp_ge_u32 s18, {OPT['fbg']}
s_cbranch_scc1 L_fb2
buffer_atomic_add v8, v13, s[12:15], s64 offen sc1
L_fb2:
""" if OPT["fb"] else ""
    a(f"""
s_movk_i32 s30, 1000
s_movk_i32 s62, {OPT['pc']}
s_movk_i32 s63, {SE + OPT['fb0']}
s_mov_b32 s64, {PAC}
s_mov_b32 s65, 0
L_rel:
s_mov_b64 exec, 1
ds_read_b32 v6, v2 offset:128
s_memrealtime s[60:61]
s_sub_u32 s30, s30, 1
s_waitcnt lgkmcnt(0)
s_sub_u32 s25, s60, s74
s_sub_i32 s25, s25, s62
s_max_i32 s25, s25, 0
s_min_i32 s25, s25, 0x8000
{f"s_mul_i32 s31, s25, {int(655360/OPT['pdv'])}" + chr(10) + f"s_sub_i32 s31, s31, {int(OPT['pdw']*65536*(PD/OPT['pdv'] - 1))}" if OPT['pdv'] else ""}
s_mul_i32 s25, s25, {int(655360/PD)}
{"s_max_i32 s25, s25, s31" if OPT['pdv'] else ""}
s_lshr_b32 s25, s25, 16
{RVL}
{FB}
s_cmp_eq_u32 s30, 0
s_cselect_b32 s25, 255, s25
s_cmp_ge_u32 s25, {2*(SE+NSE) - OPT['pe']}
s_cselect_b32 s25, 255, s25
s_sub_i32 s31, s25, {SE - K0}
s_min_i32 s31, s31, {NSE + K0}
s_max_i32 s31, s31, 1
s_bfm_b64 exec, s31, 0
ds_write_b32 v64, v65
s_sub_i32 s31, s25, {SE + NSE}
s_cmp_le_i32 s31, 0
s_cbranch_scc1 L_rel2
s_min_i32 s31, s31, {SE + NSE}
s_bfm_b64 exec, s31, 0
ds_write_b32 v66, v67
s_cmp_eq_u32 s25, 255
s_cbranch_scc1 L_reld
L_rel2:
s_sleep {OPT['pslp']}
s_branch L_rel
L_reld:
""")
if OPT["dl"]: a("s_mov_b32 s67, s60")
if OPT["stamps"] and OPT["fine"] != 7: stamp(7); a(f"s_mov_b32 s96, {'s62' if PD else 's20'}\ns_mov_b32 s60, 0")
a(f"""
s_add_u32 s21, s20, {KN + (NSE + K0 if ONET else 0)}
s_mov_b32 s22, s21
s_cmp_ge_u32 s28, 512
s_cselect_b32 s29, 1, 0
""")
disp(1)
if OPT["stamps"] and OPT["fine"] != 7: a("s_mov_b32 s97, s20"); stamp(6)
if OPT["tcha"]: touch()
if OPT["dl"]:
    a(f"""
s_mov_b64 exec, -1
s_min_u32 s22, s18, 27
s_lshr_b32 s22, s22, 1
s_mul_i32 s25, s17, 14
s_add_u32 s22, s22, s25
s_and_b32 s23, s18, 1
s_movk_i32 s25, 3584
v_lshrrev_b32 v3, 1, v0
v_and_b32 v4, 1, v0
v_lshlrev_b32 v4, 4, v4
v_mul_lo_u32 v5, v3, s25
v_add_u32 v5, v5, v4
s_lshl_b32 s25, s22, 5
v_add_u32 v5, s25, v5
v_lshrrev_b32 v6, 3, v0
v_and_b32 v7, 7, v0
v_lshlrev_b32 v7, 4, v7
v_lshl_add_u32 v6, v6, 10, v7
s_cmp_eq_u32 s23, 0
s_cselect_b32 s68, s{P_WG}, s{P_WU}
s_cselect_b32 s69, s{P_WG+1}, s{P_WU+1}
s_mov_b32 s70, {512*1792*2}
s_mov_b32 s71, 0x00020000
s_lshl_b32 s27, s17, 7
s_mul_i32 s26, s18, {56*1024}
s_add_u32 s26, s26, s27
s_movk_i32 s30, 2000
""")
    srd(4, P_WD, 1792*512*2)
    a(f"""
L_dl:
s_memrealtime s[60:61]
s_sub_u32 s30, s30, 1
s_cbranch_scc1 L_dld
s_waitcnt lgkmcnt(0)
s_sub_u32 s60, s60, s67
s_cmp_ge_i32 s60, {OPT['dl']}
s_cbranch_scc1 L_dld
s_sleep 2
s_branch L_dl
L_dld:
s_mov_b32 s25, 0
""")
    for t in range(16):
        a(f"s_mov_b32 m0, {R1 + 1024*t}")
        if t: a(f"s_mov_b32 s25, {t*32*3584}")
        a(f"buffer_load_dwordx4 v5, s[68:71], s25 offen nt lds")
    for t in range(7):
        a(f"buffer_load_dwordx4 v[{WDV+4*t}:{WDV+4*t+3}], v6, s[4:7], s26 offen nt")
        if t < 6: a("s_add_u32 s26, s26, 8192")
    a("s_waitcnt vmcnt(0)")
hstamps(0, 9)
a("s_waitcnt lgkmcnt(0)\ns_endpgm")

a.label("L_hb")
if OPT["bprio"]: a(f"s_setprio {OPT['bprio']}")
if OPT["st"]:
    a("s_waitcnt lgkmcnt(0)")
    tl = []
    if OPT["st"] & 1: tl += [(P_WQ, 0x200000), (P_X, 0), (P_DBG, 0), (P_WS, 0xf0000), (P_WS, 0x4f8000), (P_WQ, 0)]
    if OPT["st"] & 2: tl += [(P_WD, 0), (P_GW, 0), (P_WG, 0), (P_WU, 0)]
    if OPT["st"] & 4: tl += [(P_WO, 0), (P_WO, 0x200000), (P_OUT, 0), (P_WS, 0x3f0000)]
    for n_, (p_, o_) in enumerate(tl):
        if o_: a(f"s_mov_b32 s25, {hex(o_)}\ns_load_dword s{80+n_}, s[{p_}:{p_+1}], s25")
        else: a(f"s_load_dword s{80+n_}, s[{p_}:{p_+1}], 0")
if KF_:
    a(f"""
s_mul_i32 s21, s17, {32 if OPT["fm"] else 28}
s_add_u32 s21, s21, s18
s_lshr_b32 s22, s21, 3
s_and_b32 s23, s21, 1
s_bfe_u32 s24, s21, 0x20001
s_mul_i32 s25, s24, {128*3584}
s_lshl_b32 s27, s22, 7
s_add_u32 s25, s25, s27
v_lshrrev_b32 v6, 3, v0
v_and_b32 v7, 7, v0
v_lshlrev_b32 v7, 4, v7
v_mul_u32_u24 v5, 3584, v6
v_add3_u32 v5, v5, s25, v7
s_waitcnt lgkmcnt(0)
s_cmp_eq_u32 s23, 0
s_cselect_b32 s68, s{P_WG}, s{P_WU}
s_cselect_b32 s69, s{P_WG+1}, s{P_WU+1}
s_mov_b32 s70, {512*1792*2}
s_mov_b32 s71, 0x00020000
""")
    def tile_ld():
        a(f"s_cmp_ge_u32 {'s17, 7' if OPT['fm'] else 's18, 28'}\ns_cbranch_scc1 L_notile")
        for t in range(16):
            a(f"s_mov_b32 s27, {t*8*3584}\nbuffer_load_dwordx4 v[{XF+4*t}:{XF+4*t+3}], v5, s[68:71], s27 offen nt")
        a.label("L_notile")
    if OPT["bt"] == 0: tile_ld()
    a(f"""
v_lshl_add_u32 v6, v6, 10, v7
v_lshlrev_b32 v3, 4, v0
""")
elif HR:
    a(f"""
v_lshrrev_b32 v6, 3, v0
v_and_b32 v7, 7, v0
v_lshlrev_b32 v7, 4, v7
v_lshl_add_u32 v6, v6, 10, v7
v_lshlrev_b32 v3, 4, v0
""")
elif GU:
    a(f"""
s_sub_u32 s23, s17, s18
s_and_b32 s24, s23, 3
s_bfe_u32 s23, s23, 0x10002
s_cmp_ge_u32 s18, 28
s_cselect_b32 s24, 1, s24
s_lshl_b32 s22, s18, 2
v_lshrrev_b32 v6, 3, v0
v_and_b32 v7, 7, v0
v_lshlrev_b32 v7, 4, v7
v_mul_u32_u24 v5, 3584, v6
s_lshl_b32 s25, s18, 7
v_add3_u32 v5, v5, s25, v7
v_lshl_add_u32 v6, v6, 10, v7
v_lshlrev_b32 v3, 4, v0
""")
else:
    a(f"""
s_min_u32 s22, s18, 27
s_and_b32 s25, s17, 3
s_mul_i32 s25, s25, 28
s_add_u32 s22, s22, s25
s_lshr_b32 s23, s17, 2
""" if L2P & 6 else f"""
s_min_u32 s22, s18, 27
s_lshr_b32 s22, s22, 1
s_mul_i32 s25, s17, 14
s_add_u32 s22, s22, s25
s_and_b32 s23, s18, 1
""")
    if L2P & 2:
        a(f"""
s_lshr_b32 s25, s22, 2
s_lshl_b32 s25, s25, 7
s_and_b32 s26, s22, 3
s_mul_i32 s26, s26, {128*3584}
s_add_u32 s25, s25, s26
v_mul_u32_u24 v5, 3584, v0
v_add_u32 v5, s25, v5
s_waitcnt lgkmcnt(0)
s_cmp_eq_u32 s23, 0
s_cselect_b32 s68, s{P_WG}, s{P_WU}
s_cselect_b32 s69, s{P_WG+1}, s{P_WU+1}
s_mov_b32 s70, {512*1792*2}
s_mov_b32 s71, 0x00020000
s_cmp_ge_u32 s18, 28
s_cbranch_scc1 L_notouch
""")
        touch_tile(5, 68, 3584, 96)
        a.label("L_notouch")
    a(f"""
s_movk_i32 s25, 3584
v_mul_lo_u32 v5, v3, s25
v_add_u32 v5, v5, v4
s_lshl_b32 s25, s22, 5
v_add_u32 v5, s25, v5
v_lshrrev_b32 v6, 3, v0
v_and_b32 v7, 7, v0
v_lshlrev_b32 v7, 4, v7
v_lshl_add_u32 v6, v6, 10, v7
v_lshlrev_b32 v3, 4, v0
""")
if OPT["fk"]:
    a(f"""
s_lshr_b32 s23, s17, 2
s_and_b32 s25, s17, 3
s_mul_i32 s25, s25, {128*3584}
s_min_u32 s24, s18, 27
s_lshl_b32 s24, s24, 7
s_add_u32 s25, s25, s24
v_lshrrev_b32 v5, 3, v0
v_mul_u32_u24 v5, 3584, v5
v_add3_u32 v5, v5, s25, v7
""" if OPT["fk"] & 4 == 0 else f"""
s_and_b32 s23, s18, 1
s_bfe_u32 s25, s18, 0x20001
s_mul_i32 s25, s25, {128*3584}
s_lshr_b32 s24, s18, 3
s_lshl_b32 s27, s17, 2
s_add_u32 s24, s24, s27
s_min_u32 s24, s24, 27
s_lshl_b32 s24, s24, 7
s_add_u32 s25, s25, s24
v_lshrrev_b32 v5, 3, v0
v_mul_u32_u24 v5, 3584, v5
v_add3_u32 v5, v5, s25, v7
""")
frag_addr(7 if KF_ else 5)
a(f"""
v_mov_b32 v92, 0
v_mov_b32 v93, 0
v_mov_b32 v94, 0
v_mov_b32 v95, 0
v_add_u32 v1, {WD_LDS}, v3
{"" if XL else "ds_write_b128 v1, v[92:95] offset:7168"}
v_mov_b32 v15, {MISC}
""" + (f"""
v_mov_b32 v16, -1
v_mov_b32 v17, -1
v_lshlrev_b32 v18, 3, v0
ds_write_b64 v18, v[16:17] offset:{MLT & 0xffff}
""" if False else f"""
v_mov_b32 v16, -1
v_mov_b32 v17, -1
v_lshl_add_u32 v98, v0, 3, v15
ds_write_b64 v98, v[16:17] offset:{MLT - MISC}
""" if BW else "") + f"""
s_waitcnt lgkmcnt(0)
""")
srd(64, P_X, 8192); srd(12, P_WS, WS_BYTES); srd(4, P_WD, 1792*512*2); srd(8, P_GW, 1024); srd(60, P_WO, 4096*512*2)
if not KF_ and not HR: a(f"""
s_cmp_eq_u32 s23, 0
s_cselect_b32 s68, s{P_WG}, s{P_WU}
s_cselect_b32 s69, s{P_WG+1}, s{P_WU+1}
s_mov_b32 s70, {512*1792*2}
s_mov_b32 s71, 0x00020000
""")
a(f"""
{"s_and_b32 s23, s18, 1" if OPT["fk"] else ""}
s_lshl_b32 s27, s17, 7
s_mul_i32 s26, s18, {56*1024}
s_add_u32 s26, s26, s27
s_and_b32 s25, s18, 1
s_lshl_b32 s25, s25, 12
v_lshrrev_b32 v12, 2, v0
v_lshlrev_b32 v12, 6, v12
v_and_b32 v7, 3, v0
v_lshl_add_u32 v7, v7, 10, v12
""")
def touch0():
    a(f"""
v_lshlrev_b32 v92, 7, v0
s_lshl_b32 s28, s17, 17
s_lshr_b32 s29, s18, 1
s_lshl_b32 s29, s29, 13
s_add_u32 s28, s28, s29
s_and_b32 s29, s18, 1
s_lshl_b32 s29, s29, {11 if OPT["tc0"] == 1 else 12}
s_add_u32 s28, s28, s29
s_add_u32 s28, s28, {CPA}
s_mov_b64 exec, {"0xffff" if OPT["tc0"] == 1 else "0xffffffff"}
buffer_load_dword v93, v92, s[12:15], s28 offen {['', 'sc1', 'nt'][OPT['tpol']]}
s_mov_b64 exec, -1
""")
if OPT["tc0"] and not OPT["tcd"]: touch0()
def fk_ld():
    for t in range(16):
        a(f"s_mov_b32 s24, {t*8*3584}\nbuffer_load_dwordx4 v[{XF+4*t}:{XF+4*t+3}], v5, s[68:71], s24 offen nt")
if OPT["fk"] & 3 == 2: fk_ld()
a("s_barrier")
backoff(OPT["bd0"])
if OPT["fk"] & 3 == 3: fk_ld()
XB2 = 64
if KF_:
    if OPT["bt"] == 1: tile_ld()
    a("s_lshl_b32 s27, s24, 8")
    for s_ in range(4):
        a(f"buffer_load_dwordx4 v[{XB2+4*s_}:{XB2+4*s_+3}], v2, s[64:67], s27 offen offset:{64*s_}")
if GU and not XL: a("s_cmp_lg_u32 s24, 0\ns_cbranch_scc1 L_nxb")
for s_ in range(0 if RM & 4 or XL or KF_ else 16):
    a(f"buffer_load_dwordx4 v[{XF+4*s_}:{XF+4*s_+3}], v2, s[64:67], 0 offen offset:{64*s_}")
    if s_ % 4 == 3: backoff(OPT["bs0"])
if GU and not XL: a.label("L_nxb")
LATE = OPT["late"]
if LATE & 2: a("s_mov_b32 s72, s26")
for t in range(0 if LATE & 2 or OPT["skip"] & 2 or RM & 8 else 7):
    if KF_: a(f"s_mov_b32 m0, {WD_LDS + 1024*t}\ns_nop 0\nbuffer_load_dwordx4 v6, s[4:7], s26 offen nt lds")
    else: a(f"buffer_load_dwordx4 v[{WDV+4*t}:{WDV+4*t+3}], v6, s[4:7], s26 offen nt")
    if t < 6: a("s_add_u32 s26, s26, 8192")
    if t % 4 == 3: backoff(OPT["bs0"])
a(f"""
s_mov_b32 s76, {SPIN*16}
""")
for k in range(0 if RM & 8 else 4):
    if not XL: a(f"buffer_load_dwordx4 v[{GX+4*k}:{GX+4*k+3}], v7, s[64:67], s25 offen offset:{16*k}")
    a(f"buffer_load_dwordx4 v[{GW+4*k}:{GW+4*k+3}], v12, s[8:11], 0 offen offset:{16*k}")
a.label("L_r1w")
a(f"""
ds_read_b32 v8, v15 offset:136
s_waitcnt lgkmcnt(0)
v_cmp_eq_u32 vcc, 0, v8
""")
spin_tail("L_r1w", "L_r1done", sleep=2)
stamp(1)
a(f"ds_read_b32 v{VN}, v15 offset:96")
if XL:
    a(f"""
v_add_u32 v7, s25, v7
v_lshrrev_b32 v8, 6, v7
v_and_b32 v8, 0x70, v8
v_xor_b32 v7, v7, v8
""")
    for k in range(4):
        a(f"v_xor_b32 v8, {16*k}, v7\nv_add_u32 v8, {WD_LDS}, v8\nds_read_b128 v[{GX+4*k}:{GX+4*k+3}], v8")
    if not HR: x_frag(52, 53)
def gwait(n, ticks):
    a(f"""
s_movk_i32 s31, 3000
L_gw{n}:
s_memrealtime s[78:79]
s_sub_u32 s31, s31, 1
s_cbranch_scc1 L_gwd{n}
s_waitcnt lgkmcnt(0)
s_sub_u32 s78, s78, s74
s_cmp_ge_i32 s78, {ticks}
s_cbranch_scc1 L_gwd{n}
s_sleep 1
s_branch L_gw{n}
L_gwd{n}:
""")
def gu_dma(r):
    if OPT["gt"]: gwait(r, OPT["gt"] + r*OPT["gp"])
    for t in range(16):
        a(f"s_mov_b32 m0, {R1 + 1024*t}\ns_mov_b32 s25, {(128*r + 8*t)*3584}\nbuffer_load_dwordx4 v5, s[68:71], s25 offen {'nt ' if OPT['ffnt'] else ''}lds")
        if t < 15: backoff(OPT["gsl"])
def hg_addr(d, ct):
    a(f"""
s_lshl_b32 s25, s22, 2
s_add_u32 s25, s25, {4*ct}
v_add_u32 v{d}, s25, v{CP+2 if OPT["coal"] else 11}
s_movk_i32 s25, 4682
v_mul_u32_u24 v14, s25, v{d}
v_lshrrev_b32 v14, 16, v14
v_mul_u32_u24 v12, 14, v14
v_sub_u32 v{d}, v{d}, v12
v_lshlrev_b32 v{d}, 4, v{d}
v_lshl_add_u32 v{d}, v14, 12, v{d}
v_lshl_add_u32 v{d}, v{CP+1 if OPT["coal"] else 10}, 8, v{d}
""")
if KF_:
    a(f"v_add_u32 v1, {R1}, v3\ns_waitcnt vmcnt(19)")
    for t in range(16): a(f"ds_write_b128 v1, v[{XF+4*t}:{XF+4*t+3}] offset:{1024*t}")
elif not GU and not HR:
    if OPT["gt"]:
        a(f"s_waitcnt lgkmcnt(0)\nv_readfirstlane_b32 s74, v{VN}")
        gwait(0, OPT["gt"])
    a("s_mov_b32 s25, 0")
    if L2P & 6: a("s_waitcnt vmcnt(0)\ns_cmp_ge_u32 s18, 28\ns_cbranch_scc1 L_nosl")
    for t in range(0 if RM & 16 else 16):
        a(f"s_mov_b32 m0, {R1 + 1024*t}")
        if OPT["fk"] & 2: continue
        if t and not OPT["skip"] & 4: a(f"s_mov_b32 s25, {t*(8 if OPT['fk'] else 32)*3584}")
        a(f"buffer_load_dwordx4 v5, s[68:71], s25 offen {'nt ' if OPT['ffnt'] else ''}lds")
        if t < 15: backoff(OPT["bs1"])
    if L2P & 6: a.label("L_nosl")
    if HL: a(f"s_lshl_b32 s25, s22, 9\nv_add_u32 v13, s25, v3")
    else: hg_addr(13, 0)
a(f"""
{"" if HR else f"s_lshl_b32 s25, s23, {16 if HL else 11}"}
{"" if HR else f"s_add_u32 s25, s25, {HG}"}
s_waitcnt vmcnt({0 if GU or KF_ or HR else 16}) lgkmcnt(0)
v_readfirstlane_b32 s74, v{VN}
v_mov_b32 v57, v{VN}
v_mov_b32 v59, v{VN}
""")
for t in range(0 if LATE & 2 or KF_ else 7): a(f"ds_write_b128 v1, v[{WDV+4*t}:{WDV+4*t+3}] offset:{1024*t}")
if XL: a("ds_write_b128 v1, v[92:95] offset:7168")
for k in range(16):
    a(f"""
v_lshlrev_b32 v48, 16, v{GX+k}
v_and_b32 v49, 0xffff0000, v{GX+k}
v_lshlrev_b32 v50, 16, v{GW+k}
v_and_b32 v51, 0xffff0000, v{GW+k}
v_mul_f32 v48, v48, v50
v_mul_f32 v49, v49, v51
v_cvt_pk_bf16_f32 v48, v48, v49
v_and_b32 v49, 0xffff0000, v48
v_lshlrev_b32 v48, 16, v48
""")
    if k == 0: a("v_add_f32 v52, v48, v49")
    else: a("v_add_f32 v48, v48, v49\nv_add_f32 v52, v52, v48")
a("v_mov_b32 v24, v52")
xsum([24], [25], (8, 4))
a(f"""
v_cvt_pk_bf16_f32 v24, v24, v24
v_lshlrev_b32 v24, 16, v24
v_mul_f32 v24, {f32(-LOG2E)}, v24
v_exp_f32 v24, v24
v_add_f32 v24, 1.0, v24
v_rcp_f32 v24, v24
v_cvt_pk_bf16_f32 v24, v24, v24
v_lshlrev_b32 v{GG}, 16, v24
v_sub_f32 v25, 1.0, v{GG}
v_cvt_pk_bf16_f32 v25, v25, v25
v_lshlrev_b32 v{GG+1}, 16, v25
s_lshl_b32 s26, s18, 17
s_lshl_b32 s27, s17, 7
s_add_u32 s26, s26, s27
s_waitcnt vmcnt(0)
""")
def geglu(g_, u_, d_, t):
    a(f"""
v_lshlrev_b32 v{t}, 16, v{g_}
v_and_b32 v{t+1}, 0xffff0000, v{g_}
v_lshlrev_b32 v{t+2}, 16, v{u_}
v_and_b32 v{t+3}, 0xffff0000, v{u_}
v_mul_f32 v{t+4}, v{t}, v{t}
v_mul_f32 v{t+5}, v{t+1}, v{t+1}
v_mul_f32 v{t+4}, v{t+4}, v{t}
v_mul_f32 v{t+5}, v{t+5}, v{t+1}
v_fma_f32 v{t+4}, v{t+4}, s25, v{t}
v_fma_f32 v{t+5}, v{t+5}, s25, v{t+1}
v_mul_f32 v{t+4}, s26, v{t+4}
v_mul_f32 v{t+5}, s26, v{t+5}
v_exp_f32 v{t+4}, v{t+4}
v_exp_f32 v{t+5}, v{t+5}
v_add_f32 v{t+4}, 1.0, v{t+4}
v_add_f32 v{t+5}, 1.0, v{t+5}
v_rcp_f32 v{t+4}, v{t+4}
v_rcp_f32 v{t+5}, v{t+5}
v_mul_f32 v{t+4}, v{t+4}, v{t}
v_mul_f32 v{t+5}, v{t+5}, v{t+1}
v_cvt_pk_bf16_f32 v{t+4}, v{t+4}, v{t+5}
v_and_b32 v{t+5}, 0xffff0000, v{t+4}
v_lshlrev_b32 v{t+4}, 16, v{t+4}
v_mul_f32 v{t+4}, v{t+4}, v{t+2}
v_mul_f32 v{t+5}, v{t+5}, v{t+3}
v_cvt_pk_bf16_f32 v{d_}, v{t+4}, v{t+5}
""")
D1 = 52
def hpub(D, va):
    a(f"""
v_cvt_pk_bf16_f32 v56, v{D}, v{D+1}
v_cvt_pk_bf16_f32 v58, v{D+2}, v{D+3}
""")
    if not GU: a("s_cmp_ge_u32 s18, 28\ns_cbranch_scc1 L_nohpub")
    if OPT["coal"]:
        a(f"""
ds_bpermute_b32 v56, v{CP}, v56
ds_bpermute_b32 v58, v{CP}, v58
s_mov_b32 exec_hi, 0
s_waitcnt lgkmcnt(0)
""")
    else:
        a("s_mov_b64 exec, s[58:59]")
    a(f"""
buffer_store_dwordx4 v[56:59], v{va}, s[12:15], s30 offen sc1
s_mov_b64 exec, -1
""")
a("s_mov_b32 s30, s25")
if KF_:
    DG = 80; PP = 16
    tag_consts(SEL)
    a(f"""
s_cmp_ge_u32 {'s17, 7' if OPT['fm'] else 's18, 28'}
s_cbranch_scc1 L_nohpub
""")
    gemv128(9, DG, XB2)
    a(f"""
v_and_b32 v12, 1, v11
v_lshl_add_u32 v12, v12, 3, v10
v_lshlrev_b32 v12, 4, v12
v_lshrrev_b32 v13, 1, v11
v_lshl_add_u32 v13, v13, 11, v12
s_lshl_b32 s28, s22, 14
s_lshl_b32 s29, s23, 10
s_add_u32 s28, s28, s29
s_lshl_b32 s29, s24, 8
s_add_u32 s28, s28, s29
s_add_u32 s28, s28, {FP}
s_lshl_b32 s29, s21, 11
s_add_u32 s29, s29, {FP}
""")
    if OPT["kpl"]:
        a(f"""
v_and_b32 v12, 7, v10
v_lshl_add_u32 v12, v11, 3, v12
v_lshlrev_b32 v12, 4, v12
v_lshrrev_b32 v13, 3, v10
v_lshl_add_u32 v13, v13, 9, v12
""")
        pstore(DG, VN, 13, "s29", '' if OPT['kl2'] & 2 else 'sc1')
        a(f"""
s_lshl_b32 s29, s22, 14
s_and_b32 s28, s21, 7
s_lshl_b32 s28, s28, 8
s_add_u32 s29, s29, s28
s_add_u32 s29, s29, {FP}
v_lshlrev_b32 v4, 4, v10
v_lshl_add_u32 v4, v11, 12, v4
""")
    else: a("s_mov_b64 exec, s[58:59]")
    for ct in range(0 if OPT["kpl"] else 4):
        tag_ins(DG + 4*ct, VN, SEL)
        a(f"buffer_store_dwordx4 v[{DG+4*ct}:{DG+4*ct+3}], v13, s[12:15], s28 offen {'' if OPT['kl2'] & 2 else 'sc1'}")
        if ct < 3: a("s_add_u32 s28, s28, 4096")
    a(f"""
s_mov_b64 exec, -1
s_mul_i32 s28, s21, 9363
s_lshr_b32 s28, s28, 16
s_mul_i32 s30, s28, 7
s_sub_u32 s30, s21, s30
s_lshl_b32 s30, s30, 5
s_lshl_b32 s28, s28, 12
s_add_u32 s30, s30, s28
s_add_u32 s30, s30, {HG}
v_and_b32 v12, 7, v0
v_bfe_u32 v13, v0, 3, 1
v_lshlrev_b32 v13, 4, v13
v_lshl_add_u32 v13, v12, 8, v13
{f"s_lshl_b32 s30, s21, 8" + chr(10) + f"s_add_u32 s30, s30, {HG}" + chr(10) + "v_mov_b32 v13, v3" if HL else ""}
s_mov_b32 s72, s26
s_mov_b32 s25, {f32(0.044715)}
s_mov_b32 s26, {f32(-2.0*0.7978845608028654*LOG2E)}
""")
    if OPT["kpl"]: ppoll("L_f1p", PP, 4, "s29", VN, 48, OPT["f1d"], OPT["f1s"], None, 2048)
    else: ppoll("L_f1p", PP, 3, "s29", VN, 48, OPT["f1d"], OPT["f1s"])
    xsum(list(range(PP, PP+8)), list(range(PP+8, PP+16)), ())
    for k in range(4): a(f"v_cvt_pk_bf16_f32 v{PP+8+k}, v{PP+2*k}, v{PP+2*k+1}")
    geglu(PP+8, PP+10, 56, 48)
    geglu(PP+9, PP+11, 58, 48)
    a(f"""
s_mov_b64 exec, 0xffff
buffer_store_dwordx4 v[56:59], v13, s[12:15], s30 offen sc1
s_mov_b64 exec, -1
s_mov_b32 s26, s72
""")
elif GU:
    DG = 64
    a(f"""
s_cmp_lg_u32 s24, 0
s_cbranch_scc1 L_nohpub
v_lshrrev_b32 v8, 2, v10
v_lshl_add_u32 v8, v11, 3, v8
v_lshlrev_b32 v9, 7, v8
v_and_b32 v8, 3, v0
v_lshl_add_u32 v9, v8, 3, v9
v_add_u32 v9, {R1}, v9
""")
    backoff(OPT["gd"])
    for r in range(4):
        gu_dma(r)
        if r == 0:
            for ct in range(4): hg_addr(80 + ct, ct)
        for s_ in range(4):
            a(f"s_waitcnt vmcnt({12 - 4*s_})")
            for ct in range(4):
                q_ = AFR + 16*(s_ & 1) + 4*ct
                a(f"ds_read_b64_tr_b16 v[{q_}:{q_+1}], v9 offset:{s_*4096+ct*32}\nds_read_b64_tr_b16 v[{q_+2}:{q_+3}], v9 offset:{s_*4096+ct*32+512}")
            for ct in range(4):
                q_ = AFR + 16*(s_ & 1) + 4*ct; t = 4*r + s_; d = DG + 4*ct
                a(f"s_waitcnt lgkmcnt({6 - 2*ct})\nv_mfma_f32_16x16x32_bf16 v[{d}:{d+3}], v[{q_}:{q_+3}], v[{XF+4*t}:{XF+4*t+3}], {'0' if t == 0 else f'v[{d}:{d+3}]'}")
        if r < 3: backoff(OPT["gr"])
    for ct in range(4):
        hpub(DG + 4*ct, 80 + ct)
        if ct < 3: a("s_nop 4")
elif not HR:
    gemv(9, D1)
    hpub(D1, 13)
a.label("L_nohpub")
if OPT["xm"]:
    a(f"""
s_getreg_b32 s31, hwreg(HW_REG_XCC_ID, 0, 4)
s_xor_b32 s31, s31, s74
s_lshl_b32 s29, s17, 8
s_add_u32 s29, s29, {XID}
s_lshl_b32 s27, s18, 3
s_add_u32 s27, s27, s29
v_mov_b32 v{VN+1}, s31
v_lshlrev_b32 v66, 3, v0
v_and_b32 v66, 0xff, v66
s_mov_b64 exec, 1
{"" if RM & 256 else f"buffer_store_dwordx2 v[{VN}:{VN+1}], v66, s[12:15], s27 offen sc1"}
s_mov_b64 exec, -1
""")
stamp(2)
if OPT["tc0"] and OPT["tcd"] == 1:
    a("s_mov_b32 s30, s29"); touch0(); a("s_mov_b32 s29, s30")
def wo_dma(sr, t0=0, t1=16):
    for t in range(t0, 0 if OPT["skip"] & 1 else t1):
        a(f"s_mov_b32 m0, {WO_LDS + 1024*t}\ns_nop 0\nbuffer_load_dwordx4 v6, s[60:63], {sr} offen nt lds")
        if t < 15: a(f"s_add_u32 {sr}, {sr}, 8192")
if LATE & 1: a("s_mov_b32 s73, s26")
else: wo_dma("s26")
HB = 16; UB = 32
tag_consts(SEL)
a(f"""
""" + (f"""
s_mul_i32 s30, s18, 1792
s_add_u32 s30, s30, {HG}
v_lshlrev_b32 v1, 4, v10
v_lshl_add_u32 v1, v11, 8, v1
""" if HL and KF_ else f"""
s_mov_b32 s30, {HG}
s_mov_b32 s27, {HG + 65536}
s_mul_i32 s25, s18, 7
v_add_u32 v1, s25, v11
v_lshrrev_b32 v2, {2 if HR else 1}, v1
v_and_b32 v1, {3 if HR else 1}, v1
v_lshlrev_b32 v1, 5, v1
v_lshl_add_u32 v1, v2, {10 if HR else 9}, v1
v_lshl_add_u32 v1, v10, {7 if HR else 6}, v1
""" if HL else f"""
s_lshl_b32 s30, s18, 12
s_add_u32 s30, s30, {HG}
v_lshlrev_b32 v1, 5, v11
v_lshl_add_u32 v1, v10, 8, v1
""") + f"""
v_mov_b32 v4, 0x7ff00000
v_cmp_gt_u32 vcc, 3, v11
s_and_b64 s[66:67], s[58:59], vcc
v_cndmask_b32 v2, v4, v1, s[66:67]
v_cndmask_b32 v1, v4, v1, s[58:59]
v_lshlrev_b32 v14, 4, v10
v_lshl_add_u32 v14, v11, 7, v14
v_add_u32 v14, {WD_LDS}, v14
s_mov_b32 s76, {SPIN}
""")
backoff(OPT["hd"])
a.label("L_hpoll")
if RM & 64: a("s_mov_b32 s28, 1\ns_branch L_hdone2")
for B_, o_ in ((HB, 0),) if KF_ or OPT['hp'] & 2 else ((HB, 0), (UB, 2048)):
    if HL and KF_: a(f"""
buffer_load_dwordx4 v[{B_}:{B_+3}], v1, s[12:15], s30 offen sc1
buffer_load_dwordx4 v[{B_+4}:{B_+7}], v1, s[12:15], s30 offen offset:128 sc1
buffer_load_dwordx4 v[{B_+8}:{B_+11}], v2, s[12:15], s30 offen offset:1024 sc1
buffer_load_dwordx4 v[{B_+12}:{B_+15}], v2, s[12:15], s30 offen offset:1152 sc1
""")
    elif HL: a(f"""
buffer_load_dwordx4 v[{B_}:{B_+3}], v1, s[12:15], {'s27' if o_ else 's30'} offen sc1
buffer_load_dwordx4 v[{B_+4}:{B_+7}], v1, s[12:15], {'s27' if o_ else 's30'} offen offset:16 sc1
buffer_load_dwordx4 v[{B_+8}:{B_+11}], v2, s[12:15], {'s27' if o_ else 's30'} offen offset:1024 sc1
buffer_load_dwordx4 v[{B_+12}:{B_+15}], v2, s[12:15], {'s27' if o_ else 's30'} offen offset:1040 sc1
""")
    else: a(f"""
buffer_load_dwordx4 v[{B_}:{B_+3}], v1, s[12:15], s30 offen offset:{o_} sc1
buffer_load_dwordx4 v[{B_+4}:{B_+7}], v1, s[12:15], s30 offen offset:{o_+16} sc1
buffer_load_dwordx4 v[{B_+8}:{B_+11}], v2, s[12:15], s30 offen offset:{o_+128} sc1
buffer_load_dwordx4 v[{B_+12}:{B_+15}], v2, s[12:15], s30 offen offset:{o_+144} sc1
""")
if RM & 256: a("v_mov_b32 v64, s74\nv_mov_b32 v65, s31")
elif OPT["xm"]: a("buffer_load_dwordx2 v[64:65], v66, s[12:15], s29 offen sc1")
a("s_waitcnt vmcnt(0)")
any_eq([HB+1, HB+3, HB+5, HB+7] + ([] if KF_ or OPT['hp'] & 2 else [UB+1, UB+3, UB+5, UB+7]), "s74", neg=True)
a("s_and_b64 s[64:65], vcc, s[58:59]")
if OPT["xm"]: a("v_cmp_ne_u32 vcc, s74, v64\ns_or_b64 s[64:65], s[64:65], vcc\nv_xor_b32 v67, s74, v65\nv_cmp_lt_u32 vcc, 15, v67\ns_or_b64 s[64:65], s[64:65], vcc")
any_eq([HB+9, HB+11, HB+13, HB+15] + ([] if KF_ or OPT['hp'] & 2 else [UB+9, UB+11, UB+13, UB+15]), "s74", neg=True)
a("s_and_b64 vcc, vcc, s[66:67]\ns_or_b64 vcc, vcc, s[64:65]")
spin_tail("L_hpoll", "L_hdone", sleep=OPT["hslp"])
if OPT["xm"]:
    a(f"""
v_cmp_ne_u32 vcc, s31, v65
s_cmp_eq_u64 vcc, 0
s_cselect_b32 s28, {0 if OPT["xforce"] else 1}, 0
""")
if RM & 64: a.label("L_hdone2")
stamp(3)
a(f"""
s_mov_b32 s25, {f32(0.044715)}
s_mov_b32 s26, {f32(-2.0*0.7978845608028654*LOG2E)}
v_lshrrev_b32 v1, 2, v10
v_lshl_add_u32 v1, v11, 3, v1
v_lshlrev_b32 v1, 7, v1
v_and_b32 v2, 3, v0
v_lshl_add_u32 v1, v2, 3, v1
v_add_u32 v1, {WD_LDS}, v1
""")
AF = 80
def af_rd():
    for ct in range(4):
        for s_ in range(2):
            r = AF + 8*ct + 4*s_
            a(f"ds_read_b64_tr_b16 v[{r}:{r+1}], v1 offset:{s_*4096+ct*32}")
            a(f"ds_read_b64_tr_b16 v[{r+2}:{r+3}], v1 offset:{s_*4096+ct*32+512}")
def trig_wait():
    a(f"s_mov_b32 s76, {SPIN*16}")
    a.label("L_tw")
    a(f"""
ds_read_b32 v8, v15 offset:136
s_waitcnt lgkmcnt(0)
v_cmp_ne_u32 vcc, 2, v8
""")
    spin_tail("L_tw", "L_twdone", sleep=OPT["tslp"])
    stamp(0)
if not LATE & 2: af_rd()
HF = 48
for e in range(8):
    if KF_: a(f"v_mov_b32 v{HF+e}, v{HB+2*e}")
    else: geglu(HB + 2*e, UB + 2*e, HF + e, 56)
if LATE & 2:
    trig_wait()
    for t in range(7):
        a(f"s_mov_b32 m0, {WD_LDS + 1024*t}\ns_nop 0\nbuffer_load_dwordx4 v6, s[4:7], s72 offen nt lds")
        if t < 6: a("s_add_u32 s72, s72, 8192")
    if LATE & 1: wo_dma("s73")
    a(f"s_waitcnt vmcnt({16 if LATE & 1 else 0})")
    af_rd()
a("s_waitcnt lgkmcnt(0)")
for ct in range(4):
    r = AF + 8*ct; d = 112 + 4*ct
    a(f"v_mfma_f32_16x16x32_bf16 v[{d}:{d+3}], v[{r}:{r+3}], v[{HF}:{HF+3}], 0")
    a(f"v_mfma_f32_16x16x32_bf16 v[{d}:{d+3}], v[{r+4}:{r+7}], v[{HF+4}:{HF+7}], v[{d}:{d+3}]")
for ct in range(4): tag_ins(112 + 4*ct, VN, SEL)
a("s_mov_b64 exec, s[58:59]")
for ct in range(4):
    d = 112 + 4*ct
    a(f"ds_write_b128 v14, v[{d}:{d+3}] offset:{512*ct}")
if OPT["hbn"] == 1:
    a(f"""
v_lshlrev_b32 v1, 4, v10
v_lshl_add_u32 v1, v11, 13, v1
s_lshl_b32 s25, s17, 17
s_lshl_b32 s26, s18, 7
s_add_u32 s25, s25, s26
s_add_u32 s25, s25, {CPA}
v_not_b32 v16, v{VN}
v_not_b32 v17, v{VN}
v_not_b32 v18, v{VN}
v_not_b32 v19, v{VN}
""")
    for ct in range(4):
        d = 112 + 4*ct
        a(f"s_add_u32 s26, s25, 4096\nbuffer_store_dwordx4 v[{d}:{d+3}], v1, s[12:15], s26 offen")
        if OPT["prw"]: a(f"buffer_store_dwordx4 v[16:19], v1, s[12:15], s25 offen")
        if ct < 3: a("s_add_u32 s25, s25, 32768")
a(f"""
v_lshl_add_u32 v2, v{CP+2}, 3, v15
s_mov_b64 exec, 15
ds_write_b64 v2, v[{GG}:{GG+1}] offset:64
""")
stamp(4)
if OPT["tchb"]: touch()
if OPT["xm"]:
    a(f"v_mov_b32 v8, s28\nds_write_b32 v15, v8 offset:140")
else:
    a("v_mov_b32 v8, 1\ns_waitcnt vmcnt(0) lgkmcnt(0)\nds_write_b32 v15, v8 offset:140")
if LATE == 1:
    if OPT["pt"]:
        srd(8, P_OUT, 8192)
        a(f"""
s_mov_b64 exec, 1
s_lshl_b32 s25, s17, 7
s_mov_b32 s26, 0x3f0000
v_mov_b32 v16, 0
""")
        if OPT["pt"] & 1: a("buffer_load_dword v17, v16, s[8:11], s25 offen")
        if OPT["pt"] & 2: a("buffer_load_dword v18, v16, s[12:15], s26 offen")
        if OPT["pt"] & 4: a("buffer_load_dword v19, v16, s[60:63], s73 offen nt")
    a("s_mov_b64 exec, -1")
    if OPT["dlb"]:
        a(f"""
s_lshl_b32 s27, s17, 7
s_mul_i32 s26, s18, {56*1024}
s_add_u32 s26, s26, s27
s_movk_i32 s30, 2000
L_dl:
s_memrealtime s[64:65]
s_sub_u32 s30, s30, 1
s_cbranch_scc1 L_dld
s_waitcnt lgkmcnt(0)
s_sub_u32 s64, s64, s74
s_cmp_ge_i32 s64, {OPT['dlb']}
s_cbranch_scc1 L_dld
s_sleep 4
s_branch L_dl
L_dld:
s_mov_b32 s25, 0
""")
        for t in range(16):
            a(f"s_mov_b32 m0, {R1 + 1024*t}")
            if t: a(f"s_mov_b32 s25, {t*32*3584}")
            a(f"buffer_load_dwordx4 v5, s[68:71], s25 offen nt lds")
        for t in range(7):
            a(f"buffer_load_dwordx4 v[{WDV+4*t}:{WDV+4*t+3}], v6, s[4:7], s26 offen nt")
            if t < 6: a("s_add_u32 s26, s26, 8192")
        if OPT["dlw"]: a("s_waitcnt vmcnt(0)")
    if OPT["w8"]:
        backoff(OPT["w8d"])
        a(f"""
s_lshl_b32 s25, s18, 17
s_movk_i32 s26, {OPT["w8"]}
L_w8:
""")
        for t in range(OPT["w8n"]):
            a(f"s_waitcnt vmcnt({OPT['w8n']-1})\nbuffer_load_dwordx4 v[{16+4*t}:{19+4*t}], v3, s[60:63], s25 offen {['', 'nt', 'sc1', 'sc0 sc1', 'sc1 nt'][OPT['w8p']]}\ns_add_u32 s25, s25, 1024")
            if OPT["w8s"]: a(f"s_sleep {OPT['w8s']}")
        a(f"""
s_sub_u32 s26, s26, {OPT['w8n']}
s_cmp_gt_i32 s26, 0
s_cbranch_scc1 L_w8
""")
    if BW:
        def red8b(r, op, src=None):
            for m in ("quad_perm:[1,0,3,2]", "quad_perm:[2,3,0,1]", "row_half_mirror"):
                q = r if src is None else src
                a(f"{op}_dpp v{r}, v{q}, v{q} {m} row_mask:0xf bank_mask:0xf")
                src = None
        a(f"""
v_lshl_add_u32 v20, v0, 3, v15
v_lshl_add_u32 v21, v0, 2, v15
v_lshrrev_b32 v22, 5, v0
v_bfe_u32 v23, v0, 3, 2
v_lshl_add_u32 v22, v22, 5, v23
v_mul_u32_u24 v22, {FST}, v22
s_lshl_b32 s25, s20, 4
s_add_u32 s25, s25, s19
s_mul_i32 s25, s25, {4*FST}
s_lshl_b32 s26, s17, 3
s_add_u32 s25, s25, s26
s_add_u32 s25, s25, {FG + OPT['fgo']}
s_mov_b32 s26, {f32(LOG2E)}
v_mov_b32 v31, v{VN}
""" + (f"""
v_lshrrev_b32 v36, 3, v0
v_mul_u32_u24 v36, {32*FST}, v36
v_and_b32 v37, 7, v0
v_lshl_add_u32 v36, v37, 3, v36
s_mul_i32 s28, s18, {FST}
s_add_u32 s28, s28, {FG + OPT['fgo']}
v_not_b32 v32, v{VN}
v_mov_b32 v33, 0
v_not_b32 v34, v{VN}
v_mov_b32 v35, 0
s_mov_b32 s29, {BP1}
""" if BP1 else "") + f"""
s_mov_b32 s76, {SPIN*64}
{f"s_setprio {OPT['bwp']}" if OPT['bwp'] != 3 else ""}
""")
        if OPT["we"]:
            a(f"""
L_we:
{"ds_read_b32 v25, v15 offset:144" if OPT["we"] == 1 else f"ds_read_b64 v[24:25], v20 offset:{MLT - MISC}"}
s_sub_u32 s76, s76, 1
s_cbranch_scc1 L_wed
s_waitcnt lgkmcnt(0)
v_cmp_eq_u32 vcc, {0 if OPT["we"] == 1 else -1}, v25
s_bcnt1_i32_b64 s27, vcc
s_cmp_lt_u32 s27, {OPT["we"]}
s_cbranch_scc1 L_wed
s_sleep {OPT['bws']}
s_branch L_we
L_wed:
""")
            backoff(OPT["wed"])
            wo_dma("s73")
        a(f"""
L_bw:
ds_read_b64 v[24:25], v20 offset:{MLT - MISC}
s_sub_u32 s76, s76, 1
s_cbranch_scc1 L_bwd
s_waitcnt lgkmcnt(0)
v_cmp_eq_u32 vcc, -1, v25
s_cbranch_vccz L_bwd
s_bcnt1_i32_b64 s27, vcc
""" + (f"""
s_cmp_ge_u32 s27, s29
s_cbranch_scc1 L_bw1
s_mov_b32 s29, 0
buffer_atomic_cmpswap_x2 v[32:35], v36, s[12:15], s28 offen sc0 sc1
L_bw1:
""" if BP1 else "") + f"""
{f"s_sleep {OPT['bwt']}" if OPT['bwt'] else ""}
s_cmp_lt_u32 s27, {OPT['bwn']}
s_cbranch_scc1 L_bw
s_sleep {OPT['bws']}
s_branch L_bw
L_bwd:
{"s_setprio 3" if OPT['bwp'] != 3 else ""}
s_waitcnt lgkmcnt(0)
""")
        red8b(26, "v_max_f32", 24)
        a(f"""
v_sub_f32 v24, v24, v26
v_mul_f32 v24, s26, v24
v_exp_f32 v24, v24
v_mul_f32 v27, v24, v25
""")
        red8b(27, "v_add_f32")
        a(f"""
v_max_f32 v27, {f32(1e-30)}, v27
v_rcp_f32 v29, v27
v_log_f32 v28, v27
v_mul_f32 v24, v24, v29
ds_write_b32 v21, v24 offset:{WTL - MISC}
v_fma_f32 v30, v26, s26, v28
v_perm_b32 v30, v30, v{VN}, s{SEL}
""")
        wo_dma("s73", 0, OPT["bwo"])
        if BP1:
            backoff(OPT["bpz"])
            a(f"v_mov_b32 v38, v32\nv_mov_b32 v39, v33\nds_write_b64 v20, v[38:39] offset:{FTL - MISC}")
        a(f"""
s_mov_b32 exec_lo, 0x01010101
s_mov_b32 exec_hi, 0x01010101
s_waitcnt lgkmcnt(0)
s_barrier
{f"s_sleep {OPT['bwd']}" if OPT['bwd'] else ""}
buffer_store_dwordx2 v[30:31], v22, s[12:15], s25 offen sc1
s_mov_b64 exec, -1
""")
        stamp(0)
        if not OPT["we"]: backoff(OPT["wdel"] - OPT["bwd"])
    elif OPT["lb"] == 2:
        a("s_waitcnt lgkmcnt(0)\ns_barrier")
        if OPT["eb"] and not OPT["ebw"]: a("s_barrier")
        stamp(0); backoff(OPT["wdel"])
    else: trig_wait()
    def wd_late():
        a(f"""
s_lshl_b32 s27, s17, 7
s_mul_i32 s26, s18, {56*1024}
s_add_u32 s26, s26, s27
""")
        for t in range(7):
            a(f"s_mov_b32 m0, {0x1E000 + 1024*t}\ns_nop 0\nbuffer_load_dwordx4 v6, s[4:7], s26 offen nt lds")
            if t < 6: a("s_add_u32 s26, s26, 8192")
    if OPT["wl"] == 1: wd_late()
    wo_dma("s73", 16 if OPT["we"] else OPT["bwo"])
    if OPT["wl"] == 2: wd_late()
    if OPT["lb"] == 1 or OPT["eb"] and OPT["ebw"]: a("s_barrier")
if LATE and OPT["stamps"]: a("s_waitcnt vmcnt(0)"); stamp(4)
hstamps(9, 5)
a("s_waitcnt vmcnt(0) lgkmcnt(0)\ns_endpgm")

a.label("L_stream")
KA, VA, KR, VR = 1, 5, 7, 11
M_, L_ = 20, 21
T0, T1, T2 = 22, 23, 19
Q = 24; KF = 40; S = 56; T = 60; PF = 66; SA = 68; TKA = 69; CL = 70; ZR = 71; O = 72; STG = 104; NINF = 65; FL = 64
TE = T + 2; ONE = T + 3; TA = CL
ST0 = 168 - 16*NST
X0 = KF
a(f"""
v_and_b32 v{T0}, 15, v0
v_lshrrev_b32 v{T1}, 4, v0
s_mul_i32 s24, s3, {RING}
{"s_memrealtime s[98:99]" if OPT["pp"] else ""}
""")
for i in range(4):
    a(f"""
v_add_u32 v{T2}, {4*i}, v{T1}
v_xor_b32 v{T2}, v{T2}, v{T0}
v_lshlrev_b32 v{T2}, 4, v{T2}
v_lshl_add_u32 v{KA+i}, v{T1}, 8, v{T2}
v_lshl_add_u32 v{KR+i}, v{T0}, 8, v{T2}
""")
a(f"""
{"s_lshl_b32 s30, s17, 2" if XB else "s_lshl_b32 s30, s20, 4"}
s_add_u32 s30, s30, {"s20" if XB else "s19"}
{"s_lshl_b32 s30, s30, 1" if XB else ""}
s_lshl_b32 s21, s30, 21
s_lshl_b32 s22, {MEM}, 3
s_add_u32 s22, s22, s3
s_mul_i32 s77, s20, {OPT['r2']}
{f"s_mul_i32 s25, {'s17' if XB else 's19'}, {OPT['r1']}" + chr(10) + "s_add_u32 s77, s77, s25" if OPT['r1'] else ""}
s_add_u32 s22, s22, s77
s_and_b32 s26, s22, 511
{trn("s26")}
s_lshl_b32 s26, s26, 12
s_add_u32 s26, s26, s21
s_add_u32 m0, s24, 8192
s_waitcnt lgkmcnt(0)
""")
if OPT["fz"]:
    a(f"""
s_add_u32 s27, s18, s17
s_and_b32 s27, s27, 3
s_lshr_b32 s28, s18, 2
v_lshrrev_b32 v40, 3, v0
v_and_b32 v41, 7, v0
v_lshlrev_b32 v41, 4, v41
s_cmp_eq_u32 s27, 2
s_cbranch_scc1 L_fzg
s_cmp_lg_u32 s27, 0
s_cbranch_scc1 L_fzd
s_lshl_b32 s29, s17, 3
s_add_u32 s29, s29, s28
s_lshl_b32 s29, s29, 7
s_lshl_b32 s25, s3, 19
s_add_u32 s29, s29, s25
v_lshl_add_u32 v40, v40, 13, v41
s_mov_b32 s28, 65536
""")
    srd(8, P_WQ, 512*4096*2)
    a(f"""
s_branch L_fzl
L_fzg:
s_cmp_ge_u32 s28, 7
s_cbranch_scc1 L_fzd
s_and_b32 s29, s17, 3
s_mul_i32 s29, s29, 7
s_add_u32 s29, s29, s28
s_lshl_b32 s29, s29, 7
s_mul_i32 s25, s3, {64*3584}
s_add_u32 s29, s29, s25
v_mul_u32_u24 v40, 3584, v40
v_add_u32 v40, v40, v41
s_movk_i32 s28, {8*3584}
s_cmp_lt_u32 s17, 4
s_cselect_b32 s8, s{P_WG}, s{P_WU}
s_cselect_b32 s9, s{P_WG+1}, s{P_WU+1}
s_mov_b32 s10, {512*1792*2}
s_mov_b32 s11, 0x00020000
L_fzl:
""")
    for t in range(8):
        a(f"s_add_u32 m0, s24, {1024*t}\ns_nop 0\nbuffer_load_dwordx4 v40, s[8:11], s29 offen nt lds\ns_add_u32 s29, s29, s28")
    a(f"""
s_add_u32 m0, s24, 8192
L_fzd:
""")
srd(4, P_K, 128 << 20)
if OPT["fine"] in (6, 7): a("s_memrealtime s[48:49]")
nload = [0]
def wxk(k): return [0, k & 7, 2*(k & 1), (k*3) & 7, (k & 1)*2 + (k >> 1 & 1) + (k & 4)][OPT["wx"]]
def pre_load(k):
    if k:
        a(f"""
s_xor_b32 s26, s3, {wxk(k)}
s_sub_u32 s26, s26, s3
s_add_u32 s26, s26, s22
s_add_u32 s26, s26, {64*k}
""" if OPT["wx"] else f"s_add_u32 s26, s22, {64*k}")
        a(f"""
s_and_b32 s26, s26, 511
{trn("s26")}
s_lshl_b32 s26, s26, 12
s_add_u32 s26, s26, s21
""")
        if k >= 8: a(f"s_add_u32 s26, s26, {1 << 24}")
    if OPT["pp"] and k >= OPT["pp0"]:
        if k == OPT["pp0"]: a(f"s_mul_i32 s99, s3, {OPT['pps']}\ns_add_u32 s98, s98, s99\ns_movk_i32 s99, 2000")
        a(f"""
L_pp{k}:
s_memrealtime s[100:101]
s_sub_u32 s99, s99, 1
s_cbranch_scc1 L_ppd{k}
s_waitcnt lgkmcnt(0)
s_sub_u32 s100, s100, s98
s_cmp_ge_i32 s100, {OPT['ppo'] + (k - OPT['pp0'] + 1)*OPT['pp']}
s_cbranch_scc1 L_ppd{k}
s_sleep 2
s_branch L_pp{k}
L_ppd{k}:
""")
    if k == 1: a("s_mov_b32 m0, s24")
    if k == 2: a("s_add_u32 m0, s24, 4096")
    for i in range(4):
        if nload[0] == NPRE:
            if OPT["fine"] in (6, 7): a("s_memrealtime s[50:51]")
            setup_rest()
            if OPT["fine"] == 6: a("s_waitcnt vmcnt(0)\ns_memrealtime s[54:55]")
            a("s_waitcnt lgkmcnt(0)\ns_barrier")
            if OPT["fine"] == 6: a("s_memrealtime s[56:57]")
            if OPT["fine"] == 7: a("s_memrealtime s[54:55]")
        if OPT["fine"] == 7 and nload[0] == 16: a("s_memrealtime s[56:57]")
        if nload[0] >= Wp: a(f"s_waitcnt vmcnt({Wp-1})")
        if LOG and nload[0] >= Wp + 3 and (nload[0] - Wp) % 4 == 3:
            pl = [62, 64, 66, 94, 98, 100][(nload[0] - Wp)//4]
            a(f"s_memrealtime s[{pl}:{pl+1}]")
        if k < 3:
            a(f"buffer_load_dwordx4 v{KA+i}, s[4:7], s26 offen offset:{i*1024} nt lds")
        else:
            r = ST0 + 16*(k-3) + 4*i
            a(f"buffer_load_dwordx4 v[{r}:{r+3}], v{KA+i}, s[4:7], s26 offen offset:{i*1024} nt")
        nload[0] += 1
def setup_rest():
    srd(8, P_V, 128 << 20)
    srd(12, P_WS, WS_BYTES)
    for e in range(2):
        a(f"""
v_lshrrev_b32 v{T2}, 1, v{T0}
v_add_u32 v{X0}, {4*e}, v{T1}
v_xor_b32 v{T2}, v{T2}, v{X0}
v_lshlrev_b32 v{T2}, 5, v{T2}
v_and_b32 v{X0}, 1, v{T0}
v_lshl_add_u32 v{T2}, v{X0}, 4, v{T2}
v_lshl_add_u32 v{VA+e}, v{T1}, 8, v{T2}
""")
    a(f"""
s_mov_b32 s79, {hex(SENT)}
v_mov_b32 v{S}, s79
v_mov_b32 v{S+1}, s79
v_mov_b32 v{S+2}, s79
v_mov_b32 v{S+3}, s79
s_mul_i32 s25, s3, {2048 if HR else NSLOT*16}
s_add_u32 s25, s25, {SB}
v_lshl_add_u32 v{T2}, v0, 4, s25
""")
    for k in range(2 if HR else NSLOT//64): a(f"ds_write_b128 v{T2}, v[{S}:{S+3}] offset:{1024*k}")
    a(f"""
v_lshrrev_b32 v{X0}, 2, v0
v_and_b32 v{X0+1}, 7, v{X0}
v_and_b32 v{X0+2}, 3, v0
v_lshlrev_b32 v{X0+2}, 3, v{X0+2}
v_lshl_add_u32 v{SA}, v{T1}, 5, v{X0+2}
v_add_u32 v{SA}, {SB}, v{SA}
v_lshl_add_u32 v{X0+2}, v{X0}, 8, v{X0+2}
""")
    for dt in range(8):
        a(f"v_xor_b32 v{X0+3}, {dt}, v{X0+1}\nv_lshl_add_u32 v{VR+dt}, v{X0+3}, 5, v{X0+2}")
    a(f"""
v_cmp_gt_u32 s[70:71], 8, v{T0}
v_mov_b32 v{M_}, {f32(-1e30)}
v_mov_b32 v{L_}, 0
v_mov_b32 v{NINF}, 0xff80ff80
v_mov_b32 v{ZR}, 0
s_mov_b32 s58, {f32(SCALE)}
s_mov_b32 s59, {f32(LOG2E)}
s_mov_b32 s31, {f32(-LOG2E)}
v_mov_b32 v{ONE}, 1
v_mov_b32 v{FL}, {TK}
v_mov_b32 v{TKA}, {TK}
s_mov_b32 s78, {T1B}
s_mov_b32 s96, 0
s_mov_b32 s60, s24
s_add_u32 s61, s24, 4096
s_add_u32 s72, s24, 8192
s_lshl_b32 s73, s3, 7
s_xor_b32 s27, s73, {1024 + 128*wxk(1)}
s_xor_b32 s28, s73, {2048 + 128*wxk(2)}
""")
    tag_consts(SEL)
    for r in range(O, min(O+32, ST0)): a(f"v_mov_b32 v{r}, 0")
    for r in range(16): a(f"v_mov_b32 v{Q+r}, 0")
for k in range(NSU): pre_load(k)
a(f"""
v_lshlrev_b32 v{T2}, 4, v{T1}
v_lshl_add_u32 v{T2}, v{T0}, 8, v{T2}
v_add_u32 v{T2}, {Q_LDS}, v{T2}
s_mov_b32 s76, {SPIN*16}
""")
a.label("L_qw")
a(f"""
ds_read_b32 v{T}, v{FL} offset:4
s_waitcnt lgkmcnt(0)
v_cmp_ne_u32 vcc, 1, v{T}
""")
spin_tail("L_qw", "L_qwdone", sleep=1)
stamp(1)
a("s_mov_b64 exec, s[70:71]")
for j in range(4): a(f"ds_read_b128 v[{Q+4*j}:{Q+4*j+3}], v{T2} offset:{j*64}")
a("s_mov_b64 exec, -1")

nlab = [0]
def ticket_rd():
    a(f"s_mov_b64 exec, 1\nds_add_rtn_u32 v{TE}, v{TKA}, v{ONE}\ns_mov_b64 exec, -1")
def ticket_use():
    a(f"""
v_readfirstlane_b32 s25, v{TE}
s_and_b32 s75, s25, 1
s_lshr_b32 s25, s25, 1
s_lshl_b32 s25, s25, 2
s_add_u32 s25, s25, s78
v_mov_b32 v{TA}, s25
""")
def entry_rd():
    a(f"ds_read_b32 v{TE}, v{TA}")
def dmask(d):
    a(f"""
s_andn2_b32 s25, {d}, 127
v_add_u32 v{T2}, s25, v{SA}
s_and_b32 s25, {d}, 4
s_lshl_b32 s68, 0x000f000f, s25
s_mov_b32 s69, s68
""")
def kstep(sb, d, mid=None):
    for j in range(4): a(f"v_add_u32 v{KF+4*j}, {sb}, v{KR+j}\nds_read_b128 v[{KF+4*j}:{KF+4*j+3}], v{KF+4*j}")
    dmask(d)
    if mid:
        a("s_waitcnt lgkmcnt(4)"); mid()
    for j in range(4):
        c = "0" if j == 0 else f"v[{S}:{S+3}]"
        a(f"s_waitcnt lgkmcnt({3-j})")
        a(f"v_mfma_f32_16x16x32_bf16 v[{S}:{S+3}], v[{KF+4*j}:{KF+4*j+3}], v[{Q+4*j}:{Q+4*j+3}], {c}")
    for k in range(2): a(f"v_cvt_pk_bf16_f32 v{T+k}, v{S+2*k}, v{S+2*k+1}")
    for k in range(2):
        a(f"v_lshlrev_b32 v{S+2*k}, 16, v{T+k}\nv_and_b32 v{S+2*k+1}, 0xffff0000, v{T+k}")
    for k in range(4): a(f"v_mul_f32 v{S+k}, s58, v{S+k}")
    for k in range(2): a(f"v_cvt_pk_bf16_f32 v{PF+k}, v{S+2*k}, v{S+2*k+1}")
    a(f"s_mov_b64 exec, s[68:69]\nds_write_b64 v{T2}, v[{PF}:{PF+1}]\ns_mov_b64 exec, -1")
ool = []
def soft(skip=None):
    nlab[0] += 1
    n = nlab[0]
    a(f"""
L_sr{n}:
v_cmp_eq_u32 vcc, s79, v{PF}
v_cmp_eq_u32 s[74:75], s79, v{PF+1}
""" if False else f"""
L_sr{n}:
v_cmp_eq_u32 vcc, s79, v{PF}
s_cbranch_vccnz {skip or f"L_ss{n}"}
v_cmp_eq_u32 vcc, s79, v{PF+1}
s_cbranch_vccnz {skip or f"L_ss{n}"}
L_sg{n}:
v_cndmask_b32 v{T}, v{NINF}, v{PF}, s[68:69]
v_cndmask_b32 v{T+1}, v{NINF}, v{PF+1}, s[68:69]
""")
    if not skip: ool.append(f"""
L_ss{n}:
s_sub_u32 s76, s76, 1
s_cmp_le_i32 s76, 0
s_cbranch_scc1 L_sg{n}
ds_read_b64 v[{PF}:{PF+1}], v{T2}
s_waitcnt lgkmcnt(0)
s_branch L_sr{n}
""")
    for k in range(2):
        a(f"v_lshlrev_b32 v{S+2*k}, 16, v{T+k}\nv_and_b32 v{S+2*k+1}, 0xffff0000, v{T+k}")
    a(f"""
v_max3_f32 v{T}, v{S}, v{S+1}, v{S+2}
v_max3_f32 v{T}, v{T}, v{S+3}, v{M_}
v_mov_b32 v{T+1}, v{T}
v_permlane16_swap_b32 v{T}, v{T+1}
v_max_f32 v{T}, v{T}, v{T+1}
v_mov_b32 v{T+1}, v{T}
v_permlane32_swap_b32 v{T}, v{T+1}
v_max_f32 v{T}, v{T}, v{T+1}
v_cmp_gt_f32 vcc, v{T}, v{M_}
s_cbranch_vccz L_nr{n}
v_sub_f32 v{T+1}, v{M_}, v{T}
v_mul_f32 v{T+1}, s59, v{T+1}
v_exp_f32 v{T+1}, v{T+1}
v_mov_b32 v{M_}, v{T}
v_mul_f32 v{L_}, v{L_}, v{T+1}
""")
    for r in range(32): a(f"v_mul_f32 v{O+r}, v{O+r}, v{T+1}")
    a.label(f"L_nr{n}")
    a(f"v_mul_f32 v{T+1}, s31, v{M_}")
    for k in range(4): a(f"v_fma_f32 v{S+k}, v{S+k}, s59, v{T+1}")
    for k in range(4): a(f"v_exp_f32 v{S+k}, v{S+k}")
    for k in range(2): a(f"v_cvt_pk_bf16_f32 v{PF+k}, v{S+2*k}, v{S+2*k+1}")
    a(f"""
v_add_f32 v{T}, v{S}, v{S+1}
v_add_f32 v{T+1}, v{S+2}, v{S+3}
v_add_f32 v{T}, v{T}, v{T+1}
v_add_f32 v{L_}, v{L_}, v{T}
""")
def v_rd(sb):
    for dt in range(8): a(f"v_add_u32 v{KF+2*dt}, {sb}, v{VR+dt}\nds_read_b64_tr_b16 v[{KF+2*dt}:{KF+2*dt+1}], v{KF+2*dt}")
def pv(dt):
    a(f"v_mfma_f32_16x16x16_bf16 v[{O+4*dt}:{O+4*dt+3}], v[{KF+2*dt}:{KF+2*dt+1}], v[{PF}:{PF+1}], v[{O+4*dt}:{O+4*dt+3}]")
def vstep(sb, d, mid=None):
    dmask(d)
    a(f"ds_read_b64 v[{PF}:{PF+1}], v{T2}")
    v_rd(sb)
    a("s_waitcnt lgkmcnt(8)")
    if mid: mid()
    soft()
    a("s_waitcnt lgkmcnt(0)")
    for dt in range(8): pv(dt)
X = STG
VNS = X + 27; FLG = X + 26
F3ADDR = f"""
s_lshl_b32 s77, s16, 2
s_add_u32 s77, s77, {F1}
s_lshr_b32 s22, s16, {OPT['rsh']}
s_lshl_b32 s22, s22, 10
s_add_u32 s22, s22, {F1}
s_lshr_b32 s95, s3, 1
s_lshl_b32 s95, s95, 3
s_lshr_b32 s25, s16, 5
s_add_u32 s95, s95, s25
s_lshl_b32 s95, s95, 5
s_add_u32 s95, s95, s22
""" if OPT["f3"] else ""
FLIM = 1 << 20
COL = OPT["col"]
COL1 = f"""
v_lshrrev_b32 v{X+11}, 2, v{T0}
v_lshlrev_b32 v{X+11}, 12, v{X+11}
v_lshl_add_u32 v{X+25}, v{X+13}, 4, v{X+11}
v_lshl_add_u32 v{X+11}, v{T1}, 13, v{X+25}
""" if COL else f"""v_lshlrev_b32 v{X+11}, 4, v{T0}
v_lshl_add_u32 v{X+11}, v{T1}, 13, v{X+11}
"""
COL2 = "" if COL else f"""v_lshrrev_b32 v{X+25}, 3, v{T0}
v_lshlrev_b32 v{X+25}, 13, v{X+25}
v_lshl_add_u32 v{X+25}, v{X+3}, 4, v{X+25}
"""
FU = OPT["fful"]
FADDR = f"""
s_and_b32 s94, s29, 31
s_lshl_b32 s94, s94, 6
s_lshr_b32 s25, s29, 5
s_add_u32 s94, s94, s25
s_mul_i32 s94, s94, {FST}
s_lshl_b32 s25, s17, 3
s_add_u32 s94, s94, s25
s_add_u32 s94, s94, {FG}
s_andn2_b32 s95, s16, {[0, 7, 3, 1, 0][OPT['fone']]}
s_lshl_b32 s95, s95, 3
s_add_u32 s95, s95, s3
s_mul_i32 s95, s95, {FST}
s_add_u32 s95, s95, {FG}
v_mul_u32_u24 v{X+30}, {8*FST}, v0
""" if not FU else f"""
s_lshl_b32 s94, s29, 3
s_add_u32 s94, s94, s17
s_mul_i32 s94, s94, {FU}
s_add_u32 s94, s94, {FG}
s_lshl_b32 s95, s3, 5
s_add_u32 s95, s95, s18
s_mul_i32 s95, s95, {8*FU}
s_lshl_b32 s25, s17, 3
s_add_u32 s95, s95, s25
s_add_u32 s95, s95, {FG}
v_mul_u32_u24 v{X+30}, {FU}, v0
"""
FSA, FPA = (X+1, X+30) if FU else (X+30, X+1)
PH = OPT["ph"]
if PH: FPA = X + 6
PLY = OPT["ply"]
if OPT["fone"] == 4:
    FADDR = f"""
s_mul_i32 s94, s29, {FST}
s_lshl_b32 s25, {MEM}, 3
s_add_u32 s94, s94, s25
s_add_u32 s94, s94, {FG + OPT['fgo']}
s_lshl_b32 s95, s3, 5
s_add_u32 s95, s95, s18
s_mul_i32 s95, s95, {FST}
s_add_u32 s95, s95, {FG + OPT['fgo']}
v_mov_b32 v{X+30}, 0
"""
PHA = f"""v_and_b32 v{X+10}, 7, v0
v_lshl_add_u32 v{X+10}, v{X+10}, 2, v{T1}
v_lshrrev_b32 v{X+5}, 3, v{T0}
v_lshl_add_u32 v{X+10}, v{X+10}, 1, v{X+5}
v_lshlrev_b32 v{X+10}, 2, v{X+10}
v_lshlrev_b32 v{X+5}, 2, v0
v_and_b32 v{X+6}, 1, v0
v_lshl_add_u32 v{X+6}, v{X+6}, 2, v{T1}
v_lshlrev_b32 v{X+6}, 3, v{X+6}
v_and_b32 v{X+8}, 12, v{X+5}""" if PH else f"""v_bfe_u32 v{X+10}, v0, 4, 1
v_lshlrev_b32 v{X+10}, 2, v{X+10}
v_lshl_add_u32 v{X+10}, v{T0}, 4, v{X+10}
v_lshl_add_u32 v{X+10}, v{X+4}, 3, v{X+10}
v_and_b32 v{X+31}, 1, v0
v_lshlrev_b32 v{X+31}, 4, v{X+31}"""
PHB = f"""s_mov_b32 s25, 0x9e3779b1
v_mul_lo_u32 v{X+31}, v{VNS}, s25
v_lshrrev_b32 v{X+8}, v{X+8}, v{X+31}
v_lshrrev_b32 v{X+31}, v{T0}, v{X+31}""" if PH else f"v_lshrrev_b32 v{X+31}, v{X+31}, v{VNS}"
PLA = f"""s_lshr_b32 s74, s3, 1
s_lshl_b32 s74, s74, 3
s_lshr_b32 s25, s18, 2
s_add_u32 s74, s74, s25
s_lshl_b32 s74, s74, 6
s_and_b32 s25, s3, 1
s_lshl_b32 s25, s25, 2
s_add_u32 s74, s74, s25
s_and_b32 s25, s18, 3
s_add_u32 s74, s74, s25
s_lshl_b32 s74, s74, 8
s_add_u32 s74, s74, {PART}
s_add_u32 s33, s74, 8192
v_lshlrev_b32 v{X+7}, 4, v{T0}
v_lshl_add_u32 v{X+7}, v{T1}, 11, v{X+7}""" if PLY else f"""s_lshl_b32 s74, s3, 5
s_add_u32 s74, s74, s18
s_lshl_b32 s74, s74, {11 if PH else 12}
s_add_u32 s74, s74, {PART}
v_lshlrev_b32 v{X+7}, 4, v0"""
def tail_addr():
    a(f"""
v_mul_u32_u24 v{X}, {CST}, v{T0}
v_lshl_add_u32 v{X}, v{T1}, 4, v{X}
v_add_u32 v{X}, s24, v{X}
v_lshlrev_b32 v{X+1}, 3, v0
s_lshl_b32 s25, s3, 3
s_add_u32 s25, s25, {MLT}
v_lshl_add_u32 v{X+15}, v0, 6, s25
v_mov_b32 v{X+21}, {MISC}
ds_read_b32 v{VNS}, v{X+21} offset:96
s_lshr_b32 s29, s3, 2
{"" if XB else "s_lshl_b32 s29, s29, 3"}
s_add_u32 s29, s29, s30
s_lshl_b32 s29, s29, 2
s_and_b32 s25, s3, 3
s_add_u32 s29, s29, s25
s_lshl_b32 s62, {"s16" if PLY else "s29"}, {11 if PH else 12}
s_lshl_b32 s25, {"s3" if PLY else MEM}, {8 if PH else 9}
s_add_u32 s62, s62, s25
s_add_u32 s62, s62, {PART}
{FADDR}
v_and_b32 v{X+3}, 31, v0
v_lshrrev_b32 v{X+4}, 5, v0
v_lshlrev_b32 v{X+2}, 4, v{X+3}
{PHA}
v_mul_u32_u24 v{X+14}, {4*RING}, v{X+4}
v_add_u32 v{X+2}, v{X+14}, v{X+2}
s_mul_i32 s25, s3, {CST}
v_add_u32 v{X+2}, s25, v{X+2}
v_and_b32 v{X+3}, 7, v0
v_lshlrev_b32 v{X+4}, 2, v{X+4}
v_xor_b32 v{X+4}, v{X+4}, v{X+3}
s_lshl_b32 s25, s3, {5 if BW else 6}
s_add_u32 s25, s25, {WTL if BW else MLT}
v_lshl_add_u32 v{X+4}, v{X+4}, {2 if BW else 3}, s25
{PLA}
v_lshrrev_b32 v{X+9}, 2, v{T0}
v_lshl_add_u32 v{X+9}, v{T1}, 3, v{X+9}
v_lshlrev_b32 v{X+9}, 7, v{X+9}
v_and_b32 v{X+13}, 3, v0
v_lshl_add_u32 v{X+9}, v{X+13}, 3, v{X+9}
s_and_b32 s25, s3, 3
s_lshl_b32 s25, s25, 5
s_add_u32 s25, s25, {WO_LDS}
v_add_u32 v{X+9}, s25, v{X+9}
s_mul_i32 s25, s3, {OST}
s_add_u32 s25, s25, {O_LDS}
v_add_u32 v{X+10}, s25, v{X+10}
v_mul_u32_u24 v{X+12}, {OST}, v{T0}
v_lshl_add_u32 v{X+12}, v{T1}, 4, v{X+12}
v_add_u32 v{X+12}, {O_LDS}, v{X+12}
{COL1}
v_lshl_add_u32 v{X+21}, v{X+13}, 3, v{X+21}
s_lshl_b32 s25, s3, 8
s_add_u32 s25, s25, {WD_LDS}
v_lshl_add_u32 v{X+24}, v{T0}, 4, s25
{COL2}
s_lshl_b32 s29, s17, 17
s_add_u32 s29, s29, {CPA}
s_lshl_b32 s25, s18, 7
s_add_u32 s65, s29, s25
s_lshl_b32 s25, s3, 14
s_add_u32 s67, s65, s25
s_add_u32 s67, s67, {64 if COL else 4096}
s_add_u32 s63, s67, {CPB-CPA}
s_lshl_b32 s25, s3, 15
s_add_u32 s65, s65, s25
s_add_u32 s64, s65, {CPB-CPA}
v_lshlrev_b32 v{X+23}, 10, v{X+13}
v_lshl_add_u32 v{X+23}, v{T1}, 1, v{X+23}
v_lshrrev_b32 v{X+14}, 2, v0
v_lshlrev_b32 v{X+14}, 7, v{X+14}
v_lshl_add_u32 v{X+13}, v{X+13}, 4, v{X+14}
s_lshr_b32 s66, s18, 1
s_lshl_b32 s99, s66, 3
s_lshl_b32 s66, s66, 13
s_add_u32 s66, s66, s29
s_and_b32 s25, s18, 1
s_lshl_b32 s29, s25, {12 if COL else 6}
s_add_u32 s66, s66, s29
s_add_u32 s98, s66, {64 if COL else 4096 if OPT["bpa"] else 4096 + CPB - CPA}
s_lshl_b32 s25, s25, 12
s_add_u32 s99, s99, s25
s_lshl_b32 s25, s17, 7
s_add_u32 s99, s99, s25
s_waitcnt lgkmcnt(0)
{PHB}
""")
EF = OPT["ef"]; KL = OPT["kl"]
if KL:
    a(f"""
s_mov_b64 exec, 1
ds_add_rtn_u32 v{TE}, v{FL}, v{ONE} offset:16
s_mov_b64 exec, -1
s_waitcnt lgkmcnt(0)
v_readfirstlane_b32 s23, v{TE}
s_cmp_ge_u32 s23, {8 - KL}
s_cselect_b32 s25, 20, 0
v_add_u32 v{TKA}, s25, v{FL}
""")
a(f"s_mov_b32 s76, {SPIN*64}\ns_waitcnt vmcnt({4*NSU-4})\ns_mov_b32 s97, 0")
if EF: a("s_mov_b32 s101, 2")
ticket_rd()
kstep("s72", "s73", mid=ticket_use)
entry_rd()
if KL:
    a(f"""
s_cmp_lt_u32 s23, {8 - KL}
s_cbranch_scc1 L_loop2
s_waitcnt lgkmcnt(0)
v_mov_b32 v{TE}, 512
""")
PS = OPT["ps"]
if PS:
    a(f"""
L_loop:
s_cmp_eq_u32 s96, 2
s_cbranch_scc1 L_flush
s_branch L_loop2
L_pre:
s_bitcmp1_b32 s27, 0
s_cbranch_scc0 L_loop2
""")
    dmask("s27")
    a(f"ds_read_b64 v[{PF}:{PF+1}], v{T2}\ns_waitcnt lgkmcnt(0)")
    soft("L_loop2")
    a("s_or_b32 s27, s27, 2")
else: a(f"""
L_loop:
s_cmp_eq_u32 s96, {"s101" if EF else 2}
s_cbranch_scc1 L_flush
""")
a(f"""
L_loop2:
s_waitcnt vmcnt(4) lgkmcnt(0)
{"s_memrealtime s[48:49]" if LOG else ""}
L_eretry:
v_readfirstlane_b32 s23, v{TE}
s_mov_b32 m0, s72
s_cmp_eq_u32 s23, -1
s_cbranch_scc1 L_espin
s_bitcmp1_b32 s23, 9
s_cbranch_scc1 L_special
s_lshl_b32 s26, s23, 1
s_add_u32 s26, s26, s75
s_add_u32 s26, s26, s77
s_and_b32 s26, s26, 511
{trn("s26")}
s_lshl_b32 s26, s26, 12
s_add_u32 s26, s26, s21
s_and_b32 s25, s23, 256
s_lshl_b32 s29, s25, {13 if XB else 16}
s_add_u32 s26, s26, s29
s_bitcmp1_b32 s23, 15
s_cbranch_scc1 L_isv
""")
for i in range(4): a(f"buffer_load_dwordx4 v{KA+i}, s[4:7], s26 offen offset:{i*1024} nt lds")
a("s_branch L_isd\nL_isv:")
for i in range(4): a(f"buffer_load_dwordx4 v{VA+(i&1)}, s[8:11], s26 offen offset:{i*1024} nt lds")
a(f"""
L_isd:
{"s_memrealtime s[50:51]" if LOG else ""}
s_lshr_b32 s25, s25, 6
s_bfe_u32 s73, s23, 0x1000f
s_or_b32 s73, s73, s25
s_lshr_b32 s23, s23, 16
s_lshl_b32 s23, s23, 1
s_add_u32 s23, s23, s75
s_lshl_b32 s23, s23, 7
s_or_b32 s73, s73, s23
L_proc:
""")
ticket_rd()
a("s_bitcmp1_b32 s27, 0\ns_cbranch_scc1 L_pv")
if RV: a("s_bitcmp1_b32 s27, 1\ns_cbranch_scc1 L_null")
kstep("s60", "s27", mid=ticket_use)
a("s_branch L_pd\nL_pv:")
if PS:
    a("s_bitcmp1_b32 s27, 1\ns_cbranch_scc0 L_pv1")
    v_rd("s60")
    a("s_waitcnt lgkmcnt(8)")
    ticket_use()
    if PS == 2: entry_rd()
    for dt in range(8):
        a(f"s_waitcnt lgkmcnt({7-dt+(1 if PS == 2 else 0)})")
        pv(dt)
    if PS == 2: a("s_branch L_pd2")
    a_real = a; a = Asm()
    a.label("L_pv1")
    vstep("s60", "s27", mid=ticket_use)
    a("s_branch L_pd")
    ool.append("\n".join(a.L)); a = a_real
else: vstep("s60", "s27", mid=ticket_use)
a.label("L_pd")
if LOG:
    a(f"""
s_add_u32 s25, s96, 8
s_and_b32 s50, s50, 0xfffffffc
s_and_b32 s51, s73, 1
s_or_b32 s50, s50, s51
s_bitcmp0_b32 s97, 0
s_cbranch_scc1 L_lg1
s_lshl_b64 exec, 1, s25
v_mov_b32 v{T0}, s48
v_mov_b32 v{T1}, s50
s_mov_b64 exec, -1
s_branch L_lg2
L_lg1:
s_cmp_eq_u32 s96, 0
s_cselect_b32 s54, s48, s54
s_cselect_b32 s55, s50, s55
s_mov_b32 s56, s48
s_mov_b32 s57, s50
L_lg2:
""")
entry_rd()
if PS == 2: a.label("L_pd2")
a(f"""
s_mov_b32 s25, s60
s_mov_b32 s60, s61
s_mov_b32 s61, s72
s_mov_b32 s72, s25
s_mov_b32 s27, s28
s_mov_b32 s28, s73
s_add_u32 s96, s96, 1
{"s_cmp_eq_u32 s97, 1" + chr(10) + "s_cbranch_scc1 L_pre" if PS else ""}
s_cmp_lt_u32 s97, 2
s_cbranch_scc1 L_loop
{"s_bitcmp1_b32 s97, 0" if RV else "s_cmp_eq_u32 s97, 3"}
s_cbranch_scc1 L_final
L_flush0:
s_waitcnt vmcnt(0)
L_flush:
s_waitcnt vmcnt(8)
{"s_mov_b32 s101, -1" if EF else ""}
v_lshlrev_b32 v{PF}, 4, v0
v_add_u32 v{TA+1}, s72, v{PF}
s_lshl_b32 s73, s3, 7
""")
for u in range(NST):
    for i in range(4):
        r = ST0 + 16*u + 4*i
        a(f"ds_write_b128 v{TA+1}, v[{r}:{r+3}] offset:{i*1024}")
    a(f"s_xor_b32 s23, s73, {1024*(3+u) + 128*wxk(3+u) + (4 if 3+u >= 8 else 0)}")
    kstep("s72", "s23")
a(f"v_mov_b32 v{ZR}, 0")
for r in range(ST0, O+32): a(f"v_mov_b32 v{r}, 0")
if LOG:
    for n_, pl in enumerate([62, 64, 66, 94, 98, 100]): a(f"v_writelane_b32 v{KF}, s{pl}, {n_}")
    a(f"v_writelane_b32 v{KF}, s80, 6\nv_writelane_b32 v{KF}, s82, 7\nv_writelane_b32 v{KF}, s54, 8\nv_writelane_b32 v{KF}, s56, 9")
    a(f"v_mov_b32 v{KF+1}, 0\nv_writelane_b32 v{KF+1}, s55, 8\nv_writelane_b32 v{KF+1}, s57, 9\nv_cmp_gt_u32 vcc, 10, v0\ns_nop 1\nv_cndmask_b32 v{KF}, 0, v{KF}, vcc")
tail_addr()
if LOG: a(f"v_mov_b32 v{T0}, v{KF}\nv_mov_b32 v{T1}, v{KF+1}")
a(f"""
s_add_u32 s97, s97, 1
s_cmp_eq_u32 s97, 1
s_cbranch_scc1 L_loop2
L_final:
{"s_bitcmp1_b32 s97, 2" + chr(10) + "s_cbranch_scc1 L_pk2" if RV else ""}
s_bitcmp1_b32 s27, 0
s_cbranch_scc1 L_finv
{"s_bitcmp1_b32 s27, 1" + chr(10) + "s_cbranch_scc1 L_fin2" if RV else ""}
s_waitcnt vmcnt(0)
""")
kstep("s60", "s27")
a(f"""
s_branch L_fin2
L_espin:
""" + ("""
s_cmp_lg_u32 s97, 0
s_cbranch_scc1 L_espin2
s_cmp_eq_u32 s96, 0
s_cbranch_scc1 L_flush0
s_branch L_flush
L_espin2:
""" if EF else "") + f"""
s_sub_u32 s76, s76, 1
s_cmp_le_i32 s76, 0
s_cbranch_scc1 L_term
ds_read_b32 v{TE}, v{TA}
s_waitcnt lgkmcnt(0)
s_branch L_eretry
L_special:
{"s_bitcmp1_b32 s23, 1" + chr(10) + "s_cbranch_scc1 L_park" if RV else ""}
s_bitcmp1_b32 s23, 0
s_cbranch_scc0 L_term
v_mov_b32 v{TKA}, {TK+16}
s_mov_b32 s78, {T2B}
""")
ticket_rd()
a("s_waitcnt lgkmcnt(0)")
ticket_use()
a(f"""
s_branch L_espin
L_term:
s_or_b32 s97, s97, 2
v_mov_b32 v{TKA}, {TK+20}
s_branch L_proc
""")
if RV:
    a(f"""
L_park:
s_or_b32 s97, s97, 4
v_mov_b32 v{TKA}, {TK+20}
s_mov_b32 s73, 2
s_branch L_proc
L_pk2:
s_waitcnt vmcnt(0) lgkmcnt(0)
s_mov_b32 s73, 2
s_bitcmp0_b32 s27, 1
s_cbranch_scc1 L_proc
L_pk3:
ds_read_b32 v{TE}, v{FL} offset:16
s_sub_u32 s76, s76, 1
s_cmp_le_i32 s76, 0
s_cbranch_scc1 L_pk4
s_waitcnt lgkmcnt(0)
v_readfirstlane_b32 s25, v{TE}
s_cmp_lg_u32 s25, 0
s_cbranch_scc1 L_pk4
s_sleep {OPT['rvs']}
s_branch L_pk3
L_pk4:
{"s_waitcnt lgkmcnt(0)" + chr(10) + "s_cmp_le_u32 s25, 512" + chr(10) + "s_cbranch_scc1 L_fin2" if OPT["rvl"] else ""}
s_mov_b32 s97, 1
v_mov_b32 v{TKA}, {TK}
s_waitcnt lgkmcnt(0)
s_branch L_proc
L_null:
s_waitcnt lgkmcnt(0)
""")
    ticket_use()
    a("s_branch L_pd")
OOL_AT = len(a.L)
a.label("L_finv")
def fine3(k): pass
dmask("s27")
a(f"ds_read_b64 v[{PF}:{PF+1}], v{T2}\ns_waitcnt lgkmcnt(0)")
soft()
a.label("L_fin2")
if OPT["fine"] in (6, 7): a("s_mov_b32 s4, s80")
AA = STG + 32
CM = AA; AW = AA + 16
R = S; GV = X + 28
a(f"""
v_mov_b32 v{T+1}, v{L_}
v_permlane16_swap_b32 v{L_}, v{T+1}
v_add_f32 v{L_}, v{L_}, v{T+1}
v_mov_b32 v{T+1}, v{L_}
v_permlane32_swap_b32 v{L_}, v{T+1}
v_add_f32 v{L_}, v{L_}, v{T+1}
s_mov_b32 s76, {SPIN*16}
s_mov_b64 exec, 0xff
ds_write_b64 v{X+15}, v[{M_}:{L_}]
s_mov_b64 exec, -1
""")
def aw_rd(s_):
    a(f"ds_read_b64_tr_b16 v[{AW+4*s_}:{AW+4*s_+1}], v{X+9} offset:{s_*4096}")
    a(f"ds_read_b64_tr_b16 v[{AW+4*s_+2}:{AW+4*s_+3}], v{X+9} offset:{s_*4096+512}")
def misc_rd():
    if BP1: a(f"s_lshl_b32 s25, s3, 6\ns_add_u32 s25, s25, {FTL}\nv_add_u32 v{Q+6}, s25, v{FPA}\nds_read_b64 v[{Q+4}:{Q+5}], v{Q+6}")
    if OPT["xm"]: a(f"ds_read_b32 v{T}, v{FL} offset:12")
    a(f"ds_read_b128 v[{X+16}:{X+19}], v{X+24}")
    if not OPT["lb"]:
        for s_ in range(4): aw_rd(s_)
    a(f"ds_read_b64 v[{GV}:{GV+1}], v{X+21} offset:64")
if not OPT["mlate"]:
    a(f"L_bw:\nds_read_b32 v{T}, v{FL} offset:12")
    misc_rd()
    a(f"s_waitcnt lgkmcnt(0)\nv_cmp_ne_u32 vcc, 1, v{T}")
    spin_tail("L_bw", "L_bwdone", sleep=2)
C = O + 16
def fine2(k):
    if OPT["fine"] == 2: a(f"s_waitcnt vmcnt(0)\ns_memtime s[{[4,6,8,10,48,50,54,56][k]}:{[4,6,8,10,48,50,54,56][k]+1}]\ns_waitcnt lgkmcnt(0)")
def fine(k):
    if OPT["fine"] == 1: a(f"s_memtime s[{[4,6,8,10,48,50,54,56][k]}:{[4,6,8,10,48,50,54,56][k]+1}]" + ("\ns_waitcnt lgkmcnt(0)" if k in (0, 3,) else ""))
for dt in range(8): a(f"v_add_u32 v{KF+2*dt}, s60, v{VR+dt}")
if PH: a("s_mov_b32 s68, 0x00010001\ns_mov_b32 s69, 0x00010001")
EB = OPT["eb"]
def red8(r, op, src=None):
    for m in ("quad_perm:[1,0,3,2]", "quad_perm:[2,3,0,1]", "row_half_mirror"):
        q = r if src is None else src
        a(f"{op}_dpp v{r}, v{q}, v{q} {m} row_mask:0xf bank_mask:0xf")
        src = None
def flag_st():
    a(f"""
s_mov_b64 exec, {hex((1 << (FU//8)) - 1) if FU else [0xff, 1, 0x11, 0x55, 1][OPT['fone']]}
buffer_store_dwordx2 v[{FLG}:{FLG+1}], v{FSA}, s[12:15], s94 offen sc1
s_mov_b64 exec, -1
""")
def wts1():
    red8(T, "v_max_f32", CM)
    a(f"""
v_sub_f32 v{CM}, v{CM}, v{T}
v_mul_f32 v{CM}, s59, v{CM}
v_exp_f32 v{CM}, v{CM}
v_mul_f32 v{T+1}, v{CM}, v{CM+1}
""")
    red8(T+1, "v_add_f32")
    a(f"""
v_max_f32 v{T+1}, {f32(1e-30)}, v{T+1}
v_log_f32 v{T+2}, v{T+1}
v_rcp_f32 v{T+3}, v{T+1}
""")
def wts2():
    a(f"""
v_fma_f32 v{FLG}, v{T}, s59, v{T+2}
v_perm_b32 v{FLG}, v{FLG}, v{VNS}, s{SEL}
""")
if EB:
    a(f"s_waitcnt lgkmcnt(0)\ns_barrier\nds_read_b64 v[{CM}:{CM+1}], v{X+4}\ns_waitcnt lgkmcnt(0)")
    wts1(); wts2(); flag_st()
a(f"s_mov_b32 s76, {SPIN}\ns_waitcnt vmcnt({1 if EB else 0})")
fine3(3)
fine(0)
if LOG: a(f"s_memrealtime s[48:49]\ns_add_u32 s25, s96, 8\ns_waitcnt lgkmcnt(0)\ns_lshl_b64 exec, 1, s25\nv_mov_b32 v{T0}, s48\ns_mov_b64 exec, -1")
a("s_bitcmp1_b32 s27, 0\ns_cbranch_scc0 L_fin3")
for dt in range(8): a(f"ds_read_b64_tr_b16 v[{KF+2*dt}:{KF+2*dt+1}], v{KF+2*dt}")
for dt in range(8):
    a(f"s_waitcnt lgkmcnt({7-dt})")
    pv(dt)
a.label("L_fin3")
stamp(2)
fine(1)
a("s_mov_b64 exec, s[70:71]")
for dt in range(8): a(f"ds_write_b128 v{X}, v[{O+4*dt}:{O+4*dt+3}] offset:{dt*64}")
a("s_mov_b64 exec, -1")
if OPT["tcw"]:
    a(f"""
s_cmp_lg_u32 s3, {OPT['fin']}
s_cbranch_scc1 L_ntc
v_lshlrev_b32 v{T}, 7, v0
{"s_mov_b32 exec_hi, 0" if OPT["tcw"] == 1 else ""}
buffer_load_dword v{AA+4}, v{T}, s[12:15], s66 offen {['', 'sc1', 'nt'][OPT['tpol']]}
s_mov_b64 exec, -1
L_ntc:
""")
a("s_waitcnt lgkmcnt(0)")
fine(2)
a("s_barrier")
fine(3)
if BW: a(f"ds_read_b32 v{CM}, v{X+4}")
elif not EB: a(f"ds_read_b64 v[{CM}:{CM+1}], v{X+4}")
for k in range(4):
    a(f"ds_read_b128 v[{C+4*k}:{C+4*k+3}], v{X+2} offset:{k*RING}")
def fp_first():
    a(f"""
s_movk_i32 s22, 0xff
s_mov_b32 s23, 0
s_mov_b64 exec, 0xff
v_mov_b32 v{KF}, v{VNS}
v_mov_b32 v{KF+1}, 0
v_mov_b32 v{KF+2}, v{VNS}
v_mov_b32 v{KF+3}, 0
buffer_atomic_cmpswap_x2 v[{KF}:{KF+3}], v{FPA}, s[12:15], s95 offen sc0 sc1
s_mov_b64 exec, -1
""")
if OPT["fp0"] == 1: fp_first()
def ofma(k):
    a(f"s_waitcnt lgkmcnt({3-k})")
    for j in range(4): a(f"v_{'mul' if k == 0 else 'fmac'}_f32_dpp v{R+j}, v{CM}, v{C+4*k+j} row_newbcast:{k} row_mask:0xf bank_mask:0xf")
if not EB and not BW:
    a("s_waitcnt lgkmcnt(4)")
    wts1()
ofma(0)
if not EB and not BW: wts2()
fine2(0)
if not OPT["fo"] and not EB and not BW: flag_st()
fine2(1)
for k in range(1, 4): ofma(k)
fine(4)
a(f"""
v_permlane32_swap_b32 v{R}, v{R+2}
v_permlane32_swap_b32 v{R+1}, v{R+3}
v_add_f32 v{R}, v{R}, v{R+2}
v_add_f32 v{R+1}, v{R+1}, v{R+3}
{"" if BW else f"v_mul_f32 v{R}, v{R}, v{T+3}"}
{"" if BW else f"v_mul_f32 v{R+1}, v{R+1}, v{T+3}"}
""")
if not PH: a(f"""
v_perm_b32 v{R}, v{R}, v{X+31}, s{SEL}
v_perm_b32 v{R+1}, v{R+1}, v{X+31}, s{SEL+1}
""")
if PH:
    a(f"""
v_cvt_pk_f16_f32 v{R}, v{R}, v{R+1}
v_bfi_b32 v{R}, s68, v{X+31}, v{R}
""")
    if PH == 1: a(f"""
v_mov_b32_dpp v{R+1}, v{R} quad_perm:[1,1,1,1] row_mask:0xf bank_mask:0xf
v_mov_b32_dpp v{R+2}, v{R} quad_perm:[2,2,2,2] row_mask:0xf bank_mask:0xf
v_mov_b32_dpp v{R+3}, v{R} quad_perm:[3,3,3,3] row_mask:0xf bank_mask:0xf
s_mov_b32 exec_lo, 0x11111111
s_mov_b32 exec_hi, 0x11111111
buffer_store_dwordx4 v[{R}:{R+3}], v{X+5}, s[12:15], s62 offen sc1
s_mov_b64 exec, -1
""")
    else: a(f"buffer_store_dword v{R}, v{X+5}, s[12:15], s62 offen sc1")
elif OPT["px4"]:
    a(f"""
v_mov_b32_dpp v{R+2}, v{R} quad_perm:[1,1,3,3] row_mask:0xf bank_mask:0xf
v_mov_b32_dpp v{R+3}, v{R+1} quad_perm:[1,1,3,3] row_mask:0xf bank_mask:0xf
s_mov_b32 exec_lo, {[0x55555555, 0x55555555, 0x5555, 0][OPT['psm']]}
s_mov_b32 exec_hi, {[0x55555555, 0, 0, 0][OPT['psm']]}
buffer_store_dwordx4 v[{R}:{R+3}], v{X+1}, s[12:15], s62 offen sc1
s_mov_b64 exec, -1
""")
else:
    a(f"buffer_store_dwordx2 v[{R}:{R+1}], v{X+1}, s[12:15], s62 offen sc1")
if OPT["fo"]: flag_st()
if OPT["mlate"]:
    if OPT["stamps"]: stamp(3); a("s_waitcnt lgkmcnt(0)")
    misc_rd()
    a(f"s_waitcnt lgkmcnt({1 if OPT['lb'] else 9})")
if OPT["hbn"] != 1: a("s_mov_b64 exec, 0xffff")
if not OPT["mlate"]: stamp(3)
fine(5)
fine2(2)
def st2(lbl, ins, extra=""):
    a(f"""
s_cmp_eq_u32 s63, 1
s_cbranch_scc1 {lbl}n
{ins} sc1
s_branch {lbl}d
{lbl}n:
{ins}{" nt" if OPT["snt"] & (1 if lbl == "L_bs" else 2) else ""}
{extra}
{lbl}d:
""")
if OPT["xm"]:
    a(f"v_readfirstlane_b32 s63, v{T}")
    st2("L_bs", f"buffer_store_dwordx4 v[{X+16}:{X+19}], v{X+25}, s[12:15], s67 offen", f"""
v_not_b32 v{T}, v{VNS}
v_not_b32 v{T+1}, v{VNS}
v_not_b32 v{T+2}, v{VNS}
v_not_b32 v{T+3}, v{VNS}
s_sub_u32 s25, s67, 4096
buffer_store_dwordx4 v[{T}:{T+3}], v{X+25}, s[12:15], s25 offen
""" if OPT["prw"] else "")
elif OPT["hbn"] != 1:
    if OPT["bpa"]: a(f"buffer_store_dwordx4 v[{X+16}:{X+19}], v{X+25}, s[12:15], s67 offen")
    if not OPT["hbn"]: a(f"buffer_store_dwordx4 v[{X+16}:{X+19}], v{X+25}, s[12:15], s63 offen sc1")
    fine2(3)
    if OPT["prw"]:
        a(f"""
v_not_b32 v{T}, v{VNS}
v_not_b32 v{T+1}, v{VNS}
v_not_b32 v{T+2}, v{VNS}
v_not_b32 v{T+3}, v{VNS}
s_sub_u32 s25, s67, 4096
buffer_store_dwordx4 v[{T}:{T+3}], v{X+25}, s[12:15], s25 offen
""")
fine2(4)
BB = AA + 8
def bpoll():
    for k in range(2):
        a(f"buffer_load_dwordx4 v[{BB+4*k}:{BB+4*k+3}], v{X+13}, s[12:15], s98 offen offset:{2048*k} sc1")
def bp_early():
    a(f"s_cmp_lg_u32 s3, {OPT['fin']}\ns_cbranch_scc1 L_nobp0\ns_mov_b64 exec, -1")
    bpoll()
    a.label("L_nobp0")
if OPT["bpe"] >= 2: bp_early()
PA = O
WT = Q; FS = Q + 4; P = Q + 8; TT = KF
FPOLL = {0: f"""
v_mov_b32 v{FS}, 0
v_mov_b32 v{FS+1}, 0
buffer_atomic_or_x2 v[{FS}:{FS+1}], v{FPA}, s[12:15], s95 offen sc0 sc1
""", 1: f"buffer_load_dwordx2 v[{FS}:{FS+1}], v{FPA}, s[12:15], s95 offen sc1",
2: f"""
v_mov_b32 v{FS}, v{VNS}
v_mov_b32 v{FS+1}, 0
v_mov_b32 v{FS+2}, v{VNS}
v_mov_b32 v{FS+3}, 0
buffer_atomic_cmpswap_x2 v[{FS}:{FS+3}], v{FPA}, s[12:15], s95 offen sc0 sc1
""", 3: f"buffer_load_dwordx2 v[{FS}:{FS+1}], v{FPA}, s[12:15], s95 offen sc0 sc1 nt",
4: f"""
v_mov_b32 v{FS}, 0
v_mov_b32 v{FS+1}, 0
buffer_atomic_umax_x2 v[{FS}:{FS+1}], v{FPA}, s[12:15], s95 offen sc0 sc1
""", 5: f"""
v_mov_b32 v{FS}, 0
v_mov_b32 v{FS+1}, 0
buffer_atomic_or_x2 v[{FS}:{FS+1}], v{FPA}, s[12:15], s95 offen sc0 sc1 nt
"""}[OPT["fpol"]]
for j_ in range(OPT["dup"]):
    r_ = KF + 4*j_
    FPOLL += f"""
{f"s_mov_b64 exec, {OPT['dupl']}" if OPT['dupl'] else ""}
v_mov_b32 v{r_}, v{VNS}
v_mov_b32 v{r_+1}, 0
v_mov_b32 v{r_+2}, v{VNS}
v_mov_b32 v{r_+3}, 0
buffer_atomic_cmpswap_x2 v[{r_}:{r_+3}], v{X+1 if OPT['dupl'] else FPA}, s[12:15], s95 offen sc0 sc1
s_mov_b64 exec, s[22:23]
"""
def pload(k):
    if OPT["nopart"] == 2: a(f"s_and_b32 exec_lo, exec_lo, 0xffff\ns_and_b32 exec_hi, exec_hi, 0xffff")
    if OPT["nopart"] == 3: a(f"s_and_b32 exec_lo, exec_lo, 0xff\ns_and_b32 exec_hi, exec_hi, 0xff")
    if OPT["nopart"] != 1: a(f"buffer_load_dwordx4 v[{PA+4*k}:{PA+4*k+3}], v{X+7}, s[12:15], s74 offen offset:{1024*k} sc1")
def ploads(m):
    for k in range(4):
        a(f"""
s_bfe_i32 exec_lo, {m}, {hex(0x10000 + 2*k)}
s_bfe_i32 exec_hi, {m}, {hex(0x10000 + 2*k + 1)}
""")
        pload(k)
FCHK = f"""
v_xor_b32 v{T}, v{FS}, v{VNS}
v_and_b32 v{T}, 0xff, v{T}
v_xor_b32 v{T+1}, v{FS+1}, v{VNS}
v_or_b32 v{T}, v{T}, v{T+1}
v_cmp_eq_u32 vcc, 0, v{T}
"""
FP_ = OPT["fp"]
def fpoll(j):
    r = (PA + 16 if PH else KF) + 4*j
    a(f"""
s_mov_b64 exec, s[22:23]
v_mov_b32 v{r}, v{VNS}
v_mov_b32 v{r+1}, 0
v_mov_b32 v{r+2}, v{VNS}
v_mov_b32 v{r+3}, 0
buffer_atomic_cmpswap_x2 v[{r}:{r+3}], v{FPA}, s[12:15], s95 offen sc0 sc1
""")
def fstep(j, cnt):
    r = (PA + 16 if PH else KF) + 4*j
    a(f"""
s_waitcnt vmcnt({cnt})
v_xor_b32 v{T}, v{r}, v{VNS}
v_and_b32 v{T}, 0xff, v{T}
v_xor_b32 v{T+1}, v{r+1}, v{VNS}
v_or_b32 v{T}, v{T}, v{T+1}
v_cmp_eq_u32 vcc, 0, v{T}
v_cndmask_b32 v{FS}, v{FS}, v{r}, vcc
""")
    if PH: a(f"""
s_and_b64 s[26:27], vcc, s[68:69]
s_mul_i32 exec_lo, s26, 0xffff
s_mul_i32 exec_hi, s27, 0xffff
s_lshr_b64 s[26:27], vcc, 1
buffer_load_dwordx4 v[{PA}:{PA+3}], v{X+7}, s[12:15], s74 offen sc1
s_and_b64 s[26:27], s[26:27], s[68:69]
s_mul_i32 exec_lo, s26, 0xffff
s_mul_i32 exec_hi, s27, 0xffff
s_andn2_b64 s[22:23], s[22:23], vcc
buffer_load_dwordx4 v[{PA+4}:{PA+7}], v{X+7}, s[12:15], s74 offen offset:1024 sc1
s_cbranch_scc0 L_f1done
""")
    else:
        a("s_mov_b32 s25, vcc_lo")
        ploads("s25")
        a(f"""
s_andn2_b32 s22, s22, s25
s_cbranch_scc0 L_f1done
""")
    fpoll(j)
    a(f"s_sleep {OPT['fps']}")
if FP_:
    NS_ = 3 if PH else 5
    if not OPT["fp0"]: a("s_mov_b32 s22, 0x30003\ns_mov_b32 s23, s22" if PH else "s_movk_i32 s22, 0xff\ns_mov_b32 s23, 0")
    for j in range(1 if OPT["fp0"] else 0, FP_):
        fpoll(j)
        if j < FP_ - 1: a(f"s_sleep {OPT['fps']}")
    for j in range(FP_): fstep(j, (FP_ - 1 - j) + NS_*j + (3 if OPT["fp0"] and j == 0 else 0))
    a.label("L_f1")
    a("s_sub_u32 s76, s76, 1\ns_cbranch_scc1 L_f1done")
    for j in range(FP_): fstep(j, NS_*(FP_ - 1))
    a("s_branch L_f1\nL_f1done:\ns_mov_b64 exec, -1")
a_real = a
if FP_: a = Asm()
a(f"""
{"s_mov_b32 s22, 0x00030003" if PH else "s_movk_i32 s22, 0xff"}
s_mov_b32 s23, {"s22" if PH else 0}
{"s_mov_b32 s26, 0" if OPT["inc"] == 2 else ""}
{f"s_mov_b64 exec, -1" + chr(10) + f"v_mov_b32 v{T0}, 0" + chr(10) + f"v_mov_b32 v{T1}, 0" + chr(10) + "s_mov_b32 s30, 0" if LG9 else ""}
{"s_mov_b64 exec, s[22:23]" + chr(10) + "s_branch L_f1c" if BP1 else ""}
L_f1:
{"s_memrealtime s[50:51]" if LG9 else ""}
s_mov_b64 exec, s[22:23]
{FPOLL}
s_sub_u32 s76, s76, 1
s_waitcnt vmcnt(0)
{"s_memrealtime s[48:49]" + chr(10) + "s_waitcnt lgkmcnt(0)" + chr(10) + "s_lshl_b32 s50, s50, 8" + chr(10) + "s_bcnt1_i32_b64 s51, s[22:23]" + chr(10) + "s_or_b32 s50, s50, s51" + chr(10) + "s_mov_b32 m0, s30" + chr(10) + f"v_writelane_b32 v{T0}, s48, m0" + chr(10) + f"v_writelane_b32 v{T1}, s50, m0" + chr(10) + "s_add_u32 s30, s30, 1" + chr(10) + "s_and_b32 s30, s30, 63" if LG9 else ""}
{"L_f1c:" if BP1 else ""}
{FCHK}
""")
if OPT["inc"] == 2:
    a(f"""
s_mov_b32 s25, s26
s_mov_b32 s26, vcc_lo
s_andn2_b32 s22, s22, s26
s_cselect_b32 s29, 0, s26
s_or_b32 s25, s25, s29
s_cbranch_scc0 L_f1n
""")
    if OPT["ebd"]: a(f"s_cmp_lg_u32 s22, 0\ns_cbranch_scc1 L_f1x\ns_sleep {OPT['ebd']}\nL_f1x:")
    ploads("s25")
    a("s_cmp_eq_u32 s22, 0\ns_cbranch_scc1 L_f1done")
elif PH:
    a(f"""
s_cbranch_vccz L_f1n
s_and_b64 s[26:27], vcc, s[68:69]
s_mul_i32 exec_lo, s26, 0xffff
s_mul_i32 exec_hi, s27, 0xffff
s_lshr_b64 s[26:27], vcc, 1
buffer_load_dwordx4 v[{PA}:{PA+3}], v{X+7}, s[12:15], s74 offen sc1
s_and_b64 s[26:27], s[26:27], s[68:69]
s_mul_i32 exec_lo, s26, 0xffff
s_mul_i32 exec_hi, s27, 0xffff
s_andn2_b64 s[22:23], s[22:23], vcc
buffer_load_dwordx4 v[{PA+4}:{PA+7}], v{X+7}, s[12:15], {"s33 offen" if PLY else "s74 offen offset:1024"} sc1
s_cbranch_scc0 L_f1done
""")
else:
    a("s_cbranch_vccz L_f1n\ns_mov_b32 s25, vcc_lo")
    if OPT["inc"]: ploads("s25")
    a("s_andn2_b32 s22, s22, s25\ns_cbranch_scc0 L_f1done")
a(f"""
L_f1n:
s_cmp_eq_u32 s76, 0
s_cbranch_scc1 L_f1done
{"s_sleep %d" % OPT['f1slp'] if OPT['f1slp'] else ""}
""")
def patom(k):
    for j in range(4): a(f"v_mov_b32 v{PA+4*k+j}, 0")
    for h in range(2): a(f"buffer_atomic_{['or', 'add', 'umax'][OPT['spo']]}_x2 v[{PA+4*k+2*h}:{PA+4*k+2*h+1}], v{X+7}, s[12:15], s74 offen offset:{1024*k+8*h} sc0 sc1")
if OPT["spec"] and PH:
    a(f"""
s_bcnt1_i32_b64 s25, s[22:23]
s_cmp_gt_u32 s25, {OPT['spec']}
s_cbranch_scc1 L_f1
L_f2:
s_mov_b64 exec, s[22:23]
{FPOLL}
s_and_b64 s[26:27], s[22:23], s[68:69]
s_mul_i32 exec_lo, s26, 0xffff
s_mul_i32 exec_hi, s27, 0xffff
s_cbranch_scc0 L_f2a
""")
    patom(0)
    a(f"""
L_f2a:
s_lshr_b64 s[26:27], s[22:23], 1
s_and_b64 s[26:27], s[26:27], s[68:69]
s_mul_i32 exec_lo, s26, 0xffff
s_mul_i32 exec_hi, s27, 0xffff
s_cbranch_scc0 L_f2b
""")
    patom(1)
    a(f"""
L_f2b:
s_mov_b64 exec, s[22:23]
s_sub_u32 s76, s76, 1
s_waitcnt vmcnt(0)
{FCHK}
s_andn2_b64 s[22:23], s[22:23], vcc
s_cbranch_scc0 L_f1done
s_cmp_eq_u32 s76, 0
s_cbranch_scc1 L_f1done
{"s_sleep %d" % OPT['f2slp'] if OPT['f2slp'] else ""}
s_branch L_f2
""")
elif OPT["spec"]:
    a(f"""
s_bcnt1_i32_b32 s25, s22
s_cmp_gt_u32 s25, {OPT['spec']}
s_cbranch_scc1 L_f1
L_f2:
s_mov_b64 exec, s[22:23]
{FPOLL}
""")
    ploads("s22")
    a(f"""
s_mov_b64 exec, s[22:23]
s_sub_u32 s76, s76, 1
s_waitcnt vmcnt(0)
{FCHK}
s_andn2_b32 s22, s22, vcc_lo
s_cbranch_scc0 L_f1done
s_cmp_eq_u32 s76, 0
s_cbranch_scc1 L_f1done
{"s_sleep %d" % OPT['f2slp'] if OPT['f2slp'] else ""}
s_branch L_f2
""")
if OPT["f1th"]:
    a(f"""
s_bcnt1_i32_b64 s25, s[22:23]
s_cmp_le_u32 s25, {OPT['f1th']}
s_cbranch_scc1 L_f1
s_sleep {OPT['f1sl2']}
""")
a(f"""
s_branch L_f1
L_f1done:
s_mov_b64 exec, -1
""")
a = a_real
if not OPT["inc"]:
    for k in range(4): pload(k)
if OPT["bpe"] == 1: bp_early()
if OPT["stamps"]: a("s_memrealtime s[100:101]")
def red8h(r, op, src):
    a(f"{op}_dpp v{r}, v{src}, v{src} quad_perm:[1,0,3,2] row_mask:0xf bank_mask:0xf")
    for sw in ("v_permlane16_swap_b32", "v_permlane32_swap_b32"):
        a(f"v_mov_b32 v{r+1}, v{r}\n{sw} v{r}, v{r+1}\n{op} v{r}, v{r}, v{r+1}")
(red8h if PH else red8)(T, "v_max_f32", FS)
a(f"""
v_sub_f32 v{FS}, v{FS}, v{T}
v_exp_f32 v{FS}, v{FS}
""")
(red8h if PH else red8)(T, "v_add_f32", FS)
a(f"""
v_rcp_f32 v{T}, v{T}
v_mul_f32 v{FS}, v{FS}, v{T}
""")
if PH:
    for d in range(1, 4): a(f"v_lshrrev_b32 v{TT+8+d}, {d}, v{X+8}")
    for k in range(2): a(f"v_mov_b32_dpp v{WT+k}, v{FS} row_newbcast:{k} row_mask:0xf bank_mask:0xf")
else:
    for x in range(8): a(f"v_readlane_b32 s{32+x}, v{FS}, {x}")
    for k in range(4): a(f"v_mov_b32 v{WT+k}, s{32+2*k+1}")
    a("s_mov_b32 exec_hi, 0")
    for k in range(4): a(f"v_mov_b32 v{WT+k}, s{32+2*k}")
def tag_chk(grans, t):
    for n_, r in enumerate(grans):
        a(f"v_perm_b32 v{t+2*n_}, v{r+1}, v{r}, s{SEL+4}\nv_perm_b32 v{t+2*n_+1}, v{r+3}, v{r+2}, s{SEL+5}")
    for n_, r in enumerate(grans):
        a(f"v_xor_b32 v{t+2*n_}, v{t+2*n_}, v{VNS}")
    for n_, r in enumerate(grans):
        a(f"v_xor_b32 v{t+2*n_}, v{t+2*n_}, v{t+2*n_+1}")
    if len(grans) == 4:
        a(f"v_or3_b32 v{t}, v{t}, v{t+2}, v{t+4}\nv_or_b32 v{t}, v{t}, v{t+6}")
    else:
        a(f"v_or_b32 v{t}, v{t}, v{t+2}")
    a(f"v_cmp_ne_u32 vcc, 0, v{t}")
a.label("L_pchk")
a("s_mov_b64 exec, -1\ns_waitcnt vmcnt(0)")
if PH:
    for k in range(2):
        for d in range(4):
            for h in range(2):
                a(f"v_fma_mix_f32 v{P+2*d+h}, v{WT+k}, v{PA+4*k+d}, {f'v{P+2*d+h}' if k else 0} op_sel:[0,{h},0] op_sel_hi:[0,1,0]")
    for j in range(4): a(f"v_permlane32_swap_b32 v{P+j}, v{P+4+j}")
    for j in range(4): a(f"v_add_f32 v{P+j}, v{P+j}, v{P+4+j}")
    a(f"""
v_permlane16_swap_b32 v{P}, v{P+2}
v_permlane16_swap_b32 v{P+1}, v{P+3}
v_add_f32 v{P}, v{P}, v{P+2}
v_add_f32 v{P+1}, v{P+1}, v{P+3}
v_cvt_pk_bf16_f32 v{P}, v{P}, v{P+1}
ds_write_b32 v{X+10}, v{P}
""")
    for j in range(8): a(f"v_xor_b32 v{TT+j}, v{PA+j}, v{TT+8+(j & 3) if j & 3 else X+8}")
    a(f"""
v_or3_b32 v{TT}, v{TT}, v{TT+1}, v{TT+2}
v_or3_b32 v{TT+3}, v{TT+3}, v{TT+4}, v{TT+5}
v_or3_b32 v{TT}, v{TT}, v{TT+6}, v{TT+7}
v_or_b32 v{TT}, v{TT}, v{TT+3}
v_and_b32 v{TT}, s68, v{TT}
v_cmp_ne_u32 vcc, 0, v{TT}
""")
else:
    for k in range(4):
        for j in range(4): a(f"v_{'mul' if k == 0 else 'fmac'}_f32 v{P+j}, v{WT+k}, v{PA+4*k+j}")
    a(f"""
v_permlane32_swap_b32 v{P}, v{P+2}
v_permlane32_swap_b32 v{P+1}, v{P+3}
v_add_f32 v{P}, v{P}, v{P+2}
v_add_f32 v{P+1}, v{P+1}, v{P+3}
v_cvt_pk_bf16_f32 v{P}, v{P}, v{P+1}
ds_write_b32 v{X+10}, v{P}
""")
    tag_chk([PA+4*k for k in range(4)], TT)
if not OPT["nopart"]: a("s_cbranch_vccnz L_prep")
a.label("L_pdone")
stamp(4)
BB = AA + 8
def bpoll():
    for k in range(2):
        a(f"buffer_load_dwordx4 v[{BB+4*k}:{BB+4*k+3}], v{X+13}, s[12:15], s98 offen offset:{2048*k} sc1")
a(f"s_cmp_lg_u32 s3, {OPT['fin']}\ns_cbranch_scc1 L_nobp")
if not OPT["bdel"] and OPT["bpe"] in (0, 3): bpoll()
a(f"""
L_nobp:
s_cmp_gt_u32 s3, 3
s_waitcnt lgkmcnt(0)
s_barrier
s_cbranch_scc1 L_nomm
""")
for s_ in range(4):
    a(f"ds_read_b128 v[{PA+4*s_}:{PA+4*s_+3}], v{X+12} offset:{64*s_}")
    if OPT["lb"]: aw_rd(s_)
D_ = PA + 16
for s_ in range(4):
    a(f"""
s_waitcnt lgkmcnt({(3-s_)*(3 if OPT["lb"] else 1)})
v_mfma_f32_16x16x32_bf16 v[{D_}:{D_+3}], v[{AW+4*s_}:{AW+4*s_+3}], v[{PA+4*s_}:{PA+4*s_+3}], {"0" if s_ == 0 else f"v[{D_}:{D_+3}]"}
""")
a("s_mov_b64 exec, s[70:71]")
tag_ins(D_, VNS, SEL)
if OPT["xm"]:
    st2("L_as", f"buffer_store_dwordx4 v[{D_}:{D_+3}], v{X+11}, s[12:15], s65 offen")
    a("s_mov_b64 exec, -1")
else:
    a(f"""
{"" if OPT["noa"] else f"buffer_store_dwordx4 v[{D_}:{D_+3}], v{X+11}, s[12:15], s65 offen"}
{"" if OPT["nob"] else f"buffer_store_dwordx4 v[{D_}:{D_+3}], v{X+11}, s[12:15], s64 offen sc1"}
s_mov_b64 exec, -1
""")
a.label("L_nomm")
stamp(5)
if OPT["hbn"]:
    a(f"""
s_cmp_eq_u32 s3, {OPT['fin']}
s_cbranch_scc1 L_nofar
s_mov_b64 exec, 0xffff
buffer_store_dwordx4 v[{X+16}:{X+19}], v{X+25}, s[12:15], s63 offen sc1
s_cmp_lg_u32 s3, {OPT['fin']+1}
s_cbranch_scc1 L_nofar
ds_read_b128 v[{T}:{T+3}], v{X+24} offset:{(-256) & 0xffff}
""" if False else f"""
s_cmp_eq_u32 s3, {OPT['fin']}
s_cbranch_scc1 L_nofar
s_sleep 4
s_mov_b64 exec, 0xffff
buffer_store_dwordx4 v[{X+16}:{X+19}], v{X+25}, s[12:15], s63 offen sc1
s_cmp_lg_u32 s3, {OPT['fin']-1}
s_cbranch_scc1 L_nofar
ds_read_b128 v[{KF}:{KF+3}], v{X+24} offset:256
s_add_u32 s63, s63, 16384
s_waitcnt lgkmcnt(0)
buffer_store_dwordx4 v[{KF}:{KF+3}], v{X+25}, s[12:15], s63 offen sc1
L_nofar:
s_mov_b64 exec, -1
""")
def wstamps():
    if LOG or LG9:
        a(f"""
s_lshl_b32 s29, s16, 3
s_add_u32 s29, s29, s3
s_lshl_b32 s29, s29, 9
s_add_u32 s29, s29, 0x500000
v_lshlrev_b32 v{T}, 2, v0
buffer_store_dword v{T0}, v{T}, s[12:15], s29 offen
buffer_store_dword v{T1}, v{T}, s[12:15], s29 offen offset:256
""")
    a(f"""
s_lshl_b32 s29, s16, 3
s_add_u32 s29, s29, s3
s_lshl_b32 s29, s29, 4
s_add_u32 s29, s29, {STAMP+0x10000}
s_add_u32 s96, s96, {2+NST}
s_waitcnt lgkmcnt(0)
v_mov_b32 v{T}, s84
v_mov_b32 v{T+1}, s85
v_mov_b32 v{T+2}, s82
v_mov_b32 v{T+3}, s96
s_mov_b64 exec, 1
buffer_store_dwordx4 v[{T}:{T+3}], v{ZR}, s[12:15], s29 offen
s_add_u32 s29, s29, 0x8000
s_nop 4
v_mov_b32 v{T}, s86
v_mov_b32 v{T+1}, s88
v_mov_b32 v{T+2}, s90
v_mov_b32 v{T+3}, s77
buffer_store_dwordx4 v[{T}:{T+3}], v{ZR}, s[12:15], s29 offen
s_add_u32 s29, s29, 0x8000
s_nop 4
v_mov_b32 v{T}, s100
buffer_store_dword v{T}, v{ZR}, s[12:15], s29 offen
s_add_u32 s29, s29, 0x8000
s_nop 4
v_mov_b32 v{T}, s4
v_mov_b32 v{T+1}, s6
v_mov_b32 v{T+2}, s8
v_mov_b32 v{T+3}, s10
buffer_store_dwordx4 v[{T}:{T+3}], v{ZR}, s[12:15], s29 offen
s_add_u32 s29, s29, 0x8000
s_nop 4
v_mov_b32 v{T}, s48
v_mov_b32 v{T+1}, s50
v_mov_b32 v{T+2}, s54
v_mov_b32 v{T+3}, s56
buffer_store_dwordx4 v[{T}:{T+3}], v{ZR}, s[12:15], s29 offen
s_mov_b64 exec, -1
s_nop 4
""")
if OPT["stamps"]:
    a(f"s_mov_b32 s77, s76\ns_cmp_eq_u32 s3, {OPT['fin']}\ns_cbranch_scc1 L_fin")
    wstamps()
    a("s_endpgm\nL_fin:")
else:
    a(f"s_cmp_lg_u32 s3, {OPT['fin']}\ns_cbranch_scc1 L_end")
a(f"""
s_mov_b32 s76, {SPIN}
s_movk_i32 s23, {OPT['na']}
""")
srd(60, P_OUT, 8192)
A3 = KF + 8; FB = KF + 12
def red(d, s0):
    for r in range(4): a(f"v_add_f32 v{d+r}, v{s0+r}, v{s0+4+r}")
    a(f"""
v_permlane32_swap_b32 v{d}, v{d+2}
v_permlane32_swap_b32 v{d+1}, v{d+3}
v_add_f32 v{d}, v{d}, v{d+2}
v_add_f32 v{d+1}, v{d+1}, v{d+3}
v_permlane16_swap_b32 v{d}, v{d+1}
v_add_f32 v{d}, v{d}, v{d+1}
v_add_f32_dpp v{d}, v{d}, v{d} row_ror:8 row_mask:0xf bank_mask:0xf
v_add_f32_dpp v{d}, v{d}, v{d} row_ror:4 row_mask:0xf bank_mask:0xf
""")
def gate(d, g):
    a(f"""
v_cvt_pk_bf16_f32 v{d}, v{d}, v{d}
v_lshlrev_b32 v{d}, 16, v{d}
v_mul_f32 v{d}, v{g}, v{d}
v_cvt_pk_bf16_f32 v{d}, v{d}, v{d}
v_lshlrev_b32 v{d}, 16, v{d}
""")
def far(regs):
    if OPT["xm"]:
        a("s_sub_u32 s76, s76, 1"); return
    a(f"s_sub_u32 s23, s23, 1\ns_cselect_b32 s25, {CPB-CPA}, 0")
    for r in regs: a(f"s_add_u32 s{r}, s{r}, s25")
    a("s_sub_u32 s76, s76, 1")
if OPT["bdel"]:
    backoff(OPT["bdel"]); bpoll()
a.label("L_bchk")
a("s_mov_b64 exec, -1")
far([66, 98] if OPT["bpa"] else [66])
a("s_waitcnt vmcnt(0)")
tag_chk([BB, BB+4], TT)
a(f"""
s_cbranch_vccz L_bdone
s_cmp_eq_u32 s76, 0
s_cbranch_scc1 L_bdone
s_mov_b64 exec, vcc
s_sleep {OPT['bsl']}
""")
bpoll()
a("s_branch L_bchk")
a.label("L_bdone")
def fine4(k):
    if OPT["fine"] == 4: a(f"s_memrealtime s[{[4,6,8,10,48,50,54,56][k]}:{[4,6,8,10,48,50,54,56][k]+1}]")
fine4(0)
red(FB, BB); gate(FB, GV+1)
fine4(1)
if OPT["fine"] == 4: a("s_mov_b32 s8, 0")
if OPT["asl0"]: a(f"s_sleep {OPT['asl0']}")
a.label("L_apoll")
for k in range(2):
    a(f"buffer_load_dwordx4 v[{AA+4*k}:{AA+4*k+3}], v{X+13}, s[12:15], s66 offen offset:{2048*k} sc1")
a("s_mov_b64 exec, -1")
far([66])
a("s_waitcnt vmcnt(0)")
if OPT["fine"] == 4: a("s_cmp_lg_u32 s8, 0\ns_cbranch_scc1 L_fx\ns_memrealtime s[8:9]\ns_waitcnt lgkmcnt(0)\nL_fx:")
tag_chk([AA, AA+4], TT)
a(f"""
s_cbranch_vccz L_adone
s_mov_b64 exec, vcc
{"s_sleep %d" % OPT["aslp"] if OPT["aslp"] else ""}
s_cmp_lg_u32 s76, 0
s_cbranch_scc1 L_apoll
s_mov_b64 exec, -1
""")
a.label("L_adone")
fine4(3)
red(A3, AA); gate(A3, GV)
a(f"""
v_add_f32 v{A3}, v{A3}, v{FB}
v_cvt_pk_bf16_f32 v{A3}, v{A3}, v{A3}
""")
a(f"""
s_mov_b32 exec_lo, 0x000f000f
s_mov_b32 exec_hi, 0x000f000f
buffer_store_short v{A3}, v{X+23}, s[60:63], s99 offen {['', 'sc1', 'nt', 'sc0 sc1'][OPT['opol']]}
s_mov_b64 exec, -1
""")
if OPT["stamps"]:
    stamp(6)
    wstamps()
    a(f"s_lshl_b32 s29, s16, 6\ns_add_u32 s29, s29, {STAMP}\ns_waitcnt lgkmcnt(0)")
    for k in range(7):
        a(f"v_mov_b32 v{T}, s{80+2*k}\nv_mov_b32 v{T+1}, s{81+2*k}\nbuffer_store_dwordx2 v[{T}:{T+1}], v{ZR}, s[12:15], s29 offen offset:{8*k}\ns_nop 1")
    a(f"v_mov_b32 v{T}, s76\nbuffer_store_dword v{T}, v{ZR}, s[12:15], s29 offen offset:56")
a("s_endpgm")
for t_ in ool: a(t_)
a.label("L_prep")
a(f"""
s_sub_u32 s76, s76, {256 if OPT["stamps"] else 1}
s_cmp_le_i32 s76, 0
s_cbranch_scc1 L_pdone
{"" if PH else "s_mov_b64 exec, vcc"}
""")
for k in range(2 if PH else 4):
    if PH and OPT["spec"]: patom(k)
    else: a(f"buffer_load_dwordx4 v[{PA+4*k}:{PA+4*k+3}], v{X+7}, s[12:15], {'s33 offen' if PLY and k else f's74 offen offset:{1024*k}'} sc1")
a("s_branch L_pchk")
a.label("L_end")
a("s_endpgm")
a.L += ['.section .rodata,"a"', ".p2align 6", f".amdhsa_kernel {NAME}_kernel",
        "  .amdhsa_next_free_vgpr 168", "  .amdhsa_next_free_sgpr 102", "  .amdhsa_accum_offset 168",
        "  .amdhsa_group_segment_fixed_size 0", "  .amdhsa_kernarg_size 104", "  .amdhsa_user_sgpr_count 2",
        "  .amdhsa_user_sgpr_kernarg_segment_ptr 1", "  .amdhsa_system_sgpr_workgroup_id_x 1", ".end_amdhsa_kernel"]
if OPT["sf"]:
    L = a.L
    i0 = L.index("L_stream:")
    i1 = i0; c_ = 0
    while c_ < min(NPRE, OPT["sf"]*4):
        i1 += 1
        if "buffer_load_dwordx4" in L[i1]: c_ += 1
    head = L[i0+1:i1+1]
    del L[i0+1:i1+1]
    j = L.index("  s_cbranch_scc1 L_stream")
    L[j:j+1] = ["  s_cbranch_scc0 L_help"] + head + ["  s_branch L_stream", "L_help:"]
txt, n = a.text()
open(out, "w").write(txt)
print(f"wrote {out}: {len(txt.splitlines())} lines, {n} nops inserted", file=sys.stderr)
```

```python
import sys, struct
from asmlib import Asm
out = sys.argv[1]
OPT = dict(stamps=0, Wp=8, npre=4, hdr=1, stag=10, hslp=32, qslp=8, nse=29, lead=8, t1=448, t2=384, dslp=2,
           np2=1, np3=2, flit=3, slowp=8, bprio=3, maxf=4, tcha=0, tchb=0, asl=36, tpol=1, wqnt=1, ffnt=1, hd=200, qd=64, prew=0, coal=1, pgate=0, bpat=2, slowth=16, fastp=0, bsl=1, adel=90, perm=0, gx=0, noff=252, sperm=4, eager=1024, f1=0, f2=0, f1slp=2, f2slp=1, f2del=0, fmax=4096, f3=0, rsh=2, fdel=170, f3slp=4, lead2=8, t3=420, fw=1, aat=0, aslp=0, apol=1, na=160, xrot=0, asl0=0, bpa=1, fin=4, nob=0, tb=1, prw=0, fine=0, inc=1, f1th=0, f1sl2=16, hbn=0, fo=0, fst=64, fpol=2, fone=4, nopart=0, noa=0, bdel=0, fful=0, mlate=1, fgo=0, px4=1, xm=1, xforce=0, bpe=3, tcw=0, tc0=0, lay=0, tcd=0, col=1, kill=1, t4=400, kill2=0, t5=460, lead3=8, kill0=1, k0at=0, rot=0, r1=104, r2=256, swm=0, ms=-1, mc=0, mr=0, vo=0, numa=0, late=1, tb1=440, tslp=4, lb=2, skip=0, tp=0, tk=0, leadk=12, leadf=14, tf=480, kv=10, cap1=84, nst=5, jit=0, tk2=400, tr=0, tsh=0, il=0, wdel=12, spec=0, snt=0, opol=0, one=1, pd=290, pc=40, pe=5, pslp=2, pw=0, pws=0, fb=1, fbl=84, fbs=3, fbc=40, fb0=12, fbp=8, fbg=4, fbm=40, pp=0, pp0=2, pps=16, ppo=0, nm=0, wx=0, t2m=0, xb=0, w8=0, w8p=1, w8s=0, w8d=0, w8n=8, dl=0, dlb=0, dlw=1, ad=0, pt=0, st=0, pdv=0, pdw=61, fbn=0, bd0=0, bs0=0, bs1=0, ef=0, kl=0, rm=0, gu=0, xl=0, gsl=0, gd=0, gr=0, xf=1, gt=0, gp=150, fk=0, fq=0, ks=0, q1d=16, q1s=4, f1d=64, f1s=16, bt=0, kl2=0, fm=0, dw=0, dwp=1, dr=0, hp=0, l2p=0, tsec=2, tw=0, tx4=0, tnt=0, fz=0, ql=0, hl=0, kpl=0, fh=0, hr=0, fp=0, fps=6, fp0=0, rv=0, rvt=0, rvs=4, sf=0, pbp=1, wl=0, eb=0, ebw=0, ebd=0, psm=0, ph=0, ply=0, spo=0, dup=0, dupl=0, ps=0, bw=0, bwd=0, bws=8, bwo=0, bwt=0, bwp=3, bwn=32, rvl=0, rv0=72, bp1=0, bpz=0, we=0, wed=0, ep=0, epz=0, cl=0, cla=3, ec=0, ecb=18, ecn=3, op=0, r3=128, sp=0, spn=1, wes=8, cr=0, cre=2, crl=4, leade=10, awp=0, crb=0, ww=0, wpo=1, wpn=0, pr=0, prd=0)
for a_ in sys.argv[2:]:
    k, v = a_.split("="); assert k in OPT, k; OPT[k] = int(v)
if OPT["r1"] or OPT["r2"]: OPT["rot"] = -1
Wp = OPT["Wp"]; NPRE = OPT["npre"]
HR = OPT["hr"]
if HR: OPT["xl"] = 1; OPT["xf"] = 1; OPT["ql"] = 1; OPT["hl"] = 1; OPT["l2p"] = 0
TB = 0x1C000
KQ = OPT["ks"] & 1; KF_ = OPT["ks"] & 2
QP, FP = 0x80000, 0x300000
GU = OPT["gu"]; XL = OPT["xl"]
XB = OPT["xb"]; MEM = "s19" if XB else "s17"
NAME = "gated_mix__gqa_block_cached__geglu_ffn__decode"
def f32(x): return "0x%08x" % struct.unpack("<I", struct.pack("<f", x))[0]
LOG2E = 1.4426950408889634
SCALE = 128 ** -0.5
QG, HG, ML, BP, PART, AP, STAMP, CNT = 0x0, 0x20000, 0x40000, 0x80000, 0x100000, 0x200000, 0x400000, 0x480000
F1, F2 = 0x60000, 0x70000
FG, CPA, CPB = 0x40000, 0x200000, 0x300000
if OPT['lay']:
    CNT, CPA, PART = 0x80000, 0x100000, 0x200000
OST = 272
XID = 0x60000
CST = 528
CSTR = 4096 + 256
WS_BYTES = 0x500000
FST = OPT['fst']
LOG = OPT['fine'] == 8
LG9 = OPT['fine'] == 9
if LOG or LG9: WS_BYTES = 0x600000
if OPT['fful']:
    FG = 0x500000; WS_BYTES = FG + 2048*OPT['fful']
elif FST > 64:
    FG = 0x500000; WS_BYTES = FG + 2048*FST
R1 = 0x20000
WO_LDS = R1
R2 = 0x24000
Q_LDS = R2
MISC = R2 + 0x800
MLT = MISC + 0x100
WTL = MISC + 0x300
BW = OPT["bw"]
BP1 = OPT["bp1"]; FTL = MISC + 0x400
O_LDS = R2 + 0x1000
CH = R2 + 0x1400
WD_LDS = R2 + 0x2000
LDS_BYTES = 0x28000
NU = 1024
NSE = OPT["nse"]; LEAD = OPT["lead"]
TK = MISC + 128
K0 = OPT["kill0"]
NUMA = 0
RING = 12288
SB = 8*RING
NSLOT = 192
SENT = 0x7F817F81
ONET = OPT['one'] and not OPT['tk']
PW = OPT['pw']
PD = OPT['pd'] or PW
T1B = CH; T2B = CH + (4*(NSE + K0) if ONET else 1024)
VB = 0x8000
KN = OPT["kill"]; KV = OPT["kv"]
NST = OPT["nst"]; NSU = 3 + NST
SE = 4*NSU
assert KV <= SE + NSE and SE + NSE <= 63
K0TXT = f"""
v_subrev_u32 v5, {K0*0x10001}, v4
v_cmp_le_u32 vcc, {OPT['k0at']}, v0
v_mov_b32 v6, {514 if OPT['rv'] & 2 else 512}
v_cndmask_b32 v4, v4, v6, vcc
v_cmp_le_u32 vcc, {OPT['k0at'] + K0}, v0
v_cndmask_b32 v4, v4, v5, vcc
""" if K0 else ""
CBASE = 8
OP = OPT["op"]; NM = 4 if OP else 8; LIM = 64*NM
def HS(d): return f"s_and_b32 {d}, s17, 1" if OP == 1 else f"s_lshr_b32 {d}, s17, 2"
def US(d): return f"s_lshr_b32 {d}, s17, 1" if OP == 1 else f"s_and_b32 {d}, s17, 3"
if OP: OPT["tf"] //= 2
CR = OPT["cr"]
def ROLE(t): return f"s_xor_b32 {t}, s18, s17\ns_bitcmp1_b32 {t}, 0"
DYN0 = NM*SE + NM*NSE
SPIN = 1 << 16
a = Asm()
hdr = open("cdna_kernels/%s.s.ref" % NAME).read().split("; Override launch")[0] if OPT["hdr"] else ""
a.L += [l for l in hdr.rstrip().split("\n")] if hdr else []
a.L.append(f"; @launch grid=(256,1,1) block=(640,1,1) lds={LDS_BYTES}")
a.L += ['.amdgcn_target "amdgcn-amd-amdhsa--gfx950"', ".text", f".globl {NAME}_kernel", ".p2align 8",
        f".type {NAME}_kernel,@function", f"{NAME}_kernel:"]

def srd(d, ptr, nbytes):
    a(f"s_mov_b32 s{d}, s{ptr}\ns_mov_b32 s{d+1}, s{ptr+1}\ns_mov_b32 s{d+2}, {hex(nbytes)}\ns_mov_b32 s{d+3}, 0x00020000")
P_X, P_K, P_V, P_WQ, P_WO, P_BX, P_WG, P_WU, P_WD, P_GW, P_OUT, P_DBG, P_WS = [32 + 2*i for i in range(13)]
def stamp(idx):
    if OPT["stamps"]:
        a(f"s_memrealtime s[{80+2*idx}:{81+2*idx}]")
def any_eq(regs, val, neg=False):
    op = "v_cmp_ne_u32" if neg else "v_cmp_eq_u32"
    a(f"{op} vcc, {val}, v{regs[0]}")
    for r in regs[1:]:
        a(f"{op} s[78:79], {val}, v{r}\ns_or_b64 vcc, vcc, s[78:79]")
def spin_tail(loop, done, sleep=0):
    a(f"""
s_sub_u32 s76, s76, 1
s_cmp_eq_u32 s76, 0
s_cbranch_scc1 {done}
""")
    if sleep:
        a(f"s_cmp_eq_u64 vcc, 0\ns_cbranch_scc1 {done}\ns_sleep {sleep}\ns_branch {loop}")
    else:
        a(f"s_cmp_lg_u64 vcc, 0\ns_cbranch_scc1 {loop}")
    a.label(done)
def xsum(regs, tmps, ror, op="v_add_f32", swaps=("v_permlane16_swap_b32", "v_permlane32_swap_b32")):
    for k in ror:
        for r in regs: a(f"{op}_dpp v{r}, v{r}, v{r} row_ror:{k} row_mask:0xf bank_mask:0xf")
    for sw in swaps:
        for r, t in zip(regs, tmps): a(f"v_mov_b32 v{t}, v{r}")
        for r, t in zip(regs, tmps): a(f"{sw} v{r}, v{t}")
        for r, t in zip(regs, tmps): a(f"{op} v{r}, v{r}, v{t}")
SEL = 42
def tag_consts(base):
    for j in range(4): a(f"s_mov_b32 s{base+j}, {hex(0x07060500 | j)}")
    a(f"s_mov_b32 s{base+4}, 0x0c0c0400\ns_mov_b32 s{base+5}, 0x04000c0c")
def tag_ins(r, vn, base):
    for j in range(4): a(f"v_perm_b32 v{r+j}, v{r+j}, v{vn}, s{base+j}")
def tag_bad(grans, vn, base, acc, t0, t1):
    for n_, r in enumerate(grans):
        a(f"v_perm_b32 v{t0}, v{r+1}, v{r}, s{base+4}\nv_perm_b32 v{t1}, v{r+3}, v{r+2}, s{base+5}")
        if n_ == 0:
            a(f"v_or_b32 v{acc}, v{t0}, v{t1}\nv_xor_b32 v{acc}, v{acc}, v{vn}")
        else:
            a(f"v_or_b32 v{t0}, v{t0}, v{t1}\nv_xor_b32 v{t0}, v{t0}, v{vn}\nv_or_b32 v{acc}, v{acc}, v{t0}")
def hstamps(first, n):
    if OPT["stamps"]:
        a(f"s_mov_b64 exec, -1\ns_lshl_b32 s29, s16, 7\ns_add_u32 s29, s29, {STAMP+0x8000+8*first}\ns_waitcnt lgkmcnt(0)\nv_mov_b32 v3, 0")
        for k in range(n):
            a(f"v_mov_b32 v4, s{80+2*k}\nv_mov_b32 v5, s{81+2*k}\nbuffer_store_dwordx2 v[4:5], v3, s[12:15], s29 offen offset:{8*k}\ns_nop 1")

def trn(d):
    tr = OPT["tr"]; ts = 3 + OPT["tsh"]
    if OPT["t2m"]: return f"""
s_bfe_u32 s100, {d}, 0x20001
s_bfe_u32 s101, {d}, 0x30003
s_andn2_b32 {d}, {d}, 62
{"s_xor_b32 s101, s101, s100" if OPT["t2m"] >= 2 else ""}
s_lshl_b32 s100, s100, 4
s_lshl_b32 s101, s101, 1
s_or_b32 {d}, {d}, s100
s_or_b32 {d}, {d}, s101
"""
    if OPT["nm"]: return f"""
s_lshr_b32 s100, {d}, 4
s_xor_b32 s100, s100, {d}
s_and_b32 s100, s100, 2
s_mul_i32 s100, s100, 17
s_xor_b32 {d}, {d}, s100
s_lshl_b32 s100, s19, 1
s_xor_b32 s100, s100, {2*(OPT["nm"]-1)}
s_and_b32 s100, s100, 2
s_xor_b32 {d}, {d}, s100
"""
    if not tr: return ""
    return f"""
s_and_b32 s100, {d}, {(1 << tr) - 1}
s_lshl_b32 s100, s100, {ts}
s_bfe_u32 s101, {d}, {hex((ts << 16) | tr)}
s_andn2_b32 {d}, {d}, {(1 << (tr+ts)) - 1}
s_or_b32 {d}, {d}, s100
s_or_b32 {d}, {d}, s101
"""
def backoff(n):
    while n > 0:
        a(f"s_sleep {min(n, 127)}"); n -= 127
def touch():
    a(f"""
s_mov_b64 exec, 0xffff
v_lshlrev_b32 v9, 7, v0
s_lshl_b32 s25, s17, 17
s_lshr_b32 s26, s18, 1
s_lshl_b32 s26, s26, 13
s_add_u32 s25, s25, s26
s_and_b32 s26, s18, 1
s_lshl_b32 s26, s26, 11
s_add_u32 s25, s25, s26
s_add_u32 s25, s25, {CPA}
buffer_load_dword v16, v9, s[12:15], s25 offen {['', 'sc1', 'nt'][OPT['tpol']]}
""")

XROT = "s_mov_b32 s16, s2" if not OPT["xrot"] else f"""
s_lshr_b32 s18, s2, 3
s_mul_i32 s17, s18, {OPT['xrot']}
s_add_u32 s17, s17, s2
s_and_b32 s17, s17, 7
s_andn2_b32 s16, s2, 7
s_or_b32 s16, s16, s17
"""
a("""
s_cmp_ge_u32 s2, 256
s_cbranch_scc1 L_end
s_load_dwordx16 s[32:47], s[0:1], 0
s_load_dwordx8 s[48:55], s[0:1], 64
s_load_dwordx2 s[56:57], s[0:1], 96
""")
stamp(0)
a(f"""
v_lshrrev_b32 v1, 6, v0
v_and_b32 v0, 63, v0
s_and_b32 s17, s2, 7
v_readfirstlane_b32 s3, v1
{XROT}
s_lshr_b32 s18, s16, 3
s_and_b32 s19, s18, 7
s_lshr_b32 s20, s18, 3
s_xor_b32 s20, s20, {OPT['gx']}
s_cmp_lt_u32 s3, 8
s_cbranch_scc1 L_stream
v_and_b32 v10, 15, v0
v_lshrrev_b32 v11, 4, v0
v_lshlrev_b32 v2, 4, v11
v_lshl_add_u32 v2, v10, 10, v2
v_lshrrev_b32 v3, 1, v0
v_and_b32 v4, 1, v0
v_lshlrev_b32 v4, 4, v4
v_mov_b32 v13, 0
s_cmp_eq_u32 s3, 9
s_cbranch_scc1 L_hb
""")
AFR = 16; D0 = 48; WDV = 64; GX = 16; GW = 32; XF = 100; GG = 164; VN = 166; CP = 60
def frag_addr(sh=5):
    a(f"""
v_lshrrev_b32 v8, 2, v10
v_lshl_add_u32 v8, v11, 3, v8
v_lshlrev_b32 v9, {sh}, v8
v_and_b32 v8, 3, v0
v_lshl_add_u32 v9, v8, 3, v9
v_add_u32 v9, {R1}, v9
v_cmp_gt_u32 s[58:59], 8, v10
v_bfe_u32 v{CP+1}, v0, 2, 3
v_and_b32 v{CP+2}, 3, v0
v_lshl_add_u32 v{CP}, v{CP+2}, 4, v{CP+1}
v_lshlrev_b32 v{CP}, 2, v{CP}
""")
def gemv(va, Dr):
    def rd(bt):
        base = AFR + 16*(bt & 1)
        for k in range(4):
            t = 4*bt + k
            a(f"ds_read_b64_tr_b16 v[{base+4*k}:{base+4*k+1}], v{va} offset:{1024*t}")
            a(f"ds_read_b64_tr_b16 v[{base+4*k+2}:{base+4*k+3}], v{va} offset:{1024*t+128}")
    rd(0)
    for bt in range(4):
        if bt < 3:
            rd(bt+1); a("s_waitcnt lgkmcnt(8)")
        else:
            a("s_waitcnt lgkmcnt(0)")
        base = AFR + 16*(bt & 1)
        for k in range(4):
            t = 4*bt + k
            c = "0" if t == 0 else f"v[{Dr}:{Dr+3}]"
            a(f"v_mfma_f32_16x16x32_bf16 v[{Dr}:{Dr+3}], v[{base+4*k}:{base+4*k+3}], v[{XF+4*t}:{XF+4*t+3}], {c}")
def gemv128(va, DG, XB_):
    def rd(s_):
        for ct in range(4):
            q_ = AFR + 16*(s_ & 1) + 4*ct
            a(f"ds_read_b64_tr_b16 v[{q_}:{q_+1}], v{va} offset:{s_*4096+ct*32}\nds_read_b64_tr_b16 v[{q_+2}:{q_+3}], v{va} offset:{s_*4096+ct*32+512}")
    rd(0)
    for s_ in range(4):
        if s_ < 3:
            rd(s_+1); a("s_waitcnt lgkmcnt(8)")
        else:
            a("s_waitcnt lgkmcnt(0)")
        for ct in range(4):
            q_ = AFR + 16*(s_ & 1) + 4*ct; d = DG + 4*ct
            a(f"v_mfma_f32_16x16x32_bf16 v[{d}:{d+3}], v[{q_}:{q_+3}], v[{XB_+4*s_}:{XB_+4*s_+3}], {'0' if s_ == 0 else f'v[{d}:{d+3}]'}")
def pstore(DG, vn, va, so, pol):
    for h_ in range(2):
        d = DG + 8*h_
        for r in range(4): a(f"v_mov_b32_dpp v{d+r}, v{d+4+r} row_ror:8 row_mask:0xf bank_mask:0xc")
        tag_ins(d, vn, SEL)
        a(f"buffer_store_dwordx4 v[{d}:{d+3}], v{va}, s[12:15], {so} offen offset:{1024*h_} {pol}")
def ppoll(lbl, P, va, so, vn, t, delay, slp, so2=None, off2=1024):
    a(f"s_mov_b32 s76, {SPIN}")
    backoff(delay)
    a(f"""
{lbl}:
buffer_load_dwordx4 v[{P}:{P+3}], v{va}, s[12:15], {so} offen sc1
buffer_load_dwordx4 v[{P+4}:{P+7}], v{va}, s[12:15], {so2 or so} offen offset:{off2} sc1
s_waitcnt vmcnt(0)
""")
    tag_bad([P, P+4], vn, SEL, t, t+1, t+2)
    a(f"v_cmp_ne_u32 vcc, 0, v{t}")
    spin_tail(lbl, lbl + "d", sleep=slp)
    for r in range(8): a(f"v_and_b32 v{P+r}, 0xffffff00, v{P+r}")
a(f"""
s_setprio 3
s_memrealtime s[74:75]
""" + ("" if HR else f"""
s_mul_i32 s21, s17, {OPT['sperm']}
s_add_u32 s21, s21, s18
s_and_b32 s21, s21, 31
s_lshl_b32 s25, s17, 5
s_add_u32 s21, s21, s25
v_lshl_add_u32 v1, v3, 13, v4
s_lshl_b32 s25, s21, 5
v_add_u32 v1, s25, v1
""") + (f"""
v_lshrrev_b32 v1, 3, v0
v_and_b32 v5, 7, v0
v_lshlrev_b32 v5, 4, v5
v_lshl_add_u32 v1, v1, 13, v5
s_lshr_b32 s25, s21, 2
s_lshl_b32 s25, s25, 7
s_and_b32 s26, s21, 3
s_lshl_b32 s26, s26, 20
s_add_u32 s25, s25, s26
v_add_u32 v1, s25, v1
s_lshr_b32 s26, s26, 12
""" if OPT["fq"] or KQ else "") + f"""
s_mov_b64 s[72:73], 1
v_mov_b32 v15, {OPT['noff']}
v_lshlrev_b32 v3, 4, v0
s_waitcnt lgkmcnt(0)
""")
stamp(8)
srd(68, P_DBG, 256)
a(f"""
s_cmp_ge_u32 s16, 8
s_cbranch_scc1 L_nononce
s_or_b32 s74, s74, 1
v_mov_b32 v12, s74
s_mov_b64 exec, s[72:73]
buffer_atomic_cmpswap v[12:13], v15, s[68:71], 0 offen sc1
s_mov_b64 exec, -1
""")
a.label("L_nononce")
srd(60, P_WQ, 512*4096*2); srd(64, P_X, 8192)
backoff(OPT["ad"])
def x_dma():
    for b_ in range(8):
        a(f"v_xor_b32 v{16+b_}, {16*b_}, v3")
    for b_ in range(8):
        a(f"s_mov_b32 m0, {WD_LDS + 1024*b_}\ns_movk_i32 s25, {1024*b_}\nbuffer_load_dwordx4 v{16+b_}, s[64:67], s25 offen lds")
def x_frag(t0, t1):
    a(f"""
v_and_b32 v{t0}, 7, v10
v_xor_b32 v{t1}, v{t0}, v11
v_lshlrev_b32 v{t1}, 4, v{t1}
v_lshl_add_u32 v{t0}, v{t0}, 10, v{t1}
v_add_u32 v{t0}, {WD_LDS}, v{t0}
v_xor_b32 v{t1}, 64, v{t0}
""")
    for s_ in range(16):
        a(f"ds_read_b128 v[{XF+4*s_}:{XF+4*s_+3}], v{(t0, t1)[s_ & 1]} offset:{128*(s_ >> 1)}")
L2P = OPT["l2p"]
def touch_tile(va, sd, stride, dst):
    for h_ in range(2):
        a(f"s_mov_b32 s27, {64*h_*stride}")
        for sec in range(OPT["tsec"]):
            a(f"buffer_load_dword v{dst+2*h_+sec}, v{va}, s[{sd}:{sd+3}], s27 offen offset:{64*sec}{' nt' if OPT['tnt'] else ''}")
if L2P & 1:
    a(f"""
s_lshr_b32 s25, s21, 2
s_lshl_b32 s25, s25, 7
s_and_b32 s26, s21, 3
s_lshl_b32 s26, s26, 20
s_add_u32 s25, s25, s26
v_lshl_add_u32 v5, v0, 13, s25
""")
    touch_tile(5, 60, 8192, 56)
if XL and OPT["xf"] and not OPT["rm"] & 2: x_dma()
def wq_dma():
    a("s_mov_b32 s25, 0")
    for t in range(16):
        a(f"s_mov_b32 m0, {R1 + 1024*t}")
        if t: a(f"s_mov_b32 s25, {t*32*8192}")
        a(f"buffer_load_dwordx4 v55, s[60:63], s25 offen {'nt ' if OPT['wqnt'] else ''}lds")
if L2P & 1: a("v_mov_b32 v55, v1")
a("s_mov_b32 s25, 0")
RM = OPT["rm"]
if OPT["fh"] or HR:
    a(f"""
s_mov_b32 s21, -1
s_lshr_b32 s27, s18, 1
v_lshrrev_b32 v40, 2, v0
v_and_b32 v41, 3, v0
v_lshlrev_b32 v41, 4, v41
s_bitcmp1_b32 s18, 0
s_cbranch_scc1 L_fhg
s_lshl_b32 s29, s17, 4
s_add_u32 s29, s29, s27
s_lshl_b32 s21, s29, 10
s_add_u32 s21, s21, {QG}
s_lshl_b32 s29, s29, 6
v_lshl_add_u32 v40, v40, 13, v41
s_mov_b32 s28, {16*8192}
s_branch L_fhl
L_fhg:
s_cmp_ge_u32 s27, 14
s_cbranch_scc1 L_fhd
s_and_b32 s29, s17, 3
s_mul_i32 s29, s29, 14
s_add_u32 s29, s29, s27
s_lshl_b32 s21, s29, 10
s_lshr_b32 s28, s17, 2
s_lshl_b32 s28, s28, 16
s_add_u32 s21, s21, s28
s_add_u32 s21, s21, {HG}
s_lshl_b32 s29, s29, 6
v_mul_u32_u24 v40, 3584, v40
v_add_u32 v40, v40, v41
s_mov_b32 s28, {16*3584}
s_cmp_lt_u32 s17, 4
s_cselect_b32 s60, s{P_WG}, s{P_WU}
s_cselect_b32 s61, s{P_WG+1}, s{P_WU+1}
s_mov_b32 s62, {512*1792*2}
L_fhl:
""")
    for t in range(0 if RM & 1 else 32):
        a(f"s_mov_b32 m0, {TB + 1024*t if HR else R1 + 1024*(t & 15)}\n{'s_add_u32 s29, s29, s28' if t else 's_nop 0'}\nbuffer_load_dwordx4 v40, s[60:63], s29 offen nt lds")
    a.label("L_fhd")
for t in range(0 if RM & 1 or L2P & 1 or HR else 16):
    a(f"s_mov_b32 m0, {R1 + 1024*t}")
    if t and not OPT["skip"] & 8: a(f"s_mov_b32 s25, {t*(8 if OPT['fq'] or KQ else 32)*8192}")
    a(f"buffer_load_dwordx4 v1, s[60:63], s25 offen {'nt ' if OPT['wqnt'] else ''}lds")
if OPT["fine"] == 7: stamp(6)
if XL and not OPT["xf"]: x_dma()
for s_ in range(0 if RM & 2 or XL else 4 if KQ else 16):
    a(f"buffer_load_dwordx4 v[{XF+4*s_}:{XF+4*s_+3}], v2, s[64:67], {'s26' if KQ else 0} offen offset:{64*s_}")
srd(12, P_WS, WS_BYTES)
CNTA = f"""s_lshl_b32 s77, s17, 2
s_add_u32 s77, s77, s20
s_mul_i32 s77, s77, {CSTR}
s_add_u32 s77, s77, {CNT}
s_cmp_lg_u32 s19, 0""" if XB else f"""s_mul_i32 s77, s18, {CSTR}
s_add_u32 s77, s77, {CNT}
s_cmp_lg_u32 s17, 0""" if not NUMA else f"""s_lshr_b32 s75, s17, 2
s_lshl_b32 s77, s18, 1
s_add_u32 s77, s77, s75
s_mul_i32 s77, s77, {CSTR}
s_add_u32 s77, s77, {CNT}
s_xor_b32 s75, s75, s19
s_xor_b32 s75, s75, {NUMA-1}
s_and_b32 s75, s75, 1
s_and_b32 s25, s17, 3"""
STAT = f"""
ds_write_b64 v2, v[4:5] offset:144
v_lshl_add_u32 v35, v0, 16, v0
{US("s27") if OP else ""}
s_mul_i32 s25, {"s27" if OP else MEM}, {NSE}
s_add_u32 s26, s25, {NM*SE - SE + VB}
v_add_u32 v4, s26, v35
v_lshrrev_b32 v5, 2, v0
v_mul_u32_u24 v5, {4*NM - 4}, v5
s_lshl_b32 s26, {"s27" if OP else MEM}, 2
s_add_u32 s26, s26, {VB}
v_add3_u32 v5, v5, s26, v35
v_cmp_gt_u32 vcc, {64 if OPT["il"] else SE}, v0
v_cndmask_b32 v4, v4, v5, vcc
v_lshlrev_b32 v1, 2, v0
v_add_u32 v5, {4*KN}, v1
v_cmp_gt_u32 vcc, {KV}, v0
v_cndmask_b32 v5, v5, v1, vcc
v_add_u32 v5, {T2B}, v5
""" + (f"""
v_mov_b32 v66, v5
v_mov_b32 v67, v4
""" if PD else f"""
s_bfm_b64 exec, {SE + NSE}, 0
ds_write_b32 v5, v4
""") + (f"""
v_mov_b32 v4, {514 if OPT['rv'] & 1 else 512}
v_add_u32 v5, {T2B + 4*KV}, v1
s_mov_b64 exec, {(1 << KN) - 1}
ds_write_b32 v5, v4
""" if KN else "") + f"""
s_mov_b64 exec, -1
s_add_u32 s25, s25, {NM*SE + (SE << 16)}
v_add_u32 v4, s25, v35
""" + (f"""
v_subrev_u32 v6, {K0}, v0
v_cmp_gt_u32 vcc, {OPT['k0at'] + K0}, v0
v_cndmask_b32 v6, v6, v0, vcc
v_lshrrev_b32 v6, 2, v6
v_mul_u32_u24 v6, {4*NM - 4}, v6
s_add_u32 s26, s26, {NM*SE + (SE << 16) - VB}
v_add3_u32 v4, v6, s26, v35
""" if OPT["il"] else "")
QCH = f"""s_mul_i32 s27, s17, {OPT['sperm']}
s_lshl_b32 s28, s20, 3
s_add_u32 s27, s27, s28
s_and_b32 s27, s27, 31
s_lshl_b32 s28, s17, 5
s_add_u32 s27, s27, s28
s_lshl_b32 s27, s27, 6""" if XB else f"""s_lshl_b32 s27, s18, 6""" if not NUMA else f"""s_and_b32 s27, s17, 4
s_mul_i32 s28, s27, {OPT['sperm']}
s_add_u32 s28, s28, s18
s_and_b32 s28, s28, 31
s_lshl_b32 s27, s27, 5
s_add_u32 s27, s27, s28
s_lshl_b32 s27, s27, 6"""
if HR:
    CNTA = f"""s_mul_i32 s77, s18, {CSTR}
s_add_u32 s77, s77, {CNT}
{HS("s25") + chr(10) + "s_lshl_b32 s25, s25, 11" + chr(10) + "s_add_u32 s77, s77, s25" if OP else ""}
s_lshl_b32 s25, s18, 2
s_add_u32 s25, s25, s17
s_mul_i32 s25, s25, {CSTR}
s_add_u32 s25, s25, {CNT}
s_and_b32 s26, s18, 25"""
a(f"""
{CNTA}
s_cbranch_scc1 L_nocnt
v_mov_b32 v14, {CBASE}
s_mov_b64 exec, s[72:73]
buffer_store_dword v14, v13, s[12:15], {"s25" if HR else "s77"} offen sc1
{"buffer_store_dword v14, v13, s[12:15], s25 offen offset:2048 sc1" if OP else ""}
""" + ("""
v_mov_b32 v4, 0
v_mov_b32 v5, 0
v_mov_b32 v6, 0
v_mov_b32 v7, 0
buffer_store_dwordx4 v[4:7], v13, s[12:15], s77 offen offset:128 sc1
buffer_store_dwordx4 v[4:7], v13, s[12:15], s77 offen offset:144 sc1
""" if PW else "") + """
s_mov_b64 exec, -1
""")
a.label("L_nocnt")
a(f"""
buffer_load_dword v12, v15, s[68:71], 0 offen sc1
v_mov_b32 v4, -1
v_mov_b32 v5, -1
v_mov_b32 v6, -1
v_mov_b32 v7, -1
v_add_u32 v1, {CH}, v3
ds_write_b128 v1, v[4:7]
ds_write_b128 v1, v[4:7] offset:1024
ds_write_b128 v1, v[4:7] offset:2048
v_mov_b32 v2, {MISC}
v_mov_b32 v4, 0
v_mov_b32 v5, 0
v_mov_b32 v6, 0
v_mov_b32 v7, 0
ds_write_b128 v2, v[4:7] offset:128
{STAT}
v_lshlrev_b32 v1, 2, v0
v_add_u32 v1, {CH}, v1
{K0TXT}
v_cmp_gt_u32 vcc, {min(PW, NSE + K0) if PW else K0 if PD else NSE + K0}, v0
v_mov_b32 v64, v1
v_mov_b32 v65, v4
s_mov_b64 exec, vcc
ds_write_b32 v1, v4
s_mov_b64 exec, -1
""")
if HR:
    a(f"""
v_lshrrev_b32 v8, 2, v10
v_lshl_add_u32 v8, v11, 3, v8
v_lshlrev_b32 v9, 6, v8
v_and_b32 v8, 3, v0
v_lshl_add_u32 v9, v8, 3, v9
v_add_u32 v9, {TB}, v9
v_lshrrev_b32 v{CP}, 3, v0
v_lshl_add_u32 v{CP}, v8, 4, v{CP}
v_and_b32 v8, 4, v0
v_lshl_add_u32 v{CP}, v8, 1, v{CP}
v_lshlrev_b32 v{CP}, 2, v{CP}
""")
else: frag_addr(7 if KQ else 5)
if KQ:
    tag_consts(SEL)
    a(f"""
v_and_b32 v52, 7, v10
v_lshl_add_u32 v52, v11, 3, v52
v_lshlrev_b32 v52, 4, v52
v_lshrrev_b32 v53, 3, v10
v_lshl_add_u32 v53, v53, 9, v52
s_andn2_b32 s28, s21, 3
s_lshl_b32 s28, s28, 11
s_and_b32 s29, s21, 3
s_lshl_b32 s29, s29, 9
s_add_u32 s28, s28, s29
s_add_u32 s28, s28, {QP}
s_lshl_b32 s29, s21, 11
s_add_u32 s29, s29, {QP}
""")
    if OPT["kpl"]:
        a(f"""
v_lshrrev_b32 v54, 3, v10
v_lshl_add_u32 v52, v54, 11, v52
s_add_u32 s30, s28, 4096
""")
a(f"s_mov_b32 s76, {SPIN}\ns_waitcnt lgkmcnt(0)")
stamp(7)
a("s_barrier")
stamp(1)
if L2P & 1:
    a(f"s_waitcnt vmcnt({9 if XL else 17})")
    backoff(OPT["tw"])
    wq_dma()
if HR:
    a("s_cmp_eq_u32 s21, -1\ns_cbranch_scc1 L_nogv\ns_waitcnt vmcnt(33)")
    x_frag(56, 57)
    def rd(bt):
        if bt % 2 == 0: a(f"s_waitcnt vmcnt({25 - 4*bt})")
        for k in range(2):
            for ct in range(2):
                q_ = AFR + 16*(bt & 1) + 8*k + 4*ct; o_ = (2*bt + k)*2048 + 32*ct
                a(f"ds_read_b64_tr_b16 v[{q_}:{q_+1}], v9 offset:{o_}\nds_read_b64_tr_b16 v[{q_+2}:{q_+3}], v9 offset:{o_+256}")
    rd(0)
    for bt in range(8):
        if bt < 7:
            rd(bt+1); a("s_waitcnt lgkmcnt(8)")
        else:
            a("s_waitcnt lgkmcnt(0)")
        for k in range(2):
            for ct in range(2):
                q_ = AFR + 16*(bt & 1) + 8*k + 4*ct; t = 2*bt + k; d = D0 + 4*ct
                a(f"v_mfma_f32_16x16x32_bf16 v[{d}:{d+3}], v[{q_}:{q_+3}], v[{XF+4*t}:{XF+4*t+3}], {'0' if t == 0 else f'v[{d}:{d+3}]'}")
    a(f"""
v_cvt_pk_bf16_f32 v4, v{D0}, v{D0+1}
v_cvt_pk_bf16_f32 v6, v{D0+2}, v{D0+3}
v_cvt_pk_bf16_f32 v56, v{D0+4}, v{D0+5}
v_cvt_pk_bf16_f32 v57, v{D0+6}, v{D0+7}
v_mov_b32_dpp v4, v56 row_ror:8 row_mask:0xf bank_mask:0xc
v_mov_b32_dpp v6, v57 row_ror:8 row_mask:0xf bank_mask:0xc
ds_bpermute_b32 v4, v{CP}, v4
ds_bpermute_b32 v6, v{CP}, v6
L_nogv:
""")
elif XL and OPT["xf"]:
    a("s_waitcnt vmcnt(17)"); x_frag(52, 53)
a("s_waitcnt vmcnt(0)")
if XL and not OPT["xf"]: x_frag(52, 53)
a.label("L_np")
a(f"""
v_readfirstlane_b32 s74, v12
s_sub_u32 s76, s76, 1
s_cmp_eq_u32 s76, 0
s_cbranch_scc1 L_np_done
s_cmp_lg_u32 s74, 0
s_cbranch_scc1 L_np_done
buffer_load_dword v12, v15, s[68:71], 0 offen sc1
s_waitcnt vmcnt(0)
s_branch L_np
""")
a.label("L_np_done")
PAC = 0x4D0000; PST = 4352
if OPT["fb"]:
    a(f"""
s_cmp_lg_u32 s16, 0
s_cbranch_scc1 L_nfi
v_mov_b32 v5, s74
v_mul_u32_u24 v7, {PST}, v0
s_mov_b32 s25, {PAC}
s_mov_b64 exec, 0xffff
buffer_store_dword v5, v7, s[12:15], s25 offen sc1
s_mov_b64 exec, -1
L_nfi:
""")
stamp(2)
if KQ: gemv128(9, 68, XF)
elif not HR: gemv(9, D0)
a(f"""
v_mov_b32 v5, s74
v_mov_b32 v7, s74
v_mov_b32 v8, 1
ds_write_b32 v2, v5 offset:96
ds_write_b32 v2, v8 offset:136
""")
if KQ and OPT["kpl"]:
    pstore(68, 5, 53, "s29", '' if OPT['kl2'] & 1 else 'sc1')
    ppoll("L_q1", 84, 52, "s28", 5, 54, OPT["q1d"], OPT["q1s"], "s30", 0)
    for r in range(4): a(f"v_add_f32 v{D0+r}, v{84+r}, v{88+r}")
    for r in range(4): a(f"v_add_f32_dpp v{D0+r}, v{D0+r}, v{D0+r} row_ror:8 row_mask:0xf bank_mask:0xf")
elif KQ:
    a("s_mov_b64 exec, s[58:59]")
    for ct in range(4):
        tag_ins(68 + 4*ct, 5, SEL)
        a(f"buffer_store_dwordx4 v[{68+4*ct}:{71+4*ct}], v52, s[12:15], s28 offen offset:{2048*(ct & 1)} {'' if OPT['kl2'] & 1 else 'sc1'}")
        if ct == 1: a("s_add_u32 s28, s28, 4096")
    a("s_mov_b64 exec, -1")
    ppoll("L_q1", 84, 53, "s29", 5, 54, OPT["q1d"], OPT["q1s"])
    for r in range(4): a(f"v_add_f32 v{D0+r}, v{84+r}, v{88+r}")
    for r in range(4): a(f"v_add_f32_dpp v{D0+r}, v{D0+r}, v{D0+r} row_ror:8 row_mask:0xf bank_mask:0xf")
QL = OPT["ql"]; HL = OPT["hl"]
def qpub_old():
    a(f"""
s_lshl_b32 s25, s21, {9 if QL else 6}
s_add_u32 s25, s25, {QG}
v_cvt_pk_bf16_f32 v4, v{D0}, v{D0+1}
v_cvt_pk_bf16_f32 v6, v{D0+2}, v{D0+3}
""")
    if OPT["coal"]:
        a(f"""
ds_bpermute_b32 v4, v{CP}, v4
ds_bpermute_b32 v6, v{CP}, v6
v_lshlrev_b32 v14, 4, v{CP+2}
v_lshl_add_u32 v14, v{CP+1}, {6 if QL else 14}, v14
s_mov_b32 exec_hi, 0
s_waitcnt lgkmcnt(0)
""")
    else:
        a(f"""
v_lshlrev_b32 v14, 4, v11
v_lshl_add_u32 v14, v10, 14, v14
s_mov_b64 exec, s[58:59]
""")
    a(f"""
buffer_store_dwordx4 v[4:7], v14, s[12:15], s25 offen sc1
s_mov_b64 exec, -1
""")
if HR:
    a(f"""
s_cmp_eq_u32 s21, -1
s_cbranch_scc1 L_nopub
s_waitcnt lgkmcnt(0)
{"" if RM & 128 else "buffer_store_dwordx4 v[4:7], v3, s[12:15], s21 offen " + ['', 'sc1', 'sc1 nt', 'sc0 sc1', 'sc0 sc1 nt'][OPT['pbp']]}
L_nopub:
v_mov_b32 v16, {hex(SENT)}
v_mov_b32 v17, {hex(SENT)}
v_mov_b32 v18, {hex(SENT)}
v_mov_b32 v19, {hex(SENT)}
v_add_u32 v1, {TB}, v3
""")
    for k in range(8): a(f"ds_write_b128 v1, v[16:19] offset:{1024*k}")
else: qpub_old()
if OPT["dw"] or OPT["dr"]:
    a(f"s_lshl_b32 s28, s21, 12\ns_add_u32 s28, s28, {FP}")
    for k in range(OPT["dw"]):
        a(f"buffer_store_dwordx4 v[16:19], v3, s[12:15], s28 offen offset:{1024*k} {['', 'sc1', 'nt', 'sc0 sc1', 'sc1 nt'][OPT['dwp']]}")
    for k in range(OPT["dr"]):
        a(f"buffer_load_dwordx4 v[84:87], v3, s[12:15], s28 offen offset:{1024*k} sc1")
stamp(3)
a(f"""
{"s_lshl_b32 s25, s17, 14" if XB else "s_lshl_b32 s25, s20, 15"}
{"s_lshl_b32 s26, s20, 12" if XB else "s_lshl_b32 s26, s19, 11"}
s_add_u32 s25, s25, s26
s_add_u32 s25, s25, {QG}
s_add_u32 s26, s25, {2048 if XB else 16384}
{QCH}
""" + (f"""
s_lshl_b32 s25, s19, 14
s_lshl_b32 s26, s20, 8
s_add_u32 s25, s25, s26
{HS("s26")}
s_lshl_b32 s26, s26, 7
s_add_u32 s25, s25, s26
s_add_u32 s25, s25, {QG}
s_add_u32 s26, s25, 8192
v_and_b32 v14, 7, v0
v_lshlrev_b32 v14, 4, v14
v_lshrrev_b32 v1, 3, v0
v_lshl_add_u32 v14, v1, 10, v14
v_lshlrev_b32 v1, 3, v0
v_add_u32 v1, {Q_LDS}, v1
""" if OP else f"""
s_lshl_b32 s25, s19, 14
s_lshl_b32 s26, s20, 8
s_add_u32 s25, s25, s26
s_add_u32 s25, s25, {QG}
s_add_u32 s26, s25, 4096
s_add_u32 s28, s25, 8192
s_add_u32 s29, s25, 12288
v_lshlrev_b32 v14, 4, v10
v_lshl_add_u32 v14, v11, 10, v14
v_and_b32 v1, 7, v0
v_lshl_add_u32 v1, v11, 3, v1
v_lshlrev_b32 v1, 3, v1
v_bfe_u32 v9, v0, 3, 1
v_lshl_add_u32 v1, v9, 10, v1
v_add_u32 v1, {Q_LDS}, v1
""" if HR else f"""
s_lshl_b32 s27, s27, 3
s_lshl_b32 s25, s19, 14
s_lshl_b32 s26, s20, 7
s_add_u32 s25, s25, s26
s_add_u32 s25, s25, {QG}
s_add_u32 s26, s25, 4096
s_add_u32 s28, s25, 8192
s_add_u32 s29, s25, 12288
v_lshrrev_b32 v1, 3, v0
v_and_b32 v14, 7, v0
v_lshlrev_b32 v14, 4, v14
v_lshl_add_u32 v14, v1, 9, v14
v_lshl_add_u32 v1, v1, 2, v{CP+2}
v_lshlrev_b32 v1, 3, v1
v_bfe_u32 v4, v0, 2, 1
v_lshl_add_u32 v1, v4, 10, v1
v_add_u32 v1, {Q_LDS}, v1
""" if QL else "") + f"""
s_add_u32 s27, s27, {QG}
s_mov_b32 s76, {SPIN}
""")
backoff(OPT["qd"] + (OPT["fq"] if OPT["fq"] > 1 else 0))
a.label("L_qpoll")
if RM & 32: a("s_sleep 100\ns_branch L_qdone")
if QL: a(f"""
buffer_load_dwordx4 v[16:19], v14, s[12:15], s25 offen sc1
buffer_load_dwordx4 v[20:23], v14, s[12:15], s26 offen sc1
{"" if OP else "buffer_load_dwordx4 v[24:27], v14, s[12:15], s28 offen sc1"}
{"" if OP else "buffer_load_dwordx4 v[28:31], v14, s[12:15], s29 offen sc1"}
{"" if HR else "buffer_load_dwordx4 v[32:35], v13, s[12:15], s27 offen sc1"}
s_waitcnt vmcnt(0)
""")
else: a(f"""
buffer_load_dwordx4 v[16:19], v3, s[12:15], s25 offen sc1
buffer_load_dwordx4 v[20:23], v3, s[12:15], s25 offen offset:1024 sc1
{"" if OPT["hp"] & 1 else "buffer_load_dwordx4 v[24:27], v3, s[12:15], s26 offen sc1"}
{"" if OPT["hp"] & 1 else "buffer_load_dwordx4 v[28:31], v3, s[12:15], s26 offen offset:1024 sc1"}
buffer_load_dwordx4 v[32:35], v13, s[12:15], s27 offen sc1
s_waitcnt vmcnt(0)
""")
any_eq([17, 19, 21, 23, 33, 35] if OPT["hp"] & 1 else list(range(17, 24 if OP else 32 if HR else 36, 2)), "s74", neg=True)
spin_tail("L_qpoll", "L_qdone", sleep=OPT["qslp"])
stamp(4)
a(f"""
v_mov_b32 v17, v18
v_mov_b32 v21, v22
v_mov_b32 v25, v26
v_mov_b32 v29, v30
{"" if QL else "v_lshlrev_b32 v1, 3, v0"}
{"" if QL else f"v_add_u32 v1, {Q_LDS}, v1"}
ds_write_b64 v1, v[16:17]
ds_write_b64 v1, v[20:21] offset:{512 if OP else 256 if QL else 512}
{"" if OP else f"ds_write_b64 v1, v[24:25] offset:{512 if QL else 1024}"}
{"" if OP else f"ds_write_b64 v1, v[28:29] offset:{768 if QL else 1536}"}
s_waitcnt lgkmcnt(0)
ds_write_b32 v2, v8 offset:132
""")
stamp(5)
a(f"""
s_mov_b32 s21, {NSE + K0}
s_mov_b32 s22, {NSE + K0}
s_mov_b32 s20, {SE + NSE}
s_mov_b32 s19, {SE + NSE}
s_mov_b32 s23, 0
s_mov_b32 s24, 0
s_mov_b32 s26, 0
s_mov_b32 s27, 0
s_mov_b32 s28, 0
s_mov_b32 s29, {0 if OPT['tk'] else 1}
v_mov_b32 v4, 0
v_lshl_add_u32 v5, v0, 16, v0
s_mov_b32 s76, {SPIN*64}
""")
FST1 = """s_cmp_lg_u32 s60, 0
s_cbranch_scc1 L_fs1
s_mov_b32 s60, 1
s_memrealtime s[82:83]
L_fs1:"""
RV = OPT["rv"]
RVT = f"""s_cmp_lt_u32 s28, {OPT['rvt']}
s_cbranch_scc1 L_nrv
ds_write_b32 v2, v2 offset:144
L_nrv:""" if RV and OPT["rvt"] else ""
def disp(p):
    tb = T1B if ONET else (T1B, T2B)[p]
    a(f"""
L_disp{p}:
s_mov_b64 exec, 1
ds_read_b32 v6, v2 offset:{128 if ONET else (128, 144)[p]}
s_sub_u32 s76, s76, 1
s_cmp_le_i32 s76, 0
s_cbranch_scc1 L_dexh{p}
s_cmp_eq_u32 s24, 0
s_cbranch_scc1 L_noc{p}
v_readlane_b32 s25, v4, s27
s_cmp_lt_u32 s25, {CBASE}
s_cbranch_scc1 L_noc{p}
s_and_b32 s30, s23, 15
s_lshr_b32 s23, s23, 4
s_sub_u32 s24, s24, 1
s_add_u32 s27, s27, 1
s_and_b32 s27, s27, 7
s_add_u32 s25, s25, {DYN0 - CBASE}
s_add_u32 s28, s25, s30
{RVT if p else ""}
s_sub_i32 s31, {LIM}, s25
s_max_i32 s31, s31, 0
s_min_i32 s31, s31, s30
s_cmp_ge_u32 s28, {(OPT['tk'], LIM)[p]}
s_cselect_b32 s29, 1, s29
s_cmp_eq_u32 s31, 0
s_cbranch_scc1 L_noc{p}
s_bfm_b64 exec, s31, 0
s_lshl_b32 s30, s20, 16
s_add_u32 s25, s25, s30
v_add_u32 v7, s25, v5
s_lshl_b32 s25, s22, 2
s_add_u32 s25, s25, {tb}
v_lshl_add_u32 v8, v0, 2, s25
ds_write_b32 v8, v7
s_add_u32 s22, s22, s31
s_lshl_b32 s25, {('s20', 's22')[p]}, 2
s_add_u32 s25, s25, {(T2B + 4*KN, tb)[p]}
v_or_b32 v9, {VB}, v7
v_lshl_add_u32 v14, v0, 2, s25
ds_write_b32 v14, v9
s_add_u32 s20, s20, s31
{('', 's_add_u32 s22, s22, s31')[p]}
L_noc{p}:
s_cmp_lg_u32 s29, 0
s_cbranch_scc1 L_exh{p}
s_cmp_ge_u32 s24, {OPT['maxf']}
s_cbranch_scc1 L_dslp{p}
s_waitcnt lgkmcnt(0)
v_readfirstlane_b32 s25, v6
s_lshl_b32 s30, s21, 1
s_add_u32 s25, s25, {"s66" if CR else (OPT['leadk'], OPT['leadf'])[p]}
s_cmp_ge_u32 s30, s25
s_cbranch_scc1 L_dslp{p}
""" + (f"""
s_sub_u32 s30, s25, s30
s_add_u32 s30, s30, {OPT['cla']}
s_lshr_b32 s30, s30, 2
s_min_u32 s30, s30, {OPT['cl']}
s_max_u32 s30, s30, 1
""" if OPT["cl"] and p else f"""
s_sub_u32 s30, s25, s30
s_add_u32 s30, s30, {OPT['crb']}
s_lshr_b32 s30, s30, 2
s_min_u32 s30, s30, s67
s_max_u32 s30, s30, 1
s_mov_b32 s67, 1
""" if CR and OPT["crb"] else """
s_mov_b32 s30, s67
s_mov_b32 s67, 1
""" if CR else f"""
s_cmp_ge_u32 s28, {(OPT['tk2'], OPT['tf'])[p]}
s_cselect_b32 s30, {(2, 1)[p]}, {(4, 2)[p]}
""") + f"""
s_add_u32 s25, s19, s30
s_cmp_gt_u32 s25, {(OPT['cap1'], NSLOT//2)[p]}
s_cselect_b32 s29, 1, 0
s_cbranch_scc1 L_exh{p}
s_mov_b32 s19, s25
{FST1 if p and OPT["stamps"] and OPT["fine"] != 7 else ""}
s_lshl_b64 exec, 1, s26
v_mov_b32 v4, s30
buffer_atomic_add v4, v13, s[12:15], s77 offen sc0 sc1
s_lshl_b32 s25, s24, 2
s_lshl_b32 s25, s30, s25
s_or_b32 s23, s23, s25
s_add_u32 s24, s24, 1
s_add_u32 s21, s21, s30
{('', 's_add_u32 s21, s21, s30')[p]}
s_add_u32 s26, s26, 1
s_and_b32 s26, s26, 7
s_branch L_disp{p}
L_exh{p}:
s_cmp_eq_u32 s24, 0
s_cbranch_scc1 L_dexh{p}
L_dslp{p}:
s_sleep {OPT['dslp']}
s_branch L_disp{p}
L_dexh{p}:
s_mov_b64 exec, 0xff
s_lshl_b32 s25, s22, 2
s_add_u32 s25, s25, {tb}
v_lshl_add_u32 v8, v0, 2, s25
v_mov_b32 v7, {(513, 512)[p]}
ds_write_b32 v8, v7
{f"ds_write_b32 v2, v{7 if OPT['rvl'] else 2} offset:144" if (RV or OPT['we'] == 1) and p else ""}
""")
if not ONET: disp(0)
TOT = NSE + K0 + SE + NSE
if PW:
    a(f"""
s_movk_i32 s30, 300
v_lshlrev_b32 v9, 2, v0
v_cmp_eq_u32 s[60:61], s17, v0
v_mov_b32 v14, 0x7fff
L_rel:
s_mov_b64 exec, 0xff
ds_read_b32 v6, v2 offset:128
s_sub_u32 s30, s30, 1
s_waitcnt lgkmcnt(0)
v_lshrrev_b32 v6, 1, v6
v_cndmask_b32 v8, 0, v6, s[60:61]
buffer_atomic_umax v8, v9, s[12:15], s77 offen offset:128 sc0 sc1
v_readfirstlane_b32 s62, v6
s_waitcnt vmcnt(0)
v_cndmask_b32 v8, v8, v14, s[60:61]
v_min_u32_dpp v8, v8, v8 quad_perm:[1,0,3,2] row_mask:0xf bank_mask:0xf
v_min_u32_dpp v8, v8, v8 quad_perm:[2,3,0,1] row_mask:0xf bank_mask:0xf
v_min_u32_dpp v8, v8, v8 row_half_mirror row_mask:0xf bank_mask:0xf
v_readfirstlane_b32 s25, v8
s_add_u32 s25, s25, {PW}
s_cmp_ge_u32 s25, {TOT - OPT['pe']}
s_cselect_b32 s25, 255, s25
s_cmp_eq_u32 s30, 0
s_cselect_b32 s25, 255, s25
s_cselect_b32 s62, 255, s62
s_min_i32 s31, s25, {NSE + K0}
s_bfm_b64 exec, s31, 0
ds_write_b32 v64, v65
s_sub_i32 s31, s25, {NSE + K0}
s_cmp_le_i32 s31, 0
s_cbranch_scc1 L_rel2
s_min_i32 s31, s31, {SE + NSE}
s_bfm_b64 exec, s31, 0
ds_write_b32 v66, v67
s_cmp_lg_u32 s25, 255
s_cbranch_scc1 L_rel2
s_cmp_ge_u32 s62, {TOT - OPT['pe'] - PW}
s_cbranch_scc1 L_reld
L_rel2:
{f"s_sleep {OPT['pws']}" if OPT['pws'] else ""}
s_branch L_rel
L_reld:
""")
elif PD:
    RVL = f"""
s_cmp_lt_u32 s25, {OPT['rv0']}
s_cbranch_scc1 L_rv1
v_readfirstlane_b32 s31, v6
s_lshl_b32 s66, s25, 1
s_sub_i32 s31, s66, s31
s_cmp_lt_i32 s31, {2*(SE - K0 - KN) + OPT['rvl']}
s_cbranch_scc1 L_rv1
ds_write_b32 v2, v2 offset:144
L_rv1:
""" if OPT["rvl"] else ""
    FB = f"""
s_cmp_eq_u32 s65, 0
s_cbranch_scc1 L_fb1
v_readfirstlane_b32 s31, v10
s_sub_u32 s31, s31, s74
s_cmp_eq_u32 s31, -1
s_cbranch_scc1 L_fb1
s_mov_b32 s65, 0
s_cmp_gt_u32 s31, 0xfff
s_cbranch_scc1 L_fb1
s_sub_i32 s31, s31, {OPT['fbl']}
s_ashr_i32 s31, s31, {OPT['fbs']}
s_min_i32 s31, s31, {OPT['fbc']}
s_add_i32 s62, s62, s31
{"s_min_i32 s31, s31, 0" + chr(10) + f"s_mul_i32 s31, s31, {OPT['fbn']}" + chr(10) + "s_add_i32 s62, s62, s31" if OPT['fbn'] else ""}
L_fb1:
s_cmp_lt_u32 s25, s63
s_cbranch_scc1 L_fb2
s_add_u32 s63, s63, {OPT['fbp']}
v_readfirstlane_b32 s31, v6
s_lshl_b32 s66, s25, 1
s_sub_i32 s31, s66, s31
s_sub_i32 s31, s31, {2*(SE - K0)}
s_max_i32 s31, s31, 0
s_min_i32 s31, s31, {OPT['fbm']}
s_sub_u32 s66, s74, 1
v_mov_b32 v10, s66
v_mov_b32 v8, s31
buffer_load_dword v10, v13, s[12:15], s64 offen {['', '', 'sc1'][OPT['fb']]}
s_cmp_lg_u32 s64, {PAC}
s_cselect_b32 s65, 1, 0
s_add_u32 s64, s64, {PST}
s_cmp_ge_u32 s18, {OPT['fbg']}
s_cbranch_scc1 L_fb2
buffer_atomic_add v8, v13, s[12:15], s64 offen sc1
L_fb2:
""" if OPT["fb"] else ""
    ECT = f"""
s_cmp_lt_u32 s25, s67
s_cbranch_scc1 L_ec1
s_mov_b32 s67, -1
v_readfirstlane_b32 s31, v6
s_lshl_b32 s66, s25, 1
s_sub_i32 s31, s31, s66
s_add_i32 s31, s31, {2*(SE - K0 - KN) + OPT['ecb']}
s_ashr_i32 s31, s31, 2
s_min_i32 s31, s31, {OPT['ecn']}
s_cmp_le_i32 s31, 0
s_cbranch_scc1 L_ec1
v_mov_b32 v4, s31
buffer_atomic_add v4, v13, s[12:15], s77 offen sc0 sc1
s_mov_b32 s23, s31
s_mov_b32 s24, 1
s_add_u32 s19, s19, s31
s_mov_b32 s26, 1
L_ec1:
""" if OPT["ec"] else ""
    if OPT["ec"]: a(f"s_movk_i32 s67, {2*(SE+NSE) - OPT['ec']}")
    a(f"""
s_movk_i32 s30, 1000
s_movk_i32 s62, {OPT['pc']}
s_movk_i32 s63, {SE + OPT['fb0']}
s_mov_b32 s64, {PAC}
s_mov_b32 s65, 0
L_rel:
s_mov_b64 exec, 1
ds_read_b32 v6, v2 offset:128
s_memrealtime s[60:61]
s_sub_u32 s30, s30, 1
s_waitcnt lgkmcnt(0)
s_sub_u32 s25, s60, s74
s_sub_i32 s25, s25, s62
s_max_i32 s25, s25, 0
s_min_i32 s25, s25, 0x8000
{f"s_mul_i32 s31, s25, {int(655360/OPT['pdv'])}" + chr(10) + f"s_sub_i32 s31, s31, {int(OPT['pdw']*65536*(PD/OPT['pdv'] - 1))}" if OPT['pdv'] else ""}
s_mul_i32 s25, s25, {int(655360/PD)}
{"s_max_i32 s25, s25, s31" if OPT['pdv'] else ""}
s_lshr_b32 s25, s25, 16
{RVL}
{FB}
{ECT}
s_cmp_eq_u32 s30, 0
s_cselect_b32 s25, 255, s25
s_cmp_ge_u32 s25, {2*(SE+NSE) - OPT['pe']}
s_cselect_b32 s25, 255, s25
s_sub_i32 s31, s25, {SE - K0}
s_min_i32 s31, s31, {NSE + K0}
s_max_i32 s31, s31, 1
s_bfm_b64 exec, s31, 0
ds_write_b32 v64, v65
s_sub_i32 s31, s25, {SE + NSE}
s_cmp_le_i32 s31, 0
s_cbranch_scc1 L_rel2
s_min_i32 s31, s31, {SE + NSE}
s_bfm_b64 exec, s31, 0
ds_write_b32 v66, v67
s_cmp_eq_u32 s25, 255
s_cbranch_scc1 L_reld
L_rel2:
s_sleep {OPT['pslp']}
s_branch L_rel
L_reld:
""")
if OPT["dl"]: a("s_mov_b32 s67, s60")
if OPT["stamps"] and OPT["fine"] != 7: stamp(7); a(f"s_mov_b32 s96, {'s62' if PD else 's20'}\ns_mov_b32 s60, 0")
a(f"""
s_add_u32 s21, s20, {KN + (NSE + K0 if ONET else 0)}
s_mov_b32 s22, s21
{"s_add_u32 s21, s21, s23" + chr(10) + "s_add_u32 s21, s21, s23" if OPT["ec"] else ""}
s_cmp_ge_u32 s28, 512
s_cselect_b32 s29, 1, 0
""")
if CR: a(ROLE("s66") + f"\ns_cselect_b32 s66, {OPT['leadf']}, {OPT['leade']}\ns_cselect_b32 s67, {OPT['crl']}, {OPT['cre']}")
disp(1)
if OPT["stamps"] and OPT["fine"] != 7: a("s_mov_b32 s97, s20"); stamp(6)
if OPT["tcha"]: touch()
if OPT["dl"]:
    a(f"""
s_mov_b64 exec, -1
s_min_u32 s22, s18, 27
s_lshr_b32 s22, s22, 1
s_mul_i32 s25, s17, 14
s_add_u32 s22, s22, s25
s_and_b32 s23, s18, 1
s_movk_i32 s25, 3584
v_lshrrev_b32 v3, 1, v0
v_and_b32 v4, 1, v0
v_lshlrev_b32 v4, 4, v4
v_mul_lo_u32 v5, v3, s25
v_add_u32 v5, v5, v4
s_lshl_b32 s25, s22, 5
v_add_u32 v5, s25, v5
v_lshrrev_b32 v6, 3, v0
v_and_b32 v7, 7, v0
v_lshlrev_b32 v7, 4, v7
v_lshl_add_u32 v6, v6, 10, v7
s_cmp_eq_u32 s23, 0
s_cselect_b32 s68, s{P_WG}, s{P_WU}
s_cselect_b32 s69, s{P_WG+1}, s{P_WU+1}
s_mov_b32 s70, {512*1792*2}
s_mov_b32 s71, 0x00020000
s_lshl_b32 s27, s17, 7
s_mul_i32 s26, s18, {56*1024}
s_add_u32 s26, s26, s27
s_movk_i32 s30, 2000
""")
    srd(4, P_WD, 1792*512*2)
    a(f"""
L_dl:
s_memrealtime s[60:61]
s_sub_u32 s30, s30, 1
s_cbranch_scc1 L_dld
s_waitcnt lgkmcnt(0)
s_sub_u32 s60, s60, s67
s_cmp_ge_i32 s60, {OPT['dl']}
s_cbranch_scc1 L_dld
s_sleep 2
s_branch L_dl
L_dld:
s_mov_b32 s25, 0
""")
    for t in range(16):
        a(f"s_mov_b32 m0, {R1 + 1024*t}")
        if t: a(f"s_mov_b32 s25, {t*32*3584}")
        a(f"buffer_load_dwordx4 v5, s[68:71], s25 offen nt lds")
    for t in range(7):
        a(f"buffer_load_dwordx4 v[{WDV+4*t}:{WDV+4*t+3}], v6, s[4:7], s26 offen nt")
        if t < 6: a("s_add_u32 s26, s26, 8192")
    a("s_waitcnt vmcnt(0)")
hstamps(0, 9)
a("s_waitcnt lgkmcnt(0)\ns_endpgm")

a.label("L_hb")
if OPT["bprio"]: a(f"s_setprio {OPT['bprio']}")
if OPT["st"]:
    a("s_waitcnt lgkmcnt(0)")
    tl = []
    if OPT["st"] & 1: tl += [(P_WQ, 0x200000), (P_X, 0), (P_DBG, 0), (P_WS, 0xf0000), (P_WS, 0x4f8000), (P_WQ, 0)]
    if OPT["st"] & 2: tl += [(P_WD, 0), (P_GW, 0), (P_WG, 0), (P_WU, 0)]
    if OPT["st"] & 4: tl += [(P_WO, 0), (P_WO, 0x200000), (P_OUT, 0), (P_WS, 0x3f0000)]
    for n_, (p_, o_) in enumerate(tl):
        if o_: a(f"s_mov_b32 s25, {hex(o_)}\ns_load_dword s{80+n_}, s[{p_}:{p_+1}], s25")
        else: a(f"s_load_dword s{80+n_}, s[{p_}:{p_+1}], 0")
if KF_:
    a(f"""
s_mul_i32 s21, s17, {32 if OPT["fm"] else 28}
s_add_u32 s21, s21, s18
s_lshr_b32 s22, s21, 3
s_and_b32 s23, s21, 1
s_bfe_u32 s24, s21, 0x20001
s_mul_i32 s25, s24, {128*3584}
s_lshl_b32 s27, s22, 7
s_add_u32 s25, s25, s27
v_lshrrev_b32 v6, 3, v0
v_and_b32 v7, 7, v0
v_lshlrev_b32 v7, 4, v7
v_mul_u32_u24 v5, 3584, v6
v_add3_u32 v5, v5, s25, v7
s_waitcnt lgkmcnt(0)
s_cmp_eq_u32 s23, 0
s_cselect_b32 s68, s{P_WG}, s{P_WU}
s_cselect_b32 s69, s{P_WG+1}, s{P_WU+1}
s_mov_b32 s70, {512*1792*2}
s_mov_b32 s71, 0x00020000
""")
    def tile_ld():
        a(f"s_cmp_ge_u32 {'s17, 7' if OPT['fm'] else 's18, 28'}\ns_cbranch_scc1 L_notile")
        for t in range(16):
            a(f"s_mov_b32 s27, {t*8*3584}\nbuffer_load_dwordx4 v[{XF+4*t}:{XF+4*t+3}], v5, s[68:71], s27 offen nt")
        a.label("L_notile")
    if OPT["bt"] == 0: tile_ld()
    a(f"""
v_lshl_add_u32 v6, v6, 10, v7
v_lshlrev_b32 v3, 4, v0
""")
elif HR:
    a(f"""
v_lshrrev_b32 v6, 3, v0
v_and_b32 v7, 7, v0
v_lshlrev_b32 v7, 4, v7
v_lshl_add_u32 v6, v6, 10, v7
v_lshlrev_b32 v3, 4, v0
""")
elif GU:
    a(f"""
s_sub_u32 s23, s17, s18
s_and_b32 s24, s23, 3
s_bfe_u32 s23, s23, 0x10002
s_cmp_ge_u32 s18, 28
s_cselect_b32 s24, 1, s24
s_lshl_b32 s22, s18, 2
v_lshrrev_b32 v6, 3, v0
v_and_b32 v7, 7, v0
v_lshlrev_b32 v7, 4, v7
v_mul_u32_u24 v5, 3584, v6
s_lshl_b32 s25, s18, 7
v_add3_u32 v5, v5, s25, v7
v_lshl_add_u32 v6, v6, 10, v7
v_lshlrev_b32 v3, 4, v0
""")
else:
    a(f"""
s_min_u32 s22, s18, 27
s_and_b32 s25, s17, 3
s_mul_i32 s25, s25, 28
s_add_u32 s22, s22, s25
s_lshr_b32 s23, s17, 2
""" if L2P & 6 else f"""
s_min_u32 s22, s18, 27
s_lshr_b32 s22, s22, 1
s_mul_i32 s25, s17, 14
s_add_u32 s22, s22, s25
s_and_b32 s23, s18, 1
""")
    if L2P & 2:
        a(f"""
s_lshr_b32 s25, s22, 2
s_lshl_b32 s25, s25, 7
s_and_b32 s26, s22, 3
s_mul_i32 s26, s26, {128*3584}
s_add_u32 s25, s25, s26
v_mul_u32_u24 v5, 3584, v0
v_add_u32 v5, s25, v5
s_waitcnt lgkmcnt(0)
s_cmp_eq_u32 s23, 0
s_cselect_b32 s68, s{P_WG}, s{P_WU}
s_cselect_b32 s69, s{P_WG+1}, s{P_WU+1}
s_mov_b32 s70, {512*1792*2}
s_mov_b32 s71, 0x00020000
s_cmp_ge_u32 s18, 28
s_cbranch_scc1 L_notouch
""")
        touch_tile(5, 68, 3584, 96)
        a.label("L_notouch")
    a(f"""
s_movk_i32 s25, 3584
v_mul_lo_u32 v5, v3, s25
v_add_u32 v5, v5, v4
s_lshl_b32 s25, s22, 5
v_add_u32 v5, s25, v5
v_lshrrev_b32 v6, 3, v0
v_and_b32 v7, 7, v0
v_lshlrev_b32 v7, 4, v7
v_lshl_add_u32 v6, v6, 10, v7
v_lshlrev_b32 v3, 4, v0
""")
if OPT["fk"]:
    a(f"""
s_lshr_b32 s23, s17, 2
s_and_b32 s25, s17, 3
s_mul_i32 s25, s25, {128*3584}
s_min_u32 s24, s18, 27
s_lshl_b32 s24, s24, 7
s_add_u32 s25, s25, s24
v_lshrrev_b32 v5, 3, v0
v_mul_u32_u24 v5, 3584, v5
v_add3_u32 v5, v5, s25, v7
""" if OPT["fk"] & 4 == 0 else f"""
s_and_b32 s23, s18, 1
s_bfe_u32 s25, s18, 0x20001
s_mul_i32 s25, s25, {128*3584}
s_lshr_b32 s24, s18, 3
s_lshl_b32 s27, s17, 2
s_add_u32 s24, s24, s27
s_min_u32 s24, s24, 27
s_lshl_b32 s24, s24, 7
s_add_u32 s25, s25, s24
v_lshrrev_b32 v5, 3, v0
v_mul_u32_u24 v5, 3584, v5
v_add3_u32 v5, v5, s25, v7
""")
frag_addr(7 if KF_ else 5)
a(f"""
v_mov_b32 v92, 0
v_mov_b32 v93, 0
v_mov_b32 v94, 0
v_mov_b32 v95, 0
v_add_u32 v1, {WD_LDS}, v3
{"" if XL else "ds_write_b128 v1, v[92:95] offset:7168"}
v_mov_b32 v15, {MISC}
""" + (f"""
v_mov_b32 v16, -1
v_mov_b32 v17, -1
v_lshlrev_b32 v18, 3, v0
ds_write_b64 v18, v[16:17] offset:{MLT & 0xffff}
""" if False else f"""
v_mov_b32 v16, -1
v_mov_b32 v17, -1
v_lshl_add_u32 v98, v0, 3, v15
ds_write_b64 v98, v[16:17] offset:{MLT - MISC}
""" if BW else "") + f"""
s_waitcnt lgkmcnt(0)
""")
srd(64, P_X, 8192); srd(12, P_WS, WS_BYTES); srd(4, P_WD, 1792*512*2); srd(8, P_GW, 1024); srd(60, P_WO, 4096*512*2)
if not KF_ and not HR: a(f"""
s_cmp_eq_u32 s23, 0
s_cselect_b32 s68, s{P_WG}, s{P_WU}
s_cselect_b32 s69, s{P_WG+1}, s{P_WU+1}
s_mov_b32 s70, {512*1792*2}
s_mov_b32 s71, 0x00020000
""")
a(f"""
{"s_and_b32 s23, s18, 1" if OPT["fk"] else ""}
s_lshl_b32 s27, s17, 7
s_mul_i32 s26, s18, {56*1024}
s_add_u32 s26, s26, s27
s_and_b32 s25, s18, 1
s_lshl_b32 s25, s25, 12
v_lshrrev_b32 v12, 2, v0
v_lshlrev_b32 v12, 6, v12
v_and_b32 v7, 3, v0
v_lshl_add_u32 v7, v7, 10, v12
""")
def touch0():
    a(f"""
v_lshlrev_b32 v92, 7, v0
s_lshl_b32 s28, s17, 17
s_lshr_b32 s29, s18, 1
s_lshl_b32 s29, s29, 13
s_add_u32 s28, s28, s29
s_and_b32 s29, s18, 1
s_lshl_b32 s29, s29, {11 if OPT["tc0"] == 1 else 12}
s_add_u32 s28, s28, s29
s_add_u32 s28, s28, {CPA}
s_mov_b64 exec, {"0xffff" if OPT["tc0"] == 1 else "0xffffffff"}
buffer_load_dword v93, v92, s[12:15], s28 offen {['', 'sc1', 'nt'][OPT['tpol']]}
s_mov_b64 exec, -1
""")
if OPT["tc0"] and not OPT["tcd"]: touch0()
def fk_ld():
    for t in range(16):
        a(f"s_mov_b32 s24, {t*8*3584}\nbuffer_load_dwordx4 v[{XF+4*t}:{XF+4*t+3}], v5, s[68:71], s24 offen nt")
if OPT["fk"] & 3 == 2: fk_ld()
a("s_barrier")
backoff(OPT["bd0"])
if OPT["fk"] & 3 == 3: fk_ld()
XB2 = 64
if KF_:
    if OPT["bt"] == 1: tile_ld()
    a("s_lshl_b32 s27, s24, 8")
    for s_ in range(4):
        a(f"buffer_load_dwordx4 v[{XB2+4*s_}:{XB2+4*s_+3}], v2, s[64:67], s27 offen offset:{64*s_}")
if GU and not XL: a("s_cmp_lg_u32 s24, 0\ns_cbranch_scc1 L_nxb")
for s_ in range(0 if RM & 4 or XL or KF_ else 16):
    a(f"buffer_load_dwordx4 v[{XF+4*s_}:{XF+4*s_+3}], v2, s[64:67], 0 offen offset:{64*s_}")
    if s_ % 4 == 3: backoff(OPT["bs0"])
if GU and not XL: a.label("L_nxb")
LATE = OPT["late"]
if LATE & 2: a("s_mov_b32 s72, s26")
for t in range(0 if LATE & 2 or OPT["skip"] & 2 or RM & 8 else 7):
    if KF_: a(f"s_mov_b32 m0, {WD_LDS + 1024*t}\ns_nop 0\nbuffer_load_dwordx4 v6, s[4:7], s26 offen nt lds")
    else: a(f"buffer_load_dwordx4 v[{WDV+4*t}:{WDV+4*t+3}], v6, s[4:7], s26 offen nt")
    if t < 6: a("s_add_u32 s26, s26, 8192")
    if t % 4 == 3: backoff(OPT["bs0"])
a(f"""
s_mov_b32 s76, {SPIN*16}
""")
for k in range(0 if RM & 8 else 4):
    if not XL: a(f"buffer_load_dwordx4 v[{GX+4*k}:{GX+4*k+3}], v7, s[64:67], s25 offen offset:{16*k}")
    a(f"buffer_load_dwordx4 v[{GW+4*k}:{GW+4*k+3}], v12, s[8:11], 0 offen offset:{16*k}")
a.label("L_r1w")
a(f"""
ds_read_b32 v8, v15 offset:136
s_waitcnt lgkmcnt(0)
v_cmp_eq_u32 vcc, 0, v8
""")
spin_tail("L_r1w", "L_r1done", sleep=2)
stamp(1)
a(f"ds_read_b32 v{VN}, v15 offset:96")
if XL:
    a(f"""
v_add_u32 v7, s25, v7
v_lshrrev_b32 v8, 6, v7
v_and_b32 v8, 0x70, v8
v_xor_b32 v7, v7, v8
""")
    for k in range(4):
        a(f"v_xor_b32 v8, {16*k}, v7\nv_add_u32 v8, {WD_LDS}, v8\nds_read_b128 v[{GX+4*k}:{GX+4*k+3}], v8")
    if not HR: x_frag(52, 53)
def gwait(n, ticks):
    a(f"""
s_movk_i32 s31, 3000
L_gw{n}:
s_memrealtime s[78:79]
s_sub_u32 s31, s31, 1
s_cbranch_scc1 L_gwd{n}
s_waitcnt lgkmcnt(0)
s_sub_u32 s78, s78, s74
s_cmp_ge_i32 s78, {ticks}
s_cbranch_scc1 L_gwd{n}
s_sleep 1
s_branch L_gw{n}
L_gwd{n}:
""")
def gu_dma(r):
    if OPT["gt"]: gwait(r, OPT["gt"] + r*OPT["gp"])
    for t in range(16):
        a(f"s_mov_b32 m0, {R1 + 1024*t}\ns_mov_b32 s25, {(128*r + 8*t)*3584}\nbuffer_load_dwordx4 v5, s[68:71], s25 offen {'nt ' if OPT['ffnt'] else ''}lds")
        if t < 15: backoff(OPT["gsl"])
def hg_addr(d, ct):
    a(f"""
s_lshl_b32 s25, s22, 2
s_add_u32 s25, s25, {4*ct}
v_add_u32 v{d}, s25, v{CP+2 if OPT["coal"] else 11}
s_movk_i32 s25, 4682
v_mul_u32_u24 v14, s25, v{d}
v_lshrrev_b32 v14, 16, v14
v_mul_u32_u24 v12, 14, v14
v_sub_u32 v{d}, v{d}, v12
v_lshlrev_b32 v{d}, 4, v{d}
v_lshl_add_u32 v{d}, v14, 12, v{d}
v_lshl_add_u32 v{d}, v{CP+1 if OPT["coal"] else 10}, 8, v{d}
""")
if KF_:
    a(f"v_add_u32 v1, {R1}, v3\ns_waitcnt vmcnt(19)")
    for t in range(16): a(f"ds_write_b128 v1, v[{XF+4*t}:{XF+4*t+3}] offset:{1024*t}")
elif not GU and not HR:
    if OPT["gt"]:
        a(f"s_waitcnt lgkmcnt(0)\nv_readfirstlane_b32 s74, v{VN}")
        gwait(0, OPT["gt"])
    a("s_mov_b32 s25, 0")
    if L2P & 6: a("s_waitcnt vmcnt(0)\ns_cmp_ge_u32 s18, 28\ns_cbranch_scc1 L_nosl")
    for t in range(0 if RM & 16 else 16):
        a(f"s_mov_b32 m0, {R1 + 1024*t}")
        if OPT["fk"] & 2: continue
        if t and not OPT["skip"] & 4: a(f"s_mov_b32 s25, {t*(8 if OPT['fk'] else 32)*3584}")
        a(f"buffer_load_dwordx4 v5, s[68:71], s25 offen {'nt ' if OPT['ffnt'] else ''}lds")
        if t < 15: backoff(OPT["bs1"])
    if L2P & 6: a.label("L_nosl")
    if HL: a(f"s_lshl_b32 s25, s22, 9\nv_add_u32 v13, s25, v3")
    else: hg_addr(13, 0)
a(f"""
{"" if HR else f"s_lshl_b32 s25, s23, {16 if HL else 11}"}
{"" if HR else f"s_add_u32 s25, s25, {HG}"}
s_waitcnt vmcnt({0 if GU or KF_ or HR else 16}) lgkmcnt(0)
v_readfirstlane_b32 s74, v{VN}
v_mov_b32 v57, v{VN}
v_mov_b32 v59, v{VN}
""")
for t in range(0 if LATE & 2 or KF_ else 7): a(f"ds_write_b128 v1, v[{WDV+4*t}:{WDV+4*t+3}] offset:{1024*t}")
if XL: a("ds_write_b128 v1, v[92:95] offset:7168")
for k in range(16):
    a(f"""
v_lshlrev_b32 v48, 16, v{GX+k}
v_and_b32 v49, 0xffff0000, v{GX+k}
v_lshlrev_b32 v50, 16, v{GW+k}
v_and_b32 v51, 0xffff0000, v{GW+k}
v_mul_f32 v48, v48, v50
v_mul_f32 v49, v49, v51
v_cvt_pk_bf16_f32 v48, v48, v49
v_and_b32 v49, 0xffff0000, v48
v_lshlrev_b32 v48, 16, v48
""")
    if k == 0: a("v_add_f32 v52, v48, v49")
    else: a("v_add_f32 v48, v48, v49\nv_add_f32 v52, v52, v48")
a("v_mov_b32 v24, v52")
xsum([24], [25], (8, 4))
a(f"""
v_cvt_pk_bf16_f32 v24, v24, v24
v_lshlrev_b32 v24, 16, v24
v_mul_f32 v24, {f32(-LOG2E)}, v24
v_exp_f32 v24, v24
v_add_f32 v24, 1.0, v24
v_rcp_f32 v24, v24
v_cvt_pk_bf16_f32 v24, v24, v24
v_lshlrev_b32 v{GG}, 16, v24
v_sub_f32 v25, 1.0, v{GG}
v_cvt_pk_bf16_f32 v25, v25, v25
v_lshlrev_b32 v{GG+1}, 16, v25
s_lshl_b32 s26, s18, 17
s_lshl_b32 s27, s17, 7
s_add_u32 s26, s26, s27
s_waitcnt vmcnt(0)
""")
def geglu(g_, u_, d_, t):
    a(f"""
v_lshlrev_b32 v{t}, 16, v{g_}
v_and_b32 v{t+1}, 0xffff0000, v{g_}
v_lshlrev_b32 v{t+2}, 16, v{u_}
v_and_b32 v{t+3}, 0xffff0000, v{u_}
v_mul_f32 v{t+4}, v{t}, v{t}
v_mul_f32 v{t+5}, v{t+1}, v{t+1}
v_mul_f32 v{t+4}, v{t+4}, v{t}
v_mul_f32 v{t+5}, v{t+5}, v{t+1}
v_fma_f32 v{t+4}, v{t+4}, s25, v{t}
v_fma_f32 v{t+5}, v{t+5}, s25, v{t+1}
v_mul_f32 v{t+4}, s26, v{t+4}
v_mul_f32 v{t+5}, s26, v{t+5}
v_exp_f32 v{t+4}, v{t+4}
v_exp_f32 v{t+5}, v{t+5}
v_add_f32 v{t+4}, 1.0, v{t+4}
v_add_f32 v{t+5}, 1.0, v{t+5}
v_rcp_f32 v{t+4}, v{t+4}
v_rcp_f32 v{t+5}, v{t+5}
v_mul_f32 v{t+4}, v{t+4}, v{t}
v_mul_f32 v{t+5}, v{t+5}, v{t+1}
v_cvt_pk_bf16_f32 v{t+4}, v{t+4}, v{t+5}
v_and_b32 v{t+5}, 0xffff0000, v{t+4}
v_lshlrev_b32 v{t+4}, 16, v{t+4}
v_mul_f32 v{t+4}, v{t+4}, v{t+2}
v_mul_f32 v{t+5}, v{t+5}, v{t+3}
v_cvt_pk_bf16_f32 v{d_}, v{t+4}, v{t+5}
""")
D1 = 52
def hpub(D, va):
    a(f"""
v_cvt_pk_bf16_f32 v56, v{D}, v{D+1}
v_cvt_pk_bf16_f32 v58, v{D+2}, v{D+3}
""")
    if not GU: a("s_cmp_ge_u32 s18, 28\ns_cbranch_scc1 L_nohpub")
    if OPT["coal"]:
        a(f"""
ds_bpermute_b32 v56, v{CP}, v56
ds_bpermute_b32 v58, v{CP}, v58
s_mov_b32 exec_hi, 0
s_waitcnt lgkmcnt(0)
""")
    else:
        a("s_mov_b64 exec, s[58:59]")
    a(f"""
buffer_store_dwordx4 v[56:59], v{va}, s[12:15], s30 offen sc1
s_mov_b64 exec, -1
""")
a("s_mov_b32 s30, s25")
if KF_:
    DG = 80; PP = 16
    tag_consts(SEL)
    a(f"""
s_cmp_ge_u32 {'s17, 7' if OPT['fm'] else 's18, 28'}
s_cbranch_scc1 L_nohpub
""")
    gemv128(9, DG, XB2)
    a(f"""
v_and_b32 v12, 1, v11
v_lshl_add_u32 v12, v12, 3, v10
v_lshlrev_b32 v12, 4, v12
v_lshrrev_b32 v13, 1, v11
v_lshl_add_u32 v13, v13, 11, v12
s_lshl_b32 s28, s22, 14
s_lshl_b32 s29, s23, 10
s_add_u32 s28, s28, s29
s_lshl_b32 s29, s24, 8
s_add_u32 s28, s28, s29
s_add_u32 s28, s28, {FP}
s_lshl_b32 s29, s21, 11
s_add_u32 s29, s29, {FP}
""")
    if OPT["kpl"]:
        a(f"""
v_and_b32 v12, 7, v10
v_lshl_add_u32 v12, v11, 3, v12
v_lshlrev_b32 v12, 4, v12
v_lshrrev_b32 v13, 3, v10
v_lshl_add_u32 v13, v13, 9, v12
""")
        pstore(DG, VN, 13, "s29", '' if OPT['kl2'] & 2 else 'sc1')
        a(f"""
s_lshl_b32 s29, s22, 14
s_and_b32 s28, s21, 7
s_lshl_b32 s28, s28, 8
s_add_u32 s29, s29, s28
s_add_u32 s29, s29, {FP}
v_lshlrev_b32 v4, 4, v10
v_lshl_add_u32 v4, v11, 12, v4
""")
    else: a("s_mov_b64 exec, s[58:59]")
    for ct in range(0 if OPT["kpl"] else 4):
        tag_ins(DG + 4*ct, VN, SEL)
        a(f"buffer_store_dwordx4 v[{DG+4*ct}:{DG+4*ct+3}], v13, s[12:15], s28 offen {'' if OPT['kl2'] & 2 else 'sc1'}")
        if ct < 3: a("s_add_u32 s28, s28, 4096")
    a(f"""
s_mov_b64 exec, -1
s_mul_i32 s28, s21, 9363
s_lshr_b32 s28, s28, 16
s_mul_i32 s30, s28, 7
s_sub_u32 s30, s21, s30
s_lshl_b32 s30, s30, 5
s_lshl_b32 s28, s28, 12
s_add_u32 s30, s30, s28
s_add_u32 s30, s30, {HG}
v_and_b32 v12, 7, v0
v_bfe_u32 v13, v0, 3, 1
v_lshlrev_b32 v13, 4, v13
v_lshl_add_u32 v13, v12, 8, v13
{f"s_lshl_b32 s30, s21, 8" + chr(10) + f"s_add_u32 s30, s30, {HG}" + chr(10) + "v_mov_b32 v13, v3" if HL else ""}
s_mov_b32 s72, s26
s_mov_b32 s25, {f32(0.044715)}
s_mov_b32 s26, {f32(-2.0*0.7978845608028654*LOG2E)}
""")
    if OPT["kpl"]: ppoll("L_f1p", PP, 4, "s29", VN, 48, OPT["f1d"], OPT["f1s"], None, 2048)
    else: ppoll("L_f1p", PP, 3, "s29", VN, 48, OPT["f1d"], OPT["f1s"])
    xsum(list(range(PP, PP+8)), list(range(PP+8, PP+16)), ())
    for k in range(4): a(f"v_cvt_pk_bf16_f32 v{PP+8+k}, v{PP+2*k}, v{PP+2*k+1}")
    geglu(PP+8, PP+10, 56, 48)
    geglu(PP+9, PP+11, 58, 48)
    a(f"""
s_mov_b64 exec, 0xffff
buffer_store_dwordx4 v[56:59], v13, s[12:15], s30 offen sc1
s_mov_b64 exec, -1
s_mov_b32 s26, s72
""")
elif GU:
    DG = 64
    a(f"""
s_cmp_lg_u32 s24, 0
s_cbranch_scc1 L_nohpub
v_lshrrev_b32 v8, 2, v10
v_lshl_add_u32 v8, v11, 3, v8
v_lshlrev_b32 v9, 7, v8
v_and_b32 v8, 3, v0
v_lshl_add_u32 v9, v8, 3, v9
v_add_u32 v9, {R1}, v9
""")
    backoff(OPT["gd"])
    for r in range(4):
        gu_dma(r)
        if r == 0:
            for ct in range(4): hg_addr(80 + ct, ct)
        for s_ in range(4):
            a(f"s_waitcnt vmcnt({12 - 4*s_})")
            for ct in range(4):
                q_ = AFR + 16*(s_ & 1) + 4*ct
                a(f"ds_read_b64_tr_b16 v[{q_}:{q_+1}], v9 offset:{s_*4096+ct*32}\nds_read_b64_tr_b16 v[{q_+2}:{q_+3}], v9 offset:{s_*4096+ct*32+512}")
            for ct in range(4):
                q_ = AFR + 16*(s_ & 1) + 4*ct; t = 4*r + s_; d = DG + 4*ct
                a(f"s_waitcnt lgkmcnt({6 - 2*ct})\nv_mfma_f32_16x16x32_bf16 v[{d}:{d+3}], v[{q_}:{q_+3}], v[{XF+4*t}:{XF+4*t+3}], {'0' if t == 0 else f'v[{d}:{d+3}]'}")
        if r < 3: backoff(OPT["gr"])
    for ct in range(4):
        hpub(DG + 4*ct, 80 + ct)
        if ct < 3: a("s_nop 4")
elif not HR:
    gemv(9, D1)
    hpub(D1, 13)
a.label("L_nohpub")
if OPT["xm"]:
    a(f"""
s_getreg_b32 s31, hwreg(HW_REG_XCC_ID, 0, 4)
s_xor_b32 s31, s31, s74
s_lshl_b32 s29, s17, 8
s_add_u32 s29, s29, {XID}
s_lshl_b32 s27, s18, 3
s_add_u32 s27, s27, s29
v_mov_b32 v{VN+1}, s31
v_lshlrev_b32 v66, 3, v0
v_and_b32 v66, 0xff, v66
s_mov_b64 exec, 1
{"" if RM & 256 else f"buffer_store_dwordx2 v[{VN}:{VN+1}], v66, s[12:15], s27 offen sc1"}
s_mov_b64 exec, -1
""")
stamp(2)
if OPT["tc0"] and OPT["tcd"] == 1:
    a("s_mov_b32 s30, s29"); touch0(); a("s_mov_b32 s29, s30")
def wo_dma(sr, t0=0, t1=16):
    if CR and t1 == 16: t1 = 32
    if OPT["ww"] == 2 and t1 > t0: a("v_lshrrev_b32 v38, 1, v0\nv_and_b32 v39, 1, v0\nv_lshlrev_b32 v39, 6, v39\nv_lshl_add_u32 v38, v38, 10, v39")
    for t in range(t0, 0 if OPT["skip"] & 1 else t1):
        a(f"s_mov_b32 m0, {(TB if CR else WO_LDS) + 1024*t}\ns_nop 0\nbuffer_load_dwordx4 v6, s[60:63], {sr} offen {['', 'nt '][OPT['wpo']]}lds")
        if OPT["ww"] == 1: a(f"s_xor_b32 s27, {sr}, 128\nbuffer_load_dwordx4 v[{40+4*t}:{43+4*t}], v6, s[60:63], s27 offen {['', 'nt'][OPT['wpn']]}")
        if OPT["ww"] == 2 and t % 4 == 0: a(f"s_xor_b32 s27, {sr}, 128\nbuffer_load_dword v{40+t}, v38, s[60:63], s27 offen {['', 'nt'][OPT['wpn']]}")
        if t < (31 if CR else 15): a(f"s_add_u32 {sr}, {sr}, 8192")
if LATE & 1: a("s_andn2_b32 s73, s26, 0x20000" if CR else "s_mov_b32 s73, s26")
else: wo_dma("s26")
HB = 16; UB = 32
tag_consts(SEL)
a(f"""
""" + (f"""
s_mul_i32 s30, s18, 1792
s_add_u32 s30, s30, {HG}
v_lshlrev_b32 v1, 4, v10
v_lshl_add_u32 v1, v11, 8, v1
""" if HL and KF_ else f"""
s_mov_b32 s30, {HG}
s_mov_b32 s27, {HG + 65536}
s_mul_i32 s25, s18, 7
v_add_u32 v1, s25, v11
v_lshrrev_b32 v2, {2 if HR else 1}, v1
v_and_b32 v1, {3 if HR else 1}, v1
v_lshlrev_b32 v1, 5, v1
v_lshl_add_u32 v1, v2, {10 if HR else 9}, v1
v_lshl_add_u32 v1, v10, {7 if HR else 6}, v1
""" if HL else f"""
s_lshl_b32 s30, s18, 12
s_add_u32 s30, s30, {HG}
v_lshlrev_b32 v1, 5, v11
v_lshl_add_u32 v1, v10, 8, v1
""") + f"""
v_mov_b32 v4, 0x7ff00000
v_cmp_gt_u32 vcc, 3, v11
s_and_b64 s[66:67], s[58:59], vcc
v_cndmask_b32 v2, v4, v1, s[66:67]
v_cndmask_b32 v1, v4, v1, s[58:59]
v_lshlrev_b32 v14, 4, v10
v_lshl_add_u32 v14, v11, 7, v14
v_add_u32 v14, {WD_LDS}, v14
s_mov_b32 s76, {SPIN}
""")
backoff(OPT["hd"])
a.label("L_hpoll")
if RM & 64: a("s_mov_b32 s28, 1\ns_branch L_hdone2")
for B_, o_ in ((HB, 0),) if KF_ or OPT['hp'] & 2 else ((HB, 0), (UB, 2048)):
    if HL and KF_: a(f"""
buffer_load_dwordx4 v[{B_}:{B_+3}], v1, s[12:15], s30 offen sc1
buffer_load_dwordx4 v[{B_+4}:{B_+7}], v1, s[12:15], s30 offen offset:128 sc1
buffer_load_dwordx4 v[{B_+8}:{B_+11}], v2, s[12:15], s30 offen offset:1024 sc1
buffer_load_dwordx4 v[{B_+12}:{B_+15}], v2, s[12:15], s30 offen offset:1152 sc1
""")
    elif HL: a(f"""
buffer_load_dwordx4 v[{B_}:{B_+3}], v1, s[12:15], {'s27' if o_ else 's30'} offen sc1
buffer_load_dwordx4 v[{B_+4}:{B_+7}], v1, s[12:15], {'s27' if o_ else 's30'} offen offset:16 sc1
buffer_load_dwordx4 v[{B_+8}:{B_+11}], v2, s[12:15], {'s27' if o_ else 's30'} offen offset:1024 sc1
buffer_load_dwordx4 v[{B_+12}:{B_+15}], v2, s[12:15], {'s27' if o_ else 's30'} offen offset:1040 sc1
""")
    else: a(f"""
buffer_load_dwordx4 v[{B_}:{B_+3}], v1, s[12:15], s30 offen offset:{o_} sc1
buffer_load_dwordx4 v[{B_+4}:{B_+7}], v1, s[12:15], s30 offen offset:{o_+16} sc1
buffer_load_dwordx4 v[{B_+8}:{B_+11}], v2, s[12:15], s30 offen offset:{o_+128} sc1
buffer_load_dwordx4 v[{B_+12}:{B_+15}], v2, s[12:15], s30 offen offset:{o_+144} sc1
""")
if RM & 256: a("v_mov_b32 v64, s74\nv_mov_b32 v65, s31")
elif OPT["xm"]: a("buffer_load_dwordx2 v[64:65], v66, s[12:15], s29 offen sc1")
a("s_waitcnt vmcnt(0)")
any_eq([HB+1, HB+3, HB+5, HB+7] + ([] if KF_ or OPT['hp'] & 2 else [UB+1, UB+3, UB+5, UB+7]), "s74", neg=True)
a("s_and_b64 s[64:65], vcc, s[58:59]")
if OPT["xm"]: a("v_cmp_ne_u32 vcc, s74, v64\ns_or_b64 s[64:65], s[64:65], vcc\nv_xor_b32 v67, s74, v65\nv_cmp_lt_u32 vcc, 15, v67\ns_or_b64 s[64:65], s[64:65], vcc")
any_eq([HB+9, HB+11, HB+13, HB+15] + ([] if KF_ or OPT['hp'] & 2 else [UB+9, UB+11, UB+13, UB+15]), "s74", neg=True)
a("s_and_b64 vcc, vcc, s[66:67]\ns_or_b64 vcc, vcc, s[64:65]")
spin_tail("L_hpoll", "L_hdone", sleep=OPT["hslp"])
if OPT["xm"]:
    a(f"""
v_cmp_ne_u32 vcc, s31, v65
s_cmp_eq_u64 vcc, 0
s_cselect_b32 s28, {0 if OPT["xforce"] else 1}, 0
""")
if RM & 64: a.label("L_hdone2")
stamp(3)
a(f"""
s_mov_b32 s25, {f32(0.044715)}
s_mov_b32 s26, {f32(-2.0*0.7978845608028654*LOG2E)}
v_lshrrev_b32 v1, 2, v10
v_lshl_add_u32 v1, v11, 3, v1
v_lshlrev_b32 v1, 7, v1
v_and_b32 v2, 3, v0
v_lshl_add_u32 v1, v2, 3, v1
v_add_u32 v1, {WD_LDS}, v1
""")
AF = 80
def af_rd():
    for ct in range(4):
        for s_ in range(2):
            r = AF + 8*ct + 4*s_
            a(f"ds_read_b64_tr_b16 v[{r}:{r+1}], v1 offset:{s_*4096+ct*32}")
            a(f"ds_read_b64_tr_b16 v[{r+2}:{r+3}], v1 offset:{s_*4096+ct*32+512}")
def trig_wait():
    a(f"s_mov_b32 s76, {SPIN*16}")
    a.label("L_tw")
    a(f"""
ds_read_b32 v8, v15 offset:136
s_waitcnt lgkmcnt(0)
v_cmp_ne_u32 vcc, 2, v8
""")
    spin_tail("L_tw", "L_twdone", sleep=OPT["tslp"])
    stamp(0)
if not LATE & 2: af_rd()
HF = 48
for e in range(8):
    if KF_: a(f"v_mov_b32 v{HF+e}, v{HB+2*e}")
    else: geglu(HB + 2*e, UB + 2*e, HF + e, 56)
if LATE & 2:
    trig_wait()
    for t in range(7):
        a(f"s_mov_b32 m0, {WD_LDS + 1024*t}\ns_nop 0\nbuffer_load_dwordx4 v6, s[4:7], s72 offen nt lds")
        if t < 6: a("s_add_u32 s72, s72, 8192")
    if LATE & 1: wo_dma("s73")
    a(f"s_waitcnt vmcnt({16 if LATE & 1 else 0})")
    af_rd()
a("s_waitcnt lgkmcnt(0)")
for ct in range(4):
    r = AF + 8*ct; d = 112 + 4*ct
    a(f"v_mfma_f32_16x16x32_bf16 v[{d}:{d+3}], v[{r}:{r+3}], v[{HF}:{HF+3}], 0")
    a(f"v_mfma_f32_16x16x32_bf16 v[{d}:{d+3}], v[{r+4}:{r+7}], v[{HF+4}:{HF+7}], v[{d}:{d+3}]")
for ct in range(4): tag_ins(112 + 4*ct, VN, SEL)
a("s_mov_b64 exec, s[58:59]")
for ct in range(4):
    d = 112 + 4*ct
    a(f"ds_write_b128 v14, v[{d}:{d+3}] offset:{512*ct}")
if OPT["hbn"] == 1:
    a(f"""
v_lshlrev_b32 v1, 4, v10
v_lshl_add_u32 v1, v11, 13, v1
s_lshl_b32 s25, s17, 17
s_lshl_b32 s26, s18, 7
s_add_u32 s25, s25, s26
s_add_u32 s25, s25, {CPA}
v_not_b32 v16, v{VN}
v_not_b32 v17, v{VN}
v_not_b32 v18, v{VN}
v_not_b32 v19, v{VN}
""")
    for ct in range(4):
        d = 112 + 4*ct
        a(f"s_add_u32 s26, s25, 4096\nbuffer_store_dwordx4 v[{d}:{d+3}], v1, s[12:15], s26 offen")
        if OPT["prw"]: a(f"buffer_store_dwordx4 v[16:19], v1, s[12:15], s25 offen")
        if ct < 3: a("s_add_u32 s25, s25, 32768")
a(f"""
v_lshl_add_u32 v2, v{CP+2}, 3, v15
s_mov_b64 exec, 15
ds_write_b64 v2, v[{GG}:{GG+1}] offset:64
""")
stamp(4)
if OPT["tchb"]: touch()
if OPT["xm"]:
    a(f"v_mov_b32 v8, s28\nds_write_b32 v15, v8 offset:140")
else:
    a("v_mov_b32 v8, 1\ns_waitcnt vmcnt(0) lgkmcnt(0)\nds_write_b32 v15, v8 offset:140")
if LATE == 1:
    if OPT["pt"]:
        srd(8, P_OUT, 8192)
        a(f"""
s_mov_b64 exec, 1
s_lshl_b32 s25, s17, 7
s_mov_b32 s26, 0x3f0000
v_mov_b32 v16, 0
""")
        if OPT["pt"] & 1: a("buffer_load_dword v17, v16, s[8:11], s25 offen")
        if OPT["pt"] & 2: a("buffer_load_dword v18, v16, s[12:15], s26 offen")
        if OPT["pt"] & 4: a("buffer_load_dword v19, v16, s[60:63], s73 offen nt")
    a("s_mov_b64 exec, -1")
    if OPT["pr"]:
        backoff(OPT["prd"])
        a(f"""
s_lshl_b32 s25, s20, 4
s_add_u32 s25, s25, s19
{HS("s26")}
s_lshl3_add_u32 s25, s26, s25
s_lshl_b32 s25, s25, 13
{US("s26")}
s_lshl_b32 s26, s26, 8
s_add_u32 s25, s25, s26
s_add_u32 s25, s25, {PART}
v_lshlrev_b32 v40, 4, v10
v_lshl_add_u32 v40, v11, 11, v40
v_mov_b32 v44, 0
v_mov_b32 v45, 0
v_mov_b32 v46, 0
v_mov_b32 v47, 0
{["", "buffer_load_dwordx4 v[44:47], v40, s[12:15], s25 offen sc1", "buffer_load_dwordx4 v[44:47], v40, s[12:15], s25 offen", "buffer_store_dwordx4 v[44:47], v40, s[12:15], s25 offen sc1"][OPT["pr"]]}
""")
    if OPT["dlb"]:
        a(f"""
s_lshl_b32 s27, s17, 7
s_mul_i32 s26, s18, {56*1024}
s_add_u32 s26, s26, s27
s_movk_i32 s30, 2000
L_dl:
s_memrealtime s[64:65]
s_sub_u32 s30, s30, 1
s_cbranch_scc1 L_dld
s_waitcnt lgkmcnt(0)
s_sub_u32 s64, s64, s74
s_cmp_ge_i32 s64, {OPT['dlb']}
s_cbranch_scc1 L_dld
s_sleep 4
s_branch L_dl
L_dld:
s_mov_b32 s25, 0
""")
        for t in range(16):
            a(f"s_mov_b32 m0, {R1 + 1024*t}")
            if t: a(f"s_mov_b32 s25, {t*32*3584}")
            a(f"buffer_load_dwordx4 v5, s[68:71], s25 offen nt lds")
        for t in range(7):
            a(f"buffer_load_dwordx4 v[{WDV+4*t}:{WDV+4*t+3}], v6, s[4:7], s26 offen nt")
            if t < 6: a("s_add_u32 s26, s26, 8192")
        if OPT["dlw"]: a("s_waitcnt vmcnt(0)")
    if OPT["w8"]:
        backoff(OPT["w8d"])
        a(f"""
s_lshl_b32 s25, s18, 17
s_movk_i32 s26, {OPT["w8"]}
L_w8:
""")
        for t in range(OPT["w8n"]):
            a(f"s_waitcnt vmcnt({OPT['w8n']-1})\nbuffer_load_dwordx4 v[{16+4*t}:{19+4*t}], v3, s[60:63], s25 offen {['', 'nt', 'sc1', 'sc0 sc1', 'sc1 nt'][OPT['w8p']]}\ns_add_u32 s25, s25, 1024")
            if OPT["w8s"]: a(f"s_sleep {OPT['w8s']}")
        a(f"""
s_sub_u32 s26, s26, {OPT['w8n']}
s_cmp_gt_i32 s26, 0
s_cbranch_scc1 L_w8
""")
    if BW:
        def red8b(r, op, src=None):
            for m in ("quad_perm:[1,0,3,2]", "quad_perm:[2,3,0,1]", "row_half_mirror"):
                q = r if src is None else src
                a(f"{op}_dpp v{r}, v{q}, v{q} {m} row_mask:0xf bank_mask:0xf")
                src = None
        a(f"""
v_lshl_add_u32 v20, v0, 3, v15
v_lshl_add_u32 v21, v0, 2, v15
v_lshrrev_b32 v22, 5, v0
v_bfe_u32 v23, v0, 3, 2
v_lshl_add_u32 v22, v22, 5, v23
v_mul_u32_u24 v22, {FST}, v22
s_lshl_b32 s25, s20, 4
s_add_u32 s25, s25, s19
{HS("s26") + chr(10) + "s_lshl3_add_u32 s25, s26, s25" + chr(10) + US("s26") if OP else ""}
s_mul_i32 s25, s25, {4*FST}
s_lshl_b32 s26, {"s26" if OP else "s17"}, 3
s_add_u32 s25, s25, s26
s_add_u32 s25, s25, {FG + OPT['fgo']}
s_mov_b32 s26, {f32(LOG2E)}
v_mov_b32 v31, v{VN}
""" + (f"""
v_lshrrev_b32 v36, 3, v0
v_mul_u32_u24 v36, {32*FST}, v36
v_and_b32 v37, 7, v0
v_lshl_add_u32 v36, v37, 3, v36
s_mul_i32 s28, s18, {FST}
s_add_u32 s28, s28, {FG + OPT['fgo']}
v_not_b32 v32, v{VN}
v_mov_b32 v33, 0
v_not_b32 v34, v{VN}
v_mov_b32 v35, 0
s_mov_b32 s29, {BP1}
""" if BP1 else "") + f"""
s_mov_b32 s76, {SPIN*64}
{f"s_setprio {OPT['bwp']}" if OPT['bwp'] != 3 else ""}
""")
        if 2 <= OPT["we"] <= 5:
            a(f"""
L_we:
ds_read_b32 v25, v15 offset:148
s_sub_u32 s76, s76, 1
s_cbranch_scc1 L_wed
s_waitcnt lgkmcnt(0)
v_readfirstlane_b32 s27, v25
s_cmp_ge_u32 s27, {2*(K0+KN) + OPT["we"] - 1}
s_cbranch_scc1 L_wed
s_sleep {OPT['wes']}
s_branch L_we
L_wed:
""")
            backoff(OPT["wed"])
            wo_dma("s73")
        elif OPT["we"]:
            a(f"""
L_we:
{"ds_read_b32 v25, v15 offset:144" if OPT["we"] == 1 else f"ds_read_b64 v[24:25], v20 offset:{MLT - MISC}"}
s_sub_u32 s76, s76, 1
s_cbranch_scc1 L_wed
s_waitcnt lgkmcnt(0)
v_cmp_eq_u32 vcc, {0 if OPT["we"] == 1 else -1}, v25
s_bcnt1_i32_b64 s27, vcc
s_cmp_lt_u32 s27, {OPT["we"]}
s_cbranch_scc1 L_wed
s_sleep {OPT['wes']}
s_branch L_we
L_wed:
""")
            backoff(OPT["wed"])
            wo_dma("s73")
        a(f"""
L_bw:
ds_read_b64 v[24:25], v20 offset:{MLT - MISC}
s_sub_u32 s76, s76, 1
s_cbranch_scc1 L_bwd
s_waitcnt lgkmcnt(0)
v_cmp_eq_u32 vcc, -1, v25
s_cbranch_vccz L_bwd
s_bcnt1_i32_b64 s27, vcc
""" + (f"""
s_cmp_ge_u32 s27, s29
s_cbranch_scc1 L_bw1
s_mov_b32 s29, 0
{"s_mov_b32 exec_lo, 0x0f0f0f0f" + chr(10) + "s_mov_b32 exec_hi, 0x0f0f0f0f" if OP else ""}
buffer_atomic_cmpswap_x2 v[32:35], v36, s[12:15], s28 offen sc0 sc1
{"s_mov_b64 exec, -1" if OP else ""}
L_bw1:
""" if BP1 else "") + f"""
{f"s_sleep {OPT['bwt']}" if OPT['bwt'] else ""}
s_cmp_lt_u32 s27, {OPT['bwn']}
s_cbranch_scc1 L_bw
s_sleep {OPT['bws']}
s_branch L_bw
L_bwd:
{"s_setprio 3" if OPT['bwp'] != 3 else ""}
s_waitcnt lgkmcnt(0)
""")
        red8b(26, "v_max_f32", 24)
        a(f"""
v_sub_f32 v24, v24, v26
v_mul_f32 v24, s26, v24
v_exp_f32 v24, v24
v_mul_f32 v27, v24, v25
""")
        red8b(27, "v_add_f32")
        a(f"""
v_max_f32 v27, {f32(1e-30)}, v27
v_rcp_f32 v29, v27
v_log_f32 v28, v27
v_mul_f32 v24, v24, v29
ds_write_b32 v21, v24 offset:{WTL - MISC}
v_fma_f32 v30, v26, s26, v28
v_perm_b32 v30, v30, v{VN}, s{SEL}
""")
        wo_dma("s73", 0, OPT["bwo"])
        if BP1:
            backoff(OPT["bpz"])
            a(f"v_mov_b32 v38, v32\nv_mov_b32 v39, v33\nds_write_b64 v20, v[38:39] offset:{FTL - MISC}")
        a(f"""
s_mov_b32 exec_lo, 0x01010101
s_mov_b32 exec_hi, {0 if OP else 0x01010101}
s_waitcnt lgkmcnt(0)
s_barrier
{f"s_sleep {OPT['bwd']}" if OPT['bwd'] else ""}
buffer_store_dwordx2 v[30:31], v22, s[12:15], s25 offen sc1
s_mov_b64 exec, -1
""")
        stamp(0)
        if CR: a(ROLE("s27") + "\ns_cbranch_scc1 L_nowo")
        if not OPT["we"]: backoff(OPT["wdel"] - OPT["bwd"])
    elif OPT["lb"] == 2:
        a("s_waitcnt lgkmcnt(0)\ns_barrier")
        if OPT["eb"] and not OPT["ebw"]: a("s_barrier")
        stamp(0); backoff(OPT["wdel"])
    else: trig_wait()
    def wd_late():
        a(f"""
s_lshl_b32 s27, s17, 7
s_mul_i32 s26, s18, {56*1024}
s_add_u32 s26, s26, s27
""")
        for t in range(7):
            a(f"s_mov_b32 m0, {0x1E000 + 1024*t}\ns_nop 0\nbuffer_load_dwordx4 v6, s[4:7], s26 offen nt lds")
            if t < 6: a("s_add_u32 s26, s26, 8192")
    if OPT["wl"] == 1: wd_late()
    wo_dma("s73", 16 if OPT["we"] else OPT["bwo"])
    if OPT["awp"]: a("s_waitcnt vmcnt(0)\nds_write_b32 v15, v15 offset:144")
    if CR: a.label("L_nowo")
    if OPT["wl"] == 2: wd_late()
    if OPT["lb"] == 1 or OPT["eb"] and OPT["ebw"]: a("s_barrier")
if LATE and OPT["stamps"]: a("s_waitcnt vmcnt(0)"); stamp(4)
hstamps(9, 5)
a("s_waitcnt vmcnt(0) lgkmcnt(0)\ns_endpgm")

a.label("L_stream")
KA, VA, KR, VR = 1, 5, 7, 11
M_, L_ = 20, 21
T0, T1, T2 = 22, 23, 19
Q = 24; KF = 40; S = 56; T = 60; PF = 66; SA = 68; TKA = 69; CL = 70; ZR = 71; O = 72; STG = 104; NINF = 65; FL = 64
TE = T + 2; ONE = T + 3; TA = CL
ST0 = 168 - 16*NST
X0 = KF
a(f"""
v_and_b32 v{T0}, 15, v0
v_lshrrev_b32 v{T1}, 4, v0
s_mul_i32 s24, s3, {RING}
{"s_memrealtime s[98:99]" if OPT["pp"] else ""}
""")
for i in range(4):
    a(f"""
v_add_u32 v{T2}, {4*i}, v{T1}
v_xor_b32 v{T2}, v{T2}, v{T0}
v_lshlrev_b32 v{T2}, 4, v{T2}
v_lshl_add_u32 v{KA+i}, v{T1}, 8, v{T2}
v_lshl_add_u32 v{KR+i}, v{T0}, 8, v{T2}
""")
a(f"""
{"s_lshl_b32 s30, s17, 2" if XB else "s_lshl_b32 s30, s20, 4"}
s_add_u32 s30, s30, {"s20" if XB else "s19"}
{"s_lshl_b32 s30, s30, 1" if XB else ""}
{HS("s26") + chr(10) + "s_lshl3_add_u32 s30, s26, s30" + chr(10) + US("s22") if OP else ""}
s_lshl_b32 s21, s30, 21
s_lshl_b32 s22, {"s22" if OP else MEM}, 3
s_add_u32 s22, s22, s3
s_mul_i32 s77, s20, {OPT['r2']}
{f"s_mul_i32 s26, s26, {OPT['r3']}" + chr(10) + "s_add_u32 s77, s77, s26" if OP else ""}
{f"s_mul_i32 s25, {'s17' if XB else 's19'}, {OPT['r1']}" + chr(10) + "s_add_u32 s77, s77, s25" if OPT['r1'] else ""}
s_add_u32 s22, s22, s77
s_and_b32 s26, s22, 511
{trn("s26")}
s_lshl_b32 s26, s26, 12
s_add_u32 s26, s26, s21
s_add_u32 m0, s24, 8192
s_waitcnt lgkmcnt(0)
""")
if OPT["fz"]:
    a(f"""
s_add_u32 s27, s18, s17
s_and_b32 s27, s27, 3
s_lshr_b32 s28, s18, 2
v_lshrrev_b32 v40, 3, v0
v_and_b32 v41, 7, v0
v_lshlrev_b32 v41, 4, v41
s_cmp_eq_u32 s27, 2
s_cbranch_scc1 L_fzg
s_cmp_lg_u32 s27, 0
s_cbranch_scc1 L_fzd
s_lshl_b32 s29, s17, 3
s_add_u32 s29, s29, s28
s_lshl_b32 s29, s29, 7
s_lshl_b32 s25, s3, 19
s_add_u32 s29, s29, s25
v_lshl_add_u32 v40, v40, 13, v41
s_mov_b32 s28, 65536
""")
    srd(8, P_WQ, 512*4096*2)
    a(f"""
s_branch L_fzl
L_fzg:
s_cmp_ge_u32 s28, 7
s_cbranch_scc1 L_fzd
s_and_b32 s29, s17, 3
s_mul_i32 s29, s29, 7
s_add_u32 s29, s29, s28
s_lshl_b32 s29, s29, 7
s_mul_i32 s25, s3, {64*3584}
s_add_u32 s29, s29, s25
v_mul_u32_u24 v40, 3584, v40
v_add_u32 v40, v40, v41
s_movk_i32 s28, {8*3584}
s_cmp_lt_u32 s17, 4
s_cselect_b32 s8, s{P_WG}, s{P_WU}
s_cselect_b32 s9, s{P_WG+1}, s{P_WU+1}
s_mov_b32 s10, {512*1792*2}
s_mov_b32 s11, 0x00020000
L_fzl:
""")
    for t in range(8):
        a(f"s_add_u32 m0, s24, {1024*t}\ns_nop 0\nbuffer_load_dwordx4 v40, s[8:11], s29 offen nt lds\ns_add_u32 s29, s29, s28")
    a(f"""
s_add_u32 m0, s24, 8192
L_fzd:
""")
srd(4, P_K, 128 << 20)
if OPT["fine"] in (6, 7): a("s_memrealtime s[48:49]")
nload = [0]
def wxk(k): return [0, k & 7, 2*(k & 1), (k*3) & 7, (k & 1)*2 + (k >> 1 & 1) + (k & 4)][OPT["wx"]]
def pre_load(k):
    if k:
        a(f"""
s_xor_b32 s26, s3, {wxk(k)}
s_sub_u32 s26, s26, s3
s_add_u32 s26, s26, s22
s_add_u32 s26, s26, {64*k}
""" if OPT["wx"] else f"s_add_u32 s26, s22, {8*NM*k}")
        a(f"""
s_and_b32 s26, s26, 511
{trn("s26")}
s_lshl_b32 s26, s26, 12
s_add_u32 s26, s26, s21
""")
        if k >= 8: a(f"s_add_u32 s26, s26, {1 << 24}")
    if OPT["pp"] and k >= OPT["pp0"]:
        if k == OPT["pp0"]: a(f"s_mul_i32 s99, s3, {OPT['pps']}\ns_add_u32 s98, s98, s99\ns_movk_i32 s99, 2000")
        a(f"""
L_pp{k}:
s_memrealtime s[100:101]
s_sub_u32 s99, s99, 1
s_cbranch_scc1 L_ppd{k}
s_waitcnt lgkmcnt(0)
s_sub_u32 s100, s100, s98
s_cmp_ge_i32 s100, {OPT['ppo'] + (k - OPT['pp0'] + 1)*OPT['pp']}
s_cbranch_scc1 L_ppd{k}
s_sleep 2
s_branch L_pp{k}
L_ppd{k}:
""")
    if k == 1: a("s_mov_b32 m0, s24")
    if k == 2: a("s_add_u32 m0, s24, 4096")
    for i in range(4):
        if nload[0] == NPRE:
            if OPT["fine"] in (6, 7): a("s_memrealtime s[50:51]")
            setup_rest()
            if OPT["fine"] == 6: a("s_waitcnt vmcnt(0)\ns_memrealtime s[54:55]")
            a("s_waitcnt lgkmcnt(0)\ns_barrier")
            if OPT["fine"] == 6: a("s_memrealtime s[56:57]")
            if OPT["fine"] == 7: a("s_memrealtime s[54:55]")
        if OPT["fine"] == 7 and nload[0] == 16: a("s_memrealtime s[56:57]")
        if nload[0] >= Wp: a(f"s_waitcnt vmcnt({Wp-1})")
        if LOG and nload[0] >= Wp + 3 and (nload[0] - Wp) % 4 == 3:
            pl = [62, 64, 66, 94, 98, 100][(nload[0] - Wp)//4]
            a(f"s_memrealtime s[{pl}:{pl+1}]")
        if k < 3:
            a(f"buffer_load_dwordx4 v{KA+i}, s[4:7], s26 offen offset:{i*1024} nt lds")
        else:
            r = ST0 + 16*(k-3) + 4*i
            a(f"buffer_load_dwordx4 v[{r}:{r+3}], v{KA+i}, s[4:7], s26 offen offset:{i*1024} nt")
        nload[0] += 1
def setup_rest():
    srd(8, P_V, 128 << 20)
    srd(12, P_WS, WS_BYTES)
    for e in range(2):
        a(f"""
v_lshrrev_b32 v{T2}, 1, v{T0}
v_add_u32 v{X0}, {4*e}, v{T1}
v_xor_b32 v{T2}, v{T2}, v{X0}
v_lshlrev_b32 v{T2}, 5, v{T2}
v_and_b32 v{X0}, 1, v{T0}
v_lshl_add_u32 v{T2}, v{X0}, 4, v{T2}
v_lshl_add_u32 v{VA+e}, v{T1}, 8, v{T2}
""")
    a(f"""
s_mov_b32 s79, {hex(SENT)}
v_mov_b32 v{S}, s79
v_mov_b32 v{S+1}, s79
v_mov_b32 v{S+2}, s79
v_mov_b32 v{S+3}, s79
s_mul_i32 s25, s3, {2048 if HR else NSLOT*16}
s_add_u32 s25, s25, {SB}
v_lshl_add_u32 v{T2}, v0, 4, s25
""")
    for k in range(2 if HR else NSLOT//64): a(f"ds_write_b128 v{T2}, v[{S}:{S+3}] offset:{1024*k}")
    a(f"""
v_lshrrev_b32 v{X0}, 2, v0
v_and_b32 v{X0+1}, 7, v{X0}
v_and_b32 v{X0+2}, 3, v0
v_lshlrev_b32 v{X0+2}, 3, v{X0+2}
v_lshl_add_u32 v{SA}, v{T1}, 5, v{X0+2}
v_add_u32 v{SA}, {SB}, v{SA}
v_lshl_add_u32 v{X0+2}, v{X0}, 8, v{X0+2}
""")
    for dt in range(8):
        a(f"v_xor_b32 v{X0+3}, {dt}, v{X0+1}\nv_lshl_add_u32 v{VR+dt}, v{X0+3}, 5, v{X0+2}")
    a(f"""
v_cmp_gt_u32 s[70:71], 8, v{T0}
v_mov_b32 v{M_}, {f32(-1e30)}
v_mov_b32 v{L_}, 0
v_mov_b32 v{NINF}, 0xff80ff80
v_mov_b32 v{ZR}, 0
s_mov_b32 s58, {f32(SCALE)}
s_mov_b32 s59, {f32(LOG2E)}
s_mov_b32 s31, {f32(-LOG2E)}
v_mov_b32 v{ONE}, 1
v_mov_b32 v{FL}, {TK}
v_mov_b32 v{TKA}, {TK}
s_mov_b32 s78, {T1B}
s_mov_b32 s96, 0
s_mov_b32 s60, s24
s_add_u32 s61, s24, 4096
s_add_u32 s72, s24, 8192
s_lshl_b32 s73, s3, 7
s_xor_b32 s27, s73, {1024 + 128*wxk(1)}
s_xor_b32 s28, s73, {2048 + 128*wxk(2)}
""")
    tag_consts(SEL)
    for r in range(O, min(O+32, ST0)): a(f"v_mov_b32 v{r}, 0")
    for r in range(16): a(f"v_mov_b32 v{Q+r}, 0")
for k in range(NSU): pre_load(k)
a(f"""
v_lshlrev_b32 v{T2}, 4, v{T1}
v_lshl_add_u32 v{T2}, v{T0}, 8, v{T2}
v_add_u32 v{T2}, {Q_LDS}, v{T2}
s_mov_b32 s76, {SPIN*16}
""")
a.label("L_qw")
a(f"""
ds_read_b32 v{T}, v{FL} offset:4
s_waitcnt lgkmcnt(0)
v_cmp_ne_u32 vcc, 1, v{T}
""")
spin_tail("L_qw", "L_qwdone", sleep=1)
stamp(1)
CM4 = "s_mov_b32 exec_lo, 0x000f000f\ns_mov_b32 exec_hi, 0x000f000f" if OP else "s_mov_b64 exec, s[70:71]"
a(CM4)
for j in range(4): a(f"ds_read_b128 v[{Q+4*j}:{Q+4*j+3}], v{T2} offset:{j*64}")
a("s_mov_b64 exec, -1")

nlab = [0]
def ticket_rd():
    a(f"s_mov_b64 exec, 1\nds_add_rtn_u32 v{TE}, v{TKA}, v{ONE}\ns_mov_b64 exec, -1")
def ticket_use():
    a(f"""
v_readfirstlane_b32 s25, v{TE}
s_and_b32 s75, s25, 1
s_lshr_b32 s25, s25, 1
s_lshl_b32 s25, s25, 2
s_add_u32 s25, s25, s78
v_mov_b32 v{TA}, s25
""")
def entry_rd():
    a(f"ds_read_b32 v{TE}, v{TA}")
def dmask(d):
    a(f"""
s_andn2_b32 s25, {d}, 127
v_add_u32 v{T2}, s25, v{SA}
s_and_b32 s25, {d}, 4
s_lshl_b32 s68, 0x000f000f, s25
s_mov_b32 s69, s68
""")
def kstep(sb, d, mid=None):
    for j in range(4): a(f"v_add_u32 v{KF+4*j}, {sb}, v{KR+j}\nds_read_b128 v[{KF+4*j}:{KF+4*j+3}], v{KF+4*j}")
    dmask(d)
    if mid:
        a("s_waitcnt lgkmcnt(4)"); mid()
    for j in range(4):
        c = "0" if j == 0 else f"v[{S}:{S+3}]"
        a(f"s_waitcnt lgkmcnt({3-j})")
        a(f"v_mfma_f32_16x16x32_bf16 v[{S}:{S+3}], v[{KF+4*j}:{KF+4*j+3}], v[{Q+4*j}:{Q+4*j+3}], {c}")
    for k in range(2): a(f"v_cvt_pk_bf16_f32 v{T+k}, v{S+2*k}, v{S+2*k+1}")
    for k in range(2):
        a(f"v_lshlrev_b32 v{S+2*k}, 16, v{T+k}\nv_and_b32 v{S+2*k+1}, 0xffff0000, v{T+k}")
    for k in range(4): a(f"v_mul_f32 v{S+k}, s58, v{S+k}")
    for k in range(2): a(f"v_cvt_pk_bf16_f32 v{PF+k}, v{S+2*k}, v{S+2*k+1}")
    a(f"s_mov_b64 exec, s[68:69]\nds_write_b64 v{T2}, v[{PF}:{PF+1}]\ns_mov_b64 exec, -1")
ool = []
def soft(skip=None):
    nlab[0] += 1
    n = nlab[0]
    a(f"""
L_sr{n}:
v_cmp_eq_u32 vcc, s79, v{PF}
v_cmp_eq_u32 s[74:75], s79, v{PF+1}
""" if False else f"""
L_sr{n}:
v_cmp_eq_u32 vcc, s79, v{PF}
s_cbranch_vccnz {skip or f"L_ss{n}"}
v_cmp_eq_u32 vcc, s79, v{PF+1}
s_cbranch_vccnz {skip or f"L_ss{n}"}
L_sg{n}:
v_cndmask_b32 v{T}, v{NINF}, v{PF}, s[68:69]
v_cndmask_b32 v{T+1}, v{NINF}, v{PF+1}, s[68:69]
""")
    if not skip: ool.append(f"""
L_ss{n}:
s_sub_u32 s76, s76, 1
s_cmp_le_i32 s76, 0
s_cbranch_scc1 L_sg{n}
ds_read_b64 v[{PF}:{PF+1}], v{T2}
s_waitcnt lgkmcnt(0)
s_branch L_sr{n}
""")
    for k in range(2):
        a(f"v_lshlrev_b32 v{S+2*k}, 16, v{T+k}\nv_and_b32 v{S+2*k+1}, 0xffff0000, v{T+k}")
    a(f"""
v_max3_f32 v{T}, v{S}, v{S+1}, v{S+2}
v_max3_f32 v{T}, v{T}, v{S+3}, v{M_}
v_mov_b32 v{T+1}, v{T}
v_permlane16_swap_b32 v{T}, v{T+1}
v_max_f32 v{T}, v{T}, v{T+1}
v_mov_b32 v{T+1}, v{T}
v_permlane32_swap_b32 v{T}, v{T+1}
v_max_f32 v{T}, v{T}, v{T+1}
v_cmp_gt_f32 vcc, v{T}, v{M_}
s_cbranch_vccz L_nr{n}
v_sub_f32 v{T+1}, v{M_}, v{T}
v_mul_f32 v{T+1}, s59, v{T+1}
v_exp_f32 v{T+1}, v{T+1}
v_mov_b32 v{M_}, v{T}
v_mul_f32 v{L_}, v{L_}, v{T+1}
""")
    for r in range(32): a(f"v_mul_f32 v{O+r}, v{O+r}, v{T+1}")
    a.label(f"L_nr{n}")
    a(f"v_mul_f32 v{T+1}, s31, v{M_}")
    for k in range(4): a(f"v_fma_f32 v{S+k}, v{S+k}, s59, v{T+1}")
    for k in range(4): a(f"v_exp_f32 v{S+k}, v{S+k}")
    for k in range(2): a(f"v_cvt_pk_bf16_f32 v{PF+k}, v{S+2*k}, v{S+2*k+1}")
    a(f"""
v_add_f32 v{T}, v{S}, v{S+1}
v_add_f32 v{T+1}, v{S+2}, v{S+3}
v_add_f32 v{T}, v{T}, v{T+1}
v_add_f32 v{L_}, v{L_}, v{T}
""")
def v_rd(sb):
    for dt in range(8): a(f"v_add_u32 v{KF+2*dt}, {sb}, v{VR+dt}\nds_read_b64_tr_b16 v[{KF+2*dt}:{KF+2*dt+1}], v{KF+2*dt}")
def pv(dt):
    a(f"v_mfma_f32_16x16x16_bf16 v[{O+4*dt}:{O+4*dt+3}], v[{KF+2*dt}:{KF+2*dt+1}], v[{PF}:{PF+1}], v[{O+4*dt}:{O+4*dt+3}]")
def vstep(sb, d, mid=None):
    dmask(d)
    a(f"ds_read_b64 v[{PF}:{PF+1}], v{T2}")
    v_rd(sb)
    a("s_waitcnt lgkmcnt(8)")
    if mid: mid()
    soft()
    a("s_waitcnt lgkmcnt(0)")
    for dt in range(8): pv(dt)
X = STG
VNS = X + 27; FLG = X + 26
F3ADDR = f"""
s_lshl_b32 s77, s16, 2
s_add_u32 s77, s77, {F1}
s_lshr_b32 s22, s16, {OPT['rsh']}
s_lshl_b32 s22, s22, 10
s_add_u32 s22, s22, {F1}
s_lshr_b32 s95, s3, 1
s_lshl_b32 s95, s95, 3
s_lshr_b32 s25, s16, 5
s_add_u32 s95, s95, s25
s_lshl_b32 s95, s95, 5
s_add_u32 s95, s95, s22
""" if OPT["f3"] else ""
FLIM = 1 << 20
COL = OPT["col"]
COL1 = f"""
v_lshrrev_b32 v{X+11}, 2, v{T0}
v_lshlrev_b32 v{X+11}, 12, v{X+11}
v_lshl_add_u32 v{X+25}, v{X+13}, 4, v{X+11}
v_lshl_add_u32 v{X+11}, v{T1}, 13, v{X+25}
""" if COL else f"""v_lshlrev_b32 v{X+11}, 4, v{T0}
v_lshl_add_u32 v{X+11}, v{T1}, 13, v{X+11}
"""
COL2 = "" if COL else f"""v_lshrrev_b32 v{X+25}, 3, v{T0}
v_lshlrev_b32 v{X+25}, 13, v{X+25}
v_lshl_add_u32 v{X+25}, v{X+3}, 4, v{X+25}
"""
FU = OPT["fful"]
FADDR = f"""
s_and_b32 s94, s29, 31
s_lshl_b32 s94, s94, 6
s_lshr_b32 s25, s29, 5
s_add_u32 s94, s94, s25
s_mul_i32 s94, s94, {FST}
s_lshl_b32 s25, s17, 3
s_add_u32 s94, s94, s25
s_add_u32 s94, s94, {FG}
s_andn2_b32 s95, s16, {[0, 7, 3, 1, 0][OPT['fone']]}
s_lshl_b32 s95, s95, 3
s_add_u32 s95, s95, s3
s_mul_i32 s95, s95, {FST}
s_add_u32 s95, s95, {FG}
v_mul_u32_u24 v{X+30}, {8*FST}, v0
""" if not FU else f"""
s_lshl_b32 s94, s29, 3
s_add_u32 s94, s94, s17
s_mul_i32 s94, s94, {FU}
s_add_u32 s94, s94, {FG}
s_lshl_b32 s95, s3, 5
s_add_u32 s95, s95, s18
s_mul_i32 s95, s95, {8*FU}
s_lshl_b32 s25, s17, 3
s_add_u32 s95, s95, s25
s_add_u32 s95, s95, {FG}
v_mul_u32_u24 v{X+30}, {FU}, v0
"""
FSA, FPA = (X+1, X+30) if FU else (X+30, X+1)
PH = OPT["ph"]
if PH: FPA = X + 6
PLY = OPT["ply"]
if OPT["fone"] == 4:
    FADDR = f"""
s_mul_i32 s94, s29, {FST}
s_lshl_b32 s25, {MEM}, 3
s_add_u32 s94, s94, s25
s_add_u32 s94, s94, {FG + OPT['fgo']}
s_lshl_b32 s95, s3, 5
s_add_u32 s95, s95, s18
{"s_andn2_b32 s95, s95, 1" if CR else ""}
s_mul_i32 s95, s95, {FST}
s_add_u32 s95, s95, {FG + OPT['fgo']}
v_mov_b32 v{X+30}, 0
"""
PHA = f"""v_and_b32 v{X+10}, 7, v0
v_lshl_add_u32 v{X+10}, v{X+10}, 2, v{T1}
v_lshrrev_b32 v{X+5}, 3, v{T0}
v_lshl_add_u32 v{X+10}, v{X+10}, 1, v{X+5}
v_lshlrev_b32 v{X+10}, 2, v{X+10}
v_lshlrev_b32 v{X+5}, 2, v0
v_and_b32 v{X+6}, 1, v0
v_lshl_add_u32 v{X+6}, v{X+6}, {3 if CR else 2}, v{T1}
v_lshlrev_b32 v{X+6}, 3, v{X+6}
v_and_b32 v{X+8}, 12, v{X+5}""" if PH else f"""v_bfe_u32 v{X+10}, v0, 4, 1
v_lshlrev_b32 v{X+10}, 2, v{X+10}
v_lshl_add_u32 v{X+10}, v{T0}, 4, v{X+10}
v_lshl_add_u32 v{X+10}, v{X+4}, 3, v{X+10}
v_and_b32 v{X+31}, 1, v0
v_lshlrev_b32 v{X+31}, 4, v{X+31}"""
PHB = f"""s_mov_b32 s25, 0x9e3779b1
v_mul_lo_u32 v{X+31}, v{VNS}, s25
v_lshrrev_b32 v{X+8}, v{X+8}, v{X+31}
v_lshrrev_b32 v{X+31}, v{T0}, v{X+31}""" if PH else f"v_lshrrev_b32 v{X+31}, v{X+31}, v{VNS}"
PLA = f"""s_lshr_b32 s74, s3, 1
s_lshl_b32 s74, s74, 3
s_lshr_b32 s25, s18, 2
s_add_u32 s74, s74, s25
s_lshl_b32 s74, s74, 6
s_and_b32 s25, s3, 1
s_lshl_b32 s25, s25, 2
s_add_u32 s74, s74, s25
s_and_b32 s25, s18, 3
s_add_u32 s74, s74, s25
s_lshl_b32 s74, s74, 8
s_add_u32 s74, s74, {PART}
s_add_u32 s33, s74, 8192
v_lshlrev_b32 v{X+7}, 4, v{T0}
v_lshl_add_u32 v{X+7}, v{T1}, 11, v{X+7}""" if PLY else f"""s_lshl_b32 s74, s3, 5
s_add_u32 s74, s74, s18
{"s_andn2_b32 s74, s74, 1" if CR else ""}
s_lshl_b32 s74, s74, {11 if PH else 12}
s_add_u32 s74, s74, {PART}
v_lshlrev_b32 v{X+7}, 4, v0"""
def tail_addr():
    a(f"""
v_mul_u32_u24 v{X}, {CST}, v{T0}
v_lshl_add_u32 v{X}, v{T1}, 4, v{X}
v_add_u32 v{X}, s24, v{X}
v_lshlrev_b32 v{X+1}, 3, v0
s_lshl_b32 s25, s3, 3
s_add_u32 s25, s25, {MLT}
v_lshl_add_u32 v{X+15}, v0, 6, s25
v_mov_b32 v{X+21}, {MISC}
ds_read_b32 v{VNS}, v{X+21} offset:96
s_lshr_b32 s29, s3, 2
{"" if XB else "s_lshl_b32 s29, s29, 3"}
s_add_u32 s29, s29, s30
s_lshl_b32 s29, s29, 2
s_and_b32 s25, s3, 3
s_add_u32 s29, s29, s25
s_lshl_b32 s62, {"s16" if PLY else "s29"}, {11 if PH else 12}
{US("s25") if OP else ""}
s_lshl_b32 s25, {"s25" if OP else "s3" if PLY else MEM}, {8 if PH else 9}
s_add_u32 s62, s62, s25
s_add_u32 s62, s62, {PART}
{FADDR}
v_and_b32 v{X+3}, 31, v0
v_lshrrev_b32 v{X+4}, 5, v0
v_lshlrev_b32 v{X+2}, 4, v{X+3}
{PHA}
v_mul_u32_u24 v{X+14}, {4*RING}, v{X+4}
v_add_u32 v{X+2}, v{X+14}, v{X+2}
s_mul_i32 s25, s3, {CST}
v_add_u32 v{X+2}, s25, v{X+2}
v_and_b32 v{X+3}, 7, v0
v_lshlrev_b32 v{X+4}, 2, v{X+4}
v_xor_b32 v{X+4}, v{X+4}, v{X+3}
s_lshl_b32 s25, s3, {5 if BW else 6}
s_add_u32 s25, s25, {WTL if BW else MLT}
v_lshl_add_u32 v{X+4}, v{X+4}, {2 if BW else 3}, s25
{PLA}
v_lshrrev_b32 v{X+9}, 2, v{T0}
v_lshl_add_u32 v{X+9}, v{T1}, 3, v{X+9}
v_lshlrev_b32 v{X+9}, 7, v{X+9}
v_and_b32 v{X+13}, 3, v0
v_lshl_add_u32 v{X+9}, v{X+13}, 3, v{X+9}
s_and_b32 s25, s3, 3
s_lshl_b32 s25, s25, 5
s_add_u32 s25, s25, {TB if CR else WO_LDS}
{"s_and_b32 s29, s3, 4" + chr(10) + "s_lshl_b32 s64, s29, 12" + chr(10) + "s_add_u32 s25, s25, s64" if CR else ""}
v_add_u32 v{X+9}, s25, v{X+9}
s_mul_i32 s25, s3, {OST}
s_add_u32 s25, s25, {SB if CR else O_LDS}
v_add_u32 v{X+10}, s25, v{X+10}
v_mul_u32_u24 v{X+12}, {OST}, v{T0}
v_lshl_add_u32 v{X+12}, v{T1}, 4, v{X+12}
{f"s_mul_i32 s25, s29, {2*OST}" + chr(10) + f"s_add_u32 s25, s25, {SB}" if CR else ""}
v_add_u32 v{X+12}, {"s25" if CR else O_LDS}, v{X+12}
{COL1}
v_lshl_add_u32 v{X+21}, v{X+13}, 3, v{X+21}
s_lshl_b32 s25, s3, 8
s_add_u32 s25, s25, {WD_LDS}
v_lshl_add_u32 v{X+24}, v{T0}, 4, s25
{COL2}
s_lshl_b32 s29, s17, 17
s_add_u32 s29, s29, {CPA}
s_lshl_b32 s25, s18, 7
s_add_u32 s65, s29, s25
s_lshl_b32 s25, s3, 14
s_add_u32 s67, s65, s25
s_add_u32 s67, s67, {64 if COL else 4096}
s_add_u32 s63, s67, {CPB-CPA}
{"s_andn2_b32 s65, s65, 128" + chr(10) + "s_lshl_b32 s25, s3, 5" + chr(10) + "s_and_b32 s25, s25, 128" + chr(10) + "s_add_u32 s65, s65, s25" + chr(10) + "s_and_b32 s25, s3, 3" if CR else ""}
s_lshl_b32 s25, {"s25" if CR else "s3"}, 15
s_add_u32 s65, s65, s25
s_add_u32 s64, s65, {CPB-CPA}
v_lshlrev_b32 v{X+23}, 10, v{X+13}
v_lshl_add_u32 v{X+23}, v{T1}, 1, v{X+23}
v_lshrrev_b32 v{X+14}, 2, v0
v_lshlrev_b32 v{X+14}, 7, v{X+14}
v_lshl_add_u32 v{X+13}, v{X+13}, 4, v{X+14}
s_lshr_b32 s66, s18, 1
s_lshl_b32 s99, s66, 3
s_lshl_b32 s66, s66, 13
s_add_u32 s66, s66, s29
s_and_b32 s25, s18, 1
s_lshl_b32 s29, s25, {12 if COL else 6}
s_add_u32 s66, s66, s29
s_add_u32 s98, s66, {64 if COL else 4096 if OPT["bpa"] else 4096 + CPB - CPA}
s_lshl_b32 s25, s25, 12
s_add_u32 s99, s99, s25
s_lshl_b32 s25, s17, 7
s_add_u32 s99, s99, s25
s_waitcnt lgkmcnt(0)
{PHB}
""")
EF = OPT["ef"]; KL = OPT["kl"]
if KL:
    a(f"""
s_mov_b64 exec, 1
ds_add_rtn_u32 v{TE}, v{FL}, v{ONE} offset:16
s_mov_b64 exec, -1
s_waitcnt lgkmcnt(0)
v_readfirstlane_b32 s23, v{TE}
s_cmp_ge_u32 s23, {8 - KL}
s_cselect_b32 s25, 20, 0
v_add_u32 v{TKA}, s25, v{FL}
""")
a(f"s_mov_b32 s76, {SPIN*64}\ns_waitcnt vmcnt({4*NSU-4})\ns_mov_b32 s97, 0")
if EF: a("s_mov_b32 s101, 2")
ticket_rd()
kstep("s72", "s73", mid=ticket_use)
entry_rd()
if KL:
    a(f"""
s_cmp_lt_u32 s23, {8 - KL}
s_cbranch_scc1 L_loop2
s_waitcnt lgkmcnt(0)
v_mov_b32 v{TE}, 512
""")
PS = OPT["ps"]
if PS:
    a(f"""
L_loop:
s_cmp_eq_u32 s96, 2
s_cbranch_scc1 L_flush
s_branch L_loop2
L_pre:
s_bitcmp1_b32 s27, 0
s_cbranch_scc0 L_loop2
""")
    dmask("s27")
    a(f"ds_read_b64 v[{PF}:{PF+1}], v{T2}\ns_waitcnt lgkmcnt(0)")
    soft("L_loop2")
    a("s_or_b32 s27, s27, 2")
else: a(f"""
L_loop:
s_cmp_eq_u32 s96, {"s101" if EF else 2}
s_cbranch_scc1 L_flush
""")
a(f"""
L_loop2:
s_waitcnt vmcnt(4) lgkmcnt(0)
{"s_memrealtime s[48:49]" if LOG else ""}
L_eretry:
v_readfirstlane_b32 s23, v{TE}
s_mov_b32 m0, s72
s_cmp_eq_u32 s23, -1
s_cbranch_scc1 L_espin
s_bitcmp1_b32 s23, 9
s_cbranch_scc1 L_special
s_lshl_b32 s26, s23, 1
s_add_u32 s26, s26, s75
s_add_u32 s26, s26, s77
s_and_b32 s26, s26, 511
{trn("s26")}
s_lshl_b32 s26, s26, 12
s_add_u32 s26, s26, s21
s_and_b32 s25, s23, 256
s_lshl_b32 s29, s25, {13 if XB else 16}
s_add_u32 s26, s26, s29
s_bitcmp1_b32 s23, 15
s_cbranch_scc1 L_isv
""")
for i in range(4): a(f"buffer_load_dwordx4 v{KA+i}, s[4:7], s26 offen offset:{i*1024} nt lds")
a("s_branch L_isd\nL_isv:")
for i in range(4): a(f"buffer_load_dwordx4 v{VA+(i&1)}, s[8:11], s26 offen offset:{i*1024} nt lds")
a(f"""
L_isd:
{"s_memrealtime s[50:51]" if LOG else ""}
s_lshr_b32 s25, s25, 6
s_bfe_u32 s73, s23, 0x1000f
s_or_b32 s73, s73, s25
s_lshr_b32 s23, s23, 16
s_lshl_b32 s23, s23, 1
s_add_u32 s23, s23, s75
s_lshl_b32 s23, s23, 7
s_or_b32 s73, s73, s23
L_proc:
""")
ticket_rd()
a("s_bitcmp1_b32 s27, 0\ns_cbranch_scc1 L_pv")
if RV: a("s_bitcmp1_b32 s27, 1\ns_cbranch_scc1 L_null")
kstep("s60", "s27", mid=ticket_use)
a("s_branch L_pd\nL_pv:")
if PS:
    a("s_bitcmp1_b32 s27, 1\ns_cbranch_scc0 L_pv1")
    v_rd("s60")
    a("s_waitcnt lgkmcnt(8)")
    ticket_use()
    if PS == 2: entry_rd()
    for dt in range(8):
        a(f"s_waitcnt lgkmcnt({7-dt+(1 if PS == 2 else 0)})")
        pv(dt)
    if PS == 2: a("s_branch L_pd2")
    a_real = a; a = Asm()
    a.label("L_pv1")
    vstep("s60", "s27", mid=ticket_use)
    a("s_branch L_pd")
    ool.append("\n".join(a.L)); a = a_real
else: vstep("s60", "s27", mid=ticket_use)
a.label("L_pd")
if LOG:
    a(f"""
s_add_u32 s25, s96, 8
s_and_b32 s50, s50, 0xfffffffc
s_and_b32 s51, s73, 1
s_or_b32 s50, s50, s51
s_bitcmp0_b32 s97, 0
s_cbranch_scc1 L_lg1
s_lshl_b64 exec, 1, s25
v_mov_b32 v{T0}, s48
v_mov_b32 v{T1}, s50
s_mov_b64 exec, -1
s_branch L_lg2
L_lg1:
s_cmp_eq_u32 s96, 0
s_cselect_b32 s54, s48, s54
s_cselect_b32 s55, s50, s55
s_mov_b32 s56, s48
s_mov_b32 s57, s50
L_lg2:
""")
entry_rd()
if PS == 2: a.label("L_pd2")
a(f"""
s_mov_b32 s25, s60
s_mov_b32 s60, s61
s_mov_b32 s61, s72
s_mov_b32 s72, s25
s_mov_b32 s27, s28
s_mov_b32 s28, s73
s_add_u32 s96, s96, 1
{"s_cmp_eq_u32 s97, 1" + chr(10) + "s_cbranch_scc1 L_pre" if PS else ""}
s_cmp_lt_u32 s97, 2
s_cbranch_scc1 L_loop
{"s_bitcmp1_b32 s97, 0" if RV else "s_cmp_eq_u32 s97, 3"}
s_cbranch_scc1 L_final
L_flush0:
s_waitcnt vmcnt(0)
L_flush:
s_waitcnt vmcnt(8)
{"s_mov_b32 s101, -1" if EF else ""}
v_lshlrev_b32 v{PF}, 4, v0
v_add_u32 v{TA+1}, s72, v{PF}
s_lshl_b32 s73, s3, 7
""")
for u in range(NST):
    for i in range(4):
        r = ST0 + 16*u + 4*i
        a(f"ds_write_b128 v{TA+1}, v[{r}:{r+3}] offset:{i*1024}")
    a(f"s_xor_b32 s23, s73, {1024*(3+u) + 128*wxk(3+u) + (4 if 3+u >= 8 else 0)}")
    kstep("s72", "s23")
a(f"v_mov_b32 v{ZR}, 0")
for r in range(ST0, O+32): a(f"v_mov_b32 v{r}, 0")
if LOG:
    for n_, pl in enumerate([62, 64, 66, 94, 98, 100]): a(f"v_writelane_b32 v{KF}, s{pl}, {n_}")
    a(f"v_writelane_b32 v{KF}, s80, 6\nv_writelane_b32 v{KF}, s82, 7\nv_writelane_b32 v{KF}, s54, 8\nv_writelane_b32 v{KF}, s56, 9")
    a(f"v_mov_b32 v{KF+1}, 0\nv_writelane_b32 v{KF+1}, s55, 8\nv_writelane_b32 v{KF+1}, s57, 9\nv_cmp_gt_u32 vcc, 10, v0\ns_nop 1\nv_cndmask_b32 v{KF}, 0, v{KF}, vcc")
tail_addr()
if LOG: a(f"v_mov_b32 v{T0}, v{KF}\nv_mov_b32 v{T1}, v{KF+1}")
a(f"""
s_add_u32 s97, s97, 1
s_cmp_eq_u32 s97, 1
s_cbranch_scc1 L_loop2
L_final:
{"s_bitcmp1_b32 s97, 2" + chr(10) + "s_cbranch_scc1 L_pk2" if RV else ""}
s_bitcmp1_b32 s27, 0
s_cbranch_scc1 L_finv
{"s_bitcmp1_b32 s27, 1" + chr(10) + "s_cbranch_scc1 L_fin2" if RV else ""}
s_waitcnt vmcnt(0)
""")
kstep("s60", "s27")
a(f"""
s_branch L_fin2
L_espin:
""" + ("""
s_cmp_lg_u32 s97, 0
s_cbranch_scc1 L_espin2
s_cmp_eq_u32 s96, 0
s_cbranch_scc1 L_flush0
s_branch L_flush
L_espin2:
""" if EF else "") + f"""
s_sub_u32 s76, s76, 1
s_cmp_le_i32 s76, 0
s_cbranch_scc1 L_term
ds_read_b32 v{TE}, v{TA}
s_waitcnt lgkmcnt(0)
s_branch L_eretry
L_special:
{"s_bitcmp1_b32 s23, 1" + chr(10) + "s_cbranch_scc1 L_park" if RV else ""}
s_bitcmp1_b32 s23, 0
s_cbranch_scc0 L_term
v_mov_b32 v{TKA}, {TK+16}
s_mov_b32 s78, {T2B}
""")
ticket_rd()
a("s_waitcnt lgkmcnt(0)")
ticket_use()
a(f"""
s_branch L_espin
L_term:
s_or_b32 s97, s97, 2
v_mov_b32 v{TKA}, {TK+20}
s_branch L_proc
""")
if RV:
    a(f"""
L_park:
s_or_b32 s97, s97, 4
v_mov_b32 v{TKA}, {TK+20}
s_mov_b32 s73, 2
s_branch L_proc
L_pk2:
s_waitcnt vmcnt(0) lgkmcnt(0)
s_mov_b32 s73, 2
s_bitcmp0_b32 s27, 1
s_cbranch_scc1 L_proc
L_pk3:
ds_read_b32 v{TE}, v{FL} offset:16
s_sub_u32 s76, s76, 1
s_cmp_le_i32 s76, 0
s_cbranch_scc1 L_pk4
s_waitcnt lgkmcnt(0)
v_readfirstlane_b32 s25, v{TE}
s_cmp_lg_u32 s25, 0
s_cbranch_scc1 L_pk4
s_sleep {OPT['rvs']}
s_branch L_pk3
L_pk4:
{"s_waitcnt lgkmcnt(0)" + chr(10) + "s_cmp_le_u32 s25, 512" + chr(10) + "s_cbranch_scc1 L_fin2" if OPT["rvl"] else ""}
s_mov_b32 s97, 1
v_mov_b32 v{TKA}, {TK}
s_waitcnt lgkmcnt(0)
s_branch L_proc
L_null:
s_waitcnt lgkmcnt(0)
""")
    ticket_use()
    a("s_branch L_pd")
OOL_AT = len(a.L)
a.label("L_finv")
def fine3(k): pass
dmask("s27")
a(f"ds_read_b64 v[{PF}:{PF+1}], v{T2}\ns_waitcnt lgkmcnt(0)")
soft()
a.label("L_fin2")
if OPT["fine"] in (6, 7): a("s_mov_b32 s4, s80")
AA = STG + 32
CM = AA; AW = AA + 16
R = S; GV = X + 28
a(f"""
v_mov_b32 v{T+1}, v{L_}
v_permlane16_swap_b32 v{L_}, v{T+1}
v_add_f32 v{L_}, v{L_}, v{T+1}
v_mov_b32 v{T+1}, v{L_}
v_permlane32_swap_b32 v{L_}, v{T+1}
v_add_f32 v{L_}, v{L_}, v{T+1}
s_mov_b32 s76, {SPIN*16}
s_mov_b64 exec, 0xff
ds_write_b64 v{X+15}, v[{M_}:{L_}]
s_mov_b64 exec, -1
""")
def aw_rd(s_):
    a(f"ds_read_b64_tr_b16 v[{AW+4*s_}:{AW+4*s_+1}], v{X+9} offset:{s_*4096}")
    a(f"ds_read_b64_tr_b16 v[{AW+4*s_+2}:{AW+4*s_+3}], v{X+9} offset:{s_*4096+512}")
def misc_rd():
    if BP1: a(f"s_lshl_b32 s25, s3, 6\ns_add_u32 s25, s25, {FTL}\nv_add_u32 v{Q+6}, s25, v{FPA}\nds_read_b64 v[{Q+4}:{Q+5}], v{Q+6}")
    if OPT["xm"]: a(f"ds_read_b32 v{T}, v{FL} offset:12")
    a(f"ds_read_b128 v[{X+16}:{X+19}], v{X+24}")
    if not OPT["lb"]:
        for s_ in range(4): aw_rd(s_)
    a(f"ds_read_b64 v[{GV}:{GV+1}], v{X+21} offset:64")
if not OPT["mlate"]:
    a(f"L_bw:\nds_read_b32 v{T}, v{FL} offset:12")
    misc_rd()
    a(f"s_waitcnt lgkmcnt(0)\nv_cmp_ne_u32 vcc, 1, v{T}")
    spin_tail("L_bw", "L_bwdone", sleep=2)
C = O + 16
def fine2(k):
    if OPT["fine"] == 2: a(f"s_waitcnt vmcnt(0)\ns_memtime s[{[4,6,8,10,48,50,54,56][k]}:{[4,6,8,10,48,50,54,56][k]+1}]\ns_waitcnt lgkmcnt(0)")
def fine(k):
    if OPT["fine"] == 1: a(f"s_memtime s[{[4,6,8,10,48,50,54,56][k]}:{[4,6,8,10,48,50,54,56][k]+1}]" + ("\ns_waitcnt lgkmcnt(0)" if k in (0, 3,) else ""))
for dt in range(8): a(f"v_add_u32 v{KF+2*dt}, s60, v{VR+dt}")
if PH: a("s_mov_b32 s68, 0x00010001\ns_mov_b32 s69, 0x00010001")
EB = OPT["eb"]
def red8(r, op, src=None):
    for m in ("quad_perm:[1,0,3,2]", "quad_perm:[2,3,0,1]", "row_half_mirror"):
        q = r if src is None else src
        a(f"{op}_dpp v{r}, v{q}, v{q} {m} row_mask:0xf bank_mask:0xf")
        src = None
def flag_st():
    a(f"""
s_mov_b64 exec, {hex((1 << (FU//8)) - 1) if FU else [0xff, 1, 0x11, 0x55, 1][OPT['fone']]}
buffer_store_dwordx2 v[{FLG}:{FLG+1}], v{FSA}, s[12:15], s94 offen sc1
s_mov_b64 exec, -1
""")
def wts1():
    red8(T, "v_max_f32", CM)
    a(f"""
v_sub_f32 v{CM}, v{CM}, v{T}
v_mul_f32 v{CM}, s59, v{CM}
v_exp_f32 v{CM}, v{CM}
v_mul_f32 v{T+1}, v{CM}, v{CM+1}
""")
    red8(T+1, "v_add_f32")
    a(f"""
v_max_f32 v{T+1}, {f32(1e-30)}, v{T+1}
v_log_f32 v{T+2}, v{T+1}
v_rcp_f32 v{T+3}, v{T+1}
""")
def wts2():
    a(f"""
v_fma_f32 v{FLG}, v{T}, s59, v{T+2}
v_perm_b32 v{FLG}, v{FLG}, v{VNS}, s{SEL}
""")
if EB:
    a(f"s_waitcnt lgkmcnt(0)\ns_barrier\nds_read_b64 v[{CM}:{CM+1}], v{X+4}\ns_waitcnt lgkmcnt(0)")
    wts1(); wts2(); flag_st()
a(f"s_mov_b32 s76, {SPIN}\ns_waitcnt vmcnt({1 if EB else 0})")
fine3(3)
fine(0)
if LOG: a(f"s_memrealtime s[48:49]\ns_add_u32 s25, s96, 8\ns_waitcnt lgkmcnt(0)\ns_lshl_b64 exec, 1, s25\nv_mov_b32 v{T0}, s48\ns_mov_b64 exec, -1")
a("s_bitcmp1_b32 s27, 0\ns_cbranch_scc0 L_fin3")
for dt in range(8): a(f"ds_read_b64_tr_b16 v[{KF+2*dt}:{KF+2*dt+1}], v{KF+2*dt}")
for dt in range(8):
    a(f"s_waitcnt lgkmcnt({7-dt})")
    pv(dt)
a.label("L_fin3")
stamp(2)
fine(1)
a(CM4)
for dt in range(8): a(f"ds_write_b128 v{X}, v[{O+4*dt}:{O+4*dt+3}] offset:{dt*64}")
a("s_mov_b64 exec, -1")
if OPT["tcw"]:
    a(f"""
s_cmp_lg_u32 s3, {OPT['fin']}
s_cbranch_scc1 L_ntc
v_lshlrev_b32 v{T}, 7, v0
{"s_mov_b32 exec_hi, 0" if OPT["tcw"] == 1 else ""}
buffer_load_dword v{AA+4}, v{T}, s[12:15], s66 offen {['', 'sc1', 'nt'][OPT['tpol']]}
s_mov_b64 exec, -1
L_ntc:
""")
EP = OPT["ep"]
if EP: a(f"s_mov_b32 s22, {0x10001 if OP else 0x30003}\ns_mov_b32 s23, s22\nv_mov_b32 v{Q+4}, v{VNS}\nv_mov_b32 v{Q+5}, 0\nv_mov_b32 v{Q+6}, v{VNS}\nv_mov_b32 v{Q+7}, 0")
def ep_poll():
    a(f"""
s_mov_b64 exec, s[22:23]
buffer_atomic_cmpswap_x2 v[{Q+4}:{Q+7}], v{FPA}, s[12:15], s95 offen sc0 sc1
s_mov_b64 exec, -1
""")
if OP: a("s_cmp_gt_u32 s3, 3")
a("s_waitcnt lgkmcnt(0)")
fine(2)
a("s_barrier")
fine(3)
if EP == 1: ep_poll()
if OP: a("s_cbranch_scc1 L_nocmb")
if BW: a(f"ds_read_b32 v{CM}, v{X+4}")
elif not EB: a(f"ds_read_b64 v[{CM}:{CM+1}], v{X+4}")
for k in range(4):
    a(f"ds_read_b128 v[{C+4*k}:{C+4*k+3}], v{X+2} offset:{k*RING}")
def fp_first():
    a(f"""
s_movk_i32 s22, 0xff
s_mov_b32 s23, 0
s_mov_b64 exec, 0xff
v_mov_b32 v{KF}, v{VNS}
v_mov_b32 v{KF+1}, 0
v_mov_b32 v{KF+2}, v{VNS}
v_mov_b32 v{KF+3}, 0
buffer_atomic_cmpswap_x2 v[{KF}:{KF+3}], v{FPA}, s[12:15], s95 offen sc0 sc1
s_mov_b64 exec, -1
""")
if OPT["fp0"] == 1: fp_first()
if EP == 2: ep_poll()
def ofma(k):
    a(f"s_waitcnt lgkmcnt({3-k})")
    for j in range(4): a(f"v_{'mul' if k == 0 else 'fmac'}_f32_dpp v{R+j}, v{CM}, v{C+4*k+j} row_newbcast:{k} row_mask:0xf bank_mask:0xf")
if not EB and not BW:
    a("s_waitcnt lgkmcnt(4)")
    wts1()
ofma(0)
if not EB and not BW: wts2()
fine2(0)
if not OPT["fo"] and not EB and not BW: flag_st()
fine2(1)
for k in range(1, 4): ofma(k)
fine(4)
a(f"""
v_permlane32_swap_b32 v{R}, v{R+2}
v_permlane32_swap_b32 v{R+1}, v{R+3}
v_add_f32 v{R}, v{R}, v{R+2}
v_add_f32 v{R+1}, v{R+1}, v{R+3}
{"" if BW else f"v_mul_f32 v{R}, v{R}, v{T+3}"}
{"" if BW else f"v_mul_f32 v{R+1}, v{R+1}, v{T+3}"}
""")
if not PH: a(f"""
v_perm_b32 v{R}, v{R}, v{X+31}, s{SEL}
v_perm_b32 v{R+1}, v{R+1}, v{X+31}, s{SEL+1}
""")
if PH:
    a(f"""
v_cvt_pk_f16_f32 v{R}, v{R}, v{R+1}
v_bfi_b32 v{R}, s68, v{X+31}, v{R}
""")
    if PH == 1: a(f"""
v_mov_b32_dpp v{R+1}, v{R} quad_perm:[1,1,1,1] row_mask:0xf bank_mask:0xf
v_mov_b32_dpp v{R+2}, v{R} quad_perm:[2,2,2,2] row_mask:0xf bank_mask:0xf
v_mov_b32_dpp v{R+3}, v{R} quad_perm:[3,3,3,3] row_mask:0xf bank_mask:0xf
s_mov_b32 exec_lo, 0x11111111
s_mov_b32 exec_hi, 0x11111111
buffer_store_dwordx4 v[{R}:{R+3}], v{X+5}, s[12:15], s62 offen sc1
s_mov_b64 exec, -1
""")
    else:
        if EP == 3: ep_poll()
        a(f"buffer_store_dword v{R}, v{X+5}, s[12:15], s62 offen sc1")
elif OPT["px4"]:
    a(f"""
v_mov_b32_dpp v{R+2}, v{R} quad_perm:[1,1,3,3] row_mask:0xf bank_mask:0xf
v_mov_b32_dpp v{R+3}, v{R+1} quad_perm:[1,1,3,3] row_mask:0xf bank_mask:0xf
s_mov_b32 exec_lo, {[0x55555555, 0x55555555, 0x5555, 0][OPT['psm']]}
s_mov_b32 exec_hi, {[0x55555555, 0, 0, 0][OPT['psm']]}
buffer_store_dwordx4 v[{R}:{R+3}], v{X+1}, s[12:15], s62 offen sc1
s_mov_b64 exec, -1
""")
else:
    a(f"buffer_store_dwordx2 v[{R}:{R+1}], v{X+1}, s[12:15], s62 offen sc1")
if OPT["fo"]: flag_st()
if OP: a.label("L_nocmb")
if OPT["mlate"]:
    if OPT["stamps"]: stamp(3); a("s_waitcnt lgkmcnt(0)")
    misc_rd()
    a(f"s_waitcnt lgkmcnt({1 if OPT['lb'] else 9})")
if OPT["hbn"] != 1: a("s_mov_b64 exec, 0xffff")
if not OPT["mlate"]: stamp(3)
fine(5)
fine2(2)
def st2(lbl, ins, extra=""):
    a(f"""
s_cmp_eq_u32 s63, 1
s_cbranch_scc1 {lbl}n
{ins} sc1
s_branch {lbl}d
{lbl}n:
{ins}{" nt" if OPT["snt"] & (1 if lbl == "L_bs" else 2) else ""}
{extra}
{lbl}d:
""")
if OPT["xm"]:
    a(f"v_readfirstlane_b32 s63, v{T}")
    st2("L_bs", f"buffer_store_dwordx4 v[{X+16}:{X+19}], v{X+25}, s[12:15], s67 offen", f"""
v_not_b32 v{T}, v{VNS}
v_not_b32 v{T+1}, v{VNS}
v_not_b32 v{T+2}, v{VNS}
v_not_b32 v{T+3}, v{VNS}
s_sub_u32 s25, s67, 4096
buffer_store_dwordx4 v[{T}:{T+3}], v{X+25}, s[12:15], s25 offen
""" if OPT["prw"] else "")
elif OPT["hbn"] != 1:
    if OPT["bpa"]: a(f"buffer_store_dwordx4 v[{X+16}:{X+19}], v{X+25}, s[12:15], s67 offen")
    if not OPT["hbn"]: a(f"buffer_store_dwordx4 v[{X+16}:{X+19}], v{X+25}, s[12:15], s63 offen sc1")
    fine2(3)
    if OPT["prw"]:
        a(f"""
v_not_b32 v{T}, v{VNS}
v_not_b32 v{T+1}, v{VNS}
v_not_b32 v{T+2}, v{VNS}
v_not_b32 v{T+3}, v{VNS}
s_sub_u32 s25, s67, 4096
buffer_store_dwordx4 v[{T}:{T+3}], v{X+25}, s[12:15], s25 offen
""")
fine2(4)
BB = AA + 8
def bpoll():
    for k in range(2):
        a(f"buffer_load_dwordx4 v[{BB+4*k}:{BB+4*k+3}], v{X+13}, s[12:15], s98 offen offset:{2048*k} sc1")
def bp_early():
    a(f"s_cmp_lg_u32 s3, {OPT['fin']}\ns_cbranch_scc1 L_nobp0\ns_mov_b64 exec, -1")
    bpoll()
    if EP: a(f"s_waitcnt vmcnt({3 if OP else 4})\ns_branch L_epw")
    a.label("L_nobp0")
    if EP: a("s_waitcnt vmcnt(2)")
    if EP and OP: a("s_cmp_le_u32 s3, 3\ns_cbranch_scc1 L_epw\ns_waitcnt vmcnt(1)")
    if EP: a.label("L_epw")
if OPT["bpe"] >= 2: bp_early()
if CR: a(ROLE("s25") + "\ns_cbranch_scc1 L_prod")
PA = O
WT = Q; FS = Q + 4; P = Q + 8; TT = KF
FPOLL = {0: f"""
v_mov_b32 v{FS}, 0
v_mov_b32 v{FS+1}, 0
buffer_atomic_or_x2 v[{FS}:{FS+1}], v{FPA}, s[12:15], s95 offen sc0 sc1
""", 1: f"buffer_load_dwordx2 v[{FS}:{FS+1}], v{FPA}, s[12:15], s95 offen sc1",
2: f"""
v_mov_b32 v{FS}, v{VNS}
v_mov_b32 v{FS+1}, 0
v_mov_b32 v{FS+2}, v{VNS}
v_mov_b32 v{FS+3}, 0
buffer_atomic_cmpswap_x2 v[{FS}:{FS+3}], v{FPA}, s[12:15], s95 offen sc0 sc1
""", 3: f"buffer_load_dwordx2 v[{FS}:{FS+1}], v{FPA}, s[12:15], s95 offen sc0 sc1 nt",
4: f"""
v_mov_b32 v{FS}, 0
v_mov_b32 v{FS+1}, 0
buffer_atomic_umax_x2 v[{FS}:{FS+1}], v{FPA}, s[12:15], s95 offen sc0 sc1
""", 5: f"""
v_mov_b32 v{FS}, 0
v_mov_b32 v{FS+1}, 0
buffer_atomic_or_x2 v[{FS}:{FS+1}], v{FPA}, s[12:15], s95 offen sc0 sc1 nt
"""}[OPT["fpol"]]
for j_ in range(OPT["dup"]):
    r_ = KF + 4*j_
    FPOLL += f"""
{f"s_mov_b64 exec, {OPT['dupl']}" if OPT['dupl'] else ""}
v_mov_b32 v{r_}, v{VNS}
v_mov_b32 v{r_+1}, 0
v_mov_b32 v{r_+2}, v{VNS}
v_mov_b32 v{r_+3}, 0
buffer_atomic_cmpswap_x2 v[{r_}:{r_+3}], v{X+1 if OPT['dupl'] else FPA}, s[12:15], s95 offen sc0 sc1
s_mov_b64 exec, s[22:23]
"""
def pload(k):
    if OPT["nopart"] == 2: a(f"s_and_b32 exec_lo, exec_lo, 0xffff\ns_and_b32 exec_hi, exec_hi, 0xffff")
    if OPT["nopart"] == 3: a(f"s_and_b32 exec_lo, exec_lo, 0xff\ns_and_b32 exec_hi, exec_hi, 0xff")
    if OPT["nopart"] != 1: a(f"buffer_load_dwordx4 v[{PA+4*k}:{PA+4*k+3}], v{X+7}, s[12:15], s74 offen offset:{1024*k} sc1")
def ploads(m):
    for k in range(4):
        a(f"""
s_bfe_i32 exec_lo, {m}, {hex(0x10000 + 2*k)}
s_bfe_i32 exec_hi, {m}, {hex(0x10000 + 2*k + 1)}
""")
        pload(k)
FCHK = f"""
v_xor_b32 v{T}, v{FS}, v{VNS}
v_and_b32 v{T}, 0xff, v{T}
v_xor_b32 v{T+1}, v{FS+1}, v{VNS}
v_or_b32 v{T}, v{T}, v{T+1}
v_cmp_eq_u32 vcc, 0, v{T}
"""
FP_ = OPT["fp"]
def fpoll(j):
    r = (PA + 16 if PH else KF) + 4*j
    a(f"""
s_mov_b64 exec, s[22:23]
v_mov_b32 v{r}, v{VNS}
v_mov_b32 v{r+1}, 0
v_mov_b32 v{r+2}, v{VNS}
v_mov_b32 v{r+3}, 0
buffer_atomic_cmpswap_x2 v[{r}:{r+3}], v{FPA}, s[12:15], s95 offen sc0 sc1
""")
def fstep(j, cnt):
    r = (PA + 16 if PH else KF) + 4*j
    a(f"""
s_waitcnt vmcnt({cnt})
v_xor_b32 v{T}, v{r}, v{VNS}
v_and_b32 v{T}, 0xff, v{T}
v_xor_b32 v{T+1}, v{r+1}, v{VNS}
v_or_b32 v{T}, v{T}, v{T+1}
v_cmp_eq_u32 vcc, 0, v{T}
v_cndmask_b32 v{FS}, v{FS}, v{r}, vcc
""")
    if PH: a(f"""
s_and_b64 s[26:27], vcc, s[68:69]
s_mul_i32 exec_lo, s26, 0xffff
s_mul_i32 exec_hi, s27, 0xffff
s_lshr_b64 s[26:27], vcc, 1
buffer_load_dwordx4 v[{PA}:{PA+3}], v{X+7}, s[12:15], s74 offen sc1
s_and_b64 s[26:27], s[26:27], s[68:69]
s_mul_i32 exec_lo, s26, 0xffff
s_mul_i32 exec_hi, s27, 0xffff
s_andn2_b64 s[22:23], s[22:23], vcc
buffer_load_dwordx4 v[{PA+4}:{PA+7}], v{X+7}, s[12:15], s74 offen offset:1024 sc1
s_cbranch_scc0 L_f1done
""")
    else:
        a("s_mov_b32 s25, vcc_lo")
        ploads("s25")
        a(f"""
s_andn2_b32 s22, s22, s25
s_cbranch_scc0 L_f1done
""")
    fpoll(j)
    a(f"s_sleep {OPT['fps']}")
if FP_:
    NS_ = 3 if PH else 5
    if not OPT["fp0"]: a("s_mov_b32 s22, 0x30003\ns_mov_b32 s23, s22" if PH else "s_movk_i32 s22, 0xff\ns_mov_b32 s23, 0")
    for j in range(1 if OPT["fp0"] else 0, FP_):
        fpoll(j)
        if j < FP_ - 1: a(f"s_sleep {OPT['fps']}")
    for j in range(FP_): fstep(j, (FP_ - 1 - j) + NS_*j + (3 if OPT["fp0"] and j == 0 else 0))
    a.label("L_f1")
    a("s_sub_u32 s76, s76, 1\ns_cbranch_scc1 L_f1done")
    for j in range(FP_): fstep(j, NS_*(FP_ - 1))
    a("s_branch L_f1\nL_f1done:\ns_mov_b64 exec, -1")
SP = OPT["sp"]
SPL = f"""v_mov_b32 v{PA}, 0
v_mov_b32 v{PA+1}, 0
v_mov_b32 v{PA+2}, 0
v_mov_b32 v{PA+3}, 0
buffer_atomic_or_x2 v[{PA}:{PA+1}], v{X+7}, s[12:15], s74 offen sc0 sc1
buffer_atomic_or_x2 v[{PA+2}:{PA+3}], v{X+7}, s[12:15], s74 offen offset:8 sc0 sc1""" if SP & 4 else f"buffer_load_dwordx4 v[{PA}:{PA+3}], v{X+7}, s[12:15], s74 offen sc1"
SPT = f"""
{"" if SP & 1 else "s_branch L_f1"}
L_g1:
s_mov_b64 exec, s[22:23]
{FPOLL}
s_mul_i32 exec_lo, s22, 0xffff
s_mul_i32 exec_hi, s23, 0xffff
s_sub_u32 s76, s76, 1
{SPL}
s_mov_b64 exec, s[22:23]
s_waitcnt vmcnt({0 if SP & 4 else 1})
{FCHK}
s_andn2_b64 s[22:23], s[22:23], vcc
s_cbranch_scc0 L_f1done
s_branch L_f1n
""" if SP else ""
a_real = a
if FP_: a = Asm()
a(f"""
{"s_mov_b32 s22, 0x00010001" if OP and not CR else "s_mov_b32 s22, 0x00030003" if PH else "s_movk_i32 s22, 0xff"}
s_mov_b32 s23, {"s22" if PH else 0}
{"s_mov_b32 s26, 0" if OPT["inc"] == 2 else ""}
{f"s_mov_b64 exec, -1" + chr(10) + f"v_mov_b32 v{T0}, 0" + chr(10) + f"v_mov_b32 v{T1}, 0" + chr(10) + "s_mov_b32 s30, 0" if LG9 else ""}
{"s_mov_b64 exec, s[22:23]" + chr(10) + "s_branch L_f1c" if BP1 or EP else ""}
{SPT}
L_f1:
{"s_memrealtime s[50:51]" if LG9 else ""}
s_mov_b64 exec, s[22:23]
{FPOLL}
s_sub_u32 s76, s76, 1
s_waitcnt vmcnt(0)
{"s_memrealtime s[48:49]" + chr(10) + "s_waitcnt lgkmcnt(0)" + chr(10) + "s_lshl_b32 s50, s50, 8" + chr(10) + "s_bcnt1_i32_b64 s51, s[22:23]" + chr(10) + "s_or_b32 s50, s50, s51" + chr(10) + "s_mov_b32 m0, s30" + chr(10) + f"v_writelane_b32 v{T0}, s48, m0" + chr(10) + f"v_writelane_b32 v{T1}, s50, m0" + chr(10) + "s_add_u32 s30, s30, 1" + chr(10) + "s_and_b32 s30, s30, 63" if LG9 else ""}
{"L_f1c:" if BP1 or EP else ""}
{FCHK}
""")
if OPT["inc"] == 2:
    a(f"""
s_mov_b32 s25, s26
s_mov_b32 s26, vcc_lo
s_andn2_b32 s22, s22, s26
s_cselect_b32 s29, 0, s26
s_or_b32 s25, s25, s29
s_cbranch_scc0 L_f1n
""")
    if OPT["ebd"]: a(f"s_cmp_lg_u32 s22, 0\ns_cbranch_scc1 L_f1x\ns_sleep {OPT['ebd']}\nL_f1x:")
    ploads("s25")
    a("s_cmp_eq_u32 s22, 0\ns_cbranch_scc1 L_f1done")
elif OP and not CR:
    a(f"""
s_cbranch_vccz L_f1n
s_mul_i32 exec_lo, vcc_lo, 0xffff
s_mul_i32 exec_hi, vcc_hi, 0xffff
s_andn2_b64 s[22:23], s[22:23], vcc
buffer_load_dwordx4 v[{PA}:{PA+3}], v{X+7}, s[12:15], s74 offen sc1
s_cbranch_scc0 L_f1done
""")
elif PH:
    a(f"""
s_cbranch_vccz L_f1n
s_and_b64 s[26:27], vcc, s[68:69]
s_mul_i32 exec_lo, s26, 0xffff
s_mul_i32 exec_hi, s27, 0xffff
s_lshr_b64 s[26:27], vcc, 1
buffer_load_dwordx4 v[{PA}:{PA+3}], v{X+7}, s[12:15], s74 offen sc1
s_and_b64 s[26:27], s[26:27], s[68:69]
s_mul_i32 exec_lo, s26, 0xffff
s_mul_i32 exec_hi, s27, 0xffff
s_andn2_b64 s[22:23], s[22:23], vcc
buffer_load_dwordx4 v[{PA+4}:{PA+7}], v{X+7}, s[12:15], {"s33 offen" if PLY else f"s74 offen offset:{2048 if CR else 1024}"} sc1
s_cbranch_scc0 L_f1done
""")
else:
    a("s_cbranch_vccz L_f1n\ns_mov_b32 s25, vcc_lo")
    if OPT["inc"]: ploads("s25")
    a("s_andn2_b32 s22, s22, s25\ns_cbranch_scc0 L_f1done")
a(f"""
L_f1n:
s_cmp_eq_u32 s76, 0
s_cbranch_scc1 L_f1done
{"s_sleep %d" % OPT['f1slp'] if OPT['f1slp'] else ""}
""")
def patom(k):
    for j in range(4): a(f"v_mov_b32 v{PA+4*k+j}, 0")
    for h in range(2): a(f"buffer_atomic_{['or', 'add', 'umax'][OPT['spo']]}_x2 v[{PA+4*k+2*h}:{PA+4*k+2*h+1}], v{X+7}, s[12:15], s74 offen offset:{1024*k+8*h} sc0 sc1")
if OPT["spec"] and PH:
    a(f"""
s_bcnt1_i32_b64 s25, s[22:23]
s_cmp_gt_u32 s25, {OPT['spec']}
s_cbranch_scc1 L_f1
L_f2:
s_mov_b64 exec, s[22:23]
{FPOLL}
s_and_b64 s[26:27], s[22:23], s[68:69]
s_mul_i32 exec_lo, s26, 0xffff
s_mul_i32 exec_hi, s27, 0xffff
s_cbranch_scc0 L_f2a
""")
    patom(0)
    a(f"""
L_f2a:
s_lshr_b64 s[26:27], s[22:23], 1
s_and_b64 s[26:27], s[26:27], s[68:69]
s_mul_i32 exec_lo, s26, 0xffff
s_mul_i32 exec_hi, s27, 0xffff
s_cbranch_scc0 L_f2b
""")
    patom(1)
    a(f"""
L_f2b:
s_mov_b64 exec, s[22:23]
s_sub_u32 s76, s76, 1
s_waitcnt vmcnt(0)
{FCHK}
s_andn2_b64 s[22:23], s[22:23], vcc
s_cbranch_scc0 L_f1done
s_cmp_eq_u32 s76, 0
s_cbranch_scc1 L_f1done
{"s_sleep %d" % OPT['f2slp'] if OPT['f2slp'] else ""}
s_branch L_f2
""")
elif OPT["spec"]:
    a(f"""
s_bcnt1_i32_b32 s25, s22
s_cmp_gt_u32 s25, {OPT['spec']}
s_cbranch_scc1 L_f1
L_f2:
s_mov_b64 exec, s[22:23]
{FPOLL}
""")
    ploads("s22")
    a(f"""
s_mov_b64 exec, s[22:23]
s_sub_u32 s76, s76, 1
s_waitcnt vmcnt(0)
{FCHK}
s_andn2_b32 s22, s22, vcc_lo
s_cbranch_scc0 L_f1done
s_cmp_eq_u32 s76, 0
s_cbranch_scc1 L_f1done
{"s_sleep %d" % OPT['f2slp'] if OPT['f2slp'] else ""}
s_branch L_f2
""")
if SP & 2:
    a(f"""
s_bcnt1_i32_b64 s25, s[22:23]
s_cmp_le_u32 s25, {OPT['spn']}
s_cbranch_scc1 L_g1
""")
if OPT["f1th"]:
    a(f"""
s_bcnt1_i32_b64 s25, s[22:23]
s_cmp_le_u32 s25, {OPT['f1th']}
s_cbranch_scc1 L_f1
s_sleep {OPT['f1sl2']}
""")
a(f"""
s_branch L_f1
L_f1done:
s_mov_b64 exec, -1
""")
a = a_real
if not OPT["inc"]:
    for k in range(4): pload(k)
if OPT["bpe"] == 1: bp_early()
if OPT["stamps"]: a("s_memrealtime s[100:101]")
def red8h(r, op, src):
    a(f"v_mov_b32 v{r}, v{src}" if OP else f"{op}_dpp v{r}, v{src}, v{src} quad_perm:[1,0,3,2] row_mask:0xf bank_mask:0xf")
    for sw in ("v_permlane16_swap_b32", "v_permlane32_swap_b32"):
        a(f"v_mov_b32 v{r+1}, v{r}\n{sw} v{r}, v{r+1}\n{op} v{r}, v{r}, v{r+1}")
(red8h if PH else red8)(T, "v_max_f32", FS)
a(f"""
v_sub_f32 v{FS}, v{FS}, v{T}
v_exp_f32 v{FS}, v{FS}
""")
(red8h if PH else red8)(T, "v_add_f32", FS)
a(f"""
v_rcp_f32 v{T}, v{T}
v_mul_f32 v{FS}, v{FS}, v{T}
""")
if PH:
    for d in range(1, 4): a(f"v_lshrrev_b32 v{TT+8+d}, {d}, v{X+8}")
    for k in range(1 if OP and not CR else 2): a(f"v_mov_b32_dpp v{WT+k}, v{FS} row_newbcast:{k} row_mask:0xf bank_mask:0xf")
else:
    for x in range(8): a(f"v_readlane_b32 s{32+x}, v{FS}, {x}")
    for k in range(4): a(f"v_mov_b32 v{WT+k}, s{32+2*k+1}")
    a("s_mov_b32 exec_hi, 0")
    for k in range(4): a(f"v_mov_b32 v{WT+k}, s{32+2*k}")
def tag_chk(grans, t):
    for n_, r in enumerate(grans):
        a(f"v_perm_b32 v{t+2*n_}, v{r+1}, v{r}, s{SEL+4}\nv_perm_b32 v{t+2*n_+1}, v{r+3}, v{r+2}, s{SEL+5}")
    for n_, r in enumerate(grans):
        a(f"v_xor_b32 v{t+2*n_}, v{t+2*n_}, v{VNS}")
    for n_, r in enumerate(grans):
        a(f"v_xor_b32 v{t+2*n_}, v{t+2*n_}, v{t+2*n_+1}")
    if len(grans) == 4:
        a(f"v_or3_b32 v{t}, v{t}, v{t+2}, v{t+4}\nv_or_b32 v{t}, v{t}, v{t+6}")
    else:
        a(f"v_or_b32 v{t}, v{t}, v{t+2}")
    a(f"v_cmp_ne_u32 vcc, 0, v{t}")
AWP = OPT["awp"]
a.label("L_pchk")
a("s_mov_b64 exec, -1\ns_waitcnt vmcnt(0)")
if AWP: a(f"ds_read_b32 v{T}, v{FL} offset:16")
if CR:
    PP = (P, PA + 8)
    for k in range(2):
        for d in range(4):
            for h in range(2):
                a(f"v_fma_mix_f32 v{PP[k]+2*d+h}, v{WT+k}, v{PA+4*k+d}, 0 op_sel:[0,{h},0] op_sel_hi:[0,1,0]")
    for p_ in PP:
        for j in range(4): a(f"v_permlane32_swap_b32 v{p_+j}, v{p_+4+j}")
    for p_ in PP:
        for j in range(4): a(f"v_add_f32 v{p_+j}, v{p_+j}, v{p_+4+j}")
    for p_ in PP: a(f"v_permlane16_swap_b32 v{p_}, v{p_+2}\nv_permlane16_swap_b32 v{p_+1}, v{p_+3}")
    for p_ in PP: a(f"v_add_f32 v{p_}, v{p_}, v{p_+2}\nv_add_f32 v{p_+1}, v{p_+1}, v{p_+3}")
    for p_ in PP: a(f"v_cvt_pk_bf16_f32 v{p_}, v{p_}, v{p_+1}")
    for k in range(2): a(f"ds_write_b32 v{X+10}, v{PP[k]} offset:{8*OST*k}")
    for j in range(8): a(f"v_xor_b32 v{TT+j}, v{PA+j}, v{TT+8+(j & 3) if j & 3 else X+8}")
    a(f"""
v_or3_b32 v{TT}, v{TT}, v{TT+1}, v{TT+2}
v_or3_b32 v{TT+3}, v{TT+3}, v{TT+4}, v{TT+5}
v_or3_b32 v{TT}, v{TT}, v{TT+6}, v{TT+7}
v_or_b32 v{TT}, v{TT}, v{TT+3}
v_and_b32 v{TT}, s68, v{TT}
v_cmp_ne_u32 vcc, 0, v{TT}
""")
elif PH:
    for k in range(1 if OP else 2):
        for d in range(4):
            for h in range(2):
                a(f"v_fma_mix_f32 v{P+2*d+h}, v{WT+k}, v{PA+4*k+d}, {f'v{P+2*d+h}' if k else 0} op_sel:[0,{h},0] op_sel_hi:[0,1,0]")
    for j in range(4): a(f"v_permlane32_swap_b32 v{P+j}, v{P+4+j}")
    for j in range(4): a(f"v_add_f32 v{P+j}, v{P+j}, v{P+4+j}")
    a(f"""
v_permlane16_swap_b32 v{P}, v{P+2}
v_permlane16_swap_b32 v{P+1}, v{P+3}
v_add_f32 v{P}, v{P}, v{P+2}
v_add_f32 v{P+1}, v{P+1}, v{P+3}
v_cvt_pk_bf16_f32 v{P}, v{P}, v{P+1}
ds_write_b32 v{X+10}, v{P}
""")
    for j in range(4 if OP else 8): a(f"v_xor_b32 v{TT+j}, v{PA+j}, v{TT+8+(j & 3) if j & 3 else X+8}")
    a(f"""
v_or3_b32 v{TT}, v{TT}, v{TT+1}, v{TT+2}
{"" if OP else f"v_or3_b32 v{TT+3}, v{TT+3}, v{TT+4}, v{TT+5}"}
{"" if OP else f"v_or3_b32 v{TT}, v{TT}, v{TT+6}, v{TT+7}"}
v_or_b32 v{TT}, v{TT}, v{TT+3}
v_and_b32 v{TT}, s68, v{TT}
v_cmp_ne_u32 vcc, 0, v{TT}
""")
else:
    for k in range(4):
        for j in range(4): a(f"v_{'mul' if k == 0 else 'fmac'}_f32 v{P+j}, v{WT+k}, v{PA+4*k+j}")
    a(f"""
v_permlane32_swap_b32 v{P}, v{P+2}
v_permlane32_swap_b32 v{P+1}, v{P+3}
v_add_f32 v{P}, v{P}, v{P+2}
v_add_f32 v{P+1}, v{P+1}, v{P+3}
v_cvt_pk_bf16_f32 v{P}, v{P}, v{P+1}
ds_write_b32 v{X+10}, v{P}
""")
    tag_chk([PA+4*k for k in range(4)], TT)
if not OPT["nopart"]: a("s_cbranch_vccnz L_prep")
a.label("L_pdone")
stamp(4)
BB = AA + 8
def bpoll():
    for k in range(2):
        a(f"buffer_load_dwordx4 v[{BB+4*k}:{BB+4*k+3}], v{X+13}, s[12:15], s98 offen offset:{2048*k} sc1")
a(f"s_cmp_lg_u32 s3, {OPT['fin']}\ns_cbranch_scc1 L_nobp")
if not OPT["bdel"] and OPT["bpe"] in (0, 3): bpoll()
D_ = PA + 16
if AWP:
    a(f"""
L_nobp:
s_waitcnt lgkmcnt({2 if CR else 1})
v_readfirstlane_b32 s33, v{T}
{"" if CR else "s_cmp_gt_u32 s3, 3" + chr(10) + "s_cbranch_scc1 L_nopre"}
s_cmp_eq_u32 s33, 0
s_cbranch_scc1 L_nopre
""")
    for s_ in range(4): aw_rd(s_)
    a("s_mov_b64 exec, s[70:71]\ns_waitcnt lgkmcnt(8)\ns_barrier")
    for s_ in range(4): a(f"ds_read_b128 v[{PA+4*s_}:{PA+4*s_+3}], v{X+12} offset:{64*s_}")
    a("s_mov_b64 exec, -1")
    for s_ in range(4):
        a(f"""
s_waitcnt lgkmcnt({3-s_})
v_mfma_f32_16x16x32_bf16 v[{D_}:{D_+3}], v[{AW+4*s_}:{AW+4*s_+3}], v[{PA+4*s_}:{PA+4*s_+3}], {"0" if s_ == 0 else f"v[{D_}:{D_+3}]"}
""")
    a.label("L_mmd")
    a_real = a; a = Asm()
    a.label("L_nopre")
else: a.label("L_nobp")
a(f"""
s_cmp_gt_u32 s3, 3
s_waitcnt lgkmcnt(0)
s_barrier
{"" if CR else "s_cbranch_scc1 L_nomm"}
""")
for s_ in range(4):
    a(f"ds_read_b128 v[{PA+4*s_}:{PA+4*s_+3}], v{X+12} offset:{64*s_}")
    if OPT["lb"]: aw_rd(s_)
for s_ in range(4):
    a(f"""
s_waitcnt lgkmcnt({(3-s_)*(3 if OPT["lb"] else 1)})
v_mfma_f32_16x16x32_bf16 v[{D_}:{D_+3}], v[{AW+4*s_}:{AW+4*s_+3}], v[{PA+4*s_}:{PA+4*s_+3}], {"0" if s_ == 0 else f"v[{D_}:{D_+3}]"}
""")
if AWP:
    a("s_branch L_mmd")
    ool.append("\n".join(a.L)); a = a_real
a("s_mov_b64 exec, s[70:71]")
tag_ins(D_, VNS, SEL)
if OPT["xm"]:
    st2("L_as", f"buffer_store_dwordx4 v[{D_}:{D_+3}], v{X+11}, s[12:15], s65 offen")
    a("s_mov_b64 exec, -1")
else:
    a(f"""
{"" if OPT["noa"] else f"buffer_store_dwordx4 v[{D_}:{D_+3}], v{X+11}, s[12:15], s65 offen"}
{"" if OPT["nob"] else f"buffer_store_dwordx4 v[{D_}:{D_+3}], v{X+11}, s[12:15], s64 offen sc1"}
s_mov_b64 exec, -1
""")
if CR:
    ool.append("L_prod:\n" + ("s_memrealtime s[100:101]\ns_memrealtime s[88:89]\n" if OPT["stamps"] else "") + "s_mov_b64 exec, -1\ns_waitcnt lgkmcnt(0)\ns_branch L_nomm")
a.label("L_nomm")
stamp(5)
if OPT["hbn"]:
    a(f"""
s_cmp_eq_u32 s3, {OPT['fin']}
s_cbranch_scc1 L_nofar
s_mov_b64 exec, 0xffff
buffer_store_dwordx4 v[{X+16}:{X+19}], v{X+25}, s[12:15], s63 offen sc1
s_cmp_lg_u32 s3, {OPT['fin']+1}
s_cbranch_scc1 L_nofar
ds_read_b128 v[{T}:{T+3}], v{X+24} offset:{(-256) & 0xffff}
""" if False else f"""
s_cmp_eq_u32 s3, {OPT['fin']}
s_cbranch_scc1 L_nofar
s_sleep 4
s_mov_b64 exec, 0xffff
buffer_store_dwordx4 v[{X+16}:{X+19}], v{X+25}, s[12:15], s63 offen sc1
s_cmp_lg_u32 s3, {OPT['fin']-1}
s_cbranch_scc1 L_nofar
ds_read_b128 v[{KF}:{KF+3}], v{X+24} offset:256
s_add_u32 s63, s63, 16384
s_waitcnt lgkmcnt(0)
buffer_store_dwordx4 v[{KF}:{KF+3}], v{X+25}, s[12:15], s63 offen sc1
L_nofar:
s_mov_b64 exec, -1
""")
def wstamps():
    if LOG or LG9:
        a(f"""
s_lshl_b32 s29, s16, 3
s_add_u32 s29, s29, s3
s_lshl_b32 s29, s29, 9
s_add_u32 s29, s29, 0x500000
v_lshlrev_b32 v{T}, 2, v0
buffer_store_dword v{T0}, v{T}, s[12:15], s29 offen
buffer_store_dword v{T1}, v{T}, s[12:15], s29 offen offset:256
""")
    a(f"""
s_lshl_b32 s29, s16, 3
s_add_u32 s29, s29, s3
s_lshl_b32 s29, s29, 4
s_add_u32 s29, s29, {STAMP+0x10000}
s_add_u32 s96, s96, {2+NST}
s_waitcnt lgkmcnt(0)
v_mov_b32 v{T}, s84
v_mov_b32 v{T+1}, s85
v_mov_b32 v{T+2}, s82
v_mov_b32 v{T+3}, s96
s_mov_b64 exec, 1
buffer_store_dwordx4 v[{T}:{T+3}], v{ZR}, s[12:15], s29 offen
s_add_u32 s29, s29, 0x8000
s_nop 4
v_mov_b32 v{T}, s86
v_mov_b32 v{T+1}, s88
v_mov_b32 v{T+2}, s90
v_mov_b32 v{T+3}, s77
buffer_store_dwordx4 v[{T}:{T+3}], v{ZR}, s[12:15], s29 offen
s_add_u32 s29, s29, 0x8000
s_nop 4
v_mov_b32 v{T}, s100
buffer_store_dword v{T}, v{ZR}, s[12:15], s29 offen
s_add_u32 s29, s29, 0x8000
s_nop 4
v_mov_b32 v{T}, s4
v_mov_b32 v{T+1}, s6
v_mov_b32 v{T+2}, s8
v_mov_b32 v{T+3}, s10
buffer_store_dwordx4 v[{T}:{T+3}], v{ZR}, s[12:15], s29 offen
s_add_u32 s29, s29, 0x8000
s_nop 4
v_mov_b32 v{T}, s48
v_mov_b32 v{T+1}, s50
v_mov_b32 v{T+2}, s54
v_mov_b32 v{T+3}, s56
buffer_store_dwordx4 v[{T}:{T+3}], v{ZR}, s[12:15], s29 offen
s_mov_b64 exec, -1
s_nop 4
""")
if OPT["stamps"]:
    a(f"s_mov_b32 s77, s76\ns_cmp_eq_u32 s3, {OPT['fin']}\ns_cbranch_scc1 L_fin")
    wstamps()
    a("s_endpgm\nL_fin:")
else:
    a(f"s_cmp_lg_u32 s3, {OPT['fin']}\ns_cbranch_scc1 L_end")
a(f"""
s_mov_b32 s76, {SPIN}
s_movk_i32 s23, {OPT['na']}
""")
srd(60, P_OUT, 8192)
A3 = KF + 8; FB = KF + 12
def red(d, s0):
    for r in range(4): a(f"v_add_f32 v{d+r}, v{s0+r}, v{s0+4+r}")
    a(f"""
v_permlane32_swap_b32 v{d}, v{d+2}
v_permlane32_swap_b32 v{d+1}, v{d+3}
v_add_f32 v{d}, v{d}, v{d+2}
v_add_f32 v{d+1}, v{d+1}, v{d+3}
v_permlane16_swap_b32 v{d}, v{d+1}
v_add_f32 v{d}, v{d}, v{d+1}
v_add_f32_dpp v{d}, v{d}, v{d} row_ror:8 row_mask:0xf bank_mask:0xf
v_add_f32_dpp v{d}, v{d}, v{d} row_ror:4 row_mask:0xf bank_mask:0xf
""")
def gate(d, g):
    a(f"""
v_cvt_pk_bf16_f32 v{d}, v{d}, v{d}
v_lshlrev_b32 v{d}, 16, v{d}
v_mul_f32 v{d}, v{g}, v{d}
v_cvt_pk_bf16_f32 v{d}, v{d}, v{d}
v_lshlrev_b32 v{d}, 16, v{d}
""")
def far(regs):
    if OPT["xm"]:
        a("s_sub_u32 s76, s76, 1"); return
    a(f"s_sub_u32 s23, s23, 1\ns_cselect_b32 s25, {CPB-CPA}, 0")
    for r in regs: a(f"s_add_u32 s{r}, s{r}, s25")
    a("s_sub_u32 s76, s76, 1")
if OPT["bdel"]:
    backoff(OPT["bdel"]); bpoll()
a.label("L_bchk")
a("s_mov_b64 exec, -1")
far([66, 98] if OPT["bpa"] else [66])
a("s_waitcnt vmcnt(0)")
tag_chk([BB, BB+4], TT)
a(f"""
s_cbranch_vccz L_bdone
s_cmp_eq_u32 s76, 0
s_cbranch_scc1 L_bdone
s_mov_b64 exec, vcc
s_sleep {OPT['bsl']}
""")
bpoll()
a("s_branch L_bchk")
a.label("L_bdone")
def fine4(k):
    if OPT["fine"] == 4: a(f"s_memrealtime s[{[4,6,8,10,48,50,54,56][k]}:{[4,6,8,10,48,50,54,56][k]+1}]")
fine4(0)
red(FB, BB); gate(FB, GV+1)
fine4(1)
if OPT["fine"] == 4: a("s_mov_b32 s8, 0")
if OPT["asl0"]: a(f"s_sleep {OPT['asl0']}")
a.label("L_apoll")
for k in range(2):
    a(f"buffer_load_dwordx4 v[{AA+4*k}:{AA+4*k+3}], v{X+13}, s[12:15], s66 offen offset:{2048*k} sc1")
a("s_mov_b64 exec, -1")
far([66])
a("s_waitcnt vmcnt(0)")
if OPT["fine"] == 4: a("s_cmp_lg_u32 s8, 0\ns_cbranch_scc1 L_fx\ns_memrealtime s[8:9]\ns_waitcnt lgkmcnt(0)\nL_fx:")
tag_chk([AA, AA+4], TT)
a(f"""
s_cbranch_vccz L_adone
s_mov_b64 exec, vcc
{"s_sleep %d" % OPT["aslp"] if OPT["aslp"] else ""}
s_cmp_lg_u32 s76, 0
s_cbranch_scc1 L_apoll
s_mov_b64 exec, -1
""")
a.label("L_adone")
fine4(3)
red(A3, AA); gate(A3, GV)
a(f"""
v_add_f32 v{A3}, v{A3}, v{FB}
v_cvt_pk_bf16_f32 v{A3}, v{A3}, v{A3}
""")
a(f"""
s_mov_b32 exec_lo, 0x000f000f
s_mov_b32 exec_hi, 0x000f000f
buffer_store_short v{A3}, v{X+23}, s[60:63], s99 offen {['', 'sc1', 'nt', 'sc0 sc1'][OPT['opol']]}
s_mov_b64 exec, -1
""")
if OPT["stamps"]:
    stamp(6)
    wstamps()
    a(f"s_lshl_b32 s29, s16, 6\ns_add_u32 s29, s29, {STAMP}\ns_waitcnt lgkmcnt(0)")
    for k in range(7):
        a(f"v_mov_b32 v{T}, s{80+2*k}\nv_mov_b32 v{T+1}, s{81+2*k}\nbuffer_store_dwordx2 v[{T}:{T+1}], v{ZR}, s[12:15], s29 offen offset:{8*k}\ns_nop 1")
    a(f"v_mov_b32 v{T}, s76\nbuffer_store_dword v{T}, v{ZR}, s[12:15], s29 offen offset:56")
a("s_endpgm")
for t_ in ool: a(t_)
a.label("L_prep")
a(f"""
s_sub_u32 s76, s76, {256 if OPT["stamps"] else 1}
s_cmp_le_i32 s76, 0
s_cbranch_scc1 L_pdone
{"" if PH else "s_mov_b64 exec, vcc"}
""")
for k in range(1 if OP and not CR else 2 if PH else 4):
    if PH and OPT["spec"]: patom(k)
    else: a(f"buffer_load_dwordx4 v[{PA+4*k}:{PA+4*k+3}], v{X+7}, s[12:15], {'s33 offen' if PLY and k else f's74 offen offset:{(2048 if CR else 1024)*k}'} sc1")
a("s_branch L_pchk")
a.label("L_end")
a("s_endpgm")
a.L += ['.section .rodata,"a"', ".p2align 6", f".amdhsa_kernel {NAME}_kernel",
        "  .amdhsa_next_free_vgpr 168", "  .amdhsa_next_free_sgpr 102", "  .amdhsa_accum_offset 168",
        "  .amdhsa_group_segment_fixed_size 0", "  .amdhsa_kernarg_size 104", "  .amdhsa_user_sgpr_count 2",
        "  .amdhsa_user_sgpr_kernarg_segment_ptr 1", "  .amdhsa_system_sgpr_workgroup_id_x 1", ".end_amdhsa_kernel"]
if OPT["sf"]:
    L = a.L
    i0 = L.index("L_stream:")
    i1 = i0; c_ = 0
    while c_ < min(NPRE, OPT["sf"]*4):
        i1 += 1
        if "buffer_load_dwordx4" in L[i1]: c_ += 1
    head = L[i0+1:i1+1]
    del L[i0+1:i1+1]
    j = L.index("  s_cbranch_scc1 L_stream")
    L[j:j+1] = ["  s_cbranch_scc0 L_help"] + head + ["  s_branch L_stream", "L_help:"]
txt, n = a.text()
open(out, "w").write(txt)
print(f"wrote {out}: {len(txt.splitlines())} lines, {n} nops inserted", file=sys.stderr)
```

```python
import sys, struct
from asmlib import Asm
out = sys.argv[1]
OPT = dict(stamps=0, Wp=8, npre=4, hdr=1, stag=10, hslp=32, qslp=8, nse=29, lead=8, t1=448, t2=384, dslp=2,
           np2=1, np3=2, flit=3, slowp=8, bprio=3, maxf=4, tcha=0, tchb=0, asl=36, tpol=1, wqnt=1, ffnt=1, hd=200, qd=64, prew=0, coal=1, pgate=0, bpat=2, slowth=16, fastp=0, bsl=1, adel=90, perm=0, gx=0, noff=252, sperm=4, eager=1024, f1=0, f2=0, f1slp=2, f2slp=1, f2del=0, fmax=4096, f3=0, rsh=2, fdel=170, f3slp=4, lead2=8, t3=420, fw=1, aat=0, aslp=0, apol=1, na=160, xrot=0, asl0=0, bpa=1, fin=4, nob=0, tb=1, prw=0, fine=0, inc=1, f1th=0, f1sl2=16, hbn=0, fo=0, fst=64, fpol=2, fone=4, nopart=0, noa=0, bdel=0, fful=0, mlate=1, fgo=0, px4=1, xm=1, xforce=0, bpe=3, tcw=0, tc0=0, lay=0, tcd=0, col=1, kill=1, t4=400, kill2=0, t5=460, lead3=8, kill0=1, k0at=0, rot=0, r1=104, r2=256, swm=0, ms=-1, mc=0, mr=0, vo=0, numa=0, late=1, tb1=440, tslp=4, lb=2, skip=0, tp=0, tk=0, leadk=12, leadf=14, tf=480, kv=10, cap1=84, nst=5, jit=0, tk2=400, tr=0, tsh=0, il=0, wdel=12, spec=0, snt=0, opol=0, one=1, pd=290, pc=40, pe=5, pslp=2, pw=0, pws=0, fb=1, fbl=84, fbs=3, fbc=40, fb0=12, fbp=8, fbg=4, fbm=40, pp=0, pp0=2, pps=16, ppo=0, nm=0, wx=0, t2m=0, xb=0, w8=0, w8p=1, w8s=0, w8d=0, w8n=8, dl=0, dlb=0, dlw=1, ad=0, pt=0, st=0, pdv=0, pdw=61, fbn=0, bd0=0, bs0=0, bs1=0, ef=0, kl=0, rm=0, gu=0, xl=0, gsl=0, gd=0, gr=0, xf=1, gt=0, gp=150, fk=0, fq=0, ks=0, q1d=16, q1s=4, f1d=64, f1s=16, bt=0, kl2=0, fm=0, dw=0, dwp=1, dr=0, hp=0, l2p=0, tsec=2, tw=0, tx4=0, tnt=0, fz=0, ql=0, hl=0, kpl=0, fh=0, hr=0, fp=0, fps=6, fp0=0, rv=0, rvt=0, rvs=4, sf=0, pbp=1, wl=0, eb=0, ebw=0, ebd=0, psm=0, ph=0, ply=0, spo=0, dup=0, dupl=0, ps=0, bw=0, bwd=0, bws=8, bwo=0, bwt=0, bwp=3, bwn=32, rvl=0, rv0=72, bp1=0, bpz=0, we=0, wed=0, ep=0, epz=0, cl=0, cla=3, ec=0, ecb=18, ecn=3, op=0, r3=128, sp=0, spn=1, wes=8, cr=0, cre=2, crl=4, leade=10, awp=0, crb=0, ww=0, wpo=1, wpn=0, pr=0, prd=0, fs=0, fa=0, fpl=0, ppl=0, ptn=1, lh=0, lhp=1, lha=1, lhd=0)
for a_ in sys.argv[2:]:
    k, v = a_.split("="); assert k in OPT, k; OPT[k] = int(v)
if OPT["r1"] or OPT["r2"]: OPT["rot"] = -1
Wp = OPT["Wp"]; NPRE = OPT["npre"]
HR = OPT["hr"]
if HR: OPT["xl"] = 1; OPT["xf"] = 1; OPT["ql"] = 1; OPT["hl"] = 1; OPT["l2p"] = 0
TB = 0x1C000
KQ = OPT["ks"] & 1; KF_ = OPT["ks"] & 2
QP, FP = 0x80000, 0x300000
GU = OPT["gu"]; XL = OPT["xl"]
XB = OPT["xb"]; MEM = "s19" if XB else "s17"
NAME = "gated_mix__gqa_block_cached__geglu_ffn__decode"
def f32(x): return "0x%08x" % struct.unpack("<I", struct.pack("<f", x))[0]
LOG2E = 1.4426950408889634
SCALE = 128 ** -0.5
QG, HG, ML, BP, PART, AP, STAMP, CNT = 0x0, 0x20000, 0x40000, 0x80000, 0x100000, 0x200000, 0x400000, 0x480000
F1, F2 = 0x60000, 0x70000
FG, CPA, CPB = 0x40000, 0x200000, 0x300000
if OPT['lay']:
    CNT, CPA, PART = 0x80000, 0x100000, 0x200000
OST = 272
XID = 0x60000
CST = 528
CSTR = 4096 + 256
WS_BYTES = 0x500000
FST = OPT['fst']
LOG = OPT['fine'] == 8
LG9 = OPT['fine'] == 9
if LOG or LG9: WS_BYTES = 0x600000
if OPT['fful']:
    FG = 0x500000; WS_BYTES = FG + 2048*OPT['fful']
elif FST > 64:
    FG = 0x500000; WS_BYTES = FG + 2048*FST
R1 = 0x20000
WO_LDS = R1
R2 = 0x24000
Q_LDS = R2
MISC = R2 + 0x800
MLT = MISC + 0x100
WTL = MISC + 0x300
BW = OPT["bw"]
BP1 = OPT["bp1"]; FTL = MISC + 0x400
O_LDS = R2 + 0x1000
CH = R2 + 0x1400
WD_LDS = R2 + 0x2000
LDS_BYTES = 0x28000
NU = 1024
NSE = OPT["nse"]; LEAD = OPT["lead"]
TK = MISC + 128
K0 = OPT["kill0"]
NUMA = 0
RING = 12288
SB = 8*RING
NSLOT = 192
SENT = 0x7F817F81
ONET = OPT['one'] and not OPT['tk']
PW = OPT['pw']
PD = OPT['pd'] or PW
T1B = CH; T2B = CH + (4*(NSE + K0) if ONET else 1024)
VB = 0x8000
KN = OPT["kill"]; KV = OPT["kv"]
NST = OPT["nst"]; NSU = 3 + NST
SE = 4*NSU
assert KV <= SE + NSE and SE + NSE <= 63
K0TXT = f"""
v_subrev_u32 v5, {K0*0x10001}, v4
v_cmp_le_u32 vcc, {OPT['k0at']}, v0
v_mov_b32 v6, {514 if OPT['rv'] & 2 else 512}
v_cndmask_b32 v4, v4, v6, vcc
v_cmp_le_u32 vcc, {OPT['k0at'] + K0}, v0
v_cndmask_b32 v4, v4, v5, vcc
""" if K0 else ""
CBASE = 8
OP = OPT["op"]; NM = 4 if OP else 8; LIM = 64*NM
def HS(d): return f"s_bfe_u32 {d}, s18, 0x10002" if OP == 3 else f"s_and_b32 {d}, s17, 1" if OP == 1 else f"s_lshr_b32 {d}, s17, 2"
def US(d): return f"s_and_b32 {d}, s18, 3" if OP == 3 else f"s_lshr_b32 {d}, s17, 1" if OP == 1 else f"s_and_b32 {d}, s17, 3"
if OP: OPT["tf"] //= 2
CR = OPT["cr"]; FS_ = OPT["fs"]
assert OP or not FS_
LH = OPT["lh"]
assert OP == 3 or not LH
def ROLE(t): return f"s_xor_b32 {t}, s18, s17\ns_bitcmp1_b32 {t}, 0"
DYN0 = NM*SE + NM*NSE
SPIN = 1 << 16
a = Asm()
hdr = open("cdna_kernels/%s.s.ref" % NAME).read().split("; Override launch")[0] if OPT["hdr"] else ""
a.L += [l for l in hdr.rstrip().split("\n")] if hdr else []
a.L.append(f"; @launch grid=(256,1,1) block=(640,1,1) lds={LDS_BYTES}")
a.L += ['.amdgcn_target "amdgcn-amd-amdhsa--gfx950"', ".text", f".globl {NAME}_kernel", ".p2align 8",
        f".type {NAME}_kernel,@function", f"{NAME}_kernel:"]

def srd(d, ptr, nbytes):
    a(f"s_mov_b32 s{d}, s{ptr}\ns_mov_b32 s{d+1}, s{ptr+1}\ns_mov_b32 s{d+2}, {hex(nbytes)}\ns_mov_b32 s{d+3}, 0x00020000")
P_X, P_K, P_V, P_WQ, P_WO, P_BX, P_WG, P_WU, P_WD, P_GW, P_OUT, P_DBG, P_WS = [32 + 2*i for i in range(13)]
def stamp(idx):
    if OPT["stamps"]:
        a(f"s_memrealtime s[{80+2*idx}:{81+2*idx}]")
def any_eq(regs, val, neg=False):
    op = "v_cmp_ne_u32" if neg else "v_cmp_eq_u32"
    a(f"{op} vcc, {val}, v{regs[0]}")
    for r in regs[1:]:
        a(f"{op} s[78:79], {val}, v{r}\ns_or_b64 vcc, vcc, s[78:79]")
def spin_tail(loop, done, sleep=0):
    a(f"""
s_sub_u32 s76, s76, 1
s_cmp_eq_u32 s76, 0
s_cbranch_scc1 {done}
""")
    if sleep:
        a(f"s_cmp_eq_u64 vcc, 0\ns_cbranch_scc1 {done}\ns_sleep {sleep}\ns_branch {loop}")
    else:
        a(f"s_cmp_lg_u64 vcc, 0\ns_cbranch_scc1 {loop}")
    a.label(done)
def xsum(regs, tmps, ror, op="v_add_f32", swaps=("v_permlane16_swap_b32", "v_permlane32_swap_b32")):
    for k in ror:
        for r in regs: a(f"{op}_dpp v{r}, v{r}, v{r} row_ror:{k} row_mask:0xf bank_mask:0xf")
    for sw in swaps:
        for r, t in zip(regs, tmps): a(f"v_mov_b32 v{t}, v{r}")
        for r, t in zip(regs, tmps): a(f"{sw} v{r}, v{t}")
        for r, t in zip(regs, tmps): a(f"{op} v{r}, v{r}, v{t}")
SEL = 42
def tag_consts(base):
    for j in range(4): a(f"s_mov_b32 s{base+j}, {hex(0x07060500 | j)}")
    a(f"s_mov_b32 s{base+4}, 0x0c0c0400\ns_mov_b32 s{base+5}, 0x04000c0c")
def tag_ins(r, vn, base):
    for j in range(4): a(f"v_perm_b32 v{r+j}, v{r+j}, v{vn}, s{base+j}")
def tag_bad(grans, vn, base, acc, t0, t1):
    for n_, r in enumerate(grans):
        a(f"v_perm_b32 v{t0}, v{r+1}, v{r}, s{base+4}\nv_perm_b32 v{t1}, v{r+3}, v{r+2}, s{base+5}")
        if n_ == 0:
            a(f"v_or_b32 v{acc}, v{t0}, v{t1}\nv_xor_b32 v{acc}, v{acc}, v{vn}")
        else:
            a(f"v_or_b32 v{t0}, v{t0}, v{t1}\nv_xor_b32 v{t0}, v{t0}, v{vn}\nv_or_b32 v{acc}, v{acc}, v{t0}")
def hstamps(first, n):
    if OPT["stamps"]:
        a(f"s_mov_b64 exec, -1\ns_lshl_b32 s29, s16, 7\ns_add_u32 s29, s29, {STAMP+0x8000+8*first}\ns_waitcnt lgkmcnt(0)\nv_mov_b32 v3, 0")
        for k in range(n):
            a(f"v_mov_b32 v4, s{80+2*k}\nv_mov_b32 v5, s{81+2*k}\nbuffer_store_dwordx2 v[4:5], v3, s[12:15], s29 offen offset:{8*k}\ns_nop 1")

def trn(d):
    tr = OPT["tr"]; ts = 3 + OPT["tsh"]
    if OPT["t2m"]: return f"""
s_bfe_u32 s100, {d}, 0x20001
s_bfe_u32 s101, {d}, 0x30003
s_andn2_b32 {d}, {d}, 62
{"s_xor_b32 s101, s101, s100" if OPT["t2m"] >= 2 else ""}
s_lshl_b32 s100, s100, 4
s_lshl_b32 s101, s101, 1
s_or_b32 {d}, {d}, s100
s_or_b32 {d}, {d}, s101
"""
    if OPT["nm"]: return f"""
s_lshr_b32 s100, {d}, 4
s_xor_b32 s100, s100, {d}
s_and_b32 s100, s100, 2
s_mul_i32 s100, s100, 17
s_xor_b32 {d}, {d}, s100
s_lshl_b32 s100, s19, 1
s_xor_b32 s100, s100, {2*(OPT["nm"]-1)}
s_and_b32 s100, s100, 2
s_xor_b32 {d}, {d}, s100
"""
    if not tr: return ""
    return f"""
s_and_b32 s100, {d}, {(1 << tr) - 1}
s_lshl_b32 s100, s100, {ts}
s_bfe_u32 s101, {d}, {hex((ts << 16) | tr)}
s_andn2_b32 {d}, {d}, {(1 << (tr+ts)) - 1}
s_or_b32 {d}, {d}, s100
s_or_b32 {d}, {d}, s101
"""
def backoff(n):
    while n > 0:
        a(f"s_sleep {min(n, 127)}"); n -= 127
def touch():
    a(f"""
s_mov_b64 exec, 0xffff
v_lshlrev_b32 v9, 7, v0
s_lshl_b32 s25, s17, 17
s_lshr_b32 s26, s18, 1
s_lshl_b32 s26, s26, 13
s_add_u32 s25, s25, s26
s_and_b32 s26, s18, 1
s_lshl_b32 s26, s26, 11
s_add_u32 s25, s25, s26
s_add_u32 s25, s25, {CPA}
buffer_load_dword v16, v9, s[12:15], s25 offen {['', 'sc1', 'nt'][OPT['tpol']]}
""")

XROT = "s_mov_b32 s16, s2" if not OPT["xrot"] else f"""
s_lshr_b32 s18, s2, 3
s_mul_i32 s17, s18, {OPT['xrot']}
s_add_u32 s17, s17, s2
s_and_b32 s17, s17, 7
s_andn2_b32 s16, s2, 7
s_or_b32 s16, s16, s17
"""
a("""
s_cmp_ge_u32 s2, 256
s_cbranch_scc1 L_end
s_load_dwordx16 s[32:47], s[0:1], 0
s_load_dwordx8 s[48:55], s[0:1], 64
s_load_dwordx2 s[56:57], s[0:1], 96
""")
stamp(0)
a(f"""
v_lshrrev_b32 v1, 6, v0
v_and_b32 v0, 63, v0
s_and_b32 s17, s2, 7
v_readfirstlane_b32 s3, v1
{XROT}
s_lshr_b32 s18, s16, 3
{"s_mov_b32 s19, s17" if OP == 3 else "s_and_b32 s19, s18, 7"}
s_lshr_b32 s20, s18, 3
s_xor_b32 s20, s20, {OPT['gx']}
s_cmp_lt_u32 s3, 8
s_cbranch_scc1 L_stream
v_and_b32 v10, 15, v0
v_lshrrev_b32 v11, 4, v0
v_lshlrev_b32 v2, 4, v11
v_lshl_add_u32 v2, v10, 10, v2
v_lshrrev_b32 v3, 1, v0
v_and_b32 v4, 1, v0
v_lshlrev_b32 v4, 4, v4
v_mov_b32 v13, 0
s_cmp_eq_u32 s3, 9
s_cbranch_scc1 L_hb
""")
AFR = 16; D0 = 48; WDV = 64; GX = 16; GW = 32; XF = 100; GG = 164; VN = 166; CP = 60
def frag_addr(sh=5):
    a(f"""
v_lshrrev_b32 v8, 2, v10
v_lshl_add_u32 v8, v11, 3, v8
v_lshlrev_b32 v9, {sh}, v8
v_and_b32 v8, 3, v0
v_lshl_add_u32 v9, v8, 3, v9
v_add_u32 v9, {R1}, v9
v_cmp_gt_u32 s[58:59], 8, v10
v_bfe_u32 v{CP+1}, v0, 2, 3
v_and_b32 v{CP+2}, 3, v0
v_lshl_add_u32 v{CP}, v{CP+2}, 4, v{CP+1}
v_lshlrev_b32 v{CP}, 2, v{CP}
""")
def gemv(va, Dr):
    def rd(bt):
        base = AFR + 16*(bt & 1)
        for k in range(4):
            t = 4*bt + k
            a(f"ds_read_b64_tr_b16 v[{base+4*k}:{base+4*k+1}], v{va} offset:{1024*t}")
            a(f"ds_read_b64_tr_b16 v[{base+4*k+2}:{base+4*k+3}], v{va} offset:{1024*t+128}")
    rd(0)
    for bt in range(4):
        if bt < 3:
            rd(bt+1); a("s_waitcnt lgkmcnt(8)")
        else:
            a("s_waitcnt lgkmcnt(0)")
        base = AFR + 16*(bt & 1)
        for k in range(4):
            t = 4*bt + k
            c = "0" if t == 0 else f"v[{Dr}:{Dr+3}]"
            a(f"v_mfma_f32_16x16x32_bf16 v[{Dr}:{Dr+3}], v[{base+4*k}:{base+4*k+3}], v[{XF+4*t}:{XF+4*t+3}], {c}")
def gemv128(va, DG, XB_):
    def rd(s_):
        for ct in range(4):
            q_ = AFR + 16*(s_ & 1) + 4*ct
            a(f"ds_read_b64_tr_b16 v[{q_}:{q_+1}], v{va} offset:{s_*4096+ct*32}\nds_read_b64_tr_b16 v[{q_+2}:{q_+3}], v{va} offset:{s_*4096+ct*32+512}")
    rd(0)
    for s_ in range(4):
        if s_ < 3:
            rd(s_+1); a("s_waitcnt lgkmcnt(8)")
        else:
            a("s_waitcnt lgkmcnt(0)")
        for ct in range(4):
            q_ = AFR + 16*(s_ & 1) + 4*ct; d = DG + 4*ct
            a(f"v_mfma_f32_16x16x32_bf16 v[{d}:{d+3}], v[{q_}:{q_+3}], v[{XB_+4*s_}:{XB_+4*s_+3}], {'0' if s_ == 0 else f'v[{d}:{d+3}]'}")
def pstore(DG, vn, va, so, pol):
    for h_ in range(2):
        d = DG + 8*h_
        for r in range(4): a(f"v_mov_b32_dpp v{d+r}, v{d+4+r} row_ror:8 row_mask:0xf bank_mask:0xc")
        tag_ins(d, vn, SEL)
        a(f"buffer_store_dwordx4 v[{d}:{d+3}], v{va}, s[12:15], {so} offen offset:{1024*h_} {pol}")
def ppoll(lbl, P, va, so, vn, t, delay, slp, so2=None, off2=1024):
    a(f"s_mov_b32 s76, {SPIN}")
    backoff(delay)
    a(f"""
{lbl}:
buffer_load_dwordx4 v[{P}:{P+3}], v{va}, s[12:15], {so} offen sc1
buffer_load_dwordx4 v[{P+4}:{P+7}], v{va}, s[12:15], {so2 or so} offen offset:{off2} sc1
s_waitcnt vmcnt(0)
""")
    tag_bad([P, P+4], vn, SEL, t, t+1, t+2)
    a(f"v_cmp_ne_u32 vcc, 0, v{t}")
    spin_tail(lbl, lbl + "d", sleep=slp)
    for r in range(8): a(f"v_and_b32 v{P+r}, 0xffffff00, v{P+r}")
a(f"""
s_setprio 3
s_memrealtime s[74:75]
""" + ("" if HR else f"""
s_mul_i32 s21, s17, {OPT['sperm']}
s_add_u32 s21, s21, s18
s_and_b32 s21, s21, 31
s_lshl_b32 s25, s17, 5
s_add_u32 s21, s21, s25
v_lshl_add_u32 v1, v3, 13, v4
s_lshl_b32 s25, s21, 5
v_add_u32 v1, s25, v1
""") + (f"""
v_lshrrev_b32 v1, 3, v0
v_and_b32 v5, 7, v0
v_lshlrev_b32 v5, 4, v5
v_lshl_add_u32 v1, v1, 13, v5
s_lshr_b32 s25, s21, 2
s_lshl_b32 s25, s25, 7
s_and_b32 s26, s21, 3
s_lshl_b32 s26, s26, 20
s_add_u32 s25, s25, s26
v_add_u32 v1, s25, v1
s_lshr_b32 s26, s26, 12
""" if OPT["fq"] or KQ else "") + f"""
s_mov_b64 s[72:73], 1
v_mov_b32 v15, {OPT['noff']}
v_lshlrev_b32 v3, 4, v0
s_waitcnt lgkmcnt(0)
""")
stamp(8)
srd(68, P_DBG, 256)
a(f"""
s_cmp_ge_u32 s16, 8
s_cbranch_scc1 L_nononce
s_or_b32 s74, s74, 1
v_mov_b32 v12, s74
s_mov_b64 exec, s[72:73]
buffer_atomic_cmpswap v[12:13], v15, s[68:71], 0 offen sc1
s_mov_b64 exec, -1
""")
a.label("L_nononce")
srd(60, P_WQ, 512*4096*2); srd(64, P_X, 8192)
backoff(OPT["ad"])
def x_dma():
    for b_ in range(8):
        a(f"v_xor_b32 v{16+b_}, {16*b_}, v3")
    for b_ in range(8):
        a(f"s_mov_b32 m0, {WD_LDS + 1024*b_}\ns_movk_i32 s25, {1024*b_}\nbuffer_load_dwordx4 v{16+b_}, s[64:67], s25 offen lds")
def x_frag(t0, t1):
    a(f"""
v_and_b32 v{t0}, 7, v10
v_xor_b32 v{t1}, v{t0}, v11
v_lshlrev_b32 v{t1}, 4, v{t1}
v_lshl_add_u32 v{t0}, v{t0}, 10, v{t1}
v_add_u32 v{t0}, {WD_LDS}, v{t0}
v_xor_b32 v{t1}, 64, v{t0}
""")
    for s_ in range(16):
        a(f"ds_read_b128 v[{XF+4*s_}:{XF+4*s_+3}], v{(t0, t1)[s_ & 1]} offset:{128*(s_ >> 1)}")
L2P = OPT["l2p"]
def touch_tile(va, sd, stride, dst):
    for h_ in range(2):
        a(f"s_mov_b32 s27, {64*h_*stride}")
        for sec in range(OPT["tsec"]):
            a(f"buffer_load_dword v{dst+2*h_+sec}, v{va}, s[{sd}:{sd+3}], s27 offen offset:{64*sec}{' nt' if OPT['tnt'] else ''}")
if L2P & 1:
    a(f"""
s_lshr_b32 s25, s21, 2
s_lshl_b32 s25, s25, 7
s_and_b32 s26, s21, 3
s_lshl_b32 s26, s26, 20
s_add_u32 s25, s25, s26
v_lshl_add_u32 v5, v0, 13, s25
""")
    touch_tile(5, 60, 8192, 56)
if XL and OPT["xf"] and not OPT["rm"] & 2: x_dma()
def wq_dma():
    a("s_mov_b32 s25, 0")
    for t in range(16):
        a(f"s_mov_b32 m0, {R1 + 1024*t}")
        if t: a(f"s_mov_b32 s25, {t*32*8192}")
        a(f"buffer_load_dwordx4 v55, s[60:63], s25 offen {'nt ' if OPT['wqnt'] else ''}lds")
if L2P & 1: a("v_mov_b32 v55, v1")
a("s_mov_b32 s25, 0")
RM = OPT["rm"]
if OPT["fh"] or HR:
    a(f"""
s_mov_b32 s21, -1
s_lshr_b32 s27, s18, 1
v_lshrrev_b32 v40, 2, v0
v_and_b32 v41, 3, v0
v_lshlrev_b32 v41, 4, v41
s_bitcmp1_b32 s18, 0
s_cbranch_scc1 L_fhg
s_lshl_b32 s29, s17, 4
s_add_u32 s29, s29, s27
s_lshl_b32 s21, s29, 10
s_add_u32 s21, s21, {QG}
s_lshl_b32 s29, s29, 6
v_lshl_add_u32 v40, v40, 13, v41
s_mov_b32 s28, {16*8192}
s_branch L_fhl
L_fhg:
s_cmp_ge_u32 s27, 14
s_cbranch_scc1 L_fhd
s_and_b32 s29, s17, 3
s_mul_i32 s29, s29, 14
s_add_u32 s29, s29, s27
s_lshl_b32 s21, s29, 10
s_lshr_b32 s28, s17, 2
s_lshl_b32 s28, s28, 16
s_add_u32 s21, s21, s28
s_add_u32 s21, s21, {HG}
s_lshl_b32 s29, s29, 6
v_mul_u32_u24 v40, 3584, v40
v_add_u32 v40, v40, v41
s_mov_b32 s28, {16*3584}
s_cmp_lt_u32 s17, 4
s_cselect_b32 s60, s{P_WG}, s{P_WU}
s_cselect_b32 s61, s{P_WG+1}, s{P_WU+1}
s_mov_b32 s62, {512*1792*2}
L_fhl:
""")
    for t in range(0 if RM & 1 else 32):
        a(f"s_mov_b32 m0, {TB + 1024*t if HR else R1 + 1024*(t & 15)}\n{'s_add_u32 s29, s29, s28' if t else 's_nop 0'}\nbuffer_load_dwordx4 v40, s[60:63], s29 offen nt lds")
    a.label("L_fhd")
for t in range(0 if RM & 1 or L2P & 1 or HR else 16):
    a(f"s_mov_b32 m0, {R1 + 1024*t}")
    if t and not OPT["skip"] & 8: a(f"s_mov_b32 s25, {t*(8 if OPT['fq'] or KQ else 32)*8192}")
    a(f"buffer_load_dwordx4 v1, s[60:63], s25 offen {'nt ' if OPT['wqnt'] else ''}lds")
if OPT["fine"] == 7: stamp(6)
if XL and not OPT["xf"]: x_dma()
for s_ in range(0 if RM & 2 or XL else 4 if KQ else 16):
    a(f"buffer_load_dwordx4 v[{XF+4*s_}:{XF+4*s_+3}], v2, s[64:67], {'s26' if KQ else 0} offen offset:{64*s_}")
srd(12, P_WS, WS_BYTES)
CNTA = f"""s_lshl_b32 s77, s17, 2
s_add_u32 s77, s77, s20
s_mul_i32 s77, s77, {CSTR}
s_add_u32 s77, s77, {CNT}
s_cmp_lg_u32 s19, 0""" if XB else f"""s_mul_i32 s77, s18, {CSTR}
s_add_u32 s77, s77, {CNT}
s_cmp_lg_u32 s17, 0""" if not NUMA else f"""s_lshr_b32 s75, s17, 2
s_lshl_b32 s77, s18, 1
s_add_u32 s77, s77, s75
s_mul_i32 s77, s77, {CSTR}
s_add_u32 s77, s77, {CNT}
s_xor_b32 s75, s75, s19
s_xor_b32 s75, s75, {NUMA-1}
s_and_b32 s75, s75, 1
s_and_b32 s25, s17, 3"""
STAT = f"""
ds_write_b64 v2, v[4:5] offset:144
v_lshl_add_u32 v35, v0, 16, v0
{US("s27") if OP else ""}
s_mul_i32 s25, {"s27" if OP else MEM}, {NSE}
s_add_u32 s26, s25, {NM*SE - SE + VB}
v_add_u32 v4, s26, v35
v_lshrrev_b32 v5, 2, v0
v_mul_u32_u24 v5, {4*NM - 4}, v5
s_lshl_b32 s26, {"s27" if OP else MEM}, 2
s_add_u32 s26, s26, {VB}
v_add3_u32 v5, v5, s26, v35
v_cmp_gt_u32 vcc, {64 if OPT["il"] else SE}, v0
v_cndmask_b32 v4, v4, v5, vcc
v_lshlrev_b32 v1, 2, v0
v_add_u32 v5, {4*KN}, v1
v_cmp_gt_u32 vcc, {KV}, v0
v_cndmask_b32 v5, v5, v1, vcc
v_add_u32 v5, {T2B}, v5
""" + (f"""
v_mov_b32 v66, v5
v_mov_b32 v67, v4
""" if PD else f"""
s_bfm_b64 exec, {SE + NSE}, 0
ds_write_b32 v5, v4
""") + (f"""
v_mov_b32 v4, {514 if OPT['rv'] & 1 else 512}
v_add_u32 v5, {T2B + 4*KV}, v1
s_mov_b64 exec, {(1 << KN) - 1}
ds_write_b32 v5, v4
""" if KN else "") + f"""
s_mov_b64 exec, -1
s_add_u32 s25, s25, {NM*SE + (SE << 16)}
v_add_u32 v4, s25, v35
""" + (f"""
v_subrev_u32 v6, {K0}, v0
v_cmp_gt_u32 vcc, {OPT['k0at'] + K0}, v0
v_cndmask_b32 v6, v6, v0, vcc
v_lshrrev_b32 v6, 2, v6
v_mul_u32_u24 v6, {4*NM - 4}, v6
s_add_u32 s26, s26, {NM*SE + (SE << 16) - VB}
v_add3_u32 v4, v6, s26, v35
""" if OPT["il"] else "")
QCH = f"""s_mul_i32 s27, s17, {OPT['sperm']}
s_lshl_b32 s28, s20, 3
s_add_u32 s27, s27, s28
s_and_b32 s27, s27, 31
s_lshl_b32 s28, s17, 5
s_add_u32 s27, s27, s28
s_lshl_b32 s27, s27, 6""" if XB else f"""s_lshl_b32 s27, s18, 6""" if not NUMA else f"""s_and_b32 s27, s17, 4
s_mul_i32 s28, s27, {OPT['sperm']}
s_add_u32 s28, s28, s18
s_and_b32 s28, s28, 31
s_lshl_b32 s27, s27, 5
s_add_u32 s27, s27, s28
s_lshl_b32 s27, s27, 6"""
if HR:
    CNTA = f"""s_lshl3_add_u32 s77, s20, s19
s_mul_i32 s77, s77, {CSTR}
s_add_u32 s77, s77, {CNT}
{HS("s25") + chr(10) + "s_lshl_b32 s25, s25, 11" + chr(10) + "s_add_u32 s77, s77, s25" if OP else ""}
s_lshl_b32 s25, s18, 2
s_add_u32 s25, s25, s17
s_mul_i32 s25, s25, {CSTR}
s_add_u32 s25, s25, {CNT}
s_and_b32 s26, s18, 25"""
a(f"""
{CNTA}
s_cbranch_scc1 L_nocnt
v_mov_b32 v14, {CBASE}
s_mov_b64 exec, s[72:73]
buffer_store_dword v14, v13, s[12:15], {"s25" if HR else "s77"} offen sc1
{"buffer_store_dword v14, v13, s[12:15], s25 offen offset:2048 sc1" if OP else ""}
""" + ("""
v_mov_b32 v4, 0
v_mov_b32 v5, 0
v_mov_b32 v6, 0
v_mov_b32 v7, 0
buffer_store_dwordx4 v[4:7], v13, s[12:15], s77 offen offset:128 sc1
buffer_store_dwordx4 v[4:7], v13, s[12:15], s77 offen offset:144 sc1
""" if PW else "") + """
s_mov_b64 exec, -1
""")
a.label("L_nocnt")
a(f"""
buffer_load_dword v12, v15, s[68:71], 0 offen sc1
v_mov_b32 v4, -1
v_mov_b32 v5, -1
v_mov_b32 v6, -1
v_mov_b32 v7, -1
v_add_u32 v1, {CH}, v3
ds_write_b128 v1, v[4:7]
ds_write_b128 v1, v[4:7] offset:1024
ds_write_b128 v1, v[4:7] offset:2048
v_mov_b32 v2, {MISC}
v_mov_b32 v4, 0
v_mov_b32 v5, 0
v_mov_b32 v6, 0
v_mov_b32 v7, 0
ds_write_b128 v2, v[4:7] offset:128
{STAT}
v_lshlrev_b32 v1, 2, v0
v_add_u32 v1, {CH}, v1
{K0TXT}
v_cmp_gt_u32 vcc, {min(PW, NSE + K0) if PW else K0 if PD else NSE + K0}, v0
v_mov_b32 v64, v1
v_mov_b32 v65, v4
s_mov_b64 exec, vcc
ds_write_b32 v1, v4
s_mov_b64 exec, -1
""")
if HR:
    a(f"""
v_lshrrev_b32 v8, 2, v10
v_lshl_add_u32 v8, v11, 3, v8
v_lshlrev_b32 v9, 6, v8
v_and_b32 v8, 3, v0
v_lshl_add_u32 v9, v8, 3, v9
v_add_u32 v9, {TB}, v9
v_lshrrev_b32 v{CP}, 3, v0
v_lshl_add_u32 v{CP}, v8, 4, v{CP}
v_and_b32 v8, 4, v0
v_lshl_add_u32 v{CP}, v8, 1, v{CP}
v_lshlrev_b32 v{CP}, 2, v{CP}
""")
else: frag_addr(7 if KQ else 5)
if KQ:
    tag_consts(SEL)
    a(f"""
v_and_b32 v52, 7, v10
v_lshl_add_u32 v52, v11, 3, v52
v_lshlrev_b32 v52, 4, v52
v_lshrrev_b32 v53, 3, v10
v_lshl_add_u32 v53, v53, 9, v52
s_andn2_b32 s28, s21, 3
s_lshl_b32 s28, s28, 11
s_and_b32 s29, s21, 3
s_lshl_b32 s29, s29, 9
s_add_u32 s28, s28, s29
s_add_u32 s28, s28, {QP}
s_lshl_b32 s29, s21, 11
s_add_u32 s29, s29, {QP}
""")
    if OPT["kpl"]:
        a(f"""
v_lshrrev_b32 v54, 3, v10
v_lshl_add_u32 v52, v54, 11, v52
s_add_u32 s30, s28, 4096
""")
a(f"s_mov_b32 s76, {SPIN}\ns_waitcnt lgkmcnt(0)")
stamp(7)
a("s_barrier")
stamp(1)
if L2P & 1:
    a(f"s_waitcnt vmcnt({9 if XL else 17})")
    backoff(OPT["tw"])
    wq_dma()
if HR:
    a("s_cmp_eq_u32 s21, -1\ns_cbranch_scc1 L_nogv\ns_waitcnt vmcnt(33)")
    x_frag(56, 57)
    def rd(bt):
        if bt % 2 == 0: a(f"s_waitcnt vmcnt({25 - 4*bt})")
        for k in range(2):
            for ct in range(2):
                q_ = AFR + 16*(bt & 1) + 8*k + 4*ct; o_ = (2*bt + k)*2048 + 32*ct
                a(f"ds_read_b64_tr_b16 v[{q_}:{q_+1}], v9 offset:{o_}\nds_read_b64_tr_b16 v[{q_+2}:{q_+3}], v9 offset:{o_+256}")
    rd(0)
    for bt in range(8):
        if bt < 7:
            rd(bt+1); a("s_waitcnt lgkmcnt(8)")
        else:
            a("s_waitcnt lgkmcnt(0)")
        for k in range(2):
            for ct in range(2):
                q_ = AFR + 16*(bt & 1) + 8*k + 4*ct; t = 2*bt + k; d = D0 + 4*ct
                a(f"v_mfma_f32_16x16x32_bf16 v[{d}:{d+3}], v[{q_}:{q_+3}], v[{XF+4*t}:{XF+4*t+3}], {'0' if t == 0 else f'v[{d}:{d+3}]'}")
    a(f"""
v_cvt_pk_bf16_f32 v4, v{D0}, v{D0+1}
v_cvt_pk_bf16_f32 v6, v{D0+2}, v{D0+3}
v_cvt_pk_bf16_f32 v56, v{D0+4}, v{D0+5}
v_cvt_pk_bf16_f32 v57, v{D0+6}, v{D0+7}
v_mov_b32_dpp v4, v56 row_ror:8 row_mask:0xf bank_mask:0xc
v_mov_b32_dpp v6, v57 row_ror:8 row_mask:0xf bank_mask:0xc
ds_bpermute_b32 v4, v{CP}, v4
ds_bpermute_b32 v6, v{CP}, v6
L_nogv:
""")
elif XL and OPT["xf"]:
    a("s_waitcnt vmcnt(17)"); x_frag(52, 53)
a("s_waitcnt vmcnt(0)")
if XL and not OPT["xf"]: x_frag(52, 53)
a.label("L_np")
a(f"""
v_readfirstlane_b32 s74, v12
s_sub_u32 s76, s76, 1
s_cmp_eq_u32 s76, 0
s_cbranch_scc1 L_np_done
s_cmp_lg_u32 s74, 0
s_cbranch_scc1 L_np_done
buffer_load_dword v12, v15, s[68:71], 0 offen sc1
s_waitcnt vmcnt(0)
s_branch L_np
""")
a.label("L_np_done")
PAC = 0x4D0000; PST = 4352
if OPT["fb"]:
    a(f"""
s_cmp_lg_u32 s16, 0
s_cbranch_scc1 L_nfi
v_mov_b32 v5, s74
v_mul_u32_u24 v7, {PST}, v0
s_mov_b32 s25, {PAC}
s_mov_b64 exec, 0xffff
buffer_store_dword v5, v7, s[12:15], s25 offen sc1
s_mov_b64 exec, -1
L_nfi:
""")
stamp(2)
if KQ: gemv128(9, 68, XF)
elif not HR: gemv(9, D0)
a(f"""
v_mov_b32 v5, s74
v_mov_b32 v7, s74
v_mov_b32 v8, 1
ds_write_b32 v2, v5 offset:96
ds_write_b32 v2, v8 offset:136
""")
if KQ and OPT["kpl"]:
    pstore(68, 5, 53, "s29", '' if OPT['kl2'] & 1 else 'sc1')
    ppoll("L_q1", 84, 52, "s28", 5, 54, OPT["q1d"], OPT["q1s"], "s30", 0)
    for r in range(4): a(f"v_add_f32 v{D0+r}, v{84+r}, v{88+r}")
    for r in range(4): a(f"v_add_f32_dpp v{D0+r}, v{D0+r}, v{D0+r} row_ror:8 row_mask:0xf bank_mask:0xf")
elif KQ:
    a("s_mov_b64 exec, s[58:59]")
    for ct in range(4):
        tag_ins(68 + 4*ct, 5, SEL)
        a(f"buffer_store_dwordx4 v[{68+4*ct}:{71+4*ct}], v52, s[12:15], s28 offen offset:{2048*(ct & 1)} {'' if OPT['kl2'] & 1 else 'sc1'}")
        if ct == 1: a("s_add_u32 s28, s28, 4096")
    a("s_mov_b64 exec, -1")
    ppoll("L_q1", 84, 53, "s29", 5, 54, OPT["q1d"], OPT["q1s"])
    for r in range(4): a(f"v_add_f32 v{D0+r}, v{84+r}, v{88+r}")
    for r in range(4): a(f"v_add_f32_dpp v{D0+r}, v{D0+r}, v{D0+r} row_ror:8 row_mask:0xf bank_mask:0xf")
QL = OPT["ql"]; HL = OPT["hl"]
def qpub_old():
    a(f"""
s_lshl_b32 s25, s21, {9 if QL else 6}
s_add_u32 s25, s25, {QG}
v_cvt_pk_bf16_f32 v4, v{D0}, v{D0+1}
v_cvt_pk_bf16_f32 v6, v{D0+2}, v{D0+3}
""")
    if OPT["coal"]:
        a(f"""
ds_bpermute_b32 v4, v{CP}, v4
ds_bpermute_b32 v6, v{CP}, v6
v_lshlrev_b32 v14, 4, v{CP+2}
v_lshl_add_u32 v14, v{CP+1}, {6 if QL else 14}, v14
s_mov_b32 exec_hi, 0
s_waitcnt lgkmcnt(0)
""")
    else:
        a(f"""
v_lshlrev_b32 v14, 4, v11
v_lshl_add_u32 v14, v10, 14, v14
s_mov_b64 exec, s[58:59]
""")
    a(f"""
buffer_store_dwordx4 v[4:7], v14, s[12:15], s25 offen sc1
s_mov_b64 exec, -1
""")
if HR:
    a(f"""
s_cmp_eq_u32 s21, -1
s_cbranch_scc1 L_nopub
s_waitcnt lgkmcnt(0)
{"" if RM & 128 else "buffer_store_dwordx4 v[4:7], v3, s[12:15], s21 offen " + ['', 'sc1', 'sc1 nt', 'sc0 sc1', 'sc0 sc1 nt'][OPT['pbp']]}
L_nopub:
v_mov_b32 v16, {hex(SENT)}
v_mov_b32 v17, {hex(SENT)}
v_mov_b32 v18, {hex(SENT)}
v_mov_b32 v19, {hex(SENT)}
v_add_u32 v1, {TB}, v3
""")
    for k in range(8): a(f"ds_write_b128 v1, v[16:19] offset:{1024*k}")
else: qpub_old()
if OPT["dw"] or OPT["dr"]:
    a(f"s_lshl_b32 s28, s21, 12\ns_add_u32 s28, s28, {FP}")
    for k in range(OPT["dw"]):
        a(f"buffer_store_dwordx4 v[16:19], v3, s[12:15], s28 offen offset:{1024*k} {['', 'sc1', 'nt', 'sc0 sc1', 'sc1 nt'][OPT['dwp']]}")
    for k in range(OPT["dr"]):
        a(f"buffer_load_dwordx4 v[84:87], v3, s[12:15], s28 offen offset:{1024*k} sc1")
stamp(3)
a(f"""
{"s_lshl_b32 s25, s17, 14" if XB else "s_lshl_b32 s25, s20, 15"}
{"s_lshl_b32 s26, s20, 12" if XB else "s_lshl_b32 s26, s19, 11"}
s_add_u32 s25, s25, s26
s_add_u32 s25, s25, {QG}
s_add_u32 s26, s25, {2048 if XB else 16384}
{QCH}
""" + (f"""
s_lshl_b32 s25, s19, 14
s_lshl_b32 s26, s20, 8
s_add_u32 s25, s25, s26
{HS("s26")}
s_lshl_b32 s26, s26, 7
s_add_u32 s25, s25, s26
s_add_u32 s25, s25, {QG}
s_add_u32 s26, s25, 8192
v_and_b32 v14, 7, v0
v_lshlrev_b32 v14, 4, v14
v_lshrrev_b32 v1, 3, v0
v_lshl_add_u32 v14, v1, 10, v14
v_lshlrev_b32 v1, 3, v0
v_add_u32 v1, {Q_LDS}, v1
""" if OP else f"""
s_lshl_b32 s25, s19, 14
s_lshl_b32 s26, s20, 8
s_add_u32 s25, s25, s26
s_add_u32 s25, s25, {QG}
s_add_u32 s26, s25, 4096
s_add_u32 s28, s25, 8192
s_add_u32 s29, s25, 12288
v_lshlrev_b32 v14, 4, v10
v_lshl_add_u32 v14, v11, 10, v14
v_and_b32 v1, 7, v0
v_lshl_add_u32 v1, v11, 3, v1
v_lshlrev_b32 v1, 3, v1
v_bfe_u32 v9, v0, 3, 1
v_lshl_add_u32 v1, v9, 10, v1
v_add_u32 v1, {Q_LDS}, v1
""" if HR else f"""
s_lshl_b32 s27, s27, 3
s_lshl_b32 s25, s19, 14
s_lshl_b32 s26, s20, 7
s_add_u32 s25, s25, s26
s_add_u32 s25, s25, {QG}
s_add_u32 s26, s25, 4096
s_add_u32 s28, s25, 8192
s_add_u32 s29, s25, 12288
v_lshrrev_b32 v1, 3, v0
v_and_b32 v14, 7, v0
v_lshlrev_b32 v14, 4, v14
v_lshl_add_u32 v14, v1, 9, v14
v_lshl_add_u32 v1, v1, 2, v{CP+2}
v_lshlrev_b32 v1, 3, v1
v_bfe_u32 v4, v0, 2, 1
v_lshl_add_u32 v1, v4, 10, v1
v_add_u32 v1, {Q_LDS}, v1
""" if QL else "") + f"""
s_add_u32 s27, s27, {QG}
s_mov_b32 s76, {SPIN}
""")
backoff(OPT["qd"] + (OPT["fq"] if OPT["fq"] > 1 else 0))
a.label("L_qpoll")
if RM & 32: a("s_sleep 100\ns_branch L_qdone")
if QL: a(f"""
buffer_load_dwordx4 v[16:19], v14, s[12:15], s25 offen sc1
buffer_load_dwordx4 v[20:23], v14, s[12:15], s26 offen sc1
{"" if OP else "buffer_load_dwordx4 v[24:27], v14, s[12:15], s28 offen sc1"}
{"" if OP else "buffer_load_dwordx4 v[28:31], v14, s[12:15], s29 offen sc1"}
{"" if HR else "buffer_load_dwordx4 v[32:35], v13, s[12:15], s27 offen sc1"}
s_waitcnt vmcnt(0)
""")
else: a(f"""
buffer_load_dwordx4 v[16:19], v3, s[12:15], s25 offen sc1
buffer_load_dwordx4 v[20:23], v3, s[12:15], s25 offen offset:1024 sc1
{"" if OPT["hp"] & 1 else "buffer_load_dwordx4 v[24:27], v3, s[12:15], s26 offen sc1"}
{"" if OPT["hp"] & 1 else "buffer_load_dwordx4 v[28:31], v3, s[12:15], s26 offen offset:1024 sc1"}
buffer_load_dwordx4 v[32:35], v13, s[12:15], s27 offen sc1
s_waitcnt vmcnt(0)
""")
any_eq([17, 19, 21, 23, 33, 35] if OPT["hp"] & 1 else list(range(17, 24 if OP else 32 if HR else 36, 2)), "s74", neg=True)
spin_tail("L_qpoll", "L_qdone", sleep=OPT["qslp"])
stamp(4)
a(f"""
v_mov_b32 v17, v18
v_mov_b32 v21, v22
v_mov_b32 v25, v26
v_mov_b32 v29, v30
{"" if QL else "v_lshlrev_b32 v1, 3, v0"}
{"" if QL else f"v_add_u32 v1, {Q_LDS}, v1"}
ds_write_b64 v1, v[16:17]
ds_write_b64 v1, v[20:21] offset:{512 if OP else 256 if QL else 512}
{"" if OP else f"ds_write_b64 v1, v[24:25] offset:{512 if QL else 1024}"}
{"" if OP else f"ds_write_b64 v1, v[28:29] offset:{768 if QL else 1536}"}
s_waitcnt lgkmcnt(0)
ds_write_b32 v2, v8 offset:132
""")
stamp(5)
a(f"""
s_mov_b32 s21, {NSE + K0}
s_mov_b32 s22, {NSE + K0}
s_mov_b32 s20, {SE + NSE}
s_mov_b32 s19, {SE + NSE}
s_mov_b32 s23, 0
s_mov_b32 s24, 0
s_mov_b32 s26, 0
s_mov_b32 s27, 0
s_mov_b32 s28, 0
s_mov_b32 s29, {0 if OPT['tk'] else 1}
v_mov_b32 v4, 0
v_lshl_add_u32 v5, v0, 16, v0
s_mov_b32 s76, {SPIN*64}
""")
FST1 = """s_cmp_lg_u32 s60, 0
s_cbranch_scc1 L_fs1
s_mov_b32 s60, 1
s_memrealtime s[82:83]
L_fs1:"""
RV = OPT["rv"]
RVT = f"""s_cmp_lt_u32 s28, {OPT['rvt']}
s_cbranch_scc1 L_nrv
ds_write_b32 v2, v2 offset:144
L_nrv:""" if RV and OPT["rvt"] else ""
def disp(p):
    tb = T1B if ONET else (T1B, T2B)[p]
    a(f"""
L_disp{p}:
s_mov_b64 exec, 1
ds_read_b32 v6, v2 offset:{128 if ONET else (128, 144)[p]}
s_sub_u32 s76, s76, 1
s_cmp_le_i32 s76, 0
s_cbranch_scc1 L_dexh{p}
s_cmp_eq_u32 s24, 0
s_cbranch_scc1 L_noc{p}
v_readlane_b32 s25, v4, s27
s_cmp_lt_u32 s25, {CBASE}
s_cbranch_scc1 L_noc{p}
s_and_b32 s30, s23, 15
s_lshr_b32 s23, s23, 4
s_sub_u32 s24, s24, 1
s_add_u32 s27, s27, 1
s_and_b32 s27, s27, 7
s_add_u32 s25, s25, {DYN0 - CBASE}
s_add_u32 s28, s25, s30
{RVT if p else ""}
s_sub_i32 s31, {LIM}, s25
s_max_i32 s31, s31, 0
s_min_i32 s31, s31, s30
s_cmp_ge_u32 s28, {(OPT['tk'], LIM)[p]}
s_cselect_b32 s29, 1, s29
s_cmp_eq_u32 s31, 0
s_cbranch_scc1 L_noc{p}
s_bfm_b64 exec, s31, 0
s_lshl_b32 s30, s20, 16
s_add_u32 s25, s25, s30
v_add_u32 v7, s25, v5
s_lshl_b32 s25, s22, 2
s_add_u32 s25, s25, {tb}
v_lshl_add_u32 v8, v0, 2, s25
ds_write_b32 v8, v7
s_add_u32 s22, s22, s31
s_lshl_b32 s25, {('s20', 's22')[p]}, 2
s_add_u32 s25, s25, {(T2B + 4*KN, tb)[p]}
v_or_b32 v9, {VB}, v7
v_lshl_add_u32 v14, v0, 2, s25
ds_write_b32 v14, v9
s_add_u32 s20, s20, s31
{('', 's_add_u32 s22, s22, s31')[p]}
L_noc{p}:
s_cmp_lg_u32 s29, 0
s_cbranch_scc1 L_exh{p}
s_cmp_ge_u32 s24, {OPT['maxf']}
s_cbranch_scc1 L_dslp{p}
s_waitcnt lgkmcnt(0)
v_readfirstlane_b32 s25, v6
s_lshl_b32 s30, s21, 1
s_add_u32 s25, s25, {"s66" if CR else (OPT['leadk'], OPT['leadf'])[p]}
s_cmp_ge_u32 s30, s25
s_cbranch_scc1 L_dslp{p}
""" + (f"""
s_sub_u32 s30, s25, s30
s_add_u32 s30, s30, {OPT['cla']}
s_lshr_b32 s30, s30, 2
s_min_u32 s30, s30, {OPT['cl']}
s_max_u32 s30, s30, 1
""" if OPT["cl"] and p else f"""
s_sub_u32 s30, s25, s30
s_add_u32 s30, s30, {OPT['crb']}
s_lshr_b32 s30, s30, 2
s_min_u32 s30, s30, s67
s_max_u32 s30, s30, 1
s_mov_b32 s67, 1
""" if CR and OPT["crb"] else """
s_mov_b32 s30, s67
s_mov_b32 s67, 1
""" if CR else f"""
s_cmp_ge_u32 s28, {(OPT['tk2'], OPT['tf'])[p]}
s_cselect_b32 s30, {(2, 1)[p]}, {(4, 2)[p]}
""") + f"""
s_add_u32 s25, s19, s30
s_cmp_gt_u32 s25, {(OPT['cap1'], NSLOT//2)[p]}
s_cselect_b32 s29, 1, 0
s_cbranch_scc1 L_exh{p}
s_mov_b32 s19, s25
{FST1 if p and OPT["stamps"] and OPT["fine"] != 7 else ""}
s_lshl_b64 exec, 1, s26
v_mov_b32 v4, s30
buffer_atomic_add v4, v13, s[12:15], s77 offen sc0 sc1
s_lshl_b32 s25, s24, 2
s_lshl_b32 s25, s30, s25
s_or_b32 s23, s23, s25
s_add_u32 s24, s24, 1
s_add_u32 s21, s21, s30
{('', 's_add_u32 s21, s21, s30')[p]}
s_add_u32 s26, s26, 1
s_and_b32 s26, s26, 7
s_branch L_disp{p}
L_exh{p}:
s_cmp_eq_u32 s24, 0
s_cbranch_scc1 L_dexh{p}
L_dslp{p}:
s_sleep {OPT['dslp']}
s_branch L_disp{p}
L_dexh{p}:
s_mov_b64 exec, 0xff
s_lshl_b32 s25, s22, 2
s_add_u32 s25, s25, {tb}
v_lshl_add_u32 v8, v0, 2, s25
v_mov_b32 v7, {(513, 512)[p]}
ds_write_b32 v8, v7
{f"ds_write_b32 v2, v{7 if OPT['rvl'] else 2} offset:144" if (RV or OPT['we'] == 1) and p else ""}
""")
if not ONET: disp(0)
TOT = NSE + K0 + SE + NSE
if PW:
    a(f"""
s_movk_i32 s30, 300
v_lshlrev_b32 v9, 2, v0
v_cmp_eq_u32 s[60:61], s17, v0
v_mov_b32 v14, 0x7fff
L_rel:
s_mov_b64 exec, 0xff
ds_read_b32 v6, v2 offset:128
s_sub_u32 s30, s30, 1
s_waitcnt lgkmcnt(0)
v_lshrrev_b32 v6, 1, v6
v_cndmask_b32 v8, 0, v6, s[60:61]
buffer_atomic_umax v8, v9, s[12:15], s77 offen offset:128 sc0 sc1
v_readfirstlane_b32 s62, v6
s_waitcnt vmcnt(0)
v_cndmask_b32 v8, v8, v14, s[60:61]
v_min_u32_dpp v8, v8, v8 quad_perm:[1,0,3,2] row_mask:0xf bank_mask:0xf
v_min_u32_dpp v8, v8, v8 quad_perm:[2,3,0,1] row_mask:0xf bank_mask:0xf
v_min_u32_dpp v8, v8, v8 row_half_mirror row_mask:0xf bank_mask:0xf
v_readfirstlane_b32 s25, v8
s_add_u32 s25, s25, {PW}
s_cmp_ge_u32 s25, {TOT - OPT['pe']}
s_cselect_b32 s25, 255, s25
s_cmp_eq_u32 s30, 0
s_cselect_b32 s25, 255, s25
s_cselect_b32 s62, 255, s62
s_min_i32 s31, s25, {NSE + K0}
s_bfm_b64 exec, s31, 0
ds_write_b32 v64, v65
s_sub_i32 s31, s25, {NSE + K0}
s_cmp_le_i32 s31, 0
s_cbranch_scc1 L_rel2
s_min_i32 s31, s31, {SE + NSE}
s_bfm_b64 exec, s31, 0
ds_write_b32 v66, v67
s_cmp_lg_u32 s25, 255
s_cbranch_scc1 L_rel2
s_cmp_ge_u32 s62, {TOT - OPT['pe'] - PW}
s_cbranch_scc1 L_reld
L_rel2:
{f"s_sleep {OPT['pws']}" if OPT['pws'] else ""}
s_branch L_rel
L_reld:
""")
elif PD:
    RVL = f"""
s_cmp_lt_u32 s25, {OPT['rv0']}
s_cbranch_scc1 L_rv1
v_readfirstlane_b32 s31, v6
s_lshl_b32 s66, s25, 1
s_sub_i32 s31, s66, s31
s_cmp_lt_i32 s31, {2*(SE - K0 - KN) + OPT['rvl']}
s_cbranch_scc1 L_rv1
ds_write_b32 v2, v2 offset:144
L_rv1:
""" if OPT["rvl"] else ""
    FB = f"""
s_cmp_eq_u32 s65, 0
s_cbranch_scc1 L_fb1
v_readfirstlane_b32 s31, v10
s_sub_u32 s31, s31, s74
s_cmp_eq_u32 s31, -1
s_cbranch_scc1 L_fb1
s_mov_b32 s65, 0
s_cmp_gt_u32 s31, 0xfff
s_cbranch_scc1 L_fb1
s_sub_i32 s31, s31, {OPT['fbl']}
s_ashr_i32 s31, s31, {OPT['fbs']}
s_min_i32 s31, s31, {OPT['fbc']}
s_add_i32 s62, s62, s31
{"s_min_i32 s31, s31, 0" + chr(10) + f"s_mul_i32 s31, s31, {OPT['fbn']}" + chr(10) + "s_add_i32 s62, s62, s31" if OPT['fbn'] else ""}
L_fb1:
s_cmp_lt_u32 s25, s63
s_cbranch_scc1 L_fb2
s_add_u32 s63, s63, {OPT['fbp']}
v_readfirstlane_b32 s31, v6
s_lshl_b32 s66, s25, 1
s_sub_i32 s31, s66, s31
s_sub_i32 s31, s31, {2*(SE - K0)}
s_max_i32 s31, s31, 0
s_min_i32 s31, s31, {OPT['fbm']}
s_sub_u32 s66, s74, 1
v_mov_b32 v10, s66
v_mov_b32 v8, s31
buffer_load_dword v10, v13, s[12:15], s64 offen {['', '', 'sc1'][OPT['fb']]}
s_cmp_lg_u32 s64, {PAC}
s_cselect_b32 s65, 1, 0
s_add_u32 s64, s64, {PST}
s_cmp_ge_u32 s18, {OPT['fbg']}
s_cbranch_scc1 L_fb2
buffer_atomic_add v8, v13, s[12:15], s64 offen sc1
L_fb2:
""" if OPT["fb"] else ""
    ECT = f"""
s_cmp_lt_u32 s25, s67
s_cbranch_scc1 L_ec1
s_mov_b32 s67, -1
v_readfirstlane_b32 s31, v6
s_lshl_b32 s66, s25, 1
s_sub_i32 s31, s31, s66
s_add_i32 s31, s31, {2*(SE - K0 - KN) + OPT['ecb']}
s_ashr_i32 s31, s31, 2
s_min_i32 s31, s31, {OPT['ecn']}
s_cmp_le_i32 s31, 0
s_cbranch_scc1 L_ec1
v_mov_b32 v4, s31
buffer_atomic_add v4, v13, s[12:15], s77 offen sc0 sc1
s_mov_b32 s23, s31
s_mov_b32 s24, 1
s_add_u32 s19, s19, s31
s_mov_b32 s26, 1
L_ec1:
""" if OPT["ec"] else ""
    if OPT["ec"]: a(f"s_movk_i32 s67, {2*(SE+NSE) - OPT['ec']}")
    a(f"""
s_movk_i32 s30, 1000
s_movk_i32 s62, {OPT['pc']}
s_movk_i32 s63, {SE + OPT['fb0']}
s_mov_b32 s64, {PAC}
s_mov_b32 s65, 0
L_rel:
s_mov_b64 exec, 1
ds_read_b32 v6, v2 offset:128
s_memrealtime s[60:61]
s_sub_u32 s30, s30, 1
s_waitcnt lgkmcnt(0)
s_sub_u32 s25, s60, s74
s_sub_i32 s25, s25, s62
s_max_i32 s25, s25, 0
s_min_i32 s25, s25, 0x8000
{f"s_mul_i32 s31, s25, {int(655360/OPT['pdv'])}" + chr(10) + f"s_sub_i32 s31, s31, {int(OPT['pdw']*65536*(PD/OPT['pdv'] - 1))}" if OPT['pdv'] else ""}
s_mul_i32 s25, s25, {int(655360/PD)}
{"s_max_i32 s25, s25, s31" if OPT['pdv'] else ""}
s_lshr_b32 s25, s25, 16
{RVL}
{FB}
{ECT}
s_cmp_eq_u32 s30, 0
s_cselect_b32 s25, 255, s25
s_cmp_ge_u32 s25, {2*(SE+NSE) - OPT['pe']}
s_cselect_b32 s25, 255, s25
s_sub_i32 s31, s25, {SE - K0}
s_min_i32 s31, s31, {NSE + K0}
s_max_i32 s31, s31, 1
s_bfm_b64 exec, s31, 0
ds_write_b32 v64, v65
s_sub_i32 s31, s25, {SE + NSE}
s_cmp_le_i32 s31, 0
s_cbranch_scc1 L_rel2
s_min_i32 s31, s31, {SE + NSE}
s_bfm_b64 exec, s31, 0
ds_write_b32 v66, v67
s_cmp_eq_u32 s25, 255
s_cbranch_scc1 L_reld
L_rel2:
s_sleep {OPT['pslp']}
s_branch L_rel
L_reld:
""")
if OPT["dl"]: a("s_mov_b32 s67, s60")
if OPT["stamps"] and OPT["fine"] != 7: stamp(7); a(f"s_mov_b32 s96, {'s62' if PD else 's20'}\ns_mov_b32 s60, 0")
a(f"""
s_add_u32 s21, s20, {KN + (NSE + K0 if ONET else 0)}
s_mov_b32 s22, s21
{"s_add_u32 s21, s21, s23" + chr(10) + "s_add_u32 s21, s21, s23" if OPT["ec"] else ""}
s_cmp_ge_u32 s28, 512
s_cselect_b32 s29, 1, 0
""")
if CR: a(ROLE("s66") + f"\ns_cselect_b32 s66, {OPT['leadf']}, {OPT['leade']}\ns_cselect_b32 s67, {OPT['crl']}, {OPT['cre']}")
disp(1)
if OPT["stamps"] and OPT["fine"] != 7: a("s_mov_b32 s97, s20"); stamp(6)
if OPT["tcha"]: touch()
if OPT["dl"]:
    a(f"""
s_mov_b64 exec, -1
s_min_u32 s22, s18, 27
s_lshr_b32 s22, s22, 1
s_mul_i32 s25, s17, 14
s_add_u32 s22, s22, s25
s_and_b32 s23, s18, 1
s_movk_i32 s25, 3584
v_lshrrev_b32 v3, 1, v0
v_and_b32 v4, 1, v0
v_lshlrev_b32 v4, 4, v4
v_mul_lo_u32 v5, v3, s25
v_add_u32 v5, v5, v4
s_lshl_b32 s25, s22, 5
v_add_u32 v5, s25, v5
v_lshrrev_b32 v6, 3, v0
v_and_b32 v7, 7, v0
v_lshlrev_b32 v7, 4, v7
v_lshl_add_u32 v6, v6, 10, v7
s_cmp_eq_u32 s23, 0
s_cselect_b32 s68, s{P_WG}, s{P_WU}
s_cselect_b32 s69, s{P_WG+1}, s{P_WU+1}
s_mov_b32 s70, {512*1792*2}
s_mov_b32 s71, 0x00020000
s_lshl_b32 s27, s17, 7
s_mul_i32 s26, s18, {56*1024}
s_add_u32 s26, s26, s27
s_movk_i32 s30, 2000
""")
    srd(4, P_WD, 1792*512*2)
    a(f"""
L_dl:
s_memrealtime s[60:61]
s_sub_u32 s30, s30, 1
s_cbranch_scc1 L_dld
s_waitcnt lgkmcnt(0)
s_sub_u32 s60, s60, s67
s_cmp_ge_i32 s60, {OPT['dl']}
s_cbranch_scc1 L_dld
s_sleep 2
s_branch L_dl
L_dld:
s_mov_b32 s25, 0
""")
    for t in range(16):
        a(f"s_mov_b32 m0, {R1 + 1024*t}")
        if t: a(f"s_mov_b32 s25, {t*32*3584}")
        a(f"buffer_load_dwordx4 v5, s[68:71], s25 offen nt lds")
    for t in range(7):
        a(f"buffer_load_dwordx4 v[{WDV+4*t}:{WDV+4*t+3}], v6, s[4:7], s26 offen nt")
        if t < 6: a("s_add_u32 s26, s26, 8192")
    a("s_waitcnt vmcnt(0)")
hstamps(0, 9)
a("s_waitcnt lgkmcnt(0)\ns_endpgm")

a.label("L_hb")
if OPT["bprio"]: a(f"s_setprio {OPT['bprio']}")
if OPT["st"]:
    a("s_waitcnt lgkmcnt(0)")
    tl = []
    if OPT["st"] & 1: tl += [(P_WQ, 0x200000), (P_X, 0), (P_DBG, 0), (P_WS, 0xf0000), (P_WS, 0x4f8000), (P_WQ, 0)]
    if OPT["st"] & 2: tl += [(P_WD, 0), (P_GW, 0), (P_WG, 0), (P_WU, 0)]
    if OPT["st"] & 4: tl += [(P_WO, 0), (P_WO, 0x200000), (P_OUT, 0), (P_WS, 0x3f0000)]
    for n_, (p_, o_) in enumerate(tl):
        if o_: a(f"s_mov_b32 s25, {hex(o_)}\ns_load_dword s{80+n_}, s[{p_}:{p_+1}], s25")
        else: a(f"s_load_dword s{80+n_}, s[{p_}:{p_+1}], 0")
if KF_:
    a(f"""
s_mul_i32 s21, s17, {32 if OPT["fm"] else 28}
s_add_u32 s21, s21, s18
s_lshr_b32 s22, s21, 3
s_and_b32 s23, s21, 1
s_bfe_u32 s24, s21, 0x20001
s_mul_i32 s25, s24, {128*3584}
s_lshl_b32 s27, s22, 7
s_add_u32 s25, s25, s27
v_lshrrev_b32 v6, 3, v0
v_and_b32 v7, 7, v0
v_lshlrev_b32 v7, 4, v7
v_mul_u32_u24 v5, 3584, v6
v_add3_u32 v5, v5, s25, v7
s_waitcnt lgkmcnt(0)
s_cmp_eq_u32 s23, 0
s_cselect_b32 s68, s{P_WG}, s{P_WU}
s_cselect_b32 s69, s{P_WG+1}, s{P_WU+1}
s_mov_b32 s70, {512*1792*2}
s_mov_b32 s71, 0x00020000
""")
    def tile_ld():
        a(f"s_cmp_ge_u32 {'s17, 7' if OPT['fm'] else 's18, 28'}\ns_cbranch_scc1 L_notile")
        for t in range(16):
            a(f"s_mov_b32 s27, {t*8*3584}\nbuffer_load_dwordx4 v[{XF+4*t}:{XF+4*t+3}], v5, s[68:71], s27 offen nt")
        a.label("L_notile")
    if OPT["bt"] == 0: tile_ld()
    a(f"""
v_lshl_add_u32 v6, v6, 10, v7
v_lshlrev_b32 v3, 4, v0
""")
elif HR:
    a(f"""
v_lshrrev_b32 v6, 3, v0
v_and_b32 v7, 7, v0
v_lshlrev_b32 v7, 4, v7
v_lshl_add_u32 v6, v6, 10, v7
v_lshlrev_b32 v3, 4, v0
""")
elif GU:
    a(f"""
s_sub_u32 s23, s17, s18
s_and_b32 s24, s23, 3
s_bfe_u32 s23, s23, 0x10002
s_cmp_ge_u32 s18, 28
s_cselect_b32 s24, 1, s24
s_lshl_b32 s22, s18, 2
v_lshrrev_b32 v6, 3, v0
v_and_b32 v7, 7, v0
v_lshlrev_b32 v7, 4, v7
v_mul_u32_u24 v5, 3584, v6
s_lshl_b32 s25, s18, 7
v_add3_u32 v5, v5, s25, v7
v_lshl_add_u32 v6, v6, 10, v7
v_lshlrev_b32 v3, 4, v0
""")
else:
    a(f"""
s_min_u32 s22, s18, 27
s_and_b32 s25, s17, 3
s_mul_i32 s25, s25, 28
s_add_u32 s22, s22, s25
s_lshr_b32 s23, s17, 2
""" if L2P & 6 else f"""
s_min_u32 s22, s18, 27
s_lshr_b32 s22, s22, 1
s_mul_i32 s25, s17, 14
s_add_u32 s22, s22, s25
s_and_b32 s23, s18, 1
""")
    if L2P & 2:
        a(f"""
s_lshr_b32 s25, s22, 2
s_lshl_b32 s25, s25, 7
s_and_b32 s26, s22, 3
s_mul_i32 s26, s26, {128*3584}
s_add_u32 s25, s25, s26
v_mul_u32_u24 v5, 3584, v0
v_add_u32 v5, s25, v5
s_waitcnt lgkmcnt(0)
s_cmp_eq_u32 s23, 0
s_cselect_b32 s68, s{P_WG}, s{P_WU}
s_cselect_b32 s69, s{P_WG+1}, s{P_WU+1}
s_mov_b32 s70, {512*1792*2}
s_mov_b32 s71, 0x00020000
s_cmp_ge_u32 s18, 28
s_cbranch_scc1 L_notouch
""")
        touch_tile(5, 68, 3584, 96)
        a.label("L_notouch")
    a(f"""
s_movk_i32 s25, 3584
v_mul_lo_u32 v5, v3, s25
v_add_u32 v5, v5, v4
s_lshl_b32 s25, s22, 5
v_add_u32 v5, s25, v5
v_lshrrev_b32 v6, 3, v0
v_and_b32 v7, 7, v0
v_lshlrev_b32 v7, 4, v7
v_lshl_add_u32 v6, v6, 10, v7
v_lshlrev_b32 v3, 4, v0
""")
if OPT["fk"]:
    a(f"""
s_lshr_b32 s23, s17, 2
s_and_b32 s25, s17, 3
s_mul_i32 s25, s25, {128*3584}
s_min_u32 s24, s18, 27
s_lshl_b32 s24, s24, 7
s_add_u32 s25, s25, s24
v_lshrrev_b32 v5, 3, v0
v_mul_u32_u24 v5, 3584, v5
v_add3_u32 v5, v5, s25, v7
""" if OPT["fk"] & 4 == 0 else f"""
s_and_b32 s23, s18, 1
s_bfe_u32 s25, s18, 0x20001
s_mul_i32 s25, s25, {128*3584}
s_lshr_b32 s24, s18, 3
s_lshl_b32 s27, s17, 2
s_add_u32 s24, s24, s27
s_min_u32 s24, s24, 27
s_lshl_b32 s24, s24, 7
s_add_u32 s25, s25, s24
v_lshrrev_b32 v5, 3, v0
v_mul_u32_u24 v5, 3584, v5
v_add3_u32 v5, v5, s25, v7
""")
frag_addr(7 if KF_ else 5)
a(f"""
v_mov_b32 v92, 0
v_mov_b32 v93, 0
v_mov_b32 v94, 0
v_mov_b32 v95, 0
v_add_u32 v1, {WD_LDS}, v3
{"" if XL else "ds_write_b128 v1, v[92:95] offset:7168"}
v_mov_b32 v15, {MISC}
""" + (f"""
v_mov_b32 v16, -1
v_mov_b32 v17, -1
v_lshlrev_b32 v18, 3, v0
ds_write_b64 v18, v[16:17] offset:{MLT & 0xffff}
""" if False else f"""
v_mov_b32 v16, -1
v_mov_b32 v17, -1
v_lshl_add_u32 v98, v0, 3, v15
ds_write_b64 v98, v[16:17] offset:{MLT - MISC}
""" if BW else "") + f"""
s_waitcnt lgkmcnt(0)
""")
srd(64, P_X, 8192); srd(12, P_WS, WS_BYTES); srd(4, P_WD, 1792*512*2); srd(8, P_GW, 1024); srd(60, P_WO, 4096*512*2)
if not KF_ and not HR: a(f"""
s_cmp_eq_u32 s23, 0
s_cselect_b32 s68, s{P_WG}, s{P_WU}
s_cselect_b32 s69, s{P_WG+1}, s{P_WU+1}
s_mov_b32 s70, {512*1792*2}
s_mov_b32 s71, 0x00020000
""")
a(f"""
{"s_and_b32 s23, s18, 1" if OPT["fk"] else ""}
s_lshl_b32 s27, s17, 7
s_mul_i32 s26, s18, {56*1024}
s_add_u32 s26, s26, s27
s_and_b32 s25, s18, 1
s_lshl_b32 s25, s25, 12
v_lshrrev_b32 v12, 2, v0
v_lshlrev_b32 v12, 6, v12
v_and_b32 v7, 3, v0
v_lshl_add_u32 v7, v7, 10, v12
""")
def touch0():
    a(f"""
v_lshlrev_b32 v92, 7, v0
s_lshl_b32 s28, s17, 17
s_lshr_b32 s29, s18, 1
s_lshl_b32 s29, s29, 13
s_add_u32 s28, s28, s29
s_and_b32 s29, s18, 1
s_lshl_b32 s29, s29, {11 if OPT["tc0"] == 1 else 12}
s_add_u32 s28, s28, s29
s_add_u32 s28, s28, {CPA}
s_mov_b64 exec, {"0xffff" if OPT["tc0"] == 1 else "0xffffffff"}
buffer_load_dword v93, v92, s[12:15], s28 offen {['', 'sc1', 'nt'][OPT['tpol']]}
s_mov_b64 exec, -1
""")
if OPT["tc0"] and not OPT["tcd"]: touch0()
def fk_ld():
    for t in range(16):
        a(f"s_mov_b32 s24, {t*8*3584}\nbuffer_load_dwordx4 v[{XF+4*t}:{XF+4*t+3}], v5, s[68:71], s24 offen nt")
if OPT["fk"] & 3 == 2: fk_ld()
a("s_barrier")
backoff(OPT["bd0"])
if OPT["fk"] & 3 == 3: fk_ld()
XB2 = 64
if KF_:
    if OPT["bt"] == 1: tile_ld()
    a("s_lshl_b32 s27, s24, 8")
    for s_ in range(4):
        a(f"buffer_load_dwordx4 v[{XB2+4*s_}:{XB2+4*s_+3}], v2, s[64:67], s27 offen offset:{64*s_}")
if GU and not XL: a("s_cmp_lg_u32 s24, 0\ns_cbranch_scc1 L_nxb")
for s_ in range(0 if RM & 4 or XL or KF_ else 16):
    a(f"buffer_load_dwordx4 v[{XF+4*s_}:{XF+4*s_+3}], v2, s[64:67], 0 offen offset:{64*s_}")
    if s_ % 4 == 3: backoff(OPT["bs0"])
if GU and not XL: a.label("L_nxb")
LATE = OPT["late"]
if LATE & 2: a("s_mov_b32 s72, s26")
for t in range(0 if LATE & 2 or OPT["skip"] & 2 or RM & 8 else 7):
    if KF_: a(f"s_mov_b32 m0, {WD_LDS + 1024*t}\ns_nop 0\nbuffer_load_dwordx4 v6, s[4:7], s26 offen nt lds")
    else: a(f"buffer_load_dwordx4 v[{WDV+4*t}:{WDV+4*t+3}], v6, s[4:7], s26 offen nt")
    if t < 6: a("s_add_u32 s26, s26, 8192")
    if t % 4 == 3: backoff(OPT["bs0"])
a(f"""
s_mov_b32 s76, {SPIN*16}
""")
for k in range(0 if RM & 8 else 4):
    if not XL: a(f"buffer_load_dwordx4 v[{GX+4*k}:{GX+4*k+3}], v7, s[64:67], s25 offen offset:{16*k}")
    a(f"buffer_load_dwordx4 v[{GW+4*k}:{GW+4*k+3}], v12, s[8:11], 0 offen offset:{16*k}")
a.label("L_r1w")
a(f"""
ds_read_b32 v8, v15 offset:136
s_waitcnt lgkmcnt(0)
v_cmp_eq_u32 vcc, 0, v8
""")
spin_tail("L_r1w", "L_r1done", sleep=2)
stamp(1)
a(f"ds_read_b32 v{VN}, v15 offset:96")
if XL:
    a(f"""
v_add_u32 v7, s25, v7
v_lshrrev_b32 v8, 6, v7
v_and_b32 v8, 0x70, v8
v_xor_b32 v7, v7, v8
""")
    for k in range(4):
        a(f"v_xor_b32 v8, {16*k}, v7\nv_add_u32 v8, {WD_LDS}, v8\nds_read_b128 v[{GX+4*k}:{GX+4*k+3}], v8")
    if not HR: x_frag(52, 53)
def gwait(n, ticks):
    a(f"""
s_movk_i32 s31, 3000
L_gw{n}:
s_memrealtime s[78:79]
s_sub_u32 s31, s31, 1
s_cbranch_scc1 L_gwd{n}
s_waitcnt lgkmcnt(0)
s_sub_u32 s78, s78, s74
s_cmp_ge_i32 s78, {ticks}
s_cbranch_scc1 L_gwd{n}
s_sleep 1
s_branch L_gw{n}
L_gwd{n}:
""")
def gu_dma(r):
    if OPT["gt"]: gwait(r, OPT["gt"] + r*OPT["gp"])
    for t in range(16):
        a(f"s_mov_b32 m0, {R1 + 1024*t}\ns_mov_b32 s25, {(128*r + 8*t)*3584}\nbuffer_load_dwordx4 v5, s[68:71], s25 offen {'nt ' if OPT['ffnt'] else ''}lds")
        if t < 15: backoff(OPT["gsl"])
def hg_addr(d, ct):
    a(f"""
s_lshl_b32 s25, s22, 2
s_add_u32 s25, s25, {4*ct}
v_add_u32 v{d}, s25, v{CP+2 if OPT["coal"] else 11}
s_movk_i32 s25, 4682
v_mul_u32_u24 v14, s25, v{d}
v_lshrrev_b32 v14, 16, v14
v_mul_u32_u24 v12, 14, v14
v_sub_u32 v{d}, v{d}, v12
v_lshlrev_b32 v{d}, 4, v{d}
v_lshl_add_u32 v{d}, v14, 12, v{d}
v_lshl_add_u32 v{d}, v{CP+1 if OPT["coal"] else 10}, 8, v{d}
""")
if KF_:
    a(f"v_add_u32 v1, {R1}, v3\ns_waitcnt vmcnt(19)")
    for t in range(16): a(f"ds_write_b128 v1, v[{XF+4*t}:{XF+4*t+3}] offset:{1024*t}")
elif not GU and not HR:
    if OPT["gt"]:
        a(f"s_waitcnt lgkmcnt(0)\nv_readfirstlane_b32 s74, v{VN}")
        gwait(0, OPT["gt"])
    a("s_mov_b32 s25, 0")
    if L2P & 6: a("s_waitcnt vmcnt(0)\ns_cmp_ge_u32 s18, 28\ns_cbranch_scc1 L_nosl")
    for t in range(0 if RM & 16 else 16):
        a(f"s_mov_b32 m0, {R1 + 1024*t}")
        if OPT["fk"] & 2: continue
        if t and not OPT["skip"] & 4: a(f"s_mov_b32 s25, {t*(8 if OPT['fk'] else 32)*3584}")
        a(f"buffer_load_dwordx4 v5, s[68:71], s25 offen {'nt ' if OPT['ffnt'] else ''}lds")
        if t < 15: backoff(OPT["bs1"])
    if L2P & 6: a.label("L_nosl")
    if HL: a(f"s_lshl_b32 s25, s22, 9\nv_add_u32 v13, s25, v3")
    else: hg_addr(13, 0)
a(f"""
{"" if HR else f"s_lshl_b32 s25, s23, {16 if HL else 11}"}
{"" if HR else f"s_add_u32 s25, s25, {HG}"}
s_waitcnt vmcnt({0 if GU or KF_ or HR else 16}) lgkmcnt(0)
v_readfirstlane_b32 s74, v{VN}
v_mov_b32 v57, v{VN}
v_mov_b32 v59, v{VN}
""")
for t in range(0 if LATE & 2 or KF_ else 7): a(f"ds_write_b128 v1, v[{WDV+4*t}:{WDV+4*t+3}] offset:{1024*t}")
if XL: a("ds_write_b128 v1, v[92:95] offset:7168")
for k in range(16):
    a(f"""
v_lshlrev_b32 v48, 16, v{GX+k}
v_and_b32 v49, 0xffff0000, v{GX+k}
v_lshlrev_b32 v50, 16, v{GW+k}
v_and_b32 v51, 0xffff0000, v{GW+k}
v_mul_f32 v48, v48, v50
v_mul_f32 v49, v49, v51
v_cvt_pk_bf16_f32 v48, v48, v49
v_and_b32 v49, 0xffff0000, v48
v_lshlrev_b32 v48, 16, v48
""")
    if k == 0: a("v_add_f32 v52, v48, v49")
    else: a("v_add_f32 v48, v48, v49\nv_add_f32 v52, v52, v48")
a("v_mov_b32 v24, v52")
xsum([24], [25], (8, 4))
a(f"""
v_cvt_pk_bf16_f32 v24, v24, v24
v_lshlrev_b32 v24, 16, v24
v_mul_f32 v24, {f32(-LOG2E)}, v24
v_exp_f32 v24, v24
v_add_f32 v24, 1.0, v24
v_rcp_f32 v24, v24
v_cvt_pk_bf16_f32 v24, v24, v24
v_lshlrev_b32 v{GG}, 16, v24
v_sub_f32 v25, 1.0, v{GG}
v_cvt_pk_bf16_f32 v25, v25, v25
v_lshlrev_b32 v{GG+1}, 16, v25
{"s_lshl2_add_u32 s26, s17, s20" + chr(10) + "s_and_b32 s27, s18, 7" if LH else ""}
s_lshl_b32 s26, {"s26" if LH else "s18"}, 17
s_lshl_b32 s27, {"s27" if LH else "s17"}, 7
s_add_u32 s26, s26, s27
s_waitcnt vmcnt(0)
""")
def geglu(g_, u_, d_, t):
    a(f"""
v_lshlrev_b32 v{t}, 16, v{g_}
v_and_b32 v{t+1}, 0xffff0000, v{g_}
v_lshlrev_b32 v{t+2}, 16, v{u_}
v_and_b32 v{t+3}, 0xffff0000, v{u_}
v_mul_f32 v{t+4}, v{t}, v{t}
v_mul_f32 v{t+5}, v{t+1}, v{t+1}
v_mul_f32 v{t+4}, v{t+4}, v{t}
v_mul_f32 v{t+5}, v{t+5}, v{t+1}
v_fma_f32 v{t+4}, v{t+4}, s25, v{t}
v_fma_f32 v{t+5}, v{t+5}, s25, v{t+1}
v_mul_f32 v{t+4}, s26, v{t+4}
v_mul_f32 v{t+5}, s26, v{t+5}
v_exp_f32 v{t+4}, v{t+4}
v_exp_f32 v{t+5}, v{t+5}
v_add_f32 v{t+4}, 1.0, v{t+4}
v_add_f32 v{t+5}, 1.0, v{t+5}
v_rcp_f32 v{t+4}, v{t+4}
v_rcp_f32 v{t+5}, v{t+5}
v_mul_f32 v{t+4}, v{t+4}, v{t}
v_mul_f32 v{t+5}, v{t+5}, v{t+1}
v_cvt_pk_bf16_f32 v{t+4}, v{t+4}, v{t+5}
v_and_b32 v{t+5}, 0xffff0000, v{t+4}
v_lshlrev_b32 v{t+4}, 16, v{t+4}
v_mul_f32 v{t+4}, v{t+4}, v{t+2}
v_mul_f32 v{t+5}, v{t+5}, v{t+3}
v_cvt_pk_bf16_f32 v{d_}, v{t+4}, v{t+5}
""")
D1 = 52
def hpub(D, va):
    a(f"""
v_cvt_pk_bf16_f32 v56, v{D}, v{D+1}
v_cvt_pk_bf16_f32 v58, v{D+2}, v{D+3}
""")
    if not GU: a("s_cmp_ge_u32 s18, 28\ns_cbranch_scc1 L_nohpub")
    if OPT["coal"]:
        a(f"""
ds_bpermute_b32 v56, v{CP}, v56
ds_bpermute_b32 v58, v{CP}, v58
s_mov_b32 exec_hi, 0
s_waitcnt lgkmcnt(0)
""")
    else:
        a("s_mov_b64 exec, s[58:59]")
    a(f"""
buffer_store_dwordx4 v[56:59], v{va}, s[12:15], s30 offen sc1
s_mov_b64 exec, -1
""")
a("s_mov_b32 s30, s25")
if KF_:
    DG = 80; PP = 16
    tag_consts(SEL)
    a(f"""
s_cmp_ge_u32 {'s17, 7' if OPT['fm'] else 's18, 28'}
s_cbranch_scc1 L_nohpub
""")
    gemv128(9, DG, XB2)
    a(f"""
v_and_b32 v12, 1, v11
v_lshl_add_u32 v12, v12, 3, v10
v_lshlrev_b32 v12, 4, v12
v_lshrrev_b32 v13, 1, v11
v_lshl_add_u32 v13, v13, 11, v12
s_lshl_b32 s28, s22, 14
s_lshl_b32 s29, s23, 10
s_add_u32 s28, s28, s29
s_lshl_b32 s29, s24, 8
s_add_u32 s28, s28, s29
s_add_u32 s28, s28, {FP}
s_lshl_b32 s29, s21, 11
s_add_u32 s29, s29, {FP}
""")
    if OPT["kpl"]:
        a(f"""
v_and_b32 v12, 7, v10
v_lshl_add_u32 v12, v11, 3, v12
v_lshlrev_b32 v12, 4, v12
v_lshrrev_b32 v13, 3, v10
v_lshl_add_u32 v13, v13, 9, v12
""")
        pstore(DG, VN, 13, "s29", '' if OPT['kl2'] & 2 else 'sc1')
        a(f"""
s_lshl_b32 s29, s22, 14
s_and_b32 s28, s21, 7
s_lshl_b32 s28, s28, 8
s_add_u32 s29, s29, s28
s_add_u32 s29, s29, {FP}
v_lshlrev_b32 v4, 4, v10
v_lshl_add_u32 v4, v11, 12, v4
""")
    else: a("s_mov_b64 exec, s[58:59]")
    for ct in range(0 if OPT["kpl"] else 4):
        tag_ins(DG + 4*ct, VN, SEL)
        a(f"buffer_store_dwordx4 v[{DG+4*ct}:{DG+4*ct+3}], v13, s[12:15], s28 offen {'' if OPT['kl2'] & 2 else 'sc1'}")
        if ct < 3: a("s_add_u32 s28, s28, 4096")
    a(f"""
s_mov_b64 exec, -1
s_mul_i32 s28, s21, 9363
s_lshr_b32 s28, s28, 16
s_mul_i32 s30, s28, 7
s_sub_u32 s30, s21, s30
s_lshl_b32 s30, s30, 5
s_lshl_b32 s28, s28, 12
s_add_u32 s30, s30, s28
s_add_u32 s30, s30, {HG}
v_and_b32 v12, 7, v0
v_bfe_u32 v13, v0, 3, 1
v_lshlrev_b32 v13, 4, v13
v_lshl_add_u32 v13, v12, 8, v13
{f"s_lshl_b32 s30, s21, 8" + chr(10) + f"s_add_u32 s30, s30, {HG}" + chr(10) + "v_mov_b32 v13, v3" if HL else ""}
s_mov_b32 s72, s26
s_mov_b32 s25, {f32(0.044715)}
s_mov_b32 s26, {f32(-2.0*0.7978845608028654*LOG2E)}
""")
    if OPT["kpl"]: ppoll("L_f1p", PP, 4, "s29", VN, 48, OPT["f1d"], OPT["f1s"], None, 2048)
    else: ppoll("L_f1p", PP, 3, "s29", VN, 48, OPT["f1d"], OPT["f1s"])
    xsum(list(range(PP, PP+8)), list(range(PP+8, PP+16)), ())
    for k in range(4): a(f"v_cvt_pk_bf16_f32 v{PP+8+k}, v{PP+2*k}, v{PP+2*k+1}")
    geglu(PP+8, PP+10, 56, 48)
    geglu(PP+9, PP+11, 58, 48)
    a(f"""
s_mov_b64 exec, 0xffff
buffer_store_dwordx4 v[56:59], v13, s[12:15], s30 offen sc1
s_mov_b64 exec, -1
s_mov_b32 s26, s72
""")
elif GU:
    DG = 64
    a(f"""
s_cmp_lg_u32 s24, 0
s_cbranch_scc1 L_nohpub
v_lshrrev_b32 v8, 2, v10
v_lshl_add_u32 v8, v11, 3, v8
v_lshlrev_b32 v9, 7, v8
v_and_b32 v8, 3, v0
v_lshl_add_u32 v9, v8, 3, v9
v_add_u32 v9, {R1}, v9
""")
    backoff(OPT["gd"])
    for r in range(4):
        gu_dma(r)
        if r == 0:
            for ct in range(4): hg_addr(80 + ct, ct)
        for s_ in range(4):
            a(f"s_waitcnt vmcnt({12 - 4*s_})")
            for ct in range(4):
                q_ = AFR + 16*(s_ & 1) + 4*ct
                a(f"ds_read_b64_tr_b16 v[{q_}:{q_+1}], v9 offset:{s_*4096+ct*32}\nds_read_b64_tr_b16 v[{q_+2}:{q_+3}], v9 offset:{s_*4096+ct*32+512}")
            for ct in range(4):
                q_ = AFR + 16*(s_ & 1) + 4*ct; t = 4*r + s_; d = DG + 4*ct
                a(f"s_waitcnt lgkmcnt({6 - 2*ct})\nv_mfma_f32_16x16x32_bf16 v[{d}:{d+3}], v[{q_}:{q_+3}], v[{XF+4*t}:{XF+4*t+3}], {'0' if t == 0 else f'v[{d}:{d+3}]'}")
        if r < 3: backoff(OPT["gr"])
    for ct in range(4):
        hpub(DG + 4*ct, 80 + ct)
        if ct < 3: a("s_nop 4")
elif not HR:
    gemv(9, D1)
    hpub(D1, 13)
a.label("L_nohpub")
if OPT["xm"]:
    a(f"""
s_getreg_b32 s31, hwreg(HW_REG_XCC_ID, 0, 4)
s_xor_b32 s31, s31, s74
s_lshl_b32 s29, s17, 8
s_add_u32 s29, s29, {XID}
s_lshl_b32 s27, s18, 3
s_add_u32 s27, s27, s29
v_mov_b32 v{VN+1}, s31
v_lshlrev_b32 v66, 3, v0
v_and_b32 v66, 0xff, v66
s_mov_b64 exec, 1
{"" if RM & 256 else f"buffer_store_dwordx2 v[{VN}:{VN+1}], v66, s[12:15], s27 offen sc1"}
s_mov_b64 exec, -1
""")
stamp(2)
if OPT["tc0"] and OPT["tcd"] == 1:
    a("s_mov_b32 s30, s29"); touch0(); a("s_mov_b32 s29, s30")
def wo_dma(sr, t0=0, t1=16):
    if CR and t1 == 16: t1 = 32
    if OPT["ww"] == 2 and t1 > t0: a("v_lshrrev_b32 v38, 1, v0\nv_and_b32 v39, 1, v0\nv_lshlrev_b32 v39, 6, v39\nv_lshl_add_u32 v38, v38, 10, v39")
    for t in range(t0, 0 if OPT["skip"] & 1 else t1):
        a(f"s_mov_b32 m0, {(TB if CR else WO_LDS) + 1024*t}\ns_nop 0\nbuffer_load_dwordx4 v6, s[60:63], {sr} offen {['', 'nt '][OPT['wpo']]}lds")
        if OPT["ww"] == 1: a(f"s_xor_b32 s27, {sr}, 128\nbuffer_load_dwordx4 v[{40+4*t}:{43+4*t}], v6, s[60:63], s27 offen {['', 'nt'][OPT['wpn']]}")
        if OPT["ww"] == 2 and t % 4 == 0: a(f"s_xor_b32 s27, {sr}, 128\nbuffer_load_dword v{40+t}, v38, s[60:63], s27 offen {['', 'nt'][OPT['wpn']]}")
        if t < (31 if CR else 15): a(f"s_add_u32 {sr}, {sr}, 8192")
if LATE & 1: a("s_andn2_b32 s73, s26, 0x20000" if CR else "s_mov_b32 s73, s26")
else: wo_dma("s26")
HB = 16; UB = 32
tag_consts(SEL)
a(f"""
""" + (f"""
s_mul_i32 s30, s18, 1792
s_add_u32 s30, s30, {HG}
v_lshlrev_b32 v1, 4, v10
v_lshl_add_u32 v1, v11, 8, v1
""" if HL and KF_ else f"""
s_mov_b32 s30, {HG}
s_mov_b32 s27, {HG + 65536}
s_mul_i32 s25, s18, 7
v_add_u32 v1, s25, v11
v_lshrrev_b32 v2, {2 if HR else 1}, v1
v_and_b32 v1, {3 if HR else 1}, v1
v_lshlrev_b32 v1, 5, v1
v_lshl_add_u32 v1, v2, {10 if HR else 9}, v1
v_lshl_add_u32 v1, v10, {7 if HR else 6}, v1
""" if HL else f"""
s_lshl_b32 s30, s18, 12
s_add_u32 s30, s30, {HG}
v_lshlrev_b32 v1, 5, v11
v_lshl_add_u32 v1, v10, 8, v1
""") + f"""
v_mov_b32 v4, 0x7ff00000
v_cmp_gt_u32 vcc, 3, v11
s_and_b64 s[66:67], s[58:59], vcc
v_cndmask_b32 v2, v4, v1, s[66:67]
v_cndmask_b32 v1, v4, v1, s[58:59]
v_lshlrev_b32 v14, 4, v10
v_lshl_add_u32 v14, v11, 7, v14
v_add_u32 v14, {WD_LDS}, v14
s_mov_b32 s76, {SPIN}
""")
backoff(OPT["hd"])
a.label("L_hpoll")
if RM & 64: a("s_mov_b32 s28, 1\ns_branch L_hdone2")
for B_, o_ in ((HB, 0),) if KF_ or OPT['hp'] & 2 else ((HB, 0), (UB, 2048)):
    if HL and KF_: a(f"""
buffer_load_dwordx4 v[{B_}:{B_+3}], v1, s[12:15], s30 offen sc1
buffer_load_dwordx4 v[{B_+4}:{B_+7}], v1, s[12:15], s30 offen offset:128 sc1
buffer_load_dwordx4 v[{B_+8}:{B_+11}], v2, s[12:15], s30 offen offset:1024 sc1
buffer_load_dwordx4 v[{B_+12}:{B_+15}], v2, s[12:15], s30 offen offset:1152 sc1
""")
    elif HL: a(f"""
buffer_load_dwordx4 v[{B_}:{B_+3}], v1, s[12:15], {'s27' if o_ else 's30'} offen sc1
buffer_load_dwordx4 v[{B_+4}:{B_+7}], v1, s[12:15], {'s27' if o_ else 's30'} offen offset:16 sc1
buffer_load_dwordx4 v[{B_+8}:{B_+11}], v2, s[12:15], {'s27' if o_ else 's30'} offen offset:1024 sc1
buffer_load_dwordx4 v[{B_+12}:{B_+15}], v2, s[12:15], {'s27' if o_ else 's30'} offen offset:1040 sc1
""")
    else: a(f"""
buffer_load_dwordx4 v[{B_}:{B_+3}], v1, s[12:15], s30 offen offset:{o_} sc1
buffer_load_dwordx4 v[{B_+4}:{B_+7}], v1, s[12:15], s30 offen offset:{o_+16} sc1
buffer_load_dwordx4 v[{B_+8}:{B_+11}], v2, s[12:15], s30 offen offset:{o_+128} sc1
buffer_load_dwordx4 v[{B_+12}:{B_+15}], v2, s[12:15], s30 offen offset:{o_+144} sc1
""")
if RM & 256: a("v_mov_b32 v64, s74\nv_mov_b32 v65, s31")
elif OPT["xm"]: a("buffer_load_dwordx2 v[64:65], v66, s[12:15], s29 offen sc1")
a("s_waitcnt vmcnt(0)")
any_eq([HB+1, HB+3, HB+5, HB+7] + ([] if KF_ or OPT['hp'] & 2 else [UB+1, UB+3, UB+5, UB+7]), "s74", neg=True)
a("s_and_b64 s[64:65], vcc, s[58:59]")
if OPT["xm"]: a("v_cmp_ne_u32 vcc, s74, v64\ns_or_b64 s[64:65], s[64:65], vcc\nv_xor_b32 v67, s74, v65\nv_cmp_lt_u32 vcc, 15, v67\ns_or_b64 s[64:65], s[64:65], vcc")
any_eq([HB+9, HB+11, HB+13, HB+15] + ([] if KF_ or OPT['hp'] & 2 else [UB+9, UB+11, UB+13, UB+15]), "s74", neg=True)
a("s_and_b64 vcc, vcc, s[66:67]\ns_or_b64 vcc, vcc, s[64:65]")
spin_tail("L_hpoll", "L_hdone", sleep=OPT["hslp"])
if OPT["xm"]:
    a(f"""
v_cmp_ne_u32 vcc, s31, v65
s_cmp_eq_u64 vcc, 0
s_cselect_b32 s28, {0 if OPT["xforce"] else 1}, 0
""")
if RM & 64: a.label("L_hdone2")
stamp(3)
a(f"""
s_mov_b32 s25, {f32(0.044715)}
s_mov_b32 s26, {f32(-2.0*0.7978845608028654*LOG2E)}
v_lshrrev_b32 v1, 2, v10
v_lshl_add_u32 v1, v11, 3, v1
v_lshlrev_b32 v1, 7, v1
v_and_b32 v2, 3, v0
v_lshl_add_u32 v1, v2, 3, v1
v_add_u32 v1, {WD_LDS}, v1
""")
AF = 80
def af_rd():
    for ct in range(4):
        for s_ in range(2):
            r = AF + 8*ct + 4*s_
            a(f"ds_read_b64_tr_b16 v[{r}:{r+1}], v1 offset:{s_*4096+ct*32}")
            a(f"ds_read_b64_tr_b16 v[{r+2}:{r+3}], v1 offset:{s_*4096+ct*32+512}")
def trig_wait():
    a(f"s_mov_b32 s76, {SPIN*16}")
    a.label("L_tw")
    a(f"""
ds_read_b32 v8, v15 offset:136
s_waitcnt lgkmcnt(0)
v_cmp_ne_u32 vcc, 2, v8
""")
    spin_tail("L_tw", "L_twdone", sleep=OPT["tslp"])
    stamp(0)
if not LATE & 2: af_rd()
HF = 48
for e in range(8):
    if KF_: a(f"v_mov_b32 v{HF+e}, v{HB+2*e}")
    else: geglu(HB + 2*e, UB + 2*e, HF + e, 56)
if LATE & 2:
    trig_wait()
    for t in range(7):
        a(f"s_mov_b32 m0, {WD_LDS + 1024*t}\ns_nop 0\nbuffer_load_dwordx4 v6, s[4:7], s72 offen nt lds")
        if t < 6: a("s_add_u32 s72, s72, 8192")
    if LATE & 1: wo_dma("s73")
    a(f"s_waitcnt vmcnt({16 if LATE & 1 else 0})")
    af_rd()
a("s_waitcnt lgkmcnt(0)")
for ct in range(4):
    r = AF + 8*ct; d = 112 + 4*ct
    a(f"v_mfma_f32_16x16x32_bf16 v[{d}:{d+3}], v[{r}:{r+3}], v[{HF}:{HF+3}], 0")
    a(f"v_mfma_f32_16x16x32_bf16 v[{d}:{d+3}], v[{r+4}:{r+7}], v[{HF+4}:{HF+7}], v[{d}:{d+3}]")
for ct in range(4): tag_ins(112 + 4*ct, VN, SEL)
a("s_mov_b64 exec, s[58:59]")
for ct in range(4):
    d = 112 + 4*ct
    a(f"ds_write_b128 v14, v[{d}:{d+3}] offset:{512*ct}")
if OPT["hbn"] == 1:
    a(f"""
v_lshlrev_b32 v1, 4, v10
v_lshl_add_u32 v1, v11, 13, v1
s_lshl_b32 s25, s17, 17
s_lshl_b32 s26, s18, 7
s_add_u32 s25, s25, s26
s_add_u32 s25, s25, {CPA}
v_not_b32 v16, v{VN}
v_not_b32 v17, v{VN}
v_not_b32 v18, v{VN}
v_not_b32 v19, v{VN}
""")
    for ct in range(4):
        d = 112 + 4*ct
        a(f"s_add_u32 s26, s25, 4096\nbuffer_store_dwordx4 v[{d}:{d+3}], v1, s[12:15], s26 offen")
        if OPT["prw"]: a(f"buffer_store_dwordx4 v[16:19], v1, s[12:15], s25 offen")
        if ct < 3: a("s_add_u32 s25, s25, 32768")
a(f"""
v_lshl_add_u32 v2, v{CP+2}, 3, v15
s_mov_b64 exec, 15
ds_write_b64 v2, v[{GG}:{GG+1}] offset:64
""")
stamp(4)
if OPT["tchb"]: touch()
if OPT["xm"]:
    a(f"v_mov_b32 v8, s28\nds_write_b32 v15, v8 offset:140")
else:
    a("v_mov_b32 v8, 1\ns_waitcnt vmcnt(0) lgkmcnt(0)\nds_write_b32 v15, v8 offset:140")
if LATE == 1:
    if OPT["pt"]:
        srd(8, P_OUT, 8192)
        a(f"""
s_mov_b64 exec, 1
s_lshl_b32 s25, s17, 7
s_mov_b32 s26, {"0x2f0000" if LH else "0x3f0000"}
v_mov_b32 v16, 0
""")
        if OPT["pt"] & 1: a("buffer_load_dword v17, v16, s[8:11], s25 offen")
        if OPT["pt"] & 2: a("buffer_load_dword v18, v16, s[12:15], s26 offen")
        if OPT["pt"] & 4: a("buffer_load_dword v19, v16, s[60:63], s73 offen nt")
        if OPT["pt"] & 8:
            srd(8, P_V, 128 << 20)
            a(f"""
s_lshl_b32 s25, s20, 4
s_add_u32 s25, s25, s19
{HS("s26")}
s_lshl3_add_u32 s25, s26, s25
s_lshl_b32 s25, s25, 21
s_mov_b64 exec, {hex((1 << OPT['ptn']) - 1)}
v_mul_u32_u24 v16, {(2 << 20)//OPT['ptn']}, v0
buffer_load_dword v41, v16, s[8:11], s25 offen nt
""")
    a("s_mov_b64 exec, -1")
    if OPT["pr"]:
        backoff(OPT["prd"])
        a(f"""
s_lshl_b32 s25, s20, 4
s_add_u32 s25, s25, s19
{HS("s26")}
s_lshl3_add_u32 s25, s26, s25
s_lshl_b32 s25, s25, 13
{US("s26")}
s_lshl_b32 s26, s26, 8
s_add_u32 s25, s25, s26
s_add_u32 s25, s25, {PART}
v_lshlrev_b32 v40, 4, v10
v_lshl_add_u32 v40, v11, 11, v40
v_mov_b32 v44, 0
v_mov_b32 v45, 0
v_mov_b32 v46, 0
v_mov_b32 v47, 0
{["", "buffer_load_dwordx4 v[44:47], v40, s[12:15], s25 offen sc1", "buffer_load_dwordx4 v[44:47], v40, s[12:15], s25 offen", "buffer_store_dwordx4 v[44:47], v40, s[12:15], s25 offen sc1"][OPT["pr"]]}
""")
    if OPT["dlb"]:
        a(f"""
s_lshl_b32 s27, s17, 7
s_mul_i32 s26, s18, {56*1024}
s_add_u32 s26, s26, s27
s_movk_i32 s30, 2000
L_dl:
s_memrealtime s[64:65]
s_sub_u32 s30, s30, 1
s_cbranch_scc1 L_dld
s_waitcnt lgkmcnt(0)
s_sub_u32 s64, s64, s74
s_cmp_ge_i32 s64, {OPT['dlb']}
s_cbranch_scc1 L_dld
s_sleep 4
s_branch L_dl
L_dld:
s_mov_b32 s25, 0
""")
        for t in range(16):
            a(f"s_mov_b32 m0, {R1 + 1024*t}")
            if t: a(f"s_mov_b32 s25, {t*32*3584}")
            a(f"buffer_load_dwordx4 v5, s[68:71], s25 offen nt lds")
        for t in range(7):
            a(f"buffer_load_dwordx4 v[{WDV+4*t}:{WDV+4*t+3}], v6, s[4:7], s26 offen nt")
            if t < 6: a("s_add_u32 s26, s26, 8192")
        if OPT["dlw"]: a("s_waitcnt vmcnt(0)")
    if OPT["w8"]:
        backoff(OPT["w8d"])
        a(f"""
s_lshl_b32 s25, s18, 17
s_movk_i32 s26, {OPT["w8"]}
L_w8:
""")
        for t in range(OPT["w8n"]):
            a(f"s_waitcnt vmcnt({OPT['w8n']-1})\nbuffer_load_dwordx4 v[{16+4*t}:{19+4*t}], v3, s[60:63], s25 offen {['', 'nt', 'sc1', 'sc0 sc1', 'sc1 nt'][OPT['w8p']]}\ns_add_u32 s25, s25, 1024")
            if OPT["w8s"]: a(f"s_sleep {OPT['w8s']}")
        a(f"""
s_sub_u32 s26, s26, {OPT['w8n']}
s_cmp_gt_i32 s26, 0
s_cbranch_scc1 L_w8
""")
    if BW:
        def red8b(r, op, src=None):
            for m in ("quad_perm:[1,0,3,2]", "quad_perm:[2,3,0,1]", "row_half_mirror"):
                q = r if src is None else src
                a(f"{op}_dpp v{r}, v{q}, v{q} {m} row_mask:0xf bank_mask:0xf")
                src = None
        a(f"""
v_lshl_add_u32 v20, v0, 3, v15
v_lshl_add_u32 v21, v0, 2, v15
v_lshrrev_b32 v22, 5, v0
v_bfe_u32 v23, v0, 3, 2
v_lshl_add_u32 v22, v22, 5, v23
v_mul_u32_u24 v22, {FST}, v22
s_lshl_b32 s25, s20, 4
s_add_u32 s25, s25, s19
{HS("s26") + chr(10) + "s_lshl3_add_u32 s25, s26, s25" + chr(10) + US("s26") if OP else ""}
s_mul_i32 s25, s25, {4*FST}
s_lshl_b32 s26, {"s26" if OP else "s17"}, 3
s_add_u32 s25, s25, s26
s_add_u32 s25, s25, {FG + OPT['fgo']}
s_mov_b32 s26, {f32(LOG2E)}
v_mov_b32 v31, v{VN}
""" + (f"""
v_lshrrev_b32 v36, 3, v0
v_mul_u32_u24 v36, {32*FST}, v36
v_and_b32 v37, 7, v0
v_lshl_add_u32 v36, v37, 3, v36
s_mul_i32 s28, s18, {FST}
s_add_u32 s28, s28, {FG + OPT['fgo']}
v_not_b32 v32, v{VN}
v_mov_b32 v33, 0
v_not_b32 v34, v{VN}
v_mov_b32 v35, 0
s_mov_b32 s29, {BP1}
""" if BP1 else "") + f"""
s_mov_b32 s76, {SPIN*64}
{f"s_setprio {OPT['bwp']}" if OPT['bwp'] != 3 else ""}
""")
        if LH and OPT["lhp"]:
            a(f"""
s_cmp_eq_u32 s28, 1
s_cbranch_scc0 L_nopw
s_lshl_b32 s27, s20, 4
s_add_u32 s27, s27, s19
{HS("s29")}
s_lshl3_add_u32 s27, s29, s27
s_lshl_b32 s27, s27, 13
{US("s29")}
s_lshl_b32 s29, s29, 8
s_add_u32 s27, s27, s29
s_add_u32 s27, s27, {PART}
s_mov_b32 s29, 0x9e3779b1
v_mul_lo_u32 v44, v{VN}, s29
v_lshlrev_b32 v40, 2, v0
v_and_b32 v40, 12, v40
v_not_b32 v44, v44
v_lshrrev_b32 v44, v40, v44
v_lshrrev_b32 v45, 1, v44
v_lshrrev_b32 v46, 2, v44
v_lshrrev_b32 v47, 3, v44
v_lshlrev_b32 v40, 4, v10
v_lshl_add_u32 v40, v11, 11, v40
v_not_b32 v42, v{VN}
v_not_b32 v43, v{VN}
""")
            if OPT["lhp"] == 2:
                a(f"""
L_pw:
ds_read_b32 v25, v15 offset:128
s_sub_u32 s76, s76, 1
s_cbranch_scc1 L_pwd
s_waitcnt lgkmcnt(0)
v_readfirstlane_b32 s29, v25
s_cmp_ge_u32 s29, {2*(NSE + K0 + SE + NSE + KN) - OPT['lhd']}
s_cbranch_scc1 L_pwd
s_sleep 16
s_branch L_pw
L_pwd:
""")
            a(f"""
buffer_store_dwordx4 v[44:47], v40, s[12:15], s27 offen
s_mov_b32 exec_lo, 0x01010101
s_mov_b32 exec_hi, 0
buffer_store_dwordx2 v[42:43], v22, s[12:15], s25 offen
s_mov_b64 exec, -1
s_waitcnt vmcnt(0)
L_nopw:
""")
        if 2 <= OPT["we"] <= 5:
            a(f"""
L_we:
ds_read_b32 v25, v15 offset:148
s_sub_u32 s76, s76, 1
s_cbranch_scc1 L_wed
s_waitcnt lgkmcnt(0)
v_readfirstlane_b32 s27, v25
s_cmp_ge_u32 s27, {2*(K0+KN) + OPT["we"] - 1}
s_cbranch_scc1 L_wed
s_sleep {OPT['wes']}
s_branch L_we
L_wed:
""")
            backoff(OPT["wed"])
            wo_dma("s73")
        elif OPT["we"]:
            a(f"""
L_we:
{"ds_read_b32 v25, v15 offset:144" if OPT["we"] == 1 else f"ds_read_b64 v[24:25], v20 offset:{MLT - MISC}"}
s_sub_u32 s76, s76, 1
s_cbranch_scc1 L_wed
s_waitcnt lgkmcnt(0)
v_cmp_eq_u32 vcc, {0 if OPT["we"] == 1 else -1}, v25
s_bcnt1_i32_b64 s27, vcc
s_cmp_lt_u32 s27, {OPT["we"]}
s_cbranch_scc1 L_wed
s_sleep {OPT['wes']}
s_branch L_we
L_wed:
""")
            backoff(OPT["wed"])
            wo_dma("s73")
        a(f"""
L_bw:
ds_read_b64 v[24:25], v20 offset:{MLT - MISC}
s_sub_u32 s76, s76, 1
s_cbranch_scc1 L_bwd
s_waitcnt lgkmcnt(0)
v_cmp_eq_u32 vcc, -1, v25
s_cbranch_vccz L_bwd
s_bcnt1_i32_b64 s27, vcc
""" + (f"""
s_cmp_ge_u32 s27, s29
s_cbranch_scc1 L_bw1
s_mov_b32 s29, 0
{"s_mov_b32 exec_lo, 0x0f0f0f0f" + chr(10) + "s_mov_b32 exec_hi, 0x0f0f0f0f" if OP else ""}
buffer_atomic_cmpswap_x2 v[32:35], v36, s[12:15], s28 offen sc0 sc1
{"s_mov_b64 exec, -1" if OP else ""}
L_bw1:
""" if BP1 else "") + f"""
{f"s_sleep {OPT['bwt']}" if OPT['bwt'] else ""}
s_cmp_lt_u32 s27, {OPT['bwn']}
s_cbranch_scc1 L_bw
s_sleep {OPT['bws']}
s_branch L_bw
L_bwd:
{"s_setprio 3" if OPT['bwp'] != 3 else ""}
s_waitcnt lgkmcnt(0)
""")
        red8b(26, "v_max_f32", 24)
        a(f"""
v_sub_f32 v24, v24, v26
v_mul_f32 v24, s26, v24
v_exp_f32 v24, v24
v_mul_f32 v27, v24, v25
""")
        red8b(27, "v_add_f32")
        a(f"""
v_max_f32 v27, {f32(1e-30)}, v27
v_rcp_f32 v29, v27
v_log_f32 v28, v27
v_mul_f32 v24, v24, v29
ds_write_b32 v21, v24 offset:{WTL - MISC}
v_fma_f32 v30, v26, s26, v28
v_perm_b32 v30, v30, v{VN}, s{SEL}
""")
        wo_dma("s73", 0, OPT["bwo"])
        if BP1:
            backoff(OPT["bpz"])
            a(f"v_mov_b32 v38, v32\nv_mov_b32 v39, v33\nds_write_b64 v20, v[38:39] offset:{FTL - MISC}")
        a(f"""
s_mov_b32 exec_lo, 0x01010101
s_mov_b32 exec_hi, {0 if OP else 0x01010101}
s_waitcnt lgkmcnt(0)
s_barrier
{f"s_sleep {OPT['bwd']}" if OPT['bwd'] else ""}
{"s_cmp_eq_u32 s28, 1" + chr(10) + "s_cbranch_scc0 L_fsg" + chr(10) + "buffer_store_dwordx2 v[30:31], v22, s[12:15], s25 offen" + chr(10) + "s_branch L_fsd" + chr(10) + "L_fsg:" if LH else ""}
{"buffer_atomic_swap_x2" if OPT["fa"] & 1 else "buffer_store_dwordx2"} v[30:31], v22, s[12:15], s25 offen {['sc1', 'sc0 sc1', 'sc1 nt', 'sc0 sc1 nt'][OPT['fpl']]}
{"L_fsd:" if LH else ""}
s_mov_b64 exec, -1
""")
        stamp(0)
        if CR: a(ROLE("s27") + "\ns_cbranch_scc1 L_nowo")
        if not OPT["we"]: backoff(OPT["wdel"] - OPT["bwd"])
    elif OPT["lb"] == 2:
        a("s_waitcnt lgkmcnt(0)\ns_barrier")
        if OPT["eb"] and not OPT["ebw"]: a("s_barrier")
        stamp(0); backoff(OPT["wdel"])
    else: trig_wait()
    def wd_late():
        a(f"""
s_lshl_b32 s27, s17, 7
s_mul_i32 s26, s18, {56*1024}
s_add_u32 s26, s26, s27
""")
        for t in range(7):
            a(f"s_mov_b32 m0, {0x1E000 + 1024*t}\ns_nop 0\nbuffer_load_dwordx4 v6, s[4:7], s26 offen nt lds")
            if t < 6: a("s_add_u32 s26, s26, 8192")
    if OPT["wl"] == 1: wd_late()
    wo_dma("s73", 16 if OPT["we"] else OPT["bwo"])
    if OPT["awp"]: a("s_waitcnt vmcnt(0)\nds_write_b32 v15, v15 offset:144")
    if CR: a.label("L_nowo")
    if OPT["wl"] == 2: wd_late()
    if OPT["lb"] == 1 or OPT["eb"] and OPT["ebw"]: a("s_barrier")
if LATE and OPT["stamps"]: a("s_waitcnt vmcnt(0)"); stamp(4)
hstamps(9, 5)
a("s_waitcnt vmcnt(0) lgkmcnt(0)\ns_endpgm")

a.label("L_stream")
KA, VA, KR, VR = 1, 5, 7, 11
M_, L_ = 20, 21
T0, T1, T2 = 22, 23, 19
Q = 24; KF = 40; S = 56; T = 60; PF = 66; SA = 68; TKA = 69; CL = 70; ZR = 71; O = 72; STG = 104; NINF = 65; FL = 64
TE = T + 2; ONE = T + 3; TA = CL
ST0 = 168 - 16*NST
X0 = KF
a(f"""
v_and_b32 v{T0}, 15, v0
v_lshrrev_b32 v{T1}, 4, v0
s_mul_i32 s24, s3, {RING}
{"s_memrealtime s[98:99]" if OPT["pp"] else ""}
""")
for i in range(4):
    a(f"""
v_add_u32 v{T2}, {4*i}, v{T1}
v_xor_b32 v{T2}, v{T2}, v{T0}
v_lshlrev_b32 v{T2}, 4, v{T2}
v_lshl_add_u32 v{KA+i}, v{T1}, 8, v{T2}
v_lshl_add_u32 v{KR+i}, v{T0}, 8, v{T2}
""")
a(f"""
{"s_lshl_b32 s30, s17, 2" if XB else "s_lshl_b32 s30, s20, 4"}
s_add_u32 s30, s30, {"s20" if XB else "s19"}
{"s_lshl_b32 s30, s30, 1" if XB else ""}
{HS("s26") + chr(10) + "s_lshl3_add_u32 s30, s26, s30" + chr(10) + US("s22") if OP else ""}
s_lshl_b32 s21, s30, 21
s_lshl_b32 s22, {"s22" if OP else MEM}, 3
s_add_u32 s22, s22, s3
s_mul_i32 s77, s20, {OPT['r2']}
{f"s_mul_i32 s26, s26, {OPT['r3']}" + chr(10) + "s_add_u32 s77, s77, s26" if OP else ""}
{f"s_mul_i32 s25, {'s17' if XB else 's19'}, {OPT['r1']}" + chr(10) + "s_add_u32 s77, s77, s25" if OPT['r1'] else ""}
s_add_u32 s22, s22, s77
s_and_b32 s26, s22, 511
{trn("s26")}
s_lshl_b32 s26, s26, 12
s_add_u32 s26, s26, s21
s_add_u32 m0, s24, 8192
s_waitcnt lgkmcnt(0)
""")
if OPT["fz"]:
    a(f"""
s_add_u32 s27, s18, s17
s_and_b32 s27, s27, 3
s_lshr_b32 s28, s18, 2
v_lshrrev_b32 v40, 3, v0
v_and_b32 v41, 7, v0
v_lshlrev_b32 v41, 4, v41
s_cmp_eq_u32 s27, 2
s_cbranch_scc1 L_fzg
s_cmp_lg_u32 s27, 0
s_cbranch_scc1 L_fzd
s_lshl_b32 s29, s17, 3
s_add_u32 s29, s29, s28
s_lshl_b32 s29, s29, 7
s_lshl_b32 s25, s3, 19
s_add_u32 s29, s29, s25
v_lshl_add_u32 v40, v40, 13, v41
s_mov_b32 s28, 65536
""")
    srd(8, P_WQ, 512*4096*2)
    a(f"""
s_branch L_fzl
L_fzg:
s_cmp_ge_u32 s28, 7
s_cbranch_scc1 L_fzd
s_and_b32 s29, s17, 3
s_mul_i32 s29, s29, 7
s_add_u32 s29, s29, s28
s_lshl_b32 s29, s29, 7
s_mul_i32 s25, s3, {64*3584}
s_add_u32 s29, s29, s25
v_mul_u32_u24 v40, 3584, v40
v_add_u32 v40, v40, v41
s_movk_i32 s28, {8*3584}
s_cmp_lt_u32 s17, 4
s_cselect_b32 s8, s{P_WG}, s{P_WU}
s_cselect_b32 s9, s{P_WG+1}, s{P_WU+1}
s_mov_b32 s10, {512*1792*2}
s_mov_b32 s11, 0x00020000
L_fzl:
""")
    for t in range(8):
        a(f"s_add_u32 m0, s24, {1024*t}\ns_nop 0\nbuffer_load_dwordx4 v40, s[8:11], s29 offen nt lds\ns_add_u32 s29, s29, s28")
    a(f"""
s_add_u32 m0, s24, 8192
L_fzd:
""")
srd(4, P_K, 128 << 20)
if OPT["fine"] in (6, 7): a("s_memrealtime s[48:49]")
nload = [0]
def wxk(k): return [0, k & 7, 2*(k & 1), (k*3) & 7, (k & 1)*2 + (k >> 1 & 1) + (k & 4)][OPT["wx"]]
def pre_load(k):
    if k:
        a(f"""
s_xor_b32 s26, s3, {wxk(k)}
s_sub_u32 s26, s26, s3
s_add_u32 s26, s26, s22
s_add_u32 s26, s26, {64*k}
""" if OPT["wx"] else f"s_add_u32 s26, s22, {8*NM*k}")
        a(f"""
s_and_b32 s26, s26, 511
{trn("s26")}
s_lshl_b32 s26, s26, 12
s_add_u32 s26, s26, s21
""")
        if k >= 8: a(f"s_add_u32 s26, s26, {1 << 24}")
    if OPT["pp"] and k >= OPT["pp0"]:
        if k == OPT["pp0"]: a(f"s_mul_i32 s99, s3, {OPT['pps']}\ns_add_u32 s98, s98, s99\ns_movk_i32 s99, 2000")
        a(f"""
L_pp{k}:
s_memrealtime s[100:101]
s_sub_u32 s99, s99, 1
s_cbranch_scc1 L_ppd{k}
s_waitcnt lgkmcnt(0)
s_sub_u32 s100, s100, s98
s_cmp_ge_i32 s100, {OPT['ppo'] + (k - OPT['pp0'] + 1)*OPT['pp']}
s_cbranch_scc1 L_ppd{k}
s_sleep 2
s_branch L_pp{k}
L_ppd{k}:
""")
    if k == 1: a("s_mov_b32 m0, s24")
    if k == 2: a("s_add_u32 m0, s24, 4096")
    for i in range(4):
        if nload[0] == NPRE:
            if OPT["fine"] in (6, 7): a("s_memrealtime s[50:51]")
            setup_rest()
            if OPT["fine"] == 6: a("s_waitcnt vmcnt(0)\ns_memrealtime s[54:55]")
            a("s_waitcnt lgkmcnt(0)\ns_barrier")
            if OPT["fine"] == 6: a("s_memrealtime s[56:57]")
            if OPT["fine"] == 7: a("s_memrealtime s[54:55]")
        if OPT["fine"] == 7 and nload[0] == 16: a("s_memrealtime s[56:57]")
        if nload[0] >= Wp: a(f"s_waitcnt vmcnt({Wp-1})")
        if LOG and nload[0] >= Wp + 3 and (nload[0] - Wp) % 4 == 3:
            pl = [62, 64, 66, 94, 98, 100][(nload[0] - Wp)//4]
            a(f"s_memrealtime s[{pl}:{pl+1}]")
        if k < 3:
            a(f"buffer_load_dwordx4 v{KA+i}, s[4:7], s26 offen offset:{i*1024} nt lds")
        else:
            r = ST0 + 16*(k-3) + 4*i
            a(f"buffer_load_dwordx4 v[{r}:{r+3}], v{KA+i}, s[4:7], s26 offen offset:{i*1024} nt")
        nload[0] += 1
def setup_rest():
    srd(8, P_V, 128 << 20)
    srd(12, P_WS, WS_BYTES)
    for e in range(2):
        a(f"""
v_lshrrev_b32 v{T2}, 1, v{T0}
v_add_u32 v{X0}, {4*e}, v{T1}
v_xor_b32 v{T2}, v{T2}, v{X0}
v_lshlrev_b32 v{T2}, 5, v{T2}
v_and_b32 v{X0}, 1, v{T0}
v_lshl_add_u32 v{T2}, v{X0}, 4, v{T2}
v_lshl_add_u32 v{VA+e}, v{T1}, 8, v{T2}
""")
    a(f"""
s_mov_b32 s79, {hex(SENT)}
v_mov_b32 v{S}, s79
v_mov_b32 v{S+1}, s79
v_mov_b32 v{S+2}, s79
v_mov_b32 v{S+3}, s79
s_mul_i32 s25, s3, {2048 if HR else NSLOT*16}
s_add_u32 s25, s25, {SB}
v_lshl_add_u32 v{T2}, v0, 4, s25
""")
    for k in range(2 if HR else NSLOT//64): a(f"ds_write_b128 v{T2}, v[{S}:{S+3}] offset:{1024*k}")
    a(f"""
v_lshrrev_b32 v{X0}, 2, v0
v_and_b32 v{X0+1}, 7, v{X0}
v_and_b32 v{X0+2}, 3, v0
v_lshlrev_b32 v{X0+2}, 3, v{X0+2}
v_lshl_add_u32 v{SA}, v{T1}, 5, v{X0+2}
v_add_u32 v{SA}, {SB}, v{SA}
v_lshl_add_u32 v{X0+2}, v{X0}, 8, v{X0+2}
""")
    for dt in range(8):
        a(f"v_xor_b32 v{X0+3}, {dt}, v{X0+1}\nv_lshl_add_u32 v{VR+dt}, v{X0+3}, 5, v{X0+2}")
    a(f"""
v_cmp_gt_u32 s[70:71], 8, v{T0}
v_mov_b32 v{M_}, {f32(-1e30)}
v_mov_b32 v{L_}, 0
v_mov_b32 v{NINF}, {f32(LOG2E*1e30) if FS_ else "0xff80ff80"}
{"s_mov_b32 s68, 0x000f000f" + chr(10) + "s_mov_b32 s69, s68" if FS_ else ""}
v_mov_b32 v{ZR}, 0
s_mov_b32 s58, {f32(SCALE)}
s_mov_b32 s59, {f32(LOG2E)}
s_mov_b32 s31, {f32(-LOG2E)}
v_mov_b32 v{ONE}, 1
v_mov_b32 v{FL}, {TK}
v_mov_b32 v{TKA}, {TK}
s_mov_b32 s78, {T1B}
s_mov_b32 s96, 0
s_mov_b32 s60, s24
s_add_u32 s61, s24, 4096
s_add_u32 s72, s24, 8192
s_lshl_b32 s73, s3, 7
s_xor_b32 s27, s73, {1024 + 128*wxk(1)}
s_xor_b32 s28, s73, {2048 + 128*wxk(2)}
""")
    tag_consts(SEL)
    for r in range(O, min(O+32, ST0)): a(f"v_mov_b32 v{r}, 0")
    for r in range(16): a(f"v_mov_b32 v{Q+r}, 0")
for k in range(NSU): pre_load(k)
a(f"""
v_lshlrev_b32 v{T2}, 4, v{T1}
v_lshl_add_u32 v{T2}, v{T0}, 8, v{T2}
v_add_u32 v{T2}, {Q_LDS}, v{T2}
s_mov_b32 s76, {SPIN*16}
""")
a.label("L_qw")
a(f"""
ds_read_b32 v{T}, v{FL} offset:4
s_waitcnt lgkmcnt(0)
v_cmp_ne_u32 vcc, 1, v{T}
""")
spin_tail("L_qw", "L_qwdone", sleep=1)
stamp(1)
CM4 = "s_mov_b32 exec_lo, 0x000f000f\ns_mov_b32 exec_hi, 0x000f000f" if OP else "s_mov_b64 exec, s[70:71]"
a(CM4)
for j in range(4): a(f"ds_read_b128 v[{Q+4*j}:{Q+4*j+3}], v{T2} offset:{j*64}")
a("s_mov_b64 exec, -1")

nlab = [0]
def ticket_rd():
    a(f"s_mov_b64 exec, 1\nds_add_rtn_u32 v{TE}, v{TKA}, v{ONE}\ns_mov_b64 exec, -1")
def ticket_use():
    a(f"""
v_readfirstlane_b32 s25, v{TE}
s_and_b32 s75, s25, 1
s_lshr_b32 s25, s25, 1
{"s_lshl2_add_u32 s25, s25, s78" if FS_ else "s_lshl_b32 s25, s25, 2" + chr(10) + "s_add_u32 s25, s25, s78"}
v_mov_b32 v{TA}, s25
""")
def entry_rd():
    a(f"ds_read_b32 v{TE}, v{TA}")
def dmask(d):
    a(f"""
s_andn2_b32 s25, {d}, 127
v_add_u32 v{T2}, s25, v{SA}
""" + ("" if FS_ else f"""
s_and_b32 s25, {d}, 4
s_lshl_b32 s68, 0x000f000f, s25
s_mov_b32 s69, s68
"""))
def kstep(sb, d, mid=None):
    for j in range(4): a(f"v_add_u32 v{KF+4*j}, {sb}, v{KR+j}\nds_read_b128 v[{KF+4*j}:{KF+4*j+3}], v{KF+4*j}")
    dmask(d)
    if mid:
        a("s_waitcnt lgkmcnt(4)"); mid()
    for j in range(4):
        c = "0" if j == 0 else f"v[{S}:{S+3}]"
        a(f"s_waitcnt lgkmcnt({3-j})")
        a(f"v_mfma_f32_16x16x32_bf16 v[{S}:{S+3}], v[{KF+4*j}:{KF+4*j+3}], v[{Q+4*j}:{Q+4*j+3}], {c}")
    for k in range(2): a(f"v_cvt_pk_bf16_f32 v{T+k}, v{S+2*k}, v{S+2*k+1}")
    for k in range(2):
        a(f"v_lshlrev_b32 v{S+2*k}, 16, v{T+k}\nv_and_b32 v{S+2*k+1}, 0xffff0000, v{T+k}")
    for k in range(4): a(f"v_mul_f32 v{S+k}, s58, v{S+k}")
    for k in range(2): a(f"v_cvt_pk_bf16_f32 v{PF+k}, v{S+2*k}, v{S+2*k+1}")
    a(f"s_mov_b64 exec, s[68:69]\nds_write_b64 v{T2}, v[{PF}:{PF+1}]\ns_mov_b64 exec, -1")
ool = []
def soft(skip=None):
    nlab[0] += 1
    n = nlab[0]
    a(f"""
L_sr{n}:
v_cmp_eq_u32 vcc, s79, v{PF}
v_cmp_eq_u32 s[74:75], s79, v{PF+1}
""" if False else f"""
L_sr{n}:
v_cmp_eq_u32 vcc, s79, v{PF}
s_cbranch_vccnz {skip or f"L_ss{n}"}
v_cmp_eq_u32 vcc, s79, v{PF+1}
s_cbranch_vccnz {skip or f"L_ss{n}"}
L_sg{n}:
{"" if FS_ else f"v_cndmask_b32 v{T}, v{NINF}, v{PF}, s[68:69]"}
{"" if FS_ else f"v_cndmask_b32 v{T+1}, v{NINF}, v{PF+1}, s[68:69]"}
""")
    if not skip: ool.append(f"""
L_ss{n}:
s_sub_u32 s76, s76, 1
s_cmp_le_i32 s76, 0
s_cbranch_scc1 L_sg{n}
ds_read_b64 v[{PF}:{PF+1}], v{T2}
s_waitcnt lgkmcnt(0)
s_branch L_sr{n}
""")
    for k in range(2):
        q_ = (PF if FS_ else T) + k
        a(f"v_lshlrev_b32 v{S+2*k}, 16, v{q_}\nv_and_b32 v{S+2*k+1}, 0xffff0000, v{q_}")
    a(f"""
v_max3_f32 v{T}, v{S}, v{S+1}, v{S+2}
v_max3_f32 v{T}, v{T}, v{S+3}, v{M_}
{f"v_cmp_gt_f32 vcc, v{T}, v{M_}" + chr(10) + f"s_cbranch_vccz L_nr{n}" if FS_ else ""}
v_mov_b32 v{T+1}, v{T}
v_permlane16_swap_b32 v{T}, v{T+1}
v_max_f32 v{T}, v{T}, v{T+1}
v_mov_b32 v{T+1}, v{T}
v_permlane32_swap_b32 v{T}, v{T+1}
v_max_f32 v{T}, v{T}, v{T+1}
{"" if FS_ else f"v_cmp_gt_f32 vcc, v{T}, v{M_}" + chr(10) + f"s_cbranch_vccz L_nr{n}"}
v_sub_f32 v{T+1}, v{M_}, v{T}
v_mul_f32 v{T+1}, s59, v{T+1}
v_exp_f32 v{T+1}, v{T+1}
v_mov_b32 v{M_}, v{T}
{f"v_mul_f32 v{NINF}, s31, v{T}" if FS_ else ""}
v_mul_f32 v{L_}, v{L_}, v{T+1}
""")
    for r in range(32): a(f"v_mul_f32 v{O+r}, v{O+r}, v{T+1}")
    a.label(f"L_nr{n}")
    if not FS_: a(f"v_mul_f32 v{T+1}, s31, v{M_}")
    for k in range(4): a(f"v_fma_f32 v{S+k}, v{S+k}, s59, v{NINF if FS_ else T+1}")
    for k in range(4): a(f"v_exp_f32 v{S+k}, v{S+k}")
    for k in range(2): a(f"v_cvt_pk_bf16_f32 v{PF+k}, v{S+2*k}, v{S+2*k+1}")
    a(f"""
v_add_f32 v{T}, v{S}, v{S+1}
v_add_f32 v{T+1}, v{S+2}, v{S+3}
v_add_f32 v{T}, v{T}, v{T+1}
v_add_f32 v{L_}, v{L_}, v{T}
""")
def v_rd(sb):
    for dt in range(8): a(f"v_add_u32 v{KF+2*dt}, {sb}, v{VR+dt}\nds_read_b64_tr_b16 v[{KF+2*dt}:{KF+2*dt+1}], v{KF+2*dt}")
def pv(dt):
    a(f"v_mfma_f32_16x16x16_bf16 v[{O+4*dt}:{O+4*dt+3}], v[{KF+2*dt}:{KF+2*dt+1}], v[{PF}:{PF+1}], v[{O+4*dt}:{O+4*dt+3}]")
def vstep(sb, d, mid=None):
    dmask(d)
    a(f"ds_read_b64 v[{PF}:{PF+1}], v{T2}")
    v_rd(sb)
    a("s_waitcnt lgkmcnt(8)")
    if mid: mid()
    soft()
    a("s_waitcnt lgkmcnt(0)")
    for dt in range(8): pv(dt)
X = STG
VNS = X + 27; FLG = X + 26
F3ADDR = f"""
s_lshl_b32 s77, s16, 2
s_add_u32 s77, s77, {F1}
s_lshr_b32 s22, s16, {OPT['rsh']}
s_lshl_b32 s22, s22, 10
s_add_u32 s22, s22, {F1}
s_lshr_b32 s95, s3, 1
s_lshl_b32 s95, s95, 3
s_lshr_b32 s25, s16, 5
s_add_u32 s95, s95, s25
s_lshl_b32 s95, s95, 5
s_add_u32 s95, s95, s22
""" if OPT["f3"] else ""
FLIM = 1 << 20
COL = OPT["col"]
COL1 = f"""
v_lshrrev_b32 v{X+11}, 2, v{T0}
v_lshlrev_b32 v{X+11}, 12, v{X+11}
v_lshl_add_u32 v{X+25}, v{X+13}, 4, v{X+11}
v_lshl_add_u32 v{X+11}, v{T1}, 13, v{X+25}
""" if COL else f"""v_lshlrev_b32 v{X+11}, 4, v{T0}
v_lshl_add_u32 v{X+11}, v{T1}, 13, v{X+11}
"""
COL2 = "" if COL else f"""v_lshrrev_b32 v{X+25}, 3, v{T0}
v_lshlrev_b32 v{X+25}, 13, v{X+25}
v_lshl_add_u32 v{X+25}, v{X+3}, 4, v{X+25}
"""
FU = OPT["fful"]
FADDR = f"""
s_and_b32 s94, s29, 31
s_lshl_b32 s94, s94, 6
s_lshr_b32 s25, s29, 5
s_add_u32 s94, s94, s25
s_mul_i32 s94, s94, {FST}
s_lshl_b32 s25, s17, 3
s_add_u32 s94, s94, s25
s_add_u32 s94, s94, {FG}
s_andn2_b32 s95, s16, {[0, 7, 3, 1, 0][OPT['fone']]}
s_lshl_b32 s95, s95, 3
s_add_u32 s95, s95, s3
s_mul_i32 s95, s95, {FST}
s_add_u32 s95, s95, {FG}
v_mul_u32_u24 v{X+30}, {8*FST}, v0
""" if not FU else f"""
s_lshl_b32 s94, s29, 3
s_add_u32 s94, s94, s17
s_mul_i32 s94, s94, {FU}
s_add_u32 s94, s94, {FG}
s_lshl_b32 s95, s3, 5
s_add_u32 s95, s95, s18
s_mul_i32 s95, s95, {8*FU}
s_lshl_b32 s25, s17, 3
s_add_u32 s95, s95, s25
s_add_u32 s95, s95, {FG}
v_mul_u32_u24 v{X+30}, {FU}, v0
"""
FSA, FPA = (X+1, X+30) if FU else (X+30, X+1)
PH = OPT["ph"]
if PH: FPA = X + 6
PLY = OPT["ply"]
if OPT["fone"] == 4:
    FADDR = f"""
s_mul_i32 s94, s29, {FST}
s_lshl_b32 s25, {MEM}, 3
s_add_u32 s94, s94, s25
s_add_u32 s94, s94, {FG + OPT['fgo']}
s_lshl_b32 s95, s3, 5
{"s_lshl2_add_u32 s33, s17, s20" if LH else ""}
s_add_u32 s95, s95, {"s33" if LH else "s18"}
{"s_andn2_b32 s95, s95, 1" if CR else ""}
s_mul_i32 s95, s95, {FST}
s_add_u32 s95, s95, {FG + OPT['fgo']}
v_mov_b32 v{X+30}, 0
"""
PHA = f"""v_and_b32 v{X+10}, 7, v0
v_lshl_add_u32 v{X+10}, v{X+10}, 2, v{T1}
v_lshrrev_b32 v{X+5}, 3, v{T0}
v_lshl_add_u32 v{X+10}, v{X+10}, 1, v{X+5}
v_lshlrev_b32 v{X+10}, 2, v{X+10}
v_lshlrev_b32 v{X+5}, 2, v0
v_and_b32 v{X+6}, 1, v0
v_lshl_add_u32 v{X+6}, v{X+6}, {3 if CR else 2}, v{T1}
v_lshlrev_b32 v{X+6}, 3, v{X+6}
v_and_b32 v{X+8}, 12, v{X+5}""" if PH else f"""v_bfe_u32 v{X+10}, v0, 4, 1
v_lshlrev_b32 v{X+10}, 2, v{X+10}
v_lshl_add_u32 v{X+10}, v{T0}, 4, v{X+10}
v_lshl_add_u32 v{X+10}, v{X+4}, 3, v{X+10}
v_and_b32 v{X+31}, 1, v0
v_lshlrev_b32 v{X+31}, 4, v{X+31}"""
PHB = f"""s_mov_b32 s25, 0x9e3779b1
v_mul_lo_u32 v{X+31}, v{VNS}, s25
v_lshrrev_b32 v{X+8}, v{X+8}, v{X+31}
v_lshrrev_b32 v{X+31}, v{T0}, v{X+31}""" if PH else f"v_lshrrev_b32 v{X+31}, v{X+31}, v{VNS}"
PLA = f"""s_lshr_b32 s74, s3, 1
s_lshl_b32 s74, s74, 3
s_lshr_b32 s25, s18, 2
s_add_u32 s74, s74, s25
s_lshl_b32 s74, s74, 6
s_and_b32 s25, s3, 1
s_lshl_b32 s25, s25, 2
s_add_u32 s74, s74, s25
s_and_b32 s25, s18, 3
s_add_u32 s74, s74, s25
s_lshl_b32 s74, s74, 8
s_add_u32 s74, s74, {PART}
s_add_u32 s33, s74, 8192
v_lshlrev_b32 v{X+7}, 4, v{T0}
v_lshl_add_u32 v{X+7}, v{T1}, 11, v{X+7}""" if PLY else f"""s_lshl_b32 s74, s3, 5
s_add_u32 s74, s74, {"s33" if LH else "s18"}
{"s_andn2_b32 s74, s74, 1" if CR else ""}
s_lshl_b32 s74, s74, {11 if PH else 12}
s_add_u32 s74, s74, {PART}
v_lshlrev_b32 v{X+7}, 4, v0"""
def tail_addr():
    a(f"""
v_mul_u32_u24 v{X}, {CST}, v{T0}
v_lshl_add_u32 v{X}, v{T1}, 4, v{X}
v_add_u32 v{X}, s24, v{X}
v_lshlrev_b32 v{X+1}, 3, v0
s_lshl_b32 s25, s3, 3
s_add_u32 s25, s25, {MLT}
v_lshl_add_u32 v{X+15}, v0, 6, s25
v_mov_b32 v{X+21}, {MISC}
ds_read_b32 v{VNS}, v{X+21} offset:96
s_lshr_b32 s29, s3, 2
{"" if XB else "s_lshl_b32 s29, s29, 3"}
s_add_u32 s29, s29, s30
s_lshl_b32 s29, s29, 2
s_and_b32 s25, s3, 3
s_add_u32 s29, s29, s25
s_lshl_b32 s62, {"s16" if PLY else "s29"}, {11 if PH else 12}
{US("s25") if OP else ""}
s_lshl_b32 s25, {"s25" if OP else "s3" if PLY else MEM}, {8 if PH else 9}
s_add_u32 s62, s62, s25
s_add_u32 s62, s62, {PART}
{FADDR}
v_and_b32 v{X+3}, 31, v0
v_lshrrev_b32 v{X+4}, 5, v0
v_lshlrev_b32 v{X+2}, 4, v{X+3}
{PHA}
v_mul_u32_u24 v{X+14}, {4*RING}, v{X+4}
v_add_u32 v{X+2}, v{X+14}, v{X+2}
s_mul_i32 s25, s3, {CST}
v_add_u32 v{X+2}, s25, v{X+2}
v_and_b32 v{X+3}, 7, v0
v_lshlrev_b32 v{X+4}, 2, v{X+4}
v_xor_b32 v{X+4}, v{X+4}, v{X+3}
s_lshl_b32 s25, s3, {5 if BW else 6}
s_add_u32 s25, s25, {WTL if BW else MLT}
v_lshl_add_u32 v{X+4}, v{X+4}, {2 if BW else 3}, s25
{PLA}
v_lshrrev_b32 v{X+9}, 2, v{T0}
v_lshl_add_u32 v{X+9}, v{T1}, 3, v{X+9}
v_lshlrev_b32 v{X+9}, 7, v{X+9}
v_and_b32 v{X+13}, 3, v0
v_lshl_add_u32 v{X+9}, v{X+13}, 3, v{X+9}
s_and_b32 s25, s3, 3
s_lshl_b32 s25, s25, 5
s_add_u32 s25, s25, {TB if CR else WO_LDS}
{"s_and_b32 s29, s3, 4" + chr(10) + "s_lshl_b32 s64, s29, 12" + chr(10) + "s_add_u32 s25, s25, s64" if CR else ""}
v_add_u32 v{X+9}, s25, v{X+9}
s_mul_i32 s25, s3, {OST}
s_add_u32 s25, s25, {SB if CR else O_LDS}
v_add_u32 v{X+10}, s25, v{X+10}
v_mul_u32_u24 v{X+12}, {OST}, v{T0}
v_lshl_add_u32 v{X+12}, v{T1}, 4, v{X+12}
{f"s_mul_i32 s25, s29, {2*OST}" + chr(10) + f"s_add_u32 s25, s25, {SB}" if CR else ""}
v_add_u32 v{X+12}, {"s25" if CR else O_LDS}, v{X+12}
{COL1}
v_lshl_add_u32 v{X+21}, v{X+13}, 3, v{X+21}
s_lshl_b32 s25, s3, 8
s_add_u32 s25, s25, {WD_LDS}
v_lshl_add_u32 v{X+24}, v{T0}, 4, s25
{COL2}
s_lshl_b32 s29, s17, 17
s_add_u32 s29, s29, {CPA}
s_lshl_b32 s25, s18, 7
s_add_u32 s65, s29, s25
s_lshl_b32 s25, s3, 14
s_add_u32 s67, s65, s25
s_add_u32 s67, s67, {64 if COL else 4096}
s_add_u32 s63, s67, {CPB-CPA}
{"s_andn2_b32 s65, s65, 128" + chr(10) + "s_lshl_b32 s25, s3, 5" + chr(10) + "s_and_b32 s25, s25, 128" + chr(10) + "s_add_u32 s65, s65, s25" + chr(10) + "s_and_b32 s25, s3, 3" if CR else ""}
{"s_and_b32 s65, s18, 7" + chr(10) + "s_lshl_b32 s65, s65, 17" + chr(10) + "s_lshl_b32 s25, s33, 7" + chr(10) + "s_add_u32 s65, s65, s25" + chr(10) + f"s_add_u32 s65, s65, {CPB}" if LH else ""}
s_lshl_b32 s25, {"s25" if CR else "s3"}, 15
s_add_u32 s65, s65, s25
s_add_u32 s64, s65, {CPB-CPA}
v_lshlrev_b32 v{X+23}, 10, v{X+13}
v_lshl_add_u32 v{X+23}, v{T1}, 1, v{X+23}
v_lshrrev_b32 v{X+14}, 2, v0
v_lshlrev_b32 v{X+14}, 7, v{X+14}
v_lshl_add_u32 v{X+13}, v{X+13}, 4, v{X+14}
s_lshr_b32 s66, s18, 1
s_lshl_b32 s99, s66, 3
s_lshl_b32 s66, s66, 13
s_add_u32 s66, s66, s29
s_and_b32 s25, s18, 1
s_lshl_b32 s29, s25, {12 if COL else 6}
s_add_u32 s66, s66, s29
s_add_u32 s98, s66, {64 if COL else 4096 if OPT["bpa"] else 4096 + CPB - CPA}
{f"s_add_u32 s66, s66, {CPB-CPA}" if LH else ""}
s_lshl_b32 s25, s25, 12
s_add_u32 s99, s99, s25
s_lshl_b32 s25, s17, 7
s_add_u32 s99, s99, s25
s_waitcnt lgkmcnt(0)
{PHB}
""")
EF = OPT["ef"]; KL = OPT["kl"]
if KL:
    a(f"""
s_mov_b64 exec, 1
ds_add_rtn_u32 v{TE}, v{FL}, v{ONE} offset:16
s_mov_b64 exec, -1
s_waitcnt lgkmcnt(0)
v_readfirstlane_b32 s23, v{TE}
s_cmp_ge_u32 s23, {8 - KL}
s_cselect_b32 s25, 20, 0
v_add_u32 v{TKA}, s25, v{FL}
""")
a(f"s_mov_b32 s76, {SPIN*64}\ns_waitcnt vmcnt({4*NSU-4})\ns_mov_b32 s97, 0")
if EF: a("s_mov_b32 s101, 2")
ticket_rd()
kstep("s72", "s73", mid=ticket_use)
entry_rd()
if KL:
    a(f"""
s_cmp_lt_u32 s23, {8 - KL}
s_cbranch_scc1 L_loop2
s_waitcnt lgkmcnt(0)
v_mov_b32 v{TE}, 512
""")
PS = OPT["ps"]
if PS:
    a(f"""
L_loop:
s_cmp_eq_u32 s96, 2
s_cbranch_scc1 L_flush
s_branch L_loop2
L_pre:
s_bitcmp1_b32 s27, 0
s_cbranch_scc0 L_loop2
""")
    dmask("s27")
    a(f"ds_read_b64 v[{PF}:{PF+1}], v{T2}\ns_waitcnt lgkmcnt(0)")
    soft("L_loop2")
    a("s_or_b32 s27, s27, 2")
else: a(f"""
L_loop:
s_cmp_eq_u32 s96, {"s101" if EF else 2}
s_cbranch_scc1 L_flush
""")
a(f"""
L_loop2:
s_waitcnt vmcnt(4) lgkmcnt(0)
{"s_memrealtime s[48:49]" if LOG else ""}
L_eretry:
v_readfirstlane_b32 s23, v{TE}
s_mov_b32 m0, s72
s_cmp_eq_u32 s23, -1
s_cbranch_scc1 L_espin
s_bitcmp1_b32 s23, 9
s_cbranch_scc1 L_special
{"s_lshl1_add_u32 s26, s23, s75" if FS_ else "s_lshl_b32 s26, s23, 1" + chr(10) + "s_add_u32 s26, s26, s75"}
s_add_u32 s26, s26, s77
s_and_b32 s26, s26, 511
{trn("s26")}
s_lshl_b32 s26, s26, 12
s_add_u32 s26, s26, s21
{"" if FS_ else "s_and_b32 s25, s23, 256"}
{"" if FS_ else f"s_lshl_b32 s29, s25, {13 if XB else 16}"}
{"" if FS_ else "s_add_u32 s26, s26, s29"}
s_bitcmp1_b32 s23, 15
s_cbranch_scc1 L_isv
""")
for i in range(4): a(f"buffer_load_dwordx4 v{KA+i}, s[4:7], s26 offen offset:{i*1024} nt lds")
a("s_branch L_isd\nL_isv:")
for i in range(4): a(f"buffer_load_dwordx4 v{VA+(i&1)}, s[8:11], s26 offen offset:{i*1024} nt lds")
a(f"""
L_isd:
{"s_memrealtime s[50:51]" if LOG else ""}
{"" if FS_ else "s_lshr_b32 s25, s25, 6"}
s_bfe_u32 s73, s23, 0x1000f
{"" if FS_ else "s_or_b32 s73, s73, s25"}
s_lshr_b32 s23, s23, 16
{"s_lshl1_add_u32 s23, s23, s75" if FS_ else "s_lshl_b32 s23, s23, 1" + chr(10) + "s_add_u32 s23, s23, s75"}
s_lshl_b32 s23, s23, 7
s_or_b32 s73, s73, s23
L_proc:
""")
ticket_rd()
a("s_bitcmp1_b32 s27, 0\ns_cbranch_scc1 L_pv")
if RV: a("s_bitcmp1_b32 s27, 1\ns_cbranch_scc1 L_null")
kstep("s60", "s27", mid=ticket_use)
a("s_branch L_pd\nL_pv:")
if PS:
    a("s_bitcmp1_b32 s27, 1\ns_cbranch_scc0 L_pv1")
    v_rd("s60")
    a("s_waitcnt lgkmcnt(8)")
    ticket_use()
    if PS == 2: entry_rd()
    for dt in range(8):
        a(f"s_waitcnt lgkmcnt({7-dt+(1 if PS == 2 else 0)})")
        pv(dt)
    if PS == 2: a("s_branch L_pd2")
    a_real = a; a = Asm()
    a.label("L_pv1")
    vstep("s60", "s27", mid=ticket_use)
    a("s_branch L_pd")
    ool.append("\n".join(a.L)); a = a_real
else: vstep("s60", "s27", mid=ticket_use)
a.label("L_pd")
if LOG:
    a(f"""
s_add_u32 s25, s96, 8
s_and_b32 s50, s50, 0xfffffffc
s_and_b32 s51, s73, 1
s_or_b32 s50, s50, s51
s_bitcmp0_b32 s97, 0
s_cbranch_scc1 L_lg1
s_lshl_b64 exec, 1, s25
v_mov_b32 v{T0}, s48
v_mov_b32 v{T1}, s50
s_mov_b64 exec, -1
s_branch L_lg2
L_lg1:
s_cmp_eq_u32 s96, 0
s_cselect_b32 s54, s48, s54
s_cselect_b32 s55, s50, s55
s_mov_b32 s56, s48
s_mov_b32 s57, s50
L_lg2:
""")
entry_rd()
if PS == 2: a.label("L_pd2")
a(f"""
s_mov_b32 s25, s60
s_mov_b32 s60, s61
s_mov_b32 s61, s72
s_mov_b32 s72, s25
s_mov_b32 s27, s28
s_mov_b32 s28, s73
s_add_u32 s96, s96, 1
{"s_cmp_eq_u32 s97, 1" + chr(10) + "s_cbranch_scc1 L_pre" if PS else ""}
s_cmp_lt_u32 s97, 2
s_cbranch_scc1 L_loop
{"s_bitcmp1_b32 s97, 0" if RV else "s_cmp_eq_u32 s97, 3"}
s_cbranch_scc1 L_final
L_flush0:
s_waitcnt vmcnt(0)
L_flush:
s_waitcnt vmcnt(8)
{"s_mov_b32 s101, -1" if EF else ""}
v_lshlrev_b32 v{PF}, 4, v0
v_add_u32 v{TA+1}, s72, v{PF}
s_lshl_b32 s73, s3, 7
""")
for u in range(NST):
    for i in range(4):
        r = ST0 + 16*u + 4*i
        a(f"ds_write_b128 v{TA+1}, v[{r}:{r+3}] offset:{i*1024}")
    a(f"s_xor_b32 s23, s73, {1024*(3+u) + 128*wxk(3+u) + (4 if 3+u >= 8 else 0)}")
    kstep("s72", "s23")
a(f"v_mov_b32 v{ZR}, 0")
for r in range(ST0, O+32): a(f"v_mov_b32 v{r}, 0")
if LOG:
    for n_, pl in enumerate([62, 64, 66, 94, 98, 100]): a(f"v_writelane_b32 v{KF}, s{pl}, {n_}")
    a(f"v_writelane_b32 v{KF}, s80, 6\nv_writelane_b32 v{KF}, s82, 7\nv_writelane_b32 v{KF}, s54, 8\nv_writelane_b32 v{KF}, s56, 9")
    a(f"v_mov_b32 v{KF+1}, 0\nv_writelane_b32 v{KF+1}, s55, 8\nv_writelane_b32 v{KF+1}, s57, 9\nv_cmp_gt_u32 vcc, 10, v0\ns_nop 1\nv_cndmask_b32 v{KF}, 0, v{KF}, vcc")
tail_addr()
if LOG: a(f"v_mov_b32 v{T0}, v{KF}\nv_mov_b32 v{T1}, v{KF+1}")
a(f"""
s_add_u32 s97, s97, 1
s_cmp_eq_u32 s97, 1
s_cbranch_scc1 L_loop2
L_final:
{"s_bitcmp1_b32 s97, 2" + chr(10) + "s_cbranch_scc1 L_pk2" if RV else ""}
s_bitcmp1_b32 s27, 0
s_cbranch_scc1 L_finv
{"s_bitcmp1_b32 s27, 1" + chr(10) + "s_cbranch_scc1 L_fin2" if RV else ""}
s_waitcnt vmcnt(0)
""")
kstep("s60", "s27")
a(f"""
s_branch L_fin2
L_espin:
""" + ("""
s_cmp_lg_u32 s97, 0
s_cbranch_scc1 L_espin2
s_cmp_eq_u32 s96, 0
s_cbranch_scc1 L_flush0
s_branch L_flush
L_espin2:
""" if EF else "") + f"""
s_sub_u32 s76, s76, 1
s_cmp_le_i32 s76, 0
s_cbranch_scc1 L_term
ds_read_b32 v{TE}, v{TA}
s_waitcnt lgkmcnt(0)
s_branch L_eretry
L_special:
{"s_bitcmp1_b32 s23, 1" + chr(10) + "s_cbranch_scc1 L_park" if RV else ""}
s_bitcmp1_b32 s23, 0
s_cbranch_scc0 L_term
v_mov_b32 v{TKA}, {TK+16}
s_mov_b32 s78, {T2B}
""")
ticket_rd()
a("s_waitcnt lgkmcnt(0)")
ticket_use()
a(f"""
s_branch L_espin
L_term:
s_or_b32 s97, s97, 2
v_mov_b32 v{TKA}, {TK+20}
s_branch L_proc
""")
if RV:
    a(f"""
L_park:
s_or_b32 s97, s97, 4
v_mov_b32 v{TKA}, {TK+20}
s_mov_b32 s73, 2
s_branch L_proc
L_pk2:
s_waitcnt vmcnt(0) lgkmcnt(0)
s_mov_b32 s73, 2
s_bitcmp0_b32 s27, 1
s_cbranch_scc1 L_proc
L_pk3:
ds_read_b32 v{TE}, v{FL} offset:16
s_sub_u32 s76, s76, 1
s_cmp_le_i32 s76, 0
s_cbranch_scc1 L_pk4
s_waitcnt lgkmcnt(0)
v_readfirstlane_b32 s25, v{TE}
s_cmp_lg_u32 s25, 0
s_cbranch_scc1 L_pk4
s_sleep {OPT['rvs']}
s_branch L_pk3
L_pk4:
{"s_waitcnt lgkmcnt(0)" + chr(10) + "s_cmp_le_u32 s25, 512" + chr(10) + "s_cbranch_scc1 L_fin2" if OPT["rvl"] else ""}
s_mov_b32 s97, 1
v_mov_b32 v{TKA}, {TK}
s_waitcnt lgkmcnt(0)
s_branch L_proc
L_null:
s_waitcnt lgkmcnt(0)
""")
    ticket_use()
    a("s_branch L_pd")
OOL_AT = len(a.L)
a.label("L_finv")
def fine3(k): pass
dmask("s27")
a(f"ds_read_b64 v[{PF}:{PF+1}], v{T2}\ns_waitcnt lgkmcnt(0)")
soft()
a.label("L_fin2")
if OPT["fine"] in (6, 7): a("s_mov_b32 s4, s80")
AA = STG + 32
CM = AA; AW = AA + 16
R = S; GV = X + 28
a(f"""
v_mov_b32 v{T+1}, v{L_}
v_permlane16_swap_b32 v{L_}, v{T+1}
v_add_f32 v{L_}, v{L_}, v{T+1}
v_mov_b32 v{T+1}, v{L_}
v_permlane32_swap_b32 v{L_}, v{T+1}
v_add_f32 v{L_}, v{L_}, v{T+1}
s_mov_b32 s76, {SPIN*16}
s_mov_b64 exec, 0xff
ds_write_b64 v{X+15}, v[{M_}:{L_}]
s_mov_b64 exec, -1
""")
def aw_rd(s_):
    a(f"ds_read_b64_tr_b16 v[{AW+4*s_}:{AW+4*s_+1}], v{X+9} offset:{s_*4096}")
    a(f"ds_read_b64_tr_b16 v[{AW+4*s_+2}:{AW+4*s_+3}], v{X+9} offset:{s_*4096+512}")
def misc_rd():
    if BP1: a(f"s_lshl_b32 s25, s3, 6\ns_add_u32 s25, s25, {FTL}\nv_add_u32 v{Q+6}, s25, v{FPA}\nds_read_b64 v[{Q+4}:{Q+5}], v{Q+6}")
    if OPT["xm"]: a(f"ds_read_b32 v{T}, v{FL} offset:12")
    a(f"ds_read_b128 v[{X+16}:{X+19}], v{X+24}")
    if not OPT["lb"]:
        for s_ in range(4): aw_rd(s_)
    a(f"ds_read_b64 v[{GV}:{GV+1}], v{X+21} offset:64")
if not OPT["mlate"]:
    a(f"L_bw:\nds_read_b32 v{T}, v{FL} offset:12")
    misc_rd()
    a(f"s_waitcnt lgkmcnt(0)\nv_cmp_ne_u32 vcc, 1, v{T}")
    spin_tail("L_bw", "L_bwdone", sleep=2)
C = O + 16
def fine2(k):
    if OPT["fine"] == 2: a(f"s_waitcnt vmcnt(0)\ns_memtime s[{[4,6,8,10,48,50,54,56][k]}:{[4,6,8,10,48,50,54,56][k]+1}]\ns_waitcnt lgkmcnt(0)")
def fine(k):
    if OPT["fine"] == 1: a(f"s_memtime s[{[4,6,8,10,48,50,54,56][k]}:{[4,6,8,10,48,50,54,56][k]+1}]" + ("\ns_waitcnt lgkmcnt(0)" if k in (0, 3,) else ""))
for dt in range(8): a(f"v_add_u32 v{KF+2*dt}, s60, v{VR+dt}")
if PH: a("s_mov_b32 s68, 0x00010001\ns_mov_b32 s69, 0x00010001")
EB = OPT["eb"]
def red8(r, op, src=None):
    for m in ("quad_perm:[1,0,3,2]", "quad_perm:[2,3,0,1]", "row_half_mirror"):
        q = r if src is None else src
        a(f"{op}_dpp v{r}, v{q}, v{q} {m} row_mask:0xf bank_mask:0xf")
        src = None
def flag_st():
    a(f"""
s_mov_b64 exec, {hex((1 << (FU//8)) - 1) if FU else [0xff, 1, 0x11, 0x55, 1][OPT['fone']]}
buffer_store_dwordx2 v[{FLG}:{FLG+1}], v{FSA}, s[12:15], s94 offen sc1
s_mov_b64 exec, -1
""")
def wts1():
    red8(T, "v_max_f32", CM)
    a(f"""
v_sub_f32 v{CM}, v{CM}, v{T}
v_mul_f32 v{CM}, s59, v{CM}
v_exp_f32 v{CM}, v{CM}
v_mul_f32 v{T+1}, v{CM}, v{CM+1}
""")
    red8(T+1, "v_add_f32")
    a(f"""
v_max_f32 v{T+1}, {f32(1e-30)}, v{T+1}
v_log_f32 v{T+2}, v{T+1}
v_rcp_f32 v{T+3}, v{T+1}
""")
def wts2():
    a(f"""
v_fma_f32 v{FLG}, v{T}, s59, v{T+2}
v_perm_b32 v{FLG}, v{FLG}, v{VNS}, s{SEL}
""")
if EB:
    a(f"s_waitcnt lgkmcnt(0)\ns_barrier\nds_read_b64 v[{CM}:{CM+1}], v{X+4}\ns_waitcnt lgkmcnt(0)")
    wts1(); wts2(); flag_st()
a(f"s_mov_b32 s76, {SPIN}\ns_waitcnt vmcnt({1 if EB else 0})")
fine3(3)
fine(0)
if LOG: a(f"s_memrealtime s[48:49]\ns_add_u32 s25, s96, 8\ns_waitcnt lgkmcnt(0)\ns_lshl_b64 exec, 1, s25\nv_mov_b32 v{T0}, s48\ns_mov_b64 exec, -1")
a("s_bitcmp1_b32 s27, 0\ns_cbranch_scc0 L_fin3")
for dt in range(8): a(f"ds_read_b64_tr_b16 v[{KF+2*dt}:{KF+2*dt+1}], v{KF+2*dt}")
for dt in range(8):
    a(f"s_waitcnt lgkmcnt({7-dt})")
    pv(dt)
a.label("L_fin3")
stamp(2)
fine(1)
a(CM4)
for dt in range(8): a(f"ds_write_b128 v{X}, v[{O+4*dt}:{O+4*dt+3}] offset:{dt*64}")
a("s_mov_b64 exec, -1")
if OPT["tcw"]:
    a(f"""
s_cmp_lg_u32 s3, {OPT['fin']}
s_cbranch_scc1 L_ntc
v_lshlrev_b32 v{T}, 7, v0
{"s_mov_b32 exec_hi, 0" if OPT["tcw"] == 1 else ""}
buffer_load_dword v{AA+4}, v{T}, s[12:15], s66 offen {['', 'sc1', 'nt'][OPT['tpol']]}
s_mov_b64 exec, -1
L_ntc:
""")
EP = OPT["ep"]
if EP: a(f"s_mov_b32 s22, {0x10001 if OP else 0x30003}\ns_mov_b32 s23, s22\nv_mov_b32 v{Q+4}, v{VNS}\nv_mov_b32 v{Q+5}, 0\nv_mov_b32 v{Q+6}, v{VNS}\nv_mov_b32 v{Q+7}, 0")
def ep_poll():
    a(f"""
s_mov_b64 exec, s[22:23]
buffer_atomic_cmpswap_x2 v[{Q+4}:{Q+7}], v{FPA}, s[12:15], s95 offen sc0 sc1
s_mov_b64 exec, -1
""")
if OP: a("s_cmp_gt_u32 s3, 3")
a("s_waitcnt lgkmcnt(0)")
fine(2)
a("s_barrier")
fine(3)
if EP == 1: ep_poll()
if OP: a("s_cbranch_scc1 L_nocmb")
if LH: a(f"ds_read_b32 v{T}, v{FL} offset:12")
if BW: a(f"ds_read_b32 v{CM}, v{X+4}")
elif not EB: a(f"ds_read_b64 v[{CM}:{CM+1}], v{X+4}")
for k in range(4):
    a(f"ds_read_b128 v[{C+4*k}:{C+4*k+3}], v{X+2} offset:{k*RING}")
def fp_first():
    a(f"""
s_movk_i32 s22, 0xff
s_mov_b32 s23, 0
s_mov_b64 exec, 0xff
v_mov_b32 v{KF}, v{VNS}
v_mov_b32 v{KF+1}, 0
v_mov_b32 v{KF+2}, v{VNS}
v_mov_b32 v{KF+3}, 0
buffer_atomic_cmpswap_x2 v[{KF}:{KF+3}], v{FPA}, s[12:15], s95 offen sc0 sc1
s_mov_b64 exec, -1
""")
if OPT["fp0"] == 1: fp_first()
if EP == 2: ep_poll()
def ofma(k):
    a(f"s_waitcnt lgkmcnt({3-k})")
    for j in range(4): a(f"v_{'mul' if k == 0 else 'fmac'}_f32_dpp v{R+j}, v{CM}, v{C+4*k+j} row_newbcast:{k} row_mask:0xf bank_mask:0xf")
if not EB and not BW:
    a("s_waitcnt lgkmcnt(4)")
    wts1()
ofma(0)
if not EB and not BW: wts2()
fine2(0)
if not OPT["fo"] and not EB and not BW: flag_st()
fine2(1)
for k in range(1, 4): ofma(k)
fine(4)
a(f"""
v_permlane32_swap_b32 v{R}, v{R+2}
v_permlane32_swap_b32 v{R+1}, v{R+3}
v_add_f32 v{R}, v{R}, v{R+2}
v_add_f32 v{R+1}, v{R+1}, v{R+3}
{"" if BW else f"v_mul_f32 v{R}, v{R}, v{T+3}"}
{"" if BW else f"v_mul_f32 v{R+1}, v{R+1}, v{T+3}"}
""")
if not PH: a(f"""
v_perm_b32 v{R}, v{R}, v{X+31}, s{SEL}
v_perm_b32 v{R+1}, v{R+1}, v{X+31}, s{SEL+1}
""")
if PH:
    a(f"""
v_cvt_pk_f16_f32 v{R}, v{R}, v{R+1}
v_bfi_b32 v{R}, s68, v{X+31}, v{R}
""")
    if PH == 1: a(f"""
v_mov_b32_dpp v{R+1}, v{R} quad_perm:[1,1,1,1] row_mask:0xf bank_mask:0xf
v_mov_b32_dpp v{R+2}, v{R} quad_perm:[2,2,2,2] row_mask:0xf bank_mask:0xf
v_mov_b32_dpp v{R+3}, v{R} quad_perm:[3,3,3,3] row_mask:0xf bank_mask:0xf
s_mov_b32 exec_lo, 0x11111111
s_mov_b32 exec_hi, 0x11111111
buffer_store_dwordx4 v[{R}:{R+3}], v{X+5}, s[12:15], s62 offen sc1
s_mov_b64 exec, -1
""")
    else:
        if EP == 3: ep_poll()
        if LH: a(f"v_readfirstlane_b32 s63, v{T}\ns_cmp_eq_u32 s63, 1\ns_cbranch_scc0 L_psg\nbuffer_store_dword v{R}, v{X+5}, s[12:15], s62 offen\ns_branch L_nocmb\nL_psg:")
        a(f"{'buffer_atomic_swap' if OPT['fa'] & 2 else 'buffer_store_dword'} v{R}, v{X+5}, s[12:15], s62 offen {['sc1', 'sc0 sc1', 'sc1 nt', 'sc0 sc1 nt'][OPT['ppl']]}")
elif OPT["px4"]:
    a(f"""
v_mov_b32_dpp v{R+2}, v{R} quad_perm:[1,1,3,3] row_mask:0xf bank_mask:0xf
v_mov_b32_dpp v{R+3}, v{R+1} quad_perm:[1,1,3,3] row_mask:0xf bank_mask:0xf
s_mov_b32 exec_lo, {[0x55555555, 0x55555555, 0x5555, 0][OPT['psm']]}
s_mov_b32 exec_hi, {[0x55555555, 0, 0, 0][OPT['psm']]}
buffer_store_dwordx4 v[{R}:{R+3}], v{X+1}, s[12:15], s62 offen sc1
s_mov_b64 exec, -1
""")
else:
    a(f"buffer_store_dwordx2 v[{R}:{R+1}], v{X+1}, s[12:15], s62 offen sc1")
if OPT["fo"]: flag_st()
if OP: a.label("L_nocmb")
if OPT["mlate"]:
    if OPT["stamps"]: stamp(3); a("s_waitcnt lgkmcnt(0)")
    misc_rd()
    a(f"s_waitcnt lgkmcnt({1 if OPT['lb'] else 9})")
if OPT["hbn"] != 1: a("s_mov_b64 exec, 0xffff")
if not OPT["mlate"]: stamp(3)
fine(5)
fine2(2)
def st2(lbl, ins, extra=""):
    a(f"""
s_cmp_eq_u32 s63, 1
s_cbranch_scc1 {lbl}n
{ins} sc1
s_branch {lbl}d
{lbl}n:
{ins}{" nt" if OPT["snt"] & (1 if lbl == "L_bs" else 2) else ""}
{extra}
{lbl}d:
""")
if OPT["xm"]:
    a(f"v_readfirstlane_b32 s63, v{T}")
    st2("L_bs", f"buffer_store_dwordx4 v[{X+16}:{X+19}], v{X+25}, s[12:15], s67 offen", f"""
v_not_b32 v{T}, v{VNS}
v_not_b32 v{T+1}, v{VNS}
v_not_b32 v{T+2}, v{VNS}
v_not_b32 v{T+3}, v{VNS}
s_sub_u32 s25, s67, 4096
buffer_store_dwordx4 v[{T}:{T+3}], v{X+25}, s[12:15], s25 offen
""" if OPT["prw"] else "")
elif OPT["hbn"] != 1:
    if OPT["bpa"]: a(f"buffer_store_dwordx4 v[{X+16}:{X+19}], v{X+25}, s[12:15], s67 offen")
    if not OPT["hbn"]: a(f"buffer_store_dwordx4 v[{X+16}:{X+19}], v{X+25}, s[12:15], s63 offen sc1")
    fine2(3)
    if OPT["prw"]:
        a(f"""
v_not_b32 v{T}, v{VNS}
v_not_b32 v{T+1}, v{VNS}
v_not_b32 v{T+2}, v{VNS}
v_not_b32 v{T+3}, v{VNS}
s_sub_u32 s25, s67, 4096
buffer_store_dwordx4 v[{T}:{T+3}], v{X+25}, s[12:15], s25 offen
""")
fine2(4)
BB = AA + 8
def bpoll():
    for k in range(2):
        a(f"buffer_load_dwordx4 v[{BB+4*k}:{BB+4*k+3}], v{X+13}, s[12:15], s98 offen offset:{2048*k} sc1")
def bp_early():
    a(f"s_cmp_lg_u32 s3, {OPT['fin']}\ns_cbranch_scc1 L_nobp0\ns_mov_b64 exec, -1")
    bpoll()
    if EP: a(f"s_waitcnt vmcnt({3 if OP else 4})\ns_branch L_epw")
    a.label("L_nobp0")
    if EP: a("s_waitcnt vmcnt(2)")
    if EP and OP: a("s_cmp_le_u32 s3, 3\ns_cbranch_scc1 L_epw\ns_waitcnt vmcnt(1)")
    if EP: a.label("L_epw")
if OPT["bpe"] >= 2: bp_early()
if CR: a(ROLE("s25") + "\ns_cbranch_scc1 L_prod")
PA = O
WT = Q; FS = Q + 4; P = Q + 8; TT = KF
FPOLL = {0: f"""
v_mov_b32 v{FS}, 0
v_mov_b32 v{FS+1}, 0
buffer_atomic_or_x2 v[{FS}:{FS+1}], v{FPA}, s[12:15], s95 offen sc0 sc1
""", 1: f"buffer_load_dwordx2 v[{FS}:{FS+1}], v{FPA}, s[12:15], s95 offen sc1",
2: f"""
v_mov_b32 v{FS}, v{VNS}
v_mov_b32 v{FS+1}, 0
v_mov_b32 v{FS+2}, v{VNS}
v_mov_b32 v{FS+3}, 0
buffer_atomic_cmpswap_x2 v[{FS}:{FS+3}], v{FPA}, s[12:15], s95 offen sc0 sc1
""", 3: f"buffer_load_dwordx2 v[{FS}:{FS+1}], v{FPA}, s[12:15], s95 offen sc0 sc1 nt",
4: f"""
v_mov_b32 v{FS}, 0
v_mov_b32 v{FS+1}, 0
buffer_atomic_umax_x2 v[{FS}:{FS+1}], v{FPA}, s[12:15], s95 offen sc0 sc1
""", 5: f"""
v_mov_b32 v{FS}, 0
v_mov_b32 v{FS+1}, 0
buffer_atomic_or_x2 v[{FS}:{FS+1}], v{FPA}, s[12:15], s95 offen sc0 sc1 nt
"""}[OPT["fpol"]]
for j_ in range(OPT["dup"]):
    r_ = KF + 4*j_
    FPOLL += f"""
{f"s_mov_b64 exec, {OPT['dupl']}" if OPT['dupl'] else ""}
v_mov_b32 v{r_}, v{VNS}
v_mov_b32 v{r_+1}, 0
v_mov_b32 v{r_+2}, v{VNS}
v_mov_b32 v{r_+3}, 0
buffer_atomic_cmpswap_x2 v[{r_}:{r_+3}], v{X+1 if OPT['dupl'] else FPA}, s[12:15], s95 offen sc0 sc1
s_mov_b64 exec, s[22:23]
"""
def pload(k):
    if OPT["nopart"] == 2: a(f"s_and_b32 exec_lo, exec_lo, 0xffff\ns_and_b32 exec_hi, exec_hi, 0xffff")
    if OPT["nopart"] == 3: a(f"s_and_b32 exec_lo, exec_lo, 0xff\ns_and_b32 exec_hi, exec_hi, 0xff")
    if OPT["nopart"] != 1: a(f"buffer_load_dwordx4 v[{PA+4*k}:{PA+4*k+3}], v{X+7}, s[12:15], s74 offen offset:{1024*k} sc1")
def ploads(m):
    for k in range(4):
        a(f"""
s_bfe_i32 exec_lo, {m}, {hex(0x10000 + 2*k)}
s_bfe_i32 exec_hi, {m}, {hex(0x10000 + 2*k + 1)}
""")
        pload(k)
FCHK = f"""
v_xor_b32 v{T}, v{FS}, v{VNS}
v_and_b32 v{T}, 0xff, v{T}
v_xor_b32 v{T+1}, v{FS+1}, v{VNS}
v_or_b32 v{T}, v{T}, v{T+1}
v_cmp_eq_u32 vcc, 0, v{T}
"""
FP_ = OPT["fp"]
def fpoll(j):
    r = (PA + 16 if PH else KF) + 4*j
    a(f"""
s_mov_b64 exec, s[22:23]
v_mov_b32 v{r}, v{VNS}
v_mov_b32 v{r+1}, 0
v_mov_b32 v{r+2}, v{VNS}
v_mov_b32 v{r+3}, 0
buffer_atomic_cmpswap_x2 v[{r}:{r+3}], v{FPA}, s[12:15], s95 offen sc0 sc1
""")
def fstep(j, cnt):
    r = (PA + 16 if PH else KF) + 4*j
    a(f"""
s_waitcnt vmcnt({cnt})
v_xor_b32 v{T}, v{r}, v{VNS}
v_and_b32 v{T}, 0xff, v{T}
v_xor_b32 v{T+1}, v{r+1}, v{VNS}
v_or_b32 v{T}, v{T}, v{T+1}
v_cmp_eq_u32 vcc, 0, v{T}
v_cndmask_b32 v{FS}, v{FS}, v{r}, vcc
""")
    if PH: a(f"""
s_and_b64 s[26:27], vcc, s[68:69]
s_mul_i32 exec_lo, s26, 0xffff
s_mul_i32 exec_hi, s27, 0xffff
s_lshr_b64 s[26:27], vcc, 1
buffer_load_dwordx4 v[{PA}:{PA+3}], v{X+7}, s[12:15], s74 offen sc1
s_and_b64 s[26:27], s[26:27], s[68:69]
s_mul_i32 exec_lo, s26, 0xffff
s_mul_i32 exec_hi, s27, 0xffff
s_andn2_b64 s[22:23], s[22:23], vcc
buffer_load_dwordx4 v[{PA+4}:{PA+7}], v{X+7}, s[12:15], s74 offen offset:1024 sc1
s_cbranch_scc0 L_f1done
""")
    else:
        a("s_mov_b32 s25, vcc_lo")
        ploads("s25")
        a(f"""
s_andn2_b32 s22, s22, s25
s_cbranch_scc0 L_f1done
""")
    fpoll(j)
    a(f"s_sleep {OPT['fps']}")
if FP_:
    NS_ = 3 if PH else 5
    if not OPT["fp0"]: a("s_mov_b32 s22, 0x30003\ns_mov_b32 s23, s22" if PH else "s_movk_i32 s22, 0xff\ns_mov_b32 s23, 0")
    for j in range(1 if OPT["fp0"] else 0, FP_):
        fpoll(j)
        if j < FP_ - 1: a(f"s_sleep {OPT['fps']}")
    for j in range(FP_): fstep(j, (FP_ - 1 - j) + NS_*j + (3 if OPT["fp0"] and j == 0 else 0))
    a.label("L_f1")
    a("s_sub_u32 s76, s76, 1\ns_cbranch_scc1 L_f1done")
    for j in range(FP_): fstep(j, NS_*(FP_ - 1))
    a("s_branch L_f1\nL_f1done:\ns_mov_b64 exec, -1")
SP = OPT["sp"]
SPL = f"""v_mov_b32 v{PA}, 0
v_mov_b32 v{PA+1}, 0
v_mov_b32 v{PA+2}, 0
v_mov_b32 v{PA+3}, 0
buffer_atomic_or_x2 v[{PA}:{PA+1}], v{X+7}, s[12:15], s74 offen sc0 sc1
buffer_atomic_or_x2 v[{PA+2}:{PA+3}], v{X+7}, s[12:15], s74 offen offset:8 sc0 sc1""" if SP & 4 else f"buffer_load_dwordx4 v[{PA}:{PA+3}], v{X+7}, s[12:15], s74 offen sc1"
SPT = f"""
{"" if SP & 1 else "s_branch L_f1"}
L_g1:
s_mov_b64 exec, s[22:23]
{FPOLL}
s_mul_i32 exec_lo, s22, 0xffff
s_mul_i32 exec_hi, s23, 0xffff
s_sub_u32 s76, s76, 1
{SPL}
s_mov_b64 exec, s[22:23]
s_waitcnt vmcnt({0 if SP & 4 else 1})
{FCHK}
s_andn2_b64 s[22:23], s[22:23], vcc
s_cbranch_scc0 L_f1done
s_branch L_f1n
""" if SP else ""
a_real = a
if FP_: a = Asm()
a(f"""
{"s_mov_b32 s22, 0x00010001" if OP and not CR else "s_mov_b32 s22, 0x00030003" if PH else "s_movk_i32 s22, 0xff"}
s_mov_b32 s23, {"s22" if PH else 0}
{"s_mov_b32 s26, 0" if OPT["inc"] == 2 else ""}
{f"s_mov_b64 exec, -1" + chr(10) + f"v_mov_b32 v{T0}, 0" + chr(10) + f"v_mov_b32 v{T1}, 0" + chr(10) + "s_mov_b32 s30, 0" if LG9 else ""}
{"s_mov_b64 exec, s[22:23]" + chr(10) + "s_branch L_f1c" if BP1 or EP else ""}
{SPT}
L_f1:
{"s_memrealtime s[50:51]" if LG9 else ""}
s_mov_b64 exec, s[22:23]
{FPOLL}
s_sub_u32 s76, s76, 1
s_waitcnt vmcnt(0)
{"s_memrealtime s[48:49]" + chr(10) + "s_waitcnt lgkmcnt(0)" + chr(10) + "s_lshl_b32 s50, s50, 8" + chr(10) + "s_bcnt1_i32_b64 s51, s[22:23]" + chr(10) + "s_or_b32 s50, s50, s51" + chr(10) + "s_mov_b32 m0, s30" + chr(10) + f"v_writelane_b32 v{T0}, s48, m0" + chr(10) + f"v_writelane_b32 v{T1}, s50, m0" + chr(10) + "s_add_u32 s30, s30, 1" + chr(10) + "s_and_b32 s30, s30, 63" if LG9 else ""}
{"L_f1c:" if BP1 or EP else ""}
{FCHK}
""")
if OPT["inc"] == 2:
    a(f"""
s_mov_b32 s25, s26
s_mov_b32 s26, vcc_lo
s_andn2_b32 s22, s22, s26
s_cselect_b32 s29, 0, s26
s_or_b32 s25, s25, s29
s_cbranch_scc0 L_f1n
""")
    if OPT["ebd"]: a(f"s_cmp_lg_u32 s22, 0\ns_cbranch_scc1 L_f1x\ns_sleep {OPT['ebd']}\nL_f1x:")
    ploads("s25")
    a("s_cmp_eq_u32 s22, 0\ns_cbranch_scc1 L_f1done")
elif OP and not CR:
    a(f"""
s_cbranch_vccz L_f1n
s_mul_i32 exec_lo, vcc_lo, 0xffff
s_mul_i32 exec_hi, vcc_hi, 0xffff
s_andn2_b64 s[22:23], s[22:23], vcc
buffer_load_dwordx4 v[{PA}:{PA+3}], v{X+7}, s[12:15], s74 offen sc1
s_cbranch_scc0 L_f1done
""")
elif PH:
    a(f"""
s_cbranch_vccz L_f1n
s_and_b64 s[26:27], vcc, s[68:69]
s_mul_i32 exec_lo, s26, 0xffff
s_mul_i32 exec_hi, s27, 0xffff
s_lshr_b64 s[26:27], vcc, 1
buffer_load_dwordx4 v[{PA}:{PA+3}], v{X+7}, s[12:15], s74 offen sc1
s_and_b64 s[26:27], s[26:27], s[68:69]
s_mul_i32 exec_lo, s26, 0xffff
s_mul_i32 exec_hi, s27, 0xffff
s_andn2_b64 s[22:23], s[22:23], vcc
buffer_load_dwordx4 v[{PA+4}:{PA+7}], v{X+7}, s[12:15], {"s33 offen" if PLY else f"s74 offen offset:{2048 if CR else 1024}"} sc1
s_cbranch_scc0 L_f1done
""")
else:
    a("s_cbranch_vccz L_f1n\ns_mov_b32 s25, vcc_lo")
    if OPT["inc"]: ploads("s25")
    a("s_andn2_b32 s22, s22, s25\ns_cbranch_scc0 L_f1done")
a(f"""
L_f1n:
s_cmp_eq_u32 s76, 0
s_cbranch_scc1 L_f1done
{"s_sleep %d" % OPT['f1slp'] if OPT['f1slp'] else ""}
""")
def patom(k):
    for j in range(4): a(f"v_mov_b32 v{PA+4*k+j}, 0")
    for h in range(2): a(f"buffer_atomic_{['or', 'add', 'umax'][OPT['spo']]}_x2 v[{PA+4*k+2*h}:{PA+4*k+2*h+1}], v{X+7}, s[12:15], s74 offen offset:{1024*k+8*h} sc0 sc1")
if OPT["spec"] and PH:
    a(f"""
s_bcnt1_i32_b64 s25, s[22:23]
s_cmp_gt_u32 s25, {OPT['spec']}
s_cbranch_scc1 L_f1
L_f2:
s_mov_b64 exec, s[22:23]
{FPOLL}
s_and_b64 s[26:27], s[22:23], s[68:69]
s_mul_i32 exec_lo, s26, 0xffff
s_mul_i32 exec_hi, s27, 0xffff
s_cbranch_scc0 L_f2a
""")
    patom(0)
    a(f"""
L_f2a:
s_lshr_b64 s[26:27], s[22:23], 1
s_and_b64 s[26:27], s[26:27], s[68:69]
s_mul_i32 exec_lo, s26, 0xffff
s_mul_i32 exec_hi, s27, 0xffff
s_cbranch_scc0 L_f2b
""")
    patom(1)
    a(f"""
L_f2b:
s_mov_b64 exec, s[22:23]
s_sub_u32 s76, s76, 1
s_waitcnt vmcnt(0)
{FCHK}
s_andn2_b64 s[22:23], s[22:23], vcc
s_cbranch_scc0 L_f1done
s_cmp_eq_u32 s76, 0
s_cbranch_scc1 L_f1done
{"s_sleep %d" % OPT['f2slp'] if OPT['f2slp'] else ""}
s_branch L_f2
""")
elif OPT["spec"]:
    a(f"""
s_bcnt1_i32_b32 s25, s22
s_cmp_gt_u32 s25, {OPT['spec']}
s_cbranch_scc1 L_f1
L_f2:
s_mov_b64 exec, s[22:23]
{FPOLL}
""")
    ploads("s22")
    a(f"""
s_mov_b64 exec, s[22:23]
s_sub_u32 s76, s76, 1
s_waitcnt vmcnt(0)
{FCHK}
s_andn2_b32 s22, s22, vcc_lo
s_cbranch_scc0 L_f1done
s_cmp_eq_u32 s76, 0
s_cbranch_scc1 L_f1done
{"s_sleep %d" % OPT['f2slp'] if OPT['f2slp'] else ""}
s_branch L_f2
""")
if SP & 2:
    a(f"""
s_bcnt1_i32_b64 s25, s[22:23]
s_cmp_le_u32 s25, {OPT['spn']}
s_cbranch_scc1 L_g1
""")
if OPT["f1th"]:
    a(f"""
s_bcnt1_i32_b64 s25, s[22:23]
s_cmp_le_u32 s25, {OPT['f1th']}
s_cbranch_scc1 L_f1
s_sleep {OPT['f1sl2']}
""")
a(f"""
s_branch L_f1
L_f1done:
s_mov_b64 exec, -1
""")
a = a_real
if not OPT["inc"]:
    for k in range(4): pload(k)
if OPT["bpe"] == 1: bp_early()
if OPT["stamps"]: a("s_memrealtime s[100:101]")
def red8h(r, op, src):
    a(f"v_mov_b32 v{r}, v{src}" if OP else f"{op}_dpp v{r}, v{src}, v{src} quad_perm:[1,0,3,2] row_mask:0xf bank_mask:0xf")
    for sw in ("v_permlane16_swap_b32", "v_permlane32_swap_b32"):
        a(f"v_mov_b32 v{r+1}, v{r}\n{sw} v{r}, v{r+1}\n{op} v{r}, v{r}, v{r+1}")
(red8h if PH else red8)(T, "v_max_f32", FS)
a(f"""
v_sub_f32 v{FS}, v{FS}, v{T}
v_exp_f32 v{FS}, v{FS}
""")
(red8h if PH else red8)(T, "v_add_f32", FS)
a(f"""
v_rcp_f32 v{T}, v{T}
v_mul_f32 v{FS}, v{FS}, v{T}
""")
if PH:
    for d in range(1, 4): a(f"v_lshrrev_b32 v{TT+8+d}, {d}, v{X+8}")
    for k in range(1 if OP and not CR else 2): a(f"v_mov_b32_dpp v{WT+k}, v{FS} row_newbcast:{k} row_mask:0xf bank_mask:0xf")
else:
    for x in range(8): a(f"v_readlane_b32 s{32+x}, v{FS}, {x}")
    for k in range(4): a(f"v_mov_b32 v{WT+k}, s{32+2*k+1}")
    a("s_mov_b32 exec_hi, 0")
    for k in range(4): a(f"v_mov_b32 v{WT+k}, s{32+2*k}")
def tag_chk(grans, t, VNS=VNS):
    for n_, r in enumerate(grans):
        a(f"v_perm_b32 v{t+2*n_}, v{r+1}, v{r}, s{SEL+4}\nv_perm_b32 v{t+2*n_+1}, v{r+3}, v{r+2}, s{SEL+5}")
    for n_, r in enumerate(grans):
        a(f"v_xor_b32 v{t+2*n_}, v{t+2*n_}, v{VNS}")
    for n_, r in enumerate(grans):
        a(f"v_xor_b32 v{t+2*n_}, v{t+2*n_}, v{t+2*n_+1}")
    if len(grans) == 4:
        a(f"v_or3_b32 v{t}, v{t}, v{t+2}, v{t+4}\nv_or_b32 v{t}, v{t}, v{t+6}")
    else:
        a(f"v_or_b32 v{t}, v{t}, v{t+2}")
    a(f"v_cmp_ne_u32 vcc, 0, v{t}")
AWP = OPT["awp"]
a.label("L_pchk")
a("s_mov_b64 exec, -1\ns_waitcnt vmcnt(0)")
if AWP: a(f"ds_read_b32 v{T}, v{FL} offset:16")
if CR:
    PP = (P, PA + 8)
    for k in range(2):
        for d in range(4):
            for h in range(2):
                a(f"v_fma_mix_f32 v{PP[k]+2*d+h}, v{WT+k}, v{PA+4*k+d}, 0 op_sel:[0,{h},0] op_sel_hi:[0,1,0]")
    for p_ in PP:
        for j in range(4): a(f"v_permlane32_swap_b32 v{p_+j}, v{p_+4+j}")
    for p_ in PP:
        for j in range(4): a(f"v_add_f32 v{p_+j}, v{p_+j}, v{p_+4+j}")
    for p_ in PP: a(f"v_permlane16_swap_b32 v{p_}, v{p_+2}\nv_permlane16_swap_b32 v{p_+1}, v{p_+3}")
    for p_ in PP: a(f"v_add_f32 v{p_}, v{p_}, v{p_+2}\nv_add_f32 v{p_+1}, v{p_+1}, v{p_+3}")
    for p_ in PP: a(f"v_cvt_pk_bf16_f32 v{p_}, v{p_}, v{p_+1}")
    for k in range(2): a(f"ds_write_b32 v{X+10}, v{PP[k]} offset:{8*OST*k}")
    for j in range(8): a(f"v_xor_b32 v{TT+j}, v{PA+j}, v{TT+8+(j & 3) if j & 3 else X+8}")
    a(f"""
v_or3_b32 v{TT}, v{TT}, v{TT+1}, v{TT+2}
v_or3_b32 v{TT+3}, v{TT+3}, v{TT+4}, v{TT+5}
v_or3_b32 v{TT}, v{TT}, v{TT+6}, v{TT+7}
v_or_b32 v{TT}, v{TT}, v{TT+3}
v_and_b32 v{TT}, s68, v{TT}
v_cmp_ne_u32 vcc, 0, v{TT}
""")
elif PH:
    for k in range(1 if OP else 2):
        for d in range(4):
            for h in range(2):
                a(f"v_fma_mix_f32 v{P+2*d+h}, v{WT+k}, v{PA+4*k+d}, {f'v{P+2*d+h}' if k else 0} op_sel:[0,{h},0] op_sel_hi:[0,1,0]")
    for j in range(4): a(f"v_permlane32_swap_b32 v{P+j}, v{P+4+j}")
    for j in range(4): a(f"v_add_f32 v{P+j}, v{P+j}, v{P+4+j}")
    a(f"""
v_permlane16_swap_b32 v{P}, v{P+2}
v_permlane16_swap_b32 v{P+1}, v{P+3}
v_add_f32 v{P}, v{P}, v{P+2}
v_add_f32 v{P+1}, v{P+1}, v{P+3}
v_cvt_pk_bf16_f32 v{P}, v{P}, v{P+1}
ds_write_b32 v{X+10}, v{P}
""")
    for j in range(4 if OP else 8): a(f"v_xor_b32 v{TT+j}, v{PA+j}, v{TT+8+(j & 3) if j & 3 else X+8}")
    a(f"""
v_or3_b32 v{TT}, v{TT}, v{TT+1}, v{TT+2}
{"" if OP else f"v_or3_b32 v{TT+3}, v{TT+3}, v{TT+4}, v{TT+5}"}
{"" if OP else f"v_or3_b32 v{TT}, v{TT}, v{TT+6}, v{TT+7}"}
v_or_b32 v{TT}, v{TT}, v{TT+3}
v_and_b32 v{TT}, s68, v{TT}
v_cmp_ne_u32 vcc, 0, v{TT}
""")
else:
    for k in range(4):
        for j in range(4): a(f"v_{'mul' if k == 0 else 'fmac'}_f32 v{P+j}, v{WT+k}, v{PA+4*k+j}")
    a(f"""
v_permlane32_swap_b32 v{P}, v{P+2}
v_permlane32_swap_b32 v{P+1}, v{P+3}
v_add_f32 v{P}, v{P}, v{P+2}
v_add_f32 v{P+1}, v{P+1}, v{P+3}
v_cvt_pk_bf16_f32 v{P}, v{P}, v{P+1}
ds_write_b32 v{X+10}, v{P}
""")
    tag_chk([PA+4*k for k in range(4)], TT)
if not OPT["nopart"]: a("s_cbranch_vccnz L_prep")
a.label("L_pdone")
stamp(4)
BB = AA + 8
def bpoll():
    for k in range(2):
        a(f"buffer_load_dwordx4 v[{BB+4*k}:{BB+4*k+3}], v{X+13}, s[12:15], s98 offen offset:{2048*k} sc1")
a(f"s_cmp_lg_u32 s3, {OPT['fin']}\ns_cbranch_scc1 L_nobp")
if not OPT["bdel"] and OPT["bpe"] in (0, 3): bpoll()
D_ = PA + 16
if AWP:
    a(f"""
L_nobp:
s_waitcnt lgkmcnt({2 if CR else 1})
v_readfirstlane_b32 s33, v{T}
{"" if CR else "s_cmp_gt_u32 s3, 3" + chr(10) + "s_cbranch_scc1 L_nopre"}
s_cmp_eq_u32 s33, 0
s_cbranch_scc1 L_nopre
""")
    for s_ in range(4): aw_rd(s_)
    a("s_mov_b64 exec, s[70:71]\ns_waitcnt lgkmcnt(8)\ns_barrier")
    for s_ in range(4): a(f"ds_read_b128 v[{PA+4*s_}:{PA+4*s_+3}], v{X+12} offset:{64*s_}")
    a("s_mov_b64 exec, -1")
    for s_ in range(4):
        a(f"""
s_waitcnt lgkmcnt({3-s_})
v_mfma_f32_16x16x32_bf16 v[{D_}:{D_+3}], v[{AW+4*s_}:{AW+4*s_+3}], v[{PA+4*s_}:{PA+4*s_+3}], {"0" if s_ == 0 else f"v[{D_}:{D_+3}]"}
""")
    a.label("L_mmd")
    a_real = a; a = Asm()
    a.label("L_nopre")
else: a.label("L_nobp")
a(f"""
s_cmp_gt_u32 s3, 3
s_waitcnt lgkmcnt(0)
s_barrier
{"" if CR else "s_cbranch_scc1 L_nomm"}
""")
for s_ in range(4):
    a(f"ds_read_b128 v[{PA+4*s_}:{PA+4*s_+3}], v{X+12} offset:{64*s_}")
    if OPT["lb"]: aw_rd(s_)
for s_ in range(4):
    a(f"""
s_waitcnt lgkmcnt({(3-s_)*(3 if OPT["lb"] else 1)})
v_mfma_f32_16x16x32_bf16 v[{D_}:{D_+3}], v[{AW+4*s_}:{AW+4*s_+3}], v[{PA+4*s_}:{PA+4*s_+3}], {"0" if s_ == 0 else f"v[{D_}:{D_+3}]"}
""")
if AWP:
    a("s_branch L_mmd")
    ool.append("\n".join(a.L)); a = a_real
a("s_mov_b64 exec, s[70:71]")
tag_ins(D_, VNS, SEL)
if LH:
    a(f"buffer_store_dwordx4 v[{D_}:{D_+3}], v{X+11}, s[12:15], s65 offen sc1\ns_mov_b64 exec, -1")
elif OPT["xm"]:
    st2("L_as", f"buffer_store_dwordx4 v[{D_}:{D_+3}], v{X+11}, s[12:15], s65 offen")
    a("s_mov_b64 exec, -1")
else:
    a(f"""
{"" if OPT["noa"] else f"buffer_store_dwordx4 v[{D_}:{D_+3}], v{X+11}, s[12:15], s65 offen"}
{"" if OPT["nob"] else f"buffer_store_dwordx4 v[{D_}:{D_+3}], v{X+11}, s[12:15], s64 offen sc1"}
s_mov_b64 exec, -1
""")
if CR:
    ool.append("L_prod:\n" + ("s_memrealtime s[100:101]\ns_memrealtime s[88:89]\n" if OPT["stamps"] else "") + "s_mov_b64 exec, -1\ns_waitcnt lgkmcnt(0)\ns_branch L_nomm")
a.label("L_nomm")
stamp(5)
if OPT["hbn"]:
    a(f"""
s_cmp_eq_u32 s3, {OPT['fin']}
s_cbranch_scc1 L_nofar
s_mov_b64 exec, 0xffff
buffer_store_dwordx4 v[{X+16}:{X+19}], v{X+25}, s[12:15], s63 offen sc1
s_cmp_lg_u32 s3, {OPT['fin']+1}
s_cbranch_scc1 L_nofar
ds_read_b128 v[{T}:{T+3}], v{X+24} offset:{(-256) & 0xffff}
""" if False else f"""
s_cmp_eq_u32 s3, {OPT['fin']}
s_cbranch_scc1 L_nofar
s_sleep 4
s_mov_b64 exec, 0xffff
buffer_store_dwordx4 v[{X+16}:{X+19}], v{X+25}, s[12:15], s63 offen sc1
s_cmp_lg_u32 s3, {OPT['fin']-1}
s_cbranch_scc1 L_nofar
ds_read_b128 v[{KF}:{KF+3}], v{X+24} offset:256
s_add_u32 s63, s63, 16384
s_waitcnt lgkmcnt(0)
buffer_store_dwordx4 v[{KF}:{KF+3}], v{X+25}, s[12:15], s63 offen sc1
L_nofar:
s_mov_b64 exec, -1
""")
def wstamps():
    if LOG or LG9:
        a(f"""
s_lshl_b32 s29, s16, 3
s_add_u32 s29, s29, s3
s_lshl_b32 s29, s29, 9
s_add_u32 s29, s29, 0x500000
v_lshlrev_b32 v{T}, 2, v0
buffer_store_dword v{T0}, v{T}, s[12:15], s29 offen
buffer_store_dword v{T1}, v{T}, s[12:15], s29 offen offset:256
""")
    a(f"""
s_lshl_b32 s29, s16, 3
s_add_u32 s29, s29, s3
s_lshl_b32 s29, s29, 4
s_add_u32 s29, s29, {STAMP+0x10000}
s_add_u32 s96, s96, {2+NST}
s_waitcnt lgkmcnt(0)
v_mov_b32 v{T}, s84
v_mov_b32 v{T+1}, s85
v_mov_b32 v{T+2}, s82
v_mov_b32 v{T+3}, s96
s_mov_b64 exec, 1
buffer_store_dwordx4 v[{T}:{T+3}], v{ZR}, s[12:15], s29 offen
s_add_u32 s29, s29, 0x8000
s_nop 4
v_mov_b32 v{T}, s86
v_mov_b32 v{T+1}, s88
v_mov_b32 v{T+2}, s90
v_mov_b32 v{T+3}, s77
buffer_store_dwordx4 v[{T}:{T+3}], v{ZR}, s[12:15], s29 offen
s_add_u32 s29, s29, 0x8000
s_nop 4
v_mov_b32 v{T}, s100
buffer_store_dword v{T}, v{ZR}, s[12:15], s29 offen
s_add_u32 s29, s29, 0x8000
s_nop 4
v_mov_b32 v{T}, s4
v_mov_b32 v{T+1}, s6
v_mov_b32 v{T+2}, s8
v_mov_b32 v{T+3}, s10
buffer_store_dwordx4 v[{T}:{T+3}], v{ZR}, s[12:15], s29 offen
s_add_u32 s29, s29, 0x8000
s_nop 4
v_mov_b32 v{T}, s48
v_mov_b32 v{T+1}, s50
v_mov_b32 v{T+2}, s54
v_mov_b32 v{T+3}, s56
buffer_store_dwordx4 v[{T}:{T+3}], v{ZR}, s[12:15], s29 offen
s_mov_b64 exec, -1
s_nop 4
""")
if OPT["stamps"]:
    a(f"s_mov_b32 s77, s76\ns_cmp_eq_u32 s3, {OPT['fin']}\ns_cbranch_scc1 L_fin")
    wstamps()
    a("s_endpgm\nL_fin:")
else:
    a(f"s_cmp_lg_u32 s3, {OPT['fin']}\ns_cbranch_scc1 L_end")
a(f"""
s_mov_b32 s76, {SPIN}
s_movk_i32 s23, {OPT['na']}
""")
srd(60, P_OUT, 8192)
A3 = KF + 8; FB = KF + 12
def red(d, s0):
    for r in range(4): a(f"v_add_f32 v{d+r}, v{s0+r}, v{s0+4+r}")
    a(f"""
v_permlane32_swap_b32 v{d}, v{d+2}
v_permlane32_swap_b32 v{d+1}, v{d+3}
v_add_f32 v{d}, v{d}, v{d+2}
v_add_f32 v{d+1}, v{d+1}, v{d+3}
v_permlane16_swap_b32 v{d}, v{d+1}
v_add_f32 v{d}, v{d}, v{d+1}
v_add_f32_dpp v{d}, v{d}, v{d} row_ror:8 row_mask:0xf bank_mask:0xf
v_add_f32_dpp v{d}, v{d}, v{d} row_ror:4 row_mask:0xf bank_mask:0xf
""")
def gate(d, g):
    a(f"""
v_cvt_pk_bf16_f32 v{d}, v{d}, v{d}
v_lshlrev_b32 v{d}, 16, v{d}
v_mul_f32 v{d}, v{g}, v{d}
v_cvt_pk_bf16_f32 v{d}, v{d}, v{d}
v_lshlrev_b32 v{d}, 16, v{d}
""")
def far(regs):
    if OPT["xm"]:
        a("s_sub_u32 s76, s76, 1"); return
    a(f"s_sub_u32 s23, s23, 1\ns_cselect_b32 s25, {CPB-CPA}, 0")
    for r in regs: a(f"s_add_u32 s{r}, s{r}, s25")
    a("s_sub_u32 s76, s76, 1")
if OPT["bdel"]:
    backoff(OPT["bdel"]); bpoll()
a.label("L_bchk")
a("s_mov_b64 exec, -1")
far([66, 98] if OPT["bpa"] else [66])
a("s_waitcnt vmcnt(0)")
tag_chk([BB, BB+4], TT)
a(f"""
s_cbranch_vccz L_bdone
s_cmp_eq_u32 s76, 0
s_cbranch_scc1 L_bdone
s_mov_b64 exec, vcc
s_sleep {OPT['bsl']}
""")
bpoll()
a("s_branch L_bchk")
a.label("L_bdone")
def fine4(k):
    if OPT["fine"] == 4: a(f"s_memrealtime s[{[4,6,8,10,48,50,54,56][k]}:{[4,6,8,10,48,50,54,56][k]+1}]")
fine4(0)
red(FB, BB); gate(FB, GV+1)
fine4(1)
if OPT["fine"] == 4: a("s_mov_b32 s8, 0")
if OPT["asl0"]: a(f"s_sleep {OPT['asl0']}")
if LH and OPT["lha"]:
    E_ = KF + 4; PAd = KF + 5
    a(f"""
v_and_b32 v{TT}, 1, v0
v_lshrrev_b32 v{TT+1}, 5, v0
v_lshl_add_u32 v{TT+1}, v{TT}, 1, v{TT+1}
v_bfe_u32 v{TT+2}, v0, 1, 2
v_lshl_add_u32 v{TT+3}, v{TT+1}, 4, v{TT+2}
v_lshlrev_b32 v{TT+3}, 2, v{TT+3}
ds_bpermute_b32 v{FB}, v{TT+3}, v{FB}
ds_bpermute_b32 v{GV}, v{TT+3}, v{GV}
v_lshlrev_b32 v{X+23}, 10, v{TT+2}
v_lshl_add_u32 v{X+23}, v{TT+1}, 1, v{X+23}
v_lshlrev_b32 v{TT}, 4, v{TT}
v_lshrrev_b32 v{E_}, v{TT}, v{VNS}
v_and_b32 v{E_}, 0xffff, v{E_}
v_lshl_add_u32 v{E_}, v{E_}, 16, v{E_}
v_lshrrev_b32 v{PAd}, 3, v0
v_and_b32 v{TT}, 7, v0
v_lshlrev_b32 v{TT}, 3, v{TT}
v_lshl_add_u32 v{PAd}, v{PAd}, 9, v{TT}
L_apoll:
""")
    if OPT["lha"] == 1:
        for r in range(8): a(f"v_mov_b32 v{AA+r}, 0")
    for k in range(4): a(f"buffer_atomic_or_x2 v[{AA+2*k}:{AA+2*k+1}], v{PAd}, s[12:15], s66 offen offset:{128*k} sc0 sc1" if OPT["lha"] == 1 else f"buffer_load_dwordx2 v[{AA+2*k}:{AA+2*k+1}], v{PAd}, s[12:15], s66 offen offset:{128*k} sc1")
    a("s_mov_b64 exec, -1\ns_sub_u32 s76, s76, 1\ns_waitcnt vmcnt(0)")
    tag_chk([AA, AA+4], TT, E_)
    a(f"""
s_cbranch_vccz L_adone
v_or_b32_dpp v{TT}, v{TT}, v{TT} quad_perm:[1,0,3,2] row_mask:0xf bank_mask:0xf
v_or_b32_dpp v{TT}, v{TT}, v{TT} quad_perm:[2,3,0,1] row_mask:0xf bank_mask:0xf
v_or_b32_dpp v{TT}, v{TT}, v{TT} row_half_mirror row_mask:0xf bank_mask:0xf
v_cmp_ne_u32 vcc, 0, v{TT}
s_mov_b64 exec, vcc
{"s_sleep %d" % OPT["aslp"] if OPT["aslp"] else ""}
s_cmp_lg_u32 s76, 0
s_cbranch_scc1 L_apoll
s_mov_b64 exec, -1
L_adone:
v_add_f32 v{A3}, v{AA}, v{AA+2}
v_add_f32 v{A3+1}, v{AA+1}, v{AA+3}
v_add_f32 v{A3+2}, v{AA+4}, v{AA+6}
v_add_f32 v{A3+3}, v{AA+5}, v{AA+7}
v_add_f32 v{A3}, v{A3}, v{A3+2}
v_add_f32 v{A3+1}, v{A3+1}, v{A3+3}
v_permlane32_swap_b32 v{A3}, v{A3+1}
v_add_f32 v{A3}, v{A3}, v{A3+1}
v_mov_b32 v{A3+1}, v{A3}
v_permlane16_swap_b32 v{A3}, v{A3+1}
v_add_f32 v{A3}, v{A3}, v{A3+1}
v_add_f32_dpp v{A3}, v{A3}, v{A3} row_ror:8 row_mask:0xf bank_mask:0xf
s_waitcnt lgkmcnt(0)
""")
    gate(A3, GV)
    a_keep = a; a = Asm()
a.label("L_apoll")
for k in range(2):
    a(f"buffer_load_dwordx4 v[{AA+4*k}:{AA+4*k+3}], v{X+13}, s[12:15], s66 offen offset:{2048*k} sc1")
a("s_mov_b64 exec, -1")
far([66])
a("s_waitcnt vmcnt(0)")
if OPT["fine"] == 4: a("s_cmp_lg_u32 s8, 0\ns_cbranch_scc1 L_fx\ns_memrealtime s[8:9]\ns_waitcnt lgkmcnt(0)\nL_fx:")
tag_chk([AA, AA+4], TT)
a(f"""
s_cbranch_vccz L_adone
s_mov_b64 exec, vcc
{"s_sleep %d" % OPT["aslp"] if OPT["aslp"] else ""}
s_cmp_lg_u32 s76, 0
s_cbranch_scc1 L_apoll
s_mov_b64 exec, -1
""")
a.label("L_adone")
fine4(3)
red(A3, AA); gate(A3, GV)
if LH and OPT["lha"]: a = a_keep
a(f"""
v_add_f32 v{A3}, v{A3}, v{FB}
v_cvt_pk_bf16_f32 v{A3}, v{A3}, v{A3}
""")
a(f"""
s_mov_b32 exec_lo, {0xff if LH and OPT["lha"] else 0x000f000f}
s_mov_b32 exec_hi, {0xff if LH and OPT["lha"] else 0x000f000f}
buffer_store_short v{A3}, v{X+23}, s[60:63], s99 offen {['', 'sc1', 'nt', 'sc0 sc1'][OPT['opol']]}
s_mov_b64 exec, -1
""")
if OPT["stamps"]:
    stamp(6)
    wstamps()
    a(f"s_lshl_b32 s29, s16, 6\ns_add_u32 s29, s29, {STAMP}\ns_waitcnt lgkmcnt(0)")
    for k in range(7):
        a(f"v_mov_b32 v{T}, s{80+2*k}\nv_mov_b32 v{T+1}, s{81+2*k}\nbuffer_store_dwordx2 v[{T}:{T+1}], v{ZR}, s[12:15], s29 offen offset:{8*k}\ns_nop 1")
    a(f"v_mov_b32 v{T}, s76\nbuffer_store_dword v{T}, v{ZR}, s[12:15], s29 offen offset:56")
a("s_endpgm")
for t_ in ool: a(t_)
a.label("L_prep")
a(f"""
s_sub_u32 s76, s76, {256 if OPT["stamps"] else 1}
s_cmp_le_i32 s76, 0
s_cbranch_scc1 L_pdone
{"" if PH else "s_mov_b64 exec, vcc"}
""")
for k in range(1 if OP and not CR else 2 if PH else 4):
    if PH and OPT["spec"]: patom(k)
    else: a(f"buffer_load_dwordx4 v[{PA+4*k}:{PA+4*k+3}], v{X+7}, s[12:15], {'s33 offen' if PLY and k else f's74 offen offset:{(2048 if CR else 1024)*k}'} sc1")
a("s_branch L_pchk")
a.label("L_end")
a("s_endpgm")
a.L += ['.section .rodata,"a"', ".p2align 6", f".amdhsa_kernel {NAME}_kernel",
        "  .amdhsa_next_free_vgpr 168", "  .amdhsa_next_free_sgpr 102", "  .amdhsa_accum_offset 168",
        "  .amdhsa_group_segment_fixed_size 0", "  .amdhsa_kernarg_size 104", "  .amdhsa_user_sgpr_count 2",
        "  .amdhsa_user_sgpr_kernarg_segment_ptr 1", "  .amdhsa_system_sgpr_workgroup_id_x 1", ".end_amdhsa_kernel"]
if OPT["sf"]:
    L = a.L
    i0 = L.index("L_stream:")
    i1 = i0; c_ = 0
    while c_ < min(NPRE, OPT["sf"]*4):
        i1 += 1
        if "buffer_load_dwordx4" in L[i1]: c_ += 1
    head = L[i0+1:i1+1]
    del L[i0+1:i1+1]
    j = L.index("  s_cbranch_scc1 L_stream")
    L[j:j+1] = ["  s_cbranch_scc0 L_help"] + head + ["  s_branch L_stream", "L_help:"]
txt, n = a.text()
open(out, "w").write(txt)
print(f"wrote {out}: {len(txt.splitlines())} lines, {n} nops inserted", file=sys.stderr)
```

```python
import sys, struct
from asmlib import Asm
out = sys.argv[1]
OPT = dict(stamps=0, Wp=8, npre=4, hdr=1, stag=10, hslp=32, qslp=8, nse=29, lead=8, t1=448, t2=384, dslp=2,
           np2=1, np3=2, flit=3, slowp=8, bprio=3, maxf=4, tcha=0, tchb=0, asl=36, tpol=1, wqnt=1, ffnt=1, hd=200, qd=64, prew=0, coal=1, pgate=0, bpat=2, slowth=16, fastp=0, bsl=1, adel=90, perm=0, gx=0, noff=252, sperm=4, eager=1024, f1=0, f2=0, f1slp=2, f2slp=1, f2del=0, fmax=4096, f3=0, rsh=2, fdel=170, f3slp=4, lead2=8, t3=420, fw=1, aat=0, aslp=0, apol=1, na=160, xrot=0, asl0=0, bpa=1, fin=4, nob=0, tb=1, prw=0, fine=0, inc=1, f1th=0, f1sl2=16, hbn=0, fo=0, fst=64, fpol=2, fone=4, nopart=0, noa=0, bdel=0, fful=0, mlate=1, fgo=0, px4=1, xm=1, xforce=0, bpe=3, tcw=0, tc0=0, lay=0, tcd=0, col=1, kill=1, t4=400, kill2=0, t5=460, lead3=8, kill0=1, k0at=0, rot=0, r1=104, r2=256, swm=0, ms=-1, mc=0, mr=0, vo=0, numa=0, late=1, tb1=440, tslp=4, lb=2, skip=0, tp=0, tk=0, leadk=12, leadf=14, tf=480, kv=10, cap1=84, nst=5, jit=0, tk2=400, tr=0, tsh=0, il=0, wdel=12, spec=0, snt=0, opol=0, one=1, pd=290, pc=40, pe=5, pslp=2, pw=0, pws=0, fb=1, fbl=84, fbs=3, fbc=40, fb0=12, fbp=8, fbg=4, fbm=40, pp=0, pp0=2, pps=16, ppo=0, nm=0, wx=0, t2m=0, xb=0, w8=0, w8p=1, w8s=0, w8d=0, w8n=8, dl=0, dlb=0, dlw=1, ad=0, pt=0, st=0, pdv=0, pdw=61, fbn=0, bd0=0, bs0=0, bs1=0, ef=0, kl=0, rm=0, gu=0, xl=0, gsl=0, gd=0, gr=0, xf=1, gt=0, gp=150, fk=0, fq=0, ks=0, q1d=16, q1s=4, f1d=64, f1s=16, bt=0, kl2=0, fm=0, dw=0, dwp=1, dr=0, hp=0, l2p=0, tsec=2, tw=0, tx4=0, tnt=0, fz=0, ql=0, hl=0, kpl=0, fh=0, hr=0, fp=0, fps=6, fp0=0, rv=0, rvt=0, rvs=4, sf=0, pbp=1, wl=0, eb=0, ebw=0, ebd=0, psm=0, ph=0, ply=0, spo=0, dup=0, dupl=0, ps=0, bw=0, bwd=0, bws=8, bwo=0, bwt=0, bwp=3, bwn=32, rvl=0, rv0=72, bp1=0, bpz=0, we=0, wed=0, ep=0, epz=0, cl=0, cla=3, ec=0, ecb=18, ecn=3, op=0, r3=128, sp=0, spn=1, wes=8, cr=0, cre=2, crl=4, leade=10, awp=0, crb=0, ww=0, wpo=1, wpn=0, pr=0, prd=0, fs=0, fa=0, fpl=0, ppl=0, ptn=1, lh=0, lhp=1, lha=1, lhd=0, lf=0, lfn=8, lfd=0, wa=0, wg=0, wam=0, was=2, sm=0, smt=0, smg=1, fr=1, so=0, cw=0, cwp=0, nb=0, nbt=7, nbs=9, nbz=8, wc=0, sq=0, sqn=1, wez=0, sqk=1, ap=0, aps=2, aw=0, bd=0, qt=0, ht=0, ld=0, ldw=8, mp=0, lp=0, lps=0, ow=0)
for a_ in sys.argv[2:]:
    k, v = a_.split("="); assert k in OPT, k; OPT[k] = int(v)
if OPT["r1"] or OPT["r2"]: OPT["rot"] = -1
Wp = OPT["Wp"]; NPRE = OPT["npre"]
HR = OPT["hr"]
if HR: OPT["xl"] = 1; OPT["xf"] = 1; OPT["ql"] = 1; OPT["hl"] = 1; OPT["l2p"] = 0
TB = 0x1C000
KQ = OPT["ks"] & 1; KF_ = OPT["ks"] & 2
QP, FP = 0x80000, 0x300000
GU = OPT["gu"]; XL = OPT["xl"]
XB = OPT["xb"]; MEM = "s19" if XB else "s17"
NAME = "gated_mix__gqa_block_cached__geglu_ffn__decode"
def f32(x): return "0x%08x" % struct.unpack("<I", struct.pack("<f", x))[0]
LOG2E = 1.4426950408889634
SCALE = 128 ** -0.5
QG, HG, ML, BP, PART, AP, STAMP, CNT = 0x0, 0x20000, 0x40000, 0x80000, 0x100000, 0x200000, 0x400000, 0x480000
F1, F2 = 0x60000, 0x70000
FG, CPA, CPB = 0x40000, 0x200000, 0x300000
if OPT['lay']:
    CNT, CPA, PART = 0x80000, 0x100000, 0x200000
OST = 272
XID = 0x60000
CST = 528
CSTR = 4096 + 256
WS_BYTES = 0x500000
FST = OPT['fst']
LOG = OPT['fine'] == 8
LG9 = OPT['fine'] == 9
if LOG or LG9: WS_BYTES = 0x600000
if OPT['fful']:
    FG = 0x500000; WS_BYTES = FG + 2048*OPT['fful']
elif FST > 64:
    FG = 0x500000; WS_BYTES = FG + 2048*FST
R1 = 0x20000
WO_LDS = R1
R2 = 0x24000
Q_LDS = R2
MISC = R2 + 0x800
MLT = MISC + 0x100
WTL = MISC + 0x300
BW = OPT["bw"]
BP1 = OPT["bp1"]; FTL = MISC + 0x400
O_LDS = R2 + 0x1000
CH = R2 + 0x1400
WD_LDS = R2 + 0x2000
LDS_BYTES = 0x28000
NU = 1024
NSE = OPT["nse"]; LEAD = OPT["lead"]
TK = MISC + 128
K0 = OPT["kill0"]
NUMA = 0
RING = 12288
SB = 8*RING
NSLOT = 192
SENT = 0x7F817F81
ONET = OPT['one'] and not OPT['tk']
PW = OPT['pw']
PD = OPT['pd'] or PW
T1B = CH; T2B = CH + (4*(NSE + K0) if ONET else 1024)
VB = 0x8000
KN = OPT["kill"]; KV = OPT["kv"]
NST = OPT["nst"]; NSU = 3 + NST
SE = 4*NSU
assert KV <= SE + NSE and SE + NSE <= 63
K0TXT = f"""
v_subrev_u32 v5, {K0*0x10001}, v4
v_cmp_le_u32 vcc, {OPT['k0at']}, v0
v_mov_b32 v6, {514 if OPT['rv'] & 2 else 512}
v_cndmask_b32 v4, v4, v6, vcc
v_cmp_le_u32 vcc, {OPT['k0at'] + K0}, v0
v_cndmask_b32 v4, v4, v5, vcc
""" if K0 else ""
CBASE = 8
OP = OPT["op"]; NM = 4 if OP else 8; LIM = 64*NM
def HS(d): return f"s_bfe_u32 {d}, s18, 0x10002" if OP == 3 else f"s_and_b32 {d}, s17, 1" if OP == 1 else f"s_lshr_b32 {d}, s17, 2"
def US(d): return f"s_and_b32 {d}, s18, 3" if OP == 3 else f"s_lshr_b32 {d}, s17, 1" if OP == 1 else f"s_and_b32 {d}, s17, 3"
if OP: OPT["tf"] //= 2
CR = OPT["cr"]; FS_ = OPT["fs"]
assert OPT["fr"] == 1 or OPT["lf"] and not OPT["bp1"]
assert OP or not FS_
LH = OPT["lh"]
assert OP == 3 or not LH
def ROLE(t): return f"s_xor_b32 {t}, s18, s17\ns_bitcmp1_b32 {t}, 0"
DYN0 = NM*SE + NM*NSE
SPIN = 1 << 16
LPT = """s_mov_b64 exec, -1
buffer_store_dwordx4 v[70:73], v3, s[12:15], s67 offen sc1
s_mov_b64 exec, 1
s_mov_b32 s75, -1"""
LPX = "s_cmp_lt_u32 s25, s75\ns_cbranch_scc1 L_lp1\n" + LPT + "\nL_lp1:"
a = Asm()
hdr = open("cdna_kernels/%s.s.ref" % NAME).read().split("; Override launch")[0] if OPT["hdr"] else ""
a.L += [l for l in hdr.rstrip().split("\n")] if hdr else []
a.L.append(f"; @launch grid=(256,1,1) block=(640,1,1) lds={LDS_BYTES}")
a.L += ['.amdgcn_target "amdgcn-amd-amdhsa--gfx950"', ".text", f".globl {NAME}_kernel", ".p2align 8",
        f".type {NAME}_kernel,@function", f"{NAME}_kernel:"]

def srd(d, ptr, nbytes):
    a(f"s_mov_b32 s{d}, s{ptr}\ns_mov_b32 s{d+1}, s{ptr+1}\ns_mov_b32 s{d+2}, {hex(nbytes)}\ns_mov_b32 s{d+3}, 0x00020000")
P_X, P_K, P_V, P_WQ, P_WO, P_BX, P_WG, P_WU, P_WD, P_GW, P_OUT, P_DBG, P_WS = [32 + 2*i for i in range(13)]
def stamp(idx):
    if OPT["stamps"]:
        a(f"s_memrealtime s[{80+2*idx}:{81+2*idx}]")
def any_eq(regs, val, neg=False):
    op = "v_cmp_ne_u32" if neg else "v_cmp_eq_u32"
    a(f"{op} vcc, {val}, v{regs[0]}")
    for r in regs[1:]:
        a(f"{op} s[78:79], {val}, v{r}\ns_or_b64 vcc, vcc, s[78:79]")
def spin_tail(loop, done, sleep=0):
    a(f"""
s_sub_u32 s76, s76, 1
s_cmp_eq_u32 s76, 0
s_cbranch_scc1 {done}
""")
    if sleep:
        a(f"s_cmp_eq_u64 vcc, 0\ns_cbranch_scc1 {done}\ns_sleep {sleep}\ns_branch {loop}")
    else:
        a(f"s_cmp_lg_u64 vcc, 0\ns_cbranch_scc1 {loop}")
    a.label(done)
def xsum(regs, tmps, ror, op="v_add_f32", swaps=("v_permlane16_swap_b32", "v_permlane32_swap_b32")):
    for k in ror:
        for r in regs: a(f"{op}_dpp v{r}, v{r}, v{r} row_ror:{k} row_mask:0xf bank_mask:0xf")
    for sw in swaps:
        for r, t in zip(regs, tmps): a(f"v_mov_b32 v{t}, v{r}")
        for r, t in zip(regs, tmps): a(f"{sw} v{r}, v{t}")
        for r, t in zip(regs, tmps): a(f"{op} v{r}, v{r}, v{t}")
SEL = 42
def tag_consts(base):
    for j in range(4): a(f"s_mov_b32 s{base+j}, {hex(0x07060500 | j)}")
    a(f"s_mov_b32 s{base+4}, 0x0c0c0400\ns_mov_b32 s{base+5}, 0x04000c0c")
def tag_ins(r, vn, base):
    for j in range(4): a(f"v_perm_b32 v{r+j}, v{r+j}, v{vn}, s{base+j}")
def tag_bad(grans, vn, base, acc, t0, t1):
    for n_, r in enumerate(grans):
        a(f"v_perm_b32 v{t0}, v{r+1}, v{r}, s{base+4}\nv_perm_b32 v{t1}, v{r+3}, v{r+2}, s{base+5}")
        if n_ == 0:
            a(f"v_or_b32 v{acc}, v{t0}, v{t1}\nv_xor_b32 v{acc}, v{acc}, v{vn}")
        else:
            a(f"v_or_b32 v{t0}, v{t0}, v{t1}\nv_xor_b32 v{t0}, v{t0}, v{vn}\nv_or_b32 v{acc}, v{acc}, v{t0}")
def hstamps(first, n):
    if OPT["stamps"]:
        a(f"s_mov_b64 exec, -1\ns_lshl_b32 s29, s16, 7\ns_add_u32 s29, s29, {STAMP+0x8000+8*first}\ns_waitcnt lgkmcnt(0)\nv_mov_b32 v3, 0")
        for k in range(n):
            a(f"v_mov_b32 v4, s{80+2*k}\nv_mov_b32 v5, s{81+2*k}\nbuffer_store_dwordx2 v[4:5], v3, s[12:15], s29 offen offset:{8*k}\ns_nop 1")

def trn(d):
    tr = OPT["tr"]; ts = 3 + OPT["tsh"]
    if OPT["t2m"]: return f"""
s_bfe_u32 s100, {d}, 0x20001
s_bfe_u32 s101, {d}, 0x30003
s_andn2_b32 {d}, {d}, 62
{"s_xor_b32 s101, s101, s100" if OPT["t2m"] >= 2 else ""}
s_lshl_b32 s100, s100, 4
s_lshl_b32 s101, s101, 1
s_or_b32 {d}, {d}, s100
s_or_b32 {d}, {d}, s101
"""
    if OPT["nm"]: return f"""
s_lshr_b32 s100, {d}, 4
s_xor_b32 s100, s100, {d}
s_and_b32 s100, s100, 2
s_mul_i32 s100, s100, 17
s_xor_b32 {d}, {d}, s100
s_lshl_b32 s100, s19, 1
s_xor_b32 s100, s100, {2*(OPT["nm"]-1)}
s_and_b32 s100, s100, 2
s_xor_b32 {d}, {d}, s100
"""
    if not tr: return ""
    return f"""
s_and_b32 s100, {d}, {(1 << tr) - 1}
s_lshl_b32 s100, s100, {ts}
s_bfe_u32 s101, {d}, {hex((ts << 16) | tr)}
s_andn2_b32 {d}, {d}, {(1 << (tr+ts)) - 1}
s_or_b32 {d}, {d}, s100
s_or_b32 {d}, {d}, s101
"""
def backoff(n):
    while n > 0:
        a(f"s_sleep {min(n, 127)}"); n -= 127
def touch():
    a(f"""
s_mov_b64 exec, 0xffff
v_lshlrev_b32 v9, 7, v0
s_lshl_b32 s25, s17, 17
s_lshr_b32 s26, s18, 1
s_lshl_b32 s26, s26, 13
s_add_u32 s25, s25, s26
s_and_b32 s26, s18, 1
s_lshl_b32 s26, s26, 11
s_add_u32 s25, s25, s26
s_add_u32 s25, s25, {CPA}
buffer_load_dword v16, v9, s[12:15], s25 offen {['', 'sc1', 'nt'][OPT['tpol']]}
""")

XROT = "s_mov_b32 s16, s2" if not OPT["xrot"] else f"""
s_lshr_b32 s18, s2, 3
s_mul_i32 s17, s18, {OPT['xrot']}
s_add_u32 s17, s17, s2
s_and_b32 s17, s17, 7
s_andn2_b32 s16, s2, 7
s_or_b32 s16, s16, s17
"""
a("""
s_cmp_ge_u32 s2, 256
s_cbranch_scc1 L_end
s_load_dwordx16 s[32:47], s[0:1], 0
s_load_dwordx8 s[48:55], s[0:1], 64
s_load_dwordx2 s[56:57], s[0:1], 96
""")
stamp(0)
a(f"""
v_lshrrev_b32 v1, 6, v0
v_and_b32 v0, 63, v0
s_and_b32 s17, s2, 7
v_readfirstlane_b32 s3, v1
{XROT}
s_lshr_b32 s18, s16, 3
{"s_mov_b32 s19, s17" if OP == 3 else "s_and_b32 s19, s18, 7"}
s_lshr_b32 s20, s18, 3
s_xor_b32 s20, s20, {OPT['gx']}
s_cmp_lt_u32 s3, 8
s_cbranch_scc1 L_stream
v_and_b32 v10, 15, v0
v_lshrrev_b32 v11, 4, v0
v_lshlrev_b32 v2, 4, v11
v_lshl_add_u32 v2, v10, 10, v2
v_lshrrev_b32 v3, 1, v0
v_and_b32 v4, 1, v0
v_lshlrev_b32 v4, 4, v4
v_mov_b32 v13, 0
s_cmp_eq_u32 s3, 9
s_cbranch_scc1 L_hb
""")
AFR = 16; D0 = 48; WDV = 64; GX = 16; GW = 32; XF = 100; GG = 164; VN = 166; CP = 60
def frag_addr(sh=5):
    a(f"""
v_lshrrev_b32 v8, 2, v10
v_lshl_add_u32 v8, v11, 3, v8
v_lshlrev_b32 v9, {sh}, v8
v_and_b32 v8, 3, v0
v_lshl_add_u32 v9, v8, 3, v9
v_add_u32 v9, {R1}, v9
v_cmp_gt_u32 s[58:59], 8, v10
v_bfe_u32 v{CP+1}, v0, 2, 3
v_and_b32 v{CP+2}, 3, v0
v_lshl_add_u32 v{CP}, v{CP+2}, 4, v{CP+1}
v_lshlrev_b32 v{CP}, 2, v{CP}
""")
def gemv(va, Dr):
    def rd(bt):
        base = AFR + 16*(bt & 1)
        for k in range(4):
            t = 4*bt + k
            a(f"ds_read_b64_tr_b16 v[{base+4*k}:{base+4*k+1}], v{va} offset:{1024*t}")
            a(f"ds_read_b64_tr_b16 v[{base+4*k+2}:{base+4*k+3}], v{va} offset:{1024*t+128}")
    rd(0)
    for bt in range(4):
        if bt < 3:
            rd(bt+1); a("s_waitcnt lgkmcnt(8)")
        else:
            a("s_waitcnt lgkmcnt(0)")
        base = AFR + 16*(bt & 1)
        for k in range(4):
            t = 4*bt + k
            c = "0" if t == 0 else f"v[{Dr}:{Dr+3}]"
            a(f"v_mfma_f32_16x16x32_bf16 v[{Dr}:{Dr+3}], v[{base+4*k}:{base+4*k+3}], v[{XF+4*t}:{XF+4*t+3}], {c}")
def gemv128(va, DG, XB_):
    def rd(s_):
        for ct in range(4):
            q_ = AFR + 16*(s_ & 1) + 4*ct
            a(f"ds_read_b64_tr_b16 v[{q_}:{q_+1}], v{va} offset:{s_*4096+ct*32}\nds_read_b64_tr_b16 v[{q_+2}:{q_+3}], v{va} offset:{s_*4096+ct*32+512}")
    rd(0)
    for s_ in range(4):
        if s_ < 3:
            rd(s_+1); a("s_waitcnt lgkmcnt(8)")
        else:
            a("s_waitcnt lgkmcnt(0)")
        for ct in range(4):
            q_ = AFR + 16*(s_ & 1) + 4*ct; d = DG + 4*ct
            a(f"v_mfma_f32_16x16x32_bf16 v[{d}:{d+3}], v[{q_}:{q_+3}], v[{XB_+4*s_}:{XB_+4*s_+3}], {'0' if s_ == 0 else f'v[{d}:{d+3}]'}")
def pstore(DG, vn, va, so, pol):
    for h_ in range(2):
        d = DG + 8*h_
        for r in range(4): a(f"v_mov_b32_dpp v{d+r}, v{d+4+r} row_ror:8 row_mask:0xf bank_mask:0xc")
        tag_ins(d, vn, SEL)
        a(f"buffer_store_dwordx4 v[{d}:{d+3}], v{va}, s[12:15], {so} offen offset:{1024*h_} {pol}")
def ppoll(lbl, P, va, so, vn, t, delay, slp, so2=None, off2=1024):
    a(f"s_mov_b32 s76, {SPIN}")
    backoff(delay)
    a(f"""
{lbl}:
buffer_load_dwordx4 v[{P}:{P+3}], v{va}, s[12:15], {so} offen sc1
buffer_load_dwordx4 v[{P+4}:{P+7}], v{va}, s[12:15], {so2 or so} offen offset:{off2} sc1
s_waitcnt vmcnt(0)
""")
    tag_bad([P, P+4], vn, SEL, t, t+1, t+2)
    a(f"v_cmp_ne_u32 vcc, 0, v{t}")
    spin_tail(lbl, lbl + "d", sleep=slp)
    for r in range(8): a(f"v_and_b32 v{P+r}, 0xffffff00, v{P+r}")
a(f"""
s_setprio 3
s_memrealtime s[74:75]
""" + ("" if HR else f"""
s_mul_i32 s21, s17, {OPT['sperm']}
s_add_u32 s21, s21, s18
s_and_b32 s21, s21, 31
s_lshl_b32 s25, s17, 5
s_add_u32 s21, s21, s25
v_lshl_add_u32 v1, v3, 13, v4
s_lshl_b32 s25, s21, 5
v_add_u32 v1, s25, v1
""") + (f"""
v_lshrrev_b32 v1, 3, v0
v_and_b32 v5, 7, v0
v_lshlrev_b32 v5, 4, v5
v_lshl_add_u32 v1, v1, 13, v5
s_lshr_b32 s25, s21, 2
s_lshl_b32 s25, s25, 7
s_and_b32 s26, s21, 3
s_lshl_b32 s26, s26, 20
s_add_u32 s25, s25, s26
v_add_u32 v1, s25, v1
s_lshr_b32 s26, s26, 12
""" if OPT["fq"] or KQ else "") + f"""
s_mov_b64 s[72:73], 1
v_mov_b32 v15, {OPT['noff']}
v_lshlrev_b32 v3, 4, v0
s_waitcnt lgkmcnt(0)
""")
stamp(8)
srd(68, P_DBG, 256)
a(f"""
s_cmp_ge_u32 s16, 8
s_cbranch_scc1 L_nononce
s_or_b32 s74, s74, 1
v_mov_b32 v12, s74
s_mov_b64 exec, s[72:73]
buffer_atomic_cmpswap v[12:13], v15, s[68:71], 0 offen sc1
s_mov_b64 exec, -1
""")
a.label("L_nononce")
srd(60, P_WQ, 512*4096*2); srd(64, P_X, 8192)
backoff(OPT["ad"])
def x_dma():
    for b_ in range(8):
        a(f"v_xor_b32 v{16+b_}, {16*b_}, v3")
    for b_ in range(8):
        a(f"s_mov_b32 m0, {WD_LDS + 1024*b_}\ns_movk_i32 s25, {1024*b_}\nbuffer_load_dwordx4 v{16+b_}, s[64:67], s25 offen lds")
def x_frag(t0, t1):
    a(f"""
v_and_b32 v{t0}, 7, v10
v_xor_b32 v{t1}, v{t0}, v11
v_lshlrev_b32 v{t1}, 4, v{t1}
v_lshl_add_u32 v{t0}, v{t0}, 10, v{t1}
v_add_u32 v{t0}, {WD_LDS}, v{t0}
v_xor_b32 v{t1}, 64, v{t0}
""")
    for s_ in range(16):
        a(f"ds_read_b128 v[{XF+4*s_}:{XF+4*s_+3}], v{(t0, t1)[s_ & 1]} offset:{128*(s_ >> 1)}")
L2P = OPT["l2p"]
def touch_tile(va, sd, stride, dst):
    for h_ in range(2):
        a(f"s_mov_b32 s27, {64*h_*stride}")
        for sec in range(OPT["tsec"]):
            a(f"buffer_load_dword v{dst+2*h_+sec}, v{va}, s[{sd}:{sd+3}], s27 offen offset:{64*sec}{' nt' if OPT['tnt'] else ''}")
if L2P & 1:
    a(f"""
s_lshr_b32 s25, s21, 2
s_lshl_b32 s25, s25, 7
s_and_b32 s26, s21, 3
s_lshl_b32 s26, s26, 20
s_add_u32 s25, s25, s26
v_lshl_add_u32 v5, v0, 13, s25
""")
    touch_tile(5, 60, 8192, 56)
if XL and OPT["xf"] and not OPT["rm"] & 2: x_dma()
def wq_dma():
    a("s_mov_b32 s25, 0")
    for t in range(16):
        a(f"s_mov_b32 m0, {R1 + 1024*t}")
        if t: a(f"s_mov_b32 s25, {t*32*8192}")
        a(f"buffer_load_dwordx4 v55, s[60:63], s25 offen {'nt ' if OPT['wqnt'] else ''}lds")
if L2P & 1: a("v_mov_b32 v55, v1")
a("s_mov_b32 s25, 0")
RM = OPT["rm"]
if OPT["fh"] or HR:
    a(f"""
s_mov_b32 s21, -1
s_lshr_b32 s27, s18, 1
v_lshrrev_b32 v40, 2, v0
v_and_b32 v41, 3, v0
v_lshlrev_b32 v41, 4, v41
s_bitcmp1_b32 s18, 0
s_cbranch_scc1 L_fhg
s_lshl_b32 s29, s17, 4
s_add_u32 s29, s29, s27
s_lshl_b32 s21, s29, 10
s_add_u32 s21, s21, {QG}
s_lshl_b32 s29, s29, 6
v_lshl_add_u32 v40, v40, 13, v41
s_mov_b32 s28, {16*8192}
s_branch L_fhl
L_fhg:
s_cmp_ge_u32 s27, 14
s_cbranch_scc1 L_fhd
s_and_b32 s29, s17, 3
s_mul_i32 s29, s29, 14
s_add_u32 s29, s29, s27
s_lshl_b32 s21, s29, 10
s_lshr_b32 s28, s17, 2
s_lshl_b32 s28, s28, 16
s_add_u32 s21, s21, s28
s_add_u32 s21, s21, {HG}
s_lshl_b32 s29, s29, 6
v_mul_u32_u24 v40, 3584, v40
v_add_u32 v40, v40, v41
s_mov_b32 s28, {16*3584}
s_cmp_lt_u32 s17, 4
s_cselect_b32 s60, s{P_WG}, s{P_WU}
s_cselect_b32 s61, s{P_WG+1}, s{P_WU+1}
s_mov_b32 s62, {512*1792*2}
L_fhl:
""")
    for t in range(0 if RM & 1 else 32):
        a(f"s_mov_b32 m0, {TB + 1024*t if HR else R1 + 1024*(t & 15)}\n{'s_add_u32 s29, s29, s28' if t else 's_nop 0'}\nbuffer_load_dwordx4 v40, s[60:63], s29 offen nt lds")
    a.label("L_fhd")
for t in range(0 if RM & 1 or L2P & 1 or HR else 16):
    a(f"s_mov_b32 m0, {R1 + 1024*t}")
    if t and not OPT["skip"] & 8: a(f"s_mov_b32 s25, {t*(8 if OPT['fq'] or KQ else 32)*8192}")
    a(f"buffer_load_dwordx4 v1, s[60:63], s25 offen {'nt ' if OPT['wqnt'] else ''}lds")
if OPT["fine"] == 7: stamp(6)
if XL and not OPT["xf"]: x_dma()
for s_ in range(0 if RM & 2 or XL else 4 if KQ else 16):
    a(f"buffer_load_dwordx4 v[{XF+4*s_}:{XF+4*s_+3}], v2, s[64:67], {'s26' if KQ else 0} offen offset:{64*s_}")
srd(12, P_WS, WS_BYTES)
CNTA = f"""s_lshl_b32 s77, s17, 2
s_add_u32 s77, s77, s20
s_mul_i32 s77, s77, {CSTR}
s_add_u32 s77, s77, {CNT}
s_cmp_lg_u32 s19, 0""" if XB else f"""s_mul_i32 s77, s18, {CSTR}
s_add_u32 s77, s77, {CNT}
s_cmp_lg_u32 s17, 0""" if not NUMA else f"""s_lshr_b32 s75, s17, 2
s_lshl_b32 s77, s18, 1
s_add_u32 s77, s77, s75
s_mul_i32 s77, s77, {CSTR}
s_add_u32 s77, s77, {CNT}
s_xor_b32 s75, s75, s19
s_xor_b32 s75, s75, {NUMA-1}
s_and_b32 s75, s75, 1
s_and_b32 s25, s17, 3"""
STAT = f"""
{"ds_write_b128 v2, v[4:7] offset:144" if OPT["lf"] or OPT["wa"] else "ds_write_b64 v2, v[4:5] offset:144"}
v_lshl_add_u32 v35, v0, 16, v0
{US("s27") if OP else ""}
s_mul_i32 s25, {"s27" if OP else MEM}, {NSE}
s_add_u32 s26, s25, {NM*SE - SE + VB}
v_add_u32 v4, s26, v35
v_lshrrev_b32 v5, 2, v0
v_mul_u32_u24 v5, {4*NM - 4}, v5
s_lshl_b32 s26, {"s27" if OP else MEM}, 2
s_add_u32 s26, s26, {VB}
v_add3_u32 v5, v5, s26, v35
v_cmp_gt_u32 vcc, {64 if OPT["il"] else SE}, v0
v_cndmask_b32 v4, v4, v5, vcc
v_lshlrev_b32 v1, 2, v0
v_add_u32 v5, {4*KN}, v1
v_cmp_gt_u32 vcc, {KV}, v0
v_cndmask_b32 v5, v5, v1, vcc
v_add_u32 v5, {T2B}, v5
""" + (f"""
v_mov_b32 v66, v5
v_mov_b32 v67, v4
""" if PD else f"""
s_bfm_b64 exec, {SE + NSE}, 0
ds_write_b32 v5, v4
""") + (f"""
v_mov_b32 v4, {514 if OPT['rv'] & 1 else 512}
v_add_u32 v5, {T2B + 4*KV}, v1
s_mov_b64 exec, {(1 << KN) - 1}
ds_write_b32 v5, v4
""" if KN else "") + f"""
s_mov_b64 exec, -1
s_add_u32 s25, s25, {NM*SE + (SE << 16)}
v_add_u32 v4, s25, v35
""" + (f"""
v_subrev_u32 v6, {K0}, v0
v_cmp_gt_u32 vcc, {OPT['k0at'] + K0}, v0
v_cndmask_b32 v6, v6, v0, vcc
v_lshrrev_b32 v6, 2, v6
v_mul_u32_u24 v6, {4*NM - 4}, v6
s_add_u32 s26, s26, {NM*SE + (SE << 16) - VB}
v_add3_u32 v4, v6, s26, v35
""" if OPT["il"] else "")
QCH = f"""s_mul_i32 s27, s17, {OPT['sperm']}
s_lshl_b32 s28, s20, 3
s_add_u32 s27, s27, s28
s_and_b32 s27, s27, 31
s_lshl_b32 s28, s17, 5
s_add_u32 s27, s27, s28
s_lshl_b32 s27, s27, 6""" if XB else f"""s_lshl_b32 s27, s18, 6""" if not NUMA else f"""s_and_b32 s27, s17, 4
s_mul_i32 s28, s27, {OPT['sperm']}
s_add_u32 s28, s28, s18
s_and_b32 s28, s28, 31
s_lshl_b32 s27, s27, 5
s_add_u32 s27, s27, s28
s_lshl_b32 s27, s27, 6"""
if HR:
    CNTA = f"""s_lshl3_add_u32 s77, s20, s19
s_mul_i32 s77, s77, {CSTR}
s_add_u32 s77, s77, {CNT}
{HS("s25") + chr(10) + "s_lshl_b32 s25, s25, 11" + chr(10) + "s_add_u32 s77, s77, s25" if OP else ""}
s_lshl_b32 s25, s18, 2
s_add_u32 s25, s25, s17
s_mul_i32 s25, s25, {CSTR}
s_add_u32 s25, s25, {CNT}
s_and_b32 s26, s18, 25"""
a(f"""
{CNTA}
s_cbranch_scc1 L_nocnt
v_mov_b32 v14, {CBASE}
s_mov_b64 exec, s[72:73]
buffer_store_dword v14, v13, s[12:15], {"s25" if HR else "s77"} offen sc1
{"buffer_store_dword v14, v13, s[12:15], s25 offen offset:2048 sc1" if OP else ""}
""" + ("""
v_mov_b32 v4, 0
v_mov_b32 v5, 0
v_mov_b32 v6, 0
v_mov_b32 v7, 0
buffer_store_dwordx4 v[4:7], v13, s[12:15], s77 offen offset:128 sc1
buffer_store_dwordx4 v[4:7], v13, s[12:15], s77 offen offset:144 sc1
""" if PW else "") + """
s_mov_b64 exec, -1
""")
a.label("L_nocnt")
a(f"""
buffer_load_dword v12, v15, s[68:71], 0 offen sc1
v_mov_b32 v4, -1
v_mov_b32 v5, -1
v_mov_b32 v6, -1
v_mov_b32 v7, -1
v_add_u32 v1, {CH}, v3
ds_write_b128 v1, v[4:7]
ds_write_b128 v1, v[4:7] offset:1024
ds_write_b128 v1, v[4:7] offset:2048
v_mov_b32 v2, {MISC}
v_mov_b32 v4, 0
v_mov_b32 v5, 0
v_mov_b32 v6, 0
v_mov_b32 v7, 0
ds_write_b128 v2, v[4:7] offset:128
{STAT}
v_lshlrev_b32 v1, 2, v0
v_add_u32 v1, {CH}, v1
{K0TXT}
v_cmp_gt_u32 vcc, {min(PW, NSE + K0) if PW else K0 if PD else NSE + K0}, v0
v_mov_b32 v64, v1
v_mov_b32 v65, v4
s_mov_b64 exec, vcc
ds_write_b32 v1, v4
s_mov_b64 exec, -1
""")
if HR:
    a(f"""
v_lshrrev_b32 v8, 2, v10
v_lshl_add_u32 v8, v11, 3, v8
v_lshlrev_b32 v9, 6, v8
v_and_b32 v8, 3, v0
v_lshl_add_u32 v9, v8, 3, v9
v_add_u32 v9, {TB}, v9
v_lshrrev_b32 v{CP}, 3, v0
v_lshl_add_u32 v{CP}, v8, 4, v{CP}
v_and_b32 v8, 4, v0
v_lshl_add_u32 v{CP}, v8, 1, v{CP}
v_lshlrev_b32 v{CP}, 2, v{CP}
""")
else: frag_addr(7 if KQ else 5)
if KQ:
    tag_consts(SEL)
    a(f"""
v_and_b32 v52, 7, v10
v_lshl_add_u32 v52, v11, 3, v52
v_lshlrev_b32 v52, 4, v52
v_lshrrev_b32 v53, 3, v10
v_lshl_add_u32 v53, v53, 9, v52
s_andn2_b32 s28, s21, 3
s_lshl_b32 s28, s28, 11
s_and_b32 s29, s21, 3
s_lshl_b32 s29, s29, 9
s_add_u32 s28, s28, s29
s_add_u32 s28, s28, {QP}
s_lshl_b32 s29, s21, 11
s_add_u32 s29, s29, {QP}
""")
    if OPT["kpl"]:
        a(f"""
v_lshrrev_b32 v54, 3, v10
v_lshl_add_u32 v52, v54, 11, v52
s_add_u32 s30, s28, 4096
""")
a(f"s_mov_b32 s76, {SPIN}\ns_waitcnt lgkmcnt(0)")
stamp(7)
a("s_barrier")
stamp(1)
if L2P & 1:
    a(f"s_waitcnt vmcnt({9 if XL else 17})")
    backoff(OPT["tw"])
    wq_dma()
if HR:
    a("s_cmp_eq_u32 s21, -1\ns_cbranch_scc1 L_nogv\ns_waitcnt vmcnt(33)")
    x_frag(56, 57)
    def rd(bt):
        if bt % 2 == 0: a(f"s_waitcnt vmcnt({25 - 4*bt})")
        for k in range(2):
            for ct in range(2):
                q_ = AFR + 16*(bt & 1) + 8*k + 4*ct; o_ = (2*bt + k)*2048 + 32*ct
                a(f"ds_read_b64_tr_b16 v[{q_}:{q_+1}], v9 offset:{o_}\nds_read_b64_tr_b16 v[{q_+2}:{q_+3}], v9 offset:{o_+256}")
    rd(0)
    for bt in range(8):
        if bt < 7:
            rd(bt+1); a("s_waitcnt lgkmcnt(8)")
        else:
            a("s_waitcnt lgkmcnt(0)")
        for k in range(2):
            for ct in range(2):
                q_ = AFR + 16*(bt & 1) + 8*k + 4*ct; t = 2*bt + k; d = D0 + 4*ct
                a(f"v_mfma_f32_16x16x32_bf16 v[{d}:{d+3}], v[{q_}:{q_+3}], v[{XF+4*t}:{XF+4*t+3}], {'0' if t == 0 else f'v[{d}:{d+3}]'}")
    a(f"""
v_cvt_pk_bf16_f32 v4, v{D0}, v{D0+1}
v_cvt_pk_bf16_f32 v6, v{D0+2}, v{D0+3}
v_cvt_pk_bf16_f32 v56, v{D0+4}, v{D0+5}
v_cvt_pk_bf16_f32 v57, v{D0+6}, v{D0+7}
v_mov_b32_dpp v4, v56 row_ror:8 row_mask:0xf bank_mask:0xc
v_mov_b32_dpp v6, v57 row_ror:8 row_mask:0xf bank_mask:0xc
ds_bpermute_b32 v4, v{CP}, v4
ds_bpermute_b32 v6, v{CP}, v6
L_nogv:
""")
elif XL and OPT["xf"]:
    a("s_waitcnt vmcnt(17)"); x_frag(52, 53)
a("s_waitcnt vmcnt(0)")
if XL and not OPT["xf"]: x_frag(52, 53)
a.label("L_np")
a(f"""
v_readfirstlane_b32 s74, v12
s_sub_u32 s76, s76, 1
s_cmp_eq_u32 s76, 0
s_cbranch_scc1 L_np_done
s_cmp_lg_u32 s74, 0
s_cbranch_scc1 L_np_done
buffer_load_dword v12, v15, s[68:71], 0 offen sc1
s_waitcnt vmcnt(0)
s_branch L_np
""")
a.label("L_np_done")
PAC = 0x4D0000; PST = 4352
if OPT["fb"]:
    a(f"""
s_cmp_lg_u32 s16, 0
s_cbranch_scc1 L_nfi
v_mov_b32 v5, s74
v_mul_u32_u24 v7, {PST}, v0
s_mov_b32 s25, {PAC}
s_mov_b64 exec, 0xffff
buffer_store_dword v5, v7, s[12:15], s25 offen sc1
s_mov_b64 exec, -1
L_nfi:
""")
stamp(2)
if KQ: gemv128(9, 68, XF)
elif not HR: gemv(9, D0)
a(f"""
v_mov_b32 v5, s74
v_mov_b32 v7, s74
v_mov_b32 v8, 1
ds_write_b32 v2, v5 offset:96
ds_write_b32 v2, v8 offset:136
""")
if KQ and OPT["kpl"]:
    pstore(68, 5, 53, "s29", '' if OPT['kl2'] & 1 else 'sc1')
    ppoll("L_q1", 84, 52, "s28", 5, 54, OPT["q1d"], OPT["q1s"], "s30", 0)
    for r in range(4): a(f"v_add_f32 v{D0+r}, v{84+r}, v{88+r}")
    for r in range(4): a(f"v_add_f32_dpp v{D0+r}, v{D0+r}, v{D0+r} row_ror:8 row_mask:0xf bank_mask:0xf")
elif KQ:
    a("s_mov_b64 exec, s[58:59]")
    for ct in range(4):
        tag_ins(68 + 4*ct, 5, SEL)
        a(f"buffer_store_dwordx4 v[{68+4*ct}:{71+4*ct}], v52, s[12:15], s28 offen offset:{2048*(ct & 1)} {'' if OPT['kl2'] & 1 else 'sc1'}")
        if ct == 1: a("s_add_u32 s28, s28, 4096")
    a("s_mov_b64 exec, -1")
    ppoll("L_q1", 84, 53, "s29", 5, 54, OPT["q1d"], OPT["q1s"])
    for r in range(4): a(f"v_add_f32 v{D0+r}, v{84+r}, v{88+r}")
    for r in range(4): a(f"v_add_f32_dpp v{D0+r}, v{D0+r}, v{D0+r} row_ror:8 row_mask:0xf bank_mask:0xf")
QL = OPT["ql"]; HL = OPT["hl"]
def qpub_old():
    a(f"""
s_lshl_b32 s25, s21, {9 if QL else 6}
s_add_u32 s25, s25, {QG}
v_cvt_pk_bf16_f32 v4, v{D0}, v{D0+1}
v_cvt_pk_bf16_f32 v6, v{D0+2}, v{D0+3}
""")
    if OPT["coal"]:
        a(f"""
ds_bpermute_b32 v4, v{CP}, v4
ds_bpermute_b32 v6, v{CP}, v6
v_lshlrev_b32 v14, 4, v{CP+2}
v_lshl_add_u32 v14, v{CP+1}, {6 if QL else 14}, v14
s_mov_b32 exec_hi, 0
s_waitcnt lgkmcnt(0)
""")
    else:
        a(f"""
v_lshlrev_b32 v14, 4, v11
v_lshl_add_u32 v14, v10, 14, v14
s_mov_b64 exec, s[58:59]
""")
    a(f"""
buffer_store_dwordx4 v[4:7], v14, s[12:15], s25 offen sc1
s_mov_b64 exec, -1
""")
if HR:
    a(f"""
{"s_mov_b32 s75, -1" if OPT["lp"] else ""}
s_cmp_eq_u32 s21, -1
s_cbranch_scc1 L_nopub
s_waitcnt lgkmcnt(0)
""" + (f"""
s_bitcmp1_b32 s18, 0
s_cbranch_scc0 L_pub
v_mov_b32 v70, v4
v_mov_b32 v71, v5
v_mov_b32 v72, v6
v_mov_b32 v73, v7
s_mov_b32 s67, s21
s_bfe_u32 s75, s21, 0x6000a
s_lshr_b32 s75, s75, {OPT['lps']}
s_add_u32 s75, s75, {OPT['lp']}
s_branch L_nopub
L_pub:
""" if OPT["lp"] else "") + f"""
{"" if RM & 128 else "buffer_store_dwordx4 v[4:7], v3, s[12:15], s21 offen " + ['', 'sc1', 'sc1 nt', 'sc0 sc1', 'sc0 sc1 nt'][OPT['pbp']]}
L_nopub:
v_mov_b32 v16, {hex(SENT)}
v_mov_b32 v17, {hex(SENT)}
v_mov_b32 v18, {hex(SENT)}
v_mov_b32 v19, {hex(SENT)}
v_add_u32 v1, {TB}, v3
""")
    for k in range(8): a(f"ds_write_b128 v1, v[16:19] offset:{1024*k}")
else: qpub_old()
if OPT["dw"] or OPT["dr"]:
    a(f"s_lshl_b32 s28, s21, 12\ns_add_u32 s28, s28, {FP}")
    for k in range(OPT["dw"]):
        a(f"buffer_store_dwordx4 v[16:19], v3, s[12:15], s28 offen offset:{1024*k} {['', 'sc1', 'nt', 'sc0 sc1', 'sc1 nt'][OPT['dwp']]}")
    for k in range(OPT["dr"]):
        a(f"buffer_load_dwordx4 v[84:87], v3, s[12:15], s28 offen offset:{1024*k} sc1")
stamp(3)
a(f"""
{"s_lshl_b32 s25, s17, 14" if XB else "s_lshl_b32 s25, s20, 15"}
{"s_lshl_b32 s26, s20, 12" if XB else "s_lshl_b32 s26, s19, 11"}
s_add_u32 s25, s25, s26
s_add_u32 s25, s25, {QG}
s_add_u32 s26, s25, {2048 if XB else 16384}
{QCH}
""" + (f"""
s_lshl_b32 s25, s19, 14
s_lshl_b32 s26, s20, 8
s_add_u32 s25, s25, s26
{HS("s26")}
s_lshl_b32 s26, s26, 7
s_add_u32 s25, s25, s26
s_add_u32 s25, s25, {QG}
s_add_u32 s26, s25, 8192
v_and_b32 v14, 7, v0
v_lshlrev_b32 v14, 4, v14
v_lshrrev_b32 v1, 3, v0
v_lshl_add_u32 v14, v1, 10, v14
v_lshlrev_b32 v1, 3, v0
v_add_u32 v1, {Q_LDS}, v1
""" if OP else f"""
s_lshl_b32 s25, s19, 14
s_lshl_b32 s26, s20, 8
s_add_u32 s25, s25, s26
s_add_u32 s25, s25, {QG}
s_add_u32 s26, s25, 4096
s_add_u32 s28, s25, 8192
s_add_u32 s29, s25, 12288
v_lshlrev_b32 v14, 4, v10
v_lshl_add_u32 v14, v11, 10, v14
v_and_b32 v1, 7, v0
v_lshl_add_u32 v1, v11, 3, v1
v_lshlrev_b32 v1, 3, v1
v_bfe_u32 v9, v0, 3, 1
v_lshl_add_u32 v1, v9, 10, v1
v_add_u32 v1, {Q_LDS}, v1
""" if HR else f"""
s_lshl_b32 s27, s27, 3
s_lshl_b32 s25, s19, 14
s_lshl_b32 s26, s20, 7
s_add_u32 s25, s25, s26
s_add_u32 s25, s25, {QG}
s_add_u32 s26, s25, 4096
s_add_u32 s28, s25, 8192
s_add_u32 s29, s25, 12288
v_lshrrev_b32 v1, 3, v0
v_and_b32 v14, 7, v0
v_lshlrev_b32 v14, 4, v14
v_lshl_add_u32 v14, v1, 9, v14
v_lshl_add_u32 v1, v1, 2, v{CP+2}
v_lshlrev_b32 v1, 3, v1
v_bfe_u32 v4, v0, 2, 1
v_lshl_add_u32 v1, v4, 10, v1
v_add_u32 v1, {Q_LDS}, v1
""" if QL else "") + f"""
s_add_u32 s27, s27, {QG}
s_mov_b32 s76, {SPIN}
""")
backoff(OPT["qd"] + (OPT["fq"] if OPT["fq"] > 1 else 0))
if OPT['qt']: a(f"""
s_movk_i32 s62, 400
L_qt:
s_memrealtime s[60:61]
s_sub_u32 s62, s62, 1
s_cbranch_scc1 L_qtd
s_waitcnt lgkmcnt(0)
s_sub_u32 s60, s60, s74
s_cmp_ge_i32 s60, {OPT['qt']}
s_cbranch_scc1 L_qtd
s_sleep 4
s_branch L_qt
L_qtd:
s_waitcnt lgkmcnt(0)
""")
a.label("L_qpoll")
if RM & 32: a("s_sleep 100\ns_branch L_qdone")
if QL: a(f"""
buffer_load_dwordx4 v[16:19], v14, s[12:15], s25 offen sc1
buffer_load_dwordx4 v[20:23], v14, s[12:15], s26 offen sc1
{"" if OP else "buffer_load_dwordx4 v[24:27], v14, s[12:15], s28 offen sc1"}
{"" if OP else "buffer_load_dwordx4 v[28:31], v14, s[12:15], s29 offen sc1"}
{"" if HR else "buffer_load_dwordx4 v[32:35], v13, s[12:15], s27 offen sc1"}
s_waitcnt vmcnt(0)
""")
else: a(f"""
buffer_load_dwordx4 v[16:19], v3, s[12:15], s25 offen sc1
buffer_load_dwordx4 v[20:23], v3, s[12:15], s25 offen offset:1024 sc1
{"" if OPT["hp"] & 1 else "buffer_load_dwordx4 v[24:27], v3, s[12:15], s26 offen sc1"}
{"" if OPT["hp"] & 1 else "buffer_load_dwordx4 v[28:31], v3, s[12:15], s26 offen offset:1024 sc1"}
buffer_load_dwordx4 v[32:35], v13, s[12:15], s27 offen sc1
s_waitcnt vmcnt(0)
""")
any_eq([17, 19, 21, 23, 33, 35] if OPT["hp"] & 1 else list(range(17, 24 if OP else 32 if HR else 36, 2)), "s74", neg=True)
spin_tail("L_qpoll", "L_qdone", sleep=OPT["qslp"])
stamp(4)
a(f"""
v_mov_b32 v17, v18
v_mov_b32 v21, v22
v_mov_b32 v25, v26
v_mov_b32 v29, v30
{"" if QL else "v_lshlrev_b32 v1, 3, v0"}
{"" if QL else f"v_add_u32 v1, {Q_LDS}, v1"}
ds_write_b64 v1, v[16:17]
ds_write_b64 v1, v[20:21] offset:{512 if OP else 256 if QL else 512}
{"" if OP else f"ds_write_b64 v1, v[24:25] offset:{512 if QL else 1024}"}
{"" if OP else f"ds_write_b64 v1, v[28:29] offset:{768 if QL else 1536}"}
s_waitcnt lgkmcnt(0)
ds_write_b32 v2, v8 offset:132
""")
stamp(5)
a(f"""
s_mov_b32 s21, {NSE + K0}
s_mov_b32 s22, {NSE + K0}
s_mov_b32 s20, {SE + NSE}
s_mov_b32 s19, {SE + NSE}
s_mov_b32 s23, 0
s_mov_b32 s24, 0
s_mov_b32 s26, 0
s_mov_b32 s27, 0
s_mov_b32 s28, 0
s_mov_b32 s29, {0 if OPT['tk'] else 1}
v_mov_b32 v4, 0
v_lshl_add_u32 v5, v0, 16, v0
s_mov_b32 s76, {SPIN*64}
""")
FST1 = """s_cmp_lg_u32 s60, 0
s_cbranch_scc1 L_fs1
s_mov_b32 s60, 1
s_memrealtime s[82:83]
L_fs1:"""
RV = OPT["rv"]
RVT = f"""s_cmp_lt_u32 s28, {OPT['rvt']}
s_cbranch_scc1 L_nrv
ds_write_b32 v2, v2 offset:144
L_nrv:""" if RV and OPT["rvt"] else ""
def disp(p):
    tb = T1B if ONET else (T1B, T2B)[p]
    a(f"""
L_disp{p}:
s_mov_b64 exec, 1
ds_read_b32 v6, v2 offset:{128 if ONET else (128, 144)[p]}
s_sub_u32 s76, s76, 1
s_cmp_le_i32 s76, 0
s_cbranch_scc1 L_dexh{p}
s_cmp_eq_u32 s24, 0
s_cbranch_scc1 L_noc{p}
v_readlane_b32 s25, v4, s27
s_cmp_lt_u32 s25, {CBASE}
s_cbranch_scc1 L_noc{p}
s_and_b32 s30, s23, 15
s_lshr_b32 s23, s23, 4
s_sub_u32 s24, s24, 1
s_add_u32 s27, s27, 1
s_and_b32 s27, s27, 7
s_add_u32 s25, s25, {DYN0 - CBASE}
s_add_u32 s28, s25, s30
{RVT if p else ""}
s_sub_i32 s31, {LIM}, s25
s_max_i32 s31, s31, 0
s_min_i32 s31, s31, s30
s_cmp_ge_u32 s28, {(OPT['tk'], LIM)[p]}
s_cselect_b32 s29, 1, s29
s_cmp_eq_u32 s31, 0
s_cbranch_scc1 L_noc{p}
s_bfm_b64 exec, s31, 0
s_lshl_b32 s30, s20, 16
s_add_u32 s25, s25, s30
v_add_u32 v7, s25, v5
s_lshl_b32 s25, s22, 2
s_add_u32 s25, s25, {tb}
v_lshl_add_u32 v8, v0, 2, s25
ds_write_b32 v8, v7
s_add_u32 s22, s22, s31
s_lshl_b32 s25, {('s20', 's22')[p]}, 2
s_add_u32 s25, s25, {(T2B + 4*KN, tb)[p]}
v_or_b32 v9, {VB}, v7
v_lshl_add_u32 v14, v0, 2, s25
ds_write_b32 v14, v9
s_add_u32 s20, s20, s31
{('', 's_add_u32 s22, s22, s31')[p]}
L_noc{p}:
s_cmp_lg_u32 s29, 0
s_cbranch_scc1 L_exh{p}
s_cmp_ge_u32 s24, {OPT['maxf']}
s_cbranch_scc1 L_dslp{p}
s_waitcnt lgkmcnt(0)
v_readfirstlane_b32 s25, v6
s_lshl_b32 s30, s21, 1
s_add_u32 s25, s25, {"s66" if CR else (OPT['leadk'], OPT['leadf'])[p]}
s_cmp_ge_u32 s30, s25
s_cbranch_scc1 L_dslp{p}
""" + (f"""
s_sub_u32 s30, s25, s30
s_add_u32 s30, s30, {OPT['cla']}
s_lshr_b32 s30, s30, 2
s_min_u32 s30, s30, {OPT['cl']}
s_max_u32 s30, s30, 1
""" if OPT["cl"] and p else f"""
s_sub_u32 s30, s25, s30
s_add_u32 s30, s30, {OPT['crb']}
s_lshr_b32 s30, s30, 2
s_min_u32 s30, s30, s67
s_max_u32 s30, s30, 1
s_mov_b32 s67, 1
""" if CR and OPT["crb"] else """
s_mov_b32 s30, s67
s_mov_b32 s67, 1
""" if CR else f"""
s_cmp_ge_u32 s28, {(OPT['tk2'], OPT['tf'])[p]}
s_cselect_b32 s30, {(2, 1)[p]}, {(4, 2)[p]}
""") + f"""
s_add_u32 s25, s19, s30
s_cmp_gt_u32 s25, {(OPT['cap1'], NSLOT//2)[p]}
s_cselect_b32 s29, 1, 0
s_cbranch_scc1 L_exh{p}
s_mov_b32 s19, s25
{FST1 if p and OPT["stamps"] and OPT["fine"] != 7 else ""}
s_lshl_b64 exec, 1, s26
v_mov_b32 v4, s30
buffer_atomic_add v4, v13, s[12:15], s77 offen sc0 sc1
s_lshl_b32 s25, s24, 2
s_lshl_b32 s25, s30, s25
s_or_b32 s23, s23, s25
s_add_u32 s24, s24, 1
s_add_u32 s21, s21, s30
{('', 's_add_u32 s21, s21, s30')[p]}
s_add_u32 s26, s26, 1
s_and_b32 s26, s26, 7
s_branch L_disp{p}
L_exh{p}:
s_cmp_eq_u32 s24, 0
s_cbranch_scc1 L_dexh{p}
L_dslp{p}:
s_sleep {OPT['dslp']}
s_branch L_disp{p}
L_dexh{p}:
s_mov_b64 exec, 0xff
s_lshl_b32 s25, s22, 2
s_add_u32 s25, s25, {tb}
v_lshl_add_u32 v8, v0, 2, s25
v_mov_b32 v7, {(513, 512)[p]}
ds_write_b32 v8, v7
{f"ds_write_b32 v2, v{7 if OPT['rvl'] else 2} offset:144" if (RV or OPT['we'] == 1) and p else ""}
""")
if not ONET: disp(0)
TOT = NSE + K0 + SE + NSE
if PW:
    a(f"""
s_movk_i32 s30, 300
v_lshlrev_b32 v9, 2, v0
v_cmp_eq_u32 s[60:61], s17, v0
v_mov_b32 v14, 0x7fff
L_rel:
s_mov_b64 exec, 0xff
ds_read_b32 v6, v2 offset:128
s_sub_u32 s30, s30, 1
s_waitcnt lgkmcnt(0)
v_lshrrev_b32 v6, 1, v6
v_cndmask_b32 v8, 0, v6, s[60:61]
buffer_atomic_umax v8, v9, s[12:15], s77 offen offset:128 sc0 sc1
v_readfirstlane_b32 s62, v6
s_waitcnt vmcnt(0)
v_cndmask_b32 v8, v8, v14, s[60:61]
v_min_u32_dpp v8, v8, v8 quad_perm:[1,0,3,2] row_mask:0xf bank_mask:0xf
v_min_u32_dpp v8, v8, v8 quad_perm:[2,3,0,1] row_mask:0xf bank_mask:0xf
v_min_u32_dpp v8, v8, v8 row_half_mirror row_mask:0xf bank_mask:0xf
v_readfirstlane_b32 s25, v8
s_add_u32 s25, s25, {PW}
s_cmp_ge_u32 s25, {TOT - OPT['pe']}
s_cselect_b32 s25, 255, s25
s_cmp_eq_u32 s30, 0
s_cselect_b32 s25, 255, s25
s_cselect_b32 s62, 255, s62
s_min_i32 s31, s25, {NSE + K0}
s_bfm_b64 exec, s31, 0
ds_write_b32 v64, v65
s_sub_i32 s31, s25, {NSE + K0}
s_cmp_le_i32 s31, 0
s_cbranch_scc1 L_rel2
s_min_i32 s31, s31, {SE + NSE}
s_bfm_b64 exec, s31, 0
ds_write_b32 v66, v67
s_cmp_lg_u32 s25, 255
s_cbranch_scc1 L_rel2
s_cmp_ge_u32 s62, {TOT - OPT['pe'] - PW}
s_cbranch_scc1 L_reld
L_rel2:
{f"s_sleep {OPT['pws']}" if OPT['pws'] else ""}
s_branch L_rel
L_reld:
""")
elif PD:
    RVL = f"""
s_cmp_lt_u32 s25, {OPT['rv0']}
s_cbranch_scc1 L_rv1
v_readfirstlane_b32 s31, v6
s_lshl_b32 s66, s25, 1
s_sub_i32 s31, s66, s31
s_cmp_lt_i32 s31, {2*(SE - K0 - KN) + OPT['rvl']}
s_cbranch_scc1 L_rv1
ds_write_b32 v2, v2 offset:144
L_rv1:
""" if OPT["rvl"] else ""
    FB = f"""
s_cmp_eq_u32 s65, 0
s_cbranch_scc1 L_fb1
v_readfirstlane_b32 s31, v10
s_sub_u32 s31, s31, s74
s_cmp_eq_u32 s31, -1
s_cbranch_scc1 L_fb1
s_mov_b32 s65, 0
s_cmp_gt_u32 s31, 0xfff
s_cbranch_scc1 L_fb1
s_sub_i32 s31, s31, {OPT['fbl']}
s_ashr_i32 s31, s31, {OPT['fbs']}
s_min_i32 s31, s31, {OPT['fbc']}
s_add_i32 s62, s62, s31
{"s_min_i32 s31, s31, 0" + chr(10) + f"s_mul_i32 s31, s31, {OPT['fbn']}" + chr(10) + "s_add_i32 s62, s62, s31" if OPT['fbn'] else ""}
L_fb1:
{LPX if OPT["lp"] else ""}
s_cmp_lt_u32 s25, s63
s_cbranch_scc1 L_fb2
s_add_u32 s63, s63, {OPT['fbp']}
v_readfirstlane_b32 s31, v6
s_lshl_b32 s66, s25, 1
s_sub_i32 s31, s66, s31
s_sub_i32 s31, s31, {2*(SE - K0)}
s_max_i32 s31, s31, 0
s_min_i32 s31, s31, {OPT['fbm']}
s_sub_u32 s66, s74, 1
v_mov_b32 v10, s66
v_mov_b32 v8, s31
buffer_load_dword v10, v13, s[12:15], s64 offen {['', '', 'sc1'][OPT['fb']]}
s_cmp_lg_u32 s64, {PAC}
s_cselect_b32 s65, 1, 0
s_add_u32 s64, s64, {PST}
s_cmp_ge_u32 s18, {OPT['fbg']}
s_cbranch_scc1 L_fb2
buffer_atomic_add v8, v13, s[12:15], s64 offen sc1
L_fb2:
""" if OPT["fb"] else ""
    ECT = f"""
s_cmp_lt_u32 s25, s67
s_cbranch_scc1 L_ec1
s_mov_b32 s67, -1
v_readfirstlane_b32 s31, v6
s_lshl_b32 s66, s25, 1
s_sub_i32 s31, s31, s66
s_add_i32 s31, s31, {2*(SE - K0 - KN) + OPT['ecb']}
s_ashr_i32 s31, s31, 2
s_min_i32 s31, s31, {OPT['ecn']}
s_cmp_le_i32 s31, 0
s_cbranch_scc1 L_ec1
v_mov_b32 v4, s31
buffer_atomic_add v4, v13, s[12:15], s77 offen sc0 sc1
s_mov_b32 s23, s31
s_mov_b32 s24, 1
s_add_u32 s19, s19, s31
s_mov_b32 s26, 1
L_ec1:
""" if OPT["ec"] else ""
    if OPT["ec"]: a(f"s_movk_i32 s67, {2*(SE+NSE) - OPT['ec']}")
    a(f"""
s_movk_i32 s30, 1000
s_movk_i32 s62, {OPT['pc']}
s_movk_i32 s63, {SE + OPT['fb0']}
s_mov_b32 s64, {PAC}
s_mov_b32 s65, 0
L_rel:
s_mov_b64 exec, 1
ds_read_b32 v6, v2 offset:128
s_memrealtime s[60:61]
s_sub_u32 s30, s30, 1
s_waitcnt lgkmcnt(0)
s_sub_u32 s25, s60, s74
s_sub_i32 s25, s25, s62
s_max_i32 s25, s25, 0
s_min_i32 s25, s25, 0x8000
{f"s_mul_i32 s31, s25, {int(655360/OPT['pdv'])}" + chr(10) + f"s_sub_i32 s31, s31, {int(OPT['pdw']*65536*(PD/OPT['pdv'] - 1))}" if OPT['pdv'] else ""}
s_mul_i32 s25, s25, {int(655360/PD)}
{"s_max_i32 s25, s25, s31" if OPT['pdv'] else ""}
s_lshr_b32 s25, s25, 16
{RVL}
{FB}
{ECT}
s_cmp_eq_u32 s30, 0
s_cselect_b32 s25, 255, s25
s_cmp_ge_u32 s25, {2*(SE+NSE) - OPT['pe']}
s_cselect_b32 s25, 255, s25
s_sub_i32 s31, s25, {SE - K0}
s_min_i32 s31, s31, {NSE + K0}
s_max_i32 s31, s31, 1
s_bfm_b64 exec, s31, 0
ds_write_b32 v64, v65
s_sub_i32 s31, s25, {SE + NSE}
s_cmp_le_i32 s31, 0
s_cbranch_scc1 L_rel2
s_min_i32 s31, s31, {SE + NSE}
s_bfm_b64 exec, s31, 0
ds_write_b32 v66, v67
s_cmp_eq_u32 s25, 255
s_cbranch_scc1 L_reld
L_rel2:
s_sleep {OPT['pslp']}
s_branch L_rel
L_reld:
""")
if OPT["wg"] and OPT["we"]: a(f"s_add_u32 s25, s74, s62\ns_add_u32 s25, s25, {OPT['wg']}\ns_or_b32 s25, s25, 1\ns_mov_b64 exec, 1\nv_mov_b32 v8, s25\nds_write_b32 v2, v8 offset:156")
if OPT["lp"]: a("s_cmp_eq_u32 s75, -1\ns_cbranch_scc1 L_lp2\n" + LPT + "\nL_lp2:")
if OPT["dl"]: a("s_mov_b32 s67, s60")
if OPT["stamps"] and OPT["fine"] != 7: stamp(7); a(f"s_mov_b32 s96, {'s62' if PD else 's20'}\ns_mov_b32 s60, 0")
a(f"""
s_add_u32 s21, s20, {KN + (NSE + K0 if ONET else 0)}
s_mov_b32 s22, s21
{"s_add_u32 s21, s21, s23" + chr(10) + "s_add_u32 s21, s21, s23" if OPT["ec"] else ""}
s_cmp_ge_u32 s28, 512
s_cselect_b32 s29, 1, 0
""")
if CR: a(ROLE("s66") + f"\ns_cselect_b32 s66, {OPT['leadf']}, {OPT['leade']}\ns_cselect_b32 s67, {OPT['crl']}, {OPT['cre']}")
disp(1)
if OPT["stamps"] and OPT["fine"] != 7: a("s_mov_b32 s97, s20"); stamp(6)
if OPT["tcha"]: touch()
if OPT["dl"]:
    a(f"""
s_mov_b64 exec, -1
s_min_u32 s22, s18, 27
s_lshr_b32 s22, s22, 1
s_mul_i32 s25, s17, 14
s_add_u32 s22, s22, s25
s_and_b32 s23, s18, 1
s_movk_i32 s25, 3584
v_lshrrev_b32 v3, 1, v0
v_and_b32 v4, 1, v0
v_lshlrev_b32 v4, 4, v4
v_mul_lo_u32 v5, v3, s25
v_add_u32 v5, v5, v4
s_lshl_b32 s25, s22, 5
v_add_u32 v5, s25, v5
v_lshrrev_b32 v6, 3, v0
v_and_b32 v7, 7, v0
v_lshlrev_b32 v7, 4, v7
v_lshl_add_u32 v6, v6, 10, v7
s_cmp_eq_u32 s23, 0
s_cselect_b32 s68, s{P_WG}, s{P_WU}
s_cselect_b32 s69, s{P_WG+1}, s{P_WU+1}
s_mov_b32 s70, {512*1792*2}
s_mov_b32 s71, 0x00020000
s_lshl_b32 s27, s17, 7
s_mul_i32 s26, s18, {56*1024}
s_add_u32 s26, s26, s27
s_movk_i32 s30, 2000
""")
    srd(4, P_WD, 1792*512*2)
    a(f"""
L_dl:
s_memrealtime s[60:61]
s_sub_u32 s30, s30, 1
s_cbranch_scc1 L_dld
s_waitcnt lgkmcnt(0)
s_sub_u32 s60, s60, s67
s_cmp_ge_i32 s60, {OPT['dl']}
s_cbranch_scc1 L_dld
s_sleep 2
s_branch L_dl
L_dld:
s_mov_b32 s25, 0
""")
    for t in range(16):
        a(f"s_mov_b32 m0, {R1 + 1024*t}")
        if t: a(f"s_mov_b32 s25, {t*32*3584}")
        a(f"buffer_load_dwordx4 v5, s[68:71], s25 offen nt lds")
    for t in range(7):
        a(f"buffer_load_dwordx4 v[{WDV+4*t}:{WDV+4*t+3}], v6, s[4:7], s26 offen nt")
        if t < 6: a("s_add_u32 s26, s26, 8192")
    a("s_waitcnt vmcnt(0)")
if OPT["wa"]:
    assert OPT["awp"] and not OPT["we"] and not OPT["bwo"]
    def wo_a():
        for t in range(16):
            a(f"s_mov_b32 m0, {WO_LDS + 1024*t}\ns_nop 0\nbuffer_load_dwordx4 v6, s[60:63], s73 offen nt lds")
            if t < 15: a("s_add_u32 s73, s73, 8192")
    a(f"""
s_mov_b64 exec, -1
s_waitcnt lgkmcnt(0)
s_add_u32 s67, s74, s62
s_add_u32 s67, s67, {OPT['wg']}
v_lshrrev_b32 v6, 3, v0
v_and_b32 v7, 7, v0
v_lshlrev_b32 v7, 4, v7
v_lshl_add_u32 v6, v6, 10, v7
v_lshl_add_u32 v20, v0, 3, v2
s_lshl_b32 s73, s18, 17
s_lshl_b32 s27, s17, 7
s_add_u32 s73, s73, s27
s_mov_b32 s76, {SPIN*64}
""")
    srd(60, P_WO, 4096*512*2)
    if OPT["nb"]:
        a(f"""
L_wa:
ds_read_b64 v[24:25], v20 offset:{MLT - MISC}
s_sub_u32 s76, s76, 1
s_cbranch_scc1 L_wa1
s_waitcnt lgkmcnt(0)
v_cmp_eq_u32 vcc, -1, v25
s_bcnt1_i32_b64 s27, vcc
s_cmp_lt_u32 s27, {OPT['wa']}
s_cbranch_scc1 L_wa1
s_sleep {OPT['was']}
s_branch L_wa
L_wa1:
{f"s_sleep {OPT['wam']}" if OPT['wam'] else ""}
""")
        CWT = f"""
s_lshl_b32 s27, s17, 17
s_lshl_b32 s29, s18, 12
s_add_u32 s27, s27, s29
s_add_u32 s27, s27, {CPA}
v_lshlrev_b32 v40, 7, v0
s_mov_b32 exec_hi, 0
buffer_load_dword v41, v40, s[12:15], s27 offen {['', 'sc1', 'nt'][OPT['cwp']]}
s_mov_b32 exec_hi, -1
"""
        if OPT["cw"] == 1: a(CWT)
        wo_a()
        if OPT["cw"] == 2: a(CWT)
        a(f"s_waitcnt vmcnt({1 if OPT['cw'] == 2 else 0}) lgkmcnt(0)\nds_write_b32 v2, v2 offset:144\ns_waitcnt vmcnt(0)")
        stamp(6)
        a_sv = a; a = Asm()
    a(f"""
L_wa:
ds_read_b64 v[24:25], v20 offset:{MLT - MISC}
ds_read_b32 v26, v2 offset:152
{"s_memrealtime s[64:65]" if OPT['wg'] else ""}
s_sub_u32 s76, s76, 1
s_cbranch_scc1 L_wab
s_waitcnt lgkmcnt(0)
v_readfirstlane_b32 s27, v26
v_cmp_eq_u32 vcc, -1, v25
s_cmp_ge_u32 s27, 8
s_cbranch_scc1 L_wab
s_bcnt1_i32_b64 s27, vcc
s_cmp_lt_u32 s27, {OPT['wa']}
s_cbranch_scc1 L_wa1
s_sleep {OPT['was']}
s_branch L_wa
L_wa1:
""" + (f"""
s_sub_u32 s64, s64, s67
s_cmp_lt_i32 s64, 0
s_cbranch_scc1 L_wa
""" if OPT['wg'] else ""))
    wo_a()
    a(f"""
s_barrier
s_branch L_waw
L_wab:
s_waitcnt lgkmcnt(0)
s_barrier
{f"s_sleep {OPT['wam']}" if OPT['wam'] else ""}
""" + (f"""
s_movk_i32 s76, 64
L_wa2:
s_memrealtime s[64:65]
s_sub_u32 s76, s76, 1
s_cbranch_scc1 L_wa3
s_waitcnt lgkmcnt(0)
s_sub_u32 s64, s64, s67
s_cmp_ge_i32 s64, 0
s_cbranch_scc1 L_wa3
s_sleep 1
s_branch L_wa2
L_wa3:
""" if OPT['wg'] else ""))
    wo_a()
    a("L_waw:\ns_waitcnt vmcnt(0) lgkmcnt(0)\nds_write_b32 v2, v2 offset:144")
    stamp(6)
    if OPT["nb"]: a = a_sv
hstamps(0, 9)
a("s_waitcnt lgkmcnt(0)\ns_endpgm")

a.label("L_hb")
if OPT["bprio"]: a(f"s_setprio {OPT['bprio']}")
if OPT["st"]:
    a("s_waitcnt lgkmcnt(0)")
    tl = []
    if OPT["st"] & 1: tl += [(P_WQ, 0x200000), (P_X, 0), (P_DBG, 0), (P_WS, 0xf0000), (P_WS, 0x4f8000), (P_WQ, 0)]
    if OPT["st"] & 2: tl += [(P_WD, 0), (P_GW, 0), (P_WG, 0), (P_WU, 0)]
    if OPT["st"] & 4: tl += [(P_WO, 0), (P_WO, 0x200000), (P_OUT, 0), (P_WS, 0x3f0000)]
    for n_, (p_, o_) in enumerate(tl):
        if o_: a(f"s_mov_b32 s25, {hex(o_)}\ns_load_dword s{80+n_}, s[{p_}:{p_+1}], s25")
        else: a(f"s_load_dword s{80+n_}, s[{p_}:{p_+1}], 0")
if KF_:
    a(f"""
s_mul_i32 s21, s17, {32 if OPT["fm"] else 28}
s_add_u32 s21, s21, s18
s_lshr_b32 s22, s21, 3
s_and_b32 s23, s21, 1
s_bfe_u32 s24, s21, 0x20001
s_mul_i32 s25, s24, {128*3584}
s_lshl_b32 s27, s22, 7
s_add_u32 s25, s25, s27
v_lshrrev_b32 v6, 3, v0
v_and_b32 v7, 7, v0
v_lshlrev_b32 v7, 4, v7
v_mul_u32_u24 v5, 3584, v6
v_add3_u32 v5, v5, s25, v7
s_waitcnt lgkmcnt(0)
s_cmp_eq_u32 s23, 0
s_cselect_b32 s68, s{P_WG}, s{P_WU}
s_cselect_b32 s69, s{P_WG+1}, s{P_WU+1}
s_mov_b32 s70, {512*1792*2}
s_mov_b32 s71, 0x00020000
""")
    def tile_ld():
        a(f"s_cmp_ge_u32 {'s17, 7' if OPT['fm'] else 's18, 28'}\ns_cbranch_scc1 L_notile")
        for t in range(16):
            a(f"s_mov_b32 s27, {t*8*3584}\nbuffer_load_dwordx4 v[{XF+4*t}:{XF+4*t+3}], v5, s[68:71], s27 offen nt")
        a.label("L_notile")
    if OPT["bt"] == 0: tile_ld()
    a(f"""
v_lshl_add_u32 v6, v6, 10, v7
v_lshlrev_b32 v3, 4, v0
""")
elif HR:
    a(f"""
v_lshrrev_b32 v6, 3, v0
v_and_b32 v7, 7, v0
v_lshlrev_b32 v7, 4, v7
v_lshl_add_u32 v6, v6, 10, v7
v_lshlrev_b32 v3, 4, v0
""")
elif GU:
    a(f"""
s_sub_u32 s23, s17, s18
s_and_b32 s24, s23, 3
s_bfe_u32 s23, s23, 0x10002
s_cmp_ge_u32 s18, 28
s_cselect_b32 s24, 1, s24
s_lshl_b32 s22, s18, 2
v_lshrrev_b32 v6, 3, v0
v_and_b32 v7, 7, v0
v_lshlrev_b32 v7, 4, v7
v_mul_u32_u24 v5, 3584, v6
s_lshl_b32 s25, s18, 7
v_add3_u32 v5, v5, s25, v7
v_lshl_add_u32 v6, v6, 10, v7
v_lshlrev_b32 v3, 4, v0
""")
else:
    a(f"""
s_min_u32 s22, s18, 27
s_and_b32 s25, s17, 3
s_mul_i32 s25, s25, 28
s_add_u32 s22, s22, s25
s_lshr_b32 s23, s17, 2
""" if L2P & 6 else f"""
s_min_u32 s22, s18, 27
s_lshr_b32 s22, s22, 1
s_mul_i32 s25, s17, 14
s_add_u32 s22, s22, s25
s_and_b32 s23, s18, 1
""")
    if L2P & 2:
        a(f"""
s_lshr_b32 s25, s22, 2
s_lshl_b32 s25, s25, 7
s_and_b32 s26, s22, 3
s_mul_i32 s26, s26, {128*3584}
s_add_u32 s25, s25, s26
v_mul_u32_u24 v5, 3584, v0
v_add_u32 v5, s25, v5
s_waitcnt lgkmcnt(0)
s_cmp_eq_u32 s23, 0
s_cselect_b32 s68, s{P_WG}, s{P_WU}
s_cselect_b32 s69, s{P_WG+1}, s{P_WU+1}
s_mov_b32 s70, {512*1792*2}
s_mov_b32 s71, 0x00020000
s_cmp_ge_u32 s18, 28
s_cbranch_scc1 L_notouch
""")
        touch_tile(5, 68, 3584, 96)
        a.label("L_notouch")
    a(f"""
s_movk_i32 s25, 3584
v_mul_lo_u32 v5, v3, s25
v_add_u32 v5, v5, v4
s_lshl_b32 s25, s22, 5
v_add_u32 v5, s25, v5
v_lshrrev_b32 v6, 3, v0
v_and_b32 v7, 7, v0
v_lshlrev_b32 v7, 4, v7
v_lshl_add_u32 v6, v6, 10, v7
v_lshlrev_b32 v3, 4, v0
""")
if OPT["fk"]:
    a(f"""
s_lshr_b32 s23, s17, 2
s_and_b32 s25, s17, 3
s_mul_i32 s25, s25, {128*3584}
s_min_u32 s24, s18, 27
s_lshl_b32 s24, s24, 7
s_add_u32 s25, s25, s24
v_lshrrev_b32 v5, 3, v0
v_mul_u32_u24 v5, 3584, v5
v_add3_u32 v5, v5, s25, v7
""" if OPT["fk"] & 4 == 0 else f"""
s_and_b32 s23, s18, 1
s_bfe_u32 s25, s18, 0x20001
s_mul_i32 s25, s25, {128*3584}
s_lshr_b32 s24, s18, 3
s_lshl_b32 s27, s17, 2
s_add_u32 s24, s24, s27
s_min_u32 s24, s24, 27
s_lshl_b32 s24, s24, 7
s_add_u32 s25, s25, s24
v_lshrrev_b32 v5, 3, v0
v_mul_u32_u24 v5, 3584, v5
v_add3_u32 v5, v5, s25, v7
""")
frag_addr(7 if KF_ else 5)
a(f"""
v_mov_b32 v92, 0
v_mov_b32 v93, 0
v_mov_b32 v94, 0
v_mov_b32 v95, 0
v_add_u32 v1, {WD_LDS}, v3
{"" if XL else "ds_write_b128 v1, v[92:95] offset:7168"}
v_mov_b32 v15, {MISC}
""" + (f"""
v_mov_b32 v16, -1
v_mov_b32 v17, -1
v_lshlrev_b32 v18, 3, v0
ds_write_b64 v18, v[16:17] offset:{MLT & 0xffff}
""" if False else f"""
v_mov_b32 v16, -1
v_mov_b32 v17, -1
v_lshl_add_u32 v98, v0, 3, v15
ds_write_b64 v98, v[16:17] offset:{MLT - MISC}
""" if BW else "") + f"""
s_waitcnt lgkmcnt(0)
""")
srd(64, P_X, 8192); srd(12, P_WS, WS_BYTES); srd(4, P_WD, 1792*512*2); srd(8, P_GW, 1024); srd(60, P_WO, 4096*512*2)
if not KF_ and not HR: a(f"""
s_cmp_eq_u32 s23, 0
s_cselect_b32 s68, s{P_WG}, s{P_WU}
s_cselect_b32 s69, s{P_WG+1}, s{P_WU+1}
s_mov_b32 s70, {512*1792*2}
s_mov_b32 s71, 0x00020000
""")
a(f"""
{"s_and_b32 s23, s18, 1" if OPT["fk"] else ""}
s_lshl_b32 s27, s17, 7
s_mul_i32 s26, s18, {56*1024}
s_add_u32 s26, s26, s27
s_and_b32 s25, s18, 1
s_lshl_b32 s25, s25, 12
v_lshrrev_b32 v12, 2, v0
v_lshlrev_b32 v12, 6, v12
v_and_b32 v7, 3, v0
v_lshl_add_u32 v7, v7, 10, v12
""")
def touch0():
    a(f"""
v_lshlrev_b32 v92, 7, v0
s_lshl_b32 s28, s17, 17
s_lshr_b32 s29, s18, 1
s_lshl_b32 s29, s29, 13
s_add_u32 s28, s28, s29
s_and_b32 s29, s18, 1
s_lshl_b32 s29, s29, {11 if OPT["tc0"] == 1 else 12}
s_add_u32 s28, s28, s29
s_add_u32 s28, s28, {CPA}
s_mov_b64 exec, {"0xffff" if OPT["tc0"] == 1 else "0xffffffff"}
buffer_load_dword v93, v92, s[12:15], s28 offen {['', 'sc1', 'nt'][OPT['tpol']]}
s_mov_b64 exec, -1
""")
if OPT["tc0"] and not OPT["tcd"]: touch0()
def fk_ld():
    for t in range(16):
        a(f"s_mov_b32 s24, {t*8*3584}\nbuffer_load_dwordx4 v[{XF+4*t}:{XF+4*t+3}], v5, s[68:71], s24 offen nt")
if OPT["fk"] & 3 == 2: fk_ld()
a("s_barrier")
backoff(OPT["bd0"])
if OPT["fk"] & 3 == 3: fk_ld()
XB2 = 64
if KF_:
    if OPT["bt"] == 1: tile_ld()
    a("s_lshl_b32 s27, s24, 8")
    for s_ in range(4):
        a(f"buffer_load_dwordx4 v[{XB2+4*s_}:{XB2+4*s_+3}], v2, s[64:67], s27 offen offset:{64*s_}")
if GU and not XL: a("s_cmp_lg_u32 s24, 0\ns_cbranch_scc1 L_nxb")
for s_ in range(0 if RM & 4 or XL or KF_ else 16):
    a(f"buffer_load_dwordx4 v[{XF+4*s_}:{XF+4*s_+3}], v2, s[64:67], 0 offen offset:{64*s_}")
    if s_ % 4 == 3: backoff(OPT["bs0"])
if GU and not XL: a.label("L_nxb")
LATE = OPT["late"]; LD = OPT["ld"]
assert not LD or OPT["we"] > 5 and OPT["cw"] == 2 and not (OPT["wc"] or OPT["wg"] or OPT["bd"] or OPT["smt"]) and OPT["xm"] and OPT["awp"] and OPT["so"]
if LATE & 2 or LD: a("s_mov_b32 s72, s26")
for t in range(0 if LATE & 2 or LD or OPT["skip"] & 2 or RM & 8 else 7):
    if KF_: a(f"s_mov_b32 m0, {WD_LDS + 1024*t}\ns_nop 0\nbuffer_load_dwordx4 v6, s[4:7], s26 offen nt lds")
    else: a(f"buffer_load_dwordx4 v[{WDV+4*t}:{WDV+4*t+3}], v6, s[4:7], s26 offen nt")
    if t < 6: a("s_add_u32 s26, s26, 8192")
    if t % 4 == 3: backoff(OPT["bs0"])
a(f"""
s_mov_b32 s76, {SPIN*16}
""")
for k in range(0 if RM & 8 else 4):
    if not XL: a(f"buffer_load_dwordx4 v[{GX+4*k}:{GX+4*k+3}], v7, s[64:67], s25 offen offset:{16*k}")
    a(f"buffer_load_dwordx4 v[{GW+4*k}:{GW+4*k+3}], v12, s[8:11], 0 offen offset:{16*k}")
a.label("L_r1w")
a(f"""
ds_read_b32 v8, v15 offset:136
s_waitcnt lgkmcnt(0)
v_cmp_eq_u32 vcc, 0, v8
""")
spin_tail("L_r1w", "L_r1done", sleep=2)
stamp(1)
a(f"ds_read_b32 v{VN}, v15 offset:96")
if XL:
    a(f"""
v_add_u32 v7, s25, v7
v_lshrrev_b32 v8, 6, v7
v_and_b32 v8, 0x70, v8
v_xor_b32 v7, v7, v8
""")
    for k in range(4):
        a(f"v_xor_b32 v8, {16*k}, v7\nv_add_u32 v8, {WD_LDS}, v8\nds_read_b128 v[{GX+4*k}:{GX+4*k+3}], v8")
    if not HR: x_frag(52, 53)
def gwait(n, ticks):
    a(f"""
s_movk_i32 s31, 3000
L_gw{n}:
s_memrealtime s[78:79]
s_sub_u32 s31, s31, 1
s_cbranch_scc1 L_gwd{n}
s_waitcnt lgkmcnt(0)
s_sub_u32 s78, s78, s74
s_cmp_ge_i32 s78, {ticks}
s_cbranch_scc1 L_gwd{n}
s_sleep 1
s_branch L_gw{n}
L_gwd{n}:
""")
def gu_dma(r):
    if OPT["gt"]: gwait(r, OPT["gt"] + r*OPT["gp"])
    for t in range(16):
        a(f"s_mov_b32 m0, {R1 + 1024*t}\ns_mov_b32 s25, {(128*r + 8*t)*3584}\nbuffer_load_dwordx4 v5, s[68:71], s25 offen {'nt ' if OPT['ffnt'] else ''}lds")
        if t < 15: backoff(OPT["gsl"])
def hg_addr(d, ct):
    a(f"""
s_lshl_b32 s25, s22, 2
s_add_u32 s25, s25, {4*ct}
v_add_u32 v{d}, s25, v{CP+2 if OPT["coal"] else 11}
s_movk_i32 s25, 4682
v_mul_u32_u24 v14, s25, v{d}
v_lshrrev_b32 v14, 16, v14
v_mul_u32_u24 v12, 14, v14
v_sub_u32 v{d}, v{d}, v12
v_lshlrev_b32 v{d}, 4, v{d}
v_lshl_add_u32 v{d}, v14, 12, v{d}
v_lshl_add_u32 v{d}, v{CP+1 if OPT["coal"] else 10}, 8, v{d}
""")
if KF_:
    a(f"v_add_u32 v1, {R1}, v3\ns_waitcnt vmcnt(19)")
    for t in range(16): a(f"ds_write_b128 v1, v[{XF+4*t}:{XF+4*t+3}] offset:{1024*t}")
elif not GU and not HR:
    if OPT["gt"]:
        a(f"s_waitcnt lgkmcnt(0)\nv_readfirstlane_b32 s74, v{VN}")
        gwait(0, OPT["gt"])
    a("s_mov_b32 s25, 0")
    if L2P & 6: a("s_waitcnt vmcnt(0)\ns_cmp_ge_u32 s18, 28\ns_cbranch_scc1 L_nosl")
    for t in range(0 if RM & 16 else 16):
        a(f"s_mov_b32 m0, {R1 + 1024*t}")
        if OPT["fk"] & 2: continue
        if t and not OPT["skip"] & 4: a(f"s_mov_b32 s25, {t*(8 if OPT['fk'] else 32)*3584}")
        a(f"buffer_load_dwordx4 v5, s[68:71], s25 offen {'nt ' if OPT['ffnt'] else ''}lds")
        if t < 15: backoff(OPT["bs1"])
    if L2P & 6: a.label("L_nosl")
    if HL: a(f"s_lshl_b32 s25, s22, 9\nv_add_u32 v13, s25, v3")
    else: hg_addr(13, 0)
a(f"""
{"" if HR else f"s_lshl_b32 s25, s23, {16 if HL else 11}"}
{"" if HR else f"s_add_u32 s25, s25, {HG}"}
s_waitcnt vmcnt({0 if GU or KF_ or HR else 16}) lgkmcnt(0)
v_readfirstlane_b32 s74, v{VN}
v_mov_b32 v57, v{VN}
v_mov_b32 v59, v{VN}
""")
for t in range(0 if LATE & 2 or LD or KF_ else 7): a(f"ds_write_b128 v1, v[{WDV+4*t}:{WDV+4*t+3}] offset:{1024*t}")
if XL: a("ds_write_b128 v1, v[92:95] offset:7168")
for k in range(16):
    a(f"""
v_lshlrev_b32 v48, 16, v{GX+k}
v_and_b32 v49, 0xffff0000, v{GX+k}
v_lshlrev_b32 v50, 16, v{GW+k}
v_and_b32 v51, 0xffff0000, v{GW+k}
v_mul_f32 v48, v48, v50
v_mul_f32 v49, v49, v51
v_cvt_pk_bf16_f32 v48, v48, v49
v_and_b32 v49, 0xffff0000, v48
v_lshlrev_b32 v48, 16, v48
""")
    if k == 0: a("v_add_f32 v52, v48, v49")
    else: a("v_add_f32 v48, v48, v49\nv_add_f32 v52, v52, v48")
a("v_mov_b32 v24, v52")
xsum([24], [25], (8, 4))
a(f"""
v_cvt_pk_bf16_f32 v24, v24, v24
v_lshlrev_b32 v24, 16, v24
v_mul_f32 v24, {f32(-LOG2E)}, v24
v_exp_f32 v24, v24
v_add_f32 v24, 1.0, v24
v_rcp_f32 v24, v24
v_cvt_pk_bf16_f32 v24, v24, v24
v_lshlrev_b32 v{GG}, 16, v24
v_sub_f32 v25, 1.0, v{GG}
v_cvt_pk_bf16_f32 v25, v25, v25
v_lshlrev_b32 v{GG+1}, 16, v25
{"s_lshl2_add_u32 s26, s17, s20" + chr(10) + "s_and_b32 s27, s18, 7" if LH else ""}
s_lshl_b32 s26, {"s26" if LH else "s18"}, 17
s_lshl_b32 s27, {"s27" if LH else "s17"}, 7
s_add_u32 s26, s26, s27
s_waitcnt vmcnt(0)
""")
def geglu(g_, u_, d_, t):
    a(f"""
v_lshlrev_b32 v{t}, 16, v{g_}
v_and_b32 v{t+1}, 0xffff0000, v{g_}
v_lshlrev_b32 v{t+2}, 16, v{u_}
v_and_b32 v{t+3}, 0xffff0000, v{u_}
v_mul_f32 v{t+4}, v{t}, v{t}
v_mul_f32 v{t+5}, v{t+1}, v{t+1}
v_mul_f32 v{t+4}, v{t+4}, v{t}
v_mul_f32 v{t+5}, v{t+5}, v{t+1}
v_fma_f32 v{t+4}, v{t+4}, s25, v{t}
v_fma_f32 v{t+5}, v{t+5}, s25, v{t+1}
v_mul_f32 v{t+4}, s26, v{t+4}
v_mul_f32 v{t+5}, s26, v{t+5}
v_exp_f32 v{t+4}, v{t+4}
v_exp_f32 v{t+5}, v{t+5}
v_add_f32 v{t+4}, 1.0, v{t+4}
v_add_f32 v{t+5}, 1.0, v{t+5}
v_rcp_f32 v{t+4}, v{t+4}
v_rcp_f32 v{t+5}, v{t+5}
v_mul_f32 v{t+4}, v{t+4}, v{t}
v_mul_f32 v{t+5}, v{t+5}, v{t+1}
v_cvt_pk_bf16_f32 v{t+4}, v{t+4}, v{t+5}
v_and_b32 v{t+5}, 0xffff0000, v{t+4}
v_lshlrev_b32 v{t+4}, 16, v{t+4}
v_mul_f32 v{t+4}, v{t+4}, v{t+2}
v_mul_f32 v{t+5}, v{t+5}, v{t+3}
v_cvt_pk_bf16_f32 v{d_}, v{t+4}, v{t+5}
""")
D1 = 52
def hpub(D, va):
    a(f"""
v_cvt_pk_bf16_f32 v56, v{D}, v{D+1}
v_cvt_pk_bf16_f32 v58, v{D+2}, v{D+3}
""")
    if not GU: a("s_cmp_ge_u32 s18, 28\ns_cbranch_scc1 L_nohpub")
    if OPT["coal"]:
        a(f"""
ds_bpermute_b32 v56, v{CP}, v56
ds_bpermute_b32 v58, v{CP}, v58
s_mov_b32 exec_hi, 0
s_waitcnt lgkmcnt(0)
""")
    else:
        a("s_mov_b64 exec, s[58:59]")
    a(f"""
buffer_store_dwordx4 v[56:59], v{va}, s[12:15], s30 offen sc1
s_mov_b64 exec, -1
""")
a("s_mov_b32 s30, s25")
if KF_:
    DG = 80; PP = 16
    tag_consts(SEL)
    a(f"""
s_cmp_ge_u32 {'s17, 7' if OPT['fm'] else 's18, 28'}
s_cbranch_scc1 L_nohpub
""")
    gemv128(9, DG, XB2)
    a(f"""
v_and_b32 v12, 1, v11
v_lshl_add_u32 v12, v12, 3, v10
v_lshlrev_b32 v12, 4, v12
v_lshrrev_b32 v13, 1, v11
v_lshl_add_u32 v13, v13, 11, v12
s_lshl_b32 s28, s22, 14
s_lshl_b32 s29, s23, 10
s_add_u32 s28, s28, s29
s_lshl_b32 s29, s24, 8
s_add_u32 s28, s28, s29
s_add_u32 s28, s28, {FP}
s_lshl_b32 s29, s21, 11
s_add_u32 s29, s29, {FP}
""")
    if OPT["kpl"]:
        a(f"""
v_and_b32 v12, 7, v10
v_lshl_add_u32 v12, v11, 3, v12
v_lshlrev_b32 v12, 4, v12
v_lshrrev_b32 v13, 3, v10
v_lshl_add_u32 v13, v13, 9, v12
""")
        pstore(DG, VN, 13, "s29", '' if OPT['kl2'] & 2 else 'sc1')
        a(f"""
s_lshl_b32 s29, s22, 14
s_and_b32 s28, s21, 7
s_lshl_b32 s28, s28, 8
s_add_u32 s29, s29, s28
s_add_u32 s29, s29, {FP}
v_lshlrev_b32 v4, 4, v10
v_lshl_add_u32 v4, v11, 12, v4
""")
    else: a("s_mov_b64 exec, s[58:59]")
    for ct in range(0 if OPT["kpl"] else 4):
        tag_ins(DG + 4*ct, VN, SEL)
        a(f"buffer_store_dwordx4 v[{DG+4*ct}:{DG+4*ct+3}], v13, s[12:15], s28 offen {'' if OPT['kl2'] & 2 else 'sc1'}")
        if ct < 3: a("s_add_u32 s28, s28, 4096")
    a(f"""
s_mov_b64 exec, -1
s_mul_i32 s28, s21, 9363
s_lshr_b32 s28, s28, 16
s_mul_i32 s30, s28, 7
s_sub_u32 s30, s21, s30
s_lshl_b32 s30, s30, 5
s_lshl_b32 s28, s28, 12
s_add_u32 s30, s30, s28
s_add_u32 s30, s30, {HG}
v_and_b32 v12, 7, v0
v_bfe_u32 v13, v0, 3, 1
v_lshlrev_b32 v13, 4, v13
v_lshl_add_u32 v13, v12, 8, v13
{f"s_lshl_b32 s30, s21, 8" + chr(10) + f"s_add_u32 s30, s30, {HG}" + chr(10) + "v_mov_b32 v13, v3" if HL else ""}
s_mov_b32 s72, s26
s_mov_b32 s25, {f32(0.044715)}
s_mov_b32 s26, {f32(-2.0*0.7978845608028654*LOG2E)}
""")
    if OPT["kpl"]: ppoll("L_f1p", PP, 4, "s29", VN, 48, OPT["f1d"], OPT["f1s"], None, 2048)
    else: ppoll("L_f1p", PP, 3, "s29", VN, 48, OPT["f1d"], OPT["f1s"])
    xsum(list(range(PP, PP+8)), list(range(PP+8, PP+16)), ())
    for k in range(4): a(f"v_cvt_pk_bf16_f32 v{PP+8+k}, v{PP+2*k}, v{PP+2*k+1}")
    geglu(PP+8, PP+10, 56, 48)
    geglu(PP+9, PP+11, 58, 48)
    a(f"""
s_mov_b64 exec, 0xffff
buffer_store_dwordx4 v[56:59], v13, s[12:15], s30 offen sc1
s_mov_b64 exec, -1
s_mov_b32 s26, s72
""")
elif GU:
    DG = 64
    a(f"""
s_cmp_lg_u32 s24, 0
s_cbranch_scc1 L_nohpub
v_lshrrev_b32 v8, 2, v10
v_lshl_add_u32 v8, v11, 3, v8
v_lshlrev_b32 v9, 7, v8
v_and_b32 v8, 3, v0
v_lshl_add_u32 v9, v8, 3, v9
v_add_u32 v9, {R1}, v9
""")
    backoff(OPT["gd"])
    for r in range(4):
        gu_dma(r)
        if r == 0:
            for ct in range(4): hg_addr(80 + ct, ct)
        for s_ in range(4):
            a(f"s_waitcnt vmcnt({12 - 4*s_})")
            for ct in range(4):
                q_ = AFR + 16*(s_ & 1) + 4*ct
                a(f"ds_read_b64_tr_b16 v[{q_}:{q_+1}], v9 offset:{s_*4096+ct*32}\nds_read_b64_tr_b16 v[{q_+2}:{q_+3}], v9 offset:{s_*4096+ct*32+512}")
            for ct in range(4):
                q_ = AFR + 16*(s_ & 1) + 4*ct; t = 4*r + s_; d = DG + 4*ct
                a(f"s_waitcnt lgkmcnt({6 - 2*ct})\nv_mfma_f32_16x16x32_bf16 v[{d}:{d+3}], v[{q_}:{q_+3}], v[{XF+4*t}:{XF+4*t+3}], {'0' if t == 0 else f'v[{d}:{d+3}]'}")
        if r < 3: backoff(OPT["gr"])
    for ct in range(4):
        hpub(DG + 4*ct, 80 + ct)
        if ct < 3: a("s_nop 4")
elif not HR:
    gemv(9, D1)
    hpub(D1, 13)
a.label("L_nohpub")
if OPT["xm"]:
    a(f"""
s_getreg_b32 s31, hwreg(HW_REG_XCC_ID, 0, 4)
s_xor_b32 s31, s31, s74
s_lshl_b32 s29, s17, 8
s_add_u32 s29, s29, {XID}
s_lshl_b32 s27, s18, 3
s_add_u32 s27, s27, s29
v_mov_b32 v{VN+1}, s31
v_lshlrev_b32 v66, 3, v0
v_and_b32 v66, 0xff, v66
s_mov_b64 exec, 1
{"" if RM & 256 else f"buffer_store_dwordx2 v[{VN}:{VN+1}], v66, s[12:15], s27 offen sc1"}
s_mov_b64 exec, -1
""")
stamp(2)
if OPT["tc0"] and OPT["tcd"] == 1:
    a("s_mov_b32 s30, s29"); touch0(); a("s_mov_b32 s29, s30")
def wo_dma(sr, t0=0, t1=16):
    if CR and t1 == 16: t1 = 32
    if OPT["ww"] == 2 and t1 > t0: a("v_lshrrev_b32 v38, 1, v0\nv_and_b32 v39, 1, v0\nv_lshlrev_b32 v39, 6, v39\nv_lshl_add_u32 v38, v38, 10, v39")
    for t in range(t0, 0 if OPT["skip"] & 1 else t1):
        a(f"s_mov_b32 m0, {(TB if CR else WO_LDS) + 1024*t}\ns_nop 0\nbuffer_load_dwordx4 v6, s[60:63], {sr} offen {['', 'nt '][OPT['wpo']]}lds")
        if OPT["ww"] == 1: a(f"s_xor_b32 s27, {sr}, 128\nbuffer_load_dwordx4 v[{40+4*t}:{43+4*t}], v6, s[60:63], s27 offen {['', 'nt'][OPT['wpn']]}")
        if OPT["ww"] == 2 and t % 4 == 0: a(f"s_xor_b32 s27, {sr}, 128\nbuffer_load_dword v{40+t}, v38, s[60:63], s27 offen {['', 'nt'][OPT['wpn']]}")
        if t < (31 if CR else 15): a(f"s_add_u32 {sr}, {sr}, 8192")
if LATE & 1: a("s_andn2_b32 s73, s26, 0x20000" if CR else "s_mov_b32 s73, s26")
else: wo_dma("s26")
HB = 16; UB = 32
tag_consts(SEL)
a(f"""
""" + (f"""
s_mul_i32 s30, s18, 1792
s_add_u32 s30, s30, {HG}
v_lshlrev_b32 v1, 4, v10
v_lshl_add_u32 v1, v11, 8, v1
""" if HL and KF_ else f"""
s_mov_b32 s30, {HG}
s_mov_b32 s27, {HG + 65536}
s_mul_i32 s25, s18, 7
v_add_u32 v1, s25, v11
v_lshrrev_b32 v2, {2 if HR else 1}, v1
v_and_b32 v1, {3 if HR else 1}, v1
v_lshlrev_b32 v1, 5, v1
v_lshl_add_u32 v1, v2, {10 if HR else 9}, v1
v_lshl_add_u32 v1, v10, {7 if HR else 6}, v1
""" if HL else f"""
s_lshl_b32 s30, s18, 12
s_add_u32 s30, s30, {HG}
v_lshlrev_b32 v1, 5, v11
v_lshl_add_u32 v1, v10, 8, v1
""") + f"""
v_mov_b32 v4, 0x7ff00000
v_cmp_gt_u32 vcc, 3, v11
s_and_b64 s[66:67], s[58:59], vcc
v_cndmask_b32 v2, v4, v1, s[66:67]
v_cndmask_b32 v1, v4, v1, s[58:59]
v_lshlrev_b32 v14, 4, v10
v_lshl_add_u32 v14, v11, 7, v14
v_add_u32 v14, {WD_LDS}, v14
s_mov_b32 s76, {SPIN}
""")
backoff(OPT["hd"])
if OPT['ht']: a(f"""
s_movk_i32 s70, 400
L_ht:
s_memrealtime s[68:69]
s_sub_u32 s70, s70, 1
s_cbranch_scc1 L_htd
s_waitcnt lgkmcnt(0)
s_sub_u32 s68, s68, s74
s_cmp_ge_i32 s68, {OPT['ht']}
s_cbranch_scc1 L_htd
s_sleep 4
s_branch L_ht
L_htd:
s_waitcnt lgkmcnt(0)
""")
a.label("L_hpoll")
if RM & 64: a("s_mov_b32 s28, 1\ns_branch L_hdone2")
for B_, o_ in ((HB, 0),) if KF_ or OPT['hp'] & 2 else ((HB, 0), (UB, 2048)):
    if HL and KF_: a(f"""
buffer_load_dwordx4 v[{B_}:{B_+3}], v1, s[12:15], s30 offen sc1
buffer_load_dwordx4 v[{B_+4}:{B_+7}], v1, s[12:15], s30 offen offset:128 sc1
buffer_load_dwordx4 v[{B_+8}:{B_+11}], v2, s[12:15], s30 offen offset:1024 sc1
buffer_load_dwordx4 v[{B_+12}:{B_+15}], v2, s[12:15], s30 offen offset:1152 sc1
""")
    elif HL: a(f"""
buffer_load_dwordx4 v[{B_}:{B_+3}], v1, s[12:15], {'s27' if o_ else 's30'} offen sc1
buffer_load_dwordx4 v[{B_+4}:{B_+7}], v1, s[12:15], {'s27' if o_ else 's30'} offen offset:16 sc1
buffer_load_dwordx4 v[{B_+8}:{B_+11}], v2, s[12:15], {'s27' if o_ else 's30'} offen offset:1024 sc1
buffer_load_dwordx4 v[{B_+12}:{B_+15}], v2, s[12:15], {'s27' if o_ else 's30'} offen offset:1040 sc1
""")
    else: a(f"""
buffer_load_dwordx4 v[{B_}:{B_+3}], v1, s[12:15], s30 offen offset:{o_} sc1
buffer_load_dwordx4 v[{B_+4}:{B_+7}], v1, s[12:15], s30 offen offset:{o_+16} sc1
buffer_load_dwordx4 v[{B_+8}:{B_+11}], v2, s[12:15], s30 offen offset:{o_+128} sc1
buffer_load_dwordx4 v[{B_+12}:{B_+15}], v2, s[12:15], s30 offen offset:{o_+144} sc1
""")
if RM & 256: a("v_mov_b32 v64, s74\nv_mov_b32 v65, s31")
elif OPT["xm"]: a("buffer_load_dwordx2 v[64:65], v66, s[12:15], s29 offen sc1")
a("s_waitcnt vmcnt(0)")
any_eq([HB+1, HB+3, HB+5, HB+7] + ([] if KF_ or OPT['hp'] & 2 else [UB+1, UB+3, UB+5, UB+7]), "s74", neg=True)
a("s_and_b64 s[64:65], vcc, s[58:59]")
if OPT["xm"]: a("v_cmp_ne_u32 vcc, s74, v64\ns_or_b64 s[64:65], s[64:65], vcc\nv_xor_b32 v67, s74, v65\nv_cmp_lt_u32 vcc, 15, v67\ns_or_b64 s[64:65], s[64:65], vcc")
any_eq([HB+9, HB+11, HB+13, HB+15] + ([] if KF_ or OPT['hp'] & 2 else [UB+9, UB+11, UB+13, UB+15]), "s74", neg=True)
a("s_and_b64 vcc, vcc, s[66:67]\ns_or_b64 vcc, vcc, s[64:65]")
spin_tail("L_hpoll", "L_hdone", sleep=OPT["hslp"])
if OPT["xm"]:
    a(f"""
v_cmp_ne_u32 vcc, s31, v65
s_cmp_eq_u64 vcc, 0
s_cselect_b32 s28, {0 if OPT["xforce"] else 1}, 0
""")
if RM & 64: a.label("L_hdone2")
stamp(3)
a(f"""
s_mov_b32 s25, {f32(0.044715)}
s_mov_b32 s26, {f32(-2.0*0.7978845608028654*LOG2E)}
v_lshrrev_b32 v1, 2, v10
v_lshl_add_u32 v1, v11, 3, v1
v_lshlrev_b32 v1, 7, v1
v_and_b32 v2, 3, v0
v_lshl_add_u32 v1, v2, 3, v1
v_add_u32 v1, {WD_LDS}, v1
""")
AF = 80
def af_rd():
    for ct in range(4):
        for s_ in range(2):
            r = AF + 8*ct + 4*s_
            a(f"ds_read_b64_tr_b16 v[{r}:{r+1}], v1 offset:{s_*4096+ct*32}")
            a(f"ds_read_b64_tr_b16 v[{r+2}:{r+3}], v1 offset:{s_*4096+ct*32+512}")
def trig_wait():
    a(f"s_mov_b32 s76, {SPIN*16}")
    a.label("L_tw")
    a(f"""
ds_read_b32 v8, v15 offset:136
s_waitcnt lgkmcnt(0)
v_cmp_ne_u32 vcc, 2, v8
""")
    spin_tail("L_tw", "L_twdone", sleep=OPT["tslp"])
    stamp(0)
if not LATE & 2 and not LD: af_rd()
HF = 48
for e in range(8):
    if KF_: a(f"v_mov_b32 v{HF+e}, v{HB+2*e}")
    else: geglu(HB + 2*e, UB + 2*e, HF + e, 56)
if LATE & 2:
    trig_wait()
    for t in range(7):
        a(f"s_mov_b32 m0, {WD_LDS + 1024*t}\ns_nop 0\nbuffer_load_dwordx4 v6, s[4:7], s72 offen nt lds")
        if t < 6: a("s_add_u32 s72, s72, 8192")
    if LATE & 1: wo_dma("s73")
    a(f"s_waitcnt vmcnt({16 if LATE & 1 else 0})")
    af_rd()
def down_mm():
    a("s_waitcnt lgkmcnt(0)")
    for ct in range(4):
        r = AF + 8*ct; d = 112 + 4*ct
        a(f"v_mfma_f32_16x16x32_bf16 v[{d}:{d+3}], v[{r}:{r+3}], v[{HF}:{HF+3}], 0")
        a(f"v_mfma_f32_16x16x32_bf16 v[{d}:{d+3}], v[{r+4}:{r+7}], v[{HF+4}:{HF+7}], v[{d}:{d+3}]")
    for ct in range(4): tag_ins(112 + 4*ct, VN, SEL)
    a("s_mov_b64 exec, s[58:59]")
def wd_dma():
    for t in range(7):
        a(f"s_mov_b32 m0, {WD_LDS + 1024*t}\ns_nop 0\nbuffer_load_dwordx4 v6, s[4:7], s72 offen nt lds")
        if t < 6: a("s_add_u32 s72, s72, 8192")
if LD:
    a(f"""
v_and_b32 v14, 3, v0
v_lshlrev_b32 v14, 4, v14
v_lshrrev_b32 v2, 2, v10
v_lshl_add_u32 v14, v2, 12, v14
v_lshl_add_u32 v14, v11, 13, v14
s_lshl_b32 s75, s17, 17
s_lshl_b32 s26, s18, 7
s_add_u32 s75, s75, s26
s_add_u32 s75, s75, {CPA + 64}
""")
else:
    down_mm()
    for ct in range(4):
        d = 112 + 4*ct
        a(f"ds_write_b128 v14, v[{d}:{d+3}] offset:{512*ct}")
if OPT["hbn"] == 1:
    a(f"""
v_lshlrev_b32 v1, 4, v10
v_lshl_add_u32 v1, v11, 13, v1
s_lshl_b32 s25, s17, 17
s_lshl_b32 s26, s18, 7
s_add_u32 s25, s25, s26
s_add_u32 s25, s25, {CPA}
v_not_b32 v16, v{VN}
v_not_b32 v17, v{VN}
v_not_b32 v18, v{VN}
v_not_b32 v19, v{VN}
""")
    for ct in range(4):
        d = 112 + 4*ct
        a(f"s_add_u32 s26, s25, 4096\nbuffer_store_dwordx4 v[{d}:{d+3}], v1, s[12:15], s26 offen")
        if OPT["prw"]: a(f"buffer_store_dwordx4 v[16:19], v1, s[12:15], s25 offen")
        if ct < 3: a("s_add_u32 s25, s25, 32768")
a(f"""
v_lshl_add_u32 v2, v{CP+2}, 3, v15
s_mov_b64 exec, 15
ds_write_b64 v2, v[{GG}:{GG+1}] offset:64
""")
stamp(4)
if OPT["tchb"]: touch()
if OPT["xm"]:
    a(f"v_mov_b32 v8, s28\nds_write_b32 v15, v8 offset:140")
else:
    a("v_mov_b32 v8, 1\ns_waitcnt vmcnt(0) lgkmcnt(0)\nds_write_b32 v15, v8 offset:140")
if LATE == 1:
    if OPT["pt"]:
        srd(8, P_OUT, 8192)
        a(f"""
s_mov_b64 exec, 1
s_lshl_b32 s25, s17, 7
s_mov_b32 s26, {"0x2f0000" if LH else "0x3f0000"}
v_mov_b32 v16, 0
""")
        if OPT["pt"] & 1: a("buffer_load_dword v17, v16, s[8:11], s25 offen")
        if OPT["pt"] & 2: a("buffer_load_dword v18, v16, s[12:15], s26 offen")
        if OPT["pt"] & 4: a("buffer_load_dword v19, v16, s[60:63], s73 offen nt")
        if OPT["pt"] & 16: a("buffer_load_dword v42, v16, s[4:7], s72 offen nt")
        if OPT["pt"] & 8:
            srd(8, P_V, 128 << 20)
            a(f"""
s_lshl_b32 s25, s20, 4
s_add_u32 s25, s25, s19
{HS("s26")}
s_lshl3_add_u32 s25, s26, s25
s_lshl_b32 s25, s25, 21
s_mov_b64 exec, {hex((1 << OPT['ptn']) - 1)}
v_mul_u32_u24 v16, {(2 << 20)//OPT['ptn']}, v0
buffer_load_dword v41, v16, s[8:11], s25 offen nt
""")
    a("s_mov_b64 exec, -1")
    if OPT["pr"]:
        backoff(OPT["prd"])
        a(f"""
s_lshl_b32 s25, s20, 4
s_add_u32 s25, s25, s19
{HS("s26")}
s_lshl3_add_u32 s25, s26, s25
s_lshl_b32 s25, s25, 13
{US("s26")}
s_lshl_b32 s26, s26, 8
s_add_u32 s25, s25, s26
s_add_u32 s25, s25, {PART}
v_lshlrev_b32 v40, 4, v10
v_lshl_add_u32 v40, v11, 11, v40
v_mov_b32 v44, 0
v_mov_b32 v45, 0
v_mov_b32 v46, 0
v_mov_b32 v47, 0
{["", "buffer_load_dwordx4 v[44:47], v40, s[12:15], s25 offen sc1", "buffer_load_dwordx4 v[44:47], v40, s[12:15], s25 offen", "buffer_store_dwordx4 v[44:47], v40, s[12:15], s25 offen sc1"][OPT["pr"]]}
""")
    if OPT["dlb"]:
        a(f"""
s_lshl_b32 s27, s17, 7
s_mul_i32 s26, s18, {56*1024}
s_add_u32 s26, s26, s27
s_movk_i32 s30, 2000
L_dl:
s_memrealtime s[64:65]
s_sub_u32 s30, s30, 1
s_cbranch_scc1 L_dld
s_waitcnt lgkmcnt(0)
s_sub_u32 s64, s64, s74
s_cmp_ge_i32 s64, {OPT['dlb']}
s_cbranch_scc1 L_dld
s_sleep 4
s_branch L_dl
L_dld:
s_mov_b32 s25, 0
""")
        for t in range(16):
            a(f"s_mov_b32 m0, {R1 + 1024*t}")
            if t: a(f"s_mov_b32 s25, {t*32*3584}")
            a(f"buffer_load_dwordx4 v5, s[68:71], s25 offen nt lds")
        for t in range(7):
            a(f"buffer_load_dwordx4 v[{WDV+4*t}:{WDV+4*t+3}], v6, s[4:7], s26 offen nt")
            if t < 6: a("s_add_u32 s26, s26, 8192")
        if OPT["dlw"]: a("s_waitcnt vmcnt(0)")
    if OPT["w8"]:
        backoff(OPT["w8d"])
        a(f"""
s_lshl_b32 s25, s18, 17
s_movk_i32 s26, {OPT["w8"]}
L_w8:
""")
        for t in range(OPT["w8n"]):
            a(f"s_waitcnt vmcnt({OPT['w8n']-1})\nbuffer_load_dwordx4 v[{16+4*t}:{19+4*t}], v3, s[60:63], s25 offen {['', 'nt', 'sc1', 'sc0 sc1', 'sc1 nt'][OPT['w8p']]}\ns_add_u32 s25, s25, 1024")
            if OPT["w8s"]: a(f"s_sleep {OPT['w8s']}")
        a(f"""
s_sub_u32 s26, s26, {OPT['w8n']}
s_cmp_gt_i32 s26, 0
s_cbranch_scc1 L_w8
""")
    if BW:
        def red8b(r, op, src=None):
            for m in ("quad_perm:[1,0,3,2]", "quad_perm:[2,3,0,1]", "row_half_mirror"):
                q = r if src is None else src
                a(f"{op}_dpp v{r}, v{q}, v{q} {m} row_mask:0xf bank_mask:0xf")
                src = None
        a(f"""
v_lshl_add_u32 v20, v0, 3, v15
v_lshl_add_u32 v21, v0, 2, v15
v_lshrrev_b32 v22, 5, v0
v_bfe_u32 v23, v0, 3, 2
v_lshl_add_u32 v22, v22, 5, v23
{f"v_and_b32 v23, 7, v0" + chr(10) + f"v_mad_u32_u24 v22, v22, {OPT['fr']}, v23" if OPT['fr'] > 1 else ""}
v_mul_u32_u24 v22, {FST}, v22
s_lshl_b32 s25, s20, 4
s_add_u32 s25, s25, s19
{HS("s26") + chr(10) + "s_lshl3_add_u32 s25, s26, s25" + chr(10) + US("s26") if OP else ""}
s_mul_i32 s25, s25, {4*FST*OPT['fr']}
s_lshl_b32 s26, {"s26" if OP else "s17"}, 3
s_add_u32 s25, s25, s26
s_add_u32 s25, s25, {FG + OPT['fgo']}
s_mov_b32 s26, {f32(LOG2E)}
v_mov_b32 v31, v{VN}
""" + (f"""
v_lshrrev_b32 v36, 3, v0
v_mul_u32_u24 v36, {32*FST}, v36
v_and_b32 v37, 7, v0
v_lshl_add_u32 v36, v37, 3, v36
s_mul_i32 s28, s18, {FST}
s_add_u32 s28, s28, {FG + OPT['fgo']}
v_not_b32 v32, v{VN}
v_mov_b32 v33, 0
v_not_b32 v34, v{VN}
v_mov_b32 v35, 0
s_mov_b32 s29, {BP1}
""" if BP1 else "") + f"""
s_mov_b32 s76, {SPIN*64}
{f"s_setprio {OPT['bwp']}" if OPT['bwp'] != 3 else ""}
""")
        if LH and OPT["lhp"]:
            a(f"""
s_cmp_eq_u32 s28, 1
s_cbranch_scc0 L_nopw
s_lshl_b32 s27, s20, 4
s_add_u32 s27, s27, s19
{HS("s29")}
s_lshl3_add_u32 s27, s29, s27
s_lshl_b32 s27, s27, 13
{US("s29")}
s_lshl_b32 s29, s29, 8
s_add_u32 s27, s27, s29
s_add_u32 s27, s27, {PART}
s_mov_b32 s29, 0x9e3779b1
v_mul_lo_u32 v44, v{VN}, s29
v_lshlrev_b32 v40, 2, v0
v_and_b32 v40, 12, v40
v_not_b32 v44, v44
v_lshrrev_b32 v44, v40, v44
v_lshrrev_b32 v45, 1, v44
v_lshrrev_b32 v46, 2, v44
v_lshrrev_b32 v47, 3, v44
v_lshlrev_b32 v40, 4, v10
v_lshl_add_u32 v40, v11, 11, v40
v_not_b32 v42, v{VN}
v_not_b32 v43, v{VN}
""")
            if OPT["lhp"] == 2:
                a(f"""
L_pw:
ds_read_b32 v25, v15 offset:128
s_sub_u32 s76, s76, 1
s_cbranch_scc1 L_pwd
s_waitcnt lgkmcnt(0)
v_readfirstlane_b32 s29, v25
s_cmp_ge_u32 s29, {2*(NSE + K0 + SE + NSE + KN) - OPT['lhd']}
s_cbranch_scc1 L_pwd
s_sleep 16
s_branch L_pw
L_pwd:
""")
            a(f"""
buffer_store_dwordx4 v[44:47], v40, s[12:15], s27 offen
s_mov_b32 exec_lo, 0x01010101
s_mov_b32 exec_hi, 0
buffer_store_dwordx2 v[42:43], v22, s[12:15], s25 offen
s_mov_b64 exec, -1
s_waitcnt vmcnt(0)
L_nopw:
""")
        def cw_touch():
            a(f"""
s_lshl_b32 s27, s17, 17
s_lshl_b32 s29, s18, 12
s_add_u32 s27, s27, s29
s_add_u32 s27, s27, {CPA}
v_lshlrev_b32 v40, 7, v0
s_mov_b32 exec_hi, 0
buffer_load_dword v41, v40, s[12:15], s27 offen {['', 'sc1', 'nt'][OPT['cwp']]}
s_mov_b32 exec_hi, -1
""")
        if OPT["cw"] == 3:
            a(f"""
L_cw:
ds_read_b32 v25, v15 offset:128
s_sub_u32 s76, s76, 1
s_cbranch_scc1 L_cwd
s_waitcnt lgkmcnt(0)
v_readfirstlane_b32 s29, v25
s_cmp_ge_u32 s29, {2*(NSE + K0 + SE + NSE + KN) - OPT['lhd']}
s_cbranch_scc1 L_cwd
s_sleep 16
s_branch L_cw
L_cwd:
""")
            cw_touch()
        def sm_touch():
            a(f"""
s_lshl_b32 s27, s20, 4
s_add_u32 s27, s27, s19
{HS("s29")}
s_lshl3_add_u32 s27, s29, s27
s_lshl_b32 s27, s27, 13
{US("s29")}
s_lshl_b32 s29, s29, 8
s_add_u32 s27, s27, s29
s_add_u32 s27, s27, {PART}
s_add_u32 s64, s{P_WS}, s27
s_addc_u32 s65, s{P_WS+1}, 0
""")
            for k in range(8): a(f"s_load_dword s{4+k}, s[64:65], {2048*(k >> 1) + 128*(k & 1)} {'glc' if OPT['smg'] else ''}")
        if OPT["smt"] == 4:
            a(f"""
L_st:
ds_read_b32 v25, v15 offset:128
s_sub_u32 s76, s76, 1
s_cbranch_scc1 L_std
s_waitcnt lgkmcnt(0)
v_readfirstlane_b32 s29, v25
s_cmp_ge_u32 s29, {2*(NSE + K0 + SE + NSE + KN) - OPT['lhd']}
s_cbranch_scc1 L_std
s_sleep 16
s_branch L_st
L_std:
""")
            sm_touch()
        if 2 <= OPT["we"] <= 5:
            a(f"""
L_we:
ds_read_b32 v25, v15 offset:148
s_sub_u32 s76, s76, 1
s_cbranch_scc1 L_wed
s_waitcnt lgkmcnt(0)
v_readfirstlane_b32 s27, v25
s_cmp_ge_u32 s27, {2*(K0+KN) + OPT["we"] - 1}
s_cbranch_scc1 L_wed
s_sleep {OPT['wes']}
s_branch L_we
L_wed:
""")
            backoff(OPT["wed"])
            wo_dma("s73")
        elif OPT["we"]:
            if OPT["bd"] & 2: a("s_mov_b32 s72, 1\ns_branch L_bwd\nL_bdry:\ns_mov_b32 s72, 0")
            a(f"""
L_we:
{"ds_read_b32 v25, v15 offset:144" if OPT["we"] == 1 else f"ds_read_b64 v[24:25], v20 offset:{MLT - MISC}"}
s_sub_u32 s76, s76, 1
s_cbranch_scc1 L_wed
s_waitcnt lgkmcnt(0)
v_cmp_eq_u32 vcc, {0 if OPT["we"] == 1 else -1}, v25
s_bcnt1_i32_b64 s27, vcc
s_cmp_lt_u32 s27, {OPT["we"]}
s_cbranch_scc1 L_wed
s_sleep {OPT['wes']}
{f"s_cmp_lt_u32 s27, 32" + chr(10) + "s_cbranch_scc1 L_we" + chr(10) + f"s_sleep {OPT['wez']}" if OPT['wez'] else ""}
s_branch L_we
L_wed:
""")
            if OPT["wg"]:
                a(f"""
ds_read_b32 v26, v15 offset:156
s_mov_b32 s72, 0
s_waitcnt lgkmcnt(0)
v_readfirstlane_b32 s75, v26
L_wg:
ds_read_b64 v[24:25], v20 offset:{MLT - MISC}
s_memrealtime s[64:65]
s_sub_u32 s76, s76, 1
s_cbranch_scc1 L_bwd
s_waitcnt lgkmcnt(0)
s_sub_u32 s64, s64, s75
s_cmp_ge_i32 s64, 0
s_cbranch_scc1 L_wgd
v_cmp_eq_u32 vcc, -1, v25
s_cbranch_vccz L_bwd
s_sleep 1
s_branch L_wg
L_wgd:
s_mov_b32 s72, 1
""")
            backoff(OPT["wed"])
            if OPT["ow"]: a(f"""
s_lshl_b32 s27, s17, 7
v_lshlrev_b32 v40, 10, v0
s_mov_b64 exec, 0xff
buffer_load_dword v43, v40, s[8:11], s27 offen {['', '', 'sc1', 'nt'][OPT['ow']]}
s_mov_b64 exec, -1
""")
            if OPT["cw"] == 1: cw_touch()
            if OPT["wc"]:
                WC = OPT["wc"]
                a("s_mov_b32 s72, 0\ns_cbranch_vccz L_bwd")
                for c in range(0, 16, WC):
                    wo_dma("s73", c, c + WC)
                    a(f"s_mov_b32 s72, {c + WC}")
                    if c + WC < 16: a(f"""
ds_read_b64 v[24:25], v20 offset:{MLT - MISC}
s_waitcnt lgkmcnt(0)
v_cmp_eq_u32 vcc, -1, v25
s_cbranch_vccz L_bwd
""")
            elif OPT["bd"] & 1: a(f"""
s_mov_b32 m0, {WO_LDS}
s_nop 0
L_wl:
buffer_load_dwordx4 v6, s[60:63], s73 offen nt lds
s_add_u32 m0, m0, 1024
s_add_u32 s73, s73, 8192
s_cmp_lt_u32 m0, {WO_LDS + 16384}
s_cbranch_scc1 L_wl
""")
            elif LD == 3: wd_dma(); wo_dma("s73", 0, OPT["ldw"])
            else: wo_dma("s73")
            if OPT["cw"] == 2: cw_touch()
            if LD == 1: wd_dma()
        if OPT["smt"] == 3: sm_touch()
        if OPT["smt"] == 2: a(f"s_load_dword s27, s[{P_WS}:{P_WS+1}], {hex(FG + 0x1ff80)} glc")
        a(f"""
L_bw:
ds_read_b64 v[24:25], v20 offset:{MLT - MISC}
s_sub_u32 s76, s76, 1
s_cbranch_scc1 L_bwd
s_waitcnt lgkmcnt(0)
v_cmp_eq_u32 vcc, -1, v25
s_cbranch_vccz L_bwd
s_bcnt1_i32_b64 s27, vcc
""" + (f"""
s_cmp_ge_u32 s27, s29
s_cbranch_scc1 L_bw1
s_mov_b32 s29, 0
{"s_mov_b32 exec_lo, 0x0f0f0f0f" + chr(10) + "s_mov_b32 exec_hi, 0x0f0f0f0f" if OP else ""}
buffer_atomic_cmpswap_x2 v[32:35], v36, s[12:15], s28 offen sc0 sc1
{"s_mov_b64 exec, -1" if OP else ""}
L_bw1:
""" if BP1 else "") + f"""
{f"s_sleep {OPT['bwt']}" if OPT['bwt'] else ""}
s_cmp_lt_u32 s27, {OPT['bwn']}
s_cbranch_scc1 L_bw
s_sleep {OPT['bws']}
s_branch L_bw
L_bwd:
{"s_setprio 3" if OPT['bwp'] != 3 else ""}
s_waitcnt lgkmcnt(0)
""")
        red8b(26, "v_max_f32", 24)
        a(f"""
v_sub_f32 v24, v24, v26
v_mul_f32 v24, s26, v24
v_exp_f32 v24, v24
v_mul_f32 v27, v24, v25
""")
        red8b(27, "v_add_f32")
        a(f"""
v_max_f32 v27, {f32(1e-30)}, v27
v_rcp_f32 v29, v27
v_log_f32 v28, v27
v_mul_f32 v24, v24, v29
ds_write_b32 v21, v24 offset:{WTL - MISC}
{"s_mov_b64 exec, 1" + chr(10) + "v_mov_b32 v29, 1" + chr(10) + "ds_add_u32 v15, v29 offset:156" + chr(10) + "s_mov_b64 exec, -1" if OPT["nb"] else ""}
v_fma_f32 v30, v26, s26, v28
v_perm_b32 v30, v30, v{VN}, s{SEL}
""")
        wo_dma("s73", 0, OPT["bwo"])
        if BP1:
            backoff(OPT["bpz"])
            a(f"v_mov_b32 v38, v32\nv_mov_b32 v39, v33\nds_write_b64 v20, v[38:39] offset:{FTL - MISC}")
        if OPT["lf"]:
            if OPT["lf"] == 1:
                a(f"""
L_lf:
ds_read_b32 v25, v15 offset:152
s_sub_u32 s76, s76, 1
s_cbranch_scc1 L_lfd
s_waitcnt lgkmcnt(0)
v_readfirstlane_b32 s27, v25
s_cmp_lt_u32 s27, {OPT['lfn']}
s_cbranch_scc1 L_lf
L_lfd:
""")
            if OPT["lfd"]: a(f"s_sleep {OPT['lfd']}")
            if OPT["bd"] & 2: a("s_cmp_eq_u32 s72, 1\ns_cbranch_scc1 L_bdry")
            a(f"""
s_mov_b32 exec_lo, {hex(0x01010101*((1 << OPT['fr']) - 1))}
s_mov_b32 exec_hi, 0
buffer_store_dwordx2 v[30:31], v22, s[12:15], s25 offen sc1
s_mov_b64 exec, -1
s_waitcnt lgkmcnt(0)
{"" if OPT["nb"] else "s_barrier"}
{f"s_sleep {OPT['bwd']}" if OPT['bwd'] else ""}
""")
        else: a(f"""
s_mov_b32 exec_lo, 0x01010101
s_mov_b32 exec_hi, {0 if OP else 0x01010101}
s_waitcnt lgkmcnt(0)
s_barrier
{f"s_sleep {OPT['bwd']}" if OPT['bwd'] else ""}
{"s_cmp_eq_u32 s28, 1" + chr(10) + "s_cbranch_scc0 L_fsg" + chr(10) + "buffer_store_dwordx2 v[30:31], v22, s[12:15], s25 offen" + chr(10) + "s_branch L_fsd" + chr(10) + "L_fsg:" if LH else ""}
{"buffer_atomic_swap_x2" if OPT["fa"] & 1 else "buffer_store_dwordx2"} v[30:31], v22, s[12:15], s25 offen {['sc1', 'sc0 sc1', 'sc1 nt', 'sc0 sc1 nt'][OPT['fpl']]}
{"L_fsd:" if LH else ""}
s_mov_b64 exec, -1
""")
        stamp(0)
        if CR: a(ROLE("s27") + "\ns_cbranch_scc1 L_nowo")
        if not OPT["we"] and not OPT["wa"]: backoff(OPT["wdel"] - OPT["bwd"])
    elif OPT["lb"] == 2:
        a("s_waitcnt lgkmcnt(0)\ns_barrier")
        if OPT["eb"] and not OPT["ebw"]: a("s_barrier")
        stamp(0); backoff(OPT["wdel"])
    else: trig_wait()
    def wd_late():
        a(f"""
s_lshl_b32 s27, s17, 7
s_mul_i32 s26, s18, {56*1024}
s_add_u32 s26, s26, s27
""")
        for t in range(7):
            a(f"s_mov_b32 m0, {0x1E000 + 1024*t}\ns_nop 0\nbuffer_load_dwordx4 v6, s[4:7], s26 offen nt lds")
            if t < 6: a("s_add_u32 s26, s26, 8192")
    if OPT["wl"] == 1: wd_late()
    if OPT["wg"] and OPT["we"]:
        a(f"""
s_cmp_eq_u32 s72, 1
s_cbranch_scc1 L_wg3
{f"s_sleep {OPT['wam']}" if OPT['wam'] else ""}
s_movk_i32 s76, 64
L_wg2:
s_memrealtime s[64:65]
s_sub_u32 s76, s76, 1
s_cbranch_scc1 L_wg4
s_waitcnt lgkmcnt(0)
s_sub_u32 s64, s64, s75
s_cmp_ge_i32 s64, 0
s_cbranch_scc1 L_wg4
s_sleep 1
s_branch L_wg2
L_wg4:
""")
        wo_dma("s73")
        a.label("L_wg3")
    if OPT["wc"]:
        a(f"s_cmp_eq_u32 s72, 16\ns_cbranch_scc1 L_wcd")
        if OPT["wam"]: a(f"s_sleep {OPT['wam']}")
        for c in range(0, 16, OPT["wc"]):
            a(f"s_cmp_gt_u32 s72, {c}\ns_cbranch_scc1 L_wc{c}")
            wo_dma("s73", c, c + OPT["wc"])
            a.label(f"L_wc{c}")
        if OPT["cw"] == 2: cw_touch()
        a.label("L_wcd")
    wo_dma("s73", 16 if OPT["we"] or OPT["wa"] else OPT["bwo"])
    if LD:
        if LD == 2: wd_dma()
        if LD == 3:
            wo_dma("s73", OPT["ldw"])
            a("s_waitcnt vmcnt(17)")
            af_rd(); down_mm()
            a("s_waitcnt vmcnt(0)\nds_write_b32 v15, v15 offset:144\ns_waitcnt lgkmcnt(0)")
        else:
            a("s_waitcnt vmcnt(8)\nds_write_b32 v15, v15 offset:144\ns_waitcnt vmcnt(0)")
            af_rd(); down_mm()
        a("s_cmp_eq_u32 s28, 1\ns_cbranch_scc1 L_ldn")
        for pol in (" sc1", ""):
            for ct in range(4):
                a(f"buffer_store_dwordx4 v[{112+4*ct}:{115+4*ct}], v14, s[12:15], s75 offen{pol}")
                if ct < 3: a("s_add_u32 s75, s75, 32768")
            a("s_branch L_ldd\nL_ldn:" if pol else "L_ldd:\ns_mov_b64 exec, -1")
        if not OPT["stamps"]: a("s_endpgm")
    elif OPT["awp"] and not OPT["wa"]: a("s_waitcnt vmcnt(0)\nds_write_b32 v15, v15 offset:144")
    if CR: a.label("L_nowo")
    if OPT["wl"] == 2: wd_late()
    if OPT["lb"] == 1 or OPT["eb"] and OPT["ebw"]: a("s_barrier")
if LATE and OPT["stamps"]: a("s_waitcnt vmcnt(0)"); stamp(4)
hstamps(9, 5)
a("s_waitcnt vmcnt(0) lgkmcnt(0)\ns_endpgm")

a.label("L_stream")
KA, VA, KR, VR = 1, 5, 7, 11
M_, L_ = 20, 21
T0, T1, T2 = 22, 23, 19
Q = 24; KF = 40; S = 56; T = 60; PF = 66; SA = 68; TKA = 69; CL = 70; ZR = 71; O = 72; STG = 104; NINF = 65; FL = 64
TE = T + 2; ONE = T + 3; TA = CL
ST0 = 168 - 16*NST
X0 = KF
a(f"""
v_and_b32 v{T0}, 15, v0
v_lshrrev_b32 v{T1}, 4, v0
s_mul_i32 s24, s3, {RING}
{"s_memrealtime s[98:99]" if OPT["pp"] else ""}
""")
for i in range(4):
    a(f"""
v_add_u32 v{T2}, {4*i}, v{T1}
v_xor_b32 v{T2}, v{T2}, v{T0}
v_lshlrev_b32 v{T2}, 4, v{T2}
v_lshl_add_u32 v{KA+i}, v{T1}, 8, v{T2}
v_lshl_add_u32 v{KR+i}, v{T0}, 8, v{T2}
""")
a(f"""
{"s_lshl_b32 s30, s17, 2" if XB else "s_lshl_b32 s30, s20, 4"}
s_add_u32 s30, s30, {"s20" if XB else "s19"}
{"s_lshl_b32 s30, s30, 1" if XB else ""}
{HS("s26") + chr(10) + "s_lshl3_add_u32 s30, s26, s30" + chr(10) + US("s22") if OP else ""}
s_lshl_b32 s21, s30, 21
s_lshl_b32 s22, {"s22" if OP else MEM}, 3
s_add_u32 s22, s22, s3
s_mul_i32 s77, s20, {OPT['r2']}
{f"s_mul_i32 s26, s26, {OPT['r3']}" + chr(10) + "s_add_u32 s77, s77, s26" if OP else ""}
{f"s_mul_i32 s25, {'s17' if XB else 's19'}, {OPT['r1']}" + chr(10) + "s_add_u32 s77, s77, s25" if OPT['r1'] else ""}
s_add_u32 s22, s22, s77
s_and_b32 s26, s22, 511
{trn("s26")}
s_lshl_b32 s26, s26, 12
s_add_u32 s26, s26, s21
s_add_u32 m0, s24, 8192
s_waitcnt lgkmcnt(0)
""")
if OPT["fz"]:
    a(f"""
s_add_u32 s27, s18, s17
s_and_b32 s27, s27, 3
s_lshr_b32 s28, s18, 2
v_lshrrev_b32 v40, 3, v0
v_and_b32 v41, 7, v0
v_lshlrev_b32 v41, 4, v41
s_cmp_eq_u32 s27, 2
s_cbranch_scc1 L_fzg
s_cmp_lg_u32 s27, 0
s_cbranch_scc1 L_fzd
s_lshl_b32 s29, s17, 3
s_add_u32 s29, s29, s28
s_lshl_b32 s29, s29, 7
s_lshl_b32 s25, s3, 19
s_add_u32 s29, s29, s25
v_lshl_add_u32 v40, v40, 13, v41
s_mov_b32 s28, 65536
""")
    srd(8, P_WQ, 512*4096*2)
    a(f"""
s_branch L_fzl
L_fzg:
s_cmp_ge_u32 s28, 7
s_cbranch_scc1 L_fzd
s_and_b32 s29, s17, 3
s_mul_i32 s29, s29, 7
s_add_u32 s29, s29, s28
s_lshl_b32 s29, s29, 7
s_mul_i32 s25, s3, {64*3584}
s_add_u32 s29, s29, s25
v_mul_u32_u24 v40, 3584, v40
v_add_u32 v40, v40, v41
s_movk_i32 s28, {8*3584}
s_cmp_lt_u32 s17, 4
s_cselect_b32 s8, s{P_WG}, s{P_WU}
s_cselect_b32 s9, s{P_WG+1}, s{P_WU+1}
s_mov_b32 s10, {512*1792*2}
s_mov_b32 s11, 0x00020000
L_fzl:
""")
    for t in range(8):
        a(f"s_add_u32 m0, s24, {1024*t}\ns_nop 0\nbuffer_load_dwordx4 v40, s[8:11], s29 offen nt lds\ns_add_u32 s29, s29, s28")
    a(f"""
s_add_u32 m0, s24, 8192
L_fzd:
""")
srd(4, P_K, 128 << 20)
if OPT["fine"] in (6, 7): a("s_memrealtime s[48:49]")
nload = [0]
def wxk(k): return [0, k & 7, 2*(k & 1), (k*3) & 7, (k & 1)*2 + (k >> 1 & 1) + (k & 4)][OPT["wx"]]
def pre_load(k):
    if k:
        a(f"""
s_xor_b32 s26, s3, {wxk(k)}
s_sub_u32 s26, s26, s3
s_add_u32 s26, s26, s22
s_add_u32 s26, s26, {64*k}
""" if OPT["wx"] else f"s_add_u32 s26, s22, {8*NM*k}")
        a(f"""
s_and_b32 s26, s26, 511
{trn("s26")}
s_lshl_b32 s26, s26, 12
s_add_u32 s26, s26, s21
""")
        if k >= 8: a(f"s_add_u32 s26, s26, {1 << 24}")
    if OPT["pp"] and k >= OPT["pp0"]:
        if k == OPT["pp0"]: a(f"s_mul_i32 s99, s3, {OPT['pps']}\ns_add_u32 s98, s98, s99\ns_movk_i32 s99, 2000")
        a(f"""
L_pp{k}:
s_memrealtime s[100:101]
s_sub_u32 s99, s99, 1
s_cbranch_scc1 L_ppd{k}
s_waitcnt lgkmcnt(0)
s_sub_u32 s100, s100, s98
s_cmp_ge_i32 s100, {OPT['ppo'] + (k - OPT['pp0'] + 1)*OPT['pp']}
s_cbranch_scc1 L_ppd{k}
s_sleep 2
s_branch L_pp{k}
L_ppd{k}:
""")
    if k == 1: a("s_mov_b32 m0, s24")
    if k == 2: a("s_add_u32 m0, s24, 4096")
    for i in range(4):
        if nload[0] == NPRE:
            if OPT["fine"] in (6, 7): a("s_memrealtime s[50:51]")
            setup_rest()
            if OPT["fine"] == 6: a("s_waitcnt vmcnt(0)\ns_memrealtime s[54:55]")
            a("s_waitcnt lgkmcnt(0)\ns_barrier")
            if OPT["fine"] == 6: a("s_memrealtime s[56:57]")
            if OPT["fine"] == 7: a("s_memrealtime s[54:55]")
        if OPT["fine"] == 7 and nload[0] == 16: a("s_memrealtime s[56:57]")
        if nload[0] >= Wp: a(f"s_waitcnt vmcnt({Wp-1})")
        if LOG and nload[0] >= Wp + 3 and (nload[0] - Wp) % 4 == 3:
            pl = [62, 64, 66, 94, 98, 100][(nload[0] - Wp)//4]
            a(f"s_memrealtime s[{pl}:{pl+1}]")
        if k < 3:
            a(f"buffer_load_dwordx4 v{KA+i}, s[4:7], s26 offen offset:{i*1024} nt lds")
        else:
            r = ST0 + 16*(k-3) + 4*i
            a(f"buffer_load_dwordx4 v[{r}:{r+3}], v{KA+i}, s[4:7], s26 offen offset:{i*1024} nt")
        nload[0] += 1
def setup_rest():
    srd(8, P_V, 128 << 20)
    srd(12, P_WS, WS_BYTES)
    for e in range(2):
        a(f"""
v_lshrrev_b32 v{T2}, 1, v{T0}
v_add_u32 v{X0}, {4*e}, v{T1}
v_xor_b32 v{T2}, v{T2}, v{X0}
v_lshlrev_b32 v{T2}, 5, v{T2}
v_and_b32 v{X0}, 1, v{T0}
v_lshl_add_u32 v{T2}, v{X0}, 4, v{T2}
v_lshl_add_u32 v{VA+e}, v{T1}, 8, v{T2}
""")
    a(f"""
s_mov_b32 s79, {hex(SENT)}
v_mov_b32 v{S}, s79
v_mov_b32 v{S+1}, s79
v_mov_b32 v{S+2}, s79
v_mov_b32 v{S+3}, s79
s_mul_i32 s25, s3, {2048 if HR else NSLOT*16}
s_add_u32 s25, s25, {SB}
v_lshl_add_u32 v{T2}, v0, 4, s25
""")
    for k in range(2 if HR else NSLOT//64): a(f"ds_write_b128 v{T2}, v[{S}:{S+3}] offset:{1024*k}")
    a(f"""
v_lshrrev_b32 v{X0}, 2, v0
v_and_b32 v{X0+1}, 7, v{X0}
v_and_b32 v{X0+2}, 3, v0
v_lshlrev_b32 v{X0+2}, 3, v{X0+2}
v_lshl_add_u32 v{SA}, v{T1}, 5, v{X0+2}
v_add_u32 v{SA}, {SB}, v{SA}
v_lshl_add_u32 v{X0+2}, v{X0}, 8, v{X0+2}
""")
    for dt in range(8):
        a(f"v_xor_b32 v{X0+3}, {dt}, v{X0+1}\nv_lshl_add_u32 v{VR+dt}, v{X0+3}, 5, v{X0+2}")
    a(f"""
v_cmp_gt_u32 s[70:71], 8, v{T0}
v_mov_b32 v{M_}, {f32(-1e30)}
v_mov_b32 v{L_}, 0
v_mov_b32 v{NINF}, {f32(LOG2E*1e30) if FS_ else "0xff80ff80"}
{"s_mov_b32 s68, 0x000f000f" + chr(10) + "s_mov_b32 s69, s68" if FS_ else ""}
v_mov_b32 v{ZR}, 0
s_mov_b32 s58, {f32(SCALE)}
s_mov_b32 s59, {f32(LOG2E)}
s_mov_b32 s31, {f32(-LOG2E)}
v_mov_b32 v{ONE}, 1
v_mov_b32 v{FL}, {TK}
v_mov_b32 v{TKA}, {TK}
s_mov_b32 s78, {T1B}
s_mov_b32 s96, 0
s_mov_b32 s60, s24
s_add_u32 s61, s24, 4096
s_add_u32 s72, s24, 8192
s_lshl_b32 s73, s3, 7
s_xor_b32 s27, s73, {1024 + 128*wxk(1)}
s_xor_b32 s28, s73, {2048 + 128*wxk(2)}
""")
    tag_consts(SEL)
    for r in range(O, min(O+32, ST0)): a(f"v_mov_b32 v{r}, 0")
    for r in range(16): a(f"v_mov_b32 v{Q+r}, 0")
for k in range(NSU): pre_load(k)
a(f"""
v_lshlrev_b32 v{T2}, 4, v{T1}
v_lshl_add_u32 v{T2}, v{T0}, 8, v{T2}
v_add_u32 v{T2}, {Q_LDS}, v{T2}
s_mov_b32 s76, {SPIN*16}
""")
a.label("L_qw")
a(f"""
ds_read_b32 v{T}, v{FL} offset:4
s_waitcnt lgkmcnt(0)
v_cmp_ne_u32 vcc, 1, v{T}
""")
spin_tail("L_qw", "L_qwdone", sleep=1)
stamp(1)
CM4 = "s_mov_b32 exec_lo, 0x000f000f\ns_mov_b32 exec_hi, 0x000f000f" if OP else "s_mov_b64 exec, s[70:71]"
a(CM4)
for j in range(4): a(f"ds_read_b128 v[{Q+4*j}:{Q+4*j+3}], v{T2} offset:{j*64}")
a("s_mov_b64 exec, -1")

nlab = [0]
def ticket_rd():
    a(f"s_mov_b64 exec, 1\nds_add_rtn_u32 v{TE}, v{TKA}, v{ONE}\ns_mov_b64 exec, -1")
def ticket_use():
    a(f"""
v_readfirstlane_b32 s25, v{TE}
s_and_b32 s75, s25, 1
s_lshr_b32 s25, s25, 1
{"s_lshl2_add_u32 s25, s25, s78" if FS_ else "s_lshl_b32 s25, s25, 2" + chr(10) + "s_add_u32 s25, s25, s78"}
v_mov_b32 v{TA}, s25
""")
def entry_rd():
    a(f"ds_read_b32 v{TE}, v{TA}")
def dmask(d):
    a(f"""
s_andn2_b32 s25, {d}, 127
v_add_u32 v{T2}, s25, v{SA}
""" + ("" if FS_ else f"""
s_and_b32 s25, {d}, 4
s_lshl_b32 s68, 0x000f000f, s25
s_mov_b32 s69, s68
"""))
def kstep(sb, d, mid=None):
    for j in range(4): a(f"v_add_u32 v{KF+4*j}, {sb}, v{KR+j}\nds_read_b128 v[{KF+4*j}:{KF+4*j+3}], v{KF+4*j}")
    dmask(d)
    if mid:
        a("s_waitcnt lgkmcnt(4)"); mid()
    for j in range(4):
        c = "0" if j == 0 else f"v[{S}:{S+3}]"
        a(f"s_waitcnt lgkmcnt({3-j})")
        a(f"v_mfma_f32_16x16x32_bf16 v[{S}:{S+3}], v[{KF+4*j}:{KF+4*j+3}], v[{Q+4*j}:{Q+4*j+3}], {c}")
    for k in range(2): a(f"v_cvt_pk_bf16_f32 v{T+k}, v{S+2*k}, v{S+2*k+1}")
    for k in range(2):
        a(f"v_lshlrev_b32 v{S+2*k}, 16, v{T+k}\nv_and_b32 v{S+2*k+1}, 0xffff0000, v{T+k}")
    for k in range(4): a(f"v_mul_f32 v{S+k}, s58, v{S+k}")
    for k in range(2): a(f"v_cvt_pk_bf16_f32 v{PF+k}, v{S+2*k}, v{S+2*k+1}")
    a(f"s_mov_b64 exec, s[68:69]\nds_write_b64 v{T2}, v[{PF}:{PF+1}]\ns_mov_b64 exec, -1")
ool = []
def soft(skip=None):
    nlab[0] += 1
    n = nlab[0]
    a(f"""
L_sr{n}:
v_cmp_eq_u32 vcc, s79, v{PF}
v_cmp_eq_u32 s[74:75], s79, v{PF+1}
""" if False else f"""
L_sr{n}:
v_cmp_eq_u32 vcc, s79, v{PF}
s_cbranch_vccnz {skip or f"L_ss{n}"}
v_cmp_eq_u32 vcc, s79, v{PF+1}
s_cbranch_vccnz {skip or f"L_ss{n}"}
L_sg{n}:
{"" if FS_ else f"v_cndmask_b32 v{T}, v{NINF}, v{PF}, s[68:69]"}
{"" if FS_ else f"v_cndmask_b32 v{T+1}, v{NINF}, v{PF+1}, s[68:69]"}
""")
    if not skip: ool.append(f"""
L_ss{n}:
s_sub_u32 s76, s76, 1
s_cmp_le_i32 s76, 0
s_cbranch_scc1 L_sg{n}
ds_read_b64 v[{PF}:{PF+1}], v{T2}
s_waitcnt lgkmcnt(0)
s_branch L_sr{n}
""")
    for k in range(2):
        q_ = (PF if FS_ else T) + k
        a(f"v_lshlrev_b32 v{S+2*k}, 16, v{q_}\nv_and_b32 v{S+2*k+1}, 0xffff0000, v{q_}")
    a(f"""
v_max3_f32 v{T}, v{S}, v{S+1}, v{S+2}
v_max3_f32 v{T}, v{T}, v{S+3}, v{M_}
{f"v_cmp_gt_f32 vcc, v{T}, v{M_}" + chr(10) + f"s_cbranch_vccz L_nr{n}" if FS_ else ""}
v_mov_b32 v{T+1}, v{T}
v_permlane16_swap_b32 v{T}, v{T+1}
v_max_f32 v{T}, v{T}, v{T+1}
v_mov_b32 v{T+1}, v{T}
v_permlane32_swap_b32 v{T}, v{T+1}
v_max_f32 v{T}, v{T}, v{T+1}
{"" if FS_ else f"v_cmp_gt_f32 vcc, v{T}, v{M_}" + chr(10) + f"s_cbranch_vccz L_nr{n}"}
v_sub_f32 v{T+1}, v{M_}, v{T}
v_mul_f32 v{T+1}, s59, v{T+1}
v_exp_f32 v{T+1}, v{T+1}
v_mov_b32 v{M_}, v{T}
{f"v_mul_f32 v{NINF}, s31, v{T}" if FS_ else ""}
v_mul_f32 v{L_}, v{L_}, v{T+1}
""")
    for r in range(32): a(f"v_mul_f32 v{O+r}, v{O+r}, v{T+1}")
    a.label(f"L_nr{n}")
    if not FS_: a(f"v_mul_f32 v{T+1}, s31, v{M_}")
    for k in range(4): a(f"v_fma_f32 v{S+k}, v{S+k}, s59, v{NINF if FS_ else T+1}")
    for k in range(4): a(f"v_exp_f32 v{S+k}, v{S+k}")
    for k in range(2): a(f"v_cvt_pk_bf16_f32 v{PF+k}, v{S+2*k}, v{S+2*k+1}")
    a(f"""
v_add_f32 v{T}, v{S}, v{S+1}
v_add_f32 v{T+1}, v{S+2}, v{S+3}
v_add_f32 v{T}, v{T}, v{T+1}
v_add_f32 v{L_}, v{L_}, v{T}
""")
def v_rd(sb):
    for dt in range(8): a(f"v_add_u32 v{KF+2*dt}, {sb}, v{VR+dt}\nds_read_b64_tr_b16 v[{KF+2*dt}:{KF+2*dt+1}], v{KF+2*dt}")
def pv(dt):
    a(f"v_mfma_f32_16x16x16_bf16 v[{O+4*dt}:{O+4*dt+3}], v[{KF+2*dt}:{KF+2*dt+1}], v[{PF}:{PF+1}], v[{O+4*dt}:{O+4*dt+3}]")
def vstep(sb, d, mid=None):
    dmask(d)
    a(f"ds_read_b64 v[{PF}:{PF+1}], v{T2}")
    v_rd(sb)
    a("s_waitcnt lgkmcnt(8)")
    if mid: mid()
    soft()
    a("s_waitcnt lgkmcnt(0)")
    for dt in range(8): pv(dt)
X = STG
VNS = X + 27; FLG = X + 26
F3ADDR = f"""
s_lshl_b32 s77, s16, 2
s_add_u32 s77, s77, {F1}
s_lshr_b32 s22, s16, {OPT['rsh']}
s_lshl_b32 s22, s22, 10
s_add_u32 s22, s22, {F1}
s_lshr_b32 s95, s3, 1
s_lshl_b32 s95, s95, 3
s_lshr_b32 s25, s16, 5
s_add_u32 s95, s95, s25
s_lshl_b32 s95, s95, 5
s_add_u32 s95, s95, s22
""" if OPT["f3"] else ""
FLIM = 1 << 20
COL = OPT["col"]
COL1 = f"""
v_lshrrev_b32 v{X+11}, 2, v{T0}
v_lshlrev_b32 v{X+11}, 12, v{X+11}
v_lshl_add_u32 v{X+25}, v{X+13}, 4, v{X+11}
v_lshl_add_u32 v{X+11}, v{T1}, 13, v{X+25}
""" if COL else f"""v_lshlrev_b32 v{X+11}, 4, v{T0}
v_lshl_add_u32 v{X+11}, v{T1}, 13, v{X+11}
"""
COL2 = "" if COL else f"""v_lshrrev_b32 v{X+25}, 3, v{T0}
v_lshlrev_b32 v{X+25}, 13, v{X+25}
v_lshl_add_u32 v{X+25}, v{X+3}, 4, v{X+25}
"""
FU = OPT["fful"]
FADDR = f"""
s_and_b32 s94, s29, 31
s_lshl_b32 s94, s94, 6
s_lshr_b32 s25, s29, 5
s_add_u32 s94, s94, s25
s_mul_i32 s94, s94, {FST}
s_lshl_b32 s25, s17, 3
s_add_u32 s94, s94, s25
s_add_u32 s94, s94, {FG}
s_andn2_b32 s95, s16, {[0, 7, 3, 1, 0][OPT['fone']]}
s_lshl_b32 s95, s95, 3
s_add_u32 s95, s95, s3
s_mul_i32 s95, s95, {FST}
s_add_u32 s95, s95, {FG}
v_mul_u32_u24 v{X+30}, {8*FST}, v0
""" if not FU else f"""
s_lshl_b32 s94, s29, 3
s_add_u32 s94, s94, s17
s_mul_i32 s94, s94, {FU}
s_add_u32 s94, s94, {FG}
s_lshl_b32 s95, s3, 5
s_add_u32 s95, s95, s18
s_mul_i32 s95, s95, {8*FU}
s_lshl_b32 s25, s17, 3
s_add_u32 s95, s95, s25
s_add_u32 s95, s95, {FG}
v_mul_u32_u24 v{X+30}, {FU}, v0
"""
FSA, FPA = (X+1, X+30) if FU else (X+30, X+1)
PH = OPT["ph"]
if PH: FPA = X + 6
PLY = OPT["ply"]
if OPT["fone"] == 4:
    FADDR = f"""
s_mul_i32 s94, s29, {FST}
s_lshl_b32 s25, {MEM}, 3
s_add_u32 s94, s94, s25
s_add_u32 s94, s94, {FG + OPT['fgo']}
s_lshl_b32 s95, s3, 5
{"s_lshl2_add_u32 s33, s17, s20" if LH else ""}
s_add_u32 s95, s95, {"s33" if LH else "s18"}
{"s_andn2_b32 s95, s95, 1" if CR else ""}
{f"s_mul_i32 s95, s95, {OPT['fr']}" + chr(10) + f"s_and_b32 s25, s17, {OPT['fr'] - 1}" + chr(10) + "s_add_u32 s95, s95, s25" if OPT['fr'] > 1 else ""}
s_mul_i32 s95, s95, {FST}
s_add_u32 s95, s95, {FG + OPT['fgo']}
v_mov_b32 v{X+30}, 0
"""
PHA = f"""v_and_b32 v{X+10}, 7, v0
v_lshl_add_u32 v{X+10}, v{X+10}, 2, v{T1}
v_lshrrev_b32 v{X+5}, 3, v{T0}
v_lshl_add_u32 v{X+10}, v{X+10}, 1, v{X+5}
v_lshlrev_b32 v{X+10}, 2, v{X+10}
v_lshlrev_b32 v{X+5}, 2, v0
v_and_b32 v{X+6}, 1, v0
v_lshl_add_u32 v{X+6}, v{X+6}, {3 if CR else 2}, v{T1}
v_lshlrev_b32 v{X+6}, 3, v{X+6}
v_and_b32 v{X+8}, 12, v{X+5}""" if PH else f"""v_bfe_u32 v{X+10}, v0, 4, 1
v_lshlrev_b32 v{X+10}, 2, v{X+10}
v_lshl_add_u32 v{X+10}, v{T0}, 4, v{X+10}
v_lshl_add_u32 v{X+10}, v{X+4}, 3, v{X+10}
v_and_b32 v{X+31}, 1, v0
v_lshlrev_b32 v{X+31}, 4, v{X+31}"""
PHB = f"""s_mov_b32 s25, 0x9e3779b1
v_mul_lo_u32 v{X+31}, v{VNS}, s25
v_lshrrev_b32 v{X+8}, v{X+8}, v{X+31}
v_lshrrev_b32 v{X+31}, v{T0}, v{X+31}""" if PH else f"v_lshrrev_b32 v{X+31}, v{X+31}, v{VNS}"
PLA = f"""s_lshr_b32 s74, s3, 1
s_lshl_b32 s74, s74, 3
s_lshr_b32 s25, s18, 2
s_add_u32 s74, s74, s25
s_lshl_b32 s74, s74, 6
s_and_b32 s25, s3, 1
s_lshl_b32 s25, s25, 2
s_add_u32 s74, s74, s25
s_and_b32 s25, s18, 3
s_add_u32 s74, s74, s25
s_lshl_b32 s74, s74, 8
s_add_u32 s74, s74, {PART}
s_add_u32 s33, s74, 8192
v_lshlrev_b32 v{X+7}, 4, v{T0}
v_lshl_add_u32 v{X+7}, v{T1}, 11, v{X+7}""" if PLY else f"""s_lshl_b32 s74, s3, 5
s_add_u32 s74, s74, {"s33" if LH else "s18"}
{"s_andn2_b32 s74, s74, 1" if CR else ""}
s_lshl_b32 s74, s74, {11 if PH else 12}
s_add_u32 s74, s74, {PART}
v_lshlrev_b32 v{X+7}, 4, v0"""
def tail_addr():
    a(f"""
v_mul_u32_u24 v{X}, {CST}, v{T0}
v_lshl_add_u32 v{X}, v{T1}, 4, v{X}
v_add_u32 v{X}, s24, v{X}
v_lshlrev_b32 v{X+1}, 3, v0
s_lshl_b32 s25, s3, 3
s_add_u32 s25, s25, {MLT}
v_lshl_add_u32 v{X+15}, v0, 6, s25
v_mov_b32 v{X+21}, {MISC}
ds_read_b32 v{VNS}, v{X+21} offset:96
s_lshr_b32 s29, s3, 2
{"" if XB else "s_lshl_b32 s29, s29, 3"}
s_add_u32 s29, s29, s30
s_lshl_b32 s29, s29, 2
s_and_b32 s25, s3, 3
s_add_u32 s29, s29, s25
s_lshl_b32 s62, {"s16" if PLY else "s29"}, {11 if PH else 12}
{US("s25") if OP else ""}
s_lshl_b32 s25, {"s25" if OP else "s3" if PLY else MEM}, {8 if PH else 9}
s_add_u32 s62, s62, s25
s_add_u32 s62, s62, {PART}
{FADDR}
v_and_b32 v{X+3}, 31, v0
v_lshrrev_b32 v{X+4}, 5, v0
v_lshlrev_b32 v{X+2}, 4, v{X+3}
{PHA}
v_mul_u32_u24 v{X+14}, {4*RING}, v{X+4}
v_add_u32 v{X+2}, v{X+14}, v{X+2}
s_mul_i32 s25, s3, {CST}
v_add_u32 v{X+2}, s25, v{X+2}
v_and_b32 v{X+3}, 7, v0
v_lshlrev_b32 v{X+4}, 2, v{X+4}
v_xor_b32 v{X+4}, v{X+4}, v{X+3}
s_lshl_b32 s25, s3, {5 if BW else 6}
s_add_u32 s25, s25, {WTL if BW else MLT}
v_lshl_add_u32 v{X+4}, v{X+4}, {2 if BW else 3}, s25
{PLA}
v_lshrrev_b32 v{X+9}, 2, v{T0}
v_lshl_add_u32 v{X+9}, v{T1}, 3, v{X+9}
v_lshlrev_b32 v{X+9}, 7, v{X+9}
v_and_b32 v{X+13}, 3, v0
v_lshl_add_u32 v{X+9}, v{X+13}, 3, v{X+9}
s_and_b32 s25, s3, 3
s_lshl_b32 s25, s25, 5
s_add_u32 s25, s25, {TB if CR else WO_LDS}
{"s_and_b32 s29, s3, 4" + chr(10) + "s_lshl_b32 s64, s29, 12" + chr(10) + "s_add_u32 s25, s25, s64" if CR else ""}
v_add_u32 v{X+9}, s25, v{X+9}
s_mul_i32 s25, s3, {OST}
s_add_u32 s25, s25, {SB if CR else O_LDS}
v_add_u32 v{X+10}, s25, v{X+10}
v_mul_u32_u24 v{X+12}, {OST}, v{T0}
v_lshl_add_u32 v{X+12}, v{T1}, 4, v{X+12}
{f"s_mul_i32 s25, s29, {2*OST}" + chr(10) + f"s_add_u32 s25, s25, {SB}" if CR else ""}
v_add_u32 v{X+12}, {"s25" if CR else O_LDS}, v{X+12}
{COL1}
v_lshl_add_u32 v{X+21}, v{X+13}, 3, v{X+21}
s_lshl_b32 s25, s3, 8
s_add_u32 s25, s25, {WD_LDS}
v_lshl_add_u32 v{X+24}, v{T0}, 4, s25
{COL2}
s_lshl_b32 s29, s17, 17
s_add_u32 s29, s29, {CPA}
s_lshl_b32 s25, s18, 7
s_add_u32 s65, s29, s25
s_lshl_b32 s25, s3, 14
s_add_u32 s67, s65, s25
s_add_u32 s67, s67, {64 if COL else 4096}
s_add_u32 s63, s67, {CPB-CPA}
{"s_andn2_b32 s65, s65, 128" + chr(10) + "s_lshl_b32 s25, s3, 5" + chr(10) + "s_and_b32 s25, s25, 128" + chr(10) + "s_add_u32 s65, s65, s25" + chr(10) + "s_and_b32 s25, s3, 3" if CR else ""}
{"s_and_b32 s65, s18, 7" + chr(10) + "s_lshl_b32 s65, s65, 17" + chr(10) + "s_lshl_b32 s25, s33, 7" + chr(10) + "s_add_u32 s65, s65, s25" + chr(10) + f"s_add_u32 s65, s65, {CPB}" if LH else ""}
s_lshl_b32 s25, {"s25" if CR else "s3"}, 15
s_add_u32 s65, s65, s25
s_add_u32 s64, s65, {CPB-CPA}
v_lshlrev_b32 v{X+23}, 10, v{X+13}
v_lshl_add_u32 v{X+23}, v{T1}, 1, v{X+23}
v_lshrrev_b32 v{X+14}, 2, v0
v_lshlrev_b32 v{X+14}, 7, v{X+14}
v_lshl_add_u32 v{X+13}, v{X+13}, 4, v{X+14}
s_lshr_b32 s66, s18, 1
s_lshl_b32 s99, s66, 3
s_lshl_b32 s66, s66, 13
s_add_u32 s66, s66, s29
s_and_b32 s25, s18, 1
s_lshl_b32 s29, s25, {12 if COL else 6}
s_add_u32 s66, s66, s29
s_add_u32 s98, s66, {64 if COL else 4096 if OPT["bpa"] else 4096 + CPB - CPA}
{f"s_add_u32 s66, s66, {CPB-CPA}" if LH else ""}
s_lshl_b32 s25, s25, 12
s_add_u32 s99, s99, s25
s_lshl_b32 s25, s17, 7
s_add_u32 s99, s99, s25
s_waitcnt lgkmcnt(0)
{PHB}
""")
EF = OPT["ef"]; KL = OPT["kl"]
if KL:
    a(f"""
s_mov_b64 exec, 1
ds_add_rtn_u32 v{TE}, v{FL}, v{ONE} offset:16
s_mov_b64 exec, -1
s_waitcnt lgkmcnt(0)
v_readfirstlane_b32 s23, v{TE}
s_cmp_ge_u32 s23, {8 - KL}
s_cselect_b32 s25, 20, 0
v_add_u32 v{TKA}, s25, v{FL}
""")
a(f"s_mov_b32 s76, {SPIN*64}\ns_waitcnt vmcnt({4*NSU-4})\ns_mov_b32 s97, 0")
if EF: a("s_mov_b32 s101, 2")
ticket_rd()
kstep("s72", "s73", mid=ticket_use)
entry_rd()
if KL:
    a(f"""
s_cmp_lt_u32 s23, {8 - KL}
s_cbranch_scc1 L_loop2
s_waitcnt lgkmcnt(0)
v_mov_b32 v{TE}, 512
""")
PS = OPT["ps"]
if PS:
    a(f"""
L_loop:
s_cmp_eq_u32 s96, 2
s_cbranch_scc1 L_flush
s_branch L_loop2
L_pre:
s_bitcmp1_b32 s27, 0
s_cbranch_scc0 L_loop2
""")
    dmask("s27")
    a(f"ds_read_b64 v[{PF}:{PF+1}], v{T2}\ns_waitcnt lgkmcnt(0)")
    soft("L_loop2")
    a("s_or_b32 s27, s27, 2")
else: a(f"""
L_loop:
s_cmp_eq_u32 s96, {"s101" if EF else 2}
s_cbranch_scc1 L_flush
""")
a(f"""
L_loop2:
s_waitcnt vmcnt(4) lgkmcnt(0)
{"s_memrealtime s[48:49]" if LOG else ""}
L_eretry:
v_readfirstlane_b32 s23, v{TE}
s_mov_b32 m0, s72
s_cmp_eq_u32 s23, -1
s_cbranch_scc1 L_espin
s_bitcmp1_b32 s23, 9
s_cbranch_scc1 L_special
{"s_lshl1_add_u32 s26, s23, s75" if FS_ else "s_lshl_b32 s26, s23, 1" + chr(10) + "s_add_u32 s26, s26, s75"}
s_add_u32 s26, s26, s77
s_and_b32 s26, s26, 511
{trn("s26")}
s_lshl_b32 s26, s26, 12
s_add_u32 s26, s26, s21
{"" if FS_ else "s_and_b32 s25, s23, 256"}
{"" if FS_ else f"s_lshl_b32 s29, s25, {13 if XB else 16}"}
{"" if FS_ else "s_add_u32 s26, s26, s29"}
s_bitcmp1_b32 s23, 15
s_cbranch_scc1 L_isv
""")
for i in range(4): a(f"buffer_load_dwordx4 v{KA+i}, s[4:7], s26 offen offset:{i*1024} nt lds")
a("s_branch L_isd\nL_isv:")
for i in range(4): a(f"buffer_load_dwordx4 v{VA+(i&1)}, s[8:11], s26 offen offset:{i*1024} nt lds")
a(f"""
L_isd:
{"s_memrealtime s[50:51]" if LOG else ""}
{"" if FS_ else "s_lshr_b32 s25, s25, 6"}
s_bfe_u32 s73, s23, 0x1000f
{"" if FS_ else "s_or_b32 s73, s73, s25"}
s_lshr_b32 s23, s23, 16
{"s_lshl1_add_u32 s23, s23, s75" if FS_ else "s_lshl_b32 s23, s23, 1" + chr(10) + "s_add_u32 s23, s23, s75"}
s_lshl_b32 s23, s23, 7
s_or_b32 s73, s73, s23
L_proc:
""")
ticket_rd()
a("s_bitcmp1_b32 s27, 0\ns_cbranch_scc1 L_pv")
if RV: a("s_bitcmp1_b32 s27, 1\ns_cbranch_scc1 L_null")
kstep("s60", "s27", mid=ticket_use)
a("s_branch L_pd\nL_pv:")
if PS:
    a("s_bitcmp1_b32 s27, 1\ns_cbranch_scc0 L_pv1")
    v_rd("s60")
    a("s_waitcnt lgkmcnt(8)")
    ticket_use()
    if PS == 2: entry_rd()
    for dt in range(8):
        a(f"s_waitcnt lgkmcnt({7-dt+(1 if PS == 2 else 0)})")
        pv(dt)
    if PS == 2: a("s_branch L_pd2")
    a_real = a; a = Asm()
    a.label("L_pv1")
    vstep("s60", "s27", mid=ticket_use)
    a("s_branch L_pd")
    ool.append("\n".join(a.L)); a = a_real
else: vstep("s60", "s27", mid=ticket_use)
a.label("L_pd")
if LOG:
    a(f"""
s_add_u32 s25, s96, 8
s_and_b32 s50, s50, 0xfffffffc
s_and_b32 s51, s73, 1
s_or_b32 s50, s50, s51
s_bitcmp0_b32 s97, 0
s_cbranch_scc1 L_lg1
s_lshl_b64 exec, 1, s25
v_mov_b32 v{T0}, s48
v_mov_b32 v{T1}, s50
s_mov_b64 exec, -1
s_branch L_lg2
L_lg1:
s_cmp_eq_u32 s96, 0
s_cselect_b32 s54, s48, s54
s_cselect_b32 s55, s50, s55
s_mov_b32 s56, s48
s_mov_b32 s57, s50
L_lg2:
""")
entry_rd()
if PS == 2: a.label("L_pd2")
a(f"""
s_mov_b32 s25, s60
s_mov_b32 s60, s61
s_mov_b32 s61, s72
s_mov_b32 s72, s25
s_mov_b32 s27, s28
s_mov_b32 s28, s73
s_add_u32 s96, s96, 1
{"s_cmp_eq_u32 s97, 1" + chr(10) + "s_cbranch_scc1 L_pre" if PS else ""}
s_cmp_lt_u32 s97, 2
s_cbranch_scc1 L_loop
{"s_bitcmp1_b32 s97, 0" if RV else "s_cmp_eq_u32 s97, 3"}
s_cbranch_scc1 L_final
L_flush0:
s_waitcnt vmcnt(0)
L_flush:
s_waitcnt vmcnt(8)
{"s_mov_b32 s101, -1" if EF else ""}
v_lshlrev_b32 v{PF}, 4, v0
v_add_u32 v{TA+1}, s72, v{PF}
s_lshl_b32 s73, s3, 7
""")
for u in range(NST):
    for i in range(4):
        r = ST0 + 16*u + 4*i
        a(f"ds_write_b128 v{TA+1}, v[{r}:{r+3}] offset:{i*1024}")
    a(f"s_xor_b32 s23, s73, {1024*(3+u) + 128*wxk(3+u) + (4 if 3+u >= 8 else 0)}")
    kstep("s72", "s23")
a(f"v_mov_b32 v{ZR}, 0")
for r in range(ST0, O+32): a(f"v_mov_b32 v{r}, 0")
if LOG:
    for n_, pl in enumerate([62, 64, 66, 94, 98, 100]): a(f"v_writelane_b32 v{KF}, s{pl}, {n_}")
    a(f"v_writelane_b32 v{KF}, s80, 6\nv_writelane_b32 v{KF}, s82, 7\nv_writelane_b32 v{KF}, s54, 8\nv_writelane_b32 v{KF}, s56, 9")
    a(f"v_mov_b32 v{KF+1}, 0\nv_writelane_b32 v{KF+1}, s55, 8\nv_writelane_b32 v{KF+1}, s57, 9\nv_cmp_gt_u32 vcc, 10, v0\ns_nop 1\nv_cndmask_b32 v{KF}, 0, v{KF}, vcc")
tail_addr()
if LOG: a(f"v_mov_b32 v{T0}, v{KF}\nv_mov_b32 v{T1}, v{KF+1}")
a(f"""
s_add_u32 s97, s97, 1
s_cmp_eq_u32 s97, 1
s_cbranch_scc1 L_loop2
L_final:
{"s_bitcmp1_b32 s97, 2" + chr(10) + "s_cbranch_scc1 L_pk2" if RV else ""}
s_bitcmp1_b32 s27, 0
s_cbranch_scc1 L_finv
{"s_bitcmp1_b32 s27, 1" + chr(10) + "s_cbranch_scc1 L_fin2" if RV else ""}
s_waitcnt vmcnt(0)
""")
kstep("s60", "s27")
a(f"""
s_branch L_fin2
L_espin:
""" + ("""
s_cmp_lg_u32 s97, 0
s_cbranch_scc1 L_espin2
s_cmp_eq_u32 s96, 0
s_cbranch_scc1 L_flush0
s_branch L_flush
L_espin2:
""" if EF else "") + f"""
s_sub_u32 s76, s76, 1
s_cmp_le_i32 s76, 0
s_cbranch_scc1 L_term
ds_read_b32 v{TE}, v{TA}
s_waitcnt lgkmcnt(0)
s_branch L_eretry
L_special:
{"s_bitcmp1_b32 s23, 1" + chr(10) + "s_cbranch_scc1 L_park" if RV else ""}
s_bitcmp1_b32 s23, 0
s_cbranch_scc0 L_term
v_mov_b32 v{TKA}, {TK+16}
s_mov_b32 s78, {T2B}
""")
ticket_rd()
a("s_waitcnt lgkmcnt(0)")
ticket_use()
a(f"""
s_branch L_espin
L_term:
s_or_b32 s97, s97, 2
v_mov_b32 v{TKA}, {TK+20}
s_branch L_proc
""")
if RV:
    a(f"""
L_park:
s_or_b32 s97, s97, 4
v_mov_b32 v{TKA}, {TK+20}
s_mov_b32 s73, 2
s_branch L_proc
L_pk2:
s_waitcnt vmcnt(0) lgkmcnt(0)
s_mov_b32 s73, 2
s_bitcmp0_b32 s27, 1
s_cbranch_scc1 L_proc
L_pk3:
ds_read_b32 v{TE}, v{FL} offset:16
s_sub_u32 s76, s76, 1
s_cmp_le_i32 s76, 0
s_cbranch_scc1 L_pk4
s_waitcnt lgkmcnt(0)
v_readfirstlane_b32 s25, v{TE}
s_cmp_lg_u32 s25, 0
s_cbranch_scc1 L_pk4
s_sleep {OPT['rvs']}
s_branch L_pk3
L_pk4:
{"s_waitcnt lgkmcnt(0)" + chr(10) + "s_cmp_le_u32 s25, 512" + chr(10) + "s_cbranch_scc1 L_fin2" if OPT["rvl"] else ""}
s_mov_b32 s97, 1
v_mov_b32 v{TKA}, {TK}
s_waitcnt lgkmcnt(0)
s_branch L_proc
L_null:
s_waitcnt lgkmcnt(0)
""")
    ticket_use()
    a("s_branch L_pd")
OOL_AT = len(a.L)
a.label("L_finv")
def fine3(k): pass
dmask("s27")
a(f"ds_read_b64 v[{PF}:{PF+1}], v{T2}\ns_waitcnt lgkmcnt(0)")
soft()
a.label("L_fin2")
if OPT["fine"] in (6, 7): a("s_mov_b32 s4, s80")
AA = STG + 32
CM = AA; AW = AA + 16
R = S; GV = X + 28
a(f"""
v_mov_b32 v{T+1}, v{L_}
v_permlane16_swap_b32 v{L_}, v{T+1}
v_add_f32 v{L_}, v{L_}, v{T+1}
v_mov_b32 v{T+1}, v{L_}
v_permlane32_swap_b32 v{L_}, v{T+1}
v_add_f32 v{L_}, v{L_}, v{T+1}
s_mov_b32 s76, {SPIN*16}
s_mov_b64 exec, 0xff
ds_write_b64 v{X+15}, v[{M_}:{L_}]
s_mov_b64 exec, -1
""")
if OPT["smt"] == 1: a(f"s_load_dwordx8 s[4:11], s[{P_WS}:{P_WS+1}], s95 glc\ns_waitcnt lgkmcnt(0)")
def aw_rd(s_):
    a(f"ds_read_b64_tr_b16 v[{AW+4*s_}:{AW+4*s_+1}], v{X+9} offset:{s_*4096}")
    a(f"ds_read_b64_tr_b16 v[{AW+4*s_+2}:{AW+4*s_+3}], v{X+9} offset:{s_*4096+512}")
def misc_rd():
    if BP1: a(f"s_lshl_b32 s25, s3, 6\ns_add_u32 s25, s25, {FTL}\nv_add_u32 v{Q+6}, s25, v{FPA}\nds_read_b64 v[{Q+4}:{Q+5}], v{Q+6}")
    if OPT["xm"]: a(f"ds_read_b32 v{T}, v{FL} offset:12")
    if not LD: a(f"ds_read_b128 v[{X+16}:{X+19}], v{X+24}")
    if not OPT["lb"]:
        for s_ in range(4): aw_rd(s_)
    a(f"ds_read_b64 v[{GV}:{GV+1}], v{X+21} offset:64")
if not OPT["mlate"]:
    a(f"L_bw:\nds_read_b32 v{T}, v{FL} offset:12")
    misc_rd()
    a(f"s_waitcnt lgkmcnt(0)\nv_cmp_ne_u32 vcc, 1, v{T}")
    spin_tail("L_bw", "L_bwdone", sleep=2)
C = O + 16
def fine2(k):
    if OPT["fine"] == 2: a(f"s_waitcnt vmcnt(0)\ns_memtime s[{[4,6,8,10,48,50,54,56][k]}:{[4,6,8,10,48,50,54,56][k]+1}]\ns_waitcnt lgkmcnt(0)")
def fine(k):
    if OPT["fine"] == 1: a(f"s_memtime s[{[4,6,8,10,48,50,54,56][k]}:{[4,6,8,10,48,50,54,56][k]+1}]" + ("\ns_waitcnt lgkmcnt(0)" if k in (0, 3,) else ""))
for dt in range(8): a(f"v_add_u32 v{KF+2*dt}, s60, v{VR+dt}")
if PH: a("s_mov_b32 s68, 0x00010001\ns_mov_b32 s69, 0x00010001")
EB = OPT["eb"]
def red8(r, op, src=None):
    for m in ("quad_perm:[1,0,3,2]", "quad_perm:[2,3,0,1]", "row_half_mirror"):
        q = r if src is None else src
        a(f"{op}_dpp v{r}, v{q}, v{q} {m} row_mask:0xf bank_mask:0xf")
        src = None
def flag_st():
    a(f"""
s_mov_b64 exec, {hex((1 << (FU//8)) - 1) if FU else [0xff, 1, 0x11, 0x55, 1][OPT['fone']]}
buffer_store_dwordx2 v[{FLG}:{FLG+1}], v{FSA}, s[12:15], s94 offen sc1
s_mov_b64 exec, -1
""")
def wts1():
    red8(T, "v_max_f32", CM)
    a(f"""
v_sub_f32 v{CM}, v{CM}, v{T}
v_mul_f32 v{CM}, s59, v{CM}
v_exp_f32 v{CM}, v{CM}
v_mul_f32 v{T+1}, v{CM}, v{CM+1}
""")
    red8(T+1, "v_add_f32")
    a(f"""
v_max_f32 v{T+1}, {f32(1e-30)}, v{T+1}
v_log_f32 v{T+2}, v{T+1}
v_rcp_f32 v{T+3}, v{T+1}
""")
def wts2():
    a(f"""
v_fma_f32 v{FLG}, v{T}, s59, v{T+2}
v_perm_b32 v{FLG}, v{FLG}, v{VNS}, s{SEL}
""")
if EB:
    a(f"s_waitcnt lgkmcnt(0)\ns_barrier\nds_read_b64 v[{CM}:{CM+1}], v{X+4}\ns_waitcnt lgkmcnt(0)")
    wts1(); wts2(); flag_st()
LC = OPT["lf"] == 1 or OPT["wa"] and not OPT["nb"]
if LC: a("s_mov_b64 exec, 1")
a(f"s_mov_b32 s76, {SPIN}\ns_waitcnt vmcnt({1 if EB else 0})")
if LC: a(f"ds_add_u32 v{FL}, v{ONE} offset:24\ns_mov_b64 exec, -1")
fine3(3)
fine(0)
if LOG: a(f"s_memrealtime s[48:49]\ns_add_u32 s25, s96, 8\ns_waitcnt lgkmcnt(0)\ns_lshl_b64 exec, 1, s25\nv_mov_b32 v{T0}, s48\ns_mov_b64 exec, -1")
a("s_bitcmp1_b32 s27, 0\ns_cbranch_scc0 L_fin3")
for dt in range(8): a(f"ds_read_b64_tr_b16 v[{KF+2*dt}:{KF+2*dt+1}], v{KF+2*dt}")
for dt in range(8):
    a(f"s_waitcnt lgkmcnt({7-dt})")
    pv(dt)
a.label("L_fin3")
stamp(2)
fine(1)
a(CM4)
for dt in range(8): a(f"ds_write_b128 v{X}, v[{O+4*dt}:{O+4*dt+3}] offset:{dt*64}")
NB = OPT["nb"]
if NB:
    assert OPT["wa"] and OPT["lf"] and OPT["so"] and not OPT["wg"] and BW and OP
    a(f"s_mov_b64 exec, 1\nds_add_u32 v{FL}, v{ONE} offset:28")
a("s_mov_b64 exec, -1")
if OPT["tcw"]:
    a(f"""
s_cmp_lg_u32 s3, {OPT['fin']}
s_cbranch_scc1 L_ntc
v_lshlrev_b32 v{T}, 7, v0
{"s_mov_b32 exec_hi, 0" if OPT["tcw"] == 1 else ""}
buffer_load_dword v{AA+4}, v{T}, s[12:15], s66 offen {['', 'sc1', 'nt'][OPT['tpol']]}
s_mov_b64 exec, -1
L_ntc:
""")
EP = OPT["ep"]
if EP: a(f"s_mov_b32 s22, {0x10001 if OP else 0x30003}\ns_mov_b32 s23, s22\nv_mov_b32 v{Q+4}, v{VNS}\nv_mov_b32 v{Q+5}, 0\nv_mov_b32 v{Q+6}, v{VNS}\nv_mov_b32 v{Q+7}, 0")
def ep_poll():
    a(f"""
s_mov_b64 exec, s[22:23]
buffer_atomic_cmpswap_x2 v[{Q+4}:{Q+7}], v{FPA}, s[12:15], s95 offen sc0 sc1
s_mov_b64 exec, -1
""")
SO = OPT["so"]
SMC = f"""
v_readfirstlane_b32 s30, v{VNS}
s_mov_b64 s[22:23], -1
s_movk_i32 s28, 0xff
s_mov_b32 s29, -1
s_mov_b32 s31, s30
"""
SML = f"s_load_dwordx8 s[4:11], s[{P_WS}:{P_WS+1}], s95 glc"
def sm_chk():
    for j in range(4):
        a(f"""
s_xor_b64 s[26:27], s[{4+2*j}:{5+2*j}], s[30:31]
s_and_b64 s[26:27], s[26:27], s[28:29]
s_cselect_b32 {["s24", "s25", "s25", "s33"][j]}, 0, {["0xffff", "0xffff0000"][j & 1]}
""")
        if j & 1: a("s_or_b32 s24, s24, s25" if j == 1 else "s_or_b32 s25, s25, s33")
if SO: a(SMC)
DRY = OPT["aw"] & 2
if DRY:
    a("s_cmp_lt_u32 s96, 24\ns_cbranch_scc1 L_dry0\nL_dryx:")
    ool.append("""L_dry0:
s_waitcnt lgkmcnt(0)
s_branch L_c0
L_dry1:
s_mov_b32 s63, 2
s_branch L_m0
L_dry2:
s_mov_b64 exec, -1
s_branch L_dryx""")
if OP: a("s_cmp_gt_u32 s3, 3")
if NB:
    a(f"s_cbranch_scc1 L_nbw\ns_waitcnt lgkmcnt(8)\nL_cs:\nds_read_b32 v{T}, v{FL} offset:28")
else:
    a("s_waitcnt lgkmcnt(0)")
    fine(2)
    a("s_barrier")
    fine(3)
    if EP == 1: ep_poll()
    if OP: a("s_cbranch_scc1 L_nocmb" + ("0" if SO else ""))
    if DRY: a.label("L_c0")
if LH: a(f"ds_read_b32 v{T}, v{FL} offset:12")
if BW: a(f"ds_read_b32 v{CM}, v{X+4}")
elif not EB: a(f"ds_read_b64 v[{CM}:{CM+1}], v{X+4}")
for k in range(4):
    a(f"ds_read_b128 v[{C+4*k}:{C+4*k+3}], v{X+2} offset:{k*RING}")
if NB: a(f"""
s_waitcnt lgkmcnt(5)
v_readfirstlane_b32 s25, v{T}
s_cmp_lt_u32 s25, 9
s_cbranch_scc1 L_cw1
L_cgo:
""")
def fp_first():
    a(f"""
s_movk_i32 s22, 0xff
s_mov_b32 s23, 0
s_mov_b64 exec, 0xff
v_mov_b32 v{KF}, v{VNS}
v_mov_b32 v{KF+1}, 0
v_mov_b32 v{KF+2}, v{VNS}
v_mov_b32 v{KF+3}, 0
buffer_atomic_cmpswap_x2 v[{KF}:{KF+3}], v{FPA}, s[12:15], s95 offen sc0 sc1
s_mov_b64 exec, -1
""")
if OPT["fp0"] == 1: fp_first()
if EP == 2: ep_poll()
def ofma(k):
    a(f"s_waitcnt lgkmcnt({3-k})")
    if SO and k == 3: a(SML)
    for j in range(4): a(f"v_{'mul' if k == 0 else 'fmac'}_f32_dpp v{R+j}, v{CM}, v{C+4*k+j} row_newbcast:{k} row_mask:0xf bank_mask:0xf")
if not EB and not BW:
    a("s_waitcnt lgkmcnt(4)")
    wts1()
ofma(0)
if not EB and not BW: wts2()
fine2(0)
if not OPT["fo"] and not EB and not BW: flag_st()
fine2(1)
for k in range(1, 4): ofma(k)
fine(4)
a(f"""
v_permlane32_swap_b32 v{R}, v{R+2}
v_permlane32_swap_b32 v{R+1}, v{R+3}
v_add_f32 v{R}, v{R}, v{R+2}
v_add_f32 v{R+1}, v{R+1}, v{R+3}
{"" if BW else f"v_mul_f32 v{R}, v{R}, v{T+3}"}
{"" if BW else f"v_mul_f32 v{R+1}, v{R+1}, v{T+3}"}
""")
if not PH: a(f"""
v_perm_b32 v{R}, v{R}, v{X+31}, s{SEL}
v_perm_b32 v{R+1}, v{R+1}, v{X+31}, s{SEL+1}
""")
if PH:
    a(f"""
v_cvt_pk_f16_f32 v{R}, v{R}, v{R+1}
v_bfi_b32 v{R}, s68, v{X+31}, v{R}
""")
    if PH == 1: a(f"""
v_mov_b32_dpp v{R+1}, v{R} quad_perm:[1,1,1,1] row_mask:0xf bank_mask:0xf
v_mov_b32_dpp v{R+2}, v{R} quad_perm:[2,2,2,2] row_mask:0xf bank_mask:0xf
v_mov_b32_dpp v{R+3}, v{R} quad_perm:[3,3,3,3] row_mask:0xf bank_mask:0xf
s_mov_b32 exec_lo, 0x11111111
s_mov_b32 exec_hi, 0x11111111
buffer_store_dwordx4 v[{R}:{R+3}], v{X+5}, s[12:15], s62 offen sc1
s_mov_b64 exec, -1
""")
    else:
        if EP == 3: ep_poll()
        if DRY: a("s_cbranch_scc1 L_dry1")
        if LH: a(f"v_readfirstlane_b32 s63, v{T}\ns_cmp_eq_u32 s63, 1\ns_cbranch_scc0 L_psg\nbuffer_store_dword v{R}, v{X+5}, s[12:15], s62 offen\ns_branch L_nocmb\nL_psg:")
        a(f"{'buffer_atomic_swap' if OPT['fa'] & 2 else 'buffer_store_dword'} v{R}, v{X+5}, s[12:15], s62 offen {['sc1', 'sc0 sc1', 'sc1 nt', 'sc0 sc1 nt'][OPT['ppl']]}")
elif OPT["px4"]:
    a(f"""
v_mov_b32_dpp v{R+2}, v{R} quad_perm:[1,1,3,3] row_mask:0xf bank_mask:0xf
v_mov_b32_dpp v{R+3}, v{R+1} quad_perm:[1,1,3,3] row_mask:0xf bank_mask:0xf
s_mov_b32 exec_lo, {[0x55555555, 0x55555555, 0x5555, 0][OPT['psm']]}
s_mov_b32 exec_hi, {[0x55555555, 0, 0, 0][OPT['psm']]}
buffer_store_dwordx4 v[{R}:{R+3}], v{X+1}, s[12:15], s62 offen sc1
s_mov_b64 exec, -1
""")
else:
    a(f"buffer_store_dwordx2 v[{R}:{R+1}], v{X+1}, s[12:15], s62 offen sc1")
if OPT["fo"]: flag_st()
if NB: a(f"""
s_branch L_nocmb
L_cw1:
s_sub_u32 s76, s76, 1
s_cmp_eq_u32 s76, 1
s_cbranch_scc1 L_cgo
s_cmp_ge_u32 s25, {OPT['nbt']}
s_waitcnt lgkmcnt(0)
s_cbranch_scc1 L_cs
s_sleep {OPT['nbz']}
ds_read_b32 v{T}, v{FL} offset:28
s_waitcnt lgkmcnt(0)
v_readfirstlane_b32 s25, v{T}
s_branch L_cw1
L_nbw:
ds_read_b32 v{T}, v{FL} offset:28
s_sub_u32 s76, s76, 1
s_cmp_eq_u32 s76, 1
s_cbranch_scc1 L_nocmb0
s_waitcnt lgkmcnt(0)
v_readfirstlane_b32 s25, v{T}
s_cmp_ge_u32 s25, {OPT['nbs']}
s_cbranch_scc1 L_nocmb0
s_sleep 1
s_cmp_ge_u32 s25, {OPT['nbt']}
s_cbranch_scc1 L_nbw
s_sleep {OPT['nbz']}
s_branch L_nbw
L_nocmb0:
{SML}
""")
elif SO: a(f"s_branch L_nocmb\nL_nocmb0:\n{SML}")
if OP: a.label("L_nocmb")
if OPT["mlate"]:
    if OPT["stamps"]: stamp(3); a("" if SO else "s_waitcnt lgkmcnt(0)")
    misc_rd()
    a(f"s_waitcnt lgkmcnt({0 if SO else 1 if OPT['lb'] else 9})")
if SO:
    sm_chk()
    a(f"""
s_and_b64 exec, s[24:25], s[22:23]
s_cbranch_scc0 L_so1
s_andn2_b64 s[22:23], s[22:23], exec
buffer_load_dwordx4 v[{O}:{O+3}], v{X+7}, s[12:15], s74 offen sc1
L_so1:
""")
if OPT["hbn"] != 1: a("s_mov_b64 exec, 0xffff")
if not OPT["mlate"]: stamp(3)
fine(5)
fine2(2)
def st2(lbl, ins, extra=""):
    a(f"""
s_cmp_eq_u32 s63, 1
s_cbranch_scc1 {lbl}n
{"s_cmp_eq_u32 s63, 2" + chr(10) + "s_cbranch_scc1 L_dry2" if DRY and lbl == "L_as" else ""}
{ins} sc1
s_branch {lbl}d
{lbl}n:
{ins}{" nt" if OPT["snt"] & (1 if lbl == "L_bs" else 2) else ""}
{extra}
{lbl}d:
""")
if OPT["xm"]:
    a(f"v_readfirstlane_b32 s63, v{T}")
    if not LD: st2("L_bs", f"buffer_store_dwordx4 v[{X+16}:{X+19}], v{X+25}, s[12:15], s67 offen", f"""
v_not_b32 v{T}, v{VNS}
v_not_b32 v{T+1}, v{VNS}
v_not_b32 v{T+2}, v{VNS}
v_not_b32 v{T+3}, v{VNS}
s_sub_u32 s25, s67, {64 if COL else 4096}
buffer_store_dwordx4 v[{T}:{T+3}], v{X+25}, s[12:15], s25 offen
""" if OPT["prw"] else "")
elif OPT["hbn"] != 1:
    if OPT["bpa"]: a(f"buffer_store_dwordx4 v[{X+16}:{X+19}], v{X+25}, s[12:15], s67 offen")
    if not OPT["hbn"]: a(f"buffer_store_dwordx4 v[{X+16}:{X+19}], v{X+25}, s[12:15], s63 offen sc1")
    fine2(3)
    if OPT["prw"]:
        a(f"""
v_not_b32 v{T}, v{VNS}
v_not_b32 v{T+1}, v{VNS}
v_not_b32 v{T+2}, v{VNS}
v_not_b32 v{T+3}, v{VNS}
s_sub_u32 s25, s67, 4096
buffer_store_dwordx4 v[{T}:{T+3}], v{X+25}, s[12:15], s25 offen
""")
fine2(4)
BB = AA + 8
def bpoll():
    for k in range(2):
        a(f"buffer_load_dwordx4 v[{BB+4*k}:{BB+4*k+3}], v{X+13}, s[12:15], s98 offen offset:{2048*k} sc1")
def bp_early():
    a(f"s_cmp_lg_u32 s3, {OPT['fin']}\ns_cbranch_scc1 L_nobp0\ns_mov_b64 exec, -1")
    bpoll()
    if EP: a(f"s_waitcnt vmcnt({3 if OP else 4})\ns_branch L_epw")
    a.label("L_nobp0")
    if EP: a("s_waitcnt vmcnt(2)")
    if EP and OP: a("s_cmp_le_u32 s3, 3\ns_cbranch_scc1 L_epw\ns_waitcnt vmcnt(1)")
    if EP: a.label("L_epw")
if OPT["bpe"] >= 2: bp_early()
if CR: a(ROLE("s25") + "\ns_cbranch_scc1 L_prod")
PA = O
WT = Q; FS = Q + 4; P = Q + 8; TT = KF
FPOLL = {0: f"""
v_mov_b32 v{FS}, 0
v_mov_b32 v{FS+1}, 0
buffer_atomic_or_x2 v[{FS}:{FS+1}], v{FPA}, s[12:15], s95 offen sc0 sc1
""", 1: f"buffer_load_dwordx2 v[{FS}:{FS+1}], v{FPA}, s[12:15], s95 offen sc1",
2: f"""
v_mov_b32 v{FS}, v{VNS}
v_mov_b32 v{FS+1}, 0
v_mov_b32 v{FS+2}, v{VNS}
v_mov_b32 v{FS+3}, 0
buffer_atomic_cmpswap_x2 v[{FS}:{FS+3}], v{FPA}, s[12:15], s95 offen sc0 sc1
""", 3: f"buffer_load_dwordx2 v[{FS}:{FS+1}], v{FPA}, s[12:15], s95 offen sc0 sc1 nt",
4: f"""
v_mov_b32 v{FS}, 0
v_mov_b32 v{FS+1}, 0
buffer_atomic_umax_x2 v[{FS}:{FS+1}], v{FPA}, s[12:15], s95 offen sc0 sc1
""", 5: f"""
v_mov_b32 v{FS}, 0
v_mov_b32 v{FS+1}, 0
buffer_atomic_or_x2 v[{FS}:{FS+1}], v{FPA}, s[12:15], s95 offen sc0 sc1 nt
"""}[OPT["fpol"]]
for j_ in range(OPT["dup"]):
    r_ = KF + 4*j_
    FPOLL += f"""
{f"s_mov_b64 exec, {OPT['dupl']}" if OPT['dupl'] else ""}
v_mov_b32 v{r_}, v{VNS}
v_mov_b32 v{r_+1}, 0
v_mov_b32 v{r_+2}, v{VNS}
v_mov_b32 v{r_+3}, 0
buffer_atomic_cmpswap_x2 v[{r_}:{r_+3}], v{X+1 if OPT['dupl'] else FPA}, s[12:15], s95 offen sc0 sc1
s_mov_b64 exec, s[22:23]
"""
def pload(k):
    if OPT["nopart"] == 2: a(f"s_and_b32 exec_lo, exec_lo, 0xffff\ns_and_b32 exec_hi, exec_hi, 0xffff")
    if OPT["nopart"] == 3: a(f"s_and_b32 exec_lo, exec_lo, 0xff\ns_and_b32 exec_hi, exec_hi, 0xff")
    if OPT["nopart"] != 1: a(f"buffer_load_dwordx4 v[{PA+4*k}:{PA+4*k+3}], v{X+7}, s[12:15], s74 offen offset:{1024*k} sc1")
def ploads(m):
    for k in range(4):
        a(f"""
s_bfe_i32 exec_lo, {m}, {hex(0x10000 + 2*k)}
s_bfe_i32 exec_hi, {m}, {hex(0x10000 + 2*k + 1)}
""")
        pload(k)
FCHK = f"""
v_xor_b32 v{T}, v{FS}, v{VNS}
v_and_b32 v{T}, 0xff, v{T}
v_xor_b32 v{T+1}, v{FS+1}, v{VNS}
v_or_b32 v{T}, v{T}, v{T+1}
v_cmp_eq_u32 vcc, 0, v{T}
"""
FP_ = OPT["fp"]
def fpoll(j):
    r = (PA + 16 if PH else KF) + 4*j
    a(f"""
s_mov_b64 exec, s[22:23]
v_mov_b32 v{r}, v{VNS}
v_mov_b32 v{r+1}, 0
v_mov_b32 v{r+2}, v{VNS}
v_mov_b32 v{r+3}, 0
buffer_atomic_cmpswap_x2 v[{r}:{r+3}], v{FPA}, s[12:15], s95 offen sc0 sc1
""")
def fstep(j, cnt):
    r = (PA + 16 if PH else KF) + 4*j
    a(f"""
s_waitcnt vmcnt({cnt})
v_xor_b32 v{T}, v{r}, v{VNS}
v_and_b32 v{T}, 0xff, v{T}
v_xor_b32 v{T+1}, v{r+1}, v{VNS}
v_or_b32 v{T}, v{T}, v{T+1}
v_cmp_eq_u32 vcc, 0, v{T}
v_cndmask_b32 v{FS}, v{FS}, v{r}, vcc
""")
    if PH: a(f"""
s_and_b64 s[26:27], vcc, s[68:69]
s_mul_i32 exec_lo, s26, 0xffff
s_mul_i32 exec_hi, s27, 0xffff
s_lshr_b64 s[26:27], vcc, 1
buffer_load_dwordx4 v[{PA}:{PA+3}], v{X+7}, s[12:15], s74 offen sc1
s_and_b64 s[26:27], s[26:27], s[68:69]
s_mul_i32 exec_lo, s26, 0xffff
s_mul_i32 exec_hi, s27, 0xffff
s_andn2_b64 s[22:23], s[22:23], vcc
buffer_load_dwordx4 v[{PA+4}:{PA+7}], v{X+7}, s[12:15], s74 offen offset:1024 sc1
s_cbranch_scc0 L_f1done
""")
    else:
        a("s_mov_b32 s25, vcc_lo")
        ploads("s25")
        a(f"""
s_andn2_b32 s22, s22, s25
s_cbranch_scc0 L_f1done
""")
    fpoll(j)
    a(f"s_sleep {OPT['fps']}")
if FP_:
    NS_ = 3 if PH else 5
    if not OPT["fp0"]: a("s_mov_b32 s22, 0x30003\ns_mov_b32 s23, s22" if PH else "s_movk_i32 s22, 0xff\ns_mov_b32 s23, 0")
    for j in range(1 if OPT["fp0"] else 0, FP_):
        fpoll(j)
        if j < FP_ - 1: a(f"s_sleep {OPT['fps']}")
    for j in range(FP_): fstep(j, (FP_ - 1 - j) + NS_*j + (3 if OPT["fp0"] and j == 0 else 0))
    a.label("L_f1")
    a("s_sub_u32 s76, s76, 1\ns_cbranch_scc1 L_f1done")
    for j in range(FP_): fstep(j, NS_*(FP_ - 1))
    a("s_branch L_f1\nL_f1done:\ns_mov_b64 exec, -1")
SP = OPT["sp"]
SPL = f"""v_mov_b32 v{PA}, 0
v_mov_b32 v{PA+1}, 0
v_mov_b32 v{PA+2}, 0
v_mov_b32 v{PA+3}, 0
buffer_atomic_or_x2 v[{PA}:{PA+1}], v{X+7}, s[12:15], s74 offen sc0 sc1
buffer_atomic_or_x2 v[{PA+2}:{PA+3}], v{X+7}, s[12:15], s74 offen offset:8 sc0 sc1""" if SP & 4 else f"buffer_load_dwordx4 v[{PA}:{PA+3}], v{X+7}, s[12:15], s74 offen sc1"
SPT = f"""
{"" if SP & 1 else "s_branch L_f1"}
L_g1:
s_mov_b64 exec, s[22:23]
{FPOLL}
s_mul_i32 exec_lo, s22, 0xffff
s_mul_i32 exec_hi, s23, 0xffff
s_sub_u32 s76, s76, 1
{SPL}
s_mov_b64 exec, s[22:23]
s_waitcnt vmcnt({0 if SP & 4 else 1})
{FCHK}
s_andn2_b64 s[22:23], s[22:23], vcc
s_cbranch_scc0 L_f1done
s_branch L_f1n
""" if SP else ""
SM = OPT["sm"]
if SM:
    assert OP and not CR and not EP and not BP1 and not SP
    a(f"""
s_mov_b64 exec, -1
{"" if SO else SMC}
{f"v_mov_b32 v{T0}, 0" + chr(10) + f"v_mov_b32 v{T1}, 0" + chr(10) + "s_mov_b32 s21, 0" if LG9 else ""}
{"s_cmp_eq_u64 s[22:23], 0" + chr(10) + "s_cbranch_scc1 L_f1done" if SO else ""}
L_f1:
{f"s_bcnt1_i32_b64 s25, s[22:23]" + chr(10) + f"s_cmp_le_u32 s25, {16*OPT['sqn']}" + chr(10) + "s_cbranch_scc1 L_q" if OPT['sq'] else ""}
{"s_memrealtime s[50:51]" if LG9 else ""}
s_load_dwordx8 s[4:11], s[{P_WS}:{P_WS+1}], s95 glc
s_sub_u32 s76, s76, 1
s_waitcnt lgkmcnt(0)
""")
    if LG9: a(f"""
s_memrealtime s[48:49]
s_waitcnt lgkmcnt(0)
s_lshl_b32 s50, s50, 8
s_bcnt1_i32_b64 s51, s[22:23]
s_lshr_b32 s51, s51, 4
s_or_b32 s50, s50, s51
s_mov_b32 m0, s21
v_writelane_b32 v{T0}, s48, m0
v_writelane_b32 v{T1}, s50, m0
s_add_u32 s21, s21, 1
s_min_u32 s21, s21, 63
""")
    sm_chk()
    a(f"""
s_and_b64 exec, s[24:25], s[22:23]
s_cbranch_scc0 L_f1n
{"s_mov_b64 exec, s[24:25]" if SM == 2 else ""}
s_andn2_b64 s[22:23], s[22:23], exec
{"s_cselect_b64 exec, exec, -1" if SM == 3 else ""}
buffer_load_dwordx4 v[{PA}:{PA+3}], v{X+7}, s[12:15], s74 offen sc1
s_cbranch_scc0 L_f1done
L_f1n:
s_cmp_eq_u32 s76, 0
s_cbranch_scc1 L_f1done
{"s_sleep %d" % OPT['f1slp'] if OPT['f1slp'] else ""}
s_branch L_f1
""")
    if OPT["sq"]:
        a(f"""
L_q:
{SML}
s_sub_u32 s76, s76, 1
s_cmp_le_i32 s76, 0
s_cbranch_scc1 L_qd
{f"s_movk_i32 s33, {OPT['sqk']}" + chr(10) + "L_q2:" if OPT['sqk'] > 1 else ""}
s_sleep {OPT['sq']}
s_mov_b64 s[34:35], s[4:5]
s_mov_b64 s[36:37], s[6:7]
s_mov_b64 s[38:39], s[8:9]
s_mov_b64 s[40:41], s[10:11]
s_xor_b64 s[24:25], s[34:35], s[30:31]
s_xor_b64 s[26:27], s[36:37], s[30:31]
s_or_b64 s[24:25], s[24:25], s[26:27]
s_xor_b64 s[26:27], s[38:39], s[30:31]
s_or_b64 s[24:25], s[24:25], s[26:27]
s_xor_b64 s[26:27], s[40:41], s[30:31]
s_or_b64 s[24:25], s[24:25], s[26:27]
s_and_b64 s[24:25], s[24:25], s[28:29]
{"s_cbranch_scc0 L_qd" + chr(10) + "s_sub_u32 s33, s33, 1" + chr(10) + "s_cmp_lg_u32 s33, 0" + chr(10) + "s_cbranch_scc1 L_q2" + chr(10) + "s_branch L_q" if OPT['sqk'] > 1 else "s_cbranch_scc1 L_q"}
L_qd:
s_mov_b64 exec, -1
buffer_load_dwordx4 v[{PA}:{PA+3}], v{X+7}, s[12:15], s74 offen sc1
v_writelane_b32 v{FS}, s34, 0
v_writelane_b32 v{FS}, s36, 16
v_writelane_b32 v{FS}, s38, 32
v_writelane_b32 v{FS}, s40, 48
s_branch L_qx
""")
    a(f"""
L_f1done:
s_mov_b64 exec, -1
v_writelane_b32 v{FS}, s4, 0
v_writelane_b32 v{FS}, s6, 16
v_writelane_b32 v{FS}, s8, 32
v_writelane_b32 v{FS}, s10, 48
{"L_qx:" if OPT["sq"] else ""}
""")
a_real = a
if FP_ or SM: a = Asm()
a(f"""
{"s_mov_b32 s22, 0x00010001" if OP and not CR else "s_mov_b32 s22, 0x00030003" if PH else "s_movk_i32 s22, 0xff"}
s_mov_b32 s23, {"s22" if PH else 0}
{"s_mov_b32 s26, 0" if OPT["inc"] == 2 else ""}
{f"s_mov_b64 exec, -1" + chr(10) + f"v_mov_b32 v{T0}, 0" + chr(10) + f"v_mov_b32 v{T1}, 0" + chr(10) + "s_mov_b32 s30, 0" if LG9 else ""}
{"s_mov_b64 exec, s[22:23]" + chr(10) + "s_branch L_f1c" if BP1 or EP else ""}
{SPT}
L_f1:
{"s_memrealtime s[50:51]" if LG9 else ""}
s_mov_b64 exec, s[22:23]
{FPOLL}
s_sub_u32 s76, s76, 1
s_waitcnt vmcnt(0)
{"s_memrealtime s[48:49]" + chr(10) + "s_waitcnt lgkmcnt(0)" + chr(10) + "s_lshl_b32 s50, s50, 8" + chr(10) + "s_bcnt1_i32_b64 s51, s[22:23]" + chr(10) + "s_or_b32 s50, s50, s51" + chr(10) + "s_mov_b32 m0, s30" + chr(10) + f"v_writelane_b32 v{T0}, s48, m0" + chr(10) + f"v_writelane_b32 v{T1}, s50, m0" + chr(10) + "s_add_u32 s30, s30, 1" + chr(10) + "s_and_b32 s30, s30, 63" if LG9 else ""}
{"L_f1c:" if BP1 or EP else ""}
{FCHK}
""")
if OPT["inc"] == 2:
    a(f"""
s_mov_b32 s25, s26
s_mov_b32 s26, vcc_lo
s_andn2_b32 s22, s22, s26
s_cselect_b32 s29, 0, s26
s_or_b32 s25, s25, s29
s_cbranch_scc0 L_f1n
""")
    if OPT["ebd"]: a(f"s_cmp_lg_u32 s22, 0\ns_cbranch_scc1 L_f1x\ns_sleep {OPT['ebd']}\nL_f1x:")
    ploads("s25")
    a("s_cmp_eq_u32 s22, 0\ns_cbranch_scc1 L_f1done")
elif OP and not CR:
    a(f"""
s_cbranch_vccz L_f1n
s_mul_i32 exec_lo, vcc_lo, 0xffff
s_mul_i32 exec_hi, vcc_hi, 0xffff
s_andn2_b64 s[22:23], s[22:23], vcc
buffer_load_dwordx4 v[{PA}:{PA+3}], v{X+7}, s[12:15], s74 offen sc1
s_cbranch_scc0 L_f1done
""")
elif PH:
    a(f"""
s_cbranch_vccz L_f1n
s_and_b64 s[26:27], vcc, s[68:69]
s_mul_i32 exec_lo, s26, 0xffff
s_mul_i32 exec_hi, s27, 0xffff
s_lshr_b64 s[26:27], vcc, 1
buffer_load_dwordx4 v[{PA}:{PA+3}], v{X+7}, s[12:15], s74 offen sc1
s_and_b64 s[26:27], s[26:27], s[68:69]
s_mul_i32 exec_lo, s26, 0xffff
s_mul_i32 exec_hi, s27, 0xffff
s_andn2_b64 s[22:23], s[22:23], vcc
buffer_load_dwordx4 v[{PA+4}:{PA+7}], v{X+7}, s[12:15], {"s33 offen" if PLY else f"s74 offen offset:{2048 if CR else 1024}"} sc1
s_cbranch_scc0 L_f1done
""")
else:
    a("s_cbranch_vccz L_f1n\ns_mov_b32 s25, vcc_lo")
    if OPT["inc"]: ploads("s25")
    a("s_andn2_b32 s22, s22, s25\ns_cbranch_scc0 L_f1done")
a(f"""
L_f1n:
s_cmp_eq_u32 s76, 0
s_cbranch_scc1 L_f1done
{"s_sleep %d" % OPT['f1slp'] if OPT['f1slp'] else ""}
""")
def patom(k):
    for j in range(4): a(f"v_mov_b32 v{PA+4*k+j}, 0")
    for h in range(2): a(f"buffer_atomic_{['or', 'add', 'umax'][OPT['spo']]}_x2 v[{PA+4*k+2*h}:{PA+4*k+2*h+1}], v{X+7}, s[12:15], s74 offen offset:{1024*k+8*h} sc0 sc1")
if OPT["spec"] and PH:
    a(f"""
s_bcnt1_i32_b64 s25, s[22:23]
s_cmp_gt_u32 s25, {OPT['spec']}
s_cbranch_scc1 L_f1
L_f2:
s_mov_b64 exec, s[22:23]
{FPOLL}
s_and_b64 s[26:27], s[22:23], s[68:69]
s_mul_i32 exec_lo, s26, 0xffff
s_mul_i32 exec_hi, s27, 0xffff
s_cbranch_scc0 L_f2a
""")
    patom(0)
    a(f"""
L_f2a:
s_lshr_b64 s[26:27], s[22:23], 1
s_and_b64 s[26:27], s[26:27], s[68:69]
s_mul_i32 exec_lo, s26, 0xffff
s_mul_i32 exec_hi, s27, 0xffff
s_cbranch_scc0 L_f2b
""")
    patom(1)
    a(f"""
L_f2b:
s_mov_b64 exec, s[22:23]
s_sub_u32 s76, s76, 1
s_waitcnt vmcnt(0)
{FCHK}
s_andn2_b64 s[22:23], s[22:23], vcc
s_cbranch_scc0 L_f1done
s_cmp_eq_u32 s76, 0
s_cbranch_scc1 L_f1done
{"s_sleep %d" % OPT['f2slp'] if OPT['f2slp'] else ""}
s_branch L_f2
""")
elif OPT["spec"]:
    a(f"""
s_bcnt1_i32_b32 s25, s22
s_cmp_gt_u32 s25, {OPT['spec']}
s_cbranch_scc1 L_f1
L_f2:
s_mov_b64 exec, s[22:23]
{FPOLL}
""")
    ploads("s22")
    a(f"""
s_mov_b64 exec, s[22:23]
s_sub_u32 s76, s76, 1
s_waitcnt vmcnt(0)
{FCHK}
s_andn2_b32 s22, s22, vcc_lo
s_cbranch_scc0 L_f1done
s_cmp_eq_u32 s76, 0
s_cbranch_scc1 L_f1done
{"s_sleep %d" % OPT['f2slp'] if OPT['f2slp'] else ""}
s_branch L_f2
""")
if SP & 2:
    a(f"""
s_bcnt1_i32_b64 s25, s[22:23]
s_cmp_le_u32 s25, {OPT['spn']}
s_cbranch_scc1 L_g1
""")
if OPT["f1th"]:
    a(f"""
s_bcnt1_i32_b64 s25, s[22:23]
s_cmp_le_u32 s25, {OPT['f1th']}
s_cbranch_scc1 L_f1
s_sleep {OPT['f1sl2']}
""")
a(f"""
s_branch L_f1
L_f1done:
s_mov_b64 exec, -1
""")
a = a_real
if not OPT["inc"]:
    for k in range(4): pload(k)
if OPT["bpe"] == 1: bp_early()
if OPT["stamps"]: a("s_memrealtime s[100:101]")
def red8h(r, op, src):
    a(f"v_mov_b32 v{r}, v{src}" if OP else f"{op}_dpp v{r}, v{src}, v{src} quad_perm:[1,0,3,2] row_mask:0xf bank_mask:0xf")
    for sw in ("v_permlane16_swap_b32", "v_permlane32_swap_b32"):
        a(f"v_mov_b32 v{r+1}, v{r}\n{sw} v{r}, v{r+1}\n{op} v{r}, v{r}, v{r+1}")
(red8h if PH else red8)(T, "v_max_f32", FS)
a(f"""
v_sub_f32 v{FS}, v{FS}, v{T}
v_exp_f32 v{FS}, v{FS}
""")
(red8h if PH else red8)(T, "v_add_f32", FS)
a(f"""
v_rcp_f32 v{T}, v{T}
v_mul_f32 v{FS}, v{FS}, v{T}
""")
if PH:
    for d in range(1, 4): a(f"v_lshrrev_b32 v{TT+8+d}, {d}, v{X+8}")
    for k in range(1 if OP and not CR else 2): a(f"v_mov_b32_dpp v{WT+k}, v{FS} row_newbcast:{k} row_mask:0xf bank_mask:0xf")
else:
    for x in range(8): a(f"v_readlane_b32 s{32+x}, v{FS}, {x}")
    for k in range(4): a(f"v_mov_b32 v{WT+k}, s{32+2*k+1}")
    a("s_mov_b32 exec_hi, 0")
    for k in range(4): a(f"v_mov_b32 v{WT+k}, s{32+2*k}")
def tag_chk(grans, t, VNS=VNS):
    for n_, r in enumerate(grans):
        a(f"v_perm_b32 v{t+2*n_}, v{r+1}, v{r}, s{SEL+4}\nv_perm_b32 v{t+2*n_+1}, v{r+3}, v{r+2}, s{SEL+5}")
    for n_, r in enumerate(grans):
        a(f"v_xor_b32 v{t+2*n_}, v{t+2*n_}, v{VNS}")
    for n_, r in enumerate(grans):
        a(f"v_xor_b32 v{t+2*n_}, v{t+2*n_}, v{t+2*n_+1}")
    if len(grans) == 4:
        a(f"v_or3_b32 v{t}, v{t}, v{t+2}, v{t+4}\nv_or_b32 v{t}, v{t}, v{t+6}")
    else:
        a(f"v_or_b32 v{t}, v{t}, v{t+2}")
    a(f"v_cmp_ne_u32 vcc, 0, v{t}")
AWP = OPT["awp"]
a.label("L_pchk")
a("s_mov_b64 exec, -1\ns_waitcnt vmcnt(0)" + (" lgkmcnt(0)" if OPT["sq"] else ""))
if AWP: a(f"ds_read_b32 v{T}, v{FL} offset:16")
if CR:
    PP = (P, PA + 8)
    for k in range(2):
        for d in range(4):
            for h in range(2):
                a(f"v_fma_mix_f32 v{PP[k]+2*d+h}, v{WT+k}, v{PA+4*k+d}, 0 op_sel:[0,{h},0] op_sel_hi:[0,1,0]")
    for p_ in PP:
        for j in range(4): a(f"v_permlane32_swap_b32 v{p_+j}, v{p_+4+j}")
    for p_ in PP:
        for j in range(4): a(f"v_add_f32 v{p_+j}, v{p_+j}, v{p_+4+j}")
    for p_ in PP: a(f"v_permlane16_swap_b32 v{p_}, v{p_+2}\nv_permlane16_swap_b32 v{p_+1}, v{p_+3}")
    for p_ in PP: a(f"v_add_f32 v{p_}, v{p_}, v{p_+2}\nv_add_f32 v{p_+1}, v{p_+1}, v{p_+3}")
    for p_ in PP: a(f"v_cvt_pk_bf16_f32 v{p_}, v{p_}, v{p_+1}")
    for k in range(2): a(f"ds_write_b32 v{X+10}, v{PP[k]} offset:{8*OST*k}")
    for j in range(8): a(f"v_xor_b32 v{TT+j}, v{PA+j}, v{TT+8+(j & 3) if j & 3 else X+8}")
    a(f"""
v_or3_b32 v{TT}, v{TT}, v{TT+1}, v{TT+2}
v_or3_b32 v{TT+3}, v{TT+3}, v{TT+4}, v{TT+5}
v_or3_b32 v{TT}, v{TT}, v{TT+6}, v{TT+7}
v_or_b32 v{TT}, v{TT}, v{TT+3}
v_and_b32 v{TT}, s68, v{TT}
v_cmp_ne_u32 vcc, 0, v{TT}
""")
elif PH:
    for k in range(1 if OP else 2):
        for d in range(4):
            for h in range(2):
                a(f"v_fma_mix_f32 v{P+2*d+h}, v{WT+k}, v{PA+4*k+d}, {f'v{P+2*d+h}' if k else 0} op_sel:[0,{h},0] op_sel_hi:[0,1,0]")
    for j in range(4): a(f"v_permlane32_swap_b32 v{P+j}, v{P+4+j}")
    for j in range(4): a(f"v_add_f32 v{P+j}, v{P+j}, v{P+4+j}")
    a(f"""
v_permlane16_swap_b32 v{P}, v{P+2}
v_permlane16_swap_b32 v{P+1}, v{P+3}
v_add_f32 v{P}, v{P}, v{P+2}
v_add_f32 v{P+1}, v{P+1}, v{P+3}
v_cvt_pk_bf16_f32 v{P}, v{P}, v{P+1}
ds_write_b32 v{X+10}, v{P}
""")
    for j in range(4 if OP else 8): a(f"v_xor_b32 v{TT+j}, v{PA+j}, v{TT+8+(j & 3) if j & 3 else X+8}")
    a(f"""
v_or3_b32 v{TT}, v{TT}, v{TT+1}, v{TT+2}
{"" if OP else f"v_or3_b32 v{TT+3}, v{TT+3}, v{TT+4}, v{TT+5}"}
{"" if OP else f"v_or3_b32 v{TT}, v{TT}, v{TT+6}, v{TT+7}"}
v_or_b32 v{TT}, v{TT}, v{TT+3}
v_and_b32 v{TT}, s68, v{TT}
v_cmp_ne_u32 vcc, 0, v{TT}
""")
else:
    for k in range(4):
        for j in range(4): a(f"v_{'mul' if k == 0 else 'fmac'}_f32 v{P+j}, v{WT+k}, v{PA+4*k+j}")
    a(f"""
v_permlane32_swap_b32 v{P}, v{P+2}
v_permlane32_swap_b32 v{P+1}, v{P+3}
v_add_f32 v{P}, v{P}, v{P+2}
v_add_f32 v{P+1}, v{P+1}, v{P+3}
v_cvt_pk_bf16_f32 v{P}, v{P}, v{P+1}
ds_write_b32 v{X+10}, v{P}
""")
    tag_chk([PA+4*k for k in range(4)], TT)
if not OPT["nopart"]: a("s_cbranch_vccnz L_prep")
a.label("L_pdone")
stamp(4)
BB = AA + 8
def bpoll():
    for k in range(2):
        a(f"buffer_load_dwordx4 v[{BB+4*k}:{BB+4*k+3}], v{X+13}, s[12:15], s98 offen offset:{2048*k} sc1")
a(f"s_cmp_lg_u32 s3, {OPT['fin']}\ns_cbranch_scc1 L_nobp")
if not OPT["bdel"] and OPT["bpe"] in (0, 3): bpoll()
D_ = PA + 16
if AWP:
    a(f"""
L_nobp:
s_waitcnt lgkmcnt({2 if CR else 1})
v_readfirstlane_b32 s33, v{T}
{"" if CR else "s_cmp_gt_u32 s3, 3" + chr(10) + "s_cbranch_scc1 L_nopre"}
s_cmp_eq_u32 s33, 0
s_cbranch_scc1 L_nopre
""")
    for s_ in range(4): aw_rd(s_)
    a("s_mov_b64 exec, s[70:71]\ns_waitcnt lgkmcnt(8)\ns_barrier")
    if DRY: a.label("L_m0")
    for s_ in range(4): a(f"ds_read_b128 v[{PA+4*s_}:{PA+4*s_+3}], v{X+12} offset:{64*s_}")
    a("s_mov_b64 exec, -1")
    for s_ in range(4):
        a(f"""
s_waitcnt lgkmcnt({3-s_})
v_mfma_f32_16x16x32_bf16 v[{D_}:{D_+3}], v[{AW+4*s_}:{AW+4*s_+3}], v[{PA+4*s_}:{PA+4*s_+3}], {"0" if s_ == 0 else f"v[{D_}:{D_+3}]"}
""")
    a.label("L_mmd")
    a_real = a; a = Asm()
    a.label("L_nopre")
else: a.label("L_nobp")
a(f"""
s_cmp_gt_u32 s3, 3
s_waitcnt lgkmcnt(0)
s_barrier
{"" if CR else "s_cbranch_scc1 L_nomm"}
""")
for s_ in range(4):
    a(f"ds_read_b128 v[{PA+4*s_}:{PA+4*s_+3}], v{X+12} offset:{64*s_}")
    if OPT["lb"]: aw_rd(s_)
for s_ in range(4):
    a(f"""
s_waitcnt lgkmcnt({(3-s_)*(3 if OPT["lb"] else 1)})
v_mfma_f32_16x16x32_bf16 v[{D_}:{D_+3}], v[{AW+4*s_}:{AW+4*s_+3}], v[{PA+4*s_}:{PA+4*s_+3}], {"0" if s_ == 0 else f"v[{D_}:{D_+3}]"}
""")
if AWP:
    a("s_branch L_mmd")
    ool.append("\n".join(a.L)); a = a_real
a("s_mov_b64 exec, s[70:71]")
tag_ins(D_, VNS, SEL)
if LH:
    a(f"buffer_store_dwordx4 v[{D_}:{D_+3}], v{X+11}, s[12:15], s65 offen sc1\ns_mov_b64 exec, -1")
elif OPT["xm"]:
    st2("L_as", f"buffer_store_dwordx4 v[{D_}:{D_+3}], v{X+11}, s[12:15], s65 offen")
    a("s_mov_b64 exec, -1")
else:
    a(f"""
{"" if OPT["noa"] else f"buffer_store_dwordx4 v[{D_}:{D_+3}], v{X+11}, s[12:15], s65 offen"}
{"" if OPT["nob"] else f"buffer_store_dwordx4 v[{D_}:{D_+3}], v{X+11}, s[12:15], s64 offen sc1"}
s_mov_b64 exec, -1
""")
if CR:
    ool.append("L_prod:\n" + ("s_memrealtime s[100:101]\ns_memrealtime s[88:89]\n" if OPT["stamps"] else "") + "s_mov_b64 exec, -1\ns_waitcnt lgkmcnt(0)\ns_branch L_nomm")
a.label("L_nomm")
stamp(5)
if OPT["hbn"]:
    a(f"""
s_cmp_eq_u32 s3, {OPT['fin']}
s_cbranch_scc1 L_nofar
s_mov_b64 exec, 0xffff
buffer_store_dwordx4 v[{X+16}:{X+19}], v{X+25}, s[12:15], s63 offen sc1
s_cmp_lg_u32 s3, {OPT['fin']+1}
s_cbranch_scc1 L_nofar
ds_read_b128 v[{T}:{T+3}], v{X+24} offset:{(-256) & 0xffff}
""" if False else f"""
s_cmp_eq_u32 s3, {OPT['fin']}
s_cbranch_scc1 L_nofar
s_sleep 4
s_mov_b64 exec, 0xffff
buffer_store_dwordx4 v[{X+16}:{X+19}], v{X+25}, s[12:15], s63 offen sc1
s_cmp_lg_u32 s3, {OPT['fin']-1}
s_cbranch_scc1 L_nofar
ds_read_b128 v[{KF}:{KF+3}], v{X+24} offset:256
s_add_u32 s63, s63, 16384
s_waitcnt lgkmcnt(0)
buffer_store_dwordx4 v[{KF}:{KF+3}], v{X+25}, s[12:15], s63 offen sc1
L_nofar:
s_mov_b64 exec, -1
""")
def wstamps():
    if LOG or LG9:
        a(f"""
s_lshl_b32 s29, s16, 3
s_add_u32 s29, s29, s3
s_lshl_b32 s29, s29, 9
s_add_u32 s29, s29, 0x500000
v_lshlrev_b32 v{T}, 2, v0
buffer_store_dword v{T0}, v{T}, s[12:15], s29 offen
buffer_store_dword v{T1}, v{T}, s[12:15], s29 offen offset:256
""")
    a(f"""
s_lshl_b32 s29, s16, 3
s_add_u32 s29, s29, s3
s_lshl_b32 s29, s29, 4
s_add_u32 s29, s29, {STAMP+0x10000}
s_add_u32 s96, s96, {2+NST}
s_waitcnt lgkmcnt(0)
v_mov_b32 v{T}, s84
v_mov_b32 v{T+1}, s85
v_mov_b32 v{T+2}, s82
v_mov_b32 v{T+3}, s96
s_mov_b64 exec, 1
buffer_store_dwordx4 v[{T}:{T+3}], v{ZR}, s[12:15], s29 offen
s_add_u32 s29, s29, 0x8000
s_nop 4
v_mov_b32 v{T}, s86
v_mov_b32 v{T+1}, s88
v_mov_b32 v{T+2}, s90
v_mov_b32 v{T+3}, s77
buffer_store_dwordx4 v[{T}:{T+3}], v{ZR}, s[12:15], s29 offen
s_add_u32 s29, s29, 0x8000
s_nop 4
v_mov_b32 v{T}, s100
buffer_store_dword v{T}, v{ZR}, s[12:15], s29 offen
s_add_u32 s29, s29, 0x8000
s_nop 4
v_mov_b32 v{T}, s4
v_mov_b32 v{T+1}, s6
v_mov_b32 v{T+2}, s8
v_mov_b32 v{T+3}, s10
buffer_store_dwordx4 v[{T}:{T+3}], v{ZR}, s[12:15], s29 offen
s_add_u32 s29, s29, 0x8000
s_nop 4
v_mov_b32 v{T}, s48
v_mov_b32 v{T+1}, s50
v_mov_b32 v{T+2}, s54
v_mov_b32 v{T+3}, s56
buffer_store_dwordx4 v[{T}:{T+3}], v{ZR}, s[12:15], s29 offen
s_mov_b64 exec, -1
s_nop 4
""")
if OPT["stamps"]:
    a(f"s_mov_b32 s77, s76\ns_cmp_eq_u32 s3, {OPT['fin']}\ns_cbranch_scc1 L_fin")
    wstamps()
    a("s_endpgm\nL_fin:")
else:
    a(f"s_cmp_lg_u32 s3, {OPT['fin']}\ns_cbranch_scc1 L_end")
a(f"""
s_mov_b32 s76, {SPIN}
s_movk_i32 s23, {OPT['na']}
""")
srd(60, P_OUT, 8192)
A3 = KF + 8; FB = KF + 12
def red(d, s0):
    for r in range(4): a(f"v_add_f32 v{d+r}, v{s0+r}, v{s0+4+r}")
    a(f"""
v_permlane32_swap_b32 v{d}, v{d+2}
v_permlane32_swap_b32 v{d+1}, v{d+3}
v_add_f32 v{d}, v{d}, v{d+2}
v_add_f32 v{d+1}, v{d+1}, v{d+3}
v_permlane16_swap_b32 v{d}, v{d+1}
v_add_f32 v{d}, v{d}, v{d+1}
v_add_f32_dpp v{d}, v{d}, v{d} row_ror:8 row_mask:0xf bank_mask:0xf
v_add_f32_dpp v{d}, v{d}, v{d} row_ror:4 row_mask:0xf bank_mask:0xf
""")
def gate(d, g):
    a(f"""
v_cvt_pk_bf16_f32 v{d}, v{d}, v{d}
v_lshlrev_b32 v{d}, 16, v{d}
v_mul_f32 v{d}, v{g}, v{d}
v_cvt_pk_bf16_f32 v{d}, v{d}, v{d}
v_lshlrev_b32 v{d}, 16, v{d}
""")
def far(regs):
    if OPT["xm"]:
        a("s_sub_u32 s76, s76, 1"); return
    a(f"s_sub_u32 s23, s23, 1\ns_cselect_b32 s25, {CPB-CPA}, 0")
    for r in regs: a(f"s_add_u32 s{r}, s{r}, s25")
    a("s_sub_u32 s76, s76, 1")
if OPT["bdel"]:
    backoff(OPT["bdel"]); bpoll()
MP = OPT["mp"]
def apoll():
    for k in range(2):
        a(f"buffer_load_dwordx4 v[{AA+4*k}:{AA+4*k+3}], v{X+13}, s[12:15], s66 offen offset:{2048*k} sc1")
if MP: a("s_mov_b64 exec, -1"); apoll()
a.label("L_bchk")
a("s_mov_b64 exec, -1")
far([66, 98] if OPT["bpa"] else [66])
a(f"s_waitcnt vmcnt({2 if MP else 0})")
tag_chk([BB, BB+4], TT)
a(f"""
s_cbranch_vccz L_bdone
s_cmp_eq_u32 s76, 0
s_cbranch_scc1 L_bdone
s_mov_b64 exec, vcc
s_sleep {OPT['bsl']}
""")
bpoll()
if MP: a("s_mov_b64 exec, -1"); apoll()
a("s_branch L_bchk")
a.label("L_bdone")
def fine4(k):
    if OPT["fine"] == 4: a(f"s_memrealtime s[{[4,6,8,10,48,50,54,56][k]}:{[4,6,8,10,48,50,54,56][k]+1}]")
fine4(0)
red(FB, BB); gate(FB, GV+1)
fine4(1)
if OPT["fine"] == 4: a("s_mov_b32 s8, 0")
if OPT["asl0"]: a(f"s_sleep {OPT['asl0']}")
if LH and OPT["lha"]:
    E_ = KF + 4; PAd = KF + 5
    a(f"""
v_and_b32 v{TT}, 1, v0
v_lshrrev_b32 v{TT+1}, 5, v0
v_lshl_add_u32 v{TT+1}, v{TT}, 1, v{TT+1}
v_bfe_u32 v{TT+2}, v0, 1, 2
v_lshl_add_u32 v{TT+3}, v{TT+1}, 4, v{TT+2}
v_lshlrev_b32 v{TT+3}, 2, v{TT+3}
ds_bpermute_b32 v{FB}, v{TT+3}, v{FB}
ds_bpermute_b32 v{GV}, v{TT+3}, v{GV}
v_lshlrev_b32 v{X+23}, 10, v{TT+2}
v_lshl_add_u32 v{X+23}, v{TT+1}, 1, v{X+23}
v_lshlrev_b32 v{TT}, 4, v{TT}
v_lshrrev_b32 v{E_}, v{TT}, v{VNS}
v_and_b32 v{E_}, 0xffff, v{E_}
v_lshl_add_u32 v{E_}, v{E_}, 16, v{E_}
v_lshrrev_b32 v{PAd}, 3, v0
v_and_b32 v{TT}, 7, v0
v_lshlrev_b32 v{TT}, 3, v{TT}
v_lshl_add_u32 v{PAd}, v{PAd}, 9, v{TT}
L_apoll:
""")
    if OPT["lha"] == 1:
        for r in range(8): a(f"v_mov_b32 v{AA+r}, 0")
    for k in range(4): a(f"buffer_atomic_or_x2 v[{AA+2*k}:{AA+2*k+1}], v{PAd}, s[12:15], s66 offen offset:{128*k} sc0 sc1" if OPT["lha"] == 1 else f"buffer_load_dwordx2 v[{AA+2*k}:{AA+2*k+1}], v{PAd}, s[12:15], s66 offen offset:{128*k} sc1")
    a("s_mov_b64 exec, -1\ns_sub_u32 s76, s76, 1\ns_waitcnt vmcnt(0)")
    tag_chk([AA, AA+4], TT, E_)
    a(f"""
s_cbranch_vccz L_adone
v_or_b32_dpp v{TT}, v{TT}, v{TT} quad_perm:[1,0,3,2] row_mask:0xf bank_mask:0xf
v_or_b32_dpp v{TT}, v{TT}, v{TT} quad_perm:[2,3,0,1] row_mask:0xf bank_mask:0xf
v_or_b32_dpp v{TT}, v{TT}, v{TT} row_half_mirror row_mask:0xf bank_mask:0xf
v_cmp_ne_u32 vcc, 0, v{TT}
s_mov_b64 exec, vcc
{"s_sleep %d" % OPT["aslp"] if OPT["aslp"] else ""}
s_cmp_lg_u32 s76, 0
s_cbranch_scc1 L_apoll
s_mov_b64 exec, -1
L_adone:
v_add_f32 v{A3}, v{AA}, v{AA+2}
v_add_f32 v{A3+1}, v{AA+1}, v{AA+3}
v_add_f32 v{A3+2}, v{AA+4}, v{AA+6}
v_add_f32 v{A3+3}, v{AA+5}, v{AA+7}
v_add_f32 v{A3}, v{A3}, v{A3+2}
v_add_f32 v{A3+1}, v{A3+1}, v{A3+3}
v_permlane32_swap_b32 v{A3}, v{A3+1}
v_add_f32 v{A3}, v{A3}, v{A3+1}
v_mov_b32 v{A3+1}, v{A3}
v_permlane16_swap_b32 v{A3}, v{A3+1}
v_add_f32 v{A3}, v{A3}, v{A3+1}
v_add_f32_dpp v{A3}, v{A3}, v{A3} row_ror:8 row_mask:0xf bank_mask:0xf
s_waitcnt lgkmcnt(0)
""")
    gate(A3, GV)
    a_keep = a; a = Asm()
AP_ = OPT["ap"]
if AP_:
    SETS = [AA, AW, AW + 8][:AP_]
    def aiss(r):
        for k in range(2):
            a(f"buffer_load_dwordx4 v[{r+4*k}:{r+4*k+3}], v{X+13}, s[12:15], s66 offen offset:{2048*k} sc1")
    for j, r in enumerate(SETS):
        aiss(r)
        if j < AP_ - 1: a(f"s_sleep {OPT['aps']}")
    a.label("L_ap")
    for j, r in enumerate(SETS):
        a(f"s_mov_b64 exec, -1\ns_waitcnt vmcnt({2*(AP_-1)})")
        tag_chk([r, r+4], TT)
        a(f"s_cbranch_vccz L_ad{j}\ns_mov_b64 exec, vcc")
        aiss(r)
    a("s_sub_u32 s76, s76, 1\ns_cmp_gt_i32 s76, 0\ns_cbranch_scc1 L_ap\ns_mov_b64 exec, -1\ns_waitcnt vmcnt(0)")
    for j, r in reversed(list(enumerate(SETS))):
        a.label(f"L_ad{j}")
        if j: red(A3, r); a("s_branch L_ax")
    a_ap = a; a = Asm()
if MP: a("s_branch L_mp")
a.label("L_apoll")
for k in range(2):
    a(f"buffer_load_dwordx4 v[{AA+4*k}:{AA+4*k+3}], v{X+13}, s[12:15], s66 offen offset:{2048*k} sc1")
if MP: a.label("L_mp")
if OPT["aw"] & 1: a("s_mov_b64 vcc, -1\ns_branch L_adone\nL_aw:")
a("s_mov_b64 exec, -1")
far([66])
a("s_waitcnt vmcnt(0)")
if OPT["fine"] == 4: a("s_cmp_lg_u32 s8, 0\ns_cbranch_scc1 L_fx\ns_memrealtime s[8:9]\ns_waitcnt lgkmcnt(0)\nL_fx:")
tag_chk([AA, AA+4], TT)
a(f"""
s_cbranch_vccz L_adone
s_mov_b64 exec, vcc
{"s_sleep %d" % OPT["aslp"] if OPT["aslp"] else ""}
s_cmp_lg_u32 s76, 0
s_cbranch_scc1 L_apoll
s_mov_b64 exec, -1
{"s_mov_b64 vcc, 0" if OPT["aw"] & 1 else ""}
""")
a.label("L_adone")
if AP_: a = a_ap
fine4(3)
red(A3, AA)
if AP_: a("L_ax:\ns_nop 1")
gate(A3, GV)
if LH and OPT["lha"]: a = a_keep
a(f"""
v_add_f32 v{A3}, v{A3}, v{FB}
v_cvt_pk_bf16_f32 v{A3}, v{A3}, v{A3}
""")
a(f"""
s_mov_b32 exec_lo, {0xff if LH and OPT["lha"] else 0x000f000f}
s_mov_b32 exec_hi, {0xff if LH and OPT["lha"] else 0x000f000f}
{"s_cbranch_vccnz L_aw" if OPT["aw"] & 1 else ""}
buffer_store_short v{A3}, v{X+23}, s[60:63], s99 offen {['', 'sc1', 'nt', 'sc0 sc1'][OPT['opol']]}
s_mov_b64 exec, -1
""")
if OPT["stamps"]:
    stamp(6)
    wstamps()
    a(f"s_lshl_b32 s29, s16, 6\ns_add_u32 s29, s29, {STAMP}\ns_waitcnt lgkmcnt(0)")
    for k in range(7):
        a(f"v_mov_b32 v{T}, s{80+2*k}\nv_mov_b32 v{T+1}, s{81+2*k}\nbuffer_store_dwordx2 v[{T}:{T+1}], v{ZR}, s[12:15], s29 offen offset:{8*k}\ns_nop 1")
    a(f"v_mov_b32 v{T}, s76\nbuffer_store_dword v{T}, v{ZR}, s[12:15], s29 offen offset:56")
a("s_endpgm")
for t_ in ool: a(t_)
a.label("L_prep")
a(f"""
s_sub_u32 s76, s76, {256 if OPT["stamps"] else 1}
s_cmp_le_i32 s76, 0
s_cbranch_scc1 L_pdone
{"" if PH else "s_mov_b64 exec, vcc"}
""")
for k in range(1 if OP and not CR else 2 if PH else 4):
    if PH and OPT["spec"]: patom(k)
    else: a(f"buffer_load_dwordx4 v[{PA+4*k}:{PA+4*k+3}], v{X+7}, s[12:15], {'s33 offen' if PLY and k else f's74 offen offset:{(2048 if CR else 1024)*k}'} sc1")
a("s_branch L_pchk")
a.label("L_end")
a("s_endpgm")
a.L += ['.section .rodata,"a"', ".p2align 6", f".amdhsa_kernel {NAME}_kernel",
        "  .amdhsa_next_free_vgpr 168", "  .amdhsa_next_free_sgpr 102", "  .amdhsa_accum_offset 168",
        "  .amdhsa_group_segment_fixed_size 0", "  .amdhsa_kernarg_size 104", "  .amdhsa_user_sgpr_count 2",
        "  .amdhsa_user_sgpr_kernarg_segment_ptr 1", "  .amdhsa_system_sgpr_workgroup_id_x 1", ".end_amdhsa_kernel"]
if OPT["sf"]:
    L = a.L
    i0 = L.index("L_stream:")
    i1 = i0; c_ = 0
    while c_ < min(NPRE, OPT["sf"]*4):
        i1 += 1
        if "buffer_load_dwordx4" in L[i1]: c_ += 1
    head = L[i0+1:i1+1]
    del L[i0+1:i1+1]
    j = L.index("  s_cbranch_scc1 L_stream")
    L[j:j+1] = ["  s_cbranch_scc0 L_help"] + head + ["  s_branch L_stream", "L_help:"]
txt, n = a.text()
open(out, "w").write(txt)
print(f"wrote {out}: {len(txt.splitlines())} lines, {n} nops inserted", file=sys.stderr)
```
